```python
import torch

def _softmax(x, axis=-1):
    return torch.softmax(x, dim=axis)
def _gelu(x):
    return torch.nn.functional.gelu(x, approximate="tanh")
def _silu(x):
    return torch.nn.functional.silu(x)
def _sigmoid(x):
    return torch.sigmoid(x)
def _layernorm(x, axis=-1, eps=1e-5):
    m = x.mean(dim=axis, keepdim=True)
    v = x.var(dim=axis, keepdim=True, unbiased=False)
    return (x - m) / torch.sqrt(v + eps)
def _scatter_add(tgt, idx, src, axis=0):
    return tgt.clone().index_add_(axis, idx, src)
def _segment_sum(src, seg, n):
    out = torch.zeros((n,) + src.shape[1:], dtype=src.dtype)
    return out.index_add_(0, seg, src)
def _pad(x, pw):
    flat = tuple(v for pair in reversed(pw) for v in pair)
    return torch.nn.functional.pad(x, flat)

kernel_name = 'sequential_preLN__spectral_gfnet__glu_gated_bilinear__prompt'

def setup_inputs():

    _w = (lambda a: (lambda t: t.to(torch.bfloat16) if t.is_floating_point() else t)(torch.as_tensor(a)))
    def _A_setup():
        B, S, D = 1, 2048, 448
        Df = D // 2 + 1
        return {
            "x": _w((lambda *s: torch.randn(*s, dtype=torch.bfloat16) * 0.05)(B, S, D)),
            "w_r": _w((lambda *s: torch.randn(*s, dtype=torch.bfloat16) * 0.4)(S, Df) * 0.02),
            "w_i": _w((lambda *s: torch.randn(*s, dtype=torch.bfloat16) * 0.4)(S, Df) * 0.02),
        }
    _A_in = _A_setup()

    def _B_setup():
        B, S, D, F = 1, 2048, 448, 1792
        return {
            "x": _w((lambda *s: torch.randn(*s, dtype=torch.bfloat16) * 0.05)(B, S, D)),
            "w_gate": _w((lambda *s: torch.randn(*s, dtype=torch.bfloat16) * 0.2)(D, F) * (D ** -0.5)),
            "w_up": _w((lambda *s: torch.randn(*s, dtype=torch.bfloat16) * 0.2)(D, F) * (D ** -0.5)),
            "w_down": _w((lambda *s: torch.randn(*s, dtype=torch.bfloat16) * 0.2)(F, D) * (F ** -0.5)),
        }
    _B_in = _B_setup()

    return {
        "A_x": _A_in["x"],
        "A_w_r": _A_in["w_r"],
        "A_w_i": _A_in["w_i"],
        "B_x": _B_in["x"],
        "B_w_gate": _B_in["w_gate"],
        "B_w_up": _B_in["w_up"],
        "B_w_down": _B_in["w_down"],
    }

def reference(A_x, A_w_r, A_w_i, B_x, B_w_gate, B_w_up, B_w_down):
    def _A_ref(x, w_r, w_i):
        B, S, D = x.shape
        X = (lambda x, axes=(-2,-1): torch.fft.rfft2(x.float(), dim=axes))(x, axes=(-2, -1))
        W = w_r + 1j * w_i
        X = X * W
        y = (lambda x, s, axes=(-2,-1): torch.fft.irfft2(x, s=s, dim=axes).to(torch.bfloat16))(X, (S, D), axes=(-2, -1))
        return y

    def _B_ref(x, w_gate, w_up, w_down):
        g = torch.einsum("bsd,df->bsf", x, w_gate)
        u = torch.einsum("bsd,df->bsf", x, w_up)
        h = g * u
        return torch.einsum("bsf,fd->bsd", h, w_down)

    x = A_x
    h = x + _A_ref(_layernorm(x, axis=-1), A_w_r, A_w_i)
    h2 = h + _B_ref(_layernorm(h, axis=-1), B_w_gate, B_w_up, B_w_down)
    return h2
```

```python
import re

TRANS = ("v_exp_f32", "v_log_f32", "v_rcp_f32", "v_rsq_f32", "v_sqrt_f32", "v_sin_f32", "v_cos_f32")
RMW = ("v_fmac_f32", "v_dot2c_f32_bf16", "v_pk_fmac", "v_writelane_b32")
SWAPS = ("v_swap_b32", "v_permlane16_swap_b32", "v_permlane32_swap_b32")


def v(i, n=1):
    return f"v{i}" if n == 1 else f"v[{i}:{i+n-1}]"


def a(i, n=1):
    return f"a{i}" if n == 1 else f"a[{i}:{i+n-1}]"


def s(i, n=1):
    return f"s{i}" if n == 1 else f"s[{i}:{i+n-1}]"


_REG = re.compile(r"^-?\|?(?:abs\()?([vas])(?:(\d+)|\[(\d+):(\d+)\])\)?\|?$")


def regs_of(tok):
    tok = tok.strip()
    if tok in ("vcc", "exec"):
        return {tok + "_lo", tok + "_hi"}
    if tok in ("vcc_lo", "vcc_hi", "exec_lo", "exec_hi", "m0"):
        return {tok}
    m = _REG.match(tok)
    if not m:
        return set()
    k = m.group(1)
    if m.group(2) is not None:
        return {k + m.group(2)}
    return {k + str(i) for i in range(int(m.group(3)), int(m.group(4)) + 1)}


def is_vec(r):
    return r[0] == "v" and r[1:].isdigit() or r[0] == "a" and r[1:].isdigit()


class Ins:
    def __init__(self, text):
        self.text = text
        t = text.split(";")[0].strip()
        self.label = None
        self.kind = "other"
        self.w = set()
        self.r = set()
        self.srcc = set()
        self.srcab = set()
        self.passes = 0
        self.states = 1
        self.target = None
        self.dpp = False
        self.lds_dma = False
        self.store_data = set()
        self.op = ""
        if not t or t.startswith("."):
            self.kind = "dir"
            self.states = 0
            return
        if t.endswith(":"):
            self.label = t[:-1]
            self.kind = "label"
            self.states = 0
            return
        parts = t.split(None, 1)
        op = parts[0]
        op = re.sub(r"_(e32|e64|dpp|sdwa)$", "", op)
        self.op = op
        rest = parts[1] if len(parts) > 1 else ""
        ops, depth, cur = [], 0, ""
        for ch in rest:
            if ch in "[(":
                depth += 1
            if ch in "])":
                depth -= 1
            if ch == "," and depth == 0:
                ops.append(cur.strip())
                cur = ""
            else:
                cur += ch
        if cur.strip():
            ops.append(cur.strip())
        mods = ""
        if ops:
            last = ops[-1].split(None, 1)
            ops[-1] = last[0]
            mods = last[1] if len(last) > 1 else ""
        self.mods = mods
        R = [regs_of(o) for o in ops]
        if op == "s_nop":
            self.kind = "nop"
            self.states = int(ops[0], 0) + 1
        elif op == "s_waitcnt":
            self.kind = "wait"
            self.vm = self.lgkm = None
            m = re.search(r"vmcnt\((\d+)\)", rest)
            if m:
                self.vm = int(m.group(1))
            m = re.search(r"lgkmcnt\((\d+)\)", rest)
            if m:
                self.lgkm = int(m.group(1))
        elif op.startswith("s_cbranch") or op == "s_branch":
            self.kind = "branch"
            self.target = ops[0]
        elif op in ("s_endpgm",):
            self.kind = "end"
        elif op.startswith("s_load") or op in ("s_memtime", "s_memrealtime"):
            self.kind = "smem"
            self.w = R[0]
            for x in R[1:]:
                self.r |= x
        elif op.startswith("s_"):
            self.kind = "salu"
            if op.startswith("s_cmp") or op.startswith("s_bitcmp") or op in ("s_barrier", "s_sleep", "s_setprio"):
                for x in R:
                    self.r |= x
            else:
                if R:
                    self.w = R[0]
                for x in R[1:]:
                    self.r |= x
                if "saveexec" in op:
                    self.w |= regs_of("exec")
                if op.startswith("s_addk") or op.startswith("s_mulk"):
                    self.r |= R[0]
        elif op.startswith("v_mfma"):
            self.kind = "mfma"
            self.w = R[0]
            self.srcab = R[1] | R[2]
            self.srcc = R[3]
            self.r = self.srcab | self.srcc
            self.passes = 8 if "32x32x16" in op else 4 if "16x16x32" in op or "16x16x16" in op else None
            assert self.passes
        elif op.startswith("v_"):
            self.kind = "valu"
            self.dpp = any(k in mods for k in ("quad_perm", "row_", "wave_"))
            if op.startswith("v_cmp"):
                self.w = R[0]
                for x in R[1:]:
                    self.r |= x
            elif op in SWAPS:
                self.w = R[0] | R[1]
                self.r = R[0] | R[1]
            else:
                self.w = R[0]
                for x in R[1:]:
                    self.r |= x
                if op in RMW or self.dpp:
                    self.r |= R[0]
                if "_co_" in op:
                    self.w |= R[1]
        elif op.startswith("ds_"):
            self.kind = "ds"
            if op.startswith("ds_read") or "permute" in op or "swizzle" in op:
                self.w = R[0]
                for x in R[1:]:
                    self.r |= x
            else:
                for x in R:
                    self.r |= x
        elif op.startswith("buffer_") or op.startswith("global_"):
            self.kind = "vmem"
            self.lds_dma = bool(re.search(r"\blds\b", mods))
            if op in ("buffer_inv", "buffer_wbl2"):
                pass
            elif "load" in op and not self.lds_dma:
                self.w = R[0]
                for x in R[1:]:
                    self.r |= x
            else:
                for x in R:
                    self.r |= x
                if self.lds_dma:
                    self.r.add("m0")
                if "store" in op and ("x3" in op or "x4" in op):
                    self.store_data = R[0] if op.startswith("buffer") else R[1]
                if "atomic" in op and "sc0" in mods:
                    self.w = R[0]
        else:
            raise ValueError("unknown instruction: " + text)


def need(p, c):
    n = 0
    cv = c.kind == "valu"
    if p.kind == "valu":
        pw_s = {x for x in p.w if not is_vec(x)}
        pw_v = p.w - pw_s
        if pw_s & c.r:
            if c.kind == "vmem":
                n = max(n, 5)
            if cv:
                n = max(n, 4 if c.op in ("v_readlane_b32", "v_writelane_b32") else 2)
        if pw_v & c.r:
            if cv and c.dpp:
                n = max(n, 2)
            if c.op in ("v_readlane_b32", "v_readfirstlane_b32"):
                n = max(n, 1)
            if c.op.startswith("v_permlane"):
                n = max(n, 2)
            if c.kind == "mfma":
                n = max(n, 2)
            if p.op in TRANS and cv and c.op not in TRANS:
                n = max(n, 1)
            if p.op in TRANS and c.kind in ("vmem", "ds"):
                n = max(n, 1)
        if p.op.startswith("v_dot") and (pw_v & (c.r | c.w)) and c.kind in ("valu", "vmem", "ds", "mfma"):
            same_chain = c.op == p.op and (pw_v & c.w) and p.op in RMW
            if not same_chain:
                n = max(n, 3)
    if p.kind == "salu" and "m0" in p.w and c.lds_dma:
        n = max(n, 1)
    if p.kind == "vmem" and p.store_data & c.w:
        n = max(n, 2 if cv else 1)
    if p.kind == "mfma":
        big = 12 if p.passes == 8 else 8
        if c.kind == "mfma":
            if p.w & c.srcab:
                n = max(n, big)
            if p.w & c.srcc and not (p.w == c.srcc and p.passes == c.passes):
                n = max(n, big - 2)
        elif c.kind in ("valu", "vmem", "ds"):
            if p.w & (c.r | c.w):
                n = max(n, big)
            if cv and p.srcc & c.w:
                n = max(n, 7 if p.passes == 8 else 3)
    return n


WINDOW = 14


def fix_hazards(lines):
    ins = [Ins(t) for t in lines]
    for _ in range(6):
        changed = False
        snap = getattr(fix_hazards, "_snap", {})
        out = []
        state = []
        newsnap = {}
        for c in ins:
            if c.kind == "label":
                for st in snap.get(c.label, []) + newsnap.get(c.label, []):
                    state = state + [[p, d] for p, d in st]
                out.append(c)
                continue
            if c.kind == "dir":
                out.append(c)
                continue
            req = 0
            for p, d in state:
                req = max(req, need(p, c) - d)
            if req > 0:
                changed = True
                while req > 0:
                    k = min(req, 16)
                    nop = Ins(f"s_nop {k-1}")
                    out.append(nop)
                    for e in state:
                        e[1] += k
                    req -= k
            out.append(c)
            for e in state:
                e[1] += c.states
            state = [e for e in state if e[1] < WINDOW]
            if c.kind in ("valu", "mfma", "vmem", "salu"):
                state.append([c, 0])
            if c.kind == "branch":
                newsnap.setdefault(c.target, []).append([(p, d) for p, d in state])
                if c.op == "s_branch":
                    state = []
            if c.kind == "end":
                state = []
        ins = out
        fix_hazards._snap = newsnap
        if not changed and _ > 0:
            break
    fix_hazards._snap = {}
    return ins


def check_waits(ins, name=""):
    vm, lg = [], []
    errs = []
    for n, c in enumerate(ins):
        if c.kind == "wait":
            if c.vm is not None:
                while len(vm) > c.vm:
                    vm.pop(0)
            if c.lgkm is not None:
                if any(k == "smem" for k, _ in lg):
                    if c.lgkm == 0:
                        lg = []
                else:
                    while len(lg) > c.lgkm:
                        lg.pop(0)
            continue
        if c.kind == "end" or (c.kind == "branch" and c.op == "s_branch"):
            vm, lg = [], []
            continue
        touched = c.r | c.w
        for q in (vm, lg):
            for k, w in q:
                if w & touched:
                    errs.append(f"{name}: '{c.text.strip()}' touches {sorted(w & touched)[:4]} with a load pending")
        if c.kind == "vmem" and c.op not in ("buffer_inv",):
            vm.append(("vmem", set(c.w)))
            if len(vm) > 63:
                errs.append(f"{name}: more than 63 vm ops outstanding at '{c.text.strip()}'")
        if c.kind == "ds":
            lg.append(("ds", set(c.w)))
        if c.kind == "smem":
            lg.append(("smem", set(c.w)))
    return errs


class Kern:
    def __init__(self, name, vgpr, agpr, sgpr=96):
        self.name = name
        self.vgpr = vgpr
        self.agpr = agpr
        self.sgpr = sgpr
        self.lines = []
        self._lab = 0

    def __call__(self, text):
        for t in text.split("\n"):
            t = t.strip()
            if t:
                self.lines.append(t)

    def lab(self, stem):
        self._lab += 1
        return f"L_{self.name}_{stem}_{self._lab}"

    def label(self, name):
        self.lines.append(name + ":")

    def srd(self, d, base, nbytes):
        self(f"s_mov_b32 s{d}, s{base}")
        self(f"s_and_b32 s{d+1}, s{base+1}, 0xffff")
        self(f"s_mov_b32 s{d+2}, {nbytes}")
        self(f"s_mov_b32 s{d+3}, 0x20000")

    def srd_off(self, d, base, off, nbytes):
        self(f"s_add_u32 s{d}, s{base}, {off}")
        self(f"s_addc_u32 s{d+1}, s{base+1}, 0")
        self(f"s_and_b32 s{d+1}, s{d+1}, 0xffff")
        self(f"s_mov_b32 s{d+2}, {nbytes}")
        self(f"s_mov_b32 s{d+3}, 0x20000")

    def emit(self):
        ins = fix_hazards(self.lines)
        errs = check_waits(ins, self.name)
        if errs:
            raise RuntimeError("\n".join(errs[:20]))
        mv = ma = ms = -1
        for c in ins:
            for r in c.r | c.w:
                if is_vec(r):
                    if r[0] == "v":
                        mv = max(mv, int(r[1:]))
                    else:
                        ma = max(ma, int(r[1:]))
                elif r[0] == "s" and r[1:].isdigit():
                    ms = max(ms, int(r[1:]))
        acc = max(4, (mv + 1 + 3) // 4 * 4)
        nfv = acc + ma + 1 if ma >= 0 else mv + 1
        assert mv < 256 and ma < 256 and ms < 102
        body = [f".globl {self.name}", ".p2align 8", f".type {self.name},@function", f"{self.name}:"]
        for c in ins:
            body.append(c.text if c.kind == "label" else "    " + c.text)
        desc = [
            f".amdhsa_kernel {self.name}",
            f"  .amdhsa_next_free_vgpr {nfv}",
            f"  .amdhsa_next_free_sgpr {max(ms + 1, 16)}",
            f"  .amdhsa_accum_offset {acc}",
            "  .amdhsa_group_segment_fixed_size 0",
            "  .amdhsa_kernarg_size 80",
            "  .amdhsa_user_sgpr_count 2",
            "  .amdhsa_user_sgpr_kernarg_segment_ptr 1",
            "  .amdhsa_system_sgpr_workgroup_id_x 1",
            "  .amdhsa_float_denorm_mode_32 3",
            ".end_amdhsa_kernel",
        ]
        self.stats = dict(vgpr=mv + 1, agpr=ma + 1, sgpr=ms + 1, nins=len(ins),
                          nops=sum(1 for c in ins if c.kind == "nop"))
        return "\n".join(body), "\n".join(desc)
```

```python
from asmlib import Kern, v, a, s
from gen import *

XT = 114688
R2 = 122880
FF = 65536
K3_LDS = 123392
SPIN_MAX = 1 << 18


def group_sync(k, n, sW, sFlag):
    skip, loop, done = k.lab("skip"), k.lab("poll"), k.lab("done")
    k("s_waitcnt vmcnt(0) lgkmcnt(0)")
    k("s_barrier")
    k(f"s_cmp_lg_u32 s{sW}, 0")
    k(f"s_cbranch_scc1 {skip}")
    k("s_mov_b64 exec, 1")
    k("v_mov_b32 v2, 1")
    k(f"buffer_atomic_add v2, off, s[8:11], s{sFlag} offset:{0} sc1")
    k(f"s_mov_b32 s50, {SPIN_MAX}")
    k.label(loop)
    k(f"buffer_load_dword v2, off, s[8:11], s{sFlag} sc1")
    k("s_sub_u32 s50, s50, 1")
    k("s_cmp_eq_u32 s50, 0")
    k(f"s_cbranch_scc1 {done}")
    k("s_waitcnt vmcnt(0)")
    k("v_readfirstlane_b32 s51, v2")
    k("s_cmp_lt_u32 s51, 14")
    k(f"s_cbranch_scc1 {loop}")
    k.label(done)
    k("s_waitcnt vmcnt(0)")
    k("s_mov_b64 exec, -1")
    k.label(skip)
    k("s_barrier")


def gen_k3():
    k = Kern("k3_kernel", 0, 0)
    END = k.lab("end")
    sW, sRB, sCT, sHALF, sRT, sFB = 20, 21, 22, 23, 24, 25
    k("s_cmp_ge_u32 s2, 224")
    k(f"s_cbranch_scc1 {END}")
    k("s_load_dwordx2 s[4:5], s[0:1], 0")
    k("s_load_dwordx2 s[6:7], s[0:1], 72")
    k("s_load_dwordx2 s[44:45], s[0:1], 56")
    k("v_lshrrev_b32 v2, 6, v0")
    k("v_and_b32 v1, 63, v0")
    k(f"v_readfirstlane_b32 s{sW}, v2")
    k("s_lshr_b32 s26, s2, 3")
    div7(k, 27, 26)
    k("s_mul_i32 s28, s27, 7")
    k(f"s_sub_u32 s{sCT}, s26, s28")
    k("s_bfe_u32 s28, s2, 0x20001")
    k(f"s_lshl2_add_u32 s{sRB}, s28, s27")
    k(f"s_and_b32 s{sHALF}, s2, 1")
    k(f"s_lshl1_add_u32 s{sRT}, s{sRB}, s{sHALF}")
    k(f"s_mul_i32 s28, s{sHALF}, 7")
    k(f"s_add_u32 s28, s28, s{sCT}")
    k(f"s_lshl2_add_u32 s{sFB}, s28, s{sW}")
    vL16, vG, vC = 3, 4, 5
    k(f"v_lshlrev_b32 {v(vL16)}, 4, v1")
    k(f"v_lshrrev_b32 {v(vG)}, 4, v1")
    k(f"v_and_b32 {v(vC)}, 15, v1")
    k(f"v_and_b32 v6, 1, {v(vG)}")
    k("v_lshlrev_b32 v6, 1, v6")
    k(f"s_and_b32 s26, s{sW}, 1")
    k("s_lshl_b32 s26, s26, 2")
    k("v_or_b32 v6, s26, v6")
    k("v_and_b32 v7, 7, v1")
    k("v_xor_b32 v6, v6, v7")
    k("v_lshrrev_b32 v8, 3, v1")
    k("v_lshlrev_b32 v9, 12, v8")
    k("v_lshl_add_u32 v6, v6, 4, v9")
    k(f"s_lshl_b32 s26, s{sW}, 15")
    k(f"s_lshl_b32 s27, s{sRT}, 7")
    k("s_add_u32 s26, s26, s27")
    k(f"s_add_u32 s26, s26, {BT}")
    k(f"s_lshl_b32 s27, s{sW}, 10")
    k("s_mov_b32 m0, s27")
    k("s_waitcnt lgkmcnt(0)")
    k.srd(8, 6, WS_BYTES)
    for t in range(14):
        k("buffer_load_dwordx4 v6, s[8:11], s26 offen lds")
        if t < 13:
            k("s_add_u32 m0, m0, 4096")
            k("s_add_u32 s26, s26, 0x20000")
    vXO = 10
    k.srd(12, 4, XB)
    k("v_lshrrev_b32 v9, 5, v1")
    k("v_and_b32 v8, 3, v8")
    k("v_lshl_add_u32 v8, v9, 4, v8")
    k("v_mul_u32_u24 v8, 0x380, v8")
    k(f"v_xor_b32 v7, v7, {v(vG)}")
    k(f"v_lshl_add_u32 {v(vXO)}, v7, 4, v8")
    k(f"v_xor_b32 {v(vXO+1)}, 64, {v(vXO)}")
    k(f"v_add_u32 {v(vXO+1)}, {32*896}, {v(vXO+1)}")
    sSB, sXO = 30, 31
    k(f"s_lshr_b32 s26, s{sRT}, 3")
    k("s_lshl_b32 s26, s26, 9")
    k(f"s_lshl_b32 s27, s{sHALF}, 8")
    k("s_add_u32 s26, s26, s27")
    k(f"s_and_b32 s27, s{sRB}, 3")
    k(f"s_lshl2_add_u32 s{sSB}, s27, s26")
    k(f"s_lshl_b32 s26, s{sW}, 6")
    k(f"s_add_u32 s26, s26, s{sSB}")
    k("s_mul_i32 s26, s26, 896")
    k(f"s_lshl_b32 s27, s{sCT}, 7")
    k(f"s_add_u32 s{sXO}, s26, s27")
    k(f"s_lshl_b32 s27, s{sW}, 11")
    k(f"s_add_u32 m0, s27, {XT}")
    k(f"buffer_load_dwordx4 {v(vXO)}, s[12:15], s{sXO} offen lds")
    k(f"s_add_u32 m0, s27, {XT+1024}")
    k(f"buffer_load_dwordx4 {v(vXO+1)}, s[12:15], s{sXO} offen lds")
    vM = 12
    k("v_bfe_u32 v7, v1, 3, 2")
    k("v_bfe_u32 v8, v1, 2, 1")
    k("v_lshlrev_b32 v8, 4, v8")
    k("v_lshl_add_u32 v7, v7, 5, v8")
    k("v_and_b32 v8, 3, v1")
    k("v_add_lshl_u32 v7, v7, v8, 2")
    k(f"s_lshl_b32 s26, s{sSB}, 2")
    k(f"s_add_u32 s26, s26, {M1}")
    k(f"buffer_load_dword {v(vM)}, v7, s[8:11], s26 offen")
    k(f"buffer_load_dword {v(vM+1)}, v7, s[8:11], s26 offen offset:512")
    sWS = 32
    k(f"s_mul_i32 s{sWS}, s{sFB}, 57344")
    k(f"s_add_u32 s{sWS}, s{sWS}, {WS}")
    NW1 = 44

    def wload(n):
        k(f"buffer_load_dwordx4 {a(4*n,4)}, {v(vL16)}, s[8:11], s{sWS} offen offset:{(n%4)*1024}")
        if n % 4 == 3:
            k(f"s_add_u32 s{sWS}, s{sWS}, 4096")

    for n in range(NW1):
        wload(n)
    k.srd(16, 44, XB)
    vGm = 32
    vB, vST, vE, vT = 14, 15, 15, 20
    k(f"s_lshl_b32 s26, s{sCT}, 6")
    k(f"s_lshl_b32 s27, s{sW}, 4")
    k("s_add_u32 s26, s26, s27")
    k(f"v_add_u32 v7, s26, {v(vC)}")
    k("v_cvt_f32_u32 v7, v7")
    for p in range(1, 4):
        k(f"v_mul_f32 {v(vE+p)}, {f2u(p/448.0)}, v7")
    k(f"v_mul_f32 {v(vST)}, {f2u(16.0/448)}, v7")
    k(f"v_fract_f32 {v(vST)}, {v(vST)}")
    k(f"v_lshl_add_u32 v8, {v(vG)}, 2, 1")
    k("v_cvt_f32_u32 v8, v8")
    k(f"v_mul_f32 {v(vB)}, v8, {v(vE+1)}")
    k(f"v_fract_f32 {v(vB)}, {v(vB)}")
    for t in range(14):
        k(f"v_cos_f32 {v(vT+4)}, {v(vB)}")
        k(f"v_sin_f32 {v(vT)}, {v(vB)}")
        for p in range(1, 4):
            k(f"v_add_f32 {v(vT+p)}, {v(vB)}, {v(vE+p)}")
        if t < 13:
            k(f"v_add_f32 {v(vB)}, {v(vB)}, {v(vST)}")
            k(f"v_fract_f32 {v(vB)}, {v(vB)}")
        for p in range(1, 4):
            k(f"v_cos_f32 {v(vT+4+p)}, {v(vT+p)}")
            k(f"v_sin_f32 {v(vT+p)}, {v(vT+p)}")
        for p in range(4):
            k(f"v_cvt_pk_bf16_f32 {v(vGm+4*t+p)}, {v(vT+4+p)}, -{v(vT+p)}")
    vTB = 14
    k("v_bfe_u32 v7, v1, 2, 2")
    k(f"v_lshlrev_b32 v8, 10, {v(vG)}")
    k("v_lshl_add_u32 v8, v7, 7, v8")
    k("v_and_b32 v9, 3, v1")
    k("v_lshl_add_u32 v8, v9, 3, v8")
    k("v_lshrrev_b32 v7, 1, v7")
    k(f"v_and_b32 v9, 1, {v(vG)}")
    k("v_lshl_add_u32 v7, v9, 1, v7")
    k(f"v_lshl_add_u32 {v(vTB)}, v7, 5, v8")
    for nb in range(1, 4):
        k(f"v_xor_b32 {v(vTB+nb)}, {32*nb}, {v(vTB)}")
    vXA = 18
    k("v_lshrrev_b32 v7, 5, v1")
    k(f"s_lshl_b32 s26, s{sW}, 1")
    k("v_or_b32 v7, s26, v7")
    k("v_bfe_u32 v8, v1, 1, 3")
    k("v_xor_b32 v7, v7, v8")
    k("v_and_b32 v8, 31, v1")
    k("v_lshlrev_b32 v8, 7, v8")
    k("v_lshl_add_u32 v7, v7, 4, v8")
    k(f"v_add_u32 {v(vXA)}, {XT}, v7")
    k(f"s_waitcnt vmcnt({NW1})")
    k("s_barrier")
    vR, vA = 88, 120
    seq = [(t, nb) for t in range(14) for nb in range(4)]

    def rd(n):
        t, nb = seq[n]
        for u in range(2):
            k(f"ds_read_b64_tr_b16 {v(vR+4*(n%8)+2*u,2)}, {v(vTB+nb)} offset:{t*4096+u*512}")

    DEPTH = 6
    for n in range(DEPTH):
        rd(n)
    for n in range(56):
        t, nb = seq[n]
        k(f"s_waitcnt lgkmcnt({2*min(DEPTH-1, 55-n)})")
        c = "0" if t == 0 else v(vA + 4 * nb, 4)
        k(f"v_mfma_f32_16x16x32_bf16 {v(vA+4*nb,4)}, {v(vGm+4*t,4)}, {v(vR+4*(n%8),4)}, {c}")
        if n + DEPTH < 56:
            rd(n + DEPTH)
    vX = 20
    k(f"ds_read_b128 {v(vX,4)}, {v(vXA)}")
    k(f"ds_read_b128 {v(vX+4,4)}, {v(vXA)} offset:4096")
    k(f"s_lshl_b32 s26, s{sRT}, 1")
    k("s_mul_i32 s26, s26, 28")
    k(f"s_lshl2_add_u32 s27, s{sCT}, s{sW}")
    k("s_add_u32 s26, s26, s27")
    k("s_lshl_b32 s26, s26, 10")
    k(f"s_add_u32 s26, s26, {HC}")
    k(f"s_add_u32 s27, s26, {28*1024}")
    for p in range(2):
        for r in range(4):
            k(f"v_permlane16_swap_b32 {v(vA+8*p+r)}, {v(vA+8*p+4+r)}")
    k("s_waitcnt lgkmcnt(0)")
    vH, vHc, vU = 32, 40, 48
    for p in range(2):
        for q in range(4):
            y0, y1 = vA + 8 * p + 2 * q, vA + 8 * p + 2 * q + 1
            k(f"v_lshlrev_b32 {v(vU)}, 16, {v(vX+4*p+q)}")
            k(f"v_and_b32 {v(vU+1)}, 0xffff0000, {v(vX+4*p+q)}")
            k(f"v_add_f32 {v(y0)}, {v(y0)}, {v(vU)}")
            k(f"v_add_f32 {v(y1)}, {v(y1)}, {v(vU+1)}")
            k(f"v_cvt_pk_bf16_f32 {v(vH+4*p+q)}, {v(y0)}, {v(y1)}")
            k(f"v_sub_f32 {v(y0)}, {v(y0)}, {v(vM+p)}")
            k(f"v_sub_f32 {v(y1)}, {v(y1)}, {v(vM+p)}")
            k(f"v_cvt_pk_bf16_f32 {v(vHc+4*p+q)}, {v(y0)}, {v(y1)}")
        k(f"buffer_store_dwordx4 {v(vHc+4*p,4)}, {v(vL16)}, s[8:11], s{26+p} offen sc1")
        k(f"ds_write_b128 {v(vXA)}, {v(vH+4*p,4)} offset:{4096*p}")
    sFL = 33
    k(f"s_lshl_b32 s{sFL}, s{sRB}, 8")
    k(f"s_add_u32 s{sFL}, s{sFL}, {FL}")
    k(f"s_lshl2_add_u32 s26, s{sRB}, s{sW}")
    k("s_mul_i32 s26, s26, 28672")
    k(f"s_add_u32 s26, s26, {HC}")
    k(f"s_mul_i32 s27, s{sW}, 28672")
    vB1, vBS, vSS = 6, 7, 8
    k(f"v_add_u32 {v(vB1)}, 57344, {v(vL16)}")
    k(f"v_add_u32 {v(vBS)}, s27, {v(vL16)}")
    k(f"v_mov_b32 {v(vSS)}, 0")
    k(f"v_mov_b32 {v(vSS+1)}, 0")
    sWD = 34
    k(f"s_mul_i32 s28, s{sCT}, 112")
    k(f"s_mul_i32 s29, s{sW}, 28")
    k("s_add_u32 s28, s28, s29")
    k("s_lshl_b32 s28, s28, 11")
    k(f"s_add_u32 s28, s28, {WD}")
    k(f"s_and_b32 s29, s{sW}, 1")
    k("s_lshl_b32 s29, s29, 10")
    k(f"s_add_u32 s{sWD}, s28, s29")
    k(f"s_xor_b32 s{sWD+1}, s{sWD}, 1024")
    group_sync(k, 0, sW, sFL)
    k("s_mov_b32 m0, s27")
    for n in range(28):
        k(f"buffer_load_dwordx4 {v(vL16)}, s[8:11], s26 offen offset:{(n%4)*1024} sc1 lds")
        if n % 4 == 3 and n < 27:
            k("s_add_u32 m0, m0, 4096")
            k("s_add_u32 s26, s26, 4096")
    for n in range(NW1, 56):
        wload(n)
    vF, vFS, vAcc = 32, 48, 128

    def rd4(kp, sb):
        base = vL16 if sb < 2 else vB1
        k(f"ds_read_b128 {v(vF+4*sb,4)}, {v(base)} offset:{(sb&1)*28672+kp*1024}")

    def rds(kp):
        k(f"ds_read_b128 {v(vFS,4)}, {v(vBS)} offset:{kp*1024}")

    nrest = 56 - NW1
    k(f"s_waitcnt vmcnt({21+nrest})")
    k("s_barrier")
    for sb in range(4):
        rd4(0, sb)
    rds(0)
    for kp in range(28):
        last = kp == 27
        if kp in (6, 13, 20):
            n = (kp + 1) // 7
            k(f"s_waitcnt vmcnt({28-7*(n+1)+nrest+2*kp})")
            k("s_barrier")
        if kp == NW1 // 2:
            k(f"s_waitcnt vmcnt({2*kp})")
        for sb in range(4):
            k(f"s_waitcnt lgkmcnt({4-sb if last else 4})")
            for m in range(2):
                acc = vAcc + 32 * sb + 16 * m
                c = "0" if kp == 0 else v(acc, 16)
                k(f"v_mfma_f32_32x32x16_bf16 {v(acc,16)}, {a(8*kp+4*m,4)}, {v(vF+4*sb,4)}, {c}")
            if not last:
                rd4(kp + 1, sb)
            if sb == 1:
                k(f"s_waitcnt lgkmcnt({0 if last else 2})")
                for p in range(4):
                    k(f"v_dot2c_f32_bf16 {v(vSS+(p&1))}, {v(vFS+p)}, {v(vFS+p)}")
        if not last:
            rds(kp + 1)
        for m in range(2):
            k(f"buffer_load_dwordx4 {a(8*kp+4*m,4)}, {v(vL16)}, s[8:11], s{sWD+m} offen offset:{(kp%2)*2048}")
        if kp % 2 == 1:
            k(f"s_add_u32 s{sWD}, s{sWD}, 4096")
            k(f"s_add_u32 s{sWD+1}, s{sWD+1}, 4096")
    k(f"v_add_f32 {v(vSS)}, {v(vSS)}, {v(vSS+1)}")
    k(f"v_mov_b32 {v(vSS+1)}, {v(vSS)}")
    k(f"v_permlane32_swap_b32 {v(vSS)}, {v(vSS+1)}")
    k(f"v_add_f32 {v(vSS)}, {v(vSS)}, {v(vSS+1)}")
    k(f"v_mov_b32 {v(vSS+1)}, {f2u(EPS)}")
    k(f"v_fmac_f32 {v(vSS+1)}, {f2u(1.0/448)}, {v(vSS)}")
    k(f"v_rcp_f32 {v(vSS)}, {v(vSS+1)}")
    k("v_and_b32 v6, 31, v1")
    k(f"s_lshl_b32 s26, s{sW}, 7")
    k(f"s_add_u32 s26, s26, {R2}")
    k("v_lshl_add_u32 v7, v6, 2, s26")
    k(f"ds_write_b32 v7, {v(vSS)}")
    k(f"s_mul_i32 s26, s{sRB}, {4*112}")
    k(f"s_lshl1_add_u32 s26, s{sFB}, s26")
    k("s_lshl_b32 s26, s26, 10")
    k(f"s_add_u32 s26, s26, {HP}")
    vO = 32
    k("s_waitcnt vmcnt(48)")
    for sb in range(4):
        g_, u_ = vAcc + 32 * sb, vAcc + 32 * sb + 16
        for r in range(0, 16, 2):
            k(f"v_pk_mul_f32 {v(g_+r,2)}, {v(g_+r,2)}, {v(u_+r,2)}")
        for r in range(8):
            k(f"v_cvt_pk_bf16_f32 {v(vO+8*sb+r)}, {v(g_+2*r)}, {v(g_+2*r+1)}")
        for u in range(2):
            k(f"buffer_store_dwordx4 {v(vO+8*sb+4*u,4)}, {v(vL16)}, s[8:11], s26 offen offset:{u*1024} sc1")
        if sb < 3:
            k(f"s_add_u32 s26, s26, {112*1024}")
    k(f"s_add_u32 s{sFL}, s{sFL}, 4096")
    sHP = 26
    k(f"s_lshr_b32 s28, s{sW}, 1")
    k(f"s_lshl1_add_u32 s29, s{sRT}, s28")
    k("s_mul_i32 s26, s29, 112")
    k("s_xor_b32 s29, s29, 1")
    k("s_mul_i32 s27, s29, 112")
    k(f"s_mul_i32 s29, s{sW}, 28")
    for p in range(2):
        k(f"s_add_u32 s{sHP+p}, s{sHP+p}, s29")
        k(f"s_lshl_b32 s{sHP+p}, s{sHP+p}, 10")
        k(f"s_add_u32 s{sHP+p}, s{sHP+p}, {HP}")
    group_sync(k, 1, sW, sFL)
    vQ, vAc5, NR = 32, 192, 20

    def hload(kp):
        for p in range(2):
            k(f"buffer_load_dwordx4 {v(vQ+8*(kp%NR)+4*p,4)}, {v(vL16)}, s[8:11], s{sHP+p} offen offset:{(kp%4)*1024} sc1")
        if kp % 4 == 3:
            k(f"s_add_u32 s{sHP}, s{sHP}, 4096")
            k(f"s_add_u32 s{sHP+1}, s{sHP+1}, 4096")

    for kp in range(NR):
        hload(kp)
    vRW = 12
    for sg in range(1, 4):
        k(f"s_xor_b32 s29, s{sW}, {sg}")
        k("s_mul_i32 s29, s29, 12288")
        k(f"s_add_u32 s29, s29, {(sg-1)*4096}")
        k(f"v_add_u32 {v(vRW+sg-1)}, s29, {v(vL16)}")
    k(f"s_mul_i32 s29, s{sW}, 12288")
    k(f"v_add_u32 v15, s29, {v(vL16)}")
    k(f"s_lshl1_add_u32 s29, s{sHALF}, s28")
    k("s_lshl_b32 s29, s29, 7")
    k(f"s_add_u32 s29, s29, {R2}")
    k("v_lshl_add_u32 v7, v6, 2, s29")
    k("ds_read_b32 v16, v7")
    k("v_lshrrev_b32 v7, 5, v1")
    k("v_lshlrev_b32 v7, 2, v7")
    k("v_bfe_u32 v8, v1, 1, 3")
    k("v_xor_b32 v7, v7, v8")
    k("v_lshlrev_b32 v8, 7, v6")
    k("v_lshl_add_u32 v7, v7, 4, v8")
    k("s_lshl_b32 s28, s28, 12")
    k(f"s_and_b32 s29, s{sW}, 1")
    k("s_lshl3_add_u32 s28, s29, s28")
    k(f"s_add_u32 s28, s28, {FF}")
    k("v_add_u32 v20, s28, v7")
    for q in range(1, 4):
        k(f"v_xor_b32 {v(20+q)}, {16*q}, v20")
    k(f"s_lshl_b32 s28, s{sW}, 11")
    k(f"v_add_u32 v24, s28, {v(vL16)}")
    k(f"v_add_u32 v25, {XT}, v24")
    k(f"v_add_u32 v24, {FF}, v24")
    issued = NR
    for kp in range(28):
        k(f"s_waitcnt vmcnt({2*(issued-kp-1)})")
        for p in range(2):
            for dl in range(2):
                acc = vAc5 + 16 * (dl + 2 * p)
                c = "0" if kp == 0 else v(acc, 16)
                k(f"v_mfma_f32_32x32x16_bf16 {v(acc,16)}, {a(8*kp+4*dl,4)}, {v(vQ+8*(kp%NR)+4*p,4)}, {c}")
        if issued < 28:
            hload(issued)
            issued += 1
    for sg in range(1, 4):
        for z in range(4):
            k(f"ds_write_b128 {v(vRW+sg-1)}, {v(vAc5+16*sg+4*z,4)} offset:{z*1024}")
    k("s_waitcnt lgkmcnt(0)")
    k("s_barrier")
    for j in range(3):
        for z in range(4):
            k(f"ds_read_b128 {v(vQ+16*j+4*z,4)}, v15 offset:{j*4096+z*1024}")
    k(f"ds_read_b128 {v(vQ+64,4)}, v25")
    k(f"ds_read_b128 {v(vQ+68,4)}, v25 offset:1024")
    for j in range(3):
        k(f"s_waitcnt lgkmcnt({10-4*j})")
        for r in range(0, 16, 2):
            k(f"v_pk_add_f32 {v(vAc5+r,2)}, {v(vAc5+r,2)}, {v(vQ+16*j+r,2)}")
    for r in range(16):
        k(f"v_mul_f32 {v(vAc5+r)}, {v(vAc5+r)}, v16")
    for q in range(4):
        k(f"v_cvt_pk_bf16_f32 {v(vQ+2*q)}, {v(vAc5+q)}, {v(vAc5+4+q)}")
        k(f"v_cvt_pk_bf16_f32 {v(vQ+2*q+1)}, {v(vAc5+8+q)}, {v(vAc5+12+q)}")
        k(f"ds_write_b64 {v(20+q)}, {v(vQ+2*q,2)}")
    k("s_waitcnt lgkmcnt(0)")
    k("s_barrier")
    k(f"ds_read_b128 {v(vQ+16,4)}, v24")
    k(f"ds_read_b128 {v(vQ+20,4)}, v24 offset:1024")
    for q in range(2):
        k(f"s_waitcnt lgkmcnt({1-q})")
        for p in range(4):
            f_, h_ = vQ + 16 + 4 * q + p, vQ + 64 + 4 * q + p
            k(f"v_lshlrev_b32 v26, 16, {v(f_)}")
            k(f"v_lshlrev_b32 v27, 16, {v(h_)}")
            k(f"v_and_b32 {v(f_)}, 0xffff0000, {v(f_)}")
            k(f"v_and_b32 {v(h_)}, 0xffff0000, {v(h_)}")
            k("v_add_f32 v26, v26, v27")
            k(f"v_add_f32 {v(f_)}, {v(f_)}, {v(h_)}")
            k(f"v_cvt_pk_bf16_f32 {v(f_)}, v26, {v(f_)}")
        k(f"buffer_store_dwordx4 {v(vQ+16+4*q,4)}, {v(vXO+q)}, s[16:19], s{sXO} offen")
    k.label(END)
    k("s_endpgm")
    return k
```

```python
import struct
import sys
from asmlib import Kern, v, a, s

S, D, F = 2048, 448, 1792
AT = 0x000000
WT = 0x200000
BT = 0x400000
HC = 0x600000
WS = 0x800000
WD = 0xC00000
HP = 0xE00000
M1 = 0x1500000
FL = 0x1510000
WS_BYTES = 0x1520000
XB = S * D * 2
WRB = S * 225 * 2
WGB = D * F * 2
EPS = 1e-5


def f2u(x):
    return "0x%08x" % struct.unpack("<I", struct.pack("<f", x))[0]


N_WT, N_WS, N_WD = 224, 392, 196
K1_SIDE_WGS = (N_WT + N_WS + N_WD) // 4
K1_WGS = 224 + K1_SIDE_WGS
K1_LDS = 57344 + 512


def div7(k, dst, src):
    k(f"s_mul_i32 s{dst}, s{src}, 37")
    k(f"s_lshr_b32 s{dst}, s{dst}, 8")


def xlane_sum(k, r, t):
    k(f"v_mov_b32 {v(t)}, {v(r)}")
    k(f"v_permlane16_swap_b32 {v(r)}, {v(t)}")
    k(f"v_add_f32 {v(r)}, {v(r)}, {v(t)}")
    k(f"v_mov_b32 {v(t)}, {v(r)}")
    k(f"v_permlane32_swap_b32 {v(r)}, {v(t)}")
    k(f"v_add_f32 {v(r)}, {v(r)}, {v(t)}")


def gen_k1():
    k = Kern("k1_kernel", 0, 0)
    END = k.lab("end")
    SIDE = k.lab("side")
    sW = 20
    k(f"s_cmp_ge_u32 s2, {K1_WGS}")
    k(f"s_cbranch_scc1 {END}")
    k("s_load_dwordx2 s[4:5], s[0:1], 0")
    k("s_load_dwordx2 s[6:7], s[0:1], 72")
    k("v_lshrrev_b32 v2, 6, v0")
    k("v_and_b32 v1, 63, v0")
    k(f"v_readfirstlane_b32 s{sW}, v2")
    k("s_cmp_ge_u32 s2, 224")
    k(f"s_cbranch_scc1 {SIDE}")
    sRT, sCT = 21, 22
    k("s_and_b32 s23, s2, 7")
    k("s_lshr_b32 s24, s2, 3")
    div7(k, 25, 24)
    k("s_mul_i32 s26, s25, 7")
    k(f"s_sub_u32 s{sCT}, s24, s26")
    k(f"s_lshl2_add_u32 s{sRT}, s23, s25")
    k("v_lshrrev_b32 v4, 5, v1")
    k("v_bfe_u32 v5, v1, 3, 2")
    k("v_lshl_add_u32 v4, v4, 4, v5")
    k("s_movk_i32 s26, 0x7000")
    k("v_mul_u32_u24 v4, s26, v4")
    k("v_lshrrev_b32 v5, 4, v1")
    k("v_and_b32 v6, 7, v1")
    k("v_xor_b32 v6, v6, v5")
    k("v_lshl_add_u32 v2, v6, 4, v4")
    k("v_xor_b32 v3, 64, v2")
    k(f"v_add_u32 v3, {32*32*896}, v3")
    k(f"s_lshl_b32 s26, s{sW}, 7")
    k(f"s_add_u32 s26, s26, s{sRT}")
    k("s_mul_i32 s26, s26, 896")
    k(f"s_lshl_b32 s27, s{sW}, 11")
    k("s_waitcnt lgkmcnt(0)")
    k.srd(8, 4, XB)
    for c in range(7):
        for q in range(2):
            k(f"s_add_u32 m0, s27, {c*(8192-128) + q*1024}")
            k(f"buffer_load_dwordx4 v{2+q}, s[8:11], s26 offen offset:{c*128} lds")
    k.srd_off(12, 6, AT, 224 * 8192)
    k.srd_off(16, 6, M1, S * 4)
    k("v_and_b32 v8, 15, v1")
    k("v_lshrrev_b32 v9, 1, v8")
    k("v_xor_b32 v9, v9, v5")
    k("v_lshlrev_b32 v9, 4, v9")
    k("v_lshl_add_u32 v4, v8, 7, v9")
    k("v_xor_b32 v5, 64, v4")
    k("v_add_u32 v6, s27, v4")
    k("v_add_u32 v7, s27, v5")
    vB, vST, vE, vSG, vCS, vT, vF = 8, 9, 9, 17, 18, 19, 28
    vKK = 27
    k(f"s_and_b32 s28, s{sW}, 1")
    k("s_lshl_b32 s28, s28, 4")
    k(f"s_lshl_b32 s29, s{sCT}, 5")
    k("s_add_u32 s28, s28, s29")
    k(f"v_add_u32 {v(vKK)}, s28, v8")
    k(f"v_add_u32 v19, 1, {v(vKK)}")
    k("v_cvt_f32_u32 v20, v19")
    k("v_and_b32 v19, 1, v19")
    k("v_lshlrev_b32 v19, 31, v19")
    k(f"v_or_b32 {v(vSG)}, 1.0, v19")
    k(f"v_mul_f32 {v(vE+1)}, {f2u(1.0/448)}, v20")
    for e in range(2, 8):
        k(f"v_mul_f32 {v(vE+e)}, {f2u(e/448.0)}, v20")
    k(f"v_mul_f32 {v(vST)}, {f2u(32.0/448)}, v20")
    k(f"v_fract_f32 {v(vST)}, {v(vST)}")
    k("v_lshrrev_b32 v21, 4, v1")
    k("v_lshlrev_b32 v21, 3, v21")
    k("v_cvt_f32_u32 v21, v21")
    k(f"s_lshr_b32 s30, s{sW}, 1")
    k(f"s_mul_i32 s31, s30, {f2u(0.25)}")
    k(f"v_mov_b32 {v(vB)}, s31")
    k(f"v_fmac_f32 {v(vB)}, v21, {v(vE+1)}")
    k(f"v_fract_f32 {v(vB)}, {v(vB)}")
    k(f"v_mov_b32 {v(vCS)}, 0")
    k("s_mov_b32 s32, 0x3f803f80")
    for t in range(7):
        k(f"v_cos_f32 {v(vT)}, {v(vB)}")
        for e in range(1, 8):
            k(f"v_add_f32 {v(vT+e)}, {v(vB)}, {v(vE+e)}")
        for e in range(1, 8):
            k(f"v_cos_f32 {v(vT+e)}, {v(vT+e)}")
        if t < 6:
            k(f"v_add_f32 {v(vB)}, {v(vB)}, {v(vST)}")
            k(f"v_fract_f32 {v(vB)}, {v(vB)}")
        for p in range(4):
            k(f"v_cvt_pk_bf16_f32 {v(vF+4*t+p)}, {v(vT+2*p)}, {v(vT+2*p+1)}")
        for p in range(4):
            k(f"v_dot2c_f32_bf16 {v(vCS)}, s32, {v(vF+4*t+p)}")
    xlane_sum(k, vCS, vT)
    k(f"v_fmac_f32 {v(vCS)}, {v(vCS)}, {v(vSG)}")
    vR = 56
    vS0, vS1, vQ0, vQ1 = 20, 21, 22, 23
    for r in (vS0, vS1, vQ0, vQ1):
        k(f"v_mov_b32 {v(r)}, 0")

    def stat(t):
        b = vR + 4 * (t % 4)
        for p in range(4):
            k(f"v_dot2c_f32_bf16 {v(vS0 + (p & 1))}, s32, {v(b+p)}")
            k(f"v_dot2c_f32_bf16 {v(vQ0 + (p & 1))}, {v(b+p)}, {v(b+p)}")

    for c in range(7):
        k(f"s_waitcnt vmcnt({12-2*c})")
        for par in range(2):
            t = 2 * c + par
            k(f"ds_read_b128 {v(vR+4*(t%4),4)}, v{6+par} offset:{c*8192}")
        if c > 0:
            k("s_waitcnt lgkmcnt(2)")
            stat(2 * c - 2)
            stat(2 * c - 1)
    k("s_waitcnt lgkmcnt(0)")
    stat(12)
    stat(13)
    k(f"v_add_f32 {v(vS0)}, {v(vS0)}, {v(vS1)}")
    k(f"v_add_f32 {v(vQ0)}, {v(vQ0)}, {v(vQ1)}")
    xlane_sum(k, vS0, vS1)
    xlane_sum(k, vQ0, vQ1)
    k(f"v_mul_f32 {v(vS0)}, {f2u(1.0/448)}, {v(vS0)}")
    k(f"v_mul_f32 {v(vS1)}, {v(vS0)}, {v(vS0)}")
    k(f"v_mov_b32 {v(vQ1)}, {f2u(1.0/448)}")
    k(f"v_fma_f32 {v(vQ0)}, {v(vQ0)}, {v(vQ1)}, -{v(vS1)}")
    k(f"v_max_f32 {v(vQ0)}, 0, {v(vQ0)}")
    k(f"v_add_f32 {v(vQ0)}, {f2u(EPS)}, {v(vQ0)}")
    k(f"v_rsq_f32 {v(vQ0)}, {v(vQ0)}")
    k("v_and_b32 v24, 15, v1")
    k(f"s_lshl_b32 s33, s{sW}, 6")
    k("v_lshl_add_u32 v25, v24, 2, s33")
    k(f"v_mul_f32 {v(vQ1)}, {v(vS0)}, {v(vQ0)}")
    k(f"ds_write_b32 v25, {v(vQ0)} offset:57344")
    k(f"ds_write_b32 v25, {v(vQ1)} offset:57600")
    NOM = k.lab("nom")
    k(f"s_cmp_lg_u32 s{sCT}, 0")
    k(f"s_cbranch_scc1 {NOM}")
    k("v_lshrrev_b32 v25, 2, v24")
    k("v_and_b32 v24, 3, v24")
    k("v_lshl_add_u32 v24, v25, 4, v24")
    k("v_lshlrev_b32 v24, 7, v24")
    k(f"s_lshl_b32 s33, s{sW}, 7")
    k(f"s_add_u32 s33, s33, s{sRT}")
    k("s_lshl_b32 s33, s33, 2")
    k(f"buffer_store_dword {v(vS0)}, v24, s[16:19], s33 offen")
    k.label(NOM)
    k("s_waitcnt lgkmcnt(0)")
    k("s_barrier")
    vA = 88
    vSt = 120
    seq = [(t, b) for t in range(14) for b in range(4)]

    def rd(n):
        t, b = seq[n]
        k(f"ds_read_b128 {v(vR+4*(n%8),4)}, v{4+(t&1)} offset:{(t>>1)*8192 + b*2048}")

    DEPTH = 7
    for n in range(DEPTH):
        rd(n)
    k("v_lshrrev_b32 v24, 4, v1")
    k("v_lshlrev_b32 v24, 4, v24")
    for n in range(56):
        t, b = seq[n]
        left = min(DEPTH - 1, 55 - n)
        k(f"s_waitcnt lgkmcnt({left})")
        acc = vA + 16 * (t // 7) + 4 * b
        c = "0" if t % 7 == 0 else v(acc, 4)
        k(f"v_mfma_f32_16x16x32_bf16 {v(acc,4)}, {v(vR+4*(n%8),4)}, {v(vF+4*(t%7),4)}, {c}")
        if n + DEPTH < 56:
            rd(n + DEPTH)
    for b in range(4):
        k(f"ds_read_b128 {v(vSt+4*b,4)}, v24 offset:{57344 + 64*b}")
        k(f"ds_read_b128 {v(vSt+16+4*b,4)}, v24 offset:{57600 + 64*b}")
    k(f"v_lshlrev_b32 v25, 13, {v(vKK)}")
    k("v_lshl_add_u32 v25, v24, 1, v25")
    k("s_lshl_b32 s30, s30, 12")
    k(f"s_lshl_b32 s33, s{sRT}, 7")
    k("s_add_u32 s33, s33, s30")
    for n in range(16):
        k(f"v_fmac_f32 {v(vA+n)}, {v(vA+16+n)}, {v(vSG)}")
    k("s_waitcnt lgkmcnt(0)")
    for n in range(16):
        k(f"v_mul_f32 {v(vA+n)}, {v(vA+n)}, {v(vSt+n)}")
    for n in range(16):
        k(f"v_fma_f32 {v(vA+n)}, -{v(vSt+16+n)}, {v(vCS)}, {v(vA+n)}")
    for n in range(8):
        k(f"v_cvt_pk_bf16_f32 {v(vR+n)}, {v(vA+2*n)}, {v(vA+2*n+1)}")
    k(f"buffer_store_dwordx4 {v(vR,4)}, v25, s[12:15], s33 offen")
    k(f"buffer_store_dwordx4 {v(vR+4,4)}, v25, s[12:15], s33 offen offset:16")
    k("s_endpgm")

    k.label(SIDE)
    sT = 21
    JWS, JWD, TR = k.lab("jws"), k.lab("jwd"), k.lab("tr")
    k("s_load_dwordx4 s[24:27], s[0:1], 8")
    k("s_load_dwordx4 s[28:31], s[0:1], 32")
    k("s_load_dwordx2 s[32:33], s[0:1], 48")
    k("s_sub_u32 s22, s2, 224")
    k(f"s_lshl2_add_u32 s{sT}, s22, s{sW}")
    k("s_mov_b32 s34, 0x05040100")
    k("s_mov_b32 s35, 0x07060302")
    vIn, vOut = 8, 40
    k("s_waitcnt lgkmcnt(0)")
    k(f"s_cmp_ge_u32 s{sT}, {N_WT}")
    k(f"s_cbranch_scc1 {JWS}")
    k.srd(8, 24, WRB)
    k.srd(12, 26, WRB)
    k.srd_off(16, 6, WT, 224 * 8192)
    k("v_and_b32 v2, 15, v1")
    k("v_lshrrev_b32 v3, 4, v1")
    k("v_lshl_add_u32 v2, v3, 8, v2")
    k("s_movk_i32 s36, 450")
    k("v_mul_u32_u24 v2, s36, v2")
    k(f"s_lshr_b32 s37, s{sT}, 3")
    k(f"s_bfe_u32 s38, s{sT}, 0x20001")
    k(f"s_and_b32 s39, s{sT}, 1")
    k("s_lshl_b32 s40, s39, 10")
    k("s_lshl_b32 s41, s38, 4")
    k("s_add_u32 s40, s40, s41")
    k("s_mul_i32 s40, s40, 450")
    k("s_lshl_b32 s41, s37, 4")
    k("s_add_u32 s40, s40, s41")
    k("s_add_u32 s40, s40, 2")
    for r in range(4):
        k(f"buffer_load_dwordx4 {v(vIn+8*r,4)}, v2, s[8:11], s40 offen")
        k(f"buffer_load_dwordx4 {v(vIn+8*r+4,4)}, v2, s[12:15], s40 offen")
        if r < 3:
            k(f"s_add_u32 s40, s40, {64*450}")
    k("v_lshlrev_b32 v3, 4, v1")
    k("s_lshl_b32 s42, s37, 16")
    k(f"s_and_b32 s41, s{sT}, 7")
    k("s_lshl_b32 s41, s41, 10")
    k("s_add_u32 s42, s42, s41")
    NOZ = k.lab("noz")
    k(f"s_cmp_lg_u32 s{sT}, 0")
    k(f"s_cbranch_scc1 {NOZ}")
    k.srd_off(44, 6, FL, 32 * 256)
    k("v_lshlrev_b32 v4, 7, v1")
    k("v_mov_b32 v5, 0")
    k("buffer_store_dword v5, v4, s[44:47], 0 offen")
    k.label(NOZ)
    k("s_waitcnt vmcnt(0)")
    for e in range(8):
        o = vOut + 4 * e
        for r in range(4):
            k(f"v_perm_b32 {v(o+r)}, {v(vIn+8*r+4+(e>>1))}, {v(vIn+8*r+(e>>1))}, s{34+(e&1)}")
        k(f"buffer_store_dwordx4 {v(o,4)}, v3, s[16:19], s42 offen")
        if e < 7:
            k("s_add_u32 s42, s42, 8192")
    k("s_endpgm")
    k.label(JWS)
    k(f"s_cmp_ge_u32 s{sT}, {N_WT+N_WS}")
    k(f"s_cbranch_scc1 {JWD}")
    k(f"s_sub_u32 s36, s{sT}, {N_WT}")
    k("s_bitcmp1_b32 s36, 0")
    k("s_cselect_b32 s8, s30, s28")
    k("s_cselect_b32 s9, s31, s29")
    k("s_and_b32 s9, s9, 0xffff")
    k(f"s_mov_b32 s10, {WGB}")
    k("s_mov_b32 s11, 0x20000")
    k.srd_off(16, 6, WS, 56 * 28 * 2048)
    k("s_lshr_b32 s37, s36, 1")
    k("s_mul_i32 s38, s37, 2341")
    k("s_lshr_b32 s38, s38, 16")
    k("s_mul_i32 s39, s38, 28")
    k("s_sub_u32 s39, s37, s39")
    k("v_lshrrev_b32 v2, 5, v1")
    k(f"v_mul_u32_u24 v2, {8*3584}, v2")
    k("v_and_b32 v3, 31, v1")
    k("v_lshl_add_u32 v2, v3, 4, v2")
    k(f"s_mul_i32 s40, s39, {16*3584}")
    k("s_lshl_b32 s41, s38, 9")
    k("s_add_u32 s40, s40, s41")
    k("s_movk_i32 s43, 3584")
    k("v_lshlrev_b32 v3, 4, v1")
    k(f"s_mul_i32 s42, s38, {8*28*2048}")
    k("s_lshl_b32 s41, s39, 11")
    k("s_add_u32 s42, s42, s41")
    k("s_and_b32 s41, s36, 1")
    k("s_lshl_b32 s41, s41, 10")
    k("s_add_u32 s42, s42, s41")
    k(f"s_mov_b32 s44, {28*2048}")
    k(f"s_mov_b32 s45, {28*2048}")
    k("s_movk_i32 s46, 3584")
    k(f"s_branch {TR}")
    k.label(JWD)
    k(f"s_sub_u32 s36, s{sT}, {N_WT+N_WS}")
    k.srd(8, 32, WGB)
    k.srd_off(16, 6, WD, 7 * 112 * 2048)
    k("s_mul_i32 s38, s36, 2341")
    k("s_lshr_b32 s38, s38, 16")
    k("s_mul_i32 s39, s38, 28")
    k("s_sub_u32 s39, s36, s39")
    k("v_lshrrev_b32 v2, 5, v1")
    k("v_bfe_u32 v3, v1, 4, 1")
    k("v_lshl_add_u32 v2, v3, 7, v2")
    k("v_bfe_u32 v3, v1, 3, 1")
    k("v_lshl_add_u32 v2, v3, 5, v2")
    k("v_mul_u32_u24 v2, 0x380, v2")
    k("v_and_b32 v4, 7, v1")
    k("v_lshl_add_u32 v2, v4, 4, v2")
    k("s_lshr_b32 s40, s39, 2")
    k("s_lshl_b32 s40, s40, 7")
    k("s_and_b32 s41, s39, 3")
    k("s_add_u32 s40, s40, s41")
    k(f"s_mul_i32 s40, s40, {2*896}")
    k("s_lshl_b32 s41, s38, 7")
    k("s_add_u32 s40, s40, s41")
    k(f"s_movk_i32 s43, {8*896}")
    k(f"s_mov_b32 s46, {(64-24)*896}")
    k("v_lshlrev_b32 v4, 4, v4")
    k("v_lshl_add_u32 v4, v3, 9, v4")
    k("v_lshrrev_b32 v3, 4, v1")
    k("v_lshl_add_u32 v3, v3, 11, v4")
    k("s_mul_i32 s42, s38, 112")
    k("s_lshl2_add_u32 s42, s39, s42")
    k("s_lshl_b32 s42, s42, 11")
    k("s_movk_i32 s44, 128")
    k(f"s_movk_i32 s45, {1024-384}")
    k.label(TR)
    for e in range(8):
        k(f"buffer_load_dwordx4 {v(vIn+4*e,4)}, v2, s[8:11], s40 offen")
        if e < 7:
            k(f"s_add_u32 s40, s40, s{46 if e == 3 else 43}")
    k("s_waitcnt vmcnt(0)")
    for j in range(8):
        o = vOut + 4 * j
        for q in range(4):
            k(f"v_perm_b32 {v(o+q)}, {v(vIn+4*(2*q+1)+(j>>1))}, {v(vIn+4*(2*q)+(j>>1))}, s{34+(j&1)}")
        k(f"buffer_store_dwordx4 {v(o,4)}, v3, s[16:19], s42 offen")
        if j < 7:
            k(f"s_add_u32 s42, s42, s{45 if j == 3 else 44}")
    k.label(END)
    k("s_endpgm")
    return k


K2_LDS = 16384


def cmul(k, dr, di, xr, xi, c, sn, sign, t0, t1):
    k(f"v_mul_f32 {v(t0)}, {v(xr)}, {v(c)}")
    k(f"v_mul_f32 {v(t1)}, {v(xi)}, {v(c)}")
    if sign < 0:
        k(f"v_fmac_f32 {v(t0)}, {v(xi)}, {v(sn)}")
        k(f"v_fma_f32 {v(t1)}, -{v(xr)}, {v(sn)}, {v(t1)}")
    else:
        k(f"v_fma_f32 {v(t0)}, -{v(xi)}, {v(sn)}, {v(t0)}")
        k(f"v_fmac_f32 {v(t1)}, {v(xr)}, {v(sn)}")
    assert dr == t0 and di == t1


def gen_k2():
    k = Kern("k2_kernel", 0, 0)
    END = k.lab("end")
    sW, sKK = 20, 2
    k("s_cmp_ge_u32 s2, 224")
    k(f"s_cbranch_scc1 {END}")
    k("s_load_dwordx2 s[6:7], s[0:1], 72")
    k("v_lshrrev_b32 v2, 6, v0")
    k("v_and_b32 v1, 63, v0")
    k(f"v_readfirstlane_b32 s{sW}, v2")
    k("v_lshrrev_b32 v4, 4, v1")
    k("v_and_b32 v5, 7, v1")
    k("v_xor_b32 v5, v5, v4")
    k("v_lshrrev_b32 v6, 3, v1")
    k("v_lshlrev_b32 v6, 7, v6")
    k("v_lshl_add_u32 v2, v5, 4, v6")
    k("v_xor_b32 v3, 64, v2")
    k(f"s_lshl_b32 s21, s{sW}, 11")
    k(f"s_lshl_b32 s22, s{sKK}, 13")
    k("s_add_u32 s22, s22, s21")
    k("v_lshlrev_b32 v7, 4, v1")
    k("s_mov_b32 m0, s21")
    k("s_waitcnt lgkmcnt(0)")
    k.srd_off(8, 6, AT, 224 * 8192)
    k("buffer_load_dwordx4 v2, s[8:11], s22 offen lds")
    k("buffer_load_dwordx4 v3, s[8:11], s22 offen offset:1024 lds")
    k.srd_off(12, 6, WT, 224 * 8192)
    vWt = 8
    k(f"buffer_load_dwordx4 {v(vWt,4)}, v7, s[12:15], s22 offen")
    k(f"buffer_load_dwordx4 {v(vWt+4,4)}, v7, s[12:15], s22 offen offset:1024")
    k.srd_off(16, 6, BT, 448 * 4096)
    vC1, vS1, vN1 = 16, 24, 32
    vC2, vS2, vN2 = 40, 48, 56
    vTc, vTs = 64, 72
    vUc, vUs = 80, 88
    vD = 96
    vX = 128
    vY = 144
    vP = 160
    vT = 168
    k("v_and_b32 v5, 15, v1")
    k(f"s_lshl_b32 s23, s{sW}, 4")
    k("v_add_u32 v6, s23, v5")
    k("v_cvt_f32_u32 v2, v6")
    k("v_cvt_f32_u32 v3, v4")

    def packed_table(dc, ds_, step, base, mult):
        for e in range(8):
            if mult[e] == 0:
                k(f"v_mov_b32 {v(vT+e)}, {v(base)}")
            else:
                k(f"v_fmamk_f32 {v(vT+e)}, {v(step)}, {f2u(float(mult[e]))}, {v(base)}")
        for e in range(8):
            k(f"v_cos_f32 {v(vT+8+e)}, {v(vT+e)}")
        for e in range(8):
            k(f"v_sin_f32 {v(vT+e)}, {v(vT+e)}")
        for p in range(4):
            k(f"v_cvt_pk_bf16_f32 {v(dc+p)}, {v(vT+8+2*p)}, {v(vT+8+2*p+1)}")
        for p in range(4):
            k(f"v_cvt_pk_bf16_f32 {v(ds_+p)}, {v(vT+2*p)}, {v(vT+2*p+1)}")

    k(f"v_mul_f32 {v(vY)}, {f2u(1.0/64)}, v2")
    k(f"v_mul_f32 {v(vY+1)}, {f2u(8.0)}, v3")
    k(f"v_mul_f32 {v(vY+1)}, {v(vY+1)}, {v(vY)}")
    packed_table(vC1, vS1, vY, vY + 1, list(range(8)))
    k("s_mov_b32 s24, 0x80008000")
    k("v_and_b32 v6, 1, v1")
    k("v_mul_u32_u24 v6, 0x8000, v6")
    k("v_lshl_or_b32 v6, v6, 16, v6")
    for p in range(4):
        k(f"v_xor_b32 {v(vC1+4+p)}, v6, {v(vC1+p)}")
        k(f"v_xor_b32 {v(vS1+4+p)}, v6, {v(vS1+p)}")
    for p in range(8):
        k(f"v_xor_b32 {v(vN1+p)}, s24, {v(vS1+p)}")
    k("v_lshrrev_b32 v6, 1, v5")
    k("v_xor_b32 v6, v6, v4")
    k("v_lshlrev_b32 v6, 4, v6")
    k(f"v_lshl_add_u32 {v(vP)}, v5, 7, v6")
    k(f"v_xor_b32 {v(vP+1)}, 64, {v(vP)}")
    k(f"v_mul_f32 {v(vY)}, {f2u(1.0/2048)}, v2")
    k(f"v_mul_f32 {v(vY+1)}, 4.0, v3")
    k(f"v_mul_f32 {v(vY+1)}, {v(vY+1)}, {v(vY)}")
    m2 = [0, 1, 2, 3, 16, 17, 18, 19]
    k("s_waitcnt vmcnt(2)")
    k("s_barrier")
    for plane in range(2):
        for blk in range(2):
            for t in range(2):
                k(f"ds_read_b128 {v(vD+16*plane+8*blk+4*t,4)}, {v(vP+t)} offset:{plane*4096+blk*2048}")
    for e in range(8):
        if m2[e] == 0:
            k(f"v_mov_b32 {v(vTs+e)}, {v(vY+1)}")
        else:
            k(f"v_fmamk_f32 {v(vTs+e)}, {v(vY)}, {f2u(float(m2[e]))}, {v(vY+1)}")

    def dft_big(cr, ci, first_wait):
        for t in range(2):
            for blk in range(2):
                ar, ai = vD + 8 * blk + 4 * t, vD + 16 + 8 * blk + 4 * t
                xr, xi = vX + 4 * blk, vX + 8 + 4 * blk
                c0r = "0" if t == 0 else v(xr, 4)
                c0i = "0" if t == 0 else v(xi, 4)
                k(f"v_mfma_f32_16x16x32_bf16 {v(xr,4)}, {v(ar,4)}, {v(vC1+4*t,4)}, {c0r}")
                k(f"v_mfma_f32_16x16x32_bf16 {v(xi,4)}, {v(ai,4)}, {v(vC1+4*t,4)}, {c0i}")
                first_wait()
                k(f"v_mfma_f32_16x16x32_bf16 {v(xr,4)}, {v(ai,4)}, {v(cr+4*t,4)}, {v(xr,4)}")
                k(f"v_mfma_f32_16x16x32_bf16 {v(xi,4)}, {v(ar,4)}, {v(ci+4*t,4)}, {v(xi,4)}")
                first_wait()

    k("s_waitcnt lgkmcnt(0)")
    fill = []
    for e in range(8):
        fill.append(f"v_cos_f32 {v(vTc+e)}, {v(vTs+e)}")
    for e in range(8):
        fill.append(f"v_sin_f32 {v(vTs+e)}, {v(vTs+e)}")

    def filler():
        for _ in range(2):
            if fill:
                k(fill.pop(0))

    dft_big(vS1, vN1, filler)
    assert not fill
    k("v_cvt_f32_u32 v6, v5")
    k(f"v_mul_f32 {v(vY)}, {f2u(1.0/32)}, v6")
    k(f"v_mul_f32 {v(vY+1)}, 4.0, v3")
    k(f"v_mul_f32 {v(vY+1)}, {v(vY+1)}, {v(vY)}")
    packed_table(vC2, vS2, vY, vY + 1, m2)
    k("s_brev_b32 s25, 1")
    for p in range(4):
        k(f"v_xor_b32 {v(vC2+4+p)}, s25, {v(vC2+p)}")
        k(f"v_xor_b32 {v(vS2+4+p)}, s25, {v(vS2+p)}")
    for p in range(8):
        k(f"v_xor_b32 {v(vN2+p)}, s24, {v(vS2+p)}")

    def pack():
        for p in range(4):
            k(f"v_cvt_pk_bf16_f32 {v(vP+p)}, {v(vY+2*p)}, {v(vY+2*p+1)}")
            k(f"v_cvt_pk_bf16_f32 {v(vP+4+p)}, {v(vY+8+2*p)}, {v(vY+8+2*p+1)}")

    for e in range(8):
        cmul(k, vY + e, vY + 8 + e, vX + e, vX + 8 + e, vTc + e, vTs + e, -1, vY + e, vY + 8 + e)
    pack()
    for blk in range(2):
        xr, xi = vX + 4 * blk, vX + 8 + 4 * blk
        k(f"v_mfma_f32_16x16x32_bf16 {v(xr,4)}, {v(vC2+4*blk,4)}, {v(vP,4)}, 0")
        k(f"v_mfma_f32_16x16x32_bf16 {v(xi,4)}, {v(vC2+4*blk,4)}, {v(vP+4,4)}, 0")
        k(f"v_mfma_f32_16x16x32_bf16 {v(xr,4)}, {v(vS2+4*blk,4)}, {v(vP+4,4)}, {v(xr,4)}")
        k(f"v_mfma_f32_16x16x32_bf16 {v(xi,4)}, {v(vN2+4*blk,4)}, {v(vP,4)}, {v(xi,4)}")
    k(f"v_mul_f32 {v(vT)}, {f2u(1.0/2048)}, v6")
    k(f"v_add_f32 {v(vT+1)}, {f2u(16.0/2048)}, {v(vT)}")
    k("v_lshl_add_u32 v2, v4, 2, s23")
    k("v_cvt_f32_u32 v2, v2")
    for r in range(4):
        for blk in range(2):
            k(f"v_mul_f32 {v(vUs+4*blk+r)}, v2, {v(vT+blk)}")
        if r < 3:
            k("v_add_f32 v2, 1.0, v2")
    k("s_waitcnt vmcnt(0)")
    for e in range(8):
        k(f"v_lshlrev_b32 {v(vTc+e)}, 16, {v(vWt+e)}")
        k(f"v_and_b32 {v(vTs+e)}, 0xffff0000, {v(vWt+e)}")
    for e in range(8):
        cmul(k, vY + e, vY + 8 + e, vX + e, vX + 8 + e, vTc + e, vTs + e, +1, vY + e, vY + 8 + e)
    pack()
    for blk in range(2):
        xr, xi = vX + 4 * blk, vX + 8 + 4 * blk
        k(f"v_mfma_f32_16x16x32_bf16 {v(xr,4)}, {v(vP,4)}, {v(vC2+4*blk,4)}, 0")
        k(f"v_mfma_f32_16x16x32_bf16 {v(xi,4)}, {v(vP+4,4)}, {v(vC2+4*blk,4)}, 0")
        k(f"v_mfma_f32_16x16x32_bf16 {v(xr,4)}, {v(vP+4,4)}, {v(vN2+4*blk,4)}, {v(xr,4)}")
        k(f"v_mfma_f32_16x16x32_bf16 {v(xi,4)}, {v(vP,4)}, {v(vS2+4*blk,4)}, {v(xi,4)}")
    for e in range(8):
        k(f"v_cos_f32 {v(vUc+e)}, {v(vUs+e)}")
    for e in range(8):
        k(f"v_sin_f32 {v(vUs+e)}, {v(vUs+e)}")
    sc = 2.0 / (S * D)
    k(f"s_cmp_eq_u32 s{sKK}, 223")
    k(f"s_mov_b32 s26, {f2u(sc)}")
    k(f"s_cselect_b32 s26, {f2u(sc/2)}, s26")
    for e in range(8):
        k(f"v_mul_f32 {v(vUc+e)}, s26, {v(vUc+e)}")
        k(f"v_mul_f32 {v(vUs+e)}, s26, {v(vUs+e)}")
    k("v_lshrrev_b32 v2, 1, v4")
    k("v_lshl_add_u32 v2, v2, 4, v5")
    k("v_lshlrev_b32 v2, 4, v2")
    k("v_and_b32 v3, 1, v4")
    k("v_lshl_add_u32 v2, v3, 3, v2")
    k(f"s_lshl_b32 s27, s{sW}, 9")
    k("v_add_u32 v2, s27, v2")
    for e in range(8):
        cmul(k, vY + e, vY + 8 + e, vX + e, vX + 8 + e, vUc + e, vUs + e, +1, vY + e, vY + 8 + e)
    pack()
    for plane in range(2):
        for blk in range(2):
            k(f"ds_write_b64 v2, {v(vP+4*plane+2*blk,2)} offset:{8192+plane*4096+blk*2048}")
    k("s_waitcnt lgkmcnt(0)")
    k("s_barrier")
    for t in range(2):
        for blk in range(2):
            for plane in range(2):
                k(f"ds_read_b128 {v(vD+16*plane+8*blk+4*t,4)}, v7 offset:{8192+plane*4096+blk*2048+t*1024}")
    k(f"s_lshl_b32 s27, s{sW}, 10")
    k(f"s_lshl_b32 s22, s{sKK}, 13")
    k("s_add_u32 s22, s22, s27")
    k("s_add_u32 s23, s22, 4096")
    k("s_waitcnt lgkmcnt(0)")
    dft_big(vN1, vS1, lambda: None)
    for p in range(4):
        k(f"v_cvt_pk_bf16_f32 {v(vP+p)}, {v(vX+2*p)}, {v(vX+2*p+1)}")
    for p in range(4):
        k(f"v_cvt_pk_bf16_f32 {v(vP+4+p)}, {v(vX+8+2*p)}, {v(vX+8+2*p+1)}")
    k(f"buffer_store_dwordx4 {v(vP,4)}, v7, s[16:19], s22 offen")
    k(f"buffer_store_dwordx4 {v(vP+4,4)}, v7, s[16:19], s23 offen")
    k.label(END)
    k("s_endpgm")
    return k


HEADER = """; Fused preLN + GFNet spectral filter + preLN bilinear GLU, generated by gen/gen.py
"""


def build(kernels):
    out = [HEADER.rstrip()]
    for kern, grid, block, lds in kernels:
        out.append(f"; @launch kernel={kern.name} grid=({grid},1,1) block=({block},1,1) lds={lds}")
    out.append('.amdgcn_target "amdgcn-amd-amdhsa--gfx950"')
    out.append(".text")
    descs = []
    seen = set()
    for kern, *_ in kernels:
        if kern.name in seen:
            continue
        seen.add(kern.name)
        body, desc = kern.emit()
        print(kern.name, kern.stats, file=sys.stderr)
        out.append(body)
        descs.append(desc)
    out.append('.section .rodata,"a"')
    for d in descs:
        out.append(".p2align 6")
        out.append(d)
    return "\n".join(out) + "\n"


if __name__ == "__main__":
    from gen3 import gen_k3, K3_LDS
    ks = [(gen_k1(), K1_WGS, 256, K1_LDS), (gen_k2(), 224, 256, K2_LDS), (gen_k3(), 224, 256, K3_LDS)]
    path = sys.argv[1] if len(sys.argv) > 1 else "sequential_preLN__spectral_gfnet__glu_gated_bilinear__prompt.s"
    open(path, "w").write(build(ks))
```

```python
import re

TRANS = ("v_exp_f32", "v_log_f32", "v_rcp_f32", "v_rsq_f32", "v_sqrt_f32", "v_sin_f32", "v_cos_f32")
RMW = ("v_fmac_f32", "v_dot2c_f32_bf16", "v_pk_fmac", "v_writelane_b32")
SWAPS = ("v_swap_b32", "v_permlane16_swap_b32", "v_permlane32_swap_b32")


def v(i, n=1):
    return f"v{i}" if n == 1 else f"v[{i}:{i+n-1}]"


def a(i, n=1):
    return f"a{i}" if n == 1 else f"a[{i}:{i+n-1}]"


def s(i, n=1):
    return f"s{i}" if n == 1 else f"s[{i}:{i+n-1}]"


_REG = re.compile(r"^-?\|?(?:abs\()?([vas])(?:(\d+)|\[(\d+):(\d+)\])\)?\|?$")


def regs_of(tok):
    tok = tok.strip()
    if tok in ("vcc", "exec"):
        return {tok + "_lo", tok + "_hi"}
    if tok in ("vcc_lo", "vcc_hi", "exec_lo", "exec_hi", "m0"):
        return {tok}
    m = _REG.match(tok)
    if not m:
        return set()
    k = m.group(1)
    if m.group(2) is not None:
        return {k + m.group(2)}
    return {k + str(i) for i in range(int(m.group(3)), int(m.group(4)) + 1)}


def is_vec(r):
    return r[0] == "v" and r[1:].isdigit() or r[0] == "a" and r[1:].isdigit()


class Ins:
    def __init__(self, text):
        self.text = text
        t = text.split(";")[0].strip()
        self.label = None
        self.kind = "other"
        self.w = set()
        self.r = set()
        self.srcc = set()
        self.srcab = set()
        self.passes = 0
        self.states = 1
        self.target = None
        self.dpp = False
        self.lds_dma = False
        self.store_data = set()
        self.op = ""
        if not t or t.startswith("."):
            self.kind = "dir"
            self.states = 0
            return
        if t.endswith(":"):
            self.label = t[:-1]
            self.kind = "label"
            self.states = 0
            return
        parts = t.split(None, 1)
        op = parts[0]
        op = re.sub(r"_(e32|e64|dpp|sdwa)$", "", op)
        self.op = op
        rest = parts[1] if len(parts) > 1 else ""
        ops, depth, cur = [], 0, ""
        for ch in rest:
            if ch in "[(":
                depth += 1
            if ch in "])":
                depth -= 1
            if ch == "," and depth == 0:
                ops.append(cur.strip())
                cur = ""
            else:
                cur += ch
        if cur.strip():
            ops.append(cur.strip())
        mods = ""
        if ops:
            last = ops[-1].split(None, 1)
            ops[-1] = last[0]
            mods = last[1] if len(last) > 1 else ""
        self.mods = mods
        R = [regs_of(o) for o in ops]
        if op == "s_nop":
            self.kind = "nop"
            self.states = int(ops[0], 0) + 1
        elif op == "s_waitcnt":
            self.kind = "wait"
            self.vm = self.lgkm = None
            m = re.search(r"vmcnt\((\d+)\)", rest)
            if m:
                self.vm = int(m.group(1))
            m = re.search(r"lgkmcnt\((\d+)\)", rest)
            if m:
                self.lgkm = int(m.group(1))
        elif op.startswith("s_cbranch") or op == "s_branch":
            self.kind = "branch"
            self.target = ops[0]
        elif op in ("s_endpgm",):
            self.kind = "end"
        elif op.startswith("s_load") or op in ("s_memtime", "s_memrealtime"):
            self.kind = "smem"
            self.w = R[0]
            for x in R[1:]:
                self.r |= x
        elif op.startswith("s_"):
            self.kind = "salu"
            if op.startswith("s_cmp") or op.startswith("s_bitcmp") or op in ("s_barrier", "s_sleep", "s_setprio"):
                for x in R:
                    self.r |= x
            else:
                if R:
                    self.w = R[0]
                for x in R[1:]:
                    self.r |= x
                if "saveexec" in op:
                    self.w |= regs_of("exec")
                if op.startswith("s_addk") or op.startswith("s_mulk"):
                    self.r |= R[0]
        elif op.startswith("v_mfma"):
            self.kind = "mfma"
            self.w = R[0]
            self.srcab = R[1] | R[2]
            self.srcc = R[3]
            self.r = self.srcab | self.srcc
            self.passes = 8 if "32x32x16" in op else 4 if "16x16x32" in op or "16x16x16" in op else None
            assert self.passes
        elif op.startswith("v_"):
            self.kind = "valu"
            self.dpp = any(k in mods for k in ("quad_perm", "row_", "wave_"))
            if op.startswith("v_cmp"):
                self.w = R[0]
                for x in R[1:]:
                    self.r |= x
            elif op in SWAPS:
                self.w = R[0] | R[1]
                self.r = R[0] | R[1]
            else:
                self.w = R[0]
                for x in R[1:]:
                    self.r |= x
                if op in RMW or self.dpp:
                    self.r |= R[0]
                if "_co_" in op:
                    self.w |= R[1]
        elif op.startswith("ds_"):
            self.kind = "ds"
            if op.startswith("ds_read") or "permute" in op or "swizzle" in op:
                self.w = R[0]
                for x in R[1:]:
                    self.r |= x
            else:
                for x in R:
                    self.r |= x
        elif op.startswith("buffer_") or op.startswith("global_"):
            self.kind = "vmem"
            self.lds_dma = bool(re.search(r"\blds\b", mods))
            if op in ("buffer_inv", "buffer_wbl2"):
                pass
            elif "load" in op and not self.lds_dma:
                self.w = R[0]
                for x in R[1:]:
                    self.r |= x
            else:
                for x in R:
                    self.r |= x
                if self.lds_dma:
                    self.r.add("m0")
                if "store" in op and ("x3" in op or "x4" in op):
                    self.store_data = R[0] if op.startswith("buffer") else R[1]
                if "atomic" in op and "sc0" in mods:
                    self.w = R[0]
        else:
            raise ValueError("unknown instruction: " + text)


def need(p, c):
    n = 0
    cv = c.kind == "valu"
    if p.kind == "valu":
        pw_s = {x for x in p.w if not is_vec(x)}
        pw_v = p.w - pw_s
        if pw_s & c.r:
            if c.kind == "vmem":
                n = max(n, 5)
            if cv:
                n = max(n, 4 if c.op in ("v_readlane_b32", "v_writelane_b32") else 2)
        if pw_v & c.r:
            if cv and c.dpp:
                n = max(n, 2)
            if c.op in ("v_readlane_b32", "v_readfirstlane_b32"):
                n = max(n, 1)
            if c.op.startswith("v_permlane"):
                n = max(n, 2)
            if c.kind == "mfma":
                n = max(n, 2)
            if p.op in TRANS and cv and c.op not in TRANS:
                n = max(n, 1)
            if p.op in TRANS and c.kind in ("vmem", "ds"):
                n = max(n, 1)
        if p.op.startswith("v_dot") and (pw_v & (c.r | c.w)) and c.kind in ("valu", "vmem", "ds", "mfma"):
            same_chain = c.op == p.op and (pw_v & c.w) and p.op in RMW
            if not same_chain:
                n = max(n, 3)
    if p.kind == "salu" and "m0" in p.w and c.lds_dma:
        n = max(n, 1)
    if p.kind == "vmem" and p.store_data & c.w:
        n = max(n, 2 if cv else 1)
    if p.kind == "mfma":
        big = 12 if p.passes == 8 else 8
        if c.kind == "mfma":
            if p.w & c.srcab:
                n = max(n, big)
            if p.w & c.srcc and not (p.w == c.srcc and p.passes == c.passes):
                n = max(n, big - 2)
        elif c.kind in ("valu", "vmem", "ds"):
            if p.w & (c.r | c.w):
                n = max(n, big)
            if cv and p.srcc & c.w:
                n = max(n, 7 if p.passes == 8 else 3)
    return n


WINDOW = 14


def fix_hazards(lines):
    ins = [Ins(t) for t in lines]
    for _ in range(6):
        changed = False
        snap = getattr(fix_hazards, "_snap", {})
        out = []
        state = []
        newsnap = {}
        for c in ins:
            if c.kind == "label":
                for st in snap.get(c.label, []) + newsnap.get(c.label, []):
                    state = state + [[p, d] for p, d in st]
                out.append(c)
                continue
            if c.kind == "dir":
                out.append(c)
                continue
            req = 0
            for p, d in state:
                req = max(req, need(p, c) - d)
            if req > 0:
                changed = True
                while req > 0:
                    k = min(req, 16)
                    nop = Ins(f"s_nop {k-1}")
                    out.append(nop)
                    for e in state:
                        e[1] += k
                    req -= k
            out.append(c)
            for e in state:
                e[1] += c.states
            state = [e for e in state if e[1] < WINDOW]
            if c.kind in ("valu", "mfma", "vmem", "salu"):
                state.append([c, 0])
            if c.kind == "branch":
                newsnap.setdefault(c.target, []).append([(p, d) for p, d in state])
                if c.op == "s_branch":
                    state = []
            if c.kind == "end":
                state = []
        ins = out
        fix_hazards._snap = newsnap
        if not changed and _ > 0:
            break
    fix_hazards._snap = {}
    return ins


def check_waits(ins, name=""):
    vm, lg = [], []
    errs = []
    for n, c in enumerate(ins):
        if c.kind == "wait":
            if c.vm is not None:
                while len(vm) > c.vm:
                    vm.pop(0)
            if c.lgkm is not None:
                if any(k == "smem" for k, _ in lg):
                    if c.lgkm == 0:
                        lg = []
                else:
                    while len(lg) > c.lgkm:
                        lg.pop(0)
            continue
        if c.kind == "end" or (c.kind == "branch" and c.op == "s_branch"):
            vm, lg = [], []
            continue
        touched = c.r | c.w
        for q in (vm, lg):
            for k, w in q:
                if w & touched:
                    errs.append(f"{name}: '{c.text.strip()}' touches {sorted(w & touched)[:4]} with a load pending")
        if c.kind == "vmem" and c.op not in ("buffer_inv",):
            vm.append(("vmem", set(c.w)))
            if len(vm) > 63:
                errs.append(f"{name}: more than 63 vm ops outstanding at '{c.text.strip()}'")
        if c.kind == "ds":
            lg.append(("ds", set(c.w)))
        if c.kind == "smem":
            lg.append(("smem", set(c.w)))
    return errs


class Kern:
    def __init__(self, name, vgpr, agpr, sgpr=96):
        self.name = name
        self.vgpr = vgpr
        self.agpr = agpr
        self.sgpr = sgpr
        self.lines = []
        self._lab = 0

    def __call__(self, text):
        for t in text.split("\n"):
            t = t.strip()
            if t:
                self.lines.append(t)

    def lab(self, stem):
        self._lab += 1
        return f"L_{self.name}_{stem}_{self._lab}"

    def label(self, name):
        self.lines.append(name + ":")

    def srd(self, d, base, nbytes):
        self(f"s_mov_b32 s{d}, s{base}")
        self(f"s_and_b32 s{d+1}, s{base+1}, 0xffff")
        self(f"s_mov_b32 s{d+2}, {nbytes}")
        self(f"s_mov_b32 s{d+3}, 0x20000")

    def srd_off(self, d, base, off, nbytes):
        self(f"s_add_u32 s{d}, s{base}, {off}")
        self(f"s_addc_u32 s{d+1}, s{base+1}, 0")
        self(f"s_and_b32 s{d+1}, s{d+1}, 0xffff")
        self(f"s_mov_b32 s{d+2}, {nbytes}")
        self(f"s_mov_b32 s{d+3}, 0x20000")

    prof = False

    def stamp(self):
        if not self.prof:
            return
        n = getattr(self, "_nst", 0)
        self._nst = n + 1
        self(f"s_memrealtime s[{60+2*n}:{61+2*n}]")
        self("s_waitcnt lgkmcnt(0)")

    def stamp_flush(self, wsreg, off, wave_sreg, first=0):
        if not self.prof:
            return
        self.stamp()
        n = self._nst
        self.srd_off(92, wsreg, off, 1 << 20)
        self(f"s_lshl2_add_u32 s90, s2, s{wave_sreg}")
        self("s_lshl_b32 s90, s90, 7")
        for i in range(n):
            self(f"v_mov_b32 v0, s{60+2*i}")
            self(f"buffer_store_dword v0, off, s[92:95], s90 offset:{4*i}")
        self._nst = first

    def emit(self):
        ins = fix_hazards(self.lines)
        errs = check_waits(ins, self.name)
        if errs:
            raise RuntimeError("\n".join(errs[:20]))
        mv = ma = ms = -1
        for c in ins:
            for r in c.r | c.w:
                if is_vec(r):
                    if r[0] == "v":
                        mv = max(mv, int(r[1:]))
                    else:
                        ma = max(ma, int(r[1:]))
                elif r[0] == "s" and r[1:].isdigit():
                    ms = max(ms, int(r[1:]))
        acc = max(4, (mv + 1 + 3) // 4 * 4)
        nfv = acc + ma + 1 if ma >= 0 else mv + 1
        assert mv < 256 and ma < 256 and ms < 102
        body = [f".globl {self.name}", ".p2align 8", f".type {self.name},@function", f"{self.name}:"]
        for c in ins:
            body.append(c.text if c.kind == "label" else "    " + c.text)
        desc = [
            f".amdhsa_kernel {self.name}",
            f"  .amdhsa_next_free_vgpr {nfv}",
            f"  .amdhsa_next_free_sgpr {max(ms + 1, 16)}",
            f"  .amdhsa_accum_offset {acc}",
            "  .amdhsa_group_segment_fixed_size 0",
            "  .amdhsa_kernarg_size 80",
            "  .amdhsa_user_sgpr_count 2",
            "  .amdhsa_user_sgpr_kernarg_segment_ptr 1",
            "  .amdhsa_system_sgpr_workgroup_id_x 1",
            "  .amdhsa_float_denorm_mode_32 3",
            ".end_amdhsa_kernel",
        ]
        self.stats = dict(vgpr=mv + 1, agpr=ma + 1, sgpr=ms + 1, nins=len(ins),
                          nops=sum(1 for c in ins if c.kind == "nop"))
        return "\n".join(body), "\n".join(desc)
```

```python
from asmlib import Kern, v, a, s
from gen import *

XT = 114688
R2 = 122880
FF = 65536
K3_LDS = 123392
SPIN_MAX = 1 << 18


def group_sync(k, n, sW, sFlag):
    skip, loop, done = k.lab("skip"), k.lab("poll"), k.lab("done")
    k.stamp()
    k("s_waitcnt vmcnt(0) lgkmcnt(0)")
    k.stamp()
    k("s_barrier")
    k(f"s_cmp_lg_u32 s{sW}, 0")
    k(f"s_cbranch_scc1 {skip}")
    k("s_mov_b64 exec, 1")
    k("v_mov_b32 v2, 1")
    k(f"buffer_atomic_add v2, off, s[8:11], s{sFlag} offset:{0} sc1")
    k(f"s_mov_b32 s50, {SPIN_MAX}")
    k.label(loop)
    k(f"buffer_load_dword v2, off, s[8:11], s{sFlag} sc1")
    k("s_sub_u32 s50, s50, 1")
    k("s_cmp_eq_u32 s50, 0")
    k(f"s_cbranch_scc1 {done}")
    k("s_waitcnt vmcnt(0)")
    k("v_readfirstlane_b32 s51, v2")
    k("s_cmp_lt_u32 s51, 14")
    k(f"s_cbranch_scc1 {loop}")
    k.label(done)
    k("s_waitcnt vmcnt(0)")
    k("s_mov_b64 exec, -1")
    k.label(skip)
    k("s_barrier")
    k.stamp()


def gen_k3():
    k = Kern("k3_kernel", 0, 0)
    END = k.lab("end")
    sW, sRB, sCT, sHALF, sRT, sFB = 20, 21, 22, 23, 24, 25
    k("s_cmp_ge_u32 s2, 224")
    k(f"s_cbranch_scc1 {END}")
    k.stamp()
    k("s_load_dwordx2 s[4:5], s[0:1], 0")
    k("s_load_dwordx2 s[6:7], s[0:1], 72")
    k("s_load_dwordx2 s[44:45], s[0:1], 56")
    k("v_lshrrev_b32 v2, 6, v0")
    k("v_and_b32 v1, 63, v0")
    k(f"v_readfirstlane_b32 s{sW}, v2")
    k("s_lshr_b32 s26, s2, 3")
    div7(k, 27, 26)
    k("s_mul_i32 s28, s27, 7")
    k(f"s_sub_u32 s{sCT}, s26, s28")
    k("s_bfe_u32 s28, s2, 0x20001")
    k(f"s_lshl2_add_u32 s{sRB}, s28, s27")
    k(f"s_and_b32 s{sHALF}, s2, 1")
    k(f"s_lshl1_add_u32 s{sRT}, s{sRB}, s{sHALF}")
    k(f"s_mul_i32 s28, s{sHALF}, 7")
    k(f"s_add_u32 s28, s28, s{sCT}")
    k(f"s_lshl2_add_u32 s{sFB}, s28, s{sW}")
    vL16, vG, vC = 3, 4, 5
    k(f"v_lshlrev_b32 {v(vL16)}, 4, v1")
    k(f"v_lshrrev_b32 {v(vG)}, 4, v1")
    k(f"v_and_b32 {v(vC)}, 15, v1")
    k(f"v_and_b32 v6, 1, {v(vG)}")
    k("v_lshlrev_b32 v6, 1, v6")
    k(f"s_and_b32 s26, s{sW}, 1")
    k("s_lshl_b32 s26, s26, 2")
    k("v_or_b32 v6, s26, v6")
    k("v_and_b32 v7, 7, v1")
    k("v_xor_b32 v6, v6, v7")
    k("v_lshrrev_b32 v8, 3, v1")
    k("v_lshlrev_b32 v9, 12, v8")
    k("v_lshl_add_u32 v6, v6, 4, v9")
    k(f"s_lshl_b32 s26, s{sW}, 15")
    k(f"s_lshl_b32 s27, s{sRT}, 7")
    k("s_add_u32 s26, s26, s27")
    k(f"s_add_u32 s26, s26, {BT}")
    k(f"s_lshl_b32 s27, s{sW}, 10")
    k("s_mov_b32 m0, s27")
    k("s_waitcnt lgkmcnt(0)")
    k.srd_off(8, 6, WSB, WS_BYTES)
    for t in range(14):
        k("buffer_load_dwordx4 v6, s[8:11], s26 offen lds")
        if t < 13:
            k("s_add_u32 m0, m0, 4096")
            k("s_add_u32 s26, s26, 0x20000")
    vXO = 10
    k.srd(12, 4, XB)
    k("v_lshrrev_b32 v9, 5, v1")
    k("v_and_b32 v8, 3, v8")
    k("v_lshl_add_u32 v8, v9, 4, v8")
    k("v_mul_u32_u24 v8, 0x380, v8")
    k(f"v_xor_b32 v7, v7, {v(vG)}")
    k(f"v_lshl_add_u32 {v(vXO)}, v7, 4, v8")
    k(f"v_xor_b32 {v(vXO+1)}, 64, {v(vXO)}")
    k(f"v_add_u32 {v(vXO+1)}, {32*896}, {v(vXO+1)}")
    sSB, sXO = 30, 31
    k(f"s_lshr_b32 s26, s{sRT}, 3")
    k("s_lshl_b32 s26, s26, 9")
    k(f"s_lshl_b32 s27, s{sHALF}, 8")
    k("s_add_u32 s26, s26, s27")
    k(f"s_and_b32 s27, s{sRB}, 3")
    k(f"s_lshl2_add_u32 s{sSB}, s27, s26")
    k(f"s_lshl_b32 s26, s{sW}, 6")
    k(f"s_add_u32 s26, s26, s{sSB}")
    k("s_mul_i32 s26, s26, 896")
    k(f"s_lshl_b32 s27, s{sCT}, 7")
    k(f"s_add_u32 s{sXO}, s26, s27")
    k(f"s_lshl_b32 s27, s{sW}, 11")
    k(f"s_add_u32 m0, s27, {XT}")
    k(f"buffer_load_dwordx4 {v(vXO)}, s[12:15], s{sXO} offen lds")
    k(f"s_add_u32 m0, s27, {XT+1024}")
    k(f"buffer_load_dwordx4 {v(vXO+1)}, s[12:15], s{sXO} offen lds")
    vM = 12
    k("v_bfe_u32 v7, v1, 3, 2")
    k("v_bfe_u32 v8, v1, 2, 1")
    k("v_lshlrev_b32 v8, 4, v8")
    k("v_lshl_add_u32 v7, v7, 5, v8")
    k("v_and_b32 v8, 3, v1")
    k("v_add_lshl_u32 v7, v7, v8, 2")
    k(f"s_lshl_b32 s26, s{sSB}, 2")
    k(f"s_add_u32 s26, s26, {M1}")
    k(f"buffer_load_dword {v(vM)}, v7, s[8:11], s26 offen")
    k(f"buffer_load_dword {v(vM+1)}, v7, s[8:11], s26 offen offset:512")
    sWS = 32
    k(f"s_mul_i32 s{sWS}, s{sFB}, 57344")
    k(f"s_add_u32 s{sWS}, s{sWS}, {WS}")
    NW1 = 44

    def wload(n):
        k(f"buffer_load_dwordx4 {a(4*n,4)}, {v(vL16)}, s[8:11], s{sWS} offen offset:{(n%4)*1024}")
        if n % 4 == 3:
            k(f"s_add_u32 s{sWS}, s{sWS}, 4096")

    for n in range(NW1):
        wload(n)
    k.stamp()
    k.srd(16, 44, XB)
    vGm = 32
    vB, vST, vE, vT = 14, 15, 15, 20
    k(f"s_lshl_b32 s26, s{sCT}, 6")
    k(f"s_lshl_b32 s27, s{sW}, 4")
    k("s_add_u32 s26, s26, s27")
    k(f"v_add_u32 v7, s26, {v(vC)}")
    k("v_cvt_f32_u32 v7, v7")
    for p in range(1, 4):
        k(f"v_mul_f32 {v(vE+p)}, {f2u(p/448.0)}, v7")
    k(f"v_mul_f32 {v(vST)}, {f2u(16.0/448)}, v7")
    k(f"v_fract_f32 {v(vST)}, {v(vST)}")
    k(f"v_lshl_add_u32 v8, {v(vG)}, 2, 1")
    k("v_cvt_f32_u32 v8, v8")
    k(f"v_mul_f32 {v(vB)}, v8, {v(vE+1)}")
    k(f"v_fract_f32 {v(vB)}, {v(vB)}")
    for t in range(14):
        k(f"v_cos_f32 {v(vT+4)}, {v(vB)}")
        k(f"v_sin_f32 {v(vT)}, {v(vB)}")
        for p in range(1, 4):
            k(f"v_add_f32 {v(vT+p)}, {v(vB)}, {v(vE+p)}")
        if t < 13:
            k(f"v_add_f32 {v(vB)}, {v(vB)}, {v(vST)}")
            k(f"v_fract_f32 {v(vB)}, {v(vB)}")
        for p in range(1, 4):
            k(f"v_cos_f32 {v(vT+4+p)}, {v(vT+p)}")
            k(f"v_sin_f32 {v(vT+p)}, {v(vT+p)}")
        for p in range(4):
            k(f"v_cvt_pk_bf16_f32 {v(vGm+4*t+p)}, {v(vT+4+p)}, -{v(vT+p)}")
    vTB = 14
    k("v_bfe_u32 v7, v1, 2, 2")
    k(f"v_lshlrev_b32 v8, 10, {v(vG)}")
    k("v_lshl_add_u32 v8, v7, 7, v8")
    k("v_and_b32 v9, 3, v1")
    k("v_lshl_add_u32 v8, v9, 3, v8")
    k("v_lshrrev_b32 v7, 1, v7")
    k(f"v_and_b32 v9, 1, {v(vG)}")
    k("v_lshl_add_u32 v7, v9, 1, v7")
    k(f"v_lshl_add_u32 {v(vTB)}, v7, 5, v8")
    for nb in range(1, 4):
        k(f"v_xor_b32 {v(vTB+nb)}, {32*nb}, {v(vTB)}")
    vXA = 18
    k("v_lshrrev_b32 v7, 5, v1")
    k(f"s_lshl_b32 s26, s{sW}, 1")
    k("v_or_b32 v7, s26, v7")
    k("v_bfe_u32 v8, v1, 1, 3")
    k("v_xor_b32 v7, v7, v8")
    k("v_and_b32 v8, 31, v1")
    k("v_lshlrev_b32 v8, 7, v8")
    k("v_lshl_add_u32 v7, v7, 4, v8")
    k(f"v_add_u32 {v(vXA)}, {XT}, v7")
    k.stamp()
    k(f"s_waitcnt vmcnt({NW1})")
    k("s_barrier")
    k.stamp()
    vR, vA = 88, 120
    seq = [(t, nb) for t in range(14) for nb in range(4)]

    def rd(n):
        t, nb = seq[n]
        for u in range(2):
            k(f"ds_read_b64_tr_b16 {v(vR+4*(n%8)+2*u,2)}, {v(vTB+nb)} offset:{t*4096+u*512}")

    DEPTH = 6
    for n in range(DEPTH):
        rd(n)
    for n in range(56):
        t, nb = seq[n]
        k(f"s_waitcnt lgkmcnt({2*min(DEPTH-1, 55-n)})")
        c = "0" if t == 0 else v(vA + 4 * nb, 4)
        k(f"v_mfma_f32_16x16x32_bf16 {v(vA+4*nb,4)}, {v(vGm+4*t,4)}, {v(vR+4*(n%8),4)}, {c}")
        if n + DEPTH < 56:
            rd(n + DEPTH)
    vX = 20
    k(f"ds_read_b128 {v(vX,4)}, {v(vXA)}")
    k(f"ds_read_b128 {v(vX+4,4)}, {v(vXA)} offset:4096")
    k(f"s_lshl_b32 s26, s{sRT}, 1")
    k("s_mul_i32 s26, s26, 28")
    k(f"s_lshl2_add_u32 s27, s{sCT}, s{sW}")
    k("s_add_u32 s26, s26, s27")
    k("s_lshl_b32 s26, s26, 10")
    k(f"s_add_u32 s26, s26, {HC}")
    k(f"s_add_u32 s27, s26, {28*1024}")
    for p in range(2):
        for r in range(4):
            k(f"v_permlane16_swap_b32 {v(vA+8*p+r)}, {v(vA+8*p+4+r)}")
    k("s_waitcnt lgkmcnt(0)")
    vH, vHc, vU = 32, 40, 48
    for p in range(2):
        for q in range(4):
            y0, y1 = vA + 8 * p + 2 * q, vA + 8 * p + 2 * q + 1
            k(f"v_lshlrev_b32 {v(vU)}, 16, {v(vX+4*p+q)}")
            k(f"v_and_b32 {v(vU+1)}, 0xffff0000, {v(vX+4*p+q)}")
            k(f"v_add_f32 {v(y0)}, {v(y0)}, {v(vU)}")
            k(f"v_add_f32 {v(y1)}, {v(y1)}, {v(vU+1)}")
            k(f"v_cvt_pk_bf16_f32 {v(vH+4*p+q)}, {v(y0)}, {v(y1)}")
            k(f"v_sub_f32 {v(y0)}, {v(y0)}, {v(vM+p)}")
            k(f"v_sub_f32 {v(y1)}, {v(y1)}, {v(vM+p)}")
            k(f"v_cvt_pk_bf16_f32 {v(vHc+4*p+q)}, {v(y0)}, {v(y1)}")
        k(f"buffer_store_dwordx4 {v(vHc+4*p,4)}, {v(vL16)}, s[8:11], s{26+p} offen sc1")
        k(f"ds_write_b128 {v(vXA)}, {v(vH+4*p,4)} offset:{4096*p}")
    sFL = 33
    k(f"s_lshl_b32 s{sFL}, s{sRB}, 8")
    k(f"s_add_u32 s{sFL}, s{sFL}, {FL}")
    k(f"s_lshl2_add_u32 s26, s{sRB}, s{sW}")
    k("s_mul_i32 s26, s26, 28672")
    k(f"s_add_u32 s26, s26, {HC}")
    k(f"s_mul_i32 s27, s{sW}, 28672")
    vB1, vBS, vSS = 6, 7, 8
    k(f"v_add_u32 {v(vB1)}, 57344, {v(vL16)}")
    k(f"v_add_u32 {v(vBS)}, s27, {v(vL16)}")
    k(f"v_mov_b32 {v(vSS)}, 0")
    k(f"v_mov_b32 {v(vSS+1)}, 0")
    sWD = 34
    k(f"s_mul_i32 s28, s{sCT}, 112")
    k(f"s_mul_i32 s29, s{sW}, 28")
    k("s_add_u32 s28, s28, s29")
    k("s_lshl_b32 s28, s28, 11")
    k(f"s_add_u32 s28, s28, {WD}")
    k(f"s_and_b32 s29, s{sW}, 1")
    k("s_lshl_b32 s29, s29, 10")
    k(f"s_add_u32 s{sWD}, s28, s29")
    k(f"s_xor_b32 s{sWD+1}, s{sWD}, 1024")
    group_sync(k, 0, sW, sFL)
    k("s_mov_b32 m0, s27")
    for n in range(28):
        k(f"buffer_load_dwordx4 {v(vL16)}, s[8:11], s26 offen offset:{(n%4)*1024} sc1 lds")
        if n % 4 == 3 and n < 27:
            k("s_add_u32 m0, m0, 4096")
            k("s_add_u32 s26, s26, 4096")
    for n in range(NW1, 56):
        wload(n)
    vF, vFS, vAcc = 32, 48, 128

    def rd4(kp, sb):
        base = vL16 if sb < 2 else vB1
        k(f"ds_read_b128 {v(vF+4*sb,4)}, {v(base)} offset:{(sb&1)*28672+kp*1024}")

    def rds(kp):
        k(f"ds_read_b128 {v(vFS,4)}, {v(vBS)} offset:{kp*1024}")

    nrest = 56 - NW1
    k(f"s_waitcnt vmcnt({21+nrest})")
    k("s_barrier")
    k.stamp()
    for sb in range(4):
        rd4(0, sb)
    rds(0)
    for kp in range(28):
        last = kp == 27
        if kp in (6, 13, 20):
            n = (kp + 1) // 7
            k(f"s_waitcnt vmcnt({28-7*(n+1)+nrest+2*kp})")
            k("s_barrier")
        if kp == NW1 // 2:
            k(f"s_waitcnt vmcnt({2*kp})")
        for sb in range(4):
            k(f"s_waitcnt lgkmcnt({4-sb if last else 4})")
            for m in range(2):
                acc = vAcc + 32 * sb + 16 * m
                c = "0" if kp == 0 else v(acc, 16)
                k(f"v_mfma_f32_32x32x16_bf16 {v(acc,16)}, {a(8*kp+4*m,4)}, {v(vF+4*sb,4)}, {c}")
            if not last:
                rd4(kp + 1, sb)
            if sb == 1:
                k(f"s_waitcnt lgkmcnt({0 if last else 2})")
                for p in range(4):
                    k(f"v_dot2c_f32_bf16 {v(vSS+(p&1))}, {v(vFS+p)}, {v(vFS+p)}")
        if not last:
            rds(kp + 1)
        for m in range(2):
            k(f"buffer_load_dwordx4 {a(8*kp+4*m,4)}, {v(vL16)}, s[8:11], s{sWD+m} offen offset:{(kp%2)*2048}")
        if kp % 2 == 1:
            k(f"s_add_u32 s{sWD}, s{sWD}, 4096")
            k(f"s_add_u32 s{sWD+1}, s{sWD+1}, 4096")
    k.stamp()
    k(f"v_add_f32 {v(vSS)}, {v(vSS)}, {v(vSS+1)}")
    k(f"v_mov_b32 {v(vSS+1)}, {v(vSS)}")
    k(f"v_permlane32_swap_b32 {v(vSS)}, {v(vSS+1)}")
    k(f"v_add_f32 {v(vSS)}, {v(vSS)}, {v(vSS+1)}")
    k(f"v_mov_b32 {v(vSS+1)}, {f2u(EPS)}")
    k(f"v_fmac_f32 {v(vSS+1)}, {f2u(1.0/448)}, {v(vSS)}")
    k(f"v_rcp_f32 {v(vSS)}, {v(vSS+1)}")
    k("v_and_b32 v6, 31, v1")
    k(f"s_lshl_b32 s26, s{sW}, 7")
    k(f"s_add_u32 s26, s26, {R2}")
    k("v_lshl_add_u32 v7, v6, 2, s26")
    k(f"ds_write_b32 v7, {v(vSS)}")
    k(f"s_mul_i32 s26, s{sRB}, {4*112}")
    k(f"s_lshl1_add_u32 s26, s{sFB}, s26")
    k("s_lshl_b32 s26, s26, 10")
    k(f"s_add_u32 s26, s26, {HP}")
    vO = 32
    k("s_waitcnt vmcnt(48)")
    for sb in range(4):
        g_, u_ = vAcc + 32 * sb, vAcc + 32 * sb + 16
        for r in range(0, 16, 2):
            k(f"v_pk_mul_f32 {v(g_+r,2)}, {v(g_+r,2)}, {v(u_+r,2)}")
        for r in range(8):
            k(f"v_cvt_pk_bf16_f32 {v(vO+8*sb+r)}, {v(g_+2*r)}, {v(g_+2*r+1)}")
        for u in range(2):
            k(f"buffer_store_dwordx4 {v(vO+8*sb+4*u,4)}, {v(vL16)}, s[8:11], s26 offen offset:{u*1024} sc1")
        if sb < 3:
            k(f"s_add_u32 s26, s26, {112*1024}")
    k(f"s_add_u32 s{sFL}, s{sFL}, 4096")
    sHP = 26
    k(f"s_lshr_b32 s28, s{sW}, 1")
    k(f"s_lshl1_add_u32 s29, s{sRT}, s28")
    k("s_mul_i32 s26, s29, 112")
    k("s_xor_b32 s29, s29, 1")
    k("s_mul_i32 s27, s29, 112")
    k(f"s_mul_i32 s29, s{sW}, 28")
    for p in range(2):
        k(f"s_add_u32 s{sHP+p}, s{sHP+p}, s29")
        k(f"s_lshl_b32 s{sHP+p}, s{sHP+p}, 10")
        k(f"s_add_u32 s{sHP+p}, s{sHP+p}, {HP}")
    group_sync(k, 1, sW, sFL)
    vQ, vAc5, NR = 32, 192, 20

    def hload(kp):
        for p in range(2):
            k(f"buffer_load_dwordx4 {v(vQ+8*(kp%NR)+4*p,4)}, {v(vL16)}, s[8:11], s{sHP+p} offen offset:{(kp%4)*1024} sc1")
        if kp % 4 == 3:
            k(f"s_add_u32 s{sHP}, s{sHP}, 4096")
            k(f"s_add_u32 s{sHP+1}, s{sHP+1}, 4096")

    for kp in range(NR):
        hload(kp)
    vRW = 12
    for sg in range(1, 4):
        k(f"s_xor_b32 s29, s{sW}, {sg}")
        k("s_mul_i32 s29, s29, 12288")
        k(f"s_add_u32 s29, s29, {(sg-1)*4096}")
        k(f"v_add_u32 {v(vRW+sg-1)}, s29, {v(vL16)}")
    k(f"s_mul_i32 s29, s{sW}, 12288")
    k(f"v_add_u32 v15, s29, {v(vL16)}")
    k(f"s_lshl1_add_u32 s29, s{sHALF}, s28")
    k("s_lshl_b32 s29, s29, 7")
    k(f"s_add_u32 s29, s29, {R2}")
    k("v_lshl_add_u32 v7, v6, 2, s29")
    k("ds_read_b32 v16, v7")
    k("v_lshrrev_b32 v7, 5, v1")
    k("v_lshlrev_b32 v7, 2, v7")
    k("v_bfe_u32 v8, v1, 1, 3")
    k("v_xor_b32 v7, v7, v8")
    k("v_lshlrev_b32 v8, 7, v6")
    k("v_lshl_add_u32 v7, v7, 4, v8")
    k("s_lshl_b32 s28, s28, 12")
    k(f"s_and_b32 s29, s{sW}, 1")
    k("s_lshl3_add_u32 s28, s29, s28")
    k(f"s_add_u32 s28, s28, {FF}")
    k("v_add_u32 v20, s28, v7")
    for q in range(1, 4):
        k(f"v_xor_b32 {v(20+q)}, {16*q}, v20")
    k(f"s_lshl_b32 s28, s{sW}, 11")
    k(f"v_add_u32 v24, s28, {v(vL16)}")
    k(f"v_add_u32 v25, {XT}, v24")
    k(f"v_add_u32 v24, {FF}, v24")
    issued = NR
    for kp in range(28):
        k(f"s_waitcnt vmcnt({2*(issued-kp-1)})")
        for p in range(2):
            for dl in range(2):
                acc = vAc5 + 16 * (dl + 2 * p)
                c = "0" if kp == 0 else v(acc, 16)
                k(f"v_mfma_f32_32x32x16_bf16 {v(acc,16)}, {a(8*kp+4*dl,4)}, {v(vQ+8*(kp%NR)+4*p,4)}, {c}")
        if issued < 28:
            hload(issued)
            issued += 1
    k.stamp()
    for sg in range(1, 4):
        for z in range(4):
            k(f"ds_write_b128 {v(vRW+sg-1)}, {v(vAc5+16*sg+4*z,4)} offset:{z*1024}")
    k("s_waitcnt lgkmcnt(0)")
    k("s_barrier")
    for j in range(3):
        for z in range(4):
            k(f"ds_read_b128 {v(vQ+16*j+4*z,4)}, v15 offset:{j*4096+z*1024}")
    k(f"ds_read_b128 {v(vQ+64,4)}, v25")
    k(f"ds_read_b128 {v(vQ+68,4)}, v25 offset:1024")
    for j in range(3):
        k(f"s_waitcnt lgkmcnt({10-4*j})")
        for r in range(0, 16, 2):
            k(f"v_pk_add_f32 {v(vAc5+r,2)}, {v(vAc5+r,2)}, {v(vQ+16*j+r,2)}")
    for r in range(16):
        k(f"v_mul_f32 {v(vAc5+r)}, {v(vAc5+r)}, v16")
    for q in range(4):
        k(f"v_cvt_pk_bf16_f32 {v(vQ+2*q)}, {v(vAc5+q)}, {v(vAc5+4+q)}")
        k(f"v_cvt_pk_bf16_f32 {v(vQ+2*q+1)}, {v(vAc5+8+q)}, {v(vAc5+12+q)}")
        k(f"ds_write_b64 {v(20+q)}, {v(vQ+2*q,2)}")
    k("s_waitcnt lgkmcnt(0)")
    k("s_barrier")
    k(f"ds_read_b128 {v(vQ+16,4)}, v24")
    k(f"ds_read_b128 {v(vQ+20,4)}, v24 offset:1024")
    for q in range(2):
        k(f"s_waitcnt lgkmcnt({1-q})")
        for p in range(4):
            f_, h_ = vQ + 16 + 4 * q + p, vQ + 64 + 4 * q + p
            k(f"v_lshlrev_b32 v26, 16, {v(f_)}")
            k(f"v_lshlrev_b32 v27, 16, {v(h_)}")
            k(f"v_and_b32 {v(f_)}, 0xffff0000, {v(f_)}")
            k(f"v_and_b32 {v(h_)}, 0xffff0000, {v(h_)}")
            k("v_add_f32 v26, v26, v27")
            k(f"v_add_f32 {v(f_)}, {v(f_)}, {v(h_)}")
            k(f"v_cvt_pk_bf16_f32 {v(f_)}, v26, {v(f_)}")
        k(f"buffer_store_dwordx4 {v(vQ+16+4*q,4)}, {v(vXO+q)}, s[16:19], s{sXO} offen{SC}")
    k.stamp()
    if k.prof:
        k("s_waitcnt vmcnt(0)")
    k.stamp_flush(6, PROF + (2 << 20), sW)
    k.label(END)
    k("s_endpgm")
    return k
```

```python
import struct
import sys
from asmlib import Kern, v, a, s

S, D, F = 2048, 448, 1792
AT = 0x000000
WT = 0x200000
BT = 0x400000
HC = 0x600000
WS = 0x800000
WD = 0xC00000
HP = 0xE00000
M1 = 0x1500000
FL = 0x1510000
WS_BYTES = 0x1520000
XB = S * D * 2
WRB = S * 225 * 2
WGB = D * F * 2
EPS = 1e-5
PROF = 0x1800000


def f2u(x):
    return "0x%08x" % struct.unpack("<I", struct.pack("<f", x))[0]


N_WT, N_WS, N_WD = 224, 392, 196
K1_SIDE_WGS = (N_WT + N_WS + N_WD) // 4
K1_WGS = 224 + K1_SIDE_WGS
K1_LDS = 57344 + 512


def div7(k, dst, src):
    k(f"s_mul_i32 s{dst}, s{src}, 37")
    k(f"s_lshr_b32 s{dst}, s{dst}, 8")


def xlane_sum(k, r, t):
    k(f"v_mov_b32 {v(t)}, {v(r)}")
    k(f"v_permlane16_swap_b32 {v(r)}, {v(t)}")
    k(f"v_add_f32 {v(r)}, {v(r)}, {v(t)}")
    k(f"v_mov_b32 {v(t)}, {v(r)}")
    k(f"v_permlane32_swap_b32 {v(r)}, {v(t)}")
    k(f"v_add_f32 {v(r)}, {v(r)}, {v(t)}")


def gen_k1():
    k = Kern("k1_kernel", 0, 0)
    END = k.lab("end")
    SIDE = k.lab("side")
    sW = 20
    k(f"s_cmp_ge_u32 s2, {K1_WGS}")
    k(f"s_cbranch_scc1 {END}")
    k.stamp()
    k("s_load_dwordx2 s[4:5], s[0:1], 0")
    k("s_load_dwordx2 s[6:7], s[0:1], 72")
    k("v_lshrrev_b32 v2, 6, v0")
    k("v_and_b32 v1, 63, v0")
    k(f"v_readfirstlane_b32 s{sW}, v2")
    k("s_cmp_ge_u32 s2, 224")
    k(f"s_cbranch_scc1 {SIDE}")
    sRT, sCT = 21, 22
    k("s_and_b32 s23, s2, 7")
    k("s_lshr_b32 s24, s2, 3")
    div7(k, 25, 24)
    k("s_mul_i32 s26, s25, 7")
    k(f"s_sub_u32 s{sCT}, s24, s26")
    k(f"s_lshl2_add_u32 s{sRT}, s23, s25")
    k("v_lshrrev_b32 v4, 5, v1")
    k("v_bfe_u32 v5, v1, 3, 2")
    k("v_lshl_add_u32 v4, v4, 4, v5")
    k("s_movk_i32 s26, 0x7000")
    k("v_mul_u32_u24 v4, s26, v4")
    k("v_lshrrev_b32 v5, 4, v1")
    k("v_and_b32 v6, 7, v1")
    k("v_xor_b32 v6, v6, v5")
    k("v_lshl_add_u32 v2, v6, 4, v4")
    k("v_xor_b32 v3, 64, v2")
    k(f"v_add_u32 v3, {32*32*896}, v3")
    k(f"s_lshl_b32 s26, s{sW}, 7")
    k(f"s_add_u32 s26, s26, s{sRT}")
    k("s_mul_i32 s26, s26, 896")
    k(f"s_lshl_b32 s27, s{sW}, 11")
    k("s_waitcnt lgkmcnt(0)")
    k.srd(8, 4, XB)
    for c in range(7):
        for q in range(2):
            k(f"s_add_u32 m0, s27, {c*(8192-128) + q*1024}")
            k(f"buffer_load_dwordx4 v{2+q}, s[8:11], s26 offen offset:{c*128} lds")
    k.stamp()
    k.srd_off(12, 6, AT, 224 * 8192)
    k.srd_off(16, 6, M1, S * 4)
    k("v_and_b32 v8, 15, v1")
    k("v_lshrrev_b32 v9, 1, v8")
    k("v_xor_b32 v9, v9, v5")
    k("v_lshlrev_b32 v9, 4, v9")
    k("v_lshl_add_u32 v4, v8, 7, v9")
    k("v_xor_b32 v5, 64, v4")
    k("v_add_u32 v6, s27, v4")
    k("v_add_u32 v7, s27, v5")
    vB, vST, vE, vSG, vCS, vT, vF = 8, 9, 9, 17, 18, 19, 28
    vKK = 27
    k(f"s_and_b32 s28, s{sW}, 1")
    k("s_lshl_b32 s28, s28, 4")
    k(f"s_lshl_b32 s29, s{sCT}, 5")
    k("s_add_u32 s28, s28, s29")
    k(f"v_add_u32 {v(vKK)}, s28, v8")
    k(f"v_add_u32 v19, 1, {v(vKK)}")
    k("v_cvt_f32_u32 v20, v19")
    k("v_and_b32 v19, 1, v19")
    k("v_lshlrev_b32 v19, 31, v19")
    k(f"v_or_b32 {v(vSG)}, 1.0, v19")
    k(f"v_mul_f32 {v(vE+1)}, {f2u(1.0/448)}, v20")
    for e in range(2, 8):
        k(f"v_mul_f32 {v(vE+e)}, {f2u(e/448.0)}, v20")
    k(f"v_mul_f32 {v(vST)}, {f2u(32.0/448)}, v20")
    k(f"v_fract_f32 {v(vST)}, {v(vST)}")
    k("v_lshrrev_b32 v21, 4, v1")
    k("v_lshlrev_b32 v21, 3, v21")
    k("v_cvt_f32_u32 v21, v21")
    k(f"s_lshr_b32 s30, s{sW}, 1")
    k(f"s_mul_i32 s31, s30, {f2u(0.25)}")
    k(f"v_mov_b32 {v(vB)}, s31")
    k(f"v_fmac_f32 {v(vB)}, v21, {v(vE+1)}")
    k(f"v_fract_f32 {v(vB)}, {v(vB)}")
    k(f"v_mov_b32 {v(vCS)}, 0")
    k("s_mov_b32 s32, 0x3f803f80")
    for t in range(7):
        k(f"v_cos_f32 {v(vT)}, {v(vB)}")
        for e in range(1, 8):
            k(f"v_add_f32 {v(vT+e)}, {v(vB)}, {v(vE+e)}")
        for e in range(1, 8):
            k(f"v_cos_f32 {v(vT+e)}, {v(vT+e)}")
        if t < 6:
            k(f"v_add_f32 {v(vB)}, {v(vB)}, {v(vST)}")
            k(f"v_fract_f32 {v(vB)}, {v(vB)}")
        for p in range(4):
            k(f"v_cvt_pk_bf16_f32 {v(vF+4*t+p)}, {v(vT+2*p)}, {v(vT+2*p+1)}")
        for p in range(4):
            k(f"v_dot2c_f32_bf16 {v(vCS)}, s32, {v(vF+4*t+p)}")
    xlane_sum(k, vCS, vT)
    k(f"v_fmac_f32 {v(vCS)}, {v(vCS)}, {v(vSG)}")
    k.stamp()
    vR = 56
    vS0, vS1, vQ0, vQ1 = 20, 21, 22, 23
    for r in (vS0, vS1, vQ0, vQ1):
        k(f"v_mov_b32 {v(r)}, 0")

    def stat(t):
        b = vR + 4 * (t % 4)
        for p in range(4):
            k(f"v_dot2c_f32_bf16 {v(vS0 + (p & 1))}, s32, {v(b+p)}")
            k(f"v_dot2c_f32_bf16 {v(vQ0 + (p & 1))}, {v(b+p)}, {v(b+p)}")

    for c in range(7):
        k(f"s_waitcnt vmcnt({12-2*c})")
        for par in range(2):
            t = 2 * c + par
            k(f"ds_read_b128 {v(vR+4*(t%4),4)}, v{6+par} offset:{c*8192}")
        if c > 0:
            k("s_waitcnt lgkmcnt(2)")
            stat(2 * c - 2)
            stat(2 * c - 1)
    k("s_waitcnt lgkmcnt(0)")
    k.stamp()
    stat(12)
    stat(13)
    k(f"v_add_f32 {v(vS0)}, {v(vS0)}, {v(vS1)}")
    k(f"v_add_f32 {v(vQ0)}, {v(vQ0)}, {v(vQ1)}")
    xlane_sum(k, vS0, vS1)
    xlane_sum(k, vQ0, vQ1)
    k(f"v_mul_f32 {v(vS0)}, {f2u(1.0/448)}, {v(vS0)}")
    k(f"v_mul_f32 {v(vS1)}, {v(vS0)}, {v(vS0)}")
    k(f"v_mov_b32 {v(vQ1)}, {f2u(1.0/448)}")
    k(f"v_fma_f32 {v(vQ0)}, {v(vQ0)}, {v(vQ1)}, -{v(vS1)}")
    k(f"v_max_f32 {v(vQ0)}, 0, {v(vQ0)}")
    k(f"v_add_f32 {v(vQ0)}, {f2u(EPS)}, {v(vQ0)}")
    k(f"v_rsq_f32 {v(vQ0)}, {v(vQ0)}")
    k("v_and_b32 v24, 15, v1")
    k(f"s_lshl_b32 s33, s{sW}, 6")
    k("v_lshl_add_u32 v25, v24, 2, s33")
    k(f"v_mul_f32 {v(vQ1)}, {v(vS0)}, {v(vQ0)}")
    k(f"ds_write_b32 v25, {v(vQ0)} offset:57344")
    k(f"ds_write_b32 v25, {v(vQ1)} offset:57600")
    NOM = k.lab("nom")
    k(f"s_cmp_lg_u32 s{sCT}, 0")
    k(f"s_cbranch_scc1 {NOM}")
    k("v_lshrrev_b32 v25, 2, v24")
    k("v_and_b32 v24, 3, v24")
    k("v_lshl_add_u32 v24, v25, 4, v24")
    k("v_lshlrev_b32 v24, 7, v24")
    k(f"s_lshl_b32 s33, s{sW}, 7")
    k(f"s_add_u32 s33, s33, s{sRT}")
    k("s_lshl_b32 s33, s33, 2")
    k(f"buffer_store_dword {v(vS0)}, v24, s[16:19], s33 offen")
    k.label(NOM)
    k("s_waitcnt lgkmcnt(0)")
    k("s_barrier")
    k.stamp()
    vA = 88
    vSt = 120
    seq = [(t, b) for t in range(14) for b in range(4)]

    def rd(n):
        t, b = seq[n]
        k(f"ds_read_b128 {v(vR+4*(n%8),4)}, v{4+(t&1)} offset:{(t>>1)*8192 + b*2048}")

    DEPTH = 7
    for n in range(DEPTH):
        rd(n)
    k("v_lshrrev_b32 v24, 4, v1")
    k("v_lshlrev_b32 v24, 4, v24")
    for n in range(56):
        t, b = seq[n]
        left = min(DEPTH - 1, 55 - n)
        k(f"s_waitcnt lgkmcnt({left})")
        acc = vA + 16 * (t // 7) + 4 * b
        c = "0" if t % 7 == 0 else v(acc, 4)
        k(f"v_mfma_f32_16x16x32_bf16 {v(acc,4)}, {v(vR+4*(n%8),4)}, {v(vF+4*(t%7),4)}, {c}")
        if n + DEPTH < 56:
            rd(n + DEPTH)
    k.stamp()
    for b in range(4):
        k(f"ds_read_b128 {v(vSt+4*b,4)}, v24 offset:{57344 + 64*b}")
        k(f"ds_read_b128 {v(vSt+16+4*b,4)}, v24 offset:{57600 + 64*b}")
    k(f"v_lshlrev_b32 v25, 13, {v(vKK)}")
    k("v_lshl_add_u32 v25, v24, 1, v25")
    k("s_lshl_b32 s30, s30, 12")
    k(f"s_lshl_b32 s33, s{sRT}, 7")
    k("s_add_u32 s33, s33, s30")
    for n in range(16):
        k(f"v_fmac_f32 {v(vA+n)}, {v(vA+16+n)}, {v(vSG)}")
    k("s_waitcnt lgkmcnt(0)")
    for n in range(16):
        k(f"v_mul_f32 {v(vA+n)}, {v(vA+n)}, {v(vSt+n)}")
    for n in range(16):
        k(f"v_fma_f32 {v(vA+n)}, -{v(vSt+16+n)}, {v(vCS)}, {v(vA+n)}")
    for n in range(8):
        k(f"v_cvt_pk_bf16_f32 {v(vR+n)}, {v(vA+2*n)}, {v(vA+2*n+1)}")
    k(f"buffer_store_dwordx4 {v(vR,4)}, v25, s[12:15], s33 offen")
    k(f"buffer_store_dwordx4 {v(vR+4,4)}, v25, s[12:15], s33 offen offset:16")
    k.stamp()
    if k.prof:
        k("s_waitcnt vmcnt(0)")
    k.stamp_flush(6, PROF, sW, 1)
    k("s_endpgm")

    k.label(SIDE)
    sT = 21
    JWS, JWD, TR = k.lab("jws"), k.lab("jwd"), k.lab("tr")
    k("s_load_dwordx4 s[24:27], s[0:1], 8")
    k("s_load_dwordx4 s[28:31], s[0:1], 32")
    k("s_load_dwordx2 s[32:33], s[0:1], 48")
    k("s_sub_u32 s22, s2, 224")
    k(f"s_lshl2_add_u32 s{sT}, s22, s{sW}")
    k("s_mov_b32 s34, 0x05040100")
    k("s_mov_b32 s35, 0x07060302")
    vIn, vOut = 8, 40
    k("s_waitcnt lgkmcnt(0)")
    k(f"s_cmp_ge_u32 s{sT}, {N_WT}")
    k(f"s_cbranch_scc1 {JWS}")
    k.srd(8, 24, WRB)
    k.srd(12, 26, WRB)
    k.srd_off(16, 6, WT, 224 * 8192)
    k("v_and_b32 v2, 15, v1")
    k("v_lshrrev_b32 v3, 4, v1")
    k("v_lshl_add_u32 v2, v3, 8, v2")
    k("s_movk_i32 s36, 450")
    k("v_mul_u32_u24 v2, s36, v2")
    k(f"s_lshr_b32 s37, s{sT}, 3")
    k(f"s_bfe_u32 s38, s{sT}, 0x20001")
    k(f"s_and_b32 s39, s{sT}, 1")
    k("s_lshl_b32 s40, s39, 10")
    k("s_lshl_b32 s41, s38, 4")
    k("s_add_u32 s40, s40, s41")
    k("s_mul_i32 s40, s40, 450")
    k("s_lshl_b32 s41, s37, 4")
    k("s_add_u32 s40, s40, s41")
    k("s_add_u32 s40, s40, 2")
    for r in range(4):
        k(f"buffer_load_dwordx4 {v(vIn+8*r,4)}, v2, s[8:11], s40 offen")
        k(f"buffer_load_dwordx4 {v(vIn+8*r+4,4)}, v2, s[12:15], s40 offen")
        if r < 3:
            k(f"s_add_u32 s40, s40, {64*450}")
    k("v_lshlrev_b32 v3, 4, v1")
    k("s_lshl_b32 s42, s37, 16")
    k(f"s_and_b32 s41, s{sT}, 7")
    k("s_lshl_b32 s41, s41, 10")
    k("s_add_u32 s42, s42, s41")
    NOZ = k.lab("noz")
    k(f"s_cmp_lg_u32 s{sT}, 0")
    k(f"s_cbranch_scc1 {NOZ}")
    k.srd_off(44, 6, FL, 32 * 256)
    k("v_lshlrev_b32 v4, 7, v1")
    k("v_mov_b32 v5, 0")
    k("buffer_store_dword v5, v4, s[44:47], 0 offen")
    k.label(NOZ)
    k.stamp()
    k("s_waitcnt vmcnt(0)")
    k.stamp()
    for e in range(8):
        o = vOut + 4 * e
        for r in range(4):
            k(f"v_perm_b32 {v(o+r)}, {v(vIn+8*r+4+(e>>1))}, {v(vIn+8*r+(e>>1))}, s{34+(e&1)}")
        k(f"buffer_store_dwordx4 {v(o,4)}, v3, s[16:19], s42 offen")
        if e < 7:
            k("s_add_u32 s42, s42, 8192")
    k.stamp()
    if k.prof:
        k("s_waitcnt vmcnt(0)")
    k.stamp_flush(6, PROF, sW, 1)
    k("s_endpgm")
    k.label(JWS)
    k(f"s_cmp_ge_u32 s{sT}, {N_WT+N_WS}")
    k(f"s_cbranch_scc1 {JWD}")
    k(f"s_sub_u32 s36, s{sT}, {N_WT}")
    k("s_bitcmp1_b32 s36, 0")
    k("s_cselect_b32 s8, s30, s28")
    k("s_cselect_b32 s9, s31, s29")
    k("s_and_b32 s9, s9, 0xffff")
    k(f"s_mov_b32 s10, {WGB}")
    k("s_mov_b32 s11, 0x20000")
    k.srd_off(16, 6, WS, 56 * 28 * 2048)
    k("s_lshr_b32 s37, s36, 1")
    k("s_mul_i32 s38, s37, 2341")
    k("s_lshr_b32 s38, s38, 16")
    k("s_mul_i32 s39, s38, 28")
    k("s_sub_u32 s39, s37, s39")
    k("v_lshrrev_b32 v2, 5, v1")
    k(f"v_mul_u32_u24 v2, {8*3584}, v2")
    k("v_and_b32 v3, 31, v1")
    k("v_lshl_add_u32 v2, v3, 4, v2")
    k(f"s_mul_i32 s40, s39, {16*3584}")
    k("s_lshl_b32 s41, s38, 9")
    k("s_add_u32 s40, s40, s41")
    k("s_movk_i32 s43, 3584")
    k("v_lshlrev_b32 v3, 4, v1")
    k(f"s_mul_i32 s42, s38, {8*28*2048}")
    k("s_lshl_b32 s41, s39, 11")
    k("s_add_u32 s42, s42, s41")
    k("s_and_b32 s41, s36, 1")
    k("s_lshl_b32 s41, s41, 10")
    k("s_add_u32 s42, s42, s41")
    k(f"s_mov_b32 s44, {28*2048}")
    k(f"s_mov_b32 s45, {28*2048}")
    k("s_movk_i32 s46, 3584")
    k(f"s_branch {TR}")
    k.label(JWD)
    k(f"s_sub_u32 s36, s{sT}, {N_WT+N_WS}")
    k.srd(8, 32, WGB)
    k.srd_off(16, 6, WD, 7 * 112 * 2048)
    k("s_mul_i32 s38, s36, 2341")
    k("s_lshr_b32 s38, s38, 16")
    k("s_mul_i32 s39, s38, 28")
    k("s_sub_u32 s39, s36, s39")
    k("v_lshrrev_b32 v2, 5, v1")
    k("v_bfe_u32 v3, v1, 4, 1")
    k("v_lshl_add_u32 v2, v3, 7, v2")
    k("v_bfe_u32 v3, v1, 3, 1")
    k("v_lshl_add_u32 v2, v3, 5, v2")
    k("v_mul_u32_u24 v2, 0x380, v2")
    k("v_and_b32 v4, 7, v1")
    k("v_lshl_add_u32 v2, v4, 4, v2")
    k("s_lshr_b32 s40, s39, 2")
    k("s_lshl_b32 s40, s40, 7")
    k("s_and_b32 s41, s39, 3")
    k("s_add_u32 s40, s40, s41")
    k(f"s_mul_i32 s40, s40, {2*896}")
    k("s_lshl_b32 s41, s38, 7")
    k("s_add_u32 s40, s40, s41")
    k(f"s_movk_i32 s43, {8*896}")
    k(f"s_mov_b32 s46, {(64-24)*896}")
    k("v_lshlrev_b32 v4, 4, v4")
    k("v_lshl_add_u32 v4, v3, 9, v4")
    k("v_lshrrev_b32 v3, 4, v1")
    k("v_lshl_add_u32 v3, v3, 11, v4")
    k("s_mul_i32 s42, s38, 112")
    k("s_lshl2_add_u32 s42, s39, s42")
    k("s_lshl_b32 s42, s42, 11")
    k("s_movk_i32 s44, 128")
    k(f"s_movk_i32 s45, {1024-384}")
    k.label(TR)
    for e in range(8):
        k(f"buffer_load_dwordx4 {v(vIn+4*e,4)}, v2, s[8:11], s40 offen")
        if e < 7:
            k(f"s_add_u32 s40, s40, s{46 if e == 3 else 43}")
    k.stamp()
    k("s_waitcnt vmcnt(0)")
    k.stamp()
    for j in range(8):
        o = vOut + 4 * j
        for q in range(4):
            k(f"v_perm_b32 {v(o+q)}, {v(vIn+4*(2*q+1)+(j>>1))}, {v(vIn+4*(2*q)+(j>>1))}, s{34+(j&1)}")
        k(f"buffer_store_dwordx4 {v(o,4)}, v3, s[16:19], s42 offen")
        if j < 7:
            k(f"s_add_u32 s42, s42, s{45 if j == 3 else 44}")
    k.stamp()
    if k.prof:
        k("s_waitcnt vmcnt(0)")
    k.stamp_flush(6, PROF, sW, 1)
    k.label(END)
    k("s_endpgm")
    return k


K2_LDS = 16384


def cmul(k, dr, di, xr, xi, c, sn, sign, t0, t1):
    k(f"v_mul_f32 {v(t0)}, {v(xr)}, {v(c)}")
    k(f"v_mul_f32 {v(t1)}, {v(xi)}, {v(c)}")
    if sign < 0:
        k(f"v_fmac_f32 {v(t0)}, {v(xi)}, {v(sn)}")
        k(f"v_fma_f32 {v(t1)}, -{v(xr)}, {v(sn)}, {v(t1)}")
    else:
        k(f"v_fma_f32 {v(t0)}, -{v(xi)}, {v(sn)}, {v(t0)}")
        k(f"v_fmac_f32 {v(t1)}, {v(xr)}, {v(sn)}")
    assert dr == t0 and di == t1


def gen_k2():
    k = Kern("k2_kernel", 0, 0)
    END = k.lab("end")
    sW, sKK = 20, 2
    k("s_cmp_ge_u32 s2, 224")
    k(f"s_cbranch_scc1 {END}")
    k.stamp()
    k("s_load_dwordx2 s[6:7], s[0:1], 72")
    k("v_lshrrev_b32 v2, 6, v0")
    k("v_and_b32 v1, 63, v0")
    k(f"v_readfirstlane_b32 s{sW}, v2")
    k("v_lshrrev_b32 v4, 4, v1")
    k("v_and_b32 v5, 7, v1")
    k("v_xor_b32 v5, v5, v4")
    k("v_lshrrev_b32 v6, 3, v1")
    k("v_lshlrev_b32 v6, 7, v6")
    k("v_lshl_add_u32 v2, v5, 4, v6")
    k("v_xor_b32 v3, 64, v2")
    k(f"s_lshl_b32 s21, s{sW}, 11")
    k(f"s_lshl_b32 s22, s{sKK}, 13")
    k("s_add_u32 s22, s22, s21")
    k("v_lshlrev_b32 v7, 4, v1")
    k("s_mov_b32 m0, s21")
    k("s_waitcnt lgkmcnt(0)")
    k.srd_off(8, 6, AT, 224 * 8192)
    k("buffer_load_dwordx4 v2, s[8:11], s22 offen lds")
    k("buffer_load_dwordx4 v3, s[8:11], s22 offen offset:1024 lds")
    k.srd_off(12, 6, WT, 224 * 8192)
    vWt = 8
    k(f"buffer_load_dwordx4 {v(vWt,4)}, v7, s[12:15], s22 offen")
    k(f"buffer_load_dwordx4 {v(vWt+4,4)}, v7, s[12:15], s22 offen offset:1024")
    k.stamp()
    k.srd_off(16, 6, BT, 448 * 4096)
    vC1, vS1, vN1 = 16, 24, 32
    vC2, vS2, vN2 = 40, 48, 56
    vTc, vTs = 64, 72
    vUc, vUs = 80, 88
    vD = 96
    vX = 128
    vY = 144
    vP = 160
    vT = 168
    k("v_and_b32 v5, 15, v1")
    k(f"s_lshl_b32 s23, s{sW}, 4")
    k("v_add_u32 v6, s23, v5")
    k("v_cvt_f32_u32 v2, v6")
    k("v_cvt_f32_u32 v3, v4")

    def packed_table(dc, ds_, step, base, mult):
        for e in range(8):
            if mult[e] == 0:
                k(f"v_mov_b32 {v(vT+e)}, {v(base)}")
            else:
                k(f"v_fmamk_f32 {v(vT+e)}, {v(step)}, {f2u(float(mult[e]))}, {v(base)}")
        for e in range(8):
            k(f"v_cos_f32 {v(vT+8+e)}, {v(vT+e)}")
        for e in range(8):
            k(f"v_sin_f32 {v(vT+e)}, {v(vT+e)}")
        for p in range(4):
            k(f"v_cvt_pk_bf16_f32 {v(dc+p)}, {v(vT+8+2*p)}, {v(vT+8+2*p+1)}")
        for p in range(4):
            k(f"v_cvt_pk_bf16_f32 {v(ds_+p)}, {v(vT+2*p)}, {v(vT+2*p+1)}")

    k(f"v_mul_f32 {v(vY)}, {f2u(1.0/64)}, v2")
    k(f"v_mul_f32 {v(vY+1)}, {f2u(8.0)}, v3")
    k(f"v_mul_f32 {v(vY+1)}, {v(vY+1)}, {v(vY)}")
    packed_table(vC1, vS1, vY, vY + 1, list(range(8)))
    k("s_mov_b32 s24, 0x80008000")
    k("v_and_b32 v6, 1, v1")
    k("v_mul_u32_u24 v6, 0x8000, v6")
    k("v_lshl_or_b32 v6, v6, 16, v6")
    for p in range(4):
        k(f"v_xor_b32 {v(vC1+4+p)}, v6, {v(vC1+p)}")
        k(f"v_xor_b32 {v(vS1+4+p)}, v6, {v(vS1+p)}")
    for p in range(8):
        k(f"v_xor_b32 {v(vN1+p)}, s24, {v(vS1+p)}")
    k("v_lshrrev_b32 v6, 1, v5")
    k("v_xor_b32 v6, v6, v4")
    k("v_lshlrev_b32 v6, 4, v6")
    k(f"v_lshl_add_u32 {v(vP)}, v5, 7, v6")
    k(f"v_xor_b32 {v(vP+1)}, 64, {v(vP)}")
    k(f"v_mul_f32 {v(vY)}, {f2u(1.0/2048)}, v2")
    k(f"v_mul_f32 {v(vY+1)}, 4.0, v3")
    k(f"v_mul_f32 {v(vY+1)}, {v(vY+1)}, {v(vY)}")
    m2 = [0, 1, 2, 3, 16, 17, 18, 19]
    k.stamp()
    k("s_waitcnt vmcnt(2)")
    k("s_barrier")
    k.stamp()
    for plane in range(2):
        for blk in range(2):
            for t in range(2):
                k(f"ds_read_b128 {v(vD+16*plane+8*blk+4*t,4)}, {v(vP+t)} offset:{plane*4096+blk*2048}")
    for e in range(8):
        if m2[e] == 0:
            k(f"v_mov_b32 {v(vTs+e)}, {v(vY+1)}")
        else:
            k(f"v_fmamk_f32 {v(vTs+e)}, {v(vY)}, {f2u(float(m2[e]))}, {v(vY+1)}")

    def dft_big(cr, ci, first_wait):
        for t in range(2):
            for blk in range(2):
                ar, ai = vD + 8 * blk + 4 * t, vD + 16 + 8 * blk + 4 * t
                xr, xi = vX + 4 * blk, vX + 8 + 4 * blk
                c0r = "0" if t == 0 else v(xr, 4)
                c0i = "0" if t == 0 else v(xi, 4)
                k(f"v_mfma_f32_16x16x32_bf16 {v(xr,4)}, {v(ar,4)}, {v(vC1+4*t,4)}, {c0r}")
                k(f"v_mfma_f32_16x16x32_bf16 {v(xi,4)}, {v(ai,4)}, {v(vC1+4*t,4)}, {c0i}")
                first_wait()
                k(f"v_mfma_f32_16x16x32_bf16 {v(xr,4)}, {v(ai,4)}, {v(cr+4*t,4)}, {v(xr,4)}")
                k(f"v_mfma_f32_16x16x32_bf16 {v(xi,4)}, {v(ar,4)}, {v(ci+4*t,4)}, {v(xi,4)}")
                first_wait()

    k("s_waitcnt lgkmcnt(0)")
    fill = []
    for e in range(8):
        fill.append(f"v_cos_f32 {v(vTc+e)}, {v(vTs+e)}")
    for e in range(8):
        fill.append(f"v_sin_f32 {v(vTs+e)}, {v(vTs+e)}")

    def filler():
        for _ in range(2):
            if fill:
                k(fill.pop(0))

    dft_big(vS1, vN1, filler)
    assert not fill
    k("v_cvt_f32_u32 v6, v5")
    k(f"v_mul_f32 {v(vY)}, {f2u(1.0/32)}, v6")
    k(f"v_mul_f32 {v(vY+1)}, 4.0, v3")
    k(f"v_mul_f32 {v(vY+1)}, {v(vY+1)}, {v(vY)}")
    packed_table(vC2, vS2, vY, vY + 1, m2)
    k("s_brev_b32 s25, 1")
    for p in range(4):
        k(f"v_xor_b32 {v(vC2+4+p)}, s25, {v(vC2+p)}")
        k(f"v_xor_b32 {v(vS2+4+p)}, s25, {v(vS2+p)}")
    for p in range(8):
        k(f"v_xor_b32 {v(vN2+p)}, s24, {v(vS2+p)}")

    def pack():
        for p in range(4):
            k(f"v_cvt_pk_bf16_f32 {v(vP+p)}, {v(vY+2*p)}, {v(vY+2*p+1)}")
            k(f"v_cvt_pk_bf16_f32 {v(vP+4+p)}, {v(vY+8+2*p)}, {v(vY+8+2*p+1)}")

    for e in range(8):
        cmul(k, vY + e, vY + 8 + e, vX + e, vX + 8 + e, vTc + e, vTs + e, -1, vY + e, vY + 8 + e)
    pack()
    for blk in range(2):
        xr, xi = vX + 4 * blk, vX + 8 + 4 * blk
        k(f"v_mfma_f32_16x16x32_bf16 {v(xr,4)}, {v(vC2+4*blk,4)}, {v(vP,4)}, 0")
        k(f"v_mfma_f32_16x16x32_bf16 {v(xi,4)}, {v(vC2+4*blk,4)}, {v(vP+4,4)}, 0")
        k(f"v_mfma_f32_16x16x32_bf16 {v(xr,4)}, {v(vS2+4*blk,4)}, {v(vP+4,4)}, {v(xr,4)}")
        k(f"v_mfma_f32_16x16x32_bf16 {v(xi,4)}, {v(vN2+4*blk,4)}, {v(vP,4)}, {v(xi,4)}")
    k(f"v_mul_f32 {v(vT)}, {f2u(1.0/2048)}, v6")
    k(f"v_add_f32 {v(vT+1)}, {f2u(16.0/2048)}, {v(vT)}")
    k("v_lshl_add_u32 v2, v4, 2, s23")
    k("v_cvt_f32_u32 v2, v2")
    for r in range(4):
        for blk in range(2):
            k(f"v_mul_f32 {v(vUs+4*blk+r)}, v2, {v(vT+blk)}")
        if r < 3:
            k("v_add_f32 v2, 1.0, v2")
    k.stamp()
    k("s_waitcnt vmcnt(0)")
    for e in range(8):
        k(f"v_lshlrev_b32 {v(vTc+e)}, 16, {v(vWt+e)}")
        k(f"v_and_b32 {v(vTs+e)}, 0xffff0000, {v(vWt+e)}")
    for e in range(8):
        cmul(k, vY + e, vY + 8 + e, vX + e, vX + 8 + e, vTc + e, vTs + e, +1, vY + e, vY + 8 + e)
    pack()
    for blk in range(2):
        xr, xi = vX + 4 * blk, vX + 8 + 4 * blk
        k(f"v_mfma_f32_16x16x32_bf16 {v(xr,4)}, {v(vP,4)}, {v(vC2+4*blk,4)}, 0")
        k(f"v_mfma_f32_16x16x32_bf16 {v(xi,4)}, {v(vP+4,4)}, {v(vC2+4*blk,4)}, 0")
        k(f"v_mfma_f32_16x16x32_bf16 {v(xr,4)}, {v(vP+4,4)}, {v(vN2+4*blk,4)}, {v(xr,4)}")
        k(f"v_mfma_f32_16x16x32_bf16 {v(xi,4)}, {v(vP,4)}, {v(vS2+4*blk,4)}, {v(xi,4)}")
    for e in range(8):
        k(f"v_cos_f32 {v(vUc+e)}, {v(vUs+e)}")
    for e in range(8):
        k(f"v_sin_f32 {v(vUs+e)}, {v(vUs+e)}")
    sc = 2.0 / (S * D)
    k(f"s_cmp_eq_u32 s{sKK}, 223")
    k(f"s_mov_b32 s26, {f2u(sc)}")
    k(f"s_cselect_b32 s26, {f2u(sc/2)}, s26")
    for e in range(8):
        k(f"v_mul_f32 {v(vUc+e)}, s26, {v(vUc+e)}")
        k(f"v_mul_f32 {v(vUs+e)}, s26, {v(vUs+e)}")
    k("v_lshrrev_b32 v2, 1, v4")
    k("v_lshl_add_u32 v2, v2, 4, v5")
    k("v_lshlrev_b32 v2, 4, v2")
    k("v_and_b32 v3, 1, v4")
    k("v_lshl_add_u32 v2, v3, 3, v2")
    k(f"s_lshl_b32 s27, s{sW}, 9")
    k("v_add_u32 v2, s27, v2")
    for e in range(8):
        cmul(k, vY + e, vY + 8 + e, vX + e, vX + 8 + e, vUc + e, vUs + e, +1, vY + e, vY + 8 + e)
    pack()
    for plane in range(2):
        for blk in range(2):
            k(f"ds_write_b64 v2, {v(vP+4*plane+2*blk,2)} offset:{8192+plane*4096+blk*2048}")
    k("s_waitcnt lgkmcnt(0)")
    k.stamp()
    k("s_barrier")
    for t in range(2):
        for blk in range(2):
            for plane in range(2):
                k(f"ds_read_b128 {v(vD+16*plane+8*blk+4*t,4)}, v7 offset:{8192+plane*4096+blk*2048+t*1024}")
    k(f"s_lshl_b32 s27, s{sW}, 10")
    k(f"s_lshl_b32 s22, s{sKK}, 13")
    k("s_add_u32 s22, s22, s27")
    k("s_add_u32 s23, s22, 4096")
    k("s_waitcnt lgkmcnt(0)")
    dft_big(vN1, vS1, lambda: None)
    for p in range(4):
        k(f"v_cvt_pk_bf16_f32 {v(vP+p)}, {v(vX+2*p)}, {v(vX+2*p+1)}")
    for p in range(4):
        k(f"v_cvt_pk_bf16_f32 {v(vP+4+p)}, {v(vX+8+2*p)}, {v(vX+8+2*p+1)}")
    k(f"buffer_store_dwordx4 {v(vP,4)}, v7, s[16:19], s22 offen")
    k(f"buffer_store_dwordx4 {v(vP+4,4)}, v7, s[16:19], s23 offen")
    k.stamp()
    if k.prof:
        k("s_waitcnt vmcnt(0)")
    k.stamp_flush(6, PROF + (1 << 20), sW)
    k.label(END)
    k("s_endpgm")
    return k


HEADER = """; Fused preLN + GFNet spectral filter + preLN bilinear GLU, generated by gen/gen.py
"""


def build(kernels):
    out = [HEADER.rstrip()]
    for kern, grid, block, lds in kernels:
        out.append(f"; @launch kernel={kern.name} grid=({grid},1,1) block=({block},1,1) lds={lds}")
    out.append('.amdgcn_target "amdgcn-amd-amdhsa--gfx950"')
    out.append(".text")
    descs = []
    seen = set()
    for kern, *_ in kernels:
        if kern.name in seen:
            continue
        seen.add(kern.name)
        body, desc = kern.emit()
        print(kern.name, kern.stats, file=sys.stderr)
        out.append(body)
        descs.append(desc)
    out.append('.section .rodata,"a"')
    for d in descs:
        out.append(".p2align 6")
        out.append(d)
    return "\n".join(out) + "\n"


if __name__ == "__main__":
    from gen3 import gen_k3, K3_LDS
    if "--prof" in sys.argv:
        Kern.prof = True
        sys.argv.remove("--prof")
    ks = [(gen_k1(), K1_WGS, 256, K1_LDS), (gen_k2(), 224, 256, K2_LDS), (gen_k3(), 224, 256, K3_LDS)]
    path = sys.argv[1] if len(sys.argv) > 1 else "sequential_preLN__spectral_gfnet__glu_gated_bilinear__prompt.s"
    open(path, "w").write(build(ks))
```

```python
import struct
import sys
from asmlib import Kern, v, a, s

S, D, F = 2048, 448, 1792
AT = 0x000000
WT = 0x200000
BT = 0x400000
HC = 0x600000
WS = 0x800000
WD = 0xC00000
HP = 0xE00000
M1 = 0x1500000
FL = 0x1510000
WS_BYTES = 0x1520000
XB = S * D * 2
WRB = S * 225 * 2
WGB = D * F * 2
EPS = 1e-5
PROF = 0x1800000
import os
SC = os.environ.get("SC", " sc1")
NT = os.environ.get("NT", "")
WSB = int(os.environ.get("WSB", "0"), 0)


def f2u(x):
    return "0x%08x" % struct.unpack("<I", struct.pack("<f", x))[0]


N_WT, N_WS, N_WD = 256, 392, 196
K1_SIDE_WGS = (N_WT + N_WS + N_WD) // 4
K1_WGS = 224 + K1_SIDE_WGS
K1_LDS = 57344 + 512


def div7(k, dst, src):
    k(f"s_mul_i32 s{dst}, s{src}, 37")
    k(f"s_lshr_b32 s{dst}, s{dst}, 8")


def xlane_sum(k, r, t):
    k(f"v_mov_b32 {v(t)}, {v(r)}")
    k(f"v_permlane16_swap_b32 {v(r)}, {v(t)}")
    k(f"v_add_f32 {v(r)}, {v(r)}, {v(t)}")
    k(f"v_mov_b32 {v(t)}, {v(r)}")
    k(f"v_permlane32_swap_b32 {v(r)}, {v(t)}")
    k(f"v_add_f32 {v(r)}, {v(r)}, {v(t)}")


def gen_k1():
    k = Kern("k1_kernel", 0, 0)
    END = k.lab("end")
    SIDE = k.lab("side")
    sW = 20
    k(f"s_cmp_ge_u32 s2, {K1_WGS}")
    k(f"s_cbranch_scc1 {END}")
    k.stamp()
    k("s_load_dwordx2 s[4:5], s[0:1], 0")
    k("s_load_dwordx2 s[6:7], s[0:1], 72")
    k("v_lshrrev_b32 v2, 6, v0")
    k("v_and_b32 v1, 63, v0")
    k(f"v_readfirstlane_b32 s{sW}, v2")
    k("s_cmp_ge_u32 s2, 224")
    k(f"s_cbranch_scc1 {SIDE}")
    sRT, sCT = 21, 22
    k("s_and_b32 s23, s2, 7")
    k("s_lshr_b32 s24, s2, 3")
    div7(k, 25, 24)
    k("s_mul_i32 s26, s25, 7")
    k(f"s_sub_u32 s{sCT}, s24, s26")
    k(f"s_lshl2_add_u32 s{sRT}, s23, s25")
    k("v_lshrrev_b32 v4, 5, v1")
    k("v_bfe_u32 v5, v1, 3, 2")
    k("v_lshl_add_u32 v4, v4, 4, v5")
    k("s_movk_i32 s26, 0x7000")
    k("v_mul_u32_u24 v4, s26, v4")
    k("v_lshrrev_b32 v5, 4, v1")
    k("v_and_b32 v6, 7, v1")
    k("v_xor_b32 v6, v6, v5")
    k("v_lshl_add_u32 v2, v6, 4, v4")
    k("v_xor_b32 v3, 64, v2")
    k(f"v_add_u32 v3, {32*32*896}, v3")
    k(f"s_lshl_b32 s26, s{sW}, 7")
    k(f"s_add_u32 s26, s26, s{sRT}")
    k("s_mul_i32 s26, s26, 896")
    k(f"s_lshl_b32 s27, s{sW}, 11")
    k("s_waitcnt lgkmcnt(0)")
    k.srd(8, 4, XB)
    for c in range(7):
        for q in range(2):
            k(f"s_add_u32 m0, s27, {c*(8192-128) + q*1024}")
            k(f"buffer_load_dwordx4 v{2+q}, s[8:11], s26 offen offset:{c*128}{NT} lds")
    k.stamp()
    k.srd_off(12, 6, WSB + AT, 224 * 8192)
    k.srd_off(16, 6, WSB + M1, S * 4)
    k("v_and_b32 v8, 15, v1")
    k("v_lshrrev_b32 v9, 1, v8")
    k("v_xor_b32 v9, v9, v5")
    k("v_lshlrev_b32 v9, 4, v9")
    k("v_lshl_add_u32 v4, v8, 7, v9")
    k("v_xor_b32 v5, 64, v4")
    k("v_add_u32 v6, s27, v4")
    k("v_add_u32 v7, s27, v5")
    vB, vST, vE, vSG, vCS, vT, vF = 8, 9, 9, 17, 18, 19, 28
    vKK = 27
    k(f"s_and_b32 s28, s{sW}, 1")
    k("s_lshl_b32 s28, s28, 4")
    k(f"s_lshl_b32 s29, s{sCT}, 5")
    k("s_add_u32 s28, s28, s29")
    k(f"v_add_u32 {v(vKK)}, s28, v8")
    k(f"v_add_u32 v19, 1, {v(vKK)}")
    k("v_cvt_f32_u32 v20, v19")
    k("v_and_b32 v19, 1, v19")
    k("v_lshlrev_b32 v19, 31, v19")
    k(f"v_or_b32 {v(vSG)}, 1.0, v19")
    k(f"v_mul_f32 {v(vE+1)}, {f2u(1.0/448)}, v20")
    for e in range(2, 8):
        k(f"v_mul_f32 {v(vE+e)}, {f2u(e/448.0)}, v20")
    k(f"v_mul_f32 {v(vST)}, {f2u(32.0/448)}, v20")
    k(f"v_fract_f32 {v(vST)}, {v(vST)}")
    k("v_lshrrev_b32 v21, 4, v1")
    k("v_lshlrev_b32 v21, 3, v21")
    k("v_cvt_f32_u32 v21, v21")
    k(f"s_lshr_b32 s30, s{sW}, 1")
    k(f"s_mul_i32 s31, s30, {f2u(0.25)}")
    k(f"v_mov_b32 {v(vB)}, s31")
    k(f"v_fmac_f32 {v(vB)}, v21, {v(vE+1)}")
    k(f"v_fract_f32 {v(vB)}, {v(vB)}")
    k(f"v_mov_b32 {v(vCS)}, 0")
    k("s_mov_b32 s32, 0x3f803f80")
    for t in range(7):
        k(f"v_cos_f32 {v(vT)}, {v(vB)}")
        for e in range(1, 8):
            k(f"v_add_f32 {v(vT+e)}, {v(vB)}, {v(vE+e)}")
        for e in range(1, 8):
            k(f"v_cos_f32 {v(vT+e)}, {v(vT+e)}")
        if t < 6:
            k(f"v_add_f32 {v(vB)}, {v(vB)}, {v(vST)}")
            k(f"v_fract_f32 {v(vB)}, {v(vB)}")
        for p in range(4):
            k(f"v_cvt_pk_bf16_f32 {v(vF+4*t+p)}, {v(vT+2*p)}, {v(vT+2*p+1)}")
        for p in range(4):
            k(f"v_dot2c_f32_bf16 {v(vCS)}, s32, {v(vF+4*t+p)}")
    xlane_sum(k, vCS, vT)
    k(f"v_fmac_f32 {v(vCS)}, {v(vCS)}, {v(vSG)}")
    k.stamp()
    vR = 56
    vS0, vS1, vQ0, vQ1 = 20, 21, 22, 23
    for r in (vS0, vS1, vQ0, vQ1):
        k(f"v_mov_b32 {v(r)}, 0")

    def stat(t):
        b = vR + 4 * (t % 4)
        for p in range(4):
            k(f"v_dot2c_f32_bf16 {v(vS0 + (p & 1))}, s32, {v(b+p)}")
            k(f"v_dot2c_f32_bf16 {v(vQ0 + (p & 1))}, {v(b+p)}, {v(b+p)}")

    for c in range(7):
        k(f"s_waitcnt vmcnt({12-2*c})")
        for par in range(2):
            t = 2 * c + par
            k(f"ds_read_b128 {v(vR+4*(t%4),4)}, v{6+par} offset:{c*8192}")
        if c > 0:
            k("s_waitcnt lgkmcnt(2)")
            stat(2 * c - 2)
            stat(2 * c - 1)
    k("s_waitcnt lgkmcnt(0)")
    k.stamp()
    stat(12)
    stat(13)
    k(f"v_add_f32 {v(vS0)}, {v(vS0)}, {v(vS1)}")
    k(f"v_add_f32 {v(vQ0)}, {v(vQ0)}, {v(vQ1)}")
    xlane_sum(k, vS0, vS1)
    xlane_sum(k, vQ0, vQ1)
    k(f"v_mul_f32 {v(vS0)}, {f2u(1.0/448)}, {v(vS0)}")
    k(f"v_mul_f32 {v(vS1)}, {v(vS0)}, {v(vS0)}")
    k(f"v_mov_b32 {v(vQ1)}, {f2u(1.0/448)}")
    k(f"v_fma_f32 {v(vQ0)}, {v(vQ0)}, {v(vQ1)}, -{v(vS1)}")
    k(f"v_max_f32 {v(vQ0)}, 0, {v(vQ0)}")
    k(f"v_add_f32 {v(vQ0)}, {f2u(EPS)}, {v(vQ0)}")
    k(f"v_rsq_f32 {v(vQ0)}, {v(vQ0)}")
    k("v_and_b32 v24, 15, v1")
    k(f"s_lshl_b32 s33, s{sW}, 6")
    k("v_lshl_add_u32 v25, v24, 2, s33")
    k(f"v_mul_f32 {v(vQ1)}, {v(vS0)}, {v(vQ0)}")
    k(f"ds_write_b32 v25, {v(vQ0)} offset:57344")
    k(f"ds_write_b32 v25, {v(vQ1)} offset:57600")
    NOM = k.lab("nom")
    k(f"s_cmp_lg_u32 s{sCT}, 0")
    k(f"s_cbranch_scc1 {NOM}")
    k("v_lshrrev_b32 v25, 2, v24")
    k("v_and_b32 v24, 3, v24")
    k("v_lshl_add_u32 v24, v25, 4, v24")
    k("v_lshlrev_b32 v24, 7, v24")
    k(f"s_lshl_b32 s33, s{sW}, 7")
    k(f"s_add_u32 s33, s33, s{sRT}")
    k("s_lshl_b32 s33, s33, 2")
    k(f"buffer_store_dword {v(vS0)}, v24, s[16:19], s33 offen")
    k.label(NOM)
    k("s_waitcnt lgkmcnt(0)")
    k("s_barrier")
    k.stamp()
    vA = 88
    vSt = 120
    seq = [(t, b) for t in range(14) for b in range(4)]

    def rd(n):
        t, b = seq[n]
        k(f"ds_read_b128 {v(vR+4*(n%8),4)}, v{4+(t&1)} offset:{(t>>1)*8192 + b*2048}")

    DEPTH = 7
    for n in range(DEPTH):
        rd(n)
    k("v_lshrrev_b32 v24, 4, v1")
    k("v_lshlrev_b32 v24, 4, v24")
    for n in range(56):
        t, b = seq[n]
        left = min(DEPTH - 1, 55 - n)
        k(f"s_waitcnt lgkmcnt({left})")
        acc = vA + 16 * (t // 7) + 4 * b
        c = "0" if t % 7 == 0 else v(acc, 4)
        k(f"v_mfma_f32_16x16x32_bf16 {v(acc,4)}, {v(vR+4*(n%8),4)}, {v(vF+4*(t%7),4)}, {c}")
        if n + DEPTH < 56:
            rd(n + DEPTH)
    k.stamp()
    for b in range(4):
        k(f"ds_read_b128 {v(vSt+4*b,4)}, v24 offset:{57344 + 64*b}")
        k(f"ds_read_b128 {v(vSt+16+4*b,4)}, v24 offset:{57600 + 64*b}")
    k(f"v_lshlrev_b32 v25, 13, {v(vKK)}")
    k("v_lshl_add_u32 v25, v24, 1, v25")
    k("s_lshl_b32 s30, s30, 12")
    k(f"s_lshl_b32 s33, s{sRT}, 7")
    k("s_add_u32 s33, s33, s30")
    for n in range(16):
        k(f"v_fmac_f32 {v(vA+n)}, {v(vA+16+n)}, {v(vSG)}")
    k("s_waitcnt lgkmcnt(0)")
    for n in range(16):
        k(f"v_mul_f32 {v(vA+n)}, {v(vA+n)}, {v(vSt+n)}")
    for n in range(16):
        k(f"v_fma_f32 {v(vA+n)}, -{v(vSt+16+n)}, {v(vCS)}, {v(vA+n)}")
    for n in range(8):
        k(f"v_cvt_pk_bf16_f32 {v(vR+n)}, {v(vA+2*n)}, {v(vA+2*n+1)}")
    k(f"buffer_store_dwordx4 {v(vR,4)}, v25, s[12:15], s33 offen{SC}")
    k(f"buffer_store_dwordx4 {v(vR+4,4)}, v25, s[12:15], s33 offen offset:16{SC}")
    k.stamp()
    if k.prof:
        k("s_waitcnt vmcnt(0)")
    k.stamp_flush(6, PROF, sW, 1)
    k("s_endpgm")

    k.label(SIDE)
    sT = 21
    JWS, JWD, TR = k.lab("jws"), k.lab("jwd"), k.lab("tr")
    k("s_load_dwordx4 s[24:27], s[0:1], 8")
    k("s_load_dwordx4 s[28:31], s[0:1], 32")
    k("s_load_dwordx2 s[32:33], s[0:1], 48")
    k("s_sub_u32 s22, s2, 224")
    k(f"s_lshl2_add_u32 s{sT}, s22, s{sW}")
    k("s_mov_b32 s34, 0x05040100")
    k("s_mov_b32 s35, 0x07060302")
    vIn, vOut = 8, 40
    k("s_waitcnt lgkmcnt(0)")
    k(f"s_cmp_ge_u32 s{sT}, {N_WT}")
    k(f"s_cbranch_scc1 {JWS}")
    k.srd(8, 24, WRB)
    k.srd(12, 26, WRB)
    k.srd_off(16, 6, WSB + WT, 224 * 8192)
    k("v_and_b32 v4, 7, v1")
    k("v_lshrrev_b32 v5, 3, v1")
    k("v_mul_u32_u24 v2, 0x1c2, v4")
    k("v_lshl_add_u32 v2, v5, 4, v2")
    k("v_lshlrev_b32 v3, 16, v5")
    k("v_lshl_add_u32 v3, v4, 4, v3")
    k("v_add_u32 v5, 1, v5")
    k("v_lshlrev_b32 v5, 27, v5")
    k("v_and_b32 v5, 0x40000000, v5")
    k("v_or_b32 v2, v2, v5")
    k("v_or_b32 v3, v3, v5")
    k("s_lshr_b32 s37, s22, 3")
    k("s_and_b32 s38, s22, 7")
    k("s_lshl_b32 s40, s38, 5")
    k("s_add_u32 s40, s40, s37")
    k("s_mul_i32 s40, s40, 3600")
    k(f"s_mul_i32 s41, s{sW}, 112")
    k("s_add_u32 s40, s40, s41")
    k("s_add_u32 s40, s40, 2")
    for r in range(4):
        k(f"buffer_load_dwordx4 {v(vIn+8*r,4)}, v2, s[8:11], s40 offen{NT}")
        k(f"buffer_load_dwordx4 {v(vIn+8*r+4,4)}, v2, s[12:15], s40 offen{NT}")
        if r < 3:
            k(f"s_add_u32 s40, s40, {64*450}")
    k(f"s_mul_i32 s42, s{sW}, {7*65536}")
    k("s_lshr_b32 s41, s37, 1")
    k("s_lshl_b32 s41, s41, 11")
    k("s_add_u32 s42, s42, s41")
    k("s_lshl_b32 s41, s38, 8")
    k("s_add_u32 s42, s42, s41")
    k("s_and_b32 s41, s37, 1")
    k("s_lshl_b32 s41, s41, 7")
    k("s_add_u32 s42, s42, s41")
    NOZ = k.lab("noz")
    k(f"s_cmp_lg_u32 s{sT}, 0")
    k(f"s_cbranch_scc1 {NOZ}")
    k.srd_off(44, 6, WSB + FL, 32 * 256)
    k("v_lshlrev_b32 v4, 7, v1")
    k("v_mov_b32 v5, 0")
    k("buffer_store_dword v5, v4, s[44:47], 0 offen")
    k.label(NOZ)
    k.stamp()
    k("s_waitcnt vmcnt(0)")
    k.stamp()
    for e in range(8):
        o = vOut + 4 * e
        for r in range(4):
            k(f"v_perm_b32 {v(o+r)}, {v(vIn+8*r+4+(e>>1))}, {v(vIn+8*r+(e>>1))}, s{34+(e&1)}")
        k(f"buffer_store_dwordx4 {v(o,4)}, v3, s[16:19], s42 offen{SC}")
        if e < 7:
            k("s_add_u32 s42, s42, 8192")
    k.stamp()
    if k.prof:
        k("s_waitcnt vmcnt(0)")
    k.stamp_flush(6, PROF, sW, 1)
    k("s_endpgm")
    k.label(JWS)
    k(f"s_cmp_ge_u32 s{sT}, {N_WT+N_WS}")
    k(f"s_cbranch_scc1 {JWD}")
    k(f"s_sub_u32 s36, s{sT}, {N_WT}")
    k("s_bitcmp1_b32 s36, 0")
    k("s_cselect_b32 s8, s30, s28")
    k("s_cselect_b32 s9, s31, s29")
    k("s_and_b32 s9, s9, 0xffff")
    k(f"s_mov_b32 s10, {WGB}")
    k("s_mov_b32 s11, 0x20000")
    k.srd_off(16, 6, WSB + WS, 56 * 28 * 2048)
    k("s_lshr_b32 s37, s36, 1")
    k("s_mul_i32 s38, s37, 2341")
    k("s_lshr_b32 s38, s38, 16")
    k("s_mul_i32 s39, s38, 28")
    k("s_sub_u32 s39, s37, s39")
    k("v_lshrrev_b32 v2, 5, v1")
    k(f"v_mul_u32_u24 v2, {8*3584}, v2")
    k("v_and_b32 v3, 31, v1")
    k("v_lshl_add_u32 v2, v3, 4, v2")
    k(f"s_mul_i32 s40, s39, {16*3584}")
    k("s_lshl_b32 s41, s38, 9")
    k("s_add_u32 s40, s40, s41")
    k("s_movk_i32 s43, 3584")
    k("v_lshlrev_b32 v3, 4, v1")
    k(f"s_mul_i32 s42, s38, {8*28*2048}")
    k("s_lshl_b32 s41, s39, 11")
    k("s_add_u32 s42, s42, s41")
    k("s_and_b32 s41, s36, 1")
    k("s_lshl_b32 s41, s41, 10")
    k("s_add_u32 s42, s42, s41")
    k(f"s_mov_b32 s44, {28*2048}")
    k(f"s_mov_b32 s45, {28*2048}")
    k("s_movk_i32 s46, 3584")
    k(f"s_branch {TR}")
    k.label(JWD)
    k(f"s_sub_u32 s36, s{sT}, {N_WT+N_WS}")
    k.srd(8, 32, WGB)
    k.srd_off(16, 6, WSB + WD, 7 * 112 * 2048)
    k("s_mul_i32 s38, s36, 2341")
    k("s_lshr_b32 s38, s38, 16")
    k("s_mul_i32 s39, s38, 28")
    k("s_sub_u32 s39, s36, s39")
    k("v_lshrrev_b32 v2, 5, v1")
    k("v_bfe_u32 v3, v1, 4, 1")
    k("v_lshl_add_u32 v2, v3, 7, v2")
    k("v_bfe_u32 v3, v1, 3, 1")
    k("v_lshl_add_u32 v2, v3, 5, v2")
    k("v_mul_u32_u24 v2, 0x380, v2")
    k("v_and_b32 v4, 7, v1")
    k("v_lshl_add_u32 v2, v4, 4, v2")
    k("s_lshr_b32 s40, s39, 2")
    k("s_lshl_b32 s40, s40, 7")
    k("s_and_b32 s41, s39, 3")
    k("s_add_u32 s40, s40, s41")
    k(f"s_mul_i32 s40, s40, {2*896}")
    k("s_lshl_b32 s41, s38, 7")
    k("s_add_u32 s40, s40, s41")
    k(f"s_movk_i32 s43, {8*896}")
    k(f"s_mov_b32 s46, {(64-24)*896}")
    k("v_lshlrev_b32 v4, 4, v4")
    k("v_lshl_add_u32 v4, v3, 9, v4")
    k("v_lshrrev_b32 v3, 4, v1")
    k("v_lshl_add_u32 v3, v3, 11, v4")
    k("s_mul_i32 s42, s38, 112")
    k("s_lshl2_add_u32 s42, s39, s42")
    k("s_lshl_b32 s42, s42, 11")
    k("s_movk_i32 s44, 128")
    k(f"s_movk_i32 s45, {1024-384}")
    k.label(TR)
    for e in range(8):
        k(f"buffer_load_dwordx4 {v(vIn+4*e,4)}, v2, s[8:11], s40 offen{NT}")
        if e < 7:
            k(f"s_add_u32 s40, s40, s{46 if e == 3 else 43}")
    k.stamp()
    k("s_waitcnt vmcnt(0)")
    k.stamp()
    for j in range(8):
        o = vOut + 4 * j
        for q in range(4):
            k(f"v_perm_b32 {v(o+q)}, {v(vIn+4*(2*q+1)+(j>>1))}, {v(vIn+4*(2*q)+(j>>1))}, s{34+(j&1)}")
        k(f"buffer_store_dwordx4 {v(o,4)}, v3, s[16:19], s42 offen{SC}")
        if j < 7:
            k(f"s_add_u32 s42, s42, s{45 if j == 3 else 44}")
    k.stamp()
    if k.prof:
        k("s_waitcnt vmcnt(0)")
    k.stamp_flush(6, PROF, sW, 1)
    k.label(END)
    k("s_endpgm")
    return k


K2_LDS = 16384


def cmul(k, dr, di, xr, xi, c, sn, sign, t0, t1):
    k(f"v_mul_f32 {v(t0)}, {v(xr)}, {v(c)}")
    k(f"v_mul_f32 {v(t1)}, {v(xi)}, {v(c)}")
    if sign < 0:
        k(f"v_fmac_f32 {v(t0)}, {v(xi)}, {v(sn)}")
        k(f"v_fma_f32 {v(t1)}, -{v(xr)}, {v(sn)}, {v(t1)}")
    else:
        k(f"v_fma_f32 {v(t0)}, -{v(xi)}, {v(sn)}, {v(t0)}")
        k(f"v_fmac_f32 {v(t1)}, {v(xr)}, {v(sn)}")
    assert dr == t0 and di == t1


def gen_k2():
    k = Kern("k2_kernel", 0, 0)
    END = k.lab("end")
    sW, sKK = 20, 2
    k("s_cmp_ge_u32 s2, 224")
    k(f"s_cbranch_scc1 {END}")
    k.stamp()
    k("s_load_dwordx2 s[6:7], s[0:1], 72")
    k("v_lshrrev_b32 v2, 6, v0")
    k("v_and_b32 v1, 63, v0")
    k(f"v_readfirstlane_b32 s{sW}, v2")
    k("v_lshrrev_b32 v4, 4, v1")
    k("v_and_b32 v5, 7, v1")
    k("v_xor_b32 v5, v5, v4")
    k("v_lshrrev_b32 v6, 3, v1")
    k("v_lshlrev_b32 v6, 7, v6")
    k("v_lshl_add_u32 v2, v5, 4, v6")
    k("v_xor_b32 v3, 64, v2")
    k(f"s_lshl_b32 s21, s{sW}, 11")
    k(f"s_lshl_b32 s22, s{sKK}, 13")
    k("s_add_u32 s22, s22, s21")
    k("v_lshlrev_b32 v7, 4, v1")
    k("s_mov_b32 m0, s21")
    k("s_waitcnt lgkmcnt(0)")
    k.srd_off(8, 6, WSB + AT, 224 * 8192)
    k("buffer_load_dwordx4 v2, s[8:11], s22 offen lds")
    k("buffer_load_dwordx4 v3, s[8:11], s22 offen offset:1024 lds")
    k.srd_off(12, 6, WSB + WT, 224 * 8192)
    vWt = 8
    k(f"buffer_load_dwordx4 {v(vWt,4)}, v7, s[12:15], s22 offen")
    k(f"buffer_load_dwordx4 {v(vWt+4,4)}, v7, s[12:15], s22 offen offset:1024")
    k.stamp()
    k.srd_off(16, 6, WSB + BT, 448 * 4096)
    vC1, vS1, vN1 = 16, 24, 32
    vC2, vS2, vN2 = 40, 48, 56
    vTc, vTs = 64, 72
    vUc, vUs = 80, 88
    vD = 96
    vX = 128
    vY = 144
    vP = 160
    vT = 168
    k("v_and_b32 v5, 15, v1")
    k(f"s_lshl_b32 s23, s{sW}, 4")
    k("v_add_u32 v6, s23, v5")
    k("v_cvt_f32_u32 v2, v6")
    k("v_cvt_f32_u32 v3, v4")

    def packed_table(dc, ds_, step, base, mult):
        for e in range(8):
            if mult[e] == 0:
                k(f"v_mov_b32 {v(vT+e)}, {v(base)}")
            else:
                k(f"v_fmamk_f32 {v(vT+e)}, {v(step)}, {f2u(float(mult[e]))}, {v(base)}")
        for e in range(8):
            k(f"v_cos_f32 {v(vT+8+e)}, {v(vT+e)}")
        for e in range(8):
            k(f"v_sin_f32 {v(vT+e)}, {v(vT+e)}")
        for p in range(4):
            k(f"v_cvt_pk_bf16_f32 {v(dc+p)}, {v(vT+8+2*p)}, {v(vT+8+2*p+1)}")
        for p in range(4):
            k(f"v_cvt_pk_bf16_f32 {v(ds_+p)}, {v(vT+2*p)}, {v(vT+2*p+1)}")

    k(f"v_mul_f32 {v(vY)}, {f2u(1.0/64)}, v2")
    k(f"v_mul_f32 {v(vY+1)}, {f2u(8.0)}, v3")
    k(f"v_mul_f32 {v(vY+1)}, {v(vY+1)}, {v(vY)}")
    packed_table(vC1, vS1, vY, vY + 1, list(range(8)))
    k("s_mov_b32 s24, 0x80008000")
    k("v_and_b32 v6, 1, v1")
    k("v_mul_u32_u24 v6, 0x8000, v6")
    k("v_lshl_or_b32 v6, v6, 16, v6")
    for p in range(4):
        k(f"v_xor_b32 {v(vC1+4+p)}, v6, {v(vC1+p)}")
        k(f"v_xor_b32 {v(vS1+4+p)}, v6, {v(vS1+p)}")
    for p in range(8):
        k(f"v_xor_b32 {v(vN1+p)}, s24, {v(vS1+p)}")
    k("v_lshrrev_b32 v6, 1, v5")
    k("v_xor_b32 v6, v6, v4")
    k("v_lshlrev_b32 v6, 4, v6")
    k(f"v_lshl_add_u32 {v(vP)}, v5, 7, v6")
    k(f"v_xor_b32 {v(vP+1)}, 64, {v(vP)}")
    k(f"v_mul_f32 {v(vY)}, {f2u(1.0/2048)}, v2")
    k(f"v_mul_f32 {v(vY+1)}, 4.0, v3")
    k(f"v_mul_f32 {v(vY+1)}, {v(vY+1)}, {v(vY)}")
    m2 = [0, 1, 2, 3, 16, 17, 18, 19]
    k.stamp()
    k("s_waitcnt vmcnt(2)")
    k("s_barrier")
    k.stamp()
    for plane in range(2):
        for blk in range(2):
            for t in range(2):
                k(f"ds_read_b128 {v(vD+16*plane+8*blk+4*t,4)}, {v(vP+t)} offset:{plane*4096+blk*2048}")
    for e in range(8):
        if m2[e] == 0:
            k(f"v_mov_b32 {v(vTs+e)}, {v(vY+1)}")
        else:
            k(f"v_fmamk_f32 {v(vTs+e)}, {v(vY)}, {f2u(float(m2[e]))}, {v(vY+1)}")

    def dft_big(cr, ci, first_wait):
        for t in range(2):
            for blk in range(2):
                ar, ai = vD + 8 * blk + 4 * t, vD + 16 + 8 * blk + 4 * t
                xr, xi = vX + 4 * blk, vX + 8 + 4 * blk
                c0r = "0" if t == 0 else v(xr, 4)
                c0i = "0" if t == 0 else v(xi, 4)
                k(f"v_mfma_f32_16x16x32_bf16 {v(xr,4)}, {v(ar,4)}, {v(vC1+4*t,4)}, {c0r}")
                k(f"v_mfma_f32_16x16x32_bf16 {v(xi,4)}, {v(ai,4)}, {v(vC1+4*t,4)}, {c0i}")
                first_wait()
                k(f"v_mfma_f32_16x16x32_bf16 {v(xr,4)}, {v(ai,4)}, {v(cr+4*t,4)}, {v(xr,4)}")
                k(f"v_mfma_f32_16x16x32_bf16 {v(xi,4)}, {v(ar,4)}, {v(ci+4*t,4)}, {v(xi,4)}")
                first_wait()

    k("s_waitcnt lgkmcnt(0)")
    fill = []
    for e in range(8):
        fill.append(f"v_cos_f32 {v(vTc+e)}, {v(vTs+e)}")
    for e in range(8):
        fill.append(f"v_sin_f32 {v(vTs+e)}, {v(vTs+e)}")

    def filler():
        for _ in range(2):
            if fill:
                k(fill.pop(0))

    dft_big(vS1, vN1, filler)
    assert not fill
    k("v_cvt_f32_u32 v6, v5")
    k(f"v_mul_f32 {v(vY)}, {f2u(1.0/32)}, v6")
    k(f"v_mul_f32 {v(vY+1)}, 4.0, v3")
    k(f"v_mul_f32 {v(vY+1)}, {v(vY+1)}, {v(vY)}")
    packed_table(vC2, vS2, vY, vY + 1, m2)
    k("s_brev_b32 s25, 1")
    for p in range(4):
        k(f"v_xor_b32 {v(vC2+4+p)}, s25, {v(vC2+p)}")
        k(f"v_xor_b32 {v(vS2+4+p)}, s25, {v(vS2+p)}")
    for p in range(8):
        k(f"v_xor_b32 {v(vN2+p)}, s24, {v(vS2+p)}")

    def pack():
        for p in range(4):
            k(f"v_cvt_pk_bf16_f32 {v(vP+p)}, {v(vY+2*p)}, {v(vY+2*p+1)}")
            k(f"v_cvt_pk_bf16_f32 {v(vP+4+p)}, {v(vY+8+2*p)}, {v(vY+8+2*p+1)}")

    for e in range(8):
        cmul(k, vY + e, vY + 8 + e, vX + e, vX + 8 + e, vTc + e, vTs + e, -1, vY + e, vY + 8 + e)
    pack()
    for blk in range(2):
        xr, xi = vX + 4 * blk, vX + 8 + 4 * blk
        k(f"v_mfma_f32_16x16x32_bf16 {v(xr,4)}, {v(vC2+4*blk,4)}, {v(vP,4)}, 0")
        k(f"v_mfma_f32_16x16x32_bf16 {v(xi,4)}, {v(vC2+4*blk,4)}, {v(vP+4,4)}, 0")
        k(f"v_mfma_f32_16x16x32_bf16 {v(xr,4)}, {v(vS2+4*blk,4)}, {v(vP+4,4)}, {v(xr,4)}")
        k(f"v_mfma_f32_16x16x32_bf16 {v(xi,4)}, {v(vN2+4*blk,4)}, {v(vP,4)}, {v(xi,4)}")
    k(f"v_mul_f32 {v(vT)}, {f2u(1.0/2048)}, v6")
    k(f"v_add_f32 {v(vT+1)}, {f2u(16.0/2048)}, {v(vT)}")
    k("v_lshl_add_u32 v2, v4, 2, s23")
    k("v_cvt_f32_u32 v2, v2")
    for r in range(4):
        for blk in range(2):
            k(f"v_mul_f32 {v(vUs+4*blk+r)}, v2, {v(vT+blk)}")
        if r < 3:
            k("v_add_f32 v2, 1.0, v2")
    k.stamp()
    k("s_waitcnt vmcnt(0)")
    for e in range(8):
        k(f"v_lshlrev_b32 {v(vTc+e)}, 16, {v(vWt+e)}")
        k(f"v_and_b32 {v(vTs+e)}, 0xffff0000, {v(vWt+e)}")
    for e in range(8):
        cmul(k, vY + e, vY + 8 + e, vX + e, vX + 8 + e, vTc + e, vTs + e, +1, vY + e, vY + 8 + e)
    pack()
    for blk in range(2):
        xr, xi = vX + 4 * blk, vX + 8 + 4 * blk
        k(f"v_mfma_f32_16x16x32_bf16 {v(xr,4)}, {v(vP,4)}, {v(vC2+4*blk,4)}, 0")
        k(f"v_mfma_f32_16x16x32_bf16 {v(xi,4)}, {v(vP+4,4)}, {v(vC2+4*blk,4)}, 0")
        k(f"v_mfma_f32_16x16x32_bf16 {v(xr,4)}, {v(vP+4,4)}, {v(vN2+4*blk,4)}, {v(xr,4)}")
        k(f"v_mfma_f32_16x16x32_bf16 {v(xi,4)}, {v(vP,4)}, {v(vS2+4*blk,4)}, {v(xi,4)}")
    for e in range(8):
        k(f"v_cos_f32 {v(vUc+e)}, {v(vUs+e)}")
    for e in range(8):
        k(f"v_sin_f32 {v(vUs+e)}, {v(vUs+e)}")
    sc = 2.0 / (S * D)
    k(f"s_cmp_eq_u32 s{sKK}, 223")
    k(f"s_mov_b32 s26, {f2u(sc)}")
    k(f"s_cselect_b32 s26, {f2u(sc/2)}, s26")
    for e in range(8):
        k(f"v_mul_f32 {v(vUc+e)}, s26, {v(vUc+e)}")
        k(f"v_mul_f32 {v(vUs+e)}, s26, {v(vUs+e)}")
    k("v_lshrrev_b32 v2, 1, v4")
    k("v_lshl_add_u32 v2, v2, 4, v5")
    k("v_lshlrev_b32 v2, 4, v2")
    k("v_and_b32 v3, 1, v4")
    k("v_lshl_add_u32 v2, v3, 3, v2")
    k(f"s_lshl_b32 s27, s{sW}, 9")
    k("v_add_u32 v2, s27, v2")
    for e in range(8):
        cmul(k, vY + e, vY + 8 + e, vX + e, vX + 8 + e, vUc + e, vUs + e, +1, vY + e, vY + 8 + e)
    pack()
    for plane in range(2):
        for blk in range(2):
            k(f"ds_write_b64 v2, {v(vP+4*plane+2*blk,2)} offset:{8192+plane*4096+blk*2048}")
    k("s_waitcnt lgkmcnt(0)")
    k.stamp()
    k("s_barrier")
    for t in range(2):
        for blk in range(2):
            for plane in range(2):
                k(f"ds_read_b128 {v(vD+16*plane+8*blk+4*t,4)}, v7 offset:{8192+plane*4096+blk*2048+t*1024}")
    k(f"s_lshl_b32 s27, s{sW}, 10")
    k(f"s_lshl_b32 s22, s{sKK}, 13")
    k("s_add_u32 s22, s22, s27")
    k("s_add_u32 s23, s22, 4096")
    k("s_waitcnt lgkmcnt(0)")
    dft_big(vN1, vS1, lambda: None)
    for p in range(4):
        k(f"v_cvt_pk_bf16_f32 {v(vP+p)}, {v(vX+2*p)}, {v(vX+2*p+1)}")
    for p in range(4):
        k(f"v_cvt_pk_bf16_f32 {v(vP+4+p)}, {v(vX+8+2*p)}, {v(vX+8+2*p+1)}")
    k(f"buffer_store_dwordx4 {v(vP,4)}, v7, s[16:19], s22 offen{SC}")
    k(f"buffer_store_dwordx4 {v(vP+4,4)}, v7, s[16:19], s23 offen{SC}")
    k.stamp()
    if k.prof:
        k("s_waitcnt vmcnt(0)")
    k.stamp_flush(6, PROF + (1 << 20), sW)
    k.label(END)
    k("s_endpgm")
    return k


HEADER = """; Fused preLN + GFNet spectral filter + preLN bilinear GLU, generated by gen/gen.py
"""


def build(kernels):
    out = [HEADER.rstrip()]
    for kern, grid, block, lds in kernels:
        out.append(f"; @launch kernel={kern.name} grid=({grid},1,1) block=({block},1,1) lds={lds}")
    out.append('.amdgcn_target "amdgcn-amd-amdhsa--gfx950"')
    out.append(".text")
    descs = []
    seen = set()
    for kern, *_ in kernels:
        if kern.name in seen:
            continue
        seen.add(kern.name)
        body, desc = kern.emit()
        print(kern.name, kern.stats, file=sys.stderr)
        out.append(body)
        descs.append(desc)
    out.append('.section .rodata,"a"')
    for d in descs:
        out.append(".p2align 6")
        out.append(d)
    return "\n".join(out) + "\n"


if __name__ == "__main__":
    from gen3 import gen_k3, K3_LDS
    if "--prof" in sys.argv:
        Kern.prof = True
        sys.argv.remove("--prof")
    ks = [(gen_k1(), K1_WGS, 256, K1_LDS), (gen_k2(), 224, 256, K2_LDS), (gen_k3(), 224, 256, K3_LDS)]
    path = sys.argv[1] if len(sys.argv) > 1 else "sequential_preLN__spectral_gfnet__glu_gated_bilinear__prompt.s"
    open(path, "w").write(build(ks))
```

```python
import struct
import sys
from asmlib import Kern, v, a, s

S, D, F = 2048, 448, 1792
AT = 0x000000
WT = 0x200000
BT = 0x400000
HC = 0x600000
WS = 0x800000
WD = 0xC00000
HP = 0xE00000
M1 = 0x1500000
FL = 0x1510000
WS_BYTES = 0x1520000
XB = S * D * 2
WRB = S * 225 * 2
WGB = D * F * 2
EPS = 1e-5
PROF = 0x1800000
import os
SC = os.environ.get("SC", " sc1")
NT = os.environ.get("NT", "")
WSB = int(os.environ.get("WSB", "0"), 0)


def f2u(x):
    return "0x%08x" % struct.unpack("<I", struct.pack("<f", x))[0]


N_WT, N_WS, N_WD = 256, 392, 196
K1_SIDE_WGS = (N_WT + N_WS + N_WD) // 4
K1_WGS = 224 + K1_SIDE_WGS
K1_LDS = 57344 + 512


def div7(k, dst, src):
    k(f"s_mul_i32 s{dst}, s{src}, 37")
    k(f"s_lshr_b32 s{dst}, s{dst}, 8")


def xlane_sum(k, r, t):
    k(f"v_mov_b32 {v(t)}, {v(r)}")
    k(f"v_permlane16_swap_b32 {v(r)}, {v(t)}")
    k(f"v_add_f32 {v(r)}, {v(r)}, {v(t)}")
    k(f"v_mov_b32 {v(t)}, {v(r)}")
    k(f"v_permlane32_swap_b32 {v(r)}, {v(t)}")
    k(f"v_add_f32 {v(r)}, {v(r)}, {v(t)}")


def gen_k1():
    k = Kern("k1_kernel", 0, 0)
    END = k.lab("end")
    SIDE = k.lab("side")
    sW = 20
    k(f"s_cmp_ge_u32 s2, {K1_WGS}")
    k(f"s_cbranch_scc1 {END}")
    k.stamp()
    k("s_load_dwordx2 s[4:5], s[0:1], 0")
    k("s_load_dwordx2 s[6:7], s[0:1], 72")
    k("v_lshrrev_b32 v2, 6, v0")
    k("v_and_b32 v1, 63, v0")
    k(f"v_readfirstlane_b32 s{sW}, v2")
    k("s_cmp_ge_u32 s2, 224")
    k(f"s_cbranch_scc1 {SIDE}")
    sRT, sCT = 21, 22
    k("s_and_b32 s23, s2, 7")
    k("s_lshr_b32 s24, s2, 3")
    div7(k, 25, 24)
    k("s_mul_i32 s26, s25, 7")
    k(f"s_sub_u32 s{sCT}, s24, s26")
    k(f"s_lshl2_add_u32 s{sRT}, s23, s25")
    k("v_lshrrev_b32 v4, 5, v1")
    k("v_bfe_u32 v5, v1, 3, 2")
    k("v_lshl_add_u32 v4, v4, 4, v5")
    k("s_movk_i32 s26, 0x7000")
    k("v_mul_u32_u24 v4, s26, v4")
    k("v_lshrrev_b32 v5, 4, v1")
    k("v_and_b32 v6, 7, v1")
    k("v_xor_b32 v6, v6, v5")
    k("v_lshl_add_u32 v2, v6, 4, v4")
    k("v_xor_b32 v3, 64, v2")
    k(f"v_add_u32 v3, {32*32*896}, v3")
    k(f"s_lshl_b32 s26, s{sW}, 7")
    k(f"s_add_u32 s26, s26, s{sRT}")
    k("s_mul_i32 s26, s26, 896")
    k(f"s_lshl_b32 s27, s{sW}, 11")
    k("s_waitcnt lgkmcnt(0)")
    k.srd(8, 4, XB)
    for c in range(7):
        for q in range(2):
            k(f"s_add_u32 m0, s27, {c*(8192-128) + q*1024}")
            k(f"buffer_load_dwordx4 v{2+q}, s[8:11], s26 offen offset:{c*128}{NT} lds")
    k.stamp()
    k.srd_off(12, 6, WSB + AT, 224 * 8192)
    k.srd_off(16, 6, WSB + M1, S * 4)
    k("v_and_b32 v8, 15, v1")
    k("v_lshrrev_b32 v9, 1, v8")
    k("v_xor_b32 v9, v9, v5")
    k("v_lshlrev_b32 v9, 4, v9")
    k("v_lshl_add_u32 v4, v8, 7, v9")
    k("v_xor_b32 v5, 64, v4")
    k("v_add_u32 v6, s27, v4")
    k("v_add_u32 v7, s27, v5")
    vB, vST, vE, vSG, vCS, vT, vF = 8, 9, 9, 17, 18, 19, 28
    vKK = 27
    k(f"s_and_b32 s28, s{sW}, 1")
    k("s_lshl_b32 s28, s28, 4")
    k(f"s_lshl_b32 s29, s{sCT}, 5")
    k("s_add_u32 s28, s28, s29")
    k(f"v_add_u32 {v(vKK)}, s28, v8")
    k(f"v_add_u32 v19, 1, {v(vKK)}")
    k("v_cvt_f32_u32 v20, v19")
    k("v_and_b32 v19, 1, v19")
    k("v_lshlrev_b32 v19, 31, v19")
    k(f"v_or_b32 {v(vSG)}, 1.0, v19")
    k(f"v_mul_f32 {v(vE+1)}, {f2u(1.0/448)}, v20")
    for e in range(2, 8):
        k(f"v_mul_f32 {v(vE+e)}, {f2u(e/448.0)}, v20")
    k(f"v_mul_f32 {v(vST)}, {f2u(32.0/448)}, v20")
    k(f"v_fract_f32 {v(vST)}, {v(vST)}")
    k("v_lshrrev_b32 v21, 4, v1")
    k("v_lshlrev_b32 v21, 3, v21")
    k("v_cvt_f32_u32 v21, v21")
    k(f"s_lshr_b32 s30, s{sW}, 1")
    k(f"s_mul_i32 s31, s30, {f2u(0.25)}")
    k(f"v_mov_b32 {v(vB)}, s31")
    k(f"v_fmac_f32 {v(vB)}, v21, {v(vE+1)}")
    k(f"v_fract_f32 {v(vB)}, {v(vB)}")
    k(f"v_mov_b32 {v(vCS)}, 0")
    k("s_mov_b32 s32, 0x3f803f80")
    for t in range(7):
        k(f"v_cos_f32 {v(vT)}, {v(vB)}")
        for e in range(1, 8):
            k(f"v_add_f32 {v(vT+e)}, {v(vB)}, {v(vE+e)}")
        for e in range(1, 8):
            k(f"v_cos_f32 {v(vT+e)}, {v(vT+e)}")
        if t < 6:
            k(f"v_add_f32 {v(vB)}, {v(vB)}, {v(vST)}")
            k(f"v_fract_f32 {v(vB)}, {v(vB)}")
        for p in range(4):
            k(f"v_cvt_pk_bf16_f32 {v(vF+4*t+p)}, {v(vT+2*p)}, {v(vT+2*p+1)}")
        for p in range(4):
            k(f"v_dot2c_f32_bf16 {v(vCS)}, s32, {v(vF+4*t+p)}")
    xlane_sum(k, vCS, vT)
    k(f"v_fmac_f32 {v(vCS)}, {v(vCS)}, {v(vSG)}")
    k.stamp()
    vR = 56
    vS0, vS1, vQ0, vQ1 = 20, 21, 22, 23
    for r in (vS0, vS1, vQ0, vQ1):
        k(f"v_mov_b32 {v(r)}, 0")

    def stat(t):
        b = vR + 4 * (t % 4)
        for p in range(4):
            k(f"v_dot2c_f32_bf16 {v(vS0 + (p & 1))}, s32, {v(b+p)}")
            k(f"v_dot2c_f32_bf16 {v(vQ0 + (p & 1))}, {v(b+p)}, {v(b+p)}")

    for c in range(7):
        k(f"s_waitcnt vmcnt({12-2*c})")
        for par in range(2):
            t = 2 * c + par
            k(f"ds_read_b128 {v(vR+4*(t%4),4)}, v{6+par} offset:{c*8192}")
        if c > 0:
            k("s_waitcnt lgkmcnt(2)")
            stat(2 * c - 2)
            stat(2 * c - 1)
    k("s_waitcnt lgkmcnt(0)")
    k.stamp()
    stat(12)
    stat(13)
    k(f"v_add_f32 {v(vS0)}, {v(vS0)}, {v(vS1)}")
    k(f"v_add_f32 {v(vQ0)}, {v(vQ0)}, {v(vQ1)}")
    xlane_sum(k, vS0, vS1)
    xlane_sum(k, vQ0, vQ1)
    k(f"v_mul_f32 {v(vS0)}, {f2u(1.0/448)}, {v(vS0)}")
    k(f"v_mul_f32 {v(vS1)}, {v(vS0)}, {v(vS0)}")
    k(f"v_mov_b32 {v(vQ1)}, {f2u(1.0/448)}")
    k(f"v_fma_f32 {v(vQ0)}, {v(vQ0)}, {v(vQ1)}, -{v(vS1)}")
    k(f"v_max_f32 {v(vQ0)}, 0, {v(vQ0)}")
    k(f"v_add_f32 {v(vQ0)}, {f2u(EPS)}, {v(vQ0)}")
    k(f"v_rsq_f32 {v(vQ0)}, {v(vQ0)}")
    k("v_and_b32 v24, 15, v1")
    k(f"s_lshl_b32 s33, s{sW}, 6")
    k("v_lshl_add_u32 v25, v24, 2, s33")
    k(f"v_mul_f32 {v(vQ1)}, {v(vS0)}, {v(vQ0)}")
    k(f"ds_write_b32 v25, {v(vQ0)} offset:57344")
    k(f"ds_write_b32 v25, {v(vQ1)} offset:57600")
    NOM = k.lab("nom")
    k(f"s_cmp_lg_u32 s{sCT}, 0")
    k(f"s_cbranch_scc1 {NOM}")
    k("v_lshrrev_b32 v25, 2, v24")
    k("v_and_b32 v24, 3, v24")
    k("v_lshl_add_u32 v24, v25, 4, v24")
    k("v_lshlrev_b32 v24, 7, v24")
    k(f"s_lshl_b32 s33, s{sW}, 7")
    k(f"s_add_u32 s33, s33, s{sRT}")
    k("s_lshl_b32 s33, s33, 2")
    k(f"buffer_store_dword {v(vS0)}, v24, s[16:19], s33 offen")
    k.label(NOM)
    k("s_waitcnt lgkmcnt(0)")
    k("s_barrier")
    k.stamp()
    vA = 88
    vSt = 120
    seq = [(t, b) for t in range(14) for b in range(4)]

    def rd(n):
        t, b = seq[n]
        k(f"ds_read_b128 {v(vR+4*(n%8),4)}, v{4+(t&1)} offset:{(t>>1)*8192 + b*2048}")

    DEPTH = 7
    for n in range(DEPTH):
        rd(n)
    k("v_lshrrev_b32 v24, 4, v1")
    k("v_lshlrev_b32 v24, 4, v24")
    for n in range(56):
        t, b = seq[n]
        left = min(DEPTH - 1, 55 - n)
        k(f"s_waitcnt lgkmcnt({left})")
        acc = vA + 16 * (t // 7) + 4 * b
        c = "0" if t % 7 == 0 else v(acc, 4)
        k(f"v_mfma_f32_16x16x32_bf16 {v(acc,4)}, {v(vR+4*(n%8),4)}, {v(vF+4*(t%7),4)}, {c}")
        if n + DEPTH < 56:
            rd(n + DEPTH)
    k.stamp()
    for b in range(4):
        k(f"ds_read_b128 {v(vSt+4*b,4)}, v24 offset:{57344 + 64*b}")
        k(f"ds_read_b128 {v(vSt+16+4*b,4)}, v24 offset:{57600 + 64*b}")
    k(f"v_lshlrev_b32 v25, 13, {v(vKK)}")
    k("v_lshl_add_u32 v25, v24, 1, v25")
    k("s_lshl_b32 s30, s30, 12")
    k(f"s_lshl_b32 s33, s{sRT}, 7")
    k("s_add_u32 s33, s33, s30")
    for n in range(16):
        k(f"v_fmac_f32 {v(vA+n)}, {v(vA+16+n)}, {v(vSG)}")
    k("s_waitcnt lgkmcnt(0)")
    for n in range(16):
        k(f"v_mul_f32 {v(vA+n)}, {v(vA+n)}, {v(vSt+n)}")
    for n in range(16):
        k(f"v_fma_f32 {v(vA+n)}, -{v(vSt+16+n)}, {v(vCS)}, {v(vA+n)}")
    for n in range(8):
        k(f"v_cvt_pk_bf16_f32 {v(vR+n)}, {v(vA+2*n)}, {v(vA+2*n+1)}")
    k(f"buffer_store_dwordx4 {v(vR,4)}, v25, s[12:15], s33 offen{SC}")
    k(f"buffer_store_dwordx4 {v(vR+4,4)}, v25, s[12:15], s33 offen offset:16{SC}")
    k.stamp()
    if k.prof:
        k("s_waitcnt vmcnt(0)")
    k.stamp_flush(6, PROF, sW, 1)
    k("s_endpgm")

    k.label(SIDE)
    sT = 21
    JWS, JWD, TR = k.lab("jws"), k.lab("jwd"), k.lab("tr")
    k("s_load_dwordx4 s[24:27], s[0:1], 8")
    k("s_load_dwordx4 s[28:31], s[0:1], 32")
    k("s_load_dwordx2 s[32:33], s[0:1], 48")
    k("s_sub_u32 s22, s2, 224")
    k(f"s_lshl2_add_u32 s{sT}, s22, s{sW}")
    k("s_mov_b32 s34, 0x05040100")
    k("s_mov_b32 s35, 0x07060302")
    vIn, vOut = 8, 40
    k("s_waitcnt lgkmcnt(0)")
    k(f"s_cmp_ge_u32 s{sT}, {N_WT}")
    k(f"s_cbranch_scc1 {JWS}")
    k.srd(8, 24, WRB)
    k.srd(12, 26, WRB)
    k.srd_off(16, 6, WSB + WT, 224 * 8192)
    k("v_and_b32 v4, 7, v1")
    k("v_lshrrev_b32 v5, 3, v1")
    k("v_mul_u32_u24 v2, 0x1c2, v4")
    k("v_lshl_add_u32 v2, v5, 4, v2")
    k("v_lshlrev_b32 v3, 16, v5")
    k("v_lshl_add_u32 v3, v4, 4, v3")
    k("v_add_u32 v5, 1, v5")
    k("v_lshlrev_b32 v5, 27, v5")
    k("v_and_b32 v5, 0x40000000, v5")
    k("v_or_b32 v2, v2, v5")
    k("v_or_b32 v3, v3, v5")
    k("s_lshr_b32 s37, s22, 3")
    k("s_and_b32 s38, s22, 7")
    k("s_lshl_b32 s40, s38, 5")
    k("s_add_u32 s40, s40, s37")
    k("s_mul_i32 s40, s40, 3600")
    k(f"s_mul_i32 s41, s{sW}, 112")
    k("s_add_u32 s40, s40, s41")
    k("s_add_u32 s40, s40, 2")
    for r in range(4):
        k(f"buffer_load_dwordx4 {v(vIn+8*r,4)}, v2, s[8:11], s40 offen{NT}")
        k(f"buffer_load_dwordx4 {v(vIn+8*r+4,4)}, v2, s[12:15], s40 offen{NT}")
        if r < 3:
            k(f"s_add_u32 s40, s40, {64*450}")
    k(f"s_mul_i32 s42, s{sW}, {7*65536}")
    k("s_lshr_b32 s41, s37, 1")
    k("s_lshl_b32 s41, s41, 11")
    k("s_add_u32 s42, s42, s41")
    k("s_lshl_b32 s41, s38, 8")
    k("s_add_u32 s42, s42, s41")
    k("s_and_b32 s41, s37, 1")
    k("s_lshl_b32 s41, s41, 7")
    k("s_add_u32 s42, s42, s41")
    NOZ = k.lab("noz")
    k(f"s_cmp_lg_u32 s{sT}, 0")
    k(f"s_cbranch_scc1 {NOZ}")
    k.srd_off(44, 6, WSB + FL, 32 * 256)
    k("v_lshlrev_b32 v4, 7, v1")
    k("v_mov_b32 v5, 0")
    k("buffer_store_dword v5, v4, s[44:47], 0 offen")
    k.label(NOZ)
    k.stamp()
    k("s_waitcnt vmcnt(0)")
    k.stamp()
    for e in range(8):
        o = vOut + 4 * e
        for r in range(4):
            k(f"v_perm_b32 {v(o+r)}, {v(vIn+8*r+4+(e>>1))}, {v(vIn+8*r+(e>>1))}, s{34+(e&1)}")
        k(f"buffer_store_dwordx4 {v(o,4)}, v3, s[16:19], s42 offen{SC}")
        if e < 7:
            k("s_add_u32 s42, s42, 8192")
    k.stamp()
    if k.prof:
        k("s_waitcnt vmcnt(0)")
    k.stamp_flush(6, PROF, sW, 1)
    k("s_endpgm")
    k.label(JWS)
    k(f"s_cmp_ge_u32 s{sT}, {N_WT+N_WS}")
    k(f"s_cbranch_scc1 {JWD}")
    k(f"s_sub_u32 s36, s{sT}, {N_WT}")
    k("s_bitcmp1_b32 s36, 0")
    k("s_cselect_b32 s8, s30, s28")
    k("s_cselect_b32 s9, s31, s29")
    k("s_and_b32 s9, s9, 0xffff")
    k(f"s_mov_b32 s10, {WGB}")
    k("s_mov_b32 s11, 0x20000")
    k.srd_off(16, 6, WSB + WS, 56 * 28 * 2048)
    k("s_lshr_b32 s37, s36, 1")
    k("s_mul_i32 s38, s37, 2341")
    k("s_lshr_b32 s38, s38, 16")
    k("s_mul_i32 s39, s38, 28")
    k("s_sub_u32 s39, s37, s39")
    k("v_lshrrev_b32 v2, 5, v1")
    k(f"v_mul_u32_u24 v2, {8*3584}, v2")
    k("v_and_b32 v3, 31, v1")
    k("v_lshl_add_u32 v2, v3, 4, v2")
    k(f"s_mul_i32 s40, s39, {16*3584}")
    k("s_lshl_b32 s41, s38, 9")
    k("s_add_u32 s40, s40, s41")
    k("s_movk_i32 s43, 3584")
    k("v_lshlrev_b32 v3, 4, v1")
    k(f"s_mul_i32 s42, s38, {8*28*2048}")
    k("s_lshl_b32 s41, s39, 11")
    k("s_add_u32 s42, s42, s41")
    k("s_and_b32 s41, s36, 1")
    k("s_lshl_b32 s41, s41, 10")
    k("s_add_u32 s42, s42, s41")
    k(f"s_mov_b32 s44, {28*2048}")
    k(f"s_mov_b32 s45, {28*2048}")
    k("s_movk_i32 s46, 3584")
    k(f"s_branch {TR}")
    k.label(JWD)
    k(f"s_sub_u32 s36, s{sT}, {N_WT+N_WS}")
    k.srd(8, 32, WGB)
    k.srd_off(16, 6, WSB + WD, 7 * 112 * 2048)
    k("s_mul_i32 s38, s36, 2341")
    k("s_lshr_b32 s38, s38, 16")
    k("s_mul_i32 s39, s38, 28")
    k("s_sub_u32 s39, s36, s39")
    k("v_lshrrev_b32 v2, 5, v1")
    k("v_bfe_u32 v3, v1, 4, 1")
    k("v_lshl_add_u32 v2, v3, 7, v2")
    k("v_bfe_u32 v3, v1, 3, 1")
    k("v_lshl_add_u32 v2, v3, 5, v2")
    k("v_mul_u32_u24 v2, 0x380, v2")
    k("v_and_b32 v4, 7, v1")
    k("v_lshl_add_u32 v2, v4, 4, v2")
    k("s_lshr_b32 s40, s39, 2")
    k("s_lshl_b32 s40, s40, 7")
    k("s_and_b32 s41, s39, 3")
    k("s_add_u32 s40, s40, s41")
    k(f"s_mul_i32 s40, s40, {2*896}")
    k("s_lshl_b32 s41, s38, 7")
    k("s_add_u32 s40, s40, s41")
    k(f"s_movk_i32 s43, {8*896}")
    k(f"s_mov_b32 s46, {(64-24)*896}")
    k("v_lshlrev_b32 v4, 4, v4")
    k("v_lshl_add_u32 v4, v3, 9, v4")
    k("v_lshrrev_b32 v3, 4, v1")
    k("v_lshl_add_u32 v3, v3, 11, v4")
    k("s_mul_i32 s42, s38, 112")
    k("s_lshl2_add_u32 s42, s39, s42")
    k("s_lshl_b32 s42, s42, 11")
    k("s_movk_i32 s44, 128")
    k(f"s_movk_i32 s45, {1024-384}")
    k.label(TR)
    for e in range(8):
        k(f"buffer_load_dwordx4 {v(vIn+4*e,4)}, v2, s[8:11], s40 offen{NT}")
        if e < 7:
            k(f"s_add_u32 s40, s40, s{46 if e == 3 else 43}")
    k.stamp()
    k("s_waitcnt vmcnt(0)")
    k.stamp()
    for j in range(8):
        o = vOut + 4 * j
        for q in range(4):
            k(f"v_perm_b32 {v(o+q)}, {v(vIn+4*(2*q+1)+(j>>1))}, {v(vIn+4*(2*q)+(j>>1))}, s{34+(j&1)}")
        k(f"buffer_store_dwordx4 {v(o,4)}, v3, s[16:19], s42 offen{SC}")
        if j < 7:
            k(f"s_add_u32 s42, s42, s{45 if j == 3 else 44}")
    k.stamp()
    if k.prof:
        k("s_waitcnt vmcnt(0)")
    k.stamp_flush(6, PROF, sW, 1)
    k.label(END)
    k("s_endpgm")
    return k


K2_LDS = 16384


def cmul(k, dr, di, xr, xi, c, sn, sign, t0, t1):
    k(f"v_mul_f32 {v(t0)}, {v(xr)}, {v(c)}")
    k(f"v_mul_f32 {v(t1)}, {v(xi)}, {v(c)}")
    if sign < 0:
        k(f"v_fmac_f32 {v(t0)}, {v(xi)}, {v(sn)}")
        k(f"v_fma_f32 {v(t1)}, -{v(xr)}, {v(sn)}, {v(t1)}")
    else:
        k(f"v_fma_f32 {v(t0)}, -{v(xi)}, {v(sn)}, {v(t0)}")
        k(f"v_fmac_f32 {v(t1)}, {v(xr)}, {v(sn)}")
    assert dr == t0 and di == t1


def gen_k2():
    k = Kern("k2_kernel", 0, 0)
    END = k.lab("end")
    sW, sKK = 20, 2
    k("s_cmp_ge_u32 s2, 224")
    k(f"s_cbranch_scc1 {END}")
    k.stamp()
    k("s_load_dwordx2 s[6:7], s[0:1], 72")
    k("v_lshrrev_b32 v2, 6, v0")
    k("v_and_b32 v1, 63, v0")
    k(f"v_readfirstlane_b32 s{sW}, v2")
    k("v_lshrrev_b32 v4, 4, v1")
    k("v_and_b32 v5, 7, v1")
    k("v_xor_b32 v5, v5, v4")
    k("v_lshrrev_b32 v6, 3, v1")
    k("v_lshlrev_b32 v6, 7, v6")
    k("v_lshl_add_u32 v2, v5, 4, v6")
    k("v_xor_b32 v3, 64, v2")
    k(f"s_lshl_b32 s21, s{sW}, 11")
    k(f"s_lshl_b32 s22, s{sKK}, 13")
    k("s_add_u32 s22, s22, s21")
    k("v_lshlrev_b32 v7, 4, v1")
    k("s_mov_b32 m0, s21")
    k("s_waitcnt lgkmcnt(0)")
    k.srd_off(8, 6, WSB + AT, 224 * 8192)
    k("buffer_load_dwordx4 v2, s[8:11], s22 offen lds")
    k("buffer_load_dwordx4 v3, s[8:11], s22 offen offset:1024 lds")
    k.srd_off(12, 6, WSB + WT, 224 * 8192)
    vWt = 8
    k(f"buffer_load_dwordx4 {v(vWt,4)}, v7, s[12:15], s22 offen")
    k(f"buffer_load_dwordx4 {v(vWt+4,4)}, v7, s[12:15], s22 offen offset:1024")
    k.stamp()
    k.srd_off(16, 6, WSB + BT, 448 * 4096)
    vC1, vS1, vN1 = 16, 24, 32
    vC2, vS2, vN2 = 40, 48, 56
    vTc, vTs = 64, 72
    vUc, vUs = 80, 88
    vD = 96
    vX = 128
    vY = 144
    vP = 160
    vT = 168
    k("v_and_b32 v5, 15, v1")
    k(f"s_lshl_b32 s23, s{sW}, 4")
    k("v_add_u32 v6, s23, v5")
    k("v_cvt_f32_u32 v2, v6")
    k("v_cvt_f32_u32 v3, v4")

    def packed_table(dc, ds_, step, base, mult):
        for e in range(8):
            if mult[e] == 0:
                k(f"v_mov_b32 {v(vT+e)}, {v(base)}")
            else:
                k(f"v_fmamk_f32 {v(vT+e)}, {v(step)}, {f2u(float(mult[e]))}, {v(base)}")
        for e in range(8):
            k(f"v_cos_f32 {v(vT+8+e)}, {v(vT+e)}")
        for e in range(8):
            k(f"v_sin_f32 {v(vT+e)}, {v(vT+e)}")
        for p in range(4):
            k(f"v_cvt_pk_bf16_f32 {v(dc+p)}, {v(vT+8+2*p)}, {v(vT+8+2*p+1)}")
        for p in range(4):
            k(f"v_cvt_pk_bf16_f32 {v(ds_+p)}, {v(vT+2*p)}, {v(vT+2*p+1)}")

    k(f"v_mul_f32 {v(vY)}, {f2u(1.0/64)}, v2")
    k(f"v_mul_f32 {v(vY+1)}, {f2u(8.0)}, v3")
    k(f"v_mul_f32 {v(vY+1)}, {v(vY+1)}, {v(vY)}")
    packed_table(vC1, vS1, vY, vY + 1, list(range(8)))
    k("s_mov_b32 s24, 0x80008000")
    k("v_and_b32 v6, 1, v1")
    k("v_mul_u32_u24 v6, 0x8000, v6")
    k("v_lshl_or_b32 v6, v6, 16, v6")
    for p in range(4):
        k(f"v_xor_b32 {v(vC1+4+p)}, v6, {v(vC1+p)}")
        k(f"v_xor_b32 {v(vS1+4+p)}, v6, {v(vS1+p)}")
    for p in range(8):
        k(f"v_xor_b32 {v(vN1+p)}, s24, {v(vS1+p)}")
    k("v_lshrrev_b32 v6, 1, v5")
    k("v_xor_b32 v6, v6, v4")
    k("v_lshlrev_b32 v6, 4, v6")
    k(f"v_lshl_add_u32 {v(vP)}, v5, 7, v6")
    k(f"v_xor_b32 {v(vP+1)}, 64, {v(vP)}")
    k(f"v_mul_f32 {v(vY)}, {f2u(1.0/2048)}, v2")
    k(f"v_mul_f32 {v(vY+1)}, 4.0, v3")
    k(f"v_mul_f32 {v(vY+1)}, {v(vY+1)}, {v(vY)}")
    m2 = [0, 1, 2, 3, 16, 17, 18, 19]
    k.stamp()
    k("s_waitcnt vmcnt(2)")
    k("s_barrier")
    k.stamp()
    for plane in range(2):
        for blk in range(2):
            for t in range(2):
                k(f"ds_read_b128 {v(vD+16*plane+8*blk+4*t,4)}, {v(vP+t)} offset:{plane*4096+blk*2048}")
    for e in range(8):
        if m2[e] == 0:
            k(f"v_mov_b32 {v(vTs+e)}, {v(vY+1)}")
        else:
            k(f"v_fmamk_f32 {v(vTs+e)}, {v(vY)}, {f2u(float(m2[e]))}, {v(vY+1)}")

    def dft_big(cr, ci, first_wait):
        for t in range(2):
            for blk in range(2):
                ar, ai = vD + 8 * blk + 4 * t, vD + 16 + 8 * blk + 4 * t
                xr, xi = vX + 4 * blk, vX + 8 + 4 * blk
                c0r = "0" if t == 0 else v(xr, 4)
                c0i = "0" if t == 0 else v(xi, 4)
                k(f"v_mfma_f32_16x16x32_bf16 {v(xr,4)}, {v(ar,4)}, {v(vC1+4*t,4)}, {c0r}")
                k(f"v_mfma_f32_16x16x32_bf16 {v(xi,4)}, {v(ai,4)}, {v(vC1+4*t,4)}, {c0i}")
                first_wait()
                k(f"v_mfma_f32_16x16x32_bf16 {v(xr,4)}, {v(ai,4)}, {v(cr+4*t,4)}, {v(xr,4)}")
                k(f"v_mfma_f32_16x16x32_bf16 {v(xi,4)}, {v(ar,4)}, {v(ci+4*t,4)}, {v(xi,4)}")
                first_wait()

    k("s_waitcnt lgkmcnt(0)")
    fill = []
    for e in range(8):
        fill.append(f"v_cos_f32 {v(vTc+e)}, {v(vTs+e)}")
    for e in range(8):
        fill.append(f"v_sin_f32 {v(vTs+e)}, {v(vTs+e)}")

    def filler():
        for _ in range(2):
            if fill:
                k(fill.pop(0))

    dft_big(vS1, vN1, filler)
    assert not fill
    k("v_cvt_f32_u32 v6, v5")
    k(f"v_mul_f32 {v(vY)}, {f2u(1.0/32)}, v6")
    k(f"v_mul_f32 {v(vY+1)}, 4.0, v3")
    k(f"v_mul_f32 {v(vY+1)}, {v(vY+1)}, {v(vY)}")
    packed_table(vC2, vS2, vY, vY + 1, m2)
    k("s_brev_b32 s25, 1")
    for p in range(4):
        k(f"v_xor_b32 {v(vC2+4+p)}, s25, {v(vC2+p)}")
        k(f"v_xor_b32 {v(vS2+4+p)}, s25, {v(vS2+p)}")
    for p in range(8):
        k(f"v_xor_b32 {v(vN2+p)}, s24, {v(vS2+p)}")

    def pack():
        for p in range(4):
            k(f"v_cvt_pk_bf16_f32 {v(vP+p)}, {v(vY+2*p)}, {v(vY+2*p+1)}")
            k(f"v_cvt_pk_bf16_f32 {v(vP+4+p)}, {v(vY+8+2*p)}, {v(vY+8+2*p+1)}")

    for e in range(8):
        cmul(k, vY + e, vY + 8 + e, vX + e, vX + 8 + e, vTc + e, vTs + e, -1, vY + e, vY + 8 + e)
    pack()
    for blk in range(2):
        xr, xi = vX + 4 * blk, vX + 8 + 4 * blk
        k(f"v_mfma_f32_16x16x32_bf16 {v(xr,4)}, {v(vC2+4*blk,4)}, {v(vP,4)}, 0")
        k(f"v_mfma_f32_16x16x32_bf16 {v(xi,4)}, {v(vC2+4*blk,4)}, {v(vP+4,4)}, 0")
        k(f"v_mfma_f32_16x16x32_bf16 {v(xr,4)}, {v(vS2+4*blk,4)}, {v(vP+4,4)}, {v(xr,4)}")
        k(f"v_mfma_f32_16x16x32_bf16 {v(xi,4)}, {v(vN2+4*blk,4)}, {v(vP,4)}, {v(xi,4)}")
    k(f"v_mul_f32 {v(vT)}, {f2u(1.0/2048)}, v6")
    k(f"v_add_f32 {v(vT+1)}, {f2u(16.0/2048)}, {v(vT)}")
    k("v_lshl_add_u32 v2, v4, 2, s23")
    k("v_cvt_f32_u32 v2, v2")
    for r in range(4):
        for blk in range(2):
            k(f"v_mul_f32 {v(vUs+4*blk+r)}, v2, {v(vT+blk)}")
        if r < 3:
            k("v_add_f32 v2, 1.0, v2")
    k.stamp()
    k("s_waitcnt vmcnt(0)")
    for e in range(8):
        k(f"v_lshlrev_b32 {v(vTc+e)}, 16, {v(vWt+e)}")
        k(f"v_and_b32 {v(vTs+e)}, 0xffff0000, {v(vWt+e)}")
    for e in range(8):
        cmul(k, vY + e, vY + 8 + e, vX + e, vX + 8 + e, vTc + e, vTs + e, +1, vY + e, vY + 8 + e)
    pack()
    for blk in range(2):
        xr, xi = vX + 4 * blk, vX + 8 + 4 * blk
        k(f"v_mfma_f32_16x16x32_bf16 {v(xr,4)}, {v(vP,4)}, {v(vC2+4*blk,4)}, 0")
        k(f"v_mfma_f32_16x16x32_bf16 {v(xi,4)}, {v(vP+4,4)}, {v(vC2+4*blk,4)}, 0")
        k(f"v_mfma_f32_16x16x32_bf16 {v(xr,4)}, {v(vP+4,4)}, {v(vN2+4*blk,4)}, {v(xr,4)}")
        k(f"v_mfma_f32_16x16x32_bf16 {v(xi,4)}, {v(vP,4)}, {v(vS2+4*blk,4)}, {v(xi,4)}")
    for e in range(8):
        k(f"v_cos_f32 {v(vUc+e)}, {v(vUs+e)}")
    for e in range(8):
        k(f"v_sin_f32 {v(vUs+e)}, {v(vUs+e)}")
    sc = 2.0 / (S * D)
    k(f"s_cmp_eq_u32 s{sKK}, 223")
    k(f"s_mov_b32 s26, {f2u(sc)}")
    k(f"s_cselect_b32 s26, {f2u(sc/2)}, s26")
    for e in range(8):
        k(f"v_mul_f32 {v(vUc+e)}, s26, {v(vUc+e)}")
        k(f"v_mul_f32 {v(vUs+e)}, s26, {v(vUs+e)}")
    k("v_lshrrev_b32 v2, 1, v4")
    k("v_lshl_add_u32 v2, v2, 4, v5")
    k("v_lshlrev_b32 v2, 4, v2")
    k("v_and_b32 v3, 1, v4")
    k("v_lshl_add_u32 v2, v3, 3, v2")
    k(f"s_lshl_b32 s27, s{sW}, 9")
    k("v_add_u32 v2, s27, v2")
    for e in range(8):
        cmul(k, vY + e, vY + 8 + e, vX + e, vX + 8 + e, vUc + e, vUs + e, +1, vY + e, vY + 8 + e)
    pack()
    for plane in range(2):
        for blk in range(2):
            k(f"ds_write_b64 v2, {v(vP+4*plane+2*blk,2)} offset:{8192+plane*4096+blk*2048}")
    k("s_waitcnt lgkmcnt(0)")
    k.stamp()
    k("s_barrier")
    for t in range(2):
        for blk in range(2):
            for plane in range(2):
                k(f"ds_read_b128 {v(vD+16*plane+8*blk+4*t,4)}, v7 offset:{8192+plane*4096+blk*2048+t*1024}")
    k(f"s_lshl_b32 s27, s{sW}, 10")
    k(f"s_lshl_b32 s22, s{sKK}, 13")
    k("s_add_u32 s22, s22, s27")
    k("s_add_u32 s23, s22, 4096")
    k("s_waitcnt lgkmcnt(0)")
    dft_big(vN1, vS1, lambda: None)
    for p in range(4):
        k(f"v_cvt_pk_bf16_f32 {v(vP+p)}, {v(vX+2*p)}, {v(vX+2*p+1)}")
    for p in range(4):
        k(f"v_cvt_pk_bf16_f32 {v(vP+4+p)}, {v(vX+8+2*p)}, {v(vX+8+2*p+1)}")
    k(f"buffer_store_dwordx4 {v(vP,4)}, v7, s[16:19], s22 offen{SC}")
    k(f"buffer_store_dwordx4 {v(vP+4,4)}, v7, s[16:19], s23 offen{SC}")
    k.stamp()
    if k.prof:
        k("s_waitcnt vmcnt(0)")
    k.stamp_flush(6, PROF + (1 << 20), sW)
    k.label(END)
    k("s_endpgm")
    return k


HEADER = """; Fused preLN + GFNet spectral filter + preLN bilinear GLU, generated by gen/gen.py
"""


def build(kernels):
    out = [HEADER.rstrip()]
    for kern, grid, block, lds in kernels:
        out.append(f"; @launch kernel={kern.name} grid=({grid},1,1) block=({block},1,1) lds={lds}")
    out.append('.amdgcn_target "amdgcn-amd-amdhsa--gfx950"')
    out.append(".text")
    descs = []
    seen = set()
    for kern, *_ in kernels:
        if kern.name in seen:
            continue
        seen.add(kern.name)
        body, desc = kern.emit()
        print(kern.name, kern.stats, file=sys.stderr)
        out.append(body)
        descs.append(desc)
    out.append('.section .rodata,"a"')
    for d in descs:
        out.append(".p2align 6")
        out.append(d)
    return "\n".join(out) + "\n"


def kernel_list():
    from gen3 import gen_k3, K3_LDS
    return [(gen_k1(), K1_WGS, 256, K1_LDS), (gen_k2(), 224, 256, K2_LDS), (gen_k3(), 224, 256, K3_LDS)]


if __name__ == "__main__":
    if "--prof" in sys.argv:
        Kern.prof = True
        sys.argv.remove("--prof")
    path = sys.argv[1] if len(sys.argv) > 1 else "sequential_preLN__spectral_gfnet__glu_gated_bilinear__prompt.s"
    open(path, "w").write(build(kernel_list()))
```

```python
import sys
from gen import *
import gen3
def with_stamp(k):
    L = k.lab("nost")
    pre = ["s_cmp_lg_u32 s2, 0", f"s_cbranch_scc1 {L}", "s_memrealtime s[8:9]", "s_load_dwordx2 s[6:7], s[0:1], 72", "s_waitcnt lgkmcnt(0)",
           f"s_add_u32 s12, s6, {PROF}", "s_addc_u32 s13, s7, 0", "s_and_b32 s13, s13, 0xffff", "s_mov_b32 s14, 64", "s_mov_b32 s15, 0x20000",
           "v_mov_b32 v1, s8", "buffer_store_dword v1, off, s[12:15], 0 sc1", L + ":"]
    k.lines = pre + k.lines
    return k
def tail(mult):
    k = Kern("t_kernel", 0, 0)
    E, Lp = k.lab("e"), k.lab("lp")
    k("s_cmp_lg_u32 s2, 0"); k(f"s_cbranch_scc1 {E}")
    k("s_memrealtime s[8:9]"); k("s_load_dwordx2 s[6:7], s[0:1], 72"); k("s_waitcnt lgkmcnt(0)")
    k.srd_off(12, 6, PROF, 64)
    k("buffer_load_dword v1, off, s[12:15], 0 sc1"); k("s_waitcnt vmcnt(0)"); k("v_readfirstlane_b32 s10, v1")
    k("s_sub_u32 s10, s8, s10"); k("s_min_u32 s10, s10, 6000"); k(f"s_mul_i32 s10, s10, {mult}")
    k.label(Lp)
    k("s_memrealtime s[16:17]"); k("s_waitcnt lgkmcnt(0)"); k("s_sub_u32 s11, s16, s8"); k("s_cmp_lt_u32 s11, s10"); k(f"s_cbranch_scc1 {Lp}")
    k.label(E); k("s_endpgm")
    return k
def mk(which, mult, name):
    ks = kernel_list()
    ks[which] = (with_stamp(ks[which][0]),) + ks[which][1:]
    ks.append((tail(mult), 1, 64, 0))
    open(name, "w").write(build(ks))
mk(0, 0, "d_base.s")
for i in range(len(kernel_list())):
    mk(i, 10, f"d_k{i+1}.s")
```

```python
import re

TRANS = ("v_exp_f32", "v_log_f32", "v_rcp_f32", "v_rsq_f32", "v_sqrt_f32", "v_sin_f32", "v_cos_f32")
RMW = ("v_fmac_f32", "v_dot2c_f32_bf16", "v_pk_fmac", "v_writelane_b32")
SWAPS = ("v_swap_b32", "v_permlane16_swap_b32", "v_permlane32_swap_b32")


def v(i, n=1):
    return f"v{i}" if n == 1 else f"v[{i}:{i+n-1}]"


def a(i, n=1):
    return f"a{i}" if n == 1 else f"a[{i}:{i+n-1}]"


def s(i, n=1):
    return f"s{i}" if n == 1 else f"s[{i}:{i+n-1}]"


_REG = re.compile(r"^-?\|?(?:abs\()?([vas])(?:(\d+)|\[(\d+):(\d+)\])\)?\|?$")


def regs_of(tok):
    tok = tok.strip()
    if tok in ("vcc", "exec"):
        return {tok + "_lo", tok + "_hi"}
    if tok in ("vcc_lo", "vcc_hi", "exec_lo", "exec_hi", "m0"):
        return {tok}
    m = _REG.match(tok)
    if not m:
        return set()
    k = m.group(1)
    if m.group(2) is not None:
        return {k + m.group(2)}
    return {k + str(i) for i in range(int(m.group(3)), int(m.group(4)) + 1)}


def is_vec(r):
    return r[0] == "v" and r[1:].isdigit() or r[0] == "a" and r[1:].isdigit()


class Ins:
    def __init__(self, text):
        self.text = text
        t = text.split(";")[0].strip()
        self.label = None
        self.kind = "other"
        self.w = set()
        self.r = set()
        self.srcc = set()
        self.srcab = set()
        self.passes = 0
        self.states = 1
        self.target = None
        self.dpp = False
        self.lds_dma = False
        self.store_data = set()
        self.op = ""
        if not t or t.startswith("."):
            self.kind = "dir"
            self.states = 0
            return
        if t.endswith(":"):
            self.label = t[:-1]
            self.kind = "label"
            self.states = 0
            return
        parts = t.split(None, 1)
        op = parts[0]
        op = re.sub(r"_(e32|e64|dpp|sdwa)$", "", op)
        self.op = op
        rest = parts[1] if len(parts) > 1 else ""
        ops, depth, cur = [], 0, ""
        for ch in rest:
            if ch in "[(":
                depth += 1
            if ch in "])":
                depth -= 1
            if ch == "," and depth == 0:
                ops.append(cur.strip())
                cur = ""
            else:
                cur += ch
        if cur.strip():
            ops.append(cur.strip())
        mods = ""
        if ops:
            last = ops[-1].split(None, 1)
            ops[-1] = last[0]
            mods = last[1] if len(last) > 1 else ""
        self.mods = mods
        R = [regs_of(o) for o in ops]
        if op == "s_nop":
            self.kind = "nop"
            self.states = int(ops[0], 0) + 1
        elif op == "s_waitcnt":
            self.kind = "wait"
            self.vm = self.lgkm = None
            m = re.search(r"vmcnt\((\d+)\)", rest)
            if m:
                self.vm = int(m.group(1))
            m = re.search(r"lgkmcnt\((\d+)\)", rest)
            if m:
                self.lgkm = int(m.group(1))
        elif op.startswith("s_cbranch") or op == "s_branch":
            self.kind = "branch"
            self.target = ops[0]
        elif op in ("s_endpgm",):
            self.kind = "end"
        elif op.startswith("s_load") or op in ("s_memtime", "s_memrealtime"):
            self.kind = "smem"
            self.w = R[0]
            for x in R[1:]:
                self.r |= x
        elif op.startswith("s_"):
            self.kind = "salu"
            if op.startswith("s_cmp") or op.startswith("s_bitcmp") or op in ("s_barrier", "s_sleep", "s_setprio"):
                for x in R:
                    self.r |= x
            else:
                if R:
                    self.w = R[0]
                for x in R[1:]:
                    self.r |= x
                if "saveexec" in op:
                    self.w |= regs_of("exec")
                if op.startswith("s_addk") or op.startswith("s_mulk"):
                    self.r |= R[0]
        elif op.startswith("v_mfma"):
            self.kind = "mfma"
            self.w = R[0]
            self.srcab = R[1] | R[2]
            self.srcc = R[3]
            self.r = self.srcab | self.srcc
            self.passes = 8 if "32x32x16" in op else 4 if "16x16x32" in op or "16x16x16" in op else None
            assert self.passes
        elif op.startswith("v_"):
            self.kind = "valu"
            self.dpp = any(k in mods for k in ("quad_perm", "row_", "wave_"))
            if op.startswith("v_cmp"):
                self.w = R[0]
                for x in R[1:]:
                    self.r |= x
            elif op in SWAPS:
                self.w = R[0] | R[1]
                self.r = R[0] | R[1]
            else:
                self.w = R[0]
                for x in R[1:]:
                    self.r |= x
                if op in RMW or self.dpp:
                    self.r |= R[0]
                if "_co_" in op:
                    self.w |= R[1]
        elif op.startswith("ds_"):
            self.kind = "ds"
            if op.startswith("ds_read") or "permute" in op or "swizzle" in op:
                self.w = R[0]
                for x in R[1:]:
                    self.r |= x
            else:
                for x in R:
                    self.r |= x
        elif op.startswith("buffer_") or op.startswith("global_"):
            self.kind = "vmem"
            self.lds_dma = bool(re.search(r"\blds\b", mods))
            if op in ("buffer_inv", "buffer_wbl2"):
                pass
            elif "load" in op and not self.lds_dma:
                self.w = R[0]
                for x in R[1:]:
                    self.r |= x
            else:
                for x in R:
                    self.r |= x
                if self.lds_dma:
                    self.r.add("m0")
                if "store" in op and ("x3" in op or "x4" in op):
                    self.store_data = R[0] if op.startswith("buffer") else R[1]
                if "atomic" in op and "sc0" in mods:
                    self.w = R[0]
        else:
            raise ValueError("unknown instruction: " + text)


def need(p, c):
    n = 0
    cv = c.kind == "valu"
    if p.kind == "valu":
        pw_s = {x for x in p.w if not is_vec(x)}
        pw_v = p.w - pw_s
        if pw_s & c.r:
            if c.kind == "vmem":
                n = max(n, 5)
            if cv:
                n = max(n, 4 if c.op in ("v_readlane_b32", "v_writelane_b32") else 2)
        if pw_v & c.r:
            if cv and c.dpp:
                n = max(n, 2)
            if c.op in ("v_readlane_b32", "v_readfirstlane_b32"):
                n = max(n, 1)
            if c.op.startswith("v_permlane"):
                n = max(n, 2)
            if c.kind == "mfma":
                n = max(n, 2)
            if p.op in TRANS and cv and c.op not in TRANS:
                n = max(n, 1)
            if p.op in TRANS and c.kind in ("vmem", "ds"):
                n = max(n, 1)
        if p.op.startswith("v_dot") and (pw_v & (c.r | c.w)) and c.kind in ("valu", "vmem", "ds", "mfma"):
            same_chain = c.op == p.op and (pw_v & c.w) and p.op in RMW
            if not same_chain:
                n = max(n, 3)
    if p.kind == "salu" and "m0" in p.w and c.lds_dma:
        n = max(n, 1)
    if p.kind == "vmem" and p.store_data & c.w:
        n = max(n, 2 if cv else 1)
    if p.kind == "mfma":
        big = 12 if p.passes == 8 else 8
        if c.kind == "mfma":
            if p.w & c.srcab:
                n = max(n, big)
            if p.w & c.srcc and not (p.w == c.srcc and p.passes == c.passes):
                n = max(n, big - 2)
        elif c.kind in ("valu", "vmem", "ds"):
            if p.w & (c.r | c.w):
                n = max(n, big)
            if cv and p.srcc & c.w:
                n = max(n, 7 if p.passes == 8 else 3)
    return n


WINDOW = 14


def fix_hazards(lines):
    ins = [Ins(t) for t in lines]
    for _ in range(6):
        changed = False
        snap = getattr(fix_hazards, "_snap", {})
        out = []
        state = []
        newsnap = {}
        for c in ins:
            if c.kind == "label":
                for st in snap.get(c.label, []) + newsnap.get(c.label, []):
                    state = state + [[p, d] for p, d in st]
                out.append(c)
                continue
            if c.kind == "dir":
                out.append(c)
                continue
            req = 0
            for p, d in state:
                req = max(req, need(p, c) - d)
            if req > 0:
                changed = True
                while req > 0:
                    k = min(req, 16)
                    nop = Ins(f"s_nop {k-1}")
                    out.append(nop)
                    for e in state:
                        e[1] += k
                    req -= k
            out.append(c)
            for e in state:
                e[1] += c.states
            state = [e for e in state if e[1] < WINDOW]
            if c.kind in ("valu", "mfma", "vmem", "salu"):
                state.append([c, 0])
            if c.kind == "branch":
                newsnap.setdefault(c.target, []).append([(p, d) for p, d in state])
                if c.op == "s_branch":
                    state = []
            if c.kind == "end":
                state = []
        ins = out
        fix_hazards._snap = newsnap
        if not changed and _ > 0:
            break
    fix_hazards._snap = {}
    return ins


def check_waits(ins, name=""):
    vm, lg = [], []
    errs = []
    for n, c in enumerate(ins):
        if c.kind == "wait":
            if c.vm is not None:
                while len(vm) > c.vm:
                    vm.pop(0)
            if c.lgkm is not None:
                if any(k == "smem" for k, _ in lg):
                    if c.lgkm == 0:
                        lg = []
                else:
                    while len(lg) > c.lgkm:
                        lg.pop(0)
            continue
        if c.kind == "end":
            vm, lg = [], []
            continue
        if "; alt" in c.text:
            continue
        touched = c.r | c.w
        for q in (vm, lg):
            for k, w in q:
                if w & touched:
                    errs.append(f"{name}: '{c.text.strip()}' touches {sorted(w & touched)[:4]} with a load pending")
        if c.kind == "vmem" and c.op not in ("buffer_inv",):
            vm.append(("vmem", set(c.w)))
            if len(vm) > 63:
                errs.append(f"{name}: more than 63 vm ops outstanding at '{c.text.strip()}'")
        if c.kind == "ds":
            lg.append(("ds", set(c.w)))
        if c.kind == "smem":
            lg.append(("smem", set(c.w)))
    return errs


class Kern:
    def __init__(self, name, vgpr, agpr, sgpr=96):
        self.name = name
        self.vgpr = vgpr
        self.agpr = agpr
        self.sgpr = sgpr
        self.lines = []
        self._lab = 0

    def __call__(self, text):
        for t in text.split("\n"):
            t = t.strip()
            if t:
                self.lines.append(t)

    def lab(self, stem):
        self._lab += 1
        return f"L_{self.name}_{stem}_{self._lab}"

    def label(self, name):
        self.lines.append(name + ":")

    def srd(self, d, base, nbytes):
        self(f"s_mov_b32 s{d}, s{base}")
        self(f"s_and_b32 s{d+1}, s{base+1}, 0xffff")
        self(f"s_mov_b32 s{d+2}, {nbytes}")
        self(f"s_mov_b32 s{d+3}, 0x20000")

    def srd_off(self, d, base, off, nbytes):
        self(f"s_add_u32 s{d}, s{base}, {off}")
        self(f"s_addc_u32 s{d+1}, s{base+1}, 0")
        self(f"s_and_b32 s{d+1}, s{d+1}, 0xffff")
        self(f"s_mov_b32 s{d+2}, {nbytes}")
        self(f"s_mov_b32 s{d+3}, 0x20000")

    prof = False
    clock = __import__("os").environ.get("CLOCK", "s_memrealtime")

    def stamp(self, lvl=0):
        sel = __import__("os").environ.get("STAMPSET")
        self._seq = getattr(self, "_seq", 0) + (lvl == 0)
        if not self.prof or (lvl > 0 and not sel):
            return
        if sel and lvl == 0 and self.name.startswith("k3") and self._seq not in eval(sel):
            return
        n = getattr(self, "_nst", 0)
        self._nst = n + 1
        assert n < 16
        self(f"{self.clock} s[{60+2*n}:{61+2*n}]")
        if not __import__("os").environ.get("NOCHK"):
            self("s_waitcnt lgkmcnt(0)")

    def stamp_flush(self, wsreg, off, wave_sreg, first=0):
        if not self.prof:
            return
        self.stamp(-1)
        self("s_waitcnt lgkmcnt(0)")
        n = self._nst
        self.srd_off(92, wsreg, off, 1 << 20)
        self(f"s_lshl2_add_u32 s96, s2, s{wave_sreg}")
        self("s_lshl_b32 s96, s96, 7")
        for i in range(n):
            self(f"v_mov_b32 v0, s{60+2*i}")
            self(f"buffer_store_dword v0, off, s[92:95], s96 offset:{4*i}")
        self._nst = first

    def emit(self):
        ins = fix_hazards(self.lines)
        errs = check_waits(ins, self.name)
        if errs and not __import__("os").environ.get("NOCHK"):
            raise RuntimeError("\n".join(errs[:20]))
        mv = ma = ms = -1
        for c in ins:
            for r in c.r | c.w:
                if is_vec(r):
                    if r[0] == "v":
                        mv = max(mv, int(r[1:]))
                    else:
                        ma = max(ma, int(r[1:]))
                elif r[0] == "s" and r[1:].isdigit():
                    ms = max(ms, int(r[1:]))
        acc = max(4, (mv + 1 + 3) // 4 * 4)
        nfv = acc + ma + 1 if ma >= 0 else mv + 1
        assert mv < 256 and ma < 256 and ms < 102
        body = [f".globl {self.name}", ".p2align 8", f".type {self.name},@function", f"{self.name}:"]
        for c in ins:
            body.append(c.text if c.kind == "label" else "    " + c.text)
        desc = [
            f".amdhsa_kernel {self.name}",
            f"  .amdhsa_next_free_vgpr {nfv}",
            f"  .amdhsa_next_free_sgpr {max(ms + 1, 16)}",
            f"  .amdhsa_accum_offset {acc}",
            "  .amdhsa_group_segment_fixed_size 0",
            "  .amdhsa_kernarg_size 80",
            "  .amdhsa_user_sgpr_count 2",
            "  .amdhsa_user_sgpr_kernarg_segment_ptr 1",
            "  .amdhsa_system_sgpr_workgroup_id_x 1",
            "  .amdhsa_float_denorm_mode_32 3",
            ".end_amdhsa_kernel",
        ]
        self.stats = dict(vgpr=mv + 1, agpr=ma + 1, sgpr=ms + 1, nins=len(ins),
                          nops=sum(1 for c in ins if c.kind == "nop"))
        return "\n".join(body), "\n".join(desc)
```

```python
import os
import sys
from asmlib import Kern, v, a, s
from gen import *

XT = 114688
R2 = 122880
FF = 65536
K3_LDS = 123904
SPIN_MAX = 1 << 18
E = lambda n, d: int(os.environ.get(n, d))
NW = [int(x) for x in os.environ.get("NW", "8,0,0,8,0").split(",")]
KS = E("KS", 8)
EPI_A = E("EPI_A", 2)
DRAIN_A = E("DRAIN_A", 22)
POLL_A = E("POLL_A", 31)
CHECK_A = E("CHECK_A", 37)
DRAIN_B = E("DRAIN_B", 10)
POLL_B = E("POLL_B", 17)
CHECK_B = E("CHECK_B", 22)
NDMA0 = E("NDMA0", 7)
ROTB = E("ROTB", 1)
ROTW = E("ROTW", 0)
ROTD = E("ROTD", 0)
SPARE = E("SPARE", 1)
TOUCH = E("TOUCH", 1)
SP_WS = eval(os.environ.get("SP_WS", "(4,5,6)"))
RING = E("RING", 12)
LD = os.environ.get("LD", "")
P4ST = eval(os.environ.get("P4ST", "()"))
P5ST = eval(os.environ.get("P5ST", "()"))
K3_WGS = 256 if SPARE else 224
SSP = 0x1502000


class VM:
    def __init__(self, k):
        self.k, self.n = k, 0

    def op(self, text):
        self.k(text)
        self.n += 1
        return self.n - 1

    def wait(self, idx, extra=""):
        self.k(f"s_waitcnt vmcnt({self.n - idx - 1}){extra}")


def gen_k3():
    k = Kern("k3_kernel", 0, 0)
    vm = VM(k)
    END = k.lab("end")
    sW, sRB, sCT, sHALF, sRT, sFB = 20, 21, 22, 23, 24, 25
    sFL, sFI, sXC = 33, 39, 40
    vL4, vOne, vLP = 30, 2, 0

    mode = [""]

    def store2(text):
        return vm.op(text + mode[0])

    def arrive(off):
        vm.op(f"buffer_store_dword {v(vOne)}, off, s[8:11], s{sFI} offset:{off}{mode[0]}")

    def poll_issue(off):
        return vm.op(f"buffer_load_dword v31, {v(vLP)}, s[8:11], s{sFL} offen offset:{off} sc1")

    outline = []

    def poll(off, mark):
        loop, done = k.lab("poll"), k.lab("done")
        vm.wait(mark)
        k("v_cmp_eq_u32 vcc, 0, v31")
        k(f"s_mov_b32 s50, {SPIN_MAX}")
        k(f"s_cbranch_vccnz {loop}")
        k.label(done)
        outline.append(f"""{loop}:
        buffer_load_dword v31, {v(vLP)}, s[8:11], s{sFL} offen offset:{off} sc1
        s_sub_u32 s50, s50, 1
        s_waitcnt vmcnt(0)
        s_cmp_eq_u32 s50, 0
        s_cbranch_scc1 {done}
        v_cmp_eq_u32 vcc, 0, v31
        s_nop 0
        s_cbranch_vccnz {loop}
        s_branch {done}""")

    PFL = k.lab("pf")
    k("s_cmp_ge_u32 s2, 224")
    k(f"s_cbranch_scc1 {PFL if SPARE else END}")
    k.stamp()
    k("s_load_dwordx2 s[6:7], s[0:1], 72")
    k("s_load_dwordx2 s[4:5], s[0:1], 0")
    k("s_load_dwordx2 s[44:45], s[0:1], 56")
    k("v_lshrrev_b32 v2, 6, v0")
    k("v_and_b32 v1, 63, v0")
    k(f"v_readfirstlane_b32 s{sW}, v2")
    k("s_lshr_b32 s26, s2, 3")
    div7(k, 27, 26)
    if os.environ.get("MAP", "A") == "A":
        k("s_and_b32 s28, s2, 7")
        k(f"s_lshl2_add_u32 s{sRT}, s28, s27")
        k(f"s_and_b32 s{sHALF}, s27, 1")
        k(f"s_lshr_b32 s{sRB}, s{sRT}, 1")
    else:
        k("s_bfe_u32 s28, s2, 0x20001")
        k(f"s_lshl2_add_u32 s{sRB}, s28, s27")
        k(f"s_and_b32 s{sHALF}, s2, 1")
        k(f"s_lshl1_add_u32 s{sRT}, s{sRB}, s{sHALF}")
    k("s_mul_i32 s28, s27, 7")
    k(f"s_sub_u32 s{sCT}, s26, s28")
    vL16, vG, vC = 3, 4, 5
    k(f"v_lshrrev_b32 {v(vG)}, 4, v1")
    k(f"v_and_b32 v6, 1, {v(vG)}")
    k(f"s_and_b32 s29, s{sW}, 1")
    k("s_lshl_b32 s29, s29, 2")
    k("v_lshl_or_b32 v6, v6, 1, s29")
    k("v_and_b32 v7, 7, v1")
    k("v_xor_b32 v6, v6, v7")
    k("v_lshrrev_b32 v8, 3, v1")
    k("v_lshlrev_b32 v9, 12, v8")
    k("v_lshl_add_u32 v6, v6, 4, v9")
    k(f"s_lshl_b32 s28, s{sW}, 15")
    k(f"s_lshl_b32 s27, s{sRT}, 7")
    k("s_add_u32 s26, s28, s27")
    k(f"s_add_u32 s26, s26, {BT}")
    k("s_sub_u32 s48, s27, s28")
    k(f"s_add_u32 s48, s48, {BT + 438*4096}")
    k(f"s_lshl_b32 s27, s{sW}, 10")
    k(f"s_bitcmp1_b32 s{sCT}, 0") if ROTB else k("s_cmp_lg_u32 0, 0")
    k("s_cselect_b32 s49, s26, s48")
    k("s_cselect_b32 s26, s48, s26")
    k("s_cselect_b32 s48, 0xfffe0000, 0x20000".replace("0xfffe0000, 0x20000", "s48, s48")) if False else None
    k("s_cselect_b32 s51, 0x6000, 0")
    k("s_cselect_b32 s52, 28672, 0")
    k("s_mov_b32 s48, 0x20000")
    k("s_cselect_b32 s48, 0xfffe0000, s48")
    k("v_xor_b32 v6, s51, v6")
    k("s_add_u32 m0, s27, s52")
    k("s_waitcnt lgkmcnt(0)")
    k.srd_off(8, 6, WSB, WS_BYTES)
    saved, k.lines = k.lines, []
    k(f"v_and_b32 {v(vC)}, 15, v1")
    vGm = 32
    vB, vST, vE, vT = 14, 15, 15, 20
    k(f"s_lshl_b32 s46, s{sCT}, 6")
    k(f"s_lshl_b32 s47, s{sW}, 4")
    k("s_add_u32 s46, s46, s47")
    k(f"v_add_u32 v27, s46, {v(vC)}")
    k("v_cvt_f32_u32 v27, v27")
    for p in range(1, 4):
        k(f"v_mul_f32 {v(vE+p)}, {f2u(p/448.0)}, v27")
    k(f"v_mul_f32 {v(vST)}, {f2u(16.0/448)}, v27")
    k(f"v_fract_f32 {v(vST)}, {v(vST)}")
    k(f"v_lshl_add_u32 v19, {v(vG)}, 2, 1")
    k("v_cvt_f32_u32 v19, v19")
    k(f"v_mul_f32 {v(vB)}, v19, {v(vE+1)}")
    k(f"v_fract_f32 {v(vB)}, {v(vB)}")
    for t in range(7):
        k(f"v_cos_f32 {v(vT+4)}, {v(vB)}")
        k(f"v_sin_f32 {v(vT)}, {v(vB)}")
        for p in range(1, 4):
            k(f"v_add_f32 {v(vT+p)}, {v(vB)}, {v(vE+p)}")
        if t < 6:
            k(f"v_add_f32 {v(vB)}, {v(vB)}, {v(vST)}")
            k(f"v_fract_f32 {v(vB)}, {v(vB)}")
        for p in range(1, 4):
            k(f"v_cos_f32 {v(vT+4+p)}, {v(vT+p)}")
            k(f"v_sin_f32 {v(vT+p)}, {v(vT+p)}")
        for p in range(4):
            k(f"v_cvt_pk_bf16_f32 {v(vGm+4*t+p)}, {v(vT+4+p)}, -{v(vT+p)}")
    gen_lines, k.lines = k.lines, []
    def nyq(first):
        k(f"s_cmp_eq_u32 s{sW}, 3")
        k(f"s_cselect_b32 s28, {224*4096 >> 6}, 0")
        k("s_cmp_lg_u32 s51, 0" if first else "s_cmp_eq_u32 s51, 0")
        k("s_cselect_b32 s28, s28, 0")
        k("v_add_u32 v9, 16, v1")
        k("v_and_b32 v9, 64, v9")
        k("v_mad_u32_u24 v9, v9, s28, v6")

    for hf in range(2):
        for t in range(7):
            if t == 6:
                nyq(hf == 0)
            vm.op(f"buffer_load_dwordx4 v{9 if t == 6 else 6}, s[8:11], s{26 if hf == 0 else 49} offen lds")
            if t < 6:
                k("s_add_u32 m0, m0, 4096")
                k("s_add_u32 s26, s26, s48" if hf == 0 else "s_sub_u32 s49, s49, s48")
        if hf == 0:
            k("s_sub_u32 s52, 28672, s52")
            k("s_add_u32 m0, s27, s52")
            k("v_xor_b32 v6, 0x6000, v6")
    vXO = 10
    k.srd(12, 4, XB)
    k("v_lshrrev_b32 v9, 5, v1")
    k("v_and_b32 v8, 3, v8")
    k("v_lshl_add_u32 v8, v9, 4, v8")
    k("v_mul_u32_u24 v8, 0x380, v8")
    k(f"v_xor_b32 v7, v7, {v(vG)}")
    k("v_xor_b32 v7, s29, v7")
    k(f"v_lshl_add_u32 {v(vXO)}, v7, 4, v8")
    sSB, sXO = 29, 30
    k(f"s_lshr_b32 s26, s{sRT}, 3")
    k("s_lshl_b32 s26, s26, 9")
    k(f"s_lshl_b32 s28, s{sHALF}, 8")
    k("s_add_u32 s26, s26, s28")
    k(f"s_and_b32 s28, s{sRB}, 3")
    k(f"s_lshl2_add_u32 s{sSB}, s28, s26")
    k(f"s_lshl_b32 s26, s{sW}, 5")
    k(f"s_add_u32 s26, s26, s{sSB}")
    k("s_mul_i32 s26, s26, 896")
    k(f"s_lshl_b32 s28, s{sCT}, 7")
    k(f"s_add_u32 s{sXO}, s26, s28")
    k(f"s_add_u32 s{sXO+1}, s{sXO}, {128*896}")
    k(f"s_add_u32 m0, s27, {XT}")
    vm.op(f"buffer_load_dwordx4 {v(vXO)}, s[12:15], s{sXO} offen lds")
    k(f"s_add_u32 m0, s27, {XT+4096}")
    vm.op(f"buffer_load_dwordx4 {v(vXO)}, s[12:15], s{sXO+1} offen lds")
    vM = 12
    k("v_bfe_u32 v7, v1, 3, 2")
    k("v_bfe_u32 v8, v1, 2, 1")
    k("v_lshlrev_b32 v8, 4, v8")
    k("v_lshl_add_u32 v7, v7, 5, v8")
    k("v_and_b32 v8, 3, v1")
    k("v_add_lshl_u32 v7, v7, v8, 2")
    k(f"s_lshl_b32 s26, s{sSB}, 2")
    k(f"s_add_u32 s26, s26, {M1}")
    vm.op(f"buffer_load_dword {v(vM)}, v7, s[8:11], s26 offen")
    p3_loads = vm.op(f"buffer_load_dword {v(vM+1)}, v7, s[8:11], s26 offen offset:512")
    k(f"s_lshl_b32 s{sFL}, s{sRB}, 10")
    k(f"s_add_u32 s{sFL}, s{sFL}, {FL}")
    k(f"s_getreg_b32 s{sXC}, hwreg(HW_REG_XCC_ID, 0, 4)")
    NOC = k.lab("noc")
    k(f"s_cmp_lg_u32 s{sW}, 0")
    k(f"s_cbranch_scc1 {NOC}")
    k(f"s_lshl_b32 s26, s{sXC}, 2")
    k("s_lshl_b32 s26, 1, s26")
    k(f"s_lshr_b32 s28, s{sXC}, 3")
    k(f"s_lshl2_add_u32 s28, s28, s{sFL}")
    k("s_mov_b64 exec, 1")
    k("v_mov_b32 v31, s26")
    k("buffer_atomic_add v31, off, s[8:11], s28 offset:768 sc1")
    k("s_mov_b64 exec, -1")
    k.label(NOC)
    k.stamp()
    k(f"v_lshlrev_b32 {v(vL16)}, 4, v1")
    k(f"v_lshlrev_b32 {v(vL4)}, 2, v1")
    k(f"v_mov_b32 {v(vOne)}, 1")
    k(f"s_mul_i32 s28, s{sHALF}, 7")
    k(f"s_add_u32 s28, s28, s{sCT}")
    k(f"s_lshl2_add_u32 s{sFB}, s28, s{sW}")
    k(f"s_lshl2_add_u32 s{sFI}, s{sFB}, s{sFL}")
    k(f"v_min_u32 {v(vLP)}, 220, {v(vL4)}")
    sWS = 32
    k(f"s_mul_i32 s{sWS}, s{sW if os.environ.get('FAKEW') else sFB}, 57344")
    k(f"s_add_u32 s{sWS}, s{sWS}, {WS}")
    sRH = 56
    k(f"s_and_b32 s{sRH}, s{sRB}, {ROTW}")
    k(f"s_mul_i32 s{sRH}, s{sRH}, 14336")
    k(f"s_lshl1_add_u32 s{sWS}, s{sRH}, s{sWS}")
    wn = [0]
    wid = []

    def wload(cnt=1):
        for _ in range(cnt):
            n = wn[0]
            wn[0] += 1
            wid.append(vm.op(f"buffer_load_dwordx4 {a(4*n,4)}, {v(vL16)}, s[8:11], s{sWS} offen offset:{(n%4)*1024}"))
            if n % 4 == 3:
                k(f"s_add_u32 s{sWS}, s{sWS}, 4096")
            if n == 27:
                k(f"s_lshl_b32 s57, s{sRH}, 2")
                k(f"s_sub_u32 s{sWS}, s{sWS}, s57")

    k.srd(16, 44, XB)
    load_lines, k.lines = k.lines, saved
    per = -(-len(gen_lines) // 15)
    branchy = False
    for t_ in load_lines:
        k(t_)
        if t_.startswith("buffer_load") and gen_lines:
            for _ in range(min(per, len(gen_lines))):
                k(gen_lines.pop(0))
    for t_ in gen_lines:
        k(t_)
    vTB = 14
    k("v_bfe_u32 v7, v1, 2, 2")
    k(f"v_lshlrev_b32 v8, 10, {v(vG)}")
    k("v_lshl_add_u32 v8, v7, 7, v8")
    k("v_and_b32 v9, 3, v1")
    k("v_lshl_add_u32 v8, v9, 3, v8")
    k("v_lshrrev_b32 v7, 1, v7")
    k(f"v_and_b32 v9, 1, {v(vG)}")
    k("v_lshl_add_u32 v7, v9, 1, v7")
    k(f"v_lshl_add_u32 {v(vTB)}, v7, 5, v8")
    for nb in range(1, 4):
        k(f"v_xor_b32 {v(vTB+nb)}, {32*nb}, {v(vTB)}")
    vXA = 18
    k("v_lshrrev_b32 v7, 5, v1")
    k(f"s_lshl_b32 s26, s{sW}, 1")
    k("v_or_b32 v7, s26, v7")
    k("v_bfe_u32 v8, v1, 1, 3")
    k("v_xor_b32 v7, v7, v8")
    k("v_and_b32 v8, 31, v1")
    k("v_lshlrev_b32 v8, 7, v8")
    k("v_lshl_add_u32 v7, v7, 4, v8")
    k(f"v_add_u32 {v(vXA)}, {XT}, v7")
    k.stamp()
    if TOUCH:
        k(f"s_and_b32 s57, s{sRB}, 1")
        k("s_lshl_b32 s57, s57, 13")
        k(f"s_add_u32 s57, s57, s{sWS}")
        k("s_add_u32 s57, s57, 16384")
        k("v_lshlrev_b32 v62, 7, v1")
        wload(NW[0])
        vm.op("buffer_load_dword v63, v62, s[8:11], s57 offen")
    else:
        wload(NW[0])
    vm.wait(p3_loads)
    k("s_barrier")
    census = vm.op(f"buffer_load_dwordx2 v[28:29], off, s[8:11], s{sFL} offset:768 sc1")
    k.stamp()
    vR, vA = 88, 120
    seq = [(t, nb) for t in range(14) for nb in range(4)]

    def rd(n):
        t, nb = seq[n]
        for u in range(2):
            k(f"ds_read_b64_tr_b16 {v(vR+4*(n%8)+2*u,2)}, {v(vTB+nb)} offset:{t*4096+u*512}")

    DEPTH = 6
    for n in range(DEPTH):
        rd(n)
    done_in = 0
    for n in range(56):
        t, nb = seq[n]
        k(f"s_waitcnt lgkmcnt({2*min(DEPTH-1, 55-n)})")
        acc = vA + 16 * (t // 7) + 4 * nb
        c = "0" if t % 7 == 0 else v(acc, 4)
        k(f"v_mfma_f32_16x16x32_bf16 {v(acc,4)}, {v(vGm+4*(t%7),4)}, {v(vR+4*(n%8),4)}, {c}")
        if n == 32:
            k("s_mov_b32 exec_lo, 0")
            k("s_mov_b32 exec_hi, 0xffff0000")
            k(f"v_mov_b32 {v(vGm+27)}, 0x3f80")
            k("s_mov_b64 exec, -1")
        if n + DEPTH < 56:
            rd(n + DEPTH)
        if (n + 1) * NW[1] // 56 > done_in:
            wload()
            done_in += 1
    vX = 20
    k(f"ds_read_b128 {v(vX,4)}, {v(vXA)}")
    k(f"ds_read_b128 {v(vX+4,4)}, {v(vXA)} offset:4096")
    k(f"s_mul_i32 s26, s{sRT}, 56")
    k(f"s_lshl2_add_u32 s27, s{sCT}, s{sW}")
    k("s_add_u32 s26, s26, s27")
    k("s_lshl_b32 s26, s26, 10")
    k(f"s_add_u32 s26, s26, {HC}")
    k(f"s_add_u32 s27, s26, {28*1024}")
    CL, CD, FAST = k.lab("cl"), k.lab("cd"), k.lab("fast")
    k(f"s_mov_b32 s50, {SPIN_MAX}")
    vm.wait(census)
    k.label(CL)
    k("v_readfirstlane_b32 s52, v28")
    k("v_readfirstlane_b32 s53, v29")
    k(f"s_cmp_ge_u32 s{sXC}, 8")
    k("s_cselect_b32 s54, s53, s52")
    k(f"s_lshl_b32 s55, s{sXC}, 2")
    k("s_lshr_b32 s54, s54, s55")
    k("s_and_b32 s54, s54, 15")
    k(f"s_cmp_eq_u32 s54, {14 if not os.environ.get('SLOW') else 15}")
    k(f"s_cbranch_scc1 {FAST}")
    for r in (52, 53):
        k(f"s_lshr_b32 s54, s{r}, 4")
        k("s_and_b32 s54, s54, 0x0f0f0f0f")
        k(f"s_and_b32 s{r}, s{r}, 0x0f0f0f0f")
        k(f"s_add_u32 s{r}, s{r}, s54")
    k("s_add_u32 s52, s52, s53")
    k("s_mul_i32 s52, s52, 0x01010101")
    k("s_lshr_b32 s52, s52, 24")
    k("s_cmp_ge_u32 s52, 14")
    k(f"s_cbranch_scc1 {CD}")
    k("s_sub_u32 s50, s50, 1")
    k("s_cmp_eq_u32 s50, 0")
    k(f"s_cbranch_scc1 {CD}")
    k(f"buffer_load_dwordx2 v[28:29], off, s[8:11], s{sFL} offset:768 sc1")
    k("s_waitcnt vmcnt(0)")
    k(f"s_branch {CL}")
    k.label(CD)
    nst = getattr(k, "_nst", 0)
    state = (vm.n, wn[0], list(wid), getattr(k, "_seq", 0))

    def rest():
        for r in range(16):
            k(f"v_{'sub' if r & 1 else 'add'}_f32 {v(vA+r)}, {v(vA+r)}, {v(vA+16+r)}")
        for p in range(2):
            for r in range(4):
                k(f"v_permlane16_swap_b32 {v(vA+8*p+r)}, {v(vA+8*p+4+r)}")
        k("s_waitcnt lgkmcnt(0)")
        vH, vHc, vU = 32, 40, 48
        for p in range(2):
            for q in range(4):
                y0, y1 = vA + 8 * p + 2 * q, vA + 8 * p + 2 * q + 1
                k(f"v_lshlrev_b32 {v(vU)}, 16, {v(vX+4*p+q)}")
                k(f"v_and_b32 {v(vU+1)}, 0xffff0000, {v(vX+4*p+q)}")
                k(f"v_add_f32 {v(y0)}, {v(y0)}, {v(vU)}")
                k(f"v_add_f32 {v(y1)}, {v(y1)}, {v(vU+1)}")
                k(f"v_sub_f32 {v(y0+16)}, {v(y0)}, {v(vM+p)}")
                k(f"v_sub_f32 {v(y1+16)}, {v(y1)}, {v(vM+p)}")
                k(f"v_cvt_pk_bf16_f32 {v(vHc+4*p+q)}, {v(y0+16)}, {v(y1+16)}")
            hc_st = store2(f"buffer_store_dwordx4 {v(vHc+4*p,4)}, {v(vL16)}, s[8:11], s{26+p} offen")
        wload(NW[2])
        for p in range(2):
            for q in range(4):
                y0, y1 = vA + 8 * p + 2 * q, vA + 8 * p + 2 * q + 1
                k(f"v_cvt_pk_bf16_f32 {v(vH+4*p+q)}, {v(y0)}, {v(y1)}")
            k(f"ds_write_b128 {v(vXA)}, {v(vH+4*p,4)} offset:{4096*p}")
        for p in range(2):
            k(f"v_mul_f32 {v(vM+p)}, {v(vA+16+8*p)}, {v(vA+16+8*p)}")
        for e in range(1, 8):
            for p in range(2):
                k(f"v_fmac_f32 {v(vM+p)}, {v(vA+16+8*p+e)}, {v(vA+16+8*p+e)}")
        k(f"s_lshl_b32 s26, s{sW}, 8")
        k(f"s_add_u32 s26, s26, {R2}")
        k(f"v_add_u32 v7, s26, {v(vL4)}")
        k(f"v_permlane32_swap_b32 {v(vM)}, {v(vM+1)}")
        k(f"v_add_f32 {v(vM)}, {v(vM)}, {v(vM+1)}")
        k(f"ds_write_b32 v7, {v(vM)}")
        sDG, sDL = 26, 42
        k(f"s_mul_i32 s{sDG}, s{sRB}, 114688")
        k(f"s_add_u32 s{sDG}, s{sDG}, {HC}")
        k(f"s_mul_i32 s{sDL}, s{sW}, 28672")
        k(f"s_and_b32 s28, s{sW}, 1")
        k("s_mul_i32 s28, s28, 57344")
        k(f"s_lshr_b32 s36, s{sW}, 1")
        k(f"s_lshl_b32 s{sDL+1}, s36, 10")
        k(f"s_add_u32 s{sDL+1}, s{sDL+1}, s28")
        k(f"s_add_u32 s27, s{sDG}, s{sDL+1}")
        k(f"s_add_u32 s{sDG}, s{sDG}, s{sDL}")
        k(f"s_sub_u32 s58, s{sDG}, s{sRH}")
        k(f"s_sub_u32 s59, s27, s{sRH}")
        k(f"s_add_u32 s{sDG}, s{sDG}, s{sRH}")
        k(f"s_add_u32 s27, s27, s{sRH}")
        vB1, vBS, vSS, vWL = 6, 7, 8, 11
        k(f"v_add_u32 {v(vB1)}, 57344, {v(vL16)}")
        sSS = 41
        k(f"s_mul_i32 s{sSS}, s{sRT}, 1792")
        k(f"s_add_u32 s{sSS}, s{sSS}, {SSP}")
        k(f"v_add_u32 v7, {R2}, {v(vL4)}")
        k("s_lshl_b32 s36, s36, 8")
        k(f"v_xor_b32 {v(vWL)}, s36, {v(vL16)}")
        sWD = 34
        k(f"s_mul_i32 s28, s{sCT}, {0 if os.environ.get('FAKED') else 112}")
        k(f"s_mul_i32 s36, s{sW}, 28")
        k("s_add_u32 s28, s28, s36")
        k("s_lshl_b32 s28, s28, 11")
        k(f"s_add_u32 s28, s28, {WD}")
        k(f"s_and_b32 s36, s{sW}, 1")
        k("s_lshl_b32 s36, s36, 10")
        k("s_add_u32 s54, s28, s36")
        sHS = 36
        k(f"s_mul_i32 s{sHS}, s{sRB}, {4*112}")
        k(f"s_lshl1_add_u32 s{sHS}, s{sFB}, s{sHS}")
        k(f"s_lshl_b32 s{sHS}, s{sHS}, 10")
        k(f"s_add_u32 s{sHS}, s{sHS}, {HP}")
        sHP = 37
        k(f"s_mul_i32 s{sHP}, s{sRT}, 224")
        k(f"s_mul_i32 s28, s{sW}, 28")
        k(f"s_add_u32 s{sHP}, s{sHP}, s28")
        k(f"s_lshl_b32 s{sHP}, s{sHP}, 10")
        k(f"s_add_u32 s{sHP}, s{sHP}, {HP}")
        k.stamp()
        vm.wait(hc_st, " lgkmcnt(0)")
        k.stamp()
        arrive(0)
        mark0 = poll_issue(0)
        wload(NW[3])
        poll(0, mark0)
        wload(NW[4])
        k.stamp()
        uses = [(kp, b) for kp in range(KS) for b in range(4)]
        uses += [(kp, b) for kp in range(KS, 28) for b in (0, 2)]
        uB = len(uses)
        uses += [(kp, b) for kp in range(KS, 28) for b in (1, 3)]
        first_use = {kp: min(u for u, x in enumerate(uses) if x[0] == kp) for kp in range(28)}
        last_use = {kp: max(u for u, x in enumerate(uses) if x[0] == kp) for kp in range(28)}
        npair = (28 - KS) // 2
        D = []

        def dma():
            i = len(D)
            if i < KS:
                sel, off = 0, i * 1024
            else:
                sel, off = 1, ((i - KS) // npair) * 28672 + (KS + 2 * ((i - KS) % npair)) * 1024
            k(f"s_add_u32 m0, s{sDL+sel}, {off}")
            k(f"s_add_u32 s28, s{(sDG if off % 28672 < 14336 else 58)+sel}, {off}")
            D.append(vm.op(f"buffer_load_dwordx4 {v(vL16)}, s[8:11], s28 offen{LD} lds"))

        wd_regs = [(0, lambda m, i=i: a(224 + 8 * i + 4 * m, 4)) for i in range(4)]
        wd_regs += [(0, lambda m, i=i: v(64 + 8 * i + 4 * m, 4)) for i in range(8)]
        wd_regs += [(last_use[i] + 1, lambda m, i=i: a(8 * i + 4 * m, 4)) for i in range(16)]

        def wdreg(kp, m):
            return wd_regs[kp][1](m)

        wdn = [0]
        wd_id = {}

        def quarter(dst, g, size, base):
            k(f"s_add_u32 s{dst}, s{sRT}, {g}" if ROTD else f"s_mov_b32 s{dst}, {g}")
            k(f"s_and_b32 s{dst}, s{dst}, 3")
            k(f"s_mul_i32 s{dst}, s{dst}, {size}")
            k(f"s_add_u32 s{dst}, s{dst}, s{base}")

        def wdload():
            n = wdn[0]
            wdn[0] += 1
            kp, m = n // 2, n % 2
            if n % 14 == 0:
                quarter(sWD, kp // 7, 14336, 54)
                k(f"s_xor_b32 s{sWD+1}, s{sWD}, 1024")
            wd_id[kp] = vm.op(f"buffer_load_dwordx4 {wdreg(kp,m)}, {v(vWL)}, s[8:11], s{sWD+m} offen offset:{(kp%7%2)*2048}")
            if n % 14 % 4 == 3:
                k(f"s_add_u32 s{sWD}, s{sWD}, 4096")
                k(f"s_add_u32 s{sWD+1}, s{sWD+1}, 4096")

        aQ = 128
        hl = []

        def hload():
            n = len(hl)
            p, kp = n // 28, n % 28
            if n == 28:
                k(f"s_add_u32 s{sHP}, s{sHP}, {112*1024}")
            if kp % 7 == 0:
                quarter(46, kp // 7, 7168, sHP)
            if kp % 7 == 4:
                k("s_add_u32 s46, s46, 4096")
            hl.append(vm.op(f"buffer_load_dwordx4 {a(aQ+4*(n%24),4)}, {v(vL16)}, s[8:11], s46 offen offset:{(kp%7%4)*1024}{LD}"))

        vF, vAcc, LOOK = 32, 128, 4
        accreg = {0: vAcc, 2: vAcc + 32, 1: vAcc + 64, 3: vAcc + 96}

        def rd4(u):
            kp, b = uses[u]
            k(f"ds_read_b128 {v(vF+4*(u%6),4)}, {v(vL16 if b < 2 else vB1)} offset:{(b&1)*28672+kp*1024}")

        last_st = [None]

        def hp_store(b, u):
            if u == 0:
                k(f"s_add_u32 s38, s{sHS}, {b*112*1024}")
            last_st[0] = store2(f"buffer_store_dwordx4 {v(accreg[b]+4*u,4)}, {v(vL16)}, s[8:11], s38 offen offset:{u*1024}")

        def epilogue(ps):
            items = [(b, r) for b in (ps, ps + 2) for r in range(8)]
            out = []
            for i in range(len(items) + 1):
                grp = []
                if i < len(items):
                    b, r = items[i]
                    g_, u_ = accreg[b], accreg[b] + 16
                    grp += [f"v_mul_f32 {v(u_+2*r)}, {v(g_+2*r)}, {v(u_+2*r)}",
                            f"v_mul_f32 {v(u_+2*r+1)}, {v(g_+2*r+1)}, {v(u_+2*r+1)}"]
                if i > 0:
                    b, r = items[i - 1]
                    g_, u_ = accreg[b], accreg[b] + 16
                    grp.append(f"v_cvt_pk_bf16_f32 {v(g_+r)}, {v(u_+2*r)}, {v(u_+2*r+1)}")
                out.append(grp)
                if i > 0 and items[i - 1][1] % 4 == 3:
                    out.append(lambda b=items[i - 1][0], u=items[i - 1][1] // 4: hp_store(b, u))
            return out

        def put(q, cnt=1):
            for _ in range(cnt):
                if q:
                    e = q.pop(0)
                    if callable(e):
                        e()
                    else:
                        for t_ in e:
                            k(t_)

        chunks = eval(os.environ.get("CHUNKS", "{0: 2, 3: 6, 7: 15, 16: 27}"))
        for _ in range(NDMA0):
            dma()
        k("ds_read2st64_b32 v[12:13], v7 offset1:1")
        k("ds_read2st64_b32 v[14:15], v7 offset0:2 offset1:3")
        k(f"s_lshl_b32 s47, s{sCT}, 8")
        k(f"s_add_u32 s47, s47, s{sSS}")
        k("s_waitcnt lgkmcnt(0)")
        k("v_add_f32 v12, v12, v13")
        k("v_add_f32 v14, v14, v15")
        k("v_add_f32 v12, v12, v14")
        store2(f"buffer_store_dword v12, {v(vL4)}, s[8:11], s47 offen")
        vm.wait(D[chunks[0]])
        k("s_barrier")
        k.stamp()
        for u in range(LOOK):
            rd4(u)
        todo = [(i - 30, "d") for i in range(NDMA0, 28)]
        todo += [(first_use[i // 2] - 14 + 0.01 * i, "w") for i in range(wn[0], 56)]
        todo = [o for _, o in sorted(todo)]
        epi = epilogue(0)
        checked = False
        for u in range(112):
            kp, b = uses[u]
            if (u + LOOK) % 4 == 0 and (u + LOOK) // 4 in chunks:
                vm.wait(D[chunks[(u + LOOK) // 4]])
                k("s_barrier")
            if u == first_use[kp] and 2 * kp + 1 >= sum(NW):
                vm.wait(wid[2 * kp + 1])
            if u == uB + DRAIN_A:
                assert not epi
                vm.wait(last_st[0])
                arrive(256)
            if u == uB + POLL_A:
                markA = poll_issue(256)
            if u == uB + CHECK_A:
                poll(256, markA)
                checked = True
            if u % 2 == 0:
                k(f"s_waitcnt lgkmcnt({min(LOOK - 2, 110 - u)})")
            for m in range(2):
                acc = accreg[b] + 16 * m
                c = "0" if kp == 0 else v(acc, 16)
                k(f"v_mfma_f32_32x32x16_bf16 {v(acc,16)}, {a(8*kp+4*m,4)}, {v(vF+4*(u%6),4)}, {c}")
                if m == 0:
                    if u + LOOK < 112:
                        rd4(u + LOOK)
                    if u >= uB + 1:
                        put(epi)
                else:
                    if u >= uB + 1 and EPI_A == 2:
                        put(epi)
                    if todo:
                        dma() if todo.pop(0) == "d" else wload()
                    elif checked and len(hl) < RING and last_use[16 + len(hl) // 2] < u:
                        hload()
                    elif wdn[0] < 56 and wd_regs[wdn[0] // 2][0] <= u:
                        wdload()
            if u in P4ST:
                k.stamp(1)
            if u == uB - 1 or u == 111:
                k.stamp()
        assert len(D) == 28 and wn[0] == 56
        print("after P4: down loads issued", wdn[0], "h loads", len(hl), file=sys.stderr)
        if not checked:
            poll(256, markA)
        vRW, vRR, vR2, vFW, vFR, vSP = 12, 15, 16, 20, 24, 56
        vAc5, vT5 = 128, 192
        fill = epilogue(1)
        while fill:
            put(fill, 3)
            if len(hl) < 8:
                hload()
        fill2 = []
        for sg in range(1, 4):
            fill2.append([f"s_xor_b32 s26, s{sW}, {sg}", "s_mul_i32 s26, s26, 6144", f"s_add_u32 s26, s26, {(sg-1)*2048}",
                         f"v_add_u32 {v(vRW+sg-1)}, s26, {v(vL16)}"])
        fill2.append([f"s_mul_i32 s26, s{sW}, 6144", f"v_add_u32 {v(vRR)}, s26, {v(vL16)}", "v_and_b32 v6, 31, v1",
                     "v_lshrrev_b32 v7, 5, v1", "v_lshlrev_b32 v7, 2, v7"])
        fill2.append(["v_bfe_u32 v8, v1, 1, 3", "v_xor_b32 v7, v7, v8", "v_lshlrev_b32 v8, 7, v6", "v_lshl_add_u32 v7, v7, 4, v8"])
        fill2.append([f"s_and_b32 s26, s{sW}, 1", f"s_lshr_b32 s27, s{sW}, 1", "s_lshl1_add_u32 s26, s26, s27",
                     f"s_lshl2_add_u32 s26, s26, {FF}", f"v_add_u32 {v(vFW)}, s26, v7"])
        fill2.append([f"v_xor_b32 {v(vFW+q)}, {16*q}, {v(vFW)}" for q in range(1, 4)])
        fill2.append([f"s_lshl_b32 s26, s{sW}, 10", f"v_add_u32 {v(vFR)}, s26, {v(vL16)}",
                     f"v_add_u32 {v(vFR+1)}, {XT}, {v(vFR)}", f"v_add_u32 {v(vFR)}, {FF}, {v(vFR)}"])
        r2calc = [[f"v_add_f32 {v(vSP)}, {v(vSP)}, {v(vSP+1)}", f"v_add_f32 {v(vSP+2)}, {v(vSP+2)}, {v(vSP+3)}",
                   f"v_add_f32 {v(vSP+4)}, {v(vSP+4)}, {v(vSP+5)}", f"v_add_f32 {v(vSP)}, {v(vSP)}, {v(vSP+6)}"],
                  [f"v_add_f32 {v(vSP+2)}, {v(vSP+2)}, {v(vSP+4)}", f"v_mov_b32 {v(vSP+1)}, {f2u(EPS)}",
                   f"v_add_f32 {v(vSP)}, {v(vSP)}, {v(vSP+2)}", f"v_fmac_f32 {v(vSP+1)}, {f2u(1.0/448)}, {v(vSP)}"],
                  [f"v_rcp_f32 {v(vR2)}, {v(vSP+1)}", f"v_rcp_f32 {v(vR2+1)}, {v(vSP+1)}"],
                  [f"v_permlane32_swap_b32 {v(vR2)}, {v(vR2+1)}"]]

        def reduce_out(p):
            base = vAc5 + 32 * p
            rb_ = p * 24576
            q_ = []
            for sg in range(1, 4):
                for z in range(2):
                    q_.append([f"ds_write_b128 {v(vRW+sg-1)}, {v(base+16*(sg&1)+8*(sg>>1)+4*z,4)} offset:{rb_+z*1024}"])
            q_.append([f"ds_read_b128 {v(vT5+24,4)}, {v(vFR+1)} offset:{p*4096}"])
            q_.append(["s_waitcnt lgkmcnt(0)", "s_barrier"] +
                      [f"ds_read_b128 {v(vT5+4*z,4)}, {v(vRR)} offset:{rb_+z*1024}" for z in range(2)])
            q_.append([f"ds_read_b128 {v(vT5+8*j+4*z,4)}, {v(vRR)} offset:{rb_+j*2048+z*1024}" for j in (1, 2) for z in range(2)])
            for h2 in range(2):
                q_.append([t_ for q in (2 * h2, 2 * h2 + 1) for t_ in
                           (f"v_lshlrev_b32 {v(vT5+32+q)}, 16, {v(vT5+24+q)}", f"v_and_b32 {v(vT5+24+q)}, 0xffff0000, {v(vT5+24+q)}")])
            for j in range(3):
                for h2 in range(2):
                    q_.append(([f"s_waitcnt lgkmcnt({4-2*j})"] if h2 == 0 else []) +
                              [f"v_add_f32 {v(base+r)}, {v(base+r)}, {v(vT5+8*j+r)}" for r in range(4 * h2, 4 * h2 + 4)])
            for q in range(4):
                q_.append([f"v_mul_f32 {v(base+q)}, {v(base+q)}, {v(vR2+p)}", f"v_mul_f32 {v(base+4+q)}, {v(base+4+q)}, {v(vR2+p)}",
                           f"v_cvt_pk_bf16_f32 {v(vT5+q)}, {v(base+q)}, {v(base+4+q)}",
                           f"ds_write_b32 {v(vFW+q)}, {v(vT5+q)} offset:{p*4096}"])
            q_.append(["s_waitcnt lgkmcnt(0)", "s_barrier", f"ds_read_b128 {v(vT5+28,4)}, {v(vFR)} offset:{p*4096}"])
            q_.append([])
            for q in range(4):
                f_, h_ = vT5 + 28 + q, vT5 + 24 + q
                q_.append((["s_waitcnt lgkmcnt(0)"] if q == 0 else []) +
                          [f"v_lshlrev_b32 {v(vT5+12)}, 16, {v(f_)}", f"v_and_b32 {v(f_)}, 0xffff0000, {v(f_)}",
                           f"v_add_f32 {v(vT5+12)}, {v(vT5+12)}, {v(vT5+32+q)}", f"v_add_f32 {v(f_)}, {v(f_)}, {v(h_)}",
                           f"v_cvt_pk_bf16_f32 {v(f_)}, {v(vT5+12)}, {v(f_)}"])
            q_.append(lambda: vm.op(f"buffer_store_dwordx4 {v(vT5+28,4)}, {v(vXO)}, s[16:19], s{sXO+p} offen{SC}"))
            return q_

        ssl = []

        def ssload(i):
            for j in range(2 * i, min(2 * i + 2, 7)):
                ssl.append(vm.op(f"buffer_load_dword {v(vSP+j)}, {v(vL4)}, s[8:11], s{sSS} offen offset:{256*j}{LD}"))

        fill = fill2 + [lambda i=i: ssload(i) for i in range(4)]
        if P5ST:
            k.stamp(1)
        for n in range(56):
            p, kp = n // 28, n % 28
            if n == DRAIN_B:
                vm.wait(last_st[0])
                arrive(512)
            if n == POLL_B:
                markB = poll_issue(512)
            if n == CHECK_B:
                k.stamp()
                poll(512, markB)
                k.stamp()
            if n == 24:
                vm.wait(ssl[6])
                fill += r2calc
            if n == 29:
                assert not fill
                fill = reduce_out(0)
            vm.wait(max(hl[n], wd_id[kp]))
            for dl in range(2):
                acc = vAc5 + 32 * p + 16 * dl
                c = "0" if kp == 0 else v(acc, 16)
                k(f"v_mfma_f32_32x32x16_bf16 {v(acc,16)}, {wdreg(kp,dl)}, {a(aQ+4*(n%24),4)}, {c}")
                if dl == 1 and wdn[0] < 56:
                    wdload()
                if dl == 0:
                    if len(hl) < (28 if n < CHECK_B else 56) and len(hl) < n + 24:
                        hload()
                    else:
                        put(fill)
                if dl == 1:
                    put(fill)
            if n in P5ST:
                k.stamp(1)
        k.stamp()
        put(fill, 99)
        put(reduce_out(1), 99)
        if k.prof:
            k("s_waitcnt vmcnt(0)")
        k.stamp_flush(6, PROF + (2 << 20), sW, nst)
        k("s_endpgm")

    SLOWL = k.lab("slow")
    k(f"s_branch {SLOWL}")
    k.label(FAST)
    mode[0] = ""
    rest()
    k.label("k3_code_end")
    k.label(SLOWL)
    mode[0] = " sc1"
    vm.n, wn[0], wid[:], k._seq = state
    rest()
    k.label(END)
    k("s_endpgm")
    for o in outline:
        k(o)
    if SPARE:
        k.label(PFL)
        k(f"s_cmp_ge_u32 s2, {K3_WGS}")
        k(f"s_cbranch_scc1 {END}")
        k("s_load_dwordx2 s[6:7], s[0:1], 72")
        k("v_lshrrev_b32 v2, 6, v0")
        k("v_and_b32 v1, 63, v0")
        k("v_readfirstlane_b32 s20, v2")
        k("v_lshlrev_b32 v3, 7, v1")
        k("s_bfe_u32 s21, s2, 0x20003")
        k("s_lshl2_add_u32 s21, s21, s20")
        k("s_waitcnt lgkmcnt(0)")
        k.srd_off(8, 6, WSB, WS_BYTES)
        n = 0
        for base, nsl, units in ((WS, 56, SP_WS), (WD, 28, range(7))):
            for un in units:
                for i in range(-(-nsl // 16)):
                    k(f"s_add_u32 s22, s21, {16*i}")
                    k(f"s_min_u32 s22, s22, {nsl-1}")
                    k("s_mul_i32 s22, s22, 57344")
                    k(f"s_add_u32 s22, s22, {base + un*8192}")
                    k(f"buffer_load_dword v{8+n}, v3, s[8:11], s22 offen")
                    n += 1
        k("s_endpgm")
    return k
```

```python
import struct
import sys
from asmlib import Kern, v, a, s

S, D, F = 2048, 448, 1792
AT = 0x000000
WT = 0x200000
BT = 0x400000
HC = 0x600000
WS = 0x800000
WD = 0xC00000
HP = 0xE00000
M1 = 0x1500000
FL = 0x1510000
WS_BYTES = 0x1520000
XB = S * D * 2
WRB = S * 225 * 2
WGB = D * F * 2
EPS = 1e-5
PROF = 0x1800000
import os
SC = os.environ.get("SC", " sc1")
NT = os.environ.get("NT", "")
WSB = int(os.environ.get("WSB", "0"), 0)


def f2u(x):
    return "0x%08x" % struct.unpack("<I", struct.pack("<f", x))[0]


N_WT, N_WS, N_WD = 256, 392, 196
K1_SIDE_WGS = (N_WT + N_WS + N_WD) // 4
K1_WGS = 256
K1_LDS = 57344 + 512


def div7(k, dst, src):
    k(f"s_mul_i32 s{dst}, s{src}, 37")
    k(f"s_lshr_b32 s{dst}, s{dst}, 8")


CODEPF = int(os.environ.get("CODEPF", "1"))


def code_prefetch(k, target, piece_sreg, vlane16, vtmp, stmp):
    here = k.lab("pc")
    k(f"s_getpc_b64 s[{stmp}:{stmp+1}]")
    k.label(here)
    k(f"s_add_u32 s{stmp}, s{stmp}, {target}-{here}")
    k(f"s_addc_u32 s{stmp+1}, s{stmp+1}, 0")
    k(f"s_lshl_b32 s{stmp+2}, s{piece_sreg}, 10")
    k(f"v_add_u32 {v(vtmp)}, s{stmp+2}, {v(vlane16)}")
    k(f"global_load_dwordx4 {v(vtmp+2,4)}, {v(vtmp)}, s[{stmp}:{stmp+1}]")


def xlane_sum(k, r, t):
    k(f"v_mov_b32 {v(t)}, {v(r)}")
    k(f"v_permlane16_swap_b32 {v(r)}, {v(t)}")
    k(f"v_add_f32 {v(r)}, {v(r)}, {v(t)}")
    k(f"v_mov_b32 {v(t)}, {v(r)}")
    k(f"v_permlane32_swap_b32 {v(r)}, {v(t)}")
    k(f"v_add_f32 {v(r)}, {v(r)}, {v(t)}")


def gen_k1():
    k = Kern("k1_kernel", 0, 0)
    END, SIDE, STORE, JWS, JWD, TR, ISSUED, TRS = (k.lab(x) for x in ("end", "side", "store", "jws", "jwd", "tr", "iss", "trs"))
    sW, sMain, sKind = 20, 48, 49
    k(f"s_cmp_ge_u32 s2, {K1_WGS}")
    k(f"s_cbranch_scc1 {END}")
    k.stamp()
    k("s_load_dwordx2 s[4:5], s[0:1], 0")
    k("s_load_dwordx2 s[6:7], s[0:1], 72")
    k("s_load_dwordx4 s[76:79], s[0:1], 8")
    k("s_load_dwordx4 s[80:83], s[0:1], 32")
    k("s_load_dwordx2 s[84:85], s[0:1], 48")
    k("v_lshrrev_b32 v2, 6, v0")
    k("v_and_b32 v1, 63, v0")
    k(f"v_readfirstlane_b32 s{sW}, v2")
    k(f"s_mov_b32 s{sMain}, 0")
    k("s_cmp_ge_u32 s2, 224")
    k(f"s_cbranch_scc1 {SIDE}")
    k(f"s_mov_b32 s{sMain}, 1")
    sRT, sCT = 21, 22
    k("s_and_b32 s23, s2, 7")
    k("s_lshr_b32 s24, s2, 3")
    div7(k, 25, 24)
    k("s_mul_i32 s26, s25, 7")
    k(f"s_sub_u32 s{sCT}, s24, s26")
    k(f"s_lshl2_add_u32 s{sRT}, s23, s25")
    k("v_lshrrev_b32 v4, 5, v1")
    k("v_bfe_u32 v5, v1, 3, 2")
    k("v_lshl_add_u32 v4, v4, 4, v5")
    k("s_movk_i32 s26, 0x7000")
    k("v_mul_u32_u24 v4, s26, v4")
    k("v_lshrrev_b32 v5, 4, v1")
    k("v_and_b32 v6, 7, v1")
    k("v_xor_b32 v6, v6, v5")
    k("v_lshl_add_u32 v2, v6, 4, v4")
    k("v_xor_b32 v3, 64, v2")
    k(f"v_add_u32 v3, {32*32*896}, v3")
    k(f"s_lshl_b32 s26, s{sW}, 7")
    k(f"s_add_u32 s26, s26, s{sRT}")
    k("s_mul_i32 s26, s26, 896")
    k(f"s_lshl_b32 s27, s{sW}, 11")
    saved, k.lines = k.lines, []
    k("v_and_b32 v8, 15, v1")
    vB, vST, vE, vSG, vT, vF = 8, 9, 9, 17, 19, 28
    vKK, vOnes = 27, 152
    k(f"s_and_b32 s28, s{sW}, 1")
    k("s_lshl_b32 s28, s28, 4")
    k(f"s_lshl_b32 s29, s{sCT}, 5")
    k("s_add_u32 s28, s28, s29")
    k(f"v_add_u32 {v(vKK)}, s28, v8")
    k("v_lshrrev_b32 v9, 1, v8")
    k("v_xor_b32 v9, v9, v5")
    k("v_lshlrev_b32 v9, 4, v9")
    k("v_lshl_add_u32 v4, v8, 7, v9")
    k(f"v_add_u32 v19, 1, {v(vKK)}")
    k("v_cvt_f32_u32 v20, v19")
    k("v_and_b32 v19, 1, v19")
    k("v_lshlrev_b32 v19, 31, v19")
    k(f"v_or_b32 {v(vSG)}, 1.0, v19")
    k(f"v_mul_f32 {v(vE+1)}, {f2u(1.0/448)}, v20")
    for e in range(2, 8):
        k(f"v_mul_f32 {v(vE+e)}, {f2u(e/448.0)}, v20")
    k(f"v_mul_f32 {v(vST)}, {f2u(32.0/448)}, v20")
    k(f"v_fract_f32 {v(vST)}, {v(vST)}")
    k("v_lshlrev_b32 v21, 3, v5")
    k("v_cvt_f32_u32 v21, v21")
    k(f"s_lshr_b32 s30, s{sW}, 1")
    k(f"s_mul_i32 s31, s30, {f2u(0.25)}")
    k(f"v_mov_b32 {v(vB)}, s31")
    k(f"v_fmac_f32 {v(vB)}, v21, {v(vE+1)}")
    k(f"v_fract_f32 {v(vB)}, {v(vB)}")
    k("v_xor_b32 v5, 64, v4")
    k("v_add_u32 v6, s27, v4")
    k("v_add_u32 v7, s27, v5")
    for p in range(4):
        k(f"v_mov_b32 {v(vOnes+p)}, 0x3f803f80")
    vCS = 156
    for t in range(7):
        k(f"v_cos_f32 {v(vT)}, {v(vB)}")
        for e in range(1, 8):
            k(f"v_add_f32 {v(vT+e)}, {v(vB)}, {v(vE+e)}")
        for e in range(1, 8):
            k(f"v_cos_f32 {v(vT+e)}, {v(vT+e)}")
        if t < 6:
            k(f"v_add_f32 {v(vB)}, {v(vB)}, {v(vST)}")
            k(f"v_fract_f32 {v(vB)}, {v(vB)}")
        for p in range(4):
            k(f"v_cvt_pk_bf16_f32 {v(vF+4*t+p)}, {v(vT+2*p)}, {v(vT+2*p+1)}")
        if t > 0:
            k(f"v_mfma_f32_16x16x32_bf16 {v(vCS,4)}, {v(vOnes,4)}, {v(vF+4*t-4,4)}, {'0' if t == 1 else v(vCS,4)}")
    gen_lines, k.lines = k.lines, saved
    k("s_waitcnt lgkmcnt(0)")
    k.srd(8, 4, XB)
    per = -(-len(gen_lines) // 14)
    for c in range(7):
        for q in range(2):
            k(f"s_add_u32 m0, s27, {c*(8192-128) + q*1024}")
            k(f"buffer_load_dwordx4 v{2+q}, s[8:11], s26 offen offset:{c*128}{NT} lds")
            for _ in range(min(per, len(gen_lines))):
                k(gen_lines.pop(0))
    assert not gen_lines
    k.label(SIDE)
    k("s_waitcnt lgkmcnt(0)")
    vIn, vSrc, vDst, vOut = 168, 200, 201, 88
    sA, sB_, sD = 52, 56, 88
    sSo, sDo, sSt, sSt4, sDt, sDt4, t0, t1, t2, t3 = 86, 87, 97, 98, 99, 100, 50, 51, 35, 39
    k(f"s_mul_i32 s{t0}, s2, 3")
    k(f"s_add_u32 s{t0}, s{t0}, s{sW}")
    k(f"s_sub_u32 s{t0}, s{t0}, 1")
    k(f"s_lshl2_add_u32 s{t1}, s2, s{sW}")
    k(f"s_sub_u32 s{t1}, s{t1}, 128")
    k("s_cmp_lt_u32 s2, 128")
    k(f"s_cselect_b32 s{t0}, s{t0}, s{t1}")
    k(f"s_cselect_b32 s{t1}, s{sW}, 1")
    k("s_cmp_ge_u32 s2, 224")
    k(f"s_cselect_b32 s{t1}, 0, s{t1}")
    k(f"s_cmp_lg_u32 s{t1}, 0")
    k(f"s_cbranch_scc1 {JWS}")
    k(f"s_mov_b32 s{sKind}, 0")
    k(f"s_lshr_b32 s{t0}, s2, 5")
    k(f"s_add_u32 s{t0}, s{t0}, 4")
    k(f"s_bfe_u32 s{t2}, s2, 0x20003")
    k(f"s_cmp_ge_u32 s2, 224")
    k(f"s_cselect_b32 s{t0}, s{t2}, s{t0}")
    k(f"s_cselect_b32 s{t2}, s{sW}, s{t2}")
    k(f"s_and_b32 s{t1}, s2, 7")
    k.srd(sA, 76, WRB)
    k.srd(sB_, 78, WRB)
    k(f"v_and_b32 {v(vOut-4)}, 7, v1")
    k(f"v_lshrrev_b32 {v(vOut-3)}, 3, v1")
    k(f"v_mul_u32_u24 {v(vSrc)}, 0x1c2, {v(vOut-4)}")
    k(f"v_lshl_add_u32 {v(vSrc)}, {v(vOut-3)}, 4, {v(vSrc)}")
    k(f"v_lshlrev_b32 {v(vDst)}, 16, {v(vOut-3)}")
    k(f"v_lshl_add_u32 {v(vDst)}, {v(vOut-4)}, 4, {v(vDst)}")
    k(f"v_add_u32 {v(vOut-3)}, 1, {v(vOut-3)}")
    k(f"v_lshlrev_b32 {v(vOut-3)}, 27, {v(vOut-3)}")
    k(f"v_and_b32 {v(vOut-3)}, 0x40000000, {v(vOut-3)}")
    k(f"v_or_b32 {v(vSrc)}, {v(vSrc)}, {v(vOut-3)}")
    k(f"v_or_b32 {v(vDst)}, {v(vDst)}, {v(vOut-3)}")
    k(f"s_lshl_b32 s{sSo}, s{t1}, 5")
    k(f"s_add_u32 s{sSo}, s{sSo}, s{t0}")
    k(f"s_mul_i32 s{sSo}, s{sSo}, 3600")
    k(f"s_mul_i32 s{t3}, s{t2}, 112")
    k(f"s_add_u32 s{sSo}, s{sSo}, s{t3}")
    k(f"s_add_u32 s{sSo}, s{sSo}, 2")
    for r in range(4):
        k(f"buffer_load_dwordx4 {v(vIn+8*r,4)}, {v(vSrc)}, s[{sA}:{sA+3}], s{sSo} offen{NT}")
        k(f"buffer_load_dwordx4 {v(vIn+8*r+4,4)}, {v(vSrc)}, s[{sB_}:{sB_+3}], s{sSo} offen{NT}")
        if r < 3:
            k(f"s_add_u32 s{sSo}, s{sSo}, {64*450}")
    k.srd_off(sD, 6, WSB + WT, 224 * 8192)
    k(f"s_mul_i32 s{sDo}, s{t2}, {7*65536}")
    k(f"s_lshr_b32 s{t3}, s{t0}, 1")
    k(f"s_lshl_b32 s{t3}, s{t3}, 11")
    k(f"s_add_u32 s{sDo}, s{sDo}, s{t3}")
    k(f"s_lshl_b32 s{t3}, s{t1}, 8")
    k(f"s_add_u32 s{sDo}, s{sDo}, s{t3}")
    k(f"s_and_b32 s{t3}, s{t0}, 1")
    k(f"s_lshl_b32 s{t3}, s{t3}, 7")
    k(f"s_add_u32 s{sDo}, s{sDo}, s{t3}")
    k(f"s_branch {ISSUED}")
    k.label(JWS)
    k(f"s_mov_b32 s{sKind}, 1")
    k(f"s_cmp_ge_u32 s{t0}, {N_WS}")
    k(f"s_cbranch_scc1 {JWD}")
    k(f"s_bitcmp1_b32 s{t0}, 0")
    k(f"s_cselect_b32 s{sA}, s82, s80")
    k(f"s_cselect_b32 s{sA+1}, s83, s81")
    k(f"s_and_b32 s{sA+1}, s{sA+1}, 0xffff")
    k(f"s_mov_b32 s{sA+2}, {WGB}")
    k(f"s_mov_b32 s{sA+3}, 0x20000")
    k.srd_off(sD, 6, WSB + WS, 56 * 28 * 2048)
    k(f"s_lshr_b32 s{t1}, s{t0}, 1")
    k(f"s_mul_i32 s{t2}, s{t1}, 2341")
    k(f"s_lshr_b32 s{t2}, s{t2}, 16")
    k(f"s_mul_i32 s{t3}, s{t2}, 28")
    k(f"s_sub_u32 s{t1}, s{t1}, s{t3}")
    k(f"v_lshrrev_b32 {v(vSrc)}, 5, v1")
    k(f"v_mul_u32_u24 {v(vSrc)}, {8*3584}, {v(vSrc)}")
    k(f"v_and_b32 {v(vDst)}, 31, v1")
    k(f"v_lshl_add_u32 {v(vSrc)}, {v(vDst)}, 4, {v(vSrc)}")
    k(f"s_mul_i32 s{sSo}, s{t1}, {16*3584}")
    k(f"s_lshl_b32 s{t3}, s{t2}, 9")
    k(f"s_add_u32 s{sSo}, s{sSo}, s{t3}")
    k(f"s_movk_i32 s{sSt}, 3584")
    k(f"s_movk_i32 s{sSt4}, 3584")
    k(f"v_lshlrev_b32 {v(vDst)}, 4, v1")
    k(f"s_mul_i32 s{sDo}, s{t2}, {8*28*2048}")
    k(f"s_lshl_b32 s{t3}, s{t1}, 11")
    k(f"s_add_u32 s{sDo}, s{sDo}, s{t3}")
    k(f"s_and_b32 s{t3}, s{t0}, 1")
    k(f"s_lshl_b32 s{t3}, s{t3}, 10")
    k(f"s_add_u32 s{sDo}, s{sDo}, s{t3}")
    k(f"s_mov_b32 s{sDt}, {28*2048}")
    k(f"s_mov_b32 s{sDt4}, {28*2048}")
    k(f"s_branch {TR}")
    k.label(JWD)
    k(f"s_sub_u32 s{t0}, s{t0}, {N_WS}")
    k.srd(sA, 84, WGB)
    k.srd_off(sD, 6, WSB + WD, 7 * 112 * 2048)
    k(f"s_cmp_ge_u32 s{t0}, {N_WD}")
    k(f"s_cselect_b32 s{sA+2}, 0, s{sA+2}")
    k(f"s_cselect_b32 s{sD+2}, 0, s{sD+2}")
    k(f"s_mul_i32 s{t2}, s{t0}, 2341")
    k(f"s_lshr_b32 s{t2}, s{t2}, 16")
    k(f"s_mul_i32 s{t3}, s{t2}, 28")
    k(f"s_sub_u32 s{t1}, s{t0}, s{t3}")
    k(f"v_lshrrev_b32 {v(vSrc)}, 5, v1")
    k(f"v_bfe_u32 {v(vDst)}, v1, 4, 1")
    k(f"v_lshl_add_u32 {v(vSrc)}, {v(vDst)}, 7, {v(vSrc)}")
    k(f"v_bfe_u32 {v(vDst)}, v1, 3, 1")
    k(f"v_lshl_add_u32 {v(vSrc)}, {v(vDst)}, 5, {v(vSrc)}")
    k(f"v_mul_u32_u24 {v(vSrc)}, 0x380, {v(vSrc)}")
    k(f"v_and_b32 {v(vOut-4)}, 7, v1")
    k(f"v_lshl_add_u32 {v(vSrc)}, {v(vOut-4)}, 4, {v(vSrc)}")
    k(f"s_lshr_b32 s{sSo}, s{t1}, 2")
    k(f"s_lshl_b32 s{sSo}, s{sSo}, 7")
    k(f"s_and_b32 s{t3}, s{t1}, 3")
    k(f"s_add_u32 s{sSo}, s{sSo}, s{t3}")
    k(f"s_mul_i32 s{sSo}, s{sSo}, {2*896}")
    k(f"s_lshl_b32 s{t3}, s{t2}, 7")
    k(f"s_add_u32 s{sSo}, s{sSo}, s{t3}")
    k(f"s_movk_i32 s{sSt}, {8*896}")
    k(f"s_mov_b32 s{sSt4}, {(64-24)*896}")
    k(f"v_lshlrev_b32 {v(vOut-4)}, 4, {v(vOut-4)}")
    k(f"v_lshl_add_u32 {v(vOut-4)}, {v(vDst)}, 9, {v(vOut-4)}")
    k(f"v_lshrrev_b32 {v(vDst)}, 4, v1")
    k(f"v_lshl_add_u32 {v(vDst)}, {v(vDst)}, 11, {v(vOut-4)}")
    k(f"s_mul_i32 s{sDo}, s{t2}, 112")
    k(f"s_lshl2_add_u32 s{sDo}, s{t1}, s{sDo}")
    k(f"s_lshl_b32 s{sDo}, s{sDo}, 11")
    k(f"s_movk_i32 s{sDt}, 128")
    k(f"s_movk_i32 s{sDt4}, {1024-384}")
    k.label(TR)
    k.nocheck = True
    for e in range(8):
        k(f"buffer_load_dwordx4 {v(vIn+4*e,4)}, {v(vSrc)}, s[{sA}:{sA+3}], s{sSo} offen{NT} ; alt")
        if e < 7:
            k(f"s_add_u32 s{sSo}, s{sSo}, s{sSt4 if e == 3 else sSt}")
    k.label(ISSUED)
    SPW = k.lab("spw")
    k(f"s_cmp_eq_u32 s{sMain}, 0")
    k(f"s_cbranch_scc1 {SPW}")
    k.stamp()
    k.srd_off(12, 6, WSB + AT, 224 * 8192)
    k.srd_off(16, 6, WSB + M1, S * 4)
    k(f"v_mfma_f32_16x16x32_bf16 {v(vCS,4)}, {v(vOnes,4)}, {v(vF+24,4)}, {v(vCS,4)}")
    npf = 8
    if CODEPF:
        k("v_lshlrev_b32 v160, 4, v1")
        k(f"s_min_u32 s34, s{sW}, (k2_code_end-k2_kernel)/1024")
        code_prefetch(k, "k2_kernel", 34, 160, 162, 36)
        npf = 9
    vR, vSm, vGr = 56, 20, 120

    def stat(t):
        b = vR + 4 * (t % 4)
        k(f"v_mfma_f32_16x16x32_bf16 {v(vSm,4)}, {v(b,4)}, {v(vOnes,4)}, {'0' if t == 0 else v(vSm,4)}")
        k(f"v_mfma_f32_16x16x32_bf16 {v(vGr,4)}, {v(b,4)}, {v(b,4)}, {'0' if t == 0 else v(vGr,4)}")

    k.stamp()
    for c in range(7):
        k(f"s_waitcnt vmcnt({12-2*c+npf})")
        for par in range(2):
            t = 2 * c + par
            k(f"ds_read_b128 {v(vR+4*(t%4),4)}, v{6+par} offset:{c*8192}")
        if c > 0:
            k("s_waitcnt lgkmcnt(2)")
            stat(2 * c - 2)
            stat(2 * c - 1)
    k("s_waitcnt lgkmcnt(0)")
    k.stamp()
    stat(12)
    stat(13)
    k("s_barrier")
    vA = 88
    vSt = 124
    seq = [(t, b) for t in range(14) for b in range(4)]

    def rd(n):
        t, b = seq[n]
        k(f"ds_read_b128 {v(vR+4*(n%8),4)}, v{4+(t&1)} offset:{(t>>1)*8192 + b*2048}")

    vM, vQ = 24, 25
    fin = ["v_and_b32 v26, 3, v1",
           "v_cmp_eq_u32 s[40:41], 1, v26", "v_cmp_eq_u32 s[42:43], 2, v26", "v_cmp_eq_u32 s[44:45], 3, v26",
           "v_bfe_u32 v26, v1, 2, 2", "v_lshrrev_b32 v19, 4, v1", "v_cmp_eq_u32 s[46:47], v26, v19",
           f"v_cndmask_b32 {v(vM)}, {v(vSm)}, {v(vSm+1)}, s[40:41]", f"v_cndmask_b32 {v(vQ)}, {v(vGr)}, {v(vGr+1)}, s[40:41]",
           f"v_cndmask_b32 {v(vM)}, {v(vM)}, {v(vSm+2)}, s[42:43]", f"v_cndmask_b32 {v(vQ)}, {v(vQ)}, {v(vGr+2)}, s[42:43]",
           f"v_cndmask_b32 {v(vM)}, {v(vM)}, {v(vSm+3)}, s[44:45]", f"v_cndmask_b32 {v(vQ)}, {v(vQ)}, {v(vGr+3)}, s[44:45]",
           f"v_mul_f32 {v(vM)}, {f2u(1.0/448)}, {v(vM)}",
           f"v_mul_f32 {v(vQ)}, {f2u(1.0/448)}, {v(vQ)}",
           "v_and_b32 v26, 15, v1",
           f"v_fma_f32 {v(vQ)}, -{v(vM)}, {v(vM)}, {v(vQ)}",
           f"s_lshl_b32 s33, s{sW}, 6",
           f"v_max_f32 {v(vQ)}, 0, {v(vQ)}",
           "v_lshl_add_u32 v19, v26, 2, s33",
           f"v_add_f32 {v(vQ)}, {f2u(EPS)}, {v(vQ)}",
           f"v_fmac_f32 {v(vCS)}, {v(vCS)}, {v(vSG)}",
           f"v_rsq_f32 {v(vQ)}, {v(vQ)}",
           "v_lshrrev_b32 v21, 2, v26",
           "v_and_b32 v26, 3, v26",
           f"v_mul_f32 v20, {v(vM)}, {v(vQ)}",
           "v_lshl_add_u32 v26, v21, 4, v26",
           "v_lshlrev_b32 v26, 7, v26",
           f"s_lshl_b32 s33, s{sW}, 7",
           f"s_add_u32 s33, s33, s{sRT}",
           "s_lshl_b32 s33, s33, 2",
           f"s_cmp_eq_u32 s{sCT}, 0\ns_cselect_b32 s18, {S*4}, 0"]
    DEPTH = 7
    for n in range(DEPTH):
        rd(n)
    k.stamp()
    extra = 0
    for n in range(56):
        t, b = seq[n]
        left = min(DEPTH - 1, 55 - n)
        k(f"s_waitcnt lgkmcnt({left + (2 if 40 < n <= 40 + DEPTH else 0)})")
        acc = vA + 16 * (t // 7) + 4 * b
        c = "0" if t % 7 == 0 else v(acc, 4)
        k(f"v_mfma_f32_16x16x32_bf16 {v(acc,4)}, {v(vR+4*(n%8),4)}, {v(vF+4*(t%7),4)}, {c}")
        if n + DEPTH < 56:
            rd(n + DEPTH)
        if n >= 4 and fin:
            k(fin.pop(0))
        if n == 40:
            assert not fin
            k("s_mov_b64 exec, s[46:47]")
            k(f"ds_write_b32 v19, {v(vQ)} offset:57344")
            k("ds_write_b32 v19, v20 offset:57600")
            k(f"buffer_store_dword {v(vM)}, v26, s[16:19], s33 offen")
            k("s_mov_b64 exec, -1")
    k("s_barrier")
    k.stamp()
    k("v_lshrrev_b32 v24, 4, v1")
    k("v_lshlrev_b32 v24, 4, v24")
    for b in range(4):
        k(f"ds_read_b128 {v(vSt+4*b,4)}, v24 offset:{57344 + 64*b}")
        k(f"ds_read_b128 {v(vSt+16+4*b,4)}, v24 offset:{57600 + 64*b}")
    for n in range(16):
        k(f"v_fmac_f32 {v(vA+n)}, {v(vA+16+n)}, {v(vSG)}")
    k("v_and_b32 v8, 15, v1")
    k("v_and_b32 v9, 7, v1")
    k("v_lshrrev_b32 v10, 3, v24")
    k("v_xor_b32 v10, v10, v9")
    k("v_lshlrev_b32 v10, 4, v10")
    k("v_lshl_add_u32 v10, v8, 7, v10")
    k("v_add_u32 v10, s27, v10")
    k("v_xor_b32 v11, 16, v10")
    k("v_lshlrev_b32 v12, 4, v1")
    k("v_add_u32 v12, s27, v12")
    k("v_lshrrev_b32 v13, 3, v1")
    k("v_xor_b32 v9, v9, v13")
    k("v_lshlrev_b32 v9, 4, v9")
    k("v_lshl_add_u32 v13, v13, 13, v9")
    k("s_lshl_b32 s28, s28, 13")
    k("s_lshl_b32 s30, s30, 12")
    k(f"s_lshl_b32 s33, s{sRT}, 7")
    k("s_add_u32 s33, s33, s30")
    k("s_add_u32 s33, s33, s28")
    k("s_add_u32 s34, s33, 0x10000")
    for h2 in range(2):
        k(f"s_waitcnt lgkmcnt({4-4*h2})")
        for n in range(8 * h2, 8 * h2 + 8):
            k(f"v_mul_f32 {v(vA+n)}, {v(vA+n)}, {v(vSt+n)}")
        for n in range(8 * h2, 8 * h2 + 8):
            k(f"v_fma_f32 {v(vA+n)}, -{v(vSt+16+n)}, {v(vCS)}, {v(vA+n)}")
        for n in range(4 * h2, 4 * h2 + 4):
            k(f"v_cvt_pk_bf16_f32 {v(vR+n)}, {v(vA+2*n)}, {v(vA+2*n+1)}")
    k(f"ds_write_b128 v10, {v(vR,4)}")
    k(f"ds_write_b128 v11, {v(vR+4,4)}")
    k("s_waitcnt lgkmcnt(0)")
    k(f"ds_read_b128 {v(vR+8,4)}, v12")
    k(f"ds_read_b128 {v(vR+12,4)}, v12 offset:1024")
    k("s_waitcnt lgkmcnt(1)")
    k(f"buffer_store_dwordx4 {v(vR+8,4)}, v13, s[12:15], s33 offen{SC}")
    k("s_waitcnt lgkmcnt(0)")
    k(f"buffer_store_dwordx4 {v(vR+12,4)}, v13, s[12:15], s34 offen{SC}")
    k(f"s_waitcnt vmcnt({3+CODEPF})")
    k.label(STORE)
    k.stamp()
    k("s_mov_b32 s34, 0x05040100")
    k("s_mov_b32 s35, 0x07060302")
    k(f"s_cmp_lg_u32 s{sKind}, 0")
    k(f"s_cbranch_scc1 {TRS}")
    for e in range(8):
        o = vOut + 4 * e
        for r in range(4):
            k(f"v_perm_b32 {v(o+r)}, {v(vIn+8*r+4+(e>>1))}, {v(vIn+8*r+(e>>1))}, s{34+(e&1)}")
        k(f"buffer_store_dwordx4 {v(o,4)}, {v(vDst)}, s[{sD}:{sD+3}], s{sDo} offen{SC}")
        if e < 7:
            k(f"s_add_u32 s{sDo}, s{sDo}, 8192")
    k.stamp()
    if k.prof:
        k("s_waitcnt vmcnt(0)")
    nst = getattr(k, "_nst", 1) - 1
    k.stamp_flush(6, PROF, sW, nst)
    k("s_endpgm")
    k.label(TRS)
    for j in range(8):
        o = vOut + 4 * j
        for q in range(4):
            k(f"v_perm_b32 {v(o+q)}, {v(vIn+4*(2*q+1)+(j>>1))}, {v(vIn+4*(2*q)+(j>>1))}, s{34+(j&1)}")
        k(f"buffer_store_dwordx4 {v(o,4)}, {v(vDst)}, s[{sD}:{sD+3}], s{sDo} offen{SC}")
        if j < 7:
            k(f"s_add_u32 s{sDo}, s{sDo}, s{sDt4 if j == 3 else sDt}")
    k.stamp()
    if k.prof:
        k("s_waitcnt vmcnt(0)")
    k.stamp_flush(6, PROF, sW, 1)
    k.label(END)
    k("s_endpgm")
    k.label(SPW)
    k("s_waitcnt vmcnt(0)")
    k("s_cmp_lg_u32 s2, 255")
    k(f"s_cbranch_scc1 {STORE}")
    k.srd_off(40, 6, WSB + FL, 64 * 256)
    k(f"s_lshl_b32 s44, s{sW}, 12")
    for i in range(4):
        k(f"v_mov_b32 v{4+i}, 0")
    k("v_lshlrev_b32 v8, 4, v1")
    for i in range(4):
        k(f"buffer_store_dwordx4 v[4:7], v8, s[40:43], s44 offen offset:{1024*i}")
    k(f"s_branch {STORE}")
    return k


K2_LDS = 16384
K2_PF = int(os.environ.get("K2_PF", "0"))
K2_IN = int(os.environ.get("K2_IN", "1"))
K2_IN0 = int(os.environ.get("K2_IN0", "16"))
K2_SP = int(os.environ.get("K2_SP", "0"))


def cmul8(k, y, x, c, sn, sign):
    neg = " neg_lo:[1,0,0] neg_hi:[1,0,0]"
    for e in range(0, 8, 2):
        k(f"v_pk_mul_f32 {v(y+e,2)}, {v(x+e,2)}, {v(c+e,2)}")
        k(f"v_pk_mul_f32 {v(y+8+e,2)}, {v(x+8+e,2)}, {v(c+e,2)}")
    for e in range(0, 8, 2):
        k(f"v_pk_fma_f32 {v(y+e,2)}, {v(x+8+e,2)}, {v(sn+e,2)}, {v(y+e,2)}" + (neg if sign > 0 else ""))
        k(f"v_pk_fma_f32 {v(y+8+e,2)}, {v(x+e,2)}, {v(sn+e,2)}, {v(y+8+e,2)}" + ("" if sign > 0 else neg))


def gen_k2():
    k = Kern("k2_kernel", 0, 0)
    END = k.lab("end")
    sW, sKK = 20, 2
    PFL = k.lab("pf")
    k("s_cmp_ge_u32 s2, 224")
    k(f"s_cbranch_scc1 {PFL if K2_PF or K2_SP else END}")
    k.stamp()
    k("s_load_dwordx2 s[6:7], s[0:1], 72")
    k("v_lshrrev_b32 v2, 6, v0")
    k("v_and_b32 v1, 63, v0")
    k(f"v_readfirstlane_b32 s{sW}, v2")
    k("v_lshrrev_b32 v4, 4, v1")
    k("v_and_b32 v5, 7, v1")
    k("v_xor_b32 v5, v5, v4")
    k("v_lshrrev_b32 v6, 3, v1")
    k("v_lshlrev_b32 v6, 7, v6")
    k("v_lshl_add_u32 v2, v5, 4, v6")
    k("v_xor_b32 v3, 64, v2")
    k(f"s_lshl_b32 s21, s{sW}, 11")
    k(f"s_lshl_b32 s22, s{sKK}, 13")
    k("s_add_u32 s22, s22, s21")
    k("v_lshlrev_b32 v7, 4, v1")
    k("s_mov_b32 m0, s21")
    k("s_waitcnt lgkmcnt(0)")
    k.srd_off(8, 6, WSB + AT, 224 * 8192)
    k("buffer_load_dwordx4 v2, s[8:11], s22 offen lds")
    k("buffer_load_dwordx4 v3, s[8:11], s22 offen offset:1024 lds")
    k.srd_off(12, 6, WSB + WT, 224 * 8192)
    vWt = 8
    k(f"buffer_load_dwordx4 {v(vWt,4)}, v7, s[12:15], s22 offen")
    k(f"buffer_load_dwordx4 {v(vWt+4,4)}, v7, s[12:15], s22 offen offset:1024")
    if K2_IN:
        k.srd_off(28, 6, WSB + WS, 56 * 57344)
        k("s_lshr_b32 s32, s2, 3")
        k(f"s_lshr_b32 s33, s{sW}, 1")
        k("s_lshl1_add_u32 s32, s32, s33")
        k("s_mul_i32 s32, s32, 57344")
        k(f"s_and_b32 s33, s{sW}, 1")
        k("s_lshl_b32 s33, s33, 13")
        k("s_add_u32 s32, s32, s33")
        k("v_lshlrev_b32 v192, 7, v1")
        k("buffer_load_dword v193, v192, s[28:31], s32 offen")
    k.stamp()
    k.srd_off(16, 6, WSB + BT, 448 * 4096)
    vC1, vS1, vN1 = 16, 24, 32
    vC2, vS2, vN2 = 40, 48, 56
    vTc, vTs = 64, 72
    vUc, vUs = 80, 88
    vD = 96
    vX = 128
    vY = 144
    vP = 160
    vT = 168
    k("v_and_b32 v5, 15, v1")
    k(f"s_lshl_b32 s23, s{sW}, 4")
    k("v_add_u32 v6, s23, v5")
    k("v_cvt_f32_u32 v2, v6")
    k("v_cvt_f32_u32 v3, v4")

    def packed_table(dc, ds_, step, base, mult):
        for e in range(8):
            if mult[e] == 0:
                k(f"v_mov_b32 {v(vT+e)}, {v(base)}")
            else:
                k(f"v_fmamk_f32 {v(vT+e)}, {v(step)}, {f2u(float(mult[e]))}, {v(base)}")
        for e in range(8):
            k(f"v_cos_f32 {v(vT+8+e)}, {v(vT+e)}")
        for e in range(8):
            k(f"v_sin_f32 {v(vT+e)}, {v(vT+e)}")
        for p in range(4):
            k(f"v_cvt_pk_bf16_f32 {v(dc+p)}, {v(vT+8+2*p)}, {v(vT+8+2*p+1)}")
        for p in range(4):
            k(f"v_cvt_pk_bf16_f32 {v(ds_+p)}, {v(vT+2*p)}, {v(vT+2*p+1)}")

    k(f"v_mul_f32 {v(vY)}, {f2u(1.0/64)}, v2")
    k(f"v_mul_f32 {v(vY+1)}, {f2u(8.0)}, v3")
    k(f"v_mul_f32 {v(vY+1)}, {v(vY+1)}, {v(vY)}")
    packed_table(vC1, vS1, vY, vY + 1, list(range(8)))
    k("s_mov_b32 s24, 0x80008000")
    k("v_and_b32 v6, 1, v1")
    k("v_mul_u32_u24 v6, 0x8000, v6")
    k("v_lshl_or_b32 v6, v6, 16, v6")
    for p in range(4):
        k(f"v_xor_b32 {v(vC1+4+p)}, v6, {v(vC1+p)}")
        k(f"v_xor_b32 {v(vS1+4+p)}, v6, {v(vS1+p)}")
    for p in range(8):
        k(f"v_xor_b32 {v(vN1+p)}, s24, {v(vS1+p)}")
    k("v_lshrrev_b32 v6, 1, v5")
    k("v_xor_b32 v6, v6, v4")
    k("v_lshlrev_b32 v6, 4, v6")
    k(f"v_lshl_add_u32 {v(vP)}, v5, 7, v6")
    k(f"v_xor_b32 {v(vP+1)}, 64, {v(vP)}")
    m2 = [0, 1, 2, 3, 16, 17, 18, 19]
    k("v_cvt_f32_u32 v6, v5")
    k(f"v_mul_f32 {v(vY)}, {f2u(1.0/32)}, v6")
    k(f"v_mul_f32 {v(vY+1)}, 4.0, v3")
    k(f"v_mul_f32 {v(vY+1)}, {v(vY+1)}, {v(vY)}")
    packed_table(vC2, vS2, vY, vY + 1, m2)
    k("s_brev_b32 s25, 1")
    for p in range(4):
        k(f"v_xor_b32 {v(vC2+4+p)}, s25, {v(vC2+p)}")
        k(f"v_xor_b32 {v(vS2+4+p)}, s25, {v(vS2+p)}")
    for p in range(8):
        k(f"v_xor_b32 {v(vN2+p)}, s24, {v(vS2+p)}")

    k(f"v_mul_f32 {v(vY)}, {f2u(1.0/2048)}, v2")
    k(f"v_mul_f32 {v(vY+1)}, 4.0, v3")
    k(f"v_mul_f32 {v(vY+1)}, {v(vY+1)}, {v(vY)}")
    m2 = [0, 1, 2, 3, 16, 17, 18, 19]
    k.stamp()
    k(f"s_waitcnt vmcnt({2+K2_IN})")
    k("s_barrier")
    k.stamp()
    for plane in range(2):
        for blk in range(2):
            for t in range(2):
                k(f"ds_read_b128 {v(vD+16*plane+8*blk+4*t,4)}, {v(vP+t)} offset:{plane*4096+blk*2048}")
    for e in range(8):
        if m2[e] == 0:
            k(f"v_mov_b32 {v(vTs+e)}, {v(vY+1)}")
        else:
            k(f"v_fmamk_f32 {v(vTs+e)}, {v(vY)}, {f2u(float(m2[e]))}, {v(vY+1)}")

    def dft_big(cr, ci, first_wait):
        for t in range(2):
            for blk in range(2):
                ar, ai = vD + 8 * blk + 4 * t, vD + 16 + 8 * blk + 4 * t
                xr, xi = vX + 4 * blk, vX + 8 + 4 * blk
                c0r = "0" if t == 0 else v(xr, 4)
                c0i = "0" if t == 0 else v(xi, 4)
                k(f"v_mfma_f32_16x16x32_bf16 {v(xr,4)}, {v(ar,4)}, {v(vC1+4*t,4)}, {c0r}")
                k(f"v_mfma_f32_16x16x32_bf16 {v(xi,4)}, {v(ai,4)}, {v(vC1+4*t,4)}, {c0i}")
                first_wait()
                k(f"v_mfma_f32_16x16x32_bf16 {v(xr,4)}, {v(ai,4)}, {v(cr+4*t,4)}, {v(xr,4)}")
                k(f"v_mfma_f32_16x16x32_bf16 {v(xi,4)}, {v(ar,4)}, {v(ci+4*t,4)}, {v(xi,4)}")
                first_wait()

    if CODEPF:
        k("s_lshr_b32 s34, s2, 3")
        k("s_min_u32 s34, s34, (k3_code_end-k3_kernel)/1024-1")
        code_prefetch(k, "k3_kernel", 34, 7, 184, 36)
    k("s_waitcnt lgkmcnt(0)")
    fill = []
    for e in range(8):
        fill.append(f"v_cos_f32 {v(vTc+e)}, {v(vTs+e)}")
    for e in range(8):
        fill.append(f"v_sin_f32 {v(vTs+e)}, {v(vTs+e)}")

    def filler():
        for _ in range(2):
            if fill:
                k(fill.pop(0))

    dft_big(vS1, vN1, filler)
    assert not fill
    def pack():
        for p in range(4):
            k(f"v_cvt_pk_bf16_f32 {v(vP+p)}, {v(vY+2*p)}, {v(vY+2*p+1)}")
            k(f"v_cvt_pk_bf16_f32 {v(vP+4+p)}, {v(vY+8+2*p)}, {v(vY+8+2*p+1)}")

    cmul8(k, vY, vX, vTc, vTs, -1)
    pack()
    for blk in range(2):
        xr, xi = vX + 4 * blk, vX + 8 + 4 * blk
        k(f"v_mfma_f32_16x16x32_bf16 {v(xr,4)}, {v(vC2+4*blk,4)}, {v(vP,4)}, 0")
        k(f"v_mfma_f32_16x16x32_bf16 {v(xi,4)}, {v(vC2+4*blk,4)}, {v(vP+4,4)}, 0")
        k(f"v_mfma_f32_16x16x32_bf16 {v(xr,4)}, {v(vS2+4*blk,4)}, {v(vP+4,4)}, {v(xr,4)}")
        k(f"v_mfma_f32_16x16x32_bf16 {v(xi,4)}, {v(vN2+4*blk,4)}, {v(vP,4)}, {v(xi,4)}")
    k(f"v_mul_f32 {v(vT)}, {f2u(1.0/2048)}, v6")
    k(f"v_add_f32 {v(vT+1)}, {f2u(16.0/2048)}, {v(vT)}")
    k("v_lshl_add_u32 v2, v4, 2, s23")
    k("v_cvt_f32_u32 v2, v2")
    for r in range(4):
        for blk in range(2):
            k(f"v_mul_f32 {v(vUs+4*blk+r)}, v2, {v(vT+blk)}")
        if r < 3:
            k("v_add_f32 v2, 1.0, v2")
    k.stamp()
    k(f"s_waitcnt vmcnt({K2_IN+CODEPF})")
    for e in range(8):
        k(f"v_lshlrev_b32 {v(vTc+e)}, 16, {v(vWt+e)}")
        k(f"v_and_b32 {v(vTs+e)}, 0xffff0000, {v(vWt+e)}")
    cmul8(k, vY, vX, vTc, vTs, +1)
    pack()
    for blk in range(2):
        xr, xi = vX + 4 * blk, vX + 8 + 4 * blk
        k(f"v_mfma_f32_16x16x32_bf16 {v(xr,4)}, {v(vP,4)}, {v(vC2+4*blk,4)}, 0")
        k(f"v_mfma_f32_16x16x32_bf16 {v(xi,4)}, {v(vP+4,4)}, {v(vC2+4*blk,4)}, 0")
        k(f"v_mfma_f32_16x16x32_bf16 {v(xr,4)}, {v(vP+4,4)}, {v(vN2+4*blk,4)}, {v(xr,4)}")
        k(f"v_mfma_f32_16x16x32_bf16 {v(xi,4)}, {v(vP,4)}, {v(vS2+4*blk,4)}, {v(xi,4)}")
    for e in range(8):
        k(f"v_cos_f32 {v(vUc+e)}, {v(vUs+e)}")
    for e in range(8):
        k(f"v_sin_f32 {v(vUs+e)}, {v(vUs+e)}")
    sc = 2.0 / (S * D)
    k(f"s_cmp_eq_u32 s{sKK}, 223")
    k(f"s_mov_b32 s26, {f2u(sc)}")
    k(f"s_cselect_b32 s26, {f2u(sc/2)}, s26")
    for e in range(8):
        k(f"v_mul_f32 {v(vUc+e)}, s26, {v(vUc+e)}")
        k(f"v_mul_f32 {v(vUs+e)}, s26, {v(vUs+e)}")
    k("v_lshrrev_b32 v2, 1, v4")
    k("v_lshl_add_u32 v2, v2, 4, v5")
    k("v_lshlrev_b32 v2, 4, v2")
    k("v_and_b32 v3, 1, v4")
    k("v_lshl_add_u32 v2, v3, 3, v2")
    k(f"s_lshl_b32 s27, s{sW}, 9")
    k("v_add_u32 v2, s27, v2")
    cmul8(k, vY, vX, vUc, vUs, +1)
    pack()
    for plane in range(2):
        for blk in range(2):
            k(f"ds_write_b64 v2, {v(vP+4*plane+2*blk,2)} offset:{8192+plane*4096+blk*2048}")
    k("s_waitcnt lgkmcnt(0)")
    k.stamp()
    k("s_barrier")
    for t in range(2):
        for blk in range(2):
            for plane in range(2):
                k(f"ds_read_b128 {v(vD+16*plane+8*blk+4*t,4)}, v7 offset:{8192+plane*4096+blk*2048+t*1024}")
    k(f"s_lshl_b32 s27, s{sW}, 10")
    k(f"s_lshl_b32 s22, s{sKK}, 13")
    k("s_add_u32 s22, s22, s27")
    k("s_add_u32 s23, s22, 4096")
    k("s_waitcnt lgkmcnt(0)")
    dft_big(vN1, vS1, lambda: None)
    for p in range(4):
        k(f"v_cvt_pk_bf16_f32 {v(vP+p)}, {v(vX+2*p)}, {v(vX+2*p+1)}")
    k(f"s_cmp_ge_u32 s{sKK}, 112")
    k("s_cselect_b32 s24, s24, 0")
    for p in range(4):
        k(f"v_cvt_pk_bf16_f32 {v(vP+4+p)}, {v(vX+8+2*p)}, {v(vX+8+2*p+1)}")
    for p in range(4):
        k(f"v_xor_b32 {v(vP+4+p)}, s24, {v(vP+4+p)}")
    k(f"buffer_store_dwordx4 {v(vP,4)}, v7, s[16:19], s22 offen{SC}")
    k(f"buffer_store_dwordx4 {v(vP+4,4)}, v7, s[16:19], s23 offen{SC}")
    k.stamp()
    if k.prof:
        k("s_waitcnt vmcnt(0)")
    k.stamp_flush(6, PROF + (1 << 20), sW)
    k.label(END)
    k("s_endpgm")
    k.label("k2_code_end")
    if K2_SP:
        nk = 28 - K2_SP
        k.label(PFL)
        k("s_cmp_ge_u32 s2, 256")
        k(f"s_cbranch_scc1 {END}")
        k("s_load_dwordx2 s[6:7], s[0:1], 72")
        k("v_lshrrev_b32 v2, 6, v0")
        k("v_and_b32 v1, 63, v0")
        k("v_readfirstlane_b32 s20, v2")
        k("v_lshlrev_b32 v3, 4, v1")
        k("s_bfe_u32 s21, s2, 0x20003")
        k("s_lshr_b32 s22, s20, 1")
        k("s_lshl1_add_u32 s21, s21, s22")
        k(f"s_mul_i32 s21, s21, {7*57344}")
        k("s_and_b32 s22, s20, 1")
        k(f"s_mul_i32 s22, s22, {nk*1024}")
        k("s_add_u32 s21, s21, s22")
        k(f"s_add_u32 s21, s21, {K2_SP*2048}")
        k("s_movk_i32 s22, 7")
        k("s_waitcnt lgkmcnt(0)")
        k.srd_off(8, 6, WSB + WS, 56 * 57344)
        LP = k.lab("lp")
        k.label(LP)
        k("s_mov_b32 s23, s21")
        for i in range(nk):
            k(f"buffer_load_dwordx4 {v(8+4*i,4)}, v3, s[8:11], s23 offen offset:{(i%4)*1024}")
            if i % 4 == 3:
                k("s_add_u32 s23, s23, 4096")
        k(f"s_waitcnt vmcnt({nk})")
        k("s_add_u32 s21, s21, 57344")
        k("s_sub_u32 s22, s22, 1")
        k("s_cmp_lg_u32 s22, 0")
        k(f"s_cbranch_scc1 {LP}")
        k("s_endpgm")
    if K2_PF:
        k.label(PFL)
        k("s_cmp_ge_u32 s2, 448")
        k(f"s_cbranch_scc1 {END}")
        k("s_load_dwordx2 s[6:7], s[0:1], 72")
        k("v_lshrrev_b32 v2, 6, v0")
        k("v_and_b32 v1, 63, v0")
        k("v_readfirstlane_b32 s20, v2")
        k("v_lshlrev_b32 v3, 4, v1")
        k("s_lshr_b32 s21, s2, 3")
        k("s_sub_u32 s21, s21, 28")
        k("s_lshr_b32 s22, s20, 1")
        k("s_lshl1_add_u32 s21, s21, s22")
        k("s_mul_i32 s21, s21, 57344")
        k("s_and_b32 s22, s20, 1")
        k(f"s_mul_i32 s22, s22, {K2_PF*1024}")
        k("s_add_u32 s21, s21, s22")
        k("s_waitcnt lgkmcnt(0)")
        k.srd_off(8, 6, WSB + WS, 56 * 57344)
        for i in range(K2_PF):
            k(f"buffer_load_dwordx4 {v(8+4*i,4)}, v3, s[8:11], s21 offen offset:{(i%4)*1024}")
            if i % 4 == 3:
                k("s_add_u32 s21, s21, 4096")
        k("s_endpgm")
    return k


HEADER = """; Fused preLN + GFNet spectral filter + preLN bilinear GLU, generated by gen/gen.py
"""


def build(kernels):
    out = [HEADER.rstrip()]
    for kern, grid, block, lds in kernels:
        out.append(f"; @launch kernel={kern.name} grid=({grid},1,1) block=({block},1,1) lds={lds}")
    out.append('.amdgcn_target "amdgcn-amd-amdhsa--gfx950"')
    out.append(".text")
    descs = []
    seen = set()
    for kern, *_ in kernels:
        if kern.name in seen:
            continue
        seen.add(kern.name)
        body, desc = kern.emit()
        print(kern.name, kern.stats, file=sys.stderr)
        out.append(body)
        descs.append(desc)
    out.append('.section .rodata,"a"')
    for d in descs:
        out.append(".p2align 6")
        out.append(d)
    return "\n".join(out) + "\n"


def kernel_list():
    from gen3 import gen_k3, K3_LDS, K3_WGS
    return [(gen_k1(), K1_WGS, 256, K1_LDS), (gen_k2(), 448 if K2_PF else 256 if K2_SP else 224, 256, K2_LDS), (gen_k3(), K3_WGS, 256, K3_LDS)]


if __name__ == "__main__":
    if "--prof" in sys.argv:
        Kern.prof = True
        sys.argv.remove("--prof")
    path = sys.argv[1] if len(sys.argv) > 1 else "sequential_preLN__spectral_gfnet__glu_gated_bilinear__prompt.s"
    open(path, "w").write(build(kernel_list()))
```

```python
import os
import sys
from asmlib import Kern, v, a, s
from gen import *

XT = 114688
R2 = 122880
FF = 65536
K3_LDS = 123904
SPIN_MAX = 1 << 18
E = lambda n, d: int(os.environ.get(n, d))
NW = [int(x) for x in os.environ.get("NW", "8,8,0,8,0").split(",")]
KS = E("KS", 8)
EPI_A = E("EPI_A", 2)
DRAIN_A = E("DRAIN_A", 22)
POLL_A = E("POLL_A", 31)
CHECK_A = E("CHECK_A", 37)
DRAIN_B = E("DRAIN_B", 10)
POLL_B = E("POLL_B", 17)
CHECK_B = E("CHECK_B", 22)
NDMA0 = E("NDMA0", 7)
ROTB = E("ROTB", 1)
ROTW = E("ROTW", 0)
ROTD = E("ROTD", 0)
SPARE = E("SPARE", 1)
TOUCH = E("TOUCH", 0)
SP_WS = eval(os.environ.get("SP_WS", "(2,3,4,5,6)"))
WBL = eval(os.environ.get("WBL", "(256, 512)"))
RING = E("RING", 12)
LD = os.environ.get("LD", "")
P4ST = eval(os.environ.get("P4ST", "()"))
P5ST = eval(os.environ.get("P5ST", "()"))
K3_WGS = 256 if SPARE else 224
SSP = 0x1502000


class VM:
    def __init__(self, k):
        self.k, self.n = k, 0

    def op(self, text):
        self.k(text)
        self.n += 1
        return self.n - 1

    def wait(self, idx, extra=""):
        self.k(f"s_waitcnt vmcnt({self.n - idx - 1}){extra}")


def gen_k3():
    k = Kern("k3_kernel", 0, 0)
    vm = VM(k)
    END = k.lab("end")
    sW, sRB, sCT, sHALF, sRT, sFB = 20, 21, 22, 23, 24, 25
    sFL, sFI, sXC = 33, 39, 40
    vL4, vOne, vLP = 30, 2, 0

    mode = [""]

    def store2(text):
        return vm.op(text + mode[0])

    def arrive(off):
        vm.op(f"buffer_store_dword {v(vOne)}, off, s[8:11], s{sFI} offset:{off}{mode[0]}")

    def poll_issue(off):
        return vm.op(f"buffer_load_dword v31, {v(vLP)}, s[8:11], s{sFL} offen offset:{off} sc1")

    outline = []

    def poll(off, mark):
        loop, done = k.lab("poll"), k.lab("done")
        vm.wait(mark)
        k("v_cmp_eq_u32 vcc, 0, v31")
        k(f"s_mov_b32 s50, {SPIN_MAX}")
        k(f"s_cbranch_vccnz {loop}")
        k.label(done)
        outline.append(f"""{loop}:
        buffer_load_dword v31, {v(vLP)}, s[8:11], s{sFL} offen offset:{off} sc1
        s_sub_u32 s50, s50, 1
        s_waitcnt vmcnt(0)
        s_cmp_eq_u32 s50, 0
        s_cbranch_scc1 {done}
        v_cmp_eq_u32 vcc, 0, v31
        s_nop 0
        s_cbranch_vccnz {loop}
        s_branch {done}""")

    PFL = k.lab("pf")
    k("s_cmp_ge_u32 s2, 224")
    k(f"s_cbranch_scc1 {PFL if SPARE else END}")
    k.stamp()
    k("s_load_dwordx2 s[6:7], s[0:1], 72")
    k("s_load_dwordx2 s[4:5], s[0:1], 0")
    k("s_load_dwordx2 s[44:45], s[0:1], 56")
    k("v_lshrrev_b32 v2, 6, v0")
    k("v_and_b32 v1, 63, v0")
    k(f"v_readfirstlane_b32 s{sW}, v2")
    k("s_lshr_b32 s26, s2, 3")
    div7(k, 27, 26)
    if os.environ.get("MAP", "A") == "A":
        k("s_and_b32 s28, s2, 7")
        k(f"s_lshl2_add_u32 s{sRT}, s28, s27")
        k(f"s_and_b32 s{sHALF}, s27, 1")
        k(f"s_lshr_b32 s{sRB}, s{sRT}, 1")
    else:
        k("s_bfe_u32 s28, s2, 0x20001")
        k(f"s_lshl2_add_u32 s{sRB}, s28, s27")
        k(f"s_and_b32 s{sHALF}, s2, 1")
        k(f"s_lshl1_add_u32 s{sRT}, s{sRB}, s{sHALF}")
    k("s_mul_i32 s28, s27, 7")
    k(f"s_sub_u32 s{sCT}, s26, s28")
    vL16, vG, vC = 3, 4, 5
    k(f"v_lshrrev_b32 {v(vG)}, 4, v1")
    k(f"v_and_b32 v6, 1, {v(vG)}")
    k(f"s_and_b32 s29, s{sW}, 1")
    k("s_lshl_b32 s29, s29, 2")
    k("v_lshl_or_b32 v6, v6, 1, s29")
    k("v_and_b32 v7, 7, v1")
    k("v_xor_b32 v6, v6, v7")
    k("v_lshrrev_b32 v8, 3, v1")
    k("v_lshlrev_b32 v9, 12, v8")
    k("v_lshl_add_u32 v6, v6, 4, v9")
    k(f"s_lshl_b32 s28, s{sW}, 15")
    k(f"s_lshl_b32 s27, s{sRT}, 7")
    k("s_add_u32 s26, s28, s27")
    k(f"s_add_u32 s26, s26, {BT}")
    k("s_sub_u32 s48, s27, s28")
    k(f"s_add_u32 s48, s48, {BT + 438*4096}")
    k(f"s_lshl_b32 s27, s{sW}, 10")
    k(f"s_bitcmp1_b32 s{sCT}, 0") if ROTB else k("s_cmp_lg_u32 0, 0")
    k("s_cselect_b32 s49, s26, s48")
    k("s_cselect_b32 s26, s48, s26")
    k("s_cselect_b32 s48, 0xfffe0000, 0x20000".replace("0xfffe0000, 0x20000", "s48, s48")) if False else None
    k("s_cselect_b32 s51, 0x6000, 0")
    k("s_cselect_b32 s52, 28672, 0")
    k("s_mov_b32 s48, 0x20000")
    k("s_cselect_b32 s48, 0xfffe0000, s48")
    k("v_xor_b32 v6, s51, v6")
    k("s_add_u32 m0, s27, s52")
    k("s_waitcnt lgkmcnt(0)")
    k.srd_off(8, 6, WSB, WS_BYTES)
    saved, k.lines = k.lines, []
    k(f"v_and_b32 {v(vC)}, 15, v1")
    vGm = 32
    vB, vST, vE, vT = 14, 15, 15, 20
    k(f"s_lshl_b32 s46, s{sCT}, 6")
    k(f"s_lshl_b32 s47, s{sW}, 4")
    k("s_add_u32 s46, s46, s47")
    k(f"v_add_u32 v27, s46, {v(vC)}")
    k("v_cvt_f32_u32 v27, v27")
    for p in range(1, 4):
        k(f"v_mul_f32 {v(vE+p)}, {f2u(p/448.0)}, v27")
    k(f"v_mul_f32 {v(vST)}, {f2u(16.0/448)}, v27")
    k(f"v_fract_f32 {v(vST)}, {v(vST)}")
    k(f"v_lshl_add_u32 v19, {v(vG)}, 2, 1")
    k("v_cvt_f32_u32 v19, v19")
    k(f"v_mul_f32 {v(vB)}, v19, {v(vE+1)}")
    k(f"v_fract_f32 {v(vB)}, {v(vB)}")
    for t in range(7):
        k(f"v_cos_f32 {v(vT+4)}, {v(vB)}")
        k(f"v_sin_f32 {v(vT)}, {v(vB)}")
        for p in range(1, 4):
            k(f"v_add_f32 {v(vT+p)}, {v(vB)}, {v(vE+p)}")
        if t < 6:
            k(f"v_add_f32 {v(vB)}, {v(vB)}, {v(vST)}")
            k(f"v_fract_f32 {v(vB)}, {v(vB)}")
        for p in range(1, 4):
            k(f"v_cos_f32 {v(vT+4+p)}, {v(vT+p)}")
            k(f"v_sin_f32 {v(vT+p)}, {v(vT+p)}")
        for p in range(4):
            k(f"v_cvt_pk_bf16_f32 {v(vGm+4*t+p)}, {v(vT+4+p)}, -{v(vT+p)}")
    gen_lines, k.lines = k.lines, []
    def nyq(first):
        k(f"s_cmp_eq_u32 s{sW}, 3")
        k(f"s_cselect_b32 s28, {224*4096 >> 6}, 0")
        k("s_cmp_lg_u32 s51, 0" if first else "s_cmp_eq_u32 s51, 0")
        k("s_cselect_b32 s28, s28, 0")
        k("v_add_u32 v9, 16, v1")
        k("v_and_b32 v9, 64, v9")
        k("v_mad_u32_u24 v9, v9, s28, v6")

    for hf in range(2):
        for t in range(7):
            if t == 6:
                nyq(hf == 0)
            vm.op(f"buffer_load_dwordx4 v{9 if t == 6 else 6}, s[8:11], s{26 if hf == 0 else 49} offen lds")
            if t < 6:
                k("s_add_u32 m0, m0, 4096")
                k("s_add_u32 s26, s26, s48" if hf == 0 else "s_sub_u32 s49, s49, s48")
        if hf == 0:
            k("s_sub_u32 s52, 28672, s52")
            k("s_add_u32 m0, s27, s52")
            k("v_xor_b32 v6, 0x6000, v6")
    vXO = 10
    k.srd(12, 4, XB)
    k("v_lshrrev_b32 v9, 5, v1")
    k("v_and_b32 v8, 3, v8")
    k("v_lshl_add_u32 v8, v9, 4, v8")
    k("v_mul_u32_u24 v8, 0x380, v8")
    k(f"v_xor_b32 v7, v7, {v(vG)}")
    k("v_xor_b32 v7, s29, v7")
    k(f"v_lshl_add_u32 {v(vXO)}, v7, 4, v8")
    sSB, sXO = 29, 30
    k(f"s_lshr_b32 s26, s{sRT}, 3")
    k("s_lshl_b32 s26, s26, 9")
    k(f"s_lshl_b32 s28, s{sHALF}, 8")
    k("s_add_u32 s26, s26, s28")
    k(f"s_and_b32 s28, s{sRB}, 3")
    k(f"s_lshl2_add_u32 s{sSB}, s28, s26")
    k(f"s_lshl_b32 s26, s{sW}, 5")
    k(f"s_add_u32 s26, s26, s{sSB}")
    k("s_mul_i32 s26, s26, 896")
    k(f"s_lshl_b32 s28, s{sCT}, 7")
    k(f"s_add_u32 s{sXO}, s26, s28")
    k(f"s_add_u32 s{sXO+1}, s{sXO}, {128*896}")
    k(f"s_add_u32 m0, s27, {XT}")
    vm.op(f"buffer_load_dwordx4 {v(vXO)}, s[12:15], s{sXO} offen lds")
    k(f"s_add_u32 m0, s27, {XT+4096}")
    vm.op(f"buffer_load_dwordx4 {v(vXO)}, s[12:15], s{sXO+1} offen lds")
    vM = 12
    k("v_bfe_u32 v7, v1, 3, 2")
    k("v_bfe_u32 v8, v1, 2, 1")
    k("v_lshlrev_b32 v8, 4, v8")
    k("v_lshl_add_u32 v7, v7, 5, v8")
    k("v_and_b32 v8, 3, v1")
    k("v_add_lshl_u32 v7, v7, v8, 2")
    k(f"s_lshl_b32 s26, s{sSB}, 2")
    k(f"s_add_u32 s26, s26, {M1}")
    vm.op(f"buffer_load_dword {v(vM)}, v7, s[8:11], s26 offen")
    p3_loads = vm.op(f"buffer_load_dword {v(vM+1)}, v7, s[8:11], s26 offen offset:512")
    k(f"s_lshl_b32 s{sFL}, s{sRB}, 10")
    k(f"s_add_u32 s{sFL}, s{sFL}, {FL}")
    k(f"s_getreg_b32 s{sXC}, hwreg(HW_REG_XCC_ID, 0, 4)")
    NOC = k.lab("noc")
    k(f"s_cmp_lg_u32 s{sW}, 0")
    k(f"s_cbranch_scc1 {NOC}")
    k(f"s_lshl_b32 s26, s{sXC}, 2")
    k("s_lshl_b32 s26, 1, s26")
    k(f"s_lshr_b32 s28, s{sXC}, 3")
    k(f"s_lshl2_add_u32 s28, s28, s{sFL}")
    k("s_mov_b64 exec, 1")
    k("v_mov_b32 v31, s26")
    k("buffer_atomic_add v31, off, s[8:11], s28 offset:768 sc1")
    k("s_mov_b64 exec, -1")
    k.label(NOC)
    k.stamp()
    k(f"v_lshlrev_b32 {v(vL16)}, 4, v1")
    k(f"v_lshlrev_b32 {v(vL4)}, 2, v1")
    k(f"v_mov_b32 {v(vOne)}, 1")
    k(f"s_mul_i32 s28, s{sHALF}, 7")
    k(f"s_add_u32 s28, s28, s{sCT}")
    k(f"s_lshl2_add_u32 s{sFB}, s28, s{sW}")
    k(f"s_lshl2_add_u32 s{sFI}, s{sFB}, s{sFL}")
    k(f"v_min_u32 {v(vLP)}, 220, {v(vL4)}")
    sWS = 32
    k(f"s_mul_i32 s{sWS}, s{sW if os.environ.get('FAKEW') else sFB}, 57344")
    k(f"s_add_u32 s{sWS}, s{sWS}, {WS}")
    sRH = 56
    k(f"s_and_b32 s{sRH}, s{sRB}, {ROTW}")
    k(f"s_mul_i32 s{sRH}, s{sRH}, 14336")
    k(f"s_lshl1_add_u32 s{sWS}, s{sRH}, s{sWS}")
    wn = [0]
    wid = []

    def wload(cnt=1):
        for _ in range(cnt):
            n = wn[0]
            wn[0] += 1
            wid.append(vm.op(f"buffer_load_dwordx4 {a(4*n,4)}, {v(vL16)}, s[8:11], s{sWS} offen offset:{(n%4)*1024}"))
            if n % 4 == 3:
                k(f"s_add_u32 s{sWS}, s{sWS}, 4096")
            if n == 27:
                k(f"s_lshl_b32 s57, s{sRH}, 2")
                k(f"s_sub_u32 s{sWS}, s{sWS}, s57")

    k.srd(16, 44, XB)
    load_lines, k.lines = k.lines, saved
    per = -(-len(gen_lines) // 15)
    branchy = False
    for t_ in load_lines:
        k(t_)
        if t_.startswith("buffer_load") and gen_lines:
            for _ in range(min(per, len(gen_lines))):
                k(gen_lines.pop(0))
    for t_ in gen_lines:
        k(t_)
    vTB = 14
    k("v_bfe_u32 v7, v1, 2, 2")
    k(f"v_lshlrev_b32 v8, 10, {v(vG)}")
    k("v_lshl_add_u32 v8, v7, 7, v8")
    k("v_and_b32 v9, 3, v1")
    k("v_lshl_add_u32 v8, v9, 3, v8")
    k("v_lshrrev_b32 v7, 1, v7")
    k(f"v_and_b32 v9, 1, {v(vG)}")
    k("v_lshl_add_u32 v7, v9, 1, v7")
    k(f"v_lshl_add_u32 {v(vTB)}, v7, 5, v8")
    for nb in range(1, 4):
        k(f"v_xor_b32 {v(vTB+nb)}, {32*nb}, {v(vTB)}")
    vXA = 18
    k("v_lshrrev_b32 v7, 5, v1")
    k(f"s_lshl_b32 s26, s{sW}, 1")
    k("v_or_b32 v7, s26, v7")
    k("v_bfe_u32 v8, v1, 1, 3")
    k("v_xor_b32 v7, v7, v8")
    k("v_and_b32 v8, 31, v1")
    k("v_lshlrev_b32 v8, 7, v8")
    k("v_lshl_add_u32 v7, v7, 4, v8")
    k(f"v_add_u32 {v(vXA)}, {XT}, v7")
    k.stamp()
    if TOUCH:
        k(f"s_and_b32 s57, s{sRB}, 1")
        k("s_lshl_b32 s57, s57, 13")
        k(f"s_add_u32 s57, s57, s{sWS}")
        k("s_add_u32 s57, s57, 16384")
        k("v_lshlrev_b32 v62, 7, v1")
        wload(NW[0])
        vm.op("buffer_load_dword v63, v62, s[8:11], s57 offen")
    else:
        wload(NW[0])
    vm.wait(p3_loads)
    k("s_barrier")
    census = vm.op(f"buffer_load_dwordx2 v[28:29], off, s[8:11], s{sFL} offset:768 sc1")
    k.stamp()
    vR, vA = 88, 120
    seq = [(t, nb) for t in range(14) for nb in range(4)]

    def rd(n):
        t, nb = seq[n]
        for u in range(2):
            k(f"ds_read_b64_tr_b16 {v(vR+4*(n%8)+2*u,2)}, {v(vTB+nb)} offset:{t*4096+u*512}")

    DEPTH = 6
    for n in range(DEPTH):
        rd(n)
    done_in = 0
    for n in range(56):
        t, nb = seq[n]
        k(f"s_waitcnt lgkmcnt({2*min(DEPTH-1, 55-n)})")
        acc = vA + 16 * (t // 7) + 4 * nb
        c = "0" if t % 7 == 0 else v(acc, 4)
        k(f"v_mfma_f32_16x16x32_bf16 {v(acc,4)}, {v(vGm+4*(t%7),4)}, {v(vR+4*(n%8),4)}, {c}")
        if n == 32:
            k("s_mov_b32 exec_lo, 0")
            k("s_mov_b32 exec_hi, 0xffff0000")
            k(f"v_mov_b32 {v(vGm+27)}, 0x3f80")
            k("s_mov_b64 exec, -1")
        if n + DEPTH < 56:
            rd(n + DEPTH)
        if (n + 1) * NW[1] // 56 > done_in:
            wload()
            done_in += 1
    vX = 20
    k(f"ds_read_b128 {v(vX,4)}, {v(vXA)}")
    k(f"ds_read_b128 {v(vX+4,4)}, {v(vXA)} offset:4096")
    k(f"s_mul_i32 s26, s{sRT}, 56")
    k(f"s_lshl2_add_u32 s27, s{sCT}, s{sW}")
    k("s_add_u32 s26, s26, s27")
    k("s_lshl_b32 s26, s26, 10")
    k(f"s_add_u32 s26, s26, {HC}")
    k(f"s_add_u32 s27, s26, {28*1024}")
    CL, CD, FAST = k.lab("cl"), k.lab("cd"), k.lab("fast")
    k(f"s_mov_b32 s50, {SPIN_MAX}")
    vm.wait(census)
    k.label(CL)
    k("v_readfirstlane_b32 s52, v28")
    k("v_readfirstlane_b32 s53, v29")
    k(f"s_cmp_ge_u32 s{sXC}, 8")
    k("s_cselect_b32 s54, s53, s52")
    k(f"s_lshl_b32 s55, s{sXC}, 2")
    k("s_lshr_b32 s54, s54, s55")
    k("s_and_b32 s54, s54, 15")
    k(f"s_cmp_eq_u32 s54, {14 if not os.environ.get('SLOW') else 15}")
    k(f"s_cbranch_scc1 {FAST}")
    for r in (52, 53):
        k(f"s_lshr_b32 s54, s{r}, 4")
        k("s_and_b32 s54, s54, 0x0f0f0f0f")
        k(f"s_and_b32 s{r}, s{r}, 0x0f0f0f0f")
        k(f"s_add_u32 s{r}, s{r}, s54")
    k("s_add_u32 s52, s52, s53")
    k("s_mul_i32 s52, s52, 0x01010101")
    k("s_lshr_b32 s52, s52, 24")
    k("s_cmp_ge_u32 s52, 14")
    k(f"s_cbranch_scc1 {CD}")
    k("s_sub_u32 s50, s50, 1")
    k("s_cmp_eq_u32 s50, 0")
    k(f"s_cbranch_scc1 {CD}")
    k(f"buffer_load_dwordx2 v[28:29], off, s[8:11], s{sFL} offset:768 sc1")
    k("s_waitcnt vmcnt(0)")
    k(f"s_branch {CL}")
    k.label(CD)
    nst = getattr(k, "_nst", 0)
    state = (vm.n, wn[0], list(wid), getattr(k, "_seq", 0))

    def rest():
        for r in range(16):
            k(f"v_{'sub' if r & 1 else 'add'}_f32 {v(vA+r)}, {v(vA+r)}, {v(vA+16+r)}")
        for p in range(2):
            for r in range(4):
                k(f"v_permlane16_swap_b32 {v(vA+8*p+r)}, {v(vA+8*p+4+r)}")
        k("s_waitcnt lgkmcnt(0)")
        vH, vHc, vU = 32, 40, 48
        for p in range(2):
            for q in range(4):
                y0, y1 = vA + 8 * p + 2 * q, vA + 8 * p + 2 * q + 1
                k(f"v_lshlrev_b32 {v(vU)}, 16, {v(vX+4*p+q)}")
                k(f"v_and_b32 {v(vU+1)}, 0xffff0000, {v(vX+4*p+q)}")
                k(f"v_add_f32 {v(y0)}, {v(y0)}, {v(vU)}")
                k(f"v_add_f32 {v(y1)}, {v(y1)}, {v(vU+1)}")
                k(f"v_sub_f32 {v(y0+16)}, {v(y0)}, {v(vM+p)}")
                k(f"v_sub_f32 {v(y1+16)}, {v(y1)}, {v(vM+p)}")
                k(f"v_cvt_pk_bf16_f32 {v(vHc+4*p+q)}, {v(y0+16)}, {v(y1+16)}")
            hc_st = store2(f"buffer_store_dwordx4 {v(vHc+4*p,4)}, {v(vL16)}, s[8:11], s{26+p} offen")
        wload(NW[2])
        for p in range(2):
            for q in range(4):
                y0, y1 = vA + 8 * p + 2 * q, vA + 8 * p + 2 * q + 1
                k(f"v_cvt_pk_bf16_f32 {v(vH+4*p+q)}, {v(y0)}, {v(y1)}")
            k(f"ds_write_b128 {v(vXA)}, {v(vH+4*p,4)} offset:{4096*p}")
        for p in range(2):
            k(f"v_mul_f32 {v(vM+p)}, {v(vA+16+8*p)}, {v(vA+16+8*p)}")
        for e in range(1, 8):
            for p in range(2):
                k(f"v_fmac_f32 {v(vM+p)}, {v(vA+16+8*p+e)}, {v(vA+16+8*p+e)}")
        k(f"s_lshl_b32 s26, s{sW}, 8")
        k(f"s_add_u32 s26, s26, {R2}")
        k(f"v_add_u32 v7, s26, {v(vL4)}")
        k(f"v_permlane32_swap_b32 {v(vM)}, {v(vM+1)}")
        k(f"v_add_f32 {v(vM)}, {v(vM)}, {v(vM+1)}")
        k(f"ds_write_b32 v7, {v(vM)}")
        sDG, sDL = 26, 42
        k(f"s_mul_i32 s{sDG}, s{sRB}, 114688")
        k(f"s_add_u32 s{sDG}, s{sDG}, {HC}")
        k(f"s_mul_i32 s{sDL}, s{sW}, 28672")
        k(f"s_and_b32 s28, s{sW}, 1")
        k("s_mul_i32 s28, s28, 57344")
        k(f"s_lshr_b32 s36, s{sW}, 1")
        k(f"s_lshl_b32 s{sDL+1}, s36, 10")
        k(f"s_add_u32 s{sDL+1}, s{sDL+1}, s28")
        k(f"s_add_u32 s27, s{sDG}, s{sDL+1}")
        k(f"s_add_u32 s{sDG}, s{sDG}, s{sDL}")
        k(f"s_sub_u32 s58, s{sDG}, s{sRH}")
        k(f"s_sub_u32 s59, s27, s{sRH}")
        k(f"s_add_u32 s{sDG}, s{sDG}, s{sRH}")
        k(f"s_add_u32 s27, s27, s{sRH}")
        vB1, vBS, vSS, vWL = 6, 7, 8, 11
        k(f"v_add_u32 {v(vB1)}, 57344, {v(vL16)}")
        sSS = 41
        k(f"s_mul_i32 s{sSS}, s{sRT}, 1792")
        k(f"s_add_u32 s{sSS}, s{sSS}, {SSP}")
        k(f"v_add_u32 v7, {R2}, {v(vL4)}")
        k("s_lshl_b32 s36, s36, 8")
        k(f"v_xor_b32 {v(vWL)}, s36, {v(vL16)}")
        sWD = 34
        k(f"s_mul_i32 s28, s{sCT}, {0 if os.environ.get('FAKED') else 112}")
        k(f"s_mul_i32 s36, s{sW}, 28")
        k("s_add_u32 s28, s28, s36")
        k("s_lshl_b32 s28, s28, 11")
        k(f"s_add_u32 s28, s28, {WD}")
        k(f"s_and_b32 s36, s{sW}, 1")
        k("s_lshl_b32 s36, s36, 10")
        k("s_add_u32 s54, s28, s36")
        sHS = 36
        k(f"s_mul_i32 s{sHS}, s{sRB}, {4*112}")
        k(f"s_lshl1_add_u32 s{sHS}, s{sFB}, s{sHS}")
        k(f"s_lshl_b32 s{sHS}, s{sHS}, 10")
        k(f"s_add_u32 s{sHS}, s{sHS}, {HP}")
        sHP = 37
        k(f"s_mul_i32 s{sHP}, s{sRT}, 224")
        k(f"s_mul_i32 s28, s{sW}, 28")
        k(f"s_add_u32 s{sHP}, s{sHP}, s28")
        k(f"s_lshl_b32 s{sHP}, s{sHP}, 10")
        k(f"s_add_u32 s{sHP}, s{sHP}, {HP}")
        k.stamp()
        vm.wait(hc_st, " lgkmcnt(0)")
        k.stamp()
        arrive(0)
        mark0 = poll_issue(0)
        wload(NW[3])
        poll(0, mark0)
        wload(NW[4])
        k.stamp()
        uses = [(kp, b) for kp in range(KS) for b in range(4)]
        uses += [(kp, b) for kp in range(KS, 28) for b in (0, 2)]
        uB = len(uses)
        uses += [(kp, b) for kp in range(KS, 28) for b in (1, 3)]
        first_use = {kp: min(u for u, x in enumerate(uses) if x[0] == kp) for kp in range(28)}
        last_use = {kp: max(u for u, x in enumerate(uses) if x[0] == kp) for kp in range(28)}
        npair = (28 - KS) // 2
        D = []

        def dma():
            i = len(D)
            if i < KS:
                sel, off = 0, i * 1024
            else:
                sel, off = 1, ((i - KS) // npair) * 28672 + (KS + 2 * ((i - KS) % npair)) * 1024
            k(f"s_add_u32 m0, s{sDL+sel}, {off}")
            k(f"s_add_u32 s28, s{(sDG if off % 28672 < 14336 else 58)+sel}, {off}")
            D.append(vm.op(f"buffer_load_dwordx4 {v(vL16)}, s[8:11], s28 offen{LD} lds"))

        wd_regs = [(0, lambda m, i=i: a(224 + 8 * i + 4 * m, 4)) for i in range(4)]
        wd_regs += [(0, lambda m, i=i: v(64 + 8 * i + 4 * m, 4)) for i in range(8)]
        wd_regs += [(last_use[i] + 1, lambda m, i=i: a(8 * i + 4 * m, 4)) for i in range(16)]

        def wdreg(kp, m):
            return wd_regs[kp][1](m)

        wdn = [0]
        wd_id = {}

        def quarter(dst, g, size, base):
            k(f"s_add_u32 s{dst}, s{sRT}, {g}" if ROTD else f"s_mov_b32 s{dst}, {g}")
            k(f"s_and_b32 s{dst}, s{dst}, 3")
            k(f"s_mul_i32 s{dst}, s{dst}, {size}")
            k(f"s_add_u32 s{dst}, s{dst}, s{base}")

        def wdload():
            n = wdn[0]
            wdn[0] += 1
            kp, m = n // 2, n % 2
            if n % 14 == 0:
                quarter(sWD, kp // 7, 14336, 54)
                k(f"s_xor_b32 s{sWD+1}, s{sWD}, 1024")
            wd_id[kp] = vm.op(f"buffer_load_dwordx4 {wdreg(kp,m)}, {v(vWL)}, s[8:11], s{sWD+m} offen offset:{(kp%7%2)*2048}")
            if n % 14 % 4 == 3:
                k(f"s_add_u32 s{sWD}, s{sWD}, 4096")
                k(f"s_add_u32 s{sWD+1}, s{sWD+1}, 4096")

        aQ = 128
        hl = []

        def hload():
            n = len(hl)
            p, kp = n // 28, n % 28
            if n == 28:
                k(f"s_add_u32 s{sHP}, s{sHP}, {112*1024}")
            if kp % 7 == 0:
                quarter(46, kp // 7, 7168, sHP)
            if kp % 7 == 4:
                k("s_add_u32 s46, s46, 4096")
            hl.append(vm.op(f"buffer_load_dwordx4 {a(aQ+4*(n%24),4)}, {v(vL16)}, s[8:11], s46 offen offset:{(kp%7%4)*1024}{LD}"))

        vF, vAcc, LOOK = 32, 128, 4
        accreg = {0: vAcc, 2: vAcc + 32, 1: vAcc + 64, 3: vAcc + 96}

        def rd4(u):
            kp, b = uses[u]
            k(f"ds_read_b128 {v(vF+4*(u%6),4)}, {v(vL16 if b < 2 else vB1)} offset:{(b&1)*28672+kp*1024}")

        last_st = [None]

        def hp_store(b, u):
            if u == 0:
                k(f"s_add_u32 s38, s{sHS}, {b*112*1024}")
            last_st[0] = store2(f"buffer_store_dwordx4 {v(accreg[b]+4*u,4)}, {v(vL16)}, s[8:11], s38 offen offset:{u*1024}")

        def epilogue(ps):
            items = [(b, r) for b in (ps, ps + 2) for r in range(8)]
            out = []
            for i in range(len(items) + 1):
                grp = []
                if i < len(items):
                    b, r = items[i]
                    g_, u_ = accreg[b], accreg[b] + 16
                    grp += [f"v_mul_f32 {v(u_+2*r)}, {v(g_+2*r)}, {v(u_+2*r)}",
                            f"v_mul_f32 {v(u_+2*r+1)}, {v(g_+2*r+1)}, {v(u_+2*r+1)}"]
                if i > 0:
                    b, r = items[i - 1]
                    g_, u_ = accreg[b], accreg[b] + 16
                    grp.append(f"v_cvt_pk_bf16_f32 {v(g_+r)}, {v(u_+2*r)}, {v(u_+2*r+1)}")
                out.append(grp)
                if i > 0 and items[i - 1][1] % 4 == 3:
                    out.append(lambda b=items[i - 1][0], u=items[i - 1][1] // 4: hp_store(b, u))
            return out

        def put(q, cnt=1):
            for _ in range(cnt):
                if q:
                    e = q.pop(0)
                    if callable(e):
                        e()
                    else:
                        for t_ in e:
                            k(t_)

        chunks = eval(os.environ.get("CHUNKS", "{0: 2, 3: 6, 7: 15, 16: 27}"))
        for _ in range(NDMA0):
            dma()
        k("ds_read2st64_b32 v[12:13], v7 offset1:1")
        k("ds_read2st64_b32 v[14:15], v7 offset0:2 offset1:3")
        k(f"s_lshl_b32 s47, s{sCT}, 8")
        k(f"s_add_u32 s47, s47, s{sSS}")
        k("s_waitcnt lgkmcnt(0)")
        k("v_add_f32 v12, v12, v13")
        k("v_add_f32 v14, v14, v15")
        k("v_add_f32 v12, v12, v14")
        store2(f"buffer_store_dword v12, {v(vL4)}, s[8:11], s47 offen")
        vm.wait(D[chunks[0]])
        k("s_barrier")
        k.stamp()
        for u in range(LOOK):
            rd4(u)
        todo = [(i - 30, "d") for i in range(NDMA0, 28)]
        todo += [(first_use[i // 2] - 14 + 0.01 * i, "w") for i in range(wn[0], 56)]
        todo = [o for _, o in sorted(todo)]
        epi = epilogue(0)
        checked = False
        for u in range(112):
            kp, b = uses[u]
            if (u + LOOK) % 4 == 0 and (u + LOOK) // 4 in chunks:
                vm.wait(D[chunks[(u + LOOK) // 4]])
                k("s_barrier")
            if u == first_use[kp] and 2 * kp + 1 >= sum(NW):
                vm.wait(wid[2 * kp + 1])
            if u == uB + DRAIN_A:
                assert not epi
                vm.wait(last_st[0])
                arrive(256)
            if u == uB + POLL_A:
                markA = poll_issue(256)
            if u == uB + CHECK_A:
                poll(256, markA)
                checked = True
            if u % 2 == 0:
                k(f"s_waitcnt lgkmcnt({min(LOOK - 2, 110 - u)})")
            for m in range(2):
                acc = accreg[b] + 16 * m
                c = "0" if kp == 0 else v(acc, 16)
                k(f"v_mfma_f32_32x32x16_bf16 {v(acc,16)}, {a(8*kp+4*m,4)}, {v(vF+4*(u%6),4)}, {c}")
                if m == 0:
                    if u + LOOK < 112:
                        rd4(u + LOOK)
                    if u >= uB + 1:
                        put(epi)
                else:
                    if u >= uB + 1 and EPI_A == 2:
                        put(epi)
                    if todo:
                        dma() if todo.pop(0) == "d" else wload()
                    elif checked and len(hl) < RING and last_use[16 + len(hl) // 2] < u:
                        hload()
                    elif wdn[0] < 56 and wd_regs[wdn[0] // 2][0] <= u:
                        wdload()
            if u in P4ST:
                k.stamp(1)
            if u == uB - 1 or u == 111:
                k.stamp()
        assert len(D) == 28 and wn[0] == 56
        print("after P4: down loads issued", wdn[0], "h loads", len(hl), file=sys.stderr)
        if not checked:
            poll(256, markA)
        vRW, vRR, vR2, vFW, vFR, vSP = 12, 15, 16, 20, 24, 56
        vAc5, vT5 = 128, 192
        fill = epilogue(1)
        while fill:
            put(fill, 3)
            if len(hl) < 8:
                hload()
        fill2 = []
        for sg in range(1, 4):
            fill2.append([f"s_xor_b32 s26, s{sW}, {sg}", "s_mul_i32 s26, s26, 6144", f"s_add_u32 s26, s26, {(sg-1)*2048}",
                         f"v_add_u32 {v(vRW+sg-1)}, s26, {v(vL16)}"])
        fill2.append([f"s_mul_i32 s26, s{sW}, 6144", f"v_add_u32 {v(vRR)}, s26, {v(vL16)}", "v_and_b32 v6, 31, v1",
                     "v_lshrrev_b32 v7, 5, v1", "v_lshlrev_b32 v7, 2, v7"])
        fill2.append(["v_bfe_u32 v8, v1, 1, 3", "v_xor_b32 v7, v7, v8", "v_lshlrev_b32 v8, 7, v6", "v_lshl_add_u32 v7, v7, 4, v8"])
        fill2.append([f"s_and_b32 s26, s{sW}, 1", f"s_lshr_b32 s27, s{sW}, 1", "s_lshl1_add_u32 s26, s26, s27",
                     f"s_lshl2_add_u32 s26, s26, {FF}", f"v_add_u32 {v(vFW)}, s26, v7"])
        fill2.append([f"v_xor_b32 {v(vFW+q)}, {16*q}, {v(vFW)}" for q in range(1, 4)])
        fill2.append([f"s_lshl_b32 s26, s{sW}, 10", f"v_add_u32 {v(vFR)}, s26, {v(vL16)}",
                     f"v_add_u32 {v(vFR+1)}, {XT}, {v(vFR)}", f"v_add_u32 {v(vFR)}, {FF}, {v(vFR)}"])
        r2calc = [[f"v_add_f32 {v(vSP)}, {v(vSP)}, {v(vSP+1)}", f"v_add_f32 {v(vSP+2)}, {v(vSP+2)}, {v(vSP+3)}",
                   f"v_add_f32 {v(vSP+4)}, {v(vSP+4)}, {v(vSP+5)}", f"v_add_f32 {v(vSP)}, {v(vSP)}, {v(vSP+6)}"],
                  [f"v_add_f32 {v(vSP+2)}, {v(vSP+2)}, {v(vSP+4)}", f"v_mov_b32 {v(vSP+1)}, {f2u(EPS)}",
                   f"v_add_f32 {v(vSP)}, {v(vSP)}, {v(vSP+2)}", f"v_fmac_f32 {v(vSP+1)}, {f2u(1.0/448)}, {v(vSP)}"],
                  [f"v_rcp_f32 {v(vR2)}, {v(vSP+1)}", f"v_rcp_f32 {v(vR2+1)}, {v(vSP+1)}"],
                  [f"v_permlane32_swap_b32 {v(vR2)}, {v(vR2+1)}"]]

        def reduce_out(p):
            base = vAc5 + 32 * p
            rb_ = p * 24576
            q_ = []
            for sg in range(1, 4):
                for z in range(2):
                    q_.append([f"ds_write_b128 {v(vRW+sg-1)}, {v(base+16*(sg&1)+8*(sg>>1)+4*z,4)} offset:{rb_+z*1024}"])
            q_.append([f"ds_read_b128 {v(vT5+24,4)}, {v(vFR+1)} offset:{p*4096}"])
            q_.append(["s_waitcnt lgkmcnt(0)", "s_barrier"] +
                      [f"ds_read_b128 {v(vT5+4*z,4)}, {v(vRR)} offset:{rb_+z*1024}" for z in range(2)])
            q_.append([f"ds_read_b128 {v(vT5+8*j+4*z,4)}, {v(vRR)} offset:{rb_+j*2048+z*1024}" for j in (1, 2) for z in range(2)])
            for h2 in range(2):
                q_.append([t_ for q in (2 * h2, 2 * h2 + 1) for t_ in
                           (f"v_lshlrev_b32 {v(vT5+32+q)}, 16, {v(vT5+24+q)}", f"v_and_b32 {v(vT5+24+q)}, 0xffff0000, {v(vT5+24+q)}")])
            for j in range(3):
                for h2 in range(2):
                    q_.append(([f"s_waitcnt lgkmcnt({4-2*j})"] if h2 == 0 else []) +
                              [f"v_add_f32 {v(base+r)}, {v(base+r)}, {v(vT5+8*j+r)}" for r in range(4 * h2, 4 * h2 + 4)])
            for q in range(4):
                q_.append([f"v_mul_f32 {v(base+q)}, {v(base+q)}, {v(vR2+p)}", f"v_mul_f32 {v(base+4+q)}, {v(base+4+q)}, {v(vR2+p)}",
                           f"v_cvt_pk_bf16_f32 {v(vT5+q)}, {v(base+q)}, {v(base+4+q)}",
                           f"ds_write_b32 {v(vFW+q)}, {v(vT5+q)} offset:{p*4096}"])
            q_.append(["s_waitcnt lgkmcnt(0)", "s_barrier", f"ds_read_b128 {v(vT5+28,4)}, {v(vFR)} offset:{p*4096}"])
            q_.append([])
            for q in range(4):
                f_, h_ = vT5 + 28 + q, vT5 + 24 + q
                q_.append((["s_waitcnt lgkmcnt(0)"] if q == 0 else []) +
                          [f"v_lshlrev_b32 {v(vT5+12)}, 16, {v(f_)}", f"v_and_b32 {v(f_)}, 0xffff0000, {v(f_)}",
                           f"v_add_f32 {v(vT5+12)}, {v(vT5+12)}, {v(vT5+32+q)}", f"v_add_f32 {v(f_)}, {v(f_)}, {v(h_)}",
                           f"v_cvt_pk_bf16_f32 {v(f_)}, {v(vT5+12)}, {v(f_)}"])
            q_.append(lambda: vm.op(f"buffer_store_dwordx4 {v(vT5+28,4)}, {v(vXO)}, s[16:19], s{sXO+p} offen{SC}"))
            return q_

        ssl = []

        def ssload(i):
            for j in range(2 * i, min(2 * i + 2, 7)):
                ssl.append(vm.op(f"buffer_load_dword {v(vSP+j)}, {v(vL4)}, s[8:11], s{sSS} offen offset:{256*j}{LD}"))

        fill = fill2 + [lambda i=i: ssload(i) for i in range(4)]
        if P5ST:
            k.stamp(1)
        for n in range(56):
            p, kp = n // 28, n % 28
            if n == DRAIN_B:
                vm.wait(last_st[0])
                arrive(512)
            if n == POLL_B:
                markB = poll_issue(512)
            if n == CHECK_B:
                k.stamp()
                poll(512, markB)
                k.stamp()
            if n == 24:
                vm.wait(ssl[6])
                fill += r2calc
            if n == 29:
                assert not fill
                fill = reduce_out(0)
            vm.wait(max(hl[n], wd_id[kp]))
            for dl in range(2):
                acc = vAc5 + 32 * p + 16 * dl
                c = "0" if kp == 0 else v(acc, 16)
                k(f"v_mfma_f32_32x32x16_bf16 {v(acc,16)}, {wdreg(kp,dl)}, {a(aQ+4*(n%24),4)}, {c}")
                if dl == 1 and wdn[0] < 56:
                    wdload()
                if dl == 0:
                    if len(hl) < (28 if n < CHECK_B else 56) and len(hl) < n + 24:
                        hload()
                    else:
                        put(fill)
                if dl == 1:
                    put(fill)
            if n in P5ST:
                k.stamp(1)
        k.stamp()
        put(fill, 99)
        put(reduce_out(1), 99)
        if k.prof:
            k("s_waitcnt vmcnt(0)")
        k.stamp_flush(6, PROF + (2 << 20), sW, nst)
        k("s_endpgm")

    SLOWL = k.lab("slow")
    k(f"s_branch {SLOWL}")
    k.label(FAST)
    mode[0] = ""
    rest()
    k.label("k3_code_end")
    k.label(SLOWL)
    mode[0] = " sc1"
    vm.n, wn[0], wid[:], k._seq = state
    rest()
    k.label(END)
    k("s_endpgm")
    for o in outline:
        k(o)
    if SPARE:
        k.label(PFL)
        k(f"s_cmp_ge_u32 s2, {K3_WGS}")
        k(f"s_cbranch_scc1 {END}")
        k("s_load_dwordx2 s[6:7], s[0:1], 72")
        k("v_lshrrev_b32 v2, 6, v0")
        k("v_and_b32 v1, 63, v0")
        k("v_readfirstlane_b32 s20, v2")
        k("v_lshlrev_b32 v3, 7, v1")
        k("s_bfe_u32 s21, s2, 0x20003")
        k("s_lshl2_add_u32 s21, s21, s20")
        k("s_waitcnt lgkmcnt(0)")
        k.srd_off(8, 6, WSB, WS_BYTES)
        n = 0
        for base, nsl, units in ((WS, 56, SP_WS), (WD, 28, range(7))):
            for un in units:
                for i in range(-(-nsl // 16)):
                    k(f"s_add_u32 s22, s21, {16*i}")
                    k(f"s_min_u32 s22, s22, {nsl-1}")
                    k("s_mul_i32 s22, s22, 57344")
                    k(f"s_add_u32 s22, s22, {base + un*8192}")
                    k(f"buffer_load_dword v{8+n}, v3, s[8:11], s22 offen")
                    n += 1
        if WBL:
            k("s_cmp_lg_u32 s21, 0")
            k(f"s_cbranch_scc1 {END}")
            k("v_lshlrev_b32 v3, 2, v1")
            k("v_min_u32 v3, 220, v3")
            k("s_and_b32 s22, s2, 7")
            k("s_lshl_b32 s22, s22, 11")
            k(f"s_add_u32 s22, s22, {FL}")
            k(f"s_mov_b32 s23, {SPIN_MAX}")
            for off in WBL:
                lp, dn_ = k.lab("wl"), k.lab("wd")
                k.label(lp)
                k(f"buffer_load_dword v4, v3, s[8:11], s22 offen offset:{off} sc1")
                k(f"buffer_load_dword v5, v3, s[8:11], s22 offen offset:{off+1024} sc1")
                k("s_sub_u32 s23, s23, 1")
                k("s_waitcnt vmcnt(0)")
                k("s_cmp_eq_u32 s23, 0")
                k(f"s_cbranch_scc1 {END}")
                k("v_and_b32 v4, v4, v5")
                k("v_cmp_eq_u32 vcc, 0, v4")
                k("s_sleep 2")
                k(f"s_cbranch_vccnz {lp}")
                k("buffer_wbl2 sc1")
                k("s_waitcnt vmcnt(0)")
        k("s_endpgm")
    return k
```

```python
import sys, os
os.environ["NOCHK"] = "1"; os.environ.setdefault("STAMPSET", "range(99)")
from gen import *
Kern.prof = True
def tail(specs):
    k = Kern("t_kernel", 0, 0)
    k.prof = False
    E = k.lab("e")
    k("s_cmp_lg_u32 s2, 0"); k(f"s_cbranch_scc1 {E}")
    k("s_memrealtime s[8:9]"); k("s_load_dwordx4 s[4:7], s[0:1], 64"); k("s_waitcnt lgkmcnt(0)")
    k.srd_off(12, 6, PROF, 4 << 20)
    k.srd(16, 4, 256)
    k("v_mul_u32_u24 v1, 1536, v0"); k("v_add_u32 v1, 640, v1")
    for n, (ka, i, kb, j) in enumerate(specs):
        k(f"s_mov_b32 s20, {ka << 20}"); k(f"s_mov_b32 s21, {kb << 20}")
        k(f"buffer_load_dword v2, v1, s[12:15], s20 offen offset:{4*i} sc1")
        k(f"buffer_load_dword v3, v1, s[12:15], s21 offen offset:{4*max(j,0)} sc1")
        k("s_waitcnt vmcnt(0)")
        if j < 0: k("v_mov_b32 v3, s8")
        k("v_sub_u32 v2, v3, v2")
        k(f"buffer_atomic_add v2, off, s[16:19], 0 offset:{4*n} sc1"); k("s_waitcnt vmcnt(0)")
    k.label(E); k("s_endpgm")
    return k
mode = sys.argv[2] if len(sys.argv) > 2 else "k3"
if mode == "k3":
    specs = [(0, 0, 1, 0), (1, 0, 2, 0)] + [(2, i, 2, i + 1) for i in range(13)] + [(2, 13, 0, -1)]
elif mode == "seq":
    specs = [(2, i, 2, i + 1) for i in range(15)] + [(2, 15, 0, -1)]
else:
    specs = [(0, i, 0, i + 1) for i in range(8)] + [(0, 8, 1, 0)] + [(1, i, 1, i + 1) for i in (0, 1, 2)] + [(1, 3, 1, 5), (1, 5, 1, 6), (1, 6, 1, 7), (1, 7, 2, 0)]
ks = kernel_list()
ks.append((tail(specs), 1, 64, 0))
open(sys.argv[1], "w").write(build(ks))
```

```python
import os
import sys
from asmlib import Kern, v, a, s
from gen import *

XT = 114688
R2 = 122880
FF = 65536
K3_LDS = 123904
SPIN_MAX = 1 << 18
E = lambda n, d: int(os.environ.get(n, d))
NW = [int(x) for x in os.environ.get("NW", "8,8,0,8,0").split(",")]
KS = E("KS", 8)
EPI_A = E("EPI_A", 2)
DRAIN_A = E("DRAIN_A", 22)
POLL_A = E("POLL_A", 31)
CHECK_A = E("CHECK_A", 37)
DRAIN_B = E("DRAIN_B", 10)
POLL_B = E("POLL_B", 17)
CHECK_B = E("CHECK_B", 22)
NDMA0 = E("NDMA0", 7)
ROTB = E("ROTB", 1)
ROTW = E("ROTW", 0)
ROTD = E("ROTD", 0)
SPARE = E("SPARE", 1)
TOUCH = E("TOUCH", 0)
SP_WS = eval(os.environ.get("SP_WS", "(2,3,4,5,6)"))
WBL = eval(os.environ.get("WBL", "(0, 256, 3072)"))
LATE = E("LATE", 46)
RING = E("RING", 12)
LD = os.environ.get("LD", "")
P4ST = eval(os.environ.get("P4ST", "()"))
P5ST = eval(os.environ.get("P5ST", "()"))
K3_WGS = 256 if SPARE else 224
SSP = 0x1502000


class VM:
    def __init__(self, k):
        self.k, self.n = k, 0

    def op(self, text):
        self.k(text)
        self.n += 1
        return self.n - 1

    def wait(self, idx, extra=""):
        self.k(f"s_waitcnt vmcnt({self.n - idx - 1}){extra}")


def gen_k3():
    k = Kern("k3_kernel", 0, 0)
    vm = VM(k)
    END = k.lab("end")
    sW, sRB, sCT, sHALF, sRT, sFB = 20, 21, 22, 23, 24, 25
    sFL, sFI, sXC = 33, 39, 40
    vL4, vOne, vLP = 30, 2, 0

    mode = [""]

    def store2(text):
        return vm.op(text + mode[0])

    def arrive(off):
        vm.op(f"buffer_store_dword {v(vOne)}, off, s[8:11], s{sFI} offset:{off}{mode[0]}")

    def poll_issue(off):
        return vm.op(f"buffer_load_dword v31, {v(vLP)}, s[8:11], s{sFL} offen offset:{off} sc1")

    outline = []

    def poll(off, mark):
        loop, done = k.lab("poll"), k.lab("done")
        vm.wait(mark)
        k("v_cmp_eq_u32 vcc, 0, v31")
        k(f"s_mov_b32 s50, {SPIN_MAX}")
        k(f"s_cbranch_vccnz {loop}")
        k.label(done)
        outline.append(f"""{loop}:
        buffer_load_dword v31, {v(vLP)}, s[8:11], s{sFL} offen offset:{off} sc1
        s_sub_u32 s50, s50, 1
        s_waitcnt vmcnt(0)
        s_cmp_eq_u32 s50, 0
        s_cbranch_scc1 {done}
        v_cmp_eq_u32 vcc, 0, v31
        s_nop 0
        s_cbranch_vccnz {loop}
        s_branch {done}""")

    PFL = k.lab("pf")
    k("s_cmp_ge_u32 s2, 224")
    k(f"s_cbranch_scc1 {PFL if SPARE else END}")
    k.stamp()
    k("s_load_dwordx2 s[6:7], s[0:1], 72")
    k("s_load_dwordx2 s[4:5], s[0:1], 0")
    k("s_load_dwordx2 s[44:45], s[0:1], 56")
    k("v_lshrrev_b32 v2, 6, v0")
    k("v_and_b32 v1, 63, v0")
    k(f"v_readfirstlane_b32 s{sW}, v2")
    k("s_lshr_b32 s26, s2, 3")
    div7(k, 27, 26)
    if os.environ.get("MAP", "A") == "A":
        k("s_and_b32 s28, s2, 7")
        k(f"s_lshl2_add_u32 s{sRT}, s28, s27")
        k(f"s_and_b32 s{sHALF}, s27, 1")
        k(f"s_lshr_b32 s{sRB}, s{sRT}, 1")
    else:
        k("s_bfe_u32 s28, s2, 0x20001")
        k(f"s_lshl2_add_u32 s{sRB}, s28, s27")
        k(f"s_and_b32 s{sHALF}, s2, 1")
        k(f"s_lshl1_add_u32 s{sRT}, s{sRB}, s{sHALF}")
    k("s_mul_i32 s28, s27, 7")
    k(f"s_sub_u32 s{sCT}, s26, s28")
    vL16, vG, vC = 3, 4, 5
    k(f"v_lshrrev_b32 {v(vG)}, 4, v1")
    k(f"v_and_b32 v6, 1, {v(vG)}")
    k(f"s_and_b32 s29, s{sW}, 1")
    k("s_lshl_b32 s29, s29, 2")
    k("v_lshl_or_b32 v6, v6, 1, s29")
    k("v_and_b32 v7, 7, v1")
    k("v_xor_b32 v6, v6, v7")
    k("v_lshrrev_b32 v8, 3, v1")
    k("v_lshlrev_b32 v9, 12, v8")
    k("v_lshl_add_u32 v6, v6, 4, v9")
    k(f"s_lshl_b32 s28, s{sW}, 15")
    k(f"s_lshl_b32 s27, s{sRT}, 7")
    k("s_add_u32 s26, s28, s27")
    k(f"s_add_u32 s26, s26, {BT}")
    k("s_sub_u32 s48, s27, s28")
    k(f"s_add_u32 s48, s48, {BT + 438*4096}")
    k(f"s_lshl_b32 s27, s{sW}, 10")
    k(f"s_bitcmp1_b32 s{sCT}, 0") if ROTB else k("s_cmp_lg_u32 0, 0")
    k("s_cselect_b32 s49, s26, s48")
    k("s_cselect_b32 s26, s48, s26")
    k("s_cselect_b32 s48, 0xfffe0000, 0x20000".replace("0xfffe0000, 0x20000", "s48, s48")) if False else None
    k("s_cselect_b32 s51, 0x6000, 0")
    k("s_cselect_b32 s52, 28672, 0")
    k("s_mov_b32 s48, 0x20000")
    k("s_cselect_b32 s48, 0xfffe0000, s48")
    k("v_xor_b32 v6, s51, v6")
    k("s_add_u32 m0, s27, s52")
    k("s_waitcnt lgkmcnt(0)")
    k.srd_off(8, 6, WSB, WS_BYTES)
    saved, k.lines = k.lines, []
    k(f"v_and_b32 {v(vC)}, 15, v1")
    vGm = 32
    vB, vST, vE, vT = 14, 15, 15, 20
    k(f"s_lshl_b32 s46, s{sCT}, 6")
    k(f"s_lshl_b32 s47, s{sW}, 4")
    k("s_add_u32 s46, s46, s47")
    k(f"v_add_u32 v27, s46, {v(vC)}")
    k("v_cvt_f32_u32 v27, v27")
    for p in range(1, 4):
        k(f"v_mul_f32 {v(vE+p)}, {f2u(p/448.0)}, v27")
    k(f"v_mul_f32 {v(vST)}, {f2u(16.0/448)}, v27")
    k(f"v_fract_f32 {v(vST)}, {v(vST)}")
    k(f"v_lshl_add_u32 v19, {v(vG)}, 2, 1")
    k("v_cvt_f32_u32 v19, v19")
    k(f"v_mul_f32 {v(vB)}, v19, {v(vE+1)}")
    k(f"v_fract_f32 {v(vB)}, {v(vB)}")
    for t in range(7):
        k(f"v_cos_f32 {v(vT+4)}, {v(vB)}")
        k(f"v_sin_f32 {v(vT)}, {v(vB)}")
        for p in range(1, 4):
            k(f"v_add_f32 {v(vT+p)}, {v(vB)}, {v(vE+p)}")
        if t < 6:
            k(f"v_add_f32 {v(vB)}, {v(vB)}, {v(vST)}")
            k(f"v_fract_f32 {v(vB)}, {v(vB)}")
        for p in range(1, 4):
            k(f"v_cos_f32 {v(vT+4+p)}, {v(vT+p)}")
            k(f"v_sin_f32 {v(vT+p)}, {v(vT+p)}")
        for p in range(4):
            k(f"v_cvt_pk_bf16_f32 {v(vGm+4*t+p)}, {v(vT+4+p)}, -{v(vT+p)}")
    gen_lines, k.lines = k.lines, []
    def nyq(first):
        k(f"s_cmp_eq_u32 s{sW}, 3")
        k(f"s_cselect_b32 s28, {224*4096 >> 6}, 0")
        k("s_cmp_lg_u32 s51, 0" if first else "s_cmp_eq_u32 s51, 0")
        k("s_cselect_b32 s28, s28, 0")
        k("v_add_u32 v9, 16, v1")
        k("v_and_b32 v9, 64, v9")
        k("v_mad_u32_u24 v9, v9, s28, v6")

    for hf in range(2):
        for t in range(7):
            if t == 6:
                nyq(hf == 0)
            vm.op(f"buffer_load_dwordx4 v{9 if t == 6 else 6}, s[8:11], s{26 if hf == 0 else 49} offen lds")
            if t < 6:
                k("s_add_u32 m0, m0, 4096")
                k("s_add_u32 s26, s26, s48" if hf == 0 else "s_sub_u32 s49, s49, s48")
        if hf == 0:
            k("s_sub_u32 s52, 28672, s52")
            k("s_add_u32 m0, s27, s52")
            k("v_xor_b32 v6, 0x6000, v6")
    vXO = 10
    k.srd(12, 4, XB)
    k("v_lshrrev_b32 v9, 5, v1")
    k("v_and_b32 v8, 3, v8")
    k("v_lshl_add_u32 v8, v9, 4, v8")
    k("v_mul_u32_u24 v8, 0x380, v8")
    k(f"v_xor_b32 v7, v7, {v(vG)}")
    k("v_xor_b32 v7, s29, v7")
    k(f"v_lshl_add_u32 {v(vXO)}, v7, 4, v8")
    sSB, sXO = 29, 30
    k(f"s_lshr_b32 s26, s{sRT}, 3")
    k("s_lshl_b32 s26, s26, 9")
    k(f"s_lshl_b32 s28, s{sHALF}, 8")
    k("s_add_u32 s26, s26, s28")
    k(f"s_and_b32 s28, s{sRB}, 3")
    k(f"s_lshl2_add_u32 s{sSB}, s28, s26")
    k(f"s_lshl_b32 s26, s{sW}, 5")
    k(f"s_add_u32 s26, s26, s{sSB}")
    k("s_mul_i32 s26, s26, 896")
    k(f"s_lshl_b32 s28, s{sCT}, 7")
    k(f"s_add_u32 s{sXO}, s26, s28")
    k(f"s_add_u32 s{sXO+1}, s{sXO}, {128*896}")
    k(f"s_add_u32 m0, s27, {XT}")
    vm.op(f"buffer_load_dwordx4 {v(vXO)}, s[12:15], s{sXO} offen lds")
    k(f"s_add_u32 m0, s27, {XT+4096}")
    vm.op(f"buffer_load_dwordx4 {v(vXO)}, s[12:15], s{sXO+1} offen lds")
    vM = 12
    k("v_bfe_u32 v7, v1, 3, 2")
    k("v_bfe_u32 v8, v1, 2, 1")
    k("v_lshlrev_b32 v8, 4, v8")
    k("v_lshl_add_u32 v7, v7, 5, v8")
    k("v_and_b32 v8, 3, v1")
    k("v_add_lshl_u32 v7, v7, v8, 2")
    k(f"s_lshl_b32 s26, s{sSB}, 2")
    k(f"s_add_u32 s26, s26, {M1}")
    vm.op(f"buffer_load_dword {v(vM)}, v7, s[8:11], s26 offen")
    p3_loads = vm.op(f"buffer_load_dword {v(vM+1)}, v7, s[8:11], s26 offen offset:512")
    k(f"s_lshl_b32 s{sFL}, s{sRB}, 10")
    k(f"s_add_u32 s{sFL}, s{sFL}, {FL}")
    k(f"s_getreg_b32 s{sXC}, hwreg(HW_REG_XCC_ID, 0, 4)")
    NOC = k.lab("noc")
    k(f"s_cmp_lg_u32 s{sW}, 0")
    k(f"s_cbranch_scc1 {NOC}")
    k(f"s_lshl_b32 s26, s{sXC}, 2")
    k("s_lshl_b32 s26, 1, s26")
    k(f"s_lshr_b32 s28, s{sXC}, 3")
    k(f"s_lshl2_add_u32 s28, s28, s{sFL}")
    k("s_mov_b64 exec, 1")
    k("v_mov_b32 v31, s26")
    k("buffer_atomic_add v31, off, s[8:11], s28 offset:768 sc1")
    k("s_mov_b64 exec, -1")
    k.label(NOC)
    k.stamp()
    k(f"v_lshlrev_b32 {v(vL16)}, 4, v1")
    k(f"v_lshlrev_b32 {v(vL4)}, 2, v1")
    k(f"v_mov_b32 {v(vOne)}, 1")
    k(f"s_mul_i32 s28, s{sHALF}, 7")
    k(f"s_add_u32 s28, s28, s{sCT}")
    k(f"s_lshl2_add_u32 s{sFB}, s28, s{sW}")
    k(f"s_lshl2_add_u32 s{sFI}, s{sFB}, s{sFL}")
    k(f"v_min_u32 {v(vLP)}, 220, {v(vL4)}")
    sWS = 32
    k(f"s_mul_i32 s{sWS}, s{sW if os.environ.get('FAKEW') else sFB}, 57344")
    k(f"s_add_u32 s{sWS}, s{sWS}, {WS}")
    sRH = 56
    k(f"s_and_b32 s{sRH}, s{sRB}, {ROTW}")
    k(f"s_mul_i32 s{sRH}, s{sRH}, 14336")
    k(f"s_lshl1_add_u32 s{sWS}, s{sRH}, s{sWS}")
    wn = [0]
    wid = []

    def wload(cnt=1):
        for _ in range(cnt):
            n = wn[0]
            wn[0] += 1
            wid.append(vm.op(f"buffer_load_dwordx4 {a(4*n,4)}, {v(vL16)}, s[8:11], s{sWS} offen offset:{(n%4)*1024}"))
            if n % 4 == 3:
                k(f"s_add_u32 s{sWS}, s{sWS}, 4096")
            if n == 27:
                k(f"s_lshl_b32 s57, s{sRH}, 2")
                k(f"s_sub_u32 s{sWS}, s{sWS}, s57")

    k.srd(16, 44, XB)
    load_lines, k.lines = k.lines, saved
    per = -(-len(gen_lines) // 15)
    branchy = False
    for t_ in load_lines:
        k(t_)
        if t_.startswith("buffer_load") and gen_lines:
            for _ in range(min(per, len(gen_lines))):
                k(gen_lines.pop(0))
    for t_ in gen_lines:
        k(t_)
    vTB = 14
    k("v_bfe_u32 v7, v1, 2, 2")
    k(f"v_lshlrev_b32 v8, 10, {v(vG)}")
    k("v_lshl_add_u32 v8, v7, 7, v8")
    k("v_and_b32 v9, 3, v1")
    k("v_lshl_add_u32 v8, v9, 3, v8")
    k("v_lshrrev_b32 v7, 1, v7")
    k(f"v_and_b32 v9, 1, {v(vG)}")
    k("v_lshl_add_u32 v7, v9, 1, v7")
    k(f"v_lshl_add_u32 {v(vTB)}, v7, 5, v8")
    for nb in range(1, 4):
        k(f"v_xor_b32 {v(vTB+nb)}, {32*nb}, {v(vTB)}")
    vXA = 18
    k("v_lshrrev_b32 v7, 5, v1")
    k(f"s_lshl_b32 s26, s{sW}, 1")
    k("v_or_b32 v7, s26, v7")
    k("v_bfe_u32 v8, v1, 1, 3")
    k("v_xor_b32 v7, v7, v8")
    k("v_and_b32 v8, 31, v1")
    k("v_lshlrev_b32 v8, 7, v8")
    k("v_lshl_add_u32 v7, v7, 4, v8")
    k(f"v_add_u32 {v(vXA)}, {XT}, v7")
    k.stamp()
    if TOUCH:
        k(f"s_and_b32 s57, s{sRB}, 1")
        k("s_lshl_b32 s57, s57, 13")
        k(f"s_add_u32 s57, s57, s{sWS}")
        k("s_add_u32 s57, s57, 16384")
        k("v_lshlrev_b32 v62, 7, v1")
        wload(NW[0])
        vm.op("buffer_load_dword v63, v62, s[8:11], s57 offen")
    else:
        wload(NW[0])
    vm.wait(p3_loads)
    k("s_barrier")
    census = vm.op(f"buffer_load_dwordx2 v[28:29], off, s[8:11], s{sFL} offset:768 sc1")
    k.stamp()
    vR, vA = 88, 120
    seq = [(t, nb) for t in range(14) for nb in range(4)]

    def rd(n):
        t, nb = seq[n]
        for u in range(2):
            k(f"ds_read_b64_tr_b16 {v(vR+4*(n%8)+2*u,2)}, {v(vTB+nb)} offset:{t*4096+u*512}")

    DEPTH = 6
    for n in range(DEPTH):
        rd(n)
    done_in = 0
    for n in range(56):
        t, nb = seq[n]
        k(f"s_waitcnt lgkmcnt({2*min(DEPTH-1, 55-n)})")
        acc = vA + 16 * (t // 7) + 4 * nb
        c = "0" if t % 7 == 0 else v(acc, 4)
        k(f"v_mfma_f32_16x16x32_bf16 {v(acc,4)}, {v(vGm+4*(t%7),4)}, {v(vR+4*(n%8),4)}, {c}")
        if n == 32:
            k("s_mov_b32 exec_lo, 0")
            k("s_mov_b32 exec_hi, 0xffff0000")
            k(f"v_mov_b32 {v(vGm+27)}, 0x3f80")
            k("s_mov_b64 exec, -1")
        if n + DEPTH < 56:
            rd(n + DEPTH)
        if (n + 1) * NW[1] // 56 > done_in:
            wload()
            done_in += 1
    vX = 20
    k(f"ds_read_b128 {v(vX,4)}, {v(vXA)}")
    k(f"ds_read_b128 {v(vX+4,4)}, {v(vXA)} offset:4096")
    k(f"s_mul_i32 s26, s{sRT}, 56")
    k(f"s_lshl2_add_u32 s27, s{sCT}, s{sW}")
    k("s_add_u32 s26, s26, s27")
    k("s_lshl_b32 s26, s26, 10")
    k(f"s_add_u32 s26, s26, {HC}")
    k(f"s_add_u32 s27, s26, {28*1024}")
    CL, CD, FAST = k.lab("cl"), k.lab("cd"), k.lab("fast")
    k(f"s_mov_b32 s50, {SPIN_MAX}")
    vm.wait(census)
    k.label(CL)
    k("v_readfirstlane_b32 s52, v28")
    k("v_readfirstlane_b32 s53, v29")
    k(f"s_cmp_ge_u32 s{sXC}, 8")
    k("s_cselect_b32 s54, s53, s52")
    k(f"s_lshl_b32 s55, s{sXC}, 2")
    k("s_lshr_b32 s54, s54, s55")
    k("s_and_b32 s54, s54, 15")
    k(f"s_cmp_eq_u32 s54, {14 if not os.environ.get('SLOW') else 15}")
    k(f"s_cbranch_scc1 {FAST}")
    for r in (52, 53):
        k(f"s_lshr_b32 s54, s{r}, 4")
        k("s_and_b32 s54, s54, 0x0f0f0f0f")
        k(f"s_and_b32 s{r}, s{r}, 0x0f0f0f0f")
        k(f"s_add_u32 s{r}, s{r}, s54")
    k("s_add_u32 s52, s52, s53")
    k("s_mul_i32 s52, s52, 0x01010101")
    k("s_lshr_b32 s52, s52, 24")
    k("s_cmp_ge_u32 s52, 14")
    k(f"s_cbranch_scc1 {CD}")
    k("s_sub_u32 s50, s50, 1")
    k("s_cmp_eq_u32 s50, 0")
    k(f"s_cbranch_scc1 {CD}")
    k(f"buffer_load_dwordx2 v[28:29], off, s[8:11], s{sFL} offset:768 sc1")
    k("s_waitcnt vmcnt(0)")
    k(f"s_branch {CL}")
    k.label(CD)
    nst = getattr(k, "_nst", 0)
    state = (vm.n, wn[0], list(wid), getattr(k, "_seq", 0))

    def rest():
        for r in range(16):
            k(f"v_{'sub' if r & 1 else 'add'}_f32 {v(vA+r)}, {v(vA+r)}, {v(vA+16+r)}")
        for p in range(2):
            for r in range(4):
                k(f"v_permlane16_swap_b32 {v(vA+8*p+r)}, {v(vA+8*p+4+r)}")
        k("s_waitcnt lgkmcnt(0)")
        vH, vHc, vU = 32, 40, 48
        for p in range(2):
            for q in range(4):
                y0, y1 = vA + 8 * p + 2 * q, vA + 8 * p + 2 * q + 1
                k(f"v_lshlrev_b32 {v(vU)}, 16, {v(vX+4*p+q)}")
                k(f"v_and_b32 {v(vU+1)}, 0xffff0000, {v(vX+4*p+q)}")
                k(f"v_add_f32 {v(y0)}, {v(y0)}, {v(vU)}")
                k(f"v_add_f32 {v(y1)}, {v(y1)}, {v(vU+1)}")
                k(f"v_sub_f32 {v(y0+16)}, {v(y0)}, {v(vM+p)}")
                k(f"v_sub_f32 {v(y1+16)}, {v(y1)}, {v(vM+p)}")
                k(f"v_cvt_pk_bf16_f32 {v(vHc+4*p+q)}, {v(y0+16)}, {v(y1+16)}")
            hc_st = store2(f"buffer_store_dwordx4 {v(vHc+4*p,4)}, {v(vL16)}, s[8:11], s{26+p} offen")
        wload(NW[2])
        for p in range(2):
            for q in range(4):
                y0, y1 = vA + 8 * p + 2 * q, vA + 8 * p + 2 * q + 1
                k(f"v_cvt_pk_bf16_f32 {v(vH+4*p+q)}, {v(y0)}, {v(y1)}")
            k(f"ds_write_b128 {v(vXA)}, {v(vH+4*p,4)} offset:{4096*p}")
        for p in range(2):
            k(f"v_mul_f32 {v(vM+p)}, {v(vA+16+8*p)}, {v(vA+16+8*p)}")
        for e in range(1, 8):
            for p in range(2):
                k(f"v_fmac_f32 {v(vM+p)}, {v(vA+16+8*p+e)}, {v(vA+16+8*p+e)}")
        k(f"s_lshl_b32 s26, s{sW}, 8")
        k(f"s_add_u32 s26, s26, {R2}")
        k(f"v_add_u32 v7, s26, {v(vL4)}")
        k(f"v_permlane32_swap_b32 {v(vM)}, {v(vM+1)}")
        k(f"v_add_f32 {v(vM)}, {v(vM)}, {v(vM+1)}")
        k(f"ds_write_b32 v7, {v(vM)}")
        sDG, sDL = 26, 42
        k(f"s_mul_i32 s{sDG}, s{sRB}, 114688")
        k(f"s_add_u32 s{sDG}, s{sDG}, {HC}")
        k(f"s_mul_i32 s{sDL}, s{sW}, 28672")
        k(f"s_and_b32 s28, s{sW}, 1")
        k("s_mul_i32 s28, s28, 57344")
        k(f"s_lshr_b32 s36, s{sW}, 1")
        k(f"s_lshl_b32 s{sDL+1}, s36, 10")
        k(f"s_add_u32 s{sDL+1}, s{sDL+1}, s28")
        k(f"s_add_u32 s27, s{sDG}, s{sDL+1}")
        k(f"s_add_u32 s{sDG}, s{sDG}, s{sDL}")
        k(f"s_sub_u32 s58, s{sDG}, s{sRH}")
        k(f"s_sub_u32 s59, s27, s{sRH}")
        k(f"s_add_u32 s{sDG}, s{sDG}, s{sRH}")
        k(f"s_add_u32 s27, s27, s{sRH}")
        vB1, vBS, vSS, vWL = 6, 7, 8, 11
        k(f"v_add_u32 {v(vB1)}, 57344, {v(vL16)}")
        sSS = 41
        k(f"s_mul_i32 s{sSS}, s{sRT}, 1792")
        k(f"s_add_u32 s{sSS}, s{sSS}, {SSP}")
        k(f"v_add_u32 v7, {R2}, {v(vL4)}")
        k("s_lshl_b32 s36, s36, 8")
        k(f"v_xor_b32 {v(vWL)}, s36, {v(vL16)}")
        sWD = 34
        k(f"s_mul_i32 s28, s{sCT}, {0 if os.environ.get('FAKED') else 112}")
        k(f"s_mul_i32 s36, s{sW}, 28")
        k("s_add_u32 s28, s28, s36")
        k("s_lshl_b32 s28, s28, 11")
        k(f"s_add_u32 s28, s28, {WD}")
        k(f"s_and_b32 s36, s{sW}, 1")
        k("s_lshl_b32 s36, s36, 10")
        k("s_add_u32 s54, s28, s36")
        sHS = 36
        k(f"s_mul_i32 s{sHS}, s{sRB}, {4*112}")
        k(f"s_lshl1_add_u32 s{sHS}, s{sFB}, s{sHS}")
        k(f"s_lshl_b32 s{sHS}, s{sHS}, 10")
        k(f"s_add_u32 s{sHS}, s{sHS}, {HP}")
        sHP = 37
        k(f"s_mul_i32 s{sHP}, s{sRT}, 224")
        k(f"s_mul_i32 s28, s{sW}, 28")
        k(f"s_add_u32 s{sHP}, s{sHP}, s28")
        k(f"s_lshl_b32 s{sHP}, s{sHP}, 10")
        k(f"s_add_u32 s{sHP}, s{sHP}, {HP}")
        k.stamp()
        vm.wait(hc_st, " lgkmcnt(0)")
        k.stamp()
        arrive(0)
        mark0 = poll_issue(0)
        wload(NW[3])
        poll(0, mark0)
        wload(NW[4])
        k.stamp()
        uses = [(kp, b) for kp in range(KS) for b in range(4)]
        uses += [(kp, b) for kp in range(KS, 28) for b in (0, 2)]
        uB = len(uses)
        uses += [(kp, b) for kp in range(KS, 28) for b in (1, 3)]
        first_use = {kp: min(u for u, x in enumerate(uses) if x[0] == kp) for kp in range(28)}
        last_use = {kp: max(u for u, x in enumerate(uses) if x[0] == kp) for kp in range(28)}
        npair = (28 - KS) // 2
        D = []

        def dma():
            i = len(D)
            if i < KS:
                sel, off = 0, i * 1024
            else:
                sel, off = 1, ((i - KS) // npair) * 28672 + (KS + 2 * ((i - KS) % npair)) * 1024
            k(f"s_add_u32 m0, s{sDL+sel}, {off}")
            k(f"s_add_u32 s28, s{(sDG if off % 28672 < 14336 else 58)+sel}, {off}")
            D.append(vm.op(f"buffer_load_dwordx4 {v(vL16)}, s[8:11], s28 offen{LD} lds"))

        wd_regs = [(0, lambda m, i=i: a(224 + 8 * i + 4 * m, 4)) for i in range(4)]
        wd_regs += [(0, lambda m, i=i: v(64 + 8 * i + 4 * m, 4)) for i in range(8)]
        wd_regs += [(last_use[i] + 1, lambda m, i=i: a(8 * i + 4 * m, 4)) for i in range(16)]

        def wdreg(kp, m):
            return wd_regs[kp][1](m)

        wdn = [0]
        wd_id = {}

        def quarter(dst, g, size, base):
            k(f"s_add_u32 s{dst}, s{sRT}, {g}" if ROTD else f"s_mov_b32 s{dst}, {g}")
            k(f"s_and_b32 s{dst}, s{dst}, 3")
            k(f"s_mul_i32 s{dst}, s{dst}, {size}")
            k(f"s_add_u32 s{dst}, s{dst}, s{base}")

        def wdload():
            n = wdn[0]
            wdn[0] += 1
            kp, m = n // 2, n % 2
            if n % 14 == 0:
                quarter(sWD, kp // 7, 14336, 54)
                k(f"s_xor_b32 s{sWD+1}, s{sWD}, 1024")
            wd_id[kp] = vm.op(f"buffer_load_dwordx4 {wdreg(kp,m)}, {v(vWL)}, s[8:11], s{sWD+m} offen offset:{(kp%7%2)*2048}")
            if n % 14 % 4 == 3:
                k(f"s_add_u32 s{sWD}, s{sWD}, 4096")
                k(f"s_add_u32 s{sWD+1}, s{sWD+1}, 4096")

        aQ = 128
        hl = []

        def hload():
            n = len(hl)
            p, kp = n // 28, n % 28
            if n == 28:
                k(f"s_add_u32 s{sHP}, s{sHP}, {112*1024}")
            if kp % 7 == 0:
                quarter(46, kp // 7, 7168, sHP)
            if kp % 7 == 4:
                k("s_add_u32 s46, s46, 4096")
            hl.append(vm.op(f"buffer_load_dwordx4 {a(aQ+4*(n%24),4)}, {v(vL16)}, s[8:11], s46 offen offset:{(kp%7%4)*1024}{LD}"))

        vF, vAcc, LOOK = 32, 128, 4
        accreg = {0: vAcc, 2: vAcc + 32, 1: vAcc + 64, 3: vAcc + 96}

        def rd4(u):
            kp, b = uses[u]
            k(f"ds_read_b128 {v(vF+4*(u%6),4)}, {v(vL16 if b < 2 else vB1)} offset:{(b&1)*28672+kp*1024}")

        last_st = [None]

        def hp_store(b, u):
            if u == 0:
                k(f"s_add_u32 s38, s{sHS}, {b*112*1024}")
            last_st[0] = store2(f"buffer_store_dwordx4 {v(accreg[b]+4*u,4)}, {v(vL16)}, s[8:11], s38 offen offset:{u*1024}")

        def epilogue(ps):
            items = [(b, r) for b in (ps, ps + 2) for r in range(8)]
            out = []
            for i in range(len(items) + 1):
                grp = []
                if i < len(items):
                    b, r = items[i]
                    g_, u_ = accreg[b], accreg[b] + 16
                    grp += [f"v_mul_f32 {v(u_+2*r)}, {v(g_+2*r)}, {v(u_+2*r)}",
                            f"v_mul_f32 {v(u_+2*r+1)}, {v(g_+2*r+1)}, {v(u_+2*r+1)}"]
                if i > 0:
                    b, r = items[i - 1]
                    g_, u_ = accreg[b], accreg[b] + 16
                    grp.append(f"v_cvt_pk_bf16_f32 {v(g_+r)}, {v(u_+2*r)}, {v(u_+2*r+1)}")
                out.append(grp)
                if i > 0 and items[i - 1][1] % 4 == 3:
                    out.append(lambda b=items[i - 1][0], u=items[i - 1][1] // 4: hp_store(b, u))
            return out

        def put(q, cnt=1):
            for _ in range(cnt):
                if q:
                    e = q.pop(0)
                    if callable(e):
                        e()
                    else:
                        for t_ in e:
                            k(t_)

        chunks = eval(os.environ.get("CHUNKS", "{0: 2, 3: 6, 7: 15, 16: 27}"))
        for _ in range(NDMA0):
            dma()
        k("ds_read2st64_b32 v[12:13], v7 offset1:1")
        k("ds_read2st64_b32 v[14:15], v7 offset0:2 offset1:3")
        k(f"s_lshl_b32 s47, s{sCT}, 8")
        k(f"s_add_u32 s47, s47, s{sSS}")
        k("s_waitcnt lgkmcnt(0)")
        k("v_add_f32 v12, v12, v13")
        k("v_add_f32 v14, v14, v15")
        k("v_add_f32 v12, v12, v14")
        store2(f"buffer_store_dword v12, {v(vL4)}, s[8:11], s47 offen")
        vm.wait(D[chunks[0]])
        k("s_barrier")
        k.stamp()
        for u in range(LOOK):
            rd4(u)
        todo = [(i - 30, "d") for i in range(NDMA0, 28)]
        todo += [(first_use[i // 2] - 14 + 0.01 * i, "w") for i in range(wn[0], 56)]
        todo = [o for _, o in sorted(todo)]
        epi = epilogue(0)
        checked = False
        for u in range(112):
            kp, b = uses[u]
            if (u + LOOK) % 4 == 0 and (u + LOOK) // 4 in chunks:
                vm.wait(D[chunks[(u + LOOK) // 4]])
                k("s_barrier")
            if u == first_use[kp] and 2 * kp + 1 >= sum(NW):
                vm.wait(wid[2 * kp + 1])
            if u == uB + DRAIN_A:
                assert not epi
                vm.wait(last_st[0])
                arrive(256)
            if u == uB + POLL_A:
                markA = poll_issue(256)
            if u == uB + CHECK_A:
                poll(256, markA)
                checked = True
            if u % 2 == 0:
                k(f"s_waitcnt lgkmcnt({min(LOOK - 2, 110 - u)})")
            for m in range(2):
                acc = accreg[b] + 16 * m
                c = "0" if kp == 0 else v(acc, 16)
                k(f"v_mfma_f32_32x32x16_bf16 {v(acc,16)}, {a(8*kp+4*m,4)}, {v(vF+4*(u%6),4)}, {c}")
                if m == 0:
                    if u + LOOK < 112:
                        rd4(u + LOOK)
                    if u >= uB + 1:
                        put(epi)
                else:
                    if u >= uB + 1 and EPI_A == 2:
                        put(epi)
                    if todo:
                        dma() if todo.pop(0) == "d" else wload()
                    elif checked and len(hl) < RING and last_use[16 + len(hl) // 2] < u:
                        hload()
                    elif wdn[0] < 56 and wd_regs[wdn[0] // 2][0] <= u:
                        wdload()
            if u in P4ST:
                k.stamp(1)
            if u == uB - 1 or u == 111:
                k.stamp()
        assert len(D) == 28 and wn[0] == 56
        print("after P4: down loads issued", wdn[0], "h loads", len(hl), file=sys.stderr)
        if not checked:
            poll(256, markA)
        vRW, vRR, vR2, vFW, vFR, vSP = 12, 15, 16, 20, 24, 56
        vAc5, vT5 = 128, 192
        fill = epilogue(1)
        while fill:
            put(fill, 3)
            if len(hl) < 8:
                hload()
        fill2 = []
        for sg in range(1, 4):
            fill2.append([f"s_xor_b32 s26, s{sW}, {sg}", "s_mul_i32 s26, s26, 6144", f"s_add_u32 s26, s26, {(sg-1)*2048}",
                         f"v_add_u32 {v(vRW+sg-1)}, s26, {v(vL16)}"])
        fill2.append([f"s_mul_i32 s26, s{sW}, 6144", f"v_add_u32 {v(vRR)}, s26, {v(vL16)}", "v_and_b32 v6, 31, v1",
                     "v_lshrrev_b32 v7, 5, v1", "v_lshlrev_b32 v7, 2, v7"])
        fill2.append(["v_bfe_u32 v8, v1, 1, 3", "v_xor_b32 v7, v7, v8", "v_lshlrev_b32 v8, 7, v6", "v_lshl_add_u32 v7, v7, 4, v8"])
        fill2.append([f"s_and_b32 s26, s{sW}, 1", f"s_lshr_b32 s27, s{sW}, 1", "s_lshl1_add_u32 s26, s26, s27",
                     f"s_lshl2_add_u32 s26, s26, {FF}", f"v_add_u32 {v(vFW)}, s26, v7"])
        fill2.append([f"v_xor_b32 {v(vFW+q)}, {16*q}, {v(vFW)}" for q in range(1, 4)])
        fill2.append([f"s_lshl_b32 s26, s{sW}, 10", f"v_add_u32 {v(vFR)}, s26, {v(vL16)}",
                     f"v_add_u32 {v(vFR+1)}, {XT}, {v(vFR)}", f"v_add_u32 {v(vFR)}, {FF}, {v(vFR)}"])
        r2calc = [[f"v_add_f32 {v(vSP)}, {v(vSP)}, {v(vSP+1)}", f"v_add_f32 {v(vSP+2)}, {v(vSP+2)}, {v(vSP+3)}",
                   f"v_add_f32 {v(vSP+4)}, {v(vSP+4)}, {v(vSP+5)}", f"v_add_f32 {v(vSP)}, {v(vSP)}, {v(vSP+6)}"],
                  [f"v_add_f32 {v(vSP+2)}, {v(vSP+2)}, {v(vSP+4)}", f"v_mov_b32 {v(vSP+1)}, {f2u(EPS)}",
                   f"v_add_f32 {v(vSP)}, {v(vSP)}, {v(vSP+2)}", f"v_fmac_f32 {v(vSP+1)}, {f2u(1.0/448)}, {v(vSP)}"],
                  [f"v_rcp_f32 {v(vR2)}, {v(vSP+1)}", f"v_rcp_f32 {v(vR2+1)}, {v(vSP+1)}"],
                  [f"v_permlane32_swap_b32 {v(vR2)}, {v(vR2+1)}"]]

        def reduce_out(p):
            base = vAc5 + 32 * p
            rb_ = p * 24576
            q_ = []
            for sg in range(1, 4):
                for z in range(2):
                    q_.append([f"ds_write_b128 {v(vRW+sg-1)}, {v(base+16*(sg&1)+8*(sg>>1)+4*z,4)} offset:{rb_+z*1024}"])
            q_.append([f"ds_read_b128 {v(vT5+24,4)}, {v(vFR+1)} offset:{p*4096}"])
            q_.append(["s_waitcnt lgkmcnt(0)", "s_barrier"] +
                      [f"ds_read_b128 {v(vT5+4*z,4)}, {v(vRR)} offset:{rb_+z*1024}" for z in range(2)])
            q_.append([f"ds_read_b128 {v(vT5+8*j+4*z,4)}, {v(vRR)} offset:{rb_+j*2048+z*1024}" for j in (1, 2) for z in range(2)])
            for h2 in range(2):
                q_.append([t_ for q in (2 * h2, 2 * h2 + 1) for t_ in
                           (f"v_lshlrev_b32 {v(vT5+32+q)}, 16, {v(vT5+24+q)}", f"v_and_b32 {v(vT5+24+q)}, 0xffff0000, {v(vT5+24+q)}")])
            for j in range(3):
                for h2 in range(2):
                    q_.append(([f"s_waitcnt lgkmcnt({4-2*j})"] if h2 == 0 else []) +
                              [f"v_add_f32 {v(base+r)}, {v(base+r)}, {v(vT5+8*j+r)}" for r in range(4 * h2, 4 * h2 + 4)])
            for q in range(4):
                q_.append([f"v_mul_f32 {v(base+q)}, {v(base+q)}, {v(vR2+p)}", f"v_mul_f32 {v(base+4+q)}, {v(base+4+q)}, {v(vR2+p)}",
                           f"v_cvt_pk_bf16_f32 {v(vT5+q)}, {v(base+q)}, {v(base+4+q)}",
                           f"ds_write_b32 {v(vFW+q)}, {v(vT5+q)} offset:{p*4096}"])
            q_.append(["s_waitcnt lgkmcnt(0)", "s_barrier", f"ds_read_b128 {v(vT5+28,4)}, {v(vFR)} offset:{p*4096}"])
            q_.append([])
            for q in range(4):
                f_, h_ = vT5 + 28 + q, vT5 + 24 + q
                q_.append((["s_waitcnt lgkmcnt(0)"] if q == 0 else []) +
                          [f"v_lshlrev_b32 {v(vT5+12)}, 16, {v(f_)}", f"v_and_b32 {v(f_)}, 0xffff0000, {v(f_)}",
                           f"v_add_f32 {v(vT5+12)}, {v(vT5+12)}, {v(vT5+32+q)}", f"v_add_f32 {v(f_)}, {v(f_)}, {v(h_)}",
                           f"v_cvt_pk_bf16_f32 {v(f_)}, {v(vT5+12)}, {v(f_)}"])
            q_.append(lambda: vm.op(f"buffer_store_dwordx4 {v(vT5+28,4)}, {v(vXO)}, s[16:19], s{sXO+p} offen{SC}"))
            return q_

        ssl = []

        def ssload(i):
            for j in range(2 * i, min(2 * i + 2, 7)):
                ssl.append(vm.op(f"buffer_load_dword {v(vSP+j)}, {v(vL4)}, s[8:11], s{sSS} offen offset:{256*j}{LD}"))

        fill = fill2 + [lambda i=i: ssload(i) for i in range(4)]
        if P5ST:
            k.stamp(1)
        for n in range(56):
            p, kp = n // 28, n % 28
            if n == DRAIN_B:
                vm.wait(last_st[0])
                arrive(512)
            if n == POLL_B:
                markB = poll_issue(512)
            if n == CHECK_B:
                k.stamp()
                poll(512, markB)
                k.stamp()
            if n == 24:
                vm.wait(ssl[6])
                fill += r2calc
            if n == LATE and 3072 in WBL:
                k(f"s_add_u32 s47, s{sFI}, 16384")
                vm.op(f"buffer_store_dword {v(vOne)}, off, s[8:11], s47{mode[0]}")
            if n == 29:
                assert not fill
                fill = reduce_out(0)
            vm.wait(max(hl[n], wd_id[kp]))
            for dl in range(2):
                acc = vAc5 + 32 * p + 16 * dl
                c = "0" if kp == 0 else v(acc, 16)
                k(f"v_mfma_f32_32x32x16_bf16 {v(acc,16)}, {wdreg(kp,dl)}, {a(aQ+4*(n%24),4)}, {c}")
                if dl == 1 and wdn[0] < 56:
                    wdload()
                if dl == 0:
                    if len(hl) < (28 if n < CHECK_B else 56) and len(hl) < n + 24:
                        hload()
                    else:
                        put(fill)
                if dl == 1:
                    put(fill)
            if n in P5ST:
                k.stamp(1)
        k.stamp()
        put(fill, 99)
        put(reduce_out(1), 99)
        if k.prof:
            k("s_waitcnt vmcnt(0)")
        k.stamp_flush(6, PROF + (2 << 20), sW, nst)
        k("s_endpgm")

    SLOWL = k.lab("slow")
    k(f"s_branch {SLOWL}")
    k.label(FAST)
    mode[0] = ""
    rest()
    k.label("k3_code_end")
    k.label(SLOWL)
    mode[0] = " sc1"
    vm.n, wn[0], wid[:], k._seq = state
    rest()
    k.label(END)
    k("s_endpgm")
    for o in outline:
        k(o)
    if SPARE:
        k.label(PFL)
        k(f"s_cmp_ge_u32 s2, {K3_WGS}")
        k(f"s_cbranch_scc1 {END}")
        k("s_load_dwordx2 s[6:7], s[0:1], 72")
        k("v_lshrrev_b32 v2, 6, v0")
        k("v_and_b32 v1, 63, v0")
        k("v_readfirstlane_b32 s20, v2")
        k("v_lshlrev_b32 v3, 7, v1")
        k("s_bfe_u32 s21, s2, 0x20003")
        k("s_lshl2_add_u32 s21, s21, s20")
        k("s_waitcnt lgkmcnt(0)")
        k.srd_off(8, 6, WSB, WS_BYTES)
        n = 0
        for base, nsl, units in ((WS, 56, SP_WS), (WD, 28, range(7))):
            for un in units:
                for i in range(-(-nsl // 16)):
                    k(f"s_add_u32 s22, s21, {16*i}")
                    k(f"s_min_u32 s22, s22, {nsl-1}")
                    k("s_mul_i32 s22, s22, 57344")
                    k(f"s_add_u32 s22, s22, {base + un*8192}")
                    k(f"buffer_load_dword v{8+n}, v3, s[8:11], s22 offen")
                    n += 1
        if WBL:
            k("s_cmp_lg_u32 s21, 0")
            k(f"s_cbranch_scc1 {END}")
            k("v_lshlrev_b32 v3, 2, v1")
            k("v_min_u32 v3, 220, v3")
            k("s_and_b32 s22, s2, 7")
            k("s_lshl_b32 s22, s22, 11")
            k(f"s_add_u32 s22, s22, {FL}")
            k(f"s_mov_b32 s23, {SPIN_MAX}")
            for off in WBL:
                lp, dn_ = k.lab("wl"), k.lab("wd")
                if off == 3072:
                    k("s_add_u32 s22, s22, 16384")
                    off = 0
                k.label(lp)
                k(f"buffer_load_dword v4, v3, s[8:11], s22 offen offset:{off} sc1")
                k(f"buffer_load_dword v5, v3, s[8:11], s22 offen offset:{off+1024} sc1")
                k("s_sub_u32 s23, s23, 1")
                k("s_waitcnt vmcnt(0)")
                k("s_cmp_eq_u32 s23, 0")
                k(f"s_cbranch_scc1 {END}")
                k("v_and_b32 v4, v4, v5")
                k("v_cmp_eq_u32 vcc, 0, v4")
                k("s_sleep 2")
                k(f"s_cbranch_vccnz {lp}")
                k("buffer_wbl2 sc1")
                k("s_waitcnt vmcnt(0)")
        k("s_endpgm")
    return k
```

```python
import struct
import sys
from asmlib import Kern, v, a, s

S, D, F = 2048, 448, 1792
AT = 0x000000
WT = 0x200000
BT = 0x400000
HC = 0x600000
WS = 0x800000
WD = 0xC00000
HP = 0xE00000
M1 = 0x1500000
FL = 0x1510000
WS_BYTES = 0x1520000
XB = S * D * 2
WRB = S * 225 * 2
WGB = D * F * 2
EPS = 1e-5
PROF = 0x1800000
import os
SC = os.environ.get("SC", " sc1")
NT = os.environ.get("NT", "")
WSB = int(os.environ.get("WSB", "0"), 0)


def f2u(x):
    return "0x%08x" % struct.unpack("<I", struct.pack("<f", x))[0]


N_WT, N_WS, N_WD = 256, 392, 196
K1_SIDE_WGS = (N_WT + N_WS + N_WD) // 4
K1_WGS = 256
K1_LDS = 57344 + 512


def div7(k, dst, src):
    k(f"s_mul_i32 s{dst}, s{src}, 37")
    k(f"s_lshr_b32 s{dst}, s{dst}, 8")


CODEPF = int(os.environ.get("CODEPF", "1"))


def code_prefetch(k, target, piece_sreg, vlane16, vtmp, stmp):
    here = k.lab("pc")
    k(f"s_getpc_b64 s[{stmp}:{stmp+1}]")
    k.label(here)
    k(f"s_add_u32 s{stmp}, s{stmp}, {target}-{here}")
    k(f"s_addc_u32 s{stmp+1}, s{stmp+1}, 0")
    k(f"s_lshl_b32 s{stmp+2}, s{piece_sreg}, 10")
    k(f"v_add_u32 {v(vtmp)}, s{stmp+2}, {v(vlane16)}")
    k(f"global_load_dwordx4 {v(vtmp+2,4)}, {v(vtmp)}, s[{stmp}:{stmp+1}]")


def xlane_sum(k, r, t):
    k(f"v_mov_b32 {v(t)}, {v(r)}")
    k(f"v_permlane16_swap_b32 {v(r)}, {v(t)}")
    k(f"v_add_f32 {v(r)}, {v(r)}, {v(t)}")
    k(f"v_mov_b32 {v(t)}, {v(r)}")
    k(f"v_permlane32_swap_b32 {v(r)}, {v(t)}")
    k(f"v_add_f32 {v(r)}, {v(r)}, {v(t)}")


def gen_k1():
    k = Kern("k1_kernel", 0, 0)
    END, SIDE, STORE, JWS, JWD, TR, ISSUED, TRS = (k.lab(x) for x in ("end", "side", "store", "jws", "jwd", "tr", "iss", "trs"))
    sW, sMain, sKind = 20, 48, 49
    k(f"s_cmp_ge_u32 s2, {K1_WGS}")
    k(f"s_cbranch_scc1 {END}")
    k.stamp()
    k("s_load_dwordx2 s[4:5], s[0:1], 0")
    k("s_load_dwordx2 s[6:7], s[0:1], 72")
    k("s_load_dwordx4 s[76:79], s[0:1], 8")
    k("s_load_dwordx4 s[80:83], s[0:1], 32")
    k("s_load_dwordx2 s[84:85], s[0:1], 48")
    k("v_lshrrev_b32 v2, 6, v0")
    k("v_and_b32 v1, 63, v0")
    k(f"v_readfirstlane_b32 s{sW}, v2")
    k(f"s_mov_b32 s{sMain}, 0")
    k("s_cmp_ge_u32 s2, 224")
    k(f"s_cbranch_scc1 {SIDE}")
    k(f"s_mov_b32 s{sMain}, 1")
    sRT, sCT = 21, 22
    k("s_and_b32 s23, s2, 7")
    k("s_lshr_b32 s24, s2, 3")
    div7(k, 25, 24)
    k("s_mul_i32 s26, s25, 7")
    k(f"s_sub_u32 s{sCT}, s24, s26")
    k(f"s_lshl2_add_u32 s{sRT}, s23, s25")
    k("v_lshrrev_b32 v4, 5, v1")
    k("v_bfe_u32 v5, v1, 3, 2")
    k("v_lshl_add_u32 v4, v4, 4, v5")
    k("s_movk_i32 s26, 0x7000")
    k("v_mul_u32_u24 v4, s26, v4")
    k("v_lshrrev_b32 v5, 4, v1")
    k("v_and_b32 v6, 7, v1")
    k("v_xor_b32 v6, v6, v5")
    k("v_lshl_add_u32 v2, v6, 4, v4")
    k("v_xor_b32 v3, 64, v2")
    k(f"v_add_u32 v3, {32*32*896}, v3")
    k(f"s_lshl_b32 s26, s{sW}, 7")
    k(f"s_add_u32 s26, s26, s{sRT}")
    k("s_mul_i32 s26, s26, 896")
    k(f"s_lshl_b32 s27, s{sW}, 11")
    saved, k.lines = k.lines, []
    k("v_and_b32 v8, 15, v1")
    vB, vST, vE, vSG, vT, vF = 8, 9, 9, 17, 19, 28
    vKK, vOnes = 27, 152
    k(f"s_and_b32 s28, s{sW}, 1")
    k("s_lshl_b32 s28, s28, 4")
    k(f"s_lshl_b32 s29, s{sCT}, 5")
    k("s_add_u32 s28, s28, s29")
    k(f"v_add_u32 {v(vKK)}, s28, v8")
    k("v_lshrrev_b32 v9, 1, v8")
    k("v_xor_b32 v9, v9, v5")
    k("v_lshlrev_b32 v9, 4, v9")
    k("v_lshl_add_u32 v4, v8, 7, v9")
    k(f"v_add_u32 v19, 1, {v(vKK)}")
    k("v_cvt_f32_u32 v20, v19")
    k("v_and_b32 v19, 1, v19")
    k("v_lshlrev_b32 v19, 31, v19")
    k(f"v_or_b32 {v(vSG)}, 1.0, v19")
    k(f"v_mul_f32 {v(vE+1)}, {f2u(1.0/448)}, v20")
    for e in range(2, 8):
        k(f"v_mul_f32 {v(vE+e)}, {f2u(e/448.0)}, v20")
    k(f"v_mul_f32 {v(vST)}, {f2u(32.0/448)}, v20")
    k(f"v_fract_f32 {v(vST)}, {v(vST)}")
    k("v_lshlrev_b32 v21, 3, v5")
    k("v_cvt_f32_u32 v21, v21")
    k(f"s_lshr_b32 s30, s{sW}, 1")
    k(f"s_mul_i32 s31, s30, {f2u(0.25)}")
    k(f"v_mov_b32 {v(vB)}, s31")
    k(f"v_fmac_f32 {v(vB)}, v21, {v(vE+1)}")
    k(f"v_fract_f32 {v(vB)}, {v(vB)}")
    k("v_xor_b32 v5, 64, v4")
    k("v_add_u32 v6, s27, v4")
    k("v_add_u32 v7, s27, v5")
    for p in range(4):
        k(f"v_mov_b32 {v(vOnes+p)}, 0x3f803f80")
    vCS = 156
    for t in range(7):
        k(f"v_cos_f32 {v(vT)}, {v(vB)}")
        for e in range(1, 8):
            k(f"v_add_f32 {v(vT+e)}, {v(vB)}, {v(vE+e)}")
        for e in range(1, 8):
            k(f"v_cos_f32 {v(vT+e)}, {v(vT+e)}")
        if t < 6:
            k(f"v_add_f32 {v(vB)}, {v(vB)}, {v(vST)}")
            k(f"v_fract_f32 {v(vB)}, {v(vB)}")
        for p in range(4):
            k(f"v_cvt_pk_bf16_f32 {v(vF+4*t+p)}, {v(vT+2*p)}, {v(vT+2*p+1)}")
        if t > 0:
            k(f"v_mfma_f32_16x16x32_bf16 {v(vCS,4)}, {v(vOnes,4)}, {v(vF+4*t-4,4)}, {'0' if t == 1 else v(vCS,4)}")
    gen_lines, k.lines = k.lines, saved
    k("s_waitcnt lgkmcnt(0)")
    k.srd(8, 4, XB)
    per = -(-len(gen_lines) // 14)
    for c in range(7):
        for q in range(2):
            k(f"s_add_u32 m0, s27, {c*(8192-128) + q*1024}")
            k(f"buffer_load_dwordx4 v{2+q}, s[8:11], s26 offen offset:{c*128}{NT} lds")
            for _ in range(min(per, len(gen_lines))):
                k(gen_lines.pop(0))
    assert not gen_lines
    k.label(SIDE)
    k("s_waitcnt lgkmcnt(0)")
    vIn, vSrc, vDst, vOut = 168, 200, 201, 88
    sA, sB_, sD = 52, 56, 88
    sSo, sDo, sSt, sSt4, sDt, sDt4, t0, t1, t2, t3 = 86, 87, 97, 98, 99, 100, 50, 51, 35, 39
    k(f"s_mul_i32 s{t0}, s2, 3")
    k(f"s_add_u32 s{t0}, s{t0}, s{sW}")
    k(f"s_sub_u32 s{t0}, s{t0}, 1")
    k(f"s_lshl2_add_u32 s{t1}, s2, s{sW}")
    k(f"s_sub_u32 s{t1}, s{t1}, 128")
    k("s_cmp_lt_u32 s2, 128")
    k(f"s_cselect_b32 s{t0}, s{t0}, s{t1}")
    k(f"s_cselect_b32 s{t1}, s{sW}, 1")
    k("s_cmp_ge_u32 s2, 224")
    k(f"s_cselect_b32 s{t1}, 0, s{t1}")
    k(f"s_cmp_lg_u32 s{t1}, 0")
    k(f"s_cbranch_scc1 {JWS}")
    k(f"s_mov_b32 s{sKind}, 0")
    k(f"s_lshr_b32 s{t0}, s2, 5")
    k(f"s_add_u32 s{t0}, s{t0}, 4")
    k(f"s_bfe_u32 s{t2}, s2, 0x20003")
    k(f"s_cmp_ge_u32 s2, 224")
    k(f"s_cselect_b32 s{t0}, s{t2}, s{t0}")
    k(f"s_cselect_b32 s{t2}, s{sW}, s{t2}")
    k(f"s_and_b32 s{t1}, s2, 7")
    k.srd(sA, 76, WRB)
    k.srd(sB_, 78, WRB)
    k(f"v_and_b32 {v(vOut-4)}, 7, v1")
    k(f"v_lshrrev_b32 {v(vOut-3)}, 3, v1")
    k(f"v_mul_u32_u24 {v(vSrc)}, 0x1c2, {v(vOut-4)}")
    k(f"v_lshl_add_u32 {v(vSrc)}, {v(vOut-3)}, 4, {v(vSrc)}")
    k(f"v_lshlrev_b32 {v(vDst)}, 16, {v(vOut-3)}")
    k(f"v_lshl_add_u32 {v(vDst)}, {v(vOut-4)}, 4, {v(vDst)}")
    k(f"v_add_u32 {v(vOut-3)}, 1, {v(vOut-3)}")
    k(f"v_lshlrev_b32 {v(vOut-3)}, 27, {v(vOut-3)}")
    k(f"v_and_b32 {v(vOut-3)}, 0x40000000, {v(vOut-3)}")
    k(f"v_or_b32 {v(vSrc)}, {v(vSrc)}, {v(vOut-3)}")
    k(f"v_or_b32 {v(vDst)}, {v(vDst)}, {v(vOut-3)}")
    k(f"s_lshl_b32 s{sSo}, s{t1}, 5")
    k(f"s_add_u32 s{sSo}, s{sSo}, s{t0}")
    k(f"s_mul_i32 s{sSo}, s{sSo}, 3600")
    k(f"s_mul_i32 s{t3}, s{t2}, 112")
    k(f"s_add_u32 s{sSo}, s{sSo}, s{t3}")
    k(f"s_add_u32 s{sSo}, s{sSo}, 2")
    for r in range(4):
        k(f"buffer_load_dwordx4 {v(vIn+8*r,4)}, {v(vSrc)}, s[{sA}:{sA+3}], s{sSo} offen{NT}")
        k(f"buffer_load_dwordx4 {v(vIn+8*r+4,4)}, {v(vSrc)}, s[{sB_}:{sB_+3}], s{sSo} offen{NT}")
        if r < 3:
            k(f"s_add_u32 s{sSo}, s{sSo}, {64*450}")
    k.srd_off(sD, 6, WSB + WT, 224 * 8192)
    k(f"s_mul_i32 s{sDo}, s{t2}, {7*65536}")
    k(f"s_lshr_b32 s{t3}, s{t0}, 1")
    k(f"s_lshl_b32 s{t3}, s{t3}, 11")
    k(f"s_add_u32 s{sDo}, s{sDo}, s{t3}")
    k(f"s_lshl_b32 s{t3}, s{t1}, 8")
    k(f"s_add_u32 s{sDo}, s{sDo}, s{t3}")
    k(f"s_and_b32 s{t3}, s{t0}, 1")
    k(f"s_lshl_b32 s{t3}, s{t3}, 7")
    k(f"s_add_u32 s{sDo}, s{sDo}, s{t3}")
    k(f"s_branch {ISSUED}")
    k.label(JWS)
    k(f"s_mov_b32 s{sKind}, 1")
    k(f"s_cmp_ge_u32 s{t0}, {N_WS}")
    k(f"s_cbranch_scc1 {JWD}")
    k(f"s_bitcmp1_b32 s{t0}, 0")
    k(f"s_cselect_b32 s{sA}, s82, s80")
    k(f"s_cselect_b32 s{sA+1}, s83, s81")
    k(f"s_and_b32 s{sA+1}, s{sA+1}, 0xffff")
    k(f"s_mov_b32 s{sA+2}, {WGB}")
    k(f"s_mov_b32 s{sA+3}, 0x20000")
    k.srd_off(sD, 6, WSB + WS, 56 * 28 * 2048)
    k(f"s_lshr_b32 s{t1}, s{t0}, 1")
    k(f"s_mul_i32 s{t2}, s{t1}, 2341")
    k(f"s_lshr_b32 s{t2}, s{t2}, 16")
    k(f"s_mul_i32 s{t3}, s{t2}, 28")
    k(f"s_sub_u32 s{t1}, s{t1}, s{t3}")
    k(f"v_lshrrev_b32 {v(vSrc)}, 5, v1")
    k(f"v_mul_u32_u24 {v(vSrc)}, {8*3584}, {v(vSrc)}")
    k(f"v_and_b32 {v(vDst)}, 31, v1")
    k(f"v_lshl_add_u32 {v(vSrc)}, {v(vDst)}, 4, {v(vSrc)}")
    k(f"s_mul_i32 s{sSo}, s{t1}, {16*3584}")
    k(f"s_lshl_b32 s{t3}, s{t2}, 9")
    k(f"s_add_u32 s{sSo}, s{sSo}, s{t3}")
    k(f"s_movk_i32 s{sSt}, 3584")
    k(f"s_movk_i32 s{sSt4}, 3584")
    k(f"v_lshlrev_b32 {v(vDst)}, 4, v1")
    k(f"s_mul_i32 s{sDo}, s{t2}, {8*28*2048}")
    k(f"s_lshl_b32 s{t3}, s{t1}, 11")
    k(f"s_add_u32 s{sDo}, s{sDo}, s{t3}")
    k(f"s_and_b32 s{t3}, s{t0}, 1")
    k(f"s_lshl_b32 s{t3}, s{t3}, 10")
    k(f"s_add_u32 s{sDo}, s{sDo}, s{t3}")
    k(f"s_mov_b32 s{sDt}, {28*2048}")
    k(f"s_mov_b32 s{sDt4}, {28*2048}")
    k(f"s_branch {TR}")
    k.label(JWD)
    k(f"s_sub_u32 s{t0}, s{t0}, {N_WS}")
    k.srd(sA, 84, WGB)
    k.srd_off(sD, 6, WSB + WD, 7 * 112 * 2048)
    k(f"s_cmp_ge_u32 s{t0}, {N_WD}")
    k(f"s_cselect_b32 s{sA+2}, 0, s{sA+2}")
    k(f"s_cselect_b32 s{sD+2}, 0, s{sD+2}")
    k(f"s_mul_i32 s{t2}, s{t0}, 2341")
    k(f"s_lshr_b32 s{t2}, s{t2}, 16")
    k(f"s_mul_i32 s{t3}, s{t2}, 28")
    k(f"s_sub_u32 s{t1}, s{t0}, s{t3}")
    k(f"v_lshrrev_b32 {v(vSrc)}, 5, v1")
    k(f"v_bfe_u32 {v(vDst)}, v1, 4, 1")
    k(f"v_lshl_add_u32 {v(vSrc)}, {v(vDst)}, 7, {v(vSrc)}")
    k(f"v_bfe_u32 {v(vDst)}, v1, 3, 1")
    k(f"v_lshl_add_u32 {v(vSrc)}, {v(vDst)}, 5, {v(vSrc)}")
    k(f"v_mul_u32_u24 {v(vSrc)}, 0x380, {v(vSrc)}")
    k(f"v_and_b32 {v(vOut-4)}, 7, v1")
    k(f"v_lshl_add_u32 {v(vSrc)}, {v(vOut-4)}, 4, {v(vSrc)}")
    k(f"s_lshr_b32 s{sSo}, s{t1}, 2")
    k(f"s_lshl_b32 s{sSo}, s{sSo}, 7")
    k(f"s_and_b32 s{t3}, s{t1}, 3")
    k(f"s_add_u32 s{sSo}, s{sSo}, s{t3}")
    k(f"s_mul_i32 s{sSo}, s{sSo}, {2*896}")
    k(f"s_lshl_b32 s{t3}, s{t2}, 7")
    k(f"s_add_u32 s{sSo}, s{sSo}, s{t3}")
    k(f"s_movk_i32 s{sSt}, {8*896}")
    k(f"s_mov_b32 s{sSt4}, {(64-24)*896}")
    k(f"v_lshlrev_b32 {v(vOut-4)}, 4, {v(vOut-4)}")
    k(f"v_lshl_add_u32 {v(vOut-4)}, {v(vDst)}, 9, {v(vOut-4)}")
    k(f"v_lshrrev_b32 {v(vDst)}, 4, v1")
    k(f"v_lshl_add_u32 {v(vDst)}, {v(vDst)}, 11, {v(vOut-4)}")
    k(f"s_mul_i32 s{sDo}, s{t2}, 112")
    k(f"s_lshl2_add_u32 s{sDo}, s{t1}, s{sDo}")
    k(f"s_lshl_b32 s{sDo}, s{sDo}, 11")
    k(f"s_movk_i32 s{sDt}, 128")
    k(f"s_movk_i32 s{sDt4}, {1024-384}")
    k.label(TR)
    k.nocheck = True
    for e in range(8):
        k(f"buffer_load_dwordx4 {v(vIn+4*e,4)}, {v(vSrc)}, s[{sA}:{sA+3}], s{sSo} offen{NT} ; alt")
        if e < 7:
            k(f"s_add_u32 s{sSo}, s{sSo}, s{sSt4 if e == 3 else sSt}")
    k.label(ISSUED)
    SPW = k.lab("spw")
    k(f"s_cmp_eq_u32 s{sMain}, 0")
    k(f"s_cbranch_scc1 {SPW}")
    k.stamp()
    k.srd_off(12, 6, WSB + AT, 224 * 8192)
    k.srd_off(16, 6, WSB + M1, S * 4)
    k(f"v_mfma_f32_16x16x32_bf16 {v(vCS,4)}, {v(vOnes,4)}, {v(vF+24,4)}, {v(vCS,4)}")
    npf = 8
    if CODEPF:
        k("v_lshlrev_b32 v160, 4, v1")
        k(f"s_min_u32 s34, s{sW}, (k2_code_end-k2_kernel)/1024")
        code_prefetch(k, "k2_kernel", 34, 160, 162, 36)
        npf = 9
    vR, vSm, vGr = 56, 20, 120

    def stat(t):
        b = vR + 4 * (t % 4)
        k(f"v_mfma_f32_16x16x32_bf16 {v(vSm,4)}, {v(b,4)}, {v(vOnes,4)}, {'0' if t == 0 else v(vSm,4)}")
        k(f"v_mfma_f32_16x16x32_bf16 {v(vGr,4)}, {v(b,4)}, {v(b,4)}, {'0' if t == 0 else v(vGr,4)}")

    k.stamp()
    for c in range(7):
        k(f"s_waitcnt vmcnt({12-2*c+npf})")
        for par in range(2):
            t = 2 * c + par
            k(f"ds_read_b128 {v(vR+4*(t%4),4)}, v{6+par} offset:{c*8192}")
        if c > 0:
            k("s_waitcnt lgkmcnt(2)")
            stat(2 * c - 2)
            stat(2 * c - 1)
    k("s_waitcnt lgkmcnt(0)")
    k.stamp()
    stat(12)
    stat(13)
    k("s_barrier")
    vA = 88
    vSt = 124
    seq = [(t, b) for t in range(14) for b in range(4)]

    def rd(n):
        t, b = seq[n]
        k(f"ds_read_b128 {v(vR+4*(n%8),4)}, v{4+(t&1)} offset:{(t>>1)*8192 + b*2048}")

    vM, vQ = 24, 25
    fin = ["v_and_b32 v26, 3, v1",
           "v_cmp_eq_u32 s[40:41], 1, v26", "v_cmp_eq_u32 s[42:43], 2, v26", "v_cmp_eq_u32 s[44:45], 3, v26",
           "v_bfe_u32 v26, v1, 2, 2", "v_lshrrev_b32 v19, 4, v1", "v_cmp_eq_u32 s[46:47], v26, v19",
           f"v_cndmask_b32 {v(vM)}, {v(vSm)}, {v(vSm+1)}, s[40:41]", f"v_cndmask_b32 {v(vQ)}, {v(vGr)}, {v(vGr+1)}, s[40:41]",
           f"v_cndmask_b32 {v(vM)}, {v(vM)}, {v(vSm+2)}, s[42:43]", f"v_cndmask_b32 {v(vQ)}, {v(vQ)}, {v(vGr+2)}, s[42:43]",
           f"v_cndmask_b32 {v(vM)}, {v(vM)}, {v(vSm+3)}, s[44:45]", f"v_cndmask_b32 {v(vQ)}, {v(vQ)}, {v(vGr+3)}, s[44:45]",
           f"v_mul_f32 {v(vM)}, {f2u(1.0/448)}, {v(vM)}",
           f"v_mul_f32 {v(vQ)}, {f2u(1.0/448)}, {v(vQ)}",
           "v_and_b32 v26, 15, v1",
           f"v_fma_f32 {v(vQ)}, -{v(vM)}, {v(vM)}, {v(vQ)}",
           f"s_lshl_b32 s33, s{sW}, 6",
           f"v_max_f32 {v(vQ)}, 0, {v(vQ)}",
           "v_lshl_add_u32 v19, v26, 2, s33",
           f"v_add_f32 {v(vQ)}, {f2u(EPS)}, {v(vQ)}",
           f"v_fmac_f32 {v(vCS)}, {v(vCS)}, {v(vSG)}",
           f"v_rsq_f32 {v(vQ)}, {v(vQ)}",
           "v_lshrrev_b32 v21, 2, v26",
           "v_and_b32 v26, 3, v26",
           f"v_mul_f32 v20, {v(vM)}, {v(vQ)}",
           "v_lshl_add_u32 v26, v21, 4, v26",
           "v_lshlrev_b32 v26, 7, v26",
           f"s_lshl_b32 s33, s{sW}, 7",
           f"s_add_u32 s33, s33, s{sRT}",
           "s_lshl_b32 s33, s33, 2",
           f"s_cmp_eq_u32 s{sCT}, 0\ns_cselect_b32 s18, {S*4}, 0"]
    DEPTH = 7
    for n in range(DEPTH):
        rd(n)
    k.stamp()
    extra = 0
    for n in range(56):
        t, b = seq[n]
        left = min(DEPTH - 1, 55 - n)
        k(f"s_waitcnt lgkmcnt({left + (2 if 40 < n <= 40 + DEPTH else 0)})")
        acc = vA + 16 * (t // 7) + 4 * b
        c = "0" if t % 7 == 0 else v(acc, 4)
        k(f"v_mfma_f32_16x16x32_bf16 {v(acc,4)}, {v(vR+4*(n%8),4)}, {v(vF+4*(t%7),4)}, {c}")
        if n + DEPTH < 56:
            rd(n + DEPTH)
        if n >= 4 and fin:
            k(fin.pop(0))
        if n == 40:
            assert not fin
            k("s_mov_b64 exec, s[46:47]")
            k(f"ds_write_b32 v19, {v(vQ)} offset:57344")
            k("ds_write_b32 v19, v20 offset:57600")
            k(f"buffer_store_dword {v(vM)}, v26, s[16:19], s33 offen")
            k("s_mov_b64 exec, -1")
    k("s_barrier")
    k.stamp()
    k("v_lshrrev_b32 v24, 4, v1")
    k("v_lshlrev_b32 v24, 4, v24")
    for b in range(4):
        k(f"ds_read_b128 {v(vSt+4*b,4)}, v24 offset:{57344 + 64*b}")
        k(f"ds_read_b128 {v(vSt+16+4*b,4)}, v24 offset:{57600 + 64*b}")
    for n in range(16):
        k(f"v_fmac_f32 {v(vA+n)}, {v(vA+16+n)}, {v(vSG)}")
    k("v_and_b32 v8, 15, v1")
    k("v_and_b32 v9, 7, v1")
    k("v_lshrrev_b32 v10, 3, v24")
    k("v_xor_b32 v10, v10, v9")
    k("v_lshlrev_b32 v10, 4, v10")
    k("v_lshl_add_u32 v10, v8, 7, v10")
    k("v_add_u32 v10, s27, v10")
    k("v_xor_b32 v11, 16, v10")
    k("v_lshlrev_b32 v12, 4, v1")
    k("v_add_u32 v12, s27, v12")
    k("v_lshrrev_b32 v13, 3, v1")
    k("v_xor_b32 v9, v9, v13")
    k("v_lshlrev_b32 v9, 4, v9")
    k("v_lshl_add_u32 v13, v13, 13, v9")
    k("s_lshl_b32 s28, s28, 13")
    k("s_lshl_b32 s30, s30, 12")
    k(f"s_lshl_b32 s33, s{sRT}, 7")
    k("s_add_u32 s33, s33, s30")
    k("s_add_u32 s33, s33, s28")
    k("s_add_u32 s34, s33, 0x10000")
    for h2 in range(2):
        k(f"s_waitcnt lgkmcnt({4-4*h2})")
        for n in range(8 * h2, 8 * h2 + 8):
            k(f"v_mul_f32 {v(vA+n)}, {v(vA+n)}, {v(vSt+n)}")
        for n in range(8 * h2, 8 * h2 + 8):
            k(f"v_fma_f32 {v(vA+n)}, -{v(vSt+16+n)}, {v(vCS)}, {v(vA+n)}")
        for n in range(4 * h2, 4 * h2 + 4):
            k(f"v_cvt_pk_bf16_f32 {v(vR+n)}, {v(vA+2*n)}, {v(vA+2*n+1)}")
    k(f"ds_write_b128 v10, {v(vR,4)}")
    k(f"ds_write_b128 v11, {v(vR+4,4)}")
    k("s_waitcnt lgkmcnt(0)")
    k(f"ds_read_b128 {v(vR+8,4)}, v12")
    k(f"ds_read_b128 {v(vR+12,4)}, v12 offset:1024")
    k("s_waitcnt lgkmcnt(1)")
    k(f"buffer_store_dwordx4 {v(vR+8,4)}, v13, s[12:15], s33 offen{SC}")
    k("s_waitcnt lgkmcnt(0)")
    k(f"buffer_store_dwordx4 {v(vR+12,4)}, v13, s[12:15], s34 offen{SC}")
    k(f"s_waitcnt vmcnt({3+CODEPF})")
    k.label(STORE)
    k.stamp()
    k("s_mov_b32 s34, 0x05040100")
    k("s_mov_b32 s35, 0x07060302")
    k(f"s_cmp_lg_u32 s{sKind}, 0")
    k(f"s_cbranch_scc1 {TRS}")
    for e in range(8):
        o = vOut + 4 * e
        for r in range(4):
            k(f"v_perm_b32 {v(o+r)}, {v(vIn+8*r+4+(e>>1))}, {v(vIn+8*r+(e>>1))}, s{34+(e&1)}")
        k(f"buffer_store_dwordx4 {v(o,4)}, {v(vDst)}, s[{sD}:{sD+3}], s{sDo} offen{SC}")
        if e < 7:
            k(f"s_add_u32 s{sDo}, s{sDo}, 8192")
    k.stamp()
    if k.prof:
        k("s_waitcnt vmcnt(0)")
    nst = getattr(k, "_nst", 1) - 1
    k.stamp_flush(6, PROF, sW, nst)
    k("s_endpgm")
    k.label(TRS)
    for j in range(8):
        o = vOut + 4 * j
        for q in range(4):
            k(f"v_perm_b32 {v(o+q)}, {v(vIn+4*(2*q+1)+(j>>1))}, {v(vIn+4*(2*q)+(j>>1))}, s{34+(j&1)}")
        k(f"buffer_store_dwordx4 {v(o,4)}, {v(vDst)}, s[{sD}:{sD+3}], s{sDo} offen{SC}")
        if j < 7:
            k(f"s_add_u32 s{sDo}, s{sDo}, s{sDt4 if j == 3 else sDt}")
    k.stamp()
    if k.prof:
        k("s_waitcnt vmcnt(0)")
    k.stamp_flush(6, PROF, sW, 1)
    k.label(END)
    k("s_endpgm")
    k.label(SPW)
    k("s_waitcnt vmcnt(0)")
    k("s_cmp_lg_u32 s2, 255")
    k(f"s_cbranch_scc1 {STORE}")
    k.srd_off(40, 6, WSB + FL, 128 * 256)
    k(f"s_lshl_b32 s44, s{sW}, 13")
    k("s_add_u32 s45, s44, 4096")
    for i in range(4):
        k(f"v_mov_b32 v{4+i}, 0")
    k("v_lshlrev_b32 v8, 4, v1")
    for i in range(4):
        k(f"buffer_store_dwordx4 v[4:7], v8, s[40:43], s44 offen offset:{1024*i}")
        k(f"buffer_store_dwordx4 v[4:7], v8, s[40:43], s45 offen offset:{1024*i}")
    k(f"s_branch {STORE}")
    return k


K2_LDS = 16384
K2_PF = int(os.environ.get("K2_PF", "0"))
K2_IN = int(os.environ.get("K2_IN", "1"))
K2_IN0 = int(os.environ.get("K2_IN0", "16"))
K2_SP = int(os.environ.get("K2_SP", "0"))


def cmul8(k, y, x, c, sn, sign):
    neg = " neg_lo:[1,0,0] neg_hi:[1,0,0]"
    for e in range(0, 8, 2):
        k(f"v_pk_mul_f32 {v(y+e,2)}, {v(x+e,2)}, {v(c+e,2)}")
        k(f"v_pk_mul_f32 {v(y+8+e,2)}, {v(x+8+e,2)}, {v(c+e,2)}")
    for e in range(0, 8, 2):
        k(f"v_pk_fma_f32 {v(y+e,2)}, {v(x+8+e,2)}, {v(sn+e,2)}, {v(y+e,2)}" + (neg if sign > 0 else ""))
        k(f"v_pk_fma_f32 {v(y+8+e,2)}, {v(x+e,2)}, {v(sn+e,2)}, {v(y+8+e,2)}" + ("" if sign > 0 else neg))


def gen_k2():
    k = Kern("k2_kernel", 0, 0)
    END = k.lab("end")
    sW, sKK = 20, 2
    PFL = k.lab("pf")
    k("s_cmp_ge_u32 s2, 224")
    k(f"s_cbranch_scc1 {PFL if K2_PF or K2_SP else END}")
    k.stamp()
    k("s_load_dwordx2 s[6:7], s[0:1], 72")
    k("v_lshrrev_b32 v2, 6, v0")
    k("v_and_b32 v1, 63, v0")
    k(f"v_readfirstlane_b32 s{sW}, v2")
    k("v_lshrrev_b32 v4, 4, v1")
    k("v_and_b32 v5, 7, v1")
    k("v_xor_b32 v5, v5, v4")
    k("v_lshrrev_b32 v6, 3, v1")
    k("v_lshlrev_b32 v6, 7, v6")
    k("v_lshl_add_u32 v2, v5, 4, v6")
    k("v_xor_b32 v3, 64, v2")
    k(f"s_lshl_b32 s21, s{sW}, 11")
    k(f"s_lshl_b32 s22, s{sKK}, 13")
    k("s_add_u32 s22, s22, s21")
    k("v_lshlrev_b32 v7, 4, v1")
    k("s_mov_b32 m0, s21")
    k("s_waitcnt lgkmcnt(0)")
    k.srd_off(8, 6, WSB + AT, 224 * 8192)
    k("buffer_load_dwordx4 v2, s[8:11], s22 offen lds")
    k("buffer_load_dwordx4 v3, s[8:11], s22 offen offset:1024 lds")
    k.srd_off(12, 6, WSB + WT, 224 * 8192)
    vWt = 8
    k(f"buffer_load_dwordx4 {v(vWt,4)}, v7, s[12:15], s22 offen")
    k(f"buffer_load_dwordx4 {v(vWt+4,4)}, v7, s[12:15], s22 offen offset:1024")
    if K2_IN:
        k.srd_off(28, 6, WSB + WS, 56 * 57344)
        k("s_lshr_b32 s32, s2, 3")
        k(f"s_lshr_b32 s33, s{sW}, 1")
        k("s_lshl1_add_u32 s32, s32, s33")
        k("s_mul_i32 s32, s32, 57344")
        k(f"s_and_b32 s33, s{sW}, 1")
        k("s_lshl_b32 s33, s33, 13")
        k("s_add_u32 s32, s32, s33")
        k("v_lshlrev_b32 v192, 7, v1")
        k("buffer_load_dword v193, v192, s[28:31], s32 offen")
    k.stamp()
    k.srd_off(16, 6, WSB + BT, 448 * 4096)
    vC1, vS1, vN1 = 16, 24, 32
    vC2, vS2, vN2 = 40, 48, 56
    vTc, vTs = 64, 72
    vUc, vUs = 80, 88
    vD = 96
    vX = 128
    vY = 144
    vP = 160
    vT = 168
    k("v_and_b32 v5, 15, v1")
    k(f"s_lshl_b32 s23, s{sW}, 4")
    k("v_add_u32 v6, s23, v5")
    k("v_cvt_f32_u32 v2, v6")
    k("v_cvt_f32_u32 v3, v4")

    def packed_table(dc, ds_, step, base, mult):
        for e in range(8):
            if mult[e] == 0:
                k(f"v_mov_b32 {v(vT+e)}, {v(base)}")
            else:
                k(f"v_fmamk_f32 {v(vT+e)}, {v(step)}, {f2u(float(mult[e]))}, {v(base)}")
        for e in range(8):
            k(f"v_cos_f32 {v(vT+8+e)}, {v(vT+e)}")
        for e in range(8):
            k(f"v_sin_f32 {v(vT+e)}, {v(vT+e)}")
        for p in range(4):
            k(f"v_cvt_pk_bf16_f32 {v(dc+p)}, {v(vT+8+2*p)}, {v(vT+8+2*p+1)}")
        for p in range(4):
            k(f"v_cvt_pk_bf16_f32 {v(ds_+p)}, {v(vT+2*p)}, {v(vT+2*p+1)}")

    k(f"v_mul_f32 {v(vY)}, {f2u(1.0/64)}, v2")
    k(f"v_mul_f32 {v(vY+1)}, {f2u(8.0)}, v3")
    k(f"v_mul_f32 {v(vY+1)}, {v(vY+1)}, {v(vY)}")
    packed_table(vC1, vS1, vY, vY + 1, list(range(8)))
    k("s_mov_b32 s24, 0x80008000")
    k("v_and_b32 v6, 1, v1")
    k("v_mul_u32_u24 v6, 0x8000, v6")
    k("v_lshl_or_b32 v6, v6, 16, v6")
    for p in range(4):
        k(f"v_xor_b32 {v(vC1+4+p)}, v6, {v(vC1+p)}")
        k(f"v_xor_b32 {v(vS1+4+p)}, v6, {v(vS1+p)}")
    for p in range(8):
        k(f"v_xor_b32 {v(vN1+p)}, s24, {v(vS1+p)}")
    k("v_lshrrev_b32 v6, 1, v5")
    k("v_xor_b32 v6, v6, v4")
    k("v_lshlrev_b32 v6, 4, v6")
    k(f"v_lshl_add_u32 {v(vP)}, v5, 7, v6")
    k(f"v_xor_b32 {v(vP+1)}, 64, {v(vP)}")
    m2 = [0, 1, 2, 3, 16, 17, 18, 19]
    k("v_cvt_f32_u32 v6, v5")
    k(f"v_mul_f32 {v(vY)}, {f2u(1.0/32)}, v6")
    k(f"v_mul_f32 {v(vY+1)}, 4.0, v3")
    k(f"v_mul_f32 {v(vY+1)}, {v(vY+1)}, {v(vY)}")
    packed_table(vC2, vS2, vY, vY + 1, m2)
    k("s_brev_b32 s25, 1")
    for p in range(4):
        k(f"v_xor_b32 {v(vC2+4+p)}, s25, {v(vC2+p)}")
        k(f"v_xor_b32 {v(vS2+4+p)}, s25, {v(vS2+p)}")
    for p in range(8):
        k(f"v_xor_b32 {v(vN2+p)}, s24, {v(vS2+p)}")

    k(f"v_mul_f32 {v(vY)}, {f2u(1.0/2048)}, v2")
    k(f"v_mul_f32 {v(vY+1)}, 4.0, v3")
    k(f"v_mul_f32 {v(vY+1)}, {v(vY+1)}, {v(vY)}")
    m2 = [0, 1, 2, 3, 16, 17, 18, 19]
    k.stamp()
    k(f"s_waitcnt vmcnt({2+K2_IN})")
    k("s_barrier")
    k.stamp()
    for plane in range(2):
        for blk in range(2):
            for t in range(2):
                k(f"ds_read_b128 {v(vD+16*plane+8*blk+4*t,4)}, {v(vP+t)} offset:{plane*4096+blk*2048}")
    for e in range(8):
        if m2[e] == 0:
            k(f"v_mov_b32 {v(vTs+e)}, {v(vY+1)}")
        else:
            k(f"v_fmamk_f32 {v(vTs+e)}, {v(vY)}, {f2u(float(m2[e]))}, {v(vY+1)}")

    def dft_big(cr, ci, first_wait):
        for t in range(2):
            for blk in range(2):
                ar, ai = vD + 8 * blk + 4 * t, vD + 16 + 8 * blk + 4 * t
                xr, xi = vX + 4 * blk, vX + 8 + 4 * blk
                c0r = "0" if t == 0 else v(xr, 4)
                c0i = "0" if t == 0 else v(xi, 4)
                k(f"v_mfma_f32_16x16x32_bf16 {v(xr,4)}, {v(ar,4)}, {v(vC1+4*t,4)}, {c0r}")
                k(f"v_mfma_f32_16x16x32_bf16 {v(xi,4)}, {v(ai,4)}, {v(vC1+4*t,4)}, {c0i}")
                first_wait()
                k(f"v_mfma_f32_16x16x32_bf16 {v(xr,4)}, {v(ai,4)}, {v(cr+4*t,4)}, {v(xr,4)}")
                k(f"v_mfma_f32_16x16x32_bf16 {v(xi,4)}, {v(ar,4)}, {v(ci+4*t,4)}, {v(xi,4)}")
                first_wait()

    if CODEPF:
        k("s_lshr_b32 s34, s2, 3")
        k("s_min_u32 s34, s34, (k3_code_end-k3_kernel)/1024-1")
        code_prefetch(k, "k3_kernel", 34, 7, 184, 36)
    k("s_waitcnt lgkmcnt(0)")
    fill = []
    for e in range(8):
        fill.append(f"v_cos_f32 {v(vTc+e)}, {v(vTs+e)}")
    for e in range(8):
        fill.append(f"v_sin_f32 {v(vTs+e)}, {v(vTs+e)}")

    def filler():
        for _ in range(2):
            if fill:
                k(fill.pop(0))

    dft_big(vS1, vN1, filler)
    assert not fill
    def pack():
        for p in range(4):
            k(f"v_cvt_pk_bf16_f32 {v(vP+p)}, {v(vY+2*p)}, {v(vY+2*p+1)}")
            k(f"v_cvt_pk_bf16_f32 {v(vP+4+p)}, {v(vY+8+2*p)}, {v(vY+8+2*p+1)}")

    cmul8(k, vY, vX, vTc, vTs, -1)
    pack()
    for blk in range(2):
        xr, xi = vX + 4 * blk, vX + 8 + 4 * blk
        k(f"v_mfma_f32_16x16x32_bf16 {v(xr,4)}, {v(vC2+4*blk,4)}, {v(vP,4)}, 0")
        k(f"v_mfma_f32_16x16x32_bf16 {v(xi,4)}, {v(vC2+4*blk,4)}, {v(vP+4,4)}, 0")
        k(f"v_mfma_f32_16x16x32_bf16 {v(xr,4)}, {v(vS2+4*blk,4)}, {v(vP+4,4)}, {v(xr,4)}")
        k(f"v_mfma_f32_16x16x32_bf16 {v(xi,4)}, {v(vN2+4*blk,4)}, {v(vP,4)}, {v(xi,4)}")
    k(f"v_mul_f32 {v(vT)}, {f2u(1.0/2048)}, v6")
    k(f"v_add_f32 {v(vT+1)}, {f2u(16.0/2048)}, {v(vT)}")
    k("v_lshl_add_u32 v2, v4, 2, s23")
    k("v_cvt_f32_u32 v2, v2")
    for r in range(4):
        for blk in range(2):
            k(f"v_mul_f32 {v(vUs+4*blk+r)}, v2, {v(vT+blk)}")
        if r < 3:
            k("v_add_f32 v2, 1.0, v2")
    k.stamp()
    k(f"s_waitcnt vmcnt({K2_IN+CODEPF})")
    for e in range(8):
        k(f"v_lshlrev_b32 {v(vTc+e)}, 16, {v(vWt+e)}")
        k(f"v_and_b32 {v(vTs+e)}, 0xffff0000, {v(vWt+e)}")
    cmul8(k, vY, vX, vTc, vTs, +1)
    pack()
    for blk in range(2):
        xr, xi = vX + 4 * blk, vX + 8 + 4 * blk
        k(f"v_mfma_f32_16x16x32_bf16 {v(xr,4)}, {v(vP,4)}, {v(vC2+4*blk,4)}, 0")
        k(f"v_mfma_f32_16x16x32_bf16 {v(xi,4)}, {v(vP+4,4)}, {v(vC2+4*blk,4)}, 0")
        k(f"v_mfma_f32_16x16x32_bf16 {v(xr,4)}, {v(vP+4,4)}, {v(vN2+4*blk,4)}, {v(xr,4)}")
        k(f"v_mfma_f32_16x16x32_bf16 {v(xi,4)}, {v(vP,4)}, {v(vS2+4*blk,4)}, {v(xi,4)}")
    for e in range(8):
        k(f"v_cos_f32 {v(vUc+e)}, {v(vUs+e)}")
    for e in range(8):
        k(f"v_sin_f32 {v(vUs+e)}, {v(vUs+e)}")
    sc = 2.0 / (S * D)
    k(f"s_cmp_eq_u32 s{sKK}, 223")
    k(f"s_mov_b32 s26, {f2u(sc)}")
    k(f"s_cselect_b32 s26, {f2u(sc/2)}, s26")
    for e in range(8):
        k(f"v_mul_f32 {v(vUc+e)}, s26, {v(vUc+e)}")
        k(f"v_mul_f32 {v(vUs+e)}, s26, {v(vUs+e)}")
    k("v_lshrrev_b32 v2, 1, v4")
    k("v_lshl_add_u32 v2, v2, 4, v5")
    k("v_lshlrev_b32 v2, 4, v2")
    k("v_and_b32 v3, 1, v4")
    k("v_lshl_add_u32 v2, v3, 3, v2")
    k(f"s_lshl_b32 s27, s{sW}, 9")
    k("v_add_u32 v2, s27, v2")
    cmul8(k, vY, vX, vUc, vUs, +1)
    pack()
    for plane in range(2):
        for blk in range(2):
            k(f"ds_write_b64 v2, {v(vP+4*plane+2*blk,2)} offset:{8192+plane*4096+blk*2048}")
    k("s_waitcnt lgkmcnt(0)")
    k.stamp()
    k("s_barrier")
    for t in range(2):
        for blk in range(2):
            for plane in range(2):
                k(f"ds_read_b128 {v(vD+16*plane+8*blk+4*t,4)}, v7 offset:{8192+plane*4096+blk*2048+t*1024}")
    k(f"s_lshl_b32 s27, s{sW}, 10")
    k(f"s_lshl_b32 s22, s{sKK}, 13")
    k("s_add_u32 s22, s22, s27")
    k("s_add_u32 s23, s22, 4096")
    k("s_waitcnt lgkmcnt(0)")
    dft_big(vN1, vS1, lambda: None)
    for p in range(4):
        k(f"v_cvt_pk_bf16_f32 {v(vP+p)}, {v(vX+2*p)}, {v(vX+2*p+1)}")
    k(f"s_cmp_ge_u32 s{sKK}, 112")
    k("s_cselect_b32 s24, s24, 0")
    for p in range(4):
        k(f"v_cvt_pk_bf16_f32 {v(vP+4+p)}, {v(vX+8+2*p)}, {v(vX+8+2*p+1)}")
    for p in range(4):
        k(f"v_xor_b32 {v(vP+4+p)}, s24, {v(vP+4+p)}")
    k(f"buffer_store_dwordx4 {v(vP,4)}, v7, s[16:19], s22 offen{SC}")
    k(f"buffer_store_dwordx4 {v(vP+4,4)}, v7, s[16:19], s23 offen{SC}")
    k.stamp()
    if k.prof:
        k("s_waitcnt vmcnt(0)")
    k.stamp_flush(6, PROF + (1 << 20), sW)
    k.label(END)
    k("s_endpgm")
    k.label("k2_code_end")
    if K2_SP:
        nk = 28 - K2_SP
        k.label(PFL)
        k("s_cmp_ge_u32 s2, 256")
        k(f"s_cbranch_scc1 {END}")
        k("s_load_dwordx2 s[6:7], s[0:1], 72")
        k("v_lshrrev_b32 v2, 6, v0")
        k("v_and_b32 v1, 63, v0")
        k("v_readfirstlane_b32 s20, v2")
        k("v_lshlrev_b32 v3, 4, v1")
        k("s_bfe_u32 s21, s2, 0x20003")
        k("s_lshr_b32 s22, s20, 1")
        k("s_lshl1_add_u32 s21, s21, s22")
        k(f"s_mul_i32 s21, s21, {7*57344}")
        k("s_and_b32 s22, s20, 1")
        k(f"s_mul_i32 s22, s22, {nk*1024}")
        k("s_add_u32 s21, s21, s22")
        k(f"s_add_u32 s21, s21, {K2_SP*2048}")
        k("s_movk_i32 s22, 7")
        k("s_waitcnt lgkmcnt(0)")
        k.srd_off(8, 6, WSB + WS, 56 * 57344)
        LP = k.lab("lp")
        k.label(LP)
        k("s_mov_b32 s23, s21")
        for i in range(nk):
            k(f"buffer_load_dwordx4 {v(8+4*i,4)}, v3, s[8:11], s23 offen offset:{(i%4)*1024}")
            if i % 4 == 3:
                k("s_add_u32 s23, s23, 4096")
        k(f"s_waitcnt vmcnt({nk})")
        k("s_add_u32 s21, s21, 57344")
        k("s_sub_u32 s22, s22, 1")
        k("s_cmp_lg_u32 s22, 0")
        k(f"s_cbranch_scc1 {LP}")
        k("s_endpgm")
    if K2_PF:
        k.label(PFL)
        k("s_cmp_ge_u32 s2, 448")
        k(f"s_cbranch_scc1 {END}")
        k("s_load_dwordx2 s[6:7], s[0:1], 72")
        k("v_lshrrev_b32 v2, 6, v0")
        k("v_and_b32 v1, 63, v0")
        k("v_readfirstlane_b32 s20, v2")
        k("v_lshlrev_b32 v3, 4, v1")
        k("s_lshr_b32 s21, s2, 3")
        k("s_sub_u32 s21, s21, 28")
        k("s_lshr_b32 s22, s20, 1")
        k("s_lshl1_add_u32 s21, s21, s22")
        k("s_mul_i32 s21, s21, 57344")
        k("s_and_b32 s22, s20, 1")
        k(f"s_mul_i32 s22, s22, {K2_PF*1024}")
        k("s_add_u32 s21, s21, s22")
        k("s_waitcnt lgkmcnt(0)")
        k.srd_off(8, 6, WSB + WS, 56 * 57344)
        for i in range(K2_PF):
            k(f"buffer_load_dwordx4 {v(8+4*i,4)}, v3, s[8:11], s21 offen offset:{(i%4)*1024}")
            if i % 4 == 3:
                k("s_add_u32 s21, s21, 4096")
        k("s_endpgm")
    return k


HEADER = """; Fused preLN + GFNet spectral filter + preLN bilinear GLU, generated by gen/gen.py
"""


def build(kernels):
    out = [HEADER.rstrip()]
    for kern, grid, block, lds in kernels:
        out.append(f"; @launch kernel={kern.name} grid=({grid},1,1) block=({block},1,1) lds={lds}")
    out.append('.amdgcn_target "amdgcn-amd-amdhsa--gfx950"')
    out.append(".text")
    descs = []
    seen = set()
    for kern, *_ in kernels:
        if kern.name in seen:
            continue
        seen.add(kern.name)
        body, desc = kern.emit()
        print(kern.name, kern.stats, file=sys.stderr)
        out.append(body)
        descs.append(desc)
    out.append('.section .rodata,"a"')
    for d in descs:
        out.append(".p2align 6")
        out.append(d)
    return "\n".join(out) + "\n"


def kernel_list():
    from gen3 import gen_k3, K3_LDS, K3_WGS
    return [(gen_k1(), K1_WGS, 256, K1_LDS), (gen_k2(), 448 if K2_PF else 256 if K2_SP else 224, 256, K2_LDS), (gen_k3(), K3_WGS, 256, K3_LDS)]


if __name__ == "__main__":
    if "--prof" in sys.argv:
        Kern.prof = True
        sys.argv.remove("--prof")
    path = sys.argv[1] if len(sys.argv) > 1 else "sequential_preLN__spectral_gfnet__glu_gated_bilinear__prompt.s"
    open(path, "w").write(build(kernel_list()))
```

```python
import os
import sys
from asmlib import Kern, v, a, s
from gen import *

XT = 114688
R2 = 122880
FF = 65536
K3_LDS = 123904
SPIN_MAX = 1 << 18
E = lambda n, d: int(os.environ.get(n, d))
NW = [int(x) for x in os.environ.get("NW", "8,8,0,8,0").split(",")]
KS = E("KS", 8)
EPI_A = E("EPI_A", 2)
DRAIN_A = E("DRAIN_A", 24)
POLL_A = E("POLL_A", 37)
CHECK_A = E("CHECK_A", 99)
DRAIN_B = E("DRAIN_B", 13)
POLL_B = E("POLL_B", 21)
CHECK_B = E("CHECK_B", 26)
NDMA0 = E("NDMA0", 7)
ROTB = E("ROTB", 1)
ROTW = E("ROTW", 0)
ROTD = E("ROTD", 0)
SPARE = E("SPARE", 1)
TOUCH = E("TOUCH", 0)
SP_WS = eval(os.environ.get("SP_WS", "(2,3,4,5,6)"))
WBL = eval(os.environ.get("WBL", "(0, 256, 3072)"))
LATE = E("LATE", 46)
SCO = os.environ.get("SCO", " sc1")
EPI_B0 = E("EPI_B0", 6)
RING1 = E("RING1", 8)
RED0 = E("RED0", 31)
MA = E("MA", 0)
RING = E("RING", 12)
LD = os.environ.get("LD", "")
P4ST = eval(os.environ.get("P4ST", "()"))
P5ST = eval(os.environ.get("P5ST", "()"))
K3_WGS = 256 if SPARE else 224
SSP = 0x1502000


class VM:
    def __init__(self, k):
        self.k, self.n = k, 0

    def op(self, text):
        self.k(text)
        self.n += 1
        return self.n - 1

    def wait(self, idx, extra=""):
        self.k(f"s_waitcnt vmcnt({self.n - idx - 1}){extra}")


def gen_k3():
    k = Kern("k3_kernel", 0, 0)
    vm = VM(k)
    END = k.lab("end")
    sW, sRB, sCT, sHALF, sRT, sFB = 20, 21, 22, 23, 24, 25
    sFL, sFI, sXC = 33, 39, 40
    vL4, vOne, vLP = 30, 2, 0

    mode = [""]

    def store2(text):
        return vm.op(text + mode[0])

    def arrive(off):
        vm.op(f"buffer_store_dword {v(vOne)}, off, s[8:11], s{sFI} offset:{off}{mode[0]}")

    def poll_issue(off):
        return vm.op(f"buffer_load_dword v31, {v(vLP)}, s[8:11], s{sFL} offen offset:{off} sc1")

    outline = []

    def poll(off, mark):
        loop, done = k.lab("poll"), k.lab("done")
        vm.wait(mark)
        k("v_cmp_eq_u32 vcc, 0, v31")
        k(f"s_mov_b32 s50, {SPIN_MAX}")
        k(f"s_cbranch_vccnz {loop}")
        k.label(done)
        outline.append(f"""{loop}:
        buffer_load_dword v31, {v(vLP)}, s[8:11], s{sFL} offen offset:{off} sc1
        s_sub_u32 s50, s50, 1
        s_waitcnt vmcnt(0)
        s_cmp_eq_u32 s50, 0
        s_cbranch_scc1 {done}
        v_cmp_eq_u32 vcc, 0, v31
        s_nop 0
        s_cbranch_vccnz {loop}
        s_branch {done}""")

    PFL = k.lab("pf")
    k("s_cmp_ge_u32 s2, 224")
    k(f"s_cbranch_scc1 {PFL if SPARE else END}")
    k.stamp()
    k("s_load_dwordx2 s[6:7], s[0:1], 72")
    k("s_load_dwordx2 s[4:5], s[0:1], 0")
    k("s_load_dwordx2 s[44:45], s[0:1], 56")
    k("v_lshrrev_b32 v2, 6, v0")
    k("v_and_b32 v1, 63, v0")
    k(f"v_readfirstlane_b32 s{sW}, v2")
    k("s_lshr_b32 s26, s2, 3")
    div7(k, 27, 26)
    if os.environ.get("MAP", "A") == "A":
        k("s_and_b32 s28, s2, 7")
        k(f"s_lshl2_add_u32 s{sRT}, s28, s27")
        k(f"s_and_b32 s{sHALF}, s27, 1")
        k(f"s_lshr_b32 s{sRB}, s{sRT}, 1")
    else:
        k("s_bfe_u32 s28, s2, 0x20001")
        k(f"s_lshl2_add_u32 s{sRB}, s28, s27")
        k(f"s_and_b32 s{sHALF}, s2, 1")
        k(f"s_lshl1_add_u32 s{sRT}, s{sRB}, s{sHALF}")
    k("s_mul_i32 s28, s27, 7")
    k(f"s_sub_u32 s{sCT}, s26, s28")
    vL16, vG, vC = 3, 4, 5
    k(f"v_lshrrev_b32 {v(vG)}, 4, v1")
    k(f"v_and_b32 v6, 1, {v(vG)}")
    k(f"s_and_b32 s29, s{sW}, 1")
    k("s_lshl_b32 s29, s29, 2")
    k("v_lshl_or_b32 v6, v6, 1, s29")
    k("v_and_b32 v7, 7, v1")
    k("v_xor_b32 v6, v6, v7")
    k("v_lshrrev_b32 v8, 3, v1")
    k("v_lshlrev_b32 v9, 12, v8")
    k("v_lshl_add_u32 v6, v6, 4, v9")
    k(f"s_lshl_b32 s28, s{sW}, 15")
    k(f"s_lshl_b32 s27, s{sRT}, 7")
    k("s_add_u32 s26, s28, s27")
    k(f"s_add_u32 s26, s26, {BT}")
    k("s_sub_u32 s48, s27, s28")
    k(f"s_add_u32 s48, s48, {BT + 438*4096}")
    k(f"s_lshl_b32 s27, s{sW}, 10")
    k(f"s_bitcmp1_b32 s{sCT}, 0") if ROTB else k("s_cmp_lg_u32 0, 0")
    k("s_cselect_b32 s49, s26, s48")
    k("s_cselect_b32 s26, s48, s26")
    k("s_cselect_b32 s48, 0xfffe0000, 0x20000".replace("0xfffe0000, 0x20000", "s48, s48")) if False else None
    k("s_cselect_b32 s51, 0x6000, 0")
    k("s_cselect_b32 s52, 28672, 0")
    k("s_mov_b32 s48, 0x20000")
    k("s_cselect_b32 s48, 0xfffe0000, s48")
    k("v_xor_b32 v6, s51, v6")
    k("s_add_u32 m0, s27, s52")
    k("s_waitcnt lgkmcnt(0)")
    k.srd_off(8, 6, WSB, WS_BYTES)
    saved, k.lines = k.lines, []
    k(f"v_and_b32 {v(vC)}, 15, v1")
    vGm = 32
    vB, vST, vE, vT = 14, 15, 15, 20
    k(f"s_lshl_b32 s46, s{sCT}, 6")
    k(f"s_lshl_b32 s47, s{sW}, 4")
    k("s_add_u32 s46, s46, s47")
    k(f"v_add_u32 v27, s46, {v(vC)}")
    k("v_cvt_f32_u32 v27, v27")
    for p in range(1, 4):
        k(f"v_mul_f32 {v(vE+p)}, {f2u(p/448.0)}, v27")
    k(f"v_mul_f32 {v(vST)}, {f2u(16.0/448)}, v27")
    k(f"v_fract_f32 {v(vST)}, {v(vST)}")
    k(f"v_lshl_add_u32 v19, {v(vG)}, 2, 1")
    k("v_cvt_f32_u32 v19, v19")
    k(f"v_mul_f32 {v(vB)}, v19, {v(vE+1)}")
    k(f"v_fract_f32 {v(vB)}, {v(vB)}")
    for t in range(7):
        k(f"v_cos_f32 {v(vT+4)}, {v(vB)}")
        k(f"v_sin_f32 {v(vT)}, {v(vB)}")
        for p in range(1, 4):
            k(f"v_add_f32 {v(vT+p)}, {v(vB)}, {v(vE+p)}")
        if t < 6:
            k(f"v_add_f32 {v(vB)}, {v(vB)}, {v(vST)}")
            k(f"v_fract_f32 {v(vB)}, {v(vB)}")
        for p in range(1, 4):
            k(f"v_cos_f32 {v(vT+4+p)}, {v(vT+p)}")
            k(f"v_sin_f32 {v(vT+p)}, {v(vT+p)}")
        for p in range(4):
            k(f"v_cvt_pk_bf16_f32 {v(vGm+4*t+p)}, {v(vT+4+p)}, -{v(vT+p)}")
    gen_lines, k.lines = k.lines, []
    def nyq(first):
        k(f"s_cmp_eq_u32 s{sW}, 3")
        k(f"s_cselect_b32 s28, {224*4096 >> 6}, 0")
        k("s_cmp_lg_u32 s51, 0" if first else "s_cmp_eq_u32 s51, 0")
        k("s_cselect_b32 s28, s28, 0")
        k("v_add_u32 v9, 16, v1")
        k("v_and_b32 v9, 64, v9")
        k("v_mad_u32_u24 v9, v9, s28, v6")

    for hf in range(2):
        for t in range(7):
            if t == 6:
                nyq(hf == 0)
            vm.op(f"buffer_load_dwordx4 v{9 if t == 6 else 6}, s[8:11], s{26 if hf == 0 else 49} offen lds")
            if t < 6:
                k("s_add_u32 m0, m0, 4096")
                k("s_add_u32 s26, s26, s48" if hf == 0 else "s_sub_u32 s49, s49, s48")
        if hf == 0:
            k("s_sub_u32 s52, 28672, s52")
            k("s_add_u32 m0, s27, s52")
            k("v_xor_b32 v6, 0x6000, v6")
    vXO = 10
    k.srd(12, 4, XB)
    k("v_lshrrev_b32 v9, 5, v1")
    k("v_and_b32 v8, 3, v8")
    k("v_lshl_add_u32 v8, v9, 4, v8")
    k("v_mul_u32_u24 v8, 0x380, v8")
    k(f"v_xor_b32 v7, v7, {v(vG)}")
    k("v_xor_b32 v7, s29, v7")
    k(f"v_lshl_add_u32 {v(vXO)}, v7, 4, v8")
    sSB, sXO = 29, 30
    k(f"s_lshr_b32 s26, s{sRT}, 3")
    k("s_lshl_b32 s26, s26, 9")
    k(f"s_lshl_b32 s28, s{sHALF}, 8")
    k("s_add_u32 s26, s26, s28")
    k(f"s_and_b32 s28, s{sRB}, 3")
    k(f"s_lshl2_add_u32 s{sSB}, s28, s26")
    k(f"s_lshl_b32 s26, s{sW}, 5")
    k(f"s_add_u32 s26, s26, s{sSB}")
    k("s_mul_i32 s26, s26, 896")
    k(f"s_lshl_b32 s28, s{sCT}, 7")
    k(f"s_add_u32 s{sXO}, s26, s28")
    k(f"s_add_u32 s{sXO+1}, s{sXO}, {128*896}")
    k(f"s_add_u32 m0, s27, {XT}")
    vm.op(f"buffer_load_dwordx4 {v(vXO)}, s[12:15], s{sXO} offen lds")
    k(f"s_add_u32 m0, s27, {XT+4096}")
    vm.op(f"buffer_load_dwordx4 {v(vXO)}, s[12:15], s{sXO+1} offen lds")
    vM = 12
    k("v_bfe_u32 v7, v1, 3, 2")
    k("v_bfe_u32 v8, v1, 2, 1")
    k("v_lshlrev_b32 v8, 4, v8")
    k("v_lshl_add_u32 v7, v7, 5, v8")
    k("v_and_b32 v8, 3, v1")
    k("v_add_lshl_u32 v7, v7, v8, 2")
    k(f"s_lshl_b32 s26, s{sSB}, 2")
    k(f"s_add_u32 s26, s26, {M1}")
    vm.op(f"buffer_load_dword {v(vM)}, v7, s[8:11], s26 offen")
    p3_loads = vm.op(f"buffer_load_dword {v(vM+1)}, v7, s[8:11], s26 offen offset:512")
    k(f"s_lshl_b32 s{sFL}, s{sRB}, 10")
    k(f"s_add_u32 s{sFL}, s{sFL}, {FL}")
    k(f"s_getreg_b32 s{sXC}, hwreg(HW_REG_XCC_ID, 0, 4)")
    NOC = k.lab("noc")
    k(f"s_cmp_lg_u32 s{sW}, 0")
    k(f"s_cbranch_scc1 {NOC}")
    k(f"s_lshl_b32 s26, s{sXC}, 2")
    k("s_lshl_b32 s26, 1, s26")
    k(f"s_lshr_b32 s28, s{sXC}, 3")
    k(f"s_lshl2_add_u32 s28, s28, s{sFL}")
    k("s_mov_b64 exec, 1")
    k("v_mov_b32 v31, s26")
    k("buffer_atomic_add v31, off, s[8:11], s28 offset:768 sc1")
    k("s_mov_b64 exec, -1")
    k.label(NOC)
    k.stamp()
    k(f"v_lshlrev_b32 {v(vL16)}, 4, v1")
    k(f"v_lshlrev_b32 {v(vL4)}, 2, v1")
    k(f"v_mov_b32 {v(vOne)}, 1")
    k(f"s_mul_i32 s28, s{sHALF}, 7")
    k(f"s_add_u32 s28, s28, s{sCT}")
    k(f"s_lshl2_add_u32 s{sFB}, s28, s{sW}")
    k(f"s_lshl2_add_u32 s{sFI}, s{sFB}, s{sFL}")
    k(f"v_min_u32 {v(vLP)}, 220, {v(vL4)}")
    sWS = 32
    k(f"s_mul_i32 s{sWS}, s{sW if os.environ.get('FAKEW') else sFB}, 57344")
    k(f"s_add_u32 s{sWS}, s{sWS}, {WS}")
    sRH = 56
    k(f"s_and_b32 s{sRH}, s{sRB}, {ROTW}")
    k(f"s_mul_i32 s{sRH}, s{sRH}, 14336")
    k(f"s_lshl1_add_u32 s{sWS}, s{sRH}, s{sWS}")
    wn = [0]
    wid = []

    def wload(cnt=1):
        for _ in range(cnt):
            n = wn[0]
            wn[0] += 1
            wid.append(vm.op(f"buffer_load_dwordx4 {a(4*n,4)}, {v(vL16)}, s[8:11], s{sWS} offen offset:{(n%4)*1024}"))
            if n % 4 == 3:
                k(f"s_add_u32 s{sWS}, s{sWS}, 4096")
            if n == 27:
                k(f"s_lshl_b32 s57, s{sRH}, 2")
                k(f"s_sub_u32 s{sWS}, s{sWS}, s57")

    k.srd(16, 44, XB)
    load_lines, k.lines = k.lines, saved
    per = -(-len(gen_lines) // 15)
    branchy = False
    for t_ in load_lines:
        k(t_)
        if t_.startswith("buffer_load") and gen_lines:
            for _ in range(min(per, len(gen_lines))):
                k(gen_lines.pop(0))
    for t_ in gen_lines:
        k(t_)
    vTB = 14
    k("v_bfe_u32 v7, v1, 2, 2")
    k(f"v_lshlrev_b32 v8, 10, {v(vG)}")
    k("v_lshl_add_u32 v8, v7, 7, v8")
    k("v_and_b32 v9, 3, v1")
    k("v_lshl_add_u32 v8, v9, 3, v8")
    k("v_lshrrev_b32 v7, 1, v7")
    k(f"v_and_b32 v9, 1, {v(vG)}")
    k("v_lshl_add_u32 v7, v9, 1, v7")
    k(f"v_lshl_add_u32 {v(vTB)}, v7, 5, v8")
    for nb in range(1, 4):
        k(f"v_xor_b32 {v(vTB+nb)}, {32*nb}, {v(vTB)}")
    vXA = 18
    k("v_lshrrev_b32 v7, 5, v1")
    k(f"s_lshl_b32 s26, s{sW}, 1")
    k("v_or_b32 v7, s26, v7")
    k("v_bfe_u32 v8, v1, 1, 3")
    k("v_xor_b32 v7, v7, v8")
    k("v_and_b32 v8, 31, v1")
    k("v_lshlrev_b32 v8, 7, v8")
    k("v_lshl_add_u32 v7, v7, 4, v8")
    k(f"v_add_u32 {v(vXA)}, {XT}, v7")
    k.stamp()
    if TOUCH:
        k(f"s_and_b32 s57, s{sRB}, 1")
        k("s_lshl_b32 s57, s57, 13")
        k(f"s_add_u32 s57, s57, s{sWS}")
        k("s_add_u32 s57, s57, 16384")
        k("v_lshlrev_b32 v62, 7, v1")
        wload(NW[0])
        vm.op("buffer_load_dword v63, v62, s[8:11], s57 offen")
    else:
        wload(NW[0])
    vm.wait(p3_loads)
    k("s_barrier")
    census = vm.op(f"buffer_load_dwordx2 v[28:29], off, s[8:11], s{sFL} offset:768 sc1")
    k.stamp()
    vR, vA = 88, 120
    seq = [(t, nb) for t in range(14) for nb in range(4)]

    def rd(n):
        t, nb = seq[n]
        for u in range(2):
            k(f"ds_read_b64_tr_b16 {v(vR+4*(n%8)+2*u,2)}, {v(vTB+nb)} offset:{t*4096+u*512}")

    DEPTH = 6
    for n in range(DEPTH):
        rd(n)
    done_in = 0
    for n in range(56):
        t, nb = seq[n]
        k(f"s_waitcnt lgkmcnt({2*min(DEPTH-1, 55-n)})")
        acc = vA + 16 * (t // 7) + 4 * nb
        c = "0" if t % 7 == 0 else v(acc, 4)
        k(f"v_mfma_f32_16x16x32_bf16 {v(acc,4)}, {v(vGm+4*(t%7),4)}, {v(vR+4*(n%8),4)}, {c}")
        if n == 32:
            k("s_mov_b32 exec_lo, 0")
            k("s_mov_b32 exec_hi, 0xffff0000")
            k(f"v_mov_b32 {v(vGm+27)}, 0x3f80")
            k("s_mov_b64 exec, -1")
        if n + DEPTH < 56:
            rd(n + DEPTH)
        if (n + 1) * NW[1] // 56 > done_in:
            wload()
            done_in += 1
    vX = 20
    k(f"ds_read_b128 {v(vX,4)}, {v(vXA)}")
    k(f"ds_read_b128 {v(vX+4,4)}, {v(vXA)} offset:4096")
    k(f"s_mul_i32 s26, s{sRT}, 56")
    k(f"s_lshl2_add_u32 s27, s{sCT}, s{sW}")
    k("s_add_u32 s26, s26, s27")
    k("s_lshl_b32 s26, s26, 10")
    k(f"s_add_u32 s26, s26, {HC}")
    k(f"s_add_u32 s27, s26, {28*1024}")
    CL, CD, FAST = k.lab("cl"), k.lab("cd"), k.lab("fast")
    k(f"s_mov_b32 s50, {SPIN_MAX}")
    vm.wait(census)
    k.label(CL)
    k("v_readfirstlane_b32 s52, v28")
    k("v_readfirstlane_b32 s53, v29")
    k(f"s_cmp_ge_u32 s{sXC}, 8")
    k("s_cselect_b32 s54, s53, s52")
    k(f"s_lshl_b32 s55, s{sXC}, 2")
    k("s_lshr_b32 s54, s54, s55")
    k("s_and_b32 s54, s54, 15")
    k(f"s_cmp_eq_u32 s54, {14 if not os.environ.get('SLOW') else 15}")
    k(f"s_cbranch_scc1 {FAST}")
    for r in (52, 53):
        k(f"s_lshr_b32 s54, s{r}, 4")
        k("s_and_b32 s54, s54, 0x0f0f0f0f")
        k(f"s_and_b32 s{r}, s{r}, 0x0f0f0f0f")
        k(f"s_add_u32 s{r}, s{r}, s54")
    k("s_add_u32 s52, s52, s53")
    k("s_mul_i32 s52, s52, 0x01010101")
    k("s_lshr_b32 s52, s52, 24")
    k("s_cmp_ge_u32 s52, 14")
    k(f"s_cbranch_scc1 {CD}")
    k("s_sub_u32 s50, s50, 1")
    k("s_cmp_eq_u32 s50, 0")
    k(f"s_cbranch_scc1 {CD}")
    k(f"buffer_load_dwordx2 v[28:29], off, s[8:11], s{sFL} offset:768 sc1")
    k("s_waitcnt vmcnt(0)")
    k(f"s_branch {CL}")
    k.label(CD)
    nst = getattr(k, "_nst", 0)
    state = (vm.n, wn[0], list(wid), getattr(k, "_seq", 0))

    def rest():
        for r in range(16):
            k(f"v_{'sub' if r & 1 else 'add'}_f32 {v(vA+r)}, {v(vA+r)}, {v(vA+16+r)}")
        for p in range(2):
            for r in range(4):
                k(f"v_permlane16_swap_b32 {v(vA+8*p+r)}, {v(vA+8*p+4+r)}")
        k("s_waitcnt lgkmcnt(0)")
        vH, vHc, vU = 32, 40, 48
        for p in range(2):
            for q in range(4):
                y0, y1 = vA + 8 * p + 2 * q, vA + 8 * p + 2 * q + 1
                k(f"v_lshlrev_b32 {v(vU)}, 16, {v(vX+4*p+q)}")
                k(f"v_and_b32 {v(vU+1)}, 0xffff0000, {v(vX+4*p+q)}")
                k(f"v_add_f32 {v(y0)}, {v(y0)}, {v(vU)}")
                k(f"v_add_f32 {v(y1)}, {v(y1)}, {v(vU+1)}")
                k(f"v_sub_f32 {v(y0+16)}, {v(y0)}, {v(vM+p)}")
                k(f"v_sub_f32 {v(y1+16)}, {v(y1)}, {v(vM+p)}")
                k(f"v_cvt_pk_bf16_f32 {v(vHc+4*p+q)}, {v(y0+16)}, {v(y1+16)}")
            hc_st = store2(f"buffer_store_dwordx4 {v(vHc+4*p,4)}, {v(vL16)}, s[8:11], s{26+p} offen")
        wload(NW[2])
        for p in range(2):
            for q in range(4):
                y0, y1 = vA + 8 * p + 2 * q, vA + 8 * p + 2 * q + 1
                k(f"v_cvt_pk_bf16_f32 {v(vH+4*p+q)}, {v(y0)}, {v(y1)}")
            k(f"ds_write_b128 {v(vXA)}, {v(vH+4*p,4)} offset:{4096*p}")
        for p in range(2):
            k(f"v_mul_f32 {v(vM+p)}, {v(vA+16+8*p)}, {v(vA+16+8*p)}")
        for e in range(1, 8):
            for p in range(2):
                k(f"v_fmac_f32 {v(vM+p)}, {v(vA+16+8*p+e)}, {v(vA+16+8*p+e)}")
        k(f"s_lshl_b32 s26, s{sW}, 8")
        k(f"s_add_u32 s26, s26, {R2}")
        k(f"v_add_u32 v7, s26, {v(vL4)}")
        k(f"v_permlane32_swap_b32 {v(vM)}, {v(vM+1)}")
        k(f"v_add_f32 {v(vM)}, {v(vM)}, {v(vM+1)}")
        k(f"ds_write_b32 v7, {v(vM)}")
        sDG, sDL = 26, 42
        k(f"s_mul_i32 s{sDG}, s{sRB}, 114688")
        k(f"s_add_u32 s{sDG}, s{sDG}, {HC}")
        k(f"s_mul_i32 s{sDL}, s{sW}, 28672")
        k(f"s_and_b32 s28, s{sW}, 1")
        k("s_mul_i32 s28, s28, 57344")
        k(f"s_lshr_b32 s36, s{sW}, 1")
        k(f"s_lshl_b32 s{sDL+1}, s36, 10")
        k(f"s_add_u32 s{sDL+1}, s{sDL+1}, s28")
        k(f"s_add_u32 s27, s{sDG}, s{sDL+1}")
        k(f"s_add_u32 s{sDG}, s{sDG}, s{sDL}")
        k(f"s_sub_u32 s58, s{sDG}, s{sRH}")
        k(f"s_sub_u32 s59, s27, s{sRH}")
        k(f"s_add_u32 s{sDG}, s{sDG}, s{sRH}")
        k(f"s_add_u32 s27, s27, s{sRH}")
        vB1, vBS, vSS, vWL = 6, 7, 8, 11
        k(f"v_add_u32 {v(vB1)}, 57344, {v(vL16)}")
        sSS = 41
        k(f"s_mul_i32 s{sSS}, s{sRT}, 1792")
        k(f"s_add_u32 s{sSS}, s{sSS}, {SSP}")
        k(f"v_add_u32 v7, {R2}, {v(vL4)}")
        sWD = 34
        k(f"s_mul_i32 s28, s{sCT}, {0 if os.environ.get('FAKED') else 112}")
        k(f"s_mul_i32 s36, s{sW}, 28")
        k("s_add_u32 s28, s28, s36")
        k("s_lshl_b32 s28, s28, 11")
        k(f"s_add_u32 s54, s28, {WD}")
        sHS = 36
        k(f"s_mul_i32 s{sHS}, s{sRB}, {4*112}")
        k(f"s_lshl1_add_u32 s{sHS}, s{sFB}, s{sHS}")
        k(f"s_lshl_b32 s{sHS}, s{sHS}, 10")
        k(f"s_add_u32 s{sHS}, s{sHS}, {HP}")
        sHP = 37
        k(f"s_mul_i32 s{sHP}, s{sRT}, 224")
        k(f"s_mul_i32 s28, s{sW}, 28")
        k(f"s_add_u32 s{sHP}, s{sHP}, s28")
        k(f"s_lshl_b32 s{sHP}, s{sHP}, 10")
        k(f"s_add_u32 s{sHP}, s{sHP}, {HP}")
        k.stamp()
        vm.wait(hc_st, " lgkmcnt(0)")
        k.stamp()
        arrive(0)
        mark0 = poll_issue(0)
        wload(NW[3])
        poll(0, mark0)
        wload(NW[4])
        k.stamp()
        uses = [(kp, b) for kp in range(KS) for b in range(4)]
        uses += [(kp, b) for kp in range(KS, 28) for b in (0, 2)]
        uB = len(uses)
        uses += [(kp, b) for kp in range(KS, 28) for b in (1, 3)]
        first_use = {kp: min(u for u, x in enumerate(uses) if x[0] == kp) for kp in range(28)}
        last_use = {kp: max(u for u, x in enumerate(uses) if x[0] == kp) for kp in range(28)}
        npair = (28 - KS) // 2
        D = []

        def dma():
            i = len(D)
            if i < KS:
                sel, off = 0, i * 1024
            else:
                sel, off = 1, ((i - KS) // npair) * 28672 + (KS + 2 * ((i - KS) % npair)) * 1024
            k(f"s_add_u32 m0, s{sDL+sel}, {off}")
            k(f"s_add_u32 s28, s{(sDG if off % 28672 < 14336 else 58)+sel}, {off}")
            D.append(vm.op(f"buffer_load_dwordx4 {v(vL16)}, s[8:11], s28 offen{LD} lds"))

        wd_regs = [(0, lambda m, i=i: a(224 + 8 * i + 4 * m, 4)) for i in range(4)]
        wd_regs += [(0, lambda m, i=i: v(64 + 8 * i + 4 * m, 4)) for i in range(8)]
        wd_regs += [(last_use[i] + 1, lambda m, i=i: a(8 * i + 4 * m, 4)) for i in range(16)]

        def wdreg(kp, m):
            return wd_regs[kp][1](m)

        wdn = [0]
        wd_id = {}

        def quarter(dst, g, size, base):
            k(f"s_add_u32 s{dst}, s{sRT}, {g}" if ROTD else f"s_mov_b32 s{dst}, {g}")
            k(f"s_and_b32 s{dst}, s{dst}, 3")
            k(f"s_mul_i32 s{dst}, s{dst}, {size}")
            k(f"s_add_u32 s{dst}, s{dst}, s{base}")

        def wdload():
            n = wdn[0]
            wdn[0] += 1
            kp, m = n // 2, n % 2
            if n % 14 == 0:
                quarter(sWD, kp // 7, 14336, 54)
            wd_id[kp] = vm.op(f"buffer_load_dwordx4 {wdreg(kp,m)}, {v(vL16)}, s[8:11], s{sWD} offen offset:{(n%14%4)*1024}")
            if n % 14 % 4 == 3:
                k(f"s_add_u32 s{sWD}, s{sWD}, 4096")

        aQ = 128
        hl = []

        def hload():
            n = len(hl)
            p, kp = n // 28, n % 28
            if n == 28:
                k(f"s_add_u32 s{sHP}, s{sHP}, {112*1024}")
            if kp % 7 == 0:
                quarter(46, kp // 7, 7168, sHP)
            if kp % 7 == 4:
                k("s_add_u32 s46, s46, 4096")
            hl.append(vm.op(f"buffer_load_dwordx4 {a(aQ+4*(n%24),4)}, {v(vL16)}, s[8:11], s46 offen offset:{(kp%7%4)*1024}{LD}"))

        vF, vAcc, LOOK = 32, 128, 4
        accreg = {0: vAcc, 2: vAcc + 32, 1: vAcc + 64, 3: vAcc + 96}

        def rd4(u):
            kp, b = uses[u]
            k(f"ds_read_b128 {v(vF+4*(u%6),4)}, {v(vL16 if b < 2 else vB1)} offset:{(b&1)*28672+kp*1024}")

        last_st = [None]

        def hp_store(b, u):
            if u == 0:
                k(f"s_add_u32 s38, s{sHS}, {b*112*1024}")
            last_st[0] = store2(f"buffer_store_dwordx4 {v(accreg[b]+4*u,4)}, {v(vL16)}, s[8:11], s38 offen offset:{u*1024}" + (" sc1" if MA and b % 2 == 0 and not mode[0] else ""))

        def epilogue(ps):
            items = [(b, r) for b in (ps, ps + 2) for r in range(8)]
            out = []
            for i in range(len(items) + 1):
                grp = []
                if i < len(items):
                    b, r = items[i]
                    g_, u_ = accreg[b], accreg[b] + 16
                    grp += [f"v_mul_f32 {v(u_+2*r)}, {v(g_+2*r)}, {v(u_+2*r)}",
                            f"v_mul_f32 {v(u_+2*r+1)}, {v(g_+2*r+1)}, {v(u_+2*r+1)}"]
                if i > 0:
                    b, r = items[i - 1]
                    g_, u_ = accreg[b], accreg[b] + 16
                    grp.append(f"v_cvt_pk_bf16_f32 {v(g_+r)}, {v(u_+2*r)}, {v(u_+2*r+1)}")
                out.append(grp)
                if i > 0 and items[i - 1][1] % 4 == 3:
                    out.append(lambda b=items[i - 1][0], u=items[i - 1][1] // 4: hp_store(b, u))
            return out

        def put(q, cnt=1):
            for _ in range(cnt):
                if q:
                    e = q.pop(0)
                    if callable(e):
                        e()
                    else:
                        for t_ in e:
                            k(t_)

        chunks = eval(os.environ.get("CHUNKS", "{0: 2, 3: 6, 7: 15, 16: 27}"))
        for _ in range(NDMA0):
            dma()
        k("ds_read2st64_b32 v[12:13], v7 offset1:1")
        k("ds_read2st64_b32 v[14:15], v7 offset0:2 offset1:3")
        k(f"s_lshl_b32 s47, s{sCT}, 8")
        k(f"s_add_u32 s47, s47, s{sSS}")
        k("s_waitcnt lgkmcnt(0)")
        k("v_add_f32 v12, v12, v13")
        k("v_add_f32 v14, v14, v15")
        k("v_add_f32 v12, v12, v14")
        store2(f"buffer_store_dword v12, {v(vL4)}, s[8:11], s47 offen")
        vm.wait(D[chunks[0]])
        k("s_barrier")
        k.stamp()
        for u in range(LOOK):
            rd4(u)
        todo = [(i - 30, "d") for i in range(NDMA0, 28)]
        todo += [(first_use[i // 2] - 14 + 0.01 * i, "w") for i in range(wn[0], 56)]
        todo = [o for _, o in sorted(todo)]
        epi = epilogue(0)
        checked = False
        for u in range(112):
            kp, b = uses[u]
            if (u + LOOK) % 4 == 0 and (u + LOOK) // 4 in chunks:
                vm.wait(D[chunks[(u + LOOK) // 4]])
                k("s_barrier")
            if u == first_use[kp] and 2 * kp + 1 >= sum(NW):
                vm.wait(wid[2 * kp + 1])
            if u == uB + DRAIN_A:
                assert not epi
                vm.wait(last_st[0])
                arrive(256)
            if u == uB + POLL_A:
                markA = poll_issue(256)
            if u == uB + CHECK_A:
                poll(256, markA)
                checked = True
            if u % 2 == 0:
                k(f"s_waitcnt lgkmcnt({min(LOOK - 2, 110 - u)})")
            for m in range(2):
                acc = accreg[b] + 16 * m
                c = "0" if kp == 0 else v(acc, 16)
                k(f"v_mfma_f32_32x32x16_bf16 {v(acc,16)}, {a(8*kp+4*m,4)}, {v(vF+4*(u%6),4)}, {c}")
                if m == 0:
                    if u + LOOK < 112:
                        rd4(u + LOOK)
                    if u >= uB + 1:
                        put(epi)
                else:
                    if u >= uB + 1 and EPI_A == 2:
                        put(epi)
                    if todo:
                        dma() if todo.pop(0) == "d" else wload()
                    elif checked and len(hl) < RING and last_use[16 + len(hl) // 2] < u:
                        hload()
                    elif wdn[0] < 56 and wd_regs[wdn[0] // 2][0] <= u:
                        wdload()
            if u in P4ST:
                k.stamp(1)
            if u == uB - 1 or u == 111:
                k.stamp()
        assert len(D) == 28 and wn[0] == 56
        print("after P4: down loads issued", wdn[0], "h loads", len(hl), file=sys.stderr)
        vRW, vRR, vR2, vHR, vSP = 12, 20, 22, 24, 56
        vAc5, vT5 = 128, 192
        fill = epilogue(1)
        if not checked:
            put(fill, EPI_B0)
            poll(256, markA)
        while fill:
            if len(hl) < 8:
                hload()
            put(fill, 2)
        fill = [["v_and_b32 v6, 31, v1", "v_lshrrev_b32 v7, 5, v1", "v_and_b32 v8, 7, v1", "v_lshl_or_b32 v7, v7, 3, v8"],
                [f"s_lshl_b32 s26, s{sW}, 13", "v_lshlrev_b32 v7, 4, v7", "v_lshl_add_u32 v7, v6, 8, v7", f"v_add_u32 {v(vRW)}, s26, v7"],
                [f"v_xor_b32 {v(vRW+i)}, {16*i}, {v(vRW)}" for i in range(1, 5)],
                [f"v_xor_b32 {v(vRW+i)}, {16*i}, {v(vRW)}" for i in range(5, 8)],
                ["v_lshrrev_b32 v6, 3, v1", f"s_and_b32 s26, s{sW}, 1", "s_lshl_b32 s26, s26, 2", f"v_xor_b32 v7, v8, {v(vG)}",
                 "v_xor_b32 v7, s26, v7"],
                ["v_lshlrev_b32 v7, 1, v7", "v_xor_b32 v7, v7, v6", f"s_lshl_b32 s26, s{sW}, 11", "v_lshlrev_b32 v7, 4, v7"],
                ["v_lshl_add_u32 v7, v6, 8, v7", f"v_add_u32 {v(vRR)}, s26, v7", f"v_xor_b32 {v(vRR+1)}, 16, {v(vRR)}"],
                [f"s_lshl_b32 s26, s{sW}, 10", f"s_add_u32 s26, s26, {XT}", f"v_add_u32 {v(vHR)}, s26, {v(vL16)}",
                 f"s_lshl_b32 s26, s{sW}, 5", "v_lshl_add_u32 v9, v6, 2, s26"]]
        ssl = []

        def ssload(i):
            for j in range(2 * i, min(2 * i + 2, 7)):
                ssl.append(vm.op(f"buffer_load_dword {v(vSP+j)}, {v(vL4)}, s[8:11], s{sSS} offen offset:{256*j}{LD}"))

        fill += [lambda i=i: ssload(i) for i in range(4)]
        r2calc = [[f"v_add_f32 {v(vSP)}, {v(vSP)}, {v(vSP+1)}", f"v_add_f32 {v(vSP+2)}, {v(vSP+2)}, {v(vSP+3)}",
                   f"v_add_f32 {v(vSP+4)}, {v(vSP+4)}, {v(vSP+5)}", f"v_add_f32 {v(vSP)}, {v(vSP)}, {v(vSP+6)}"],
                  [f"v_add_f32 {v(vSP+2)}, {v(vSP+2)}, {v(vSP+4)}", f"v_mov_b32 {v(vSP+1)}, {f2u(EPS)}",
                   f"v_add_f32 {v(vSP)}, {v(vSP)}, {v(vSP+2)}", f"v_fmac_f32 {v(vSP+1)}, {f2u(1.0/448)}, {v(vSP)}"],
                  [f"v_rcp_f32 {v(vSP)}, {v(vSP+1)}", "v_add_u32 v8, 128, v9"],
                  [f"ds_bpermute_b32 {v(vR2)}, v9, {v(vSP)}", f"ds_bpermute_b32 {v(vR2+1)}, v8, {v(vSP)}"]]

        def red_write(p):
            base = vAc5 + 32 * p
            q_ = []
            for db in range(2):
                b_ = base + 16 * db
                q_.append([f"v_swap_b32 {v(b_+4*i+j)}, {v(b_+4*j+i)}" for i, j in ((0, 1), (0, 2), (0, 3))])
                q_.append([f"ds_write_b128 {v(vRW+db)}, {v(b_,4)} offset:{p*32768}",
                           f"v_swap_b32 {v(b_+6)}, {v(b_+9)}", f"v_swap_b32 {v(b_+7)}, {v(b_+13)}"])
                q_.append([f"ds_write_b128 {v(vRW+2+db)}, {v(b_+4,4)} offset:{p*32768}", f"v_swap_b32 {v(b_+11)}, {v(b_+14)}"])
                q_.append([f"ds_write_b128 {v(vRW+4+db)}, {v(b_+8,4)} offset:{p*32768}"])
                q_.append([f"ds_write_b128 {v(vRW+6+db)}, {v(b_+12,4)} offset:{p*32768}"])
            q_.append([f"ds_read_b128 {v(vT5+32,4)}, {v(vHR)} offset:{p*4096}"])
            return q_

        def red_read(p):
            q_ = [["s_waitcnt lgkmcnt(0)", "s_barrier"] +
                  [f"ds_read_b128 {v(vT5+4*z,4)}, {v(vRR+z)} offset:{p*32768}" for z in range(2)]]
            for j in range(1, 4):
                q_.append([f"ds_read_b128 {v(vT5+8*j+4*z,4)}, {v(vRR+z)} offset:{p*32768+j*8192}" for z in range(2)])
            for h2 in range(2):
                q_.append([t_ for q in (2 * h2, 2 * h2 + 1) for t_ in
                           (f"v_lshlrev_b32 {v(vT5+36+2*q)}, 16, {v(vT5+32+q)}",
                            f"v_and_b32 {v(vT5+37+2*q)}, 0xffff0000, {v(vT5+32+q)}")])
            for j, (d_, s_) in enumerate(((0, 8), (16, 24), (0, 16))):
                for h2 in range(2):
                    q_.append(([f"s_waitcnt lgkmcnt({4 if j == 0 else 0})"] if h2 == 0 and j < 2 else []) +
                              [f"v_add_f32 {v(vT5+d_+r)}, {v(vT5+d_+r)}, {v(vT5+s_+r)}" for r in range(4 * h2, 4 * h2 + 4)])
            for h2 in range(2):
                q_.append([f"v_fmac_f32 {v(vT5+36+r)}, {v(vT5+r)}, {v(vR2+p)}" for r in range(4 * h2, 4 * h2 + 4)])
            q_.append([f"v_cvt_pk_bf16_f32 {v(vT5+8+q)}, {v(vT5+36+2*q)}, {v(vT5+37+2*q)}" for q in range(4)])
            q_.append(lambda: vm.op(f"buffer_store_dwordx4 {v(vT5+8,4)}, {v(vXO)}, s[16:19], s{sXO+p} offen{SCO}"))
            return q_

        if P5ST:
            k.stamp(1)
        for n in range(56):
            p, kp = n // 28, n % 28
            if n == DRAIN_B:
                vm.wait(last_st[0])
                arrive(512)
            if n == POLL_B:
                markB = poll_issue(512)
            if n == CHECK_B:
                k.stamp()
                poll(512, markB)
                k.stamp()
            if n == 22:
                vm.wait(ssl[6])
                fill += r2calc
            if n == LATE and 3072 in WBL:
                k(f"s_add_u32 s47, s{sFI}, 16384")
                vm.op(f"buffer_store_dword {v(vOne)}, off, s[8:11], s47{mode[0]}")
            if n == 28:
                assert not fill
                fill = red_write(0)
                while fill:
                    if len(hl) < 28 + RING1:
                        hload()
                    put(fill, 2)
            if n == RED0:
                fill = red_read(0)
            vm.wait(max(hl[n], wd_id[kp]))
            for dl in range(2):
                acc = vAc5 + 32 * p + 16 * dl
                c = "0" if kp == 0 else v(acc, 16)
                k(f"v_mfma_f32_32x32x16_bf16 {v(acc,16)}, {wdreg(kp,dl)}, {a(aQ+4*(n%24),4)}, {c}")
                if dl == 1 and wdn[0] < 56:
                    wdload()
                if dl == 0:
                    if len(hl) < (28 if n < CHECK_B else 56) and len(hl) < n + 24:
                        hload()
                    else:
                        put(fill)
                if dl == 1:
                    put(fill)
            if n in P5ST:
                k.stamp(1)
        k.stamp()
        put(fill, 99)
        put(red_write(1), 99)
        put(red_read(1), 99)
        if k.prof:
            k("s_waitcnt vmcnt(0)")
        k.stamp_flush(6, PROF + (2 << 20), sW, nst)
        k("s_endpgm")

    SLOWL = k.lab("slow")
    k(f"s_branch {SLOWL}")
    k.label(FAST)
    mode[0] = ""
    rest()
    k.label("k3_code_end")
    k.label(SLOWL)
    mode[0] = " sc1"
    vm.n, wn[0], wid[:], k._seq = state
    rest()
    k.label(END)
    k("s_endpgm")
    for o in outline:
        k(o)
    if SPARE:
        k.label(PFL)
        k(f"s_cmp_ge_u32 s2, {K3_WGS}")
        k(f"s_cbranch_scc1 {END}")
        k("s_load_dwordx2 s[6:7], s[0:1], 72")
        k("v_lshrrev_b32 v2, 6, v0")
        k("v_and_b32 v1, 63, v0")
        k("v_readfirstlane_b32 s20, v2")
        k("v_lshlrev_b32 v3, 7, v1")
        k("s_bfe_u32 s21, s2, 0x20003")
        k("s_lshl2_add_u32 s21, s21, s20")
        k("s_waitcnt lgkmcnt(0)")
        k.srd_off(8, 6, WSB, WS_BYTES)
        n = 0
        for base, nsl, units in ((WS, 56, SP_WS), (WD, 28, range(7))):
            for un in units:
                for i in range(-(-nsl // 16)):
                    k(f"s_add_u32 s22, s21, {16*i}")
                    k(f"s_min_u32 s22, s22, {nsl-1}")
                    k("s_mul_i32 s22, s22, 57344")
                    k(f"s_add_u32 s22, s22, {base + un*8192}")
                    k(f"buffer_load_dword v{8+n}, v3, s[8:11], s22 offen")
                    n += 1
        if WBL:
            k("s_cmp_lg_u32 s21, 0")
            k(f"s_cbranch_scc1 {END}")
            k("v_lshlrev_b32 v3, 2, v1")
            k("v_min_u32 v3, 220, v3")
            k("s_and_b32 s22, s2, 7")
            k("s_lshl_b32 s22, s22, 11")
            k(f"s_add_u32 s22, s22, {FL}")
            k(f"s_mov_b32 s23, {SPIN_MAX}")
            for off in WBL:
                lp, dn_ = k.lab("wl"), k.lab("wd")
                if off == 3072:
                    k("s_add_u32 s22, s22, 16384")
                    off = 0
                k.label(lp)
                k(f"buffer_load_dword v4, v3, s[8:11], s22 offen offset:{off} sc1")
                k(f"buffer_load_dword v5, v3, s[8:11], s22 offen offset:{off+1024} sc1")
                k("s_sub_u32 s23, s23, 1")
                k("s_waitcnt vmcnt(0)")
                k("s_cmp_eq_u32 s23, 0")
                k(f"s_cbranch_scc1 {END}")
                k("v_and_b32 v4, v4, v5")
                k("v_cmp_eq_u32 vcc, 0, v4")
                k("s_sleep 2")
                k(f"s_cbranch_vccnz {lp}")
                k("buffer_wbl2 sc1")
                k("s_waitcnt vmcnt(0)")
        k("s_endpgm")
    return k
```

```python
import struct
import sys
from asmlib import Kern, v, a, s

S, D, F = 2048, 448, 1792
AT = 0x000000
WT = 0x200000
BT = 0x400000
HC = 0x600000
WS = 0x800000
WD = 0xC00000
HP = 0xE00000
M1 = 0x1500000
FL = 0x1510000
WS_BYTES = 0x1520000
XB = S * D * 2
WRB = S * 225 * 2
WGB = D * F * 2
EPS = 1e-5
PROF = 0x1800000
import os
SC = os.environ.get("SC", " sc1")
NT = os.environ.get("NT", "")
WSB = int(os.environ.get("WSB", "0"), 0)


def f2u(x):
    return "0x%08x" % struct.unpack("<I", struct.pack("<f", x))[0]


N_WT, N_WS, N_WD = 256, 392, 196
K1_SIDE_WGS = (N_WT + N_WS + N_WD) // 4
K1_WGS = 256
K1_LDS = 57344 + 512


def div7(k, dst, src):
    k(f"s_mul_i32 s{dst}, s{src}, 37")
    k(f"s_lshr_b32 s{dst}, s{dst}, 8")


EARLY = int(os.environ.get("EARLY", "2"))
NOWD1 = int(os.environ.get("NOWD1", "0"))
SLOAD = int(os.environ.get("SLOAD", "1"))
CODEPF = int(os.environ.get("CODEPF", "1"))


def code_prefetch(k, target, piece_sreg, vlane16, vtmp, stmp):
    here = k.lab("pc")
    k(f"s_getpc_b64 s[{stmp}:{stmp+1}]")
    k.label(here)
    k(f"s_add_u32 s{stmp}, s{stmp}, {target}-{here}")
    k(f"s_addc_u32 s{stmp+1}, s{stmp+1}, 0")
    k(f"s_lshl_b32 s{stmp+2}, s{piece_sreg}, 10")
    k(f"v_add_u32 {v(vtmp)}, s{stmp+2}, {v(vlane16)}")
    k(f"global_load_dwordx4 {v(vtmp+2,4)}, {v(vtmp)}, s[{stmp}:{stmp+1}]")


def xlane_sum(k, r, t):
    k(f"v_mov_b32 {v(t)}, {v(r)}")
    k(f"v_permlane16_swap_b32 {v(r)}, {v(t)}")
    k(f"v_add_f32 {v(r)}, {v(r)}, {v(t)}")
    k(f"v_mov_b32 {v(t)}, {v(r)}")
    k(f"v_permlane32_swap_b32 {v(r)}, {v(t)}")
    k(f"v_add_f32 {v(r)}, {v(r)}, {v(t)}")


def gen_k1():
    k = Kern("k1_kernel", 0, 0)
    END, SIDE, STORE, JWS, JWD, TR, ISSUED, TRS = (k.lab(x) for x in ("end", "side", "store", "jws", "jwd", "tr", "iss", "trs"))
    sW, sMain, sKind = 20, 48, 49
    k(f"s_cmp_ge_u32 s2, {K1_WGS}")
    k(f"s_cbranch_scc1 {END}")
    k.stamp()
    k("s_load_dwordx2 s[4:5], s[0:1], 0")
    k("s_load_dwordx2 s[6:7], s[0:1], 72")
    k("s_load_dwordx4 s[76:79], s[0:1], 8")
    k("s_load_dwordx4 s[80:83], s[0:1], 32")
    k("s_load_dwordx2 s[84:85], s[0:1], 48")
    k("v_lshrrev_b32 v2, 6, v0")
    k("v_and_b32 v1, 63, v0")
    k(f"v_readfirstlane_b32 s{sW}, v2")
    k(f"s_mov_b32 s{sMain}, 0")
    k("s_cmp_ge_u32 s2, 224")
    k(f"s_cbranch_scc1 {SIDE}")
    k(f"s_mov_b32 s{sMain}, 1")
    sRT, sCT = 21, 22
    k("s_and_b32 s23, s2, 7")
    k("s_lshr_b32 s24, s2, 3")
    div7(k, 25, 24)
    k("s_mul_i32 s26, s25, 7")
    k(f"s_sub_u32 s{sCT}, s24, s26")
    k(f"s_lshl2_add_u32 s{sRT}, s23, s25")
    k("v_lshrrev_b32 v4, 5, v1")
    k("v_bfe_u32 v5, v1, 3, 2")
    k("v_lshl_add_u32 v4, v4, 4, v5")
    k("s_movk_i32 s26, 0x7000")
    k("v_mul_u32_u24 v4, s26, v4")
    k("v_lshrrev_b32 v5, 4, v1")
    k("v_and_b32 v6, 7, v1")
    k("v_xor_b32 v6, v6, v5")
    k("v_lshl_add_u32 v2, v6, 4, v4")
    k("v_xor_b32 v3, 64, v2")
    k(f"v_add_u32 v3, {32*32*896}, v3")
    k(f"s_lshl_b32 s26, s{sW}, 7")
    k(f"s_add_u32 s26, s26, s{sRT}")
    k("s_mul_i32 s26, s26, 896")
    k(f"s_lshl_b32 s27, s{sW}, 11")
    saved, k.lines = k.lines, []
    k("v_and_b32 v8, 15, v1")
    vB, vST, vE, vSG, vT, vF = 8, 9, 9, 17, 19, 28
    vKK, vOnes = 27, 152
    k(f"s_and_b32 s28, s{sW}, 1")
    k("s_lshl_b32 s28, s28, 4")
    k(f"s_lshl_b32 s29, s{sCT}, 5")
    k("s_add_u32 s28, s28, s29")
    k(f"v_add_u32 {v(vKK)}, s28, v8")
    k("v_lshrrev_b32 v9, 1, v8")
    k("v_xor_b32 v9, v9, v5")
    k("v_lshlrev_b32 v9, 4, v9")
    k("v_lshl_add_u32 v4, v8, 7, v9")
    k(f"v_add_u32 v19, 1, {v(vKK)}")
    k("v_cvt_f32_u32 v20, v19")
    k("v_and_b32 v19, 1, v19")
    k("v_lshlrev_b32 v19, 31, v19")
    k(f"v_or_b32 {v(vSG)}, 1.0, v19")
    k(f"v_mul_f32 {v(vE+1)}, {f2u(1.0/448)}, v20")
    for e in range(2, 8):
        k(f"v_mul_f32 {v(vE+e)}, {f2u(e/448.0)}, v20")
    k(f"v_mul_f32 {v(vST)}, {f2u(32.0/448)}, v20")
    k(f"v_fract_f32 {v(vST)}, {v(vST)}")
    k("v_lshlrev_b32 v21, 3, v5")
    k("v_cvt_f32_u32 v21, v21")
    k(f"s_lshr_b32 s30, s{sW}, 1")
    k(f"s_mul_i32 s31, s30, {f2u(0.25)}")
    k(f"v_mov_b32 {v(vB)}, s31")
    k(f"v_fmac_f32 {v(vB)}, v21, {v(vE+1)}")
    k(f"v_fract_f32 {v(vB)}, {v(vB)}")
    k("v_xor_b32 v5, 64, v4")
    k("v_add_u32 v6, s27, v4")
    k("v_add_u32 v7, s27, v5")
    for p in range(4):
        k(f"v_mov_b32 {v(vOnes+p)}, 0x3f803f80")
    vCS = 156
    for t in range(7):
        k(f"v_cos_f32 {v(vT)}, {v(vB)}")
        for e in range(1, 8):
            k(f"v_add_f32 {v(vT+e)}, {v(vB)}, {v(vE+e)}")
        for e in range(1, 8):
            k(f"v_cos_f32 {v(vT+e)}, {v(vT+e)}")
        if t < 6:
            k(f"v_add_f32 {v(vB)}, {v(vB)}, {v(vST)}")
            k(f"v_fract_f32 {v(vB)}, {v(vB)}")
        for p in range(4):
            k(f"v_cvt_pk_bf16_f32 {v(vF+4*t+p)}, {v(vT+2*p)}, {v(vT+2*p+1)}")
        if t > 0:
            k(f"v_mfma_f32_16x16x32_bf16 {v(vCS,4)}, {v(vOnes,4)}, {v(vF+4*t-4,4)}, {'0' if t == 1 else v(vCS,4)}")
    gen_lines, k.lines = k.lines, saved
    k("s_waitcnt lgkmcnt(0)")
    k.srd(8, 4, XB)
    per = -(-len(gen_lines) // 14)
    for c in range(7):
        for q in range(2):
            k(f"s_add_u32 m0, s27, {c*(8192-128) + q*1024}")
            k(f"buffer_load_dwordx4 v{2+q}, s[8:11], s26 offen offset:{c*128}{NT} lds")
            for _ in range(min(per, len(gen_lines))):
                k(gen_lines.pop(0))
    assert not gen_lines
    k.label(SIDE)
    k("s_waitcnt lgkmcnt(0)")
    vIn, vSrc, vDst, vOut = 168, 200, 201, 208
    sA, sB_, sD = 52, 56, 88
    sSo, sDo, sSt, sSt4, sSto, sDt, sDt4, t0, t1, t2, t3 = 86, 87, 97, 98, 101, 99, 100, 50, 51, 35, 39
    k(f"s_mul_i32 s{t0}, s2, 3")
    k(f"s_add_u32 s{t0}, s{t0}, s{sW}")
    k(f"s_sub_u32 s{t0}, s{t0}, 1")
    k(f"s_lshl2_add_u32 s{t1}, s2, s{sW}")
    k(f"s_sub_u32 s{t1}, s{t1}, 128")
    k("s_cmp_lt_u32 s2, 128")
    k(f"s_cselect_b32 s{t0}, s{t0}, s{t1}")
    k(f"s_cselect_b32 s{t1}, s{sW}, 1")
    k("s_cmp_ge_u32 s2, 224")
    k(f"s_cselect_b32 s{t1}, 0, s{t1}")
    k(f"s_cmp_lg_u32 s{t1}, 0")
    k(f"s_cbranch_scc1 {JWS}")
    k(f"s_mov_b32 s{sKind}, 0")
    k(f"s_lshr_b32 s{t0}, s2, 5")
    k(f"s_add_u32 s{t0}, s{t0}, 4")
    k(f"s_bfe_u32 s{t2}, s2, 0x20003")
    k(f"s_cmp_ge_u32 s2, 224")
    k(f"s_cselect_b32 s{t0}, s{t2}, s{t0}")
    k(f"s_cselect_b32 s{t2}, s{sW}, s{t2}")
    k(f"s_and_b32 s{t1}, s2, 7")
    k.srd(sA, 76, WRB)
    k.srd(sB_, 78, WRB)
    k(f"v_and_b32 {v(vOut-4)}, 7, v1")
    k(f"v_lshrrev_b32 {v(vOut-3)}, 3, v1")
    k(f"v_mul_u32_u24 {v(vSrc)}, 0x1c2, {v(vOut-4)}")
    k(f"v_lshl_add_u32 {v(vSrc)}, {v(vOut-3)}, 4, {v(vSrc)}")
    k(f"v_lshlrev_b32 {v(vDst)}, 16, {v(vOut-3)}")
    k(f"v_lshl_add_u32 {v(vDst)}, {v(vOut-4)}, 4, {v(vDst)}")
    k(f"v_add_u32 {v(vOut-3)}, 1, {v(vOut-3)}")
    k(f"v_lshlrev_b32 {v(vOut-3)}, 27, {v(vOut-3)}")
    k(f"v_and_b32 {v(vOut-3)}, 0x40000000, {v(vOut-3)}")
    k(f"v_or_b32 {v(vSrc)}, {v(vSrc)}, {v(vOut-3)}")
    k(f"v_or_b32 {v(vDst)}, {v(vDst)}, {v(vOut-3)}")
    k(f"s_lshl_b32 s{sSo}, s{t1}, 5")
    k(f"s_add_u32 s{sSo}, s{sSo}, s{t0}")
    k(f"s_mul_i32 s{sSo}, s{sSo}, 3600")
    k(f"s_mul_i32 s{t3}, s{t2}, 112")
    k(f"s_add_u32 s{sSo}, s{sSo}, s{t3}")
    k(f"s_add_u32 s{sSo}, s{sSo}, 2")
    k(f"s_mov_b32 s{sSt}, 0")
    k(f"s_mov_b32 s{sSt4}, {64*450}")
    k(f"s_mov_b32 s{sSto}, {64*450}")
    k.srd_off(sD, 6, WSB + WT, 224 * 8192)
    k(f"s_mul_i32 s{sDo}, s{t2}, {7*65536}")
    k(f"s_lshr_b32 s{t3}, s{t0}, 1")
    k(f"s_lshl_b32 s{t3}, s{t3}, 11")
    k(f"s_add_u32 s{sDo}, s{sDo}, s{t3}")
    k(f"s_lshl_b32 s{t3}, s{t1}, 8")
    k(f"s_add_u32 s{sDo}, s{sDo}, s{t3}")
    k(f"s_and_b32 s{t3}, s{t0}, 1")
    k(f"s_lshl_b32 s{t3}, s{t3}, 7")
    k(f"s_add_u32 s{sDo}, s{sDo}, s{t3}")
    k(f"s_branch {ISSUED}")
    k.label(JWS)
    k(f"s_mov_b32 s{sKind}, 1")
    k(f"s_cmp_ge_u32 s{t0}, {N_WS}")
    k(f"s_cbranch_scc1 {JWD}")
    k(f"s_bitcmp1_b32 s{t0}, 0")
    k(f"s_cselect_b32 s{sA}, s82, s80")
    k(f"s_cselect_b32 s{sA+1}, s83, s81")
    k(f"s_and_b32 s{sA+1}, s{sA+1}, 0xffff")
    k(f"s_mov_b32 s{sA+2}, {WGB}")
    k(f"s_mov_b32 s{sA+3}, 0x20000")
    k.srd_off(sD, 6, WSB + WS, 56 * 28 * 2048)
    k(f"s_lshr_b32 s{t1}, s{t0}, 1")
    k(f"s_mul_i32 s{t2}, s{t1}, 2341")
    k(f"s_lshr_b32 s{t2}, s{t2}, 16")
    k(f"s_mul_i32 s{t3}, s{t2}, 28")
    k(f"s_sub_u32 s{t1}, s{t1}, s{t3}")
    k(f"v_lshrrev_b32 {v(vSrc)}, 5, v1")
    k(f"v_mul_u32_u24 {v(vSrc)}, {8*3584}, {v(vSrc)}")
    k(f"v_and_b32 {v(vDst)}, 31, v1")
    k(f"v_lshl_add_u32 {v(vSrc)}, {v(vDst)}, 4, {v(vSrc)}")
    k(f"s_mul_i32 s{sSo}, s{t1}, {16*3584}")
    k(f"s_lshl_b32 s{t3}, s{t2}, 9")
    k(f"s_add_u32 s{sSo}, s{sSo}, s{t3}")
    k(f"s_movk_i32 s{sSt}, 3584")
    k(f"s_movk_i32 s{sSt4}, 3584")
    k(f"v_lshlrev_b32 {v(vDst)}, 4, v1")
    k(f"s_mul_i32 s{sDo}, s{t2}, {8*28*2048}")
    k(f"s_lshl_b32 s{t3}, s{t1}, 11")
    k(f"s_add_u32 s{sDo}, s{sDo}, s{t3}")
    k(f"s_and_b32 s{t3}, s{t0}, 1")
    k(f"s_lshl_b32 s{t3}, s{t3}, 10")
    k(f"s_add_u32 s{sDo}, s{sDo}, s{t3}")
    k(f"s_mov_b32 s{sDt}, {28*2048}")
    k(f"s_mov_b32 s{sDt4}, {28*2048}")
    k(f"s_branch {TR}")
    k.label(JWD)
    k(f"s_sub_u32 s{t0}, s{t0}, {N_WS}")
    k.srd(sA, 84, WGB)
    k.srd_off(sD, 6, WSB + WD, 7 * 112 * 2048)
    k(f"s_cmp_ge_u32 s{t0}, {0 if NOWD1 else N_WD}")
    k(f"s_cselect_b32 s{sA+2}, 0, s{sA+2}")
    k(f"s_cselect_b32 s{sD+2}, 0, s{sD+2}")
    k(f"s_mul_i32 s{t2}, s{t0}, 2341")
    k(f"s_lshr_b32 s{t2}, s{t2}, 16")
    k(f"s_mul_i32 s{t3}, s{t2}, 28")
    k(f"s_sub_u32 s{t1}, s{t0}, s{t3}")
    k(f"v_lshrrev_b32 {v(vSrc)}, 5, v1")
    k(f"v_bfe_u32 {v(vDst)}, v1, 4, 1")
    k(f"v_lshl_add_u32 {v(vSrc)}, {v(vDst)}, 7, {v(vSrc)}")
    k(f"v_bfe_u32 {v(vDst)}, v1, 3, 1")
    k(f"v_lshl_add_u32 {v(vSrc)}, {v(vDst)}, 5, {v(vSrc)}")
    k(f"v_mul_u32_u24 {v(vSrc)}, 0x380, {v(vSrc)}")
    k(f"v_and_b32 {v(vOut-4)}, 7, v1")
    k(f"v_lshl_add_u32 {v(vSrc)}, {v(vOut-4)}, 4, {v(vSrc)}")
    k(f"s_lshr_b32 s{sSo}, s{t1}, 2")
    k(f"s_lshl_b32 s{sSo}, s{sSo}, 7")
    k(f"s_and_b32 s{t3}, s{t1}, 3")
    k(f"s_add_u32 s{sSo}, s{sSo}, s{t3}")
    k(f"s_mul_i32 s{sSo}, s{sSo}, {2*896}")
    k(f"s_lshl_b32 s{t3}, s{t2}, 7")
    k(f"s_add_u32 s{sSo}, s{sSo}, s{t3}")
    k(f"s_movk_i32 s{sSt}, {8*896}")
    k(f"s_mov_b32 s{sSt4}, {(64-24)*896}")
    k(f"v_lshlrev_b32 {v(vOut-4)}, 4, {v(vOut-4)}")
    k(f"v_lshl_add_u32 {v(vOut-4)}, {v(vDst)}, 9, {v(vOut-4)}")
    k(f"v_lshrrev_b32 {v(vDst)}, 4, v1")
    k(f"v_lshl_add_u32 {v(vDst)}, {v(vDst)}, 11, {v(vOut-4)}")
    k(f"s_mul_i32 s{sDo}, s{t2}, 112")
    k(f"s_lshl2_add_u32 s{sDo}, s{t1}, s{sDo}")
    k(f"s_lshl_b32 s{sDo}, s{sDo}, 11")
    k(f"s_movk_i32 s{sDt}, 128")
    k(f"s_movk_i32 s{sDt4}, {1024-384}")
    k.label(TR)
    k(f"s_mov_b32 s{sSto}, s{sSt}")
    for i in range(3):
        k(f"s_mov_b32 s{sB_+i}, s{sA+i}")
    k(f"s_mov_b32 s{sB_+3}, 0x20000")
    k.label(ISSUED)

    def side_loads():
        for e in range(8):
            sr = sB_ if e & 1 else sA
            k(f"buffer_load_dwordx4 {v(vIn+4*e,4)}, {v(vSrc)}, s[{sr}:{sr+3}], s{sSo} offen{NT}")
            if e < 7:
                k(f"s_add_u32 s{sSo}, s{sSo}, s{sSt4 if e == 3 else sSto if e & 1 else sSt}")

    def side_store(final):
        JOIN = k.lab("join")
        k.label(STORE)
        if final:
            k.stamp()
        k("s_mov_b32 s34, 0x05040100")
        k("s_mov_b32 s35, 0x07060302")
        k(f"s_cmp_lg_u32 s{sKind}, 0")
        k(f"s_cbranch_scc1 {TRS}")
        for e in range(8):
            o = vOut + 4 * e
            for r in range(4):
                k(f"v_perm_b32 {v(o+r)}, {v(vIn+8*r+4+(e>>1))}, {v(vIn+8*r+(e>>1))}, s{34+(e&1)}")
            k(f"buffer_store_dwordx4 {v(o,4)}, {v(vDst)}, s[{sD}:{sD+3}], s{sDo} offen{SC} ; alt")
            if e < 7:
                k(f"s_add_u32 s{sDo}, s{sDo}, 8192")
        k(f"s_branch {JOIN}")
        k.label(TRS)
        for j in range(8):
            o = vOut + 4 * j
            for q in range(4):
                k(f"v_perm_b32 {v(o+q)}, {v(vIn+4*(2*q+1)+(j>>1))}, {v(vIn+4*(2*q)+(j>>1))}, s{34+(j&1)}")
            k(f"buffer_store_dwordx4 {v(o,4)}, {v(vDst)}, s[{sD}:{sD+3}], s{sDo} offen{SC}")
            if j < 7:
                k(f"s_add_u32 s{sDo}, s{sDo}, s{sDt4 if j == 3 else sDt}")
        k.label(JOIN)
        if final:
            k.stamp()
            if k.prof:
                k("s_waitcnt vmcnt(0)")
            k.stamp_flush(6, PROF, sW, 1)
        else:
            k(f"s_cmp_eq_u32 s{sMain}, 0")
            k(f"s_cbranch_scc1 {END}")

    SPW = k.lab("spw")
    k(f"s_cmp_eq_u32 s{sMain}, 0")
    k(f"s_cbranch_scc1 {SPW}")
    k.stamp()
    k.srd_off(12, 6, WSB + AT, 224 * 8192)
    k.srd_off(16, 6, WSB + M1, S * 4)
    k(f"v_mfma_f32_16x16x32_bf16 {v(vCS,4)}, {v(vOnes,4)}, {v(vF+24,4)}, {v(vCS,4)}")
    npf = 0
    if SLOAD == 0:
        side_loads()
        npf = 8
    if CODEPF:
        k("v_lshlrev_b32 v160, 4, v1")
        k(f"s_min_u32 s34, s{sW}, (k2_code_end-k2_kernel)/1024")
        code_prefetch(k, "k2_kernel", 34, 160, 162, 36)
        npf += 1
    vR, vSm, vGr = 56, 20, 120

    def stat(t):
        b = vR + 4 * (t % 4)
        k(f"v_mfma_f32_16x16x32_bf16 {v(vSm,4)}, {v(b,4)}, {v(vOnes,4)}, {'0' if t == 0 else v(vSm,4)}")
        k(f"v_mfma_f32_16x16x32_bf16 {v(vGr,4)}, {v(b,4)}, {v(b,4)}, {'0' if t == 0 else v(vGr,4)}")

    k.stamp()
    for c in range(7):
        k(f"s_waitcnt vmcnt({12-2*c+npf})")
        for par in range(2):
            t = 2 * c + par
            k(f"ds_read_b128 {v(vR+4*(t%4),4)}, v{6+par} offset:{c*8192}")
        if c > 0:
            k("s_waitcnt lgkmcnt(2)")
            stat(2 * c - 2)
            stat(2 * c - 1)
    k("s_waitcnt lgkmcnt(0)")
    k.stamp()
    stat(12)
    stat(13)
    if SLOAD == 1:
        side_loads()
    k("s_barrier")
    vA = 88
    vSt = 124
    seq = [(t, b) for t in range(14) for b in range(4)]

    def rd(n):
        t, b = seq[n]
        k(f"ds_read_b128 {v(vR+4*(n%8),4)}, v{4+(t&1)} offset:{(t>>1)*8192 + b*2048}")

    vM, vQ = 24, 25
    fin = ["v_and_b32 v26, 3, v1",
           "v_cmp_eq_u32 s[40:41], 1, v26", "v_cmp_eq_u32 s[42:43], 2, v26", "v_cmp_eq_u32 s[44:45], 3, v26",
           "v_bfe_u32 v26, v1, 2, 2", "v_lshrrev_b32 v19, 4, v1", "v_cmp_eq_u32 s[46:47], v26, v19",
           f"v_cndmask_b32 {v(vM)}, {v(vSm)}, {v(vSm+1)}, s[40:41]", f"v_cndmask_b32 {v(vQ)}, {v(vGr)}, {v(vGr+1)}, s[40:41]",
           f"v_cndmask_b32 {v(vM)}, {v(vM)}, {v(vSm+2)}, s[42:43]", f"v_cndmask_b32 {v(vQ)}, {v(vQ)}, {v(vGr+2)}, s[42:43]",
           f"v_cndmask_b32 {v(vM)}, {v(vM)}, {v(vSm+3)}, s[44:45]", f"v_cndmask_b32 {v(vQ)}, {v(vQ)}, {v(vGr+3)}, s[44:45]",
           f"v_mul_f32 {v(vM)}, {f2u(1.0/448)}, {v(vM)}",
           f"v_mul_f32 {v(vQ)}, {f2u(1.0/448)}, {v(vQ)}",
           "v_and_b32 v26, 15, v1",
           f"v_fma_f32 {v(vQ)}, -{v(vM)}, {v(vM)}, {v(vQ)}",
           f"s_lshl_b32 s33, s{sW}, 6",
           f"v_max_f32 {v(vQ)}, 0, {v(vQ)}",
           "v_lshl_add_u32 v19, v26, 2, s33",
           f"v_add_f32 {v(vQ)}, {f2u(EPS)}, {v(vQ)}",
           f"v_fmac_f32 {v(vCS)}, {v(vCS)}, {v(vSG)}",
           f"v_rsq_f32 {v(vQ)}, {v(vQ)}",
           "v_lshrrev_b32 v21, 2, v26",
           "v_and_b32 v26, 3, v26",
           f"v_mul_f32 v20, {v(vM)}, {v(vQ)}",
           "v_lshl_add_u32 v26, v21, 4, v26",
           "v_lshlrev_b32 v26, 7, v26",
           f"s_lshl_b32 s33, s{sW}, 7",
           f"s_add_u32 s33, s33, s{sRT}",
           "s_lshl_b32 s33, s33, 2",
           f"s_cmp_eq_u32 s{sCT}, 0\ns_cselect_b32 s18, {S*4}, 0"]
    DEPTH = 7
    for n in range(DEPTH):
        rd(n)
    k.stamp()
    extra = 0
    for n in range(56):
        t, b = seq[n]
        left = min(DEPTH - 1, 55 - n)
        k(f"s_waitcnt lgkmcnt({left + (2 if 40 < n <= 40 + DEPTH else 0)})")
        acc = vA + 16 * (t // 7) + 4 * b
        c = "0" if t % 7 == 0 else v(acc, 4)
        k(f"v_mfma_f32_16x16x32_bf16 {v(acc,4)}, {v(vR+4*(n%8),4)}, {v(vF+4*(t%7),4)}, {c}")
        if n + DEPTH < 56:
            rd(n + DEPTH)
        if n >= 4 and fin:
            k(fin.pop(0))
        if n == 40:
            assert not fin
            k("s_mov_b64 exec, s[46:47]")
            k(f"ds_write_b32 v19, {v(vQ)} offset:57344")
            k("ds_write_b32 v19, v20 offset:57600")
            k(f"buffer_store_dword {v(vM)}, v26, s[16:19], s33 offen")
            k("s_mov_b64 exec, -1")
    if EARLY == 2:
        k(f"s_waitcnt vmcnt({1 + (CODEPF if SLOAD == 0 else 0)})")
        side_store(False)
    k("s_barrier")
    k.stamp()
    k("v_lshrrev_b32 v24, 4, v1")
    k("v_lshlrev_b32 v24, 4, v24")
    for b in range(4):
        k(f"ds_read_b128 {v(vSt+4*b,4)}, v24 offset:{57344 + 64*b}")
        k(f"ds_read_b128 {v(vSt+16+4*b,4)}, v24 offset:{57600 + 64*b}")
    for n in range(16):
        k(f"v_fmac_f32 {v(vA+n)}, {v(vA+16+n)}, {v(vSG)}")
    k("v_and_b32 v8, 15, v1")
    k("v_and_b32 v9, 7, v1")
    k("v_lshrrev_b32 v10, 3, v24")
    k("v_xor_b32 v10, v10, v9")
    k("v_lshlrev_b32 v10, 4, v10")
    k("v_lshl_add_u32 v10, v8, 7, v10")
    k("v_add_u32 v10, s27, v10")
    k("v_xor_b32 v11, 16, v10")
    k("v_lshlrev_b32 v12, 4, v1")
    k("v_add_u32 v12, s27, v12")
    k("v_lshrrev_b32 v13, 3, v1")
    k("v_xor_b32 v9, v9, v13")
    k("v_lshlrev_b32 v9, 4, v9")
    k("v_lshl_add_u32 v13, v13, 13, v9")
    k("s_lshl_b32 s28, s28, 13")
    k("s_lshl_b32 s30, s30, 12")
    k(f"s_lshl_b32 s33, s{sRT}, 7")
    k("s_add_u32 s33, s33, s30")
    k("s_add_u32 s33, s33, s28")
    k("s_add_u32 s34, s33, 0x10000")
    for h2 in range(2):
        k(f"s_waitcnt lgkmcnt({4-4*h2})")
        for n in range(8 * h2, 8 * h2 + 8):
            k(f"v_mul_f32 {v(vA+n)}, {v(vA+n)}, {v(vSt+n)}")
        for n in range(8 * h2, 8 * h2 + 8):
            k(f"v_fma_f32 {v(vA+n)}, -{v(vSt+16+n)}, {v(vCS)}, {v(vA+n)}")
        for n in range(4 * h2, 4 * h2 + 4):
            k(f"v_cvt_pk_bf16_f32 {v(vR+n)}, {v(vA+2*n)}, {v(vA+2*n+1)}")
    k(f"ds_write_b128 v10, {v(vR,4)}")
    k(f"ds_write_b128 v11, {v(vR+4,4)}")
    k("s_waitcnt lgkmcnt(0)")
    k(f"ds_read_b128 {v(vR+8,4)}, v12")
    k(f"ds_read_b128 {v(vR+12,4)}, v12 offset:1024")
    k("s_waitcnt lgkmcnt(1)")
    k(f"buffer_store_dwordx4 {v(vR+8,4)}, v13, s[12:15], s33 offen{SC}")
    k("s_waitcnt lgkmcnt(0)")
    k(f"buffer_store_dwordx4 {v(vR+12,4)}, v13, s[12:15], s34 offen{SC}")
    if not EARLY:
        k(f"s_waitcnt vmcnt({3 + (CODEPF if SLOAD == 0 else 0)})")
        side_store(True)
    else:
        k.stamp()
        k.stamp()
        if k.prof:
            k("s_waitcnt vmcnt(0)")
        k.stamp_flush(6, PROF, sW, 1)
    k.label(END)
    k("s_endpgm")
    k.label(SPW)
    side_loads()
    k("s_waitcnt vmcnt(0)")
    k("s_cmp_lg_u32 s2, 255")
    k(f"s_cbranch_scc1 {STORE}")
    k.srd_off(40, 6, WSB + FL, 128 * 256)
    k(f"s_lshl_b32 s44, s{sW}, 13")
    k("s_add_u32 s45, s44, 4096")
    for i in range(4):
        k(f"v_mov_b32 v{4+i}, 0")
    k("v_lshlrev_b32 v8, 4, v1")
    for i in range(4):
        k(f"buffer_store_dwordx4 v[4:7], v8, s[40:43], s44 offen offset:{1024*i}")
        k(f"buffer_store_dwordx4 v[4:7], v8, s[40:43], s45 offen offset:{1024*i}")
    k(f"s_branch {STORE}")
    return k


K2_LDS = 16384
K2_PF = int(os.environ.get("K2_PF", "0"))
K2_IN = int(os.environ.get("K2_IN", "1"))
K2_IN0 = int(os.environ.get("K2_IN0", "16"))
K2_SP = int(os.environ.get("K2_SP", "0"))


def cmul8(k, y, x, c, sn, sign):
    neg = " neg_lo:[1,0,0] neg_hi:[1,0,0]"
    for e in range(0, 8, 2):
        k(f"v_pk_mul_f32 {v(y+e,2)}, {v(x+e,2)}, {v(c+e,2)}")
        k(f"v_pk_mul_f32 {v(y+8+e,2)}, {v(x+8+e,2)}, {v(c+e,2)}")
    for e in range(0, 8, 2):
        k(f"v_pk_fma_f32 {v(y+e,2)}, {v(x+8+e,2)}, {v(sn+e,2)}, {v(y+e,2)}" + (neg if sign > 0 else ""))
        k(f"v_pk_fma_f32 {v(y+8+e,2)}, {v(x+e,2)}, {v(sn+e,2)}, {v(y+8+e,2)}" + ("" if sign > 0 else neg))


def gen_k2():
    k = Kern("k2_kernel", 0, 0)
    END = k.lab("end")
    sW, sKK = 20, 2
    PFL = k.lab("pf")
    k("s_cmp_ge_u32 s2, 224")
    k(f"s_cbranch_scc1 {PFL if K2_PF or K2_SP else END}")
    k.stamp()
    k("s_load_dwordx2 s[6:7], s[0:1], 72")
    k("v_lshrrev_b32 v2, 6, v0")
    k("v_and_b32 v1, 63, v0")
    k(f"v_readfirstlane_b32 s{sW}, v2")
    k("v_lshrrev_b32 v4, 4, v1")
    k("v_and_b32 v5, 7, v1")
    k("v_xor_b32 v5, v5, v4")
    k("v_lshrrev_b32 v6, 3, v1")
    k("v_lshlrev_b32 v6, 7, v6")
    k("v_lshl_add_u32 v2, v5, 4, v6")
    k("v_xor_b32 v3, 64, v2")
    k(f"s_lshl_b32 s21, s{sW}, 11")
    k(f"s_lshl_b32 s22, s{sKK}, 13")
    k("s_add_u32 s22, s22, s21")
    k("v_lshlrev_b32 v7, 4, v1")
    k("s_mov_b32 m0, s21")
    k("s_waitcnt lgkmcnt(0)")
    k.srd_off(8, 6, WSB + AT, 224 * 8192)
    k("buffer_load_dwordx4 v2, s[8:11], s22 offen lds")
    k("buffer_load_dwordx4 v3, s[8:11], s22 offen offset:1024 lds")
    k.srd_off(12, 6, WSB + WT, 224 * 8192)
    vWt = 8
    k(f"buffer_load_dwordx4 {v(vWt,4)}, v7, s[12:15], s22 offen")
    k(f"buffer_load_dwordx4 {v(vWt+4,4)}, v7, s[12:15], s22 offen offset:1024")
    if K2_IN:
        k.srd_off(28, 6, WSB + WS, 56 * 57344)
        k("s_lshr_b32 s32, s2, 3")
        k(f"s_lshr_b32 s33, s{sW}, 1")
        k("s_lshl1_add_u32 s32, s32, s33")
        k("s_mul_i32 s32, s32, 57344")
        k(f"s_and_b32 s33, s{sW}, 1")
        k("s_lshl_b32 s33, s33, 13")
        k("s_add_u32 s32, s32, s33")
        k("v_lshlrev_b32 v192, 7, v1")
        k("buffer_load_dword v193, v192, s[28:31], s32 offen")
    k.stamp()
    k.srd_off(16, 6, WSB + BT, 448 * 4096)
    vC1, vS1, vN1 = 16, 24, 32
    vC2, vS2, vN2 = 40, 48, 56
    vTc, vTs = 64, 72
    vUc, vUs = 80, 88
    vD = 96
    vX = 128
    vY = 144
    vP = 160
    vT = 168
    k("v_and_b32 v5, 15, v1")
    k(f"s_lshl_b32 s23, s{sW}, 4")
    k("v_add_u32 v6, s23, v5")
    k("v_cvt_f32_u32 v2, v6")
    k("v_cvt_f32_u32 v3, v4")

    def packed_table(dc, ds_, step, base, mult):
        for e in range(8):
            if mult[e] == 0:
                k(f"v_mov_b32 {v(vT+e)}, {v(base)}")
            else:
                k(f"v_fmamk_f32 {v(vT+e)}, {v(step)}, {f2u(float(mult[e]))}, {v(base)}")
        for e in range(8):
            k(f"v_cos_f32 {v(vT+8+e)}, {v(vT+e)}")
        for e in range(8):
            k(f"v_sin_f32 {v(vT+e)}, {v(vT+e)}")
        for p in range(4):
            k(f"v_cvt_pk_bf16_f32 {v(dc+p)}, {v(vT+8+2*p)}, {v(vT+8+2*p+1)}")
        for p in range(4):
            k(f"v_cvt_pk_bf16_f32 {v(ds_+p)}, {v(vT+2*p)}, {v(vT+2*p+1)}")

    k(f"v_mul_f32 {v(vY)}, {f2u(1.0/64)}, v2")
    k(f"v_mul_f32 {v(vY+1)}, {f2u(8.0)}, v3")
    k(f"v_mul_f32 {v(vY+1)}, {v(vY+1)}, {v(vY)}")
    packed_table(vC1, vS1, vY, vY + 1, list(range(8)))
    k("s_mov_b32 s24, 0x80008000")
    k("v_and_b32 v6, 1, v1")
    k("v_mul_u32_u24 v6, 0x8000, v6")
    k("v_lshl_or_b32 v6, v6, 16, v6")
    for p in range(4):
        k(f"v_xor_b32 {v(vC1+4+p)}, v6, {v(vC1+p)}")
        k(f"v_xor_b32 {v(vS1+4+p)}, v6, {v(vS1+p)}")
    for p in range(8):
        k(f"v_xor_b32 {v(vN1+p)}, s24, {v(vS1+p)}")
    k("v_lshrrev_b32 v6, 1, v5")
    k("v_xor_b32 v6, v6, v4")
    k("v_lshlrev_b32 v6, 4, v6")
    k(f"v_lshl_add_u32 {v(vP)}, v5, 7, v6")
    k(f"v_xor_b32 {v(vP+1)}, 64, {v(vP)}")
    m2 = [0, 1, 2, 3, 16, 17, 18, 19]
    k("v_cvt_f32_u32 v6, v5")
    k(f"v_mul_f32 {v(vY)}, {f2u(1.0/32)}, v6")
    k(f"v_mul_f32 {v(vY+1)}, 4.0, v3")
    k(f"v_mul_f32 {v(vY+1)}, {v(vY+1)}, {v(vY)}")
    packed_table(vC2, vS2, vY, vY + 1, m2)
    k("s_brev_b32 s25, 1")
    for p in range(4):
        k(f"v_xor_b32 {v(vC2+4+p)}, s25, {v(vC2+p)}")
        k(f"v_xor_b32 {v(vS2+4+p)}, s25, {v(vS2+p)}")
    for p in range(8):
        k(f"v_xor_b32 {v(vN2+p)}, s24, {v(vS2+p)}")

    k(f"v_mul_f32 {v(vY)}, {f2u(1.0/2048)}, v2")
    k(f"v_mul_f32 {v(vY+1)}, 4.0, v3")
    k(f"v_mul_f32 {v(vY+1)}, {v(vY+1)}, {v(vY)}")
    m2 = [0, 1, 2, 3, 16, 17, 18, 19]
    k.stamp()
    k(f"s_waitcnt vmcnt({2+K2_IN})")
    k("s_barrier")
    k.stamp()
    for plane in range(2):
        for blk in range(2):
            for t in range(2):
                k(f"ds_read_b128 {v(vD+16*plane+8*blk+4*t,4)}, {v(vP+t)} offset:{plane*4096+blk*2048}")
    for e in range(8):
        if m2[e] == 0:
            k(f"v_mov_b32 {v(vTs+e)}, {v(vY+1)}")
        else:
            k(f"v_fmamk_f32 {v(vTs+e)}, {v(vY)}, {f2u(float(m2[e]))}, {v(vY+1)}")

    def dft_big(cr, ci, first_wait):
        for t in range(2):
            for blk in range(2):
                ar, ai = vD + 8 * blk + 4 * t, vD + 16 + 8 * blk + 4 * t
                xr, xi = vX + 4 * blk, vX + 8 + 4 * blk
                c0r = "0" if t == 0 else v(xr, 4)
                c0i = "0" if t == 0 else v(xi, 4)
                k(f"v_mfma_f32_16x16x32_bf16 {v(xr,4)}, {v(ar,4)}, {v(vC1+4*t,4)}, {c0r}")
                k(f"v_mfma_f32_16x16x32_bf16 {v(xi,4)}, {v(ai,4)}, {v(vC1+4*t,4)}, {c0i}")
                first_wait()
                k(f"v_mfma_f32_16x16x32_bf16 {v(xr,4)}, {v(ai,4)}, {v(cr+4*t,4)}, {v(xr,4)}")
                k(f"v_mfma_f32_16x16x32_bf16 {v(xi,4)}, {v(ar,4)}, {v(ci+4*t,4)}, {v(xi,4)}")
                first_wait()

    if CODEPF:
        k("s_lshr_b32 s34, s2, 3")
        k("s_min_u32 s34, s34, (k3_code_end-k3_kernel)/1024-1")
        code_prefetch(k, "k3_kernel", 34, 7, 184, 36)
    k("s_waitcnt lgkmcnt(0)")
    fill = []
    for e in range(8):
        fill.append(f"v_cos_f32 {v(vTc+e)}, {v(vTs+e)}")
    for e in range(8):
        fill.append(f"v_sin_f32 {v(vTs+e)}, {v(vTs+e)}")

    def filler():
        for _ in range(2):
            if fill:
                k(fill.pop(0))

    dft_big(vS1, vN1, filler)
    assert not fill
    def pack():
        for p in range(4):
            k(f"v_cvt_pk_bf16_f32 {v(vP+p)}, {v(vY+2*p)}, {v(vY+2*p+1)}")
            k(f"v_cvt_pk_bf16_f32 {v(vP+4+p)}, {v(vY+8+2*p)}, {v(vY+8+2*p+1)}")

    cmul8(k, vY, vX, vTc, vTs, -1)
    pack()
    for blk in range(2):
        xr, xi = vX + 4 * blk, vX + 8 + 4 * blk
        k(f"v_mfma_f32_16x16x32_bf16 {v(xr,4)}, {v(vC2+4*blk,4)}, {v(vP,4)}, 0")
        k(f"v_mfma_f32_16x16x32_bf16 {v(xi,4)}, {v(vC2+4*blk,4)}, {v(vP+4,4)}, 0")
        k(f"v_mfma_f32_16x16x32_bf16 {v(xr,4)}, {v(vS2+4*blk,4)}, {v(vP+4,4)}, {v(xr,4)}")
        k(f"v_mfma_f32_16x16x32_bf16 {v(xi,4)}, {v(vN2+4*blk,4)}, {v(vP,4)}, {v(xi,4)}")
    k(f"v_mul_f32 {v(vT)}, {f2u(1.0/2048)}, v6")
    k(f"v_add_f32 {v(vT+1)}, {f2u(16.0/2048)}, {v(vT)}")
    k("v_lshl_add_u32 v2, v4, 2, s23")
    k("v_cvt_f32_u32 v2, v2")
    for r in range(4):
        for blk in range(2):
            k(f"v_mul_f32 {v(vUs+4*blk+r)}, v2, {v(vT+blk)}")
        if r < 3:
            k("v_add_f32 v2, 1.0, v2")
    k.stamp()
    k(f"s_waitcnt vmcnt({K2_IN+CODEPF})")
    for e in range(8):
        k(f"v_lshlrev_b32 {v(vTc+e)}, 16, {v(vWt+e)}")
        k(f"v_and_b32 {v(vTs+e)}, 0xffff0000, {v(vWt+e)}")
    cmul8(k, vY, vX, vTc, vTs, +1)
    pack()
    for blk in range(2):
        xr, xi = vX + 4 * blk, vX + 8 + 4 * blk
        k(f"v_mfma_f32_16x16x32_bf16 {v(xr,4)}, {v(vP,4)}, {v(vC2+4*blk,4)}, 0")
        k(f"v_mfma_f32_16x16x32_bf16 {v(xi,4)}, {v(vP+4,4)}, {v(vC2+4*blk,4)}, 0")
        k(f"v_mfma_f32_16x16x32_bf16 {v(xr,4)}, {v(vP+4,4)}, {v(vN2+4*blk,4)}, {v(xr,4)}")
        k(f"v_mfma_f32_16x16x32_bf16 {v(xi,4)}, {v(vP,4)}, {v(vS2+4*blk,4)}, {v(xi,4)}")
    for e in range(8):
        k(f"v_cos_f32 {v(vUc+e)}, {v(vUs+e)}")
    for e in range(8):
        k(f"v_sin_f32 {v(vUs+e)}, {v(vUs+e)}")
    sc = 2.0 / (S * D)
    k(f"s_cmp_eq_u32 s{sKK}, 223")
    k(f"s_mov_b32 s26, {f2u(sc)}")
    k(f"s_cselect_b32 s26, {f2u(sc/2)}, s26")
    for e in range(8):
        k(f"v_mul_f32 {v(vUc+e)}, s26, {v(vUc+e)}")
        k(f"v_mul_f32 {v(vUs+e)}, s26, {v(vUs+e)}")
    k("v_lshrrev_b32 v2, 1, v4")
    k("v_lshl_add_u32 v2, v2, 4, v5")
    k("v_lshlrev_b32 v2, 4, v2")
    k("v_and_b32 v3, 1, v4")
    k("v_lshl_add_u32 v2, v3, 3, v2")
    k(f"s_lshl_b32 s27, s{sW}, 9")
    k("v_add_u32 v2, s27, v2")
    cmul8(k, vY, vX, vUc, vUs, +1)
    pack()
    for plane in range(2):
        for blk in range(2):
            k(f"ds_write_b64 v2, {v(vP+4*plane+2*blk,2)} offset:{8192+plane*4096+blk*2048}")
    k("s_waitcnt lgkmcnt(0)")
    k.stamp()
    k("s_barrier")
    for t in range(2):
        for blk in range(2):
            for plane in range(2):
                k(f"ds_read_b128 {v(vD+16*plane+8*blk+4*t,4)}, v7 offset:{8192+plane*4096+blk*2048+t*1024}")
    k(f"s_lshl_b32 s27, s{sW}, 10")
    k(f"s_lshl_b32 s22, s{sKK}, 13")
    k("s_add_u32 s22, s22, s27")
    k("s_add_u32 s23, s22, 4096")
    k("s_waitcnt lgkmcnt(0)")
    dft_big(vN1, vS1, lambda: None)
    for p in range(4):
        k(f"v_cvt_pk_bf16_f32 {v(vP+p)}, {v(vX+2*p)}, {v(vX+2*p+1)}")
    k(f"s_cmp_ge_u32 s{sKK}, 112")
    k("s_cselect_b32 s24, s24, 0")
    for p in range(4):
        k(f"v_cvt_pk_bf16_f32 {v(vP+4+p)}, {v(vX+8+2*p)}, {v(vX+8+2*p+1)}")
    for p in range(4):
        k(f"v_xor_b32 {v(vP+4+p)}, s24, {v(vP+4+p)}")
    k(f"buffer_store_dwordx4 {v(vP,4)}, v7, s[16:19], s22 offen{SC}")
    k(f"buffer_store_dwordx4 {v(vP+4,4)}, v7, s[16:19], s23 offen{SC}")
    k.stamp()
    if k.prof:
        k("s_waitcnt vmcnt(0)")
    k.stamp_flush(6, PROF + (1 << 20), sW)
    k.label(END)
    k("s_endpgm")
    k.label("k2_code_end")
    if K2_SP:
        nk = 28 - K2_SP
        k.label(PFL)
        k("s_cmp_ge_u32 s2, 256")
        k(f"s_cbranch_scc1 {END}")
        k("s_load_dwordx2 s[6:7], s[0:1], 72")
        k("v_lshrrev_b32 v2, 6, v0")
        k("v_and_b32 v1, 63, v0")
        k("v_readfirstlane_b32 s20, v2")
        k("v_lshlrev_b32 v3, 4, v1")
        k("s_bfe_u32 s21, s2, 0x20003")
        k("s_lshr_b32 s22, s20, 1")
        k("s_lshl1_add_u32 s21, s21, s22")
        k(f"s_mul_i32 s21, s21, {7*57344}")
        k("s_and_b32 s22, s20, 1")
        k(f"s_mul_i32 s22, s22, {nk*1024}")
        k("s_add_u32 s21, s21, s22")
        k(f"s_add_u32 s21, s21, {K2_SP*2048}")
        k("s_movk_i32 s22, 7")
        k("s_waitcnt lgkmcnt(0)")
        k.srd_off(8, 6, WSB + WS, 56 * 57344)
        LP = k.lab("lp")
        k.label(LP)
        k("s_mov_b32 s23, s21")
        for i in range(nk):
            k(f"buffer_load_dwordx4 {v(8+4*i,4)}, v3, s[8:11], s23 offen offset:{(i%4)*1024}")
            if i % 4 == 3:
                k("s_add_u32 s23, s23, 4096")
        k(f"s_waitcnt vmcnt({nk})")
        k("s_add_u32 s21, s21, 57344")
        k("s_sub_u32 s22, s22, 1")
        k("s_cmp_lg_u32 s22, 0")
        k(f"s_cbranch_scc1 {LP}")
        k("s_endpgm")
    if K2_PF:
        k.label(PFL)
        k("s_cmp_ge_u32 s2, 448")
        k(f"s_cbranch_scc1 {END}")
        k("s_load_dwordx2 s[6:7], s[0:1], 72")
        k("v_lshrrev_b32 v2, 6, v0")
        k("v_and_b32 v1, 63, v0")
        k("v_readfirstlane_b32 s20, v2")
        k("v_lshlrev_b32 v3, 4, v1")
        k("s_lshr_b32 s21, s2, 3")
        k("s_sub_u32 s21, s21, 28")
        k("s_lshr_b32 s22, s20, 1")
        k("s_lshl1_add_u32 s21, s21, s22")
        k("s_mul_i32 s21, s21, 57344")
        k("s_and_b32 s22, s20, 1")
        k(f"s_mul_i32 s22, s22, {K2_PF*1024}")
        k("s_add_u32 s21, s21, s22")
        k("s_waitcnt lgkmcnt(0)")
        k.srd_off(8, 6, WSB + WS, 56 * 57344)
        for i in range(K2_PF):
            k(f"buffer_load_dwordx4 {v(8+4*i,4)}, v3, s[8:11], s21 offen offset:{(i%4)*1024}")
            if i % 4 == 3:
                k("s_add_u32 s21, s21, 4096")
        k("s_endpgm")
    return k


HEADER = """; Fused preLN + GFNet spectral filter + preLN bilinear GLU, generated by gen/gen.py
"""


def build(kernels):
    out = [HEADER.rstrip()]
    for kern, grid, block, lds in kernels:
        out.append(f"; @launch kernel={kern.name} grid=({grid},1,1) block=({block},1,1) lds={lds}")
    out.append('.amdgcn_target "amdgcn-amd-amdhsa--gfx950"')
    out.append(".text")
    descs = []
    seen = set()
    for kern, *_ in kernels:
        if kern.name in seen:
            continue
        seen.add(kern.name)
        body, desc = kern.emit()
        print(kern.name, kern.stats, file=sys.stderr)
        out.append(body)
        descs.append(desc)
    out.append('.section .rodata,"a"')
    for d in descs:
        out.append(".p2align 6")
        out.append(d)
    return "\n".join(out) + "\n"


def kernel_list():
    from gen3 import gen_k3, K3_LDS, K3_WGS
    return [(gen_k1(), K1_WGS, 256, K1_LDS), (gen_k2(), 448 if K2_PF else 256 if K2_SP else 224, 256, K2_LDS), (gen_k3(), K3_WGS, 256, K3_LDS)]


if __name__ == "__main__":
    if "--prof" in sys.argv:
        Kern.prof = True
        sys.argv.remove("--prof")
    path = sys.argv[1] if len(sys.argv) > 1 else "sequential_preLN__spectral_gfnet__glu_gated_bilinear__prompt.s"
    open(path, "w").write(build(kernel_list()))
```

```python
import struct
import sys
from asmlib import Kern, v, a, s

S, D, F = 2048, 448, 1792
AT = 0x000000
WT = 0x200000
BT = 0x400000
HC = 0x600000
WS = 0x800000
WD = 0xC00000
HP = 0xE00000
M1 = 0x1500000
FL = 0x1510000
WS_BYTES = 0x1520000
XB = S * D * 2
WRB = S * 225 * 2
WGB = D * F * 2
EPS = 1e-5
PROF = 0x1800000
import os
SC = os.environ.get("SC", " sc1")
NT = os.environ.get("NT", "")
WSB = int(os.environ.get("WSB", "0"), 0)


def f2u(x):
    return "0x%08x" % struct.unpack("<I", struct.pack("<f", x))[0]


N_WT, N_WS, N_WD = 256, 392, 196
K1_SIDE_WGS = (N_WT + N_WS + N_WD) // 4
K1_WGS = 256
K1_LDS = 57344 + 512


def div7(k, dst, src):
    k(f"s_mul_i32 s{dst}, s{src}, 37")
    k(f"s_lshr_b32 s{dst}, s{dst}, 8")


EARLY = int(os.environ.get("EARLY", "2"))
NOWD1 = int(os.environ.get("NOWD1", "0"))
ROTX = int(os.environ.get("ROTX", "1"))
XFIRST = int(os.environ.get("XFIRST", "1"))
CODEPF = int(os.environ.get("CODEPF", "1"))


def code_prefetch(k, target, piece_sreg, vlane16, vtmp, stmp):
    here = k.lab("pc")
    k(f"s_getpc_b64 s[{stmp}:{stmp+1}]")
    k.label(here)
    k(f"s_add_u32 s{stmp}, s{stmp}, {target}-{here}")
    k(f"s_addc_u32 s{stmp+1}, s{stmp+1}, 0")
    k(f"s_lshl_b32 s{stmp+2}, s{piece_sreg}, 10")
    k(f"v_add_u32 {v(vtmp)}, s{stmp+2}, {v(vlane16)}")
    k(f"global_load_dwordx4 {v(vtmp+2,4)}, {v(vtmp)}, s[{stmp}:{stmp+1}]")


def xlane_sum(k, r, t):
    k(f"v_mov_b32 {v(t)}, {v(r)}")
    k(f"v_permlane16_swap_b32 {v(r)}, {v(t)}")
    k(f"v_add_f32 {v(r)}, {v(r)}, {v(t)}")
    k(f"v_mov_b32 {v(t)}, {v(r)}")
    k(f"v_permlane32_swap_b32 {v(r)}, {v(t)}")
    k(f"v_add_f32 {v(r)}, {v(r)}, {v(t)}")


def gen_k1():
    k = Kern("k1_kernel", 0, 0)
    END, SIDE, STORE, JWS, JWD, TR, ISSUED, TRS = (k.lab(x) for x in ("end", "side", "store", "jws", "jwd", "tr", "iss", "trs"))
    sW, sMain, sKind = 20, 48, 49
    k(f"s_cmp_ge_u32 s2, {K1_WGS}")
    k(f"s_cbranch_scc1 {END}")
    k.stamp()
    k("s_load_dwordx2 s[4:5], s[0:1], 0")
    k("s_load_dwordx2 s[6:7], s[0:1], 72")
    k("s_load_dwordx4 s[76:79], s[0:1], 8")
    k("s_load_dwordx4 s[80:83], s[0:1], 32")
    k("s_load_dwordx2 s[84:85], s[0:1], 48")
    k("v_lshrrev_b32 v2, 6, v0")
    k("v_and_b32 v1, 63, v0")
    k(f"v_readfirstlane_b32 s{sW}, v2")
    k(f"s_mov_b32 s{sMain}, 0")
    k("s_cmp_ge_u32 s2, 224")
    k(f"s_cbranch_scc1 {SIDE}")
    k(f"s_mov_b32 s{sMain}, 1")
    sRT, sCT = 21, 22
    k("s_and_b32 s23, s2, 7")
    k("s_lshr_b32 s24, s2, 3")
    div7(k, 25, 24)
    k("s_mul_i32 s26, s25, 7")
    k(f"s_sub_u32 s{sCT}, s24, s26")
    k(f"s_lshl2_add_u32 s{sRT}, s23, s25")
    k("v_lshrrev_b32 v4, 5, v1")
    k("v_bfe_u32 v5, v1, 3, 2")
    k("v_lshl_add_u32 v4, v4, 4, v5")
    k("s_movk_i32 s26, 0x7000")
    k("v_mul_u32_u24 v4, s26, v4")
    k("v_lshrrev_b32 v5, 4, v1")
    k("v_and_b32 v6, 7, v1")
    k("v_xor_b32 v6, v6, v5")
    k("v_lshl_add_u32 v2, v6, 4, v4")
    k("v_xor_b32 v3, 64, v2")
    k(f"v_add_u32 v3, {32*32*896}, v3")
    k(f"s_lshl_b32 s26, s{sW}, 7")
    k(f"s_add_u32 s26, s26, s{sRT}")
    k("s_mul_i32 s26, s26, 896")
    k(f"s_lshl_b32 s27, s{sW}, 11")
    saved, k.lines = k.lines, []
    k("v_and_b32 v8, 15, v1")
    vB, vST, vE, vSG, vT, vF = 8, 9, 9, 17, 19, 28
    vKK, vOnes = 27, 152
    k(f"s_and_b32 s28, s{sW}, 1")
    k("s_lshl_b32 s28, s28, 4")
    k(f"s_lshl_b32 s29, s{sCT}, 5")
    k("s_add_u32 s28, s28, s29")
    k(f"v_add_u32 {v(vKK)}, s28, v8")
    k("v_lshrrev_b32 v9, 1, v8")
    k("v_xor_b32 v9, v9, v5")
    k("v_lshlrev_b32 v9, 4, v9")
    k("v_lshl_add_u32 v4, v8, 7, v9")
    k(f"v_add_u32 v19, 1, {v(vKK)}")
    k("v_cvt_f32_u32 v20, v19")
    k("v_and_b32 v19, 1, v19")
    k("v_lshlrev_b32 v19, 31, v19")
    k(f"v_or_b32 {v(vSG)}, 1.0, v19")
    k(f"v_mul_f32 {v(vE+1)}, {f2u(1.0/448)}, v20")
    for e in range(2, 8):
        k(f"v_mul_f32 {v(vE+e)}, {f2u(e/448.0)}, v20")
    k(f"v_mul_f32 {v(vST)}, {f2u(32.0/448)}, v20")
    k(f"v_fract_f32 {v(vST)}, {v(vST)}")
    k("v_lshlrev_b32 v21, 3, v5")
    k("v_cvt_f32_u32 v21, v21")
    k(f"s_lshr_b32 s30, s{sW}, 1")
    k(f"s_mul_i32 s31, s30, {f2u(0.25)}")
    k(f"v_mov_b32 {v(vB)}, s31")
    k(f"v_fmac_f32 {v(vB)}, v21, {v(vE+1)}")
    k(f"v_fract_f32 {v(vB)}, {v(vB)}")
    k("v_xor_b32 v5, 64, v4")
    k("v_add_u32 v6, s27, v4")
    k("v_add_u32 v7, s27, v5")
    for p in range(4):
        k(f"v_mov_b32 {v(vOnes+p)}, 0x3f803f80")
    vCS = 156
    for t in range(7):
        k(f"v_cos_f32 {v(vT)}, {v(vB)}")
        for e in range(1, 8):
            k(f"v_add_f32 {v(vT+e)}, {v(vB)}, {v(vE+e)}")
        for e in range(1, 8):
            k(f"v_cos_f32 {v(vT+e)}, {v(vT+e)}")
        if t < 6:
            k(f"v_add_f32 {v(vB)}, {v(vB)}, {v(vST)}")
            k(f"v_fract_f32 {v(vB)}, {v(vB)}")
        for p in range(4):
            k(f"v_cvt_pk_bf16_f32 {v(vF+4*t+p)}, {v(vT+2*p)}, {v(vT+2*p+1)}")
        if t > 0:
            k(f"v_mfma_f32_16x16x32_bf16 {v(vCS,4)}, {v(vOnes,4)}, {v(vF+4*t-4,4)}, {'0' if t == 1 else v(vCS,4)}")
    gen_lines, k.lines = k.lines, saved
    k("s_waitcnt lgkmcnt(0)")
    k.srd(8, 4, XB)
    sC, sG_, sL = 23, 24, 25

    def xcol(i):
        if i == 0:
            k(f"s_mov_b32 s{sC}, s{sCT}" if ROTX else f"s_mov_b32 s{sC}, 0")
        else:
            k(f"s_add_u32 s{sC}, s{sC}, 1")
            k(f"s_cmp_eq_u32 s{sC}, 7")
            k(f"s_cselect_b32 s{sC}, 0, s{sC}")
        k(f"s_lshl_b32 s{sG_}, s{sC}, 7")
        k(f"s_add_u32 s{sG_}, s{sG_}, s26")
        k(f"s_lshl_b32 s{sL}, s{sC}, 13")
        k(f"s_add_u32 m0, s{sL}, s27")
        k(f"buffer_load_dwordx4 v2, s[8:11], s{sG_} offen{NT} lds")
        slot()
        k("s_add_u32 m0, m0, 1024")
        k(f"buffer_load_dwordx4 v3, s[8:11], s{sG_} offen{NT} lds")
        slot()

    per = [0]

    def slot():
        for _ in range(min(per[0], len(gen_lines))):
            k(gen_lines.pop(0))

    for i in range(XFIRST):
        xcol(i)
    k.label(SIDE)
    k("s_waitcnt lgkmcnt(0)")
    vIn, vSrc, vDst, vOut = 168, 200, 201, 208
    sA, sB_, sD = 52, 56, 88
    sSo, sDo, sSt, sSt4, sSto, sDt, sDt4, t0, t1, t2, t3 = 86, 87, 97, 98, 101, 99, 100, 50, 51, 35, 39
    k(f"s_mul_i32 s{t0}, s2, 3")
    k(f"s_add_u32 s{t0}, s{t0}, s{sW}")
    k(f"s_sub_u32 s{t0}, s{t0}, 1")
    k(f"s_lshl2_add_u32 s{t1}, s2, s{sW}")
    k(f"s_sub_u32 s{t1}, s{t1}, 128")
    k("s_cmp_lt_u32 s2, 128")
    k(f"s_cselect_b32 s{t0}, s{t0}, s{t1}")
    k(f"s_cselect_b32 s{t1}, s{sW}, 1")
    k("s_cmp_ge_u32 s2, 224")
    k(f"s_cselect_b32 s{t1}, 0, s{t1}")
    k(f"s_cmp_lg_u32 s{t1}, 0")
    k(f"s_cbranch_scc1 {JWS}")
    k(f"s_mov_b32 s{sKind}, 0")
    k(f"s_lshr_b32 s{t0}, s2, 5")
    k(f"s_add_u32 s{t0}, s{t0}, 4")
    k(f"s_bfe_u32 s{t2}, s2, 0x20003")
    k(f"s_cmp_ge_u32 s2, 224")
    k(f"s_cselect_b32 s{t0}, s{t2}, s{t0}")
    k(f"s_cselect_b32 s{t2}, s{sW}, s{t2}")
    k(f"s_and_b32 s{t1}, s2, 7")
    k.srd(sA, 76, WRB)
    k.srd(sB_, 78, WRB)
    k(f"v_and_b32 {v(vOut-4)}, 7, v1")
    k(f"v_lshrrev_b32 {v(vOut-3)}, 3, v1")
    k(f"v_mul_u32_u24 {v(vSrc)}, 0x1c2, {v(vOut-4)}")
    k(f"v_lshl_add_u32 {v(vSrc)}, {v(vOut-3)}, 4, {v(vSrc)}")
    k(f"v_lshlrev_b32 {v(vDst)}, 16, {v(vOut-3)}")
    k(f"v_lshl_add_u32 {v(vDst)}, {v(vOut-4)}, 4, {v(vDst)}")
    k(f"v_add_u32 {v(vOut-3)}, 1, {v(vOut-3)}")
    k(f"v_lshlrev_b32 {v(vOut-3)}, 27, {v(vOut-3)}")
    k(f"v_and_b32 {v(vOut-3)}, 0x40000000, {v(vOut-3)}")
    k(f"v_or_b32 {v(vSrc)}, {v(vSrc)}, {v(vOut-3)}")
    k(f"v_or_b32 {v(vDst)}, {v(vDst)}, {v(vOut-3)}")
    k(f"s_lshl_b32 s{sSo}, s{t1}, 5")
    k(f"s_add_u32 s{sSo}, s{sSo}, s{t0}")
    k(f"s_mul_i32 s{sSo}, s{sSo}, 3600")
    k(f"s_mul_i32 s{t3}, s{t2}, 112")
    k(f"s_add_u32 s{sSo}, s{sSo}, s{t3}")
    k(f"s_add_u32 s{sSo}, s{sSo}, 2")
    k(f"s_mov_b32 s{sSt}, 0")
    k(f"s_mov_b32 s{sSt4}, {64*450}")
    k(f"s_mov_b32 s{sSto}, {64*450}")
    k.srd_off(sD, 6, WSB + WT, 224 * 8192)
    k(f"s_mul_i32 s{sDo}, s{t2}, {7*65536}")
    k(f"s_lshr_b32 s{t3}, s{t0}, 1")
    k(f"s_lshl_b32 s{t3}, s{t3}, 11")
    k(f"s_add_u32 s{sDo}, s{sDo}, s{t3}")
    k(f"s_lshl_b32 s{t3}, s{t1}, 8")
    k(f"s_add_u32 s{sDo}, s{sDo}, s{t3}")
    k(f"s_and_b32 s{t3}, s{t0}, 1")
    k(f"s_lshl_b32 s{t3}, s{t3}, 7")
    k(f"s_add_u32 s{sDo}, s{sDo}, s{t3}")
    k(f"s_branch {ISSUED}")
    k.label(JWS)
    k(f"s_mov_b32 s{sKind}, 1")
    k(f"s_cmp_ge_u32 s{t0}, {N_WS}")
    k(f"s_cbranch_scc1 {JWD}")
    k(f"s_bitcmp1_b32 s{t0}, 0")
    k(f"s_cselect_b32 s{sA}, s82, s80")
    k(f"s_cselect_b32 s{sA+1}, s83, s81")
    k(f"s_and_b32 s{sA+1}, s{sA+1}, 0xffff")
    k(f"s_mov_b32 s{sA+2}, {WGB}")
    k(f"s_mov_b32 s{sA+3}, 0x20000")
    k.srd_off(sD, 6, WSB + WS, 56 * 28 * 2048)
    k(f"s_lshr_b32 s{t1}, s{t0}, 1")
    k(f"s_mul_i32 s{t2}, s{t1}, 2341")
    k(f"s_lshr_b32 s{t2}, s{t2}, 16")
    k(f"s_mul_i32 s{t3}, s{t2}, 28")
    k(f"s_sub_u32 s{t1}, s{t1}, s{t3}")
    k(f"v_lshrrev_b32 {v(vSrc)}, 5, v1")
    k(f"v_mul_u32_u24 {v(vSrc)}, {8*3584}, {v(vSrc)}")
    k(f"v_and_b32 {v(vDst)}, 31, v1")
    k(f"v_lshl_add_u32 {v(vSrc)}, {v(vDst)}, 4, {v(vSrc)}")
    k(f"s_mul_i32 s{sSo}, s{t1}, {16*3584}")
    k(f"s_lshl_b32 s{t3}, s{t2}, 9")
    k(f"s_add_u32 s{sSo}, s{sSo}, s{t3}")
    k(f"s_movk_i32 s{sSt}, 3584")
    k(f"s_movk_i32 s{sSt4}, 3584")
    k(f"v_lshlrev_b32 {v(vDst)}, 4, v1")
    k(f"s_mul_i32 s{sDo}, s{t2}, {8*28*2048}")
    k(f"s_lshl_b32 s{t3}, s{t1}, 11")
    k(f"s_add_u32 s{sDo}, s{sDo}, s{t3}")
    k(f"s_and_b32 s{t3}, s{t0}, 1")
    k(f"s_lshl_b32 s{t3}, s{t3}, 10")
    k(f"s_add_u32 s{sDo}, s{sDo}, s{t3}")
    k(f"s_mov_b32 s{sDt}, {28*2048}")
    k(f"s_mov_b32 s{sDt4}, {28*2048}")
    k(f"s_branch {TR}")
    k.label(JWD)
    k(f"s_sub_u32 s{t0}, s{t0}, {N_WS}")
    k.srd(sA, 84, WGB)
    k.srd_off(sD, 6, WSB + WD, 7 * 112 * 2048)
    k(f"s_cmp_ge_u32 s{t0}, {0 if NOWD1 else N_WD}")
    k(f"s_cselect_b32 s{sA+2}, 0, s{sA+2}")
    k(f"s_cselect_b32 s{sD+2}, 0, s{sD+2}")
    k(f"s_mul_i32 s{t2}, s{t0}, 2341")
    k(f"s_lshr_b32 s{t2}, s{t2}, 16")
    k(f"s_mul_i32 s{t3}, s{t2}, 28")
    k(f"s_sub_u32 s{t1}, s{t0}, s{t3}")
    k(f"v_lshrrev_b32 {v(vSrc)}, 5, v1")
    k(f"v_bfe_u32 {v(vDst)}, v1, 4, 1")
    k(f"v_lshl_add_u32 {v(vSrc)}, {v(vDst)}, 7, {v(vSrc)}")
    k(f"v_bfe_u32 {v(vDst)}, v1, 3, 1")
    k(f"v_lshl_add_u32 {v(vSrc)}, {v(vDst)}, 5, {v(vSrc)}")
    k(f"v_mul_u32_u24 {v(vSrc)}, 0x380, {v(vSrc)}")
    k(f"v_and_b32 {v(vOut-4)}, 7, v1")
    k(f"v_lshl_add_u32 {v(vSrc)}, {v(vOut-4)}, 4, {v(vSrc)}")
    k(f"s_lshr_b32 s{sSo}, s{t1}, 2")
    k(f"s_lshl_b32 s{sSo}, s{sSo}, 7")
    k(f"s_and_b32 s{t3}, s{t1}, 3")
    k(f"s_add_u32 s{sSo}, s{sSo}, s{t3}")
    k(f"s_mul_i32 s{sSo}, s{sSo}, {2*896}")
    k(f"s_lshl_b32 s{t3}, s{t2}, 7")
    k(f"s_add_u32 s{sSo}, s{sSo}, s{t3}")
    k(f"s_movk_i32 s{sSt}, {8*896}")
    k(f"s_mov_b32 s{sSt4}, {(64-24)*896}")
    k(f"v_lshlrev_b32 {v(vOut-4)}, 4, {v(vOut-4)}")
    k(f"v_lshl_add_u32 {v(vOut-4)}, {v(vDst)}, 9, {v(vOut-4)}")
    k(f"v_lshrrev_b32 {v(vDst)}, 4, v1")
    k(f"v_lshl_add_u32 {v(vDst)}, {v(vDst)}, 11, {v(vOut-4)}")
    k(f"s_mul_i32 s{sDo}, s{t2}, 112")
    k(f"s_lshl2_add_u32 s{sDo}, s{t1}, s{sDo}")
    k(f"s_lshl_b32 s{sDo}, s{sDo}, 11")
    k(f"s_movk_i32 s{sDt}, 128")
    k(f"s_movk_i32 s{sDt4}, {1024-384}")
    k.label(TR)
    k(f"s_mov_b32 s{sSto}, s{sSt}")
    for i in range(3):
        k(f"s_mov_b32 s{sB_+i}, s{sA+i}")
    k(f"s_mov_b32 s{sB_+3}, 0x20000")
    k.label(ISSUED)

    def side_loads(after=lambda: None):
        for e in range(8):
            sr = sB_ if e & 1 else sA
            k(f"buffer_load_dwordx4 {v(vIn+4*e,4)}, {v(vSrc)}, s[{sr}:{sr+3}], s{sSo} offen{NT}")
            after()
            if e < 7:
                k(f"s_add_u32 s{sSo}, s{sSo}, s{sSt4 if e == 3 else sSto if e & 1 else sSt}")

    def side_store(final):
        JOIN = k.lab("join")
        k.label(STORE)
        if final:
            k.stamp()
        k("s_mov_b32 s34, 0x05040100")
        k("s_mov_b32 s35, 0x07060302")
        k(f"s_cmp_lg_u32 s{sKind}, 0")
        k(f"s_cbranch_scc1 {TRS}")
        for e in range(8):
            o = vOut + 4 * e
            for r in range(4):
                k(f"v_perm_b32 {v(o+r)}, {v(vIn+8*r+4+(e>>1))}, {v(vIn+8*r+(e>>1))}, s{34+(e&1)}")
            k(f"buffer_store_dwordx4 {v(o,4)}, {v(vDst)}, s[{sD}:{sD+3}], s{sDo} offen{SC} ; alt")
            if e < 7:
                k(f"s_add_u32 s{sDo}, s{sDo}, 8192")
        k(f"s_branch {JOIN}")
        k.label(TRS)
        for j in range(8):
            o = vOut + 4 * j
            for q in range(4):
                k(f"v_perm_b32 {v(o+q)}, {v(vIn+4*(2*q+1)+(j>>1))}, {v(vIn+4*(2*q)+(j>>1))}, s{34+(j&1)}")
            k(f"buffer_store_dwordx4 {v(o,4)}, {v(vDst)}, s[{sD}:{sD+3}], s{sDo} offen{SC}")
            if j < 7:
                k(f"s_add_u32 s{sDo}, s{sDo}, s{sDt4 if j == 3 else sDt}")
        k.label(JOIN)
        if final:
            k.stamp()
            if k.prof:
                k("s_waitcnt vmcnt(0)")
            k.stamp_flush(6, PROF, sW, 1)
        else:
            k(f"s_cmp_eq_u32 s{sMain}, 0")
            k(f"s_cbranch_scc1 {END}")

    SPW = k.lab("spw")
    k(f"s_cmp_eq_u32 s{sMain}, 0")
    k(f"s_cbranch_scc1 {SPW}")
    per[0] = -(-len(gen_lines) // (22 - 2 * XFIRST))
    side_loads(slot)
    for i in range(XFIRST, 7):
        xcol(i)
    assert not gen_lines
    k.stamp()
    k.srd_off(12, 6, WSB + AT, 224 * 8192)
    k.srd_off(16, 6, WSB + M1, S * 4)
    k(f"v_mfma_f32_16x16x32_bf16 {v(vCS,4)}, {v(vOnes,4)}, {v(vF+24,4)}, {v(vCS,4)}")
    npf = 0
    if CODEPF:
        k("v_lshlrev_b32 v160, 4, v1")
        k(f"s_min_u32 s34, s{sW}, (k2_code_end-k2_kernel)/1024")
        code_prefetch(k, "k2_kernel", 34, 160, 162, 36)
        npf += 1
    vR, vSm, vGr = 56, 20, 120

    def stat(t):
        b = vR + 4 * (t % 4)
        k(f"v_mfma_f32_16x16x32_bf16 {v(vSm,4)}, {v(b,4)}, {v(vOnes,4)}, {'0' if t == 0 else v(vSm,4)}")
        k(f"v_mfma_f32_16x16x32_bf16 {v(vGr,4)}, {v(b,4)}, {v(b,4)}, {'0' if t == 0 else v(vGr,4)}")

    k.stamp()
    k(f"s_lshl_b32 s{sL}, s{sCT}, 13" if ROTX else f"s_mov_b32 s{sL}, 0")
    for c in range(7):
        k(f"v_add_u32 v26, s{sL}, v6")
        k(f"v_add_u32 v18, s{sL}, v7")
        if c < 6:
            k(f"s_add_u32 s{sL}, s{sL}, 8192")
            k(f"s_cmp_eq_u32 s{sL}, 57344")
            k(f"s_cselect_b32 s{sL}, 0, s{sL}")
        k(f"s_waitcnt vmcnt({12-2*c+npf+(8 if c < XFIRST else 0)})")
        for par in range(2):
            t = 2 * c + par
            k(f"ds_read_b128 {v(vR+4*(t%4),4)}, v{18 if par else 26}")
        if c > 0:
            k("s_waitcnt lgkmcnt(2)")
            stat(2 * c - 2)
            stat(2 * c - 1)
    k("s_waitcnt lgkmcnt(0)")
    k.stamp()
    if XFIRST == 7:
        k(f"s_waitcnt vmcnt({npf})")
    stat(12)
    stat(13)
    if EARLY == 1:
        side_store(False)
    k("s_barrier")
    vA = 88
    vSt = 124
    seq = [(t, b) for t in range(14) for b in range(4)]

    def rd(n):
        t, b = seq[n]
        k(f"ds_read_b128 {v(vR+4*(n%8),4)}, v{4+(t&1)} offset:{(t>>1)*8192 + b*2048}")

    vM, vQ = 24, 25
    fin = ["v_and_b32 v26, 3, v1",
           "v_cmp_eq_u32 s[40:41], 1, v26", "v_cmp_eq_u32 s[42:43], 2, v26", "v_cmp_eq_u32 s[44:45], 3, v26",
           "v_bfe_u32 v26, v1, 2, 2", "v_lshrrev_b32 v19, 4, v1", "v_cmp_eq_u32 s[46:47], v26, v19",
           f"v_cndmask_b32 {v(vM)}, {v(vSm)}, {v(vSm+1)}, s[40:41]", f"v_cndmask_b32 {v(vQ)}, {v(vGr)}, {v(vGr+1)}, s[40:41]",
           f"v_cndmask_b32 {v(vM)}, {v(vM)}, {v(vSm+2)}, s[42:43]", f"v_cndmask_b32 {v(vQ)}, {v(vQ)}, {v(vGr+2)}, s[42:43]",
           f"v_cndmask_b32 {v(vM)}, {v(vM)}, {v(vSm+3)}, s[44:45]", f"v_cndmask_b32 {v(vQ)}, {v(vQ)}, {v(vGr+3)}, s[44:45]",
           f"v_mul_f32 {v(vM)}, {f2u(1.0/448)}, {v(vM)}",
           f"v_mul_f32 {v(vQ)}, {f2u(1.0/448)}, {v(vQ)}",
           "v_and_b32 v26, 15, v1",
           f"v_fma_f32 {v(vQ)}, -{v(vM)}, {v(vM)}, {v(vQ)}",
           f"s_lshl_b32 s33, s{sW}, 6",
           f"v_max_f32 {v(vQ)}, 0, {v(vQ)}",
           "v_lshl_add_u32 v19, v26, 2, s33",
           f"v_add_f32 {v(vQ)}, {f2u(EPS)}, {v(vQ)}",
           f"v_fmac_f32 {v(vCS)}, {v(vCS)}, {v(vSG)}",
           f"v_rsq_f32 {v(vQ)}, {v(vQ)}",
           "v_lshrrev_b32 v21, 2, v26",
           "v_and_b32 v26, 3, v26",
           f"v_mul_f32 v20, {v(vM)}, {v(vQ)}",
           "v_lshl_add_u32 v26, v21, 4, v26",
           "v_lshlrev_b32 v26, 7, v26",
           f"s_lshl_b32 s33, s{sW}, 7",
           f"s_add_u32 s33, s33, s{sRT}",
           "s_lshl_b32 s33, s33, 2",
           f"s_cmp_eq_u32 s{sCT}, 0\ns_cselect_b32 s18, {S*4}, 0"]
    DEPTH = 7
    for n in range(DEPTH):
        rd(n)
    k.stamp()
    extra = 0
    for n in range(56):
        t, b = seq[n]
        left = min(DEPTH - 1, 55 - n)
        k(f"s_waitcnt lgkmcnt({left + (2 if 40 < n <= 40 + DEPTH else 0)})")
        acc = vA + 16 * (t // 7) + 4 * b
        c = "0" if t % 7 == 0 else v(acc, 4)
        k(f"v_mfma_f32_16x16x32_bf16 {v(acc,4)}, {v(vR+4*(n%8),4)}, {v(vF+4*(t%7),4)}, {c}")
        if n + DEPTH < 56:
            rd(n + DEPTH)
        if n >= 4 and fin:
            k(fin.pop(0))
        if n == 40:
            assert not fin
            k("s_mov_b64 exec, s[46:47]")
            k(f"ds_write_b32 v19, {v(vQ)} offset:57344")
            k("ds_write_b32 v19, v20 offset:57600")
            k(f"buffer_store_dword {v(vM)}, v26, s[16:19], s33 offen")
            k("s_mov_b64 exec, -1")
    if EARLY == 2:
        side_store(False)
    k("s_barrier")
    k.stamp()
    k("v_lshrrev_b32 v24, 4, v1")
    k("v_lshlrev_b32 v24, 4, v24")
    for b in range(4):
        k(f"ds_read_b128 {v(vSt+4*b,4)}, v24 offset:{57344 + 64*b}")
        k(f"ds_read_b128 {v(vSt+16+4*b,4)}, v24 offset:{57600 + 64*b}")
    for n in range(16):
        k(f"v_fmac_f32 {v(vA+n)}, {v(vA+16+n)}, {v(vSG)}")
    k("v_and_b32 v8, 15, v1")
    k("v_and_b32 v9, 7, v1")
    k("v_lshrrev_b32 v10, 3, v24")
    k("v_xor_b32 v10, v10, v9")
    k("v_lshlrev_b32 v10, 4, v10")
    k("v_lshl_add_u32 v10, v8, 7, v10")
    k("v_add_u32 v10, s27, v10")
    k("v_xor_b32 v11, 16, v10")
    k("v_lshlrev_b32 v12, 4, v1")
    k("v_add_u32 v12, s27, v12")
    k("v_lshrrev_b32 v13, 3, v1")
    k("v_xor_b32 v9, v9, v13")
    k("v_lshlrev_b32 v9, 4, v9")
    k("v_lshl_add_u32 v13, v13, 13, v9")
    k("s_lshl_b32 s28, s28, 13")
    k("s_lshl_b32 s30, s30, 12")
    k(f"s_lshl_b32 s33, s{sRT}, 7")
    k("s_add_u32 s33, s33, s30")
    k("s_add_u32 s33, s33, s28")
    k("s_add_u32 s34, s33, 0x10000")
    for h2 in range(2):
        k(f"s_waitcnt lgkmcnt({4-4*h2})")
        for n in range(8 * h2, 8 * h2 + 8):
            k(f"v_mul_f32 {v(vA+n)}, {v(vA+n)}, {v(vSt+n)}")
        for n in range(8 * h2, 8 * h2 + 8):
            k(f"v_fma_f32 {v(vA+n)}, -{v(vSt+16+n)}, {v(vCS)}, {v(vA+n)}")
        for n in range(4 * h2, 4 * h2 + 4):
            k(f"v_cvt_pk_bf16_f32 {v(vR+n)}, {v(vA+2*n)}, {v(vA+2*n+1)}")
    k(f"ds_write_b128 v10, {v(vR,4)}")
    k(f"ds_write_b128 v11, {v(vR+4,4)}")
    k("s_waitcnt lgkmcnt(0)")
    k(f"ds_read_b128 {v(vR+8,4)}, v12")
    k(f"ds_read_b128 {v(vR+12,4)}, v12 offset:1024")
    k("s_waitcnt lgkmcnt(1)")
    k(f"buffer_store_dwordx4 {v(vR+8,4)}, v13, s[12:15], s33 offen{SC}")
    k("s_waitcnt lgkmcnt(0)")
    k(f"buffer_store_dwordx4 {v(vR+12,4)}, v13, s[12:15], s34 offen{SC}")
    if not EARLY:
        side_store(True)
    else:
        k.stamp()
        k.stamp()
        if k.prof:
            k("s_waitcnt vmcnt(0)")
        k.stamp_flush(6, PROF, sW, 1)
    k.label(END)
    k("s_endpgm")
    k.label(SPW)
    side_loads()
    k("s_waitcnt vmcnt(0)")
    k("s_cmp_lg_u32 s2, 255")
    k(f"s_cbranch_scc1 {STORE}")
    k.srd_off(40, 6, WSB + FL, 128 * 256)
    k(f"s_lshl_b32 s44, s{sW}, 13")
    k("s_add_u32 s45, s44, 4096")
    for i in range(4):
        k(f"v_mov_b32 v{4+i}, 0")
    k("v_lshlrev_b32 v8, 4, v1")
    for i in range(4):
        k(f"buffer_store_dwordx4 v[4:7], v8, s[40:43], s44 offen offset:{1024*i}")
        k(f"buffer_store_dwordx4 v[4:7], v8, s[40:43], s45 offen offset:{1024*i}")
    k(f"s_branch {STORE}")
    return k


K2_LDS = 16384
K2_PF = int(os.environ.get("K2_PF", "0"))
K2_IN = int(os.environ.get("K2_IN", "1"))
K2_IN0 = int(os.environ.get("K2_IN0", "16"))
K2_SP = int(os.environ.get("K2_SP", "0"))


def cmul8(k, y, x, c, sn, sign):
    neg = " neg_lo:[1,0,0] neg_hi:[1,0,0]"
    for e in range(0, 8, 2):
        k(f"v_pk_mul_f32 {v(y+e,2)}, {v(x+e,2)}, {v(c+e,2)}")
        k(f"v_pk_mul_f32 {v(y+8+e,2)}, {v(x+8+e,2)}, {v(c+e,2)}")
    for e in range(0, 8, 2):
        k(f"v_pk_fma_f32 {v(y+e,2)}, {v(x+8+e,2)}, {v(sn+e,2)}, {v(y+e,2)}" + (neg if sign > 0 else ""))
        k(f"v_pk_fma_f32 {v(y+8+e,2)}, {v(x+e,2)}, {v(sn+e,2)}, {v(y+8+e,2)}" + ("" if sign > 0 else neg))


def gen_k2():
    k = Kern("k2_kernel", 0, 0)
    END = k.lab("end")
    sW, sKK = 20, 2
    PFL = k.lab("pf")
    k("s_cmp_ge_u32 s2, 224")
    k(f"s_cbranch_scc1 {PFL if K2_PF or K2_SP else END}")
    k.stamp()
    k("s_load_dwordx2 s[6:7], s[0:1], 72")
    k("v_lshrrev_b32 v2, 6, v0")
    k("v_and_b32 v1, 63, v0")
    k(f"v_readfirstlane_b32 s{sW}, v2")
    k("v_lshrrev_b32 v4, 4, v1")
    k("v_and_b32 v5, 7, v1")
    k("v_xor_b32 v5, v5, v4")
    k("v_lshrrev_b32 v6, 3, v1")
    k("v_lshlrev_b32 v6, 7, v6")
    k("v_lshl_add_u32 v2, v5, 4, v6")
    k("v_xor_b32 v3, 64, v2")
    k(f"s_lshl_b32 s21, s{sW}, 11")
    k(f"s_lshl_b32 s22, s{sKK}, 13")
    k("s_add_u32 s22, s22, s21")
    k("v_lshlrev_b32 v7, 4, v1")
    k("s_mov_b32 m0, s21")
    k("s_waitcnt lgkmcnt(0)")
    k.srd_off(8, 6, WSB + AT, 224 * 8192)
    k("buffer_load_dwordx4 v2, s[8:11], s22 offen lds")
    k("buffer_load_dwordx4 v3, s[8:11], s22 offen offset:1024 lds")
    k.srd_off(12, 6, WSB + WT, 224 * 8192)
    vWt = 8
    k(f"buffer_load_dwordx4 {v(vWt,4)}, v7, s[12:15], s22 offen")
    k(f"buffer_load_dwordx4 {v(vWt+4,4)}, v7, s[12:15], s22 offen offset:1024")
    if K2_IN:
        k.srd_off(28, 6, WSB + WS, 56 * 57344)
        k("s_lshr_b32 s32, s2, 3")
        k(f"s_lshr_b32 s33, s{sW}, 1")
        k("s_lshl1_add_u32 s32, s32, s33")
        k("s_mul_i32 s32, s32, 57344")
        k(f"s_and_b32 s33, s{sW}, 1")
        k("s_lshl_b32 s33, s33, 13")
        k("s_add_u32 s32, s32, s33")
        k("v_lshlrev_b32 v192, 7, v1")
        k("buffer_load_dword v193, v192, s[28:31], s32 offen")
    k.stamp()
    k.srd_off(16, 6, WSB + BT, 448 * 4096)
    vC1, vS1, vN1 = 16, 24, 32
    vC2, vS2, vN2 = 40, 48, 56
    vTc, vTs = 64, 72
    vUc, vUs = 80, 88
    vD = 96
    vX = 128
    vY = 144
    vP = 160
    vT = 168
    k("v_and_b32 v5, 15, v1")
    k(f"s_lshl_b32 s23, s{sW}, 4")
    k("v_add_u32 v6, s23, v5")
    k("v_cvt_f32_u32 v2, v6")
    k("v_cvt_f32_u32 v3, v4")

    def packed_table(dc, ds_, step, base, mult):
        for e in range(8):
            if mult[e] == 0:
                k(f"v_mov_b32 {v(vT+e)}, {v(base)}")
            else:
                k(f"v_fmamk_f32 {v(vT+e)}, {v(step)}, {f2u(float(mult[e]))}, {v(base)}")
        for e in range(8):
            k(f"v_cos_f32 {v(vT+8+e)}, {v(vT+e)}")
        for e in range(8):
            k(f"v_sin_f32 {v(vT+e)}, {v(vT+e)}")
        for p in range(4):
            k(f"v_cvt_pk_bf16_f32 {v(dc+p)}, {v(vT+8+2*p)}, {v(vT+8+2*p+1)}")
        for p in range(4):
            k(f"v_cvt_pk_bf16_f32 {v(ds_+p)}, {v(vT+2*p)}, {v(vT+2*p+1)}")

    k(f"v_mul_f32 {v(vY)}, {f2u(1.0/64)}, v2")
    k(f"v_mul_f32 {v(vY+1)}, {f2u(8.0)}, v3")
    k(f"v_mul_f32 {v(vY+1)}, {v(vY+1)}, {v(vY)}")
    packed_table(vC1, vS1, vY, vY + 1, list(range(8)))
    k("s_mov_b32 s24, 0x80008000")
    k("v_and_b32 v6, 1, v1")
    k("v_mul_u32_u24 v6, 0x8000, v6")
    k("v_lshl_or_b32 v6, v6, 16, v6")
    for p in range(4):
        k(f"v_xor_b32 {v(vC1+4+p)}, v6, {v(vC1+p)}")
        k(f"v_xor_b32 {v(vS1+4+p)}, v6, {v(vS1+p)}")
    for p in range(8):
        k(f"v_xor_b32 {v(vN1+p)}, s24, {v(vS1+p)}")
    k("v_lshrrev_b32 v6, 1, v5")
    k("v_xor_b32 v6, v6, v4")
    k("v_lshlrev_b32 v6, 4, v6")
    k(f"v_lshl_add_u32 {v(vP)}, v5, 7, v6")
    k(f"v_xor_b32 {v(vP+1)}, 64, {v(vP)}")
    m2 = [0, 1, 2, 3, 16, 17, 18, 19]
    k("v_cvt_f32_u32 v6, v5")
    k(f"v_mul_f32 {v(vY)}, {f2u(1.0/32)}, v6")
    k(f"v_mul_f32 {v(vY+1)}, 4.0, v3")
    k(f"v_mul_f32 {v(vY+1)}, {v(vY+1)}, {v(vY)}")
    packed_table(vC2, vS2, vY, vY + 1, m2)
    k("s_brev_b32 s25, 1")
    for p in range(4):
        k(f"v_xor_b32 {v(vC2+4+p)}, s25, {v(vC2+p)}")
        k(f"v_xor_b32 {v(vS2+4+p)}, s25, {v(vS2+p)}")
    for p in range(8):
        k(f"v_xor_b32 {v(vN2+p)}, s24, {v(vS2+p)}")

    k(f"v_mul_f32 {v(vY)}, {f2u(1.0/2048)}, v2")
    k(f"v_mul_f32 {v(vY+1)}, 4.0, v3")
    k(f"v_mul_f32 {v(vY+1)}, {v(vY+1)}, {v(vY)}")
    m2 = [0, 1, 2, 3, 16, 17, 18, 19]
    k.stamp()
    k(f"s_waitcnt vmcnt({2+K2_IN})")
    k("s_barrier")
    k.stamp()
    for plane in range(2):
        for blk in range(2):
            for t in range(2):
                k(f"ds_read_b128 {v(vD+16*plane+8*blk+4*t,4)}, {v(vP+t)} offset:{plane*4096+blk*2048}")
    for e in range(8):
        if m2[e] == 0:
            k(f"v_mov_b32 {v(vTs+e)}, {v(vY+1)}")
        else:
            k(f"v_fmamk_f32 {v(vTs+e)}, {v(vY)}, {f2u(float(m2[e]))}, {v(vY+1)}")

    def dft_big(cr, ci, first_wait):
        for t in range(2):
            for blk in range(2):
                ar, ai = vD + 8 * blk + 4 * t, vD + 16 + 8 * blk + 4 * t
                xr, xi = vX + 4 * blk, vX + 8 + 4 * blk
                c0r = "0" if t == 0 else v(xr, 4)
                c0i = "0" if t == 0 else v(xi, 4)
                k(f"v_mfma_f32_16x16x32_bf16 {v(xr,4)}, {v(ar,4)}, {v(vC1+4*t,4)}, {c0r}")
                k(f"v_mfma_f32_16x16x32_bf16 {v(xi,4)}, {v(ai,4)}, {v(vC1+4*t,4)}, {c0i}")
                first_wait()
                k(f"v_mfma_f32_16x16x32_bf16 {v(xr,4)}, {v(ai,4)}, {v(cr+4*t,4)}, {v(xr,4)}")
                k(f"v_mfma_f32_16x16x32_bf16 {v(xi,4)}, {v(ar,4)}, {v(ci+4*t,4)}, {v(xi,4)}")
                first_wait()

    if CODEPF:
        k("s_lshr_b32 s34, s2, 3")
        k("s_min_u32 s34, s34, (k3_code_end-k3_kernel)/1024-1")
        code_prefetch(k, "k3_kernel", 34, 7, 184, 36)
    k("s_waitcnt lgkmcnt(0)")
    fill = []
    for e in range(8):
        fill.append(f"v_cos_f32 {v(vTc+e)}, {v(vTs+e)}")
    for e in range(8):
        fill.append(f"v_sin_f32 {v(vTs+e)}, {v(vTs+e)}")

    def filler():
        for _ in range(2):
            if fill:
                k(fill.pop(0))

    dft_big(vS1, vN1, filler)
    assert not fill
    def pack():
        for p in range(4):
            k(f"v_cvt_pk_bf16_f32 {v(vP+p)}, {v(vY+2*p)}, {v(vY+2*p+1)}")
            k(f"v_cvt_pk_bf16_f32 {v(vP+4+p)}, {v(vY+8+2*p)}, {v(vY+8+2*p+1)}")

    cmul8(k, vY, vX, vTc, vTs, -1)
    pack()
    for blk in range(2):
        xr, xi = vX + 4 * blk, vX + 8 + 4 * blk
        k(f"v_mfma_f32_16x16x32_bf16 {v(xr,4)}, {v(vC2+4*blk,4)}, {v(vP,4)}, 0")
        k(f"v_mfma_f32_16x16x32_bf16 {v(xi,4)}, {v(vC2+4*blk,4)}, {v(vP+4,4)}, 0")
        k(f"v_mfma_f32_16x16x32_bf16 {v(xr,4)}, {v(vS2+4*blk,4)}, {v(vP+4,4)}, {v(xr,4)}")
        k(f"v_mfma_f32_16x16x32_bf16 {v(xi,4)}, {v(vN2+4*blk,4)}, {v(vP,4)}, {v(xi,4)}")
    k(f"v_mul_f32 {v(vT)}, {f2u(1.0/2048)}, v6")
    k(f"v_add_f32 {v(vT+1)}, {f2u(16.0/2048)}, {v(vT)}")
    k("v_lshl_add_u32 v2, v4, 2, s23")
    k("v_cvt_f32_u32 v2, v2")
    for r in range(4):
        for blk in range(2):
            k(f"v_mul_f32 {v(vUs+4*blk+r)}, v2, {v(vT+blk)}")
        if r < 3:
            k("v_add_f32 v2, 1.0, v2")
    k.stamp()
    k(f"s_waitcnt vmcnt({K2_IN+CODEPF})")
    for e in range(8):
        k(f"v_lshlrev_b32 {v(vTc+e)}, 16, {v(vWt+e)}")
        k(f"v_and_b32 {v(vTs+e)}, 0xffff0000, {v(vWt+e)}")
    cmul8(k, vY, vX, vTc, vTs, +1)
    pack()
    for blk in range(2):
        xr, xi = vX + 4 * blk, vX + 8 + 4 * blk
        k(f"v_mfma_f32_16x16x32_bf16 {v(xr,4)}, {v(vP,4)}, {v(vC2+4*blk,4)}, 0")
        k(f"v_mfma_f32_16x16x32_bf16 {v(xi,4)}, {v(vP+4,4)}, {v(vC2+4*blk,4)}, 0")
        k(f"v_mfma_f32_16x16x32_bf16 {v(xr,4)}, {v(vP+4,4)}, {v(vN2+4*blk,4)}, {v(xr,4)}")
        k(f"v_mfma_f32_16x16x32_bf16 {v(xi,4)}, {v(vP,4)}, {v(vS2+4*blk,4)}, {v(xi,4)}")
    for e in range(8):
        k(f"v_cos_f32 {v(vUc+e)}, {v(vUs+e)}")
    for e in range(8):
        k(f"v_sin_f32 {v(vUs+e)}, {v(vUs+e)}")
    sc = 2.0 / (S * D)
    k(f"s_cmp_eq_u32 s{sKK}, 223")
    k(f"s_mov_b32 s26, {f2u(sc)}")
    k(f"s_cselect_b32 s26, {f2u(sc/2)}, s26")
    for e in range(8):
        k(f"v_mul_f32 {v(vUc+e)}, s26, {v(vUc+e)}")
        k(f"v_mul_f32 {v(vUs+e)}, s26, {v(vUs+e)}")
    k("v_lshrrev_b32 v2, 1, v4")
    k("v_lshl_add_u32 v2, v2, 4, v5")
    k("v_lshlrev_b32 v2, 4, v2")
    k("v_and_b32 v3, 1, v4")
    k("v_lshl_add_u32 v2, v3, 3, v2")
    k(f"s_lshl_b32 s27, s{sW}, 9")
    k("v_add_u32 v2, s27, v2")
    cmul8(k, vY, vX, vUc, vUs, +1)
    pack()
    for plane in range(2):
        for blk in range(2):
            k(f"ds_write_b64 v2, {v(vP+4*plane+2*blk,2)} offset:{8192+plane*4096+blk*2048}")
    k("s_waitcnt lgkmcnt(0)")
    k.stamp()
    k("s_barrier")
    for t in range(2):
        for blk in range(2):
            for plane in range(2):
                k(f"ds_read_b128 {v(vD+16*plane+8*blk+4*t,4)}, v7 offset:{8192+plane*4096+blk*2048+t*1024}")
    k(f"s_lshl_b32 s27, s{sW}, 10")
    k(f"s_lshl_b32 s22, s{sKK}, 13")
    k("s_add_u32 s22, s22, s27")
    k("s_add_u32 s23, s22, 4096")
    k("s_waitcnt lgkmcnt(0)")
    dft_big(vN1, vS1, lambda: None)
    for p in range(4):
        k(f"v_cvt_pk_bf16_f32 {v(vP+p)}, {v(vX+2*p)}, {v(vX+2*p+1)}")
    k(f"s_cmp_ge_u32 s{sKK}, 112")
    k("s_cselect_b32 s24, s24, 0")
    for p in range(4):
        k(f"v_cvt_pk_bf16_f32 {v(vP+4+p)}, {v(vX+8+2*p)}, {v(vX+8+2*p+1)}")
    for p in range(4):
        k(f"v_xor_b32 {v(vP+4+p)}, s24, {v(vP+4+p)}")
    k(f"buffer_store_dwordx4 {v(vP,4)}, v7, s[16:19], s22 offen{SC}")
    k(f"buffer_store_dwordx4 {v(vP+4,4)}, v7, s[16:19], s23 offen{SC}")
    k.stamp()
    if k.prof:
        k("s_waitcnt vmcnt(0)")
    k.stamp_flush(6, PROF + (1 << 20), sW)
    k.label(END)
    k("s_endpgm")
    k.label("k2_code_end")
    if K2_SP:
        nk = 28 - K2_SP
        k.label(PFL)
        k("s_cmp_ge_u32 s2, 256")
        k(f"s_cbranch_scc1 {END}")
        k("s_load_dwordx2 s[6:7], s[0:1], 72")
        k("v_lshrrev_b32 v2, 6, v0")
        k("v_and_b32 v1, 63, v0")
        k("v_readfirstlane_b32 s20, v2")
        k("v_lshlrev_b32 v3, 4, v1")
        k("s_bfe_u32 s21, s2, 0x20003")
        k("s_lshr_b32 s22, s20, 1")
        k("s_lshl1_add_u32 s21, s21, s22")
        k(f"s_mul_i32 s21, s21, {7*57344}")
        k("s_and_b32 s22, s20, 1")
        k(f"s_mul_i32 s22, s22, {nk*1024}")
        k("s_add_u32 s21, s21, s22")
        k(f"s_add_u32 s21, s21, {K2_SP*2048}")
        k("s_movk_i32 s22, 7")
        k("s_waitcnt lgkmcnt(0)")
        k.srd_off(8, 6, WSB + WS, 56 * 57344)
        LP = k.lab("lp")
        k.label(LP)
        k("s_mov_b32 s23, s21")
        for i in range(nk):
            k(f"buffer_load_dwordx4 {v(8+4*i,4)}, v3, s[8:11], s23 offen offset:{(i%4)*1024}")
            if i % 4 == 3:
                k("s_add_u32 s23, s23, 4096")
        k(f"s_waitcnt vmcnt({nk})")
        k("s_add_u32 s21, s21, 57344")
        k("s_sub_u32 s22, s22, 1")
        k("s_cmp_lg_u32 s22, 0")
        k(f"s_cbranch_scc1 {LP}")
        k("s_endpgm")
    if K2_PF:
        k.label(PFL)
        k("s_cmp_ge_u32 s2, 448")
        k(f"s_cbranch_scc1 {END}")
        k("s_load_dwordx2 s[6:7], s[0:1], 72")
        k("v_lshrrev_b32 v2, 6, v0")
        k("v_and_b32 v1, 63, v0")
        k("v_readfirstlane_b32 s20, v2")
        k("v_lshlrev_b32 v3, 4, v1")
        k("s_lshr_b32 s21, s2, 3")
        k("s_sub_u32 s21, s21, 28")
        k("s_lshr_b32 s22, s20, 1")
        k("s_lshl1_add_u32 s21, s21, s22")
        k("s_mul_i32 s21, s21, 57344")
        k("s_and_b32 s22, s20, 1")
        k(f"s_mul_i32 s22, s22, {K2_PF*1024}")
        k("s_add_u32 s21, s21, s22")
        k("s_waitcnt lgkmcnt(0)")
        k.srd_off(8, 6, WSB + WS, 56 * 57344)
        for i in range(K2_PF):
            k(f"buffer_load_dwordx4 {v(8+4*i,4)}, v3, s[8:11], s21 offen offset:{(i%4)*1024}")
            if i % 4 == 3:
                k("s_add_u32 s21, s21, 4096")
        k("s_endpgm")
    return k


HEADER = """; Fused preLN + GFNet spectral filter + preLN bilinear GLU, generated by gen/gen.py
"""


def build(kernels):
    out = [HEADER.rstrip()]
    for kern, grid, block, lds in kernels:
        out.append(f"; @launch kernel={kern.name} grid=({grid},1,1) block=({block},1,1) lds={lds}")
    out.append('.amdgcn_target "amdgcn-amd-amdhsa--gfx950"')
    out.append(".text")
    descs = []
    seen = set()
    for kern, *_ in kernels:
        if kern.name in seen:
            continue
        seen.add(kern.name)
        body, desc = kern.emit()
        print(kern.name, kern.stats, file=sys.stderr)
        out.append(body)
        descs.append(desc)
    out.append('.section .rodata,"a"')
    for d in descs:
        out.append(".p2align 6")
        out.append(d)
    return "\n".join(out) + "\n"


def kernel_list():
    from gen3 import gen_k3, K3_LDS, K3_WGS
    return [(gen_k1(), K1_WGS, 256, K1_LDS), (gen_k2(), 448 if K2_PF else 256 if K2_SP else 224, 256, K2_LDS), (gen_k3(), K3_WGS, 256, K3_LDS)]


if __name__ == "__main__":
    if "--prof" in sys.argv:
        Kern.prof = True
        sys.argv.remove("--prof")
    path = sys.argv[1] if len(sys.argv) > 1 else "sequential_preLN__spectral_gfnet__glu_gated_bilinear__prompt.s"
    open(path, "w").write(build(kernel_list()))
```

```python
import os
import sys
from asmlib import Kern, v, a, s
from gen import *

XT = 114688
R2 = 122880
FF = 65536
K3_LDS = 123904
SPIN_MAX = 1 << 18
E = lambda n, d: int(os.environ.get(n, d))
NW = [int(x) for x in os.environ.get("NW", "8,8,0,8,0").split(",")]
KS = E("KS", 8)
EPI_A = E("EPI_A", 2)
DRAIN_A = E("DRAIN_A", 24)
POLL_A = E("POLL_A", 37)
CHECK_A = E("CHECK_A", 99)
DRAIN_B = E("DRAIN_B", 13)
POLL_B = E("POLL_B", 21)
CHECK_B = E("CHECK_B", 26)
NDMA0 = E("NDMA0", 7)
ROTB = E("ROTB", 1)
ROTW = E("ROTW", 0)
ROTD = E("ROTD", 0)
SPARE = E("SPARE", 1)
TOUCH = E("TOUCH", 0)
SP_WS = eval(os.environ.get("SP_WS", "(2,3,4,5,6)"))
WBL = eval(os.environ.get("WBL", "(0, 256, 3072)"))
LATE = E("LATE", 46)
SCO = os.environ.get("SCO", " sc1")
EPI_B0 = E("EPI_B0", 6)
RING1 = E("RING1", 8)
RED0 = E("RED0", 31)
MA = E("MA", 0)
TLBW = E("TLBW", 0)
HPT = E("HPT", 0)
RING = E("RING", 12)
LD = os.environ.get("LD", "")
P4ST = eval(os.environ.get("P4ST", "()"))
P5ST = eval(os.environ.get("P5ST", "()"))
K3_WGS = 256 if SPARE else 224
SSP = 0x1502000


class VM:
    def __init__(self, k):
        self.k, self.n = k, 0

    def op(self, text):
        self.k(text)
        self.n += 1
        return self.n - 1

    def wait(self, idx, extra=""):
        self.k(f"s_waitcnt vmcnt({self.n - idx - 1}){extra}")


def gen_k3():
    k = Kern("k3_kernel", 0, 0)
    vm = VM(k)
    END = k.lab("end")
    sW, sRB, sCT, sHALF, sRT, sFB = 20, 21, 22, 23, 24, 25
    sFL, sFI, sXC = 33, 39, 40
    vL4, vOne, vLP = 30, 2, 0

    mode = [""]

    def store2(text):
        return vm.op(text + mode[0])

    def arrive(off):
        vm.op(f"buffer_store_dword {v(vOne)}, off, s[8:11], s{sFI} offset:{off}{mode[0]}")

    def poll_issue(off):
        return vm.op(f"buffer_load_dword v31, {v(vLP)}, s[8:11], s{sFL} offen offset:{off} sc1")

    outline = []

    def poll(off, mark):
        loop, done = k.lab("poll"), k.lab("done")
        vm.wait(mark)
        k("v_cmp_eq_u32 vcc, 0, v31")
        k(f"s_mov_b32 s50, {SPIN_MAX}")
        k(f"s_cbranch_vccnz {loop}")
        k.label(done)
        outline.append(f"""{loop}:
        buffer_load_dword v31, {v(vLP)}, s[8:11], s{sFL} offen offset:{off} sc1
        s_sub_u32 s50, s50, 1
        s_waitcnt vmcnt(0)
        s_cmp_eq_u32 s50, 0
        s_cbranch_scc1 {done}
        v_cmp_eq_u32 vcc, 0, v31
        s_nop 0
        s_cbranch_vccnz {loop}
        s_branch {done}""")

    PFL = k.lab("pf")
    k("s_cmp_ge_u32 s2, 224")
    k(f"s_cbranch_scc1 {PFL if SPARE else END}")
    k.stamp()
    k("s_load_dwordx2 s[6:7], s[0:1], 72")
    k("s_load_dwordx2 s[4:5], s[0:1], 0")
    k("s_load_dwordx2 s[44:45], s[0:1], 56")
    k("v_lshrrev_b32 v2, 6, v0")
    k("v_and_b32 v1, 63, v0")
    k(f"v_readfirstlane_b32 s{sW}, v2")
    k("s_lshr_b32 s26, s2, 3")
    div7(k, 27, 26)
    if os.environ.get("MAP", "A") == "A":
        k("s_and_b32 s28, s2, 7")
        k(f"s_lshl2_add_u32 s{sRT}, s28, s27")
        k(f"s_and_b32 s{sHALF}, s27, 1")
        k(f"s_lshr_b32 s{sRB}, s{sRT}, 1")
    else:
        k("s_bfe_u32 s28, s2, 0x20001")
        k(f"s_lshl2_add_u32 s{sRB}, s28, s27")
        k(f"s_and_b32 s{sHALF}, s2, 1")
        k(f"s_lshl1_add_u32 s{sRT}, s{sRB}, s{sHALF}")
    k("s_mul_i32 s28, s27, 7")
    k(f"s_sub_u32 s{sCT}, s26, s28")
    vL16, vG, vC = 3, 4, 5
    k(f"v_lshrrev_b32 {v(vG)}, 4, v1")
    k(f"v_and_b32 v6, 1, {v(vG)}")
    k(f"s_and_b32 s29, s{sW}, 1")
    k("s_lshl_b32 s29, s29, 2")
    k("v_lshl_or_b32 v6, v6, 1, s29")
    k("v_and_b32 v7, 7, v1")
    k("v_xor_b32 v6, v6, v7")
    k("v_lshrrev_b32 v8, 3, v1")
    k("v_lshlrev_b32 v9, 12, v8")
    k("v_lshl_add_u32 v6, v6, 4, v9")
    k(f"s_lshl_b32 s28, s{sW}, 15")
    k(f"s_lshl_b32 s27, s{sRT}, 7")
    k("s_add_u32 s26, s28, s27")
    k(f"s_add_u32 s26, s26, {BT}")
    k("s_sub_u32 s48, s27, s28")
    k(f"s_add_u32 s48, s48, {BT + 438*4096}")
    k(f"s_lshl_b32 s27, s{sW}, 10")
    k(f"s_bitcmp1_b32 s{sCT}, 0") if ROTB else k("s_cmp_lg_u32 0, 0")
    k("s_cselect_b32 s49, s26, s48")
    k("s_cselect_b32 s26, s48, s26")
    k("s_cselect_b32 s48, 0xfffe0000, 0x20000".replace("0xfffe0000, 0x20000", "s48, s48")) if False else None
    k("s_cselect_b32 s51, 0x6000, 0")
    k("s_cselect_b32 s52, 28672, 0")
    k("s_mov_b32 s48, 0x20000")
    k("s_cselect_b32 s48, 0xfffe0000, s48")
    k("v_xor_b32 v6, s51, v6")
    k("s_add_u32 m0, s27, s52")
    k("s_waitcnt lgkmcnt(0)")
    k.srd_off(8, 6, WSB, WS_BYTES)
    saved, k.lines = k.lines, []
    k(f"v_and_b32 {v(vC)}, 15, v1")
    vGm = 32
    vB, vST, vE, vT = 14, 15, 15, 20
    k(f"s_lshl_b32 s46, s{sCT}, 6")
    k(f"s_lshl_b32 s47, s{sW}, 4")
    k("s_add_u32 s46, s46, s47")
    k(f"v_add_u32 v27, s46, {v(vC)}")
    k("v_cvt_f32_u32 v27, v27")
    for p in range(1, 4):
        k(f"v_mul_f32 {v(vE+p)}, {f2u(p/448.0)}, v27")
    k(f"v_mul_f32 {v(vST)}, {f2u(16.0/448)}, v27")
    k(f"v_fract_f32 {v(vST)}, {v(vST)}")
    k(f"v_lshl_add_u32 v19, {v(vG)}, 2, 1")
    k("v_cvt_f32_u32 v19, v19")
    k(f"v_mul_f32 {v(vB)}, v19, {v(vE+1)}")
    k(f"v_fract_f32 {v(vB)}, {v(vB)}")
    for t in range(7):
        k(f"v_cos_f32 {v(vT+4)}, {v(vB)}")
        k(f"v_sin_f32 {v(vT)}, {v(vB)}")
        for p in range(1, 4):
            k(f"v_add_f32 {v(vT+p)}, {v(vB)}, {v(vE+p)}")
        if t < 6:
            k(f"v_add_f32 {v(vB)}, {v(vB)}, {v(vST)}")
            k(f"v_fract_f32 {v(vB)}, {v(vB)}")
        for p in range(1, 4):
            k(f"v_cos_f32 {v(vT+4+p)}, {v(vT+p)}")
            k(f"v_sin_f32 {v(vT+p)}, {v(vT+p)}")
        for p in range(4):
            k(f"v_cvt_pk_bf16_f32 {v(vGm+4*t+p)}, {v(vT+4+p)}, -{v(vT+p)}")
    gen_lines, k.lines = k.lines, []
    def nyq(first):
        k(f"s_cmp_eq_u32 s{sW}, 3")
        k(f"s_cselect_b32 s28, {224*4096 >> 6}, 0")
        k("s_cmp_lg_u32 s51, 0" if first else "s_cmp_eq_u32 s51, 0")
        k("s_cselect_b32 s28, s28, 0")
        k("v_add_u32 v9, 16, v1")
        k("v_and_b32 v9, 64, v9")
        k("v_mad_u32_u24 v9, v9, s28, v6")

    for hf in range(2):
        for t in range(7):
            if t == 6:
                nyq(hf == 0)
            vm.op(f"buffer_load_dwordx4 v{9 if t == 6 else 6}, s[8:11], s{26 if hf == 0 else 49} offen lds")
            if t < 6:
                k("s_add_u32 m0, m0, 4096")
                k("s_add_u32 s26, s26, s48" if hf == 0 else "s_sub_u32 s49, s49, s48")
        if hf == 0:
            k("s_sub_u32 s52, 28672, s52")
            k("s_add_u32 m0, s27, s52")
            k("v_xor_b32 v6, 0x6000, v6")
    vXO = 10
    k.srd(12, 4, XB)
    k("v_lshrrev_b32 v9, 5, v1")
    k("v_and_b32 v8, 3, v8")
    k("v_lshl_add_u32 v8, v9, 4, v8")
    k("v_mul_u32_u24 v8, 0x380, v8")
    k(f"v_xor_b32 v7, v7, {v(vG)}")
    k("v_xor_b32 v7, s29, v7")
    k(f"v_lshl_add_u32 {v(vXO)}, v7, 4, v8")
    sSB, sXO = 29, 30
    k(f"s_lshr_b32 s26, s{sRT}, 3")
    k("s_lshl_b32 s26, s26, 9")
    k(f"s_lshl_b32 s28, s{sHALF}, 8")
    k("s_add_u32 s26, s26, s28")
    k(f"s_and_b32 s28, s{sRB}, 3")
    k(f"s_lshl2_add_u32 s{sSB}, s28, s26")
    k(f"s_lshl_b32 s26, s{sW}, 5")
    k(f"s_add_u32 s26, s26, s{sSB}")
    k("s_mul_i32 s26, s26, 896")
    k(f"s_lshl_b32 s28, s{sCT}, 7")
    k(f"s_add_u32 s{sXO}, s26, s28")
    k(f"s_add_u32 s{sXO+1}, s{sXO}, {128*896}")
    k(f"s_add_u32 m0, s27, {XT}")
    vm.op(f"buffer_load_dwordx4 {v(vXO)}, s[12:15], s{sXO} offen lds")
    k(f"s_add_u32 m0, s27, {XT+4096}")
    vm.op(f"buffer_load_dwordx4 {v(vXO)}, s[12:15], s{sXO+1} offen lds")
    vM = 12
    k("v_bfe_u32 v7, v1, 3, 2")
    k("v_bfe_u32 v8, v1, 2, 1")
    k("v_lshlrev_b32 v8, 4, v8")
    k("v_lshl_add_u32 v7, v7, 5, v8")
    k("v_and_b32 v8, 3, v1")
    k("v_add_lshl_u32 v7, v7, v8, 2")
    k(f"s_lshl_b32 s26, s{sSB}, 2")
    k(f"s_add_u32 s26, s26, {M1}")
    vm.op(f"buffer_load_dword {v(vM)}, v7, s[8:11], s26 offen")
    p3_loads = vm.op(f"buffer_load_dword {v(vM+1)}, v7, s[8:11], s26 offen offset:512")
    k(f"s_lshl_b32 s{sFL}, s{sRB}, 10")
    k(f"s_add_u32 s{sFL}, s{sFL}, {FL}")
    k(f"s_getreg_b32 s{sXC}, hwreg(HW_REG_XCC_ID, 0, 4)")
    NOC = k.lab("noc")
    k(f"s_cmp_lg_u32 s{sW}, 0")
    k(f"s_cbranch_scc1 {NOC}")
    k(f"s_lshl_b32 s26, s{sXC}, 2")
    k("s_lshl_b32 s26, 1, s26")
    k(f"s_lshr_b32 s28, s{sXC}, 3")
    k(f"s_lshl2_add_u32 s28, s28, s{sFL}")
    k("s_mov_b64 exec, 1")
    k("v_mov_b32 v31, s26")
    k("buffer_atomic_add v31, off, s[8:11], s28 offset:768 sc1")
    k("s_mov_b64 exec, -1")
    k.label(NOC)
    k.stamp()
    k(f"v_lshlrev_b32 {v(vL16)}, 4, v1")
    k(f"v_lshlrev_b32 {v(vL4)}, 2, v1")
    k(f"v_mov_b32 {v(vOne)}, 1")
    k(f"s_mul_i32 s28, s{sHALF}, 7")
    k(f"s_add_u32 s28, s28, s{sCT}")
    k(f"s_lshl2_add_u32 s{sFB}, s28, s{sW}")
    k(f"s_lshl2_add_u32 s{sFI}, s{sFB}, s{sFL}")
    k(f"v_min_u32 {v(vLP)}, 220, {v(vL4)}")
    sWS = 32
    k(f"s_mul_i32 s{sWS}, s{sW if os.environ.get('FAKEW') else sFB}, 57344")
    k(f"s_add_u32 s{sWS}, s{sWS}, {WS}")
    sRH = 56
    k(f"s_and_b32 s{sRH}, s{sRB}, {ROTW}")
    k(f"s_mul_i32 s{sRH}, s{sRH}, 14336")
    k(f"s_lshl1_add_u32 s{sWS}, s{sRH}, s{sWS}")
    wn = [0]
    wid = []

    def wload(cnt=1):
        for _ in range(cnt):
            n = wn[0]
            wn[0] += 1
            wid.append(vm.op(f"buffer_load_dwordx4 {a(4*n,4)}, {v(vL16)}, s[8:11], s{sWS} offen offset:{(n%4)*1024}"))
            if n % 4 == 3:
                k(f"s_add_u32 s{sWS}, s{sWS}, 4096")
            if n == 27:
                k(f"s_lshl_b32 s57, s{sRH}, 2")
                k(f"s_sub_u32 s{sWS}, s{sWS}, s57")

    k.srd(16, 44, XB)
    if TLBW:
        k(f"v_lshlrev_b32 v60, {TLBW}, v1")
        k(f"s_mov_b32 s57, {HC if TLBW == 18 else HP}")
        vm.op("buffer_load_dword v61, v60, s[8:11], s57 offen")
        k("v_lshlrev_b32 v60, 15, v1")
        vm.op("buffer_load_dword v64, v60, s[16:19], 0 offen")
    if HPT:
        k("v_lshrrev_b32 v60, 4, v1")
        k(f"v_mul_u32_u24 v60, {112*1024}, v60")
        k("v_and_b32 v65, 15, v1")
        k("v_lshl_add_u32 v60, v65, 7, v60")
        k(f"s_mul_i32 s57, s{sRB}, {4*112}")
        k(f"s_lshl1_add_u32 s57, s{sFB}, s57")
        k("s_lshl_b32 s57, s57, 10")
        k(f"s_add_u32 s57, s57, {HP}")
        vm.op("buffer_load_dword v65, v60, s[8:11], s57 offen sc1")
    load_lines, k.lines = k.lines, saved
    per = -(-len(gen_lines) // 15)
    branchy = False
    for t_ in load_lines:
        k(t_)
        if t_.startswith("buffer_load") and gen_lines:
            for _ in range(min(per, len(gen_lines))):
                k(gen_lines.pop(0))
    for t_ in gen_lines:
        k(t_)
    vTB = 14
    k("v_bfe_u32 v7, v1, 2, 2")
    k(f"v_lshlrev_b32 v8, 10, {v(vG)}")
    k("v_lshl_add_u32 v8, v7, 7, v8")
    k("v_and_b32 v9, 3, v1")
    k("v_lshl_add_u32 v8, v9, 3, v8")
    k("v_lshrrev_b32 v7, 1, v7")
    k(f"v_and_b32 v9, 1, {v(vG)}")
    k("v_lshl_add_u32 v7, v9, 1, v7")
    k(f"v_lshl_add_u32 {v(vTB)}, v7, 5, v8")
    for nb in range(1, 4):
        k(f"v_xor_b32 {v(vTB+nb)}, {32*nb}, {v(vTB)}")
    vXA = 18
    k("v_lshrrev_b32 v7, 5, v1")
    k(f"s_lshl_b32 s26, s{sW}, 1")
    k("v_or_b32 v7, s26, v7")
    k("v_bfe_u32 v8, v1, 1, 3")
    k("v_xor_b32 v7, v7, v8")
    k("v_and_b32 v8, 31, v1")
    k("v_lshlrev_b32 v8, 7, v8")
    k("v_lshl_add_u32 v7, v7, 4, v8")
    k(f"v_add_u32 {v(vXA)}, {XT}, v7")
    k.stamp()
    if TOUCH:
        k(f"s_and_b32 s57, s{sRB}, 1")
        k("s_lshl_b32 s57, s57, 13")
        k(f"s_add_u32 s57, s57, s{sWS}")
        k("s_add_u32 s57, s57, 16384")
        k("v_lshlrev_b32 v62, 7, v1")
        wload(NW[0])
        vm.op("buffer_load_dword v63, v62, s[8:11], s57 offen")
    else:
        wload(NW[0])
    vm.wait(p3_loads)
    k("s_barrier")
    census = vm.op(f"buffer_load_dwordx2 v[28:29], off, s[8:11], s{sFL} offset:768 sc1")
    k.stamp()
    vR, vA = 88, 120
    seq = [(t, nb) for t in range(14) for nb in range(4)]

    def rd(n):
        t, nb = seq[n]
        for u in range(2):
            k(f"ds_read_b64_tr_b16 {v(vR+4*(n%8)+2*u,2)}, {v(vTB+nb)} offset:{t*4096+u*512}")

    DEPTH = 6
    for n in range(DEPTH):
        rd(n)
    done_in = 0
    for n in range(56):
        t, nb = seq[n]
        k(f"s_waitcnt lgkmcnt({2*min(DEPTH-1, 55-n)})")
        acc = vA + 16 * (t // 7) + 4 * nb
        c = "0" if t % 7 == 0 else v(acc, 4)
        k(f"v_mfma_f32_16x16x32_bf16 {v(acc,4)}, {v(vGm+4*(t%7),4)}, {v(vR+4*(n%8),4)}, {c}")
        if n == 32:
            k("s_mov_b32 exec_lo, 0")
            k("s_mov_b32 exec_hi, 0xffff0000")
            k(f"v_mov_b32 {v(vGm+27)}, 0x3f80")
            k("s_mov_b64 exec, -1")
        if n + DEPTH < 56:
            rd(n + DEPTH)
        if (n + 1) * NW[1] // 56 > done_in:
            wload()
            done_in += 1
    vX = 20
    k(f"ds_read_b128 {v(vX,4)}, {v(vXA)}")
    k(f"ds_read_b128 {v(vX+4,4)}, {v(vXA)} offset:4096")
    k(f"s_mul_i32 s26, s{sRT}, 56")
    k(f"s_lshl2_add_u32 s27, s{sCT}, s{sW}")
    k("s_add_u32 s26, s26, s27")
    k("s_lshl_b32 s26, s26, 10")
    k(f"s_add_u32 s26, s26, {HC}")
    k(f"s_add_u32 s27, s26, {28*1024}")
    CL, CD, FAST = k.lab("cl"), k.lab("cd"), k.lab("fast")
    k(f"s_mov_b32 s50, {SPIN_MAX}")
    vm.wait(census)
    k.label(CL)
    k("v_readfirstlane_b32 s52, v28")
    k("v_readfirstlane_b32 s53, v29")
    k(f"s_cmp_ge_u32 s{sXC}, 8")
    k("s_cselect_b32 s54, s53, s52")
    k(f"s_lshl_b32 s55, s{sXC}, 2")
    k("s_lshr_b32 s54, s54, s55")
    k("s_and_b32 s54, s54, 15")
    k(f"s_cmp_eq_u32 s54, {14 if not os.environ.get('SLOW') else 15}")
    k(f"s_cbranch_scc1 {FAST}")
    for r in (52, 53):
        k(f"s_lshr_b32 s54, s{r}, 4")
        k("s_and_b32 s54, s54, 0x0f0f0f0f")
        k(f"s_and_b32 s{r}, s{r}, 0x0f0f0f0f")
        k(f"s_add_u32 s{r}, s{r}, s54")
    k("s_add_u32 s52, s52, s53")
    k("s_mul_i32 s52, s52, 0x01010101")
    k("s_lshr_b32 s52, s52, 24")
    k("s_cmp_ge_u32 s52, 14")
    k(f"s_cbranch_scc1 {CD}")
    k("s_sub_u32 s50, s50, 1")
    k("s_cmp_eq_u32 s50, 0")
    k(f"s_cbranch_scc1 {CD}")
    k(f"buffer_load_dwordx2 v[28:29], off, s[8:11], s{sFL} offset:768 sc1")
    k("s_waitcnt vmcnt(0)")
    k(f"s_branch {CL}")
    k.label(CD)
    nst = getattr(k, "_nst", 0)
    state = (vm.n, wn[0], list(wid), getattr(k, "_seq", 0))

    def rest():
        for r in range(16):
            k(f"v_{'sub' if r & 1 else 'add'}_f32 {v(vA+r)}, {v(vA+r)}, {v(vA+16+r)}")
        for p in range(2):
            for r in range(4):
                k(f"v_permlane16_swap_b32 {v(vA+8*p+r)}, {v(vA+8*p+4+r)}")
        k("s_waitcnt lgkmcnt(0)")
        vH, vHc, vU = 32, 40, 48
        for p in range(2):
            for q in range(4):
                y0, y1 = vA + 8 * p + 2 * q, vA + 8 * p + 2 * q + 1
                k(f"v_lshlrev_b32 {v(vU)}, 16, {v(vX+4*p+q)}")
                k(f"v_and_b32 {v(vU+1)}, 0xffff0000, {v(vX+4*p+q)}")
                k(f"v_add_f32 {v(y0)}, {v(y0)}, {v(vU)}")
                k(f"v_add_f32 {v(y1)}, {v(y1)}, {v(vU+1)}")
                k(f"v_sub_f32 {v(y0+16)}, {v(y0)}, {v(vM+p)}")
                k(f"v_sub_f32 {v(y1+16)}, {v(y1)}, {v(vM+p)}")
                k(f"v_cvt_pk_bf16_f32 {v(vHc+4*p+q)}, {v(y0+16)}, {v(y1+16)}")
            hc_st = store2(f"buffer_store_dwordx4 {v(vHc+4*p,4)}, {v(vL16)}, s[8:11], s{26+p} offen")
        wload(NW[2])
        for p in range(2):
            for q in range(4):
                y0, y1 = vA + 8 * p + 2 * q, vA + 8 * p + 2 * q + 1
                k(f"v_cvt_pk_bf16_f32 {v(vH+4*p+q)}, {v(y0)}, {v(y1)}")
            k(f"ds_write_b128 {v(vXA)}, {v(vH+4*p,4)} offset:{4096*p}")
        for p in range(2):
            k(f"v_mul_f32 {v(vM+p)}, {v(vA+16+8*p)}, {v(vA+16+8*p)}")
        for e in range(1, 8):
            for p in range(2):
                k(f"v_fmac_f32 {v(vM+p)}, {v(vA+16+8*p+e)}, {v(vA+16+8*p+e)}")
        k(f"s_lshl_b32 s26, s{sW}, 8")
        k(f"s_add_u32 s26, s26, {R2}")
        k(f"v_add_u32 v7, s26, {v(vL4)}")
        k(f"v_permlane32_swap_b32 {v(vM)}, {v(vM+1)}")
        k(f"v_add_f32 {v(vM)}, {v(vM)}, {v(vM+1)}")
        k(f"ds_write_b32 v7, {v(vM)}")
        sDG, sDL = 26, 42
        k(f"s_mul_i32 s{sDG}, s{sRB}, 114688")
        k(f"s_add_u32 s{sDG}, s{sDG}, {HC}")
        k(f"s_mul_i32 s{sDL}, s{sW}, 28672")
        k(f"s_and_b32 s28, s{sW}, 1")
        k("s_mul_i32 s28, s28, 57344")
        k(f"s_lshr_b32 s36, s{sW}, 1")
        k(f"s_lshl_b32 s{sDL+1}, s36, 10")
        k(f"s_add_u32 s{sDL+1}, s{sDL+1}, s28")
        k(f"s_add_u32 s27, s{sDG}, s{sDL+1}")
        k(f"s_add_u32 s{sDG}, s{sDG}, s{sDL}")
        k(f"s_sub_u32 s58, s{sDG}, s{sRH}")
        k(f"s_sub_u32 s59, s27, s{sRH}")
        k(f"s_add_u32 s{sDG}, s{sDG}, s{sRH}")
        k(f"s_add_u32 s27, s27, s{sRH}")
        vB1, vBS, vSS, vWL = 6, 7, 8, 11
        k(f"v_add_u32 {v(vB1)}, 57344, {v(vL16)}")
        sSS = 41
        k(f"s_mul_i32 s{sSS}, s{sRT}, 1792")
        k(f"s_add_u32 s{sSS}, s{sSS}, {SSP}")
        k(f"v_add_u32 v7, {R2}, {v(vL4)}")
        sWD = 34
        k(f"s_mul_i32 s28, s{sCT}, {0 if os.environ.get('FAKED') else 112}")
        k(f"s_mul_i32 s36, s{sW}, 28")
        k("s_add_u32 s28, s28, s36")
        k("s_lshl_b32 s28, s28, 11")
        k(f"s_add_u32 s54, s28, {WD}")
        sHS = 36
        k(f"s_mul_i32 s{sHS}, s{sRB}, {4*112}")
        k(f"s_lshl1_add_u32 s{sHS}, s{sFB}, s{sHS}")
        k(f"s_lshl_b32 s{sHS}, s{sHS}, 10")
        k(f"s_add_u32 s{sHS}, s{sHS}, {HP}")
        sHP = 37
        k(f"s_mul_i32 s{sHP}, s{sRT}, 224")
        k(f"s_mul_i32 s28, s{sW}, 28")
        k(f"s_add_u32 s{sHP}, s{sHP}, s28")
        k(f"s_lshl_b32 s{sHP}, s{sHP}, 10")
        k(f"s_add_u32 s{sHP}, s{sHP}, {HP}")
        k.stamp()
        vm.wait(hc_st, " lgkmcnt(0)")
        k.stamp()
        arrive(0)
        mark0 = poll_issue(0)
        wload(NW[3])
        poll(0, mark0)
        wload(NW[4])
        k.stamp()
        uses = [(kp, b) for kp in range(KS) for b in range(4)]
        uses += [(kp, b) for kp in range(KS, 28) for b in (0, 2)]
        uB = len(uses)
        uses += [(kp, b) for kp in range(KS, 28) for b in (1, 3)]
        first_use = {kp: min(u for u, x in enumerate(uses) if x[0] == kp) for kp in range(28)}
        last_use = {kp: max(u for u, x in enumerate(uses) if x[0] == kp) for kp in range(28)}
        npair = (28 - KS) // 2
        D = []

        def dma():
            i = len(D)
            if i < KS:
                sel, off = 0, i * 1024
            else:
                sel, off = 1, ((i - KS) // npair) * 28672 + (KS + 2 * ((i - KS) % npair)) * 1024
            k(f"s_add_u32 m0, s{sDL+sel}, {off}")
            k(f"s_add_u32 s28, s{(sDG if off % 28672 < 14336 else 58)+sel}, {off}")
            D.append(vm.op(f"buffer_load_dwordx4 {v(vL16)}, s[8:11], s28 offen{LD} lds"))

        wd_regs = [(0, lambda m, i=i: a(224 + 8 * i + 4 * m, 4)) for i in range(4)]
        wd_regs += [(0, lambda m, i=i: v(64 + 8 * i + 4 * m, 4)) for i in range(8)]
        wd_regs += [(last_use[i] + 1, lambda m, i=i: a(8 * i + 4 * m, 4)) for i in range(16)]

        def wdreg(kp, m):
            return wd_regs[kp][1](m)

        wdn = [0]
        wd_id = {}

        def quarter(dst, g, size, base):
            k(f"s_add_u32 s{dst}, s{sRT}, {g}" if ROTD else f"s_mov_b32 s{dst}, {g}")
            k(f"s_and_b32 s{dst}, s{dst}, 3")
            k(f"s_mul_i32 s{dst}, s{dst}, {size}")
            k(f"s_add_u32 s{dst}, s{dst}, s{base}")

        def wdload():
            n = wdn[0]
            wdn[0] += 1
            kp, m = n // 2, n % 2
            if n % 14 == 0:
                quarter(sWD, kp // 7, 14336, 54)
            wd_id[kp] = vm.op(f"buffer_load_dwordx4 {wdreg(kp,m)}, {v(vL16)}, s[8:11], s{sWD} offen offset:{(n%14%4)*1024}")
            if n % 14 % 4 == 3:
                k(f"s_add_u32 s{sWD}, s{sWD}, 4096")

        aQ = 128
        hl = []

        def hload():
            n = len(hl)
            p, kp = n // 28, n % 28
            if n == 28:
                k(f"s_add_u32 s{sHP}, s{sHP}, {112*1024}")
            if kp % 7 == 0:
                quarter(46, kp // 7, 7168, sHP)
            if kp % 7 == 4:
                k("s_add_u32 s46, s46, 4096")
            hl.append(vm.op(f"buffer_load_dwordx4 {a(aQ+4*(n%24),4)}, {v(vL16)}, s[8:11], s46 offen offset:{(kp%7%4)*1024}{LD}"))

        vF, vAcc, LOOK = 32, 128, 4
        accreg = {0: vAcc, 2: vAcc + 32, 1: vAcc + 64, 3: vAcc + 96}

        def rd4(u):
            kp, b = uses[u]
            k(f"ds_read_b128 {v(vF+4*(u%6),4)}, {v(vL16 if b < 2 else vB1)} offset:{(b&1)*28672+kp*1024}")

        last_st = [None]

        def hp_store(b, u):
            if u == 0:
                k(f"s_add_u32 s38, s{sHS}, {b*112*1024}")
            last_st[0] = store2(f"buffer_store_dwordx4 {v(accreg[b]+4*u,4)}, {v(vL16)}, s[8:11], s38 offen offset:{u*1024}" + (" sc1" if MA and b % 2 == 0 and not mode[0] else ""))

        def epilogue(ps):
            items = [(b, r) for b in (ps, ps + 2) for r in range(8)]
            out = []
            for i in range(len(items) + 1):
                grp = []
                if i < len(items):
                    b, r = items[i]
                    g_, u_ = accreg[b], accreg[b] + 16
                    grp += [f"v_mul_f32 {v(u_+2*r)}, {v(g_+2*r)}, {v(u_+2*r)}",
                            f"v_mul_f32 {v(u_+2*r+1)}, {v(g_+2*r+1)}, {v(u_+2*r+1)}"]
                if i > 0:
                    b, r = items[i - 1]
                    g_, u_ = accreg[b], accreg[b] + 16
                    grp.append(f"v_cvt_pk_bf16_f32 {v(g_+r)}, {v(u_+2*r)}, {v(u_+2*r+1)}")
                out.append(grp)
                if i > 0 and items[i - 1][1] % 4 == 3:
                    out.append(lambda b=items[i - 1][0], u=items[i - 1][1] // 4: hp_store(b, u))
            return out

        def put(q, cnt=1):
            for _ in range(cnt):
                if q:
                    e = q.pop(0)
                    if callable(e):
                        e()
                    else:
                        for t_ in e:
                            k(t_)

        chunks = eval(os.environ.get("CHUNKS", "{0: 2, 3: 6, 7: 15, 16: 27}"))
        for _ in range(NDMA0):
            dma()
        k("ds_read2st64_b32 v[12:13], v7 offset1:1")
        k("ds_read2st64_b32 v[14:15], v7 offset0:2 offset1:3")
        k(f"s_lshl_b32 s47, s{sCT}, 8")
        k(f"s_add_u32 s47, s47, s{sSS}")
        k("s_waitcnt lgkmcnt(0)")
        k("v_add_f32 v12, v12, v13")
        k("v_add_f32 v14, v14, v15")
        k("v_add_f32 v12, v12, v14")
        store2(f"buffer_store_dword v12, {v(vL4)}, s[8:11], s47 offen")
        vm.wait(D[chunks[0]])
        k("s_barrier")
        k.stamp()
        for u in range(LOOK):
            rd4(u)
        todo = [(i - 30, "d") for i in range(NDMA0, 28)]
        todo += [(first_use[i // 2] - 14 + 0.01 * i, "w") for i in range(wn[0], 56)]
        todo = [o for _, o in sorted(todo)]
        epi = epilogue(0)
        checked = False
        for u in range(112):
            kp, b = uses[u]
            if (u + LOOK) % 4 == 0 and (u + LOOK) // 4 in chunks:
                vm.wait(D[chunks[(u + LOOK) // 4]])
                k("s_barrier")
            if u == first_use[kp] and 2 * kp + 1 >= sum(NW):
                vm.wait(wid[2 * kp + 1])
            if u == uB + DRAIN_A:
                assert not epi
                vm.wait(last_st[0])
                arrive(256)
            if u == uB + POLL_A:
                markA = poll_issue(256)
            if u == uB + CHECK_A:
                poll(256, markA)
                checked = True
            if u % 2 == 0:
                k(f"s_waitcnt lgkmcnt({min(LOOK - 2, 110 - u)})")
            for m in range(2):
                acc = accreg[b] + 16 * m
                c = "0" if kp == 0 else v(acc, 16)
                k(f"v_mfma_f32_32x32x16_bf16 {v(acc,16)}, {a(8*kp+4*m,4)}, {v(vF+4*(u%6),4)}, {c}")
                if m == 0:
                    if u + LOOK < 112:
                        rd4(u + LOOK)
                    if u >= uB + 1:
                        put(epi)
                else:
                    if u >= uB + 1 and EPI_A == 2:
                        put(epi)
                    if todo:
                        dma() if todo.pop(0) == "d" else wload()
                    elif checked and len(hl) < RING and last_use[16 + len(hl) // 2] < u:
                        hload()
                    elif wdn[0] < 56 and wd_regs[wdn[0] // 2][0] <= u:
                        wdload()
            if u in P4ST:
                k.stamp(1)
            if u == uB - 1 or u == 111:
                k.stamp()
        assert len(D) == 28 and wn[0] == 56
        print("after P4: down loads issued", wdn[0], "h loads", len(hl), file=sys.stderr)
        vRW, vRR, vR2, vHR, vSP = 12, 20, 22, 24, 56
        vAc5, vT5 = 128, 192
        fill = epilogue(1)
        if not checked:
            put(fill, EPI_B0)
            poll(256, markA)
        while fill:
            if len(hl) < 8:
                hload()
            put(fill, 2)
        fill = [["v_and_b32 v6, 31, v1", "v_lshrrev_b32 v7, 5, v1", "v_and_b32 v8, 7, v1", "v_lshl_or_b32 v7, v7, 3, v8"],
                [f"s_lshl_b32 s26, s{sW}, 13", "v_lshlrev_b32 v7, 4, v7", "v_lshl_add_u32 v7, v6, 8, v7", f"v_add_u32 {v(vRW)}, s26, v7"],
                [f"v_xor_b32 {v(vRW+i)}, {16*i}, {v(vRW)}" for i in range(1, 5)],
                [f"v_xor_b32 {v(vRW+i)}, {16*i}, {v(vRW)}" for i in range(5, 8)],
                ["v_lshrrev_b32 v6, 3, v1", f"s_and_b32 s26, s{sW}, 1", "s_lshl_b32 s26, s26, 2", f"v_xor_b32 v7, v8, {v(vG)}",
                 "v_xor_b32 v7, s26, v7"],
                ["v_lshlrev_b32 v7, 1, v7", "v_xor_b32 v7, v7, v6", f"s_lshl_b32 s26, s{sW}, 11", "v_lshlrev_b32 v7, 4, v7"],
                ["v_lshl_add_u32 v7, v6, 8, v7", f"v_add_u32 {v(vRR)}, s26, v7", f"v_xor_b32 {v(vRR+1)}, 16, {v(vRR)}"],
                [f"s_lshl_b32 s26, s{sW}, 10", f"s_add_u32 s26, s26, {XT}", f"v_add_u32 {v(vHR)}, s26, {v(vL16)}",
                 f"s_lshl_b32 s26, s{sW}, 5", "v_lshl_add_u32 v9, v6, 2, s26"]]
        ssl = []

        def ssload(i):
            for j in range(2 * i, min(2 * i + 2, 7)):
                ssl.append(vm.op(f"buffer_load_dword {v(vSP+j)}, {v(vL4)}, s[8:11], s{sSS} offen offset:{256*j}{LD}"))

        fill += [lambda i=i: ssload(i) for i in range(4)]
        r2calc = [[f"v_add_f32 {v(vSP)}, {v(vSP)}, {v(vSP+1)}", f"v_add_f32 {v(vSP+2)}, {v(vSP+2)}, {v(vSP+3)}",
                   f"v_add_f32 {v(vSP+4)}, {v(vSP+4)}, {v(vSP+5)}", f"v_add_f32 {v(vSP)}, {v(vSP)}, {v(vSP+6)}"],
                  [f"v_add_f32 {v(vSP+2)}, {v(vSP+2)}, {v(vSP+4)}", f"v_mov_b32 {v(vSP+1)}, {f2u(EPS)}",
                   f"v_add_f32 {v(vSP)}, {v(vSP)}, {v(vSP+2)}", f"v_fmac_f32 {v(vSP+1)}, {f2u(1.0/448)}, {v(vSP)}"],
                  [f"v_rcp_f32 {v(vSP)}, {v(vSP+1)}", "v_add_u32 v8, 128, v9"],
                  [f"ds_bpermute_b32 {v(vR2)}, v9, {v(vSP)}", f"ds_bpermute_b32 {v(vR2+1)}, v8, {v(vSP)}"]]

        def red_write(p):
            base = vAc5 + 32 * p
            q_ = []
            for db in range(2):
                b_ = base + 16 * db
                q_.append([f"v_swap_b32 {v(b_+4*i+j)}, {v(b_+4*j+i)}" for i, j in ((0, 1), (0, 2), (0, 3))])
                q_.append([f"ds_write_b128 {v(vRW+db)}, {v(b_,4)} offset:{p*32768}",
                           f"v_swap_b32 {v(b_+6)}, {v(b_+9)}", f"v_swap_b32 {v(b_+7)}, {v(b_+13)}"])
                q_.append([f"ds_write_b128 {v(vRW+2+db)}, {v(b_+4,4)} offset:{p*32768}", f"v_swap_b32 {v(b_+11)}, {v(b_+14)}"])
                q_.append([f"ds_write_b128 {v(vRW+4+db)}, {v(b_+8,4)} offset:{p*32768}"])
                q_.append([f"ds_write_b128 {v(vRW+6+db)}, {v(b_+12,4)} offset:{p*32768}"])
            q_.append([f"ds_read_b128 {v(vT5+32,4)}, {v(vHR)} offset:{p*4096}"])
            return q_

        def red_read(p):
            q_ = [["s_waitcnt lgkmcnt(0)", "s_barrier"] +
                  [f"ds_read_b128 {v(vT5+4*z,4)}, {v(vRR+z)} offset:{p*32768}" for z in range(2)]]
            for j in range(1, 4):
                q_.append([f"ds_read_b128 {v(vT5+8*j+4*z,4)}, {v(vRR+z)} offset:{p*32768+j*8192}" for z in range(2)])
            for h2 in range(2):
                q_.append([t_ for q in (2 * h2, 2 * h2 + 1) for t_ in
                           (f"v_lshlrev_b32 {v(vT5+36+2*q)}, 16, {v(vT5+32+q)}",
                            f"v_and_b32 {v(vT5+37+2*q)}, 0xffff0000, {v(vT5+32+q)}")])
            for j, (d_, s_) in enumerate(((0, 8), (16, 24), (0, 16))):
                for h2 in range(2):
                    q_.append(([f"s_waitcnt lgkmcnt({4 if j == 0 else 0})"] if h2 == 0 and j < 2 else []) +
                              [f"v_add_f32 {v(vT5+d_+r)}, {v(vT5+d_+r)}, {v(vT5+s_+r)}" for r in range(4 * h2, 4 * h2 + 4)])
            for h2 in range(2):
                q_.append([f"v_fmac_f32 {v(vT5+36+r)}, {v(vT5+r)}, {v(vR2+p)}" for r in range(4 * h2, 4 * h2 + 4)])
            q_.append([f"v_cvt_pk_bf16_f32 {v(vT5+8+q)}, {v(vT5+36+2*q)}, {v(vT5+37+2*q)}" for q in range(4)])
            q_.append(lambda: vm.op(f"buffer_store_dwordx4 {v(vT5+8,4)}, {v(vXO)}, s[16:19], s{sXO+p} offen{SCO}"))
            return q_

        if P5ST:
            k.stamp(1)
        for n in range(56):
            p, kp = n // 28, n % 28
            if n == DRAIN_B:
                vm.wait(last_st[0])
                arrive(512)
            if n == POLL_B:
                markB = poll_issue(512)
            if n == CHECK_B:
                k.stamp()
                poll(512, markB)
                k.stamp()
            if n == 22:
                vm.wait(ssl[6])
                fill += r2calc
            if n == LATE and 3072 in WBL:
                k(f"s_add_u32 s47, s{sFI}, 16384")
                vm.op(f"buffer_store_dword {v(vOne)}, off, s[8:11], s47{mode[0]}")
            if n == 28:
                assert not fill
                fill = red_write(0)
                while fill:
                    if len(hl) < 28 + RING1:
                        hload()
                    put(fill, 2)
            if n == RED0:
                fill = red_read(0)
            vm.wait(max(hl[n], wd_id[kp]))
            for dl in range(2):
                acc = vAc5 + 32 * p + 16 * dl
                c = "0" if kp == 0 else v(acc, 16)
                k(f"v_mfma_f32_32x32x16_bf16 {v(acc,16)}, {wdreg(kp,dl)}, {a(aQ+4*(n%24),4)}, {c}")
                if dl == 1 and wdn[0] < 56:
                    wdload()
                if dl == 0:
                    if len(hl) < (28 if n < CHECK_B else 56) and len(hl) < n + 24:
                        hload()
                    else:
                        put(fill)
                if dl == 1:
                    put(fill)
            if n in P5ST:
                k.stamp(1)
        k.stamp()
        put(fill, 99)
        put(red_write(1), 99)
        put(red_read(1), 99)
        if k.prof:
            k("s_waitcnt vmcnt(0)")
        k.stamp_flush(6, PROF + (2 << 20), sW, nst)
        k("s_endpgm")

    SLOWL = k.lab("slow")
    k(f"s_branch {SLOWL}")
    k.label(FAST)
    mode[0] = ""
    rest()
    k.label("k3_code_end")
    k.label(SLOWL)
    mode[0] = " sc1"
    vm.n, wn[0], wid[:], k._seq = state
    rest()
    k.label(END)
    k("s_endpgm")
    for o in outline:
        k(o)
    if SPARE:
        k.label(PFL)
        k(f"s_cmp_ge_u32 s2, {K3_WGS}")
        k(f"s_cbranch_scc1 {END}")
        k("s_load_dwordx2 s[6:7], s[0:1], 72")
        k("v_lshrrev_b32 v2, 6, v0")
        k("v_and_b32 v1, 63, v0")
        k("v_readfirstlane_b32 s20, v2")
        k("v_lshlrev_b32 v3, 7, v1")
        k("s_bfe_u32 s21, s2, 0x20003")
        k("s_lshl2_add_u32 s21, s21, s20")
        k("s_waitcnt lgkmcnt(0)")
        k.srd_off(8, 6, WSB, WS_BYTES)
        n = 0
        for base, nsl, units in ((WS, 56, SP_WS), (WD, 28, range(7))):
            for un in units:
                for i in range(-(-nsl // 16)):
                    k(f"s_add_u32 s22, s21, {16*i}")
                    k(f"s_min_u32 s22, s22, {nsl-1}")
                    k("s_mul_i32 s22, s22, 57344")
                    k(f"s_add_u32 s22, s22, {base + un*8192}")
                    k(f"buffer_load_dword v{8+n}, v3, s[8:11], s22 offen")
                    n += 1
        if WBL:
            k("s_cmp_lg_u32 s21, 0")
            k(f"s_cbranch_scc1 {END}")
            k("v_lshlrev_b32 v3, 2, v1")
            k("v_min_u32 v3, 220, v3")
            k("s_and_b32 s22, s2, 7")
            k("s_lshl_b32 s22, s22, 11")
            k(f"s_add_u32 s22, s22, {FL}")
            k(f"s_mov_b32 s23, {SPIN_MAX}")
            for off in WBL:
                lp, dn_ = k.lab("wl"), k.lab("wd")
                if off == 3072:
                    k("s_add_u32 s22, s22, 16384")
                    off = 0
                k.label(lp)
                k(f"buffer_load_dword v4, v3, s[8:11], s22 offen offset:{off} sc1")
                k(f"buffer_load_dword v5, v3, s[8:11], s22 offen offset:{off+1024} sc1")
                k("s_sub_u32 s23, s23, 1")
                k("s_waitcnt vmcnt(0)")
                k("s_cmp_eq_u32 s23, 0")
                k(f"s_cbranch_scc1 {END}")
                k("v_and_b32 v4, v4, v5")
                k("v_cmp_eq_u32 vcc, 0, v4")
                k("s_sleep 2")
                k(f"s_cbranch_vccnz {lp}")
                k("buffer_wbl2 sc1")
                k("s_waitcnt vmcnt(0)")
        k("s_endpgm")
    return k
```

```python
import struct
import sys
from asmlib import Kern, v, a, s

S, D, F = 2048, 448, 1792
AT = 0x000000
WT = 0x200000
BT = 0x400000
HC = 0x600000
WS = 0x800000
WD = 0xC00000
HP = 0xE00000
M1 = 0x1500000
FL = 0x1510000
WS_BYTES = 0x1520000
XB = S * D * 2
WRB = S * 225 * 2
WGB = D * F * 2
EPS = 1e-5
PROF = 0x1800000
import os
SC = os.environ.get("SC", " sc1")
NT = os.environ.get("NT", "")
WSB = int(os.environ.get("WSB", "0"), 0)


def f2u(x):
    return "0x%08x" % struct.unpack("<I", struct.pack("<f", x))[0]


N_WT, N_WS, N_WD = 256, 392, 196
K1_SIDE_WGS = (N_WT + N_WS + N_WD) // 4
K1_WGS = 256
K1_LDS = 57344 + 512


def div7(k, dst, src):
    k(f"s_mul_i32 s{dst}, s{src}, 37")
    k(f"s_lshr_b32 s{dst}, s{dst}, 8")


EARLY = int(os.environ.get("EARLY", "2"))
NOWD1 = int(os.environ.get("NOWD1", "0"))
ROTX = int(os.environ.get("ROTX", "1"))
XFIRST = int(os.environ.get("XFIRST", "1"))
CODEPF = int(os.environ.get("CODEPF", "1"))


def code_prefetch(k, target, piece_sreg, vlane16, vtmp, stmp):
    here = k.lab("pc")
    k(f"s_getpc_b64 s[{stmp}:{stmp+1}]")
    k.label(here)
    k(f"s_add_u32 s{stmp}, s{stmp}, {target}-{here}")
    k(f"s_addc_u32 s{stmp+1}, s{stmp+1}, 0")
    k(f"s_lshl_b32 s{stmp+2}, s{piece_sreg}, 10")
    k(f"v_add_u32 {v(vtmp)}, s{stmp+2}, {v(vlane16)}")
    k(f"global_load_dwordx4 {v(vtmp+2,4)}, {v(vtmp)}, s[{stmp}:{stmp+1}]")


def xlane_sum(k, r, t):
    k(f"v_mov_b32 {v(t)}, {v(r)}")
    k(f"v_permlane16_swap_b32 {v(r)}, {v(t)}")
    k(f"v_add_f32 {v(r)}, {v(r)}, {v(t)}")
    k(f"v_mov_b32 {v(t)}, {v(r)}")
    k(f"v_permlane32_swap_b32 {v(r)}, {v(t)}")
    k(f"v_add_f32 {v(r)}, {v(r)}, {v(t)}")


def gen_k1():
    k = Kern("k1_kernel", 0, 0)
    END, SIDE, STORE, JWS, JWD, TR, ISSUED, TRS = (k.lab(x) for x in ("end", "side", "store", "jws", "jwd", "tr", "iss", "trs"))
    sW, sMain, sKind = 20, 48, 49
    k(f"s_cmp_ge_u32 s2, {K1_WGS}")
    k(f"s_cbranch_scc1 {END}")
    k.stamp()
    k("s_load_dwordx2 s[4:5], s[0:1], 0")
    k("s_load_dwordx2 s[6:7], s[0:1], 72")
    k("s_load_dwordx4 s[76:79], s[0:1], 8")
    k("s_load_dwordx4 s[80:83], s[0:1], 32")
    k("s_load_dwordx2 s[84:85], s[0:1], 48")
    k("v_lshrrev_b32 v2, 6, v0")
    k("v_and_b32 v1, 63, v0")
    k(f"v_readfirstlane_b32 s{sW}, v2")
    k(f"s_mov_b32 s{sMain}, 0")
    k("s_cmp_ge_u32 s2, 224")
    k(f"s_cbranch_scc1 {SIDE}")
    k(f"s_mov_b32 s{sMain}, 1")
    sRT, sCT = 21, 22
    k("s_and_b32 s23, s2, 7")
    k("s_lshr_b32 s24, s2, 3")
    div7(k, 25, 24)
    k("s_mul_i32 s26, s25, 7")
    k(f"s_sub_u32 s{sCT}, s24, s26")
    k(f"s_lshl2_add_u32 s{sRT}, s23, s25")
    k("v_lshrrev_b32 v4, 5, v1")
    k("v_bfe_u32 v5, v1, 3, 2")
    k("v_lshl_add_u32 v4, v4, 4, v5")
    k("s_movk_i32 s26, 0x7000")
    k("v_mul_u32_u24 v4, s26, v4")
    k("v_lshrrev_b32 v5, 4, v1")
    k("v_and_b32 v6, 7, v1")
    k("v_xor_b32 v6, v6, v5")
    k("v_lshl_add_u32 v2, v6, 4, v4")
    k("v_xor_b32 v3, 64, v2")
    k(f"v_add_u32 v3, {32*32*896}, v3")
    k(f"s_lshl_b32 s26, s{sW}, 7")
    k(f"s_add_u32 s26, s26, s{sRT}")
    k("s_mul_i32 s26, s26, 896")
    k(f"s_lshl_b32 s27, s{sW}, 11")
    saved, k.lines = k.lines, []
    k("v_and_b32 v8, 15, v1")
    vB, vST, vE, vSG, vT, vF = 8, 9, 9, 17, 19, 28
    vKK, vOnes = 27, 152
    k(f"s_and_b32 s28, s{sW}, 1")
    k("s_lshl_b32 s28, s28, 4")
    k(f"s_lshl_b32 s29, s{sCT}, 5")
    k("s_add_u32 s28, s28, s29")
    k(f"v_add_u32 {v(vKK)}, s28, v8")
    k("v_lshrrev_b32 v9, 1, v8")
    k("v_xor_b32 v9, v9, v5")
    k("v_lshlrev_b32 v9, 4, v9")
    k("v_lshl_add_u32 v4, v8, 7, v9")
    k(f"v_add_u32 v19, 1, {v(vKK)}")
    k("v_cvt_f32_u32 v20, v19")
    k("v_and_b32 v19, 1, v19")
    k("v_lshlrev_b32 v19, 31, v19")
    k(f"v_or_b32 {v(vSG)}, 1.0, v19")
    k(f"v_mul_f32 {v(vE+1)}, {f2u(1.0/448)}, v20")
    for e in range(2, 8):
        k(f"v_mul_f32 {v(vE+e)}, {f2u(e/448.0)}, v20")
    k(f"v_mul_f32 {v(vST)}, {f2u(32.0/448)}, v20")
    k(f"v_fract_f32 {v(vST)}, {v(vST)}")
    k("v_lshlrev_b32 v21, 3, v5")
    k("v_cvt_f32_u32 v21, v21")
    k(f"s_lshr_b32 s30, s{sW}, 1")
    k(f"s_mul_i32 s31, s30, {f2u(0.25)}")
    k(f"v_mov_b32 {v(vB)}, s31")
    k(f"v_fmac_f32 {v(vB)}, v21, {v(vE+1)}")
    k(f"v_fract_f32 {v(vB)}, {v(vB)}")
    k("v_xor_b32 v5, 64, v4")
    k("v_add_u32 v6, s27, v4")
    k("v_add_u32 v7, s27, v5")
    for p in range(4):
        k(f"v_mov_b32 {v(vOnes+p)}, 0x3f803f80")
    vCS = 156
    for t in range(7):
        k(f"v_cos_f32 {v(vT)}, {v(vB)}")
        for e in range(1, 8):
            k(f"v_add_f32 {v(vT+e)}, {v(vB)}, {v(vE+e)}")
        for e in range(1, 8):
            k(f"v_cos_f32 {v(vT+e)}, {v(vT+e)}")
        if t < 6:
            k(f"v_add_f32 {v(vB)}, {v(vB)}, {v(vST)}")
            k(f"v_fract_f32 {v(vB)}, {v(vB)}")
        for p in range(4):
            k(f"v_cvt_pk_bf16_f32 {v(vF+4*t+p)}, {v(vT+2*p)}, {v(vT+2*p+1)}")
        if t > 0:
            k(f"v_mfma_f32_16x16x32_bf16 {v(vCS,4)}, {v(vOnes,4)}, {v(vF+4*t-4,4)}, {'0' if t == 1 else v(vCS,4)}")
    gen_lines, k.lines = k.lines, saved
    k("s_waitcnt lgkmcnt(0)")
    k.srd(8, 4, XB)
    sC, sG_, sL = 23, 24, 25

    def xcol(i):
        if i == 0:
            k(f"s_mov_b32 s{sC}, s{sCT}" if ROTX else f"s_mov_b32 s{sC}, 0")
        else:
            k(f"s_add_u32 s{sC}, s{sC}, 1")
            k(f"s_cmp_eq_u32 s{sC}, 7")
            k(f"s_cselect_b32 s{sC}, 0, s{sC}")
        k(f"s_lshl_b32 s{sG_}, s{sC}, 7")
        k(f"s_add_u32 s{sG_}, s{sG_}, s26")
        k(f"s_lshl_b32 s{sL}, s{sC}, 13")
        k(f"s_add_u32 m0, s{sL}, s27")
        k(f"buffer_load_dwordx4 v2, s[8:11], s{sG_} offen{NT} lds")
        slot()
        k("s_add_u32 m0, m0, 1024")
        k(f"buffer_load_dwordx4 v3, s[8:11], s{sG_} offen{NT} lds")
        slot()

    per = [0]

    def slot():
        for _ in range(min(per[0], len(gen_lines))):
            k(gen_lines.pop(0))

    for i in range(XFIRST):
        xcol(i)
    k.label(SIDE)
    k("s_waitcnt lgkmcnt(0)")
    vIn, vSrc, vDst, vOut = 168, 200, 201, 208
    sA, sB_, sD = 52, 56, 88
    sSo, sDo, sSt, sSt4, sSto, sDt, sDt4, t0, t1, t2, t3 = 86, 87, 97, 98, 101, 99, 100, 50, 51, 35, 39
    k(f"s_mul_i32 s{t0}, s2, 3")
    k(f"s_add_u32 s{t0}, s{t0}, s{sW}")
    k(f"s_sub_u32 s{t0}, s{t0}, 1")
    k(f"s_lshl2_add_u32 s{t1}, s2, s{sW}")
    k(f"s_sub_u32 s{t1}, s{t1}, 128")
    k("s_cmp_lt_u32 s2, 128")
    k(f"s_cselect_b32 s{t0}, s{t0}, s{t1}")
    k(f"s_cselect_b32 s{t1}, s{sW}, 1")
    k("s_cmp_ge_u32 s2, 224")
    k(f"s_cselect_b32 s{t1}, 0, s{t1}")
    k(f"s_cmp_lg_u32 s{t1}, 0")
    k(f"s_cbranch_scc1 {JWS}")
    k(f"s_mov_b32 s{sKind}, 0")
    k(f"s_lshr_b32 s{t0}, s2, 5")
    k(f"s_add_u32 s{t0}, s{t0}, 4")
    k(f"s_bfe_u32 s{t2}, s2, 0x20003")
    k(f"s_cmp_ge_u32 s2, 224")
    k(f"s_cselect_b32 s{t0}, s{t2}, s{t0}")
    k(f"s_cselect_b32 s{t2}, s{sW}, s{t2}")
    k(f"s_and_b32 s{t1}, s2, 7")
    k.srd(sA, 76, WRB)
    k.srd(sB_, 78, WRB)
    k(f"v_and_b32 {v(vOut-4)}, 7, v1")
    k(f"v_lshrrev_b32 {v(vOut-3)}, 3, v1")
    k(f"v_mul_u32_u24 {v(vSrc)}, 0x1c2, {v(vOut-4)}")
    k(f"v_lshl_add_u32 {v(vSrc)}, {v(vOut-3)}, 4, {v(vSrc)}")
    k(f"v_lshlrev_b32 {v(vDst)}, 16, {v(vOut-3)}")
    k(f"v_lshl_add_u32 {v(vDst)}, {v(vOut-4)}, 4, {v(vDst)}")
    k(f"v_add_u32 {v(vOut-3)}, 1, {v(vOut-3)}")
    k(f"v_lshlrev_b32 {v(vOut-3)}, 27, {v(vOut-3)}")
    k(f"v_and_b32 {v(vOut-3)}, 0x40000000, {v(vOut-3)}")
    k(f"v_or_b32 {v(vSrc)}, {v(vSrc)}, {v(vOut-3)}")
    k(f"v_or_b32 {v(vDst)}, {v(vDst)}, {v(vOut-3)}")
    k(f"s_lshl_b32 s{sSo}, s{t1}, 5")
    k(f"s_add_u32 s{sSo}, s{sSo}, s{t0}")
    k(f"s_mul_i32 s{sSo}, s{sSo}, 3600")
    k(f"s_mul_i32 s{t3}, s{t2}, 112")
    k(f"s_add_u32 s{sSo}, s{sSo}, s{t3}")
    k(f"s_add_u32 s{sSo}, s{sSo}, 2")
    k(f"s_mov_b32 s{sSt}, 0")
    k(f"s_mov_b32 s{sSt4}, {64*450}")
    k(f"s_mov_b32 s{sSto}, {64*450}")
    k.srd_off(sD, 6, WSB + WT, 224 * 8192)
    k(f"s_mul_i32 s{sDo}, s{t2}, {7*65536}")
    k(f"s_lshr_b32 s{t3}, s{t0}, 1")
    k(f"s_lshl_b32 s{t3}, s{t3}, 11")
    k(f"s_add_u32 s{sDo}, s{sDo}, s{t3}")
    k(f"s_lshl_b32 s{t3}, s{t1}, 8")
    k(f"s_add_u32 s{sDo}, s{sDo}, s{t3}")
    k(f"s_and_b32 s{t3}, s{t0}, 1")
    k(f"s_lshl_b32 s{t3}, s{t3}, 7")
    k(f"s_add_u32 s{sDo}, s{sDo}, s{t3}")
    k(f"s_branch {ISSUED}")
    k.label(JWS)
    k(f"s_mov_b32 s{sKind}, 1")
    k(f"s_cmp_ge_u32 s{t0}, {N_WS}")
    k(f"s_cbranch_scc1 {JWD}")
    k(f"s_bitcmp1_b32 s{t0}, 0")
    k(f"s_cselect_b32 s{sA}, s82, s80")
    k(f"s_cselect_b32 s{sA+1}, s83, s81")
    k(f"s_and_b32 s{sA+1}, s{sA+1}, 0xffff")
    k(f"s_mov_b32 s{sA+2}, {WGB}")
    k(f"s_mov_b32 s{sA+3}, 0x20000")
    k.srd_off(sD, 6, WSB + WS, 56 * 28 * 2048)
    k(f"s_lshr_b32 s{t1}, s{t0}, 1")
    k(f"s_mul_i32 s{t2}, s{t1}, 2341")
    k(f"s_lshr_b32 s{t2}, s{t2}, 16")
    k(f"s_mul_i32 s{t3}, s{t2}, 28")
    k(f"s_sub_u32 s{t1}, s{t1}, s{t3}")
    k(f"v_lshrrev_b32 {v(vSrc)}, 5, v1")
    k(f"v_mul_u32_u24 {v(vSrc)}, {8*3584}, {v(vSrc)}")
    k(f"v_and_b32 {v(vDst)}, 31, v1")
    k(f"v_lshl_add_u32 {v(vSrc)}, {v(vDst)}, 4, {v(vSrc)}")
    k(f"s_mul_i32 s{sSo}, s{t1}, {16*3584}")
    k(f"s_lshl_b32 s{t3}, s{t2}, 9")
    k(f"s_add_u32 s{sSo}, s{sSo}, s{t3}")
    k(f"s_movk_i32 s{sSt}, 3584")
    k(f"s_movk_i32 s{sSt4}, 3584")
    k(f"v_lshlrev_b32 {v(vDst)}, 4, v1")
    k(f"s_mul_i32 s{sDo}, s{t2}, {8*28*2048}")
    k(f"s_lshl_b32 s{t3}, s{t1}, 11")
    k(f"s_add_u32 s{sDo}, s{sDo}, s{t3}")
    k(f"s_and_b32 s{t3}, s{t0}, 1")
    k(f"s_lshl_b32 s{t3}, s{t3}, 10")
    k(f"s_add_u32 s{sDo}, s{sDo}, s{t3}")
    k(f"s_mov_b32 s{sDt}, {28*2048}")
    k(f"s_mov_b32 s{sDt4}, {28*2048}")
    k(f"s_branch {TR}")
    k.label(JWD)
    k(f"s_sub_u32 s{t0}, s{t0}, {N_WS}")
    k.srd(sA, 84, WGB)
    k.srd_off(sD, 6, WSB + WD, 7 * 112 * 2048)
    k(f"s_cmp_ge_u32 s{t0}, {0 if NOWD1 else N_WD}")
    k(f"s_cselect_b32 s{sA+2}, 0, s{sA+2}")
    k(f"s_cselect_b32 s{sD+2}, 0, s{sD+2}")
    k(f"s_mul_i32 s{t2}, s{t0}, 2341")
    k(f"s_lshr_b32 s{t2}, s{t2}, 16")
    k(f"s_mul_i32 s{t3}, s{t2}, 28")
    k(f"s_sub_u32 s{t1}, s{t0}, s{t3}")
    k(f"v_lshrrev_b32 {v(vSrc)}, 5, v1")
    k(f"v_bfe_u32 {v(vDst)}, v1, 4, 1")
    k(f"v_lshl_add_u32 {v(vSrc)}, {v(vDst)}, 7, {v(vSrc)}")
    k(f"v_bfe_u32 {v(vDst)}, v1, 3, 1")
    k(f"v_lshl_add_u32 {v(vSrc)}, {v(vDst)}, 5, {v(vSrc)}")
    k(f"v_mul_u32_u24 {v(vSrc)}, 0x380, {v(vSrc)}")
    k(f"v_and_b32 {v(vOut-4)}, 7, v1")
    k(f"v_lshl_add_u32 {v(vSrc)}, {v(vOut-4)}, 4, {v(vSrc)}")
    k(f"s_lshr_b32 s{sSo}, s{t1}, 2")
    k(f"s_lshl_b32 s{sSo}, s{sSo}, 7")
    k(f"s_and_b32 s{t3}, s{t1}, 3")
    k(f"s_add_u32 s{sSo}, s{sSo}, s{t3}")
    k(f"s_mul_i32 s{sSo}, s{sSo}, {2*896}")
    k(f"s_lshl_b32 s{t3}, s{t2}, 7")
    k(f"s_add_u32 s{sSo}, s{sSo}, s{t3}")
    k(f"s_movk_i32 s{sSt}, {8*896}")
    k(f"s_mov_b32 s{sSt4}, {(64-24)*896}")
    k(f"v_lshlrev_b32 {v(vOut-4)}, 4, {v(vOut-4)}")
    k(f"v_lshl_add_u32 {v(vOut-4)}, {v(vDst)}, 9, {v(vOut-4)}")
    k(f"v_lshrrev_b32 {v(vDst)}, 4, v1")
    k(f"v_lshl_add_u32 {v(vDst)}, {v(vDst)}, 11, {v(vOut-4)}")
    k(f"s_mul_i32 s{sDo}, s{t2}, 112")
    k(f"s_lshl2_add_u32 s{sDo}, s{t1}, s{sDo}")
    k(f"s_lshl_b32 s{sDo}, s{sDo}, 11")
    k(f"s_movk_i32 s{sDt}, 128")
    k(f"s_movk_i32 s{sDt4}, {1024-384}")
    k.label(TR)
    k(f"s_mov_b32 s{sSto}, s{sSt}")
    for i in range(3):
        k(f"s_mov_b32 s{sB_+i}, s{sA+i}")
    k(f"s_mov_b32 s{sB_+3}, 0x20000")
    k.label(ISSUED)

    def side_loads(after=lambda: None):
        for e in range(8):
            sr = sB_ if e & 1 else sA
            k(f"buffer_load_dwordx4 {v(vIn+4*e,4)}, {v(vSrc)}, s[{sr}:{sr+3}], s{sSo} offen{NT}")
            after()
            if e < 7:
                k(f"s_add_u32 s{sSo}, s{sSo}, s{sSt4 if e == 3 else sSto if e & 1 else sSt}")

    def side_store(final):
        JOIN = k.lab("join")
        k.label(STORE)
        if final:
            k.stamp()
        k("s_mov_b32 s34, 0x05040100")
        k("s_mov_b32 s35, 0x07060302")
        k(f"s_cmp_lg_u32 s{sKind}, 0")
        k(f"s_cbranch_scc1 {TRS}")
        for e in range(8):
            o = vOut + 4 * e
            for r in range(4):
                k(f"v_perm_b32 {v(o+r)}, {v(vIn+8*r+4+(e>>1))}, {v(vIn+8*r+(e>>1))}, s{34+(e&1)}")
            k(f"buffer_store_dwordx4 {v(o,4)}, {v(vDst)}, s[{sD}:{sD+3}], s{sDo} offen{SC} ; alt")
            if e < 7:
                k(f"s_add_u32 s{sDo}, s{sDo}, 8192")
        k(f"s_branch {JOIN}")
        k.label(TRS)
        for j in range(8):
            o = vOut + 4 * j
            for q in range(4):
                k(f"v_perm_b32 {v(o+q)}, {v(vIn+4*(2*q+1)+(j>>1))}, {v(vIn+4*(2*q)+(j>>1))}, s{34+(j&1)}")
            k(f"buffer_store_dwordx4 {v(o,4)}, {v(vDst)}, s[{sD}:{sD+3}], s{sDo} offen{SC}")
            if j < 7:
                k(f"s_add_u32 s{sDo}, s{sDo}, s{sDt4 if j == 3 else sDt}")
        k.label(JOIN)
        if final:
            k.stamp()
            if k.prof:
                k("s_waitcnt vmcnt(0)")
            k.stamp_flush(6, PROF, sW, 1)
        else:
            k(f"s_cmp_eq_u32 s{sMain}, 0")
            k(f"s_cbranch_scc1 {END}")

    SPW = k.lab("spw")
    k(f"s_cmp_eq_u32 s{sMain}, 0")
    k(f"s_cbranch_scc1 {SPW}")
    per[0] = -(-len(gen_lines) // (22 - 2 * XFIRST))
    side_loads(slot)
    for i in range(XFIRST, 7):
        xcol(i)
    assert not gen_lines
    k.stamp()
    k.srd_off(12, 6, WSB + AT, 224 * 8192)
    k.srd_off(16, 6, WSB + M1, S * 4)
    k(f"v_mfma_f32_16x16x32_bf16 {v(vCS,4)}, {v(vOnes,4)}, {v(vF+24,4)}, {v(vCS,4)}")
    npf = 0
    if CODEPF:
        k("v_lshlrev_b32 v160, 4, v1")
        k(f"s_min_u32 s34, s{sW}, (k2_code_end-k2_kernel)/1024")
        code_prefetch(k, "k2_kernel", 34, 160, 162, 36)
        npf += 1
    vR, vSm, vGr = 56, 20, 120

    def stat(t):
        b = vR + 4 * (t % 4)
        k(f"v_mfma_f32_16x16x32_bf16 {v(vSm,4)}, {v(b,4)}, {v(vOnes,4)}, {'0' if t == 0 else v(vSm,4)}")
        k(f"v_mfma_f32_16x16x32_bf16 {v(vGr,4)}, {v(b,4)}, {v(b,4)}, {'0' if t == 0 else v(vGr,4)}")

    k.stamp()
    k(f"s_lshl_b32 s{sL}, s{sCT}, 13" if ROTX else f"s_mov_b32 s{sL}, 0")
    for c in range(7):
        k(f"v_add_u32 v26, s{sL}, v6")
        k(f"v_add_u32 v18, s{sL}, v7")
        if c < 6:
            k(f"s_add_u32 s{sL}, s{sL}, 8192")
            k(f"s_cmp_eq_u32 s{sL}, 57344")
            k(f"s_cselect_b32 s{sL}, 0, s{sL}")
        k(f"s_waitcnt vmcnt({12-2*c+npf+(8 if c < XFIRST else 0)})")
        for par in range(2):
            t = 2 * c + par
            k(f"ds_read_b128 {v(vR+4*(t%4),4)}, v{18 if par else 26}")
        if c > 0:
            k("s_waitcnt lgkmcnt(2)")
            stat(2 * c - 2)
            stat(2 * c - 1)
    k("s_waitcnt lgkmcnt(0)")
    k.stamp()
    if XFIRST == 7:
        k(f"s_waitcnt vmcnt({npf})")
    stat(12)
    stat(13)
    if EARLY == 1:
        side_store(False)
    k("s_barrier")
    vA = 88
    vSt = 124
    seq = [(t, b) for t in range(14) for b in range(4)]

    def rd(n):
        t, b = seq[n]
        k(f"ds_read_b128 {v(vR+4*(n%8),4)}, v{4+(t&1)} offset:{(t>>1)*8192 + b*2048}")

    vM, vQ = 24, 25
    fin = ["v_and_b32 v26, 3, v1",
           "v_cmp_eq_u32 s[40:41], 1, v26", "v_cmp_eq_u32 s[42:43], 2, v26", "v_cmp_eq_u32 s[44:45], 3, v26",
           "v_bfe_u32 v26, v1, 2, 2", "v_lshrrev_b32 v19, 4, v1", "v_cmp_eq_u32 s[46:47], v26, v19",
           f"v_cndmask_b32 {v(vM)}, {v(vSm)}, {v(vSm+1)}, s[40:41]", f"v_cndmask_b32 {v(vQ)}, {v(vGr)}, {v(vGr+1)}, s[40:41]",
           f"v_cndmask_b32 {v(vM)}, {v(vM)}, {v(vSm+2)}, s[42:43]", f"v_cndmask_b32 {v(vQ)}, {v(vQ)}, {v(vGr+2)}, s[42:43]",
           f"v_cndmask_b32 {v(vM)}, {v(vM)}, {v(vSm+3)}, s[44:45]", f"v_cndmask_b32 {v(vQ)}, {v(vQ)}, {v(vGr+3)}, s[44:45]",
           f"v_mul_f32 {v(vM)}, {f2u(1.0/448)}, {v(vM)}",
           f"v_mul_f32 {v(vQ)}, {f2u(1.0/448)}, {v(vQ)}",
           "v_and_b32 v26, 15, v1",
           f"v_fma_f32 {v(vQ)}, -{v(vM)}, {v(vM)}, {v(vQ)}",
           f"s_lshl_b32 s33, s{sW}, 6",
           f"v_max_f32 {v(vQ)}, 0, {v(vQ)}",
           "v_lshl_add_u32 v19, v26, 2, s33",
           f"v_add_f32 {v(vQ)}, {f2u(EPS)}, {v(vQ)}",
           f"v_fmac_f32 {v(vCS)}, {v(vCS)}, {v(vSG)}",
           f"v_rsq_f32 {v(vQ)}, {v(vQ)}",
           "v_lshrrev_b32 v21, 2, v26",
           "v_and_b32 v26, 3, v26",
           f"v_mul_f32 v20, {v(vM)}, {v(vQ)}",
           "v_lshl_add_u32 v26, v21, 4, v26",
           "v_lshlrev_b32 v26, 7, v26",
           f"s_lshl_b32 s33, s{sW}, 7",
           f"s_add_u32 s33, s33, s{sRT}",
           "s_lshl_b32 s33, s33, 2",
           f"s_cmp_eq_u32 s{sCT}, 0\ns_cselect_b32 s18, {S*4}, 0"]
    DEPTH = 7
    for n in range(DEPTH):
        rd(n)
    k.stamp()
    extra = 0
    for n in range(56):
        t, b = seq[n]
        left = min(DEPTH - 1, 55 - n)
        k(f"s_waitcnt lgkmcnt({left + (2 if 40 < n <= 40 + DEPTH else 0)})")
        acc = vA + 16 * (t // 7) + 4 * b
        c = "0" if t % 7 == 0 else v(acc, 4)
        k(f"v_mfma_f32_16x16x32_bf16 {v(acc,4)}, {v(vR+4*(n%8),4)}, {v(vF+4*(t%7),4)}, {c}")
        if n + DEPTH < 56:
            rd(n + DEPTH)
        if n >= 4 and fin:
            k(fin.pop(0))
        if n == 40:
            assert not fin
            k("s_mov_b64 exec, s[46:47]")
            k(f"ds_write_b32 v19, {v(vQ)} offset:57344")
            k("ds_write_b32 v19, v20 offset:57600")
            k(f"buffer_store_dword {v(vM)}, v26, s[16:19], s33 offen")
            k("s_mov_b64 exec, -1")
    if EARLY == 2:
        side_store(False)
    k("s_barrier")
    k.stamp()
    k("v_lshrrev_b32 v24, 4, v1")
    k("v_lshlrev_b32 v24, 4, v24")
    for b in range(4):
        k(f"ds_read_b128 {v(vSt+4*b,4)}, v24 offset:{57344 + 64*b}")
        k(f"ds_read_b128 {v(vSt+16+4*b,4)}, v24 offset:{57600 + 64*b}")
    for n in range(16):
        k(f"v_fmac_f32 {v(vA+n)}, {v(vA+16+n)}, {v(vSG)}")
    k("v_and_b32 v8, 15, v1")
    k("v_and_b32 v9, 7, v1")
    k("v_lshrrev_b32 v10, 3, v24")
    k("v_xor_b32 v10, v10, v9")
    k("v_lshlrev_b32 v10, 4, v10")
    k("v_lshl_add_u32 v10, v8, 7, v10")
    k("v_add_u32 v10, s27, v10")
    k("v_xor_b32 v11, 16, v10")
    k("v_lshlrev_b32 v12, 4, v1")
    k("v_add_u32 v12, s27, v12")
    k("v_lshrrev_b32 v13, 3, v1")
    k("v_xor_b32 v9, v9, v13")
    k("v_lshlrev_b32 v9, 4, v9")
    k("v_lshl_add_u32 v13, v13, 13, v9")
    k("s_lshl_b32 s28, s28, 13")
    k("s_lshl_b32 s30, s30, 12")
    k(f"s_lshl_b32 s33, s{sRT}, 7")
    k("s_add_u32 s33, s33, s30")
    k("s_add_u32 s33, s33, s28")
    k("s_add_u32 s34, s33, 0x10000")
    for h2 in range(2):
        k(f"s_waitcnt lgkmcnt({4-4*h2})")
        for n in range(8 * h2, 8 * h2 + 8):
            k(f"v_mul_f32 {v(vA+n)}, {v(vA+n)}, {v(vSt+n)}")
        for n in range(8 * h2, 8 * h2 + 8):
            k(f"v_fma_f32 {v(vA+n)}, -{v(vSt+16+n)}, {v(vCS)}, {v(vA+n)}")
        for n in range(4 * h2, 4 * h2 + 4):
            k(f"v_cvt_pk_bf16_f32 {v(vR+n)}, {v(vA+2*n)}, {v(vA+2*n+1)}")
    k(f"ds_write_b128 v10, {v(vR,4)}")
    k(f"ds_write_b128 v11, {v(vR+4,4)}")
    k("s_waitcnt lgkmcnt(0)")
    k(f"ds_read_b128 {v(vR+8,4)}, v12")
    k(f"ds_read_b128 {v(vR+12,4)}, v12 offset:1024")
    k("s_waitcnt lgkmcnt(1)")
    k(f"buffer_store_dwordx4 {v(vR+8,4)}, v13, s[12:15], s33 offen{SC}")
    k("s_waitcnt lgkmcnt(0)")
    k(f"buffer_store_dwordx4 {v(vR+12,4)}, v13, s[12:15], s34 offen{SC}")
    if not EARLY:
        side_store(True)
    else:
        k.stamp()
        k.stamp()
        if k.prof:
            k("s_waitcnt vmcnt(0)")
        k.stamp_flush(6, PROF, sW, 1)
    k.label(END)
    k("s_endpgm")
    k.label(SPW)
    side_loads()
    k("s_waitcnt vmcnt(0)")
    k("s_cmp_lg_u32 s2, 255")
    k(f"s_cbranch_scc1 {STORE}")
    k.srd_off(40, 6, WSB + FL, 128 * 256)
    k(f"s_lshl_b32 s44, s{sW}, 13")
    k("s_add_u32 s45, s44, 4096")
    for i in range(4):
        k(f"v_mov_b32 v{4+i}, 0")
    k("v_lshlrev_b32 v8, 4, v1")
    for i in range(4):
        k(f"buffer_store_dwordx4 v[4:7], v8, s[40:43], s44 offen offset:{1024*i}")
        k(f"buffer_store_dwordx4 v[4:7], v8, s[40:43], s45 offen offset:{1024*i}")
    k(f"s_branch {STORE}")
    return k


K2_LDS = 16384
K2_PF = int(os.environ.get("K2_PF", "0"))
K2_IN = int(os.environ.get("K2_IN", "1"))
K2_IN0 = int(os.environ.get("K2_IN0", "16"))
K2_HP = int(os.environ.get("K2_HP", "0"))
K2_SP = int(os.environ.get("K2_SP", "0"))


def cmul8(k, y, x, c, sn, sign):
    neg = " neg_lo:[1,0,0] neg_hi:[1,0,0]"
    for e in range(0, 8, 2):
        k(f"v_pk_mul_f32 {v(y+e,2)}, {v(x+e,2)}, {v(c+e,2)}")
        k(f"v_pk_mul_f32 {v(y+8+e,2)}, {v(x+8+e,2)}, {v(c+e,2)}")
    for e in range(0, 8, 2):
        k(f"v_pk_fma_f32 {v(y+e,2)}, {v(x+8+e,2)}, {v(sn+e,2)}, {v(y+e,2)}" + (neg if sign > 0 else ""))
        k(f"v_pk_fma_f32 {v(y+8+e,2)}, {v(x+e,2)}, {v(sn+e,2)}, {v(y+8+e,2)}" + ("" if sign > 0 else neg))


def gen_k2():
    k = Kern("k2_kernel", 0, 0)
    END = k.lab("end")
    sW, sKK = 20, 2
    PFL = k.lab("pf")
    k("s_cmp_ge_u32 s2, 224")
    k(f"s_cbranch_scc1 {PFL if K2_PF or K2_SP else END}")
    k.stamp()
    k("s_load_dwordx2 s[6:7], s[0:1], 72")
    k("v_lshrrev_b32 v2, 6, v0")
    k("v_and_b32 v1, 63, v0")
    k(f"v_readfirstlane_b32 s{sW}, v2")
    k("v_lshrrev_b32 v4, 4, v1")
    k("v_and_b32 v5, 7, v1")
    k("v_xor_b32 v5, v5, v4")
    k("v_lshrrev_b32 v6, 3, v1")
    k("v_lshlrev_b32 v6, 7, v6")
    k("v_lshl_add_u32 v2, v5, 4, v6")
    k("v_xor_b32 v3, 64, v2")
    k(f"s_lshl_b32 s21, s{sW}, 11")
    k(f"s_lshl_b32 s22, s{sKK}, 13")
    k("s_add_u32 s22, s22, s21")
    k("v_lshlrev_b32 v7, 4, v1")
    k("s_mov_b32 m0, s21")
    k("s_waitcnt lgkmcnt(0)")
    k.srd_off(8, 6, WSB + AT, 224 * 8192)
    k("buffer_load_dwordx4 v2, s[8:11], s22 offen lds")
    k("buffer_load_dwordx4 v3, s[8:11], s22 offen offset:1024 lds")
    k.srd_off(12, 6, WSB + WT, 224 * 8192)
    vWt = 8
    k(f"buffer_load_dwordx4 {v(vWt,4)}, v7, s[12:15], s22 offen")
    k(f"buffer_load_dwordx4 {v(vWt+4,4)}, v7, s[12:15], s22 offen offset:1024")
    if K2_IN:
        k.srd_off(28, 6, WSB + WS, 56 * 57344)
        k("s_lshr_b32 s32, s2, 3")
        k(f"s_lshr_b32 s33, s{sW}, 1")
        k("s_lshl1_add_u32 s32, s32, s33")
        k("s_mul_i32 s32, s32, 57344")
        k(f"s_and_b32 s33, s{sW}, 1")
        k("s_lshl_b32 s33, s33, 13")
        k("s_add_u32 s32, s32, s33")
        k("v_lshlrev_b32 v192, 7, v1")
        k("buffer_load_dword v193, v192, s[28:31], s32 offen")
    if K2_HP:
        k.srd_off(28, 6, WSB + HP, 64 * 112 * 1024)
        k(f"s_lshl2_add_u32 s32, s2, s{sW}")
        k("s_lshl_b32 s32, s32, 13")
        k("v_lshlrev_b32 v192, 7, v1")
        k("buffer_load_dword v194, v192, s[28:31], s32 offen")
    k.stamp()
    k.srd_off(16, 6, WSB + BT, 448 * 4096)
    vC1, vS1, vN1 = 16, 24, 32
    vC2, vS2, vN2 = 40, 48, 56
    vTc, vTs = 64, 72
    vUc, vUs = 80, 88
    vD = 96
    vX = 128
    vY = 144
    vP = 160
    vT = 168
    k("v_and_b32 v5, 15, v1")
    k(f"s_lshl_b32 s23, s{sW}, 4")
    k("v_add_u32 v6, s23, v5")
    k("v_cvt_f32_u32 v2, v6")
    k("v_cvt_f32_u32 v3, v4")

    def packed_table(dc, ds_, step, base, mult):
        for e in range(8):
            if mult[e] == 0:
                k(f"v_mov_b32 {v(vT+e)}, {v(base)}")
            else:
                k(f"v_fmamk_f32 {v(vT+e)}, {v(step)}, {f2u(float(mult[e]))}, {v(base)}")
        for e in range(8):
            k(f"v_cos_f32 {v(vT+8+e)}, {v(vT+e)}")
        for e in range(8):
            k(f"v_sin_f32 {v(vT+e)}, {v(vT+e)}")
        for p in range(4):
            k(f"v_cvt_pk_bf16_f32 {v(dc+p)}, {v(vT+8+2*p)}, {v(vT+8+2*p+1)}")
        for p in range(4):
            k(f"v_cvt_pk_bf16_f32 {v(ds_+p)}, {v(vT+2*p)}, {v(vT+2*p+1)}")

    k(f"v_mul_f32 {v(vY)}, {f2u(1.0/64)}, v2")
    k(f"v_mul_f32 {v(vY+1)}, {f2u(8.0)}, v3")
    k(f"v_mul_f32 {v(vY+1)}, {v(vY+1)}, {v(vY)}")
    packed_table(vC1, vS1, vY, vY + 1, list(range(8)))
    k("s_mov_b32 s24, 0x80008000")
    k("v_and_b32 v6, 1, v1")
    k("v_mul_u32_u24 v6, 0x8000, v6")
    k("v_lshl_or_b32 v6, v6, 16, v6")
    for p in range(4):
        k(f"v_xor_b32 {v(vC1+4+p)}, v6, {v(vC1+p)}")
        k(f"v_xor_b32 {v(vS1+4+p)}, v6, {v(vS1+p)}")
    for p in range(8):
        k(f"v_xor_b32 {v(vN1+p)}, s24, {v(vS1+p)}")
    k("v_lshrrev_b32 v6, 1, v5")
    k("v_xor_b32 v6, v6, v4")
    k("v_lshlrev_b32 v6, 4, v6")
    k(f"v_lshl_add_u32 {v(vP)}, v5, 7, v6")
    k(f"v_xor_b32 {v(vP+1)}, 64, {v(vP)}")
    m2 = [0, 1, 2, 3, 16, 17, 18, 19]
    k("v_cvt_f32_u32 v6, v5")
    k(f"v_mul_f32 {v(vY)}, {f2u(1.0/32)}, v6")
    k(f"v_mul_f32 {v(vY+1)}, 4.0, v3")
    k(f"v_mul_f32 {v(vY+1)}, {v(vY+1)}, {v(vY)}")
    packed_table(vC2, vS2, vY, vY + 1, m2)
    k("s_brev_b32 s25, 1")
    for p in range(4):
        k(f"v_xor_b32 {v(vC2+4+p)}, s25, {v(vC2+p)}")
        k(f"v_xor_b32 {v(vS2+4+p)}, s25, {v(vS2+p)}")
    for p in range(8):
        k(f"v_xor_b32 {v(vN2+p)}, s24, {v(vS2+p)}")

    k(f"v_mul_f32 {v(vY)}, {f2u(1.0/2048)}, v2")
    k(f"v_mul_f32 {v(vY+1)}, 4.0, v3")
    k(f"v_mul_f32 {v(vY+1)}, {v(vY+1)}, {v(vY)}")
    m2 = [0, 1, 2, 3, 16, 17, 18, 19]
    k.stamp()
    k(f"s_waitcnt vmcnt({2+K2_IN+K2_HP})")
    k("s_barrier")
    k.stamp()
    for plane in range(2):
        for blk in range(2):
            for t in range(2):
                k(f"ds_read_b128 {v(vD+16*plane+8*blk+4*t,4)}, {v(vP+t)} offset:{plane*4096+blk*2048}")
    for e in range(8):
        if m2[e] == 0:
            k(f"v_mov_b32 {v(vTs+e)}, {v(vY+1)}")
        else:
            k(f"v_fmamk_f32 {v(vTs+e)}, {v(vY)}, {f2u(float(m2[e]))}, {v(vY+1)}")

    def dft_big(cr, ci, first_wait):
        for t in range(2):
            for blk in range(2):
                ar, ai = vD + 8 * blk + 4 * t, vD + 16 + 8 * blk + 4 * t
                xr, xi = vX + 4 * blk, vX + 8 + 4 * blk
                c0r = "0" if t == 0 else v(xr, 4)
                c0i = "0" if t == 0 else v(xi, 4)
                k(f"v_mfma_f32_16x16x32_bf16 {v(xr,4)}, {v(ar,4)}, {v(vC1+4*t,4)}, {c0r}")
                k(f"v_mfma_f32_16x16x32_bf16 {v(xi,4)}, {v(ai,4)}, {v(vC1+4*t,4)}, {c0i}")
                first_wait()
                k(f"v_mfma_f32_16x16x32_bf16 {v(xr,4)}, {v(ai,4)}, {v(cr+4*t,4)}, {v(xr,4)}")
                k(f"v_mfma_f32_16x16x32_bf16 {v(xi,4)}, {v(ar,4)}, {v(ci+4*t,4)}, {v(xi,4)}")
                first_wait()

    if CODEPF:
        k("s_lshr_b32 s34, s2, 3")
        k("s_min_u32 s34, s34, (k3_code_end-k3_kernel)/1024-1")
        code_prefetch(k, "k3_kernel", 34, 7, 184, 36)
    k("s_waitcnt lgkmcnt(0)")
    fill = []
    for e in range(8):
        fill.append(f"v_cos_f32 {v(vTc+e)}, {v(vTs+e)}")
    for e in range(8):
        fill.append(f"v_sin_f32 {v(vTs+e)}, {v(vTs+e)}")

    def filler():
        for _ in range(2):
            if fill:
                k(fill.pop(0))

    dft_big(vS1, vN1, filler)
    assert not fill
    def pack():
        for p in range(4):
            k(f"v_cvt_pk_bf16_f32 {v(vP+p)}, {v(vY+2*p)}, {v(vY+2*p+1)}")
            k(f"v_cvt_pk_bf16_f32 {v(vP+4+p)}, {v(vY+8+2*p)}, {v(vY+8+2*p+1)}")

    cmul8(k, vY, vX, vTc, vTs, -1)
    pack()
    for blk in range(2):
        xr, xi = vX + 4 * blk, vX + 8 + 4 * blk
        k(f"v_mfma_f32_16x16x32_bf16 {v(xr,4)}, {v(vC2+4*blk,4)}, {v(vP,4)}, 0")
        k(f"v_mfma_f32_16x16x32_bf16 {v(xi,4)}, {v(vC2+4*blk,4)}, {v(vP+4,4)}, 0")
        k(f"v_mfma_f32_16x16x32_bf16 {v(xr,4)}, {v(vS2+4*blk,4)}, {v(vP+4,4)}, {v(xr,4)}")
        k(f"v_mfma_f32_16x16x32_bf16 {v(xi,4)}, {v(vN2+4*blk,4)}, {v(vP,4)}, {v(xi,4)}")
    k(f"v_mul_f32 {v(vT)}, {f2u(1.0/2048)}, v6")
    k(f"v_add_f32 {v(vT+1)}, {f2u(16.0/2048)}, {v(vT)}")
    k("v_lshl_add_u32 v2, v4, 2, s23")
    k("v_cvt_f32_u32 v2, v2")
    for r in range(4):
        for blk in range(2):
            k(f"v_mul_f32 {v(vUs+4*blk+r)}, v2, {v(vT+blk)}")
        if r < 3:
            k("v_add_f32 v2, 1.0, v2")
    k.stamp()
    k(f"s_waitcnt vmcnt({K2_IN+K2_HP+CODEPF})")
    for e in range(8):
        k(f"v_lshlrev_b32 {v(vTc+e)}, 16, {v(vWt+e)}")
        k(f"v_and_b32 {v(vTs+e)}, 0xffff0000, {v(vWt+e)}")
    cmul8(k, vY, vX, vTc, vTs, +1)
    pack()
    for blk in range(2):
        xr, xi = vX + 4 * blk, vX + 8 + 4 * blk
        k(f"v_mfma_f32_16x16x32_bf16 {v(xr,4)}, {v(vP,4)}, {v(vC2+4*blk,4)}, 0")
        k(f"v_mfma_f32_16x16x32_bf16 {v(xi,4)}, {v(vP+4,4)}, {v(vC2+4*blk,4)}, 0")
        k(f"v_mfma_f32_16x16x32_bf16 {v(xr,4)}, {v(vP+4,4)}, {v(vN2+4*blk,4)}, {v(xr,4)}")
        k(f"v_mfma_f32_16x16x32_bf16 {v(xi,4)}, {v(vP,4)}, {v(vS2+4*blk,4)}, {v(xi,4)}")
    for e in range(8):
        k(f"v_cos_f32 {v(vUc+e)}, {v(vUs+e)}")
    for e in range(8):
        k(f"v_sin_f32 {v(vUs+e)}, {v(vUs+e)}")
    sc = 2.0 / (S * D)
    k(f"s_cmp_eq_u32 s{sKK}, 223")
    k(f"s_mov_b32 s26, {f2u(sc)}")
    k(f"s_cselect_b32 s26, {f2u(sc/2)}, s26")
    for e in range(8):
        k(f"v_mul_f32 {v(vUc+e)}, s26, {v(vUc+e)}")
        k(f"v_mul_f32 {v(vUs+e)}, s26, {v(vUs+e)}")
    k("v_lshrrev_b32 v2, 1, v4")
    k("v_lshl_add_u32 v2, v2, 4, v5")
    k("v_lshlrev_b32 v2, 4, v2")
    k("v_and_b32 v3, 1, v4")
    k("v_lshl_add_u32 v2, v3, 3, v2")
    k(f"s_lshl_b32 s27, s{sW}, 9")
    k("v_add_u32 v2, s27, v2")
    cmul8(k, vY, vX, vUc, vUs, +1)
    pack()
    for plane in range(2):
        for blk in range(2):
            k(f"ds_write_b64 v2, {v(vP+4*plane+2*blk,2)} offset:{8192+plane*4096+blk*2048}")
    k("s_waitcnt lgkmcnt(0)")
    k.stamp()
    k("s_barrier")
    for t in range(2):
        for blk in range(2):
            for plane in range(2):
                k(f"ds_read_b128 {v(vD+16*plane+8*blk+4*t,4)}, v7 offset:{8192+plane*4096+blk*2048+t*1024}")
    k(f"s_lshl_b32 s27, s{sW}, 10")
    k(f"s_lshl_b32 s22, s{sKK}, 13")
    k("s_add_u32 s22, s22, s27")
    k("s_add_u32 s23, s22, 4096")
    k("s_waitcnt lgkmcnt(0)")
    dft_big(vN1, vS1, lambda: None)
    for p in range(4):
        k(f"v_cvt_pk_bf16_f32 {v(vP+p)}, {v(vX+2*p)}, {v(vX+2*p+1)}")
    k(f"s_cmp_ge_u32 s{sKK}, 112")
    k("s_cselect_b32 s24, s24, 0")
    for p in range(4):
        k(f"v_cvt_pk_bf16_f32 {v(vP+4+p)}, {v(vX+8+2*p)}, {v(vX+8+2*p+1)}")
    for p in range(4):
        k(f"v_xor_b32 {v(vP+4+p)}, s24, {v(vP+4+p)}")
    k(f"buffer_store_dwordx4 {v(vP,4)}, v7, s[16:19], s22 offen{SC}")
    k(f"buffer_store_dwordx4 {v(vP+4,4)}, v7, s[16:19], s23 offen{SC}")
    k.stamp()
    if k.prof:
        k("s_waitcnt vmcnt(0)")
    k.stamp_flush(6, PROF + (1 << 20), sW)
    k.label(END)
    k("s_endpgm")
    k.label("k2_code_end")
    if K2_SP:
        k.label(PFL)
        k("s_cmp_ge_u32 s2, 256")
        k(f"s_cbranch_scc1 {END}")
        k("s_load_dwordx2 s[6:7], s[0:1], 72")
        k("v_lshrrev_b32 v2, 6, v0")
        k("v_and_b32 v1, 63, v0")
        k("v_readfirstlane_b32 s20, v2")
        k("v_lshlrev_b32 v3, 7, v1")
        k("s_sub_u32 s21, s2, 224")
        k("s_lshl2_add_u32 s21, s21, s20")
        k("s_lshl_b32 s21, s21, 13")
        k("s_waitcnt lgkmcnt(0)")
        k.srd_off(8, 6, WSB + HP, 64 * 112 * 1024)
        for i in range(K2_SP):
            k(f"buffer_load_dword v{8+i}, v3, s[8:11], s21 offen")
            k("s_add_u32 s21, s21, 0x100000")
        k("s_endpgm")
    if K2_PF:
        k.label(PFL)
        k("s_cmp_ge_u32 s2, 448")
        k(f"s_cbranch_scc1 {END}")
        k("s_load_dwordx2 s[6:7], s[0:1], 72")
        k("v_lshrrev_b32 v2, 6, v0")
        k("v_and_b32 v1, 63, v0")
        k("v_readfirstlane_b32 s20, v2")
        k("v_lshlrev_b32 v3, 4, v1")
        k("s_lshr_b32 s21, s2, 3")
        k("s_sub_u32 s21, s21, 28")
        k("s_lshr_b32 s22, s20, 1")
        k("s_lshl1_add_u32 s21, s21, s22")
        k("s_mul_i32 s21, s21, 57344")
        k("s_and_b32 s22, s20, 1")
        k(f"s_mul_i32 s22, s22, {K2_PF*1024}")
        k("s_add_u32 s21, s21, s22")
        k("s_waitcnt lgkmcnt(0)")
        k.srd_off(8, 6, WSB + WS, 56 * 57344)
        for i in range(K2_PF):
            k(f"buffer_load_dwordx4 {v(8+4*i,4)}, v3, s[8:11], s21 offen offset:{(i%4)*1024}")
            if i % 4 == 3:
                k("s_add_u32 s21, s21, 4096")
        k("s_endpgm")
    return k


HEADER = """; Fused preLN + GFNet spectral filter + preLN bilinear GLU, generated by gen/gen.py
"""


def build(kernels):
    out = [HEADER.rstrip()]
    for kern, grid, block, lds in kernels:
        out.append(f"; @launch kernel={kern.name} grid=({grid},1,1) block=({block},1,1) lds={lds}")
    out.append('.amdgcn_target "amdgcn-amd-amdhsa--gfx950"')
    out.append(".text")
    descs = []
    seen = set()
    for kern, *_ in kernels:
        if kern.name in seen:
            continue
        seen.add(kern.name)
        body, desc = kern.emit()
        print(kern.name, kern.stats, file=sys.stderr)
        out.append(body)
        descs.append(desc)
    out.append('.section .rodata,"a"')
    for d in descs:
        out.append(".p2align 6")
        out.append(d)
    return "\n".join(out) + "\n"


def kernel_list():
    from gen3 import gen_k3, K3_LDS, K3_WGS
    return [(gen_k1(), K1_WGS, 256, K1_LDS), (gen_k2(), 448 if K2_PF else 256 if K2_SP else 224, 256, K2_LDS), (gen_k3(), K3_WGS, 256, K3_LDS)]


if __name__ == "__main__":
    if "--prof" in sys.argv:
        Kern.prof = True
        sys.argv.remove("--prof")
    path = sys.argv[1] if len(sys.argv) > 1 else "sequential_preLN__spectral_gfnet__glu_gated_bilinear__prompt.s"
    open(path, "w").write(build(kernel_list()))
```

```python
import os
import sys
from asmlib import Kern, v, a, s
from gen import *

XT = 114688
R2 = 122880
FF = 65536
K3_LDS = 123904
SPIN_MAX = 1 << 18
E = lambda n, d: int(os.environ.get(n, d))
NH = [int(x) for x in os.environ.get("NH", "4,4,4,12,8").split(",")]
NW = [sum(NH)] + [int(x) for x in os.environ.get("NW", "0,0,8,0").split(",")]
KS = E("KS", 4)
EPI_A = E("EPI_A", 2)
DRAIN_A = E("DRAIN_A", 34)
POLL_A = E("POLL_A", 46)
CHECK_A = E("CHECK_A", 99)
DRAIN_B = E("DRAIN_B", 13)
POLL_B = E("POLL_B", 21)
CHECK_B = E("CHECK_B", 26)
NDMA0 = E("NDMA0", 7)
ROTB = E("ROTB", 1)
ROTW = E("ROTW", 0)
ROTD = E("ROTD", 0)
SPARE = E("SPARE", 1)
TOUCH = E("TOUCH", 0)
SP_WS = eval(os.environ.get("SP_WS", "(3,4,5,6)"))
WBL = eval(os.environ.get("WBL", "(0, 3072)"))
LATE = E("LATE", 46)
SCO = os.environ.get("SCO", " sc1")
EPI_B0 = E("EPI_B0", 10)
RING1 = E("RING1", 8)
RED0 = E("RED0", 31)
MA = E("MA", 1)
TLBW = E("TLBW", 0)
HPT = E("HPT", 0)
ALIASB = E("ALIASB", 1)
SP_HP = eval(os.environ.get("SP_HP", "()"))
RING = E("RING", 12)
LD = os.environ.get("LD", "")
P4ST = eval(os.environ.get("P4ST", "()"))
P5ST = eval(os.environ.get("P5ST", "()"))
K3_WGS = 256 if SPARE else 224
FB = FL + 32768
SSP = 0x1502000


class VM:
    def __init__(self, k):
        self.k, self.n = k, 0

    def op(self, text):
        self.k(text)
        self.n += 1
        return self.n - 1

    def wait(self, idx, extra=""):
        self.k(f"s_waitcnt vmcnt({self.n - idx - 1}){extra}")


def gen_k3():
    k = Kern("k3_kernel", 0, 0)
    vm = VM(k)
    END = k.lab("end")
    sW, sRB, sCT, sHALF, sRT, sFB = 20, 21, 22, 23, 24, 25
    sFL, sFI, sXC = 33, 39, 40
    vL4, vOne, vLP = 30, 2, 0

    mode = [""]

    def store2(text):
        return vm.op(text + mode[0])

    def arrive(off):
        vm.op(f"buffer_store_dword {v(vOne)}, off, s[8:11], s{sFI} offset:{off}{mode[0]}")

    def poll_issue(off):
        return vm.op(f"buffer_load_dword v31, {v(vLP)}, s[8:11], s{sFL} offen offset:{off} sc1")

    outline = []

    def poll(off, mark):
        loop, done = k.lab("poll"), k.lab("done")
        vm.wait(mark)
        k("v_cmp_eq_u32 vcc, 0, v31")
        k(f"s_mov_b32 s50, {SPIN_MAX}")
        k(f"s_cbranch_vccnz {loop}")
        k.label(done)
        outline.append(f"""{loop}:
        buffer_load_dword v31, {v(vLP)}, s[8:11], s{sFL} offen offset:{off} sc1
        s_sub_u32 s50, s50, 1
        s_waitcnt vmcnt(0)
        s_cmp_eq_u32 s50, 0
        s_cbranch_scc1 {done}
        v_cmp_eq_u32 vcc, 0, v31
        s_nop 0
        s_cbranch_vccnz {loop}
        s_branch {done}""")

    PFL = k.lab("pf")
    k("s_cmp_ge_u32 s2, 224")
    k(f"s_cbranch_scc1 {PFL if SPARE else END}")
    k.stamp()
    k("s_load_dwordx2 s[6:7], s[0:1], 72")
    k("s_load_dwordx2 s[4:5], s[0:1], 0")
    k("s_load_dwordx2 s[44:45], s[0:1], 56")
    k("v_lshrrev_b32 v2, 6, v0")
    k("v_and_b32 v1, 63, v0")
    k(f"v_readfirstlane_b32 s{sW}, v2")
    k("s_lshr_b32 s26, s2, 3")
    div7(k, 27, 26)
    if os.environ.get("MAP", "A") == "A":
        k("s_and_b32 s28, s2, 7")
        k(f"s_lshl2_add_u32 s{sRT}, s28, s27")
        k(f"s_and_b32 s{sHALF}, s27, 1")
        k(f"s_lshr_b32 s{sRB}, s{sRT}, 1")
    else:
        k("s_bfe_u32 s28, s2, 0x20001")
        k(f"s_lshl2_add_u32 s{sRB}, s28, s27")
        k(f"s_and_b32 s{sHALF}, s2, 1")
        k(f"s_lshl1_add_u32 s{sRT}, s{sRB}, s{sHALF}")
    k("s_mul_i32 s28, s27, 7")
    k(f"s_sub_u32 s{sCT}, s26, s28")
    vL16, vG, vC = 3, 4, 5
    sKK, vWt = 2, 200
    k(f"v_lshrrev_b32 {v(vG)}, 4, v1")
    k("v_and_b32 v7, 7, v1")
    k(f"v_xor_b32 v7, v7, {v(vG)}")
    k("v_lshrrev_b32 v8, 3, v1")
    k("v_lshlrev_b32 v8, 7, v8")
    k("v_lshl_add_u32 v211, v7, 4, v8")
    k("v_xor_b32 v212, 64, v211")
    k(f"s_lshl_b32 s46, s{sW}, 11")
    k(f"s_lshl_b32 s47, s{sKK}, 13")
    k("s_add_u32 s47, s47, s46")
    k(f"s_add_u32 s48, s47, {WT}")
    k(f"s_add_u32 s47, s47, {AT}")
    k(f"v_lshlrev_b32 {v(vL16)}, 4, v1")
    k(f"v_and_b32 {v(vC)}, 15, v1")
    k("s_mov_b32 m0, s46")
    k("s_waitcnt lgkmcnt(0)")
    k.srd_off(8, 6, WSB, WS_BYTES)
    vm.op("buffer_load_dwordx4 v211, s[8:11], s47 offen lds")
    at_ld = vm.op("buffer_load_dwordx4 v212, s[8:11], s47 offen offset:1024 lds")
    vm.op(f"buffer_load_dwordx4 {v(vWt,4)}, {v(vL16)}, s[8:11], s48 offen")
    wt_ld = vm.op(f"buffer_load_dwordx4 {v(vWt+4,4)}, {v(vL16)}, s[8:11], s48 offen offset:1024")
    vXO = 10
    k.srd(12, 4, XB)
    k(f"s_and_b32 s29, s{sW}, 1")
    k("s_lshl_b32 s29, s29, 2")
    k(f"s_lshl_b32 s27, s{sW}, 10")
    k("v_and_b32 v7, 7, v1")
    k("v_lshrrev_b32 v8, 3, v1")
    k("v_lshrrev_b32 v9, 5, v1")
    k("v_and_b32 v8, 3, v8")
    k("v_lshl_add_u32 v8, v9, 4, v8")
    k("v_mul_u32_u24 v8, 0x380, v8")
    k(f"v_xor_b32 v7, v7, {v(vG)}")
    k("v_xor_b32 v7, s29, v7")
    k(f"v_lshl_add_u32 {v(vXO)}, v7, 4, v8")
    sSB, sXO = 29, 30
    k(f"s_lshr_b32 s26, s{sRT}, 3")
    k("s_lshl_b32 s26, s26, 9")
    k(f"s_lshl_b32 s28, s{sHALF}, 8")
    k("s_add_u32 s26, s26, s28")
    k(f"s_and_b32 s28, s{sRB}, 3")
    k(f"s_lshl2_add_u32 s{sSB}, s28, s26")
    k(f"s_lshl_b32 s26, s{sW}, 5")
    k(f"s_add_u32 s26, s26, s{sSB}")
    k("s_mul_i32 s26, s26, 896")
    k(f"s_lshl_b32 s28, s{sCT}, 7")
    k(f"s_add_u32 s{sXO}, s26, s28")
    k(f"s_add_u32 s{sXO+1}, s{sXO}, {128*896}")
    vM = 12
    k(f"s_lshl_b32 s{sFL}, s{sRB}, 10")
    k(f"s_add_u32 s{sFL}, s{sFL}, {FL}")
    k(f"s_getreg_b32 s{sXC}, hwreg(HW_REG_XCC_ID, 0, 4)")
    NOC = k.lab("noc")
    k(f"s_cmp_lg_u32 s{sW}, 0")
    k(f"s_cbranch_scc1 {NOC}")
    k(f"s_lshl_b32 s26, s{sXC}, 2")
    k("s_lshl_b32 s26, 1, s26")
    k(f"s_lshr_b32 s28, s{sXC}, 3")
    k(f"s_lshl2_add_u32 s28, s28, s{sFL}")
    k("s_mov_b64 exec, 1")
    k("v_mov_b32 v31, s26")
    k("buffer_atomic_add v31, off, s[8:11], s28 offset:768 sc1")
    k("s_mov_b64 exec, -1")
    k.label(NOC)
    k(f"v_lshlrev_b32 {v(vL4)}, 2, v1")
    k(f"v_mov_b32 {v(vOne)}, 1")
    k(f"s_mul_i32 s28, s{sHALF}, 7")
    k(f"s_add_u32 s28, s28, s{sCT}")
    k(f"s_lshl2_add_u32 s{sFB}, s28, s{sW}")
    k(f"s_lshl2_add_u32 s{sFI}, s{sFB}, s{sFL}")
    k(f"v_min_u32 {v(vLP)}, 220, {v(vL4)}")
    sWS = 32
    k(f"s_mul_i32 s{sWS}, s{sW if os.environ.get('FAKEW') else sFB}, 57344")
    k(f"s_add_u32 s{sWS}, s{sWS}, {WS}")
    sRH = 56
    k(f"s_and_b32 s{sRH}, s{sRB}, {ROTW}")
    k(f"s_mul_i32 s{sRH}, s{sRH}, 14336")
    k(f"s_lshl1_add_u32 s{sWS}, s{sRH}, s{sWS}")
    wn = [0]
    wid = []

    def wload(cnt=1):
        for _ in range(cnt):
            n = wn[0]
            wn[0] += 1
            wid.append(vm.op(f"buffer_load_dwordx4 {a(4*n,4)}, {v(vL16)}, s[8:11], s{sWS} offen offset:{(n%4)*1024}"))
            if n % 4 == 3:
                k(f"s_add_u32 s{sWS}, s{sWS}, 4096")
            if n == 27:
                k(f"s_lshl_b32 s57, s{sRH}, 2")
                k(f"s_sub_u32 s{sWS}, s{sWS}, s57")

    k.srd(16, 44, XB)
    wload(NH[0])
    k.stamp()
    vC1, vS1, vN1 = 32, 40, 48
    vC2, vS2, vN2 = 56, 64, 72
    vTc, vTs = 80, 88
    vUc, vUs = 96, 104
    vD = 112
    wX = 144
    vY = 160
    vP = 176
    wT = 184
    k(f"s_lshl_b32 s48, s{sW}, 4")
    k("v_add_u32 v210, s48, v5")
    k("v_cvt_f32_u32 v208, v210")
    k("v_cvt_f32_u32 v209, v4")

    def packed_table(dc, ds_, step, base, mult):
        for e in range(8):
            if mult[e] == 0:
                k(f"v_mov_b32 {v(wT+e)}, {v(base)}")
            else:
                k(f"v_fmamk_f32 {v(wT+e)}, {v(step)}, {f2u(float(mult[e]))}, {v(base)}")
        for e in range(8):
            k(f"v_cos_f32 {v(wT+8+e)}, {v(wT+e)}")
        for e in range(8):
            k(f"v_sin_f32 {v(wT+e)}, {v(wT+e)}")
        for p in range(4):
            k(f"v_cvt_pk_bf16_f32 {v(dc+p)}, {v(wT+8+2*p)}, {v(wT+8+2*p+1)}")
        for p in range(4):
            k(f"v_cvt_pk_bf16_f32 {v(ds_+p)}, {v(wT+2*p)}, {v(wT+2*p+1)}")

    k(f"v_mul_f32 {v(vY)}, {f2u(1.0/64)}, v208")
    k(f"v_mul_f32 {v(vY+1)}, {f2u(8.0)}, v209")
    k(f"v_mul_f32 {v(vY+1)}, {v(vY+1)}, {v(vY)}")
    packed_table(vC1, vS1, vY, vY + 1, list(range(8)))
    k("s_mov_b32 s49, 0x80008000")
    k("v_and_b32 v210, 1, v1")
    k("v_mul_u32_u24 v210, 0x8000, v210")
    k("v_lshl_or_b32 v210, v210, 16, v210")
    for p in range(4):
        k(f"v_xor_b32 {v(vC1+4+p)}, v210, {v(vC1+p)}")
        k(f"v_xor_b32 {v(vS1+4+p)}, v210, {v(vS1+p)}")
    for p in range(8):
        k(f"v_xor_b32 {v(vN1+p)}, s49, {v(vS1+p)}")
    k("v_lshrrev_b32 v210, 1, v5")
    k("v_xor_b32 v210, v210, v4")
    k("v_lshlrev_b32 v210, 4, v210")
    k(f"v_lshl_add_u32 {v(vP)}, v5, 7, v210")
    k(f"v_xor_b32 {v(vP+1)}, 64, {v(vP)}")
    m2 = [0, 1, 2, 3, 16, 17, 18, 19]
    k("v_cvt_f32_u32 v210, v5")
    k(f"v_mul_f32 {v(vY)}, {f2u(1.0/32)}, v210")
    k(f"v_mul_f32 {v(vY+1)}, 4.0, v209")
    k(f"v_mul_f32 {v(vY+1)}, {v(vY+1)}, {v(vY)}")
    packed_table(vC2, vS2, vY, vY + 1, m2)
    k("s_brev_b32 s51, 1")
    for p in range(4):
        k(f"v_xor_b32 {v(vC2+4+p)}, s51, {v(vC2+p)}")
        k(f"v_xor_b32 {v(vS2+4+p)}, s51, {v(vS2+p)}")
    for p in range(8):
        k(f"v_xor_b32 {v(vN2+p)}, s49, {v(vS2+p)}")

    k(f"v_mul_f32 {v(vY)}, {f2u(1.0/2048)}, v208")
    k(f"v_mul_f32 {v(vY+1)}, 4.0, v209")
    k(f"v_mul_f32 {v(vY+1)}, {v(vY+1)}, {v(vY)}")
    m2 = [0, 1, 2, 3, 16, 17, 18, 19]
    vm.wait(at_ld)
    k("s_barrier")
    k.stamp()
    for plane in range(2):
        for blk in range(2):
            for t in range(2):
                k(f"ds_read_b128 {v(vD+16*plane+8*blk+4*t,4)}, {v(vP+t)} offset:{plane*4096+blk*2048}")
    for e in range(8):
        if m2[e] == 0:
            k(f"v_mov_b32 {v(vTs+e)}, {v(vY+1)}")
        else:
            k(f"v_fmamk_f32 {v(vTs+e)}, {v(vY)}, {f2u(float(m2[e]))}, {v(vY+1)}")

    def dft_big(cr, ci, first_wait):
        for t in range(2):
            for blk in range(2):
                ar, ai = vD + 8 * blk + 4 * t, vD + 16 + 8 * blk + 4 * t
                xr, xi = wX + 4 * blk, wX + 8 + 4 * blk
                c0r = "0" if t == 0 else v(xr, 4)
                c0i = "0" if t == 0 else v(xi, 4)
                k(f"v_mfma_f32_16x16x32_bf16 {v(xr,4)}, {v(ar,4)}, {v(vC1+4*t,4)}, {c0r}")
                k(f"v_mfma_f32_16x16x32_bf16 {v(xi,4)}, {v(ai,4)}, {v(vC1+4*t,4)}, {c0i}")
                first_wait()
                k(f"v_mfma_f32_16x16x32_bf16 {v(xr,4)}, {v(ai,4)}, {v(cr+4*t,4)}, {v(xr,4)}")
                k(f"v_mfma_f32_16x16x32_bf16 {v(xi,4)}, {v(ar,4)}, {v(ci+4*t,4)}, {v(xi,4)}")
                first_wait()

    wload(NH[1])
    k("s_waitcnt lgkmcnt(0)")
    fill = []
    for e in range(8):
        fill.append(f"v_cos_f32 {v(vTc+e)}, {v(vTs+e)}")
    for e in range(8):
        fill.append(f"v_sin_f32 {v(vTs+e)}, {v(vTs+e)}")

    def filler():
        for _ in range(2):
            if fill:
                k(fill.pop(0))

    dft_big(vS1, vN1, filler)
    assert not fill
    def pack():
        for p in range(4):
            k(f"v_cvt_pk_bf16_f32 {v(vP+p)}, {v(vY+2*p)}, {v(vY+2*p+1)}")
            k(f"v_cvt_pk_bf16_f32 {v(vP+4+p)}, {v(vY+8+2*p)}, {v(vY+8+2*p+1)}")

    cmul8(k, vY, wX, vTc, vTs, -1)
    pack()
    for blk in range(2):
        xr, xi = wX + 4 * blk, wX + 8 + 4 * blk
        k(f"v_mfma_f32_16x16x32_bf16 {v(xr,4)}, {v(vC2+4*blk,4)}, {v(vP,4)}, 0")
        k(f"v_mfma_f32_16x16x32_bf16 {v(xi,4)}, {v(vC2+4*blk,4)}, {v(vP+4,4)}, 0")
        k(f"v_mfma_f32_16x16x32_bf16 {v(xr,4)}, {v(vS2+4*blk,4)}, {v(vP+4,4)}, {v(xr,4)}")
        k(f"v_mfma_f32_16x16x32_bf16 {v(xi,4)}, {v(vN2+4*blk,4)}, {v(vP,4)}, {v(xi,4)}")
    k(f"v_mul_f32 {v(wT)}, {f2u(1.0/2048)}, v210")
    k(f"v_add_f32 {v(wT+1)}, {f2u(16.0/2048)}, {v(wT)}")
    k("v_lshl_add_u32 v208, v4, 2, s48")
    k("v_cvt_f32_u32 v208, v208")
    for r in range(4):
        for blk in range(2):
            k(f"v_mul_f32 {v(vUs+4*blk+r)}, v208, {v(wT+blk)}")
        if r < 3:
            k("v_add_f32 v208, 1.0, v208")
    vm.wait(wt_ld)
    for e in range(8):
        k(f"v_lshlrev_b32 {v(vTc+e)}, 16, {v(vWt+e)}")
        k(f"v_and_b32 {v(vTs+e)}, 0xffff0000, {v(vWt+e)}")
    cmul8(k, vY, wX, vTc, vTs, +1)
    pack()
    for blk in range(2):
        xr, xi = wX + 4 * blk, wX + 8 + 4 * blk
        k(f"v_mfma_f32_16x16x32_bf16 {v(xr,4)}, {v(vP,4)}, {v(vC2+4*blk,4)}, 0")
        k(f"v_mfma_f32_16x16x32_bf16 {v(xi,4)}, {v(vP+4,4)}, {v(vC2+4*blk,4)}, 0")
        k(f"v_mfma_f32_16x16x32_bf16 {v(xr,4)}, {v(vP+4,4)}, {v(vN2+4*blk,4)}, {v(xr,4)}")
        k(f"v_mfma_f32_16x16x32_bf16 {v(xi,4)}, {v(vP,4)}, {v(vS2+4*blk,4)}, {v(xi,4)}")
    wload(NH[2])
    for e in range(8):
        k(f"v_cos_f32 {v(vUc+e)}, {v(vUs+e)}")
    for e in range(8):
        k(f"v_sin_f32 {v(vUs+e)}, {v(vUs+e)}")
    sc = 2.0 / (S * D)
    k(f"s_cmp_eq_u32 s{sKK}, 223")
    k(f"s_mov_b32 s52, {f2u(sc)}")
    k(f"s_cselect_b32 s52, {f2u(sc/2)}, s52")
    for e in range(8):
        k(f"v_mul_f32 {v(vUc+e)}, s52, {v(vUc+e)}")
        k(f"v_mul_f32 {v(vUs+e)}, s52, {v(vUs+e)}")
    k("v_lshrrev_b32 v208, 1, v4")
    k("v_lshl_add_u32 v208, v208, 4, v5")
    k("v_lshlrev_b32 v208, 4, v208")
    k("v_and_b32 v209, 1, v4")
    k("v_lshl_add_u32 v208, v209, 3, v208")
    k(f"s_lshl_b32 s53, s{sW}, 9")
    k("v_add_u32 v208, s53, v208")
    cmul8(k, vY, wX, vUc, vUs, +1)
    pack()
    for plane in range(2):
        for blk in range(2):
            k(f"ds_write_b64 v208, {v(vP+4*plane+2*blk,2)} offset:{8192+plane*4096+blk*2048}")
    k("s_waitcnt lgkmcnt(0)")
    k("s_barrier")
    for t in range(2):
        for blk in range(2):
            for plane in range(2):
                k(f"ds_read_b128 {v(vD+16*plane+8*blk+4*t,4)}, v3 offset:{8192+plane*4096+blk*2048+t*1024}")
    k(f"s_lshl_b32 s53, s{sW}, 10")
    k(f"s_lshl_b32 s47, s{sKK}, 13")
    k("s_add_u32 s47, s47, s53")
    k(f"s_add_u32 s47, s47, {BT}")
    k("s_add_u32 s48, s47, 4096")
    k("s_waitcnt lgkmcnt(0)")
    dft_big(vN1, vS1, lambda: None)
    for p in range(4):
        k(f"v_cvt_pk_bf16_f32 {v(vP+p)}, {v(wX+2*p)}, {v(wX+2*p+1)}")
    k(f"s_cmp_ge_u32 s{sKK}, 112")
    k("s_cselect_b32 s49, s49, 0")
    for p in range(4):
        k(f"v_cvt_pk_bf16_f32 {v(vP+4+p)}, {v(wX+8+2*p)}, {v(wX+8+2*p+1)}")
    for p in range(4):
        k(f"v_xor_b32 {v(vP+4+p)}, s49, {v(vP+4+p)}")
    vm.op(f"buffer_store_dwordx4 {v(vP,4)}, {v(vL16)}, s[8:11], s47 offen sc1")
    bt_st = vm.op(f"buffer_store_dwordx4 {v(vP+4,4)}, {v(vL16)}, s[8:11], s48 offen sc1")
    k.stamp()
    census = vm.op(f"buffer_load_dwordx2 v[28:29], off, s[8:11], s{sFL} offset:768 sc1")
    k(f"v_and_b32 v6, 1, {v(vG)}")
    k(f"s_and_b32 s28, s{sW}, 1")
    k("s_lshl_b32 s28, s28, 2")
    k("v_lshl_or_b32 v6, v6, 1, s28")
    k("v_and_b32 v7, 7, v1")
    k("v_xor_b32 v6, v6, v7")
    k("v_lshrrev_b32 v8, 3, v1")
    k("v_lshlrev_b32 v9, 12, v8")
    k("v_lshl_add_u32 v6, v6, 4, v9")
    k(f"s_lshl_b32 s28, s{sW}, 15")
    k(f"s_lshl_b32 s27, s{sRT}, 7")
    k("s_add_u32 s26, s28, s27")
    k(f"s_add_u32 s26, s26, {BT}")
    k("s_sub_u32 s48, s27, s28")
    k(f"s_add_u32 s48, s48, {BT + 438*4096}")
    k(f"s_lshl_b32 s27, s{sW}, 10")
    k(f"s_bitcmp1_b32 s{sCT}, 0") if ROTB else k("s_cmp_lg_u32 0, 0")
    k("s_cselect_b32 s49, s26, s48")
    k("s_cselect_b32 s26, s48, s26")
    k("s_cselect_b32 s48, 0xfffe0000, 0x20000".replace("0xfffe0000, 0x20000", "s48, s48")) if False else None
    k("s_cselect_b32 s51, 0x6000, 0")
    k("s_cselect_b32 s52, 28672, 0")
    k("s_mov_b32 s48, 0x20000")
    k("s_cselect_b32 s48, 0xfffe0000, s48")
    k("v_xor_b32 v6, s51, v6")
    k("s_add_u32 m0, s27, s52")
    k("v_lshlrev_b32 v213, 10, v1")
    k("s_lshl_b32 s57, s2, 2")
    k(f"s_add_u32 s57, s57, {FB}")
    k("s_and_b32 s58, s2, 7")
    k("s_lshl_b32 s58, s58, 10")
    k(f"s_add_u32 s58, s58, {FB}")
    k(f"v_min_u32 v214, 880, {v(vL16)}")
    vm.wait(bt_st)
    k("s_barrier")
    NOF = k.lab("nof")
    k(f"s_cmp_lg_u32 s{sW}, 0")
    k(f"s_cbranch_scc1 {NOF}")
    k("s_mov_b64 exec, 0xff")
    k(f"buffer_store_dword {v(vOne)}, v213, s[8:11], s57 offen sc1")
    k("s_mov_b64 exec, -1")
    k.label(NOF)
    k(f"s_lshl_b32 s46, s{sW}, 10")
    k(f"s_add_u32 m0, s46, {XT}")
    vm.op(f"buffer_load_dwordx4 {v(vXO)}, s[12:15], s{sXO} offen lds")
    k(f"s_add_u32 m0, s46, {XT+4096}")
    vm.op(f"buffer_load_dwordx4 {v(vXO)}, s[12:15], s{sXO+1} offen lds")
    k("v_bfe_u32 v7, v1, 3, 2")
    k("v_bfe_u32 v8, v1, 2, 1")
    k("v_lshlrev_b32 v8, 4, v8")
    k("v_lshl_add_u32 v7, v7, 5, v8")
    k("v_and_b32 v8, 3, v1")
    k("v_add_lshl_u32 v7, v7, v8, 2")
    k(f"s_lshl_b32 s47, s{sSB}, 2")
    k(f"s_add_u32 s47, s47, {M1}")
    vm.op(f"buffer_load_dword {v(vM)}, v7, s[8:11], s47 offen")
    vm.op(f"buffer_load_dword {v(vM+1)}, v7, s[8:11], s47 offen offset:512")
    k("s_add_u32 m0, s27, s52")
    k.stamp()
    saved, k.lines = k.lines, []
    vGm = 32
    vB, vST, vE, vT = 14, 15, 15, 20
    k(f"s_lshl_b32 s46, s{sCT}, 6")
    k(f"s_lshl_b32 s47, s{sW}, 4")
    k("s_add_u32 s46, s46, s47")
    k(f"v_add_u32 v27, s46, {v(vC)}")
    k("v_cvt_f32_u32 v27, v27")
    for p in range(1, 4):
        k(f"v_mul_f32 {v(vE+p)}, {f2u(p/448.0)}, v27")
    k(f"v_mul_f32 {v(vST)}, {f2u(16.0/448)}, v27")
    k(f"v_fract_f32 {v(vST)}, {v(vST)}")
    k(f"v_lshl_add_u32 v19, {v(vG)}, 2, 1")
    k("v_cvt_f32_u32 v19, v19")
    k(f"v_mul_f32 {v(vB)}, v19, {v(vE+1)}")
    k(f"v_fract_f32 {v(vB)}, {v(vB)}")
    for t in range(7):
        k(f"v_cos_f32 {v(vT+4)}, {v(vB)}")
        k(f"v_sin_f32 {v(vT)}, {v(vB)}")
        for p in range(1, 4):
            k(f"v_add_f32 {v(vT+p)}, {v(vB)}, {v(vE+p)}")
        if t < 6:
            k(f"v_add_f32 {v(vB)}, {v(vB)}, {v(vST)}")
            k(f"v_fract_f32 {v(vB)}, {v(vB)}")
        for p in range(1, 4):
            k(f"v_cos_f32 {v(vT+4+p)}, {v(vT+p)}")
            k(f"v_sin_f32 {v(vT+p)}, {v(vT+p)}")
        for p in range(4):
            k(f"v_cvt_pk_bf16_f32 {v(vGm+4*t+p)}, {v(vT+4+p)}, -{v(vT+p)}")
    vTB = 14
    k("v_bfe_u32 v7, v1, 2, 2")
    k(f"v_lshlrev_b32 v8, 10, {v(vG)}")
    k("v_lshl_add_u32 v8, v7, 7, v8")
    k("v_and_b32 v9, 3, v1")
    k("v_lshl_add_u32 v8, v9, 3, v8")
    k("v_lshrrev_b32 v7, 1, v7")
    k(f"v_and_b32 v9, 1, {v(vG)}")
    k("v_lshl_add_u32 v7, v9, 1, v7")
    k(f"v_lshl_add_u32 {v(vTB)}, v7, 5, v8")
    for nb in range(1, 4):
        k(f"v_xor_b32 {v(vTB+nb)}, {32*nb}, {v(vTB)}")
    vXA = 18
    k("v_lshrrev_b32 v7, 5, v1")
    k(f"s_lshl_b32 s46, s{sW}, 1")
    k("v_or_b32 v7, s46, v7")
    k("v_bfe_u32 v8, v1, 1, 3")
    k("v_xor_b32 v7, v7, v8")
    k("v_and_b32 v8, 31, v1")
    k("v_lshlrev_b32 v8, 7, v8")
    k("v_lshl_add_u32 v7, v7, 4, v8")
    k(f"v_add_u32 {v(vXA)}, {XT}, v7")
    gen_lines, k.lines = k.lines, saved
    per = -(-len(gen_lines) // (NH[3] + 1))
    for i in range(NH[3] + 1):
        if i < NH[3]:
            wload()
        for _ in range(min(per, len(gen_lines))):
            k(gen_lines.pop(0))
    k.stamp()
    GL, GD = k.lab("gl"), k.lab("gd")
    k(f"s_mov_b32 s50, {SPIN_MAX}")
    k.label(GL)
    k("buffer_load_dwordx4 v[216:219], v214, s[8:11], s58 offen sc1")
    k("s_sub_u32 s50, s50, 1")
    k("s_waitcnt vmcnt(0)")
    k("s_cmp_eq_u32 s50, 0")
    k(f"s_cbranch_scc1 {GD}")
    k("v_and_b32 v216, v216, v217")
    k("v_and_b32 v218, v218, v219")
    k("v_and_b32 v216, v216, v218")
    k("v_cmp_eq_u32 vcc, 0, v216")
    k("s_nop 0")
    k(f"s_cbranch_vccnz {GL}")
    k.label(GD)
    k.stamp()
    def nyq(first):
        k(f"s_cmp_eq_u32 s{sW}, 3")
        k(f"s_cselect_b32 s28, {224*4096 >> 6}, 0")
        k("s_cmp_lg_u32 s51, 0" if first else "s_cmp_eq_u32 s51, 0")
        k("s_cselect_b32 s28, s28, 0")
        k("v_add_u32 v9, 16, v1")
        k("v_and_b32 v9, 64, v9")
        k("v_mad_u32_u24 v9, v9, s28, v6")

    for hf in range(2):
        for t in range(7):
            if t == 6:
                nyq(hf == 0)
            p3_loads = vm.op(f"buffer_load_dwordx4 v{9 if t == 6 else 6}, s[8:11], s{26 if hf == 0 else 49} offen lds")
            if t < 6:
                k("s_add_u32 m0, m0, 4096")
                k("s_add_u32 s26, s26, s48" if hf == 0 else "s_sub_u32 s49, s49, s48")
        if hf == 0:
            k("s_sub_u32 s52, 28672, s52")
            k("s_add_u32 m0, s27, s52")
            k("v_xor_b32 v6, 0x6000, v6")
    wload(NH[4])
    CL, CD, FAST = k.lab("cl"), k.lab("cd"), k.lab("fast")
    k(f"s_mov_b32 s50, {SPIN_MAX}")
    k.label(CL)
    k("v_readfirstlane_b32 s52, v28")
    k("v_readfirstlane_b32 s53, v29")
    k(f"s_cmp_ge_u32 s{sXC}, 8")
    k("s_cselect_b32 s54, s53, s52")
    k(f"s_lshl_b32 s55, s{sXC}, 2")
    k("s_lshr_b32 s54, s54, s55")
    k("s_and_b32 s54, s54, 15")
    k(f"s_cmp_eq_u32 s54, {14 if not os.environ.get('SLOW') else 15}")
    k(f"s_cbranch_scc1 {FAST}")
    for r in (52, 53):
        k(f"s_lshr_b32 s54, s{r}, 4")
        k("s_and_b32 s54, s54, 0x0f0f0f0f")
        k(f"s_and_b32 s{r}, s{r}, 0x0f0f0f0f")
        k(f"s_add_u32 s{r}, s{r}, s54")
    k("s_add_u32 s52, s52, s53")
    k("s_mul_i32 s52, s52, 0x01010101")
    k("s_lshr_b32 s52, s52, 24")
    k("s_cmp_ge_u32 s52, 14")
    k(f"s_cbranch_scc1 {CD}")
    k("s_sub_u32 s50, s50, 1")
    k("s_cmp_eq_u32 s50, 0")
    k(f"s_cbranch_scc1 {CD}")
    k(f"buffer_load_dwordx2 v[28:29], off, s[8:11], s{sFL} offset:768 sc1")
    k("s_waitcnt vmcnt(0)")
    k(f"s_branch {CL}")
    k.label(CD)
    nst = getattr(k, "_nst", 0)
    state = (vm.n, wn[0], list(wid), getattr(k, "_seq", 0))

    def rest():
        vm.wait(p3_loads)
        k("s_barrier")
        k.stamp()
        vR, vA = 88, 120
        seq = [(t, nb) for t in range(14) for nb in range(4)]

        def rd(n):
            t, nb = seq[n]
            for u in range(2):
                k(f"ds_read_b64_tr_b16 {v(vR+4*(n%8)+2*u,2)}, {v(vTB+nb)} offset:{t*4096+u*512}")

        DEPTH = 6
        for n in range(DEPTH):
            rd(n)
        done_in = 0
        for n in range(56):
            t, nb = seq[n]
            k(f"s_waitcnt lgkmcnt({2*min(DEPTH-1, 55-n)})")
            acc = vA + 16 * (t // 7) + 4 * nb
            c = "0" if t % 7 == 0 else v(acc, 4)
            k(f"v_mfma_f32_16x16x32_bf16 {v(acc,4)}, {v(vGm+4*(t%7),4)}, {v(vR+4*(n%8),4)}, {c}")
            if n == 32:
                k("s_mov_b32 exec_lo, 0")
                k("s_mov_b32 exec_hi, 0xffff0000")
                k(f"v_mov_b32 {v(vGm+27)}, 0x3f80")
                k("s_mov_b64 exec, -1")
            if n + DEPTH < 56:
                rd(n + DEPTH)
            if (n + 1) * NW[1] // 56 > done_in:
                wload()
                done_in += 1
        vX = 20
        k(f"ds_read_b128 {v(vX,4)}, {v(vXA)}")
        k(f"ds_read_b128 {v(vX+4,4)}, {v(vXA)} offset:4096")
        k(f"s_mul_i32 s26, s{sRT}, 56")
        k(f"s_lshl2_add_u32 s27, s{sCT}, s{sW}")
        k("s_add_u32 s26, s26, s27")
        k("s_lshl_b32 s26, s26, 10")
        k(f"s_add_u32 s26, s26, {HC}")
        k(f"s_add_u32 s27, s26, {28*1024}")
        for r in range(16):
            k(f"v_{'sub' if r & 1 else 'add'}_f32 {v(vA+r)}, {v(vA+r)}, {v(vA+16+r)}")
        for p in range(2):
            for r in range(4):
                k(f"v_permlane16_swap_b32 {v(vA+8*p+r)}, {v(vA+8*p+4+r)}")
        k("s_waitcnt lgkmcnt(0)")
        vH, vHc, vU = 32, 40, 48
        for p in range(2):
            for q in range(4):
                y0, y1 = vA + 8 * p + 2 * q, vA + 8 * p + 2 * q + 1
                k(f"v_lshlrev_b32 {v(vU)}, 16, {v(vX+4*p+q)}")
                k(f"v_and_b32 {v(vU+1)}, 0xffff0000, {v(vX+4*p+q)}")
                k(f"v_add_f32 {v(y0)}, {v(y0)}, {v(vU)}")
                k(f"v_add_f32 {v(y1)}, {v(y1)}, {v(vU+1)}")
                k(f"v_sub_f32 {v(y0+16)}, {v(y0)}, {v(vM+p)}")
                k(f"v_sub_f32 {v(y1+16)}, {v(y1)}, {v(vM+p)}")
                k(f"v_cvt_pk_bf16_f32 {v(vHc+4*p+q)}, {v(y0+16)}, {v(y1+16)}")
            hc_st = store2(f"buffer_store_dwordx4 {v(vHc+4*p,4)}, {v(vL16)}, s[8:11], s{26+p} offen")
        wload(NW[2])
        for p in range(2):
            for q in range(4):
                y0, y1 = vA + 8 * p + 2 * q, vA + 8 * p + 2 * q + 1
                k(f"v_cvt_pk_bf16_f32 {v(vH+4*p+q)}, {v(y0)}, {v(y1)}")
            k(f"ds_write_b128 {v(vXA)}, {v(vH+4*p,4)} offset:{4096*p}")
        for p in range(2):
            k(f"v_mul_f32 {v(vM+p)}, {v(vA+16+8*p)}, {v(vA+16+8*p)}")
        for e in range(1, 8):
            for p in range(2):
                k(f"v_fmac_f32 {v(vM+p)}, {v(vA+16+8*p+e)}, {v(vA+16+8*p+e)}")
        k(f"s_lshl_b32 s26, s{sW}, 8")
        k(f"s_add_u32 s26, s26, {R2}")
        k(f"v_add_u32 v7, s26, {v(vL4)}")
        k(f"v_permlane32_swap_b32 {v(vM)}, {v(vM+1)}")
        k(f"v_add_f32 {v(vM)}, {v(vM)}, {v(vM+1)}")
        k(f"ds_write_b32 v7, {v(vM)}")
        sDG, sDL = 26, 42
        k(f"s_mul_i32 s{sDG}, s{sRB}, 114688")
        k(f"s_add_u32 s{sDG}, s{sDG}, {HC}")
        k(f"s_mul_i32 s{sDL}, s{sW}, 28672")
        k(f"s_and_b32 s28, s{sW}, 1")
        k("s_mul_i32 s28, s28, 57344")
        k(f"s_lshr_b32 s36, s{sW}, 1")
        k(f"s_lshl_b32 s{sDL+1}, s36, 10")
        k(f"s_add_u32 s{sDL+1}, s{sDL+1}, s28")
        k(f"s_add_u32 s27, s{sDG}, s{sDL+1}")
        k(f"s_add_u32 s{sDG}, s{sDG}, s{sDL}")
        k(f"s_sub_u32 s58, s{sDG}, s{sRH}")
        k(f"s_sub_u32 s59, s27, s{sRH}")
        k(f"s_add_u32 s{sDG}, s{sDG}, s{sRH}")
        k(f"s_add_u32 s27, s27, s{sRH}")
        vB1, vBS, vSS, vWL = 6, 7, 8, 11
        k(f"v_add_u32 {v(vB1)}, 57344, {v(vL16)}")
        sSS = 41
        k(f"s_mul_i32 s{sSS}, s{sRT}, 1792")
        k(f"s_add_u32 s{sSS}, s{sSS}, {SSP}")
        k(f"v_add_u32 v7, {R2}, {v(vL4)}")
        sWD = 34
        k(f"s_mul_i32 s28, s{sCT}, {0 if os.environ.get('FAKED') else 112}")
        k(f"s_mul_i32 s36, s{sW}, 28")
        k("s_add_u32 s28, s28, s36")
        k("s_lshl_b32 s28, s28, 11")
        k(f"s_add_u32 s54, s28, {WD}")
        sHS = 36
        k(f"s_mul_i32 s{sHS}, s{sRB}, {4*112}")
        k(f"s_lshl1_add_u32 s{sHS}, s{sFB}, s{sHS}")
        k(f"s_lshl_b32 s{sHS}, s{sHS}, 10")
        k(f"s_add_u32 s{sHS}, s{sHS}, {HP}")
        vPA, vP1, sAB, sST1 = 11, 25, 44, 55
        k(f"v_lshlrev_b32 {v(vPA)}, 12, {v(vG)}")
        k(f"v_lshl_add_u32 {v(vPA)}, {v(vC)}, 4, {v(vPA)}")
        k(f"s_lshl_b32 s{sAB}, s{sRB}, 8")
        k(f"s_add_u32 s{sAB}, s{sAB}, {BT}")
        k(f"s_mul_i32 s{sAB+1}, s{sRB}, 114688")
        k(f"s_add_u32 s{sAB+1}, s{sAB+1}, {HC}")
        sROT = 53
        k(f"s_add_u32 s{sROT}, s{sRT}, s{sCT}" if ROTD == 2 else f"s_mov_b32 s{sROT}, s{sRT}")
        sHP = 37
        k(f"s_mul_i32 s{sHP}, s{sRT}, 224")
        k(f"s_mul_i32 s28, s{sW}, 28")
        k(f"s_add_u32 s{sHP}, s{sHP}, s28")
        k(f"s_lshl_b32 s{sHP}, s{sHP}, 10")
        k(f"s_add_u32 s{sHP}, s{sHP}, {HP}")
        k.stamp()
        vm.wait(hc_st, " lgkmcnt(0)")
        k.stamp()
        arrive(0)
        mark0 = poll_issue(0)
        wload(NW[3])
        poll(0, mark0)
        wload(NW[4])
        k.stamp()
        uses = [(kp, b) for kp in range(KS) for b in range(4)]
        uses += [(kp, b) for kp in range(KS, 28) for b in (0, 2)]
        uB = len(uses)
        uses += [(kp, b) for kp in range(KS, 28) for b in (1, 3)]
        first_use = {kp: min(u for u, x in enumerate(uses) if x[0] == kp) for kp in range(28)}
        last_use = {kp: max(u for u, x in enumerate(uses) if x[0] == kp) for kp in range(28)}
        npair = (28 - KS) // 2
        D = []

        def dma():
            i = len(D)
            if i < KS:
                sel, off = 0, i * 1024
            else:
                sel, off = 1, ((i - KS) // npair) * 28672 + (KS + 2 * ((i - KS) % npair)) * 1024
            k(f"s_add_u32 m0, s{sDL+sel}, {off}")
            k(f"s_add_u32 s28, s{(sDG if off % 28672 < 14336 else 58)+sel}, {off}")
            D.append(vm.op(f"buffer_load_dwordx4 {v(vL16)}, s[8:11], s28 offen{LD} lds"))

        wd_regs = [(0, lambda m, i=i: a(224 + 8 * i + 4 * m, 4)) for i in range(4)]
        wd_regs += [(0, lambda m, i=i: v(64 + 8 * i + 4 * m, 4)) for i in range(8)]
        wd_regs += [(last_use[i] + 1, lambda m, i=i: a(8 * i + 4 * m, 4)) for i in range(16)]

        def wdreg(kp, m):
            return wd_regs[kp][1](m)

        wdn = [0]
        wd_id = {}

        def quarter(dst, g, size, base):
            k(f"s_add_u32 s{dst}, s{sROT}, {g}" if ROTD else f"s_mov_b32 s{dst}, {g}")
            k(f"s_and_b32 s{dst}, s{dst}, 3")
            k(f"s_mul_i32 s{dst}, s{dst}, {size}")
            k(f"s_add_u32 s{dst}, s{dst}, s{base}")

        def wdload():
            n = wdn[0]
            wdn[0] += 1
            kp, m = n // 2, n % 2
            if n % 14 == 0:
                quarter(sWD, kp // 7, 14336, 54)
            wd_id[kp] = vm.op(f"buffer_load_dwordx4 {wdreg(kp,m)}, {v(vL16)}, s[8:11], s{sWD} offen offset:{(n%14%4)*1024}")
            if n % 14 % 4 == 3:
                k(f"s_add_u32 s{sWD}, s{sWD}, 4096")

        aQ = 128
        hl = []

        def hload():
            n = len(hl)
            p, kp = n // 28, n % 28
            if ALIASB and (p == 1 or ALIASB >= 2):
                if kp == 0:
                    strided = ALIASB == 1 or p == 0
                    if ALIASB == 3:
                        assert BT != AT
                        k(f"s_sub_u32 s58, s{sAB+1}, {HC - (WT if p == 1 else AT)}")
                    else:
                        k(f"s_mul_i32 s58, s{sRT}, {224*1024}")
                        k(f"s_add_u32 s58, s58, {HP + p*112*1024}")
                    k(f"s_cmp_eq_u32 s{sHALF}, 0")
                    k("s_movk_i32 s57, 1024")
                    k(f"s_cselect_b32 s{sST1}, {'0x4000' if strided else 's57'}, s57")
                    k(f"s_cselect_b32 s{sHP}, s{sAB if strided else 58}, s{sAB+1 if p == 1 else 58}")
                    k("s_cselect_b64 vcc, -1, 0")
                    k(f"s_mul_i32 s57, s{sW}, 28")
                    k(f"s_mul_i32 s57, s57, s{sST1}")
                    k(f"s_add_u32 s{sHP}, s{sHP}, s57")
                    if strided:
                        k(f"v_cndmask_b32 {v(vP1)}, {v(vL16)}, {v(vPA)}, vcc")
                    else:
                        k(f"v_mov_b32 {v(vP1)}, {v(vL16)}")
                    k(f"s_mul_i32 s58, s{sST1}, 7")
                if kp % 7 == 0:
                    quarter(46, kp // 7, "s58", sHP)
                else:
                    k(f"s_add_u32 s46, s46, s{sST1}")
                hl.append(vm.op(f"buffer_load_dwordx4 {a(aQ+4*(n%24),4)}, {v(vP1)}, s[8:11], s46 offen{LD}"))
                return
            if n == 28:
                k(f"s_add_u32 s{sHP}, s{sHP}, {112*1024}")
            if kp % 7 == 0:
                quarter(46, kp // 7, 7168, sHP)
            if kp % 7 == 4:
                k("s_add_u32 s46, s46, 4096")
            hl.append(vm.op(f"buffer_load_dwordx4 {a(aQ+4*(n%24),4)}, {v(vL16)}, s[8:11], s46 offen offset:{(kp%7%4)*1024}{LD}"))

        vF, vAcc, LOOK = 32, 128, 4
        accreg = {0: vAcc, 2: vAcc + 32, 1: vAcc + 64, 3: vAcc + 96}

        def rd4(u):
            kp, b = uses[u]
            k(f"ds_read_b128 {v(vF+4*(u%6),4)}, {v(vL16 if b < 2 else vB1)} offset:{(b&1)*28672+kp*1024}")

        last_st = [None]

        def hp_store(b, u):
            vo, off = vL16, u * 1024
            if ALIASB and b == (1 if ALIASB == 1 else 0):
                vo, off = vPA, 0
                if u == 0:
                    k(f"s_lshl_b32 s38, s{sFB}, 15")
                    k(f"s_add_u32 s38, s38, s{sAB}")
                else:
                    k("s_add_u32 s38, s38, 16384")
            elif ALIASB and b == 3:
                if u == 0:
                    k(f"s_lshl_b32 s38, s{sFB}, 11")
                    k(f"s_add_u32 s38, s38, s{sAB+1}")
            elif ALIASB == 3:
                if u == 0:
                    k(f"s_lshl_b32 s38, s{sFB}, 11")
                    k(f"s_add_u32 s38, s38, s{sAB+1}")
                    k(f"s_sub_u32 s38, s38, {HC - (WT if b == 1 else AT)}")
            elif u == 0:
                k(f"s_add_u32 s38, s{sHS}, {b*112*1024}")
            last_st[0] = store2(f"buffer_store_dwordx4 {v(accreg[b]+4*u,4)}, {v(vo)}, s[8:11], s38 offen offset:{off}" + (" sc1" if MA and b % 2 == 0 and not mode[0] else ""))

        def epilogue(ps):
            items = [(b, r) for b in (ps, ps + 2) for r in range(8)]
            out = []
            for i in range(len(items) + 1):
                grp = []
                if i < len(items):
                    b, r = items[i]
                    g_, u_ = accreg[b], accreg[b] + 16
                    grp += [f"v_mul_f32 {v(u_+2*r)}, {v(g_+2*r)}, {v(u_+2*r)}",
                            f"v_mul_f32 {v(u_+2*r+1)}, {v(g_+2*r+1)}, {v(u_+2*r+1)}"]
                if i > 0:
                    b, r = items[i - 1]
                    g_, u_ = accreg[b], accreg[b] + 16
                    grp.append(f"v_cvt_pk_bf16_f32 {v(g_+r)}, {v(u_+2*r)}, {v(u_+2*r+1)}")
                out.append(grp)
                if i > 0 and items[i - 1][1] % 4 == 3:
                    out.append(lambda b=items[i - 1][0], u=items[i - 1][1] // 4: hp_store(b, u))
            return out

        def put(q, cnt=1):
            for _ in range(cnt):
                if q:
                    e = q.pop(0)
                    if callable(e):
                        e()
                    else:
                        for t_ in e:
                            k(t_)

        chunks = eval(os.environ.get("CHUNKS", "{0: 2, 3: 6, 7: 15, 16: 27}"))
        for _ in range(NDMA0):
            dma()
        k("ds_read2st64_b32 v[12:13], v7 offset1:1")
        k("ds_read2st64_b32 v[14:15], v7 offset0:2 offset1:3")
        k(f"s_lshl_b32 s47, s{sCT}, 8")
        k(f"s_add_u32 s47, s47, s{sSS}")
        k("s_waitcnt lgkmcnt(0)")
        k("v_add_f32 v12, v12, v13")
        k("v_add_f32 v14, v14, v15")
        k("v_add_f32 v12, v12, v14")
        store2(f"buffer_store_dword v12, {v(vL4)}, s[8:11], s47 offen")
        vm.wait(D[chunks[0]])
        k("s_barrier")
        k.stamp()
        for u in range(LOOK):
            rd4(u)
        todo = [(i - 30, "d") for i in range(NDMA0, 28)]
        todo += [(first_use[i // 2] - 14 + 0.01 * i, "w") for i in range(wn[0], 56)]
        todo = [o for _, o in sorted(todo)]
        epi = epilogue(0)
        checked = False
        for u in range(112):
            kp, b = uses[u]
            if (u + LOOK) % 4 == 0 and (u + LOOK) // 4 in chunks:
                vm.wait(D[chunks[(u + LOOK) // 4]])
                k("s_barrier")
            if u == first_use[kp] and 2 * kp + 1 >= sum(NW):
                vm.wait(wid[2 * kp + 1])
            if u == uB + DRAIN_A:
                assert not epi
                vm.wait(last_st[0])
                arrive(256)
            if u == uB + POLL_A:
                markA = poll_issue(256)
            if u == uB + CHECK_A:
                poll(256, markA)
                checked = True
            if u % 2 == 0:
                k(f"s_waitcnt lgkmcnt({min(LOOK - 2, 110 - u)})")
            for m in range(2):
                acc = accreg[b] + 16 * m
                c = "0" if kp == 0 else v(acc, 16)
                k(f"v_mfma_f32_32x32x16_bf16 {v(acc,16)}, {a(8*kp+4*m,4)}, {v(vF+4*(u%6),4)}, {c}")
                if m == 0:
                    if u + LOOK < 112:
                        rd4(u + LOOK)
                    if u >= uB + 1:
                        put(epi)
                else:
                    if u >= uB + 1 and EPI_A == 2:
                        put(epi)
                    if todo:
                        dma() if todo.pop(0) == "d" else wload()
                    elif checked and len(hl) < RING and last_use[16 + len(hl) // 2] < u:
                        hload()
                    elif wdn[0] < 56 and wd_regs[wdn[0] // 2][0] <= u:
                        wdload()
            if u in P4ST:
                k.stamp(1)
            if u == uB - 1 or u == 111:
                k.stamp()
        assert len(D) == 28 and wn[0] == 56
        print("after P4: down loads issued", wdn[0], "h loads", len(hl), file=sys.stderr)
        vRW, vRR, vR2, vHR, vSP = 12, 20, 22, 24, 56
        vAc5, vT5 = 128, 192
        fill = epilogue(1)
        if not checked:
            assert EPI_B0 <= 14
            put(fill, EPI_B0)
            poll(256, markA)
        while fill:
            if len(hl) < 8:
                hload()
            put(fill, 2)
        fill = [["v_and_b32 v6, 31, v1", "v_lshrrev_b32 v7, 5, v1", "v_and_b32 v8, 7, v1", "v_lshl_or_b32 v7, v7, 3, v8"],
                [f"s_lshl_b32 s26, s{sW}, 13", "v_lshlrev_b32 v7, 4, v7", "v_lshl_add_u32 v7, v6, 8, v7", f"v_add_u32 {v(vRW)}, s26, v7"],
                [f"v_xor_b32 {v(vRW+i)}, {16*i}, {v(vRW)}" for i in range(1, 5)],
                [f"v_xor_b32 {v(vRW+i)}, {16*i}, {v(vRW)}" for i in range(5, 8)],
                ["v_lshrrev_b32 v6, 3, v1", f"s_and_b32 s26, s{sW}, 1", "s_lshl_b32 s26, s26, 2", f"v_xor_b32 v7, v8, {v(vG)}",
                 "v_xor_b32 v7, s26, v7"],
                ["v_lshlrev_b32 v7, 1, v7", "v_xor_b32 v7, v7, v6", f"s_lshl_b32 s26, s{sW}, 11", "v_lshlrev_b32 v7, 4, v7"],
                ["v_lshl_add_u32 v7, v6, 8, v7", f"v_add_u32 {v(vRR)}, s26, v7", f"v_xor_b32 {v(vRR+1)}, 16, {v(vRR)}"],
                [f"s_lshl_b32 s26, s{sW}, 10", f"s_add_u32 s26, s26, {XT}", f"v_add_u32 {v(vHR)}, s26, {v(vL16)}",
                 f"s_lshl_b32 s26, s{sW}, 5", "v_lshl_add_u32 v9, v6, 2, s26"]]
        ssl = []

        def ssload(i):
            for j in range(2 * i, min(2 * i + 2, 7)):
                ssl.append(vm.op(f"buffer_load_dword {v(vSP+j)}, {v(vL4)}, s[8:11], s{sSS} offen offset:{256*j}{LD}"))

        fill += [lambda i=i: ssload(i) for i in range(4)]
        r2calc = [[f"v_add_f32 {v(vSP)}, {v(vSP)}, {v(vSP+1)}", f"v_add_f32 {v(vSP+2)}, {v(vSP+2)}, {v(vSP+3)}",
                   f"v_add_f32 {v(vSP+4)}, {v(vSP+4)}, {v(vSP+5)}", f"v_add_f32 {v(vSP)}, {v(vSP)}, {v(vSP+6)}"],
                  [f"v_add_f32 {v(vSP+2)}, {v(vSP+2)}, {v(vSP+4)}", f"v_mov_b32 {v(vSP+1)}, {f2u(EPS)}",
                   f"v_add_f32 {v(vSP)}, {v(vSP)}, {v(vSP+2)}", f"v_fmac_f32 {v(vSP+1)}, {f2u(1.0/448)}, {v(vSP)}"],
                  [f"v_rcp_f32 {v(vSP)}, {v(vSP+1)}", "v_add_u32 v8, 128, v9"],
                  [f"ds_bpermute_b32 {v(vR2)}, v9, {v(vSP)}", f"ds_bpermute_b32 {v(vR2+1)}, v8, {v(vSP)}"]]

        def red_write(p):
            base = vAc5 + 32 * p
            q_ = []
            for db in range(2):
                b_ = base + 16 * db
                q_.append([f"v_swap_b32 {v(b_+4*i+j)}, {v(b_+4*j+i)}" for i, j in ((0, 1), (0, 2), (0, 3))])
                q_.append([f"ds_write_b128 {v(vRW+db)}, {v(b_,4)} offset:{p*32768}",
                           f"v_swap_b32 {v(b_+6)}, {v(b_+9)}", f"v_swap_b32 {v(b_+7)}, {v(b_+13)}"])
                q_.append([f"ds_write_b128 {v(vRW+2+db)}, {v(b_+4,4)} offset:{p*32768}", f"v_swap_b32 {v(b_+11)}, {v(b_+14)}"])
                q_.append([f"ds_write_b128 {v(vRW+4+db)}, {v(b_+8,4)} offset:{p*32768}"])
                q_.append([f"ds_write_b128 {v(vRW+6+db)}, {v(b_+12,4)} offset:{p*32768}"])
            q_.append([f"ds_read_b128 {v(vT5+32,4)}, {v(vHR)} offset:{p*4096}"])
            return q_

        def red_read(p):
            q_ = [["s_waitcnt lgkmcnt(0)", "s_barrier"] +
                  [f"ds_read_b128 {v(vT5+4*z,4)}, {v(vRR+z)} offset:{p*32768}" for z in range(2)]]
            for j in range(1, 4):
                q_.append([f"ds_read_b128 {v(vT5+8*j+4*z,4)}, {v(vRR+z)} offset:{p*32768+j*8192}" for z in range(2)])
            for h2 in range(2):
                q_.append([t_ for q in (2 * h2, 2 * h2 + 1) for t_ in
                           (f"v_lshlrev_b32 {v(vT5+36+2*q)}, 16, {v(vT5+32+q)}",
                            f"v_and_b32 {v(vT5+37+2*q)}, 0xffff0000, {v(vT5+32+q)}")])
            for j, (d_, s_) in enumerate(((0, 8), (16, 24), (0, 16))):
                for h2 in range(2):
                    q_.append(([f"s_waitcnt lgkmcnt({4 if j == 0 else 0})"] if h2 == 0 and j < 2 else []) +
                              [f"v_add_f32 {v(vT5+d_+r)}, {v(vT5+d_+r)}, {v(vT5+s_+r)}" for r in range(4 * h2, 4 * h2 + 4)])
            for h2 in range(2):
                q_.append([f"v_fmac_f32 {v(vT5+36+r)}, {v(vT5+r)}, {v(vR2+p)}" for r in range(4 * h2, 4 * h2 + 4)])
            q_.append([f"v_cvt_pk_bf16_f32 {v(vT5+8+q)}, {v(vT5+36+2*q)}, {v(vT5+37+2*q)}" for q in range(4)])
            q_.append(lambda: vm.op(f"buffer_store_dwordx4 {v(vT5+8,4)}, {v(vXO)}, s[16:19], s{sXO+p} offen{SCO}"))
            return q_

        if P5ST:
            k.stamp(1)
        for n in range(56):
            p, kp = n // 28, n % 28
            if n == DRAIN_B:
                vm.wait(last_st[0])
                arrive(512)
            if n == POLL_B:
                markB = poll_issue(512)
            if n == CHECK_B:
                k.stamp()
                poll(512, markB)
                k.stamp()
            if n == 22:
                vm.wait(ssl[6])
                fill += r2calc
            if n == LATE and 3072 in WBL:
                k(f"s_add_u32 s47, s{sFI}, 16384")
                vm.op(f"buffer_store_dword {v(vOne)}, off, s[8:11], s47{mode[0]}")
            if n == 28:
                assert not fill
                fill = red_write(0)
                while fill:
                    if len(hl) < 28 + RING1:
                        hload()
                    put(fill, 2)
            if n == RED0:
                fill = red_read(0)
            vm.wait(max(hl[n], wd_id[kp]))
            for dl in range(2):
                acc = vAc5 + 32 * p + 16 * dl
                c = "0" if kp == 0 else v(acc, 16)
                k(f"v_mfma_f32_32x32x16_bf16 {v(acc,16)}, {wdreg(kp,dl)}, {a(aQ+4*(n%24),4)}, {c}")
                if dl == 1 and wdn[0] < 56:
                    wdload()
                if dl == 0:
                    if len(hl) < (28 if n < CHECK_B else 56) and len(hl) < n + 24:
                        hload()
                    else:
                        put(fill)
                if dl == 1:
                    put(fill)
            if n in P5ST:
                k.stamp(1)
        k.stamp()
        put(fill, 99)
        put(red_write(1), 99)
        put(red_read(1), 99)
        if k.prof:
            k("s_waitcnt vmcnt(0)")
        k.stamp_flush(6, PROF + (1 << 20), sW, nst)
        k("s_endpgm")

    SLOWL = k.lab("slow")
    k(f"s_branch {SLOWL}")
    k.label(FAST)
    mode[0] = ""
    rest()
    k.label("k3_code_end")
    k.label(SLOWL)
    mode[0] = " sc1"
    vm.n, wn[0], wid[:], k._seq = state
    rest()
    k.label(END)
    k("s_endpgm")
    for o in outline:
        k(o)
    if SPARE:
        k.label(PFL)
        k(f"s_cmp_ge_u32 s2, {K3_WGS}")
        k(f"s_cbranch_scc1 {END}")
        k("s_load_dwordx2 s[6:7], s[0:1], 72")
        k("v_lshrrev_b32 v2, 6, v0")
        k("v_and_b32 v1, 63, v0")
        k("v_readfirstlane_b32 s20, v2")
        k("v_lshlrev_b32 v3, 7, v1")
        k("s_bfe_u32 s21, s2, 0x20003")
        k("s_lshl2_add_u32 s21, s21, s20")
        k("s_waitcnt lgkmcnt(0)")
        k.srd_off(8, 6, WSB, WS_BYTES)
        n = 0
        if SP_HP:
            k("s_and_b32 s24, s2, 7")
            k(f"s_mul_i32 s24, s24, {8*112*1024}")
            k(f"s_add_u32 s24, s24, {HP}")
            for blk in SP_HP:
                for i in range(2):
                    k(f"s_add_u32 s22, s21, {16*i}")
                    k("s_min_u32 s22, s22, 27")
                    k("s_cmp_ge_u32 s22, 14")
                    k(f"s_cselect_b32 s23, {4*112*1024 - 14*8192}, 0")
                    k("s_lshl_b32 s22, s22, 13")
                    k("s_add_u32 s22, s22, s23")
                    k("s_add_u32 s22, s22, s24")
                    k(f"s_add_u32 s22, s22, {blk*112*1024}")
                    k(f"buffer_load_dword v{8+n}, v3, s[8:11], s22 offen")
                    n += 1
        for base, nsl, units in ((WS, 56, SP_WS), (WD, 28, range(7))):
            for un in units:
                for i in range(-(-nsl // 16)):
                    k(f"s_add_u32 s22, s21, {16*i}")
                    k(f"s_min_u32 s22, s22, {nsl-1}")
                    k("s_mul_i32 s22, s22, 57344")
                    k(f"s_add_u32 s22, s22, {base + un*8192}")
                    k(f"buffer_load_dword v{8+n}, v3, s[8:11], s22 offen")
                    n += 1
        if WBL:
            k("s_cmp_lg_u32 s21, 0")
            k(f"s_cbranch_scc1 {END}")
            k("v_lshlrev_b32 v3, 2, v1")
            k("v_min_u32 v3, 220, v3")
            k("s_and_b32 s22, s2, 7")
            k("s_lshl_b32 s22, s22, 11")
            k(f"s_add_u32 s22, s22, {FL}")
            k(f"s_mov_b32 s23, {SPIN_MAX}")
            for off in WBL:
                lp, dn_ = k.lab("wl"), k.lab("wd")
                if off == 3072:
                    k("s_add_u32 s22, s22, 16384")
                    off = 0
                k.label(lp)
                k(f"buffer_load_dword v4, v3, s[8:11], s22 offen offset:{off} sc1")
                k(f"buffer_load_dword v5, v3, s[8:11], s22 offen offset:{off+1024} sc1")
                k("s_sub_u32 s23, s23, 1")
                k("s_waitcnt vmcnt(0)")
                k("s_cmp_eq_u32 s23, 0")
                k(f"s_cbranch_scc1 {END}")
                k("v_and_b32 v4, v4, v5")
                k("v_cmp_eq_u32 vcc, 0, v4")
                k("s_sleep 2")
                k(f"s_cbranch_vccnz {lp}")
                k("buffer_wbl2 sc1")
                k("s_waitcnt vmcnt(0)")
        k("s_endpgm")
    return k
```

```python
import os
import sys
from asmlib import Kern, v, a, s
from gen import *

XT = 114688
R2 = 122880
FF = 65536
K3_LDS = 123904
SPIN_MAX = 1 << 18
E = lambda n, d: int(os.environ.get(n, d))
NW = [int(x) for x in os.environ.get("NW", "8,8,0,8,0").split(",")]
KS = E("KS", 4)
EPI_A = E("EPI_A", 2)
DRAIN_A = E("DRAIN_A", 34)
POLL_A = E("POLL_A", 46)
CHECK_A = E("CHECK_A", 99)
DRAIN_B = E("DRAIN_B", 13)
POLL_B = E("POLL_B", 21)
CHECK_B = E("CHECK_B", 26)
NDMA0 = E("NDMA0", 7)
ROTB = E("ROTB", 1)
ROTW = E("ROTW", 0)
ROTD = E("ROTD", 0)
SPARE = E("SPARE", 1)
TOUCH = E("TOUCH", 0)
SP_WS = eval(os.environ.get("SP_WS", "(2,3,4,5,6)"))
WBL = eval(os.environ.get("WBL", "(0, 3072)"))
LATE = E("LATE", 46)
SCO = os.environ.get("SCO", " sc1")
EPI_B0 = E("EPI_B0", 10)
RING1 = E("RING1", 8)
RED0 = E("RED0", 31)
MA = E("MA", 1)
TLBW = E("TLBW", 0)
HPT = E("HPT", 0)
ALIASB = E("ALIASB", 1)
RING = E("RING", 12)
LD = os.environ.get("LD", "")
P4ST = eval(os.environ.get("P4ST", "()"))
P5ST = eval(os.environ.get("P5ST", "()"))
K3_WGS = 256 if SPARE else 224
SSP = 0x1502000


class VM:
    def __init__(self, k):
        self.k, self.n = k, 0

    def op(self, text):
        self.k(text)
        self.n += 1
        return self.n - 1

    def wait(self, idx, extra=""):
        self.k(f"s_waitcnt vmcnt({self.n - idx - 1}){extra}")


def gen_k3():
    k = Kern("k3_kernel", 0, 0)
    vm = VM(k)
    END = k.lab("end")
    sW, sRB, sCT, sHALF, sRT, sFB = 20, 21, 22, 23, 24, 25
    sFL, sFI, sXC = 33, 39, 40
    vL4, vOne, vLP = 30, 2, 0

    mode = [""]

    def store2(text):
        return vm.op(text + mode[0])

    def arrive(off):
        vm.op(f"buffer_store_dword {v(vOne)}, off, s[8:11], s{sFI} offset:{off}{mode[0]}")

    def poll_issue(off):
        return vm.op(f"buffer_load_dword v31, {v(vLP)}, s[8:11], s{sFL} offen offset:{off} sc1")

    outline = []

    def poll(off, mark):
        loop, done = k.lab("poll"), k.lab("done")
        vm.wait(mark)
        k("v_cmp_eq_u32 vcc, 0, v31")
        k(f"s_mov_b32 s50, {SPIN_MAX}")
        k(f"s_cbranch_vccnz {loop}")
        k.label(done)
        outline.append(f"""{loop}:
        buffer_load_dword v31, {v(vLP)}, s[8:11], s{sFL} offen offset:{off} sc1
        s_sub_u32 s50, s50, 1
        s_waitcnt vmcnt(0)
        s_cmp_eq_u32 s50, 0
        s_cbranch_scc1 {done}
        v_cmp_eq_u32 vcc, 0, v31
        s_nop 0
        s_cbranch_vccnz {loop}
        s_branch {done}""")

    PFL = k.lab("pf")
    k("s_cmp_ge_u32 s2, 224")
    k(f"s_cbranch_scc1 {PFL if SPARE else END}")
    k.stamp()
    k("s_load_dwordx2 s[6:7], s[0:1], 72")
    k("s_load_dwordx2 s[4:5], s[0:1], 0")
    k("s_load_dwordx2 s[44:45], s[0:1], 56")
    k("v_lshrrev_b32 v2, 6, v0")
    k("v_and_b32 v1, 63, v0")
    k(f"v_readfirstlane_b32 s{sW}, v2")
    k("s_lshr_b32 s26, s2, 3")
    div7(k, 27, 26)
    if os.environ.get("MAP", "A") == "A":
        k("s_and_b32 s28, s2, 7")
        k(f"s_lshl2_add_u32 s{sRT}, s28, s27")
        k(f"s_and_b32 s{sHALF}, s27, 1")
        k(f"s_lshr_b32 s{sRB}, s{sRT}, 1")
    else:
        k("s_bfe_u32 s28, s2, 0x20001")
        k(f"s_lshl2_add_u32 s{sRB}, s28, s27")
        k(f"s_and_b32 s{sHALF}, s2, 1")
        k(f"s_lshl1_add_u32 s{sRT}, s{sRB}, s{sHALF}")
    k("s_mul_i32 s28, s27, 7")
    k(f"s_sub_u32 s{sCT}, s26, s28")
    vL16, vG, vC = 3, 4, 5
    k(f"v_lshrrev_b32 {v(vG)}, 4, v1")
    k(f"v_and_b32 v6, 1, {v(vG)}")
    k(f"s_and_b32 s29, s{sW}, 1")
    k("s_lshl_b32 s29, s29, 2")
    k("v_lshl_or_b32 v6, v6, 1, s29")
    k("v_and_b32 v7, 7, v1")
    k("v_xor_b32 v6, v6, v7")
    k("v_lshrrev_b32 v8, 3, v1")
    k("v_lshlrev_b32 v9, 12, v8")
    k("v_lshl_add_u32 v6, v6, 4, v9")
    k(f"s_lshl_b32 s28, s{sW}, 15")
    k(f"s_lshl_b32 s27, s{sRT}, 7")
    k("s_add_u32 s26, s28, s27")
    k(f"s_add_u32 s26, s26, {BT}")
    k("s_sub_u32 s48, s27, s28")
    k(f"s_add_u32 s48, s48, {BT + 438*4096}")
    k(f"s_lshl_b32 s27, s{sW}, 10")
    k(f"s_bitcmp1_b32 s{sCT}, 0") if ROTB else k("s_cmp_lg_u32 0, 0")
    k("s_cselect_b32 s49, s26, s48")
    k("s_cselect_b32 s26, s48, s26")
    k("s_cselect_b32 s48, 0xfffe0000, 0x20000".replace("0xfffe0000, 0x20000", "s48, s48")) if False else None
    k("s_cselect_b32 s51, 0x6000, 0")
    k("s_cselect_b32 s52, 28672, 0")
    k("s_mov_b32 s48, 0x20000")
    k("s_cselect_b32 s48, 0xfffe0000, s48")
    k("v_xor_b32 v6, s51, v6")
    k("s_add_u32 m0, s27, s52")
    k("s_waitcnt lgkmcnt(0)")
    k.srd_off(8, 6, WSB, WS_BYTES)
    saved, k.lines = k.lines, []
    k(f"v_and_b32 {v(vC)}, 15, v1")
    vGm = 32
    vB, vST, vE, vT = 14, 15, 15, 20
    k(f"s_lshl_b32 s46, s{sCT}, 6")
    k(f"s_lshl_b32 s47, s{sW}, 4")
    k("s_add_u32 s46, s46, s47")
    k(f"v_add_u32 v27, s46, {v(vC)}")
    k("v_cvt_f32_u32 v27, v27")
    for p in range(1, 4):
        k(f"v_mul_f32 {v(vE+p)}, {f2u(p/448.0)}, v27")
    k(f"v_mul_f32 {v(vST)}, {f2u(16.0/448)}, v27")
    k(f"v_fract_f32 {v(vST)}, {v(vST)}")
    k(f"v_lshl_add_u32 v19, {v(vG)}, 2, 1")
    k("v_cvt_f32_u32 v19, v19")
    k(f"v_mul_f32 {v(vB)}, v19, {v(vE+1)}")
    k(f"v_fract_f32 {v(vB)}, {v(vB)}")
    for t in range(7):
        k(f"v_cos_f32 {v(vT+4)}, {v(vB)}")
        k(f"v_sin_f32 {v(vT)}, {v(vB)}")
        for p in range(1, 4):
            k(f"v_add_f32 {v(vT+p)}, {v(vB)}, {v(vE+p)}")
        if t < 6:
            k(f"v_add_f32 {v(vB)}, {v(vB)}, {v(vST)}")
            k(f"v_fract_f32 {v(vB)}, {v(vB)}")
        for p in range(1, 4):
            k(f"v_cos_f32 {v(vT+4+p)}, {v(vT+p)}")
            k(f"v_sin_f32 {v(vT+p)}, {v(vT+p)}")
        for p in range(4):
            k(f"v_cvt_pk_bf16_f32 {v(vGm+4*t+p)}, {v(vT+4+p)}, -{v(vT+p)}")
    gen_lines, k.lines = k.lines, []
    def nyq(first):
        k(f"s_cmp_eq_u32 s{sW}, 3")
        k(f"s_cselect_b32 s28, {224*4096 >> 6}, 0")
        k("s_cmp_lg_u32 s51, 0" if first else "s_cmp_eq_u32 s51, 0")
        k("s_cselect_b32 s28, s28, 0")
        k("v_add_u32 v9, 16, v1")
        k("v_and_b32 v9, 64, v9")
        k("v_mad_u32_u24 v9, v9, s28, v6")

    for hf in range(2):
        for t in range(7):
            if t == 6:
                nyq(hf == 0)
            vm.op(f"buffer_load_dwordx4 v{9 if t == 6 else 6}, s[8:11], s{26 if hf == 0 else 49} offen lds")
            if t < 6:
                k("s_add_u32 m0, m0, 4096")
                k("s_add_u32 s26, s26, s48" if hf == 0 else "s_sub_u32 s49, s49, s48")
        if hf == 0:
            k("s_sub_u32 s52, 28672, s52")
            k("s_add_u32 m0, s27, s52")
            k("v_xor_b32 v6, 0x6000, v6")
    vXO = 10
    k.srd(12, 4, XB)
    k("v_lshrrev_b32 v9, 5, v1")
    k("v_and_b32 v8, 3, v8")
    k("v_lshl_add_u32 v8, v9, 4, v8")
    k("v_mul_u32_u24 v8, 0x380, v8")
    k(f"v_xor_b32 v7, v7, {v(vG)}")
    k("v_xor_b32 v7, s29, v7")
    k(f"v_lshl_add_u32 {v(vXO)}, v7, 4, v8")
    sSB, sXO = 29, 30
    k(f"s_lshr_b32 s26, s{sRT}, 3")
    k("s_lshl_b32 s26, s26, 9")
    k(f"s_lshl_b32 s28, s{sHALF}, 8")
    k("s_add_u32 s26, s26, s28")
    k(f"s_and_b32 s28, s{sRB}, 3")
    k(f"s_lshl2_add_u32 s{sSB}, s28, s26")
    k(f"s_lshl_b32 s26, s{sW}, 5")
    k(f"s_add_u32 s26, s26, s{sSB}")
    k("s_mul_i32 s26, s26, 896")
    k(f"s_lshl_b32 s28, s{sCT}, 7")
    k(f"s_add_u32 s{sXO}, s26, s28")
    k(f"s_add_u32 s{sXO+1}, s{sXO}, {128*896}")
    k(f"s_add_u32 m0, s27, {XT}")
    vm.op(f"buffer_load_dwordx4 {v(vXO)}, s[12:15], s{sXO} offen lds")
    k(f"s_add_u32 m0, s27, {XT+4096}")
    vm.op(f"buffer_load_dwordx4 {v(vXO)}, s[12:15], s{sXO+1} offen lds")
    vM = 12
    k("v_bfe_u32 v7, v1, 3, 2")
    k("v_bfe_u32 v8, v1, 2, 1")
    k("v_lshlrev_b32 v8, 4, v8")
    k("v_lshl_add_u32 v7, v7, 5, v8")
    k("v_and_b32 v8, 3, v1")
    k("v_add_lshl_u32 v7, v7, v8, 2")
    k(f"s_lshl_b32 s26, s{sSB}, 2")
    k(f"s_add_u32 s26, s26, {M1}")
    vm.op(f"buffer_load_dword {v(vM)}, v7, s[8:11], s26 offen")
    p3_loads = vm.op(f"buffer_load_dword {v(vM+1)}, v7, s[8:11], s26 offen offset:512")
    k(f"s_lshl_b32 s{sFL}, s{sRB}, 10")
    k(f"s_add_u32 s{sFL}, s{sFL}, {FL}")
    k(f"s_getreg_b32 s{sXC}, hwreg(HW_REG_XCC_ID, 0, 4)")
    NOC = k.lab("noc")
    k(f"s_cmp_lg_u32 s{sW}, 0")
    k(f"s_cbranch_scc1 {NOC}")
    k(f"s_lshl_b32 s26, s{sXC}, 2")
    k("s_lshl_b32 s26, 1, s26")
    k(f"s_lshr_b32 s28, s{sXC}, 3")
    k(f"s_lshl2_add_u32 s28, s28, s{sFL}")
    k("s_mov_b64 exec, 1")
    k("v_mov_b32 v31, s26")
    k("buffer_atomic_add v31, off, s[8:11], s28 offset:768 sc1")
    k("s_mov_b64 exec, -1")
    k.label(NOC)
    k.stamp()
    k(f"v_lshlrev_b32 {v(vL16)}, 4, v1")
    k(f"v_lshlrev_b32 {v(vL4)}, 2, v1")
    k(f"v_mov_b32 {v(vOne)}, 1")
    k(f"s_mul_i32 s28, s{sHALF}, 7")
    k(f"s_add_u32 s28, s28, s{sCT}")
    k(f"s_lshl2_add_u32 s{sFB}, s28, s{sW}")
    k(f"s_lshl2_add_u32 s{sFI}, s{sFB}, s{sFL}")
    k(f"v_min_u32 {v(vLP)}, 220, {v(vL4)}")
    sWS = 32
    k(f"s_mul_i32 s{sWS}, s{sW if os.environ.get('FAKEW') else sFB}, 57344")
    k(f"s_add_u32 s{sWS}, s{sWS}, {WS}")
    sRH = 56
    k(f"s_and_b32 s{sRH}, s{sRB}, {ROTW}")
    k(f"s_mul_i32 s{sRH}, s{sRH}, 14336")
    k(f"s_lshl1_add_u32 s{sWS}, s{sRH}, s{sWS}")
    wn = [0]
    wid = []

    def wload(cnt=1):
        for _ in range(cnt):
            n = wn[0]
            wn[0] += 1
            wid.append(vm.op(f"buffer_load_dwordx4 {a(4*n,4)}, {v(vL16)}, s[8:11], s{sWS} offen offset:{(n%4)*1024}"))
            if n % 4 == 3:
                k(f"s_add_u32 s{sWS}, s{sWS}, 4096")
            if n == 27:
                k(f"s_lshl_b32 s57, s{sRH}, 2")
                k(f"s_sub_u32 s{sWS}, s{sWS}, s57")

    k.srd(16, 44, XB)
    if TLBW:
        k(f"v_lshlrev_b32 v60, {TLBW}, v1")
        k(f"s_mov_b32 s57, {HC if TLBW == 18 else HP}")
        vm.op("buffer_load_dword v61, v60, s[8:11], s57 offen")
        k("v_lshlrev_b32 v60, 15, v1")
        vm.op("buffer_load_dword v64, v60, s[16:19], 0 offen")
    if HPT:
        k("v_lshrrev_b32 v60, 4, v1")
        k(f"v_mul_u32_u24 v60, {112*1024}, v60")
        k("v_and_b32 v65, 15, v1")
        k("v_lshl_add_u32 v60, v65, 7, v60")
        k(f"s_mul_i32 s57, s{sRB}, {4*112}")
        k(f"s_lshl1_add_u32 s57, s{sFB}, s57")
        k("s_lshl_b32 s57, s57, 10")
        k(f"s_add_u32 s57, s57, {HP}")
        vm.op("buffer_load_dword v65, v60, s[8:11], s57 offen sc1")
    load_lines, k.lines = k.lines, saved
    per = -(-len(gen_lines) // 15)
    branchy = False
    for t_ in load_lines:
        k(t_)
        if t_.startswith("buffer_load") and gen_lines:
            for _ in range(min(per, len(gen_lines))):
                k(gen_lines.pop(0))
    for t_ in gen_lines:
        k(t_)
    vTB = 14
    k("v_bfe_u32 v7, v1, 2, 2")
    k(f"v_lshlrev_b32 v8, 10, {v(vG)}")
    k("v_lshl_add_u32 v8, v7, 7, v8")
    k("v_and_b32 v9, 3, v1")
    k("v_lshl_add_u32 v8, v9, 3, v8")
    k("v_lshrrev_b32 v7, 1, v7")
    k(f"v_and_b32 v9, 1, {v(vG)}")
    k("v_lshl_add_u32 v7, v9, 1, v7")
    k(f"v_lshl_add_u32 {v(vTB)}, v7, 5, v8")
    for nb in range(1, 4):
        k(f"v_xor_b32 {v(vTB+nb)}, {32*nb}, {v(vTB)}")
    vXA = 18
    k("v_lshrrev_b32 v7, 5, v1")
    k(f"s_lshl_b32 s26, s{sW}, 1")
    k("v_or_b32 v7, s26, v7")
    k("v_bfe_u32 v8, v1, 1, 3")
    k("v_xor_b32 v7, v7, v8")
    k("v_and_b32 v8, 31, v1")
    k("v_lshlrev_b32 v8, 7, v8")
    k("v_lshl_add_u32 v7, v7, 4, v8")
    k(f"v_add_u32 {v(vXA)}, {XT}, v7")
    k.stamp()
    if TOUCH:
        k(f"s_and_b32 s57, s{sRB}, 1")
        k("s_lshl_b32 s57, s57, 13")
        k(f"s_add_u32 s57, s57, s{sWS}")
        k("s_add_u32 s57, s57, 16384")
        k("v_lshlrev_b32 v62, 7, v1")
        wload(NW[0])
        vm.op("buffer_load_dword v63, v62, s[8:11], s57 offen")
    else:
        wload(NW[0])
    vm.wait(p3_loads)
    k("s_barrier")
    census = vm.op(f"buffer_load_dwordx2 v[28:29], off, s[8:11], s{sFL} offset:768 sc1")
    k.stamp()
    vR, vA = 88, 120
    seq = [(t, nb) for t in range(14) for nb in range(4)]

    def rd(n):
        t, nb = seq[n]
        for u in range(2):
            k(f"ds_read_b64_tr_b16 {v(vR+4*(n%8)+2*u,2)}, {v(vTB+nb)} offset:{t*4096+u*512}")

    DEPTH = 6
    for n in range(DEPTH):
        rd(n)
    done_in = 0
    for n in range(56):
        t, nb = seq[n]
        k(f"s_waitcnt lgkmcnt({2*min(DEPTH-1, 55-n)})")
        acc = vA + 16 * (t // 7) + 4 * nb
        c = "0" if t % 7 == 0 else v(acc, 4)
        k(f"v_mfma_f32_16x16x32_bf16 {v(acc,4)}, {v(vGm+4*(t%7),4)}, {v(vR+4*(n%8),4)}, {c}")
        if n == 32:
            k("s_mov_b32 exec_lo, 0")
            k("s_mov_b32 exec_hi, 0xffff0000")
            k(f"v_mov_b32 {v(vGm+27)}, 0x3f80")
            k("s_mov_b64 exec, -1")
        if n + DEPTH < 56:
            rd(n + DEPTH)
        if (n + 1) * NW[1] // 56 > done_in:
            wload()
            done_in += 1
    vX = 20
    k(f"ds_read_b128 {v(vX,4)}, {v(vXA)}")
    k(f"ds_read_b128 {v(vX+4,4)}, {v(vXA)} offset:4096")
    k(f"s_mul_i32 s26, s{sRT}, 56")
    k(f"s_lshl2_add_u32 s27, s{sCT}, s{sW}")
    k("s_add_u32 s26, s26, s27")
    k("s_lshl_b32 s26, s26, 10")
    k(f"s_add_u32 s26, s26, {HC}")
    k(f"s_add_u32 s27, s26, {28*1024}")
    CL, CD, FAST = k.lab("cl"), k.lab("cd"), k.lab("fast")
    k(f"s_mov_b32 s50, {SPIN_MAX}")
    vm.wait(census)
    k.label(CL)
    k("v_readfirstlane_b32 s52, v28")
    k("v_readfirstlane_b32 s53, v29")
    k(f"s_cmp_ge_u32 s{sXC}, 8")
    k("s_cselect_b32 s54, s53, s52")
    k(f"s_lshl_b32 s55, s{sXC}, 2")
    k("s_lshr_b32 s54, s54, s55")
    k("s_and_b32 s54, s54, 15")
    k(f"s_cmp_eq_u32 s54, {14 if not os.environ.get('SLOW') else 15}")
    k(f"s_cbranch_scc1 {FAST}")
    for r in (52, 53):
        k(f"s_lshr_b32 s54, s{r}, 4")
        k("s_and_b32 s54, s54, 0x0f0f0f0f")
        k(f"s_and_b32 s{r}, s{r}, 0x0f0f0f0f")
        k(f"s_add_u32 s{r}, s{r}, s54")
    k("s_add_u32 s52, s52, s53")
    k("s_mul_i32 s52, s52, 0x01010101")
    k("s_lshr_b32 s52, s52, 24")
    k("s_cmp_ge_u32 s52, 14")
    k(f"s_cbranch_scc1 {CD}")
    k("s_sub_u32 s50, s50, 1")
    k("s_cmp_eq_u32 s50, 0")
    k(f"s_cbranch_scc1 {CD}")
    k(f"buffer_load_dwordx2 v[28:29], off, s[8:11], s{sFL} offset:768 sc1")
    k("s_waitcnt vmcnt(0)")
    k(f"s_branch {CL}")
    k.label(CD)
    nst = getattr(k, "_nst", 0)
    state = (vm.n, wn[0], list(wid), getattr(k, "_seq", 0))

    def rest():
        for r in range(16):
            k(f"v_{'sub' if r & 1 else 'add'}_f32 {v(vA+r)}, {v(vA+r)}, {v(vA+16+r)}")
        for p in range(2):
            for r in range(4):
                k(f"v_permlane16_swap_b32 {v(vA+8*p+r)}, {v(vA+8*p+4+r)}")
        k("s_waitcnt lgkmcnt(0)")
        vH, vHc, vU = 32, 40, 48
        for p in range(2):
            for q in range(4):
                y0, y1 = vA + 8 * p + 2 * q, vA + 8 * p + 2 * q + 1
                k(f"v_lshlrev_b32 {v(vU)}, 16, {v(vX+4*p+q)}")
                k(f"v_and_b32 {v(vU+1)}, 0xffff0000, {v(vX+4*p+q)}")
                k(f"v_add_f32 {v(y0)}, {v(y0)}, {v(vU)}")
                k(f"v_add_f32 {v(y1)}, {v(y1)}, {v(vU+1)}")
                k(f"v_sub_f32 {v(y0+16)}, {v(y0)}, {v(vM+p)}")
                k(f"v_sub_f32 {v(y1+16)}, {v(y1)}, {v(vM+p)}")
                k(f"v_cvt_pk_bf16_f32 {v(vHc+4*p+q)}, {v(y0+16)}, {v(y1+16)}")
            hc_st = store2(f"buffer_store_dwordx4 {v(vHc+4*p,4)}, {v(vL16)}, s[8:11], s{26+p} offen")
        wload(NW[2])
        for p in range(2):
            for q in range(4):
                y0, y1 = vA + 8 * p + 2 * q, vA + 8 * p + 2 * q + 1
                k(f"v_cvt_pk_bf16_f32 {v(vH+4*p+q)}, {v(y0)}, {v(y1)}")
            k(f"ds_write_b128 {v(vXA)}, {v(vH+4*p,4)} offset:{4096*p}")
        for p in range(2):
            k(f"v_mul_f32 {v(vM+p)}, {v(vA+16+8*p)}, {v(vA+16+8*p)}")
        for e in range(1, 8):
            for p in range(2):
                k(f"v_fmac_f32 {v(vM+p)}, {v(vA+16+8*p+e)}, {v(vA+16+8*p+e)}")
        k(f"s_lshl_b32 s26, s{sW}, 8")
        k(f"s_add_u32 s26, s26, {R2}")
        k(f"v_add_u32 v7, s26, {v(vL4)}")
        k(f"v_permlane32_swap_b32 {v(vM)}, {v(vM+1)}")
        k(f"v_add_f32 {v(vM)}, {v(vM)}, {v(vM+1)}")
        k(f"ds_write_b32 v7, {v(vM)}")
        sDG, sDL = 26, 42
        k(f"s_mul_i32 s{sDG}, s{sRB}, 114688")
        k(f"s_add_u32 s{sDG}, s{sDG}, {HC}")
        k(f"s_mul_i32 s{sDL}, s{sW}, 28672")
        k(f"s_and_b32 s28, s{sW}, 1")
        k("s_mul_i32 s28, s28, 57344")
        k(f"s_lshr_b32 s36, s{sW}, 1")
        k(f"s_lshl_b32 s{sDL+1}, s36, 10")
        k(f"s_add_u32 s{sDL+1}, s{sDL+1}, s28")
        k(f"s_add_u32 s27, s{sDG}, s{sDL+1}")
        k(f"s_add_u32 s{sDG}, s{sDG}, s{sDL}")
        k(f"s_sub_u32 s58, s{sDG}, s{sRH}")
        k(f"s_sub_u32 s59, s27, s{sRH}")
        k(f"s_add_u32 s{sDG}, s{sDG}, s{sRH}")
        k(f"s_add_u32 s27, s27, s{sRH}")
        vB1, vBS, vSS, vWL = 6, 7, 8, 11
        k(f"v_add_u32 {v(vB1)}, 57344, {v(vL16)}")
        sSS = 41
        k(f"s_mul_i32 s{sSS}, s{sRT}, 1792")
        k(f"s_add_u32 s{sSS}, s{sSS}, {SSP}")
        k(f"v_add_u32 v7, {R2}, {v(vL4)}")
        sWD = 34
        k(f"s_mul_i32 s28, s{sCT}, {0 if os.environ.get('FAKED') else 112}")
        k(f"s_mul_i32 s36, s{sW}, 28")
        k("s_add_u32 s28, s28, s36")
        k("s_lshl_b32 s28, s28, 11")
        k(f"s_add_u32 s54, s28, {WD}")
        sHS = 36
        k(f"s_mul_i32 s{sHS}, s{sRB}, {4*112}")
        k(f"s_lshl1_add_u32 s{sHS}, s{sFB}, s{sHS}")
        k(f"s_lshl_b32 s{sHS}, s{sHS}, 10")
        k(f"s_add_u32 s{sHS}, s{sHS}, {HP}")
        vPA, vP1, sAB, sST1 = 11, 25, 44, 55
        k(f"v_lshlrev_b32 {v(vPA)}, 12, {v(vG)}")
        k(f"v_lshl_add_u32 {v(vPA)}, {v(vC)}, 4, {v(vPA)}")
        k(f"s_lshl_b32 s{sAB}, s{sRB}, 8")
        k(f"s_add_u32 s{sAB}, s{sAB}, {BT}")
        k(f"s_mul_i32 s{sAB+1}, s{sRB}, 114688")
        k(f"s_add_u32 s{sAB+1}, s{sAB+1}, {HC}")
        sROT = 53
        k(f"s_add_u32 s{sROT}, s{sRT}, s{sCT}" if ROTD == 2 else f"s_mov_b32 s{sROT}, s{sRT}")
        sHP = 37
        k(f"s_mul_i32 s{sHP}, s{sRT}, 224")
        k(f"s_mul_i32 s28, s{sW}, 28")
        k(f"s_add_u32 s{sHP}, s{sHP}, s28")
        k(f"s_lshl_b32 s{sHP}, s{sHP}, 10")
        k(f"s_add_u32 s{sHP}, s{sHP}, {HP}")
        k.stamp()
        vm.wait(hc_st, " lgkmcnt(0)")
        k.stamp()
        arrive(0)
        mark0 = poll_issue(0)
        wload(NW[3])
        poll(0, mark0)
        wload(NW[4])
        k.stamp()
        uses = [(kp, b) for kp in range(KS) for b in range(4)]
        uses += [(kp, b) for kp in range(KS, 28) for b in (0, 2)]
        uB = len(uses)
        uses += [(kp, b) for kp in range(KS, 28) for b in (1, 3)]
        first_use = {kp: min(u for u, x in enumerate(uses) if x[0] == kp) for kp in range(28)}
        last_use = {kp: max(u for u, x in enumerate(uses) if x[0] == kp) for kp in range(28)}
        npair = (28 - KS) // 2
        D = []

        def dma():
            i = len(D)
            if i < KS:
                sel, off = 0, i * 1024
            else:
                sel, off = 1, ((i - KS) // npair) * 28672 + (KS + 2 * ((i - KS) % npair)) * 1024
            k(f"s_add_u32 m0, s{sDL+sel}, {off}")
            k(f"s_add_u32 s28, s{(sDG if off % 28672 < 14336 else 58)+sel}, {off}")
            D.append(vm.op(f"buffer_load_dwordx4 {v(vL16)}, s[8:11], s28 offen{LD} lds"))

        wd_regs = [(0, lambda m, i=i: a(224 + 8 * i + 4 * m, 4)) for i in range(4)]
        wd_regs += [(0, lambda m, i=i: v(64 + 8 * i + 4 * m, 4)) for i in range(8)]
        wd_regs += [(last_use[i] + 1, lambda m, i=i: a(8 * i + 4 * m, 4)) for i in range(16)]

        def wdreg(kp, m):
            return wd_regs[kp][1](m)

        wdn = [0]
        wd_id = {}

        def quarter(dst, g, size, base):
            k(f"s_add_u32 s{dst}, s{sROT}, {g}" if ROTD else f"s_mov_b32 s{dst}, {g}")
            k(f"s_and_b32 s{dst}, s{dst}, 3")
            k(f"s_mul_i32 s{dst}, s{dst}, {size}")
            k(f"s_add_u32 s{dst}, s{dst}, s{base}")

        def wdload():
            n = wdn[0]
            wdn[0] += 1
            kp, m = n // 2, n % 2
            if n % 14 == 0:
                quarter(sWD, kp // 7, 14336, 54)
            wd_id[kp] = vm.op(f"buffer_load_dwordx4 {wdreg(kp,m)}, {v(vL16)}, s[8:11], s{sWD} offen offset:{(n%14%4)*1024}")
            if n % 14 % 4 == 3:
                k(f"s_add_u32 s{sWD}, s{sWD}, 4096")

        aQ = 128
        hl = []

        def hload():
            n = len(hl)
            p, kp = n // 28, n % 28
            if ALIASB and (p == 1 or ALIASB >= 2):
                if kp == 0:
                    strided = ALIASB == 1 or p == 0
                    if ALIASB == 3:
                        assert BT != AT
                        k(f"s_sub_u32 s58, s{sAB+1}, {HC - (WT if p == 1 else AT)}")
                    else:
                        k(f"s_mul_i32 s58, s{sRT}, {224*1024}")
                        k(f"s_add_u32 s58, s58, {HP + p*112*1024}")
                    k(f"s_cmp_eq_u32 s{sHALF}, 0")
                    k("s_movk_i32 s57, 1024")
                    k(f"s_cselect_b32 s{sST1}, {'0x4000' if strided else 's57'}, s57")
                    k(f"s_cselect_b32 s{sHP}, s{sAB if strided else 58}, s{sAB+1 if p == 1 else 58}")
                    k("s_cselect_b64 vcc, -1, 0")
                    k(f"s_mul_i32 s57, s{sW}, 28")
                    k(f"s_mul_i32 s57, s57, s{sST1}")
                    k(f"s_add_u32 s{sHP}, s{sHP}, s57")
                    if strided:
                        k(f"v_cndmask_b32 {v(vP1)}, {v(vL16)}, {v(vPA)}, vcc")
                    else:
                        k(f"v_mov_b32 {v(vP1)}, {v(vL16)}")
                    k(f"s_mul_i32 s58, s{sST1}, 7")
                if kp % 7 == 0:
                    quarter(46, kp // 7, "s58", sHP)
                else:
                    k(f"s_add_u32 s46, s46, s{sST1}")
                hl.append(vm.op(f"buffer_load_dwordx4 {a(aQ+4*(n%24),4)}, {v(vP1)}, s[8:11], s46 offen{LD}"))
                return
            if n == 28:
                k(f"s_add_u32 s{sHP}, s{sHP}, {112*1024}")
            if kp % 7 == 0:
                quarter(46, kp // 7, 7168, sHP)
            if kp % 7 == 4:
                k("s_add_u32 s46, s46, 4096")
            hl.append(vm.op(f"buffer_load_dwordx4 {a(aQ+4*(n%24),4)}, {v(vL16)}, s[8:11], s46 offen offset:{(kp%7%4)*1024}{LD}"))

        vF, vAcc, LOOK = 32, 128, 4
        accreg = {0: vAcc, 2: vAcc + 32, 1: vAcc + 64, 3: vAcc + 96}

        def rd4(u):
            kp, b = uses[u]
            k(f"ds_read_b128 {v(vF+4*(u%6),4)}, {v(vL16 if b < 2 else vB1)} offset:{(b&1)*28672+kp*1024}")

        last_st = [None]

        def hp_store(b, u):
            vo, off = vL16, u * 1024
            if ALIASB and b == (1 if ALIASB == 1 else 0):
                vo, off = vPA, 0
                if u == 0:
                    k(f"s_lshl_b32 s38, s{sFB}, 15")
                    k(f"s_add_u32 s38, s38, s{sAB}")
                else:
                    k("s_add_u32 s38, s38, 16384")
            elif ALIASB and b == 3:
                if u == 0:
                    k(f"s_lshl_b32 s38, s{sFB}, 11")
                    k(f"s_add_u32 s38, s38, s{sAB+1}")
            elif ALIASB == 3:
                if u == 0:
                    k(f"s_lshl_b32 s38, s{sFB}, 11")
                    k(f"s_add_u32 s38, s38, s{sAB+1}")
                    k(f"s_sub_u32 s38, s38, {HC - (WT if b == 1 else AT)}")
            elif u == 0:
                k(f"s_add_u32 s38, s{sHS}, {b*112*1024}")
            last_st[0] = store2(f"buffer_store_dwordx4 {v(accreg[b]+4*u,4)}, {v(vo)}, s[8:11], s38 offen offset:{off}" + (" sc1" if MA and b % 2 == 0 and not mode[0] else ""))

        def epilogue(ps):
            items = [(b, r) for b in (ps, ps + 2) for r in range(8)]
            out = []
            for i in range(len(items) + 1):
                grp = []
                if i < len(items):
                    b, r = items[i]
                    g_, u_ = accreg[b], accreg[b] + 16
                    grp += [f"v_mul_f32 {v(u_+2*r)}, {v(g_+2*r)}, {v(u_+2*r)}",
                            f"v_mul_f32 {v(u_+2*r+1)}, {v(g_+2*r+1)}, {v(u_+2*r+1)}"]
                if i > 0:
                    b, r = items[i - 1]
                    g_, u_ = accreg[b], accreg[b] + 16
                    grp.append(f"v_cvt_pk_bf16_f32 {v(g_+r)}, {v(u_+2*r)}, {v(u_+2*r+1)}")
                out.append(grp)
                if i > 0 and items[i - 1][1] % 4 == 3:
                    out.append(lambda b=items[i - 1][0], u=items[i - 1][1] // 4: hp_store(b, u))
            return out

        def put(q, cnt=1):
            for _ in range(cnt):
                if q:
                    e = q.pop(0)
                    if callable(e):
                        e()
                    else:
                        for t_ in e:
                            k(t_)

        chunks = eval(os.environ.get("CHUNKS", "{0: 2, 3: 6, 7: 15, 16: 27}"))
        for _ in range(NDMA0):
            dma()
        k("ds_read2st64_b32 v[12:13], v7 offset1:1")
        k("ds_read2st64_b32 v[14:15], v7 offset0:2 offset1:3")
        k(f"s_lshl_b32 s47, s{sCT}, 8")
        k(f"s_add_u32 s47, s47, s{sSS}")
        k("s_waitcnt lgkmcnt(0)")
        k("v_add_f32 v12, v12, v13")
        k("v_add_f32 v14, v14, v15")
        k("v_add_f32 v12, v12, v14")
        store2(f"buffer_store_dword v12, {v(vL4)}, s[8:11], s47 offen")
        vm.wait(D[chunks[0]])
        k("s_barrier")
        k.stamp()
        for u in range(LOOK):
            rd4(u)
        todo = [(i - 30, "d") for i in range(NDMA0, 28)]
        todo += [(first_use[i // 2] - 14 + 0.01 * i, "w") for i in range(wn[0], 56)]
        todo = [o for _, o in sorted(todo)]
        epi = epilogue(0)
        checked = False
        for u in range(112):
            kp, b = uses[u]
            if (u + LOOK) % 4 == 0 and (u + LOOK) // 4 in chunks:
                vm.wait(D[chunks[(u + LOOK) // 4]])
                k("s_barrier")
            if u == first_use[kp] and 2 * kp + 1 >= sum(NW):
                vm.wait(wid[2 * kp + 1])
            if u == uB + DRAIN_A:
                assert not epi
                vm.wait(last_st[0])
                arrive(256)
            if u == uB + POLL_A:
                markA = poll_issue(256)
            if u == uB + CHECK_A:
                poll(256, markA)
                checked = True
            if u % 2 == 0:
                k(f"s_waitcnt lgkmcnt({min(LOOK - 2, 110 - u)})")
            for m in range(2):
                acc = accreg[b] + 16 * m
                c = "0" if kp == 0 else v(acc, 16)
                k(f"v_mfma_f32_32x32x16_bf16 {v(acc,16)}, {a(8*kp+4*m,4)}, {v(vF+4*(u%6),4)}, {c}")
                if m == 0:
                    if u + LOOK < 112:
                        rd4(u + LOOK)
                    if u >= uB + 1:
                        put(epi)
                else:
                    if u >= uB + 1 and EPI_A == 2:
                        put(epi)
                    if todo:
                        dma() if todo.pop(0) == "d" else wload()
                    elif checked and len(hl) < RING and last_use[16 + len(hl) // 2] < u:
                        hload()
                    elif wdn[0] < 56 and wd_regs[wdn[0] // 2][0] <= u:
                        wdload()
            if u in P4ST:
                k.stamp(1)
            if u == uB - 1 or u == 111:
                k.stamp()
        assert len(D) == 28 and wn[0] == 56
        print("after P4: down loads issued", wdn[0], "h loads", len(hl), file=sys.stderr)
        vRW, vRR, vR2, vHR, vSP = 12, 20, 22, 24, 56
        vAc5, vT5 = 128, 192
        fill = epilogue(1)
        if not checked:
            assert EPI_B0 <= 14
            put(fill, EPI_B0)
            poll(256, markA)
        while fill:
            if len(hl) < 8:
                hload()
            put(fill, 2)
        fill = [["v_and_b32 v6, 31, v1", "v_lshrrev_b32 v7, 5, v1", "v_and_b32 v8, 7, v1", "v_lshl_or_b32 v7, v7, 3, v8"],
                [f"s_lshl_b32 s26, s{sW}, 13", "v_lshlrev_b32 v7, 4, v7", "v_lshl_add_u32 v7, v6, 8, v7", f"v_add_u32 {v(vRW)}, s26, v7"],
                [f"v_xor_b32 {v(vRW+i)}, {16*i}, {v(vRW)}" for i in range(1, 5)],
                [f"v_xor_b32 {v(vRW+i)}, {16*i}, {v(vRW)}" for i in range(5, 8)],
                ["v_lshrrev_b32 v6, 3, v1", f"s_and_b32 s26, s{sW}, 1", "s_lshl_b32 s26, s26, 2", f"v_xor_b32 v7, v8, {v(vG)}",
                 "v_xor_b32 v7, s26, v7"],
                ["v_lshlrev_b32 v7, 1, v7", "v_xor_b32 v7, v7, v6", f"s_lshl_b32 s26, s{sW}, 11", "v_lshlrev_b32 v7, 4, v7"],
                ["v_lshl_add_u32 v7, v6, 8, v7", f"v_add_u32 {v(vRR)}, s26, v7", f"v_xor_b32 {v(vRR+1)}, 16, {v(vRR)}"],
                [f"s_lshl_b32 s26, s{sW}, 10", f"s_add_u32 s26, s26, {XT}", f"v_add_u32 {v(vHR)}, s26, {v(vL16)}",
                 f"s_lshl_b32 s26, s{sW}, 5", "v_lshl_add_u32 v9, v6, 2, s26"]]
        ssl = []

        def ssload(i):
            for j in range(2 * i, min(2 * i + 2, 7)):
                ssl.append(vm.op(f"buffer_load_dword {v(vSP+j)}, {v(vL4)}, s[8:11], s{sSS} offen offset:{256*j}{LD}"))

        fill += [lambda i=i: ssload(i) for i in range(4)]
        r2calc = [[f"v_add_f32 {v(vSP)}, {v(vSP)}, {v(vSP+1)}", f"v_add_f32 {v(vSP+2)}, {v(vSP+2)}, {v(vSP+3)}",
                   f"v_add_f32 {v(vSP+4)}, {v(vSP+4)}, {v(vSP+5)}", f"v_add_f32 {v(vSP)}, {v(vSP)}, {v(vSP+6)}"],
                  [f"v_add_f32 {v(vSP+2)}, {v(vSP+2)}, {v(vSP+4)}", f"v_mov_b32 {v(vSP+1)}, {f2u(EPS)}",
                   f"v_add_f32 {v(vSP)}, {v(vSP)}, {v(vSP+2)}", f"v_fmac_f32 {v(vSP+1)}, {f2u(1.0/448)}, {v(vSP)}"],
                  [f"v_rcp_f32 {v(vSP)}, {v(vSP+1)}", "v_add_u32 v8, 128, v9"],
                  [f"ds_bpermute_b32 {v(vR2)}, v9, {v(vSP)}", f"ds_bpermute_b32 {v(vR2+1)}, v8, {v(vSP)}"]]

        def red_write(p):
            base = vAc5 + 32 * p
            q_ = []
            for db in range(2):
                b_ = base + 16 * db
                q_.append([f"v_swap_b32 {v(b_+4*i+j)}, {v(b_+4*j+i)}" for i, j in ((0, 1), (0, 2), (0, 3))])
                q_.append([f"ds_write_b128 {v(vRW+db)}, {v(b_,4)} offset:{p*32768}",
                           f"v_swap_b32 {v(b_+6)}, {v(b_+9)}", f"v_swap_b32 {v(b_+7)}, {v(b_+13)}"])
                q_.append([f"ds_write_b128 {v(vRW+2+db)}, {v(b_+4,4)} offset:{p*32768}", f"v_swap_b32 {v(b_+11)}, {v(b_+14)}"])
                q_.append([f"ds_write_b128 {v(vRW+4+db)}, {v(b_+8,4)} offset:{p*32768}"])
                q_.append([f"ds_write_b128 {v(vRW+6+db)}, {v(b_+12,4)} offset:{p*32768}"])
            q_.append([f"ds_read_b128 {v(vT5+32,4)}, {v(vHR)} offset:{p*4096}"])
            return q_

        def red_read(p):
            q_ = [["s_waitcnt lgkmcnt(0)", "s_barrier"] +
                  [f"ds_read_b128 {v(vT5+4*z,4)}, {v(vRR+z)} offset:{p*32768}" for z in range(2)]]
            for j in range(1, 4):
                q_.append([f"ds_read_b128 {v(vT5+8*j+4*z,4)}, {v(vRR+z)} offset:{p*32768+j*8192}" for z in range(2)])
            for h2 in range(2):
                q_.append([t_ for q in (2 * h2, 2 * h2 + 1) for t_ in
                           (f"v_lshlrev_b32 {v(vT5+36+2*q)}, 16, {v(vT5+32+q)}",
                            f"v_and_b32 {v(vT5+37+2*q)}, 0xffff0000, {v(vT5+32+q)}")])
            for j, (d_, s_) in enumerate(((0, 8), (16, 24), (0, 16))):
                for h2 in range(2):
                    q_.append(([f"s_waitcnt lgkmcnt({4 if j == 0 else 0})"] if h2 == 0 and j < 2 else []) +
                              [f"v_add_f32 {v(vT5+d_+r)}, {v(vT5+d_+r)}, {v(vT5+s_+r)}" for r in range(4 * h2, 4 * h2 + 4)])
            for h2 in range(2):
                q_.append([f"v_fmac_f32 {v(vT5+36+r)}, {v(vT5+r)}, {v(vR2+p)}" for r in range(4 * h2, 4 * h2 + 4)])
            q_.append([f"v_cvt_pk_bf16_f32 {v(vT5+8+q)}, {v(vT5+36+2*q)}, {v(vT5+37+2*q)}" for q in range(4)])
            q_.append(lambda: vm.op(f"buffer_store_dwordx4 {v(vT5+8,4)}, {v(vXO)}, s[16:19], s{sXO+p} offen{SCO}"))
            return q_

        if P5ST:
            k.stamp(1)
        for n in range(56):
            p, kp = n // 28, n % 28
            if n == DRAIN_B:
                vm.wait(last_st[0])
                arrive(512)
            if n == POLL_B:
                markB = poll_issue(512)
            if n == CHECK_B:
                k.stamp()
                poll(512, markB)
                k.stamp()
            if n == 22:
                vm.wait(ssl[6])
                fill += r2calc
            if n == LATE and 3072 in WBL:
                k(f"s_add_u32 s47, s{sFI}, 16384")
                vm.op(f"buffer_store_dword {v(vOne)}, off, s[8:11], s47{mode[0]}")
            if n == 28:
                assert not fill
                fill = red_write(0)
                while fill:
                    if len(hl) < 28 + RING1:
                        hload()
                    put(fill, 2)
            if n == RED0:
                fill = red_read(0)
            vm.wait(max(hl[n], wd_id[kp]))
            for dl in range(2):
                acc = vAc5 + 32 * p + 16 * dl
                c = "0" if kp == 0 else v(acc, 16)
                k(f"v_mfma_f32_32x32x16_bf16 {v(acc,16)}, {wdreg(kp,dl)}, {a(aQ+4*(n%24),4)}, {c}")
                if dl == 1 and wdn[0] < 56:
                    wdload()
                if dl == 0:
                    if len(hl) < (28 if n < CHECK_B else 56) and len(hl) < n + 24:
                        hload()
                    else:
                        put(fill)
                if dl == 1:
                    put(fill)
            if n in P5ST:
                k.stamp(1)
        k.stamp()
        put(fill, 99)
        put(red_write(1), 99)
        put(red_read(1), 99)
        if k.prof:
            k("s_waitcnt vmcnt(0)")
        k.stamp_flush(6, PROF + (2 << 20), sW, nst)
        k("s_endpgm")

    SLOWL = k.lab("slow")
    k(f"s_branch {SLOWL}")
    k.label(FAST)
    mode[0] = ""
    rest()
    k.label("k3_code_end")
    k.label(SLOWL)
    mode[0] = " sc1"
    vm.n, wn[0], wid[:], k._seq = state
    rest()
    k.label(END)
    k("s_endpgm")
    for o in outline:
        k(o)
    if SPARE:
        k.label(PFL)
        k(f"s_cmp_ge_u32 s2, {K3_WGS}")
        k(f"s_cbranch_scc1 {END}")
        k("s_load_dwordx2 s[6:7], s[0:1], 72")
        k("v_lshrrev_b32 v2, 6, v0")
        k("v_and_b32 v1, 63, v0")
        k("v_readfirstlane_b32 s20, v2")
        k("v_lshlrev_b32 v3, 7, v1")
        k("s_bfe_u32 s21, s2, 0x20003")
        k("s_lshl2_add_u32 s21, s21, s20")
        k("s_waitcnt lgkmcnt(0)")
        k.srd_off(8, 6, WSB, WS_BYTES)
        n = 0
        for base, nsl, units in ((WS, 56, SP_WS), (WD, 28, range(7))):
            for un in units:
                for i in range(-(-nsl // 16)):
                    k(f"s_add_u32 s22, s21, {16*i}")
                    k(f"s_min_u32 s22, s22, {nsl-1}")
                    k("s_mul_i32 s22, s22, 57344")
                    k(f"s_add_u32 s22, s22, {base + un*8192}")
                    k(f"buffer_load_dword v{8+n}, v3, s[8:11], s22 offen")
                    n += 1
        if WBL:
            k("s_cmp_lg_u32 s21, 0")
            k(f"s_cbranch_scc1 {END}")
            k("v_lshlrev_b32 v3, 2, v1")
            k("v_min_u32 v3, 220, v3")
            k("s_and_b32 s22, s2, 7")
            k("s_lshl_b32 s22, s22, 11")
            k(f"s_add_u32 s22, s22, {FL}")
            k(f"s_mov_b32 s23, {SPIN_MAX}")
            for off in WBL:
                lp, dn_ = k.lab("wl"), k.lab("wd")
                if off == 3072:
                    k("s_add_u32 s22, s22, 16384")
                    off = 0
                k.label(lp)
                k(f"buffer_load_dword v4, v3, s[8:11], s22 offen offset:{off} sc1")
                k(f"buffer_load_dword v5, v3, s[8:11], s22 offen offset:{off+1024} sc1")
                k("s_sub_u32 s23, s23, 1")
                k("s_waitcnt vmcnt(0)")
                k("s_cmp_eq_u32 s23, 0")
                k(f"s_cbranch_scc1 {END}")
                k("v_and_b32 v4, v4, v5")
                k("v_cmp_eq_u32 vcc, 0, v4")
                k("s_sleep 2")
                k(f"s_cbranch_vccnz {lp}")
                k("buffer_wbl2 sc1")
                k("s_waitcnt vmcnt(0)")
        k("s_endpgm")
    return k
```

```python
import os
import struct
import sys
from asmlib import Kern, v, a, s

S, D, F = 2048, 448, 1792
AT = 0x000000
WT = 0x200000
BT = 0x400000
HC = 0x600000
WS = 0x800000
WD = 0xC00000
HP = 0xE00000
M1 = 0x1500000
FL = 0x1510000
WS_BYTES = 0x1520000
XB = S * D * 2
WRB = S * 225 * 2
WGB = D * F * 2
if int(os.environ.get("ALIAS", "1")):
    BT, HC = AT, WT
EPS = 1e-5
PROF = 0x1800000
import os
SC = os.environ.get("SC", " sc1")
NT = os.environ.get("NT", "")
WSB = int(os.environ.get("WSB", "0"), 0)


def f2u(x):
    return "0x%08x" % struct.unpack("<I", struct.pack("<f", x))[0]


N_WT, N_WS, N_WD = 256, 392, 196
K1_SIDE_WGS = (N_WT + N_WS + N_WD) // 4
K1_WGS = 256
K1_LDS = 57344 + 512 + 8192


def div7(k, dst, src):
    k(f"s_mul_i32 s{dst}, s{src}, 37")
    k(f"s_lshr_b32 s{dst}, s{dst}, 8")


EARLY = int(os.environ.get("EARLY", "2"))
NOWD1 = int(os.environ.get("NOWD1", "0"))
ROTX = int(os.environ.get("ROTX", "1"))
XFIRST = int(os.environ.get("XFIRST", "1"))
K1_T = int(os.environ.get("K1_T", "0"))
MERGE = int(os.environ.get("MERGE", "1"))
CODEPF = int(os.environ.get("CODEPF", "1"))


def code_prefetch(k, target, piece_sreg, vlane16, vtmp, stmp):
    here = k.lab("pc")
    k(f"s_getpc_b64 s[{stmp}:{stmp+1}]")
    k.label(here)
    k(f"s_add_u32 s{stmp}, s{stmp}, {target}-{here}")
    k(f"s_addc_u32 s{stmp+1}, s{stmp+1}, 0")
    k(f"s_lshl_b32 s{stmp+2}, s{piece_sreg}, 10")
    k(f"v_add_u32 {v(vtmp)}, s{stmp+2}, {v(vlane16)}")
    k(f"global_load_dwordx4 {v(vtmp+2,4)}, {v(vtmp)}, s[{stmp}:{stmp+1}]")


def xlane_sum(k, r, t):
    k(f"v_mov_b32 {v(t)}, {v(r)}")
    k(f"v_permlane16_swap_b32 {v(r)}, {v(t)}")
    k(f"v_add_f32 {v(r)}, {v(r)}, {v(t)}")
    k(f"v_mov_b32 {v(t)}, {v(r)}")
    k(f"v_permlane32_swap_b32 {v(r)}, {v(t)}")
    k(f"v_add_f32 {v(r)}, {v(r)}, {v(t)}")


def gen_k1():
    k = Kern("k1_kernel", 0, 0)
    END, SIDE, STORE, JWS, JWD, TR, ISSUED, TRS = (k.lab(x) for x in ("end", "side", "store", "jws", "jwd", "tr", "iss", "trs"))
    FIN = k.lab("fin")
    sW, sMain, sKind = 20, 48, 49
    k(f"s_cmp_ge_u32 s2, {K1_WGS}")
    k(f"s_cbranch_scc1 {END}")
    k.stamp()
    k("s_load_dwordx2 s[4:5], s[0:1], 0")
    k("s_load_dwordx2 s[6:7], s[0:1], 72")
    k("s_load_dwordx4 s[76:79], s[0:1], 8")
    k("s_load_dwordx4 s[80:83], s[0:1], 32")
    k("s_load_dwordx2 s[84:85], s[0:1], 48")
    k("v_lshrrev_b32 v2, 6, v0")
    k("v_and_b32 v1, 63, v0")
    k(f"v_readfirstlane_b32 s{sW}, v2")
    k(f"s_mov_b32 s{sMain}, 0")
    k("s_cmp_ge_u32 s2, 224")
    k(f"s_cbranch_scc1 {SIDE}")
    k(f"s_mov_b32 s{sMain}, 1")
    sRT, sCT = 21, 22
    k("s_and_b32 s23, s2, 7")
    k("s_lshr_b32 s24, s2, 3")
    div7(k, 25, 24)
    k("s_mul_i32 s26, s25, 7")
    k(f"s_sub_u32 s{sCT}, s24, s26")
    k(f"s_lshl2_add_u32 s{sRT}, s23, s25")
    k("v_lshrrev_b32 v4, 5, v1")
    k("v_bfe_u32 v5, v1, 3, 2")
    k("v_lshl_add_u32 v4, v4, 4, v5")
    k("s_movk_i32 s26, 0x7000")
    k("v_mul_u32_u24 v4, s26, v4")
    k("v_lshrrev_b32 v5, 4, v1")
    k("v_and_b32 v6, 7, v1")
    k("v_xor_b32 v6, v6, v5")
    k("v_lshl_add_u32 v2, v6, 4, v4")
    k("v_xor_b32 v3, 64, v2")
    k(f"v_add_u32 v3, {32*32*896}, v3")
    k(f"s_lshl_b32 s26, s{sW}, 7")
    k(f"s_add_u32 s26, s26, s{sRT}")
    k("s_mul_i32 s26, s26, 896")
    k(f"s_lshl_b32 s27, s{sW}, 11")
    saved, k.lines = k.lines, []
    k("v_and_b32 v8, 15, v1")
    vB, vST, vE, vSG, vT, vF = 8, 9, 9, 17, 19, 28
    vKK, vOnes = 27, 152
    k(f"s_and_b32 s28, s{sW}, 1")
    k("s_lshl_b32 s28, s28, 4")
    k(f"s_lshl_b32 s29, s{sCT}, 5")
    k("s_add_u32 s28, s28, s29")
    k(f"v_add_u32 {v(vKK)}, s28, v8")
    k("v_lshrrev_b32 v9, 1, v8")
    k("v_xor_b32 v9, v9, v5")
    k("v_lshlrev_b32 v9, 4, v9")
    k("v_lshl_add_u32 v4, v8, 7, v9")
    k(f"v_add_u32 v19, 1, {v(vKK)}")
    k("v_cvt_f32_u32 v20, v19")
    k("v_and_b32 v19, 1, v19")
    k("v_lshlrev_b32 v19, 31, v19")
    k(f"v_or_b32 {v(vSG)}, 1.0, v19")
    k(f"v_mul_f32 {v(vE+1)}, {f2u(1.0/448)}, v20")
    for e in range(2, 8):
        k(f"v_mul_f32 {v(vE+e)}, {f2u(e/448.0)}, v20")
    k(f"v_mul_f32 {v(vST)}, {f2u(32.0/448)}, v20")
    k(f"v_fract_f32 {v(vST)}, {v(vST)}")
    k("v_lshlrev_b32 v21, 3, v5")
    k("v_cvt_f32_u32 v21, v21")
    k(f"s_lshr_b32 s30, s{sW}, 1")
    k(f"s_mul_i32 s31, s30, {f2u(0.25)}")
    k(f"v_mov_b32 {v(vB)}, s31")
    k(f"v_fmac_f32 {v(vB)}, v21, {v(vE+1)}")
    k(f"v_fract_f32 {v(vB)}, {v(vB)}")
    k("v_xor_b32 v5, 64, v4")
    k("v_add_u32 v6, s27, v4")
    k("v_add_u32 v7, s27, v5")
    for p in range(4):
        k(f"v_mov_b32 {v(vOnes+p)}, 0x3f803f80")
    vCS = 156
    for t in range(7):
        k(f"v_cos_f32 {v(vT)}, {v(vB)}")
        for e in range(1, 8):
            k(f"v_add_f32 {v(vT+e)}, {v(vB)}, {v(vE+e)}")
        for e in range(1, 8):
            k(f"v_cos_f32 {v(vT+e)}, {v(vT+e)}")
        if t < 6:
            k(f"v_add_f32 {v(vB)}, {v(vB)}, {v(vST)}")
            k(f"v_fract_f32 {v(vB)}, {v(vB)}")
        for p in range(4):
            k(f"v_cvt_pk_bf16_f32 {v(vF+4*t+p)}, {v(vT+2*p)}, {v(vT+2*p+1)}")
        if t > 0:
            k(f"v_mfma_f32_16x16x32_bf16 {v(vCS,4)}, {v(vOnes,4)}, {v(vF+4*t-4,4)}, {'0' if t == 1 else v(vCS,4)}")
    gen_lines, k.lines = k.lines, saved
    k("s_waitcnt lgkmcnt(0)")
    k.srd(8, 4, XB)
    sC, sG_, sL = 23, 24, 25

    def xcol(i):
        if i == 0:
            k(f"s_mov_b32 s{sC}, s{sCT}" if ROTX else f"s_mov_b32 s{sC}, 0")
        else:
            k(f"s_add_u32 s{sC}, s{sC}, 1")
            k(f"s_cmp_eq_u32 s{sC}, 7")
            k(f"s_cselect_b32 s{sC}, 0, s{sC}")
        k(f"s_lshl_b32 s{sG_}, s{sC}, 7")
        k(f"s_add_u32 s{sG_}, s{sG_}, s26")
        k(f"s_lshl_b32 s{sL}, s{sC}, 13")
        k(f"s_add_u32 m0, s{sL}, s27")
        k(f"buffer_load_dwordx4 v2, s[8:11], s{sG_} offen{NT} lds")
        slot()
        k("s_add_u32 m0, m0, 1024")
        k(f"buffer_load_dwordx4 v3, s[8:11], s{sG_} offen{NT} lds")
        slot()

    per = [0]

    def slot():
        for _ in range(min(per[0], len(gen_lines))):
            k(gen_lines.pop(0))

    for i in range(XFIRST):
        xcol(i)
    k.label(SIDE)
    k("s_waitcnt lgkmcnt(0)")
    vIn, vSrc, vDst, vLW, vLR, vOut = 168, 200, 201, 202, 203, 208
    sA, sB_, sD = 52, 56, 88
    sSo, sDo, sSt, sSt4, sSto, sDt, sDt4, t0, t1, t2, t3 = 86, 87, 97, 98, 101, 99, 100, 50, 51, 35, 39
    k(f"s_mul_i32 s{t0}, s2, 3")
    k(f"s_add_u32 s{t0}, s{t0}, s{sW}")
    k(f"s_sub_u32 s{t0}, s{t0}, 1")
    k(f"s_lshl2_add_u32 s{t1}, s2, s{sW}")
    k(f"s_sub_u32 s{t1}, s{t1}, 128")
    k("s_cmp_lt_u32 s2, 128")
    k(f"s_cselect_b32 s{t0}, s{t0}, s{t1}")
    k(f"s_cselect_b32 s{t1}, s{sW}, 1")
    k("s_cmp_ge_u32 s2, 224")
    k(f"s_cselect_b32 s{t1}, 0, s{t1}")
    k(f"s_cmp_lg_u32 s{t1}, 0")
    k(f"s_cbranch_scc1 {JWS}")
    k(f"s_mov_b32 s{sKind}, 0")
    k(f"s_lshr_b32 s{t0}, s2, 5")
    k(f"s_add_u32 s{t0}, s{t0}, 4")
    k(f"s_bfe_u32 s{t2}, s2, 0x20003")
    k(f"s_cmp_ge_u32 s2, 224")
    k(f"s_cselect_b32 s{t0}, s{t2}, s{t0}")
    k(f"s_cselect_b32 s{t2}, s{sW}, s{t2}")
    k(f"s_and_b32 s{t1}, s2, 7")
    k.srd(sA, 76, WRB)
    k.srd(sB_, 78, WRB)
    k(f"v_and_b32 {v(vOut-4)}, 7, v1")
    k(f"v_lshrrev_b32 {v(vOut-3)}, 3, v1")
    k(f"v_mul_u32_u24 {v(vSrc)}, 0x1c2, {v(vOut-3)}")
    k(f"v_lshl_add_u32 {v(vSrc)}, {v(vOut-4)}, 4, {v(vSrc)}")
    k(f"v_add_u32 {v(vOut-2)}, 1, {v(vOut-4)}")
    k(f"v_lshlrev_b32 {v(vOut-2)}, 27, {v(vOut-2)}")
    k(f"v_and_b32 {v(vOut-2)}, 0x40000000, {v(vOut-2)}")
    k(f"v_or_b32 {v(vSrc)}, {v(vSrc)}, {v(vOut-2)}")
    k(f"v_xor_b32 {v(vOut-2)}, {v(vOut-4)}, {v(vOut-3)}")
    k(f"v_lshlrev_b32 {v(vOut-2)}, 4, {v(vOut-2)}")
    k(f"v_lshl_add_u32 {v(vDst)}, {v(vOut-3)}, 16, {v(vOut-2)}")
    k(f"v_lshl_add_u32 {v(vLW)}, {v(vOut-4)}, 7, {v(vOut-2)}")
    k(f"v_add_u32 {v(vOut-3)}, 1, {v(vOut-3)}")
    k(f"v_lshlrev_b32 {v(vOut-3)}, 27, {v(vOut-3)}")
    k(f"v_and_b32 {v(vOut-3)}, 0x40000000, {v(vOut-3)}")
    k(f"v_or_b32 {v(vDst)}, {v(vDst)}, {v(vOut-3)}")
    k(f"s_lshl_b32 s{t3}, s{sW}, 13")
    k(f"s_cmp_ge_u32 s2, 224")
    k(f"s_cselect_b32 s{t3}, s{t3}, 57856")
    k(f"v_add_u32 {v(vLW)}, s{t3}, {v(vLW)}")
    k(f"v_lshl_add_u32 {v(vLR)}, v1, 4, s{t3}")
    k(f"s_lshl_b32 s{sSo}, s{t1}, 5")
    k(f"s_add_u32 s{sSo}, s{sSo}, s{t0}")
    k(f"s_mul_i32 s{sSo}, s{sSo}, 3600")
    k(f"s_mul_i32 s{t3}, s{t2}, 112")
    k(f"s_add_u32 s{sSo}, s{sSo}, s{t3}")
    k(f"s_add_u32 s{sSo}, s{sSo}, 2")
    k(f"s_mov_b32 s{sSt}, 0")
    k(f"s_mov_b32 s{sSt4}, {64*450}")
    k(f"s_mov_b32 s{sSto}, {64*450}")
    k.srd_off(sD, 6, WSB + WT, 224 * 8192)
    k(f"s_mul_i32 s{sDo}, s{t2}, {7*65536}")
    k(f"s_lshr_b32 s{t3}, s{t0}, 1")
    k(f"s_lshl_b32 s{t3}, s{t3}, 11")
    k(f"s_add_u32 s{sDo}, s{sDo}, s{t3}")
    k(f"s_lshl_b32 s{t3}, s{t1}, 8")
    k(f"s_add_u32 s{sDo}, s{sDo}, s{t3}")
    k(f"s_and_b32 s{t3}, s{t0}, 1")
    k(f"s_lshl_b32 s{t3}, s{t3}, 7")
    k(f"s_add_u32 s{sDo}, s{sDo}, s{t3}")
    k(f"s_branch {ISSUED}")
    k.label(JWS)
    k(f"s_mov_b32 s{sKind}, 1")
    k(f"s_cmp_ge_u32 s{t0}, {N_WS}")
    k(f"s_cbranch_scc1 {JWD}")
    k(f"s_bitcmp1_b32 s{t0}, 0")
    k(f"s_cselect_b32 s{sA}, s82, s80")
    k(f"s_cselect_b32 s{sA+1}, s83, s81")
    k(f"s_and_b32 s{sA+1}, s{sA+1}, 0xffff")
    k(f"s_mov_b32 s{sA+2}, {WGB}")
    k(f"s_mov_b32 s{sA+3}, 0x20000")
    k.srd_off(sD, 6, WSB + WS, 56 * 28 * 2048)
    k(f"s_lshr_b32 s{t1}, s{t0}, 1")
    k(f"s_mul_i32 s{t2}, s{t1}, 2341")
    k(f"s_lshr_b32 s{t2}, s{t2}, 16")
    k(f"s_mul_i32 s{t3}, s{t2}, 28")
    k(f"s_sub_u32 s{t1}, s{t1}, s{t3}")
    k(f"v_lshrrev_b32 {v(vSrc)}, 5, v1")
    k(f"v_mul_u32_u24 {v(vSrc)}, {8*3584}, {v(vSrc)}")
    k(f"v_and_b32 {v(vDst)}, 31, v1")
    k(f"v_lshl_add_u32 {v(vSrc)}, {v(vDst)}, 4, {v(vSrc)}")
    k(f"s_mul_i32 s{sSo}, s{t1}, {16*3584}")
    k(f"s_lshl_b32 s{t3}, s{t2}, 9")
    k(f"s_add_u32 s{sSo}, s{sSo}, s{t3}")
    k(f"s_movk_i32 s{sSt}, 3584")
    k(f"s_movk_i32 s{sSt4}, 3584")
    k(f"v_lshlrev_b32 {v(vDst)}, 4, v1")
    k(f"s_mul_i32 s{sDo}, s{t2}, {8*28*2048}")
    k(f"s_lshl_b32 s{t3}, s{t1}, 11")
    k(f"s_add_u32 s{sDo}, s{sDo}, s{t3}")
    k(f"s_and_b32 s{t3}, s{t0}, 1")
    k(f"s_lshl_b32 s{t3}, s{t3}, 10")
    k(f"s_add_u32 s{sDo}, s{sDo}, s{t3}")
    k(f"s_mov_b32 s{sDt}, {28*2048}")
    k(f"s_mov_b32 s{sDt4}, {28*2048}")
    k(f"s_branch {TR}")
    k.label(JWD)
    k(f"s_sub_u32 s{t0}, s{t0}, {N_WS}")
    k.srd(sA, 84, WGB)
    k.srd_off(sD, 6, WSB + WD, 7 * 112 * 2048)
    k(f"s_cmp_ge_u32 s{t0}, {0 if NOWD1 else N_WD}")
    k(f"s_cselect_b32 s{sA+2}, 0, s{sA+2}")
    k(f"s_cselect_b32 s{sD+2}, 0, s{sD+2}")
    k(f"s_mul_i32 s{t2}, s{t0}, 2341")
    k(f"s_lshr_b32 s{t2}, s{t2}, 16")
    k(f"s_mul_i32 s{t3}, s{t2}, 28")
    k(f"s_sub_u32 s{t1}, s{t0}, s{t3}")
    k(f"v_lshrrev_b32 {v(vSrc)}, 5, v1")
    k(f"v_bfe_u32 {v(vDst)}, v1, 4, 1")
    k(f"v_lshl_add_u32 {v(vSrc)}, {v(vDst)}, 7, {v(vSrc)}")
    k(f"v_bfe_u32 {v(vDst)}, v1, 3, 1")
    k(f"v_lshl_add_u32 {v(vSrc)}, {v(vDst)}, 5, {v(vSrc)}")
    k(f"v_mul_u32_u24 {v(vSrc)}, 0x380, {v(vSrc)}")
    k(f"v_and_b32 {v(vOut-4)}, 7, v1")
    k(f"v_lshl_add_u32 {v(vSrc)}, {v(vOut-4)}, 4, {v(vSrc)}")
    k(f"s_lshr_b32 s{sSo}, s{t1}, 2")
    k(f"s_lshl_b32 s{sSo}, s{sSo}, 7")
    k(f"s_and_b32 s{t3}, s{t1}, 3")
    k(f"s_add_u32 s{sSo}, s{sSo}, s{t3}")
    k(f"s_mul_i32 s{sSo}, s{sSo}, {2*896}")
    k(f"s_lshl_b32 s{t3}, s{t2}, 7")
    k(f"s_add_u32 s{sSo}, s{sSo}, s{t3}")
    k(f"s_movk_i32 s{sSt}, {8*896}")
    k(f"s_mov_b32 s{sSt4}, {(64-24)*896}")
    k(f"v_lshlrev_b32 {v(vOut-4)}, 4, {v(vOut-4)}")
    k(f"v_lshl_add_u32 {v(vOut-4)}, {v(vDst)}, 9, {v(vOut-4)}")
    k(f"v_lshrrev_b32 {v(vDst)}, 4, v1")
    k(f"v_lshl_add_u32 {v(vDst)}, {v(vDst)}, 11, {v(vOut-4)}")
    k(f"s_mul_i32 s{sDo}, s{t2}, 112")
    k(f"s_lshl2_add_u32 s{sDo}, s{t1}, s{sDo}")
    k(f"s_lshl_b32 s{sDo}, s{sDo}, 11")
    k(f"s_movk_i32 s{sDt}, 128")
    k(f"s_movk_i32 s{sDt4}, {1024-384}")
    k.label(TR)
    k(f"s_mov_b32 s{sSto}, s{sSt}")
    for i in range(3):
        k(f"s_mov_b32 s{sB_+i}, s{sA+i}")
    k(f"s_mov_b32 s{sB_+3}, 0x20000")
    k.label(ISSUED)

    def side_loads(after=lambda: None):
        for e in range(8):
            sr = sB_ if e & 1 else sA
            k(f"buffer_load_dwordx4 {v(vIn+4*e,4)}, {v(vSrc)}, s[{sr}:{sr+3}], s{sSo} offen{NT}")
            after()
            if e < 7:
                k(f"s_add_u32 s{sSo}, s{sSo}, s{sSt4 if e == 3 else sSto if e & 1 else sSt}")

    def side_store(final):
        JOIN = k.lab("join")
        k.label(STORE)
        if final:
            k.stamp()
        k("s_mov_b32 s34, 0x05040100")
        k("s_mov_b32 s35, 0x07060302")
        k(f"s_cmp_lg_u32 s{sKind}, 0")
        k(f"s_cbranch_scc1 {TRS}")
        for e in range(8):
            o = vOut + 4 * e
            for r in range(4):
                k(f"v_perm_b32 {v(o+r)}, {v(vIn+8*r+4+(e>>1))}, {v(vIn+8*r+(e>>1))}, s{34+(e&1)}")
            k(f"ds_write_b128 {v(vLW)}, {v(o,4)} offset:{1024*e}")
        k("s_waitcnt lgkmcnt(0)")
        for e in range(8):
            k(f"ds_read_b128 {v(vIn+4*e,4)}, {v(vLR)} offset:{1024*e}")
        for e in range(8):
            k(f"s_waitcnt lgkmcnt({7-e})")
            k(f"buffer_store_dwordx4 {v(vIn+4*e,4)}, {v(vDst)}, s[{sD}:{sD+3}], s{sDo} offen{SC} ; alt")
            if e < 7:
                k(f"s_add_u32 s{sDo}, s{sDo}, 8192")
        k(f"s_branch {JOIN}")
        k.label(TRS)
        for j in range(8):
            o = vOut + 4 * j
            for q in range(4):
                k(f"v_perm_b32 {v(o+q)}, {v(vIn+4*(2*q+1)+(j>>1))}, {v(vIn+4*(2*q)+(j>>1))}, s{34+(j&1)}")
            k(f"buffer_store_dwordx4 {v(o,4)}, {v(vDst)}, s[{sD}:{sD+3}], s{sDo} offen{SC}")
            if j < 7:
                k(f"s_add_u32 s{sDo}, s{sDo}, s{sDt4 if j == 3 else sDt}")
        k.label(JOIN)
        if final:
            k.stamp()
            if k.prof:
                k("s_waitcnt vmcnt(0)")
            k.stamp_flush(6, PROF, sW, 1)
        else:
            k(f"s_cmp_eq_u32 s{sMain}, 0")
            k(f"s_cbranch_scc1 {FIN}")

    SPW = k.lab("spw")
    k(f"s_cmp_eq_u32 s{sMain}, 0")
    k(f"s_cbranch_scc1 {SPW}")
    per[0] = -(-len(gen_lines) // (22 - 2 * XFIRST))
    side_loads(slot)
    for i in range(XFIRST, 7):
        xcol(i)
    assert not gen_lines
    k.stamp()
    k.srd_off(12, 6, WSB + AT, 224 * 8192)
    k.srd_off(16, 6, WSB + M1, S * 4)
    k(f"v_mfma_f32_16x16x32_bf16 {v(vCS,4)}, {v(vOnes,4)}, {v(vF+24,4)}, {v(vCS,4)}")
    npf = 0
    if CODEPF:
        k("v_lshlrev_b32 v160, 4, v1")
        if MERGE:
            k("s_lshr_b32 s34, s2, 3")
            k("s_min_u32 s34, s34, (k3_code_end-k3_kernel)/1024")
            code_prefetch(k, "k3_kernel", 34, 160, 162, 36)
        else:
            k(f"s_min_u32 s34, s{sW}, (k2_code_end-k2_kernel)/1024")
            code_prefetch(k, "k2_kernel", 34, 160, 162, 36)
        npf += 1
    vR, vSm, vGr = 56, 20, 120

    def stat(t):
        b = vR + 4 * (t % 4)
        k(f"v_mfma_f32_16x16x32_bf16 {v(vSm,4)}, {v(b,4)}, {v(vOnes,4)}, {'0' if t == 0 else v(vSm,4)}")
        k(f"v_mfma_f32_16x16x32_bf16 {v(vGr,4)}, {v(b,4)}, {v(b,4)}, {'0' if t == 0 else v(vGr,4)}")

    k.stamp()
    k(f"s_lshl_b32 s{sL}, s{sCT}, 13" if ROTX else f"s_mov_b32 s{sL}, 0")
    for c in range(7):
        k(f"v_add_u32 v26, s{sL}, v6")
        k(f"v_add_u32 v18, s{sL}, v7")
        if c < 6:
            k(f"s_add_u32 s{sL}, s{sL}, 8192")
            k(f"s_cmp_eq_u32 s{sL}, 57344")
            k(f"s_cselect_b32 s{sL}, 0, s{sL}")
        k(f"s_waitcnt vmcnt({12-2*c+npf+(8 if c < XFIRST else 0)})")
        for par in range(2):
            t = 2 * c + par
            k(f"ds_read_b128 {v(vR+4*(t%4),4)}, v{18 if par else 26}")
        if c > 0:
            k("s_waitcnt lgkmcnt(2)")
            stat(2 * c - 2)
            stat(2 * c - 1)
    k("s_waitcnt lgkmcnt(0)")
    k.stamp()
    if XFIRST == 7:
        k(f"s_waitcnt vmcnt({npf})")
    stat(12)
    stat(13)
    if EARLY == 1:
        side_store(False)
    k("s_barrier")
    vA = 88
    vSt = 124
    seq = [(t, b) for t in range(14) for b in range(4)]

    def rd(n):
        t, b = seq[n]
        k(f"ds_read_b128 {v(vR+4*(n%8),4)}, v{4+(t&1)} offset:{(t>>1)*8192 + b*2048}")

    vM, vQ = 24, 25
    fin = ["v_and_b32 v26, 3, v1",
           "v_cmp_eq_u32 s[40:41], 1, v26", "v_cmp_eq_u32 s[42:43], 2, v26", "v_cmp_eq_u32 s[44:45], 3, v26",
           "v_bfe_u32 v26, v1, 2, 2", "v_lshrrev_b32 v19, 4, v1", "v_cmp_eq_u32 s[46:47], v26, v19",
           f"v_cndmask_b32 {v(vM)}, {v(vSm)}, {v(vSm+1)}, s[40:41]", f"v_cndmask_b32 {v(vQ)}, {v(vGr)}, {v(vGr+1)}, s[40:41]",
           f"v_cndmask_b32 {v(vM)}, {v(vM)}, {v(vSm+2)}, s[42:43]", f"v_cndmask_b32 {v(vQ)}, {v(vQ)}, {v(vGr+2)}, s[42:43]",
           f"v_cndmask_b32 {v(vM)}, {v(vM)}, {v(vSm+3)}, s[44:45]", f"v_cndmask_b32 {v(vQ)}, {v(vQ)}, {v(vGr+3)}, s[44:45]",
           f"v_mul_f32 {v(vM)}, {f2u(1.0/448)}, {v(vM)}",
           f"v_mul_f32 {v(vQ)}, {f2u(1.0/448)}, {v(vQ)}",
           "v_and_b32 v26, 15, v1",
           f"v_fma_f32 {v(vQ)}, -{v(vM)}, {v(vM)}, {v(vQ)}",
           f"s_lshl_b32 s33, s{sW}, 6",
           f"v_max_f32 {v(vQ)}, 0, {v(vQ)}",
           "v_lshl_add_u32 v19, v26, 2, s33",
           f"v_add_f32 {v(vQ)}, {f2u(EPS)}, {v(vQ)}",
           f"v_fmac_f32 {v(vCS)}, {v(vCS)}, {v(vSG)}",
           f"v_rsq_f32 {v(vQ)}, {v(vQ)}",
           "v_lshrrev_b32 v21, 2, v26",
           "v_and_b32 v26, 3, v26",
           f"v_mul_f32 v20, {v(vM)}, {v(vQ)}",
           "v_lshl_add_u32 v26, v21, 4, v26",
           "v_lshlrev_b32 v26, 7, v26",
           f"s_lshl_b32 s33, s{sW}, 7",
           f"s_add_u32 s33, s33, s{sRT}",
           "s_lshl_b32 s33, s33, 2",
           f"s_cmp_eq_u32 s{sCT}, 0\ns_cselect_b32 s18, {S*4}, 0"]
    DEPTH = 7
    for n in range(DEPTH):
        rd(n)
    k.stamp()
    extra = 0
    for n in range(56):
        t, b = seq[n]
        left = min(DEPTH - 1, 55 - n)
        k(f"s_waitcnt lgkmcnt({left + (2 if 40 < n <= 40 + DEPTH else 0)})")
        acc = vA + 16 * (t // 7) + 4 * b
        c = "0" if t % 7 == 0 else v(acc, 4)
        k(f"v_mfma_f32_16x16x32_bf16 {v(acc,4)}, {v(vR+4*(n%8),4)}, {v(vF+4*(t%7),4)}, {c}")
        if n + DEPTH < 56:
            rd(n + DEPTH)
        if n >= 4 and fin:
            k(fin.pop(0))
        if n == 40:
            assert not fin
            k("s_mov_b64 exec, s[46:47]")
            k(f"ds_write_b32 v19, {v(vQ)} offset:57344")
            k("ds_write_b32 v19, v20 offset:57600")
            k(f"buffer_store_dword {v(vM)}, v26, s[16:19], s33 offen")
            k("s_mov_b64 exec, -1")
    if EARLY == 2:
        side_store(False)
    k("s_barrier")
    k.stamp()
    k("v_lshrrev_b32 v24, 4, v1")
    k("v_lshlrev_b32 v24, 4, v24")
    for b in range(4):
        k(f"ds_read_b128 {v(vSt+4*b,4)}, v24 offset:{57344 + 64*b}")
        k(f"ds_read_b128 {v(vSt+16+4*b,4)}, v24 offset:{57600 + 64*b}")
    for n in range(16):
        k(f"v_fmac_f32 {v(vA+n)}, {v(vA+16+n)}, {v(vSG)}")
    k("v_and_b32 v8, 15, v1")
    k("v_and_b32 v9, 7, v1")
    k("v_lshrrev_b32 v10, 3, v24")
    k("v_xor_b32 v10, v10, v9")
    k("v_lshlrev_b32 v10, 4, v10")
    k("v_lshl_add_u32 v10, v8, 7, v10")
    k("v_add_u32 v10, s27, v10")
    k("v_xor_b32 v11, 16, v10")
    k("v_lshlrev_b32 v12, 4, v1")
    k("v_add_u32 v12, s27, v12")
    k("v_lshrrev_b32 v13, 3, v1")
    k("v_xor_b32 v9, v9, v13")
    k("v_lshlrev_b32 v9, 4, v9")
    k("v_lshl_add_u32 v13, v13, 13, v9")
    k("s_lshl_b32 s28, s28, 13")
    k("s_lshl_b32 s30, s30, 12")
    k(f"s_lshl_b32 s33, s{sRT}, 7")
    k("s_add_u32 s33, s33, s30")
    k("s_add_u32 s33, s33, s28")
    k("s_add_u32 s34, s33, 0x10000")
    for h2 in range(2):
        k(f"s_waitcnt lgkmcnt({4-4*h2})")
        for n in range(8 * h2, 8 * h2 + 8):
            k(f"v_mul_f32 {v(vA+n)}, {v(vA+n)}, {v(vSt+n)}")
        for n in range(8 * h2, 8 * h2 + 8):
            k(f"v_fma_f32 {v(vA+n)}, -{v(vSt+16+n)}, {v(vCS)}, {v(vA+n)}")
        for n in range(4 * h2, 4 * h2 + 4):
            k(f"v_cvt_pk_bf16_f32 {v(vR+n)}, {v(vA+2*n)}, {v(vA+2*n+1)}")
    k(f"ds_write_b128 v10, {v(vR,4)}")
    k(f"ds_write_b128 v11, {v(vR+4,4)}")
    k("s_waitcnt lgkmcnt(0)")
    k(f"ds_read_b128 {v(vR+8,4)}, v12")
    k(f"ds_read_b128 {v(vR+12,4)}, v12 offset:1024")
    k("s_waitcnt lgkmcnt(1)")
    k(f"buffer_store_dwordx4 {v(vR+8,4)}, v13, s[12:15], s33 offen{SC}")
    k("s_waitcnt lgkmcnt(0)")
    k(f"buffer_store_dwordx4 {v(vR+12,4)}, v13, s[12:15], s34 offen{SC}")
    if not EARLY:
        side_store(True)
    else:
        k.stamp()
        k.label(FIN)
        k.stamp()
        if k.prof:
            k("s_waitcnt vmcnt(0)")
        k.stamp_flush(6, PROF, sW, 1)
    k.label(END)
    k("s_endpgm")
    k.label(SPW)
    side_loads()
    if K1_T:
        k.srd_off(40, 6, WSB + HP, 64 * 112 * 1024)
        k("s_sub_u32 s44, s2, 224")
        k(f"s_lshl2_add_u32 s44, s44, s{sW}")
        k("v_lshlrev_b32 v8, 7, v1")
        for i in range(K1_T):
            k(f"s_add_u32 s45, s44, {128*i}")
            k("s_mul_i32 s46, s45, 2341")
            k("s_lshr_b32 s46, s46, 16")
            k("s_mul_i32 s47, s46, 28")
            k("s_sub_u32 s45, s45, s47")
            k("s_lshl_b32 s45, s45, 13")
            k(f"s_mul_i32 s46, s46, {4*112*1024}")
            k("s_add_u32 s45, s45, s46")
            k(f"s_add_u32 s45, s45, {112*1024}")
            k(f"buffer_load_dword v{10+i}, v8, s[40:43], s45 offen")
    k(f"s_waitcnt vmcnt({K1_T})")
    k("s_cmp_lg_u32 s2, 255")
    k(f"s_cbranch_scc1 {STORE}")
    k.srd_off(40, 6, WSB + FL, 192 * 256)
    k(f"s_mul_i32 s44, s{sW}, 12288")
    k("s_add_u32 s45, s44, 4096")
    k("s_add_u32 s46, s44, 8192")
    for i in range(4):
        k(f"v_mov_b32 v{4+i}, 0")
    k("v_lshlrev_b32 v8, 4, v1")
    for i in range(4):
        k(f"buffer_store_dwordx4 v[4:7], v8, s[40:43], s44 offen offset:{1024*i}")
        k(f"buffer_store_dwordx4 v[4:7], v8, s[40:43], s45 offen offset:{1024*i}")
        k(f"buffer_store_dwordx4 v[4:7], v8, s[40:43], s46 offen offset:{1024*i}")
    k(f"s_branch {STORE}")
    return k


K2_LDS = 16384
K2_PF = int(os.environ.get("K2_PF", "0"))
K2_IN = int(os.environ.get("K2_IN", "1"))
K2_IN0 = int(os.environ.get("K2_IN0", "16"))
K2_HP = int(os.environ.get("K2_HP", "0"))
K2_SP = int(os.environ.get("K2_SP", "0"))


def cmul8(k, y, x, c, sn, sign):
    neg = " neg_lo:[1,0,0] neg_hi:[1,0,0]"
    for e in range(0, 8, 2):
        k(f"v_pk_mul_f32 {v(y+e,2)}, {v(x+e,2)}, {v(c+e,2)}")
        k(f"v_pk_mul_f32 {v(y+8+e,2)}, {v(x+8+e,2)}, {v(c+e,2)}")
    for e in range(0, 8, 2):
        k(f"v_pk_fma_f32 {v(y+e,2)}, {v(x+8+e,2)}, {v(sn+e,2)}, {v(y+e,2)}" + (neg if sign > 0 else ""))
        k(f"v_pk_fma_f32 {v(y+8+e,2)}, {v(x+e,2)}, {v(sn+e,2)}, {v(y+8+e,2)}" + ("" if sign > 0 else neg))


def gen_k2():
    k = Kern("k2_kernel", 0, 0)
    END = k.lab("end")
    sW, sKK = 20, 2
    PFL = k.lab("pf")
    k("s_cmp_ge_u32 s2, 224")
    k(f"s_cbranch_scc1 {PFL if K2_PF or K2_SP else END}")
    k.stamp()
    k("s_load_dwordx2 s[6:7], s[0:1], 72")
    k("v_lshrrev_b32 v2, 6, v0")
    k("v_and_b32 v1, 63, v0")
    k(f"v_readfirstlane_b32 s{sW}, v2")
    k("v_lshrrev_b32 v4, 4, v1")
    k("v_and_b32 v5, 7, v1")
    k("v_xor_b32 v5, v5, v4")
    k("v_lshrrev_b32 v6, 3, v1")
    k("v_lshlrev_b32 v6, 7, v6")
    k("v_lshl_add_u32 v2, v5, 4, v6")
    k("v_xor_b32 v3, 64, v2")
    k(f"s_lshl_b32 s21, s{sW}, 11")
    k(f"s_lshl_b32 s22, s{sKK}, 13")
    k("s_add_u32 s22, s22, s21")
    k("v_lshlrev_b32 v7, 4, v1")
    k("s_mov_b32 m0, s21")
    k("s_waitcnt lgkmcnt(0)")
    k.srd_off(8, 6, WSB + AT, 224 * 8192)
    k("buffer_load_dwordx4 v2, s[8:11], s22 offen lds")
    k("buffer_load_dwordx4 v3, s[8:11], s22 offen offset:1024 lds")
    k.srd_off(12, 6, WSB + WT, 224 * 8192)
    vWt = 8
    k(f"buffer_load_dwordx4 {v(vWt,4)}, v7, s[12:15], s22 offen")
    k(f"buffer_load_dwordx4 {v(vWt+4,4)}, v7, s[12:15], s22 offen offset:1024")
    if K2_IN:
        k.srd_off(28, 6, WSB + WS, 56 * 57344)
        k("s_lshr_b32 s32, s2, 3")
        k(f"s_lshr_b32 s33, s{sW}, 1")
        k("s_lshl1_add_u32 s32, s32, s33")
        k("s_mul_i32 s32, s32, 57344")
        k(f"s_and_b32 s33, s{sW}, 1")
        k("s_lshl_b32 s33, s33, 13")
        k("s_add_u32 s32, s32, s33")
        k("v_lshlrev_b32 v192, 7, v1")
        k("buffer_load_dword v193, v192, s[28:31], s32 offen")
    if K2_HP:
        k.srd_off(28, 6, WSB + HP, 64 * 112 * 1024)
        k(f"s_lshl2_add_u32 s32, s2, s{sW}")
        k("s_lshl_b32 s32, s32, 13")
        k("v_lshlrev_b32 v192, 7, v1")
        k("buffer_load_dword v194, v192, s[28:31], s32 offen")
    k.stamp()
    k.srd_off(16, 6, WSB + BT, 448 * 4096)
    vC1, vS1, vN1 = 16, 24, 32
    vC2, vS2, vN2 = 40, 48, 56
    vTc, vTs = 64, 72
    vUc, vUs = 80, 88
    vD = 96
    vX = 128
    vY = 144
    vP = 160
    vT = 168
    k("v_and_b32 v5, 15, v1")
    k(f"s_lshl_b32 s23, s{sW}, 4")
    k("v_add_u32 v6, s23, v5")
    k("v_cvt_f32_u32 v2, v6")
    k("v_cvt_f32_u32 v3, v4")

    def packed_table(dc, ds_, step, base, mult):
        for e in range(8):
            if mult[e] == 0:
                k(f"v_mov_b32 {v(vT+e)}, {v(base)}")
            else:
                k(f"v_fmamk_f32 {v(vT+e)}, {v(step)}, {f2u(float(mult[e]))}, {v(base)}")
        for e in range(8):
            k(f"v_cos_f32 {v(vT+8+e)}, {v(vT+e)}")
        for e in range(8):
            k(f"v_sin_f32 {v(vT+e)}, {v(vT+e)}")
        for p in range(4):
            k(f"v_cvt_pk_bf16_f32 {v(dc+p)}, {v(vT+8+2*p)}, {v(vT+8+2*p+1)}")
        for p in range(4):
            k(f"v_cvt_pk_bf16_f32 {v(ds_+p)}, {v(vT+2*p)}, {v(vT+2*p+1)}")

    k(f"v_mul_f32 {v(vY)}, {f2u(1.0/64)}, v2")
    k(f"v_mul_f32 {v(vY+1)}, {f2u(8.0)}, v3")
    k(f"v_mul_f32 {v(vY+1)}, {v(vY+1)}, {v(vY)}")
    packed_table(vC1, vS1, vY, vY + 1, list(range(8)))
    k("s_mov_b32 s24, 0x80008000")
    k("v_and_b32 v6, 1, v1")
    k("v_mul_u32_u24 v6, 0x8000, v6")
    k("v_lshl_or_b32 v6, v6, 16, v6")
    for p in range(4):
        k(f"v_xor_b32 {v(vC1+4+p)}, v6, {v(vC1+p)}")
        k(f"v_xor_b32 {v(vS1+4+p)}, v6, {v(vS1+p)}")
    for p in range(8):
        k(f"v_xor_b32 {v(vN1+p)}, s24, {v(vS1+p)}")
    k("v_lshrrev_b32 v6, 1, v5")
    k("v_xor_b32 v6, v6, v4")
    k("v_lshlrev_b32 v6, 4, v6")
    k(f"v_lshl_add_u32 {v(vP)}, v5, 7, v6")
    k(f"v_xor_b32 {v(vP+1)}, 64, {v(vP)}")
    m2 = [0, 1, 2, 3, 16, 17, 18, 19]
    k("v_cvt_f32_u32 v6, v5")
    k(f"v_mul_f32 {v(vY)}, {f2u(1.0/32)}, v6")
    k(f"v_mul_f32 {v(vY+1)}, 4.0, v3")
    k(f"v_mul_f32 {v(vY+1)}, {v(vY+1)}, {v(vY)}")
    packed_table(vC2, vS2, vY, vY + 1, m2)
    k("s_brev_b32 s25, 1")
    for p in range(4):
        k(f"v_xor_b32 {v(vC2+4+p)}, s25, {v(vC2+p)}")
        k(f"v_xor_b32 {v(vS2+4+p)}, s25, {v(vS2+p)}")
    for p in range(8):
        k(f"v_xor_b32 {v(vN2+p)}, s24, {v(vS2+p)}")

    k(f"v_mul_f32 {v(vY)}, {f2u(1.0/2048)}, v2")
    k(f"v_mul_f32 {v(vY+1)}, 4.0, v3")
    k(f"v_mul_f32 {v(vY+1)}, {v(vY+1)}, {v(vY)}")
    m2 = [0, 1, 2, 3, 16, 17, 18, 19]
    k.stamp()
    k(f"s_waitcnt vmcnt({2+K2_IN+K2_HP})")
    k("s_barrier")
    k.stamp()
    for plane in range(2):
        for blk in range(2):
            for t in range(2):
                k(f"ds_read_b128 {v(vD+16*plane+8*blk+4*t,4)}, {v(vP+t)} offset:{plane*4096+blk*2048}")
    for e in range(8):
        if m2[e] == 0:
            k(f"v_mov_b32 {v(vTs+e)}, {v(vY+1)}")
        else:
            k(f"v_fmamk_f32 {v(vTs+e)}, {v(vY)}, {f2u(float(m2[e]))}, {v(vY+1)}")

    def dft_big(cr, ci, first_wait):
        for t in range(2):
            for blk in range(2):
                ar, ai = vD + 8 * blk + 4 * t, vD + 16 + 8 * blk + 4 * t
                xr, xi = vX + 4 * blk, vX + 8 + 4 * blk
                c0r = "0" if t == 0 else v(xr, 4)
                c0i = "0" if t == 0 else v(xi, 4)
                k(f"v_mfma_f32_16x16x32_bf16 {v(xr,4)}, {v(ar,4)}, {v(vC1+4*t,4)}, {c0r}")
                k(f"v_mfma_f32_16x16x32_bf16 {v(xi,4)}, {v(ai,4)}, {v(vC1+4*t,4)}, {c0i}")
                first_wait()
                k(f"v_mfma_f32_16x16x32_bf16 {v(xr,4)}, {v(ai,4)}, {v(cr+4*t,4)}, {v(xr,4)}")
                k(f"v_mfma_f32_16x16x32_bf16 {v(xi,4)}, {v(ar,4)}, {v(ci+4*t,4)}, {v(xi,4)}")
                first_wait()

    if CODEPF:
        k("s_lshr_b32 s34, s2, 3")
        k("s_min_u32 s34, s34, (k3_code_end-k3_kernel)/1024-1")
        code_prefetch(k, "k3_kernel", 34, 7, 184, 36)
    k("s_waitcnt lgkmcnt(0)")
    fill = []
    for e in range(8):
        fill.append(f"v_cos_f32 {v(vTc+e)}, {v(vTs+e)}")
    for e in range(8):
        fill.append(f"v_sin_f32 {v(vTs+e)}, {v(vTs+e)}")

    def filler():
        for _ in range(2):
            if fill:
                k(fill.pop(0))

    dft_big(vS1, vN1, filler)
    assert not fill
    def pack():
        for p in range(4):
            k(f"v_cvt_pk_bf16_f32 {v(vP+p)}, {v(vY+2*p)}, {v(vY+2*p+1)}")
            k(f"v_cvt_pk_bf16_f32 {v(vP+4+p)}, {v(vY+8+2*p)}, {v(vY+8+2*p+1)}")

    cmul8(k, vY, vX, vTc, vTs, -1)
    pack()
    for blk in range(2):
        xr, xi = vX + 4 * blk, vX + 8 + 4 * blk
        k(f"v_mfma_f32_16x16x32_bf16 {v(xr,4)}, {v(vC2+4*blk,4)}, {v(vP,4)}, 0")
        k(f"v_mfma_f32_16x16x32_bf16 {v(xi,4)}, {v(vC2+4*blk,4)}, {v(vP+4,4)}, 0")
        k(f"v_mfma_f32_16x16x32_bf16 {v(xr,4)}, {v(vS2+4*blk,4)}, {v(vP+4,4)}, {v(xr,4)}")
        k(f"v_mfma_f32_16x16x32_bf16 {v(xi,4)}, {v(vN2+4*blk,4)}, {v(vP,4)}, {v(xi,4)}")
    k(f"v_mul_f32 {v(vT)}, {f2u(1.0/2048)}, v6")
    k(f"v_add_f32 {v(vT+1)}, {f2u(16.0/2048)}, {v(vT)}")
    k("v_lshl_add_u32 v2, v4, 2, s23")
    k("v_cvt_f32_u32 v2, v2")
    for r in range(4):
        for blk in range(2):
            k(f"v_mul_f32 {v(vUs+4*blk+r)}, v2, {v(vT+blk)}")
        if r < 3:
            k("v_add_f32 v2, 1.0, v2")
    k.stamp()
    k(f"s_waitcnt vmcnt({K2_IN+K2_HP+CODEPF})")
    for e in range(8):
        k(f"v_lshlrev_b32 {v(vTc+e)}, 16, {v(vWt+e)}")
        k(f"v_and_b32 {v(vTs+e)}, 0xffff0000, {v(vWt+e)}")
    cmul8(k, vY, vX, vTc, vTs, +1)
    pack()
    for blk in range(2):
        xr, xi = vX + 4 * blk, vX + 8 + 4 * blk
        k(f"v_mfma_f32_16x16x32_bf16 {v(xr,4)}, {v(vP,4)}, {v(vC2+4*blk,4)}, 0")
        k(f"v_mfma_f32_16x16x32_bf16 {v(xi,4)}, {v(vP+4,4)}, {v(vC2+4*blk,4)}, 0")
        k(f"v_mfma_f32_16x16x32_bf16 {v(xr,4)}, {v(vP+4,4)}, {v(vN2+4*blk,4)}, {v(xr,4)}")
        k(f"v_mfma_f32_16x16x32_bf16 {v(xi,4)}, {v(vP,4)}, {v(vS2+4*blk,4)}, {v(xi,4)}")
    for e in range(8):
        k(f"v_cos_f32 {v(vUc+e)}, {v(vUs+e)}")
    for e in range(8):
        k(f"v_sin_f32 {v(vUs+e)}, {v(vUs+e)}")
    sc = 2.0 / (S * D)
    k(f"s_cmp_eq_u32 s{sKK}, 223")
    k(f"s_mov_b32 s26, {f2u(sc)}")
    k(f"s_cselect_b32 s26, {f2u(sc/2)}, s26")
    for e in range(8):
        k(f"v_mul_f32 {v(vUc+e)}, s26, {v(vUc+e)}")
        k(f"v_mul_f32 {v(vUs+e)}, s26, {v(vUs+e)}")
    k("v_lshrrev_b32 v2, 1, v4")
    k("v_lshl_add_u32 v2, v2, 4, v5")
    k("v_lshlrev_b32 v2, 4, v2")
    k("v_and_b32 v3, 1, v4")
    k("v_lshl_add_u32 v2, v3, 3, v2")
    k(f"s_lshl_b32 s27, s{sW}, 9")
    k("v_add_u32 v2, s27, v2")
    cmul8(k, vY, vX, vUc, vUs, +1)
    pack()
    for plane in range(2):
        for blk in range(2):
            k(f"ds_write_b64 v2, {v(vP+4*plane+2*blk,2)} offset:{8192+plane*4096+blk*2048}")
    k("s_waitcnt lgkmcnt(0)")
    k.stamp()
    k("s_barrier")
    for t in range(2):
        for blk in range(2):
            for plane in range(2):
                k(f"ds_read_b128 {v(vD+16*plane+8*blk+4*t,4)}, v7 offset:{8192+plane*4096+blk*2048+t*1024}")
    k(f"s_lshl_b32 s27, s{sW}, 10")
    k(f"s_lshl_b32 s22, s{sKK}, 13")
    k("s_add_u32 s22, s22, s27")
    k("s_add_u32 s23, s22, 4096")
    k("s_waitcnt lgkmcnt(0)")
    dft_big(vN1, vS1, lambda: None)
    for p in range(4):
        k(f"v_cvt_pk_bf16_f32 {v(vP+p)}, {v(vX+2*p)}, {v(vX+2*p+1)}")
    k(f"s_cmp_ge_u32 s{sKK}, 112")
    k("s_cselect_b32 s24, s24, 0")
    for p in range(4):
        k(f"v_cvt_pk_bf16_f32 {v(vP+4+p)}, {v(vX+8+2*p)}, {v(vX+8+2*p+1)}")
    for p in range(4):
        k(f"v_xor_b32 {v(vP+4+p)}, s24, {v(vP+4+p)}")
    k(f"buffer_store_dwordx4 {v(vP,4)}, v7, s[16:19], s22 offen{SC}")
    k(f"buffer_store_dwordx4 {v(vP+4,4)}, v7, s[16:19], s23 offen{SC}")
    k.stamp()
    if k.prof:
        k("s_waitcnt vmcnt(0)")
    k.stamp_flush(6, PROF + (1 << 20), sW)
    k.label(END)
    k("s_endpgm")
    k.label("k2_code_end")
    if K2_SP:
        k.label(PFL)
        k("s_cmp_ge_u32 s2, 256")
        k(f"s_cbranch_scc1 {END}")
        k("s_load_dwordx2 s[6:7], s[0:1], 72")
        k("v_lshrrev_b32 v2, 6, v0")
        k("v_and_b32 v1, 63, v0")
        k("v_readfirstlane_b32 s20, v2")
        k("v_lshlrev_b32 v3, 7, v1")
        k("s_sub_u32 s21, s2, 224")
        k("s_lshl2_add_u32 s21, s21, s20")
        k("s_lshl_b32 s21, s21, 13")
        k("s_waitcnt lgkmcnt(0)")
        k.srd_off(8, 6, WSB + HP, 64 * 112 * 1024)
        for i in range(K2_SP):
            k(f"buffer_load_dword v{8+i}, v3, s[8:11], s21 offen")
            k("s_add_u32 s21, s21, 0x100000")
        k("s_endpgm")
    if K2_PF:
        k.label(PFL)
        k("s_cmp_ge_u32 s2, 448")
        k(f"s_cbranch_scc1 {END}")
        k("s_load_dwordx2 s[6:7], s[0:1], 72")
        k("v_lshrrev_b32 v2, 6, v0")
        k("v_and_b32 v1, 63, v0")
        k("v_readfirstlane_b32 s20, v2")
        k("v_lshlrev_b32 v3, 4, v1")
        k("s_lshr_b32 s21, s2, 3")
        k("s_sub_u32 s21, s21, 28")
        k("s_lshr_b32 s22, s20, 1")
        k("s_lshl1_add_u32 s21, s21, s22")
        k("s_mul_i32 s21, s21, 57344")
        k("s_and_b32 s22, s20, 1")
        k(f"s_mul_i32 s22, s22, {K2_PF*1024}")
        k("s_add_u32 s21, s21, s22")
        k("s_waitcnt lgkmcnt(0)")
        k.srd_off(8, 6, WSB + WS, 56 * 57344)
        for i in range(K2_PF):
            k(f"buffer_load_dwordx4 {v(8+4*i,4)}, v3, s[8:11], s21 offen offset:{(i%4)*1024}")
            if i % 4 == 3:
                k("s_add_u32 s21, s21, 4096")
        k("s_endpgm")
    return k


HEADER = """; Fused preLN + GFNet spectral filter + preLN bilinear GLU, generated by gen/gen.py
"""


def build(kernels):
    out = [HEADER.rstrip()]
    for kern, grid, block, lds in kernels:
        out.append(f"; @launch kernel={kern.name} grid=({grid},1,1) block=({block},1,1) lds={lds}")
    out.append('.amdgcn_target "amdgcn-amd-amdhsa--gfx950"')
    out.append(".text")
    descs = []
    seen = set()
    for kern, *_ in kernels:
        if kern.name in seen:
            continue
        seen.add(kern.name)
        body, desc = kern.emit()
        print(kern.name, kern.stats, file=sys.stderr)
        out.append(body)
        descs.append(desc)
    out.append('.section .rodata,"a"')
    for d in descs:
        out.append(".p2align 6")
        out.append(d)
    return "\n".join(out) + "\n"


def kernel_list():
    if MERGE:
        from gen23 import gen_k3, K3_LDS, K3_WGS
        return [(gen_k1(), K1_WGS, 256, K1_LDS), (gen_k3(), K3_WGS, 256, K3_LDS)]
    from gen3 import gen_k3, K3_LDS, K3_WGS
    return [(gen_k1(), K1_WGS, 256, K1_LDS), (gen_k2(), 448 if K2_PF else 256 if K2_SP else 224, 256, K2_LDS), (gen_k3(), K3_WGS, 256, K3_LDS)]


if __name__ == "__main__":
    if "--prof" in sys.argv:
        Kern.prof = True
        sys.argv.remove("--prof")
    path = sys.argv[1] if len(sys.argv) > 1 else "sequential_preLN__spectral_gfnet__glu_gated_bilinear__prompt.s"
    open(path, "w").write(build(kernel_list()))
```

```python
import re

TRANS = ("v_exp_f32", "v_log_f32", "v_rcp_f32", "v_rsq_f32", "v_sqrt_f32", "v_sin_f32", "v_cos_f32")
RMW = ("v_fmac_f32", "v_dot2c_f32_bf16", "v_pk_fmac", "v_writelane_b32")
SWAPS = ("v_swap_b32", "v_permlane16_swap_b32", "v_permlane32_swap_b32")


def v(i, n=1):
    return f"v{i}" if n == 1 else f"v[{i}:{i+n-1}]"


def a(i, n=1):
    return f"a{i}" if n == 1 else f"a[{i}:{i+n-1}]"


def s(i, n=1):
    return f"s{i}" if n == 1 else f"s[{i}:{i+n-1}]"


_REG = re.compile(r"^-?\|?(?:abs\()?([vas])(?:(\d+)|\[(\d+):(\d+)\])\)?\|?$")


def regs_of(tok):
    tok = tok.strip()
    if tok in ("vcc", "exec"):
        return {tok + "_lo", tok + "_hi"}
    if tok in ("vcc_lo", "vcc_hi", "exec_lo", "exec_hi", "m0"):
        return {tok}
    m = _REG.match(tok)
    if not m:
        return set()
    k = m.group(1)
    if m.group(2) is not None:
        return {k + m.group(2)}
    return {k + str(i) for i in range(int(m.group(3)), int(m.group(4)) + 1)}


def is_vec(r):
    return r[0] == "v" and r[1:].isdigit() or r[0] == "a" and r[1:].isdigit()


class Ins:
    def __init__(self, text):
        self.text = text
        t = text.split(";")[0].strip()
        self.label = None
        self.kind = "other"
        self.w = set()
        self.r = set()
        self.srcc = set()
        self.srcab = set()
        self.passes = 0
        self.states = 1
        self.target = None
        self.dpp = False
        self.lds_dma = False
        self.store_data = set()
        self.op = ""
        if not t or t.startswith("."):
            self.kind = "dir"
            self.states = 0
            return
        if t.endswith(":"):
            self.label = t[:-1]
            self.kind = "label"
            self.states = 0
            return
        parts = t.split(None, 1)
        op = parts[0]
        op = re.sub(r"_(e32|e64|dpp|sdwa)$", "", op)
        self.op = op
        rest = parts[1] if len(parts) > 1 else ""
        ops, depth, cur = [], 0, ""
        for ch in rest:
            if ch in "[(":
                depth += 1
            if ch in "])":
                depth -= 1
            if ch == "," and depth == 0:
                ops.append(cur.strip())
                cur = ""
            else:
                cur += ch
        if cur.strip():
            ops.append(cur.strip())
        mods = ""
        if ops:
            last = ops[-1].split(None, 1)
            ops[-1] = last[0]
            mods = last[1] if len(last) > 1 else ""
        self.mods = mods
        R = [regs_of(o) for o in ops]
        if op == "s_nop":
            self.kind = "nop"
            self.states = int(ops[0], 0) + 1
        elif op == "s_waitcnt":
            self.kind = "wait"
            self.vm = self.lgkm = None
            m = re.search(r"vmcnt\((\d+)\)", rest)
            if m:
                self.vm = int(m.group(1))
            m = re.search(r"lgkmcnt\((\d+)\)", rest)
            if m:
                self.lgkm = int(m.group(1))
        elif op.startswith("s_cbranch") or op == "s_branch":
            self.kind = "branch"
            self.target = ops[0]
        elif op in ("s_endpgm",):
            self.kind = "end"
        elif op.startswith("s_load") or op in ("s_memtime", "s_memrealtime"):
            self.kind = "smem"
            self.w = R[0]
            for x in R[1:]:
                self.r |= x
        elif op.startswith("s_"):
            self.kind = "salu"
            if op.startswith("s_cmp") or op.startswith("s_bitcmp") or op in ("s_barrier", "s_sleep", "s_setprio"):
                for x in R:
                    self.r |= x
            else:
                if R:
                    self.w = R[0]
                for x in R[1:]:
                    self.r |= x
                if "saveexec" in op:
                    self.w |= regs_of("exec")
                if op.startswith("s_addk") or op.startswith("s_mulk"):
                    self.r |= R[0]
        elif op.startswith("v_mfma"):
            self.kind = "mfma"
            self.w = R[0]
            self.srcab = R[1] | R[2]
            self.srcc = R[3]
            self.r = self.srcab | self.srcc
            self.passes = 8 if "32x32x16" in op else 4 if "16x16x32" in op or "16x16x16" in op else None
            assert self.passes
        elif op.startswith("v_"):
            self.kind = "valu"
            self.dpp = any(k in mods for k in ("quad_perm", "row_", "wave_"))
            if op.startswith("v_cmp"):
                self.w = R[0]
                for x in R[1:]:
                    self.r |= x
            elif op in SWAPS:
                self.w = R[0] | R[1]
                self.r = R[0] | R[1]
            else:
                self.w = R[0]
                for x in R[1:]:
                    self.r |= x
                if op in RMW or self.dpp:
                    self.r |= R[0]
                if "_co_" in op:
                    self.w |= R[1]
        elif op.startswith("ds_"):
            self.kind = "ds"
            if op.startswith("ds_read") or "permute" in op or "swizzle" in op:
                self.w = R[0]
                for x in R[1:]:
                    self.r |= x
            else:
                for x in R:
                    self.r |= x
        elif op.startswith("buffer_") or op.startswith("global_"):
            self.kind = "vmem"
            self.lds_dma = bool(re.search(r"\blds\b", mods))
            if op in ("buffer_inv", "buffer_wbl2"):
                pass
            elif "load" in op and not self.lds_dma:
                self.w = R[0]
                for x in R[1:]:
                    self.r |= x
            else:
                for x in R:
                    self.r |= x
                if self.lds_dma:
                    self.r.add("m0")
                if "store" in op and ("x3" in op or "x4" in op):
                    self.store_data = R[0] if op.startswith("buffer") else R[1]
                if "atomic" in op and "sc0" in mods:
                    self.w = R[0]
        else:
            raise ValueError("unknown instruction: " + text)


def need(p, c):
    n = 0
    cv = c.kind == "valu"
    if p.kind == "valu":
        pw_s = {x for x in p.w if not is_vec(x)}
        pw_v = p.w - pw_s
        if pw_s & c.r:
            if c.kind == "vmem":
                n = max(n, 5)
            if cv:
                n = max(n, 4 if c.op in ("v_readlane_b32", "v_writelane_b32") else 2)
        if pw_v & c.r:
            if cv and c.dpp:
                n = max(n, 2)
            if c.op in ("v_readlane_b32", "v_readfirstlane_b32"):
                n = max(n, 1)
            if c.op.startswith("v_permlane"):
                n = max(n, 2)
            if c.kind == "mfma":
                n = max(n, 2)
            if p.op in TRANS and cv and c.op not in TRANS:
                n = max(n, 1)
            if p.op in TRANS and c.kind in ("vmem", "ds"):
                n = max(n, 1)
        if p.op.startswith("v_dot") and (pw_v & (c.r | c.w)) and c.kind in ("valu", "vmem", "ds", "mfma"):
            same_chain = c.op == p.op and (pw_v & c.w) and p.op in RMW
            if not same_chain:
                n = max(n, 3)
    if p.kind == "salu" and "m0" in p.w and c.lds_dma:
        n = max(n, 1)
    if p.kind == "vmem" and p.store_data & c.w:
        n = max(n, 2 if cv else 1)
    if p.kind == "mfma":
        big = 12 if p.passes == 8 else 8
        if c.kind == "mfma":
            if p.w & c.srcab:
                n = max(n, big)
            if p.w & c.srcc and not (p.w == c.srcc and p.passes == c.passes):
                n = max(n, big - 2)
        elif c.kind in ("valu", "vmem", "ds"):
            if p.w & (c.r | c.w):
                n = max(n, big)
            if cv and p.srcc & c.w:
                n = max(n, 7 if p.passes == 8 else 3)
    return n


WINDOW = 14


def fix_hazards(lines):
    ins = [Ins(t) for t in lines]
    for _ in range(6):
        changed = False
        snap = getattr(fix_hazards, "_snap", {})
        out = []
        state = []
        newsnap = {}
        for c in ins:
            if c.kind == "label":
                for st in snap.get(c.label, []) + newsnap.get(c.label, []):
                    state = state + [[p, d] for p, d in st]
                out.append(c)
                continue
            if c.kind == "dir":
                out.append(c)
                continue
            req = 0
            for p, d in state:
                req = max(req, need(p, c) - d)
            if req > 0:
                changed = True
                while req > 0:
                    k = min(req, 16)
                    nop = Ins(f"s_nop {k-1}")
                    out.append(nop)
                    for e in state:
                        e[1] += k
                    req -= k
            out.append(c)
            for e in state:
                e[1] += c.states
            state = [e for e in state if e[1] < WINDOW]
            if c.kind in ("valu", "mfma", "vmem", "salu"):
                state.append([c, 0])
            if c.kind == "branch":
                newsnap.setdefault(c.target, []).append([(p, d) for p, d in state])
                if c.op == "s_branch":
                    state = []
            if c.kind == "end":
                state = []
        ins = out
        fix_hazards._snap = newsnap
        if not changed and _ > 0:
            break
    fix_hazards._snap = {}
    return ins


def check_waits(ins, name=""):
    vm, lg = [], []
    errs = []
    for n, c in enumerate(ins):
        if c.kind == "wait":
            if c.vm is not None:
                while len(vm) > c.vm:
                    vm.pop(0)
            if c.lgkm is not None:
                if any(k == "smem" for k, _ in lg):
                    if c.lgkm == 0:
                        lg = []
                else:
                    while len(lg) > c.lgkm:
                        lg.pop(0)
            continue
        if c.kind == "end":
            vm, lg = [], []
            continue
        if "; alt" in c.text:
            continue
        touched = c.r | c.w
        for q in (vm, lg):
            for k, w in q:
                if w & touched:
                    errs.append(f"{name}: '{c.text.strip()}' touches {sorted(w & touched)[:4]} with a load pending")
        if c.kind == "vmem" and c.op not in ("buffer_inv",):
            vm.append(("vmem", set(c.w)))
            if len(vm) > 63:
                errs.append(f"{name}: more than 63 vm ops outstanding at '{c.text.strip()}'")
        if c.kind == "ds":
            lg.append(("ds", set(c.w)))
        if c.kind == "smem":
            lg.append(("smem", set(c.w)))
    return errs


class Kern:
    def __init__(self, name, vgpr, agpr, sgpr=96):
        self.name = name
        self.vgpr = vgpr
        self.agpr = agpr
        self.sgpr = sgpr
        self.lines = []
        self._lab = 0

    def __call__(self, text):
        for t in text.split("\n"):
            t = t.strip()
            if t:
                self.lines.append(t)

    def lab(self, stem):
        self._lab += 1
        return f"L_{self.name[:2]}_{stem}_{self._lab}"

    def label(self, name):
        self.lines.append(name + ":")

    def srd(self, d, base, nbytes):
        self(f"s_mov_b32 s{d}, s{base}")
        self(f"s_and_b32 s{d+1}, s{base+1}, 0xffff")
        self(f"s_mov_b32 s{d+2}, {nbytes}")
        self(f"s_mov_b32 s{d+3}, 0x20000")

    def srd_off(self, d, base, off, nbytes):
        self(f"s_add_u32 s{d}, s{base}, {off}")
        self(f"s_addc_u32 s{d+1}, s{base+1}, 0")
        self(f"s_and_b32 s{d+1}, s{d+1}, 0xffff")
        self(f"s_mov_b32 s{d+2}, {nbytes}")
        self(f"s_mov_b32 s{d+3}, 0x20000")

    prof = False
    clock = __import__("os").environ.get("CLOCK", "s_memrealtime")

    def stamp(self, lvl=0):
        sel = __import__("os").environ.get("STAMPSET")
        self._seq = getattr(self, "_seq", 0) + (lvl == 0)
        if not self.prof or (lvl > 0 and not sel):
            return
        if sel and lvl == 0 and not self.name.startswith(("k1", "k2")) and self._seq not in eval(sel):
            return
        n = getattr(self, "_nst", 0)
        self._nst = n + 1
        assert n < 16
        self(f"{self.clock} s[{64+2*n}:{65+2*n}]")
        if not __import__("os").environ.get("NOCHK"):
            self("s_waitcnt lgkmcnt(0)")

    def stamp_flush(self, wsreg, off, wave_sreg, first=0):
        if not self.prof:
            return
        self.stamp(-1)
        self("s_waitcnt lgkmcnt(0)")
        n = self._nst
        self.srd_off(96, wsreg, off, 1 << 20)
        self(f"s_lshl2_add_u32 s100, s2, s{wave_sreg}")
        self("s_lshl_b32 s100, s100, 7")
        for i in range(n):
            self(f"v_mov_b32 v0, s{64+2*i}")
            self(f"buffer_store_dword v0, off, s[96:99], s100 offset:{4*i}")
        self._nst = first

    def emit(self):
        ins = fix_hazards(self.lines)
        errs = check_waits(ins, self.name)
        if errs and not __import__("os").environ.get("NOCHK"):
            raise RuntimeError("\n".join(errs[:20]))
        mv = ma = ms = -1
        for c in ins:
            for r in c.r | c.w:
                if is_vec(r):
                    if r[0] == "v":
                        mv = max(mv, int(r[1:]))
                    else:
                        ma = max(ma, int(r[1:]))
                elif r[0] == "s" and r[1:].isdigit():
                    ms = max(ms, int(r[1:]))
        acc = max(4, (mv + 1 + 3) // 4 * 4)
        nfv = acc + ma + 1 if ma >= 0 else mv + 1
        assert mv < 256 and ma < 256 and ms < 102
        body = [f".globl {self.name}", ".p2align 8", f".type {self.name},@function", f"{self.name}:"]
        for c in ins:
            body.append(c.text if c.kind == "label" else "    " + c.text)
        desc = [
            f".amdhsa_kernel {self.name}",
            f"  .amdhsa_next_free_vgpr {nfv}",
            f"  .amdhsa_next_free_sgpr {max(ms + 1, 16)}",
            f"  .amdhsa_accum_offset {acc}",
            "  .amdhsa_group_segment_fixed_size 0",
            "  .amdhsa_kernarg_size 80",
            "  .amdhsa_user_sgpr_count 2",
            "  .amdhsa_user_sgpr_kernarg_segment_ptr 1",
            "  .amdhsa_system_sgpr_workgroup_id_x 1",
            "  .amdhsa_float_denorm_mode_32 3",
            ".end_amdhsa_kernel",
        ]
        self.stats = dict(vgpr=mv + 1, agpr=ma + 1, sgpr=ms + 1, nins=len(ins),
                          nops=sum(1 for c in ins if c.kind == "nop"))
        return "\n".join(body), "\n".join(desc)
```

```python
import os
import struct
import sys
from asmlib import Kern, v, a

NAME = "sequential_preLN__spectral_gfnet__glu_gated_bilinear__prompt_kernel"
S, D, F = 2048, 448, 1792
AT = BT = 0x000000
WT = HC = 0x200000
HP = 0x400000
M1 = 0xB00000
SSP = 0xB02000
FL = 0xB10000
WS_BYTES = 0xB20000
F_LATE, F_FB, F_P1, F_SP = 16384, 32768, 40960, 41984
PROF = 0x1800000
XB, WRB, WGB = S * D * 2, S * 225 * 2, D * F * 2
EPS = 1e-5
STG, XT, R2, RNG = 57344, 114688, 122880, 123904
LDS = RNG + 32768
SPIN_MAX = 1 << 18

E = lambda n, d: int(os.environ.get(n, d))
KS = E("KS", 8)
DRAIN_A, POLL_A, CHECK_A = E("DRAIN_A", 30), E("POLL_A", 38), E("CHECK_A", 99)
DRAIN_B, POLL_B, CHECK_B = E("DRAIN_B", 13), E("POLL_B", 21), E("CHECK_B", 26)
EPI_B0, RING, RING1, RED0, LATE = E("EPI_B0", 10), E("RING", 12), E("RING1", 8), E("RED0", 31), E("LATE", 46)
MA, NDMA0, WLAT = E("MA", 1), E("NDMA0", 7), E("WLAT", 8)
NP = [int(x) for x in os.environ.get("NP", "8,6,8").split(",")]
NS = [sum(NP)] + [int(x) for x in os.environ.get("NS", "4,4,6,12,8").split(",")]
WBL = eval(os.environ.get("WBL", "(0, F_LATE)"))
SP_LIST = os.environ.get("SP_LIST", "cGd")
SP_D0 = E("SP_D0", 288)
TALL, TD = E("TALL", 0), E("TD", 0)
P4ST = eval(os.environ.get("P4ST", "()"))
P5ST = eval(os.environ.get("P5ST", "()"))
assert sum(NS) == 56 and NS[0] <= 22 and sum(NS[:4]) - NP[0] - NP[1] <= 22 and sum(NS[4:]) <= 22


def f2u(x):
    return "0x%08x" % struct.unpack("<I", struct.pack("<f", x))[0]


class Cnt:
    def __init__(self, k, name, lim):
        self.k, self.name, self.lim, self.n, self.done = k, name, lim, 0, 0

    def op(self, text):
        self.k(text)
        self.n += 1
        return self.n - 1

    def wait(self, idx):
        if idx < self.done:
            return
        c = min(self.n - idx - 1, self.lim)
        self.k(f"s_waitcnt {self.name}({c})")
        self.done = self.n - c

    def all(self):
        self.wait(self.n - 1)


def cmul8(k, y, x, c, sn, sign):
    neg = " neg_lo:[1,0,0] neg_hi:[1,0,0]"
    for e in range(0, 8, 2):
        k(f"v_pk_mul_f32 {v(y+e,2)}, {v(x+e,2)}, {v(c+e,2)}")
        k(f"v_pk_mul_f32 {v(y+8+e,2)}, {v(x+8+e,2)}, {v(c+e,2)}")
    for e in range(0, 8, 2):
        k(f"v_pk_fma_f32 {v(y+e,2)}, {v(x+8+e,2)}, {v(sn+e,2)}, {v(y+e,2)}" + (neg if sign > 0 else ""))
        k(f"v_pk_fma_f32 {v(y+8+e,2)}, {v(x+e,2)}, {v(sn+e,2)}, {v(y+8+e,2)}" + ("" if sign > 0 else neg))


def gen():
    k = Kern(NAME, 0, 0)
    vm = Cnt(k, "vmcnt", 63)
    END, SPARE = k.lab("end"), k.lab("spare")
    sW, sRB, sCT, sHALF, sRT, sFB = 20, 21, 22, 23, 24, 25
    sSB, sXO, sWG, sFL, sWD, sHS, sHP, sFI = 29, 30, 32, 33, 34, 36, 37, 39
    sA, sB = 40, 44
    sXC, sSS, sDBG = 60, 61, 62
    vL16, vG, vC, vL4, vOne, vLP = 3, 4, 5, 30, 2, 0
    vWG, vWT = 250, 251
    outline = []

    def capture(fn):
        saved, k.lines = k.lines, []
        fn()
        out, k.lines = k.lines, saved
        return out

    def spin(load, test, mark=None):
        loop, done = k.lab("poll"), k.lab("done")
        if mark is None:
            mark = vm.op(load)
        vm.wait(mark)
        k(test)
        k(f"s_mov_b32 s50, {SPIN_MAX}")
        k(f"s_cbranch_vccnz {loop}")
        k.label(done)
        outline.append(f"{loop}:\n{load}\ns_sub_u32 s50, s50, 1\ns_waitcnt vmcnt(0)\ns_cmp_eq_u32 s50, 0\n"
                       f"s_cbranch_scc1 {done}\n{test}\ns_nop 0\ns_cbranch_vccnz {loop}\ns_branch {done}")

    def wave0(lines, mask):
        skip = k.lab("skip")
        k(f"s_cmp_lg_u32 s{sW}, 0")
        k(f"s_cbranch_scc1 {skip}")
        k(f"s_mov_b64 exec, {mask}")
        k(lines)
        k("s_mov_b64 exec, -1")
        k.label(skip)

    k("s_cmp_ge_u32 s2, 256")
    k(f"s_cbranch_scc1 {END}")
    k.stamp()
    k("s_load_dwordx2 s[4:5], s[0:1], 0")
    k("s_load_dwordx4 s[52:55], s[0:1], 32")
    k("s_load_dwordx4 s[56:59], s[0:1], 48")
    k(f"s_load_dwordx2 s[{sDBG}:{sDBG+1}], s[0:1], 64")
    k("s_load_dwordx2 s[6:7], s[0:1], 72")
    k("v_lshrrev_b32 v2, 6, v0")
    k("v_and_b32 v1, 63, v0")
    k(f"v_readfirstlane_b32 s{sW}, v2")
    k("s_cmp_ge_u32 s2, 224")
    k(f"s_cbranch_scc1 {SPARE}")
    k("s_lshr_b32 s26, s2, 3")
    k("s_mul_i32 s27, s26, 37")
    k("s_lshr_b32 s27, s27, 8")
    k("s_and_b32 s28, s2, 7")
    k(f"s_lshl2_add_u32 s{sRT}, s28, s27")
    k("s_mul_i32 s28, s27, 7")
    k(f"s_sub_u32 s{sCT}, s26, s28")

    k("v_lshrrev_b32 v4, 5, v1")
    k("v_bfe_u32 v5, v1, 3, 2")
    k("v_lshl_add_u32 v4, v4, 4, v5")
    k("v_mul_u32_u24 v4, 0x7000, v4")
    k("v_lshrrev_b32 v5, 4, v1")
    k("v_and_b32 v6, 7, v1")
    k("v_xor_b32 v6, v6, v5")
    k("v_lshl_add_u32 v2, v6, 4, v4")
    k("v_xor_b32 v3, 64, v2")
    k(f"v_add_u32 v3, {32*32*896}, v3")
    k(f"s_lshl_b32 s26, s{sW}, 7")
    k(f"s_add_u32 s26, s26, s{sRT}")
    k("s_mul_i32 s26, s26, 896")
    k(f"s_lshl_b32 s27, s{sW}, 11")
    vB, vST, vE, vSG, vT, vF, vKK, vOnes, vCS = 8, 9, 9, 17, 19, 28, 27, 152, 156

    def p1_consts():
        k("v_and_b32 v8, 15, v1")
        k(f"s_and_b32 s28, s{sW}, 1")
        k("s_lshl_b32 s28, s28, 4")
        k(f"s_lshl_b32 s29, s{sCT}, 5")
        k("s_add_u32 s28, s28, s29")
        k(f"v_add_u32 {v(vKK)}, s28, v8")
        k("v_lshrrev_b32 v9, 1, v8")
        k("v_xor_b32 v9, v9, v5")
        k("v_lshlrev_b32 v9, 4, v9")
        k("v_lshl_add_u32 v4, v8, 7, v9")
        k(f"v_add_u32 v19, 1, {v(vKK)}")
        k("v_cvt_f32_u32 v20, v19")
        k("v_and_b32 v19, 1, v19")
        k("v_lshlrev_b32 v19, 31, v19")
        k(f"v_or_b32 {v(vSG)}, 1.0, v19")
        for e in range(1, 8):
            k(f"v_mul_f32 {v(vE+e)}, {f2u(e/448.0)}, v20")
        k(f"v_mul_f32 {v(vST)}, {f2u(32.0/448)}, v20")
        k(f"v_fract_f32 {v(vST)}, {v(vST)}")
        k("v_lshlrev_b32 v21, 3, v5")
        k("v_cvt_f32_u32 v21, v21")
        k(f"s_lshr_b32 s30, s{sW}, 1")
        k(f"s_mul_i32 s31, s30, {f2u(0.25)}")
        k(f"v_mov_b32 {v(vB)}, s31")
        k(f"v_fmac_f32 {v(vB)}, v21, {v(vE+1)}")
        k(f"v_fract_f32 {v(vB)}, {v(vB)}")
        k(f"s_and_b32 s{sHALF}, s{sRT}, 1")
        k(f"s_lshr_b32 s{sRB}, s{sRT}, 1")
        k(f"s_mul_i32 s{sFB}, s{sHALF}, 7")
        k(f"s_add_u32 s{sFB}, s{sFB}, s{sCT}")
        k(f"s_lshl_b32 s{sWG}, s{sFB}, 8")
        k(f"s_mul_i32 s35, s{sW}, {4*3584}")
        k(f"s_add_u32 s{sWG}, s{sWG}, s35")
        k(f"s_lshl2_add_u32 s{sFB}, s{sFB}, s{sW}")
        k("v_bfe_u32 v21, v1, 2, 2")
        k("v_xor_b32 v22, v21, v5")
        k("v_and_b32 v23, 3, v1")
        k("v_lshlrev_b32 v22, 6, v22")
        k("v_lshl_add_u32 v22, v23, 4, v22")
        k(f"v_mul_u32_u24 {v(vWG)}, 0xe00, v5")
        k(f"v_add_u32 {v(vWG)}, {v(vWG)}, v22")
        k(f"v_xor_b32 v22, s{sW}, v21")
        k("v_lshlrev_b32 v22, 6, v22")
        k("v_lshl_add_u32 v22, v21, 8, v22")
        k("v_lshl_add_u32 v22, v23, 3, v22")
        k("v_and_b32 v23, 1, v5")
        k("v_lshl_add_u32 v22, v23, 5, v22")
        k("v_lshrrev_b32 v23, 5, v1")
        k("v_lshl_add_u32 v22, v23, 11, v22")
        k(f"v_add_u32 {v(vWT)}, {STG}, v22")
        k(f"v_add_u32 {v(vWT+1)}, {RNG}, v22")
        k(f"s_lshl_b32 s35, s{sW}, 10")
        k("v_xor_b32 v5, 64, v4")
        k("v_add_u32 v6, s27, v4")
        k("v_add_u32 v7, s27, v5")
        for p in range(4):
            k(f"v_mov_b32 {v(vOnes+p)}, 0x3f803f80")
        for t in range(7):
            k(f"v_cos_f32 {v(vT)}, {v(vB)}")
            for e in range(1, 8):
                k(f"v_add_f32 {v(vT+e)}, {v(vB)}, {v(vE+e)}")
            for e in range(1, 8):
                k(f"v_cos_f32 {v(vT+e)}, {v(vT+e)}")
            if t < 6:
                k(f"v_add_f32 {v(vB)}, {v(vB)}, {v(vST)}")
                k(f"v_fract_f32 {v(vB)}, {v(vB)}")
            for p in range(4):
                k(f"v_cvt_pk_bf16_f32 {v(vF+4*t+p)}, {v(vT+2*p)}, {v(vT+2*p+1)}")
            if t > 0:
                k(f"v_mfma_f32_16x16x32_bf16 {v(vCS,4)}, {v(vOnes,4)}, {v(vF+4*t-4,4)}, {'0' if t == 1 else v(vCS,4)}")

    lines = capture(p1_consts)
    per = -(-len(lines) // 14)

    def slot():
        for _ in range(min(per, len(lines))):
            k(lines.pop(0))

    k("s_waitcnt lgkmcnt(0)")
    k.srd(12, 4, XB)
    xs = []
    for i in range(7):
        if i == 0:
            k(f"s_mov_b32 s48, s{sCT}")
        else:
            k("s_add_u32 s48, s48, 1")
            k("s_cmp_eq_u32 s48, 7")
            k("s_cselect_b32 s48, 0, s48")
        k("s_lshl_b32 s49, s48, 7")
        k("s_add_u32 s49, s49, s26")
        k("s_lshl_b32 s51, s48, 13")
        k("s_add_u32 m0, s51, s27")
        vm.op("buffer_load_dwordx4 v2, s[12:15], s49 offen lds")
        slot()
        k("s_add_u32 m0, m0, 1024")
        xs.append(vm.op("buffer_load_dwordx4 v3, s[12:15], s49 offen lds"))
        slot()
    assert not lines
    k.srd(8, 6, WS_BYTES)
    k.srd(sA, 52, WGB)
    k.srd(sB, 54, WGB)
    k.srd(16, 58, XB)
    k("s_mov_b32 s48, s56")
    k("s_mov_b32 s49, s57")
    k(f"v_mfma_f32_16x16x32_bf16 {v(vCS,4)}, {v(vOnes,4)}, {v(vF+24,4)}, {v(vCS,4)}")

    def stg(kp):
        return kp if kp < 11 else kp - 11 if kp < 22 else kp - 22

    sid = []

    def sload(cnt=1):
        for _ in range(cnt):
            n = len(sid)
            kp, m = n // 2, n % 2
            sl = stg(kp)
            k(f"s_add_u32 m0, s35, {(STG + sl*8192 if sl < 7 else RNG + (sl-7)*8192) + m*4096}")
            if n and not m:
                k(f"s_add_u32 s{sWG}, s{sWG}, {16*3584}")
            sid.append(vm.op(f"buffer_load_dwordx4 {v(vWG)}, s[{(sA, sB)[m]}:{(sA, sB)[m]+3}], s{sWG} offen lds"))

    def sread(k0, k1):
        for kp in range(k0, k1):
            sl = stg(kp)
            for m in range(2):
                for u in range(2):
                    k(f"ds_read_b64_tr_b16 {a(8*kp+4*m+2*u,2)}, {v(vWT + (sl >= 7))} offset:{(sl%7 if sl < 7 else sl-7)*8192 + m*4096 + u*1024}")

    k.stamp()
    vR, vSm, vGr = 56, 20, 120

    def stat(t):
        b = vR + 4 * (t % 4)
        k(f"v_mfma_f32_16x16x32_bf16 {v(vSm,4)}, {v(b,4)}, {v(vOnes,4)}, {'0' if t == 0 else v(vSm,4)}")
        k(f"v_mfma_f32_16x16x32_bf16 {v(vGr,4)}, {v(b,4)}, {v(b,4)}, {'0' if t == 0 else v(vGr,4)}")

    if TALL:
        k(f"s_lshl2_add_u32 s51, s2, s{sW}")
        k("s_mul_i32 s50, s51, 335")
        k("s_lshr_b32 s50, s50, 16")
        k("s_mul_i32 s29, s50, 196")
        k("s_sub_u32 s51, s51, s29")
        k("s_lshl_b32 s51, s51, 13")
        k("s_cmp_eq_u32 s50, 1")
        k("s_cselect_b32 s52, s54, s52")
        k("s_cselect_b32 s53, s55, s53")
        k("s_cmp_eq_u32 s50, 2")
        k("s_cselect_b32 s52, s56, s52")
        k("s_cselect_b32 s53, s57, s53")
        k("s_and_b32 s53, s53, 0xffff")
        k("s_cmp_le_u32 s50, 2")
        k(f"s_cselect_b32 s54, {WGB}, 0")
        k("s_mov_b32 s55, 0x20000")
        k("v_lshlrev_b32 v240, 7, v1")
        vm.op("buffer_load_dword v241, v240, s[52:55], s51 offen")
    sload(NP[0])
    k(f"s_lshl_b32 s51, s{sCT}, 13")
    for c in range(7):
        k("v_add_u32 v26, s51, v6")
        k("v_add_u32 v18, s51, v7")
        if c < 6:
            k("s_add_u32 s51, s51, 8192")
            k("s_cmp_eq_u32 s51, 57344")
            k("s_cselect_b32 s51, 0, s51")
        vm.wait(xs[c])
        for par in range(2):
            k(f"ds_read_b128 {v(vR+4*((2*c+par)%4),4)}, v{18 if par else 26}")
        if c > 0:
            k("s_waitcnt lgkmcnt(2)")
            stat(2 * c - 2)
            stat(2 * c - 1)
    k("s_waitcnt lgkmcnt(0)")
    stat(12)
    stat(13)
    k("s_barrier")
    k.stamp()
    vA, vSt, vM, vQ = 88, 124, 24, 25
    seq = [(t, b) for t in range(14) for b in range(4)]

    def rd1(n):
        t, b = seq[n]
        k(f"ds_read_b128 {v(vR+4*(n%8),4)}, v{4+(t&1)} offset:{(t>>1)*8192 + b*2048}")

    fin = ["v_and_b32 v26, 3, v1",
           "v_cmp_eq_u32 s[52:53], 1, v26", "v_cmp_eq_u32 s[54:55], 2, v26", "v_cmp_eq_u32 s[56:57], 3, v26",
           "v_bfe_u32 v26, v1, 2, 2", "v_lshrrev_b32 v19, 4, v1", "v_cmp_eq_u32 s[58:59], v26, v19",
           f"v_cndmask_b32 {v(vM)}, {v(vSm)}, {v(vSm+1)}, s[52:53]", f"v_cndmask_b32 {v(vQ)}, {v(vGr)}, {v(vGr+1)}, s[52:53]",
           f"v_cndmask_b32 {v(vM)}, {v(vM)}, {v(vSm+2)}, s[54:55]", f"v_cndmask_b32 {v(vQ)}, {v(vQ)}, {v(vGr+2)}, s[54:55]",
           f"v_cndmask_b32 {v(vM)}, {v(vM)}, {v(vSm+3)}, s[56:57]", f"v_cndmask_b32 {v(vQ)}, {v(vQ)}, {v(vGr+3)}, s[56:57]",
           f"v_mul_f32 {v(vM)}, {f2u(1.0/448)}, {v(vM)}",
           f"v_mul_f32 {v(vQ)}, {f2u(1.0/448)}, {v(vQ)}",
           "v_and_b32 v26, 15, v1",
           f"v_fma_f32 {v(vQ)}, -{v(vM)}, {v(vM)}, {v(vQ)}",
           f"s_lshl_b32 s33, s{sW}, 6\ns_add_u32 s33, s33, {R2}",
           f"v_max_f32 {v(vQ)}, 0, {v(vQ)}",
           "v_lshl_add_u32 v19, v26, 2, s33",
           f"v_add_f32 {v(vQ)}, {f2u(EPS)}, {v(vQ)}",
           f"v_fmac_f32 {v(vCS)}, {v(vCS)}, {v(vSG)}",
           f"v_rsq_f32 {v(vQ)}, {v(vQ)}",
           "v_lshrrev_b32 v21, 2, v26",
           "v_and_b32 v26, 3, v26",
           f"v_mul_f32 v20, {v(vM)}, {v(vQ)}",
           "v_lshl_add_u32 v26, v21, 4, v26",
           "v_lshlrev_b32 v26, 7, v26",
           f"s_lshl_b32 s33, s{sW}, 7",
           f"s_add_u32 s33, s33, s{sRT}",
           f"s_lshl2_add_u32 s33, s33, {M1}",
           f"s_cmp_eq_u32 s{sCT}, 0\ns_cselect_b32 s33, s33, 0x40000000"]
    DEPTH = 7
    for n in range(DEPTH):
        rd1(n)
    for n in range(56):
        t, b = seq[n]
        k(f"s_waitcnt lgkmcnt({min(DEPTH - 1, 55 - n) + (2 if 40 < n <= 40 + DEPTH else 0)})")
        acc = vA + 16 * (t // 7) + 4 * b
        k(f"v_mfma_f32_16x16x32_bf16 {v(acc,4)}, {v(vR+4*(n%8),4)}, {v(vF+4*(t%7),4)}, {'0' if t % 7 == 0 else v(acc,4)}")
        if n + DEPTH < 56:
            rd1(n + DEPTH)
        if n >= 4 and fin:
            k(fin.pop(0))
        if n == 40:
            assert not fin
            k("s_mov_b64 exec, s[58:59]")
            k(f"ds_write_b32 v19, {v(vQ)}")
            k("ds_write_b32 v19, v20 offset:256")
            vm.op(f"buffer_store_dword {v(vM)}, v26, s[8:11], s33 offen sc1")
            k("s_mov_b64 exec, -1")
        if n % 8 == 3 and len(sid) < NP[0] + NP[1]:
            sload()
    k("s_barrier")
    k("v_lshrrev_b32 v24, 4, v1")
    k("v_lshlrev_b32 v24, 4, v24")
    k(f"v_add_u32 v25, {R2}, v24")
    for b in range(4):
        k(f"ds_read_b128 {v(vSt+4*b,4)}, v25 offset:{64*b}")
        k(f"ds_read_b128 {v(vSt+16+4*b,4)}, v25 offset:{256 + 64*b}")
    for n in range(16):
        k(f"v_fmac_f32 {v(vA+n)}, {v(vA+16+n)}, {v(vSG)}")
    k("v_and_b32 v8, 15, v1")
    k("v_and_b32 v9, 7, v1")
    k("v_lshrrev_b32 v10, 3, v24")
    k("v_xor_b32 v10, v10, v9")
    k("v_lshlrev_b32 v10, 4, v10")
    k("v_lshl_add_u32 v10, v8, 7, v10")
    k("v_add_u32 v10, s27, v10")
    k("v_xor_b32 v11, 16, v10")
    k(f"v_lshlrev_b32 {v(vL16)}, 4, v1")
    k(f"v_add_u32 v12, s27, {v(vL16)}")
    k("v_lshrrev_b32 v13, 3, v1")
    k("v_xor_b32 v9, v9, v13")
    k("v_lshlrev_b32 v9, 4, v9")
    k("v_lshl_add_u32 v13, v13, 13, v9")
    k("s_lshl_b32 s28, s28, 13")
    k("s_lshl_b32 s30, s30, 12")
    k(f"s_lshl_b32 s33, s{sRT}, 7")
    k("s_add_u32 s33, s33, s30")
    k("s_add_u32 s33, s33, s28")
    k("s_add_u32 s34, s33, 0x10000")
    for h2 in range(2):
        k(f"s_waitcnt lgkmcnt({4-4*h2})")
        for n in range(8 * h2, 8 * h2 + 8):
            k(f"v_mul_f32 {v(vA+n)}, {v(vA+n)}, {v(vSt+n)}")
        for n in range(8 * h2, 8 * h2 + 8):
            k(f"v_fma_f32 {v(vA+n)}, -{v(vSt+16+n)}, {v(vCS)}, {v(vA+n)}")
        for n in range(4 * h2, 4 * h2 + 4):
            k(f"v_cvt_pk_bf16_f32 {v(vR+n)}, {v(vA+2*n)}, {v(vA+2*n+1)}")
    k(f"ds_write_b128 v10, {v(vR,4)}")
    k(f"ds_write_b128 v11, {v(vR+4,4)}")
    k("s_waitcnt lgkmcnt(0)")
    k(f"ds_read_b128 {v(vR+8,4)}, v12")
    k(f"ds_read_b128 {v(vR+12,4)}, v12 offset:1024")
    k(f"v_lshlrev_b32 {v(vL4)}, 2, v1")
    k(f"v_min_u32 v14, 28, {v(vL4)}")
    k("s_waitcnt lgkmcnt(1)")
    vm.op(f"buffer_store_dwordx4 {v(vR+8,4)}, v13, s[8:11], s33 offen sc1")
    k("s_waitcnt lgkmcnt(0)")
    at_st = vm.op(f"buffer_store_dwordx4 {v(vR+12,4)}, v13, s[8:11], s34 offen sc1")
    zload = f"global_load_dword v31, v14, s[{sDBG}:{sDBG+1}] sc1"
    zmark = vm.op(zload)
    k.stamp()

    sKK, vWt = 2, 200
    vC1, vS1, vN1, vC2, vS2, vN2 = 32, 40, 48, 56, 64, 72
    vTc, vTs, vUc, vUs, vD, wX, vY, vP, wT = 80, 88, 96, 104, 112, 144, 160, 176, 184
    m2 = [0, 1, 2, 3, 16, 17, 18, 19]
    k(f"v_lshrrev_b32 {v(vG)}, 4, v1")
    k(f"v_and_b32 {v(vC)}, 15, v1")
    k(f"v_mov_b32 {v(vOne)}, 1")
    k(f"v_min_u32 {v(vLP)}, 220, {v(vL4)}")
    k("v_and_b32 v7, 7, v1")
    k(f"v_xor_b32 v7, v7, {v(vG)}")
    k("v_lshrrev_b32 v8, 3, v1")
    k("v_lshlrev_b32 v8, 7, v8")
    k("v_lshl_add_u32 v211, v7, 4, v8")
    k("v_xor_b32 v212, 64, v211")
    k(f"s_lshl_b32 s{sFL}, s{sRB}, 10")
    k(f"s_add_u32 s{sFL}, s{sFL}, {FL}")
    k(f"s_lshl2_add_u32 s{sFI}, s{sFB}, s{sFL}")
    k(f"s_getreg_b32 s{sXC}, hwreg(HW_REG_XCC_ID, 0, 4)")
    k(f"s_lshr_b32 s26, s{sKK}, 5")
    k("s_lshl_b32 s26, s26, 7")
    k("s_and_b32 s28, s2, 7")
    k("s_lshl_b32 s28, s28, 7")
    k(f"s_add_u32 s28, s28, {F_SP - F_P1 - 128}")
    k("s_sub_u32 s28, s28, s26")
    k("v_lshrrev_b32 v8, 5, v1")
    k(f"v_mad_u32_u24 v213, v8, s28, {v(vL4)}")
    k(f"s_add_u32 s51, s26, {FL + F_P1}")
    k(f"s_lshl_b32 s26, s{sCT}, 5")
    k(f"s_add_u32 s26, s26, s{sRT}")
    k(f"s_lshl2_add_u32 s52, s26, {FL + F_P1}")

    def packed_table(dc, ds_, step, base, mult):
        for e in range(8):
            k(f"v_mov_b32 {v(wT+e)}, {v(base)}" if mult[e] == 0 else
              f"v_fmamk_f32 {v(wT+e)}, {v(step)}, {f2u(float(mult[e]))}, {v(base)}")
        for e in range(8):
            k(f"v_cos_f32 {v(wT+8+e)}, {v(wT+e)}")
        for e in range(8):
            k(f"v_sin_f32 {v(wT+e)}, {v(wT+e)}")
        for p in range(4):
            k(f"v_cvt_pk_bf16_f32 {v(dc+p)}, {v(wT+8+2*p)}, {v(wT+8+2*p+1)}")
        for p in range(4):
            k(f"v_cvt_pk_bf16_f32 {v(ds_+p)}, {v(wT+2*p)}, {v(wT+2*p+1)}")

    k(f"s_lshl_b32 s53, s{sW}, 4")
    k(f"v_add_u32 v210, s53, {v(vC)}")
    k("v_cvt_f32_u32 v208, v210")
    k(f"v_cvt_f32_u32 v209, {v(vG)}")
    k(f"v_mul_f32 {v(vY)}, {f2u(1.0/64)}, v208")
    k(f"v_mul_f32 {v(vY+1)}, {f2u(8.0)}, v209")
    k(f"v_mul_f32 {v(vY+1)}, {v(vY+1)}, {v(vY)}")
    packed_table(vC1, vS1, vY, vY + 1, list(range(8)))
    k("s_mov_b32 s54, 0x80008000")
    k("v_and_b32 v210, 1, v1")
    k("v_mul_u32_u24 v210, 0x8000, v210")
    k("v_lshl_or_b32 v210, v210, 16, v210")
    for p in range(4):
        k(f"v_xor_b32 {v(vC1+4+p)}, v210, {v(vC1+p)}")
        k(f"v_xor_b32 {v(vS1+4+p)}, v210, {v(vS1+p)}")
    for p in range(8):
        k(f"v_xor_b32 {v(vN1+p)}, s54, {v(vS1+p)}")
    spin(zload, "v_cmp_eq_u32 vcc, 0, v31", zmark)
    vm.all()
    k("s_barrier")
    wave0(f"buffer_store_dword {v(vOne)}, off, s[8:11], s52 sc1", 1)
    k.stamp()
    nr1 = len(sid) // 2
    assert len(sid) == NP[0] + NP[1] and len(sid) % 2 == 0
    sload(NP[2])
    sread(0, nr1)
    k(f"v_lshrrev_b32 v210, 1, {v(vC)}")
    k(f"v_xor_b32 v210, v210, {v(vG)}")
    k("v_lshlrev_b32 v210, 4, v210")
    k(f"v_lshl_add_u32 {v(vP)}, {v(vC)}, 7, v210")
    k(f"v_xor_b32 {v(vP+1)}, 64, {v(vP)}")
    k(f"v_cvt_f32_u32 v210, {v(vC)}")
    k(f"v_mul_f32 {v(vY)}, {f2u(1.0/32)}, v210")
    k(f"v_mul_f32 {v(vY+1)}, 4.0, v209")
    k(f"v_mul_f32 {v(vY+1)}, {v(vY+1)}, {v(vY)}")
    packed_table(vC2, vS2, vY, vY + 1, m2)
    k("s_brev_b32 s55, 1")
    for p in range(4):
        k(f"v_xor_b32 {v(vC2+4+p)}, s55, {v(vC2+p)}")
        k(f"v_xor_b32 {v(vS2+4+p)}, s55, {v(vS2+p)}")
    for p in range(8):
        k(f"v_xor_b32 {v(vN2+p)}, s54, {v(vS2+p)}")
    k(f"v_mul_f32 {v(vY)}, {f2u(1.0/2048)}, v208")
    k(f"v_mul_f32 {v(vY+1)}, 4.0, v209")
    k(f"v_mul_f32 {v(vY+1)}, {v(vY+1)}, {v(vY)}")
    for e in range(8):
        k(f"v_mov_b32 {v(vTs+e)}, {v(vY+1)}" if m2[e] == 0 else
          f"v_fmamk_f32 {v(vTs+e)}, {v(vY)}, {f2u(float(m2[e]))}, {v(vY+1)}")
    for e in range(8):
        k(f"v_cos_f32 {v(vTc+e)}, {v(vTs+e)}")
    for e in range(8):
        k(f"v_sin_f32 {v(vTs+e)}, {v(vTs+e)}")
    k(f"v_mul_f32 {v(wT)}, {f2u(1.0/2048)}, v210")
    k(f"v_add_f32 {v(wT+1)}, {f2u(16.0/2048)}, {v(wT)}")
    k(f"v_lshl_add_u32 v208, {v(vG)}, 2, s53")
    k("v_cvt_f32_u32 v208, v208")
    for r in range(4):
        for blk in range(2):
            k(f"v_mul_f32 {v(vUs+4*blk+r)}, v208, {v(wT+blk)}")
        if r < 3:
            k("v_add_f32 v208, 1.0, v208")
    for e in range(8):
        k(f"v_cos_f32 {v(vUc+e)}, {v(vUs+e)}")
    for e in range(8):
        k(f"v_sin_f32 {v(vUs+e)}, {v(vUs+e)}")
    sc = 2.0 / (S * D)
    k(f"s_cmp_eq_u32 s{sKK}, 223")
    k(f"s_mov_b32 s55, {f2u(sc)}")
    k(f"s_cselect_b32 s55, {f2u(sc/2)}, s55")
    for e in range(8):
        k(f"v_mul_f32 {v(vUc+e)}, s55, {v(vUc+e)}")
        k(f"v_mul_f32 {v(vUs+e)}, s55, {v(vUs+e)}")
    k(f"v_lshrrev_b32 v208, 1, {v(vG)}")
    k(f"v_lshl_add_u32 v208, v208, 4, {v(vC)}")
    k("v_lshlrev_b32 v208, 4, v208")
    k(f"v_and_b32 v209, 1, {v(vG)}")
    k("v_lshl_add_u32 v208, v209, 3, v208")
    k(f"s_lshl_b32 s26, s{sW}, 9")
    k("v_add_u32 v208, s26, v208")
    k(f"s_lshl_b32 s26, s{sKK}, 13")
    k("s_add_u32 s56, s26, s27")
    k(f"s_add_u32 s57, s56, {WT}")
    k("s_add_u32 s58, s26, s35")
    k("s_add_u32 s59, s58, 4096")
    k("s_mov_b32 m0, s27")
    k("s_waitcnt lgkmcnt(0)")
    k("s_barrier")
    k.stamp()
    spin("buffer_load_dword v31, v213, s[8:11], s51 offen sc1", "v_cmp_eq_u32 vcc, 0, v31")
    k.stamp()
    vm.op("buffer_load_dwordx4 v211, s[8:11], s56 offen lds")
    at_ld = vm.op("buffer_load_dwordx4 v212, s[8:11], s56 offen offset:1024 lds")
    vm.op(f"buffer_load_dwordx4 {v(vWt,4)}, {v(vL16)}, s[8:11], s57 offen")
    wt_ld = vm.op(f"buffer_load_dwordx4 {v(vWt+4,4)}, {v(vL16)}, s[8:11], s57 offen offset:1024")
    k(f"s_lshl_b32 s26, s{sXC}, 2")
    k("s_lshl_b32 s26, 1, s26")
    k(f"s_lshr_b32 s28, s{sXC}, 3")
    k(f"s_lshl2_add_u32 s28, s28, s{sFL}")
    wave0("v_mov_b32 v31, s26\nbuffer_atomic_add v31, off, s[8:11], s28 offset:768 sc1", 1)
    sload(NS[1])
    vm.wait(at_ld)
    k("s_barrier")
    k.stamp()
    for t in range(2):
        for blk in range(2):
            for plane in range(2):
                k(f"ds_read_b128 {v(vD+16*plane+8*blk+4*t,4)}, {v(vP+t)} offset:{plane*4096+blk*2048}")
    sload(NS[2])

    def dft_big(cr, ci):
        for t in range(2):
            for blk in range(2):
                k(f"s_waitcnt lgkmcnt({6 - 4*t - 2*blk})")
                ar, ai = vD + 8 * blk + 4 * t, vD + 16 + 8 * blk + 4 * t
                xr, xi = wX + 4 * blk, wX + 8 + 4 * blk
                k(f"v_mfma_f32_16x16x32_bf16 {v(xr,4)}, {v(ar,4)}, {v(vC1+4*t,4)}, {'0' if t == 0 else v(xr,4)}")
                k(f"v_mfma_f32_16x16x32_bf16 {v(xi,4)}, {v(ai,4)}, {v(vC1+4*t,4)}, {'0' if t == 0 else v(xi,4)}")
                k(f"v_mfma_f32_16x16x32_bf16 {v(xr,4)}, {v(ai,4)}, {v(cr+4*t,4)}, {v(xr,4)}")
                k(f"v_mfma_f32_16x16x32_bf16 {v(xi,4)}, {v(ar,4)}, {v(ci+4*t,4)}, {v(xi,4)}")

    def pack():
        for p in range(4):
            k(f"v_cvt_pk_bf16_f32 {v(vP+p)}, {v(vY+2*p)}, {v(vY+2*p+1)}")
            k(f"v_cvt_pk_bf16_f32 {v(vP+4+p)}, {v(vY+8+2*p)}, {v(vY+8+2*p+1)}")

    dft_big(vS1, vN1)
    vm.wait(wt_ld)
    for e in range(8):
        k(f"v_lshlrev_b32 {v(wT+e)}, 16, {v(vWt+e)}")
        k(f"v_and_b32 {v(wT+8+e)}, 0xffff0000, {v(vWt+e)}")
    cmul8(k, vY, wX, vTc, vTs, -1)
    pack()
    for blk in range(2):
        xr, xi = wX + 4 * blk, wX + 8 + 4 * blk
        k(f"v_mfma_f32_16x16x32_bf16 {v(xr,4)}, {v(vC2+4*blk,4)}, {v(vP,4)}, 0")
        k(f"v_mfma_f32_16x16x32_bf16 {v(xi,4)}, {v(vC2+4*blk,4)}, {v(vP+4,4)}, 0")
        k(f"v_mfma_f32_16x16x32_bf16 {v(xr,4)}, {v(vS2+4*blk,4)}, {v(vP+4,4)}, {v(xr,4)}")
        k(f"v_mfma_f32_16x16x32_bf16 {v(xi,4)}, {v(vN2+4*blk,4)}, {v(vP,4)}, {v(xi,4)}")
    sload(NS[3] // 2)
    cmul8(k, vY, wX, wT, wT + 8, +1)
    pack()
    for blk in range(2):
        xr, xi = wX + 4 * blk, wX + 8 + 4 * blk
        k(f"v_mfma_f32_16x16x32_bf16 {v(xr,4)}, {v(vP,4)}, {v(vC2+4*blk,4)}, 0")
        k(f"v_mfma_f32_16x16x32_bf16 {v(xi,4)}, {v(vP+4,4)}, {v(vC2+4*blk,4)}, 0")
        k(f"v_mfma_f32_16x16x32_bf16 {v(xr,4)}, {v(vP+4,4)}, {v(vN2+4*blk,4)}, {v(xr,4)}")
        k(f"v_mfma_f32_16x16x32_bf16 {v(xi,4)}, {v(vP,4)}, {v(vS2+4*blk,4)}, {v(xi,4)}")
    sload(NS[3] - NS[3] // 2)
    cmul8(k, vY, wX, vUc, vUs, +1)
    pack()
    for plane in range(2):
        for blk in range(2):
            k(f"ds_write_b64 v208, {v(vP+4*plane+2*blk,2)} offset:{8192+plane*4096+blk*2048}")
    k("s_waitcnt lgkmcnt(0)")
    k("s_barrier")
    for t in range(2):
        for blk in range(2):
            for plane in range(2):
                k(f"ds_read_b128 {v(vD+16*plane+8*blk+4*t,4)}, {v(vL16)} offset:{8192+plane*4096+blk*2048+t*1024}")
    k(f"s_cmp_ge_u32 s{sKK}, 112")
    k("s_cselect_b32 s54, s54, 0")
    dft_big(vN1, vS1)
    for p in range(4):
        k(f"v_cvt_pk_bf16_f32 {v(vP+p)}, {v(wX+2*p)}, {v(wX+2*p+1)}")
    vm.op(f"buffer_store_dwordx4 {v(vP,4)}, {v(vL16)}, s[8:11], s58 offen sc1")
    for p in range(4):
        k(f"v_cvt_pk_bf16_f32 {v(vP+4+p)}, {v(wX+8+2*p)}, {v(wX+8+2*p+1)}")
    for p in range(4):
        k(f"v_xor_b32 {v(vP+4+p)}, s54, {v(vP+4+p)}")
    vm.op(f"buffer_store_dwordx4 {v(vP+4,4)}, {v(vL16)}, s[8:11], s59 offen sc1")
    k.stamp()

    vXO, vM, vTB, vXA, vGm = 10, 12, 14, 18, 32
    cload = f"buffer_load_dwordx2 v[28:29], off, s[8:11], s{sFL} offset:768 sc1"
    k(f"v_and_b32 v6, 1, {v(vG)}")
    k(f"s_and_b32 s29, s{sW}, 1")
    k("s_lshl_b32 s29, s29, 2")
    k("v_lshl_or_b32 v6, v6, 1, s29")
    k("v_and_b32 v7, 7, v1")
    k("v_xor_b32 v6, v6, v7")
    k("v_lshrrev_b32 v8, 3, v1")
    k("v_lshlrev_b32 v9, 12, v8")
    k("v_lshl_add_u32 v6, v6, 4, v9")
    k(f"s_lshl_b32 s28, s{sW}, 15")
    k(f"s_lshl_b32 s27, s{sRT}, 7")
    k("s_add_u32 s51, s28, s27")
    k("s_sub_u32 s52, s27, s28")
    k(f"s_add_u32 s52, s52, {438*4096}")
    k(f"s_bitcmp1_b32 s{sCT}, 0")
    k("s_cselect_b32 s53, s51, s52")
    k("s_cselect_b32 s51, s52, s51")
    k("s_cselect_b32 s54, 0x6000, 0")
    k("s_cselect_b32 s55, 28672, 0")
    k("s_mov_b32 s52, 0x20000")
    k("s_cselect_b32 s52, 0xfffe0000, s52")
    k("v_xor_b32 v6, s54, v6")
    k("v_lshrrev_b32 v9, 5, v1")
    k("v_and_b32 v8, 3, v8")
    k("v_lshl_add_u32 v8, v9, 4, v8")
    k("v_mul_u32_u24 v8, 0x380, v8")
    k(f"v_xor_b32 v7, v7, {v(vG)}")
    k("v_xor_b32 v7, s29, v7")
    k(f"v_lshl_add_u32 {v(vXO)}, v7, 4, v8")
    k(f"s_lshr_b32 s26, s{sRT}, 3")
    k("s_lshl_b32 s26, s26, 9")
    k(f"s_lshl_b32 s28, s{sHALF}, 8")
    k("s_add_u32 s26, s26, s28")
    k(f"s_and_b32 s28, s{sRB}, 3")
    k(f"s_lshl2_add_u32 s{sSB}, s28, s26")
    k(f"s_lshl_b32 s26, s{sW}, 5")
    k(f"s_add_u32 s26, s26, s{sSB}")
    k("s_mul_i32 s26, s26, 896")
    k(f"s_lshl_b32 s28, s{sCT}, 7")
    k(f"s_add_u32 s{sXO}, s26, s28")
    k(f"s_add_u32 s{sXO+1}, s{sXO}, {128*896}")
    k("v_bfe_u32 v7, v1, 3, 2")
    k("v_bfe_u32 v8, v1, 2, 1")
    k("v_lshlrev_b32 v8, 4, v8")
    k("v_lshl_add_u32 v7, v7, 5, v8")
    k("v_and_b32 v8, 3, v1")
    k("v_add_lshl_u32 v11, v7, v8, 2")
    k(f"s_lshl2_add_u32 s56, s{sSB}, {M1}")
    k("v_lshlrev_b32 v213, 10, v1")
    k(f"s_lshl2_add_u32 s57, s2, {FL + F_FB}")
    k("s_and_b32 s58, s2, 7")
    k("s_lshl_b32 s58, s58, 10")
    k(f"s_add_u32 s58, s58, {FL + F_FB}")
    k(f"v_min_u32 v214, 880, {v(vL16)}")
    vm.all()
    k("s_barrier")
    wave0(f"buffer_store_dword {v(vOne)}, v213, s[8:11], s57 offen sc1", "0xff")
    k.stamp()
    nr2 = len(sid) // 2
    sread(nr1, nr2)
    k(f"s_add_u32 m0, s35, {XT}")
    vm.op(f"buffer_load_dwordx4 {v(vXO)}, s[12:15], s{sXO} offen lds")
    k(f"s_add_u32 m0, s35, {XT+4096}")
    vm.op(f"buffer_load_dwordx4 {v(vXO)}, s[12:15], s{sXO+1} offen lds")
    k("s_waitcnt lgkmcnt(0)")
    k("s_barrier")

    def p3_consts():
        vB, vST, vE, vT = 14, 15, 15, 20
        k(f"s_lshl_b32 s26, s{sCT}, 6")
        k(f"s_lshl_b32 s27, s{sW}, 4")
        k("s_add_u32 s26, s26, s27")
        k(f"v_add_u32 v27, s26, {v(vC)}")
        k("v_cvt_f32_u32 v27, v27")
        for p in range(1, 4):
            k(f"v_mul_f32 {v(vE+p)}, {f2u(p/448.0)}, v27")
        k(f"v_mul_f32 {v(vST)}, {f2u(16.0/448)}, v27")
        k(f"v_fract_f32 {v(vST)}, {v(vST)}")
        k(f"v_lshl_add_u32 v19, {v(vG)}, 2, 1")
        k("v_cvt_f32_u32 v19, v19")
        k(f"v_mul_f32 {v(vB)}, v19, {v(vE+1)}")
        k(f"v_fract_f32 {v(vB)}, {v(vB)}")
        for t in range(7):
            k(f"v_cos_f32 {v(vT+4)}, {v(vB)}")
            k(f"v_sin_f32 {v(vT)}, {v(vB)}")
            for p in range(1, 4):
                k(f"v_add_f32 {v(vT+p)}, {v(vB)}, {v(vE+p)}")
            if t < 6:
                k(f"v_add_f32 {v(vB)}, {v(vB)}, {v(vST)}")
                k(f"v_fract_f32 {v(vB)}, {v(vB)}")
            for p in range(1, 4):
                k(f"v_cos_f32 {v(vT+4+p)}, {v(vT+p)}")
                k(f"v_sin_f32 {v(vT+p)}, {v(vT+p)}")
            for p in range(4):
                k(f"v_cvt_pk_bf16_f32 {v(vGm+4*t+p)}, {v(vT+4+p)}, -{v(vT+p)}")
        k("v_bfe_u32 v7, v1, 2, 2")
        k(f"v_lshlrev_b32 v8, 10, {v(vG)}")
        k("v_lshl_add_u32 v8, v7, 7, v8")
        k("v_and_b32 v9, 3, v1")
        k("v_lshl_add_u32 v8, v9, 3, v8")
        k("v_lshrrev_b32 v7, 1, v7")
        k(f"v_and_b32 v9, 1, {v(vG)}")
        k("v_lshl_add_u32 v7, v9, 1, v7")
        k(f"v_lshl_add_u32 {v(vTB)}, v7, 5, v8")
        for nb in range(1, 4):
            k(f"v_xor_b32 {v(vTB+nb)}, {32*nb}, {v(vTB)}")
        k("v_lshrrev_b32 v7, 5, v1")
        k(f"s_lshl_b32 s26, s{sW}, 1")
        k("v_or_b32 v7, s26, v7")
        k("v_bfe_u32 v8, v1, 1, 3")
        k("v_xor_b32 v7, v7, v8")
        k("v_and_b32 v8, 31, v1")
        k("v_lshlrev_b32 v8, 7, v8")
        k("v_lshl_add_u32 v7, v7, 4, v8")
        k(f"v_add_u32 {v(vXA)}, {XT}, v7")

    lines = capture(p3_consts)
    per = -(-len(lines) // (NS[4] + 1))
    for i in range(NS[4]):
        sload()
        slot()
    slot()
    k("s_add_u32 m0, s35, s55")
    k.stamp()
    spin("buffer_load_dwordx4 v[216:219], v214, s[8:11], s58 offen sc1",
         "v_and_b32 v216, v216, v217\nv_and_b32 v218, v218, v219\nv_and_b32 v216, v216, v218\nv_cmp_eq_u32 vcc, 0, v216")
    k.stamp()
    census = vm.op(cload)
    for hf in range(2):
        for t in range(7):
            if t == 6:
                k(f"s_cmp_eq_u32 s{sW}, 3")
                k(f"s_cselect_b32 s28, {224*4096 >> 6}, 0")
                k("s_cmp_lg_u32 s54, 0" if hf == 0 else "s_cmp_eq_u32 s54, 0")
                k("s_cselect_b32 s28, s28, 0")
                k("v_add_u32 v9, 16, v1")
                k("v_and_b32 v9, 64, v9")
                k("v_mad_u32_u24 v9, v9, s28, v6")
            vm.op(f"buffer_load_dwordx4 v{9 if t == 6 else 6}, s[8:11], s{51 if hf == 0 else 53} offen lds")
            if t < 6:
                k("s_add_u32 m0, m0, 4096")
                k("s_add_u32 s51, s51, s52" if hf == 0 else "s_sub_u32 s53, s53, s52")
        if hf == 0:
            k("s_sub_u32 s55, 28672, s55")
            k("s_add_u32 m0, s35, s55")
            k("v_xor_b32 v6, 0x6000, v6")
    vm.op(f"buffer_load_dword {v(vM)}, v11, s[8:11], s56 offen")
    p3_loads = vm.op(f"buffer_load_dword {v(vM+1)}, v11, s[8:11], s56 offen offset:512")
    sload(NS[5])
    k.srd(sA, 48, WGB)
    CL, FAST, SLOW = k.lab("cl"), k.lab("fast"), k.lab("slow")
    k(f"s_mov_b32 s50, {SPIN_MAX}")
    vm.wait(census)
    k.label(CL)
    k("v_readfirstlane_b32 s52, v28")
    k("v_readfirstlane_b32 s53, v29")
    k(f"s_cmp_ge_u32 s{sXC}, 8")
    k("s_cselect_b32 s54, s53, s52")
    k(f"s_lshl_b32 s55, s{sXC}, 2")
    k("s_lshr_b32 s54, s54, s55")
    k("s_and_b32 s54, s54, 15")
    k(f"s_cmp_eq_u32 s54, {14 if not os.environ.get('SLOW') else 15}")
    k(f"s_cbranch_scc1 {FAST}")
    for r in (52, 53):
        k(f"s_lshr_b32 s54, s{r}, 4")
        k("s_and_b32 s54, s54, 0x0f0f0f0f")
        k(f"s_and_b32 s{r}, s{r}, 0x0f0f0f0f")
        k(f"s_add_u32 s{r}, s{r}, s54")
    k("s_add_u32 s52, s52, s53")
    k("s_mul_i32 s52, s52, 0x01010101")
    k("s_lshr_b32 s52, s52, 24")
    k("s_cmp_ge_u32 s52, 14")
    k(f"s_cbranch_scc1 {SLOW}")
    k("s_sub_u32 s50, s50, 1")
    k("s_cmp_eq_u32 s50, 0")
    k(f"s_cbranch_scc1 {SLOW}")
    k(cload)
    k("s_waitcnt vmcnt(0)")
    k(f"s_branch {CL}")
    state = (vm.n, vm.done, getattr(k, "_nst", 0), getattr(k, "_seq", 0))

    def rest(mode):
        vm.n, vm.done, k._nst, k._seq = state
        lg = Cnt(k, "lgkmcnt", 15)

        def arrive(off):
            vm.op(f"buffer_store_dword {v(vOne)}, off, s[8:11], s{sFI} offset:{off}{mode}")

        def pload(off):
            return f"buffer_load_dword v31, {v(vLP)}, s[8:11], s{sFL} offen offset:{off} sc1"

        def poll(off, mark=None):
            spin(pload(off), "v_cmp_eq_u32 vcc, 0, v31", mark)

        def put(q, cnt=1):
            for _ in range(cnt):
                if q:
                    e = q.pop(0)
                    e() if callable(e) else k("\n".join(e))

        vm.wait(p3_loads)
        k("s_barrier")
        k.stamp()
        vR, vA = 88, 120
        seq = [(t, nb) for t in range(14) for nb in range(4)]

        def rd3(n):
            t, nb = seq[n]
            for u in range(2):
                k(f"ds_read_b64_tr_b16 {v(vR+4*(n%8)+2*u,2)}, {v(vTB+nb)} offset:{t*4096+u*512}")

        DEPTH = 6
        for n in range(DEPTH):
            rd3(n)
        if TD:
            k(f"s_and_b32 s26, s{sRT}, 3")
            k(f"s_mul_i32 s27, s{sW}, 7")
            k("s_add_u32 s26, s26, s27")
            k(f"s_mul_i32 s26, s26, {64*896}")
            k(f"s_lshl_b32 s27, s{sCT}, 7")
            k("s_add_u32 s26, s26, s27")
            k(f"s_add_u32 s26, s26, {3*64*896}")
            k("v_mul_u32_u24 v60, 0x380, v1")
            vm.op(f"buffer_load_dword v61, v60, s[{sA}:{sA+3}], s26 offen")
        for n in range(56):
            t, nb = seq[n]
            k(f"s_waitcnt lgkmcnt({2*min(DEPTH-1, 55-n)})")
            acc = vA + 16 * (t // 7) + 4 * nb
            k(f"v_mfma_f32_16x16x32_bf16 {v(acc,4)}, {v(vGm+4*(t%7),4)}, {v(vR+4*(n%8),4)}, {'0' if t % 7 == 0 else v(acc,4)}")
            if n == 32:
                k("s_mov_b32 exec_lo, 0")
                k("s_mov_b32 exec_hi, 0xffff0000")
                k(f"v_mov_b32 {v(vGm+27)}, 0x3f80")
                k("s_mov_b64 exec, -1")
            if n + DEPTH < 56:
                rd3(n + DEPTH)
        vX, vH, vHc, vU = 20, 32, 40, 48
        k(f"ds_read_b128 {v(vX,4)}, {v(vXA)}")
        k(f"ds_read_b128 {v(vX+4,4)}, {v(vXA)} offset:4096")
        k(f"s_mul_i32 s26, s{sRT}, 56")
        k(f"s_lshl2_add_u32 s27, s{sCT}, s{sW}")
        k("s_add_u32 s26, s26, s27")
        k("s_lshl_b32 s26, s26, 10")
        k(f"s_add_u32 s26, s26, {HC}")
        k(f"s_add_u32 s27, s26, {28*1024}")
        for r in range(16):
            k(f"v_{'sub' if r & 1 else 'add'}_f32 {v(vA+r)}, {v(vA+r)}, {v(vA+16+r)}")
        for p in range(2):
            for r in range(4):
                k(f"v_permlane16_swap_b32 {v(vA+8*p+r)}, {v(vA+8*p+4+r)}")
        k("s_waitcnt lgkmcnt(0)")
        for p in range(2):
            for q in range(4):
                k(f"v_lshlrev_b32 {v(vU+2*q)}, 16, {v(vX+4*p+q)}")
                k(f"v_and_b32 {v(vU+2*q+1)}, 0xffff0000, {v(vX+4*p+q)}")
            for e in range(8):
                k(f"v_add_f32 {v(vA+8*p+e)}, {v(vA+8*p+e)}, {v(vU+e)}")
            for e in range(8):
                k(f"v_sub_f32 {v(vA+16+8*p+e)}, {v(vA+8*p+e)}, {v(vM+p)}")
            for q in range(4):
                k(f"v_cvt_pk_bf16_f32 {v(vHc+4*p+q)}, {v(vA+16+8*p+2*q)}, {v(vA+17+8*p+2*q)}")
            hc_st = vm.op(f"buffer_store_dwordx4 {v(vHc+4*p,4)}, {v(vL16)}, s[8:11], s{26+p} offen{mode}")
        vm.wait(sid[55])
        k("s_barrier")
        sread(nr2, 28)
        for p in range(2):
            for q in range(4):
                k(f"v_cvt_pk_bf16_f32 {v(vH+4*p+q)}, {v(vA+8*p+2*q)}, {v(vA+8*p+2*q+1)}")
            k(f"ds_write_b128 {v(vXA)}, {v(vH+4*p,4)} offset:{4096*p}")
        for p in range(2):
            k(f"v_mul_f32 {v(vM+p)}, {v(vA+16+8*p)}, {v(vA+16+8*p)}")
        for e in range(1, 8):
            for p in range(2):
                k(f"v_fmac_f32 {v(vM+p)}, {v(vA+16+8*p+e)}, {v(vA+16+8*p+e)}")
        k(f"s_lshl_b32 s26, s{sW}, 8")
        k(f"s_add_u32 s26, s26, {R2}")
        k(f"v_add_u32 v7, s26, {v(vL4)}")
        k(f"v_permlane32_swap_b32 {v(vM)}, {v(vM+1)}")
        k(f"v_add_f32 {v(vM)}, {v(vM)}, {v(vM+1)}")
        k(f"ds_write_b32 v7, {v(vM)}")
        k.stamp()
        vm.wait(hc_st)
        k("s_waitcnt lgkmcnt(0)")
        arrive(0)
        sDL, sDG, sAB, sST1, sRG = 51, 53, 55, 57, 35
        vB1, vPA, vP1, vDG, vDT = 6, 11, 25, 8, 9
        k(f"s_mul_i32 s{sAB+1}, s{sRB}, 114688")
        k(f"s_add_u32 s{sAB+1}, s{sAB+1}, {HC}")
        k(f"s_mul_i32 s{sDL}, s{sW}, 28672")
        k(f"s_and_b32 s28, s{sW}, 1")
        k("s_mul_i32 s28, s28, 57344")
        k(f"s_lshr_b32 s26, s{sW}, 1")
        k(f"s_lshl_b32 s{sDL+1}, s26, 10")
        k(f"s_add_u32 s{sDL+1}, s{sDL+1}, s28")
        k(f"s_add_u32 s{sDG}, s{sAB+1}, s{sDL}")
        k(f"s_add_u32 s{sDG+1}, s{sAB+1}, s{sDL+1}")
        k(f"v_add_u32 {v(vB1)}, 57344, {v(vL16)}")
        k(f"s_mul_i32 s{sSS}, s{sRT}, 1792")
        k(f"s_add_u32 s{sSS}, s{sSS}, {SSP}")
        k(f"v_add_u32 v7, {R2}, {v(vL4)}")
        k(f"s_mul_i32 s{sHS}, s{sRB}, {4*112}")
        k(f"s_lshl1_add_u32 s{sHS}, s{sFB}, s{sHS}")
        k(f"s_lshl_b32 s{sHS}, s{sHS}, 10")
        k(f"s_add_u32 s{sHS}, s{sHS}, {HP}")
        k(f"v_lshlrev_b32 {v(vPA)}, 12, {v(vG)}")
        k(f"v_lshl_add_u32 {v(vPA)}, {v(vC)}, 4, {v(vPA)}")
        k(f"s_lshl_b32 s{sAB}, s{sRB}, 8")
        k(f"s_mul_i32 s{sHP}, s{sRT}, 224")
        k(f"s_mul_i32 s28, s{sW}, 28")
        k(f"s_add_u32 s{sHP}, s{sHP}, s28")
        k(f"s_lshl_b32 s{sHP}, s{sHP}, 10")
        k(f"s_add_u32 s{sHP}, s{sHP}, {HP}")
        k(f"s_mul_i32 s{sWD}, s{sW}, {448*896}")
        k(f"s_lshl_b32 s28, s{sCT}, 7")
        k(f"s_add_u32 s{sWD}, s{sWD}, s28")
        k(f"s_lshl_b32 s{sRG}, s{sW}, 13")
        k(f"s_add_u32 s{sRG}, s{sRG}, {RNG}")
        k(f"v_and_b32 v12, 1, {v(vG)}")
        k("v_and_b32 v13, 7, v1")
        k("v_lshlrev_b32 v14, 2, v12")
        k("v_xor_b32 v13, v13, v14")
        k("v_lshrrev_b32 v14, 3, v1")
        k("v_mul_u32_u24 v14, 0x380, v14")
        k(f"v_lshl_add_u32 {v(vDG)}, v13, 4, v14")
        k("v_bfe_u32 v13, v1, 2, 2")
        k("v_lshrrev_b32 v14, 5, v1")
        k("v_lshl_add_u32 v14, v14, 2, v13")
        k("v_lshrrev_b32 v13, 1, v13")
        k("v_lshlrev_b32 v13, 6, v13")
        k("v_lshl_add_u32 v13, v14, 7, v13")
        k("v_lshl_add_u32 v13, v12, 5, v13")
        k("v_and_b32 v14, 3, v1")
        k("v_lshl_add_u32 v13, v14, 3, v13")
        k(f"v_add_u32 {v(vDT)}, s{sRG}, v13")
        k(f"v_xor_b32 v26, 64, {v(vDT)}")
        poll(0)
        k.stamp()
        uses = [(kp, b) for kp in range(KS) for b in range(4)]
        uses += [(kp, b) for kp in range(KS, 28) for b in (0, 2)]
        uB = len(uses)
        uses += [(kp, b) for kp in range(KS, 28) for b in (1, 3)]
        last_use = {kp: max(u for u, x in enumerate(uses) if x[0] == kp) for kp in range(28)}
        npair = (28 - KS) // 2
        Dm = []

        def dma():
            i = len(Dm)
            if i < KS:
                sel, off = 0, i * 1024
            else:
                sel, off = 1, ((i - KS) // npair) * 28672 + (KS + 2 * ((i - KS) % npair)) * 1024
            k(f"s_add_u32 m0, s{sDL+sel}, {off}")
            k(f"s_add_u32 s28, s{sDG+sel}, {off}")
            Dm.append(vm.op(f"buffer_load_dwordx4 {v(vL16)}, s[8:11], s28 offen lds"))

        wd_regs = [(0, lambda o, n, i=i: a(224 + 8 * i + o, n)) for i in range(4)]
        wd_regs += [(0, lambda o, n, i=i: v(64 + 8 * i + o, n)) for i in range(8)]
        wd_regs += [(last_use[i] + 1, lambda o, n, i=i: a(8 * i + o, n)) for i in range(16)]
        wdd, wdt = [], []
        shadow = [0]

        def wd_dma(now):
            n = len(wdd)
            if n == 56 or (n >= 8 and not (len(wdt) > 2 * (n - 8) + 1 and wdt[2 * (n - 8) + 1] < lg.done)):
                return False
            k(f"s_add_u32 m0, s{sRG}, {(n % 8) * 1024}")
            if n:
                k(f"s_add_u32 s{sWD}, s{sWD}, {8*896}")
            wdd.append((vm.op(f"buffer_load_dwordx4 {v(vDG)}, s[{sA}:{sA+3}], s{sWD} offen lds"), max(now + WLAT, shadow[0])))
            return True

        def wd_tr(now, force=False):
            n = len(wdt)
            kp, u_, db = n // 4, (n >> 1) & 1, n & 1
            if n == 112 or len(wdd) <= 2 * kp + u_ or (not force and (wd_regs[kp][0] > now or wdd[2 * kp + u_][1] > now)):
                return False
            vm.wait(wdd[2 * kp + u_][0])
            wdt.append(lg.op(f"ds_read_b64_tr_b16 {wd_regs[kp][1](4*db+2*u_, 2)}, v{26 if db else vDT} offset:{(kp % 4) * 2048 + u_ * 1024}"))
            return True

        aQ = 128
        hl = []

        def hload():
            n = len(hl)
            p, kp = n // 28, n % 28
            if p == 1:
                if kp == 0:
                    k(f"s_cmp_eq_u32 s{sHALF}, 0")
                    k("s_movk_i32 s58, 1024")
                    k(f"s_cselect_b32 s{sST1}, 0x4000, s58")
                    k(f"s_cselect_b32 s59, s{sAB}, s{sAB+1}")
                    k("s_cselect_b64 vcc, -1, 0")
                    k(f"s_mul_i32 s58, s{sW}, 28")
                    k(f"s_mul_i32 s58, s58, s{sST1}")
                    k("s_add_u32 s59, s59, s58")
                    k(f"v_cndmask_b32 {v(vP1)}, {v(vL16)}, {v(vPA)}, vcc")
                else:
                    k(f"s_add_u32 s59, s59, s{sST1}")
                hl.append(vm.op(f"buffer_load_dwordx4 {a(aQ+4*(n%24),4)}, {v(vP1)}, s[8:11], s59 offen"))
                return
            hl.append(vm.op(f"buffer_load_dwordx4 {a(aQ+4*(n%24),4)}, {v(vL16)}, s[8:11], s{sHP} offen offset:{(kp%4)*1024}"))
            if kp % 4 == 3:
                k(f"s_add_u32 s{sHP}, s{sHP}, 4096")

        vF, vAcc, LOOK = 32, 128, 4
        accreg = {0: vAcc, 2: vAcc + 32, 1: vAcc + 64, 3: vAcc + 96}
        fr = {}

        def rd4(u):
            kp, b = uses[u]
            fr[u] = lg.op(f"ds_read_b128 {v(vF+4*(u%6),4)}, {v(vL16 if b < 2 else vB1)} offset:{(b&1)*28672+kp*1024}")

        last_st = [None]
        clock = [0]

        def hp_store(b, u):
            vo, off, pol = vL16, u * 1024, mode
            if b == 1:
                vo, off = vPA, 0
                k(f"s_lshl_b32 s38, s{sFB}, 15\ns_add_u32 s38, s38, s{sAB}" if u == 0 else "s_add_u32 s38, s38, 16384")
            elif b == 3:
                if u == 0:
                    k(f"s_lshl_b32 s38, s{sFB}, 11\ns_add_u32 s38, s38, s{sAB+1}")
            else:
                pol = " sc1" if MA else mode
                if u == 0:
                    k(f"s_add_u32 s38, s{sHS}, {b*112*1024}")
            last_st[0] = vm.op(f"buffer_store_dwordx4 {v(accreg[b]+4*u,4)}, {v(vo)}, s[8:11], s38 offen offset:{off}{pol}")
            shadow[0] = clock[0] + (20 if pol else 11)

        def epilogue(ps):
            items = [(b, r) for b in (ps, ps + 2) for r in range(8)]
            out = []
            for i in range(len(items) + 1):
                grp = []
                if i < len(items):
                    b, r = items[i]
                    g_, u_ = accreg[b], accreg[b] + 16
                    grp += [f"v_mul_f32 {v(u_+2*r)}, {v(g_+2*r)}, {v(u_+2*r)}",
                            f"v_mul_f32 {v(u_+2*r+1)}, {v(g_+2*r+1)}, {v(u_+2*r+1)}"]
                if i > 0:
                    b, r = items[i - 1]
                    grp.append(f"v_cvt_pk_bf16_f32 {v(accreg[b]+r)}, {v(accreg[b]+16+2*r)}, {v(accreg[b]+17+2*r)}")
                out.append(grp)
                if i > 0 and items[i - 1][1] % 4 == 3:
                    out.append(lambda b=items[i - 1][0], u=items[i - 1][1] // 4: hp_store(b, u))
            return out

        chunks = {0: 2, 3: 6, 7: 15, 16: 27}
        for _ in range(NDMA0):
            dma()
        k("ds_read2st64_b32 v[12:13], v7 offset1:1")
        k("ds_read2st64_b32 v[14:15], v7 offset0:2 offset1:3")
        k(f"s_lshl_b32 s26, s{sCT}, 8")
        k(f"s_add_u32 s26, s26, s{sSS}")
        k("s_waitcnt lgkmcnt(0)")
        k("v_add_f32 v12, v12, v13")
        k("v_add_f32 v14, v14, v15")
        k("v_add_f32 v12, v12, v14")
        vm.op(f"buffer_store_dword v12, {v(vL4)}, s[8:11], s26 offen{mode}")
        vm.wait(Dm[chunks[0]])
        k("s_barrier")
        k.stamp()
        for u in range(LOOK):
            rd4(u)
        epi = epilogue(0)
        checked = False
        for u in range(112):
            kp, b = uses[u]
            clock[0] = u
            if (u + LOOK) % 4 == 0 and (u + LOOK) // 4 in chunks:
                vm.wait(Dm[chunks[(u + LOOK) // 4]])
                k("s_barrier")
            if u == uB + DRAIN_A:
                assert not epi
                vm.wait(last_st[0])
                arrive(256)
            if u == uB + POLL_A:
                markA = vm.op(pload(256))
            if u == uB + CHECK_A:
                poll(256, markA)
                checked = True
            if u % 2 == 0:
                lg.wait(fr[u + 1])
            busy = u >= uB + 1 and bool(epi)
            for m in range(2):
                acc = accreg[b] + 16 * m
                k(f"v_mfma_f32_32x32x16_bf16 {v(acc,16)}, {a(8*kp+4*m,4)}, {v(vF+4*(u%6),4)}, {'0' if kp == 0 else v(acc,16)}")
                if m == 0:
                    if u + LOOK < 112:
                        rd4(u + LOOK)
                    wd_tr(u)
                if busy:
                    put(epi)
                if m == 1:
                    if len(Dm) < 16 and u % 2 == 0:
                        dma()
                    elif checked and len(hl) < RING and last_use[16 + len(hl) // 2] < u:
                        hload()
                    elif not (u % 3 != 2 and wd_dma(u)):
                        dma() if len(Dm) < 28 else wd_dma(u)
                    if not busy:
                        wd_tr(u)
                if os.environ.get("TL") and m == 1 and not mode:
                    print(u, len(Dm), len(wdd), len(wdt), file=sys.stderr)
            if u in P4ST:
                k.stamp(1)
            if u == uB - 1 or u == 111:
                k.stamp()
        print("after P4: ring loads", len(wdd), "transposed reads", len(wdt), "h loads", len(hl), file=sys.stderr)
        vRW, vRR, vR2, vHR, vSP = 12, 20, 22, 24, 56
        vAc5, vT5 = 128, 192
        fill = epilogue(1)
        clock[0] = -999
        if not checked:
            assert EPI_B0 <= 14
            put(fill, EPI_B0)
            poll(256, markA)
        while fill:
            if len(hl) < 8:
                hload()
            put(fill, 2)
        fill = [["v_and_b32 v6, 31, v1", "v_lshrrev_b32 v7, 5, v1", "v_and_b32 v27, 7, v1", "v_xor_b32 v7, v7, v27"],
                [f"s_lshl_b32 s26, s{sW}, 13", "v_lshlrev_b32 v7, 4, v7", "v_lshl_add_u32 v7, v6, 8, v7", f"v_add_u32 {v(vRW)}, s26, v7"],
                [f"v_xor_b32 {v(vRW+i)}, {32*i}, {v(vRW)}" for i in range(1, 5)],
                [f"v_xor_b32 {v(vRW+i)}, {32*i}, {v(vRW)}" for i in range(5, 8)],
                ["v_lshrrev_b32 v6, 3, v1", f"s_and_b32 s26, s{sW}, 1", "s_lshl_b32 s26, s26, 2", f"v_xor_b32 v7, v27, {v(vG)}",
                 "v_xor_b32 v7, s26, v7"],
                ["v_lshlrev_b32 v7, 1, v7", "v_xor_b32 v7, v7, v6", f"s_lshl_b32 s26, s{sW}, 11", "v_lshlrev_b32 v7, 4, v7"],
                ["v_lshl_add_u32 v7, v6, 8, v7", f"v_add_u32 {v(vRR)}, s26, v7", f"v_xor_b32 {v(vRR+1)}, 16, {v(vRR)}"],
                [f"s_lshl_b32 s26, s{sW}, 10", f"s_add_u32 s26, s26, {XT}", f"v_add_u32 {v(vHR)}, s26, {v(vL16)}",
                 f"s_lshl_b32 s26, s{sW}, 5", "v_lshl_add_u32 v28, v6, 2, s26"]]
        ssl = []

        def ssload(i):
            for j in range(2 * i, min(2 * i + 2, 7)):
                ssl.append(vm.op(f"buffer_load_dword {v(vSP+j)}, {v(vL4)}, s[8:11], s{sSS} offen offset:{256*j}"))

        fill += [lambda i=i: ssload(i) for i in range(4)]
        r2calc = [[f"v_add_f32 {v(vSP)}, {v(vSP)}, {v(vSP+1)}", f"v_add_f32 {v(vSP+2)}, {v(vSP+2)}, {v(vSP+3)}",
                   f"v_add_f32 {v(vSP+4)}, {v(vSP+4)}, {v(vSP+5)}", f"v_add_f32 {v(vSP)}, {v(vSP)}, {v(vSP+6)}"],
                  [f"v_add_f32 {v(vSP+2)}, {v(vSP+2)}, {v(vSP+4)}", f"v_mov_b32 {v(vSP+1)}, {f2u(EPS)}",
                   f"v_add_f32 {v(vSP)}, {v(vSP)}, {v(vSP+2)}", f"v_fmac_f32 {v(vSP+1)}, {f2u(1.0/448)}, {v(vSP)}"],
                  [f"v_rcp_f32 {v(vSP)}, {v(vSP+1)}", "v_add_u32 v29, 128, v28"],
                  [f"ds_bpermute_b32 {v(vR2)}, v28, {v(vSP)}", f"ds_bpermute_b32 {v(vR2+1)}, v29, {v(vSP)}"]]

        def red_write(p):
            q_ = [[f"ds_write_b128 {v(vRW+i)}, {v(vAc5+32*p+4*i,4)} offset:{p*32768}"] for i in range(8)]
            return q_ + [[f"ds_read_b128 {v(vT5+32,4)}, {v(vHR)} offset:{p*4096}"]]

        def red_read(p):
            q_ = [["s_waitcnt lgkmcnt(0)", "s_barrier"] +
                  [f"ds_read_b128 {v(vT5+4*z,4)}, {v(vRR+z)} offset:{p*32768}" for z in range(2)]]
            for j in range(1, 4):
                q_.append([f"ds_read_b128 {v(vT5+8*j+4*z,4)}, {v(vRR+z)} offset:{p*32768+j*8192}" for z in range(2)])
            for h2 in range(2):
                q_.append([t_ for q in (2 * h2, 2 * h2 + 1) for t_ in
                           (f"v_lshlrev_b32 {v(vT5+36+2*q)}, 16, {v(vT5+32+q)}",
                            f"v_and_b32 {v(vT5+37+2*q)}, 0xffff0000, {v(vT5+32+q)}")])
            for j, (d_, s_) in enumerate(((0, 8), (16, 24), (0, 16))):
                for h2 in range(2):
                    q_.append(([f"s_waitcnt lgkmcnt({4 if j == 0 else 0})"] if h2 == 0 and j < 2 else []) +
                              [f"v_add_f32 {v(vT5+d_+r)}, {v(vT5+d_+r)}, {v(vT5+s_+r)}" for r in range(4 * h2, 4 * h2 + 4)])
            for h2 in range(2):
                q_.append([f"v_fmac_f32 {v(vT5+36+r)}, {v(vT5+r)}, {v(vR2+p)}" for r in range(4 * h2, 4 * h2 + 4)])
            q_.append([f"v_cvt_pk_bf16_f32 {v(vT5+8+q)}, {v(vT5+36+2*q)}, {v(vT5+37+2*q)}" for q in range(4)])
            q_.append(lambda: vm.op(f"buffer_store_dwordx4 {v(vT5+8,4)}, {v(vXO)}, s[16:19], s{sXO+p} offen sc1"))
            return q_

        if P5ST:
            k.stamp(1)
        for n in range(56):
            p, kp = n // 28, n % 28
            now = 112 + n
            if n == DRAIN_B:
                vm.wait(last_st[0])
                arrive(512)
            if n == POLL_B:
                markB = vm.op(pload(512))
            if n == CHECK_B:
                k.stamp()
                poll(512, markB)
            if n == 22:
                assert len(wdt) == 112
                vm.wait(ssl[6])
                fill += r2calc
            if n == LATE and F_LATE in WBL:
                k(f"s_add_u32 s26, s{sFI}, {F_LATE}")
                vm.op(f"buffer_store_dword {v(vOne)}, off, s[8:11], s26{mode}")
            if n == 28:
                assert not fill
                fill = red_write(0)
                while fill:
                    if len(hl) < 28 + RING1:
                        hload()
                    put(fill, 2)
            if n == RED0:
                fill = red_read(0)
            if p == 0:
                while len(wdt) < 4 * kp + 4:
                    assert wd_tr(now, True)
                lg.wait(wdt[4 * kp + 3])
            vm.wait(hl[n])
            for dl in range(2):
                acc = vAc5 + 32 * p + 16 * dl
                k(f"v_mfma_f32_32x32x16_bf16 {v(acc,16)}, {wd_regs[kp][1](4*dl, 4)}, {a(aQ+4*(n%24),4)}, {'0' if kp == 0 else v(acc,16)}")
                if len(wdt) < 112:
                    if len(wdt) >= 8:
                        lg.wait(wdt[-8])
                    wd_tr(now)
                    if dl == 1:
                        wd_dma(now)
                if dl == 0:
                    if len(hl) < (28 if n < CHECK_B else 56) and len(hl) < n + 24:
                        hload()
                    else:
                        put(fill)
                else:
                    put(fill)
            if n in P5ST:
                k.stamp(1)
        k.stamp()
        put(fill, 99)
        put(red_write(1), 99)
        put(red_read(1), 99)
        if k.prof:
            k("s_waitcnt vmcnt(0)")
        k.stamp_flush(6, PROF, sW)
        k("s_endpgm")

    k.label(FAST)
    rest("")
    k.label("code_end")
    k.label(SLOW)
    rest(" sc1")
    k.label(END)
    k("s_endpgm")

    k.label(SPARE)
    vm.n = vm.done = 0
    k._nst = min(1, getattr(k, "_nst", 0))
    sE = 21
    vIn, vOut, vSrc, vDst, vLW, vLR = 8, 72, 104, 105, 106, 107
    k("s_load_dwordx4 s[24:27], s[0:1], 8")
    k(f"s_sub_u32 s{sE}, s2, 224")
    k(f"v_lshlrev_b32 {v(vL16)}, 4, v1")
    k("v_and_b32 v4, 7, v1")
    k("v_lshrrev_b32 v5, 3, v1")
    k(f"v_mul_u32_u24 {v(vSrc)}, 0x1c2, v5")
    k(f"v_lshl_add_u32 {v(vSrc)}, v4, 4, {v(vSrc)}")
    k("v_add_u32 v6, 1, v4")
    k("v_lshlrev_b32 v6, 27, v6")
    k("v_and_b32 v6, 0x40000000, v6")
    k(f"v_or_b32 {v(vSrc)}, {v(vSrc)}, v6")
    k("v_xor_b32 v6, v4, v5")
    k("v_lshlrev_b32 v6, 4, v6")
    k(f"v_lshl_add_u32 {v(vDst)}, v5, 16, v6")
    k(f"v_lshl_add_u32 {v(vLW)}, v4, 7, v6")
    k("v_add_u32 v5, 1, v5")
    k("v_lshlrev_b32 v5, 27, v5")
    k("v_and_b32 v5, 0x40000000, v5")
    k(f"v_or_b32 {v(vDst)}, {v(vDst)}, v5")
    k(f"s_lshl_b32 s28, s{sW}, 13")
    k(f"v_add_u32 {v(vLW)}, s28, {v(vLW)}")
    k(f"v_add_u32 {v(vLR)}, s28, {v(vL16)}")
    for i in range(4):
        k(f"v_mov_b32 v{108+i}, 0")
    k(f"s_lshr_b32 s29, s{sE}, 3")
    k(f"s_and_b32 s30, s{sE}, 7")
    k("s_lshl_b32 s31, s30, 5")
    k("s_add_u32 s31, s31, s29")
    k("s_mul_i32 s31, s31, 3600")
    k(f"s_mul_i32 s32, s{sW}, 112")
    k("s_add_u32 s31, s31, s32")
    k("s_add_u32 s31, s31, 2")
    k(f"s_lshl2_add_u32 s33, s{sE}, s{sW}")
    k("s_lshl_b32 s33, s33, 11")
    k(f"s_add_u32 s33, s33, {FL}")
    k(f"s_cmp_lt_u32 s{sE}, 8")
    k("s_cselect_b32 s33, s33, 0x40000000")
    k("s_waitcnt lgkmcnt(0)")
    k.srd(8, 6, WS_BYTES)
    vm.op(f"buffer_store_dwordx4 v[108:111], {v(vL16)}, s[8:11], s33 offen sc1")
    z_st = vm.op(f"buffer_store_dwordx4 v[108:111], {v(vL16)}, s[8:11], s33 offen offset:1024 sc1")
    k.srd(12, 24, WRB)
    k.srd(16, 26, WRB)
    wl = []
    for i in range(2):
        for r in range(4):
            vm.op(f"buffer_load_dwordx4 {v(vIn+32*i+8*r,4)}, {v(vSrc)}, s[12:15], s31 offen")
            last = vm.op(f"buffer_load_dwordx4 {v(vIn+32*i+8*r+4,4)}, {v(vSrc)}, s[16:19], s31 offen")
            k(f"s_add_u32 s31, s31, {64*450}" if r < 3 else f"s_sub_u32 s31, s31, {(192-32)*450}")
        wl.append(last)
        if i == 0:
            vm.wait(z_st)
            k("s_barrier")
            k("v_mov_b32 v2, 1")
            k(f"s_lshl_b32 s34, s{sE}, 2")
            k("v_mov_b32 v6, s34")
            NZ = k.lab("nz")
            k(f"s_cmp_ge_u32 s{sE}, 8")
            k(f"s_cbranch_scc1 {NZ}")
            wave0(f"global_store_dword v6, v2, s[{sDBG}:{sDBG+1}] sc1", 1)
            k.label(NZ)
    k(f"s_mul_i32 s35, s{sW}, {7*65536}")
    k("s_lshr_b32 s36, s29, 1")
    k("s_lshl_b32 s36, s36, 11")
    k("s_add_u32 s35, s35, s36")
    k("s_lshl_b32 s36, s30, 8")
    k("s_add_u32 s35, s35, s36")
    k("s_and_b32 s36, s29, 1")
    k("s_lshl_b32 s36, s36, 7")
    k("s_add_u32 s35, s35, s36")
    k(f"s_add_u32 s35, s35, {WT}")
    k("s_mov_b32 s36, 0x05040100")
    k("s_mov_b32 s37, 0x07060302")
    k("v_lshlrev_b32 v7, 2, v1")
    k("v_min_u32 v6, 28, v7")
    zload = f"global_load_dword v31, v6, s[{sDBG}:{sDBG+1}] sc1".replace("v31", "v112")
    for i in range(2):
        vm.wait(wl[i])
        b_ = vIn + 32 * i
        for e in range(8):
            o = vOut + 4 * e
            for r in range(4):
                k(f"v_perm_b32 {v(o+r)}, {v(b_+8*r+4+(e>>1))}, {v(b_+8*r+(e>>1))}, s{36+(e&1)}")
            k(f"ds_write_b128 {v(vLW)}, {v(o,4)} offset:{1024*e}")
        k("s_waitcnt lgkmcnt(0)")
        for e in range(8):
            k(f"ds_read_b128 {v(b_+4*e,4)}, {v(vLR)} offset:{1024*e}")
        for e in range(8):
            k(f"s_waitcnt lgkmcnt({7-e})")
            vm.op(f"buffer_store_dwordx4 {v(b_+4*e,4)}, {v(vDst)}, s[8:11], s35 offen sc1")
            k("s_add_u32 s35, s35, 8192" if e < 7 else f"s_sub_u32 s35, s35, {7*8192 - 4096}")
    spin(zload, "v_cmp_eq_u32 vcc, 0, v112")
    k("s_barrier")
    k("v_lshlrev_b32 v6, 7, v1")
    k(f"s_lshl2_add_u32 s34, s{sE}, {FL + F_SP}")
    wave0("buffer_store_dword v2, v6, s[8:11], s34 offen sc1", "0xff")
    k.stamp_flush(6, PROF, sW, 2)
    k(f"s_lshr_b32 s22, s{sE}, 3")
    k(f"s_lshl2_add_u32 s22, s22, s{sW}")
    k("s_lshl_b32 s23, s22, 13")
    k.srd(12, 52, WGB)
    k.srd(16, 54, WGB)
    k.srd(24, 56, WGB)
    k.srd(28, 58, XB)
    n = [0]

    def touch(srd, soff, vo=6):
        k(f"buffer_load_dword v{8 + n[0] % 48}, v{vo}, s[{srd}:{srd+3}], s{soff} offen ; alt")
        n[0] += 1

    for job in SP_LIST:
        if job == "c":
            here = k.lab("pc")
            k("s_getpc_b64 s[38:39]")
            k.label(here)
            k(f"s_sub_u32 s38, s38, {here}-{NAME}")
            k("s_subb_u32 s39, s39, 0")
            k("s_min_u32 s40, s22, (code_end-" + NAME + ")/2048")
            k("s_lshl_b32 s40, s40, 11")
            k("v_and_b32 v7, 15, v1")
            k("v_lshl_add_u32 v7, v7, 7, s40")
            k("global_load_dword v60, v7, s[38:39]")
        if job == "G":
            for off in range(SP_D0 * 3584, WGB, 16 * 8192):
                k(f"s_add_u32 s40, s23, {off}")
                touch(12, 40)
                touch(16, 40)
        if job == "d":
            for off in range(0, WGB, 16 * 8192):
                k(f"s_add_u32 s40, s23, {off}")
                touch(24, 40)
        if job == "e":
            for off in range(0, 192 * 896, 16 * 8192):
                for q in range(4):
                    k(f"s_add_u32 s40, s23, {off}")
                    k(f"s_min_u32 s40, s40, {192*896 - 8192}")
                    k(f"s_add_u32 s40, s40, {q*448*896}")
                    touch(24, 40)
        if job == "h":
            k("s_and_b32 s41, s2, 7")
            k(f"s_mul_i32 s41, s41, {8*112*1024}")
            k(f"s_add_u32 s41, s41, {HP}")
            k("s_min_u32 s42, s22, 13")
            k("s_lshl_b32 s42, s42, 13")
            k("s_add_u32 s41, s41, s42")
            for blk in range(4):
                touch(8, 41)
                k(f"s_add_u32 s41, s41, {2*112*1024}")
        if job == "o":
            k(f"s_lshl2_add_u32 s40, s{sE}, s{sW}")
            k("s_lshl_b32 s40, s40, 13")
            touch(28, 40)
            k("s_add_u32 s40, s40, 0x100000")
            touch(28, 40)
    if k.prof:
        k("s_waitcnt vmcnt(0)")
        k.stamp_flush(6, PROF, sW, 2)
    if WBL:
        k("s_cmp_lg_u32 s22, 0")
        k(f"s_cbranch_scc1 {END}")
        k("v_lshlrev_b32 v3, 2, v1")
        k("v_min_u32 v3, 220, v3")
        k("s_and_b32 s22, s2, 7")
        k("s_lshl_b32 s22, s22, 11")
        k(f"s_add_u32 s22, s22, {FL}")
        k(f"s_mov_b32 s23, {SPIN_MAX}")
        for off in WBL:
            lp = k.lab("wl")
            if off == F_LATE:
                k(f"s_add_u32 s22, s22, {F_LATE}")
                off = 0
            k.label(lp)
            k(f"buffer_load_dword v4, v3, s[8:11], s22 offen offset:{off} sc1")
            k(f"buffer_load_dword v5, v3, s[8:11], s22 offen offset:{off+1024} sc1")
            k("s_sub_u32 s23, s23, 1")
            k("s_waitcnt vmcnt(0)")
            k("s_cmp_eq_u32 s23, 0")
            k(f"s_cbranch_scc1 {END}")
            k("v_and_b32 v4, v4, v5")
            k("v_cmp_eq_u32 vcc, 0, v4")
            k("s_sleep 2")
            k(f"s_cbranch_vccnz {lp}")
            k("buffer_wbl2 sc1")
            k("s_waitcnt vmcnt(0)")
    k("s_endpgm")
    for o in outline:
        k(o)
    return k


def build(k, as_list=False):
    body, desc = k.emit()
    print(k.stats, file=sys.stderr)
    head = ["; Fused preLN + GFNet spectral filter + preLN bilinear GLU in one launch (generated by gen/one.py)",
            "; kernarg: 0 A_x, 8 A_w_r, 16 A_w_i, 24 B_x (unused), 32 w_gate, 40 w_up, 48 w_down, 56 out, 64 debug, 72 ws",
            f"; @launch {'kernel=' + k.name + ' ' if as_list else ''}grid=(256,1,1) block=(256,1,1) lds={LDS}",
            '.amdgcn_target "amdgcn-amd-amdhsa--gfx950"', ".text"]
    return "\n".join(head + [body, '.section .rodata,"a"', ".p2align 6", desc]) + "\n"


if __name__ == "__main__":
    if "--prof" in sys.argv:
        Kern.prof = True
        sys.argv.remove("--prof")
    path = sys.argv[1] if len(sys.argv) > 1 else "sequential_preLN__spectral_gfnet__glu_gated_bilinear__prompt.s"
    open(path, "w").write(build(gen(), as_list=len(sys.argv) > 1))
```

```python
import os
import struct
import sys
from asmlib import Kern, v, a

NAME = "sequential_preLN__spectral_gfnet__glu_gated_bilinear__prompt_kernel"
S, D, F = 2048, 448, 1792
AT = BT = 0x000000
WT = HC = 0x200000
HP = 0x400000
M1 = 0xB00000
SSP = 0xB02000
FL = 0xB10000
WS_BYTES = 0xB20000
F_LATE, F_FB, F_P1, F_SP = 16384, 32768, 40960, 41984
PROF = 0x1800000
XB, WRB, WGB = S * D * 2, S * 225 * 2, D * F * 2
EPS = 1e-5
STG, XT, R2, RNG = 57344, 114688, 122880, 123904
LDS = RNG + 32768
SPIN_MAX = 1 << 18

E = lambda n, d: int(os.environ.get(n, d))
KS = E("KS", 8)
DRAIN_A, POLL_A, CHECK_A = E("DRAIN_A", 30), E("POLL_A", 38), E("CHECK_A", 99)
DRAIN_B, POLL_B, CHECK_B = E("DRAIN_B", 13), E("POLL_B", 21), E("CHECK_B", 26)
EPI_B0, RING, RING1, RED0, LATE = E("EPI_B0", 10), E("RING", 12), E("RING1", 8), E("RED0", 31), E("LATE", 46)
MA, NDMA0, WLAT = E("MA", 1), E("NDMA0", 7), E("WLAT", 10)
NP = [int(x) for x in os.environ.get("NP", "8,6,8").split(",")]
NS = [sum(NP)] + [int(x) for x in os.environ.get("NS", "4,4,6,12,8").split(",")]
WBL = eval(os.environ.get("WBL", "(0, F_LATE)"))
SP_LIST = os.environ.get("SP_LIST", "cGd")
SP_D0, SP_K = E("SP_D0", 176), E("SP_K", 18)
TALL, TD, ROTW, ROTS = E("TALL", 0), E("TD", 0), E("ROTW", 0), E("ROTS", 1)
ROTD = E("ROTD", 1)
SCO = os.environ.get("SCO", " sc1")
TPM, TPS, PIPE = E("TPM", 0), E("TPS", 0), E("PIPE", 2)
DRATE = E("DRATE", 2)
TW, T1 = E("TW", 0), E("T1", 0)
P4ST = eval(os.environ.get("P4ST", "()"))
P5ST = eval(os.environ.get("P5ST", "()"))
assert sum(NS) == 56 and NS[0] <= 22 and sum(NS[1:4]) <= 22 and sum(NS[4:]) <= 22


def f2u(x):
    return "0x%08x" % struct.unpack("<I", struct.pack("<f", x))[0]


class Cnt:
    def __init__(self, k, name, lim):
        self.k, self.name, self.lim, self.n, self.done = k, name, lim, 0, 0

    def op(self, text):
        self.k(text)
        self.n += 1
        return self.n - 1

    def wait(self, idx):
        if idx < self.done:
            return
        c = min(self.n - idx - 1, self.lim)
        self.k(f"s_waitcnt {self.name}({c})")
        self.done = self.n - c

    def all(self):
        self.wait(self.n - 1)


def cmul8(k, y, x, c, sn, sign):
    neg = " neg_lo:[1,0,0] neg_hi:[1,0,0]"
    for e in range(0, 8, 2):
        k(f"v_pk_mul_f32 {v(y+e,2)}, {v(x+e,2)}, {v(c+e,2)}")
        k(f"v_pk_mul_f32 {v(y+8+e,2)}, {v(x+8+e,2)}, {v(c+e,2)}")
    for e in range(0, 8, 2):
        k(f"v_pk_fma_f32 {v(y+e,2)}, {v(x+8+e,2)}, {v(sn+e,2)}, {v(y+e,2)}" + (neg if sign > 0 else ""))
        k(f"v_pk_fma_f32 {v(y+8+e,2)}, {v(x+e,2)}, {v(sn+e,2)}, {v(y+8+e,2)}" + ("" if sign > 0 else neg))


def gen():
    k = Kern(NAME, 0, 0)
    vm = Cnt(k, "vmcnt", 63)
    END, SPARE = k.lab("end"), k.lab("spare")
    sW, sRB, sCT, sHALF, sRT, sFB = 20, 21, 22, 23, 24, 25
    sSB, sXO, sWG, sFL, sWD, sHS, sHP, sFI = 29, 30, 32, 33, 34, 36, 37, 39
    sA, sB = 40, 44
    sXC, sSS, sDBG, sROT, sWE = 60, 61, 62, 3, 38
    vL16, vG, vC, vL4, vOne, vLP = 3, 4, 5, 30, 2, 0
    vWG, vWT = 250, 251
    outline = []

    def touch_down(first, srd):
        k(f"s_and_b32 s26, s{sRT}, 3")
        k("s_mul_i32 s26, s26, 7")
        k(f"s_add_u32 s26, s26, s{sW}")
        k(f"s_mul_i32 s26, s26, {64*896}")
        k(f"s_lshl_b32 s27, s{sCT}, 7")
        k("s_add_u32 s26, s26, s27")
        k(f"s_add_u32 s26, s26, {first*64*896 & 0xffffffff}")
        k("v_mul_u32_u24 v244, 0x380, v1")
        return f"buffer_load_dword v{245 + (first > 0)}, v244, s[{srd}:{srd+3}], s26 offen"

    def capture(fn):
        saved, k.lines = k.lines, []
        fn()
        out, k.lines = k.lines, saved
        return out

    def spin(load, test, mark=None):
        loop, done = k.lab("poll"), k.lab("done")
        if mark is None:
            mark = vm.op(load)
        vm.wait(mark)
        k(test)
        k(f"s_mov_b32 s50, {SPIN_MAX}")
        k(f"s_cbranch_vccnz {loop}")
        k.label(done)
        outline.append(f"{loop}:\n{load}\ns_sub_u32 s50, s50, 1\ns_waitcnt vmcnt(0)\ns_cmp_eq_u32 s50, 0\n"
                       f"s_cbranch_scc1 {done}\n{test}\ns_nop 0\ns_cbranch_vccnz {loop}\ns_branch {done}")

    def spin0(load, regs, test, extra=0):
        loop, done, skip = k.lab("pp"), k.lab("pd"), k.lab("ps")
        n = len(regs)
        k(f"s_cmp_lg_u32 s{sW}, 0")
        k(f"s_cbranch_scc1 {skip}")
        k(f"s_mov_b32 s50, {SPIN_MAX}")
        for r in regs[:-1]:
            k(load(r) + " ; alt")
            k(f"s_sleep {PIPE}")
        k.label(loop)
        for i in range(n):
            k(load(regs[(i - 1) % n]) + " ; alt")
            k(f"s_waitcnt vmcnt({n - 1})")
            k(test(regs[i]))
            k("s_nop 0")
            k(f"s_cbranch_vccz {done}")
        k("s_sub_u32 s50, s50, 1")
        k("s_cmp_lg_u32 s50, 0")
        k(f"s_cbranch_scc1 {loop}")
        k.label(done)
        k.label(skip)
        if extra:
            k(f"s_waitcnt vmcnt({extra})")
            vm.done = vm.n
        else:
            vm.all()
        k("s_barrier")

    def wave0(lines, mask):
        skip = k.lab("skip")
        k(f"s_cmp_lg_u32 s{sW}, 0")
        k(f"s_cbranch_scc1 {skip}")
        k(f"s_mov_b64 exec, {mask}")
        k(lines)
        k("s_mov_b64 exec, -1")
        k.label(skip)

    if "c" in SP_LIST:
        here, noc = k.lab("pc"), k.lab("noc")
        k("s_and_b32 s3, s2, 0xffffffe0")
        k("s_cmp_lg_u32 s3, 224")
        k(f"s_cbranch_scc1 {noc}")
        k("s_getpc_b64 s[8:9]")
        k.label(here)
        k("s_bfe_u32 s3, s2, 0x20003")
        k("v_lshrrev_b32 v1, 2, v0")
        k("s_lshl_b32 s3, s3, 13")
        k("v_lshl_add_u32 v1, v1, 7, s3")
        k("global_load_dword v113, v1, s[8:9] ; alt")
        k.label(noc)
    k("s_cmp_ge_u32 s2, 256")
    k(f"s_cbranch_scc1 {END}")
    k.stamp()
    k("s_load_dwordx2 s[4:5], s[0:1], 0")
    k("s_load_dwordx4 s[44:47], s[0:1], 8")
    k("s_load_dwordx4 s[52:55], s[0:1], 32")
    k("s_load_dwordx4 s[56:59], s[0:1], 48")
    k(f"s_load_dwordx2 s[{sDBG}:{sDBG+1}], s[0:1], 64")
    k("s_load_dwordx2 s[6:7], s[0:1], 72")
    k("v_lshrrev_b32 v2, 6, v0")
    k("v_and_b32 v1, 63, v0")
    k(f"v_readfirstlane_b32 s{sW}, v2")
    k("s_cmp_ge_u32 s2, 224")
    k(f"s_cbranch_scc1 {SPARE}")
    k("s_lshr_b32 s26, s2, 3")
    k("s_mul_i32 s27, s26, 37")
    k("s_lshr_b32 s27, s27, 8")
    k("s_and_b32 s28, s2, 7")
    k(f"s_lshl2_add_u32 s{sRT}, s28, s27")
    k("s_mul_i32 s28, s27, 7")
    k(f"s_sub_u32 s{sCT}, s26, s28")

    k("v_lshrrev_b32 v4, 5, v1")
    k("v_bfe_u32 v5, v1, 3, 2")
    k("v_lshl_add_u32 v4, v4, 4, v5")
    k("v_mul_u32_u24 v4, 0x7000, v4")
    k("v_lshrrev_b32 v5, 4, v1")
    k("v_and_b32 v6, 7, v1")
    k("v_xor_b32 v6, v6, v5")
    k("v_lshl_add_u32 v2, v6, 4, v4")
    k("v_xor_b32 v3, 64, v2")
    k(f"v_add_u32 v3, {32*32*896}, v3")
    k(f"s_lshl_b32 s26, s{sW}, 7")
    k(f"s_add_u32 s26, s26, s{sRT}")
    k("s_mul_i32 s26, s26, 896")
    k(f"s_lshl_b32 s27, s{sW}, 11")
    vB, vST, vE, vSG, vT, vF, vKK, vOnes, vCS = 8, 9, 9, 17, 19, 28, 27, 152, 156

    def p1_consts():
        k("v_and_b32 v8, 15, v1")
        k(f"s_and_b32 s28, s{sW}, 1")
        k("s_lshl_b32 s28, s28, 4")
        k(f"s_lshl_b32 s29, s{sCT}, 5")
        k("s_add_u32 s28, s28, s29")
        k(f"v_add_u32 {v(vKK)}, s28, v8")
        k("v_lshrrev_b32 v9, 1, v8")
        k("v_xor_b32 v9, v9, v5")
        k("v_lshlrev_b32 v9, 4, v9")
        k("v_lshl_add_u32 v4, v8, 7, v9")
        k(f"v_add_u32 v19, 1, {v(vKK)}")
        k("v_cvt_f32_u32 v20, v19")
        k("v_and_b32 v19, 1, v19")
        k("v_lshlrev_b32 v19, 31, v19")
        k(f"v_or_b32 {v(vSG)}, 1.0, v19")
        for e in range(1, 8):
            k(f"v_mul_f32 {v(vE+e)}, {f2u(e/448.0)}, v20")
        k(f"v_mul_f32 {v(vST)}, {f2u(32.0/448)}, v20")
        k(f"v_fract_f32 {v(vST)}, {v(vST)}")
        k("v_lshlrev_b32 v21, 3, v5")
        k("v_cvt_f32_u32 v21, v21")
        k(f"s_lshr_b32 s30, s{sW}, 1")
        k(f"s_mul_i32 s31, s30, {f2u(0.25)}")
        k(f"v_mov_b32 {v(vB)}, s31")
        k(f"v_fmac_f32 {v(vB)}, v21, {v(vE+1)}")
        k(f"v_fract_f32 {v(vB)}, {v(vB)}")
        k(f"s_and_b32 s{sHALF}, s{sRT}, 1")
        k(f"s_lshr_b32 s{sRB}, s{sRT}, 1")
        k(f"s_mul_i32 s{sFB}, s{sHALF}, 7")
        k(f"s_add_u32 s{sFB}, s{sFB}, s{sCT}")
        k(f"s_lshl_b32 s{sWG}, s{sFB}, 8")
        k(f"s_mul_i32 s35, s{sW}, {4*3584}")
        k(f"s_add_u32 s{sWG}, s{sWG}, s35")
        k(f"s_lshl2_add_u32 s{sFB}, s{sFB}, s{sW}")
        k(f"s_add_u32 s{sWE}, s{sWG}, {28*57344}")
        k(f"s_and_b32 s{sROT}, s2, 7")
        k(f"s_min_u32 s{sROT}, s{sROT}, {6 if ROTW else 0}")
        k(f"s_mul_i32 s35, s{sROT}, {4*57344}")
        k(f"s_add_u32 s{sWG}, s{sWG}, s35")
        k(f"s_lshl_b32 s{sROT}, s{sROT}, 12")
        k("v_bfe_u32 v21, v1, 2, 2")
        k("v_xor_b32 v22, v21, v5")
        k("v_and_b32 v23, 3, v1")
        k("v_lshlrev_b32 v22, 6, v22")
        k("v_lshl_add_u32 v22, v23, 4, v22")
        k(f"v_mul_u32_u24 {v(vWG)}, 0xe00, v5")
        k(f"v_add_u32 {v(vWG)}, {v(vWG)}, v22")
        k(f"v_xor_b32 v22, s{sW}, v21")
        k("v_lshlrev_b32 v22, 6, v22")
        k("v_lshl_add_u32 v22, v21, 8, v22")
        k("v_lshl_add_u32 v22, v23, 3, v22")
        k("v_and_b32 v23, 1, v5")
        k("v_lshl_add_u32 v22, v23, 5, v22")
        k("v_lshrrev_b32 v23, 5, v1")
        k("v_lshl_add_u32 v22, v23, 11, v22")
        k(f"v_add_u32 {v(vWT)}, {STG}, v22")
        k(f"v_add_u32 {v(vWT+1)}, {RNG}, v22")
        k(f"s_lshl_b32 s35, s{sW}, 10")
        k("v_xor_b32 v5, 64, v4")
        k("v_add_u32 v6, s27, v4")
        k("v_add_u32 v7, s27, v5")
        for p in range(4):
            k(f"v_mov_b32 {v(vOnes+p)}, 0x3f803f80")
        for t in range(7):
            k(f"v_cos_f32 {v(vT)}, {v(vB)}")
            for e in range(1, 8):
                k(f"v_add_f32 {v(vT+e)}, {v(vB)}, {v(vE+e)}")
            for e in range(1, 8):
                k(f"v_cos_f32 {v(vT+e)}, {v(vT+e)}")
            if t < 6:
                k(f"v_add_f32 {v(vB)}, {v(vB)}, {v(vST)}")
                k(f"v_fract_f32 {v(vB)}, {v(vB)}")
            for p in range(4):
                k(f"v_cvt_pk_bf16_f32 {v(vF+4*t+p)}, {v(vT+2*p)}, {v(vT+2*p+1)}")
            if t > 0:
                k(f"v_mfma_f32_16x16x32_bf16 {v(vCS,4)}, {v(vOnes,4)}, {v(vF+4*t-4,4)}, {'0' if t == 1 else v(vCS,4)}")

    lines = capture(p1_consts)
    per = -(-len(lines) // 14)

    def slot():
        for _ in range(min(per, len(lines))):
            k(lines.pop(0))

    k("s_waitcnt lgkmcnt(0)")
    k.srd(12, 4, XB)
    xs = []
    for i in range(7):
        if i == 0:
            k(f"s_mov_b32 s48, s{sCT}")
        else:
            k("s_add_u32 s48, s48, 1")
            k("s_cmp_eq_u32 s48, 7")
            k("s_cselect_b32 s48, 0, s48")
        k("s_lshl_b32 s49, s48, 7")
        k("s_add_u32 s49, s49, s26")
        k("s_lshl_b32 s51, s48, 13")
        k("s_add_u32 m0, s51, s27")
        vm.op("buffer_load_dwordx4 v2, s[12:15], s49 offen lds")
        slot()
        k("s_add_u32 m0, m0, 1024")
        xs.append(vm.op("buffer_load_dwordx4 v3, s[12:15], s49 offen lds"))
        slot()
    assert not lines
    k.srd(8, 6, WS_BYTES)
    k.srd(sA, 52, WGB)
    k.srd(sB, 54, WGB)
    k.srd(16, 58, XB)
    k("s_mov_b32 s48, s56")
    k("s_mov_b32 s49, s57")
    k(f"v_mfma_f32_16x16x32_bf16 {v(vCS,4)}, {v(vOnes,4)}, {v(vF+24,4)}, {v(vCS,4)}")

    def stg(kp):
        return kp if kp < 11 else kp - 11 if kp < 22 else kp - 22

    sid = []

    def sload(cnt=1):
        for _ in range(cnt):
            n = len(sid)
            kp, m = n // 2, n % 2
            sl = stg(kp)
            k(f"s_add_u32 m0, s35, {(STG + sl*8192 if sl < 7 else RNG + (sl-7)*8192) + m*4096}")
            if n and not m:
                k(f"s_add_u32 s{sWG}, s{sWG}, {16*3584}")
                if ROTW and kp % 4 == 0:
                    k(f"s_cmp_eq_u32 s{sWG}, s{sWE}")
                    k(f"s_cselect_b32 s37, {28*57344}, 0")
                    k(f"s_sub_u32 s{sWG}, s{sWG}, s37")
            sid.append(vm.op(f"buffer_load_dwordx4 {v(vWG)}, s[{(sA, sB)[m]}:{(sA, sB)[m]+3}], s{sWG} offen lds"))

    def sread(k0, k1):
        for kp in range(k0, k1):
            sl = stg(kp)
            for m in range(2):
                for u in range(2):
                    k(f"ds_read_b64_tr_b16 {a(8*kp+4*m+2*u,2)}, {v(vWT + (sl >= 7))} offset:{(sl%7 if sl < 7 else sl-7)*8192 + m*4096 + u*1024}")

    k.stamp()
    vR, vSm, vGr = 56, 20, 120

    def stat(t):
        b = vR + 4 * (t % 4)
        k(f"v_mfma_f32_16x16x32_bf16 {v(vSm,4)}, {v(b,4)}, {v(vOnes,4)}, {'0' if t == 0 else v(vSm,4)}")
        k(f"v_mfma_f32_16x16x32_bf16 {v(vGr,4)}, {v(b,4)}, {v(b,4)}, {'0' if t == 0 else v(vGr,4)}")

    if TALL:
        k(f"s_lshl2_add_u32 s51, s2, s{sW}")
        k("s_mul_i32 s50, s51, 335")
        k("s_lshr_b32 s50, s50, 16")
        k("s_mul_i32 s29, s50, 196")
        k("s_sub_u32 s51, s51, s29")
        k("s_lshl_b32 s51, s51, 13")
        k("s_cmp_eq_u32 s50, 1")
        k("s_cselect_b32 s52, s54, s52")
        k("s_cselect_b32 s53, s55, s53")
        k("s_cmp_eq_u32 s50, 2")
        k("s_cselect_b32 s52, s56, s52")
        k("s_cselect_b32 s53, s57, s53")
        k("s_and_b32 s53, s53, 0xffff")
        k("s_cmp_le_u32 s50, 2")
        k(f"s_cselect_b32 s54, {WGB}, 0")
        k("s_mov_b32 s55, 0x20000")
        k("v_lshlrev_b32 v240, 7, v1")
        vm.op("buffer_load_dword v241, v240, s[52:55], s51 offen")
    if TPM:
        k("v_and_b32 v242, 15, v1")
        k("v_lshlrev_b32 v242, 13, v242")
        k("s_lshl_b32 s51, s28, 13")
        k("s_lshl_b32 s50, s30, 12")
        k("s_add_u32 s51, s51, s50")
        k(f"s_lshl_b32 s50, s{sRT}, 7")
        k("s_add_u32 s51, s51, s50")
        vm.op("buffer_load_dword v243, v242, s[8:11], s51 offen sc1")
    sload(NP[0])
    k(f"s_lshl_b32 s51, s{sCT}, 13")
    for c in range(7):
        k("v_add_u32 v26, s51, v6")
        k("v_add_u32 v18, s51, v7")
        if c < 6:
            k("s_add_u32 s51, s51, 8192")
            k("s_cmp_eq_u32 s51, 57344")
            k("s_cselect_b32 s51, 0, s51")
        vm.wait(xs[c])
        for par in range(2):
            k(f"ds_read_b128 {v(vR+4*((2*c+par)%4),4)}, v{18 if par else 26}")
        if c > 0:
            k("s_waitcnt lgkmcnt(2)")
            stat(2 * c - 2)
            stat(2 * c - 1)
    k("s_waitcnt lgkmcnt(0)")
    stat(12)
    stat(13)
    k("s_barrier")
    k.stamp()
    vA, vSt, vM, vQ = 88, 124, 24, 25
    seq = [(t, b) for t in range(14) for b in range(4)]

    def rd1(n):
        t, b = seq[n]
        k(f"ds_read_b128 {v(vR+4*(n%8),4)}, v{4+(t&1)} offset:{(t>>1)*8192 + b*2048}")

    fin = ["v_and_b32 v26, 3, v1",
           "v_cmp_eq_u32 s[52:53], 1, v26", "v_cmp_eq_u32 s[54:55], 2, v26", "v_cmp_eq_u32 s[56:57], 3, v26",
           "v_bfe_u32 v26, v1, 2, 2", "v_lshrrev_b32 v19, 4, v1", "v_cmp_eq_u32 s[58:59], v26, v19",
           f"v_cndmask_b32 {v(vM)}, {v(vSm)}, {v(vSm+1)}, s[52:53]", f"v_cndmask_b32 {v(vQ)}, {v(vGr)}, {v(vGr+1)}, s[52:53]",
           f"v_cndmask_b32 {v(vM)}, {v(vM)}, {v(vSm+2)}, s[54:55]", f"v_cndmask_b32 {v(vQ)}, {v(vQ)}, {v(vGr+2)}, s[54:55]",
           f"v_cndmask_b32 {v(vM)}, {v(vM)}, {v(vSm+3)}, s[56:57]", f"v_cndmask_b32 {v(vQ)}, {v(vQ)}, {v(vGr+3)}, s[56:57]",
           f"v_mul_f32 {v(vM)}, {f2u(1.0/448)}, {v(vM)}",
           f"v_mul_f32 {v(vQ)}, {f2u(1.0/448)}, {v(vQ)}",
           "v_and_b32 v26, 15, v1",
           f"v_fma_f32 {v(vQ)}, -{v(vM)}, {v(vM)}, {v(vQ)}",
           f"s_lshl_b32 s33, s{sW}, 6\ns_add_u32 s33, s33, {R2}",
           f"v_max_f32 {v(vQ)}, 0, {v(vQ)}",
           "v_lshl_add_u32 v19, v26, 2, s33",
           f"v_add_f32 {v(vQ)}, {f2u(EPS)}, {v(vQ)}",
           f"v_fmac_f32 {v(vCS)}, {v(vCS)}, {v(vSG)}",
           f"v_rsq_f32 {v(vQ)}, {v(vQ)}",
           "v_lshrrev_b32 v21, 2, v26",
           "v_and_b32 v26, 3, v26",
           f"v_mul_f32 v20, {v(vM)}, {v(vQ)}",
           "v_lshl_add_u32 v26, v21, 4, v26",
           "v_lshlrev_b32 v26, 7, v26",
           f"s_lshl_b32 s33, s{sW}, 7",
           f"s_add_u32 s33, s33, s{sRT}",
           f"s_lshl2_add_u32 s33, s33, {M1}",
           f"s_cmp_eq_u32 s{sCT}, 0\ns_cselect_b32 s33, s33, 0x40000000"]
    DEPTH = 7
    for n in range(DEPTH):
        rd1(n)
    if T1:
        k(f"s_bitcmp1_b32 s{sW}, 0")
        k(f"s_cselect_b32 s52, s{sB}, s{sA}")
        k(f"s_cselect_b32 s53, s{sB+1}, s{sA+1}")
        k(f"s_mov_b32 s54, {WGB}")
        k("s_mov_b32 s55, 0x20000")
        k(f"s_and_b32 s50, s{sRB}, 1")
        k(f"s_lshr_b32 s51, s{sW}, 1")
        k("s_lshl1_add_u32 s50, s50, s51")
        k(f"s_mul_i32 s50, s50, {2*57344}")
        k(f"s_lshr_b32 s51, s{sFB}, 2")
        k("s_lshl_b32 s51, s51, 8")
        k("s_add_u32 s50, s50, s51")
        k(f"s_add_u32 s50, s50, {T1*57344}")
        k("v_lshrrev_b32 v240, 1, v1")
        k("v_mul_u32_u24 v240, 0xe00, v240")
        k("v_and_b32 v241, 1, v1")
        k("v_lshl_add_u32 v240, v241, 7, v240")
        vm.op("buffer_load_dword v241, v240, s[52:55], s50 offen")
    for n in range(56):
        t, b = seq[n]
        k(f"s_waitcnt lgkmcnt({min(DEPTH - 1, 55 - n) + (2 if 40 < n <= 40 + DEPTH else 0)})")
        acc = vA + 16 * (t // 7) + 4 * b
        k(f"v_mfma_f32_16x16x32_bf16 {v(acc,4)}, {v(vR+4*(n%8),4)}, {v(vF+4*(t%7),4)}, {'0' if t % 7 == 0 else v(acc,4)}")
        if n + DEPTH < 56:
            rd1(n + DEPTH)
        if n >= 4 and fin:
            k(fin.pop(0))
        if n == 40:
            assert not fin
            k("s_mov_b64 exec, s[58:59]")
            k(f"ds_write_b32 v19, {v(vQ)}")
            k("ds_write_b32 v19, v20 offset:256")
            vm.op(f"buffer_store_dword {v(vM)}, v26, s[8:11], s33 offen sc1")
            k("s_mov_b64 exec, -1")
        if n % 8 == 3 and len(sid) < NP[0] + NP[1]:
            sload()
    k("s_barrier")
    k("v_lshrrev_b32 v24, 4, v1")
    k("v_lshlrev_b32 v24, 4, v24")
    k(f"v_add_u32 v25, {R2}, v24")
    for b in range(4):
        k(f"ds_read_b128 {v(vSt+4*b,4)}, v25 offset:{64*b}")
        k(f"ds_read_b128 {v(vSt+16+4*b,4)}, v25 offset:{256 + 64*b}")
    for n in range(16):
        k(f"v_fmac_f32 {v(vA+n)}, {v(vA+16+n)}, {v(vSG)}")
    k("v_and_b32 v8, 15, v1")
    k("v_and_b32 v9, 7, v1")
    k("v_lshrrev_b32 v10, 3, v24")
    k("v_xor_b32 v10, v10, v9")
    k("v_lshlrev_b32 v10, 4, v10")
    k("v_lshl_add_u32 v10, v8, 7, v10")
    k("v_add_u32 v10, s27, v10")
    k("v_xor_b32 v11, 16, v10")
    k(f"v_lshlrev_b32 {v(vL16)}, 4, v1")
    k(f"v_add_u32 v12, s27, {v(vL16)}")
    k("v_lshrrev_b32 v13, 3, v1")
    k("v_xor_b32 v9, v9, v13")
    k("v_lshlrev_b32 v9, 4, v9")
    k("v_lshl_add_u32 v13, v13, 13, v9")
    k("s_lshl_b32 s28, s28, 13")
    k("s_lshl_b32 s30, s30, 12")
    k(f"s_lshl_b32 s33, s{sRT}, 7")
    k("s_add_u32 s33, s33, s30")
    k("s_add_u32 s33, s33, s28")
    k("s_add_u32 s34, s33, 0x10000")
    for h2 in range(2):
        k(f"s_waitcnt lgkmcnt({4-4*h2})")
        for n in range(8 * h2, 8 * h2 + 8):
            k(f"v_mul_f32 {v(vA+n)}, {v(vA+n)}, {v(vSt+n)}")
        for n in range(8 * h2, 8 * h2 + 8):
            k(f"v_fma_f32 {v(vA+n)}, -{v(vSt+16+n)}, {v(vCS)}, {v(vA+n)}")
        for n in range(4 * h2, 4 * h2 + 4):
            k(f"v_cvt_pk_bf16_f32 {v(vR+n)}, {v(vA+2*n)}, {v(vA+2*n+1)}")
    k(f"ds_write_b128 v10, {v(vR,4)}")
    k(f"ds_write_b128 v11, {v(vR+4,4)}")
    k("s_waitcnt lgkmcnt(0)")
    k(f"ds_read_b128 {v(vR+8,4)}, v12")
    k(f"ds_read_b128 {v(vR+12,4)}, v12 offset:1024")
    k(f"v_lshlrev_b32 {v(vL4)}, 2, v1")
    k(f"v_min_u32 v14, 28, {v(vL4)}")
    k("s_waitcnt lgkmcnt(1)")
    vm.op(f"buffer_store_dwordx4 {v(vR+8,4)}, v13, s[8:11], s33 offen sc1")
    k("s_waitcnt lgkmcnt(0)")
    at_st = vm.op(f"buffer_store_dwordx4 {v(vR+12,4)}, v13, s[8:11], s34 offen sc1")
    zload = f"global_load_dword v31, v14, s[{sDBG}:{sDBG+1}] sc1"
    zmark = vm.op(zload)
    k.stamp()

    sKK, vWt = 2, 200
    vC1, vS1, vN1, vC2, vS2, vN2 = 32, 40, 48, 56, 64, 72
    vTc, vTs, vUc, vUs, vD, wX, vY, vP, wT = 80, 88, 96, 104, 112, 144, 160, 176, 184
    m2 = [0, 1, 2, 3, 16, 17, 18, 19]
    k(f"v_lshrrev_b32 {v(vG)}, 4, v1")
    k(f"v_and_b32 {v(vC)}, 15, v1")
    k(f"v_mov_b32 {v(vOne)}, 1")
    k(f"v_min_u32 {v(vLP)}, 220, {v(vL4)}")
    k("v_and_b32 v7, 7, v1")
    k(f"v_xor_b32 v7, v7, {v(vG)}")
    k("v_lshrrev_b32 v8, 3, v1")
    k("v_lshlrev_b32 v8, 7, v8")
    k("v_lshl_add_u32 v211, v7, 4, v8")
    k("v_xor_b32 v212, 64, v211")
    k(f"s_lshl_b32 s{sFL}, s{sRB}, 10")
    k(f"s_add_u32 s{sFL}, s{sFL}, {FL}")
    k(f"s_lshl2_add_u32 s{sFI}, s{sFB}, s{sFL}")
    k(f"s_getreg_b32 s{sXC}, hwreg(HW_REG_XCC_ID, 0, 4)")
    k(f"s_lshr_b32 s26, s{sKK}, 5")
    k("s_lshl_b32 s26, s26, 7")
    k(f"s_add_u32 s51, s26, {FL + F_P1}")
    k("s_and_b32 s28, s2, 7")
    k("s_lshl_b32 s28, s28, 7")
    k(f"s_add_u32 s36, s28, {FL + F_SP}")
    k(f"v_and_b32 v213, 124, {v(vL4)}")
    k(f"s_lshl_b32 s26, s{sCT}, 5")
    k(f"s_add_u32 s26, s26, s{sRT}")
    k(f"s_lshl2_add_u32 s52, s26, {FL + F_P1}")

    def packed_table(dc, ds_, step, base, mult):
        for e in range(8):
            k(f"v_mov_b32 {v(wT+e)}, {v(base)}" if mult[e] == 0 else
              f"v_fmamk_f32 {v(wT+e)}, {v(step)}, {f2u(float(mult[e]))}, {v(base)}")
        for e in range(8):
            k(f"v_cos_f32 {v(wT+8+e)}, {v(wT+e)}")
        for e in range(8):
            k(f"v_sin_f32 {v(wT+e)}, {v(wT+e)}")
        for p in range(4):
            k(f"v_cvt_pk_bf16_f32 {v(dc+p)}, {v(wT+8+2*p)}, {v(wT+8+2*p+1)}")
        for p in range(4):
            k(f"v_cvt_pk_bf16_f32 {v(ds_+p)}, {v(wT+2*p)}, {v(wT+2*p+1)}")

    k(f"s_lshl_b32 s53, s{sW}, 4")
    k(f"v_add_u32 v210, s53, {v(vC)}")
    k("v_cvt_f32_u32 v208, v210")
    k(f"v_cvt_f32_u32 v209, {v(vG)}")
    k(f"v_mul_f32 {v(vY)}, {f2u(1.0/64)}, v208")
    k(f"v_mul_f32 {v(vY+1)}, {f2u(8.0)}, v209")
    k(f"v_mul_f32 {v(vY+1)}, {v(vY+1)}, {v(vY)}")
    packed_table(vC1, vS1, vY, vY + 1, list(range(8)))
    k("s_mov_b32 s54, 0x80008000")
    k("v_and_b32 v210, 1, v1")
    k("v_mul_u32_u24 v210, 0x8000, v210")
    k("v_lshl_or_b32 v210, v210, 16, v210")
    for p in range(4):
        k(f"v_xor_b32 {v(vC1+4+p)}, v210, {v(vC1+p)}")
        k(f"v_xor_b32 {v(vS1+4+p)}, v210, {v(vS1+p)}")
    for p in range(8):
        k(f"v_xor_b32 {v(vN1+p)}, s54, {v(vS1+p)}")
    spin(zload, "v_cmp_eq_u32 vcc, 0, v31", zmark)
    vm.all()
    k("s_barrier")
    wave0(f"buffer_store_dword {v(vOne)}, off, s[8:11], s52 sc1", 1)
    k.stamp()
    nr1 = len(sid) // 2
    assert len(sid) == NP[0] + NP[1] and len(sid) % 2 == 0
    sload(NP[2])
    sread(0, nr1)
    k(f"v_lshrrev_b32 v210, 1, {v(vC)}")
    k(f"v_xor_b32 v210, v210, {v(vG)}")
    k("v_lshlrev_b32 v210, 4, v210")
    k(f"v_lshl_add_u32 {v(vP)}, {v(vC)}, 7, v210")
    k(f"v_xor_b32 {v(vP+1)}, 64, {v(vP)}")
    k(f"v_cvt_f32_u32 v210, {v(vC)}")
    k(f"v_mul_f32 {v(vY)}, {f2u(1.0/32)}, v210")
    k(f"v_mul_f32 {v(vY+1)}, 4.0, v209")
    k(f"v_mul_f32 {v(vY+1)}, {v(vY+1)}, {v(vY)}")
    packed_table(vC2, vS2, vY, vY + 1, m2)
    k("s_brev_b32 s55, 1")
    for p in range(4):
        k(f"v_xor_b32 {v(vC2+4+p)}, s55, {v(vC2+p)}")
        k(f"v_xor_b32 {v(vS2+4+p)}, s55, {v(vS2+p)}")
    for p in range(8):
        k(f"v_xor_b32 {v(vN2+p)}, s54, {v(vS2+p)}")
    k(f"v_mul_f32 {v(vY)}, {f2u(1.0/2048)}, v208")
    k(f"v_mul_f32 {v(vY+1)}, 4.0, v209")
    k(f"v_mul_f32 {v(vY+1)}, {v(vY+1)}, {v(vY)}")
    for e in range(8):
        k(f"v_mov_b32 {v(vTs+e)}, {v(vY+1)}" if m2[e] == 0 else
          f"v_fmamk_f32 {v(vTs+e)}, {v(vY)}, {f2u(float(m2[e]))}, {v(vY+1)}")
    for e in range(8):
        k(f"v_cos_f32 {v(vTc+e)}, {v(vTs+e)}")
    for e in range(8):
        k(f"v_sin_f32 {v(vTs+e)}, {v(vTs+e)}")
    k(f"v_mul_f32 {v(wT)}, {f2u(1.0/2048)}, v210")
    k(f"v_add_f32 {v(wT+1)}, {f2u(16.0/2048)}, {v(wT)}")
    k(f"v_lshl_add_u32 v208, {v(vG)}, 2, s53")
    k("v_cvt_f32_u32 v208, v208")
    for r in range(4):
        for blk in range(2):
            k(f"v_mul_f32 {v(vUs+4*blk+r)}, v208, {v(wT+blk)}")
        if r < 3:
            k("v_add_f32 v208, 1.0, v208")
    for e in range(8):
        k(f"v_cos_f32 {v(vUc+e)}, {v(vUs+e)}")
    for e in range(8):
        k(f"v_sin_f32 {v(vUs+e)}, {v(vUs+e)}")
    sc = 2.0 / (S * D)
    k(f"s_cmp_eq_u32 s{sKK}, 223")
    k(f"s_mov_b32 s55, {f2u(sc)}")
    k(f"s_cselect_b32 s55, {f2u(sc/2)}, s55")
    for e in range(8):
        k(f"v_mul_f32 {v(vUc+e)}, s55, {v(vUc+e)}")
        k(f"v_mul_f32 {v(vUs+e)}, s55, {v(vUs+e)}")
    k(f"v_lshrrev_b32 v208, 1, {v(vG)}")
    k(f"v_lshl_add_u32 v208, v208, 4, {v(vC)}")
    k("v_lshlrev_b32 v208, 4, v208")
    k(f"v_and_b32 v209, 1, {v(vG)}")
    k("v_lshl_add_u32 v208, v209, 3, v208")
    k(f"s_lshl_b32 s26, s{sW}, 9")
    k("v_add_u32 v208, s26, v208")
    k(f"s_lshl_b32 s26, s{sKK}, 13")
    k("s_add_u32 s56, s26, s27")
    k(f"s_add_u32 s57, s56, {WT}")
    k("s_add_u32 s58, s26, s35")
    k("s_add_u32 s59, s58, 4096")
    k("s_mov_b32 m0, s27")
    k("s_waitcnt lgkmcnt(0)")
    k("s_barrier")
    k.stamp()
    if PIPE:
        spin0(lambda r: f"buffer_load_dword v{r}, v213, s[8:11], s51 offen sc1", [216, 217, 218], lambda r: f"v_cmp_eq_u32 vcc, 0, v{r}")
    else:
        spin("buffer_load_dword v31, v213, s[8:11], s51 offen sc1", "v_cmp_eq_u32 vcc, 0, v31")
    k.stamp()
    vm.op("buffer_load_dwordx4 v211, s[8:11], s56 offen lds")
    at_ld = vm.op("buffer_load_dwordx4 v212, s[8:11], s56 offen offset:1024 lds")
    sload_ = "buffer_load_dword v31, v213, s[8:11], s36 offen sc1"
    smark = vm.op(sload_)
    k(f"s_lshl_b32 s26, s{sXC}, 2")
    k("s_lshl_b32 s26, 1, s26")
    k(f"s_lshr_b32 s28, s{sXC}, 3")
    k(f"s_lshl2_add_u32 s28, s28, s{sFL}")
    wave0("v_mov_b32 v215, s26\nbuffer_atomic_add v215, off, s[8:11], s28 offset:768 sc1", 1)
    if not PIPE:
        k("s_barrier")
    assert NS[1] <= 2 * nr1 + 22 - NS[0]
    sread(nr1, NS[0] // 2)
    nr1 = NS[0] // 2
    spin(sload_, "v_cmp_eq_u32 vcc, 0, v31", smark)
    vm.op(f"buffer_load_dwordx4 {v(vWt,4)}, {v(vL16)}, s[8:11], s57 offen")
    wt_ld = vm.op(f"buffer_load_dwordx4 {v(vWt+4,4)}, {v(vL16)}, s[8:11], s57 offen offset:1024")
    sload(NS[1])
    vm.wait(at_ld)
    k("s_waitcnt lgkmcnt(0)")
    k("s_barrier")
    k.stamp()
    for t in range(2):
        for blk in range(2):
            for plane in range(2):
                k(f"ds_read_b128 {v(vD+16*plane+8*blk+4*t,4)}, {v(vP+t)} offset:{plane*4096+blk*2048}")
    sload(NS[2])

    def dft_big(cr, ci):
        for t in range(2):
            for blk in range(2):
                k(f"s_waitcnt lgkmcnt({6 - 4*t - 2*blk})")
                ar, ai = vD + 8 * blk + 4 * t, vD + 16 + 8 * blk + 4 * t
                xr, xi = wX + 4 * blk, wX + 8 + 4 * blk
                k(f"v_mfma_f32_16x16x32_bf16 {v(xr,4)}, {v(ar,4)}, {v(vC1+4*t,4)}, {'0' if t == 0 else v(xr,4)}")
                k(f"v_mfma_f32_16x16x32_bf16 {v(xi,4)}, {v(ai,4)}, {v(vC1+4*t,4)}, {'0' if t == 0 else v(xi,4)}")
                k(f"v_mfma_f32_16x16x32_bf16 {v(xr,4)}, {v(ai,4)}, {v(cr+4*t,4)}, {v(xr,4)}")
                k(f"v_mfma_f32_16x16x32_bf16 {v(xi,4)}, {v(ar,4)}, {v(ci+4*t,4)}, {v(xi,4)}")

    def pack():
        for p in range(4):
            k(f"v_cvt_pk_bf16_f32 {v(vP+p)}, {v(vY+2*p)}, {v(vY+2*p+1)}")
            k(f"v_cvt_pk_bf16_f32 {v(vP+4+p)}, {v(vY+8+2*p)}, {v(vY+8+2*p+1)}")

    dft_big(vS1, vN1)
    cmul8(k, vY, wX, vTc, vTs, -1)
    pack()
    for blk in range(2):
        xr, xi = wX + 4 * blk, wX + 8 + 4 * blk
        k(f"v_mfma_f32_16x16x32_bf16 {v(xr,4)}, {v(vC2+4*blk,4)}, {v(vP,4)}, 0")
        k(f"v_mfma_f32_16x16x32_bf16 {v(xi,4)}, {v(vC2+4*blk,4)}, {v(vP+4,4)}, 0")
        k(f"v_mfma_f32_16x16x32_bf16 {v(xr,4)}, {v(vS2+4*blk,4)}, {v(vP+4,4)}, {v(xr,4)}")
        k(f"v_mfma_f32_16x16x32_bf16 {v(xi,4)}, {v(vN2+4*blk,4)}, {v(vP,4)}, {v(xi,4)}")
    vm.wait(wt_ld)
    for e in range(8):
        k(f"v_lshlrev_b32 {v(wT+e)}, 16, {v(vWt+e)}")
        k(f"v_and_b32 {v(wT+8+e)}, 0xffff0000, {v(vWt+e)}")
    sload(NS[3] // 2)
    cmul8(k, vY, wX, wT, wT + 8, +1)
    pack()
    for blk in range(2):
        xr, xi = wX + 4 * blk, wX + 8 + 4 * blk
        k(f"v_mfma_f32_16x16x32_bf16 {v(xr,4)}, {v(vP,4)}, {v(vC2+4*blk,4)}, 0")
        k(f"v_mfma_f32_16x16x32_bf16 {v(xi,4)}, {v(vP+4,4)}, {v(vC2+4*blk,4)}, 0")
        k(f"v_mfma_f32_16x16x32_bf16 {v(xr,4)}, {v(vP+4,4)}, {v(vN2+4*blk,4)}, {v(xr,4)}")
        k(f"v_mfma_f32_16x16x32_bf16 {v(xi,4)}, {v(vP,4)}, {v(vS2+4*blk,4)}, {v(xi,4)}")
    sload(NS[3] - NS[3] // 2)
    cmul8(k, vY, wX, vUc, vUs, +1)
    pack()
    for plane in range(2):
        for blk in range(2):
            k(f"ds_write_b64 v208, {v(vP+4*plane+2*blk,2)} offset:{8192+plane*4096+blk*2048}")
    k("s_waitcnt lgkmcnt(0)")
    k("s_barrier")
    for t in range(2):
        for blk in range(2):
            for plane in range(2):
                k(f"ds_read_b128 {v(vD+16*plane+8*blk+4*t,4)}, {v(vL16)} offset:{8192+plane*4096+blk*2048+t*1024}")
    k(f"s_cmp_ge_u32 s{sKK}, 112")
    k("s_cselect_b32 s54, s54, 0")
    dft_big(vN1, vS1)
    for p in range(4):
        k(f"v_cvt_pk_bf16_f32 {v(vP+p)}, {v(wX+2*p)}, {v(wX+2*p+1)}")
    vm.op(f"buffer_store_dwordx4 {v(vP,4)}, {v(vL16)}, s[8:11], s58 offen sc1")
    for p in range(4):
        k(f"v_cvt_pk_bf16_f32 {v(vP+4+p)}, {v(wX+8+2*p)}, {v(wX+8+2*p+1)}")
    for p in range(4):
        k(f"v_xor_b32 {v(vP+4+p)}, s54, {v(vP+4+p)}")
    vm.op(f"buffer_store_dwordx4 {v(vP+4,4)}, {v(vL16)}, s[8:11], s59 offen sc1")
    k.stamp()

    vXO, vM, vTB, vXA, vGm = 10, 12, 14, 18, 32
    cload = f"buffer_load_dwordx2 v[28:29], off, s[8:11], s{sFL} offset:768 sc1"
    k(f"v_and_b32 v6, 1, {v(vG)}")
    k(f"s_and_b32 s29, s{sW}, 1")
    k("s_lshl_b32 s29, s29, 2")
    k("v_lshl_or_b32 v6, v6, 1, s29")
    k("v_and_b32 v7, 7, v1")
    k("v_xor_b32 v6, v6, v7")
    k("v_lshrrev_b32 v8, 3, v1")
    k("v_lshlrev_b32 v9, 12, v8")
    k("v_lshl_add_u32 v6, v6, 4, v9")
    k(f"s_lshl_b32 s28, s{sW}, 15")
    k(f"s_lshl_b32 s27, s{sRT}, 7")
    k("s_add_u32 s51, s28, s27")
    k("s_sub_u32 s52, s27, s28")
    k(f"s_add_u32 s52, s52, {438*4096}")
    k(f"s_bitcmp1_b32 s{sCT}, 0")
    k("s_cselect_b32 s53, s51, s52")
    k("s_cselect_b32 s51, s52, s51")
    k("s_cselect_b32 s54, 0x6000, 0")
    k("s_cselect_b32 s55, 28672, 0")
    k("s_mov_b32 s52, 0x20000")
    k("s_cselect_b32 s52, 0xfffe0000, s52")
    k("v_xor_b32 v6, s54, v6")
    k("v_lshrrev_b32 v9, 5, v1")
    k("v_and_b32 v8, 3, v8")
    k("v_lshl_add_u32 v8, v9, 4, v8")
    k("v_mul_u32_u24 v8, 0x380, v8")
    k(f"v_xor_b32 v7, v7, {v(vG)}")
    k("v_xor_b32 v7, s29, v7")
    k(f"v_lshl_add_u32 {v(vXO)}, v7, 4, v8")
    k(f"s_lshr_b32 s26, s{sRT}, 3")
    k("s_lshl_b32 s26, s26, 9")
    k(f"s_lshl_b32 s28, s{sHALF}, 8")
    k("s_add_u32 s26, s26, s28")
    k(f"s_and_b32 s28, s{sRB}, 3")
    k(f"s_lshl2_add_u32 s{sSB}, s28, s26")
    k(f"s_lshl_b32 s26, s{sW}, 5")
    k(f"s_add_u32 s26, s26, s{sSB}")
    k("s_mul_i32 s26, s26, 896")
    k(f"s_lshl_b32 s28, s{sCT}, 7")
    k(f"s_add_u32 s{sXO}, s26, s28")
    k(f"s_add_u32 s{sXO+1}, s{sXO}, {128*896}")
    k("v_bfe_u32 v7, v1, 3, 2")
    k("v_bfe_u32 v8, v1, 2, 1")
    k("v_lshlrev_b32 v8, 4, v8")
    k("v_lshl_add_u32 v7, v7, 5, v8")
    k("v_and_b32 v8, 3, v1")
    k("v_add_lshl_u32 v11, v7, v8, 2")
    k(f"s_lshl2_add_u32 s56, s{sSB}, {M1}")
    k("v_lshlrev_b32 v213, 10, v1")
    k(f"s_lshl2_add_u32 s57, s2, {FL + F_FB}")
    k("s_and_b32 s58, s2, 7")
    k("s_lshl_b32 s58, s58, 10")
    k(f"s_add_u32 s58, s58, {FL + F_FB}")
    k(f"v_min_u32 v214, 880, {v(vL16)}")
    vm.all()
    k("s_barrier")
    wave0(f"buffer_store_dword {v(vOne)}, v213, s[8:11], s57 offen sc1", "0xff")
    k.stamp()
    nr2 = len(sid) // 2
    sread(nr1, nr2)
    k(f"s_add_u32 m0, s35, {XT}")
    vm.op(f"buffer_load_dwordx4 {v(vXO)}, s[12:15], s{sXO} offen lds")
    k(f"s_add_u32 m0, s35, {XT+4096}")
    vm.op(f"buffer_load_dwordx4 {v(vXO)}, s[12:15], s{sXO+1} offen lds")
    k("s_waitcnt lgkmcnt(0)")
    k("s_barrier")

    def p3_consts():
        vB, vST, vE, vT = 14, 15, 15, 20
        k(f"s_lshl_b32 s26, s{sCT}, 6")
        k(f"s_lshl_b32 s27, s{sW}, 4")
        k("s_add_u32 s26, s26, s27")
        k(f"v_add_u32 v27, s26, {v(vC)}")
        k("v_cvt_f32_u32 v27, v27")
        for p in range(1, 4):
            k(f"v_mul_f32 {v(vE+p)}, {f2u(p/448.0)}, v27")
        k(f"v_mul_f32 {v(vST)}, {f2u(16.0/448)}, v27")
        k(f"v_fract_f32 {v(vST)}, {v(vST)}")
        k(f"v_lshl_add_u32 v19, {v(vG)}, 2, 1")
        k("v_cvt_f32_u32 v19, v19")
        k(f"v_mul_f32 {v(vB)}, v19, {v(vE+1)}")
        k(f"v_fract_f32 {v(vB)}, {v(vB)}")
        for t in range(7):
            k(f"v_cos_f32 {v(vT+4)}, {v(vB)}")
            k(f"v_sin_f32 {v(vT)}, {v(vB)}")
            for p in range(1, 4):
                k(f"v_add_f32 {v(vT+p)}, {v(vB)}, {v(vE+p)}")
            if t < 6:
                k(f"v_add_f32 {v(vB)}, {v(vB)}, {v(vST)}")
                k(f"v_fract_f32 {v(vB)}, {v(vB)}")
            for p in range(1, 4):
                k(f"v_cos_f32 {v(vT+4+p)}, {v(vT+p)}")
                k(f"v_sin_f32 {v(vT+p)}, {v(vT+p)}")
            for p in range(4):
                k(f"v_cvt_pk_bf16_f32 {v(vGm+4*t+p)}, {v(vT+4+p)}, -{v(vT+p)}")
        k("v_bfe_u32 v7, v1, 2, 2")
        k(f"v_lshlrev_b32 v8, 10, {v(vG)}")
        k("v_lshl_add_u32 v8, v7, 7, v8")
        k("v_and_b32 v9, 3, v1")
        k("v_lshl_add_u32 v8, v9, 3, v8")
        k("v_lshrrev_b32 v7, 1, v7")
        k(f"v_and_b32 v9, 1, {v(vG)}")
        k("v_lshl_add_u32 v7, v9, 1, v7")
        k(f"v_lshl_add_u32 {v(vTB)}, v7, 5, v8")
        for nb in range(1, 4):
            k(f"v_xor_b32 {v(vTB+nb)}, {32*nb}, {v(vTB)}")
        k("v_lshrrev_b32 v7, 5, v1")
        k(f"s_lshl_b32 s26, s{sW}, 1")
        k("v_or_b32 v7, s26, v7")
        k("v_bfe_u32 v8, v1, 1, 3")
        k("v_xor_b32 v7, v7, v8")
        k("v_and_b32 v8, 31, v1")
        k("v_lshlrev_b32 v8, 7, v8")
        k("v_lshl_add_u32 v7, v7, 4, v8")
        k(f"v_add_u32 {v(vXA)}, {XT}, v7")

    lines = capture(p3_consts)
    per = -(-len(lines) // (NS[4] + 1))
    for i in range(NS[4]):
        sload()
        slot()
    slot()
    k("s_add_u32 m0, s35, s55")
    last_real = vm.n - 1
    if TW:
        k.srd(12, 48, WGB)
        ld = touch_down(-1, 12)
        NT_ = k.lab("nt")
        k(f"s_cmp_eq_u32 s{sW}, 0")
        k(f"s_cbranch_scc1 {NT_}")
        k(ld)
        k.label(NT_)
    k.stamp()
    t4 = lambda r: f"v_and_b32 v{r}, v{r}, v{r+1}\nv_and_b32 v{r+2}, v{r+2}, v{r+3}\nv_and_b32 v{r}, v{r}, v{r+2}\nv_cmp_eq_u32 vcc, 0, v{r}"
    l4 = lambda r: f"buffer_load_dwordx4 v[{r}:{r+3}], v214, s[8:11], s58 offen sc1"
    if PIPE:
        spin0(l4, [216, 220, 224], t4, TW)
    else:
        spin(l4(216), t4(216))
    k.stamp()
    census = vm.op(cload)
    for hf in range(2):
        for t in range(7):
            if t == 6:
                k(f"s_cmp_eq_u32 s{sW}, 3")
                k(f"s_cselect_b32 s28, {224*4096 >> 6}, 0")
                k("s_cmp_lg_u32 s54, 0" if hf == 0 else "s_cmp_eq_u32 s54, 0")
                k("s_cselect_b32 s28, s28, 0")
                k("v_add_u32 v9, 16, v1")
                k("v_and_b32 v9, 64, v9")
                k("v_mad_u32_u24 v9, v9, s28, v6")
            vm.op(f"buffer_load_dwordx4 v{9 if t == 6 else 6}, s[8:11], s{51 if hf == 0 else 53} offen lds")
            if t < 6:
                k("s_add_u32 m0, m0, 4096")
                k("s_add_u32 s51, s51, s52" if hf == 0 else "s_sub_u32 s53, s53, s52")
        if hf == 0:
            k("s_sub_u32 s55, 28672, s55")
            k("s_add_u32 m0, s35, s55")
            k("v_xor_b32 v6, 0x6000, v6")
    vm.op(f"buffer_load_dword {v(vM)}, v11, s[8:11], s56 offen")
    p3_loads = vm.op(f"buffer_load_dword {v(vM+1)}, v11, s[8:11], s56 offen offset:512")
    sload(NS[5])
    k.srd(sA, 48, WGB)
    CL, FAST, SLOW = k.lab("cl"), k.lab("fast"), k.lab("slow")
    k(f"s_mov_b32 s50, {SPIN_MAX}")
    vm.wait(census)
    k.label(CL)
    k("v_readfirstlane_b32 s52, v28")
    k("v_readfirstlane_b32 s53, v29")
    k(f"s_cmp_ge_u32 s{sXC}, 8")
    k("s_cselect_b32 s54, s53, s52")
    k(f"s_lshl_b32 s55, s{sXC}, 2")
    k("s_lshr_b32 s54, s54, s55")
    k("s_and_b32 s54, s54, 15")
    k(f"s_cmp_eq_u32 s54, {14 if not os.environ.get('SLOW') else 15}")
    k(f"s_cbranch_scc1 {FAST}")
    for r in (52, 53):
        k(f"s_lshr_b32 s54, s{r}, 4")
        k("s_and_b32 s54, s54, 0x0f0f0f0f")
        k(f"s_and_b32 s{r}, s{r}, 0x0f0f0f0f")
        k(f"s_add_u32 s{r}, s{r}, s54")
    k("s_add_u32 s52, s52, s53")
    k("s_mul_i32 s52, s52, 0x01010101")
    k("s_lshr_b32 s52, s52, 24")
    k("s_cmp_ge_u32 s52, 14")
    k(f"s_cbranch_scc1 {SLOW}")
    k("s_sub_u32 s50, s50, 1")
    k("s_cmp_eq_u32 s50, 0")
    k(f"s_cbranch_scc1 {SLOW}")
    k(cload)
    k("s_waitcnt vmcnt(0)")
    k(f"s_branch {CL}")
    state = (vm.n, vm.done, getattr(k, "_nst", 0), getattr(k, "_seq", 0))

    def rest(mode):
        vm.n, vm.done, k._nst, k._seq = state
        lg = Cnt(k, "lgkmcnt", 15)

        def arrive(off):
            vm.op(f"buffer_store_dword {v(vOne)}, off, s[8:11], s{sFI} offset:{off}{mode}")

        def pload(off):
            return f"buffer_load_dword v31, {v(vLP)}, s[8:11], s{sFL} offen offset:{off} sc1"

        def poll(off, mark=None):
            spin(pload(off), "v_cmp_eq_u32 vcc, 0, v31", mark)

        def put(q, cnt=1):
            for _ in range(cnt):
                if q:
                    e = q.pop(0)
                    e() if callable(e) else k("\n".join(e))

        vm.wait(p3_loads)
        k("s_barrier")
        k.stamp()
        vR, vA = 88, 120
        seq = [(t, nb) for t in range(14) for nb in range(4)]

        def rd3(n):
            t, nb = seq[n]
            for u in range(2):
                k(f"ds_read_b64_tr_b16 {v(vR+4*(n%8)+2*u,2)}, {v(vTB+nb)} offset:{t*4096+u*512}")

        DEPTH = 6
        for n in range(DEPTH):
            rd3(n)
        if TD:
            vm.op(touch_down(3, sA))
        for n in range(56):
            t, nb = seq[n]
            k(f"s_waitcnt lgkmcnt({2*min(DEPTH-1, 55-n)})")
            acc = vA + 16 * (t // 7) + 4 * nb
            k(f"v_mfma_f32_16x16x32_bf16 {v(acc,4)}, {v(vGm+4*(t%7),4)}, {v(vR+4*(n%8),4)}, {'0' if t % 7 == 0 else v(acc,4)}")
            if n == 32:
                k("s_mov_b32 exec_lo, 0")
                k("s_mov_b32 exec_hi, 0xffff0000")
                k(f"v_mov_b32 {v(vGm+27)}, 0x3f80")
                k("s_mov_b64 exec, -1")
            if n + DEPTH < 56:
                rd3(n + DEPTH)
        vX, vH, vHc, vU = 20, 32, 40, 48
        k(f"ds_read_b128 {v(vX,4)}, {v(vXA)}")
        k(f"ds_read_b128 {v(vX+4,4)}, {v(vXA)} offset:4096")
        k(f"s_mul_i32 s26, s{sRT}, 56")
        k(f"s_lshl2_add_u32 s27, s{sCT}, s{sW}")
        k("s_add_u32 s26, s26, s27")
        k("s_lshl_b32 s26, s26, 10")
        k(f"s_add_u32 s26, s26, {HC}")
        k(f"s_add_u32 s27, s26, {28*1024}")
        for r in range(16):
            k(f"v_{'sub' if r & 1 else 'add'}_f32 {v(vA+r)}, {v(vA+r)}, {v(vA+16+r)}")
        for p in range(2):
            for r in range(4):
                k(f"v_permlane16_swap_b32 {v(vA+8*p+r)}, {v(vA+8*p+4+r)}")
        k("s_waitcnt lgkmcnt(0)")
        for p in range(2):
            for q in range(4):
                k(f"v_lshlrev_b32 {v(vU+2*q)}, 16, {v(vX+4*p+q)}")
                k(f"v_and_b32 {v(vU+2*q+1)}, 0xffff0000, {v(vX+4*p+q)}")
            for e in range(8):
                k(f"v_add_f32 {v(vA+8*p+e)}, {v(vA+8*p+e)}, {v(vU+e)}")
            for e in range(8):
                k(f"v_sub_f32 {v(vA+16+8*p+e)}, {v(vA+8*p+e)}, {v(vM+p)}")
            for q in range(4):
                k(f"v_cvt_pk_bf16_f32 {v(vHc+4*p+q)}, {v(vA+16+8*p+2*q)}, {v(vA+17+8*p+2*q)}")
            hc_st = vm.op(f"buffer_store_dwordx4 {v(vHc+4*p,4)}, {v(vL16)}, s[8:11], s{26+p} offen{mode}")
        vm.wait(sid[55])
        k("s_barrier")
        sread(nr2, 28)
        for p in range(2):
            for q in range(4):
                k(f"v_cvt_pk_bf16_f32 {v(vH+4*p+q)}, {v(vA+8*p+2*q)}, {v(vA+8*p+2*q+1)}")
            k(f"ds_write_b128 {v(vXA)}, {v(vH+4*p,4)} offset:{4096*p}")
        for p in range(2):
            k(f"v_mul_f32 {v(vM+p)}, {v(vA+16+8*p)}, {v(vA+16+8*p)}")
        for e in range(1, 8):
            for p in range(2):
                k(f"v_fmac_f32 {v(vM+p)}, {v(vA+16+8*p+e)}, {v(vA+16+8*p+e)}")
        k(f"s_lshl_b32 s26, s{sW}, 8")
        k(f"s_add_u32 s26, s26, {R2}")
        k(f"v_add_u32 v7, s26, {v(vL4)}")
        k(f"v_permlane32_swap_b32 {v(vM)}, {v(vM+1)}")
        k(f"v_add_f32 {v(vM)}, {v(vM)}, {v(vM+1)}")
        k(f"ds_write_b32 v7, {v(vM)}")
        k.stamp()
        vm.wait(hc_st)
        k("s_waitcnt lgkmcnt(0)")
        arrive(0)
        sDL, sDG, sAB, sST1, sRG = 51, 53, 55, 57, 35
        vB1, vPA, vP1, vDG, vDT = 6, 11, 25, 8, 9
        k(f"s_mul_i32 s{sAB+1}, s{sRB}, 114688")
        k(f"s_add_u32 s{sAB+1}, s{sAB+1}, {HC}")
        k(f"s_mul_i32 s{sDL}, s{sW}, 28672")
        k(f"s_and_b32 s28, s{sW}, 1")
        k("s_mul_i32 s28, s28, 57344")
        k(f"s_lshr_b32 s26, s{sW}, 1")
        k(f"s_lshl_b32 s{sDL+1}, s26, 10")
        k(f"s_add_u32 s{sDL+1}, s{sDL+1}, s28")
        k(f"s_add_u32 s{sDG}, s{sAB+1}, s{sDL}")
        k(f"s_add_u32 s{sDG+1}, s{sAB+1}, s{sDL+1}")
        k(f"s_add_u32 s{sDG}, s{sDG}, s{sROT}")
        k(f"s_add_u32 s{sDG+1}, s{sDG+1}, s{sROT}")
        k(f"v_add_u32 {v(vB1)}, 57344, {v(vL16)}")
        k(f"s_mul_i32 s{sSS}, s{sRT}, 1792")
        k(f"s_add_u32 s{sSS}, s{sSS}, {SSP}")
        k(f"v_add_u32 v7, {R2}, {v(vL4)}")
        k(f"s_mul_i32 s{sHS}, s{sRB}, {4*112}")
        k(f"s_lshl1_add_u32 s{sHS}, s{sFB}, s{sHS}")
        k(f"s_lshl_b32 s{sHS}, s{sHS}, 10")
        k(f"s_add_u32 s{sHS}, s{sHS}, {HP}")
        k(f"v_lshlrev_b32 {v(vPA)}, 12, {v(vG)}")
        k(f"v_lshl_add_u32 {v(vPA)}, {v(vC)}, 4, {v(vPA)}")
        k(f"s_lshl_b32 s{sAB}, s{sRB}, 8")
        k(f"s_mul_i32 s{sHP}, s{sRT}, 224")
        k(f"s_mul_i32 s28, s{sW}, 28")
        k(f"s_add_u32 s{sHP}, s{sHP}, s28")
        k(f"s_lshl_b32 s{sHP}, s{sHP}, 10")
        k(f"s_add_u32 s{sHP}, s{sHP}, {HP}")
        k(f"s_mul_i32 s{sWD}, s{sW}, {448*896}")
        k(f"s_lshl_b32 s28, s{sCT}, 7")
        k(f"s_add_u32 s{sWD}, s{sWD}, s28")
        k(f"s_add_u32 s46, s{sCT}, s{sRT}")
        k(f"s_lshl_b32 s{sRG}, s{sW}, 13")
        k(f"s_add_u32 s{sRG}, s{sRG}, {RNG}")
        k(f"v_and_b32 v12, 1, {v(vG)}")
        k("v_and_b32 v13, 7, v1")
        k("v_lshlrev_b32 v14, 2, v12")
        k("v_xor_b32 v13, v13, v14")
        k("v_lshrrev_b32 v14, 3, v1")
        k("v_mul_u32_u24 v14, 0x380, v14")
        k(f"v_lshl_add_u32 {v(vDG)}, v13, 4, v14")
        k("v_bfe_u32 v13, v1, 2, 2")
        k("v_lshrrev_b32 v14, 5, v1")
        k("v_lshl_add_u32 v14, v14, 2, v13")
        k("v_lshrrev_b32 v13, 1, v13")
        k("v_lshlrev_b32 v13, 6, v13")
        k("v_lshl_add_u32 v13, v14, 7, v13")
        k("v_lshl_add_u32 v13, v12, 5, v13")
        k("v_and_b32 v14, 3, v1")
        k("v_lshl_add_u32 v13, v14, 3, v13")
        k(f"v_add_u32 {v(vDT)}, s{sRG}, v13")
        k(f"v_xor_b32 v26, 64, {v(vDT)}")
        poll(0)
        k.stamp()
        uses = [(kp, b) for kp in range(KS) for b in range(4)]
        uses += [(kp, b) for kp in range(KS, 28) for b in (0, 2)]
        uB = len(uses)
        uses += [(kp, b) for kp in range(KS, 28) for b in (1, 3)]
        last_use = {kp: max(u for u, x in enumerate(uses) if x[0] == kp) for kp in range(28)}
        npair = (28 - KS) // 2
        Dm = []

        def dma():
            i = len(Dm)
            if i < KS:
                sel, off = 0, i * 1024
            else:
                sel, off = 1, ((i - KS) // npair) * 28672 + (KS + 2 * ((i - KS) % npair)) * 1024
            k(f"s_add_u32 m0, s{sDL+sel}, {off}")
            if ROTW and off % 28672 >= 4096:
                k(f"s_cmp_ge_u32 s{sROT}, {28672 - off % 28672}")
                k(f"s_cselect_b32 s28, {off - 28672 & 0xffffffff}, {off}".replace(f", {off}", ", s26") if False else f"s_cselect_b32 s28, 28672, 0")
                k(f"s_sub_u32 s28, s{sDG+sel}, s28")
                k(f"s_add_u32 s28, s28, {off}")
            else:
                k(f"s_add_u32 s28, s{sDG+sel}, {off}")
            Dm.append(vm.op(f"buffer_load_dwordx4 {v(vL16)}, s[8:11], s28 offen lds"))

        wd_regs = [(0, lambda o, n, i=i: a(224 + 8 * i + o, n)) for i in range(4)]
        wd_regs += [(0, lambda o, n, i=i: v(64 + 8 * i + o, n)) for i in range(8)]
        wd_regs += [(last_use[i] + 1, lambda o, n, i=i: a(8 * i + o, n)) for i in range(16)]
        wdd, wdt = [], []
        shadow = [0]

        def quarter(dst, g, size, base):
            k(f"s_add_u32 s{dst}, s{46 if ROTD == 2 else sCT}, {g}")
            k(f"s_and_b32 s{dst}, s{dst}, 3")
            k(f"s_mul_i32 s{dst}, s{dst}, {size}")
            k(f"s_add_u32 s{dst}, s{dst}, s{base}")

        def wd_dma(now):
            n = len(wdd)
            if n == 56 or (n >= 8 and not (len(wdt) > 2 * (n - 8) + 1 and wdt[2 * (n - 8) + 1] < lg.done)):
                return False
            k(f"s_add_u32 m0, s{sRG}, {(n % 8) * 1024}")
            if ROTD and n % 14 == 0:
                quarter(44, n // 14, 112 * 896, sWD)
            elif n:
                k(f"s_add_u32 s{44 if ROTD else sWD}, s{44 if ROTD else sWD}, {8*896}")
            wdd.append((vm.op(f"buffer_load_dwordx4 {v(vDG)}, s[{sA}:{sA+3}], s{44 if ROTD else sWD} offen lds"), max(now + WLAT, shadow[0])))
            return True

        def wd_tr(now, force=False):
            n = len(wdt)
            kp, u_, db = n // 4, (n >> 1) & 1, n & 1
            if n == 112 or len(wdd) <= 2 * kp + u_ or (not force and (wd_regs[kp][0] > now or wdd[2 * kp + u_][1] > now)):
                return False
            vm.wait(wdd[2 * kp + u_][0])
            wdt.append(lg.op(f"ds_read_b64_tr_b16 {wd_regs[kp][1](4*db+2*u_, 2)}, v{26 if db else vDT} offset:{(kp % 4) * 2048 + u_ * 1024}"))
            return True

        aQ = 128
        hl = []

        def hload():
            n = len(hl)
            p, kp = n // 28, n % 28
            if p == 1:
                if kp == 0:
                    k(f"s_cmp_eq_u32 s{sHALF}, 0")
                    k("s_movk_i32 s58, 1024")
                    k(f"s_cselect_b32 s{sST1}, 0x4000, s58")
                    k(f"s_cselect_b32 s59, s{sAB}, s{sAB+1}")
                    k("s_cselect_b64 vcc, -1, 0")
                    k(f"s_mul_i32 s58, s{sW}, 28")
                    k(f"s_mul_i32 s58, s58, s{sST1}")
                    k("s_add_u32 s59, s59, s58")
                    k(f"v_cndmask_b32 {v(vP1)}, {v(vL16)}, {v(vPA)}, vcc")
                    k(f"s_mul_i32 s58, s{sST1}, 7")
                if ROTD and kp % 7 == 0:
                    quarter(45, kp // 7, "s58", 59)
                elif kp:
                    k(f"s_add_u32 s{45 if ROTD else 59}, s{45 if ROTD else 59}, s{sST1}")
                hl.append(vm.op(f"buffer_load_dwordx4 {a(aQ+4*(n%24),4)}, {v(vP1)}, s[8:11], s{45 if ROTD else 59} offen"))
                return
            if ROTD:
                if kp % 7 == 0:
                    quarter(45, kp // 7, 7168, sHP)
                if kp % 7 == 4:
                    k("s_add_u32 s45, s45, 4096")
                hl.append(vm.op(f"buffer_load_dwordx4 {a(aQ+4*(n%24),4)}, {v(vL16)}, s[8:11], s45 offen offset:{(kp%7%4)*1024}"))
                return
            hl.append(vm.op(f"buffer_load_dwordx4 {a(aQ+4*(n%24),4)}, {v(vL16)}, s[8:11], s{sHP} offen offset:{(kp%4)*1024}"))
            if kp % 4 == 3:
                k(f"s_add_u32 s{sHP}, s{sHP}, 4096")

        vF, vAcc, LOOK = 32, 128, 4
        accreg = {0: vAcc, 2: vAcc + 32, 1: vAcc + 64, 3: vAcc + 96}
        fr = {}

        def rd4(u):
            kp, b = uses[u]
            fr[u] = lg.op(f"ds_read_b128 {v(vF+4*(u%6),4)}, {v(vL16 if b < 2 else vB1)} offset:{(b&1)*28672+kp*1024}")

        last_st = [None]
        clock = [0]

        def hp_store(b, u):
            vo, off, pol = vL16, u * 1024, mode
            if b == 1:
                vo, off = vPA, 0
                k(f"s_lshl_b32 s38, s{sFB}, 15\ns_add_u32 s38, s38, s{sAB}" if u == 0 else "s_add_u32 s38, s38, 16384")
            elif b == 3:
                if u == 0:
                    k(f"s_lshl_b32 s38, s{sFB}, 11\ns_add_u32 s38, s38, s{sAB+1}")
            else:
                pol = " sc1" if MA else mode
                if u == 0:
                    k(f"s_add_u32 s38, s{sHS}, {b*112*1024}")
            last_st[0] = vm.op(f"buffer_store_dwordx4 {v(accreg[b]+4*u,4)}, {v(vo)}, s[8:11], s38 offen offset:{off}{pol}")
            shadow[0] = clock[0] + (20 if pol else 11)

        def epilogue(ps):
            items = [(b, r) for b in (ps, ps + 2) for r in range(8)]
            out = []
            for i in range(len(items) + 1):
                grp = []
                if i < len(items):
                    b, r = items[i]
                    g_, u_ = accreg[b], accreg[b] + 16
                    grp += [f"v_mul_f32 {v(u_+2*r)}, {v(g_+2*r)}, {v(u_+2*r)}",
                            f"v_mul_f32 {v(u_+2*r+1)}, {v(g_+2*r+1)}, {v(u_+2*r+1)}"]
                if i > 0:
                    b, r = items[i - 1]
                    grp.append(f"v_cvt_pk_bf16_f32 {v(accreg[b]+r)}, {v(accreg[b]+16+2*r)}, {v(accreg[b]+17+2*r)}")
                out.append(grp)
                if i > 0 and items[i - 1][1] % 4 == 3:
                    out.append(lambda b=items[i - 1][0], u=items[i - 1][1] // 4: hp_store(b, u))
            return out

        chunks = eval(os.environ.get("CHUNKS", "{0: 2, 3: 6, 7: 15, 16: 27}"))
        for _ in range(NDMA0):
            dma()
        k("ds_read2st64_b32 v[12:13], v7 offset1:1")
        k("ds_read2st64_b32 v[14:15], v7 offset0:2 offset1:3")
        k(f"s_lshl_b32 s26, s{sCT}, 8")
        k(f"s_add_u32 s26, s26, s{sSS}")
        k("s_waitcnt lgkmcnt(0)")
        k("v_add_f32 v12, v12, v13")
        k("v_add_f32 v14, v14, v15")
        k("v_add_f32 v12, v12, v14")
        vm.op(f"buffer_store_dword v12, {v(vL4)}, s[8:11], s26 offen{mode}")
        vm.wait(Dm[chunks[0]])
        k("s_barrier")
        k.stamp()
        for u in range(LOOK):
            rd4(u)
        epi = epilogue(0)
        checked = False
        for u in range(112):
            kp, b = uses[u]
            clock[0] = u
            if (u + LOOK) % 4 == 0 and (u + LOOK) // 4 in chunks:
                vm.wait(Dm[chunks[(u + LOOK) // 4]])
                k("s_barrier")
            if u == uB + DRAIN_A:
                assert not epi
                vm.wait(last_st[0])
                arrive(256)
            if u == uB + POLL_A:
                markA = vm.op(pload(256))
            if u == uB + CHECK_A:
                poll(256, markA)
                checked = True
            if u % 2 == 0:
                lg.wait(fr[u + 1])
            busy = u >= uB + 1 and bool(epi)
            for m in range(2):
                acc = accreg[b] + 16 * m
                k(f"v_mfma_f32_32x32x16_bf16 {v(acc,16)}, {a(8*kp+4*m,4)}, {v(vF+4*(u%6),4)}, {'0' if kp == 0 else v(acc,16)}")
                if m == 0:
                    if u + LOOK < 112:
                        rd4(u + LOOK)
                    wd_tr(u)

                    def memop():
                        if len(Dm) < 16 and u % DRATE != DRATE - 1:
                            dma()
                        elif checked and len(hl) < RING and last_use[16 + len(hl) // 2] < u:
                            hload()
                        elif not (u % 3 != 2 and wd_dma(u)):
                            dma() if len(Dm) < 28 else wd_dma(u)

                    if busy:
                        put(epi)
                    n0 = vm.n
                    held = capture(memop)
                    k("\n".join(held[:-1]))
                    vm.n, n1 = n0, vm.n
                else:
                    k("\n".join(held[-1:]))
                    vm.n = n1
                    if busy:
                        put(epi)
                    else:
                        wd_tr(u)
                if os.environ.get("TL") and m == 1 and not mode:
                    print(u, len(Dm), len(wdd), len(wdt), file=sys.stderr)
            if u in P4ST:
                k.stamp(1)
            if u == uB - 1 or u == 111:
                k.stamp()
        print("after P4: ring loads", len(wdd), "transposed reads", len(wdt), "h loads", len(hl), file=sys.stderr)
        vRW, vRR, vR2, vHR, vSP = 12, 20, 22, 24, 56
        vAc5, vT5 = 128, 192
        fill = epilogue(1)
        clock[0] = -999
        if not checked:
            assert EPI_B0 <= 14
            put(fill, EPI_B0)
            poll(256, markA)
        while fill:
            if len(hl) < 8:
                hload()
            put(fill, 2)
        fill = [["v_and_b32 v6, 31, v1", "v_lshrrev_b32 v7, 5, v1", "v_and_b32 v27, 7, v1", "v_xor_b32 v7, v7, v27"],
                [f"s_lshl_b32 s26, s{sW}, 13", "v_lshlrev_b32 v7, 4, v7", "v_lshl_add_u32 v7, v6, 8, v7", f"v_add_u32 {v(vRW)}, s26, v7"],
                [f"v_xor_b32 {v(vRW+i)}, {32*i}, {v(vRW)}" for i in range(1, 5)],
                [f"v_xor_b32 {v(vRW+i)}, {32*i}, {v(vRW)}" for i in range(5, 8)],
                ["v_lshrrev_b32 v6, 3, v1", f"s_and_b32 s26, s{sW}, 1", "s_lshl_b32 s26, s26, 2", f"v_xor_b32 v7, v27, {v(vG)}",
                 "v_xor_b32 v7, s26, v7"],
                ["v_lshlrev_b32 v7, 1, v7", "v_xor_b32 v7, v7, v6", f"s_lshl_b32 s26, s{sW}, 11", "v_lshlrev_b32 v7, 4, v7"],
                ["v_lshl_add_u32 v7, v6, 8, v7", f"v_add_u32 {v(vRR)}, s26, v7", f"v_xor_b32 {v(vRR+1)}, 16, {v(vRR)}"],
                [f"s_lshl_b32 s26, s{sW}, 10", f"s_add_u32 s26, s26, {XT}", f"v_add_u32 {v(vHR)}, s26, {v(vL16)}",
                 f"s_lshl_b32 s26, s{sW}, 5", "v_lshl_add_u32 v28, v6, 2, s26"]]
        ssl = []

        def ssload(i):
            for j in range(2 * i, min(2 * i + 2, 7)):
                ssl.append(vm.op(f"buffer_load_dword {v(vSP+j)}, {v(vL4)}, s[8:11], s{sSS} offen offset:{256*j}"))

        fill += [lambda i=i: ssload(i) for i in range(4)]
        r2calc = [[f"v_add_f32 {v(vSP)}, {v(vSP)}, {v(vSP+1)}", f"v_add_f32 {v(vSP+2)}, {v(vSP+2)}, {v(vSP+3)}",
                   f"v_add_f32 {v(vSP+4)}, {v(vSP+4)}, {v(vSP+5)}", f"v_add_f32 {v(vSP)}, {v(vSP)}, {v(vSP+6)}"],
                  [f"v_add_f32 {v(vSP+2)}, {v(vSP+2)}, {v(vSP+4)}", f"v_mov_b32 {v(vSP+1)}, {f2u(EPS)}",
                   f"v_add_f32 {v(vSP)}, {v(vSP)}, {v(vSP+2)}", f"v_fmac_f32 {v(vSP+1)}, {f2u(1.0/448)}, {v(vSP)}"],
                  [f"v_rcp_f32 {v(vSP)}, {v(vSP+1)}", "v_add_u32 v29, 128, v28"],
                  [f"ds_bpermute_b32 {v(vR2)}, v28, {v(vSP)}", f"ds_bpermute_b32 {v(vR2+1)}, v29, {v(vSP)}"]]

        def red_write(p):
            q_ = [[f"ds_write_b128 {v(vRW+i)}, {v(vAc5+32*p+4*i,4)} offset:{p*32768}"] for i in range(8)]
            return q_ + [[f"ds_read_b128 {v(vT5+32,4)}, {v(vHR)} offset:{p*4096}"]]

        def red_read(p):
            q_ = [["s_waitcnt lgkmcnt(0)", "s_barrier"] +
                  [f"ds_read_b128 {v(vT5+4*z,4)}, {v(vRR+z)} offset:{p*32768}" for z in range(2)]]
            for j in range(1, 4):
                q_.append([f"ds_read_b128 {v(vT5+8*j+4*z,4)}, {v(vRR+z)} offset:{p*32768+j*8192}" for z in range(2)])
            for h2 in range(2):
                q_.append([t_ for q in (2 * h2, 2 * h2 + 1) for t_ in
                           (f"v_lshlrev_b32 {v(vT5+36+2*q)}, 16, {v(vT5+32+q)}",
                            f"v_and_b32 {v(vT5+37+2*q)}, 0xffff0000, {v(vT5+32+q)}")])
            for j, (d_, s_) in enumerate(((0, 8), (16, 24), (0, 16))):
                for h2 in range(2):
                    q_.append(([f"s_waitcnt lgkmcnt({4 if j == 0 else 0})"] if h2 == 0 and j < 2 else []) +
                              [f"v_add_f32 {v(vT5+d_+r)}, {v(vT5+d_+r)}, {v(vT5+s_+r)}" for r in range(4 * h2, 4 * h2 + 4)])
            for h2 in range(2):
                q_.append([f"v_fmac_f32 {v(vT5+36+r)}, {v(vT5+r)}, {v(vR2+p)}" for r in range(4 * h2, 4 * h2 + 4)])
            q_.append([f"v_cvt_pk_bf16_f32 {v(vT5+8+q)}, {v(vT5+36+2*q)}, {v(vT5+37+2*q)}" for q in range(4)])
            q_.append(lambda: vm.op(f"buffer_store_dwordx4 {v(vT5+8,4)}, {v(vXO)}, s[16:19], s{sXO+p} offen{SCO}"))
            return q_

        if P5ST:
            k.stamp(1)
        for n in range(56):
            p, kp = n // 28, n % 28
            now = 112 + n
            if n == DRAIN_B:
                vm.wait(last_st[0])
                arrive(512)
            if n == POLL_B:
                markB = vm.op(pload(512))
            if n == CHECK_B:
                k.stamp()
                poll(512, markB)
            if n == 22:
                assert len(wdt) == 112
                vm.wait(ssl[6])
                fill += r2calc
            if n == LATE and F_LATE in WBL:
                k(f"s_add_u32 s26, s{sFI}, {F_LATE}")
                vm.op(f"buffer_store_dword {v(vOne)}, off, s[8:11], s26{mode}")
            if n == 28:
                assert not fill
                fill = red_write(0)
                while fill:
                    if len(hl) < 28 + RING1:
                        hload()
                    put(fill, 2)
            if n == RED0:
                fill = red_read(0)
            if p == 0:
                while len(wdt) < 4 * kp + 4:
                    assert wd_tr(now, True)
                lg.wait(wdt[4 * kp + 3])
            vm.wait(hl[n])
            for dl in range(2):
                acc = vAc5 + 32 * p + 16 * dl
                k(f"v_mfma_f32_32x32x16_bf16 {v(acc,16)}, {wd_regs[kp][1](4*dl, 4)}, {a(aQ+4*(n%24),4)}, {'0' if kp == 0 else v(acc,16)}")
                if len(wdt) < 112:
                    if len(wdt) >= 8:
                        lg.wait(wdt[-8])
                    wd_tr(now)
                    if dl == 1:
                        wd_dma(now)
                if dl == 0:
                    if len(hl) < (28 if n < CHECK_B else 56) and len(hl) < n + 24:
                        hload()
                    else:
                        put(fill)
                else:
                    put(fill)
            if n in P5ST:
                k.stamp(1)
        k.stamp()
        put(fill, 99)
        put(red_write(1), 99)
        put(red_read(1), 99)
        if k.prof:
            k("s_waitcnt vmcnt(0)")
        k.stamp_flush(6, PROF, sW)
        k("s_endpgm")

    k.label(FAST)
    rest("")

    k.label(SPARE)
    vm.n = vm.done = 0
    k._nst = min(1, getattr(k, "_nst", 0))
    sE = 21
    vIn, vOut, vSrc, vDst, vLW, vLR = 8, 72, 104, 105, 106, 107
    k(f"s_sub_u32 s{sE}, s2, 224")
    k(f"v_lshlrev_b32 {v(vL16)}, 4, v1")
    k("v_cmp_le_u32 vcc, 28, v1")
    k("v_add_u32 v6, 8, v1")
    k("v_lshlrev_b32 v6, 24, v6")
    k("v_cndmask_b32 v4, 0, 1, vcc")
    k("v_and_b32 v6, 0x40000000, v6")
    k(f"v_lshl_add_u32 {v(vSrc)}, v4, 1, {v(vL16)}")
    k(f"v_or_b32 {v(vSrc)}, {v(vSrc)}, v6")
    k(f"s_lshr_b32 s29, s{sE}, 3")
    k(f"s_and_b32 s30, s{sE}, 7")
    k("s_lshl_b32 s31, s30, 5")
    k("s_add_u32 s31, s31, s29")
    k(f"s_lshl2_add_u32 s31, s31, s{sW}")
    k("s_mul_i32 s31, s31, 900")
    k("s_add_u32 s31, s31, 2")
    k("s_waitcnt lgkmcnt(0)")
    k.srd(12, 44, WRB)
    k.srd(16, 46, WRB)
    wl = []
    for i in range(2):
        for r in range(4):
            vm.op(f"buffer_load_dwordx4 {v(vIn+32*i+8*r,4)}, {v(vSrc)}, s[12:15], s31 offen")
            last = vm.op(f"buffer_load_dwordx4 {v(vIn+32*i+8*r+4,4)}, {v(vSrc)}, s[16:19], s31 offen")
            k(f"s_add_u32 s31, s31, {64*450}" if r < 3 else f"s_sub_u32 s31, s31, {(192-32)*450}")
        wl.append(last)
        if i == 0:
            k.srd(8, 6, WS_BYTES)
            for j in range(4):
                k(f"v_mov_b32 v{108+j}, 0")
            k(f"s_lshl2_add_u32 s33, s{sE}, s{sW}")
            k("s_lshl_b32 s33, s33, 11")
            k(f"s_add_u32 s33, s33, {FL}")
            k(f"s_cmp_lt_u32 s{sE}, 8")
            k("s_cselect_b32 s33, s33, 0x40000000")
            vm.op(f"buffer_store_dwordx4 v[108:111], {v(vL16)}, s[8:11], s33 offen sc1")
            z_st = vm.op(f"buffer_store_dwordx4 v[108:111], {v(vL16)}, s[8:11], s33 offen offset:1024 sc1")
            k("v_mul_u32_u24 v5, 28, v4")
            k("v_sub_u32 v5, v1, v5")
            k(f"s_lshl_b32 s28, s{sW}, 1")
            k("v_or_b32 v4, s28, v4")
            k("v_and_b32 v7, 7, v5")
            k("v_xor_b32 v4, v4, v7")
            k("v_lshlrev_b32 v4, 4, v4")
            k(f"v_lshl_add_u32 {v(vLW)}, v5, 10, v4")
            k("v_lshrrev_b32 v6, 14, v6")
            k(f"v_or_b32 {v(vLW)}, {v(vLW)}, v6")
            k(f"s_mul_i32 s28, s{sW}, 7168")
            k(f"v_add_u32 {v(vLR)}, s28, {v(vL16)}")
            k("v_and_b32 v4, 7, v1")
            k("v_lshrrev_b32 v5, 3, v1")
            k("v_lshlrev_b32 v4, 4, v4")
            k(f"v_lshl_add_u32 {v(vDst)}, v5, 13, v4")
            for e in range(7):
                k(f"s_mul_i32 s38, s{sW}, 7")
                k(f"s_add_u32 s38, s38, {e}")
                k("s_and_b32 s38, s38, 7")
                k("s_lshl_b32 s38, s38, 4")
                k(f"v_xor_b32 v{116+e}, s38, {v(vDst)}")
            k(f"s_mul_i32 s35, s{sW}, {7*65536}")
            k("s_lshr_b32 s36, s29, 1")
            k("s_lshl_b32 s36, s36, 11")
            k("s_add_u32 s35, s35, s36")
            k("s_lshl_b32 s36, s30, 8")
            k("s_add_u32 s35, s35, s36")
            k("s_and_b32 s36, s29, 1")
            k("s_lshl_b32 s36, s36, 7")
            k("s_add_u32 s35, s35, s36")
            k(f"s_add_u32 s35, s35, {WT}")
    k("s_mov_b32 s36, 0x05040100")
    k("s_mov_b32 s37, 0x07060302")
    k("v_lshlrev_b32 v7, 2, v1")
    k("v_min_u32 v6, 28, v7")
    zload = f"global_load_dword v31, v6, s[{sDBG}:{sDBG+1}] sc1".replace("v31", "v112")
    for i in range(2):
        k.stamp(-1)
        vm.wait(wl[i])
        k.stamp(-1)
        b_ = vIn + 32 * i
        for e in range(8):
            o = vOut + 4 * e
            for r in range(4):
                k(f"v_perm_b32 {v(o+r)}, {v(b_+8*r+4+(e>>1))}, {v(b_+8*r+(e>>1))}, s{36+(e&1)}")
            k(f"ds_write_b128 {v(vLW)}, {v(o,4)} offset:{32768*i + 128*e}")
        vm.wait(z_st)
        k("s_waitcnt lgkmcnt(0)")
        k("s_barrier")
        for e in range(7):
            k(f"ds_read_b128 {v(b_+4*e,4)}, {v(vLR)} offset:{32768*i + 1024*e}")
        if i == 0:
            k("v_mov_b32 v2, 1")
            k(f"s_lshl_b32 s34, s{sE}, 2")
            k("v_mov_b32 v5, s34")
            NZ = k.lab("nz")
            k(f"s_cmp_ge_u32 s{sE}, 8")
            k(f"s_cbranch_scc1 {NZ}")
            wave0(f"global_store_dword v5, v2, s[{sDBG}:{sDBG+1}] sc1", 1)
            k.label(NZ)
        for e in range(7):
            k(f"s_waitcnt lgkmcnt({6-e})")
            vm.op(f"buffer_store_dwordx4 {v(b_+4*e,4)}, v{116+e}, s[8:11], s35 offen sc1")
            k("s_add_u32 s35, s35, 65536" if e < 6 else f"s_sub_u32 s35, s35, {6*65536 - 4096}")
    k.stamp(-1)
    spin(zload, "v_cmp_eq_u32 vcc, 0, v112")
    k("s_barrier")
    k("v_lshlrev_b32 v6, 7, v1")
    k(f"s_lshl2_add_u32 s34, s{sE}, {FL + F_SP}")
    wave0("buffer_store_dword v2, v6, s[8:11], s34 offen sc1", "0xff")
    k.stamp(-1)
    k(f"s_lshr_b32 s22, s{sE}, 3")
    k(f"s_lshl2_add_u32 s22, s22, s{sW}")
    k("s_lshl_b32 s23, s22, 13")
    k.srd(12, 52, WGB)
    k.srd(16, 54, WGB)
    k.srd(24, 56, WGB)
    k.srd(28, 58, XB)
    n = [0]

    def touch(srd, soff, vo=6):
        k(f"buffer_load_dword v{8 + n[0] % 48}, v{vo}, s[{srd}:{srd+3}], s{soff} offen ; alt")
        n[0] += 1

    for job in SP_LIST:
        if job == "G":
            for off in range(SP_D0 * 3584, WGB, 16 * 8192):
                k(f"s_add_u32 s40, s23, {off}")
                touch(12, 40)
                touch(16, 40)
        if job == "d":
            k("s_and_b32 s40, s2, 7")
            k(f"s_mul_i32 s40, s40, {3*8*8192 if ROTS else 0}")
            k("s_add_u32 s40, s40, s23")
            for off in range(0, WGB, 16 * 8192):
                touch(24, 40)
                k(f"s_add_u32 s40, s40, {16*8192}")
                k(f"s_cmp_ge_u32 s40, {13*16*8192}")
                k(f"s_cselect_b32 s41, {13*16*8192}, 0")
                k("s_sub_u32 s40, s40, s41")
        if job == "R":
            k("s_and_b32 s42, s2, 7")
            k(f"s_min_u32 s42, s42, {6 if ROTW else 0}")
            k("s_lshl_b32 s42, s42, 2")
            k("s_min_u32 s43, s22, 13")
            k("s_cmp_ge_u32 s43, 7")
            k("s_cselect_b32 s44, s16, s12")
            k("s_cselect_b32 s45, s17, s13")
            k("s_cselect_b32 s41, 7, 0")
            k("s_sub_u32 s43, s43, s41")
            k("s_lshl_b32 s43, s43, 13")
            k(f"s_mov_b32 s46, {WGB}")
            k("s_mov_b32 s47, 0x20000")
            for kp in range(SP_K, 28):
                k(f"s_add_u32 s40, s42, {kp}")
                k("s_cmp_ge_u32 s40, 28")
                k("s_cselect_b32 s41, 28, 0")
                k("s_sub_u32 s40, s40, s41")
                k("s_mul_i32 s40, s40, 57344")
                k("s_add_u32 s40, s40, s43")
                touch(44, 40)
        if job == "e":
            for off in range(0, 192 * 896, 16 * 8192):
                for q in range(4):
                    k(f"s_add_u32 s40, s23, {off}")
                    k(f"s_min_u32 s40, s40, {192*896 - 8192}")
                    k(f"s_add_u32 s40, s40, {q*448*896}")
                    touch(24, 40)
        if job == "h":
            k("s_and_b32 s41, s2, 7")
            k(f"s_mul_i32 s41, s41, {8*112*1024}")
            k(f"s_add_u32 s41, s41, {HP}")
            k("s_min_u32 s42, s22, 13")
            k("s_lshl_b32 s42, s42, 13")
            k("s_add_u32 s41, s41, s42")
            for blk in range(4):
                touch(8, 41)
                k(f"s_add_u32 s41, s41, {2*112*1024}")
        if job == "o":
            k(f"s_lshl2_add_u32 s40, s{sE}, s{sW}")
            k("s_lshl_b32 s40, s40, 13")
            touch(28, 40)
            k("s_add_u32 s40, s40, 0x100000")
            touch(28, 40)
    if k.prof:
        k("s_waitcnt vmcnt(0)")
        k.stamp_flush(6, PROF, sW, 2)
    if WBL:
        k("s_cmp_lg_u32 s22, 0")
        k(f"s_cbranch_scc1 {END}")
        k("v_lshlrev_b32 v3, 2, v1")
        k("v_min_u32 v3, 220, v3")
        k("s_and_b32 s22, s2, 7")
        k("s_lshl_b32 s22, s22, 11")
        k(f"s_add_u32 s22, s22, {FL}")
        k(f"s_mov_b32 s23, {SPIN_MAX}")
        for off in WBL:
            lp = k.lab("wl")
            if off == F_LATE:
                k(f"s_add_u32 s22, s22, {F_LATE}")
                off = 0
            k.label(lp)
            k(f"buffer_load_dword v4, v3, s[8:11], s22 offen offset:{off} sc1")
            k(f"buffer_load_dword v5, v3, s[8:11], s22 offen offset:{off+1024} sc1")
            k("s_sub_u32 s23, s23, 1")
            k("s_waitcnt vmcnt(0)")
            k("s_cmp_eq_u32 s23, 0")
            k(f"s_cbranch_scc1 {END}")
            k("v_and_b32 v4, v4, v5")
            k("v_cmp_eq_u32 vcc, 0, v4")
            k("s_sleep 2")
            k(f"s_cbranch_vccnz {lp}")
            k("buffer_wbl2 sc1")
            k("s_waitcnt vmcnt(0)")
    k.label(END)
    k("s_endpgm")
    for o in outline:
        k(o)
    del outline[:]
    k.label(SLOW)
    rest(" sc1")
    for o in outline:
        k(o)
    return k


def build(k, as_list=False):
    body, desc = k.emit()
    print(k.stats, file=sys.stderr)
    head = ["; Fused preLN + GFNet spectral filter + preLN bilinear GLU in one launch (generated by gen/one.py)",
            "; kernarg: 0 A_x, 8 A_w_r, 16 A_w_i, 24 B_x (unused), 32 w_gate, 40 w_up, 48 w_down, 56 out, 64 debug, 72 ws",
            f"; @launch {'kernel=' + k.name + ' ' if as_list else ''}grid=(256,1,1) block=(256,1,1) lds={LDS}",
            '.amdgcn_target "amdgcn-amd-amdhsa--gfx950"', ".text"]
    return "\n".join(head + [body, '.section .rodata,"a"', ".p2align 6", desc]) + "\n"


if __name__ == "__main__":
    if "--prof" in sys.argv:
        Kern.prof = True
        sys.argv.remove("--prof")
    path = sys.argv[1] if len(sys.argv) > 1 else "sequential_preLN__spectral_gfnet__glu_gated_bilinear__prompt.s"
    open(path, "w").write(build(gen(), as_list=len(sys.argv) > 1))
```

```python
import os
import struct
import sys
from asmlib import Kern, v, a

NAME = "sequential_preLN__spectral_gfnet__glu_gated_bilinear__prompt_kernel"
S, D, F = 2048, 448, 1792
AT = BT = 0x000000
WT = HC = 0x200000
HP = 0x400000
M1 = 0xB00000
SSP = 0xB02000
FL = 0xB10000
WS_BYTES = 0xB20000
F_LATE, F_FB, F_P1, F_SP = 16384, 32768, 40960, 45056
PROF = 0x1800000
XB, WRB, WGB = S * D * 2, S * 225 * 2, D * F * 2
EPS = 1e-5
STG, XT, R2, RNG = 57344, 114688, 122880, 123904
LDS = RNG + 32768
SPIN_MAX = 1 << 18

E = lambda n, d: int(os.environ.get(n, d))
KS = E("KS", 4)
DRAIN_A, POLL_A, CHECK_A = E("DRAIN_A", 32), E("POLL_A", 40), E("CHECK_A", 44)
DRAIN_B, POLL_B, CHECK_B = E("DRAIN_B", 13), E("POLL_B", 21), E("CHECK_B", 26)
EPI_B0, RING, RING1, RED0, LATE = E("EPI_B0", 10), E("RING", 12), E("RING1", 8), E("RED0", 31), E("LATE", 46)
MA, NDMA0, WLAT = E("MA", 1), E("NDMA0", 7), E("WLAT", 10)
NP = [int(x) for x in os.environ.get("NP", "0,6,10").split(",")]
NS = [sum(NP)] + [int(x) for x in os.environ.get("NS", "6,6,6,14,8").split(",")]
WBL = eval(os.environ.get("WBL", "(F_LATE,)"))
SP_LIST = os.environ.get("SP_LIST", "cGd")
SP_D0, SP_K = E("SP_D0", 64), E("SP_K", 18)
TALL, TD, ROTW, ROTS = E("TALL", 0), E("TD", 0), E("ROTW", 0), E("ROTS", 1)
ROTD = E("ROTD", 1)
SCO = os.environ.get("SCO", " sc1")
TPM, TPS, PIPE = E("TPM", 0), E("TPS", 0), E("PIPE", 9)
DRATE = E("DRATE", 2)
TW, T1 = E("TW", 0), E("T1", 0)
SPLIT3, WFLAG = E("SPLIT3", 1), E("WFLAG", 1)
MAPB = E("MAPB", 0)
RING2 = E("RING2", 1)
ZFIRST = E("ZFIRST", 1)
SPS = os.environ.get("SPS", " sc1")
FINE = E("FINE", 0)
LD = os.environ.get("LD", " sc1")
P4ST = eval(os.environ.get("P4ST", "()"))
P5ST = eval(os.environ.get("P5ST", "()"))
assert sum(NS) == 56 and NS[0] <= 22 and sum(NS[1:4]) <= 22 and sum(NS[4:]) <= 22


def f2u(x):
    return "0x%08x" % struct.unpack("<I", struct.pack("<f", x))[0]


class Cnt:
    def __init__(self, k, name, lim):
        self.k, self.name, self.lim, self.n, self.done = k, name, lim, 0, 0

    def op(self, text):
        self.k(text)
        self.n += 1
        return self.n - 1

    def wait(self, idx):
        if idx < self.done:
            return
        c = min(self.n - idx - 1, self.lim)
        self.k(f"s_waitcnt {self.name}({c})")
        self.done = self.n - c

    def all(self):
        self.wait(self.n - 1)


def cmul8(k, y, x, c, sn, sign):
    neg = " neg_lo:[1,0,0] neg_hi:[1,0,0]"
    for e in range(0, 8, 2):
        k(f"v_pk_mul_f32 {v(y+e,2)}, {v(x+e,2)}, {v(c+e,2)}")
        k(f"v_pk_mul_f32 {v(y+8+e,2)}, {v(x+8+e,2)}, {v(c+e,2)}")
    for e in range(0, 8, 2):
        k(f"v_pk_fma_f32 {v(y+e,2)}, {v(x+8+e,2)}, {v(sn+e,2)}, {v(y+e,2)}" + (neg if sign > 0 else ""))
        k(f"v_pk_fma_f32 {v(y+8+e,2)}, {v(x+e,2)}, {v(sn+e,2)}, {v(y+8+e,2)}" + ("" if sign > 0 else neg))


def gen():
    k = Kern(NAME, 0, 0)
    vm = Cnt(k, "vmcnt", 63)
    END, SPARE = k.lab("end"), k.lab("spare")
    sW, sRB, sCT, sHALF, sRT, sFB = 20, 21, 22, 23, 24, 25
    sSB, sXO, sWG, sFL, sWD, sHS, sHP, sFI = 29, 30, 32, 33, 34, 36, 37, 39
    sA, sB = 40, 44
    sXC, sSS, sDBG, sROT, sWE = 60, 61, 62, 3, 38
    vL16, vG, vC, vL4, vOne, vLP = 3, 4, 5, 30, 2, 0
    vWG, vWT = 250, 251
    outline = []

    def touch_down(first, srd):
        k(f"s_and_b32 s26, s{sRT}, 3")
        k("s_mul_i32 s26, s26, 7")
        k(f"s_add_u32 s26, s26, s{sW}")
        k(f"s_mul_i32 s26, s26, {64*896}")
        k(f"s_lshl_b32 s27, s{sCT}, 7")
        k("s_add_u32 s26, s26, s27")
        k(f"s_add_u32 s26, s26, {first*64*896 & 0xffffffff}")
        k("v_mul_u32_u24 v244, 0x380, v1")
        return f"buffer_load_dword v{245 + (first > 0)}, v244, s[{srd}:{srd+3}], s26 offen"

    def capture(fn):
        saved, k.lines = k.lines, []
        fn()
        out, k.lines = k.lines, saved
        return out

    def spin(load, test, mark=None):
        loop, done = k.lab("poll"), k.lab("done")
        if mark is None:
            mark = vm.op(load)
        vm.wait(mark)
        k(test)
        k(f"s_mov_b32 s50, {SPIN_MAX}")
        k(f"s_cbranch_vccnz {loop}")
        k.label(done)
        outline.append(f"{loop}:\n{load}\ns_sub_u32 s50, s50, 1\ns_waitcnt vmcnt(0)\ns_cmp_eq_u32 s50, 0\n"
                       f"s_cbranch_scc1 {done}\n{test}\ns_nop 0\ns_cbranch_vccnz {loop}\ns_branch {done}")

    def spin0(load, regs, test, extra=0):
        loop, done, skip = k.lab("pp"), k.lab("pd"), k.lab("ps")
        n = len(regs)
        k(f"s_cmp_lg_u32 s{sW}, 0")
        k(f"s_cbranch_scc1 {skip}")
        k(f"s_mov_b32 s50, {SPIN_MAX}")
        for r in regs[:-1]:
            k(load(r) + " ; alt")
            if PIPE < 9:
                k(f"s_sleep {PIPE}")
        k.label(loop)
        for i in range(n):
            k(load(regs[(i - 1) % n]) + " ; alt")
            k(f"s_waitcnt vmcnt({n - 1})")
            k(test(regs[i]))
            k("s_nop 0")
            k(f"s_cbranch_vccz {done}")
        k("s_sub_u32 s50, s50, 1")
        k("s_cmp_lg_u32 s50, 0")
        k(f"s_cbranch_scc1 {loop}")
        k.label(done)
        k.label(skip)
        if extra:
            k(f"s_waitcnt vmcnt({extra})")
            vm.done = vm.n
        else:
            vm.all()
        k("s_barrier")

    def wave0(lines, mask):
        skip = k.lab("skip")
        k(f"s_cmp_lg_u32 s{sW}, 0")
        k(f"s_cbranch_scc1 {skip}")
        k(f"s_mov_b64 exec, {mask}")
        k(lines)
        k("s_mov_b64 exec, -1")
        k.label(skip)

    k("s_load_dwordx2 s[4:5], s[0:1], 0")
    k("s_load_dwordx4 s[44:47], s[0:1], 8")
    k("s_load_dwordx4 s[52:55], s[0:1], 32")
    k("s_load_dwordx4 s[56:59], s[0:1], 48")
    k(f"s_load_dwordx2 s[{sDBG}:{sDBG+1}], s[0:1], 64")
    k("s_load_dwordx2 s[6:7], s[0:1], 72")
    if "c" in SP_LIST:
        here, noc = k.lab("pc"), k.lab("noc")
        k("s_and_b32 s3, s2, 0xffffffe0")
        k("s_cmp_lg_u32 s3, 224")
        k(f"s_cbranch_scc1 {noc}")
        k("s_getpc_b64 s[8:9]")
        k.label(here)
        k("s_bfe_u32 s3, s2, 0x20003")
        k("v_lshrrev_b32 v1, 2, v0")
        k("s_lshl_b32 s3, s3, 13")
        k("v_lshl_add_u32 v1, v1, 7, s3")
        k("global_load_dword v113, v1, s[8:9] ; alt")
        k.label(noc)
    k("s_cmp_ge_u32 s2, 256")
    k(f"s_cbranch_scc1 {END}")
    k.stamp()
    k("v_lshrrev_b32 v2, 6, v0")
    k("v_and_b32 v1, 63, v0")
    k(f"v_readfirstlane_b32 s{sW}, v2")
    k("s_cmp_ge_u32 s2, 224")
    k(f"s_cbranch_scc1 {SPARE}")
    k("s_lshr_b32 s26, s2, 3")
    k("s_mul_i32 s27, s26, 37")
    k("s_lshr_b32 s27, s27, 8")
    k("s_and_b32 s28, s2, 7")
    k(f"s_lshl2_add_u32 s{sRT}, s28, s27")
    k("s_mul_i32 s28, s27, 7")
    k(f"s_sub_u32 s{sCT}, s26, s28")

    k("v_lshrrev_b32 v4, 5, v1")
    k("v_bfe_u32 v5, v1, 3, 2")
    k("v_lshl_add_u32 v4, v4, 4, v5")
    k("v_mul_u32_u24 v4, 0x7000, v4")
    k("v_lshrrev_b32 v5, 4, v1")
    k("v_and_b32 v6, 7, v1")
    k("v_xor_b32 v6, v6, v5")
    k("v_lshl_add_u32 v2, v6, 4, v4")
    k("v_xor_b32 v3, 64, v2")
    k(f"v_add_u32 v3, {32*32*896}, v3")
    k(f"s_lshl_b32 s26, s{sW}, 7")
    k(f"s_add_u32 s26, s26, s{sRT}")
    k("s_mul_i32 s26, s26, 896")
    k(f"s_lshl_b32 s27, s{sW}, 11")
    vB, vST, vE, vSG, vT, vF, vKK, vOnes, vCS = 8, 9, 9, 17, 19, 28, 27, 152, 156

    def p1_consts():
        k("v_and_b32 v8, 15, v1")
        k(f"s_and_b32 s28, s{sW}, 1")
        k("s_lshl_b32 s28, s28, 4")
        k(f"s_lshl_b32 s29, s{sCT}, 5")
        k("s_add_u32 s28, s28, s29")
        k(f"v_add_u32 {v(vKK)}, s28, v8")
        k("v_lshrrev_b32 v9, 1, v8")
        k("v_xor_b32 v9, v9, v5")
        k("v_lshlrev_b32 v9, 4, v9")
        k("v_lshl_add_u32 v4, v8, 7, v9")
        k(f"v_add_u32 v19, 1, {v(vKK)}")
        k("v_cvt_f32_u32 v20, v19")
        k("v_and_b32 v19, 1, v19")
        k("v_lshlrev_b32 v19, 31, v19")
        k(f"v_or_b32 {v(vSG)}, 1.0, v19")
        for e in range(1, 8):
            k(f"v_mul_f32 {v(vE+e)}, {f2u(e/448.0)}, v20")
        k(f"v_mul_f32 {v(vST)}, {f2u(32.0/448)}, v20")
        k(f"v_fract_f32 {v(vST)}, {v(vST)}")
        k("v_lshlrev_b32 v21, 3, v5")
        k("v_cvt_f32_u32 v21, v21")
        k(f"s_lshr_b32 s30, s{sW}, 1")
        k(f"s_mul_i32 s31, s30, {f2u(0.25)}")
        k(f"v_mov_b32 {v(vB)}, s31")
        k(f"v_fmac_f32 {v(vB)}, v21, {v(vE+1)}")
        k(f"v_fract_f32 {v(vB)}, {v(vB)}")
        if MAPB:
            k(f"s_and_b32 s{sHALF}, s2, 1")
            k(f"s_bfe_u32 s{sRB}, s2, 0x20001")
            k(f"s_and_b32 s35, s{sRT}, 3")
            k(f"s_lshl2_add_u32 s{sRB}, s{sRB}, s35")
        else:
            k(f"s_and_b32 s{sHALF}, s{sRT}, 1")
            k(f"s_lshr_b32 s{sRB}, s{sRT}, 1")
        k(f"s_mul_i32 s{sFB}, s{sHALF}, 7")
        k(f"s_add_u32 s{sFB}, s{sFB}, s{sCT}")
        k(f"s_lshl_b32 s{sWG}, s{sFB}, 8")
        k(f"s_mul_i32 s35, s{sW}, {4*3584}")
        k(f"s_add_u32 s{sWG}, s{sWG}, s35")
        k(f"s_lshl2_add_u32 s{sFB}, s{sFB}, s{sW}")
        k(f"s_add_u32 s{sWE}, s{sWG}, {28*57344}")
        k(f"s_and_b32 s{sROT}, s2, 7")
        k(f"s_min_u32 s{sROT}, s{sROT}, {6 if ROTW else 0}")
        k(f"s_mul_i32 s35, s{sROT}, {4*57344}")
        k(f"s_add_u32 s{sWG}, s{sWG}, s35")
        k(f"s_lshl_b32 s{sROT}, s{sROT}, 12")
        k("v_bfe_u32 v21, v1, 2, 2")
        k("v_xor_b32 v22, v21, v5")
        k("v_and_b32 v23, 3, v1")
        k("v_lshlrev_b32 v22, 6, v22")
        k("v_lshl_add_u32 v22, v23, 4, v22")
        k(f"v_mul_u32_u24 {v(vWG)}, 0xe00, v5")
        k(f"v_add_u32 {v(vWG)}, {v(vWG)}, v22")
        k(f"v_xor_b32 v22, s{sW}, v21")
        k("v_lshlrev_b32 v22, 6, v22")
        k("v_lshl_add_u32 v22, v21, 8, v22")
        k("v_lshl_add_u32 v22, v23, 3, v22")
        k("v_and_b32 v23, 1, v5")
        k("v_lshl_add_u32 v22, v23, 5, v22")
        k("v_lshrrev_b32 v23, 5, v1")
        k("v_lshl_add_u32 v22, v23, 11, v22")
        k(f"v_add_u32 {v(vWT)}, {STG}, v22")
        k(f"v_add_u32 {v(vWT+1)}, {RNG}, v22")
        k(f"s_lshl_b32 s35, s{sW}, 10")
        k("v_xor_b32 v5, 64, v4")
        k("v_add_u32 v6, s27, v4")
        k("v_add_u32 v7, s27, v5")
        for p in range(4):
            k(f"v_mov_b32 {v(vOnes+p)}, 0x3f803f80")
        for t in range(7):
            k(f"v_cos_f32 {v(vT)}, {v(vB)}")
            for e in range(1, 8):
                k(f"v_add_f32 {v(vT+e)}, {v(vB)}, {v(vE+e)}")
            for e in range(1, 8):
                k(f"v_cos_f32 {v(vT+e)}, {v(vT+e)}")
            if t < 6:
                k(f"v_add_f32 {v(vB)}, {v(vB)}, {v(vST)}")
                k(f"v_fract_f32 {v(vB)}, {v(vB)}")
            for p in range(4):
                k(f"v_cvt_pk_bf16_f32 {v(vF+4*t+p)}, {v(vT+2*p)}, {v(vT+2*p+1)}")
            if t > 0:
                k(f"v_mfma_f32_16x16x32_bf16 {v(vCS,4)}, {v(vOnes,4)}, {v(vF+4*t-4,4)}, {'0' if t == 1 else v(vCS,4)}")

    lines = capture(p1_consts)
    per = -(-len(lines) // 14)

    def slot():
        for _ in range(min(per, len(lines))):
            k(lines.pop(0))

    k("s_waitcnt lgkmcnt(0)")
    k.stamp(1) if FINE == 1 else None
    k.srd(12, 4, XB)
    xs = []
    for i in range(7):
        if i == 0:
            k(f"s_mov_b32 s48, s{sCT}")
        else:
            k("s_add_u32 s48, s48, 1")
            k("s_cmp_eq_u32 s48, 7")
            k("s_cselect_b32 s48, 0, s48")
        k("s_lshl_b32 s49, s48, 7")
        k("s_add_u32 s49, s49, s26")
        k("s_lshl_b32 s51, s48, 13")
        k("s_add_u32 m0, s51, s27")
        vm.op("buffer_load_dwordx4 v2, s[12:15], s49 offen lds")
        slot()
        k("s_add_u32 m0, m0, 1024")
        xs.append(vm.op("buffer_load_dwordx4 v3, s[12:15], s49 offen lds"))
        slot()
    assert not lines
    k.stamp(1) if FINE == 1 else None
    k("s_mov_b32 s8, s46")
    k("s_and_b32 s9, s47, 0xffff")
    k(f"s_mov_b32 s10, {WRB}")
    k("s_mov_b32 s11, 0x20000")
    k("s_and_b32 s45, s45, 0xffff")
    k(f"s_mov_b32 s46, {WRB}")
    k("s_mov_b32 s47, 0x20000")
    k(f"s_and_b32 s50, s{sRT}, 28")
    k(f"s_add_u32 s50, s50, s{sW}")
    k(f"s_and_b32 s51, s{sRT}, 3")
    k("s_lshl2_add_u32 s50, s50, s51")
    k("s_mul_i32 s50, s50, 7200")
    k(f"s_lshl_b32 s51, s{sCT}, 6")
    k("s_add_u32 s50, s50, s51")
    k("s_add_u32 s50, s50, 2")
    k("v_lshrrev_b32 v230, 2, v1")
    k("v_and_b32 v231, 3, v1")
    k("v_mul_u32_u24 v232, 0x1c2, v230")
    k("v_lshl_add_u32 v232, v231, 4, v232")
    vm.op("buffer_load_dwordx4 v[160:163], v232, s[44:47], s50 offen")
    wf_ld = vm.op("buffer_load_dwordx4 v[164:167], v232, s[8:11], s50 offen")
    k("v_lshlrev_b32 v230, 4, v230")
    k("v_lshl_add_u32 v230, v231, 11, v230")
    k(f"s_lshl2_add_u32 s50, s{sW}, {XT}")
    k("v_add_u32 v230, s50, v230")
    k.srd(8, 6, WS_BYTES)
    k.srd(sA, 52, WGB)
    k.srd(sB, 54, WGB)
    k.srd(16, 58, XB)
    k("s_mov_b32 s48, s56")
    k("s_mov_b32 s49, s57")
    k(f"v_mfma_f32_16x16x32_bf16 {v(vCS,4)}, {v(vOnes,4)}, {v(vF+24,4)}, {v(vCS,4)}")

    def stg(kp):
        return kp if kp < 11 else kp - 11 if kp < 22 else kp - 22

    sid = []

    def sload(cnt=1):
        for _ in range(cnt):
            n = len(sid)
            kp, m = n // 2, n % 2
            sl = stg(kp)
            k(f"s_add_u32 m0, s35, {(STG + sl*8192 if sl < 7 else RNG + (sl-7)*8192) + m*4096}")
            if n and not m:
                k(f"s_add_u32 s{sWG}, s{sWG}, {16*3584}")
                if ROTW and kp % 4 == 0:
                    k(f"s_cmp_eq_u32 s{sWG}, s{sWE}")
                    k(f"s_cselect_b32 s37, {28*57344}, 0")
                    k(f"s_sub_u32 s{sWG}, s{sWG}, s37")
            sid.append(vm.op(f"buffer_load_dwordx4 {v(vWG)}, s[{(sA, sB)[m]}:{(sA, sB)[m]+3}], s{sWG} offen lds"))

    def sread(k0, k1):
        for kp in range(k0, k1):
            sl = stg(kp)
            for m in range(2):
                for u in range(2):
                    k(f"ds_read_b64_tr_b16 {a(8*kp+4*m+2*u,2)}, {v(vWT + (sl >= 7))} offset:{(sl%7 if sl < 7 else sl-7)*8192 + m*4096 + u*1024}")

    k.stamp()
    vR, vSm, vGr = 56, 20, 120

    def stat(t):
        b = vR + 4 * (t % 4)
        k(f"v_mfma_f32_16x16x32_bf16 {v(vSm,4)}, {v(b,4)}, {v(vOnes,4)}, {'0' if t == 0 else v(vSm,4)}")
        k(f"v_mfma_f32_16x16x32_bf16 {v(vGr,4)}, {v(b,4)}, {v(b,4)}, {'0' if t == 0 else v(vGr,4)}")

    if TALL:
        k(f"s_lshl2_add_u32 s51, s2, s{sW}")
        k("s_mul_i32 s50, s51, 335")
        k("s_lshr_b32 s50, s50, 16")
        k("s_mul_i32 s29, s50, 196")
        k("s_sub_u32 s51, s51, s29")
        k("s_lshl_b32 s51, s51, 13")
        k("s_cmp_eq_u32 s50, 1")
        k("s_cselect_b32 s52, s54, s52")
        k("s_cselect_b32 s53, s55, s53")
        k("s_cmp_eq_u32 s50, 2")
        k("s_cselect_b32 s52, s56, s52")
        k("s_cselect_b32 s53, s57, s53")
        k("s_and_b32 s53, s53, 0xffff")
        k("s_cmp_le_u32 s50, 2")
        k(f"s_cselect_b32 s54, {WGB}, 0")
        k("s_mov_b32 s55, 0x20000")
        k("v_lshlrev_b32 v240, 7, v1")
        vm.op("buffer_load_dword v241, v240, s[52:55], s51 offen")
    if TPM:
        k("v_and_b32 v242, 15, v1")
        k("v_lshlrev_b32 v242, 13, v242")
        k("s_lshl_b32 s51, s28, 13")
        k("s_lshl_b32 s50, s30, 12")
        k("s_add_u32 s51, s51, s50")
        k(f"s_lshl_b32 s50, s{sRT}, 7")
        k("s_add_u32 s51, s51, s50")
        vm.op("buffer_load_dword v243, v242, s[8:11], s51 offen sc1")
    sload(NP[0])
    k(f"s_lshl_b32 s51, s{sCT}, 13")
    for c in range(7):
        k("v_add_u32 v26, s51, v6")
        k("v_add_u32 v18, s51, v7")
        if c < 6:
            k("s_add_u32 s51, s51, 8192")
            k("s_cmp_eq_u32 s51, 57344")
            k("s_cselect_b32 s51, 0, s51")
        vm.wait(xs[c])
        for par in range(2):
            k(f"ds_read_b128 {v(vR+4*((2*c+par)%4),4)}, v{18 if par else 26}")
        if c > 0:
            k("s_waitcnt lgkmcnt(2)")
            stat(2 * c - 2)
            stat(2 * c - 1)
    k("s_waitcnt lgkmcnt(0)")
    k.stamp(1) if FINE == 1 else None
    stat(12)
    stat(13)
    k("s_barrier")
    k.stamp()
    vA, vSt, vM, vQ = 88, 124, 24, 25
    seq = [(t, b) for t in range(14) for b in range(4)]

    def rd1(n):
        t, b = seq[n]
        k(f"ds_read_b128 {v(vR+4*(n%8),4)}, v{4+(t&1)} offset:{(t>>1)*8192 + b*2048}")

    fin = ["v_and_b32 v26, 3, v1",
           "v_cmp_eq_u32 s[52:53], 1, v26", "v_cmp_eq_u32 s[54:55], 2, v26", "v_cmp_eq_u32 s[56:57], 3, v26",
           "v_bfe_u32 v26, v1, 2, 2", "v_lshrrev_b32 v19, 4, v1", "v_cmp_eq_u32 s[58:59], v26, v19",
           f"v_cndmask_b32 {v(vM)}, {v(vSm)}, {v(vSm+1)}, s[52:53]", f"v_cndmask_b32 {v(vQ)}, {v(vGr)}, {v(vGr+1)}, s[52:53]",
           f"v_cndmask_b32 {v(vM)}, {v(vM)}, {v(vSm+2)}, s[54:55]", f"v_cndmask_b32 {v(vQ)}, {v(vQ)}, {v(vGr+2)}, s[54:55]",
           f"v_cndmask_b32 {v(vM)}, {v(vM)}, {v(vSm+3)}, s[56:57]", f"v_cndmask_b32 {v(vQ)}, {v(vQ)}, {v(vGr+3)}, s[56:57]",
           f"v_mul_f32 {v(vM)}, {f2u(1.0/448)}, {v(vM)}",
           f"v_mul_f32 {v(vQ)}, {f2u(1.0/448)}, {v(vQ)}",
           "v_and_b32 v26, 15, v1",
           f"v_fma_f32 {v(vQ)}, -{v(vM)}, {v(vM)}, {v(vQ)}",
           f"s_lshl_b32 s33, s{sW}, 6\ns_add_u32 s33, s33, {R2}",
           f"v_max_f32 {v(vQ)}, 0, {v(vQ)}",
           "v_lshl_add_u32 v19, v26, 2, s33",
           f"v_add_f32 {v(vQ)}, {f2u(EPS)}, {v(vQ)}",
           f"v_fmac_f32 {v(vCS)}, {v(vCS)}, {v(vSG)}",
           f"v_rsq_f32 {v(vQ)}, {v(vQ)}",
           "v_lshrrev_b32 v21, 2, v26",
           "v_and_b32 v26, 3, v26",
           f"v_mul_f32 v20, {v(vM)}, {v(vQ)}",
           "v_lshl_add_u32 v26, v21, 4, v26",
           "v_lshlrev_b32 v26, 7, v26",
           f"s_lshl_b32 s33, s{sW}, 7",
           f"s_add_u32 s33, s33, s{sRT}",
           f"s_lshl2_add_u32 s33, s33, {M1}",
           f"s_cmp_eq_u32 s{sCT}, 0\ns_cselect_b32 s33, s33, 0x40000000"]
    DEPTH = 7
    for n in range(DEPTH):
        rd1(n)
    if T1:
        k(f"s_bitcmp1_b32 s{sW}, 0")
        k(f"s_cselect_b32 s52, s{sB}, s{sA}")
        k(f"s_cselect_b32 s53, s{sB+1}, s{sA+1}")
        k(f"s_mov_b32 s54, {WGB}")
        k("s_mov_b32 s55, 0x20000")
        k(f"s_and_b32 s50, s{sRB}, 1")
        k(f"s_lshr_b32 s51, s{sW}, 1")
        k("s_lshl1_add_u32 s50, s50, s51")
        k(f"s_mul_i32 s50, s50, {2*57344}")
        k(f"s_lshr_b32 s51, s{sFB}, 2")
        k("s_lshl_b32 s51, s51, 8")
        k("s_add_u32 s50, s50, s51")
        k(f"s_add_u32 s50, s50, {T1*57344}")
        k("v_lshrrev_b32 v240, 1, v1")
        k("v_mul_u32_u24 v240, 0xe00, v240")
        k("v_and_b32 v241, 1, v1")
        k("v_lshl_add_u32 v240, v241, 7, v240")
        vm.op("buffer_load_dword v241, v240, s[52:55], s50 offen")
    for n in range(56):
        t, b = seq[n]
        k(f"s_waitcnt lgkmcnt({min(DEPTH - 1, 55 - n) + (2 if 40 < n <= 40 + DEPTH else 0)})")
        acc = vA + 16 * (t // 7) + 4 * b
        k(f"v_mfma_f32_16x16x32_bf16 {v(acc,4)}, {v(vR+4*(n%8),4)}, {v(vF+4*(t%7),4)}, {'0' if t % 7 == 0 else v(acc,4)}")
        if n + DEPTH < 56:
            rd1(n + DEPTH)
        if n >= 4 and fin:
            k(fin.pop(0))
        if n == 40:
            assert not fin
            k("s_mov_b64 exec, s[58:59]")
            k(f"ds_write_b32 v19, {v(vQ)}")
            k("ds_write_b32 v19, v20 offset:256")
            vm.op(f"buffer_store_dword {v(vM)}, v26, s[8:11], s33 offen sc1")
            k("s_mov_b64 exec, -1")
        if n % 8 == 3 and len(sid) < NP[0] + NP[1]:
            sload()
    k.stamp(1) if FINE == 1 else None
    vm.wait(wf_ld)
    k("s_mov_b32 s50, 0x05040100")
    k("s_mov_b32 s51, 0x07060302")
    for e in range(8):
        k(f"v_perm_b32 v{168+e}, v{164+(e>>1)}, v{160+(e>>1)}, s{50+(e&1)}")
    for e in range(0, 8, 2):
        k(f"ds_write2st64_b32 v230, v{168+e}, v{169+e} offset0:{e} offset1:{e+1}")
    k(f"s_add_u32 s50, s27, {XT}")
    k("v_lshl_add_u32 v231, v1, 4, s50")
    k("s_waitcnt lgkmcnt(0)")
    k("s_barrier")
    k.stamp(1) if FINE == 1 else None
    k("ds_read_b128 v[160:163], v231")
    k("ds_read_b128 v[164:167], v231 offset:1024")
    k("v_lshrrev_b32 v230, 4, v1")
    k("v_and_b32 v231, 15, v1")
    k("v_lshlrev_b32 v231, 4, v231")
    k("v_lshl_add_u32 v230, v230, 13, v231")
    k(f"s_lshl2_add_u32 s50, s{sCT}, s{sW}")
    k("s_lshl_b32 s50, s50, 16")
    k(f"s_and_b32 s51, s{sRT}, 3")
    k("s_lshl_b32 s51, s51, 11")
    k("s_add_u32 s50, s50, s51")
    k(f"s_lshr_b32 s51, s{sRT}, 2")
    k("s_lshl_b32 s51, s51, 8")
    k("s_add_u32 s50, s50, s51")
    k(f"s_add_u32 s50, s50, {WT}")
    k("s_add_u32 s51, s50, 32768")
    k("v_lshrrev_b32 v24, 4, v1")
    k("v_lshlrev_b32 v24, 4, v24")
    k(f"v_add_u32 v25, {R2}, v24")
    for b in range(4):
        k(f"ds_read_b128 {v(vSt+4*b,4)}, v25 offset:{64*b}")
        k(f"ds_read_b128 {v(vSt+16+4*b,4)}, v25 offset:{256 + 64*b}")
    for n in range(0, 16, 2):
        k(f"v_pk_fma_f32 {v(vA+n,2)}, {v(vA+16+n,2)}, {v(vSG-1,2)}, {v(vA+n,2)} op_sel:[0,1,0]")
    k("s_waitcnt lgkmcnt(8)")
    vm.op("buffer_store_dwordx4 v[160:163], v230, s[8:11], s50 offen sc1")
    vm.op("buffer_store_dwordx4 v[164:167], v230, s[8:11], s51 offen sc1")
    k.stamp(1) if FINE == 1 else None
    k("v_and_b32 v8, 15, v1")
    k("v_and_b32 v9, 7, v1")
    k("v_lshrrev_b32 v10, 3, v24")
    k("v_xor_b32 v10, v10, v9")
    k("v_lshlrev_b32 v10, 4, v10")
    k("v_lshl_add_u32 v10, v8, 7, v10")
    k("v_add_u32 v10, s27, v10")
    k("v_xor_b32 v11, 16, v10")
    k(f"v_lshlrev_b32 {v(vL16)}, 4, v1")
    k(f"v_add_u32 v12, s27, {v(vL16)}")
    k("v_lshrrev_b32 v13, 3, v1")
    k("v_xor_b32 v9, v9, v13")
    k("v_lshlrev_b32 v9, 4, v9")
    k("v_lshl_add_u32 v13, v13, 13, v9")
    k("s_lshl_b32 s28, s28, 13")
    k("s_lshl_b32 s30, s30, 12")
    k(f"s_lshl_b32 s33, s{sRT}, 7")
    k("s_add_u32 s33, s33, s30")
    k("s_add_u32 s33, s33, s28")
    k("s_add_u32 s34, s33, 0x10000")
    for h2 in range(2):
        k(f"s_waitcnt lgkmcnt({4-4*h2})")
        for n in range(8 * h2, 8 * h2 + 8, 2):
            k(f"v_pk_mul_f32 {v(vA+n,2)}, {v(vA+n,2)}, {v(vSt+n,2)}")
        for n in range(8 * h2, 8 * h2 + 8, 2):
            k(f"v_pk_fma_f32 {v(vA+n,2)}, {v(vSt+16+n,2)}, {v(vCS,2)}, {v(vA+n,2)} op_sel_hi:[1,0,1] neg_lo:[1,0,0] neg_hi:[1,0,0]")
        for n in range(4 * h2, 4 * h2 + 4):
            k(f"v_cvt_pk_bf16_f32 {v(vR+n)}, {v(vA+2*n)}, {v(vA+2*n+1)}")
    k.stamp(1) if FINE == 1 else None
    k(f"ds_write_b128 v10, {v(vR,4)}")
    k(f"ds_write_b128 v11, {v(vR+4,4)}")
    k("s_waitcnt lgkmcnt(0)")
    k(f"ds_read_b128 {v(vR+8,4)}, v12")
    k(f"ds_read_b128 {v(vR+12,4)}, v12 offset:1024")
    k(f"v_lshlrev_b32 {v(vL4)}, 2, v1")
    k(f"v_min_u32 v14, 28, {v(vL4)}")
    k("s_waitcnt lgkmcnt(1)")
    vm.op(f"buffer_store_dwordx4 {v(vR+8,4)}, v13, s[8:11], s33 offen sc1")
    k("s_waitcnt lgkmcnt(0)")
    at_st = vm.op(f"buffer_store_dwordx4 {v(vR+12,4)}, v13, s[8:11], s34 offen sc1")
    zload = f"global_load_dword v31, v14, s[{sDBG}:{sDBG+1}] sc1"
    zmark = vm.op(zload)
    k.stamp()

    sKK, vWt = 2, 200
    vC1, vS1, vN1, vC2, vS2, vN2 = 32, 40, 48, 56, 64, 72
    vTc, vTs, vUc, vUs, vD, wX, vY, vP, wT = 80, 88, 96, 104, 112, 144, 160, 176, 184
    m2 = [0, 1, 2, 3, 16, 17, 18, 19]
    k(f"v_lshrrev_b32 {v(vG)}, 4, v1")
    k(f"v_and_b32 {v(vC)}, 15, v1")
    k(f"v_mov_b32 {v(vOne)}, 1")
    k(f"v_min_u32 {v(vLP)}, 220, {v(vL4)}")
    k("v_and_b32 v7, 7, v1")
    k(f"v_xor_b32 v7, v7, {v(vG)}")
    k("v_lshrrev_b32 v8, 3, v1")
    k("v_lshlrev_b32 v8, 7, v8")
    k("v_lshl_add_u32 v211, v7, 4, v8")
    k("v_xor_b32 v212, 64, v211")
    k(f"s_lshl_b32 s{sFL}, s{sRB}, 10")
    k(f"s_add_u32 s{sFL}, s{sFL}, {FL}")
    k(f"s_lshl2_add_u32 s{sFI}, s{sFB}, s{sFL}")
    k(f"s_getreg_b32 s{sXC}, hwreg(HW_REG_XCC_ID, 0, 4)")
    k(f"s_lshr_b32 s26, s{sKK}, 5")
    k(f"s_lshl_b32 s26, s26, {9 if WFLAG else 7}")
    k(f"s_add_u32 s51, s26, {FL + F_P1}")
    k("v_lshlrev_b32 v214, 3, v1")
    k(f"v_and_b32 v213, 124, {v(vL4)}")
    k(f"s_lshl_b32 s26, s{sCT}, 5")
    k(f"s_add_u32 s26, s26, s{sRT}")
    if WFLAG:
        k(f"s_lshl2_add_u32 s26, s26, s{sW}")
    k(f"s_lshl2_add_u32 s52, s26, {FL + F_P1}")
    k(f"s_lshl1_add_u32 s{sRT}, s{sRB}, s{sHALF}")

    def packed_table(dc, ds_, step, base, mult):
        for e in range(8):
            k(f"v_mov_b32 {v(wT+e)}, {v(base)}" if mult[e] == 0 else
              f"v_fmamk_f32 {v(wT+e)}, {v(step)}, {f2u(float(mult[e]))}, {v(base)}")
        for e in range(8):
            k(f"v_cos_f32 {v(wT+8+e)}, {v(wT+e)}")
        for e in range(8):
            k(f"v_sin_f32 {v(wT+e)}, {v(wT+e)}")
        for p in range(4):
            k(f"v_cvt_pk_bf16_f32 {v(dc+p)}, {v(wT+8+2*p)}, {v(wT+8+2*p+1)}")
        for p in range(4):
            k(f"v_cvt_pk_bf16_f32 {v(ds_+p)}, {v(wT+2*p)}, {v(wT+2*p+1)}")

    k(f"s_lshl_b32 s53, s{sW}, 4")
    k(f"v_add_u32 v210, s53, {v(vC)}")
    k("v_cvt_f32_u32 v208, v210")
    k(f"v_cvt_f32_u32 v209, {v(vG)}")
    k(f"v_mul_f32 {v(vY)}, {f2u(1.0/64)}, v208")
    k(f"v_mul_f32 {v(vY+1)}, {f2u(8.0)}, v209")
    k(f"v_mul_f32 {v(vY+1)}, {v(vY+1)}, {v(vY)}")
    packed_table(vC1, vS1, vY, vY + 1, list(range(8)))
    k("s_mov_b32 s54, 0x80008000")
    k("v_and_b32 v210, 1, v1")
    k("v_mul_u32_u24 v210, 0x8000, v210")
    k("v_lshl_or_b32 v210, v210, 16, v210")
    for p in range(4):
        k(f"v_xor_b32 {v(vC1+4+p)}, v210, {v(vC1+p)}")
        k(f"v_xor_b32 {v(vS1+4+p)}, v210, {v(vS1+p)}")
    for p in range(8):
        k(f"v_xor_b32 {v(vN1+p)}, s54, {v(vS1+p)}")
    k.stamp(1) if FINE == 1 else None
    spin(zload, "v_cmp_eq_u32 vcc, 0, v31", zmark)
    if WFLAG:
        vm.op(f"buffer_store_dword {v(vOne)}, off, s[8:11], s52 sc1")
        vm.wait(sid[-1])
        k("s_barrier")
    else:
        vm.all()
        k("s_barrier")
        wave0(f"buffer_store_dword {v(vOne)}, off, s[8:11], s52 sc1", 1)
    k.stamp()
    nr1 = len(sid) // 2
    assert len(sid) == NP[0] + NP[1] and len(sid) % 2 == 0
    sload(NP[2])
    sread(0, nr1)
    k(f"v_lshrrev_b32 v210, 1, {v(vC)}")
    k(f"v_xor_b32 v210, v210, {v(vG)}")
    k("v_lshlrev_b32 v210, 4, v210")
    k(f"v_lshl_add_u32 {v(vP)}, {v(vC)}, 7, v210")
    k(f"v_xor_b32 {v(vP+1)}, 64, {v(vP)}")
    k(f"v_cvt_f32_u32 v210, {v(vC)}")
    k(f"v_mul_f32 {v(vY)}, {f2u(1.0/32)}, v210")
    k(f"v_mul_f32 {v(vY+1)}, 4.0, v209")
    k(f"v_mul_f32 {v(vY+1)}, {v(vY+1)}, {v(vY)}")
    packed_table(vC2, vS2, vY, vY + 1, m2)
    k("s_brev_b32 s55, 1")
    for p in range(4):
        k(f"v_xor_b32 {v(vC2+4+p)}, s55, {v(vC2+p)}")
        k(f"v_xor_b32 {v(vS2+4+p)}, s55, {v(vS2+p)}")
    for p in range(8):
        k(f"v_xor_b32 {v(vN2+p)}, s54, {v(vS2+p)}")
    k(f"v_mul_f32 {v(vY)}, {f2u(1.0/2048)}, v208")
    k(f"v_mul_f32 {v(vY+1)}, 4.0, v209")
    k(f"v_mul_f32 {v(vY+1)}, {v(vY+1)}, {v(vY)}")
    for e in range(8):
        k(f"v_mov_b32 {v(vTs+e)}, {v(vY+1)}" if m2[e] == 0 else
          f"v_fmamk_f32 {v(vTs+e)}, {v(vY)}, {f2u(float(m2[e]))}, {v(vY+1)}")
    for e in range(8):
        k(f"v_cos_f32 {v(vTc+e)}, {v(vTs+e)}")
    for e in range(8):
        k(f"v_sin_f32 {v(vTs+e)}, {v(vTs+e)}")
    k(f"v_mul_f32 {v(wT)}, {f2u(1.0/2048)}, v210")
    k(f"v_add_f32 {v(wT+1)}, {f2u(16.0/2048)}, {v(wT)}")
    k(f"v_lshl_add_u32 v208, {v(vG)}, 2, s53")
    k("v_cvt_f32_u32 v208, v208")
    for r in range(4):
        for blk in range(2):
            k(f"v_mul_f32 {v(vUs+4*blk+r)}, v208, {v(wT+blk)}")
        if r < 3:
            k("v_add_f32 v208, 1.0, v208")
    for e in range(8):
        k(f"v_cos_f32 {v(vUc+e)}, {v(vUs+e)}")
    for e in range(8):
        k(f"v_sin_f32 {v(vUs+e)}, {v(vUs+e)}")
    sc = 2.0 / (S * D)
    k(f"s_cmp_eq_u32 s{sKK}, 223")
    k(f"s_mov_b32 s55, {f2u(sc)}")
    k(f"s_cselect_b32 s55, {f2u(sc/2)}, s55")
    for e in range(8):
        k(f"v_mul_f32 {v(vUc+e)}, s55, {v(vUc+e)}")
        k(f"v_mul_f32 {v(vUs+e)}, s55, {v(vUs+e)}")
    k(f"v_lshrrev_b32 v208, 1, {v(vG)}")
    k(f"v_lshl_add_u32 v208, v208, 4, {v(vC)}")
    k("v_lshlrev_b32 v208, 4, v208")
    k(f"v_and_b32 v209, 1, {v(vG)}")
    k("v_lshl_add_u32 v208, v209, 3, v208")
    k(f"s_lshl_b32 s26, s{sW}, 9")
    k("v_add_u32 v208, s26, v208")
    k(f"s_lshl_b32 s26, s{sKK}, 13")
    k("s_add_u32 s56, s26, s27")
    k(f"s_add_u32 s57, s56, {WT}")
    k("s_add_u32 s58, s26, s35")
    k("s_add_u32 s59, s58, 4096")
    k("s_mov_b32 m0, s27")
    k("s_waitcnt lgkmcnt(0)")
    k("s_barrier")
    k.stamp()
    if WFLAG:
        spin0(lambda r: f"buffer_load_dwordx2 v[{r}:{r+1}], v214, s[8:11], s51 offen sc1", [216, 218, 220],
              lambda r: f"v_and_b32 v{r}, v{r}, v{r+1}\nv_cmp_eq_u32 vcc, 0, v{r}")
    elif PIPE:
        spin0(lambda r: f"buffer_load_dword v{r}, v213, s[8:11], s51 offen sc1", [216, 217, 218], lambda r: f"v_cmp_eq_u32 vcc, 0, v{r}")
    else:
        spin("buffer_load_dword v31, v213, s[8:11], s51 offen sc1", "v_cmp_eq_u32 vcc, 0, v31")
    k.stamp()
    vm.op(f"buffer_load_dwordx4 v211, s[8:11], s56 offen{LD} lds")
    at_ld = vm.op(f"buffer_load_dwordx4 v212, s[8:11], s56 offen offset:1024{LD} lds")
    vm.op(f"buffer_load_dwordx4 {v(vWt,4)}, {v(vL16)}, s[8:11], s57 offen{LD}")
    wt_ld = vm.op(f"buffer_load_dwordx4 {v(vWt+4,4)}, {v(vL16)}, s[8:11], s57 offen offset:1024{LD}")
    k(f"s_lshl_b32 s26, s{sXC}, 2")
    k("s_lshl_b32 s26, 1, s26")
    k(f"s_lshr_b32 s28, s{sXC}, 3")
    k(f"s_lshl2_add_u32 s28, s28, s{sFL}")
    wave0("v_mov_b32 v215, s26\nbuffer_atomic_add v215, off, s[8:11], s28 offset:768 sc1", 1)
    if not PIPE:
        k("s_barrier")
    assert NS[1] <= 2 * nr1 + 22 - NS[0]
    sread(nr1, NS[0] // 2)
    nr1 = NS[0] // 2
    sload(NS[1])
    vm.wait(at_ld)
    k("s_waitcnt lgkmcnt(0)")
    k("s_barrier")
    k.stamp()
    for t in range(2):
        for blk in range(2):
            for plane in range(2):
                k(f"ds_read_b128 {v(vD+16*plane+8*blk+4*t,4)}, {v(vP+t)} offset:{plane*4096+blk*2048}")
    sload(NS[2])

    def dft_big(cr, ci):
        for t in range(2):
            for blk in range(2):
                k(f"s_waitcnt lgkmcnt({6 - 4*t - 2*blk})")
                ar, ai = vD + 8 * blk + 4 * t, vD + 16 + 8 * blk + 4 * t
                xr, xi = wX + 4 * blk, wX + 8 + 4 * blk
                k(f"v_mfma_f32_16x16x32_bf16 {v(xr,4)}, {v(ar,4)}, {v(vC1+4*t,4)}, {'0' if t == 0 else v(xr,4)}")
                k(f"v_mfma_f32_16x16x32_bf16 {v(xi,4)}, {v(ai,4)}, {v(vC1+4*t,4)}, {'0' if t == 0 else v(xi,4)}")
                k(f"v_mfma_f32_16x16x32_bf16 {v(xr,4)}, {v(ai,4)}, {v(cr+4*t,4)}, {v(xr,4)}")
                k(f"v_mfma_f32_16x16x32_bf16 {v(xi,4)}, {v(ar,4)}, {v(ci+4*t,4)}, {v(xi,4)}")

    def pack():
        for p in range(4):
            k(f"v_cvt_pk_bf16_f32 {v(vP+p)}, {v(vY+2*p)}, {v(vY+2*p+1)}")
            k(f"v_cvt_pk_bf16_f32 {v(vP+4+p)}, {v(vY+8+2*p)}, {v(vY+8+2*p+1)}")

    k.stamp(1) if FINE == 2 else None
    dft_big(vS1, vN1)
    k.stamp(1) if FINE == 2 else None
    cmul8(k, vY, wX, vTc, vTs, -1)
    pack()
    for blk in range(2):
        xr, xi = wX + 4 * blk, wX + 8 + 4 * blk
        k(f"v_mfma_f32_16x16x32_bf16 {v(xr,4)}, {v(vC2+4*blk,4)}, {v(vP,4)}, 0")
        k(f"v_mfma_f32_16x16x32_bf16 {v(xi,4)}, {v(vC2+4*blk,4)}, {v(vP+4,4)}, 0")
        k(f"v_mfma_f32_16x16x32_bf16 {v(xr,4)}, {v(vS2+4*blk,4)}, {v(vP+4,4)}, {v(xr,4)}")
        k(f"v_mfma_f32_16x16x32_bf16 {v(xi,4)}, {v(vN2+4*blk,4)}, {v(vP,4)}, {v(xi,4)}")
    k.stamp(1) if FINE == 2 else None
    vm.wait(wt_ld)
    for e in range(8):
        k(f"v_lshlrev_b32 {v(wT+e)}, 16, {v(vWt+e)}")
        k(f"v_and_b32 {v(wT+8+e)}, 0xffff0000, {v(vWt+e)}")
    sload(NS[3] // 2)
    k.stamp(1) if FINE == 2 else None
    cmul8(k, vY, wX, wT, wT + 8, +1)
    pack()
    for blk in range(2):
        xr, xi = wX + 4 * blk, wX + 8 + 4 * blk
        k(f"v_mfma_f32_16x16x32_bf16 {v(xr,4)}, {v(vP,4)}, {v(vC2+4*blk,4)}, 0")
        k(f"v_mfma_f32_16x16x32_bf16 {v(xi,4)}, {v(vP+4,4)}, {v(vC2+4*blk,4)}, 0")
        k(f"v_mfma_f32_16x16x32_bf16 {v(xr,4)}, {v(vP+4,4)}, {v(vN2+4*blk,4)}, {v(xr,4)}")
        k(f"v_mfma_f32_16x16x32_bf16 {v(xi,4)}, {v(vP,4)}, {v(vS2+4*blk,4)}, {v(xi,4)}")
    sload(NS[3] - NS[3] // 2)
    k.stamp(1) if FINE == 2 else None
    cmul8(k, vY, wX, vUc, vUs, +1)
    pack()
    for plane in range(2):
        for blk in range(2):
            k(f"ds_write_b64 v208, {v(vP+4*plane+2*blk,2)} offset:{8192+plane*4096+blk*2048}")
    k("s_waitcnt lgkmcnt(0)")
    k("s_barrier")
    for t in range(2):
        for blk in range(2):
            for plane in range(2):
                k(f"ds_read_b128 {v(vD+16*plane+8*blk+4*t,4)}, {v(vL16)} offset:{8192+plane*4096+blk*2048+t*1024}")
    k.stamp(1) if FINE == 2 else None
    k(f"s_cmp_ge_u32 s{sKK}, 112")
    k("s_cselect_b32 s54, s54, 0")
    dft_big(vN1, vS1)
    for p in range(4):
        k(f"v_cvt_pk_bf16_f32 {v(vP+p)}, {v(wX+2*p)}, {v(wX+2*p+1)}")
    vm.op(f"buffer_store_dwordx4 {v(vP,4)}, {v(vL16)}, s[8:11], s58 offen sc1")
    for p in range(4):
        k(f"v_cvt_pk_bf16_f32 {v(vP+4+p)}, {v(wX+8+2*p)}, {v(wX+8+2*p+1)}")
    for p in range(4):
        k(f"v_xor_b32 {v(vP+4+p)}, s54, {v(vP+4+p)}")
    vm.op(f"buffer_store_dwordx4 {v(vP+4,4)}, {v(vL16)}, s[8:11], s59 offen sc1")
    k.stamp()

    vXO, vM, vTB, vXA, vGm = 10, 12, 14, 18, 32
    cload = f"buffer_load_dwordx2 v[28:29], off, s[8:11], s{sFL} offset:768 sc1"
    k(f"v_and_b32 v6, 1, {v(vG)}")
    k(f"s_and_b32 s29, s{sW}, 1")
    k("s_lshl_b32 s29, s29, 2")
    k("v_lshl_or_b32 v6, v6, 1, s29")
    k("v_and_b32 v7, 7, v1")
    k("v_xor_b32 v6, v6, v7")
    k("v_lshrrev_b32 v8, 3, v1")
    k("v_lshlrev_b32 v9, 12, v8")
    k("v_lshl_add_u32 v6, v6, 4, v9")
    k(f"s_lshl_b32 s28, s{sW}, 15")
    k(f"s_lshl_b32 s27, s{sRT}, 7")
    k("s_add_u32 s51, s28, s27")
    k("s_sub_u32 s52, s27, s28")
    k(f"s_add_u32 s52, s52, {438*4096}")
    k(f"s_bitcmp1_b32 s{sCT}, 0")
    k("s_cselect_b32 s53, s51, s52")
    k("s_cselect_b32 s51, s52, s51")
    k("s_cselect_b32 s54, 0x6000, 0")
    k("s_cselect_b32 s55, 28672, 0")
    k("s_mov_b32 s52, 0x20000")
    k("s_cselect_b32 s52, 0xfffe0000, s52")
    k("v_xor_b32 v6, s54, v6")
    k("v_lshrrev_b32 v9, 5, v1")
    k("v_and_b32 v8, 3, v8")
    k("v_lshl_add_u32 v8, v9, 4, v8")
    k("v_mul_u32_u24 v8, 0x380, v8")
    k(f"v_xor_b32 v7, v7, {v(vG)}")
    k("v_xor_b32 v7, s29, v7")
    k(f"v_lshl_add_u32 {v(vXO)}, v7, 4, v8")
    k(f"s_lshr_b32 s26, s{sRT}, 3")
    k("s_lshl_b32 s26, s26, 9")
    k(f"s_lshl_b32 s28, s{sHALF}, 8")
    k("s_add_u32 s26, s26, s28")
    k(f"s_and_b32 s28, s{sRB}, 3")
    k(f"s_lshl2_add_u32 s{sSB}, s28, s26")
    k(f"s_lshl_b32 s26, s{sW}, 5")
    k(f"s_add_u32 s26, s26, s{sSB}")
    k("s_mul_i32 s26, s26, 896")
    k(f"s_lshl_b32 s28, s{sCT}, 7")
    k(f"s_add_u32 s{sXO}, s26, s28")
    k(f"s_add_u32 s{sXO+1}, s{sXO}, {128*896}")
    k("v_bfe_u32 v7, v1, 3, 2")
    k("v_bfe_u32 v8, v1, 2, 1")
    k("v_lshlrev_b32 v8, 4, v8")
    k("v_lshl_add_u32 v7, v7, 5, v8")
    k("v_and_b32 v8, 3, v1")
    k("v_add_lshl_u32 v11, v7, v8, 2")
    k(f"s_lshl2_add_u32 s56, s{sSB}, {M1}")
    k("v_lshlrev_b32 v213, 10, v1")
    k(f"s_lshl2_add_u32 s57, s2, {FL + F_FB}")
    k("s_and_b32 s58, s2, 7")
    k("s_lshl_b32 s58, s58, 10")
    k(f"s_add_u32 s58, s58, {FL + F_FB}")
    k(f"v_min_u32 v214, 880, {v(vL16)}")
    vm.all()
    k("s_barrier")
    wave0(f"buffer_store_dword {v(vOne)}, v213, s[8:11], s57 offen sc1", "0xff")
    k.stamp()
    nr2 = len(sid) // 2
    sread(nr1, nr2)
    k(f"s_add_u32 m0, s35, {XT}")
    vm.op(f"buffer_load_dwordx4 {v(vXO)}, s[12:15], s{sXO} offen lds")
    k(f"s_add_u32 m0, s35, {XT+4096}")
    vm.op(f"buffer_load_dwordx4 {v(vXO)}, s[12:15], s{sXO+1} offen lds")
    k("s_waitcnt lgkmcnt(0)")
    k("s_barrier")

    def p3_consts():
        vB, vST, vE, vT = 14, 15, 15, 20
        k(f"s_lshl_b32 s26, s{sCT}, 6")
        k(f"s_lshl_b32 s27, s{sW}, 4")
        k("s_add_u32 s26, s26, s27")
        k(f"v_add_u32 v27, s26, {v(vC)}")
        k("v_cvt_f32_u32 v27, v27")
        for p in range(1, 4):
            k(f"v_mul_f32 {v(vE+p)}, {f2u(p/448.0)}, v27")
        k(f"v_mul_f32 {v(vST)}, {f2u(16.0/448)}, v27")
        k(f"v_fract_f32 {v(vST)}, {v(vST)}")
        k(f"v_lshl_add_u32 v19, {v(vG)}, 2, 1")
        k("v_cvt_f32_u32 v19, v19")
        k(f"v_mul_f32 {v(vB)}, v19, {v(vE+1)}")
        k(f"v_fract_f32 {v(vB)}, {v(vB)}")
        for t in range(7):
            k(f"v_cos_f32 {v(vT+4)}, {v(vB)}")
            k(f"v_sin_f32 {v(vT)}, {v(vB)}")
            for p in range(1, 4):
                k(f"v_add_f32 {v(vT+p)}, {v(vB)}, {v(vE+p)}")
            if t < 6:
                k(f"v_add_f32 {v(vB)}, {v(vB)}, {v(vST)}")
                k(f"v_fract_f32 {v(vB)}, {v(vB)}")
            for p in range(1, 4):
                k(f"v_cos_f32 {v(vT+4+p)}, {v(vT+p)}")
                k(f"v_sin_f32 {v(vT+p)}, {v(vT+p)}")
            for p in range(4):
                k(f"v_cvt_pk_bf16_f32 {v(vGm+4*t+p)}, {v(vT+4+p)}, -{v(vT+p)}")
        k("v_bfe_u32 v7, v1, 2, 2")
        k(f"v_lshlrev_b32 v8, 10, {v(vG)}")
        k("v_lshl_add_u32 v8, v7, 7, v8")
        k("v_and_b32 v9, 3, v1")
        k("v_lshl_add_u32 v8, v9, 3, v8")
        k("v_lshrrev_b32 v7, 1, v7")
        k(f"v_and_b32 v9, 1, {v(vG)}")
        k("v_lshl_add_u32 v7, v9, 1, v7")
        k(f"v_lshl_add_u32 {v(vTB)}, v7, 5, v8")
        for nb in range(1, 4):
            k(f"v_xor_b32 {v(vTB+nb)}, {32*nb}, {v(vTB)}")
        k("v_lshrrev_b32 v7, 5, v1")
        k(f"s_lshl_b32 s26, s{sW}, 1")
        k("v_or_b32 v7, s26, v7")
        k("v_bfe_u32 v8, v1, 1, 3")
        k("v_xor_b32 v7, v7, v8")
        k("v_and_b32 v8, 31, v1")
        k("v_lshlrev_b32 v8, 7, v8")
        k("v_lshl_add_u32 v7, v7, 4, v8")
        k(f"v_add_u32 {v(vXA)}, {XT}, v7")

    lines = capture(p3_consts)
    per = -(-len(lines) // (NS[4] + 1))
    for i in range(NS[4]):
        sload()
        slot()
    slot()
    k("s_add_u32 m0, s35, s55")
    last_real = vm.n - 1
    if TW:
        k.srd(12, 48, WGB)
        ld = touch_down(-1, 12)
        NT_ = k.lab("nt")
        k(f"s_cmp_eq_u32 s{sW}, 0")
        k(f"s_cbranch_scc1 {NT_}")
        k(ld)
        k.label(NT_)
    k.stamp()
    t4 = lambda r: f"v_and_b32 v{r}, v{r}, v{r+1}\nv_and_b32 v{r+2}, v{r+2}, v{r+3}\nv_and_b32 v{r}, v{r}, v{r+2}\nv_cmp_eq_u32 vcc, 0, v{r}"
    l4 = lambda r: f"buffer_load_dwordx4 v[{r}:{r+3}], v214, s[8:11], s58 offen sc1"
    if PIPE:
        spin0(l4, [216, 220, 224], t4, TW)
    else:
        spin(l4(216), t4(216))
    k.stamp()
    census = vm.op(cload)
    for hf in range(2):
        for t in range(7):
            if t == 6:
                k(f"s_cmp_eq_u32 s{sW}, 3")
                k(f"s_cselect_b32 s28, {224*4096 >> 6}, 0")
                k("s_cmp_lg_u32 s54, 0" if hf == 0 else "s_cmp_eq_u32 s54, 0")
                k("s_cselect_b32 s28, s28, 0")
                k("v_add_u32 v9, 16, v1")
                k("v_and_b32 v9, 64, v9")
                k("v_mad_u32_u24 v9, v9, s28, v6")
            bt_ld = vm.op(f"buffer_load_dwordx4 v{9 if t == 6 else 6}, s[8:11], s{51 if hf == 0 else 53} offen{LD} lds")
            if t < 6:
                k("s_add_u32 m0, m0, 4096")
                k("s_add_u32 s51, s51, s52" if hf == 0 else "s_sub_u32 s53, s53, s52")
        if hf == 0:
            bt_half = bt_ld
            k("s_mov_b32 s57, s55")
            k("s_sub_u32 s55, 28672, s55")
            k("s_add_u32 m0, s35, s55")
            k("v_xor_b32 v6, 0x6000, v6")
    vm.op(f"buffer_load_dword {v(vM)}, v11, s[8:11], s56 offen{LD}")
    p3_loads = vm.op(f"buffer_load_dword {v(vM+1)}, v11, s[8:11], s56 offen offset:512{LD}")
    sload(NS[5])
    k.srd(sA, 48, WGB)
    if SPLIT3:
        for nb in range(4):
            k(f"v_add_u32 {v(60+nb)}, s55, {v(vTB+nb)}")
            k(f"v_add_u32 {v(vTB+nb)}, s57, {v(vTB+nb)}")
        for p in range(4):
            k(f"v_mov_b32 {v(64+p)}, {v(vGm+24+p)}")
        k("s_cmp_lg_u32 s57, 0")
        k("s_cselect_b32 s58, 0xffff0000, 0")
        k("s_cselect_b32 s59, 0x80000000, 0")
        k("s_mov_b32 exec_lo, 0")
        k("s_mov_b32 exec_hi, s58")
        k(f"v_mov_b32 {v(vGm+27)}, 0x3f80")
        k("s_xor_b32 exec_hi, s58, 0xffff0000")
        k("v_mov_b32 v67, 0x3f80")
        k("s_mov_b64 exec, -1")
    CL, FAST, SLOW = k.lab("cl"), k.lab("fast"), k.lab("slow")
    k(f"s_mov_b32 s50, {SPIN_MAX}")
    vm.wait(census)
    k.label(CL)
    k("v_readfirstlane_b32 s52, v28")
    k("v_readfirstlane_b32 s53, v29")
    k(f"s_cmp_ge_u32 s{sXC}, 8")
    k("s_cselect_b32 s54, s53, s52")
    k(f"s_lshl_b32 s55, s{sXC}, 2")
    k("s_lshr_b32 s54, s54, s55")
    k("s_and_b32 s54, s54, 15")
    k(f"s_cmp_eq_u32 s54, {14 if not os.environ.get('SLOW') else 15}")
    k(f"s_cbranch_scc1 {FAST}")
    for r in (52, 53):
        k(f"s_lshr_b32 s54, s{r}, 4")
        k("s_and_b32 s54, s54, 0x0f0f0f0f")
        k(f"s_and_b32 s{r}, s{r}, 0x0f0f0f0f")
        k(f"s_add_u32 s{r}, s{r}, s54")
    k("s_add_u32 s52, s52, s53")
    k("s_mul_i32 s52, s52, 0x01010101")
    k("s_lshr_b32 s52, s52, 24")
    k("s_cmp_ge_u32 s52, 14")
    k(f"s_cbranch_scc1 {SLOW}")
    k("s_sub_u32 s50, s50, 1")
    k("s_cmp_eq_u32 s50, 0")
    k(f"s_cbranch_scc1 {SLOW}")
    k(cload)
    k("s_waitcnt vmcnt(0)")
    k(f"s_branch {CL}")
    state = (vm.n, vm.done, getattr(k, "_nst", 0), getattr(k, "_seq", 0))

    def rest(mode):
        vm.n, vm.done, k._nst, k._seq = state
        lg = Cnt(k, "lgkmcnt", 15)

        def arrive(off):
            vm.op(f"buffer_store_dword {v(vOne)}, off, s[8:11], s{sFI} offset:{off}{mode}")

        def pload(off):
            return f"buffer_load_dword v31, {v(vLP)}, s[8:11], s{sFL} offen offset:{off} sc1"

        def poll(off, mark=None):
            spin(pload(off), "v_cmp_eq_u32 vcc, 0, v31", mark)

        def put(q, cnt=1):
            for _ in range(cnt):
                if q:
                    e = q.pop(0)
                    e() if callable(e) else k("\n".join(e))

        vm.wait(bt_half if SPLIT3 else p3_loads)
        k("s_barrier")
        k.stamp()
        vR, vA = 88, 120
        seq = [(t, nb) for t in range(14) for nb in range(4)]

        def rd3(n):
            t, nb = seq[n]
            if SPLIT3 and n == 28:
                vm.wait(p3_loads)
                k("s_barrier")
            for u in range(2):
                if SPLIT3:
                    k(f"ds_read_b64_tr_b16 {v(vR+4*(n%8)+2*u,2)}, {v(vTB+nb if t < 7 else 60+nb)} offset:{(t%7)*4096+u*512}")
                else:
                    k(f"ds_read_b64_tr_b16 {v(vR+4*(n%8)+2*u,2)}, {v(vTB+nb)} offset:{t*4096+u*512}")

        DEPTH = 6
        for n in range(DEPTH):
            rd3(n)
        if TD:
            vm.op(touch_down(3, sA))
        for n in range(56):
            t, nb = seq[n]
            k(f"s_waitcnt lgkmcnt({2*min(DEPTH-1, 55-n)})")
            acc = vA + 16 * (t // 7) + 4 * nb
            gm = 64 if SPLIT3 and t == 13 else vGm + 4 * (t % 7)
            k(f"v_mfma_f32_16x16x32_bf16 {v(acc,4)}, {v(gm,4)}, {v(vR+4*(n%8),4)}, {'0' if t % 7 == 0 else v(acc,4)}")
            if n == 32 and not SPLIT3:
                k("s_mov_b32 exec_lo, 0")
                k("s_mov_b32 exec_hi, 0xffff0000")
                k(f"v_mov_b32 {v(vGm+27)}, 0x3f80")
                k("s_mov_b64 exec, -1")
            if n + DEPTH < 56:
                rd3(n + DEPTH)
        k.stamp(1) if FINE == 2 else None
        vX, vH, vHc, vU = 20, 32, 40, 48
        k(f"ds_read_b128 {v(vX,4)}, {v(vXA)}")
        k(f"ds_read_b128 {v(vX+4,4)}, {v(vXA)} offset:4096")
        k(f"s_mul_i32 s26, s{sRT}, 56")
        k(f"s_lshl2_add_u32 s27, s{sCT}, s{sW}")
        k("s_add_u32 s26, s26, s27")
        k("s_lshl_b32 s26, s26, 10")
        k(f"s_add_u32 s26, s26, {HC}")
        k(f"s_add_u32 s27, s26, {28*1024}")
        for r in range(0, 16, 2):
            k(f"v_pk_add_f32 {v(vA+r,2)}, {v(vA+r,2)}, {v(vA+16+r,2)} neg_hi:[0,1]")
        if SPLIT3:
            for r in range(1, 16, 2):
                k(f"v_xor_b32 {v(vA+r)}, s59, {v(vA+r)}")
        for p in range(2):
            for r in range(4):
                k(f"v_permlane16_swap_b32 {v(vA+8*p+r)}, {v(vA+8*p+4+r)}")
        k("s_waitcnt lgkmcnt(0)")
        for p in range(2):
            for q in range(4):
                k(f"v_lshlrev_b32 {v(vU+2*q)}, 16, {v(vX+4*p+q)}")
                k(f"v_and_b32 {v(vU+2*q+1)}, 0xffff0000, {v(vX+4*p+q)}")
            for e in range(0, 8, 2):
                k(f"v_pk_add_f32 {v(vA+8*p+e,2)}, {v(vA+8*p+e,2)}, {v(vU+e,2)}")
            for e in range(0, 8, 2):
                k(f"v_pk_add_f32 {v(vA+16+8*p+e,2)}, {v(vA+8*p+e,2)}, {v(vM,2)} op_sel:[0,{p}] op_sel_hi:[1,{p}] neg_lo:[0,1] neg_hi:[0,1]")
            for q in range(4):
                k(f"v_cvt_pk_bf16_f32 {v(vHc+4*p+q)}, {v(vA+16+8*p+2*q)}, {v(vA+17+8*p+2*q)}")
            hc_st = vm.op(f"buffer_store_dwordx4 {v(vHc+4*p,4)}, {v(vL16)}, s[8:11], s{26+p} offen{mode}")
        k.stamp(1) if FINE == 2 else None
        vm.wait(sid[55])
        k("s_barrier")
        k.stamp(1) if FINE == 2 else None
        sread(nr2, 28)
        k.stamp()
        vm.wait(hc_st)
        k("s_waitcnt lgkmcnt(0)")
        k.stamp(1) if FINE == 2 else None
        arrive(0)
        for p in range(2):
            for q in range(4):
                k(f"v_cvt_pk_bf16_f32 {v(vH+4*p+q)}, {v(vA+8*p+2*q)}, {v(vA+8*p+2*q+1)}")
            k(f"ds_write_b128 {v(vXA)}, {v(vH+4*p,4)} offset:{4096*p}")
        for p in range(2):
            k(f"v_mul_f32 {v(vM+p)}, {v(vA+16+8*p)}, {v(vA+16+8*p)}")
        for e in range(1, 8):
            for p in range(2):
                k(f"v_fmac_f32 {v(vM+p)}, {v(vA+16+8*p+e)}, {v(vA+16+8*p+e)}")
        k(f"s_lshl_b32 s26, s{sW}, 8")
        k(f"s_add_u32 s26, s26, {R2}")
        k(f"v_add_u32 v7, s26, {v(vL4)}")
        k(f"v_permlane32_swap_b32 {v(vM)}, {v(vM+1)}")
        k(f"v_add_f32 {v(vM)}, {v(vM)}, {v(vM+1)}")
        k(f"ds_write_b32 v7, {v(vM)}")
        sDL, sDG, sAB, sST1, sRG = 51, 53, 55, 57, 35
        vB1, vPA, vP1, vDG, vDT = 6, 11, 25, 8, 9
        k(f"s_mul_i32 s{sAB+1}, s{sRB}, 114688")
        k(f"s_add_u32 s{sAB+1}, s{sAB+1}, {HC}")
        k(f"s_mul_i32 s{sDL}, s{sW}, 28672")
        k(f"s_and_b32 s28, s{sW}, 1")
        k("s_mul_i32 s28, s28, 57344")
        k(f"s_lshr_b32 s26, s{sW}, 1")
        k(f"s_lshl_b32 s{sDL+1}, s26, 10")
        k(f"s_add_u32 s{sDL+1}, s{sDL+1}, s28")
        k(f"s_add_u32 s{sDG}, s{sAB+1}, s{sDL}")
        k(f"s_add_u32 s{sDG+1}, s{sAB+1}, s{sDL+1}")
        k(f"s_add_u32 s{sDG}, s{sDG}, s{sROT}")
        k(f"s_add_u32 s{sDG+1}, s{sDG+1}, s{sROT}")
        k(f"v_add_u32 {v(vB1)}, 57344, {v(vL16)}")
        k(f"s_mul_i32 s{sSS}, s{sRT}, 1792")
        k(f"s_add_u32 s{sSS}, s{sSS}, {SSP}")
        k(f"v_add_u32 v7, {R2}, {v(vL4)}")
        k(f"s_mul_i32 s{sHS}, s{sRB}, {4*112}")
        k(f"s_lshl1_add_u32 s{sHS}, s{sFB}, s{sHS}")
        k(f"s_lshl_b32 s{sHS}, s{sHS}, 10")
        k(f"s_add_u32 s{sHS}, s{sHS}, {HP}")
        k(f"v_lshlrev_b32 {v(vPA)}, 12, {v(vG)}")
        k(f"v_lshl_add_u32 {v(vPA)}, {v(vC)}, 4, {v(vPA)}")
        k(f"s_lshl_b32 s{sAB}, s{sRB}, 8")
        k(f"s_mul_i32 s{sHP}, s{sRT}, 224")
        k(f"s_mul_i32 s28, s{sW}, 28")
        k(f"s_add_u32 s{sHP}, s{sHP}, s28")
        k(f"s_lshl_b32 s{sHP}, s{sHP}, 10")
        k(f"s_add_u32 s{sHP}, s{sHP}, {HP}")
        k(f"s_mul_i32 s{sWD}, s{sW}, {448*896}")
        k(f"s_lshl_b32 s28, s{sCT}, 7")
        k(f"s_add_u32 s{sWD}, s{sWD}, s28")
        k(f"s_add_u32 s46, s{sCT}, s{sRT}")
        k(f"s_lshl_b32 s{sRG}, s{sW}, 13")
        k(f"s_add_u32 s{sRG}, s{sRG}, {RNG}")
        k(f"v_and_b32 v12, 1, {v(vG)}")
        k("v_and_b32 v13, 7, v1")
        k("v_lshlrev_b32 v14, 2, v12")
        k("v_xor_b32 v13, v13, v14")
        k("v_lshrrev_b32 v14, 3, v1")
        k("v_mul_u32_u24 v14, 0x380, v14")
        k(f"v_lshl_add_u32 {v(vDG)}, v13, 4, v14")
        k("v_bfe_u32 v13, v1, 2, 2")
        k("v_lshrrev_b32 v14, 5, v1")
        k("v_lshl_add_u32 v14, v14, 2, v13")
        k("v_lshrrev_b32 v13, 1, v13")
        k("v_lshlrev_b32 v13, 6, v13")
        k("v_lshl_add_u32 v13, v14, 7, v13")
        k("v_lshl_add_u32 v13, v12, 5, v13")
        k("v_and_b32 v14, 3, v1")
        k("v_lshl_add_u32 v13, v14, 3, v13")
        k(f"v_add_u32 {v(vDT)}, s{sRG}, v13")
        k(f"v_xor_b32 v26, 64, {v(vDT)}")
        k(f"v_add_u32 v56, s{sDL}, v13")
        k("v_xor_b32 v57, 64, v56")
        poll(0)
        k.stamp()
        uses = [(kp, b) for kp in range(KS) for b in range(4)]
        uses += [(kp, b) for kp in range(KS, 28) for b in (0, 2)]
        uB = len(uses)
        uses += [(kp, b) for kp in range(KS, 28) for b in (1, 3)]
        last_use = {kp: max(u for u, x in enumerate(uses) if x[0] == kp) for kp in range(28)}
        npair = (28 - KS) // 2
        Dm = []

        def dma():
            i = len(Dm)
            if i < KS:
                sel, off = 0, i * 1024
            else:
                sel, off = 1, ((i - KS) // npair) * 28672 + (KS + 2 * ((i - KS) % npair)) * 1024
            k(f"s_add_u32 m0, s{sDL+sel}, {off}")
            if ROTW and off % 28672 >= 4096:
                k(f"s_cmp_ge_u32 s{sROT}, {28672 - off % 28672}")
                k(f"s_cselect_b32 s28, {off - 28672 & 0xffffffff}, {off}".replace(f", {off}", ", s26") if False else f"s_cselect_b32 s28, 28672, 0")
                k(f"s_sub_u32 s28, s{sDG+sel}, s28")
                k(f"s_add_u32 s28, s28, {off}")
            else:
                k(f"s_add_u32 s28, s{sDG+sel}, {off}")
            Dm.append(vm.op(f"buffer_load_dwordx4 {v(vL16)}, s[8:11], s28 offen{LD} lds"))

        wd_regs = [(0, lambda o, n, i=i: a(224 + 8 * i + o, n)) for i in range(4)]
        wd_regs += [(0, lambda o, n, i=i: v(64 + 8 * i + o, n)) for i in range(8)]
        wd_regs += [(last_use[i] + 1, lambda o, n, i=i: a(8 * i + o, n)) for i in range(16)]
        n2 = min(KS, 8) // 2 * 2 if RING2 else 0
        free2 = 4 * KS + 2
        assert 4 * KS <= 56
        wdd, wdt = [], []
        shadow = [0]

        def quarter(dst, g, size, base):
            k(f"s_add_u32 s{dst}, s{46 if ROTD == 2 else sCT}, {g}")
            k(f"s_and_b32 s{dst}, s{dst}, 3")
            k(f"s_mul_i32 s{dst}, s{dst}, {size}")
            k(f"s_add_u32 s{dst}, s{dst}, s{base}")

        slots = [None] * (8 + n2)
        slot_of = []

        def wd_dma(now):
            n = len(wdd)
            if n == 56:
                return False
            free = [i for i, j in enumerate(slots) if (i < 8 or now >= free2) and
                    (j is None or (len(wdt) > 2 * j + 1 and wdt[2 * j + 1] < lg.done))]
            if not free:
                return False
            slots[free[0]] = n
            slot_of.append(free[0])
            k(f"s_add_u32 m0, s{sRG if free[0] < 8 else sDL}, {(free[0] % 8) * 1024}")
            if ROTD and n % 14 == 0:
                quarter(44, n // 14, 112 * 896, sWD)
            elif n:
                k(f"s_add_u32 s{44 if ROTD else sWD}, s{44 if ROTD else sWD}, {8*896}")
            wdd.append((vm.op(f"buffer_load_dwordx4 {v(vDG)}, s[{sA}:{sA+3}], s{44 if ROTD else sWD} offen lds"), max(now + WLAT, shadow[0])))
            return True

        def wd_tr(now, force=False):
            n = len(wdt)
            kp, u_, db = n // 4, (n >> 1) & 1, n & 1
            if n == 112 or len(wdd) <= 2 * kp + u_ or (not force and (wd_regs[kp][0] > now or wdd[2 * kp + u_][1] > now)):
                return False
            vm.wait(wdd[2 * kp + u_][0])
            sl = slot_of[2 * kp + u_]
            wdt.append(lg.op(f"ds_read_b64_tr_b16 {wd_regs[kp][1](4*db+2*u_, 2)}, v{(26 if db else vDT) if sl < 8 else 56 + db} offset:{(sl % 8) * 1024}"))
            return True

        aQ = 128
        hl = []

        def hload():
            n = len(hl)
            p, kp = n // 28, n % 28
            if p == 1:
                if kp == 0:
                    k(f"s_cmp_eq_u32 s{sHALF}, 0")
                    k("s_movk_i32 s58, 1024")
                    k(f"s_cselect_b32 s{sST1}, 0x4000, s58")
                    k(f"s_cselect_b32 s59, s{sAB}, s{sAB+1}")
                    k("s_cselect_b64 vcc, -1, 0")
                    k(f"s_mul_i32 s58, s{sW}, 28")
                    k(f"s_mul_i32 s58, s58, s{sST1}")
                    k("s_add_u32 s59, s59, s58")
                    k(f"v_cndmask_b32 {v(vP1)}, {v(vL16)}, {v(vPA)}, vcc")
                    k(f"s_mul_i32 s58, s{sST1}, 7")
                if ROTD and kp % 7 == 0:
                    quarter(45, kp // 7, "s58", 59)
                elif kp:
                    k(f"s_add_u32 s{45 if ROTD else 59}, s{45 if ROTD else 59}, s{sST1}")
                hl.append(vm.op(f"buffer_load_dwordx4 {a(aQ+4*(n%24),4)}, {v(vP1)}, s[8:11], s{45 if ROTD else 59} offen{LD}"))
                return
            if ROTD:
                if kp % 7 == 0:
                    quarter(45, kp // 7, 7168, sHP)
                if kp % 7 == 4:
                    k("s_add_u32 s45, s45, 4096")
                hl.append(vm.op(f"buffer_load_dwordx4 {a(aQ+4*(n%24),4)}, {v(vL16)}, s[8:11], s45 offen offset:{(kp%7%4)*1024}{LD}"))
                return
            hl.append(vm.op(f"buffer_load_dwordx4 {a(aQ+4*(n%24),4)}, {v(vL16)}, s[8:11], s{sHP} offen offset:{(kp%4)*1024}{LD}"))
            if kp % 4 == 3:
                k(f"s_add_u32 s{sHP}, s{sHP}, 4096")

        vF, vAcc, LOOK = 32, 128, 4
        accreg = {0: vAcc, 2: vAcc + 32, 1: vAcc + 64, 3: vAcc + 96}
        fr = {}

        def rd4(u):
            kp, b = uses[u]
            fr[u] = lg.op(f"ds_read_b128 {v(vF+4*(u%6),4)}, {v(vL16 if b < 2 else vB1)} offset:{(b&1)*28672+kp*1024}")

        last_st = [None]
        clock = [0]

        def hp_store(b, u):
            vo, off, pol = vL16, u * 1024, mode
            if b == 1:
                vo, off = vPA, 0
                k(f"s_lshl_b32 s38, s{sFB}, 15\ns_add_u32 s38, s38, s{sAB}" if u == 0 else "s_add_u32 s38, s38, 16384")
            elif b == 3:
                if u == 0:
                    k(f"s_lshl_b32 s38, s{sFB}, 11\ns_add_u32 s38, s38, s{sAB+1}")
            else:
                pol = " sc1" if MA else mode
                if u == 0:
                    k(f"s_add_u32 s38, s{sHS}, {b*112*1024}")
            last_st[0] = vm.op(f"buffer_store_dwordx4 {v(accreg[b]+4*u,4)}, {v(vo)}, s[8:11], s38 offen offset:{off}{pol}")
            shadow[0] = clock[0] + (20 if pol else 11)

        def epilogue(ps):
            items = [(b, r) for b in (ps, ps + 2) for r in range(8)]
            out = []
            for i in range(len(items) + 1):
                grp = []
                if i < len(items):
                    b, r = items[i]
                    g_, u_ = accreg[b], accreg[b] + 16
                    grp += [f"v_mul_f32 {v(u_+2*r)}, {v(g_+2*r)}, {v(u_+2*r)}",
                            f"v_mul_f32 {v(u_+2*r+1)}, {v(g_+2*r+1)}, {v(u_+2*r+1)}"]
                if i > 0:
                    b, r = items[i - 1]
                    grp.append(f"v_cvt_pk_bf16_f32 {v(accreg[b]+r)}, {v(accreg[b]+16+2*r)}, {v(accreg[b]+17+2*r)}")
                out.append(grp)
                if i > 0 and items[i - 1][1] % 4 == 3:
                    out.append(lambda b=items[i - 1][0], u=items[i - 1][1] // 4: hp_store(b, u))
            return out

        chunks = eval(os.environ.get("CHUNKS", "{0: 2, 3: 6, 7: 15, 16: 27}"))
        for _ in range(NDMA0):
            dma()
        k("s_waitcnt lgkmcnt(0)")
        vm.wait(Dm[chunks[0]])
        k("s_barrier")
        k.stamp()
        for u in range(LOOK):
            rd4(u)
        epi = epilogue(0)
        checked = False
        for u in range(112):
            kp, b = uses[u]
            clock[0] = u
            if (u + LOOK) % 4 == 0 and (u + LOOK) // 4 in chunks:
                vm.wait(Dm[chunks[(u + LOOK) // 4]])
                k("s_barrier")
            if n2 and u == free2:
                k("s_barrier")
            if u == uB + DRAIN_A:
                assert not epi
                vm.wait(last_st[0])
                arrive(256)
            if u == uB + POLL_A:
                markA = vm.op(pload(256))
            if u == uB + CHECK_A:
                poll(256, markA)
                checked = True
            if u == 1:
                lg.op("ds_read2st64_b32 v[12:13], v7 offset1:1")
                ssr = lg.op("ds_read2st64_b32 v[14:15], v7 offset0:2 offset1:3")
                k(f"s_lshl_b32 s26, s{sCT}, 8")
                k(f"s_add_u32 s26, s26, s{sSS}")
            if u == 5:
                lg.wait(ssr)
                k("v_add_f32 v12, v12, v13")
                k("v_add_f32 v14, v14, v15")
                k("v_add_f32 v12, v12, v14")
                vm.op(f"buffer_store_dword v12, {v(vL4)}, s[8:11], s26 offen{mode}")
            if u % 2 == 0:
                lg.wait(fr[u + 1])
            busy = u >= uB + 1 and bool(epi)
            for m in range(2):
                acc = accreg[b] + 16 * m
                k(f"v_mfma_f32_32x32x16_bf16 {v(acc,16)}, {a(8*kp+4*m,4)}, {v(vF+4*(u%6),4)}, {'0' if kp == 0 else v(acc,16)}")
                if m == 0:
                    if u + LOOK < 112:
                        rd4(u + LOOK)
                    wd_tr(u)

                    def memop():
                        if len(Dm) < 16 and u % DRATE != DRATE - 1:
                            dma()
                        elif checked and len(hl) < RING and last_use[16 + len(hl) // 2] < u:
                            hload()
                        elif not (u % 3 != 2 and wd_dma(u)):
                            dma() if len(Dm) < 28 else wd_dma(u)

                    if busy:
                        put(epi)
                    n0 = vm.n
                    held = capture(memop)
                    k("\n".join(held[:-1]))
                    vm.n, n1 = n0, vm.n
                else:
                    k("\n".join(held[-1:]))
                    vm.n = n1
                    if busy:
                        put(epi)
                    else:
                        wd_tr(u)
                if os.environ.get("TL") and m == 1 and not mode:
                    print(u, len(Dm), len(wdd), len(wdt), file=sys.stderr)
            if u in P4ST:
                k.stamp(1)
            if u == uB - 1 or u == 111:
                k.stamp()
        print("after P4: ring loads", len(wdd), "transposed reads", len(wdt), "h loads", len(hl), file=sys.stderr)
        vRW, vRR, vR2, vHR, vSP = 12, 20, 22, 24, 32
        vAc5, vT5 = 128, 192
        fill = epilogue(1)
        clock[0] = -999
        if not checked:
            assert EPI_B0 <= 14
            put(fill, EPI_B0)
            poll(256, markA)
        while fill:
            if len(hl) < 8:
                hload()
            put(fill, 2)
        fill = [["v_and_b32 v6, 31, v1", "v_lshrrev_b32 v7, 5, v1", "v_and_b32 v27, 7, v1", "v_xor_b32 v7, v7, v27"],
                [f"s_lshl_b32 s26, s{sW}, 13", "v_lshlrev_b32 v7, 4, v7", "v_lshl_add_u32 v7, v6, 8, v7", f"v_add_u32 {v(vRW)}, s26, v7"],
                [f"v_xor_b32 {v(vRW+i)}, {32*i}, {v(vRW)}" for i in range(1, 5)],
                [f"v_xor_b32 {v(vRW+i)}, {32*i}, {v(vRW)}" for i in range(5, 8)],
                ["v_lshrrev_b32 v6, 3, v1", f"s_and_b32 s26, s{sW}, 1", "s_lshl_b32 s26, s26, 2", f"v_xor_b32 v7, v27, {v(vG)}",
                 "v_xor_b32 v7, s26, v7"],
                ["v_lshlrev_b32 v7, 1, v7", "v_xor_b32 v7, v7, v6", f"s_lshl_b32 s26, s{sW}, 11", "v_lshlrev_b32 v7, 4, v7"],
                ["v_lshl_add_u32 v7, v6, 8, v7", f"v_add_u32 {v(vRR)}, s26, v7", f"v_xor_b32 {v(vRR+1)}, 16, {v(vRR)}"],
                [f"s_lshl_b32 s26, s{sW}, 10", f"s_add_u32 s26, s26, {XT}", f"v_add_u32 {v(vHR)}, s26, {v(vL16)}",
                 f"s_lshl_b32 s26, s{sW}, 5", "v_lshl_add_u32 v28, v6, 2, s26"]]
        ssl = []

        def ssload(i):
            for j in range(2 * i, min(2 * i + 2, 7)):
                ssl.append(vm.op(f"buffer_load_dword {v(vSP+j)}, {v(vL4)}, s[8:11], s{sSS} offen offset:{256*j}{LD}"))

        fill += [lambda i=i: ssload(i) for i in range(4)]
        r2calc = [[f"v_add_f32 {v(vSP)}, {v(vSP)}, {v(vSP+1)}", f"v_add_f32 {v(vSP+2)}, {v(vSP+2)}, {v(vSP+3)}",
                   f"v_add_f32 {v(vSP+4)}, {v(vSP+4)}, {v(vSP+5)}", f"v_add_f32 {v(vSP)}, {v(vSP)}, {v(vSP+6)}"],
                  [f"v_add_f32 {v(vSP+2)}, {v(vSP+2)}, {v(vSP+4)}", f"v_mov_b32 {v(vSP+1)}, {f2u(EPS)}",
                   f"v_add_f32 {v(vSP)}, {v(vSP)}, {v(vSP+2)}", f"v_fmac_f32 {v(vSP+1)}, {f2u(1.0/448)}, {v(vSP)}"],
                  [f"v_rcp_f32 {v(vSP)}, {v(vSP+1)}", "v_add_u32 v29, 128, v28"],
                  [f"ds_bpermute_b32 {v(vR2)}, v28, {v(vSP)}", f"ds_bpermute_b32 {v(vR2+1)}, v29, {v(vSP)}"]]

        def red_write(p):
            q_ = [[f"ds_write_b128 {v(vRW+i)}, {v(vAc5+32*p+4*i,4)} offset:{p*32768}"] for i in range(8)]
            return q_ + [[f"ds_read_b128 {v(vT5+32,4)}, {v(vHR)} offset:{p*4096}"]]

        def red_read(p):
            q_ = [["s_waitcnt lgkmcnt(0)", "s_barrier"] +
                  [f"ds_read_b128 {v(vT5+4*z,4)}, {v(vRR+z)} offset:{p*32768}" for z in range(2)]]
            for j in range(1, 4):
                q_.append([f"ds_read_b128 {v(vT5+8*j+4*z,4)}, {v(vRR+z)} offset:{p*32768+j*8192}" for z in range(2)])
            for h2 in range(2):
                q_.append([t_ for q in (2 * h2, 2 * h2 + 1) for t_ in
                           (f"v_lshlrev_b32 {v(vT5+36+2*q)}, 16, {v(vT5+32+q)}",
                            f"v_and_b32 {v(vT5+37+2*q)}, 0xffff0000, {v(vT5+32+q)}")])
            for j, (d_, s_) in enumerate(((0, 8), (16, 24), (0, 16))):
                for h2 in range(2):
                    q_.append(([f"s_waitcnt lgkmcnt({4 if j == 0 else 0})"] if h2 == 0 and j < 2 else []) +
                              [f"v_add_f32 {v(vT5+d_+r)}, {v(vT5+d_+r)}, {v(vT5+s_+r)}" for r in range(4 * h2, 4 * h2 + 4)])
            for h2 in range(2):
                q_.append([f"v_fmac_f32 {v(vT5+36+r)}, {v(vT5+r)}, {v(vR2+p)}" for r in range(4 * h2, 4 * h2 + 4)])
            q_.append([f"v_cvt_pk_bf16_f32 {v(vT5+8+q)}, {v(vT5+36+2*q)}, {v(vT5+37+2*q)}" for q in range(4)])
            q_.append(lambda: vm.op(f"buffer_store_dwordx4 {v(vT5+8,4)}, {v(vXO)}, s[16:19], s{sXO+p} offen{SCO}"))
            return q_

        if P5ST:
            k.stamp(1)
        for n in range(56):
            p, kp = n // 28, n % 28
            now = 112 + n
            if n == DRAIN_B:
                vm.wait(last_st[0])
                arrive(512)
            if n == POLL_B:
                markB = vm.op(pload(512))
            if n == CHECK_B:
                k.stamp()
                poll(512, markB)
            if n == 22:
                assert len(wdt) == 112
                vm.wait(ssl[6])
                fill += r2calc
            if n == LATE and F_LATE in WBL:
                k(f"s_add_u32 s26, s{sFI}, {F_LATE}")
                vm.op(f"buffer_store_dword {v(vOne)}, off, s[8:11], s26{mode}")
            if n == 28:
                assert not fill
                fill = red_write(0)
                while fill:
                    if len(hl) < 28 + RING1:
                        hload()
                    put(fill, 2)
            if n == RED0:
                fill = red_read(0)
            if p == 0:
                while len(wdt) < 4 * kp + 4:
                    assert wd_tr(now, True)
                lg.wait(wdt[4 * kp + 3])
            vm.wait(hl[n])
            for dl in range(2):
                acc = vAc5 + 32 * p + 16 * dl
                k(f"v_mfma_f32_32x32x16_bf16 {v(acc,16)}, {wd_regs[kp][1](4*dl, 4)}, {a(aQ+4*(n%24),4)}, {'0' if kp == 0 else v(acc,16)}")
                if len(wdt) < 112:
                    if len(wdt) >= 8:
                        lg.wait(wdt[-8])
                    wd_tr(now)
                    if dl == 1:
                        wd_dma(now)
                if dl == 0:
                    if len(hl) < (28 if n < CHECK_B else 56) and len(hl) < n + 24:
                        hload()
                    else:
                        put(fill)
                else:
                    put(fill)
            if n in P5ST:
                k.stamp(1)
        k.stamp()
        put(fill, 99)
        put(red_write(1), 99)
        put(red_read(1), 99)
        if k.prof:
            k("s_waitcnt vmcnt(0)")
        k.stamp_flush(6, PROF, sW)
        k("s_endpgm")

    k.label(FAST)
    rest("")

    k.label(SPARE)
    vm.n = vm.done = 0
    k._nst = min(1, getattr(k, "_nst", 0))
    sE = 21
    k(f"s_sub_u32 s{sE}, s2, 224")
    k(f"v_lshlrev_b32 {v(vL16)}, 4, v1")
    k("v_lshlrev_b32 v6, 7, v1")
    k("s_waitcnt lgkmcnt(0)")
    k.srd(8, 6, WS_BYTES)
    NZ = k.lab("nz")
    k(f"s_cmp_lt_u32 s{sE}, 24")
    k(f"s_cbranch_scc1 {NZ}")
    for j in range(4):
        k(f"v_mov_b32 v{108+j}, 0")
    k(f"s_sub_u32 s34, s{sE}, 24")
    k(f"s_lshl2_add_u32 s33, s34, s{sW}")
    k("s_lshl_b32 s33, s33, 11")
    k(f"s_add_u32 s33, s33, {FL}")
    k(f"buffer_store_dwordx4 v[108:111], {v(vL16)}, s[8:11], s33 offen sc1")
    k(f"buffer_store_dwordx4 v[108:111], {v(vL16)}, s[8:11], s33 offen offset:1024 sc1")
    k("v_mov_b32 v2, 1")
    k("s_lshl_b32 s34, s34, 2")
    k("v_mov_b32 v5, s34")
    k("s_waitcnt vmcnt(0)")
    k("s_barrier")
    wave0(f"global_store_dword v5, v2, s[{sDBG}:{sDBG+1}] sc1", 1)
    k.label(NZ)
    k.stamp(-1)
    k(f"s_lshr_b32 s22, s{sE}, 3")
    k(f"s_lshl2_add_u32 s22, s22, s{sW}")
    k("s_lshl_b32 s23, s22, 13")
    k.srd(12, 52, WGB)
    k.srd(16, 54, WGB)
    k.srd(24, 56, WGB)
    k.srd(28, 58, XB)
    n = [0]

    def touch(srd, soff, vo=6):
        k(f"buffer_load_dword v{8 + n[0] % 48}, v{vo}, s[{srd}:{srd+3}], s{soff} offen ; alt")
        n[0] += 1

    for job in SP_LIST:
        if job == "G":
            for off in range(SP_D0 * 3584, WGB, 16 * 8192):
                k(f"s_add_u32 s40, s23, {off}")
                touch(12, 40)
                touch(16, 40)
        if job == "H":
            k("v_lshrrev_b32 v7, 4, v1")
            k("v_mul_u32_u24 v7, 0xe00, v7")
            k("v_and_b32 v5, 15, v1")
            k("v_min_u32 v5, 13, v5")
            k("v_lshl_add_u32 v7, v5, 7, v7")
            k("s_and_b32 s41, s2, 1")
            k("s_mul_i32 s41, s41, 1792")
            k(f"s_mul_i32 s40, s22, {4*3584}")
            k("s_add_u32 s41, s41, s40")
            for d0 in range(SP_D0, 448, 64):
                k(f"s_add_u32 s40, s41, {d0*3584}")
                touch(12, 40, 7)
                touch(16, 40, 7)
        if job == "d":
            k("s_and_b32 s40, s2, 7")
            k(f"s_mul_i32 s40, s40, {3*8*8192 if ROTS else 0}")
            k("s_add_u32 s40, s40, s23")
            for off in range(0, WGB, 16 * 8192):
                touch(24, 40)
                k(f"s_add_u32 s40, s40, {16*8192}")
                k(f"s_cmp_ge_u32 s40, {13*16*8192}")
                k(f"s_cselect_b32 s41, {13*16*8192}, 0")
                k("s_sub_u32 s40, s40, s41")
        if job == "R":
            k("s_and_b32 s42, s2, 7")
            k(f"s_min_u32 s42, s42, {6 if ROTW else 0}")
            k("s_lshl_b32 s42, s42, 2")
            k("s_min_u32 s43, s22, 13")
            k("s_cmp_ge_u32 s43, 7")
            k("s_cselect_b32 s44, s16, s12")
            k("s_cselect_b32 s45, s17, s13")
            k("s_cselect_b32 s41, 7, 0")
            k("s_sub_u32 s43, s43, s41")
            k("s_lshl_b32 s43, s43, 13")
            k(f"s_mov_b32 s46, {WGB}")
            k("s_mov_b32 s47, 0x20000")
            for kp in range(SP_K, 28):
                k(f"s_add_u32 s40, s42, {kp}")
                k("s_cmp_ge_u32 s40, 28")
                k("s_cselect_b32 s41, 28, 0")
                k("s_sub_u32 s40, s40, s41")
                k("s_mul_i32 s40, s40, 57344")
                k("s_add_u32 s40, s40, s43")
                touch(44, 40)
        if job == "e":
            for off in range(0, 192 * 896, 16 * 8192):
                for q in range(4):
                    k(f"s_add_u32 s40, s23, {off}")
                    k(f"s_min_u32 s40, s40, {192*896 - 8192}")
                    k(f"s_add_u32 s40, s40, {q*448*896}")
                    touch(24, 40)
        if job == "h":
            k("s_and_b32 s41, s2, 7")
            k(f"s_mul_i32 s41, s41, {8*112*1024}")
            k(f"s_add_u32 s41, s41, {HP}")
            k("s_min_u32 s42, s22, 13")
            k("s_lshl_b32 s42, s42, 13")
            k("s_add_u32 s41, s41, s42")
            for blk in range(4):
                touch(8, 41)
                k(f"s_add_u32 s41, s41, {2*112*1024}")
        if job in "aw":
            k(f"s_lshl2_add_u32 s40, s{sE}, s{sW}")
            k("s_lshl_b32 s40, s40, 13")
            k(f"s_add_u32 s40, s40, {AT if job == 'a' else WT}")
            touch(8, 40)
            k("s_add_u32 s40, s40, 0x100000")
            k(f"s_min_u32 s40, s40, {(AT if job == 'a' else WT) + 223*8192}")
            touch(8, 40)
        if job == "o":
            k(f"s_lshl2_add_u32 s40, s{sE}, s{sW}")
            k("s_lshl_b32 s40, s40, 13")
            touch(28, 40)
            k("s_add_u32 s40, s40, 0x100000")
            touch(28, 40)
    if k.prof:
        k("s_waitcnt vmcnt(0)")
        k.stamp_flush(6, PROF, sW, 2)
    if WBL:
        k("s_cmp_lg_u32 s22, 0")
        k(f"s_cbranch_scc1 {END}")
        k("v_lshlrev_b32 v3, 2, v1")
        k("v_min_u32 v7, 28, v3")
        vm.n = vm.done = 0
        spin(f"global_load_dword v112, v7, s[{sDBG}:{sDBG+1}] sc1", "v_cmp_eq_u32 vcc, 0, v112")
        k("v_min_u32 v3, 220, v3")
        k("s_and_b32 s22, s2, 7")
        k("s_lshl_b32 s22, s22, 11")
        k(f"s_add_u32 s22, s22, {FL}")
        k(f"s_mov_b32 s23, {SPIN_MAX}")
        for off in WBL:
            lp = k.lab("wl")
            if off == F_LATE:
                k(f"s_add_u32 s22, s22, {F_LATE}")
                off = 0
            k.label(lp)
            k(f"buffer_load_dword v4, v3, s[8:11], s22 offen offset:{off} sc1")
            k(f"buffer_load_dword v5, v3, s[8:11], s22 offen offset:{off+1024} sc1")
            k("s_sub_u32 s23, s23, 1")
            k("s_waitcnt vmcnt(0)")
            k("s_cmp_eq_u32 s23, 0")
            k(f"s_cbranch_scc1 {END}")
            k("v_and_b32 v4, v4, v5")
            k("v_cmp_eq_u32 vcc, 0, v4")
            k("s_nop 0")
            k(f"s_cbranch_vccnz {lp}")
            k("buffer_wbl2 sc1")
            k("s_waitcnt vmcnt(0)")
    k.label(END)
    k("s_endpgm")
    for o in outline:
        k(o)
    del outline[:]
    k.label(SLOW)
    rest(" sc1")
    for o in outline:
        k(o)
    return k


def build(k, as_list=False):
    body, desc = k.emit()
    print(k.stats, file=sys.stderr)
    head = ["; Fused preLN + GFNet spectral filter + preLN bilinear GLU in one launch (generated by gen/one.py)",
            "; kernarg: 0 A_x, 8 A_w_r, 16 A_w_i, 24 B_x (unused), 32 w_gate, 40 w_up, 48 w_down, 56 out, 64 debug, 72 ws",
            f"; @launch {'kernel=' + k.name + ' ' if as_list else ''}grid=(256,1,1) block=(256,1,1) lds={LDS}",
            '.amdgcn_target "amdgcn-amd-amdhsa--gfx950"', ".text"]
    return "\n".join(head + [body, '.section .rodata,"a"', ".p2align 6", desc]) + "\n"


if __name__ == "__main__":
    if "--prof" in sys.argv:
        Kern.prof = True
        sys.argv.remove("--prof")
    path = sys.argv[1] if len(sys.argv) > 1 else "sequential_preLN__spectral_gfnet__glu_gated_bilinear__prompt.s"
    open(path, "w").write(build(gen(), as_list=len(sys.argv) > 1))
```

```python
import os
import struct
import sys
from asmlib import Kern, v, a

NAME = "sequential_preLN__spectral_gfnet__glu_gated_bilinear__prompt_kernel"
S, D, F = 2048, 448, 1792
AT = BT = 0x000000
WT = HC = 0x200000
HP = 0x400000
M1 = 0xB00000
SSP = 0xB02000
FL = 0xB10000
WS_BYTES = 0xB20000
F_LATE, F_FB, F_P1, F_SP = 16384, 32768, 40960, 45056
PROF = 0x1800000
XB, WRB, WGB = S * D * 2, S * 225 * 2, D * F * 2
EPS = 1e-5
STG, XT, R2, RNG = 57344, 114688, 122880, 123904
LDS = RNG + 32768
SPIN_MAX = 1 << 18

E = lambda n, d: int(os.environ.get(n, d))
KS = E("KS", 4)
DRAIN_A, POLL_A, CHECK_A = E("DRAIN_A", 30), E("POLL_A", 38), E("CHECK_A", 42)
DRAIN_B, POLL_B, CHECK_B = E("DRAIN_B", 13), E("POLL_B", 21), E("CHECK_B", 26)
EPI_B0, RING, RING1, RED0, LATE = E("EPI_B0", 10), E("RING", 12), E("RING1", 8), E("RED0", 31), E("LATE", 46)
MA, NDMA0, WLAT = E("MA", 1), E("NDMA0", 7), E("WLAT", 10)
NP = [int(x) for x in os.environ.get("NP", "0,6,10").split(",")]
NS = [sum(NP)] + [int(x) for x in os.environ.get("NS", "6,6,6,14,8").split(",")]
WBL = eval(os.environ.get("WBL", "(F_LATE,)"))
SP_LIST = os.environ.get("SP_LIST", "cGd")
SP_D0, SP_K = E("SP_D0", 64), E("SP_K", 18)
TALL, TD, ROTW, ROTS = E("TALL", 0), E("TD", 0), E("ROTW", 0), E("ROTS", 1)
ROTD = E("ROTD", 1)
SCO = os.environ.get("SCO", " sc1")
TPM, TPS, PIPE = E("TPM", 0), E("TPS", 0), E("PIPE", 9)
DRATE = E("DRATE", 2)
TW, T1 = E("TW", 0), E("T1", 0)
SPLIT3, WFLAG = E("SPLIT3", 1), E("WFLAG", 1)
MAPB = E("MAPB", 0)
RING2 = E("RING2", 1)
ZFIRST = E("ZFIRST", 1)
SPS = os.environ.get("SPS", " sc1")
FINE = E("FINE", 0)
LD = os.environ.get("LD", " sc1")
WIN = E("WIN", 8)
SP_D1 = E("SP_D1", 350)
EPIB = E("EPIB", 0)
P4ST = eval(os.environ.get("P4ST", "()"))
P5ST = eval(os.environ.get("P5ST", "()"))
assert sum(NS) == 56 and NS[0] <= 22 and sum(NS[1:4]) <= 22 and sum(NS[4:]) <= 22


def f2u(x):
    return "0x%08x" % struct.unpack("<I", struct.pack("<f", x))[0]


class Cnt:
    def __init__(self, k, name, lim):
        self.k, self.name, self.lim, self.n, self.done = k, name, lim, 0, 0

    def op(self, text):
        self.k(text)
        self.n += 1
        return self.n - 1

    def wait(self, idx):
        if idx < self.done:
            return
        c = min(self.n - idx - 1, self.lim)
        self.k(f"s_waitcnt {self.name}({c})")
        self.done = self.n - c

    def all(self):
        self.wait(self.n - 1)


def cmul8(k, y, x, c, sn, sign):
    neg = " neg_lo:[1,0,0] neg_hi:[1,0,0]"
    for e in range(0, 8, 2):
        k(f"v_pk_mul_f32 {v(y+e,2)}, {v(x+e,2)}, {v(c+e,2)}")
        k(f"v_pk_mul_f32 {v(y+8+e,2)}, {v(x+8+e,2)}, {v(c+e,2)}")
    for e in range(0, 8, 2):
        k(f"v_pk_fma_f32 {v(y+e,2)}, {v(x+8+e,2)}, {v(sn+e,2)}, {v(y+e,2)}" + (neg if sign > 0 else ""))
        k(f"v_pk_fma_f32 {v(y+8+e,2)}, {v(x+e,2)}, {v(sn+e,2)}, {v(y+8+e,2)}" + ("" if sign > 0 else neg))


def gen():
    k = Kern(NAME, 0, 0)
    vm = Cnt(k, "vmcnt", 63)
    END, SPARE = k.lab("end"), k.lab("spare")
    sW, sRB, sCT, sHALF, sRT, sFB = 20, 21, 22, 23, 24, 25
    sSB, sXO, sWG, sFL, sWD, sHS, sHP, sFI = 29, 30, 32, 33, 34, 36, 37, 39
    sA, sB = 40, 44
    sXC, sSS, sDBG, sROT, sWE = 60, 61, 62, 3, 38
    vL16, vG, vC, vL4, vOne, vLP = 3, 4, 5, 30, 2, 0
    vWG, vWT = 250, 251
    outline = []

    def touch_down(first, srd):
        k(f"s_and_b32 s26, s{sRT}, 3")
        k("s_mul_i32 s26, s26, 7")
        k(f"s_add_u32 s26, s26, s{sW}")
        k(f"s_mul_i32 s26, s26, {64*896}")
        k(f"s_lshl_b32 s27, s{sCT}, 7")
        k("s_add_u32 s26, s26, s27")
        k(f"s_add_u32 s26, s26, {first*64*896 & 0xffffffff}")
        k("v_mul_u32_u24 v244, 0x380, v1")
        return f"buffer_load_dword v{245 + (first > 0)}, v244, s[{srd}:{srd+3}], s26 offen"

    def capture(fn):
        saved, k.lines = k.lines, []
        fn()
        out, k.lines = k.lines, saved
        return out

    def spin(load, test, mark=None):
        loop, done = k.lab("poll"), k.lab("done")
        if mark is None:
            mark = vm.op(load)
        vm.wait(mark)
        k(test)
        k(f"s_mov_b32 s50, {SPIN_MAX}")
        k(f"s_cbranch_vccnz {loop}")
        k.label(done)
        outline.append(f"{loop}:\n{load}\ns_sub_u32 s50, s50, 1\ns_waitcnt vmcnt(0)\ns_cmp_eq_u32 s50, 0\n"
                       f"s_cbranch_scc1 {done}\n{test}\ns_nop 0\ns_cbranch_vccnz {loop}\ns_branch {done}")

    def spin0(load, regs, test, extra=0):
        loop, done, skip = k.lab("pp"), k.lab("pd"), k.lab("ps")
        n = len(regs)
        k(f"s_cmp_lg_u32 s{sW}, 0")
        k(f"s_cbranch_scc1 {skip}")
        k(f"s_mov_b32 s50, {SPIN_MAX}")
        for r in regs[:-1]:
            k(load(r) + " ; alt")
            if PIPE < 9:
                k(f"s_sleep {PIPE}")
        k.label(loop)
        for i in range(n):
            k(load(regs[(i - 1) % n]) + " ; alt")
            k(f"s_waitcnt vmcnt({n - 1})")
            k(test(regs[i]))
            k("s_nop 0")
            k(f"s_cbranch_vccz {done}")
        k("s_sub_u32 s50, s50, 1")
        k("s_cmp_lg_u32 s50, 0")
        k(f"s_cbranch_scc1 {loop}")
        k.label(done)
        k.label(skip)
        if extra:
            k(f"s_waitcnt vmcnt({extra})")
            vm.done = vm.n
        else:
            vm.all()
        k("s_barrier")

    def wave0(lines, mask):
        skip = k.lab("skip")
        k(f"s_cmp_lg_u32 s{sW}, 0")
        k(f"s_cbranch_scc1 {skip}")
        k(f"s_mov_b64 exec, {mask}")
        k(lines)
        k("s_mov_b64 exec, -1")
        k.label(skip)

    k("s_load_dwordx2 s[4:5], s[0:1], 0")
    k("s_load_dwordx4 s[44:47], s[0:1], 8")
    k("s_load_dwordx4 s[52:55], s[0:1], 32")
    k("s_load_dwordx4 s[56:59], s[0:1], 48")
    k(f"s_load_dwordx2 s[{sDBG}:{sDBG+1}], s[0:1], 64")
    k("s_load_dwordx2 s[6:7], s[0:1], 72")
    if "c" in SP_LIST:
        here, noc = k.lab("pc"), k.lab("noc")
        k("s_and_b32 s3, s2, 0xffffffe0")
        k("s_cmp_lg_u32 s3, 224")
        k(f"s_cbranch_scc1 {noc}")
        k("s_getpc_b64 s[8:9]")
        k.label(here)
        k("s_bfe_u32 s3, s2, 0x20003")
        k("v_lshrrev_b32 v1, 2, v0")
        k("s_lshl_b32 s3, s3, 13")
        k("v_lshl_add_u32 v1, v1, 7, s3")
        k("global_load_dword v113, v1, s[8:9] ; alt")
        k.label(noc)
    k("s_cmp_ge_u32 s2, 256")
    k(f"s_cbranch_scc1 {END}")
    k.stamp()
    k("v_lshrrev_b32 v2, 6, v0")
    k("v_and_b32 v1, 63, v0")
    k(f"v_readfirstlane_b32 s{sW}, v2")
    k("s_cmp_ge_u32 s2, 224")
    k(f"s_cbranch_scc1 {SPARE}")
    k("s_lshr_b32 s26, s2, 3")
    k("s_mul_i32 s27, s26, 37")
    k("s_lshr_b32 s27, s27, 8")
    k("s_and_b32 s28, s2, 7")
    k(f"s_lshl2_add_u32 s{sRT}, s28, s27")
    k("s_mul_i32 s28, s27, 7")
    k(f"s_sub_u32 s{sCT}, s26, s28")

    k("v_lshrrev_b32 v4, 5, v1")
    k("v_bfe_u32 v5, v1, 3, 2")
    k("v_lshl_add_u32 v4, v4, 4, v5")
    k("v_mul_u32_u24 v4, 0x7000, v4")
    k("v_lshrrev_b32 v5, 4, v1")
    k("v_and_b32 v6, 7, v1")
    k("v_xor_b32 v6, v6, v5")
    k("v_lshl_add_u32 v2, v6, 4, v4")
    k("v_xor_b32 v3, 64, v2")
    k(f"v_add_u32 v3, {32*32*896}, v3")
    k(f"s_lshl_b32 s26, s{sW}, 7")
    k(f"s_add_u32 s26, s26, s{sRT}")
    k("s_mul_i32 s26, s26, 896")
    k(f"s_lshl_b32 s27, s{sW}, 11")
    vB, vST, vE, vSG, vT, vF, vKK, vOnes, vCS = 8, 9, 9, 17, 19, 28, 27, 152, 156

    def p1_consts():
        k("v_and_b32 v8, 15, v1")
        k(f"s_and_b32 s28, s{sW}, 1")
        k("s_lshl_b32 s28, s28, 4")
        k(f"s_lshl_b32 s29, s{sCT}, 5")
        k("s_add_u32 s28, s28, s29")
        k(f"v_add_u32 {v(vKK)}, s28, v8")
        k("v_lshrrev_b32 v9, 1, v8")
        k("v_xor_b32 v9, v9, v5")
        k("v_lshlrev_b32 v9, 4, v9")
        k("v_lshl_add_u32 v4, v8, 7, v9")
        k(f"v_add_u32 v19, 1, {v(vKK)}")
        k("v_cvt_f32_u32 v20, v19")
        k("v_and_b32 v19, 1, v19")
        k("v_lshlrev_b32 v19, 31, v19")
        k(f"v_or_b32 {v(vSG)}, 1.0, v19")
        for e in range(1, 8):
            k(f"v_mul_f32 {v(vE+e)}, {f2u(e/448.0)}, v20")
        k(f"v_mul_f32 {v(vST)}, {f2u(32.0/448)}, v20")
        k(f"v_fract_f32 {v(vST)}, {v(vST)}")
        k("v_lshlrev_b32 v21, 3, v5")
        k("v_cvt_f32_u32 v21, v21")
        k(f"s_lshr_b32 s30, s{sW}, 1")
        k(f"s_mul_i32 s31, s30, {f2u(0.25)}")
        k(f"v_mov_b32 {v(vB)}, s31")
        k(f"v_fmac_f32 {v(vB)}, v21, {v(vE+1)}")
        k(f"v_fract_f32 {v(vB)}, {v(vB)}")
        if MAPB:
            k(f"s_and_b32 s{sHALF}, s2, 1")
            k(f"s_bfe_u32 s{sRB}, s2, 0x20001")
            k(f"s_and_b32 s35, s{sRT}, 3")
            k(f"s_lshl2_add_u32 s{sRB}, s{sRB}, s35")
        else:
            k(f"s_and_b32 s{sHALF}, s{sRT}, 1")
            k(f"s_lshr_b32 s{sRB}, s{sRT}, 1")
        k(f"s_mul_i32 s{sFB}, s{sHALF}, 7")
        k(f"s_add_u32 s{sFB}, s{sFB}, s{sCT}")
        k(f"s_lshl_b32 s{sWG}, s{sFB}, 8")
        k(f"s_mul_i32 s35, s{sW}, {4*3584}")
        k(f"s_add_u32 s{sWG}, s{sWG}, s35")
        k(f"s_lshl2_add_u32 s{sFB}, s{sFB}, s{sW}")
        k(f"s_add_u32 s{sWE}, s{sWG}, {28*57344}")
        k(f"s_and_b32 s{sROT}, s2, 7")
        k(f"s_min_u32 s{sROT}, s{sROT}, {6 if ROTW else 0}")
        k(f"s_mul_i32 s35, s{sROT}, {4*57344}")
        k(f"s_add_u32 s{sWG}, s{sWG}, s35")
        k(f"s_lshl_b32 s{sROT}, s{sROT}, 12")
        k("v_bfe_u32 v21, v1, 2, 2")
        k("v_xor_b32 v22, v21, v5")
        k("v_and_b32 v23, 3, v1")
        k("v_lshlrev_b32 v22, 6, v22")
        k("v_lshl_add_u32 v22, v23, 4, v22")
        k(f"v_mul_u32_u24 {v(vWG)}, 0xe00, v5")
        k(f"v_add_u32 {v(vWG)}, {v(vWG)}, v22")
        k(f"v_xor_b32 v22, s{sW}, v21")
        k("v_lshlrev_b32 v22, 6, v22")
        k("v_lshl_add_u32 v22, v21, 8, v22")
        k("v_lshl_add_u32 v22, v23, 3, v22")
        k("v_and_b32 v23, 1, v5")
        k("v_lshl_add_u32 v22, v23, 5, v22")
        k("v_lshrrev_b32 v23, 5, v1")
        k("v_lshl_add_u32 v22, v23, 11, v22")
        k(f"v_add_u32 {v(vWT)}, {STG}, v22")
        k(f"v_add_u32 {v(vWT+1)}, {RNG}, v22")
        k(f"s_lshl_b32 s35, s{sW}, 10")
        k("v_xor_b32 v5, 64, v4")
        k("v_add_u32 v6, s27, v4")
        k("v_add_u32 v7, s27, v5")
        for p in range(4):
            k(f"v_mov_b32 {v(vOnes+p)}, 0x3f803f80")
        for t in range(7):
            k(f"v_cos_f32 {v(vT)}, {v(vB)}")
            for e in range(1, 8):
                k(f"v_add_f32 {v(vT+e)}, {v(vB)}, {v(vE+e)}")
            for e in range(1, 8):
                k(f"v_cos_f32 {v(vT+e)}, {v(vT+e)}")
            if t < 6:
                k(f"v_add_f32 {v(vB)}, {v(vB)}, {v(vST)}")
                k(f"v_fract_f32 {v(vB)}, {v(vB)}")
            for p in range(4):
                k(f"v_cvt_pk_bf16_f32 {v(vF+4*t+p)}, {v(vT+2*p)}, {v(vT+2*p+1)}")
            if t > 0:
                k(f"v_mfma_f32_16x16x32_bf16 {v(vCS,4)}, {v(vOnes,4)}, {v(vF+4*t-4,4)}, {'0' if t == 1 else v(vCS,4)}")

    lines = capture(p1_consts)
    per = -(-len(lines) // 14)

    def slot():
        for _ in range(min(per, len(lines))):
            k(lines.pop(0))

    k("s_waitcnt lgkmcnt(0)")
    k.stamp(1) if FINE == 1 else None
    k.srd(12, 4, XB)
    xs = []
    for i in range(7):
        if i == 0:
            k(f"s_mov_b32 s48, s{sCT}")
        else:
            k("s_add_u32 s48, s48, 1")
            k("s_cmp_eq_u32 s48, 7")
            k("s_cselect_b32 s48, 0, s48")
        k("s_lshl_b32 s49, s48, 7")
        k("s_add_u32 s49, s49, s26")
        k("s_lshl_b32 s51, s48, 13")
        k("s_add_u32 m0, s51, s27")
        vm.op("buffer_load_dwordx4 v2, s[12:15], s49 offen lds")
        slot()
        k("s_add_u32 m0, m0, 1024")
        xs.append(vm.op("buffer_load_dwordx4 v3, s[12:15], s49 offen lds"))
        slot()
    assert not lines
    k.stamp(1) if FINE == 1 else None
    k("s_mov_b32 s8, s46")
    k("s_and_b32 s9, s47, 0xffff")
    k(f"s_mov_b32 s10, {WRB}")
    k("s_mov_b32 s11, 0x20000")
    k("s_and_b32 s45, s45, 0xffff")
    k(f"s_mov_b32 s46, {WRB}")
    k("s_mov_b32 s47, 0x20000")
    k(f"s_and_b32 s50, s{sRT}, 28")
    k(f"s_add_u32 s50, s50, s{sW}")
    k(f"s_and_b32 s51, s{sRT}, 3")
    k("s_lshl2_add_u32 s50, s50, s51")
    k("s_mul_i32 s50, s50, 7200")
    k(f"s_lshl_b32 s51, s{sCT}, 6")
    k("s_add_u32 s50, s50, s51")
    k("s_add_u32 s50, s50, 2")
    k("v_lshrrev_b32 v230, 2, v1")
    k("v_and_b32 v231, 3, v1")
    k("v_mul_u32_u24 v232, 0x1c2, v230")
    k("v_lshl_add_u32 v232, v231, 4, v232")
    vm.op("buffer_load_dwordx4 v[160:163], v232, s[44:47], s50 offen")
    wf_ld = vm.op("buffer_load_dwordx4 v[164:167], v232, s[8:11], s50 offen")
    k("v_lshlrev_b32 v230, 4, v230")
    k("v_lshl_add_u32 v230, v231, 11, v230")
    k(f"s_lshl2_add_u32 s50, s{sW}, {XT}")
    k("v_add_u32 v230, s50, v230")
    k.srd(8, 6, WS_BYTES)
    k.srd(sA, 52, WGB)
    k.srd(sB, 54, WGB)
    k.srd(16, 58, XB)
    k("s_mov_b32 s48, s56")
    k("s_mov_b32 s49, s57")
    k(f"v_mfma_f32_16x16x32_bf16 {v(vCS,4)}, {v(vOnes,4)}, {v(vF+24,4)}, {v(vCS,4)}")

    def stg(kp):
        return kp if kp < 11 else kp - 11 if kp < 22 else kp - 22

    sid = []

    def sload(cnt=1):
        for _ in range(cnt):
            n = len(sid)
            kp, m = n // 2, n % 2
            sl = stg(kp)
            k(f"s_add_u32 m0, s35, {(STG + sl*8192 if sl < 7 else RNG + (sl-7)*8192) + m*4096}")
            if n and not m:
                k(f"s_add_u32 s{sWG}, s{sWG}, {16*3584}")
                if ROTW and kp % 4 == 0:
                    k(f"s_cmp_eq_u32 s{sWG}, s{sWE}")
                    k(f"s_cselect_b32 s37, {28*57344}, 0")
                    k(f"s_sub_u32 s{sWG}, s{sWG}, s37")
            sid.append(vm.op(f"buffer_load_dwordx4 {v(vWG)}, s[{(sA, sB)[m]}:{(sA, sB)[m]+3}], s{sWG} offen lds"))

    def sread(k0, k1):
        for kp in range(k0, k1):
            sl = stg(kp)
            for m in range(2):
                for u in range(2):
                    k(f"ds_read_b64_tr_b16 {a(8*kp+4*m+2*u,2)}, {v(vWT + (sl >= 7))} offset:{(sl%7 if sl < 7 else sl-7)*8192 + m*4096 + u*1024}")

    k.stamp()
    vR, vSm, vGr = 56, 20, 120

    def stat(t):
        b = vR + 4 * (t % 4)
        k(f"v_mfma_f32_16x16x32_bf16 {v(vSm,4)}, {v(b,4)}, {v(vOnes,4)}, {'0' if t == 0 else v(vSm,4)}")
        k(f"v_mfma_f32_16x16x32_bf16 {v(vGr,4)}, {v(b,4)}, {v(b,4)}, {'0' if t == 0 else v(vGr,4)}")

    if TALL:
        k(f"s_lshl2_add_u32 s51, s2, s{sW}")
        k("s_mul_i32 s50, s51, 335")
        k("s_lshr_b32 s50, s50, 16")
        k("s_mul_i32 s29, s50, 196")
        k("s_sub_u32 s51, s51, s29")
        k("s_lshl_b32 s51, s51, 13")
        k("s_cmp_eq_u32 s50, 1")
        k("s_cselect_b32 s52, s54, s52")
        k("s_cselect_b32 s53, s55, s53")
        k("s_cmp_eq_u32 s50, 2")
        k("s_cselect_b32 s52, s56, s52")
        k("s_cselect_b32 s53, s57, s53")
        k("s_and_b32 s53, s53, 0xffff")
        k("s_cmp_le_u32 s50, 2")
        k(f"s_cselect_b32 s54, {WGB}, 0")
        k("s_mov_b32 s55, 0x20000")
        k("v_lshlrev_b32 v240, 7, v1")
        vm.op("buffer_load_dword v241, v240, s[52:55], s51 offen")
    if TPM:
        k("v_and_b32 v242, 15, v1")
        k("v_lshlrev_b32 v242, 13, v242")
        k("s_lshl_b32 s51, s28, 13")
        k("s_lshl_b32 s50, s30, 12")
        k("s_add_u32 s51, s51, s50")
        k(f"s_lshl_b32 s50, s{sRT}, 7")
        k("s_add_u32 s51, s51, s50")
        vm.op("buffer_load_dword v243, v242, s[8:11], s51 offen sc1")
    sload(NP[0])
    k(f"s_lshl_b32 s51, s{sCT}, 13")
    for c in range(7):
        k("v_add_u32 v26, s51, v6")
        k("v_add_u32 v18, s51, v7")
        if c < 6:
            k("s_add_u32 s51, s51, 8192")
            k("s_cmp_eq_u32 s51, 57344")
            k("s_cselect_b32 s51, 0, s51")
        vm.wait(xs[c])
        for par in range(2):
            k(f"ds_read_b128 {v(vR+4*((2*c+par)%4),4)}, v{18 if par else 26}")
        if c > 0:
            k("s_waitcnt lgkmcnt(2)")
            stat(2 * c - 2)
            stat(2 * c - 1)
    k("s_waitcnt lgkmcnt(0)")
    k.stamp(1) if FINE == 1 else None
    stat(12)
    stat(13)
    k("s_barrier")
    k.stamp()
    vA, vSt, vM, vQ = 88, 124, 24, 25
    seq = [(t, b) for t in range(14) for b in range(4)]

    def rd1(n):
        t, b = seq[n]
        k(f"ds_read_b128 {v(vR+4*(n%8),4)}, v{4+(t&1)} offset:{(t>>1)*8192 + b*2048}")

    fin = ["v_and_b32 v26, 3, v1",
           "v_cmp_eq_u32 s[52:53], 1, v26", "v_cmp_eq_u32 s[54:55], 2, v26", "v_cmp_eq_u32 s[56:57], 3, v26",
           "v_bfe_u32 v26, v1, 2, 2", "v_lshrrev_b32 v19, 4, v1", "v_cmp_eq_u32 s[58:59], v26, v19",
           f"v_cndmask_b32 {v(vM)}, {v(vSm)}, {v(vSm+1)}, s[52:53]", f"v_cndmask_b32 {v(vQ)}, {v(vGr)}, {v(vGr+1)}, s[52:53]",
           f"v_cndmask_b32 {v(vM)}, {v(vM)}, {v(vSm+2)}, s[54:55]", f"v_cndmask_b32 {v(vQ)}, {v(vQ)}, {v(vGr+2)}, s[54:55]",
           f"v_cndmask_b32 {v(vM)}, {v(vM)}, {v(vSm+3)}, s[56:57]", f"v_cndmask_b32 {v(vQ)}, {v(vQ)}, {v(vGr+3)}, s[56:57]",
           f"v_mul_f32 {v(vM)}, {f2u(1.0/448)}, {v(vM)}",
           f"v_mul_f32 {v(vQ)}, {f2u(1.0/448)}, {v(vQ)}",
           "v_and_b32 v26, 15, v1",
           f"v_fma_f32 {v(vQ)}, -{v(vM)}, {v(vM)}, {v(vQ)}",
           f"s_lshl_b32 s33, s{sW}, 6\ns_add_u32 s33, s33, {R2}",
           f"v_max_f32 {v(vQ)}, 0, {v(vQ)}",
           "v_lshl_add_u32 v19, v26, 2, s33",
           f"v_add_f32 {v(vQ)}, {f2u(EPS)}, {v(vQ)}",
           f"v_fmac_f32 {v(vCS)}, {v(vCS)}, {v(vSG)}",
           f"v_rsq_f32 {v(vQ)}, {v(vQ)}",
           "v_lshrrev_b32 v21, 2, v26",
           "v_and_b32 v26, 3, v26",
           f"v_mul_f32 v20, {v(vM)}, {v(vQ)}",
           "v_lshl_add_u32 v26, v21, 4, v26",
           "v_lshlrev_b32 v26, 7, v26",
           f"s_lshl_b32 s33, s{sW}, 7",
           f"s_add_u32 s33, s33, s{sRT}",
           f"s_lshl2_add_u32 s33, s33, {M1}",
           f"s_cmp_eq_u32 s{sCT}, 0\ns_cselect_b32 s33, s33, 0x40000000"]
    DEPTH = 7
    for n in range(DEPTH):
        rd1(n)
    if T1:
        k(f"s_bitcmp1_b32 s{sW}, 0")
        k(f"s_cselect_b32 s52, s{sB}, s{sA}")
        k(f"s_cselect_b32 s53, s{sB+1}, s{sA+1}")
        k(f"s_mov_b32 s54, {WGB}")
        k("s_mov_b32 s55, 0x20000")
        k(f"s_and_b32 s50, s{sRB}, 1")
        k(f"s_lshr_b32 s51, s{sW}, 1")
        k("s_lshl1_add_u32 s50, s50, s51")
        k(f"s_mul_i32 s50, s50, {2*57344}")
        k(f"s_lshr_b32 s51, s{sFB}, 2")
        k("s_lshl_b32 s51, s51, 8")
        k("s_add_u32 s50, s50, s51")
        k(f"s_add_u32 s50, s50, {T1*57344}")
        k("v_lshrrev_b32 v240, 1, v1")
        k("v_mul_u32_u24 v240, 0xe00, v240")
        k("v_and_b32 v241, 1, v1")
        k("v_lshl_add_u32 v240, v241, 7, v240")
        vm.op("buffer_load_dword v241, v240, s[52:55], s50 offen")
    for n in range(56):
        t, b = seq[n]
        k(f"s_waitcnt lgkmcnt({min(DEPTH - 1, 55 - n) + (2 if 40 < n <= 40 + DEPTH else 0)})")
        acc = vA + 16 * (t // 7) + 4 * b
        k(f"v_mfma_f32_16x16x32_bf16 {v(acc,4)}, {v(vR+4*(n%8),4)}, {v(vF+4*(t%7),4)}, {'0' if t % 7 == 0 else v(acc,4)}")
        if n + DEPTH < 56:
            rd1(n + DEPTH)
        if n >= 4 and fin:
            k(fin.pop(0))
        if n == 40:
            assert not fin
            k("s_mov_b64 exec, s[58:59]")
            k(f"ds_write_b32 v19, {v(vQ)}")
            k("ds_write_b32 v19, v20 offset:256")
            vm.op(f"buffer_store_dword {v(vM)}, v26, s[8:11], s33 offen sc1")
            k("s_mov_b64 exec, -1")
        if n % 8 == 3 and len(sid) < NP[0] + NP[1]:
            sload()
    k.stamp(1) if FINE == 1 else None
    vm.wait(wf_ld)
    k("s_mov_b32 s50, 0x05040100")
    k("s_mov_b32 s51, 0x07060302")
    for e in range(8):
        k(f"v_perm_b32 v{168+e}, v{164+(e>>1)}, v{160+(e>>1)}, s{50+(e&1)}")
    for e in range(0, 8, 2):
        k(f"ds_write2st64_b32 v230, v{168+e}, v{169+e} offset0:{e} offset1:{e+1}")
    k(f"s_add_u32 s50, s27, {XT}")
    k("v_lshl_add_u32 v231, v1, 4, s50")
    k("s_waitcnt lgkmcnt(0)")
    k("s_barrier")
    k.stamp(1) if FINE == 1 else None
    k("ds_read_b128 v[160:163], v231")
    k("ds_read_b128 v[164:167], v231 offset:1024")
    k("v_lshrrev_b32 v230, 4, v1")
    k("v_and_b32 v231, 15, v1")
    k("v_lshlrev_b32 v231, 4, v231")
    k("v_lshl_add_u32 v230, v230, 13, v231")
    k(f"s_lshl2_add_u32 s50, s{sCT}, s{sW}")
    k("s_lshl_b32 s50, s50, 16")
    k(f"s_and_b32 s51, s{sRT}, 3")
    k("s_lshl_b32 s51, s51, 11")
    k("s_add_u32 s50, s50, s51")
    k(f"s_lshr_b32 s51, s{sRT}, 2")
    k("s_lshl_b32 s51, s51, 8")
    k("s_add_u32 s50, s50, s51")
    k(f"s_add_u32 s50, s50, {WT}")
    k("s_add_u32 s51, s50, 32768")
    k("v_lshrrev_b32 v24, 4, v1")
    k("v_lshlrev_b32 v24, 4, v24")
    k(f"v_add_u32 v25, {R2}, v24")
    for b in range(4):
        k(f"ds_read_b128 {v(vSt+4*b,4)}, v25 offset:{64*b}")
        k(f"ds_read_b128 {v(vSt+16+4*b,4)}, v25 offset:{256 + 64*b}")
    for n in range(0, 16, 2):
        k(f"v_pk_fma_f32 {v(vA+n,2)}, {v(vA+16+n,2)}, {v(vSG-1,2)}, {v(vA+n,2)} op_sel:[0,1,0]")
    k("s_waitcnt lgkmcnt(8)")
    vm.op("buffer_store_dwordx4 v[160:163], v230, s[8:11], s50 offen sc1")
    vm.op("buffer_store_dwordx4 v[164:167], v230, s[8:11], s51 offen sc1")
    k.stamp(1) if FINE == 1 else None
    k("v_and_b32 v8, 15, v1")
    k("v_and_b32 v9, 7, v1")
    k("v_lshrrev_b32 v10, 3, v24")
    k("v_xor_b32 v10, v10, v9")
    k("v_lshlrev_b32 v10, 4, v10")
    k("v_lshl_add_u32 v10, v8, 7, v10")
    k("v_add_u32 v10, s27, v10")
    k("v_xor_b32 v11, 16, v10")
    k(f"v_lshlrev_b32 {v(vL16)}, 4, v1")
    k(f"v_add_u32 v12, s27, {v(vL16)}")
    k("v_lshrrev_b32 v13, 3, v1")
    k("v_xor_b32 v9, v9, v13")
    k("v_lshlrev_b32 v9, 4, v9")
    k("v_lshl_add_u32 v13, v13, 13, v9")
    k("s_lshl_b32 s28, s28, 13")
    k("s_lshl_b32 s30, s30, 12")
    k(f"s_lshl_b32 s33, s{sRT}, 7")
    k("s_add_u32 s33, s33, s30")
    k("s_add_u32 s33, s33, s28")
    k("s_add_u32 s34, s33, 0x10000")
    for h2 in range(2):
        k(f"s_waitcnt lgkmcnt({4-4*h2})")
        for n in range(8 * h2, 8 * h2 + 8, 2):
            k(f"v_pk_mul_f32 {v(vA+n,2)}, {v(vA+n,2)}, {v(vSt+n,2)}")
        for n in range(8 * h2, 8 * h2 + 8, 2):
            k(f"v_pk_fma_f32 {v(vA+n,2)}, {v(vSt+16+n,2)}, {v(vCS,2)}, {v(vA+n,2)} op_sel_hi:[1,0,1] neg_lo:[1,0,0] neg_hi:[1,0,0]")
        for n in range(4 * h2, 4 * h2 + 4):
            k(f"v_cvt_pk_bf16_f32 {v(vR+n)}, {v(vA+2*n)}, {v(vA+2*n+1)}")
    k.stamp(1) if FINE == 1 else None
    k(f"ds_write_b128 v10, {v(vR,4)}")
    k(f"ds_write_b128 v11, {v(vR+4,4)}")
    k("s_waitcnt lgkmcnt(0)")
    k(f"ds_read_b128 {v(vR+8,4)}, v12")
    k(f"ds_read_b128 {v(vR+12,4)}, v12 offset:1024")
    k(f"v_lshlrev_b32 {v(vL4)}, 2, v1")
    k(f"v_min_u32 v14, 28, {v(vL4)}")
    k("s_waitcnt lgkmcnt(1)")
    vm.op(f"buffer_store_dwordx4 {v(vR+8,4)}, v13, s[8:11], s33 offen sc1")
    k("s_waitcnt lgkmcnt(0)")
    at_st = vm.op(f"buffer_store_dwordx4 {v(vR+12,4)}, v13, s[8:11], s34 offen sc1")
    zload = f"global_load_dword v31, v14, s[{sDBG}:{sDBG+1}] sc1"
    zmark = vm.op(zload)
    k.stamp()

    sKK, vWt = 2, 200
    vC1, vS1, vN1, vC2, vS2, vN2 = 32, 40, 48, 56, 64, 72
    vTc, vTs, vUc, vUs, vD, wX, vY, vP, wT = 80, 88, 96, 104, 112, 144, 160, 176, 184
    m2 = [0, 1, 2, 3, 16, 17, 18, 19]
    k(f"v_lshrrev_b32 {v(vG)}, 4, v1")
    k(f"v_and_b32 {v(vC)}, 15, v1")
    k(f"v_mov_b32 {v(vOne)}, 1")
    k(f"v_min_u32 {v(vLP)}, 220, {v(vL4)}")
    k("v_and_b32 v7, 7, v1")
    k(f"v_xor_b32 v7, v7, {v(vG)}")
    k("v_lshrrev_b32 v8, 3, v1")
    k("v_lshlrev_b32 v8, 7, v8")
    k("v_lshl_add_u32 v211, v7, 4, v8")
    k("v_xor_b32 v212, 64, v211")
    k(f"s_lshl_b32 s{sFL}, s{sRB}, 10")
    k(f"s_add_u32 s{sFL}, s{sFL}, {FL}")
    k(f"s_lshl2_add_u32 s{sFI}, s{sFB}, s{sFL}")
    k(f"s_getreg_b32 s{sXC}, hwreg(HW_REG_XCC_ID, 0, 4)")
    k(f"s_lshr_b32 s26, s{sKK}, 5")
    k(f"s_lshl_b32 s26, s26, {9 if WFLAG else 7}")
    k(f"s_add_u32 s51, s26, {FL + F_P1}")
    k("v_lshlrev_b32 v214, 3, v1")
    k(f"v_and_b32 v213, 124, {v(vL4)}")
    k(f"s_lshl_b32 s26, s{sCT}, 5")
    k(f"s_add_u32 s26, s26, s{sRT}")
    if WFLAG:
        k(f"s_lshl2_add_u32 s26, s26, s{sW}")
    k(f"s_lshl2_add_u32 s52, s26, {FL + F_P1}")
    k(f"s_lshl1_add_u32 s{sRT}, s{sRB}, s{sHALF}")

    def packed_table(dc, ds_, step, base, mult):
        for e in range(8):
            k(f"v_mov_b32 {v(wT+e)}, {v(base)}" if mult[e] == 0 else
              f"v_fmamk_f32 {v(wT+e)}, {v(step)}, {f2u(float(mult[e]))}, {v(base)}")
        for e in range(8):
            k(f"v_cos_f32 {v(wT+8+e)}, {v(wT+e)}")
        for e in range(8):
            k(f"v_sin_f32 {v(wT+e)}, {v(wT+e)}")
        for p in range(4):
            k(f"v_cvt_pk_bf16_f32 {v(dc+p)}, {v(wT+8+2*p)}, {v(wT+8+2*p+1)}")
        for p in range(4):
            k(f"v_cvt_pk_bf16_f32 {v(ds_+p)}, {v(wT+2*p)}, {v(wT+2*p+1)}")

    k(f"s_lshl_b32 s53, s{sW}, 4")
    k(f"v_add_u32 v210, s53, {v(vC)}")
    k("v_cvt_f32_u32 v208, v210")
    k(f"v_cvt_f32_u32 v209, {v(vG)}")
    k(f"v_mul_f32 {v(vY)}, {f2u(1.0/64)}, v208")
    k(f"v_mul_f32 {v(vY+1)}, {f2u(8.0)}, v209")
    k(f"v_mul_f32 {v(vY+1)}, {v(vY+1)}, {v(vY)}")
    packed_table(vC1, vS1, vY, vY + 1, list(range(8)))
    k("s_mov_b32 s54, 0x80008000")
    k("v_and_b32 v210, 1, v1")
    k("v_mul_u32_u24 v210, 0x8000, v210")
    k("v_lshl_or_b32 v210, v210, 16, v210")
    for p in range(4):
        k(f"v_xor_b32 {v(vC1+4+p)}, v210, {v(vC1+p)}")
        k(f"v_xor_b32 {v(vS1+4+p)}, v210, {v(vS1+p)}")
    for p in range(8):
        k(f"v_xor_b32 {v(vN1+p)}, s54, {v(vS1+p)}")
    k.stamp(1) if FINE == 1 else None
    spin(zload, "v_cmp_eq_u32 vcc, 0, v31", zmark)
    if WFLAG:
        vm.op(f"buffer_store_dword {v(vOne)}, off, s[8:11], s52 sc1")
        vm.wait(sid[-1])
        k("s_barrier")
    else:
        vm.all()
        k("s_barrier")
        wave0(f"buffer_store_dword {v(vOne)}, off, s[8:11], s52 sc1", 1)
    k.stamp()
    nr1 = len(sid) // 2
    assert len(sid) == NP[0] + NP[1] and len(sid) % 2 == 0
    sload(NP[2])
    sread(0, nr1)
    k(f"v_lshrrev_b32 v210, 1, {v(vC)}")
    k(f"v_xor_b32 v210, v210, {v(vG)}")
    k("v_lshlrev_b32 v210, 4, v210")
    k(f"v_lshl_add_u32 {v(vP)}, {v(vC)}, 7, v210")
    k(f"v_xor_b32 {v(vP+1)}, 64, {v(vP)}")
    k(f"v_cvt_f32_u32 v210, {v(vC)}")
    k(f"v_mul_f32 {v(vY)}, {f2u(1.0/32)}, v210")
    k(f"v_mul_f32 {v(vY+1)}, 4.0, v209")
    k(f"v_mul_f32 {v(vY+1)}, {v(vY+1)}, {v(vY)}")
    packed_table(vC2, vS2, vY, vY + 1, m2)
    k("s_brev_b32 s55, 1")
    for p in range(4):
        k(f"v_xor_b32 {v(vC2+4+p)}, s55, {v(vC2+p)}")
        k(f"v_xor_b32 {v(vS2+4+p)}, s55, {v(vS2+p)}")
    for p in range(8):
        k(f"v_xor_b32 {v(vN2+p)}, s54, {v(vS2+p)}")
    k(f"v_mul_f32 {v(vY)}, {f2u(1.0/2048)}, v208")
    k(f"v_mul_f32 {v(vY+1)}, 4.0, v209")
    k(f"v_mul_f32 {v(vY+1)}, {v(vY+1)}, {v(vY)}")
    for e in range(8):
        k(f"v_mov_b32 {v(vTs+e)}, {v(vY+1)}" if m2[e] == 0 else
          f"v_fmamk_f32 {v(vTs+e)}, {v(vY)}, {f2u(float(m2[e]))}, {v(vY+1)}")
    for e in range(8):
        k(f"v_cos_f32 {v(vTc+e)}, {v(vTs+e)}")
    for e in range(8):
        k(f"v_sin_f32 {v(vTs+e)}, {v(vTs+e)}")
    k(f"v_mul_f32 {v(wT)}, {f2u(1.0/2048)}, v210")
    k(f"v_add_f32 {v(wT+1)}, {f2u(16.0/2048)}, {v(wT)}")
    k(f"v_lshl_add_u32 v208, {v(vG)}, 2, s53")
    k("v_cvt_f32_u32 v208, v208")
    for r in range(4):
        for blk in range(2):
            k(f"v_mul_f32 {v(vUs+4*blk+r)}, v208, {v(wT+blk)}")
        if r < 3:
            k("v_add_f32 v208, 1.0, v208")
    for e in range(8):
        k(f"v_cos_f32 {v(vUc+e)}, {v(vUs+e)}")
    for e in range(8):
        k(f"v_sin_f32 {v(vUs+e)}, {v(vUs+e)}")
    sc = 2.0 / (S * D)
    k(f"s_cmp_eq_u32 s{sKK}, 223")
    k(f"s_mov_b32 s55, {f2u(sc)}")
    k(f"s_cselect_b32 s55, {f2u(sc/2)}, s55")
    for e in range(8):
        k(f"v_mul_f32 {v(vUc+e)}, s55, {v(vUc+e)}")
        k(f"v_mul_f32 {v(vUs+e)}, s55, {v(vUs+e)}")
    k(f"v_lshrrev_b32 v208, 1, {v(vG)}")
    k(f"v_lshl_add_u32 v208, v208, 4, {v(vC)}")
    k("v_lshlrev_b32 v208, 4, v208")
    k(f"v_and_b32 v209, 1, {v(vG)}")
    k("v_lshl_add_u32 v208, v209, 3, v208")
    k(f"s_lshl_b32 s26, s{sW}, 9")
    k("v_add_u32 v208, s26, v208")
    k(f"s_lshl_b32 s26, s{sKK}, 13")
    k("s_add_u32 s56, s26, s27")
    k(f"s_add_u32 s57, s56, {WT}")
    k("s_add_u32 s58, s26, s35")
    k("s_add_u32 s59, s58, 4096")
    k("s_mov_b32 m0, s27")
    k("s_waitcnt lgkmcnt(0)")
    k("s_barrier")
    k.stamp()
    if WFLAG:
        spin0(lambda r: f"buffer_load_dwordx2 v[{r}:{r+1}], v214, s[8:11], s51 offen sc1", [216, 218, 220],
              lambda r: f"v_and_b32 v{r}, v{r}, v{r+1}\nv_cmp_eq_u32 vcc, 0, v{r}")
    elif PIPE:
        spin0(lambda r: f"buffer_load_dword v{r}, v213, s[8:11], s51 offen sc1", [216, 217, 218], lambda r: f"v_cmp_eq_u32 vcc, 0, v{r}")
    else:
        spin("buffer_load_dword v31, v213, s[8:11], s51 offen sc1", "v_cmp_eq_u32 vcc, 0, v31")
    k.stamp()
    vm.op(f"buffer_load_dwordx4 v211, s[8:11], s56 offen{LD} lds")
    at_ld = vm.op(f"buffer_load_dwordx4 v212, s[8:11], s56 offen offset:1024{LD} lds")
    vm.op(f"buffer_load_dwordx4 {v(vWt,4)}, {v(vL16)}, s[8:11], s57 offen{LD}")
    wt_ld = vm.op(f"buffer_load_dwordx4 {v(vWt+4,4)}, {v(vL16)}, s[8:11], s57 offen offset:1024{LD}")
    k(f"s_lshl_b32 s26, s{sXC}, 2")
    k("s_lshl_b32 s26, 1, s26")
    k(f"s_lshr_b32 s28, s{sXC}, 3")
    k(f"s_lshl2_add_u32 s28, s28, s{sFL}")
    wave0("v_mov_b32 v215, s26\nbuffer_atomic_add v215, off, s[8:11], s28 offset:768 sc1", 1)
    if not PIPE:
        k("s_barrier")
    assert NS[1] <= 2 * nr1 + 22 - NS[0]
    sread(nr1, NS[0] // 2)
    nr1 = NS[0] // 2
    sload(NS[1])
    vm.wait(at_ld)
    k("s_waitcnt lgkmcnt(0)")
    k("s_barrier")
    k.stamp()
    for t in range(2):
        for blk in range(2):
            for plane in range(2):
                k(f"ds_read_b128 {v(vD+16*plane+8*blk+4*t,4)}, {v(vP+t)} offset:{plane*4096+blk*2048}")
    sload(NS[2])

    def dft_big(cr, ci):
        for t in range(2):
            for blk in range(2):
                k(f"s_waitcnt lgkmcnt({6 - 4*t - 2*blk})")
                ar, ai = vD + 8 * blk + 4 * t, vD + 16 + 8 * blk + 4 * t
                xr, xi = wX + 4 * blk, wX + 8 + 4 * blk
                k(f"v_mfma_f32_16x16x32_bf16 {v(xr,4)}, {v(ar,4)}, {v(vC1+4*t,4)}, {'0' if t == 0 else v(xr,4)}")
                k(f"v_mfma_f32_16x16x32_bf16 {v(xi,4)}, {v(ai,4)}, {v(vC1+4*t,4)}, {'0' if t == 0 else v(xi,4)}")
                k(f"v_mfma_f32_16x16x32_bf16 {v(xr,4)}, {v(ai,4)}, {v(cr+4*t,4)}, {v(xr,4)}")
                k(f"v_mfma_f32_16x16x32_bf16 {v(xi,4)}, {v(ar,4)}, {v(ci+4*t,4)}, {v(xi,4)}")

    def pack():
        for p in range(4):
            k(f"v_cvt_pk_bf16_f32 {v(vP+p)}, {v(vY+2*p)}, {v(vY+2*p+1)}")
            k(f"v_cvt_pk_bf16_f32 {v(vP+4+p)}, {v(vY+8+2*p)}, {v(vY+8+2*p+1)}")

    k.stamp(1) if FINE == 2 else None
    dft_big(vS1, vN1)
    k.stamp(1) if FINE == 2 else None
    cmul8(k, vY, wX, vTc, vTs, -1)
    pack()
    for blk in range(2):
        xr, xi = wX + 4 * blk, wX + 8 + 4 * blk
        k(f"v_mfma_f32_16x16x32_bf16 {v(xr,4)}, {v(vC2+4*blk,4)}, {v(vP,4)}, 0")
        k(f"v_mfma_f32_16x16x32_bf16 {v(xi,4)}, {v(vC2+4*blk,4)}, {v(vP+4,4)}, 0")
        k(f"v_mfma_f32_16x16x32_bf16 {v(xr,4)}, {v(vS2+4*blk,4)}, {v(vP+4,4)}, {v(xr,4)}")
        k(f"v_mfma_f32_16x16x32_bf16 {v(xi,4)}, {v(vN2+4*blk,4)}, {v(vP,4)}, {v(xi,4)}")
    k.stamp(1) if FINE == 2 else None
    vm.wait(wt_ld)
    for e in range(8):
        k(f"v_lshlrev_b32 {v(wT+e)}, 16, {v(vWt+e)}")
        k(f"v_and_b32 {v(wT+8+e)}, 0xffff0000, {v(vWt+e)}")
    sload(NS[3] // 2)
    k.stamp(1) if FINE == 2 else None
    cmul8(k, vY, wX, wT, wT + 8, +1)
    pack()
    for blk in range(2):
        xr, xi = wX + 4 * blk, wX + 8 + 4 * blk
        k(f"v_mfma_f32_16x16x32_bf16 {v(xr,4)}, {v(vP,4)}, {v(vC2+4*blk,4)}, 0")
        k(f"v_mfma_f32_16x16x32_bf16 {v(xi,4)}, {v(vP+4,4)}, {v(vC2+4*blk,4)}, 0")
        k(f"v_mfma_f32_16x16x32_bf16 {v(xr,4)}, {v(vP+4,4)}, {v(vN2+4*blk,4)}, {v(xr,4)}")
        k(f"v_mfma_f32_16x16x32_bf16 {v(xi,4)}, {v(vP,4)}, {v(vS2+4*blk,4)}, {v(xi,4)}")
    sload(NS[3] - NS[3] // 2)
    k.stamp(1) if FINE == 2 else None
    cmul8(k, vY, wX, vUc, vUs, +1)
    pack()
    for plane in range(2):
        for blk in range(2):
            k(f"ds_write_b64 v208, {v(vP+4*plane+2*blk,2)} offset:{8192+plane*4096+blk*2048}")
    k("s_waitcnt lgkmcnt(0)")
    k("s_barrier")
    for t in range(2):
        for blk in range(2):
            for plane in range(2):
                k(f"ds_read_b128 {v(vD+16*plane+8*blk+4*t,4)}, {v(vL16)} offset:{8192+plane*4096+blk*2048+t*1024}")
    k.stamp(1) if FINE == 2 else None
    k(f"s_cmp_ge_u32 s{sKK}, 112")
    k("s_cselect_b32 s54, s54, 0")
    dft_big(vN1, vS1)
    for p in range(4):
        k(f"v_cvt_pk_bf16_f32 {v(vP+p)}, {v(wX+2*p)}, {v(wX+2*p+1)}")
    vm.op(f"buffer_store_dwordx4 {v(vP,4)}, {v(vL16)}, s[8:11], s58 offen sc1")
    for p in range(4):
        k(f"v_cvt_pk_bf16_f32 {v(vP+4+p)}, {v(wX+8+2*p)}, {v(wX+8+2*p+1)}")
    for p in range(4):
        k(f"v_xor_b32 {v(vP+4+p)}, s54, {v(vP+4+p)}")
    vm.op(f"buffer_store_dwordx4 {v(vP+4,4)}, {v(vL16)}, s[8:11], s59 offen sc1")
    k.stamp()

    vXO, vM, vTB, vXA, vGm = 10, 12, 14, 18, 32
    cload = f"buffer_load_dwordx2 v[28:29], off, s[8:11], s{sFL} offset:768 sc1"
    k(f"v_and_b32 v6, 1, {v(vG)}")
    k(f"s_and_b32 s29, s{sW}, 1")
    k("s_lshl_b32 s29, s29, 2")
    k("v_lshl_or_b32 v6, v6, 1, s29")
    k("v_and_b32 v7, 7, v1")
    k("v_xor_b32 v6, v6, v7")
    k("v_lshrrev_b32 v8, 3, v1")
    k("v_lshlrev_b32 v9, 12, v8")
    k("v_lshl_add_u32 v6, v6, 4, v9")
    k(f"s_lshl_b32 s28, s{sW}, 15")
    k(f"s_lshl_b32 s27, s{sRT}, 7")
    k("s_add_u32 s51, s28, s27")
    k("s_sub_u32 s52, s27, s28")
    k(f"s_add_u32 s52, s52, {438*4096}")
    k(f"s_bitcmp1_b32 s{sCT}, 0")
    k("s_cselect_b32 s53, s51, s52")
    k("s_cselect_b32 s51, s52, s51")
    k("s_cselect_b32 s54, 0x6000, 0")
    k("s_cselect_b32 s55, 28672, 0")
    k("s_mov_b32 s52, 0x20000")
    k("s_cselect_b32 s52, 0xfffe0000, s52")
    k("v_xor_b32 v6, s54, v6")
    k("v_lshrrev_b32 v9, 5, v1")
    k("v_and_b32 v8, 3, v8")
    k("v_lshl_add_u32 v8, v9, 4, v8")
    k("v_mul_u32_u24 v8, 0x380, v8")
    k(f"v_xor_b32 v7, v7, {v(vG)}")
    k("v_xor_b32 v7, s29, v7")
    k(f"v_lshl_add_u32 {v(vXO)}, v7, 4, v8")
    k(f"s_lshr_b32 s26, s{sRT}, 3")
    k("s_lshl_b32 s26, s26, 9")
    k(f"s_lshl_b32 s28, s{sHALF}, 8")
    k("s_add_u32 s26, s26, s28")
    k(f"s_and_b32 s28, s{sRB}, 3")
    k(f"s_lshl2_add_u32 s{sSB}, s28, s26")
    k(f"s_lshl_b32 s26, s{sW}, 5")
    k(f"s_add_u32 s26, s26, s{sSB}")
    k("s_mul_i32 s26, s26, 896")
    k(f"s_lshl_b32 s28, s{sCT}, 7")
    k(f"s_add_u32 s{sXO}, s26, s28")
    k(f"s_add_u32 s{sXO+1}, s{sXO}, {128*896}")
    k("v_bfe_u32 v7, v1, 3, 2")
    k("v_bfe_u32 v8, v1, 2, 1")
    k("v_lshlrev_b32 v8, 4, v8")
    k("v_lshl_add_u32 v7, v7, 5, v8")
    k("v_and_b32 v8, 3, v1")
    k("v_add_lshl_u32 v11, v7, v8, 2")
    k(f"s_lshl2_add_u32 s56, s{sSB}, {M1}")
    k("v_lshlrev_b32 v213, 10, v1")
    k(f"s_lshl2_add_u32 s57, s2, {FL + F_FB}")
    k("s_and_b32 s58, s2, 7")
    k("s_lshl_b32 s58, s58, 10")
    k(f"s_add_u32 s58, s58, {FL + F_FB}")
    k(f"v_min_u32 v214, 880, {v(vL16)}")
    vm.all()
    k("s_barrier")
    wave0(f"buffer_store_dword {v(vOne)}, v213, s[8:11], s57 offen sc1", "0xff")
    k.stamp()
    nr2 = len(sid) // 2
    sread(nr1, nr2)
    k(f"s_add_u32 m0, s35, {XT}")
    vm.op(f"buffer_load_dwordx4 {v(vXO)}, s[12:15], s{sXO} offen lds")
    k(f"s_add_u32 m0, s35, {XT+4096}")
    vm.op(f"buffer_load_dwordx4 {v(vXO)}, s[12:15], s{sXO+1} offen lds")
    k("s_waitcnt lgkmcnt(0)")
    k("s_barrier")

    def p3_consts():
        vB, vST, vE, vT = 14, 15, 15, 20
        k(f"s_lshl_b32 s26, s{sCT}, 6")
        k(f"s_lshl_b32 s27, s{sW}, 4")
        k("s_add_u32 s26, s26, s27")
        k(f"v_add_u32 v27, s26, {v(vC)}")
        k("v_cvt_f32_u32 v27, v27")
        for p in range(1, 4):
            k(f"v_mul_f32 {v(vE+p)}, {f2u(p/448.0)}, v27")
        k(f"v_mul_f32 {v(vST)}, {f2u(16.0/448)}, v27")
        k(f"v_fract_f32 {v(vST)}, {v(vST)}")
        k(f"v_lshl_add_u32 v19, {v(vG)}, 2, 1")
        k("v_cvt_f32_u32 v19, v19")
        k(f"v_mul_f32 {v(vB)}, v19, {v(vE+1)}")
        k(f"v_fract_f32 {v(vB)}, {v(vB)}")
        for t in range(7):
            k(f"v_cos_f32 {v(vT+4)}, {v(vB)}")
            k(f"v_sin_f32 {v(vT)}, {v(vB)}")
            for p in range(1, 4):
                k(f"v_add_f32 {v(vT+p)}, {v(vB)}, {v(vE+p)}")
            if t < 6:
                k(f"v_add_f32 {v(vB)}, {v(vB)}, {v(vST)}")
                k(f"v_fract_f32 {v(vB)}, {v(vB)}")
            for p in range(1, 4):
                k(f"v_cos_f32 {v(vT+4+p)}, {v(vT+p)}")
                k(f"v_sin_f32 {v(vT+p)}, {v(vT+p)}")
            for p in range(4):
                k(f"v_cvt_pk_bf16_f32 {v(vGm+4*t+p)}, {v(vT+4+p)}, -{v(vT+p)}")
        k("v_bfe_u32 v7, v1, 2, 2")
        k(f"v_lshlrev_b32 v8, 10, {v(vG)}")
        k("v_lshl_add_u32 v8, v7, 7, v8")
        k("v_and_b32 v9, 3, v1")
        k("v_lshl_add_u32 v8, v9, 3, v8")
        k("v_lshrrev_b32 v7, 1, v7")
        k(f"v_and_b32 v9, 1, {v(vG)}")
        k("v_lshl_add_u32 v7, v9, 1, v7")
        k(f"v_lshl_add_u32 {v(vTB)}, v7, 5, v8")
        for nb in range(1, 4):
            k(f"v_xor_b32 {v(vTB+nb)}, {32*nb}, {v(vTB)}")
        k("v_lshrrev_b32 v7, 5, v1")
        k(f"s_lshl_b32 s26, s{sW}, 1")
        k("v_or_b32 v7, s26, v7")
        k("v_bfe_u32 v8, v1, 1, 3")
        k("v_xor_b32 v7, v7, v8")
        k("v_and_b32 v8, 31, v1")
        k("v_lshlrev_b32 v8, 7, v8")
        k("v_lshl_add_u32 v7, v7, 4, v8")
        k(f"v_add_u32 {v(vXA)}, {XT}, v7")

    lines = capture(p3_consts)
    per = -(-len(lines) // (NS[4] + 1))
    for i in range(NS[4]):
        sload()
        slot()
    slot()
    k("s_add_u32 m0, s35, s55")
    last_real = vm.n - 1
    if TW:
        k.srd(12, 48, WGB)
        ld = touch_down(-1, 12)
        NT_ = k.lab("nt")
        k(f"s_cmp_eq_u32 s{sW}, 0")
        k(f"s_cbranch_scc1 {NT_}")
        k(ld)
        k.label(NT_)
    k.stamp()
    t4 = lambda r: f"v_and_b32 v{r}, v{r}, v{r+1}\nv_and_b32 v{r+2}, v{r+2}, v{r+3}\nv_and_b32 v{r}, v{r}, v{r+2}\nv_cmp_eq_u32 vcc, 0, v{r}"
    l4 = lambda r: f"buffer_load_dwordx4 v[{r}:{r+3}], v214, s[8:11], s58 offen sc1"
    if PIPE:
        spin0(l4, [216, 220, 224], t4, TW)
    else:
        spin(l4(216), t4(216))
    k.stamp()
    census = vm.op(cload)
    for hf in range(2):
        for t in range(7):
            if t == 6:
                k(f"s_cmp_eq_u32 s{sW}, 3")
                k(f"s_cselect_b32 s28, {224*4096 >> 6}, 0")
                k("s_cmp_lg_u32 s54, 0" if hf == 0 else "s_cmp_eq_u32 s54, 0")
                k("s_cselect_b32 s28, s28, 0")
                k("v_add_u32 v9, 16, v1")
                k("v_and_b32 v9, 64, v9")
                k("v_mad_u32_u24 v9, v9, s28, v6")
            bt_ld = vm.op(f"buffer_load_dwordx4 v{9 if t == 6 else 6}, s[8:11], s{51 if hf == 0 else 53} offen{LD} lds")
            if t < 6:
                k("s_add_u32 m0, m0, 4096")
                k("s_add_u32 s51, s51, s52" if hf == 0 else "s_sub_u32 s53, s53, s52")
        if hf == 0:
            bt_half = bt_ld
            k("s_mov_b32 s57, s55")
            k("s_sub_u32 s55, 28672, s55")
            k("s_add_u32 m0, s35, s55")
            k("v_xor_b32 v6, 0x6000, v6")
    vm.op(f"buffer_load_dword {v(vM)}, v11, s[8:11], s56 offen{LD}")
    p3_loads = vm.op(f"buffer_load_dword {v(vM+1)}, v11, s[8:11], s56 offen offset:512{LD}")
    sload(NS[5])
    k.srd(sA, 48, WGB)
    if SPLIT3:
        for nb in range(4):
            k(f"v_add_u32 {v(60+nb)}, s55, {v(vTB+nb)}")
            k(f"v_add_u32 {v(vTB+nb)}, s57, {v(vTB+nb)}")
        for p in range(4):
            k(f"v_mov_b32 {v(64+p)}, {v(vGm+24+p)}")
        k("s_cmp_lg_u32 s57, 0")
        k("s_cselect_b32 s58, 0xffff0000, 0")
        k("s_cselect_b32 s59, 0x80000000, 0")
        k("s_mov_b32 exec_lo, 0")
        k("s_mov_b32 exec_hi, s58")
        k(f"v_mov_b32 {v(vGm+27)}, 0x3f80")
        k("s_xor_b32 exec_hi, s58, 0xffff0000")
        k("v_mov_b32 v67, 0x3f80")
        k("s_mov_b64 exec, -1")
    CL, FAST, SLOW = k.lab("cl"), k.lab("fast"), k.lab("slow")
    k(f"s_mov_b32 s50, {SPIN_MAX}")
    vm.wait(census)
    k.label(CL)
    k("v_readfirstlane_b32 s52, v28")
    k("v_readfirstlane_b32 s53, v29")
    k(f"s_cmp_ge_u32 s{sXC}, 8")
    k("s_cselect_b32 s54, s53, s52")
    k(f"s_lshl_b32 s55, s{sXC}, 2")
    k("s_lshr_b32 s54, s54, s55")
    k("s_and_b32 s54, s54, 15")
    k(f"s_cmp_eq_u32 s54, {14 if not os.environ.get('SLOW') else 15}")
    k(f"s_cbranch_scc1 {FAST}")
    for r in (52, 53):
        k(f"s_lshr_b32 s54, s{r}, 4")
        k("s_and_b32 s54, s54, 0x0f0f0f0f")
        k(f"s_and_b32 s{r}, s{r}, 0x0f0f0f0f")
        k(f"s_add_u32 s{r}, s{r}, s54")
    k("s_add_u32 s52, s52, s53")
    k("s_mul_i32 s52, s52, 0x01010101")
    k("s_lshr_b32 s52, s52, 24")
    k("s_cmp_ge_u32 s52, 14")
    k(f"s_cbranch_scc1 {SLOW}")
    k("s_sub_u32 s50, s50, 1")
    k("s_cmp_eq_u32 s50, 0")
    k(f"s_cbranch_scc1 {SLOW}")
    k(cload)
    k("s_waitcnt vmcnt(0)")
    k(f"s_branch {CL}")
    state = (vm.n, vm.done, getattr(k, "_nst", 0), getattr(k, "_seq", 0))

    def rest(mode):
        vm.n, vm.done, k._nst, k._seq = state
        lg = Cnt(k, "lgkmcnt", 15)

        def arrive(off):
            vm.op(f"buffer_store_dword {v(vOne)}, off, s[8:11], s{sFI} offset:{off}{mode}")

        def pload(off):
            return f"buffer_load_dword v31, {v(vLP)}, s[8:11], s{sFL} offen offset:{off} sc1"

        def poll(off, mark=None):
            spin(pload(off), "v_cmp_eq_u32 vcc, 0, v31", mark)

        def put(q, cnt=1):
            for _ in range(cnt):
                if q:
                    e = q.pop(0)
                    e() if callable(e) else k("\n".join(e))

        vm.wait(bt_half if SPLIT3 else p3_loads)
        k("s_barrier")
        k.stamp()
        vR, vA = 88, 120
        seq = [(t, nb) for t in range(14) for nb in range(4)]

        def rd3(n):
            t, nb = seq[n]
            if SPLIT3 and n == 28:
                vm.wait(p3_loads)
                k("s_barrier")
            for u in range(2):
                if SPLIT3:
                    k(f"ds_read_b64_tr_b16 {v(vR+4*(n%8)+2*u,2)}, {v(vTB+nb if t < 7 else 60+nb)} offset:{(t%7)*4096+u*512}")
                else:
                    k(f"ds_read_b64_tr_b16 {v(vR+4*(n%8)+2*u,2)}, {v(vTB+nb)} offset:{t*4096+u*512}")

        DEPTH = 6
        for n in range(DEPTH):
            rd3(n)
        if TD:
            vm.op(touch_down(3, sA))
        for n in range(56):
            t, nb = seq[n]
            k(f"s_waitcnt lgkmcnt({2*min(DEPTH-1, 55-n)})")
            acc = vA + 16 * (t // 7) + 4 * nb
            gm = 64 if SPLIT3 and t == 13 else vGm + 4 * (t % 7)
            k(f"v_mfma_f32_16x16x32_bf16 {v(acc,4)}, {v(gm,4)}, {v(vR+4*(n%8),4)}, {'0' if t % 7 == 0 else v(acc,4)}")
            if n == 32 and not SPLIT3:
                k("s_mov_b32 exec_lo, 0")
                k("s_mov_b32 exec_hi, 0xffff0000")
                k(f"v_mov_b32 {v(vGm+27)}, 0x3f80")
                k("s_mov_b64 exec, -1")
            if n + DEPTH < 56:
                rd3(n + DEPTH)
        k.stamp(1) if FINE == 2 else None
        vX, vH, vHc, vU = 20, 32, 40, 48
        k(f"ds_read_b128 {v(vX,4)}, {v(vXA)}")
        k(f"ds_read_b128 {v(vX+4,4)}, {v(vXA)} offset:4096")
        k(f"s_mul_i32 s26, s{sRT}, 56")
        k(f"s_lshl2_add_u32 s27, s{sCT}, s{sW}")
        k("s_add_u32 s26, s26, s27")
        k("s_lshl_b32 s26, s26, 10")
        k(f"s_add_u32 s26, s26, {HC}")
        k(f"s_add_u32 s27, s26, {28*1024}")
        for r in range(0, 16, 2):
            k(f"v_pk_add_f32 {v(vA+r,2)}, {v(vA+r,2)}, {v(vA+16+r,2)} neg_hi:[0,1]")
        if SPLIT3:
            for r in range(1, 16, 2):
                k(f"v_xor_b32 {v(vA+r)}, s59, {v(vA+r)}")
        for p in range(2):
            for r in range(4):
                k(f"v_permlane16_swap_b32 {v(vA+8*p+r)}, {v(vA+8*p+4+r)}")
        k("s_waitcnt lgkmcnt(0)")
        for p in range(2):
            for q in range(4):
                k(f"v_lshlrev_b32 {v(vU+2*q)}, 16, {v(vX+4*p+q)}")
                k(f"v_and_b32 {v(vU+2*q+1)}, 0xffff0000, {v(vX+4*p+q)}")
            for e in range(0, 8, 2):
                k(f"v_pk_add_f32 {v(vA+8*p+e,2)}, {v(vA+8*p+e,2)}, {v(vU+e,2)}")
            for e in range(0, 8, 2):
                k(f"v_pk_add_f32 {v(vA+16+8*p+e,2)}, {v(vA+8*p+e,2)}, {v(vM,2)} op_sel:[0,{p}] op_sel_hi:[1,{p}] neg_lo:[0,1] neg_hi:[0,1]")
            for q in range(4):
                k(f"v_cvt_pk_bf16_f32 {v(vHc+4*p+q)}, {v(vA+16+8*p+2*q)}, {v(vA+17+8*p+2*q)}")
            hc_st = vm.op(f"buffer_store_dwordx4 {v(vHc+4*p,4)}, {v(vL16)}, s[8:11], s{26+p} offen{mode}")
        k.stamp(1) if FINE == 2 else None
        vm.wait(sid[55])
        k("s_barrier")
        k.stamp(1) if FINE == 2 else None
        sread(nr2, 28)
        k.stamp()
        vm.wait(hc_st)
        k("s_waitcnt lgkmcnt(0)")
        k.stamp(1) if FINE == 2 else None
        arrive(0)
        for p in range(2):
            for q in range(4):
                k(f"v_cvt_pk_bf16_f32 {v(vH+4*p+q)}, {v(vA+8*p+2*q)}, {v(vA+8*p+2*q+1)}")
            k(f"ds_write_b128 {v(vXA)}, {v(vH+4*p,4)} offset:{4096*p}")
        for p in range(2):
            k(f"v_mul_f32 {v(vM+p)}, {v(vA+16+8*p)}, {v(vA+16+8*p)}")
        for e in range(1, 8):
            for p in range(2):
                k(f"v_fmac_f32 {v(vM+p)}, {v(vA+16+8*p+e)}, {v(vA+16+8*p+e)}")
        k(f"s_lshl_b32 s26, s{sW}, 8")
        k(f"s_add_u32 s26, s26, {R2}")
        k(f"v_add_u32 v7, s26, {v(vL4)}")
        k(f"v_permlane32_swap_b32 {v(vM)}, {v(vM+1)}")
        k(f"v_add_f32 {v(vM)}, {v(vM)}, {v(vM+1)}")
        k(f"ds_write_b32 v7, {v(vM)}")
        sDL, sDG, sAB, sST1, sRG = 51, 53, 55, 57, 35
        vB1, vPA, vP1, vDG, vDT = 6, 11, 25, 8, 9
        k(f"s_mul_i32 s{sAB+1}, s{sRB}, 114688")
        k(f"s_add_u32 s{sAB+1}, s{sAB+1}, {HC}")
        k(f"s_mul_i32 s{sDL}, s{sW}, 28672")
        k(f"s_and_b32 s28, s{sW}, 1")
        k("s_mul_i32 s28, s28, 57344")
        k(f"s_lshr_b32 s26, s{sW}, 1")
        k(f"s_lshl_b32 s{sDL+1}, s26, 10")
        k(f"s_add_u32 s{sDL+1}, s{sDL+1}, s28")
        k(f"s_add_u32 s{sDG}, s{sAB+1}, s{sDL}")
        k(f"s_add_u32 s{sDG+1}, s{sAB+1}, s{sDL+1}")
        k(f"s_add_u32 s{sDG}, s{sDG}, s{sROT}")
        k(f"s_add_u32 s{sDG+1}, s{sDG+1}, s{sROT}")
        k(f"v_add_u32 {v(vB1)}, 57344, {v(vL16)}")
        k(f"s_mul_i32 s{sSS}, s{sRT}, 1792")
        k(f"s_add_u32 s{sSS}, s{sSS}, {SSP}")
        k(f"v_add_u32 v7, {R2}, {v(vL4)}")
        k(f"s_mul_i32 s{sHS}, s{sRB}, {4*112}")
        k(f"s_lshl1_add_u32 s{sHS}, s{sFB}, s{sHS}")
        k(f"s_lshl_b32 s{sHS}, s{sHS}, 10")
        k(f"s_add_u32 s{sHS}, s{sHS}, {HP}")
        k(f"v_lshlrev_b32 {v(vPA)}, 12, {v(vG)}")
        k(f"v_lshl_add_u32 {v(vPA)}, {v(vC)}, 4, {v(vPA)}")
        k(f"s_lshl_b32 s{sAB}, s{sRB}, 8")
        k(f"s_mul_i32 s{sHP}, s{sRT}, 224")
        k(f"s_mul_i32 s28, s{sW}, 28")
        k(f"s_add_u32 s{sHP}, s{sHP}, s28")
        k(f"s_lshl_b32 s{sHP}, s{sHP}, 10")
        k(f"s_add_u32 s{sHP}, s{sHP}, {HP}")
        k(f"s_mul_i32 s{sWD}, s{sW}, {448*896}")
        k(f"s_lshl_b32 s28, s{sCT}, 7")
        k(f"s_add_u32 s{sWD}, s{sWD}, s28")
        k(f"s_add_u32 s46, s{sCT}, s{sRT}")
        k(f"s_lshl_b32 s{sRG}, s{sW}, 13")
        k(f"s_add_u32 s{sRG}, s{sRG}, {RNG}")
        k(f"v_and_b32 v12, 1, {v(vG)}")
        k("v_and_b32 v13, 7, v1")
        k("v_lshlrev_b32 v14, 2, v12")
        k("v_xor_b32 v13, v13, v14")
        k("v_lshrrev_b32 v14, 3, v1")
        k("v_mul_u32_u24 v14, 0x380, v14")
        k(f"v_lshl_add_u32 {v(vDG)}, v13, 4, v14")
        k("v_bfe_u32 v13, v1, 2, 2")
        k("v_lshrrev_b32 v14, 5, v1")
        k("v_lshl_add_u32 v14, v14, 2, v13")
        k("v_lshrrev_b32 v13, 1, v13")
        k("v_lshlrev_b32 v13, 6, v13")
        k("v_lshl_add_u32 v13, v14, 7, v13")
        k("v_lshl_add_u32 v13, v12, 5, v13")
        k("v_and_b32 v14, 3, v1")
        k("v_lshl_add_u32 v13, v14, 3, v13")
        k(f"v_add_u32 {v(vDT)}, s{sRG}, v13")
        k(f"v_xor_b32 v26, 64, {v(vDT)}")
        k(f"v_add_u32 v56, s{sDL}, v13")
        k("v_xor_b32 v57, 64, v56")
        poll(0)
        k.stamp()
        uses = [(kp, b) for kp in range(KS) for b in range(4)]
        uses += [(kp, b) for kp in range(KS, 28) for b in (0, 2)]
        uB = len(uses)
        uses += [(kp, b) for kp in range(KS, 28) for b in (1, 3)]
        last_use = {kp: max(u for u, x in enumerate(uses) if x[0] == kp) for kp in range(28)}
        npair = (28 - KS) // 2
        Dm = []

        def dma():
            i = len(Dm)
            if i < KS:
                sel, off = 0, i * 1024
            else:
                sel, off = 1, ((i - KS) // npair) * 28672 + (KS + 2 * ((i - KS) % npair)) * 1024
            k(f"s_add_u32 m0, s{sDL+sel}, {off}")
            if ROTW and off % 28672 >= 4096:
                k(f"s_cmp_ge_u32 s{sROT}, {28672 - off % 28672}")
                k(f"s_cselect_b32 s28, {off - 28672 & 0xffffffff}, {off}".replace(f", {off}", ", s26") if False else f"s_cselect_b32 s28, 28672, 0")
                k(f"s_sub_u32 s28, s{sDG+sel}, s28")
                k(f"s_add_u32 s28, s28, {off}")
            else:
                k(f"s_add_u32 s28, s{sDG+sel}, {off}")
            Dm.append(vm.op(f"buffer_load_dwordx4 {v(vL16)}, s[8:11], s28 offen{LD} lds"))

        wd_regs = [(0, lambda o, n, i=i: a(224 + 8 * i + o, n)) for i in range(4)]
        wd_regs += [(0, lambda o, n, i=i: v(64 + 8 * i + o, n)) for i in range(8)]
        wd_regs += [(last_use[i] + 1, lambda o, n, i=i: a(8 * i + o, n)) for i in range(16)]
        n2 = min(KS, 8) // 2 * 2 if RING2 else 0
        free2 = 4 * KS + 2
        assert 4 * KS <= 56
        wdd, wdt = [], []
        shadow = [0]

        def quarter(dst, g, size, base):
            k(f"s_add_u32 s{dst}, s{46 if ROTD == 2 else sCT}, {g}")
            k(f"s_and_b32 s{dst}, s{dst}, 3")
            k(f"s_mul_i32 s{dst}, s{dst}, {size}")
            k(f"s_add_u32 s{dst}, s{dst}, s{base}")

        slots = [None] * (8 + n2)
        slot_of = []

        def wd_dma(now):
            n = len(wdd)
            if n == 56:
                return False
            free = [i for i, j in enumerate(slots) if (i < 8 or now >= free2) and
                    (j is None or (len(wdt) > 2 * j + 1 and wdt[2 * j + 1] < lg.done))]
            if not free:
                return False
            slots[free[0]] = n
            slot_of.append(free[0])
            k(f"s_add_u32 m0, s{sRG if free[0] < 8 else sDL}, {(free[0] % 8) * 1024}")
            if ROTD and n % 14 == 0:
                quarter(44, n // 14, 112 * 896, sWD)
            elif n:
                k(f"s_add_u32 s{44 if ROTD else sWD}, s{44 if ROTD else sWD}, {8*896}")
            wdd.append((vm.op(f"buffer_load_dwordx4 {v(vDG)}, s[{sA}:{sA+3}], s{44 if ROTD else sWD} offen lds"), max(now + WLAT, shadow[0])))
            return True

        def wd_tr(now, force=False):
            n = len(wdt)
            kp, u_, db = n // 4, (n >> 1) & 1, n & 1
            if n == 112 or len(wdd) <= 2 * kp + u_ or (not force and (wd_regs[kp][0] > now or wdd[2 * kp + u_][1] > now)):
                return False
            vm.wait(wdd[2 * kp + u_][0])
            sl = slot_of[2 * kp + u_]
            wdt.append(lg.op(f"ds_read_b64_tr_b16 {wd_regs[kp][1](4*db+2*u_, 2)}, v{(26 if db else vDT) if sl < 8 else 56 + db} offset:{(sl % 8) * 1024}"))
            return True

        aQ = 128
        hl = []

        def hload():
            n = len(hl)
            p, kp = n // 28, n % 28
            if p == 1:
                if kp == 0:
                    k(f"s_cmp_eq_u32 s{sHALF}, 0")
                    k("s_movk_i32 s58, 1024")
                    k(f"s_cselect_b32 s{sST1}, 0x4000, s58")
                    k(f"s_cselect_b32 s59, s{sAB}, s{sAB+1}")
                    k("s_cselect_b64 vcc, -1, 0")
                    k(f"s_mul_i32 s58, s{sW}, 28")
                    k(f"s_mul_i32 s58, s58, s{sST1}")
                    k("s_add_u32 s59, s59, s58")
                    k(f"v_cndmask_b32 {v(vP1)}, {v(vL16)}, {v(vPA)}, vcc")
                    k(f"s_mul_i32 s58, s{sST1}, 7")
                if ROTD and kp % 7 == 0:
                    quarter(45, kp // 7, "s58", 59)
                elif kp:
                    k(f"s_add_u32 s{45 if ROTD else 59}, s{45 if ROTD else 59}, s{sST1}")
                hl.append(vm.op(f"buffer_load_dwordx4 {a(aQ+4*(n%24),4)}, {v(vP1)}, s[8:11], s{45 if ROTD else 59} offen{LD}"))
                return
            if ROTD:
                if kp % 7 == 0:
                    quarter(45, kp // 7, 7168, sHP)
                if kp % 7 == 4:
                    k("s_add_u32 s45, s45, 4096")
                hl.append(vm.op(f"buffer_load_dwordx4 {a(aQ+4*(n%24),4)}, {v(vL16)}, s[8:11], s45 offen offset:{(kp%7%4)*1024}{LD}"))
                return
            hl.append(vm.op(f"buffer_load_dwordx4 {a(aQ+4*(n%24),4)}, {v(vL16)}, s[8:11], s{sHP} offen offset:{(kp%4)*1024}{LD}"))
            if kp % 4 == 3:
                k(f"s_add_u32 s{sHP}, s{sHP}, 4096")

        vF, vAcc, LOOK = 32, 128, 4
        accreg = {0: vAcc, 2: vAcc + 32, 1: vAcc + 64, 3: vAcc + 96}
        fr = {}

        def rd4(u):
            kp, b = uses[u]
            fr[u] = lg.op(f"ds_read_b128 {v(vF+4*(u%6),4)}, {v(vL16 if b < 2 else vB1)} offset:{(b&1)*28672+kp*1024}")

        last_st = [None]
        clock = [0]

        def hp_store(b, u):
            vo, off, pol = vL16, u * 1024, mode
            if b == 1:
                vo, off = vPA, 0
                k(f"s_lshl_b32 s38, s{sFB}, 15\ns_add_u32 s38, s38, s{sAB}" if u == 0 else "s_add_u32 s38, s38, 16384")
            elif b == 3:
                if u == 0:
                    k(f"s_lshl_b32 s38, s{sFB}, 11\ns_add_u32 s38, s38, s{sAB+1}")
            else:
                pol = " sc1" if MA else mode
                if u == 0:
                    k(f"s_add_u32 s38, s{sHS}, {b*112*1024}")
            last_st[0] = vm.op(f"buffer_store_dwordx4 {v(accreg[b]+4*u,4)}, {v(vo)}, s[8:11], s38 offen offset:{off}{pol}")
            shadow[0] = clock[0] + (20 if pol else 11)

        def epilogue(ps):
            items = [(b, r) for b in (ps, ps + 2) for r in range(8)]
            out = []
            for i in range(len(items) + 1):
                grp = []
                if i < len(items):
                    b, r = items[i]
                    g_, u_ = accreg[b], accreg[b] + 16
                    grp += [f"v_mul_f32 {v(u_+2*r)}, {v(g_+2*r)}, {v(u_+2*r)}",
                            f"v_mul_f32 {v(u_+2*r+1)}, {v(g_+2*r+1)}, {v(u_+2*r+1)}"]
                if i > 0:
                    b, r = items[i - 1]
                    grp.append(f"v_cvt_pk_bf16_f32 {v(accreg[b]+r)}, {v(accreg[b]+16+2*r)}, {v(accreg[b]+17+2*r)}")
                out.append(grp)
                if i > 0 and items[i - 1][1] % 4 == 3:
                    out.append(lambda b=items[i - 1][0], u=items[i - 1][1] // 4: hp_store(b, u))
            return out

        chunks = eval(os.environ.get("CHUNKS", "{0: 2, 3: 6, 7: 15, 16: 27}"))
        for _ in range(NDMA0):
            dma()
        k("s_waitcnt lgkmcnt(0)")
        vm.wait(Dm[chunks[0]])
        k("s_barrier")
        k.stamp()
        for u in range(LOOK):
            rd4(u)
        epi = epilogue(0)
        checked = False
        for u in range(112):
            kp, b = uses[u]
            clock[0] = u
            if (u + LOOK) % 4 == 0 and (u + LOOK) // 4 in chunks:
                vm.wait(Dm[chunks[(u + LOOK) // 4]])
                k("s_barrier")
            if n2 and u == free2:
                k("s_barrier")
            if u == uB + DRAIN_A:
                assert not epi
                vm.wait(last_st[0])
                arrive(256)
            if u == uB + POLL_A:
                markA = vm.op(pload(256))
            if u == uB + CHECK_A:
                poll(256, markA)
                checked = True
            if u == 1:
                lg.op("ds_read2st64_b32 v[12:13], v7 offset1:1")
                ssr = lg.op("ds_read2st64_b32 v[14:15], v7 offset0:2 offset1:3")
                k(f"s_lshl_b32 s26, s{sCT}, 8")
                k(f"s_add_u32 s26, s26, s{sSS}")
            if u == 5:
                lg.wait(ssr)
                k("v_add_f32 v12, v12, v13")
                k("v_add_f32 v14, v14, v15")
                k("v_add_f32 v12, v12, v14")
                vm.op(f"buffer_store_dword v12, {v(vL4)}, s[8:11], s26 offen{mode}")
            if u % 2 == 0:
                lg.wait(fr[u + 1])
            busy = u >= uB + 1 and bool(epi)
            for m in range(2):
                acc = accreg[b] + 16 * m
                k(f"v_mfma_f32_32x32x16_bf16 {v(acc,16)}, {a(8*kp+4*m,4)}, {v(vF+4*(u%6),4)}, {'0' if kp == 0 else v(acc,16)}")
                if m == 0:
                    if u + LOOK < 112:
                        rd4(u + LOOK)
                    wd_tr(u)

                    def memop():
                        if len(Dm) < 16 and u % DRATE != DRATE - 1:
                            dma()
                        elif checked and len(hl) < RING and last_use[16 + len(hl) // 2] < u:
                            hload()
                        elif not (u % 3 != 2 and wd_dma(u)):
                            dma() if len(Dm) < 28 else wd_dma(u)

                    if busy:
                        put(epi)
                    n0 = vm.n
                    held = capture(memop)
                    k("\n".join(held[:-1]))
                    vm.n, n1 = n0, vm.n
                else:
                    k("\n".join(held[-1:]))
                    vm.n = n1
                    if busy:
                        put(epi)
                    else:
                        wd_tr(u)
                if os.environ.get("TL") and m == 1 and not mode:
                    print(u, len(Dm), len(wdd), len(wdt), file=sys.stderr)
            if u in P4ST:
                k.stamp(1)
            if u == uB - 1 or u == 111:
                k.stamp()
        print("after P4: ring loads", len(wdd), "transposed reads", len(wdt), "h loads", len(hl), file=sys.stderr)
        vRW, vRR, vR2, vHR, vSP = 12, 20, 22, 24, 32
        vAc5, vT5 = 128, 192
        fill = epilogue(1)
        clock[0] = -999
        if not checked:
            assert EPI_B0 <= 14
            put(fill, EPI_B0)
            poll(256, markA)
        while len(fill) > EPIB:
            if len(hl) < 8:
                hload()
            put(fill, 2)
        rest_epi = fill
        fill = [["v_and_b32 v6, 31, v1", "v_lshrrev_b32 v7, 5, v1", "v_and_b32 v27, 7, v1", "v_xor_b32 v7, v7, v27"],
                [f"s_lshl_b32 s26, s{sW}, 13", "v_lshlrev_b32 v7, 4, v7", "v_lshl_add_u32 v7, v6, 8, v7", f"v_add_u32 {v(vRW)}, s26, v7"],
                [f"v_xor_b32 {v(vRW+i)}, {32*i}, {v(vRW)}" for i in range(1, 5)],
                [f"v_xor_b32 {v(vRW+i)}, {32*i}, {v(vRW)}" for i in range(5, 8)],
                ["v_lshrrev_b32 v6, 3, v1", f"s_and_b32 s26, s{sW}, 1", "s_lshl_b32 s26, s26, 2", f"v_xor_b32 v7, v27, {v(vG)}",
                 "v_xor_b32 v7, s26, v7"],
                ["v_lshlrev_b32 v7, 1, v7", "v_xor_b32 v7, v7, v6", f"s_lshl_b32 s26, s{sW}, 11", "v_lshlrev_b32 v7, 4, v7"],
                ["v_lshl_add_u32 v7, v6, 8, v7", f"v_add_u32 {v(vRR)}, s26, v7", f"v_xor_b32 {v(vRR+1)}, 16, {v(vRR)}"],
                [f"s_lshl_b32 s26, s{sW}, 10", f"s_add_u32 s26, s26, {XT}", f"v_add_u32 {v(vHR)}, s26, {v(vL16)}",
                 f"s_lshl_b32 s26, s{sW}, 5", "v_lshl_add_u32 v28, v6, 2, s26"]]
        ssl = []

        def ssload(i):
            for j in range(2 * i, min(2 * i + 2, 7)):
                ssl.append(vm.op(f"buffer_load_dword {v(vSP+j)}, {v(vL4)}, s[8:11], s{sSS} offen offset:{256*j}{LD}"))

        fill = rest_epi + fill + [lambda i=i: ssload(i) for i in range(4)]
        r2calc = [[f"v_add_f32 {v(vSP)}, {v(vSP)}, {v(vSP+1)}", f"v_add_f32 {v(vSP+2)}, {v(vSP+2)}, {v(vSP+3)}",
                   f"v_add_f32 {v(vSP+4)}, {v(vSP+4)}, {v(vSP+5)}", f"v_add_f32 {v(vSP)}, {v(vSP)}, {v(vSP+6)}"],
                  [f"v_add_f32 {v(vSP+2)}, {v(vSP+2)}, {v(vSP+4)}", f"v_mov_b32 {v(vSP+1)}, {f2u(EPS)}",
                   f"v_add_f32 {v(vSP)}, {v(vSP)}, {v(vSP+2)}", f"v_fmac_f32 {v(vSP+1)}, {f2u(1.0/448)}, {v(vSP)}"],
                  [f"v_rcp_f32 {v(vSP)}, {v(vSP+1)}", "v_add_u32 v29, 128, v28"],
                  [f"ds_bpermute_b32 {v(vR2)}, v28, {v(vSP)}", f"ds_bpermute_b32 {v(vR2+1)}, v29, {v(vSP)}"]]

        def red_write(p):
            q_ = [[f"ds_write_b128 {v(vRW+i)}, {v(vAc5+32*p+4*i,4)} offset:{p*32768}"] for i in range(8)]
            return q_ + [[f"ds_read_b128 {v(vT5+32,4)}, {v(vHR)} offset:{p*4096}"]]

        def red_read(p):
            q_ = [["s_waitcnt lgkmcnt(0)", "s_barrier"] +
                  [f"ds_read_b128 {v(vT5+4*z,4)}, {v(vRR+z)} offset:{p*32768}" for z in range(2)]]
            for j in range(1, 4):
                q_.append([f"ds_read_b128 {v(vT5+8*j+4*z,4)}, {v(vRR+z)} offset:{p*32768+j*8192}" for z in range(2)])
            for h2 in range(2):
                q_.append([t_ for q in (2 * h2, 2 * h2 + 1) for t_ in
                           (f"v_lshlrev_b32 {v(vT5+36+2*q)}, 16, {v(vT5+32+q)}",
                            f"v_and_b32 {v(vT5+37+2*q)}, 0xffff0000, {v(vT5+32+q)}")])
            for j, (d_, s_) in enumerate(((0, 8), (16, 24), (0, 16))):
                for h2 in range(2):
                    q_.append(([f"s_waitcnt lgkmcnt({4 if j == 0 else 0})"] if h2 == 0 and j < 2 else []) +
                              [f"v_add_f32 {v(vT5+d_+r)}, {v(vT5+d_+r)}, {v(vT5+s_+r)}" for r in range(4 * h2, 4 * h2 + 4)])
            for h2 in range(2):
                q_.append([f"v_fmac_f32 {v(vT5+36+r)}, {v(vT5+r)}, {v(vR2+p)}" for r in range(4 * h2, 4 * h2 + 4)])
            q_.append([f"v_cvt_pk_bf16_f32 {v(vT5+8+q)}, {v(vT5+36+2*q)}, {v(vT5+37+2*q)}" for q in range(4)])
            q_.append(lambda: vm.op(f"buffer_store_dwordx4 {v(vT5+8,4)}, {v(vXO)}, s[16:19], s{sXO+p} offen{SCO}"))
            return q_

        if P5ST:
            k.stamp(1)
        for n in range(56):
            p, kp = n // 28, n % 28
            now = 112 + n
            if n == DRAIN_B:
                assert len(wdt) == 112 or not n2
                lg.wait(wdt[-1])
                vm.wait(last_st[0])
                arrive(512)
            if n == POLL_B:
                markB = vm.op(pload(512))
            if n == CHECK_B:
                k.stamp()
                poll(512, markB)
            if n == 22:
                assert len(wdt) == 112
                vm.wait(ssl[6])
                fill += r2calc
            if n == LATE and F_LATE in WBL:
                k(f"s_add_u32 s26, s{sFI}, {F_LATE}")
                vm.op(f"buffer_store_dword {v(vOne)}, off, s[8:11], s26{mode}")
            if n == 28:
                assert not fill
                fill = red_write(0)
                while fill:
                    if len(hl) < 28 + RING1:
                        hload()
                    put(fill, 2)
            if n == RED0:
                fill = red_read(0)
            if p == 0:
                while len(wdt) < 4 * kp + 4:
                    assert wd_tr(now, True)
                lg.wait(wdt[4 * kp + 3])
            vm.wait(hl[n])
            for dl in range(2):
                acc = vAc5 + 32 * p + 16 * dl
                k(f"v_mfma_f32_32x32x16_bf16 {v(acc,16)}, {wd_regs[kp][1](4*dl, 4)}, {a(aQ+4*(n%24),4)}, {'0' if kp == 0 else v(acc,16)}")
                if len(wdt) < 112:
                    if len(wdt) >= 8:
                        lg.wait(wdt[-8])
                    wd_tr(now)
                    if dl == 1:
                        wd_dma(now)
                if dl == 0:
                    if len(hl) < (28 if n < CHECK_B else 56) and len(hl) < n + 24:
                        hload()
                    else:
                        put(fill)
                else:
                    put(fill, 2 if n < (EPIB + 1) // 2 + 2 * (EPIB > 15) else 1)
            if n in P5ST:
                k.stamp(1)
        k.stamp()
        put(fill, 99)
        put(red_write(1), 99)
        put(red_read(1), 99)
        if k.prof:
            k("s_waitcnt vmcnt(0)")
        k.stamp_flush(6, PROF, sW)
        k("s_endpgm")

    k.label(FAST)
    rest("")

    k.label(SPARE)
    vm.n = vm.done = 0
    k._nst = min(1, getattr(k, "_nst", 0))
    sE = 21
    k(f"s_sub_u32 s{sE}, s2, 224")
    k(f"v_lshlrev_b32 {v(vL16)}, 4, v1")
    k("v_lshlrev_b32 v6, 7, v1")
    k("s_waitcnt lgkmcnt(0)")
    k.srd(8, 6, WS_BYTES)
    NZ = k.lab("nz")
    k(f"s_cmp_lt_u32 s{sE}, 24")
    k(f"s_cbranch_scc1 {NZ}")
    for j in range(4):
        k(f"v_mov_b32 v{108+j}, 0")
    k(f"s_sub_u32 s34, s{sE}, 24")
    k(f"s_lshl2_add_u32 s33, s34, s{sW}")
    k("s_lshl_b32 s33, s33, 11")
    k(f"s_add_u32 s33, s33, {FL}")
    k(f"buffer_store_dwordx4 v[108:111], {v(vL16)}, s[8:11], s33 offen sc1")
    k(f"buffer_store_dwordx4 v[108:111], {v(vL16)}, s[8:11], s33 offen offset:1024 sc1")
    k("v_mov_b32 v2, 1")
    k("s_lshl_b32 s34, s34, 2")
    k("v_mov_b32 v5, s34")
    k("s_waitcnt vmcnt(0)")
    k("s_barrier")
    wave0(f"global_store_dword v5, v2, s[{sDBG}:{sDBG+1}] sc1", 1)
    k.label(NZ)
    k.stamp(-1)
    k(f"s_lshr_b32 s22, s{sE}, 3")
    k(f"s_lshl2_add_u32 s22, s22, s{sW}")
    k("s_lshl_b32 s23, s22, 13")
    k.srd(12, 52, WGB)
    k.srd(16, 54, WGB)
    k.srd(24, 56, WGB)
    k.srd(28, 58, XB)
    n = [0]

    def touch(srd, soff, vo=6):
        k(f"buffer_load_dword v{8 + n[0] % 48}, v{vo}, s[{srd}:{srd+3}], s{soff} offen ; alt")
        n[0] += 1

    for job in SP_LIST:
        if job == "G":
            for off in range(SP_D0 * 3584, SP_D1 * 3584, 16 * 8192):
                k(f"s_add_u32 s40, s23, {off}")
                touch(12, 40)
                touch(16, 40)
        if job == "X":
            nt = 2 * len(range(SP_D0 * 3584, WGB, 16 * 8192))
            k("s_and_b32 s42, s2, 7")
            k(f"s_mov_b32 s46, {WGB}")
            k("s_mov_b32 s47, 0x20000")
            for i in range(-(-nt // WIN) * WIN):
                k(f"s_add_u32 s40, s42, {i}")
                k(f"s_and_b32 s40, s40, {WIN - 1}")
                k(f"s_add_u32 s40, s40, {i // WIN * WIN}")
                k("s_bitcmp1_b32 s40, 0")
                k("s_cselect_b32 s44, s16, s12")
                k("s_cselect_b32 s45, s17, s13")
                k("s_lshr_b32 s40, s40, 1")
                k("s_lshl_b32 s40, s40, 17")
                k("s_add_u32 s40, s40, s23")
                k(f"s_add_u32 s40, s40, {SP_D0*3584}")
                touch(44, 40)
        if job == "H":
            k("v_lshrrev_b32 v7, 4, v1")
            k("v_mul_u32_u24 v7, 0xe00, v7")
            k("v_and_b32 v5, 15, v1")
            k("v_min_u32 v5, 13, v5")
            k("v_lshl_add_u32 v7, v5, 7, v7")
            k("s_and_b32 s41, s2, 1")
            k("s_mul_i32 s41, s41, 1792")
            k(f"s_mul_i32 s40, s22, {4*3584}")
            k("s_add_u32 s41, s41, s40")
            for d0 in range(SP_D0, 448, 64):
                k(f"s_add_u32 s40, s41, {d0*3584}")
                touch(12, 40, 7)
                touch(16, 40, 7)
        if job == "d":
            k("s_and_b32 s40, s2, 7")
            k(f"s_mul_i32 s40, s40, {3*8*8192 if ROTS else 0}")
            k("s_add_u32 s40, s40, s23")
            for off in range(0, WGB, 16 * 8192):
                touch(24, 40)
                k(f"s_add_u32 s40, s40, {16*8192}")
                k(f"s_cmp_ge_u32 s40, {13*16*8192}")
                k(f"s_cselect_b32 s41, {13*16*8192}, 0")
                k("s_sub_u32 s40, s40, s41")
        if job == "R":
            k("s_and_b32 s42, s2, 7")
            k(f"s_min_u32 s42, s42, {6 if ROTW else 0}")
            k("s_lshl_b32 s42, s42, 2")
            k("s_min_u32 s43, s22, 13")
            k("s_cmp_ge_u32 s43, 7")
            k("s_cselect_b32 s44, s16, s12")
            k("s_cselect_b32 s45, s17, s13")
            k("s_cselect_b32 s41, 7, 0")
            k("s_sub_u32 s43, s43, s41")
            k("s_lshl_b32 s43, s43, 13")
            k(f"s_mov_b32 s46, {WGB}")
            k("s_mov_b32 s47, 0x20000")
            for kp in range(SP_K, 28):
                k(f"s_add_u32 s40, s42, {kp}")
                k("s_cmp_ge_u32 s40, 28")
                k("s_cselect_b32 s41, 28, 0")
                k("s_sub_u32 s40, s40, s41")
                k("s_mul_i32 s40, s40, 57344")
                k("s_add_u32 s40, s40, s43")
                touch(44, 40)
        if job == "e":
            for off in range(0, 192 * 896, 16 * 8192):
                for q in range(4):
                    k(f"s_add_u32 s40, s23, {off}")
                    k(f"s_min_u32 s40, s40, {192*896 - 8192}")
                    k(f"s_add_u32 s40, s40, {q*448*896}")
                    touch(24, 40)
        if job == "h":
            k("s_and_b32 s41, s2, 7")
            k(f"s_mul_i32 s41, s41, {8*112*1024}")
            k(f"s_add_u32 s41, s41, {HP}")
            k("s_min_u32 s42, s22, 13")
            k("s_lshl_b32 s42, s42, 13")
            k("s_add_u32 s41, s41, s42")
            for blk in range(4):
                touch(8, 41)
                k(f"s_add_u32 s41, s41, {2*112*1024}")
        if job in "aw":
            k(f"s_lshl2_add_u32 s40, s{sE}, s{sW}")
            k("s_lshl_b32 s40, s40, 13")
            k(f"s_add_u32 s40, s40, {AT if job == 'a' else WT}")
            touch(8, 40)
            k("s_add_u32 s40, s40, 0x100000")
            k(f"s_min_u32 s40, s40, {(AT if job == 'a' else WT) + 223*8192}")
            touch(8, 40)
        if job == "o":
            k(f"s_lshl2_add_u32 s40, s{sE}, s{sW}")
            k("s_lshl_b32 s40, s40, 13")
            touch(28, 40)
            k("s_add_u32 s40, s40, 0x100000")
            touch(28, 40)
    if k.prof:
        k("s_waitcnt vmcnt(0)")
        k.stamp_flush(6, PROF, sW, 2)
    if WBL:
        k("s_cmp_lg_u32 s22, 0")
        k(f"s_cbranch_scc1 {END}")
        k("v_lshlrev_b32 v3, 2, v1")
        k("v_min_u32 v7, 28, v3")
        vm.n = vm.done = 0
        spin(f"global_load_dword v112, v7, s[{sDBG}:{sDBG+1}] sc1", "v_cmp_eq_u32 vcc, 0, v112")
        k("v_min_u32 v3, 220, v3")
        k("s_and_b32 s22, s2, 7")
        k("s_lshl_b32 s22, s22, 11")
        k(f"s_add_u32 s22, s22, {FL}")
        k(f"s_mov_b32 s23, {SPIN_MAX}")
        for off in WBL:
            lp = k.lab("wl")
            if off == F_LATE:
                k(f"s_add_u32 s22, s22, {F_LATE}")
                off = 0
            k.label(lp)
            k(f"buffer_load_dword v4, v3, s[8:11], s22 offen offset:{off} sc1")
            k(f"buffer_load_dword v5, v3, s[8:11], s22 offen offset:{off+1024} sc1")
            k("s_sub_u32 s23, s23, 1")
            k("s_waitcnt vmcnt(0)")
            k("s_cmp_eq_u32 s23, 0")
            k(f"s_cbranch_scc1 {END}")
            k("v_and_b32 v4, v4, v5")
            k("v_cmp_eq_u32 vcc, 0, v4")
            k("s_nop 0")
            k(f"s_cbranch_vccnz {lp}")
            k("buffer_wbl2 sc1")
            k("s_waitcnt vmcnt(0)")
    k.label(END)
    k("s_endpgm")
    for o in outline:
        k(o)
    del outline[:]
    k.label(SLOW)
    rest(" sc1")
    for o in outline:
        k(o)
    return k


def build(k, as_list=False):
    body, desc = k.emit()
    print(k.stats, file=sys.stderr)
    head = ["; Fused preLN + GFNet spectral filter + preLN bilinear GLU in one launch (generated by gen/one.py)",
            "; kernarg: 0 A_x, 8 A_w_r, 16 A_w_i, 24 B_x (unused), 32 w_gate, 40 w_up, 48 w_down, 56 out, 64 debug, 72 ws",
            f"; @launch {'kernel=' + k.name + ' ' if as_list else ''}grid=(256,1,1) block=(256,1,1) lds={LDS}",
            '.amdgcn_target "amdgcn-amd-amdhsa--gfx950"', ".text"]
    return "\n".join(head + [body, '.section .rodata,"a"', ".p2align 6", desc]) + "\n"


if __name__ == "__main__":
    if "--prof" in sys.argv:
        Kern.prof = True
        sys.argv.remove("--prof")
    path = sys.argv[1] if len(sys.argv) > 1 else "sequential_preLN__spectral_gfnet__glu_gated_bilinear__prompt.s"
    open(path, "w").write(build(gen(), as_list=len(sys.argv) > 1))
```

```python
import os
import struct
import sys
from asmlib import Kern, v, a

NAME = "sequential_preLN__spectral_gfnet__glu_gated_bilinear__prompt_kernel"
S, D, F = 2048, 448, 1792
AT = BT = 0x000000
WT = HC = 0x200000
HP = 0x400000
M1 = 0xB00000
SSP = 0xB02000
FL = 0xB10000
WS_BYTES = 0xB20000
F_LATE, F_FB, F_P1, F_SP = 16384, 32768, 40960, 45056
PROF = 0x1800000
XB, WRB, WGB = S * D * 2, S * 225 * 2, D * F * 2
EPS = 1e-5
STG, XT, R2, RNG = 57344, 114688, 122880, 123904
LDS = RNG + 32768
SPIN_MAX = 1 << 18

E = lambda n, d: int(os.environ.get(n, d))
KS = E("KS", 4)
DRAIN_A, POLL_A, CHECK_A = E("DRAIN_A", 30), E("POLL_A", 38), E("CHECK_A", 42)
DRAIN_B, POLL_B, CHECK_B = E("DRAIN_B", 13), E("POLL_B", 21), E("CHECK_B", 26)
EPI_B0, RING, RING1, RED0, LATE = E("EPI_B0", 10), E("RING", 12), E("RING1", 8), E("RED0", 31), E("LATE", 46)
MA, NDMA0, WLAT = E("MA", 1), E("NDMA0", 7), E("WLAT", 10)
NP = [int(x) for x in os.environ.get("NP", "0,6,10").split(",")]
NS = [sum(NP)] + [int(x) for x in os.environ.get("NS", "6,6,6,14,8").split(",")]
WBL = eval(os.environ.get("WBL", "(F_LATE,)"))
SP_LIST = os.environ.get("SP_LIST", "cGd")
SP_D0, SP_K = E("SP_D0", 64), E("SP_K", 18)
TALL, TD, ROTW, ROTS = E("TALL", 0), E("TD", 0), E("ROTW", 0), E("ROTS", 1)
ROTD = E("ROTD", 1)
SCO = os.environ.get("SCO", " sc1")
TPM, TPS, PIPE = E("TPM", 0), E("TPS", 0), E("PIPE", 9)
DRATE = E("DRATE", 2)
TW, T1 = E("TW", 0), E("T1", 0)
SPLIT3, WFLAG = E("SPLIT3", 1), E("WFLAG", 1)
MAPB = E("MAPB", 0)
RING2 = E("RING2", 1)
ZFIRST = E("ZFIRST", 1)
SPS = os.environ.get("SPS", " sc1")
FINE = E("FINE", 0)
LD = os.environ.get("LD", " sc1")
WIN = E("WIN", 8)
SP_D1 = E("SP_D1", 350)
EPIB = E("EPIB", 0)
TAILR = E("TAILR", 0)
MB = E("MB", 0)
DBGT = E("DBGT", 0)
ZOFF = " offset:64" if DBGT else ""
P4ST = eval(os.environ.get("P4ST", "()"))
P5ST = eval(os.environ.get("P5ST", "()"))
assert sum(NS) == 56 and NS[0] <= 22 and sum(NS[1:4]) <= 22 and sum(NS[4:]) <= 22


def f2u(x):
    return "0x%08x" % struct.unpack("<I", struct.pack("<f", x))[0]


class Cnt:
    def __init__(self, k, name, lim):
        self.k, self.name, self.lim, self.n, self.done = k, name, lim, 0, 0

    def op(self, text):
        self.k(text)
        self.n += 1
        return self.n - 1

    def wait(self, idx):
        if idx < self.done:
            return
        c = min(self.n - idx - 1, self.lim)
        self.k(f"s_waitcnt {self.name}({c})")
        self.done = self.n - c

    def all(self):
        self.wait(self.n - 1)


def cmul8(k, y, x, c, sn, sign):
    neg = " neg_lo:[1,0,0] neg_hi:[1,0,0]"
    for e in range(0, 8, 2):
        k(f"v_pk_mul_f32 {v(y+e,2)}, {v(x+e,2)}, {v(c+e,2)}")
        k(f"v_pk_mul_f32 {v(y+8+e,2)}, {v(x+8+e,2)}, {v(c+e,2)}")
    for e in range(0, 8, 2):
        k(f"v_pk_fma_f32 {v(y+e,2)}, {v(x+8+e,2)}, {v(sn+e,2)}, {v(y+e,2)}" + (neg if sign > 0 else ""))
        k(f"v_pk_fma_f32 {v(y+8+e,2)}, {v(x+e,2)}, {v(sn+e,2)}, {v(y+8+e,2)}" + ("" if sign > 0 else neg))


def gen():
    k = Kern(NAME, 0, 0)
    vm = Cnt(k, "vmcnt", 63)
    END, SPARE = k.lab("end"), k.lab("spare")
    sW, sRB, sCT, sHALF, sRT, sFB = 20, 21, 22, 23, 24, 25
    sSB, sXO, sWG, sFL, sWD, sHS, sHP, sFI = 29, 30, 32, 33, 34, 36, 37, 39
    sA, sB = 40, 44
    sXC, sSS, sDBG, sROT, sWE = 60, 61, 62, 3, 38
    vL16, vG, vC, vL4, vOne, vLP = 3, 4, 5, 30, 2, 0
    vWG, vWT = 250, 251
    outline = []

    def touch_down(first, srd):
        k(f"s_and_b32 s26, s{sRT}, 3")
        k("s_mul_i32 s26, s26, 7")
        k(f"s_add_u32 s26, s26, s{sW}")
        k(f"s_mul_i32 s26, s26, {64*896}")
        k(f"s_lshl_b32 s27, s{sCT}, 7")
        k("s_add_u32 s26, s26, s27")
        k(f"s_add_u32 s26, s26, {first*64*896 & 0xffffffff}")
        k("v_mul_u32_u24 v244, 0x380, v1")
        return f"buffer_load_dword v{245 + (first > 0)}, v244, s[{srd}:{srd+3}], s26 offen"

    def capture(fn):
        saved, k.lines = k.lines, []
        fn()
        out, k.lines = k.lines, saved
        return out

    def spin(load, test, mark=None):
        loop, done = k.lab("poll"), k.lab("done")
        if mark is None:
            mark = vm.op(load)
        vm.wait(mark)
        k(test)
        k(f"s_mov_b32 s50, {SPIN_MAX}")
        k(f"s_cbranch_vccnz {loop}")
        k.label(done)
        outline.append(f"{loop}:\n{load}\ns_sub_u32 s50, s50, 1\ns_waitcnt vmcnt(0)\ns_cmp_eq_u32 s50, 0\n"
                       f"s_cbranch_scc1 {done}\n{test}\ns_nop 0\ns_cbranch_vccnz {loop}\ns_branch {done}")

    def spin0(load, regs, test, extra=0):
        loop, done, skip = k.lab("pp"), k.lab("pd"), k.lab("ps")
        n = len(regs)
        k(f"s_cmp_lg_u32 s{sW}, 0")
        k(f"s_cbranch_scc1 {skip}")
        k(f"s_mov_b32 s50, {SPIN_MAX}")
        for r in regs[:-1]:
            k(load(r) + " ; alt")
            if PIPE < 9:
                k(f"s_sleep {PIPE}")
        k.label(loop)
        for i in range(n):
            k(load(regs[(i - 1) % n]) + " ; alt")
            k(f"s_waitcnt vmcnt({n - 1})")
            k(test(regs[i]))
            k("s_nop 0")
            k(f"s_cbranch_vccz {done}")
        k("s_sub_u32 s50, s50, 1")
        k("s_cmp_lg_u32 s50, 0")
        k(f"s_cbranch_scc1 {loop}")
        k.label(done)
        k.label(skip)
        if extra:
            k(f"s_waitcnt vmcnt({extra})")
            vm.done = vm.n
        else:
            vm.all()
        k("s_barrier")

    def wave0(lines, mask):
        skip = k.lab("skip")
        k(f"s_cmp_lg_u32 s{sW}, 0")
        k(f"s_cbranch_scc1 {skip}")
        k(f"s_mov_b64 exec, {mask}")
        k(lines)
        k("s_mov_b64 exec, -1")
        k.label(skip)

    k("s_load_dwordx2 s[4:5], s[0:1], 0")
    k("s_load_dwordx4 s[44:47], s[0:1], 8")
    k("s_load_dwordx4 s[52:55], s[0:1], 32")
    k("s_load_dwordx4 s[56:59], s[0:1], 48")
    k(f"s_load_dwordx2 s[{sDBG}:{sDBG+1}], s[0:1], 64")
    k("s_load_dwordx2 s[6:7], s[0:1], 72")
    if "c" in SP_LIST:
        here, noc = k.lab("pc"), k.lab("noc")
        k("s_and_b32 s3, s2, 0xffffffe0")
        k("s_cmp_lg_u32 s3, 224")
        k(f"s_cbranch_scc1 {noc}")
        k("s_getpc_b64 s[8:9]")
        k.label(here)
        k("s_bfe_u32 s3, s2, 0x20003")
        k("v_lshrrev_b32 v1, 2, v0")
        k("s_lshl_b32 s3, s3, 13")
        k("v_lshl_add_u32 v1, v1, 7, s3")
        k("global_load_dword v113, v1, s[8:9] ; alt")
        k.label(noc)
    k("s_cmp_ge_u32 s2, 256")
    k(f"s_cbranch_scc1 {END}")
    k.stamp()
    k("v_lshrrev_b32 v2, 6, v0")
    k("v_and_b32 v1, 63, v0")
    k(f"v_readfirstlane_b32 s{sW}, v2")
    k("s_cmp_ge_u32 s2, 224")
    k(f"s_cbranch_scc1 {SPARE}")
    k("s_lshr_b32 s26, s2, 3")
    k("s_mul_i32 s27, s26, 37")
    k("s_lshr_b32 s27, s27, 8")
    k("s_and_b32 s28, s2, 7")
    k(f"s_lshl2_add_u32 s{sRT}, s28, s27")
    k("s_mul_i32 s28, s27, 7")
    k(f"s_sub_u32 s{sCT}, s26, s28")

    k("v_lshrrev_b32 v4, 5, v1")
    k("v_bfe_u32 v5, v1, 3, 2")
    k("v_lshl_add_u32 v4, v4, 4, v5")
    k("v_mul_u32_u24 v4, 0x7000, v4")
    k("v_lshrrev_b32 v5, 4, v1")
    k("v_and_b32 v6, 7, v1")
    k("v_xor_b32 v6, v6, v5")
    k("v_lshl_add_u32 v2, v6, 4, v4")
    k("v_xor_b32 v3, 64, v2")
    k(f"v_add_u32 v3, {32*32*896}, v3")
    k(f"s_lshl_b32 s26, s{sW}, 7")
    k(f"s_add_u32 s26, s26, s{sRT}")
    k("s_mul_i32 s26, s26, 896")
    k(f"s_lshl_b32 s27, s{sW}, 11")
    vB, vST, vE, vSG, vT, vF, vKK, vOnes, vCS = 8, 9, 9, 17, 19, 28, 27, 152, 156

    def p1_consts():
        k("v_and_b32 v8, 15, v1")
        k(f"s_and_b32 s28, s{sW}, 1")
        k("s_lshl_b32 s28, s28, 4")
        k(f"s_lshl_b32 s29, s{sCT}, 5")
        k("s_add_u32 s28, s28, s29")
        k(f"v_add_u32 {v(vKK)}, s28, v8")
        k("v_lshrrev_b32 v9, 1, v8")
        k("v_xor_b32 v9, v9, v5")
        k("v_lshlrev_b32 v9, 4, v9")
        k("v_lshl_add_u32 v4, v8, 7, v9")
        k(f"v_add_u32 v19, 1, {v(vKK)}")
        k("v_cvt_f32_u32 v20, v19")
        k("v_and_b32 v19, 1, v19")
        k("v_lshlrev_b32 v19, 31, v19")
        k(f"v_or_b32 {v(vSG)}, 1.0, v19")
        for e in range(1, 8):
            k(f"v_mul_f32 {v(vE+e)}, {f2u(e/448.0)}, v20")
        k(f"v_mul_f32 {v(vST)}, {f2u(32.0/448)}, v20")
        k(f"v_fract_f32 {v(vST)}, {v(vST)}")
        k("v_lshlrev_b32 v21, 3, v5")
        k("v_cvt_f32_u32 v21, v21")
        k(f"s_lshr_b32 s30, s{sW}, 1")
        k(f"s_mul_i32 s31, s30, {f2u(0.25)}")
        k(f"v_mov_b32 {v(vB)}, s31")
        k(f"v_fmac_f32 {v(vB)}, v21, {v(vE+1)}")
        k(f"v_fract_f32 {v(vB)}, {v(vB)}")
        if MAPB:
            k(f"s_and_b32 s{sHALF}, s2, 1")
            k(f"s_bfe_u32 s{sRB}, s2, 0x20001")
            k(f"s_and_b32 s35, s{sRT}, 3")
            k(f"s_lshl2_add_u32 s{sRB}, s{sRB}, s35")
        else:
            k(f"s_and_b32 s{sHALF}, s{sRT}, 1")
            k(f"s_lshr_b32 s{sRB}, s{sRT}, 1")
        k(f"s_mul_i32 s{sFB}, s{sHALF}, 7")
        k(f"s_add_u32 s{sFB}, s{sFB}, s{sCT}")
        k(f"s_lshl_b32 s{sWG}, s{sFB}, 8")
        k(f"s_mul_i32 s35, s{sW}, {4*3584}")
        k(f"s_add_u32 s{sWG}, s{sWG}, s35")
        k(f"s_lshl2_add_u32 s{sFB}, s{sFB}, s{sW}")
        k(f"s_add_u32 s{sWE}, s{sWG}, {28*57344}")
        k(f"s_and_b32 s{sROT}, s2, 7")
        k(f"s_min_u32 s{sROT}, s{sROT}, {6 if ROTW else 0}")
        k(f"s_mul_i32 s35, s{sROT}, {4*57344}")
        k(f"s_add_u32 s{sWG}, s{sWG}, s35")
        k(f"s_lshl_b32 s{sROT}, s{sROT}, 12")
        k("v_bfe_u32 v21, v1, 2, 2")
        k("v_xor_b32 v22, v21, v5")
        k("v_and_b32 v23, 3, v1")
        k("v_lshlrev_b32 v22, 6, v22")
        k("v_lshl_add_u32 v22, v23, 4, v22")
        k(f"v_mul_u32_u24 {v(vWG)}, 0xe00, v5")
        k(f"v_add_u32 {v(vWG)}, {v(vWG)}, v22")
        k(f"v_xor_b32 v22, s{sW}, v21")
        k("v_lshlrev_b32 v22, 6, v22")
        k("v_lshl_add_u32 v22, v21, 8, v22")
        k("v_lshl_add_u32 v22, v23, 3, v22")
        k("v_and_b32 v23, 1, v5")
        k("v_lshl_add_u32 v22, v23, 5, v22")
        k("v_lshrrev_b32 v23, 5, v1")
        k("v_lshl_add_u32 v22, v23, 11, v22")
        k(f"v_add_u32 {v(vWT)}, {STG}, v22")
        k(f"v_add_u32 {v(vWT+1)}, {RNG}, v22")
        k(f"s_lshl_b32 s35, s{sW}, 10")
        k("v_xor_b32 v5, 64, v4")
        k("v_add_u32 v6, s27, v4")
        k("v_add_u32 v7, s27, v5")
        for p in range(4):
            k(f"v_mov_b32 {v(vOnes+p)}, 0x3f803f80")
        for t in range(7):
            k(f"v_cos_f32 {v(vT)}, {v(vB)}")
            for e in range(1, 8):
                k(f"v_add_f32 {v(vT+e)}, {v(vB)}, {v(vE+e)}")
            for e in range(1, 8):
                k(f"v_cos_f32 {v(vT+e)}, {v(vT+e)}")
            if t < 6:
                k(f"v_add_f32 {v(vB)}, {v(vB)}, {v(vST)}")
                k(f"v_fract_f32 {v(vB)}, {v(vB)}")
            for p in range(4):
                k(f"v_cvt_pk_bf16_f32 {v(vF+4*t+p)}, {v(vT+2*p)}, {v(vT+2*p+1)}")
            if t > 0:
                k(f"v_mfma_f32_16x16x32_bf16 {v(vCS,4)}, {v(vOnes,4)}, {v(vF+4*t-4,4)}, {'0' if t == 1 else v(vCS,4)}")

    lines = capture(p1_consts)
    per = -(-len(lines) // 14)

    def slot():
        for _ in range(min(per, len(lines))):
            k(lines.pop(0))

    k("s_waitcnt lgkmcnt(0)")
    k.stamp(1) if FINE == 1 else None
    k.srd(12, 4, XB)
    xs = []
    for i in range(7):
        if i == 0:
            k(f"s_mov_b32 s48, s{sCT}")
        else:
            k("s_add_u32 s48, s48, 1")
            k("s_cmp_eq_u32 s48, 7")
            k("s_cselect_b32 s48, 0, s48")
        k("s_lshl_b32 s49, s48, 7")
        k("s_add_u32 s49, s49, s26")
        k("s_lshl_b32 s51, s48, 13")
        k("s_add_u32 m0, s51, s27")
        vm.op("buffer_load_dwordx4 v2, s[12:15], s49 offen lds")
        slot()
        k("s_add_u32 m0, m0, 1024")
        xs.append(vm.op("buffer_load_dwordx4 v3, s[12:15], s49 offen lds"))
        slot()
    assert not lines
    k.stamp(1) if FINE == 1 else None
    k("s_mov_b32 s8, s46")
    k("s_and_b32 s9, s47, 0xffff")
    k(f"s_mov_b32 s10, {WRB}")
    k("s_mov_b32 s11, 0x20000")
    k("s_and_b32 s45, s45, 0xffff")
    k(f"s_mov_b32 s46, {WRB}")
    k("s_mov_b32 s47, 0x20000")
    k(f"s_and_b32 s50, s{sRT}, 28")
    k(f"s_add_u32 s50, s50, s{sW}")
    k(f"s_and_b32 s51, s{sRT}, 3")
    k("s_lshl2_add_u32 s50, s50, s51")
    k("s_mul_i32 s50, s50, 7200")
    k(f"s_lshl_b32 s51, s{sCT}, 6")
    k("s_add_u32 s50, s50, s51")
    k("s_add_u32 s50, s50, 2")
    k("v_lshrrev_b32 v230, 2, v1")
    k("v_and_b32 v231, 3, v1")
    k("v_mul_u32_u24 v232, 0x1c2, v230")
    k("v_lshl_add_u32 v232, v231, 4, v232")
    vm.op("buffer_load_dwordx4 v[160:163], v232, s[44:47], s50 offen")
    wf_ld = vm.op("buffer_load_dwordx4 v[164:167], v232, s[8:11], s50 offen")
    k("v_lshlrev_b32 v230, 4, v230")
    k("v_lshl_add_u32 v230, v231, 11, v230")
    k(f"s_lshl2_add_u32 s50, s{sW}, {XT}")
    k("v_add_u32 v230, s50, v230")
    k.srd(8, 6, WS_BYTES)
    k.srd(sA, 52, WGB)
    k.srd(sB, 54, WGB)
    k.srd(16, 58, XB)
    k("s_mov_b32 s48, s56")
    k("s_mov_b32 s49, s57")
    k(f"v_mfma_f32_16x16x32_bf16 {v(vCS,4)}, {v(vOnes,4)}, {v(vF+24,4)}, {v(vCS,4)}")

    def stg(kp):
        return kp if kp < 11 else kp - 11 if kp < 22 else kp - 22

    sid = []

    def sload(cnt=1):
        for _ in range(cnt):
            n = len(sid)
            kp, m = n // 2, n % 2
            sl = stg(kp)
            k(f"s_add_u32 m0, s35, {(STG + sl*8192 if sl < 7 else RNG + (sl-7)*8192) + m*4096}")
            if n and not m:
                k(f"s_add_u32 s{sWG}, s{sWG}, {16*3584}")
                if ROTW and kp % 4 == 0:
                    k(f"s_cmp_eq_u32 s{sWG}, s{sWE}")
                    k(f"s_cselect_b32 s37, {28*57344}, 0")
                    k(f"s_sub_u32 s{sWG}, s{sWG}, s37")
            sid.append(vm.op(f"buffer_load_dwordx4 {v(vWG)}, s[{(sA, sB)[m]}:{(sA, sB)[m]+3}], s{sWG} offen lds"))

    def sread(k0, k1):
        for kp in range(k0, k1):
            sl = stg(kp)
            for m in range(2):
                for u in range(2):
                    k(f"ds_read_b64_tr_b16 {a(8*kp+4*m+2*u,2)}, {v(vWT + (sl >= 7))} offset:{(sl%7 if sl < 7 else sl-7)*8192 + m*4096 + u*1024}")

    k.stamp()
    vR, vSm, vGr = 56, 20, 120

    def stat(t):
        b = vR + 4 * (t % 4)
        k(f"v_mfma_f32_16x16x32_bf16 {v(vSm,4)}, {v(b,4)}, {v(vOnes,4)}, {'0' if t == 0 else v(vSm,4)}")
        k(f"v_mfma_f32_16x16x32_bf16 {v(vGr,4)}, {v(b,4)}, {v(b,4)}, {'0' if t == 0 else v(vGr,4)}")

    if TALL:
        k(f"s_lshl2_add_u32 s51, s2, s{sW}")
        k("s_mul_i32 s50, s51, 335")
        k("s_lshr_b32 s50, s50, 16")
        k("s_mul_i32 s29, s50, 196")
        k("s_sub_u32 s51, s51, s29")
        k("s_lshl_b32 s51, s51, 13")
        k("s_cmp_eq_u32 s50, 1")
        k("s_cselect_b32 s52, s54, s52")
        k("s_cselect_b32 s53, s55, s53")
        k("s_cmp_eq_u32 s50, 2")
        k("s_cselect_b32 s52, s56, s52")
        k("s_cselect_b32 s53, s57, s53")
        k("s_and_b32 s53, s53, 0xffff")
        k("s_cmp_le_u32 s50, 2")
        k(f"s_cselect_b32 s54, {WGB}, 0")
        k("s_mov_b32 s55, 0x20000")
        k("v_lshlrev_b32 v240, 7, v1")
        vm.op("buffer_load_dword v241, v240, s[52:55], s51 offen")
    if TPM:
        k("v_and_b32 v242, 15, v1")
        k("v_lshlrev_b32 v242, 13, v242")
        k("s_lshl_b32 s51, s28, 13")
        k("s_lshl_b32 s50, s30, 12")
        k("s_add_u32 s51, s51, s50")
        k(f"s_lshl_b32 s50, s{sRT}, 7")
        k("s_add_u32 s51, s51, s50")
        vm.op("buffer_load_dword v243, v242, s[8:11], s51 offen sc1")
    sload(NP[0])
    k(f"s_lshl_b32 s51, s{sCT}, 13")
    for c in range(7):
        k("v_add_u32 v26, s51, v6")
        k("v_add_u32 v18, s51, v7")
        if c < 6:
            k("s_add_u32 s51, s51, 8192")
            k("s_cmp_eq_u32 s51, 57344")
            k("s_cselect_b32 s51, 0, s51")
        vm.wait(xs[c])
        for par in range(2):
            k(f"ds_read_b128 {v(vR+4*((2*c+par)%4),4)}, v{18 if par else 26}")
        if c > 0:
            k("s_waitcnt lgkmcnt(2)")
            stat(2 * c - 2)
            stat(2 * c - 1)
    k("s_waitcnt lgkmcnt(0)")
    k.stamp(1) if FINE == 1 else None
    stat(12)
    stat(13)
    k("s_barrier")
    k.stamp()
    vA, vSt, vM, vQ = 88, 124, 24, 25
    seq = [(t, b) for t in range(14) for b in range(4)]

    l1 = Cnt(k, "lgkmcnt", 15)
    r1 = {}

    def rd1(n):
        t, b = seq[n]
        r1[n] = l1.op(f"ds_read_b128 {v(vR+4*(n%8),4)}, v{4+(t&1)} offset:{(t>>1)*8192 + b*2048}")

    fin = ["v_and_b32 v26, 3, v1",
           "v_cmp_eq_u32 s[52:53], 1, v26", "v_cmp_eq_u32 s[54:55], 2, v26", "v_cmp_eq_u32 s[56:57], 3, v26",
           "v_bfe_u32 v26, v1, 2, 2", "v_lshrrev_b32 v19, 4, v1", "v_cmp_eq_u32 s[58:59], v26, v19",
           f"v_cndmask_b32 {v(vM)}, {v(vSm)}, {v(vSm+1)}, s[52:53]", f"v_cndmask_b32 {v(vQ)}, {v(vGr)}, {v(vGr+1)}, s[52:53]",
           f"v_cndmask_b32 {v(vM)}, {v(vM)}, {v(vSm+2)}, s[54:55]", f"v_cndmask_b32 {v(vQ)}, {v(vQ)}, {v(vGr+2)}, s[54:55]",
           f"v_cndmask_b32 {v(vM)}, {v(vM)}, {v(vSm+3)}, s[56:57]", f"v_cndmask_b32 {v(vQ)}, {v(vQ)}, {v(vGr+3)}, s[56:57]",
           f"v_mul_f32 {v(vM)}, {f2u(1.0/448)}, {v(vM)}",
           f"v_mul_f32 {v(vQ)}, {f2u(1.0/448)}, {v(vQ)}",
           "v_and_b32 v26, 15, v1",
           f"v_fma_f32 {v(vQ)}, -{v(vM)}, {v(vM)}, {v(vQ)}",
           f"s_lshl_b32 s33, s{sW}, 6\ns_add_u32 s33, s33, {R2}",
           f"v_max_f32 {v(vQ)}, 0, {v(vQ)}",
           "v_lshl_add_u32 v19, v26, 2, s33",
           f"v_add_f32 {v(vQ)}, {f2u(EPS)}, {v(vQ)}",
           f"v_fmac_f32 {v(vCS)}, {v(vCS)}, {v(vSG)}",
           f"v_rsq_f32 {v(vQ)}, {v(vQ)}",
           "v_lshrrev_b32 v21, 2, v26",
           "v_and_b32 v26, 3, v26",
           f"v_mul_f32 v20, {v(vM)}, {v(vQ)}",
           "v_lshl_add_u32 v26, v21, 4, v26",
           "v_lshlrev_b32 v26, 7, v26",
           f"s_lshl_b32 s33, s{sW}, 7",
           f"s_add_u32 s33, s33, s{sRT}",
           f"s_lshl2_add_u32 s33, s33, {M1}",
           f"s_cmp_eq_u32 s{sCT}, 0\ns_cselect_b32 s33, s33, 0x40000000"]
    fin2 = [["s_mov_b32 s50, 0x05040100", "s_mov_b32 s51, 0x07060302"]]
    for e in range(0, 8, 2):
        fin2.append([f"v_perm_b32 v{168+e+i}, v{164+(e>>1)}, v{160+(e>>1)}, s{50+i}" for i in range(2)])
    for e in range(0, 8, 2):
        fin2.append([f"ds_write2st64_b32 v230, v{168+e}, v{169+e} offset0:{e} offset1:{e+1}"])
    fin2 += [[f"s_add_u32 s50, s27, {XT}", "v_lshl_add_u32 v231, v1, 4, s50"],
             ["v_lshrrev_b32 v230, 4, v1", "v_and_b32 v232, 15, v1", f"s_lshl2_add_u32 s50, s{sCT}, s{sW}"],
             ["v_lshlrev_b32 v232, 4, v232", "s_lshl_b32 s50, s50, 16", f"s_and_b32 s51, s{sRT}, 3"],
             ["v_lshl_add_u32 v230, v230, 13, v232", "s_lshl_b32 s51, s51, 11", "s_add_u32 s50, s50, s51"],
             [f"s_lshr_b32 s51, s{sRT}, 2", "s_lshl_b32 s51, s51, 8", "s_add_u32 s50, s50, s51"],
             [f"s_add_u32 s50, s50, {WT}", "s_add_u32 s51, s50, 32768"]]
    DEPTH = 7
    for n in range(DEPTH):
        rd1(n)
    if T1:
        k(f"s_bitcmp1_b32 s{sW}, 0")
        k(f"s_cselect_b32 s52, s{sB}, s{sA}")
        k(f"s_cselect_b32 s53, s{sB+1}, s{sA+1}")
        k(f"s_mov_b32 s54, {WGB}")
        k("s_mov_b32 s55, 0x20000")
        k(f"s_and_b32 s50, s{sRB}, 1")
        k(f"s_lshr_b32 s51, s{sW}, 1")
        k("s_lshl1_add_u32 s50, s50, s51")
        k(f"s_mul_i32 s50, s50, {2*57344}")
        k(f"s_lshr_b32 s51, s{sFB}, 2")
        k("s_lshl_b32 s51, s51, 8")
        k("s_add_u32 s50, s50, s51")
        k(f"s_add_u32 s50, s50, {T1*57344}")
        k("v_lshrrev_b32 v240, 1, v1")
        k("v_mul_u32_u24 v240, 0xe00, v240")
        k("v_and_b32 v241, 1, v1")
        k("v_lshl_add_u32 v240, v241, 7, v240")
        vm.op("buffer_load_dword v241, v240, s[52:55], s50 offen")
    for n in range(56):
        t, b = seq[n]
        l1.wait(r1[n])
        acc = vA + 16 * (t // 7) + 4 * b
        k(f"v_mfma_f32_16x16x32_bf16 {v(acc,4)}, {v(vR+4*(n%8),4)}, {v(vF+4*(t%7),4)}, {'0' if t % 7 == 0 else v(acc,4)}")
        if n + DEPTH < 56:
            rd1(n + DEPTH)
        if n >= 4 and fin:
            k(fin.pop(0))
        if n == 40:
            assert not fin
            k("s_mov_b64 exec, s[58:59]")
            l1.op(f"ds_write_b32 v19, {v(vQ)}")
            l1.op("ds_write_b32 v19, v20 offset:256")
            vm.op(f"buffer_store_dword {v(vM)}, v26, s[8:11], s33 offen sc1")
            k("s_mov_b64 exec, -1")
        if n == 41:
            vm.wait(wf_ld)
        if n >= 41:
            for t_ in fin2.pop(0):
                l1.op(t_) if t_.startswith("ds_") else k(t_)
        if n % 8 == 3 and len(sid) < NP[0] + NP[1]:
            sload()
    k.stamp(1) if FINE == 1 else None
    assert not fin2
    l1.all()
    k("s_barrier")
    k.stamp(1) if FINE == 1 else None
    k("ds_read_b128 v[160:163], v231")
    k("ds_read_b128 v[164:167], v231 offset:1024")
    k("v_lshrrev_b32 v24, 4, v1")
    k("v_lshlrev_b32 v24, 4, v24")
    k(f"v_add_u32 v25, {R2}, v24")
    for b in range(4):
        k(f"ds_read_b128 {v(vSt+4*b,4)}, v25 offset:{64*b}")
        k(f"ds_read_b128 {v(vSt+16+4*b,4)}, v25 offset:{256 + 64*b}")
    for n in range(0, 16, 2):
        k(f"v_pk_fma_f32 {v(vA+n,2)}, {v(vA+16+n,2)}, {v(vSG-1,2)}, {v(vA+n,2)} op_sel:[0,1,0]")
    k("s_waitcnt lgkmcnt(8)")
    vm.op("buffer_store_dwordx4 v[160:163], v230, s[8:11], s50 offen sc1")
    vm.op("buffer_store_dwordx4 v[164:167], v230, s[8:11], s51 offen sc1")
    k.stamp(1) if FINE == 1 else None
    k("v_and_b32 v8, 15, v1")
    k("v_and_b32 v9, 7, v1")
    k("v_lshrrev_b32 v10, 3, v24")
    k("v_xor_b32 v10, v10, v9")
    k("v_lshlrev_b32 v10, 4, v10")
    k("v_lshl_add_u32 v10, v8, 7, v10")
    k("v_add_u32 v10, s27, v10")
    k("v_xor_b32 v11, 16, v10")
    k(f"v_lshlrev_b32 {v(vL16)}, 4, v1")
    k(f"v_add_u32 v12, s27, {v(vL16)}")
    k("v_lshrrev_b32 v13, 3, v1")
    k("v_xor_b32 v9, v9, v13")
    k("v_lshlrev_b32 v9, 4, v9")
    k("v_lshl_add_u32 v13, v13, 13, v9")
    k("s_lshl_b32 s28, s28, 13")
    k("s_lshl_b32 s30, s30, 12")
    k(f"s_lshl_b32 s33, s{sRT}, 7")
    k("s_add_u32 s33, s33, s30")
    k("s_add_u32 s33, s33, s28")
    k("s_add_u32 s34, s33, 0x10000")
    for h2 in range(2):
        k(f"s_waitcnt lgkmcnt({4-4*h2})")
        for n in range(8 * h2, 8 * h2 + 8, 2):
            k(f"v_pk_mul_f32 {v(vA+n,2)}, {v(vA+n,2)}, {v(vSt+n,2)}")
        for n in range(8 * h2, 8 * h2 + 8, 2):
            k(f"v_pk_fma_f32 {v(vA+n,2)}, {v(vSt+16+n,2)}, {v(vCS,2)}, {v(vA+n,2)} op_sel_hi:[1,0,1] neg_lo:[1,0,0] neg_hi:[1,0,0]")
        for n in range(4 * h2, 4 * h2 + 4):
            k(f"v_cvt_pk_bf16_f32 {v(vR+n)}, {v(vA+2*n)}, {v(vA+2*n+1)}")
    k.stamp(1) if FINE == 1 else None
    k(f"ds_write_b128 v10, {v(vR,4)}")
    k(f"ds_write_b128 v11, {v(vR+4,4)}")
    k("s_waitcnt lgkmcnt(0)")
    k(f"ds_read_b128 {v(vR+8,4)}, v12")
    k(f"ds_read_b128 {v(vR+12,4)}, v12 offset:1024")
    k(f"v_lshlrev_b32 {v(vL4)}, 2, v1")
    k(f"v_min_u32 v14, 28, {v(vL4)}")
    k("s_waitcnt lgkmcnt(1)")
    vm.op(f"buffer_store_dwordx4 {v(vR+8,4)}, v13, s[8:11], s33 offen sc1")
    k("s_waitcnt lgkmcnt(0)")
    at_st = vm.op(f"buffer_store_dwordx4 {v(vR+12,4)}, v13, s[8:11], s34 offen sc1")
    zload = f"global_load_dword v31, v14, s[{sDBG}:{sDBG+1}]{ZOFF} sc1"
    zmark = vm.op(zload)
    k.stamp()

    sKK, vWt = 2, 200
    vC1, vS1, vN1, vC2, vS2, vN2 = 32, 40, 48, 56, 64, 72
    vTc, vTs, vUc, vUs, vD, wX, vY, vP, wT = 80, 88, 96, 104, 112, 144, 160, 176, 184
    m2 = [0, 1, 2, 3, 16, 17, 18, 19]
    k(f"v_lshrrev_b32 {v(vG)}, 4, v1")
    k(f"v_and_b32 {v(vC)}, 15, v1")
    k(f"v_mov_b32 {v(vOne)}, 1")
    k(f"v_min_u32 {v(vLP)}, 220, {v(vL4)}")
    k("v_and_b32 v7, 7, v1")
    k(f"v_xor_b32 v7, v7, {v(vG)}")
    k("v_lshrrev_b32 v8, 3, v1")
    k("v_lshlrev_b32 v8, 7, v8")
    k("v_lshl_add_u32 v211, v7, 4, v8")
    k("v_xor_b32 v212, 64, v211")
    k(f"s_lshl_b32 s{sFL}, s{sRB}, 10")
    k(f"s_add_u32 s{sFL}, s{sFL}, {FL}")
    k(f"s_lshl2_add_u32 s{sFI}, s{sFB}, s{sFL}")
    k(f"s_getreg_b32 s{sXC}, hwreg(HW_REG_XCC_ID, 0, 4)")
    k(f"s_lshr_b32 s26, s{sKK}, 5")
    k(f"s_lshl_b32 s26, s26, {9 if WFLAG else 7}")
    k(f"s_add_u32 s51, s26, {FL + F_P1}")
    k("v_lshlrev_b32 v214, 3, v1")
    k(f"v_and_b32 v213, 124, {v(vL4)}")
    k(f"s_lshl_b32 s26, s{sCT}, 5")
    k(f"s_add_u32 s26, s26, s{sRT}")
    if WFLAG:
        k(f"s_lshl2_add_u32 s26, s26, s{sW}")
    k(f"s_lshl2_add_u32 s52, s26, {FL + F_P1}")
    k(f"s_lshl1_add_u32 s{sRT}, s{sRB}, s{sHALF}")

    def packed_table(dc, ds_, step, base, mult):
        for e in range(8):
            k(f"v_mov_b32 {v(wT+e)}, {v(base)}" if mult[e] == 0 else
              f"v_fmamk_f32 {v(wT+e)}, {v(step)}, {f2u(float(mult[e]))}, {v(base)}")
        for e in range(8):
            k(f"v_cos_f32 {v(wT+8+e)}, {v(wT+e)}")
        for e in range(8):
            k(f"v_sin_f32 {v(wT+e)}, {v(wT+e)}")
        for p in range(4):
            k(f"v_cvt_pk_bf16_f32 {v(dc+p)}, {v(wT+8+2*p)}, {v(wT+8+2*p+1)}")
        for p in range(4):
            k(f"v_cvt_pk_bf16_f32 {v(ds_+p)}, {v(wT+2*p)}, {v(wT+2*p+1)}")

    k(f"s_lshl_b32 s53, s{sW}, 4")
    k(f"v_add_u32 v210, s53, {v(vC)}")
    k("v_cvt_f32_u32 v208, v210")
    k(f"v_cvt_f32_u32 v209, {v(vG)}")
    k(f"v_mul_f32 {v(vY)}, {f2u(1.0/64)}, v208")
    k(f"v_mul_f32 {v(vY+1)}, {f2u(8.0)}, v209")
    k(f"v_mul_f32 {v(vY+1)}, {v(vY+1)}, {v(vY)}")
    packed_table(vC1, vS1, vY, vY + 1, list(range(8)))
    k("s_mov_b32 s54, 0x80008000")
    k("v_and_b32 v210, 1, v1")
    k("v_mul_u32_u24 v210, 0x8000, v210")
    k("v_lshl_or_b32 v210, v210, 16, v210")
    for p in range(4):
        k(f"v_xor_b32 {v(vC1+4+p)}, v210, {v(vC1+p)}")
        k(f"v_xor_b32 {v(vS1+4+p)}, v210, {v(vS1+p)}")
    for p in range(8):
        k(f"v_xor_b32 {v(vN1+p)}, s54, {v(vS1+p)}")
    k.stamp(1) if FINE == 1 else None
    spin(zload, "v_cmp_eq_u32 vcc, 0, v31", zmark)
    if WFLAG:
        vm.op(f"buffer_store_dword {v(vOne)}, off, s[8:11], s52 sc1")
        vm.wait(sid[-1])
        k("s_barrier")
    else:
        vm.all()
        k("s_barrier")
        wave0(f"buffer_store_dword {v(vOne)}, off, s[8:11], s52 sc1", 1)
    k.stamp()
    nr1 = len(sid) // 2
    assert len(sid) == NP[0] + NP[1] and len(sid) % 2 == 0
    sload(NP[2])
    sread(0, nr1)
    k(f"v_lshrrev_b32 v210, 1, {v(vC)}")
    k(f"v_xor_b32 v210, v210, {v(vG)}")
    k("v_lshlrev_b32 v210, 4, v210")
    k(f"v_lshl_add_u32 {v(vP)}, {v(vC)}, 7, v210")
    k(f"v_xor_b32 {v(vP+1)}, 64, {v(vP)}")
    k(f"v_cvt_f32_u32 v210, {v(vC)}")
    k(f"v_mul_f32 {v(vY)}, {f2u(1.0/32)}, v210")
    k(f"v_mul_f32 {v(vY+1)}, 4.0, v209")
    k(f"v_mul_f32 {v(vY+1)}, {v(vY+1)}, {v(vY)}")
    packed_table(vC2, vS2, vY, vY + 1, m2)
    k("s_brev_b32 s55, 1")
    for p in range(4):
        k(f"v_xor_b32 {v(vC2+4+p)}, s55, {v(vC2+p)}")
        k(f"v_xor_b32 {v(vS2+4+p)}, s55, {v(vS2+p)}")
    for p in range(8):
        k(f"v_xor_b32 {v(vN2+p)}, s54, {v(vS2+p)}")
    k(f"v_mul_f32 {v(vY)}, {f2u(1.0/2048)}, v208")
    k(f"v_mul_f32 {v(vY+1)}, 4.0, v209")
    k(f"v_mul_f32 {v(vY+1)}, {v(vY+1)}, {v(vY)}")
    for e in range(8):
        k(f"v_mov_b32 {v(vTs+e)}, {v(vY+1)}" if m2[e] == 0 else
          f"v_fmamk_f32 {v(vTs+e)}, {v(vY)}, {f2u(float(m2[e]))}, {v(vY+1)}")
    for e in range(8):
        k(f"v_cos_f32 {v(vTc+e)}, {v(vTs+e)}")
    for e in range(8):
        k(f"v_sin_f32 {v(vTs+e)}, {v(vTs+e)}")
    k(f"v_mul_f32 {v(wT)}, {f2u(1.0/2048)}, v210")
    k(f"v_add_f32 {v(wT+1)}, {f2u(16.0/2048)}, {v(wT)}")
    k(f"v_lshl_add_u32 v208, {v(vG)}, 2, s53")
    k("v_cvt_f32_u32 v208, v208")
    for r in range(4):
        for blk in range(2):
            k(f"v_mul_f32 {v(vUs+4*blk+r)}, v208, {v(wT+blk)}")
        if r < 3:
            k("v_add_f32 v208, 1.0, v208")
    for e in range(8):
        k(f"v_cos_f32 {v(vUc+e)}, {v(vUs+e)}")
    for e in range(8):
        k(f"v_sin_f32 {v(vUs+e)}, {v(vUs+e)}")
    sc = 2.0 / (S * D)
    k(f"s_cmp_eq_u32 s{sKK}, 223")
    k(f"s_mov_b32 s55, {f2u(sc)}")
    k(f"s_cselect_b32 s55, {f2u(sc/2)}, s55")
    for e in range(8):
        k(f"v_mul_f32 {v(vUc+e)}, s55, {v(vUc+e)}")
        k(f"v_mul_f32 {v(vUs+e)}, s55, {v(vUs+e)}")
    k(f"v_lshrrev_b32 v208, 1, {v(vG)}")
    k(f"v_lshl_add_u32 v208, v208, 4, {v(vC)}")
    k("v_lshlrev_b32 v208, 4, v208")
    k(f"v_and_b32 v209, 1, {v(vG)}")
    k("v_lshl_add_u32 v208, v209, 3, v208")
    k(f"s_lshl_b32 s26, s{sW}, 9")
    k("v_add_u32 v208, s26, v208")
    k(f"s_lshl_b32 s26, s{sKK}, 13")
    k("s_add_u32 s56, s26, s27")
    k(f"s_add_u32 s57, s56, {WT}")
    k("s_add_u32 s58, s26, s35")
    k("s_add_u32 s59, s58, 4096")
    k("s_mov_b32 m0, s27")
    k("s_waitcnt lgkmcnt(0)")
    k("s_barrier")
    k.stamp()
    if WFLAG:
        spin0(lambda r: f"buffer_load_dwordx2 v[{r}:{r+1}], v214, s[8:11], s51 offen sc1", [216, 218, 220],
              lambda r: f"v_and_b32 v{r}, v{r}, v{r+1}\nv_cmp_eq_u32 vcc, 0, v{r}")
    elif PIPE:
        spin0(lambda r: f"buffer_load_dword v{r}, v213, s[8:11], s51 offen sc1", [216, 217, 218], lambda r: f"v_cmp_eq_u32 vcc, 0, v{r}")
    else:
        spin("buffer_load_dword v31, v213, s[8:11], s51 offen sc1", "v_cmp_eq_u32 vcc, 0, v31")
    k.stamp()
    vm.op(f"buffer_load_dwordx4 v211, s[8:11], s56 offen{LD} lds")
    at_ld = vm.op(f"buffer_load_dwordx4 v212, s[8:11], s56 offen offset:1024{LD} lds")
    vm.op(f"buffer_load_dwordx4 {v(vWt,4)}, {v(vL16)}, s[8:11], s57 offen{LD}")
    wt_ld = vm.op(f"buffer_load_dwordx4 {v(vWt+4,4)}, {v(vL16)}, s[8:11], s57 offen offset:1024{LD}")
    k(f"s_lshl_b32 s26, s{sXC}, 2")
    k("s_lshl_b32 s26, 1, s26")
    k(f"s_lshr_b32 s28, s{sXC}, 3")
    k(f"s_lshl2_add_u32 s28, s28, s{sFL}")
    wave0("v_mov_b32 v215, s26\nbuffer_atomic_add v215, off, s[8:11], s28 offset:768 sc1", 1)
    if not PIPE:
        k("s_barrier")
    assert NS[1] <= 2 * nr1 + 22 - NS[0]
    sread(nr1, NS[0] // 2)
    nr1 = NS[0] // 2
    sload(NS[1])
    vm.wait(at_ld)
    k("s_waitcnt lgkmcnt(0)")
    k("s_barrier")
    k.stamp()
    for t in range(2):
        for blk in range(2):
            for plane in range(2):
                k(f"ds_read_b128 {v(vD+16*plane+8*blk+4*t,4)}, {v(vP+t)} offset:{plane*4096+blk*2048}")
    sload(NS[2])

    def dft_big(cr, ci):
        for t in range(2):
            for blk in range(2):
                k(f"s_waitcnt lgkmcnt({6 - 4*t - 2*blk})")
                ar, ai = vD + 8 * blk + 4 * t, vD + 16 + 8 * blk + 4 * t
                xr, xi = wX + 4 * blk, wX + 8 + 4 * blk
                k(f"v_mfma_f32_16x16x32_bf16 {v(xr,4)}, {v(ar,4)}, {v(vC1+4*t,4)}, {'0' if t == 0 else v(xr,4)}")
                k(f"v_mfma_f32_16x16x32_bf16 {v(xi,4)}, {v(ai,4)}, {v(vC1+4*t,4)}, {'0' if t == 0 else v(xi,4)}")
                k(f"v_mfma_f32_16x16x32_bf16 {v(xr,4)}, {v(ai,4)}, {v(cr+4*t,4)}, {v(xr,4)}")
                k(f"v_mfma_f32_16x16x32_bf16 {v(xi,4)}, {v(ar,4)}, {v(ci+4*t,4)}, {v(xi,4)}")

    def pack():
        for p in range(4):
            k(f"v_cvt_pk_bf16_f32 {v(vP+p)}, {v(vY+2*p)}, {v(vY+2*p+1)}")
            k(f"v_cvt_pk_bf16_f32 {v(vP+4+p)}, {v(vY+8+2*p)}, {v(vY+8+2*p+1)}")

    k.stamp(1) if FINE == 2 else None
    dft_big(vS1, vN1)
    k.stamp(1) if FINE == 2 else None
    cmul8(k, vY, wX, vTc, vTs, -1)
    pack()
    for blk in range(2):
        xr, xi = wX + 4 * blk, wX + 8 + 4 * blk
        k(f"v_mfma_f32_16x16x32_bf16 {v(xr,4)}, {v(vC2+4*blk,4)}, {v(vP,4)}, 0")
        k(f"v_mfma_f32_16x16x32_bf16 {v(xi,4)}, {v(vC2+4*blk,4)}, {v(vP+4,4)}, 0")
        k(f"v_mfma_f32_16x16x32_bf16 {v(xr,4)}, {v(vS2+4*blk,4)}, {v(vP+4,4)}, {v(xr,4)}")
        k(f"v_mfma_f32_16x16x32_bf16 {v(xi,4)}, {v(vN2+4*blk,4)}, {v(vP,4)}, {v(xi,4)}")
    k.stamp(1) if FINE == 2 else None
    vm.wait(wt_ld)
    for e in range(8):
        k(f"v_lshlrev_b32 {v(wT+e)}, 16, {v(vWt+e)}")
        k(f"v_and_b32 {v(wT+8+e)}, 0xffff0000, {v(vWt+e)}")
    sload(NS[3] // 2)
    k.stamp(1) if FINE == 2 else None
    cmul8(k, vY, wX, wT, wT + 8, +1)
    pack()
    for blk in range(2):
        xr, xi = wX + 4 * blk, wX + 8 + 4 * blk
        k(f"v_mfma_f32_16x16x32_bf16 {v(xr,4)}, {v(vP,4)}, {v(vC2+4*blk,4)}, 0")
        k(f"v_mfma_f32_16x16x32_bf16 {v(xi,4)}, {v(vP+4,4)}, {v(vC2+4*blk,4)}, 0")
        k(f"v_mfma_f32_16x16x32_bf16 {v(xr,4)}, {v(vP+4,4)}, {v(vN2+4*blk,4)}, {v(xr,4)}")
        k(f"v_mfma_f32_16x16x32_bf16 {v(xi,4)}, {v(vP,4)}, {v(vS2+4*blk,4)}, {v(xi,4)}")
    sload(NS[3] - NS[3] // 2)
    k.stamp(1) if FINE == 2 else None
    cmul8(k, vY, wX, vUc, vUs, +1)
    pack()
    for plane in range(2):
        for blk in range(2):
            k(f"ds_write_b64 v208, {v(vP+4*plane+2*blk,2)} offset:{8192+plane*4096+blk*2048}")
    k("s_waitcnt lgkmcnt(0)")
    k("s_barrier")
    for t in range(2):
        for blk in range(2):
            for plane in range(2):
                k(f"ds_read_b128 {v(vD+16*plane+8*blk+4*t,4)}, {v(vL16)} offset:{8192+plane*4096+blk*2048+t*1024}")
    k.stamp(1) if FINE == 2 else None
    k(f"s_cmp_ge_u32 s{sKK}, 112")
    k("s_cselect_b32 s54, s54, 0")
    dft_big(vN1, vS1)
    for p in range(4):
        k(f"v_cvt_pk_bf16_f32 {v(vP+p)}, {v(wX+2*p)}, {v(wX+2*p+1)}")
    vm.op(f"buffer_store_dwordx4 {v(vP,4)}, {v(vL16)}, s[8:11], s58 offen sc1")
    for p in range(4):
        k(f"v_cvt_pk_bf16_f32 {v(vP+4+p)}, {v(wX+8+2*p)}, {v(wX+8+2*p+1)}")
    for p in range(4):
        k(f"v_xor_b32 {v(vP+4+p)}, s54, {v(vP+4+p)}")
    vm.op(f"buffer_store_dwordx4 {v(vP+4,4)}, {v(vL16)}, s[8:11], s59 offen sc1")
    k.stamp()

    vXO, vM, vTB, vXA, vGm = 10, 12, 14, 18, 32
    cload = f"buffer_load_dwordx2 v[28:29], off, s[8:11], s{sFL} offset:768 sc1"
    k(f"v_and_b32 v6, 1, {v(vG)}")
    k(f"s_and_b32 s29, s{sW}, 1")
    k("s_lshl_b32 s29, s29, 2")
    k("v_lshl_or_b32 v6, v6, 1, s29")
    k("v_and_b32 v7, 7, v1")
    k("v_xor_b32 v6, v6, v7")
    k("v_lshrrev_b32 v8, 3, v1")
    k("v_lshlrev_b32 v9, 12, v8")
    k("v_lshl_add_u32 v6, v6, 4, v9")
    k(f"s_lshl_b32 s28, s{sW}, 15")
    k(f"s_lshl_b32 s27, s{sRT}, 7")
    k("s_add_u32 s51, s28, s27")
    k("s_sub_u32 s52, s27, s28")
    k(f"s_add_u32 s52, s52, {438*4096}")
    k(f"s_bitcmp1_b32 s{sCT}, 0")
    k("s_cselect_b32 s53, s51, s52")
    k("s_cselect_b32 s51, s52, s51")
    k("s_cselect_b32 s54, 0x6000, 0")
    k("s_cselect_b32 s55, 28672, 0")
    k("s_mov_b32 s52, 0x20000")
    k("s_cselect_b32 s52, 0xfffe0000, s52")
    k("v_xor_b32 v6, s54, v6")
    k("v_lshrrev_b32 v9, 5, v1")
    k("v_and_b32 v8, 3, v8")
    k("v_lshl_add_u32 v8, v9, 4, v8")
    k("v_mul_u32_u24 v8, 0x380, v8")
    k(f"v_xor_b32 v7, v7, {v(vG)}")
    k("v_xor_b32 v7, s29, v7")
    k(f"v_lshl_add_u32 {v(vXO)}, v7, 4, v8")
    k(f"s_lshr_b32 s26, s{sRT}, 3")
    k("s_lshl_b32 s26, s26, 9")
    k(f"s_lshl_b32 s28, s{sHALF}, 8")
    k("s_add_u32 s26, s26, s28")
    k(f"s_and_b32 s28, s{sRB}, 3")
    k(f"s_lshl2_add_u32 s{sSB}, s28, s26")
    k(f"s_lshl_b32 s26, s{sW}, 5")
    k(f"s_add_u32 s26, s26, s{sSB}")
    k("s_mul_i32 s26, s26, 896")
    k(f"s_lshl_b32 s28, s{sCT}, 7")
    k(f"s_add_u32 s{sXO}, s26, s28")
    k(f"s_add_u32 s{sXO+1}, s{sXO}, {128*896}")
    k("v_bfe_u32 v7, v1, 3, 2")
    k("v_bfe_u32 v8, v1, 2, 1")
    k("v_lshlrev_b32 v8, 4, v8")
    k("v_lshl_add_u32 v7, v7, 5, v8")
    k("v_and_b32 v8, 3, v1")
    k("v_add_lshl_u32 v11, v7, v8, 2")
    k(f"s_lshl2_add_u32 s56, s{sSB}, {M1}")
    k("v_lshlrev_b32 v213, 10, v1")
    k(f"s_lshl2_add_u32 s57, s2, {FL + F_FB}")
    k("s_and_b32 s58, s2, 7")
    k("s_lshl_b32 s58, s58, 10")
    k(f"s_add_u32 s58, s58, {FL + F_FB}")
    k(f"v_min_u32 v214, 880, {v(vL16)}")
    vm.all()
    k("s_barrier")
    wave0(f"buffer_store_dword {v(vOne)}, v213, s[8:11], s57 offen sc1", "0xff")
    k.stamp()
    nr2 = len(sid) // 2
    sread(nr1, nr2)
    k(f"s_add_u32 m0, s35, {XT}")
    vm.op(f"buffer_load_dwordx4 {v(vXO)}, s[12:15], s{sXO} offen lds")
    k(f"s_add_u32 m0, s35, {XT+4096}")
    vm.op(f"buffer_load_dwordx4 {v(vXO)}, s[12:15], s{sXO+1} offen lds")
    k("s_waitcnt lgkmcnt(0)")
    k("s_barrier")

    def p3_consts():
        vB, vST, vE, vT = 14, 15, 15, 20
        k(f"s_lshl_b32 s26, s{sCT}, 6")
        k(f"s_lshl_b32 s27, s{sW}, 4")
        k("s_add_u32 s26, s26, s27")
        k(f"v_add_u32 v27, s26, {v(vC)}")
        k("v_cvt_f32_u32 v27, v27")
        for p in range(1, 4):
            k(f"v_mul_f32 {v(vE+p)}, {f2u(p/448.0)}, v27")
        k(f"v_mul_f32 {v(vST)}, {f2u(16.0/448)}, v27")
        k(f"v_fract_f32 {v(vST)}, {v(vST)}")
        k(f"v_lshl_add_u32 v19, {v(vG)}, 2, 1")
        k("v_cvt_f32_u32 v19, v19")
        k(f"v_mul_f32 {v(vB)}, v19, {v(vE+1)}")
        k(f"v_fract_f32 {v(vB)}, {v(vB)}")
        for t in range(7):
            k(f"v_cos_f32 {v(vT+4)}, {v(vB)}")
            k(f"v_sin_f32 {v(vT)}, {v(vB)}")
            for p in range(1, 4):
                k(f"v_add_f32 {v(vT+p)}, {v(vB)}, {v(vE+p)}")
            if t < 6:
                k(f"v_add_f32 {v(vB)}, {v(vB)}, {v(vST)}")
                k(f"v_fract_f32 {v(vB)}, {v(vB)}")
            for p in range(1, 4):
                k(f"v_cos_f32 {v(vT+4+p)}, {v(vT+p)}")
                k(f"v_sin_f32 {v(vT+p)}, {v(vT+p)}")
            for p in range(4):
                k(f"v_cvt_pk_bf16_f32 {v(vGm+4*t+p)}, {v(vT+4+p)}, -{v(vT+p)}")
        k("v_bfe_u32 v7, v1, 2, 2")
        k(f"v_lshlrev_b32 v8, 10, {v(vG)}")
        k("v_lshl_add_u32 v8, v7, 7, v8")
        k("v_and_b32 v9, 3, v1")
        k("v_lshl_add_u32 v8, v9, 3, v8")
        k("v_lshrrev_b32 v7, 1, v7")
        k(f"v_and_b32 v9, 1, {v(vG)}")
        k("v_lshl_add_u32 v7, v9, 1, v7")
        k(f"v_lshl_add_u32 {v(vTB)}, v7, 5, v8")
        for nb in range(1, 4):
            k(f"v_xor_b32 {v(vTB+nb)}, {32*nb}, {v(vTB)}")
        k("v_lshrrev_b32 v7, 5, v1")
        k(f"s_lshl_b32 s26, s{sW}, 1")
        k("v_or_b32 v7, s26, v7")
        k("v_bfe_u32 v8, v1, 1, 3")
        k("v_xor_b32 v7, v7, v8")
        k("v_and_b32 v8, 31, v1")
        k("v_lshlrev_b32 v8, 7, v8")
        k("v_lshl_add_u32 v7, v7, 4, v8")
        k(f"v_add_u32 {v(vXA)}, {XT}, v7")

    lines = capture(p3_consts)
    per = -(-len(lines) // (NS[4] + 1))
    for i in range(NS[4]):
        sload()
        slot()
    slot()
    k("s_add_u32 m0, s35, s55")
    last_real = vm.n - 1
    if TW:
        k.srd(12, 48, WGB)
        ld = touch_down(-1, 12)
        NT_ = k.lab("nt")
        k(f"s_cmp_eq_u32 s{sW}, 0")
        k(f"s_cbranch_scc1 {NT_}")
        k(ld)
        k.label(NT_)
    k.stamp()
    t4 = lambda r: f"v_and_b32 v{r}, v{r}, v{r+1}\nv_and_b32 v{r+2}, v{r+2}, v{r+3}\nv_and_b32 v{r}, v{r}, v{r+2}\nv_cmp_eq_u32 vcc, 0, v{r}"
    l4 = lambda r: f"buffer_load_dwordx4 v[{r}:{r+3}], v214, s[8:11], s58 offen sc1"
    if PIPE:
        spin0(l4, [216, 220, 224], t4, TW)
    else:
        spin(l4(216), t4(216))
    k.stamp()
    census = vm.op(cload)
    for hf in range(2):
        for t in range(7):
            if t == 6:
                k(f"s_cmp_eq_u32 s{sW}, 3")
                k(f"s_cselect_b32 s28, {224*4096 >> 6}, 0")
                k("s_cmp_lg_u32 s54, 0" if hf == 0 else "s_cmp_eq_u32 s54, 0")
                k("s_cselect_b32 s28, s28, 0")
                k("v_add_u32 v9, 16, v1")
                k("v_and_b32 v9, 64, v9")
                k("v_mad_u32_u24 v9, v9, s28, v6")
            bt_ld = vm.op(f"buffer_load_dwordx4 v{9 if t == 6 else 6}, s[8:11], s{51 if hf == 0 else 53} offen{LD} lds")
            if t < 6:
                k("s_add_u32 m0, m0, 4096")
                k("s_add_u32 s51, s51, s52" if hf == 0 else "s_sub_u32 s53, s53, s52")
        if hf == 0:
            bt_half = bt_ld
            k("s_mov_b32 s57, s55")
            k("s_sub_u32 s55, 28672, s55")
            k("s_add_u32 m0, s35, s55")
            k("v_xor_b32 v6, 0x6000, v6")
    vm.op(f"buffer_load_dword {v(vM)}, v11, s[8:11], s56 offen{LD}")
    p3_loads = vm.op(f"buffer_load_dword {v(vM+1)}, v11, s[8:11], s56 offen offset:512{LD}")
    sload(NS[5])
    k.srd(sA, 48, WGB)
    if SPLIT3:
        for nb in range(4):
            k(f"v_add_u32 {v(60+nb)}, s55, {v(vTB+nb)}")
            k(f"v_add_u32 {v(vTB+nb)}, s57, {v(vTB+nb)}")
        for p in range(4):
            k(f"v_mov_b32 {v(64+p)}, {v(vGm+24+p)}")
        k("s_cmp_lg_u32 s57, 0")
        k("s_cselect_b32 s58, 0xffff0000, 0")
        k("s_cselect_b32 s59, 0x80000000, 0")
        k("s_mov_b32 exec_lo, 0")
        k("s_mov_b32 exec_hi, s58")
        k(f"v_mov_b32 {v(vGm+27)}, 0x3f80")
        k("s_xor_b32 exec_hi, s58, 0xffff0000")
        k("v_mov_b32 v67, 0x3f80")
        k("s_mov_b64 exec, -1")
    CL, FAST, SLOW = k.lab("cl"), k.lab("fast"), k.lab("slow")
    k(f"s_mov_b32 s50, {SPIN_MAX}")
    vm.wait(census)
    k.label(CL)
    k("v_readfirstlane_b32 s52, v28")
    k("v_readfirstlane_b32 s53, v29")
    k(f"s_cmp_ge_u32 s{sXC}, 8")
    k("s_cselect_b32 s54, s53, s52")
    k(f"s_lshl_b32 s55, s{sXC}, 2")
    k("s_lshr_b32 s54, s54, s55")
    k("s_and_b32 s54, s54, 15")
    k(f"s_cmp_eq_u32 s54, {14 if not os.environ.get('SLOW') else 15}")
    k(f"s_cbranch_scc1 {FAST}")
    for r in (52, 53):
        k(f"s_lshr_b32 s54, s{r}, 4")
        k("s_and_b32 s54, s54, 0x0f0f0f0f")
        k(f"s_and_b32 s{r}, s{r}, 0x0f0f0f0f")
        k(f"s_add_u32 s{r}, s{r}, s54")
    k("s_add_u32 s52, s52, s53")
    k("s_mul_i32 s52, s52, 0x01010101")
    k("s_lshr_b32 s52, s52, 24")
    k("s_cmp_ge_u32 s52, 14")
    k(f"s_cbranch_scc1 {SLOW}")
    k("s_sub_u32 s50, s50, 1")
    k("s_cmp_eq_u32 s50, 0")
    k(f"s_cbranch_scc1 {SLOW}")
    k(cload)
    k("s_waitcnt vmcnt(0)")
    k(f"s_branch {CL}")
    state = (vm.n, vm.done, getattr(k, "_nst", 0), getattr(k, "_seq", 0))

    def rest(mode):
        vm.n, vm.done, k._nst, k._seq = state
        lg = Cnt(k, "lgkmcnt", 15)

        def arrive(off):
            vm.op(f"buffer_store_dword {v(vOne)}, off, s[8:11], s{sFI} offset:{off}{mode}")

        def pload(off):
            return f"buffer_load_dword v31, {v(vLP)}, s[8:11], s{sFL} offen offset:{off} sc1"

        def poll(off, mark=None):
            spin(pload(off), "v_cmp_eq_u32 vcc, 0, v31", mark)

        def put(q, cnt=1):
            for _ in range(cnt):
                if q:
                    e = q.pop(0)
                    e() if callable(e) else k("\n".join(e))

        vm.wait(bt_half if SPLIT3 else p3_loads)
        k("s_barrier")
        k.stamp()
        vR, vA = 88, 120
        seq = [(t, nb) for t in range(14) for nb in range(4)]

        def rd3(n):
            t, nb = seq[n]
            if SPLIT3 and n == 28:
                vm.wait(p3_loads)
                k("s_barrier")
            for u in range(2):
                if SPLIT3:
                    k(f"ds_read_b64_tr_b16 {v(vR+4*(n%8)+2*u,2)}, {v(vTB+nb if t < 7 else 60+nb)} offset:{(t%7)*4096+u*512}")
                else:
                    k(f"ds_read_b64_tr_b16 {v(vR+4*(n%8)+2*u,2)}, {v(vTB+nb)} offset:{t*4096+u*512}")

        DEPTH = 6
        for n in range(DEPTH):
            rd3(n)
        if TD:
            vm.op(touch_down(3, sA))
        for n in range(56):
            t, nb = seq[n]
            k(f"s_waitcnt lgkmcnt({2*min(DEPTH-1, 55-n)})")
            acc = vA + 16 * (t // 7) + 4 * nb
            gm = 64 if SPLIT3 and t == 13 else vGm + 4 * (t % 7)
            k(f"v_mfma_f32_16x16x32_bf16 {v(acc,4)}, {v(gm,4)}, {v(vR+4*(n%8),4)}, {'0' if t % 7 == 0 else v(acc,4)}")
            if n == 32 and not SPLIT3:
                k("s_mov_b32 exec_lo, 0")
                k("s_mov_b32 exec_hi, 0xffff0000")
                k(f"v_mov_b32 {v(vGm+27)}, 0x3f80")
                k("s_mov_b64 exec, -1")
            if n + DEPTH < 56:
                rd3(n + DEPTH)
        k.stamp(1) if FINE == 2 else None
        vX, vH, vHc, vU = 20, 32, 40, 48
        k(f"ds_read_b128 {v(vX,4)}, {v(vXA)}")
        k(f"ds_read_b128 {v(vX+4,4)}, {v(vXA)} offset:4096")
        k(f"s_mul_i32 s26, s{sRT}, 56")
        k(f"s_lshl2_add_u32 s27, s{sCT}, s{sW}")
        k("s_add_u32 s26, s26, s27")
        k("s_lshl_b32 s26, s26, 10")
        k(f"s_add_u32 s26, s26, {HC}")
        k(f"s_add_u32 s27, s26, {28*1024}")
        for r in range(0, 16, 2):
            k(f"v_pk_add_f32 {v(vA+r,2)}, {v(vA+r,2)}, {v(vA+16+r,2)} neg_hi:[0,1]")
        if SPLIT3:
            for r in range(1, 16, 2):
                k(f"v_xor_b32 {v(vA+r)}, s59, {v(vA+r)}")
        for p in range(2):
            for r in range(4):
                k(f"v_permlane16_swap_b32 {v(vA+8*p+r)}, {v(vA+8*p+4+r)}")
        k("s_waitcnt lgkmcnt(0)")
        for p in range(2):
            for q in range(4):
                k(f"v_lshlrev_b32 {v(vU+2*q)}, 16, {v(vX+4*p+q)}")
                k(f"v_and_b32 {v(vU+2*q+1)}, 0xffff0000, {v(vX+4*p+q)}")
            for e in range(0, 8, 2):
                k(f"v_pk_add_f32 {v(vA+8*p+e,2)}, {v(vA+8*p+e,2)}, {v(vU+e,2)}")
            for e in range(0, 8, 2):
                k(f"v_pk_add_f32 {v(vA+16+8*p+e,2)}, {v(vA+8*p+e,2)}, {v(vM,2)} op_sel:[0,{p}] op_sel_hi:[1,{p}] neg_lo:[0,1] neg_hi:[0,1]")
            for q in range(4):
                k(f"v_cvt_pk_bf16_f32 {v(vHc+4*p+q)}, {v(vA+16+8*p+2*q)}, {v(vA+17+8*p+2*q)}")
            hc_st = vm.op(f"buffer_store_dwordx4 {v(vHc+4*p,4)}, {v(vL16)}, s[8:11], s{26+p} offen{mode}")
        k.stamp(1) if FINE == 2 else None
        vm.wait(sid[55])
        k("s_barrier")
        k.stamp(1) if FINE == 2 else None
        sread(nr2, 28)
        k.stamp()
        vm.wait(hc_st)
        k("s_waitcnt lgkmcnt(0)")
        k.stamp(1) if FINE == 2 else None
        arrive(0)
        for p in range(2):
            for q in range(4):
                k(f"v_cvt_pk_bf16_f32 {v(vH+4*p+q)}, {v(vA+8*p+2*q)}, {v(vA+8*p+2*q+1)}")
            k(f"ds_write_b128 {v(vXA)}, {v(vH+4*p,4)} offset:{4096*p}")
        for p in range(2):
            k(f"v_mul_f32 {v(vM+p)}, {v(vA+16+8*p)}, {v(vA+16+8*p)}")
        for e in range(1, 8):
            for p in range(2):
                k(f"v_fmac_f32 {v(vM+p)}, {v(vA+16+8*p+e)}, {v(vA+16+8*p+e)}")
        k(f"s_lshl_b32 s26, s{sW}, 8")
        k(f"s_add_u32 s26, s26, {R2}")
        k(f"v_add_u32 v7, s26, {v(vL4)}")
        k(f"v_permlane32_swap_b32 {v(vM)}, {v(vM+1)}")
        k(f"v_add_f32 {v(vM)}, {v(vM)}, {v(vM+1)}")
        k(f"ds_write_b32 v7, {v(vM)}")
        sDL, sDG, sAB, sST1, sRG = 51, 53, 55, 57, 35
        vB1, vPA, vP1, vDG, vDT = 6, 11, 25, 8, 9
        k(f"s_mul_i32 s{sAB+1}, s{sRB}, 114688")
        k(f"s_add_u32 s{sAB+1}, s{sAB+1}, {HC}")
        k(f"s_mul_i32 s{sDL}, s{sW}, 28672")
        k(f"s_and_b32 s28, s{sW}, 1")
        k("s_mul_i32 s28, s28, 57344")
        k(f"s_lshr_b32 s26, s{sW}, 1")
        k(f"s_lshl_b32 s{sDL+1}, s26, 10")
        k(f"s_add_u32 s{sDL+1}, s{sDL+1}, s28")
        k(f"s_add_u32 s{sDG}, s{sAB+1}, s{sDL}")
        k(f"s_add_u32 s{sDG+1}, s{sAB+1}, s{sDL+1}")
        k(f"s_add_u32 s{sDG}, s{sDG}, s{sROT}")
        k(f"s_add_u32 s{sDG+1}, s{sDG+1}, s{sROT}")
        k(f"v_add_u32 {v(vB1)}, 57344, {v(vL16)}")
        k(f"s_mul_i32 s{sSS}, s{sRT}, 1792")
        k(f"s_add_u32 s{sSS}, s{sSS}, {SSP}")
        k(f"v_add_u32 v7, {R2}, {v(vL4)}")
        k(f"s_mul_i32 s{sHS}, s{sRB}, {4*112}")
        k(f"s_lshl1_add_u32 s{sHS}, s{sFB}, s{sHS}")
        k(f"s_lshl_b32 s{sHS}, s{sHS}, 10")
        k(f"s_add_u32 s{sHS}, s{sHS}, {HP}")
        k(f"v_lshlrev_b32 {v(vPA)}, 12, {v(vG)}")
        k(f"v_lshl_add_u32 {v(vPA)}, {v(vC)}, 4, {v(vPA)}")
        k(f"s_lshl_b32 s{sAB}, s{sRB}, 8")
        k(f"s_mul_i32 s{sHP}, s{sRT}, 224")
        k(f"s_mul_i32 s28, s{sW}, 28")
        k(f"s_add_u32 s{sHP}, s{sHP}, s28")
        k(f"s_lshl_b32 s{sHP}, s{sHP}, 10")
        k(f"s_add_u32 s{sHP}, s{sHP}, {HP}")
        k(f"s_mul_i32 s{sWD}, s{sW}, {448*896}")
        k(f"s_lshl_b32 s28, s{sCT}, 7")
        k(f"s_add_u32 s{sWD}, s{sWD}, s28")
        k(f"s_add_u32 s46, s{sCT}, s{sRT}")
        k(f"s_lshl_b32 s{sRG}, s{sW}, 13")
        k(f"s_add_u32 s{sRG}, s{sRG}, {RNG}")
        k(f"v_and_b32 v12, 1, {v(vG)}")
        k("v_and_b32 v13, 7, v1")
        k("v_lshlrev_b32 v14, 2, v12")
        k("v_xor_b32 v13, v13, v14")
        k("v_lshrrev_b32 v14, 3, v1")
        k("v_mul_u32_u24 v14, 0x380, v14")
        k(f"v_lshl_add_u32 {v(vDG)}, v13, 4, v14")
        k("v_bfe_u32 v13, v1, 2, 2")
        k("v_lshrrev_b32 v14, 5, v1")
        k("v_lshl_add_u32 v14, v14, 2, v13")
        k("v_lshrrev_b32 v13, 1, v13")
        k("v_lshlrev_b32 v13, 6, v13")
        k("v_lshl_add_u32 v13, v14, 7, v13")
        k("v_lshl_add_u32 v13, v12, 5, v13")
        k("v_and_b32 v14, 3, v1")
        k("v_lshl_add_u32 v13, v14, 3, v13")
        k(f"v_add_u32 {v(vDT)}, s{sRG}, v13")
        k(f"v_xor_b32 v26, 64, {v(vDT)}")
        k(f"v_add_u32 v56, s{sDL}, v13")
        k("v_xor_b32 v57, 64, v56")
        poll(0)
        k.stamp()
        uses = [(kp, b) for kp in range(KS) for b in range(4)]
        uses += [(kp, b) for kp in range(KS, 28) for b in (0, 2)]
        uB = len(uses)
        uses += [(kp, b) for kp in range(KS, 28) for b in (1, 3)]
        last_use = {kp: max(u for u, x in enumerate(uses) if x[0] == kp) for kp in range(28)}
        npair = (28 - KS) // 2
        Dm = []

        def dma():
            i = len(Dm)
            if i < KS:
                sel, off = 0, i * 1024
            else:
                sel, off = 1, ((i - KS) // npair) * 28672 + (KS + 2 * ((i - KS) % npair)) * 1024
            k(f"s_add_u32 m0, s{sDL+sel}, {off}")
            if ROTW and off % 28672 >= 4096:
                k(f"s_cmp_ge_u32 s{sROT}, {28672 - off % 28672}")
                k(f"s_cselect_b32 s28, {off - 28672 & 0xffffffff}, {off}".replace(f", {off}", ", s26") if False else f"s_cselect_b32 s28, 28672, 0")
                k(f"s_sub_u32 s28, s{sDG+sel}, s28")
                k(f"s_add_u32 s28, s28, {off}")
            else:
                k(f"s_add_u32 s28, s{sDG+sel}, {off}")
            Dm.append(vm.op(f"buffer_load_dwordx4 {v(vL16)}, s[8:11], s28 offen{LD} lds"))

        wd_regs = [(0, lambda o, n, i=i: a(224 + 8 * i + o, n)) for i in range(4)]
        wd_regs += [(0, lambda o, n, i=i: v(64 + 8 * i + o, n)) for i in range(8)]
        wd_regs += [(last_use[i] + 1, lambda o, n, i=i: a(8 * i + o, n)) for i in range(16)]
        n2 = min(KS, 8) // 2 * 2 if RING2 else 0
        free2 = 4 * KS + 2
        assert 4 * KS <= 56
        wdd, wdt = [], []
        shadow = [0]

        def quarter(dst, g, size, base):
            k(f"s_add_u32 s{dst}, s{46 if ROTD == 2 else sCT}, {g}")
            k(f"s_and_b32 s{dst}, s{dst}, 3")
            k(f"s_mul_i32 s{dst}, s{dst}, {size}")
            k(f"s_add_u32 s{dst}, s{dst}, s{base}")

        slots = [None] * (8 + n2)
        slot_of = []

        def wd_dma(now):
            n = len(wdd)
            if n == 56:
                return False
            free = [i for i, j in enumerate(slots) if (i < 8 or now >= free2) and
                    (j is None or (len(wdt) > 2 * j + 1 and wdt[2 * j + 1] < lg.done))]
            if not free:
                return False
            slots[free[0]] = n
            slot_of.append(free[0])
            k(f"s_add_u32 m0, s{sRG if free[0] < 8 else sDL}, {(free[0] % 8) * 1024}")
            if ROTD and n % 14 == 0:
                quarter(44, n // 14, 112 * 896, sWD)
            elif n:
                k(f"s_add_u32 s{44 if ROTD else sWD}, s{44 if ROTD else sWD}, {8*896}")
            wdd.append((vm.op(f"buffer_load_dwordx4 {v(vDG)}, s[{sA}:{sA+3}], s{44 if ROTD else sWD} offen lds"), max(now + WLAT, shadow[0])))
            return True

        def wd_tr(now, force=False):
            n = len(wdt)
            kp, u_, db = n // 4, (n >> 1) & 1, n & 1
            if n == 112 or len(wdd) <= 2 * kp + u_ or (not force and (wd_regs[kp][0] > now or wdd[2 * kp + u_][1] > now)):
                return False
            vm.wait(wdd[2 * kp + u_][0])
            sl = slot_of[2 * kp + u_]
            wdt.append(lg.op(f"ds_read_b64_tr_b16 {wd_regs[kp][1](4*db+2*u_, 2)}, v{(26 if db else vDT) if sl < 8 else 56 + db} offset:{(sl % 8) * 1024}"))
            return True

        aQ = 128
        hl = []

        def hload():
            n = len(hl)
            p, kp = n // 28, n % 28
            if p == 1:
                if kp == 0:
                    k(f"s_cmp_eq_u32 s{sHALF}, 0")
                    k("s_movk_i32 s58, 1024")
                    k(f"s_cselect_b32 s{sST1}, 0x4000, s58")
                    k(f"s_cselect_b32 s59, s{sAB}, s{sAB+1}")
                    k("s_cselect_b64 vcc, -1, 0")
                    k(f"s_mul_i32 s58, s{sW}, 28")
                    k(f"s_mul_i32 s58, s58, s{sST1}")
                    k("s_add_u32 s59, s59, s58")
                    k(f"v_cndmask_b32 {v(vP1)}, {v(vL16)}, {v(vPA)}, vcc")
                    k(f"s_mul_i32 s58, s{sST1}, 7")
                if ROTD and kp % 7 == 0:
                    quarter(45, kp // 7, "s58", 59)
                elif kp:
                    k(f"s_add_u32 s{45 if ROTD else 59}, s{45 if ROTD else 59}, s{sST1}")
                hl.append(vm.op(f"buffer_load_dwordx4 {a(aQ+4*(n%24),4)}, {v(vP1)}, s[8:11], s{45 if ROTD else 59} offen{LD}"))
                return
            if ROTD:
                if kp % 7 == 0:
                    quarter(45, kp // 7, 7168, sHP)
                if kp % 7 == 4:
                    k("s_add_u32 s45, s45, 4096")
                hl.append(vm.op(f"buffer_load_dwordx4 {a(aQ+4*(n%24),4)}, {v(vL16)}, s[8:11], s45 offen offset:{(kp%7%4)*1024}{LD}"))
                return
            hl.append(vm.op(f"buffer_load_dwordx4 {a(aQ+4*(n%24),4)}, {v(vL16)}, s[8:11], s{sHP} offen offset:{(kp%4)*1024}{LD}"))
            if kp % 4 == 3:
                k(f"s_add_u32 s{sHP}, s{sHP}, 4096")

        vF, vAcc, LOOK = 32, 128, 4
        accreg = {0: vAcc, 2: vAcc + 32, 1: vAcc + 64, 3: vAcc + 96}
        fr = {}

        def rd4(u):
            kp, b = uses[u]
            fr[u] = lg.op(f"ds_read_b128 {v(vF+4*(u%6),4)}, {v(vL16 if b < 2 else vB1)} offset:{(b&1)*28672+kp*1024}")

        last_st = [None]
        clock = [0]

        def hp_store(b, u):
            vo, off, pol = vL16, u * 1024, " sc1" if MB else mode
            if b == 1:
                vo, off = vPA, 0
                k(f"s_lshl_b32 s38, s{sFB}, 15\ns_add_u32 s38, s38, s{sAB}" if u == 0 else "s_add_u32 s38, s38, 16384")
            elif b == 3:
                if u == 0:
                    k(f"s_lshl_b32 s38, s{sFB}, 11\ns_add_u32 s38, s38, s{sAB+1}")
            else:
                pol = " sc1" if MA else mode
                if u == 0:
                    k(f"s_add_u32 s38, s{sHS}, {b*112*1024}")
            last_st[0] = vm.op(f"buffer_store_dwordx4 {v(accreg[b]+4*u,4)}, {v(vo)}, s[8:11], s38 offen offset:{off}{pol}")
            shadow[0] = clock[0] + (20 if pol else 11)

        def epilogue(ps):
            items = [(b, r) for b in (ps, ps + 2) for r in range(8)]
            out = []
            for i in range(len(items) + 1):
                grp = []
                if i < len(items):
                    b, r = items[i]
                    g_, u_ = accreg[b], accreg[b] + 16
                    grp += [f"v_mul_f32 {v(u_+2*r)}, {v(g_+2*r)}, {v(u_+2*r)}",
                            f"v_mul_f32 {v(u_+2*r+1)}, {v(g_+2*r+1)}, {v(u_+2*r+1)}"]
                if i > 0:
                    b, r = items[i - 1]
                    grp.append(f"v_cvt_pk_bf16_f32 {v(accreg[b]+r)}, {v(accreg[b]+16+2*r)}, {v(accreg[b]+17+2*r)}")
                out.append(grp)
                if i > 0 and items[i - 1][1] % 4 == 3:
                    out.append(lambda b=items[i - 1][0], u=items[i - 1][1] // 4: hp_store(b, u))
            return out

        chunks = eval(os.environ.get("CHUNKS", "{0: 2, 3: 6, 7: 15, 16: 27}"))
        for _ in range(NDMA0):
            dma()
        k("s_waitcnt lgkmcnt(0)")
        vm.wait(Dm[chunks[0]])
        k("s_barrier")
        k.stamp()
        for u in range(LOOK):
            rd4(u)
        epi = epilogue(0)
        checked = False
        for u in range(112):
            kp, b = uses[u]
            clock[0] = u
            if (u + LOOK) % 4 == 0 and (u + LOOK) // 4 in chunks:
                vm.wait(Dm[chunks[(u + LOOK) // 4]])
                k("s_barrier")
            if n2 and u == free2:
                k("s_barrier")
            if u == uB + DRAIN_A:
                assert not epi
                vm.wait(last_st[0])
                arrive(256)
            if u == uB + POLL_A:
                markA = vm.op(pload(256))
            if u == uB + CHECK_A:
                poll(256, markA)
                checked = True
            if u == 1:
                lg.op("ds_read2st64_b32 v[12:13], v7 offset1:1")
                ssr = lg.op("ds_read2st64_b32 v[14:15], v7 offset0:2 offset1:3")
                k(f"s_lshl_b32 s26, s{sCT}, 8")
                k(f"s_add_u32 s26, s26, s{sSS}")
            if u == 5:
                lg.wait(ssr)
                k("v_add_f32 v12, v12, v13")
                k("v_add_f32 v14, v14, v15")
                k("v_add_f32 v12, v12, v14")
                vm.op(f"buffer_store_dword v12, {v(vL4)}, s[8:11], s26 offen{mode}")
            if u % 2 == 0:
                lg.wait(fr[u + 1])
            busy = u >= uB + 1 and bool(epi)
            for m in range(2):
                acc = accreg[b] + 16 * m
                k(f"v_mfma_f32_32x32x16_bf16 {v(acc,16)}, {a(8*kp+4*m,4)}, {v(vF+4*(u%6),4)}, {'0' if kp == 0 else v(acc,16)}")
                if m == 0:
                    if u + LOOK < 112:
                        rd4(u + LOOK)
                    wd_tr(u)

                    def memop():
                        if len(Dm) < 16 and u % DRATE != DRATE - 1:
                            dma()
                        elif checked and len(hl) < RING and last_use[16 + len(hl) // 2] < u:
                            hload()
                        elif not (u % 3 != 2 and wd_dma(u)):
                            dma() if len(Dm) < 28 else wd_dma(u)

                    if busy:
                        put(epi)
                    n0 = vm.n
                    held = capture(memop)
                    k("\n".join(held[:-1]))
                    vm.n, n1 = n0, vm.n
                else:
                    k("\n".join(held[-1:]))
                    vm.n = n1
                    if busy:
                        put(epi)
                    else:
                        wd_tr(u)
                if os.environ.get("TL") and m == 1 and not mode:
                    print(u, len(Dm), len(wdd), len(wdt), file=sys.stderr)
            if u in P4ST:
                k.stamp(1)
            if u == uB - 1 or u == 111:
                k.stamp()
        print("after P4: ring loads", len(wdd), "transposed reads", len(wdt), "h loads", len(hl), file=sys.stderr)
        vRW, vRR, vR2, vHR, vSP = 12, 20, 22, 24, 32
        vAc5, vT5 = 128, 192
        fill = epilogue(1)
        clock[0] = -999
        if not checked:
            assert EPI_B0 <= 14
            put(fill, EPI_B0)
            poll(256, markA)
        while len(fill) > EPIB:
            if len(hl) < 8:
                hload()
            put(fill, 2)
        rest_epi = fill
        fill = [["v_and_b32 v6, 31, v1", "v_lshrrev_b32 v7, 5, v1", "v_and_b32 v27, 7, v1", "v_xor_b32 v7, v7, v27"],
                [f"s_lshl_b32 s26, s{sW}, 13", "v_lshlrev_b32 v7, 4, v7", "v_lshl_add_u32 v7, v6, 8, v7", f"v_add_u32 {v(vRW)}, s26, v7"],
                [f"v_xor_b32 {v(vRW+i)}, {32*i}, {v(vRW)}" for i in range(1, 5)],
                [f"v_xor_b32 {v(vRW+i)}, {32*i}, {v(vRW)}" for i in range(5, 8)],
                ["v_lshrrev_b32 v6, 3, v1", f"s_and_b32 s26, s{sW}, 1", "s_lshl_b32 s26, s26, 2", f"v_xor_b32 v7, v27, {v(vG)}",
                 "v_xor_b32 v7, s26, v7"],
                ["v_lshlrev_b32 v7, 1, v7", "v_xor_b32 v7, v7, v6", f"s_lshl_b32 s26, s{sW}, 11", "v_lshlrev_b32 v7, 4, v7"],
                ["v_lshl_add_u32 v7, v6, 8, v7", f"v_add_u32 {v(vRR)}, s26, v7", f"v_xor_b32 {v(vRR+1)}, 16, {v(vRR)}"],
                [f"s_lshl_b32 s26, s{sW}, 10", f"s_add_u32 s26, s26, {XT}", f"v_add_u32 {v(vHR)}, s26, {v(vL16)}",
                 f"s_lshl_b32 s26, s{sW}, 5", "v_lshl_add_u32 v28, v6, 2, s26"]]
        ssl = []

        def ssload(i):
            for j in range(2 * i, min(2 * i + 2, 7)):
                ssl.append(vm.op(f"buffer_load_dword {v(vSP+j)}, {v(vL4)}, s[8:11], s{sSS} offen offset:{256*j}{LD}"))

        fill = rest_epi + fill + [lambda i=i: ssload(i) for i in range(4)]
        r2calc = [[f"v_add_f32 {v(vSP)}, {v(vSP)}, {v(vSP+1)}", f"v_add_f32 {v(vSP+2)}, {v(vSP+2)}, {v(vSP+3)}",
                   f"v_add_f32 {v(vSP+4)}, {v(vSP+4)}, {v(vSP+5)}", f"v_add_f32 {v(vSP)}, {v(vSP)}, {v(vSP+6)}"],
                  [f"v_add_f32 {v(vSP+2)}, {v(vSP+2)}, {v(vSP+4)}", f"v_mov_b32 {v(vSP+1)}, {f2u(EPS)}",
                   f"v_add_f32 {v(vSP)}, {v(vSP)}, {v(vSP+2)}", f"v_fmac_f32 {v(vSP+1)}, {f2u(1.0/448)}, {v(vSP)}"],
                  [f"v_rcp_f32 {v(vSP)}, {v(vSP+1)}", "v_add_u32 v29, 128, v28"],
                  [f"ds_bpermute_b32 {v(vR2)}, v28, {v(vSP)}", f"ds_bpermute_b32 {v(vR2+1)}, v29, {v(vSP)}"]]

        def red_write(p):
            q_ = [[f"ds_write_b128 {v(vRW+i)}, {v(vAc5+32*p+4*i,4)} offset:{p*32768}"] for i in range(8)]
            return q_ + [[f"ds_read_b128 {v(vT5+32,4)}, {v(vHR)} offset:{p*4096}"]]

        def red_read(p):
            q_ = [["s_waitcnt lgkmcnt(0)", "s_barrier"] +
                  [f"ds_read_b128 {v(vT5+4*z,4)}, {v(vRR+z)} offset:{p*32768}" for z in range(2)]]
            for j in range(1, 4):
                q_.append([f"ds_read_b128 {v(vT5+8*j+4*z,4)}, {v(vRR+z)} offset:{p*32768+j*8192}" for z in range(2)])
            for h2 in range(2):
                q_.append([t_ for q in (2 * h2, 2 * h2 + 1) for t_ in
                           (f"v_lshlrev_b32 {v(vT5+36+2*q)}, 16, {v(vT5+32+q)}",
                            f"v_and_b32 {v(vT5+37+2*q)}, 0xffff0000, {v(vT5+32+q)}")])
            for j, (d_, s_) in enumerate(((0, 8), (16, 24), (0, 16))):
                for h2 in range(2):
                    q_.append(([f"s_waitcnt lgkmcnt({4 if j == 0 else 0})"] if h2 == 0 and j < 2 else []) +
                              ([f"v_add_f32 {v(vT5+d_+r)}, {v(vT5+d_+r)}, {v(vT5+s_+r)}" for r in range(4 * h2, 4 * h2 + 4)] if p == 0 else
                               [f"v_pk_add_f32 {v(vT5+d_+r,2)}, {v(vT5+d_+r,2)}, {v(vT5+s_+r,2)}" for r in range(4 * h2, 4 * h2 + 4, 2)]))
            for h2 in range(2):
                q_.append([f"v_fmac_f32 {v(vT5+36+r)}, {v(vT5+r)}, {v(vR2+p)}" for r in range(4 * h2, 4 * h2 + 4)] if p == 0 else
                          [f"v_pk_fma_f32 {v(vT5+36+r,2)}, {v(vT5+r,2)}, {v(vR2,2)}, {v(vT5+36+r,2)} op_sel:[0,1,0]" for r in range(4 * h2, 4 * h2 + 4, 2)])
            q_.append([f"v_cvt_pk_bf16_f32 {v(vT5+8+q)}, {v(vT5+36+2*q)}, {v(vT5+37+2*q)}" for q in range(4)])
            q_.append(lambda: vm.op(f"buffer_store_dwordx4 {v(vT5+8,4)}, {v(vXO)}, s[16:19], s{sXO+p} offen{SCO}"))
            return q_

        if P5ST:
            k.stamp(1)
        def mf5(n, dl):
            acc = vAc5 + 32 * (n // 28) + 16 * dl
            k(f"v_mfma_f32_32x32x16_bf16 {v(acc,16)}, {wd_regs[n % 28][1](4*dl, 4)}, {a(aQ+4*(n%24),4)}, {'0' if n % 28 == 0 else v(acc,16)}")

        for n in range(56 - TAILR):
            p, kp = n // 28, n % 28
            now = 112 + n
            if n == DRAIN_B:
                assert len(wdt) == 112 or not n2
                lg.wait(wdt[-1])
                vm.wait(last_st[0])
                arrive(512)
            if n == POLL_B:
                markB = vm.op(pload(512))
            if n == CHECK_B:
                k.stamp()
                poll(512, markB)
            if n == 22:
                assert len(wdt) == 112
                vm.wait(ssl[6])
                fill += r2calc
            if n == LATE and F_LATE in WBL:
                k(f"s_add_u32 s26, s{sFI}, {F_LATE}")
                vm.op(f"buffer_store_dword {v(vOne)}, off, s[8:11], s26{mode}")
            if n == 28:
                assert not fill
                fill = red_write(0)
                while fill:
                    if len(hl) < 28 + RING1:
                        hload()
                    put(fill, 2)
            if n == RED0:
                fill = red_read(0)
            if p == 0:
                while len(wdt) < 4 * kp + 4:
                    assert wd_tr(now, True)
                lg.wait(wdt[4 * kp + 3])
            vm.wait(hl[n])
            for dl in range(2):
                acc = vAc5 + 32 * p + 16 * dl
                k(f"v_mfma_f32_32x32x16_bf16 {v(acc,16)}, {wd_regs[kp][1](4*dl, 4)}, {a(aQ+4*(n%24),4)}, {'0' if kp == 0 else v(acc,16)}")
                if len(wdt) < 112:
                    if len(wdt) >= 8:
                        lg.wait(wdt[-8])
                    wd_tr(now)
                    if dl == 1:
                        wd_dma(now)
                if dl == 0:
                    if len(hl) < (28 if n < CHECK_B else 56) and len(hl) < n + 24:
                        hload()
                    else:
                        put(fill)
                else:
                    put(fill, 2 if n < (EPIB + 1) // 2 + 2 * (EPIB > 15) else 1)
            if n in P5ST:
                k.stamp(1)
        put(fill, 99)
        fill = red_write(1)
        fill.insert(0, fill.pop())
        for n in range(56 - TAILR, 56):
            vm.wait(hl[n])
            mf5(n, 0)
        put(fill)
        for i, n in enumerate(range(56 - TAILR, 56)):
            mf5(n, 1)
            if i >= 1:
                put(fill, 2 if i == TAILR - 1 else 1)
        k.stamp()
        put(fill, 99)
        put(red_read(1), 99)
        if k.prof:
            k("s_waitcnt vmcnt(0)")
        if DBGT:
            k.stamp(-1)
            k("s_waitcnt lgkmcnt(0)")
            k("s_mov_b64 exec, 1")
            k("v_mov_b32 v1, 0")
            for i in range(1, k._nst):
                k(f"s_sub_u32 s26, s{64+2*i}, s{62+2*i}")
                k("v_mov_b32 v0, s26")
                k(f"global_atomic_add v1, v0, s[{sDBG}:{sDBG+1}] offset:{4*(i-1)} sc1")
        else:
            k.stamp_flush(6, PROF, sW)
        k("s_endpgm")

    k.label(FAST)
    rest("")

    k.label(SPARE)
    vm.n = vm.done = 0
    k._nst = min(1, getattr(k, "_nst", 0))
    sE = 21
    k(f"s_sub_u32 s{sE}, s2, 224")
    k(f"v_lshlrev_b32 {v(vL16)}, 4, v1")
    k("v_lshlrev_b32 v6, 7, v1")
    k("s_waitcnt lgkmcnt(0)")
    k.srd(8, 6, WS_BYTES)
    NZ = k.lab("nz")
    k(f"s_cmp_lt_u32 s{sE}, 24")
    k(f"s_cbranch_scc1 {NZ}")
    for j in range(4):
        k(f"v_mov_b32 v{108+j}, 0")
    k(f"s_sub_u32 s34, s{sE}, 24")
    k(f"s_lshl2_add_u32 s33, s34, s{sW}")
    k("s_lshl_b32 s33, s33, 11")
    k(f"s_add_u32 s33, s33, {FL}")
    k(f"buffer_store_dwordx4 v[108:111], {v(vL16)}, s[8:11], s33 offen sc1")
    k(f"buffer_store_dwordx4 v[108:111], {v(vL16)}, s[8:11], s33 offen offset:1024 sc1")
    k("v_mov_b32 v2, 1")
    k("s_lshl_b32 s34, s34, 2")
    k("v_mov_b32 v5, s34")
    k("s_waitcnt vmcnt(0)")
    k("s_barrier")
    wave0(f"global_store_dword v5, v2, s[{sDBG}:{sDBG+1}]{ZOFF} sc1", 1)
    k.label(NZ)
    k.stamp(-1)
    k(f"s_lshr_b32 s22, s{sE}, 3")
    k(f"s_lshl2_add_u32 s22, s22, s{sW}")
    k("s_lshl_b32 s23, s22, 13")
    k.srd(12, 52, WGB)
    k.srd(16, 54, WGB)
    k.srd(24, 56, WGB)
    k.srd(28, 58, XB)
    n = [0]

    def touch(srd, soff, vo=6):
        k(f"buffer_load_dword v{8 + n[0] % 48}, v{vo}, s[{srd}:{srd+3}], s{soff} offen ; alt")
        n[0] += 1

    for job in SP_LIST:
        if job == "G":
            for off in range(SP_D0 * 3584, SP_D1 * 3584, 16 * 8192):
                k(f"s_add_u32 s40, s23, {off}")
                touch(12, 40)
                touch(16, 40)
        if job == "X":
            nt = 2 * len(range(SP_D0 * 3584, WGB, 16 * 8192))
            k("s_and_b32 s42, s2, 7")
            k(f"s_mov_b32 s46, {WGB}")
            k("s_mov_b32 s47, 0x20000")
            for i in range(-(-nt // WIN) * WIN):
                k(f"s_add_u32 s40, s42, {i}")
                k(f"s_and_b32 s40, s40, {WIN - 1}")
                k(f"s_add_u32 s40, s40, {i // WIN * WIN}")
                k("s_bitcmp1_b32 s40, 0")
                k("s_cselect_b32 s44, s16, s12")
                k("s_cselect_b32 s45, s17, s13")
                k("s_lshr_b32 s40, s40, 1")
                k("s_lshl_b32 s40, s40, 17")
                k("s_add_u32 s40, s40, s23")
                k(f"s_add_u32 s40, s40, {SP_D0*3584}")
                touch(44, 40)
        if job == "H":
            k("v_lshrrev_b32 v7, 4, v1")
            k("v_mul_u32_u24 v7, 0xe00, v7")
            k("v_and_b32 v5, 15, v1")
            k("v_min_u32 v5, 13, v5")
            k("v_lshl_add_u32 v7, v5, 7, v7")
            k("s_and_b32 s41, s2, 1")
            k("s_mul_i32 s41, s41, 1792")
            k(f"s_mul_i32 s40, s22, {4*3584}")
            k("s_add_u32 s41, s41, s40")
            for d0 in range(SP_D0, 448, 64):
                k(f"s_add_u32 s40, s41, {d0*3584}")
                touch(12, 40, 7)
                touch(16, 40, 7)
        if job == "d":
            k("s_and_b32 s40, s2, 7")
            k(f"s_mul_i32 s40, s40, {3*8*8192 if ROTS else 0}")
            k("s_add_u32 s40, s40, s23")
            for off in range(0, WGB, 16 * 8192):
                touch(24, 40)
                k(f"s_add_u32 s40, s40, {16*8192}")
                k(f"s_cmp_ge_u32 s40, {13*16*8192}")
                k(f"s_cselect_b32 s41, {13*16*8192}, 0")
                k("s_sub_u32 s40, s40, s41")
        if job == "R":
            k("s_and_b32 s42, s2, 7")
            k(f"s_min_u32 s42, s42, {6 if ROTW else 0}")
            k("s_lshl_b32 s42, s42, 2")
            k("s_min_u32 s43, s22, 13")
            k("s_cmp_ge_u32 s43, 7")
            k("s_cselect_b32 s44, s16, s12")
            k("s_cselect_b32 s45, s17, s13")
            k("s_cselect_b32 s41, 7, 0")
            k("s_sub_u32 s43, s43, s41")
            k("s_lshl_b32 s43, s43, 13")
            k(f"s_mov_b32 s46, {WGB}")
            k("s_mov_b32 s47, 0x20000")
            for kp in range(SP_K, 28):
                k(f"s_add_u32 s40, s42, {kp}")
                k("s_cmp_ge_u32 s40, 28")
                k("s_cselect_b32 s41, 28, 0")
                k("s_sub_u32 s40, s40, s41")
                k("s_mul_i32 s40, s40, 57344")
                k("s_add_u32 s40, s40, s43")
                touch(44, 40)
        if job == "e":
            for off in range(0, 192 * 896, 16 * 8192):
                for q in range(4):
                    k(f"s_add_u32 s40, s23, {off}")
                    k(f"s_min_u32 s40, s40, {192*896 - 8192}")
                    k(f"s_add_u32 s40, s40, {q*448*896}")
                    touch(24, 40)
        if job == "h":
            k("s_and_b32 s41, s2, 7")
            k(f"s_mul_i32 s41, s41, {8*112*1024}")
            k(f"s_add_u32 s41, s41, {HP}")
            k("s_min_u32 s42, s22, 13")
            k("s_lshl_b32 s42, s42, 13")
            k("s_add_u32 s41, s41, s42")
            for blk in range(4):
                touch(8, 41)
                k(f"s_add_u32 s41, s41, {2*112*1024}")
        if job in "aw":
            k(f"s_lshl2_add_u32 s40, s{sE}, s{sW}")
            k("s_lshl_b32 s40, s40, 13")
            k(f"s_add_u32 s40, s40, {AT if job == 'a' else WT}")
            touch(8, 40)
            k("s_add_u32 s40, s40, 0x100000")
            k(f"s_min_u32 s40, s40, {(AT if job == 'a' else WT) + 223*8192}")
            touch(8, 40)
        if job in "AB":
            k("s_and_b32 s41, s2, 7")
            if job == "A":
                k("v_lshrrev_b32 v7, 2, v1")
                k("v_lshlrev_b32 v7, 12, v7")
                k("v_and_b32 v5, 3, v1")
                k("v_lshl_add_u32 v7, v5, 7, v7")
                k("s_lshl_b32 s41, s41, 9")
            else:
                k("v_lshrrev_b32 v7, 1, v1")
                k("v_lshlrev_b32 v7, 11, v7")
                k("v_and_b32 v5, 1, v1")
                k("v_lshl_add_u32 v7, v5, 7, v7")
                k("s_lshl_b32 s41, s41, 8")
                k(f"s_add_u32 s41, s41, {WT}")
            for i in range(2):
                k(f"s_add_u32 s40, s22, {16*i}")
                k("s_min_u32 s40, s40, 27")
                k("s_lshl_b32 s40, s40, 16")
                k("s_add_u32 s40, s40, s41")
                touch(8, 40, 7)
        if job == "o":
            k(f"s_lshl2_add_u32 s40, s{sE}, s{sW}")
            k("s_lshl_b32 s40, s40, 13")
            touch(28, 40)
            k("s_add_u32 s40, s40, 0x100000")
            touch(28, 40)
    if k.prof:
        k("s_waitcnt vmcnt(0)")
        k.stamp_flush(6, PROF, sW, 2)
    if WBL:
        k("s_cmp_lg_u32 s22, 0")
        k(f"s_cbranch_scc1 {END}")
        k("v_lshlrev_b32 v3, 2, v1")
        k("v_min_u32 v7, 28, v3")
        vm.n = vm.done = 0
        spin(f"global_load_dword v112, v7, s[{sDBG}:{sDBG+1}]{ZOFF} sc1", "v_cmp_eq_u32 vcc, 0, v112")
        k("v_min_u32 v3, 220, v3")
        k("s_and_b32 s22, s2, 7")
        k("s_lshl_b32 s22, s22, 11")
        k(f"s_add_u32 s22, s22, {FL}")
        k(f"s_mov_b32 s23, {SPIN_MAX}")
        for off in WBL:
            lp = k.lab("wl")
            if off == F_LATE:
                k(f"s_add_u32 s22, s22, {F_LATE}")
                off = 0
            k.label(lp)
            k(f"buffer_load_dword v4, v3, s[8:11], s22 offen offset:{off} sc1")
            k(f"buffer_load_dword v5, v3, s[8:11], s22 offen offset:{off+1024} sc1")
            k("s_sub_u32 s23, s23, 1")
            k("s_waitcnt vmcnt(0)")
            k("s_cmp_eq_u32 s23, 0")
            k(f"s_cbranch_scc1 {END}")
            k("v_and_b32 v4, v4, v5")
            k("v_cmp_eq_u32 vcc, 0, v4")
            k("s_nop 0")
            k(f"s_cbranch_vccnz {lp}")
            k("buffer_wbl2 sc1")
            k("s_waitcnt vmcnt(0)")
    k.label(END)
    k("s_endpgm")
    for o in outline:
        k(o)
    del outline[:]
    k.label(SLOW)
    rest(" sc1")
    for o in outline:
        k(o)
    return k


def build(k, as_list=False):
    body, desc = k.emit()
    print(k.stats, file=sys.stderr)
    head = ["; Fused preLN + GFNet spectral filter + preLN bilinear GLU in one launch (generated by gen/one.py)",
            "; kernarg: 0 A_x, 8 A_w_r, 16 A_w_i, 24 B_x (unused), 32 w_gate, 40 w_up, 48 w_down, 56 out, 64 debug, 72 ws",
            f"; @launch {'kernel=' + k.name + ' ' if as_list else ''}grid=(256,1,1) block=(256,1,1) lds={LDS}",
            '.amdgcn_target "amdgcn-amd-amdhsa--gfx950"', ".text"]
    return "\n".join(head + [body, '.section .rodata,"a"', ".p2align 6", desc]) + "\n"


if __name__ == "__main__":
    if "--prof" in sys.argv:
        Kern.prof = True
        sys.argv.remove("--prof")
    path = sys.argv[1] if len(sys.argv) > 1 else "sequential_preLN__spectral_gfnet__glu_gated_bilinear__prompt.s"
    open(path, "w").write(build(gen(), as_list=len(sys.argv) > 1))
```

```python
import os
import struct
import sys
from asmlib import Kern, v, a

NAME = "sequential_preLN__spectral_gfnet__glu_gated_bilinear__prompt_kernel"
S, D, F = 2048, 448, 1792
AT = BT = 0x000000
WT = HC = 0x200000
HP = 0x400000
M1 = 0xB00000
SSP = 0xB02000
FL = 0xB10000
WS_BYTES = 0xB20000
F_LATE, F_FB, F_P1, F_SP = 16384, 32768, 40960, 45056
PROF = 0x1800000
XB, WRB, WGB = S * D * 2, S * 225 * 2, D * F * 2
EPS = 1e-5
STG, XT, R2, RNG = 57344, 114688, 122880, 123904
LDS = RNG + 32768
SPIN_MAX = 1 << 18

E = lambda n, d: int(os.environ.get(n, d))
KS = E("KS", 4)
DRAIN_A, POLL_A, CHECK_A = E("DRAIN_A", 30), E("POLL_A", 38), E("CHECK_A", 42)
DRAIN_B, POLL_B, CHECK_B = E("DRAIN_B", 13), E("POLL_B", 21), E("CHECK_B", 26)
EPI_B0, RING, RING1, RED0, LATE = E("EPI_B0", 10), E("RING", 12), E("RING1", 8), E("RED0", 31), E("LATE", 46)
MA, NDMA0, WLAT = E("MA", 1), E("NDMA0", 7), E("WLAT", 10)
NP = [int(x) for x in os.environ.get("NP", "0,6,10").split(",")]
NS = [sum(NP)] + [int(x) for x in os.environ.get("NS", "6,6,6,14,8").split(",")]
WBL = eval(os.environ.get("WBL", "(F_LATE,)"))
SP_LIST = os.environ.get("SP_LIST", "cGd")
SP_D0, SP_K = E("SP_D0", 64), E("SP_K", 18)
TALL, TD, ROTW, ROTS = E("TALL", 0), E("TD", 0), E("ROTW", 0), E("ROTS", 1)
ROTD = E("ROTD", 1)
SCO = os.environ.get("SCO", " sc1")
TPM, TPS, PIPE = E("TPM", 0), E("TPS", 0), E("PIPE", 9)
DRATE = E("DRATE", 2)
TW, T1 = E("TW", 0), E("T1", 0)
SPLIT3, WFLAG = E("SPLIT3", 1), E("WFLAG", 1)
MAPB = E("MAPB", 0)
RING2 = E("RING2", 1)
ZFIRST = E("ZFIRST", 1)
SPS = os.environ.get("SPS", " sc1")
FINE = E("FINE", 0)
LD = os.environ.get("LD", " sc1")
WIN = E("WIN", 8)
SP_D1 = E("SP_D1", 350)
EPIB = E("EPIB", 0)
TAILR = E("TAILR", 0)
MB = E("MB", 0)
DBGT = E("DBGT", 0)
ZOFF = " offset:64" if DBGT else ""
P4ST = eval(os.environ.get("P4ST", "()"))
P5ST = eval(os.environ.get("P5ST", "()"))
assert sum(NS) == 56 and NS[0] <= 22 and sum(NS[1:4]) <= 22 and sum(NS[4:]) <= 22


def f2u(x):
    return "0x%08x" % struct.unpack("<I", struct.pack("<f", x))[0]


class Cnt:
    def __init__(self, k, name, lim):
        self.k, self.name, self.lim, self.n, self.done = k, name, lim, 0, 0

    def op(self, text):
        self.k(text)
        self.n += 1
        return self.n - 1

    def wait(self, idx):
        if idx < self.done:
            return
        c = min(self.n - idx - 1, self.lim)
        self.k(f"s_waitcnt {self.name}({c})")
        self.done = self.n - c

    def all(self):
        self.wait(self.n - 1)


def cmul8(k, y, x, c, sn, sign):
    neg = " neg_lo:[1,0,0] neg_hi:[1,0,0]"
    for e in range(0, 8, 2):
        k(f"v_pk_mul_f32 {v(y+e,2)}, {v(x+e,2)}, {v(c+e,2)}")
        k(f"v_pk_mul_f32 {v(y+8+e,2)}, {v(x+8+e,2)}, {v(c+e,2)}")
    for e in range(0, 8, 2):
        k(f"v_pk_fma_f32 {v(y+e,2)}, {v(x+8+e,2)}, {v(sn+e,2)}, {v(y+e,2)}" + (neg if sign > 0 else ""))
        k(f"v_pk_fma_f32 {v(y+8+e,2)}, {v(x+e,2)}, {v(sn+e,2)}, {v(y+8+e,2)}" + ("" if sign > 0 else neg))


def gen():
    k = Kern(NAME, 0, 0)
    vm = Cnt(k, "vmcnt", 63)
    END, SPARE = k.lab("end"), k.lab("spare")
    sW, sRB, sCT, sHALF, sRT, sFB = 20, 21, 22, 23, 24, 25
    sSB, sXO, sWG, sFL, sWD, sHS, sHP, sFI = 29, 30, 32, 33, 34, 36, 37, 39
    sA, sB = 40, 44
    sXC, sSS, sDBG, sROT, sWE = 60, 61, 62, 3, 38
    vL16, vG, vC, vL4, vOne, vLP = 3, 4, 5, 30, 2, 0
    vWG, vWT = 250, 251
    outline = []

    def touch_down(first, srd):
        k(f"s_and_b32 s26, s{sRT}, 3")
        k("s_mul_i32 s26, s26, 7")
        k(f"s_add_u32 s26, s26, s{sW}")
        k(f"s_mul_i32 s26, s26, {64*896}")
        k(f"s_lshl_b32 s27, s{sCT}, 7")
        k("s_add_u32 s26, s26, s27")
        k(f"s_add_u32 s26, s26, {first*64*896 & 0xffffffff}")
        k("v_mul_u32_u24 v244, 0x380, v1")
        return f"buffer_load_dword v{245 + (first > 0)}, v244, s[{srd}:{srd+3}], s26 offen"

    def capture(fn):
        saved, k.lines = k.lines, []
        fn()
        out, k.lines = k.lines, saved
        return out

    def spin(load, test, mark=None):
        loop, done = k.lab("poll"), k.lab("done")
        if mark is None:
            mark = vm.op(load)
        vm.wait(mark)
        k(test)
        k(f"s_mov_b32 s50, {SPIN_MAX}")
        k(f"s_cbranch_vccnz {loop}")
        k.label(done)
        outline.append(f"{loop}:\n{load}\ns_sub_u32 s50, s50, 1\ns_waitcnt vmcnt(0)\ns_cmp_eq_u32 s50, 0\n"
                       f"s_cbranch_scc1 {done}\n{test}\ns_nop 0\ns_cbranch_vccnz {loop}\ns_branch {done}")

    def spin0(load, regs, test, extra=0):
        loop, done, skip = k.lab("pp"), k.lab("pd"), k.lab("ps")
        n = len(regs)
        k(f"s_cmp_lg_u32 s{sW}, 0")
        k(f"s_cbranch_scc1 {skip}")
        k(f"s_mov_b32 s50, {SPIN_MAX}")
        for r in regs[:-1]:
            k(load(r) + " ; alt")
            if PIPE < 9:
                k(f"s_sleep {PIPE}")
        k.label(loop)
        for i in range(n):
            k(load(regs[(i - 1) % n]) + " ; alt")
            k(f"s_waitcnt vmcnt({n - 1})")
            k(test(regs[i]))
            k("s_nop 0")
            k(f"s_cbranch_vccz {done}")
        k("s_sub_u32 s50, s50, 1")
        k("s_cmp_lg_u32 s50, 0")
        k(f"s_cbranch_scc1 {loop}")
        k.label(done)
        k.label(skip)
        if extra:
            k(f"s_waitcnt vmcnt({extra})")
            vm.done = vm.n
        else:
            vm.all()
        k("s_barrier")

    def wave0(lines, mask):
        skip = k.lab("skip")
        k(f"s_cmp_lg_u32 s{sW}, 0")
        k(f"s_cbranch_scc1 {skip}")
        k(f"s_mov_b64 exec, {mask}")
        k(lines)
        k("s_mov_b64 exec, -1")
        k.label(skip)

    k("s_load_dwordx2 s[4:5], s[0:1], 0")
    k("s_load_dwordx4 s[44:47], s[0:1], 8")
    k("s_load_dwordx4 s[52:55], s[0:1], 32")
    k("s_load_dwordx4 s[56:59], s[0:1], 48")
    k(f"s_load_dwordx2 s[{sDBG}:{sDBG+1}], s[0:1], 64")
    k("s_load_dwordx2 s[6:7], s[0:1], 72")
    if "c" in SP_LIST:
        here, noc = k.lab("pc"), k.lab("noc")
        k("s_and_b32 s3, s2, 0xffffffe0")
        k("s_cmp_lg_u32 s3, 224")
        k(f"s_cbranch_scc1 {noc}")
        k("s_getpc_b64 s[8:9]")
        k.label(here)
        k("s_bfe_u32 s3, s2, 0x20003")
        k("v_lshrrev_b32 v1, 2, v0")
        k("s_lshl_b32 s3, s3, 13")
        k("v_lshl_add_u32 v1, v1, 7, s3")
        k("v_mov_b32 v3, s9")
        k("v_add_co_u32 v2, vcc, s8, v1")
        k("v_addc_co_u32 v3, vcc, 0, v3, vcc")
        k("global_load_dword v113, v[2:3], off ; alt")
        k.label(noc)
    k("s_cmp_ge_u32 s2, 256")
    k(f"s_cbranch_scc1 {END}")
    k.stamp()
    k("v_lshrrev_b32 v2, 6, v0")
    k("v_and_b32 v1, 63, v0")
    k(f"v_readfirstlane_b32 s{sW}, v2")
    k("s_cmp_ge_u32 s2, 224")
    k(f"s_cbranch_scc1 {SPARE}")
    k("s_lshr_b32 s26, s2, 3")
    k("s_mul_i32 s27, s26, 37")
    k("s_lshr_b32 s27, s27, 8")
    k("s_and_b32 s28, s2, 7")
    k(f"s_lshl2_add_u32 s{sRT}, s28, s27")
    k("s_mul_i32 s28, s27, 7")
    k(f"s_sub_u32 s{sCT}, s26, s28")

    k("v_lshrrev_b32 v4, 5, v1")
    k("v_bfe_u32 v5, v1, 3, 2")
    k("v_lshl_add_u32 v4, v4, 4, v5")
    k("v_mul_u32_u24 v4, 0x7000, v4")
    k("v_lshrrev_b32 v5, 4, v1")
    k("v_and_b32 v6, 7, v1")
    k("v_xor_b32 v6, v6, v5")
    k("v_lshl_add_u32 v2, v6, 4, v4")
    k("v_xor_b32 v3, 64, v2")
    k(f"v_add_u32 v3, {32*32*896}, v3")
    k(f"s_lshl_b32 s26, s{sW}, 7")
    k(f"s_add_u32 s26, s26, s{sRT}")
    k("s_mul_i32 s26, s26, 896")
    k(f"s_lshl_b32 s27, s{sW}, 11")
    vB, vST, vE, vSG, vT, vF, vKK, vOnes, vCS = 8, 9, 9, 17, 19, 28, 27, 152, 156

    def p1_consts():
        k("v_and_b32 v8, 15, v1")
        k(f"s_and_b32 s28, s{sW}, 1")
        k("s_lshl_b32 s28, s28, 4")
        k(f"s_lshl_b32 s29, s{sCT}, 5")
        k("s_add_u32 s28, s28, s29")
        k(f"v_add_u32 {v(vKK)}, s28, v8")
        k("v_lshrrev_b32 v9, 1, v8")
        k("v_xor_b32 v9, v9, v5")
        k("v_lshlrev_b32 v9, 4, v9")
        k("v_lshl_add_u32 v4, v8, 7, v9")
        k(f"v_add_u32 v19, 1, {v(vKK)}")
        k("v_cvt_f32_u32 v20, v19")
        k("v_and_b32 v19, 1, v19")
        k("v_lshlrev_b32 v19, 31, v19")
        k(f"v_or_b32 {v(vSG)}, 1.0, v19")
        for e in range(1, 8):
            k(f"v_mul_f32 {v(vE+e)}, {f2u(e/448.0)}, v20")
        k(f"v_mul_f32 {v(vST)}, {f2u(32.0/448)}, v20")
        k(f"v_fract_f32 {v(vST)}, {v(vST)}")
        k("v_lshlrev_b32 v21, 3, v5")
        k("v_cvt_f32_u32 v21, v21")
        k(f"s_lshr_b32 s30, s{sW}, 1")
        k(f"s_mul_i32 s31, s30, {f2u(0.25)}")
        k(f"v_mov_b32 {v(vB)}, s31")
        k(f"v_fmac_f32 {v(vB)}, v21, {v(vE+1)}")
        k(f"v_fract_f32 {v(vB)}, {v(vB)}")
        if MAPB:
            k(f"s_and_b32 s{sHALF}, s2, 1")
            k(f"s_bfe_u32 s{sRB}, s2, 0x20001")
            k(f"s_and_b32 s35, s{sRT}, 3")
            k(f"s_lshl2_add_u32 s{sRB}, s{sRB}, s35")
        else:
            k(f"s_and_b32 s{sHALF}, s{sRT}, 1")
            k(f"s_lshr_b32 s{sRB}, s{sRT}, 1")
        k(f"s_mul_i32 s{sFB}, s{sHALF}, 7")
        k(f"s_add_u32 s{sFB}, s{sFB}, s{sCT}")
        k(f"s_lshl_b32 s{sWG}, s{sFB}, 8")
        k(f"s_mul_i32 s35, s{sW}, {4*3584}")
        k(f"s_add_u32 s{sWG}, s{sWG}, s35")
        k(f"s_lshl2_add_u32 s{sFB}, s{sFB}, s{sW}")
        k(f"s_add_u32 s{sWE}, s{sWG}, {28*57344}")
        k(f"s_and_b32 s{sROT}, s2, 7")
        k(f"s_min_u32 s{sROT}, s{sROT}, {6 if ROTW else 0}")
        k(f"s_mul_i32 s35, s{sROT}, {4*57344}")
        k(f"s_add_u32 s{sWG}, s{sWG}, s35")
        k(f"s_lshl_b32 s{sROT}, s{sROT}, 12")
        k("v_bfe_u32 v21, v1, 2, 2")
        k("v_xor_b32 v22, v21, v5")
        k("v_and_b32 v23, 3, v1")
        k("v_lshlrev_b32 v22, 6, v22")
        k("v_lshl_add_u32 v22, v23, 4, v22")
        k(f"v_mul_u32_u24 {v(vWG)}, 0xe00, v5")
        k(f"v_add_u32 {v(vWG)}, {v(vWG)}, v22")
        k(f"v_xor_b32 v22, s{sW}, v21")
        k("v_lshlrev_b32 v22, 6, v22")
        k("v_lshl_add_u32 v22, v21, 8, v22")
        k("v_lshl_add_u32 v22, v23, 3, v22")
        k("v_and_b32 v23, 1, v5")
        k("v_lshl_add_u32 v22, v23, 5, v22")
        k("v_lshrrev_b32 v23, 5, v1")
        k("v_lshl_add_u32 v22, v23, 11, v22")
        k(f"v_add_u32 {v(vWT)}, {STG}, v22")
        k(f"v_add_u32 {v(vWT+1)}, {RNG}, v22")
        k(f"s_lshl_b32 s35, s{sW}, 10")
        k("v_xor_b32 v5, 64, v4")
        k("v_add_u32 v6, s27, v4")
        k("v_add_u32 v7, s27, v5")
        for p in range(4):
            k(f"v_mov_b32 {v(vOnes+p)}, 0x3f803f80")
        for t in range(7):
            k(f"v_cos_f32 {v(vT)}, {v(vB)}")
            for e in range(1, 8):
                k(f"v_add_f32 {v(vT+e)}, {v(vB)}, {v(vE+e)}")
            for e in range(1, 8):
                k(f"v_cos_f32 {v(vT+e)}, {v(vT+e)}")
            if t < 6:
                k(f"v_add_f32 {v(vB)}, {v(vB)}, {v(vST)}")
                k(f"v_fract_f32 {v(vB)}, {v(vB)}")
            for p in range(4):
                k(f"v_cvt_pk_bf16_f32 {v(vF+4*t+p)}, {v(vT+2*p)}, {v(vT+2*p+1)}")
            if t > 0:
                k(f"v_mfma_f32_16x16x32_bf16 {v(vCS,4)}, {v(vOnes,4)}, {v(vF+4*t-4,4)}, {'0' if t == 1 else v(vCS,4)}")

    lines = capture(p1_consts)
    per = -(-len(lines) // 14)

    def slot():
        for _ in range(min(per, len(lines))):
            k(lines.pop(0))

    k("s_waitcnt lgkmcnt(0)")
    k.stamp(1) if FINE == 1 else None
    k.srd(12, 4, XB)
    xs = []
    for i in range(7):
        if i == 0:
            k(f"s_mov_b32 s48, s{sCT}")
        else:
            k("s_add_u32 s48, s48, 1")
            k("s_cmp_eq_u32 s48, 7")
            k("s_cselect_b32 s48, 0, s48")
        k("s_lshl_b32 s49, s48, 7")
        k("s_add_u32 s49, s49, s26")
        k("s_lshl_b32 s51, s48, 13")
        k("s_add_u32 m0, s51, s27")
        vm.op("buffer_load_dwordx4 v2, s[12:15], s49 offen lds")
        slot()
        k("s_add_u32 m0, m0, 1024")
        xs.append(vm.op("buffer_load_dwordx4 v3, s[12:15], s49 offen lds"))
        slot()
    assert not lines
    k.stamp(1) if FINE == 1 else None
    k("s_mov_b32 s8, s46")
    k("s_and_b32 s9, s47, 0xffff")
    k(f"s_mov_b32 s10, {WRB}")
    k("s_mov_b32 s11, 0x20000")
    k("s_and_b32 s45, s45, 0xffff")
    k(f"s_mov_b32 s46, {WRB}")
    k("s_mov_b32 s47, 0x20000")
    k(f"s_and_b32 s50, s{sRT}, 28")
    k(f"s_add_u32 s50, s50, s{sW}")
    k(f"s_and_b32 s51, s{sRT}, 3")
    k("s_lshl2_add_u32 s50, s50, s51")
    k("s_mul_i32 s50, s50, 7200")
    k(f"s_lshl_b32 s51, s{sCT}, 6")
    k("s_add_u32 s50, s50, s51")
    k("s_add_u32 s50, s50, 2")
    k("v_lshrrev_b32 v230, 2, v1")
    k("v_and_b32 v231, 3, v1")
    k("v_mul_u32_u24 v232, 0x1c2, v230")
    k("v_lshl_add_u32 v232, v231, 4, v232")
    vm.op("buffer_load_dwordx4 v[160:163], v232, s[44:47], s50 offen")
    wf_ld = vm.op("buffer_load_dwordx4 v[164:167], v232, s[8:11], s50 offen")
    k("v_lshlrev_b32 v230, 4, v230")
    k("v_lshl_add_u32 v230, v231, 11, v230")
    k(f"s_lshl2_add_u32 s50, s{sW}, {XT}")
    k("v_add_u32 v230, s50, v230")
    k.srd(8, 6, WS_BYTES)
    k.srd(sA, 52, WGB)
    k.srd(sB, 54, WGB)
    k.srd(16, 58, XB)
    k("s_mov_b32 s48, s56")
    k("s_mov_b32 s49, s57")
    k(f"v_mfma_f32_16x16x32_bf16 {v(vCS,4)}, {v(vOnes,4)}, {v(vF+24,4)}, {v(vCS,4)}")

    def stg(kp):
        return kp if kp < 11 else kp - 11 if kp < 22 else kp - 22

    sid = []

    def sload(cnt=1):
        for _ in range(cnt):
            n = len(sid)
            kp, m = n // 2, n % 2
            sl = stg(kp)
            if E("WSKIP", 0) == 2 or (E("WSKIP", 0) and m):
                sid.append(vm.n - 1)
                continue
            k(f"s_add_u32 m0, s35, {(STG + sl*8192 if sl < 7 else RNG + (sl-7)*8192) + m*4096}")
            if n and not m:
                k(f"s_add_u32 s{sWG}, s{sWG}, {16*3584}")
                if ROTW and kp % 4 == 0:
                    k(f"s_cmp_eq_u32 s{sWG}, s{sWE}")
                    k(f"s_cselect_b32 s37, {28*57344}, 0")
                    k(f"s_sub_u32 s{sWG}, s{sWG}, s37")
            sid.append(vm.op(f"buffer_load_dwordx4 {v(vWG)}, s[{(sA, sB)[m]}:{(sA, sB)[m]+3}], s{sWG} offen lds"))

    def sread(k0, k1):
        for kp in range(k0, k1):
            sl = stg(kp)
            for m in range(2):
                for u in range(2):
                    k(f"ds_read_b64_tr_b16 {a(8*kp+4*m+2*u,2)}, {v(vWT + (sl >= 7))} offset:{(sl%7 if sl < 7 else sl-7)*8192 + m*4096 + u*1024}")

    k.stamp()
    vR, vSm, vGr = 56, 20, 120

    def stat(t):
        b = vR + 4 * (t % 4)
        k(f"v_mfma_f32_16x16x32_bf16 {v(vSm,4)}, {v(b,4)}, {v(vOnes,4)}, {'0' if t == 0 else v(vSm,4)}")
        k(f"v_mfma_f32_16x16x32_bf16 {v(vGr,4)}, {v(b,4)}, {v(b,4)}, {'0' if t == 0 else v(vGr,4)}")

    if TALL:
        k(f"s_lshl2_add_u32 s51, s2, s{sW}")
        k("s_mul_i32 s50, s51, 335")
        k("s_lshr_b32 s50, s50, 16")
        k("s_mul_i32 s29, s50, 196")
        k("s_sub_u32 s51, s51, s29")
        k("s_lshl_b32 s51, s51, 13")
        k("s_cmp_eq_u32 s50, 1")
        k("s_cselect_b32 s52, s54, s52")
        k("s_cselect_b32 s53, s55, s53")
        k("s_cmp_eq_u32 s50, 2")
        k("s_cselect_b32 s52, s56, s52")
        k("s_cselect_b32 s53, s57, s53")
        k("s_and_b32 s53, s53, 0xffff")
        k("s_cmp_le_u32 s50, 2")
        k(f"s_cselect_b32 s54, {WGB}, 0")
        k("s_mov_b32 s55, 0x20000")
        k("v_lshlrev_b32 v240, 7, v1")
        vm.op("buffer_load_dword v241, v240, s[52:55], s51 offen")
    if TPM:
        k("v_and_b32 v242, 15, v1")
        k("v_lshlrev_b32 v242, 13, v242")
        k("s_lshl_b32 s51, s28, 13")
        k("s_lshl_b32 s50, s30, 12")
        k("s_add_u32 s51, s51, s50")
        k(f"s_lshl_b32 s50, s{sRT}, 7")
        k("s_add_u32 s51, s51, s50")
        vm.op("buffer_load_dword v243, v242, s[8:11], s51 offen sc1")
    sload(NP[0])
    k(f"s_lshl_b32 s51, s{sCT}, 13")
    for c in range(7):
        k("v_add_u32 v26, s51, v6")
        k("v_add_u32 v18, s51, v7")
        if c < 6:
            k("s_add_u32 s51, s51, 8192")
            k("s_cmp_eq_u32 s51, 57344")
            k("s_cselect_b32 s51, 0, s51")
        vm.wait(xs[c])
        for par in range(2):
            k(f"ds_read_b128 {v(vR+4*((2*c+par)%4),4)}, v{18 if par else 26}")
        if c > 0:
            k("s_waitcnt lgkmcnt(2)")
            stat(2 * c - 2)
            stat(2 * c - 1)
    k("s_waitcnt lgkmcnt(0)")
    k.stamp(1) if FINE == 1 else None
    stat(12)
    stat(13)
    k("s_barrier")
    k.stamp()
    vA, vSt, vM, vQ = 88, 124, 24, 25
    seq = [(t, b) for t in range(14) for b in range(4)]

    l1 = Cnt(k, "lgkmcnt", 15)
    r1 = {}

    def rd1(n):
        t, b = seq[n]
        r1[n] = l1.op(f"ds_read_b128 {v(vR+4*(n%8),4)}, v{4+(t&1)} offset:{(t>>1)*8192 + b*2048}")

    fin = ["v_and_b32 v26, 3, v1",
           "v_cmp_eq_u32 s[52:53], 1, v26", "v_cmp_eq_u32 s[54:55], 2, v26", "v_cmp_eq_u32 s[56:57], 3, v26",
           "v_bfe_u32 v26, v1, 2, 2", "v_lshrrev_b32 v19, 4, v1", "v_cmp_eq_u32 s[58:59], v26, v19",
           f"v_cndmask_b32 {v(vM)}, {v(vSm)}, {v(vSm+1)}, s[52:53]", f"v_cndmask_b32 {v(vQ)}, {v(vGr)}, {v(vGr+1)}, s[52:53]",
           f"v_cndmask_b32 {v(vM)}, {v(vM)}, {v(vSm+2)}, s[54:55]", f"v_cndmask_b32 {v(vQ)}, {v(vQ)}, {v(vGr+2)}, s[54:55]",
           f"v_cndmask_b32 {v(vM)}, {v(vM)}, {v(vSm+3)}, s[56:57]", f"v_cndmask_b32 {v(vQ)}, {v(vQ)}, {v(vGr+3)}, s[56:57]",
           f"v_mul_f32 {v(vM)}, {f2u(1.0/448)}, {v(vM)}",
           f"v_mul_f32 {v(vQ)}, {f2u(1.0/448)}, {v(vQ)}",
           "v_and_b32 v26, 15, v1",
           f"v_fma_f32 {v(vQ)}, -{v(vM)}, {v(vM)}, {v(vQ)}",
           f"s_lshl_b32 s33, s{sW}, 6\ns_add_u32 s33, s33, {R2}",
           f"v_max_f32 {v(vQ)}, 0, {v(vQ)}",
           "v_lshl_add_u32 v19, v26, 2, s33",
           f"v_add_f32 {v(vQ)}, {f2u(EPS)}, {v(vQ)}",
           f"v_fmac_f32 {v(vCS)}, {v(vCS)}, {v(vSG)}",
           f"v_rsq_f32 {v(vQ)}, {v(vQ)}",
           "v_lshrrev_b32 v21, 2, v26",
           "v_and_b32 v26, 3, v26",
           f"v_mul_f32 v20, {v(vM)}, {v(vQ)}",
           "v_lshl_add_u32 v26, v21, 4, v26",
           "v_lshlrev_b32 v26, 7, v26",
           f"s_lshl_b32 s33, s{sW}, 7",
           f"s_add_u32 s33, s33, s{sRT}",
           f"s_lshl2_add_u32 s33, s33, {M1}",
           f"s_cmp_eq_u32 s{sCT}, 0\ns_cselect_b32 s33, s33, 0x40000000"]
    fin2 = [["s_mov_b32 s50, 0x05040100", "s_mov_b32 s51, 0x07060302"]]
    for e in range(0, 8, 2):
        fin2.append([f"v_perm_b32 v{168+e+i}, v{164+(e>>1)}, v{160+(e>>1)}, s{50+i}" for i in range(2)])
    for e in range(0, 8, 2):
        fin2.append([f"ds_write2st64_b32 v230, v{168+e}, v{169+e} offset0:{e} offset1:{e+1}"])
    fin2 += [[f"s_add_u32 s50, s27, {XT}", "v_lshl_add_u32 v231, v1, 4, s50"],
             ["v_lshrrev_b32 v230, 4, v1", "v_and_b32 v232, 15, v1", f"s_lshl2_add_u32 s50, s{sCT}, s{sW}"],
             ["v_lshlrev_b32 v232, 4, v232", "s_lshl_b32 s50, s50, 16", f"s_and_b32 s51, s{sRT}, 3"],
             ["v_lshl_add_u32 v230, v230, 13, v232", "s_lshl_b32 s51, s51, 11", "s_add_u32 s50, s50, s51"],
             [f"s_lshr_b32 s51, s{sRT}, 2", "s_lshl_b32 s51, s51, 8", "s_add_u32 s50, s50, s51"],
             [f"s_add_u32 s50, s50, {WT}", "s_add_u32 s51, s50, 32768"]]
    DEPTH = 7
    for n in range(DEPTH):
        rd1(n)
    if T1:
        k(f"s_bitcmp1_b32 s{sW}, 0")
        k(f"s_cselect_b32 s52, s{sB}, s{sA}")
        k(f"s_cselect_b32 s53, s{sB+1}, s{sA+1}")
        k(f"s_mov_b32 s54, {WGB}")
        k("s_mov_b32 s55, 0x20000")
        k(f"s_and_b32 s50, s{sRB}, 1")
        k(f"s_lshr_b32 s51, s{sW}, 1")
        k("s_lshl1_add_u32 s50, s50, s51")
        k(f"s_mul_i32 s50, s50, {2*57344}")
        k(f"s_lshr_b32 s51, s{sFB}, 2")
        k("s_lshl_b32 s51, s51, 8")
        k("s_add_u32 s50, s50, s51")
        k(f"s_add_u32 s50, s50, {T1*57344}")
        k("v_lshrrev_b32 v240, 1, v1")
        k("v_mul_u32_u24 v240, 0xe00, v240")
        k("v_and_b32 v241, 1, v1")
        k("v_lshl_add_u32 v240, v241, 7, v240")
        vm.op("buffer_load_dword v241, v240, s[52:55], s50 offen")
    for n in range(56):
        t, b = seq[n]
        l1.wait(r1[n])
        acc = vA + 16 * (t // 7) + 4 * b
        k(f"v_mfma_f32_16x16x32_bf16 {v(acc,4)}, {v(vR+4*(n%8),4)}, {v(vF+4*(t%7),4)}, {'0' if t % 7 == 0 else v(acc,4)}")
        if n + DEPTH < 56:
            rd1(n + DEPTH)
        if n >= 4 and fin:
            k(fin.pop(0))
        if n == 40:
            assert not fin
            k("s_mov_b64 exec, s[58:59]")
            l1.op(f"ds_write_b32 v19, {v(vQ)}")
            l1.op("ds_write_b32 v19, v20 offset:256")
            vm.op(f"buffer_store_dword {v(vM)}, v26, s[8:11], s33 offen sc1")
            k("s_mov_b64 exec, -1")
        if n == 41:
            vm.wait(wf_ld)
        if n >= 41:
            for t_ in fin2.pop(0):
                l1.op(t_) if t_.startswith("ds_") else k(t_)
        if n % 8 == 3 and len(sid) < NP[0] + NP[1]:
            sload()
    k.stamp(1) if FINE == 1 else None
    assert not fin2
    l1.all()
    k("s_barrier")
    k.stamp(1) if FINE == 1 else None
    k("ds_read_b128 v[160:163], v231")
    k("ds_read_b128 v[164:167], v231 offset:1024")
    k("v_lshrrev_b32 v24, 4, v1")
    k("v_lshlrev_b32 v24, 4, v24")
    k(f"v_add_u32 v25, {R2}, v24")
    for b in range(4):
        k(f"ds_read_b128 {v(vSt+4*b,4)}, v25 offset:{64*b}")
        k(f"ds_read_b128 {v(vSt+16+4*b,4)}, v25 offset:{256 + 64*b}")
    for n in range(0, 16, 2):
        k(f"v_pk_fma_f32 {v(vA+n,2)}, {v(vA+16+n,2)}, {v(vSG-1,2)}, {v(vA+n,2)} op_sel:[0,1,0]")
    k("s_waitcnt lgkmcnt(8)")
    vm.op("buffer_store_dwordx4 v[160:163], v230, s[8:11], s50 offen sc1")
    vm.op("buffer_store_dwordx4 v[164:167], v230, s[8:11], s51 offen sc1")
    k.stamp(1) if FINE == 1 else None
    k("v_and_b32 v8, 15, v1")
    k("v_and_b32 v9, 7, v1")
    k("v_lshrrev_b32 v10, 3, v24")
    k("v_xor_b32 v10, v10, v9")
    k("v_lshlrev_b32 v10, 4, v10")
    k("v_lshl_add_u32 v10, v8, 7, v10")
    k("v_add_u32 v10, s27, v10")
    k("v_xor_b32 v11, 16, v10")
    k(f"v_lshlrev_b32 {v(vL16)}, 4, v1")
    k(f"v_add_u32 v12, s27, {v(vL16)}")
    k("v_lshrrev_b32 v13, 3, v1")
    k("v_xor_b32 v9, v9, v13")
    k("v_lshlrev_b32 v9, 4, v9")
    k("v_lshl_add_u32 v13, v13, 13, v9")
    k("s_lshl_b32 s28, s28, 13")
    k("s_lshl_b32 s30, s30, 12")
    k(f"s_lshl_b32 s33, s{sRT}, 7")
    k("s_add_u32 s33, s33, s30")
    k("s_add_u32 s33, s33, s28")
    k("s_add_u32 s34, s33, 0x10000")
    for h2 in range(2):
        k(f"s_waitcnt lgkmcnt({4-4*h2})")
        for n in range(8 * h2, 8 * h2 + 8, 2):
            k(f"v_pk_mul_f32 {v(vA+n,2)}, {v(vA+n,2)}, {v(vSt+n,2)}")
        for n in range(8 * h2, 8 * h2 + 8, 2):
            k(f"v_pk_fma_f32 {v(vA+n,2)}, {v(vSt+16+n,2)}, {v(vCS,2)}, {v(vA+n,2)} op_sel_hi:[1,0,1] neg_lo:[1,0,0] neg_hi:[1,0,0]")
        for n in range(4 * h2, 4 * h2 + 4):
            k(f"v_cvt_pk_bf16_f32 {v(vR+n)}, {v(vA+2*n)}, {v(vA+2*n+1)}")
    k.stamp(1) if FINE == 1 else None
    k(f"ds_write_b128 v10, {v(vR,4)}")
    k(f"ds_write_b128 v11, {v(vR+4,4)}")
    k("s_waitcnt lgkmcnt(0)")
    k(f"ds_read_b128 {v(vR+8,4)}, v12")
    k(f"ds_read_b128 {v(vR+12,4)}, v12 offset:1024")
    k(f"v_lshlrev_b32 {v(vL4)}, 2, v1")
    k(f"v_min_u32 v14, 28, {v(vL4)}")
    k("s_waitcnt lgkmcnt(1)")
    vm.op(f"buffer_store_dwordx4 {v(vR+8,4)}, v13, s[8:11], s33 offen sc1")
    k("s_waitcnt lgkmcnt(0)")
    at_st = vm.op(f"buffer_store_dwordx4 {v(vR+12,4)}, v13, s[8:11], s34 offen sc1")
    zload = f"global_load_dword v31, v14, s[{sDBG}:{sDBG+1}]{ZOFF} sc1"
    zmark = vm.op(zload)
    k.stamp()

    sKK, vWt = 2, 200
    vC1, vS1, vN1, vC2, vS2, vN2 = 32, 40, 48, 56, 64, 72
    vTc, vTs, vUc, vUs, vD, wX, vY, vP, wT = 80, 88, 96, 104, 112, 144, 160, 176, 184
    m2 = [0, 1, 2, 3, 16, 17, 18, 19]
    k(f"v_lshrrev_b32 {v(vG)}, 4, v1")
    k(f"v_and_b32 {v(vC)}, 15, v1")
    k(f"v_mov_b32 {v(vOne)}, 1")
    k(f"v_min_u32 {v(vLP)}, 220, {v(vL4)}")
    k("v_and_b32 v7, 7, v1")
    k(f"v_xor_b32 v7, v7, {v(vG)}")
    k("v_lshrrev_b32 v8, 3, v1")
    k("v_lshlrev_b32 v8, 7, v8")
    k("v_lshl_add_u32 v211, v7, 4, v8")
    k("v_xor_b32 v212, 64, v211")
    k(f"s_lshl_b32 s{sFL}, s{sRB}, 10")
    k(f"s_add_u32 s{sFL}, s{sFL}, {FL}")
    k(f"s_lshl2_add_u32 s{sFI}, s{sFB}, s{sFL}")
    k(f"s_getreg_b32 s{sXC}, hwreg(HW_REG_XCC_ID, 0, 4)")
    k(f"s_lshr_b32 s26, s{sKK}, 5")
    k(f"s_lshl_b32 s26, s26, {9 if WFLAG else 7}")
    k(f"s_add_u32 s51, s26, {FL + F_P1}")
    k("v_lshlrev_b32 v214, 3, v1")
    k(f"v_and_b32 v213, 124, {v(vL4)}")
    k(f"s_lshl_b32 s26, s{sCT}, 5")
    k(f"s_add_u32 s26, s26, s{sRT}")
    if WFLAG:
        k(f"s_lshl2_add_u32 s26, s26, s{sW}")
    k(f"s_lshl2_add_u32 s52, s26, {FL + F_P1}")
    k(f"s_lshl1_add_u32 s{sRT}, s{sRB}, s{sHALF}")

    def packed_table(dc, ds_, step, base, mult):
        for e in range(8):
            k(f"v_mov_b32 {v(wT+e)}, {v(base)}" if mult[e] == 0 else
              f"v_fmamk_f32 {v(wT+e)}, {v(step)}, {f2u(float(mult[e]))}, {v(base)}")
        for e in range(8):
            k(f"v_cos_f32 {v(wT+8+e)}, {v(wT+e)}")
        for e in range(8):
            k(f"v_sin_f32 {v(wT+e)}, {v(wT+e)}")
        for p in range(4):
            k(f"v_cvt_pk_bf16_f32 {v(dc+p)}, {v(wT+8+2*p)}, {v(wT+8+2*p+1)}")
        for p in range(4):
            k(f"v_cvt_pk_bf16_f32 {v(ds_+p)}, {v(wT+2*p)}, {v(wT+2*p+1)}")

    k(f"s_lshl_b32 s53, s{sW}, 4")
    k(f"v_add_u32 v210, s53, {v(vC)}")
    k("v_cvt_f32_u32 v208, v210")
    k(f"v_cvt_f32_u32 v209, {v(vG)}")
    k(f"v_mul_f32 {v(vY)}, {f2u(1.0/64)}, v208")
    k(f"v_mul_f32 {v(vY+1)}, {f2u(8.0)}, v209")
    k(f"v_mul_f32 {v(vY+1)}, {v(vY+1)}, {v(vY)}")
    packed_table(vC1, vS1, vY, vY + 1, list(range(8)))
    k("s_mov_b32 s54, 0x80008000")
    k("v_and_b32 v210, 1, v1")
    k("v_mul_u32_u24 v210, 0x8000, v210")
    k("v_lshl_or_b32 v210, v210, 16, v210")
    for p in range(4):
        k(f"v_xor_b32 {v(vC1+4+p)}, v210, {v(vC1+p)}")
        k(f"v_xor_b32 {v(vS1+4+p)}, v210, {v(vS1+p)}")
    for p in range(8):
        k(f"v_xor_b32 {v(vN1+p)}, s54, {v(vS1+p)}")
    k.stamp(1) if FINE == 1 else None
    spin(zload, "v_cmp_eq_u32 vcc, 0, v31", zmark)
    if WFLAG:
        vm.op(f"buffer_store_dword {v(vOne)}, off, s[8:11], s52 sc1")
        vm.wait(sid[-1])
        k("s_barrier")
    else:
        vm.all()
        k("s_barrier")
        wave0(f"buffer_store_dword {v(vOne)}, off, s[8:11], s52 sc1", 1)
    k.stamp()
    nr1 = len(sid) // 2
    assert len(sid) == NP[0] + NP[1] and len(sid) % 2 == 0
    sload(NP[2])
    sread(0, nr1)
    k(f"v_lshrrev_b32 v210, 1, {v(vC)}")
    k(f"v_xor_b32 v210, v210, {v(vG)}")
    k("v_lshlrev_b32 v210, 4, v210")
    k(f"v_lshl_add_u32 {v(vP)}, {v(vC)}, 7, v210")
    k(f"v_xor_b32 {v(vP+1)}, 64, {v(vP)}")
    k(f"v_cvt_f32_u32 v210, {v(vC)}")
    k(f"v_mul_f32 {v(vY)}, {f2u(1.0/32)}, v210")
    k(f"v_mul_f32 {v(vY+1)}, 4.0, v209")
    k(f"v_mul_f32 {v(vY+1)}, {v(vY+1)}, {v(vY)}")
    packed_table(vC2, vS2, vY, vY + 1, m2)
    k("s_brev_b32 s55, 1")
    for p in range(4):
        k(f"v_xor_b32 {v(vC2+4+p)}, s55, {v(vC2+p)}")
        k(f"v_xor_b32 {v(vS2+4+p)}, s55, {v(vS2+p)}")
    for p in range(8):
        k(f"v_xor_b32 {v(vN2+p)}, s54, {v(vS2+p)}")
    k(f"v_mul_f32 {v(vY)}, {f2u(1.0/2048)}, v208")
    k(f"v_mul_f32 {v(vY+1)}, 4.0, v209")
    k(f"v_mul_f32 {v(vY+1)}, {v(vY+1)}, {v(vY)}")
    for e in range(8):
        k(f"v_mov_b32 {v(vTs+e)}, {v(vY+1)}" if m2[e] == 0 else
          f"v_fmamk_f32 {v(vTs+e)}, {v(vY)}, {f2u(float(m2[e]))}, {v(vY+1)}")
    for e in range(8):
        k(f"v_cos_f32 {v(vTc+e)}, {v(vTs+e)}")
    for e in range(8):
        k(f"v_sin_f32 {v(vTs+e)}, {v(vTs+e)}")
    k(f"v_mul_f32 {v(wT)}, {f2u(1.0/2048)}, v210")
    k(f"v_add_f32 {v(wT+1)}, {f2u(16.0/2048)}, {v(wT)}")
    k(f"v_lshl_add_u32 v208, {v(vG)}, 2, s53")
    k("v_cvt_f32_u32 v208, v208")
    for r in range(4):
        for blk in range(2):
            k(f"v_mul_f32 {v(vUs+4*blk+r)}, v208, {v(wT+blk)}")
        if r < 3:
            k("v_add_f32 v208, 1.0, v208")
    for e in range(8):
        k(f"v_cos_f32 {v(vUc+e)}, {v(vUs+e)}")
    for e in range(8):
        k(f"v_sin_f32 {v(vUs+e)}, {v(vUs+e)}")
    sc = 2.0 / (S * D)
    k(f"s_cmp_eq_u32 s{sKK}, 223")
    k(f"s_mov_b32 s55, {f2u(sc)}")
    k(f"s_cselect_b32 s55, {f2u(sc/2)}, s55")
    for e in range(8):
        k(f"v_mul_f32 {v(vUc+e)}, s55, {v(vUc+e)}")
        k(f"v_mul_f32 {v(vUs+e)}, s55, {v(vUs+e)}")
    k(f"v_lshrrev_b32 v208, 1, {v(vG)}")
    k(f"v_lshl_add_u32 v208, v208, 4, {v(vC)}")
    k("v_lshlrev_b32 v208, 4, v208")
    k(f"v_and_b32 v209, 1, {v(vG)}")
    k("v_lshl_add_u32 v208, v209, 3, v208")
    k(f"s_lshl_b32 s26, s{sW}, 9")
    k("v_add_u32 v208, s26, v208")
    k(f"s_lshl_b32 s26, s{sKK}, 13")
    k("s_add_u32 s56, s26, s27")
    k(f"s_add_u32 s57, s56, {WT}")
    k("s_add_u32 s58, s26, s35")
    k("s_add_u32 s59, s58, 4096")
    k("s_mov_b32 m0, s27")
    k("s_waitcnt lgkmcnt(0)")
    k("s_barrier")
    k.stamp()
    if WFLAG:
        spin0(lambda r: f"buffer_load_dwordx2 v[{r}:{r+1}], v214, s[8:11], s51 offen sc1", [216, 218, 220],
              lambda r: f"v_and_b32 v{r}, v{r}, v{r+1}\nv_cmp_eq_u32 vcc, 0, v{r}")
    elif PIPE:
        spin0(lambda r: f"buffer_load_dword v{r}, v213, s[8:11], s51 offen sc1", [216, 217, 218], lambda r: f"v_cmp_eq_u32 vcc, 0, v{r}")
    else:
        spin("buffer_load_dword v31, v213, s[8:11], s51 offen sc1", "v_cmp_eq_u32 vcc, 0, v31")
    k.stamp()
    vm.op(f"buffer_load_dwordx4 v211, s[8:11], s56 offen{LD} lds")
    at_ld = vm.op(f"buffer_load_dwordx4 v212, s[8:11], s56 offen offset:1024{LD} lds")
    vm.op(f"buffer_load_dwordx4 {v(vWt,4)}, {v(vL16)}, s[8:11], s57 offen{LD}")
    wt_ld = vm.op(f"buffer_load_dwordx4 {v(vWt+4,4)}, {v(vL16)}, s[8:11], s57 offen offset:1024{LD}")
    k(f"s_lshl_b32 s26, s{sXC}, 2")
    k("s_lshl_b32 s26, 1, s26")
    k(f"s_lshr_b32 s28, s{sXC}, 3")
    k(f"s_lshl2_add_u32 s28, s28, s{sFL}")
    wave0("v_mov_b32 v215, s26\nbuffer_atomic_add v215, off, s[8:11], s28 offset:768 sc1", 1)
    if not PIPE:
        k("s_barrier")
    assert NS[1] <= 2 * nr1 + 22 - NS[0]
    sread(nr1, NS[0] // 2)
    nr1 = NS[0] // 2
    sload(NS[1])
    vm.wait(at_ld)
    k("s_waitcnt lgkmcnt(0)")
    k("s_barrier")
    k.stamp()
    for t in range(2):
        for blk in range(2):
            for plane in range(2):
                k(f"ds_read_b128 {v(vD+16*plane+8*blk+4*t,4)}, {v(vP+t)} offset:{plane*4096+blk*2048}")
    sload(NS[2])

    def dft_big(cr, ci):
        for t in range(2):
            for blk in range(2):
                k(f"s_waitcnt lgkmcnt({6 - 4*t - 2*blk})")
                ar, ai = vD + 8 * blk + 4 * t, vD + 16 + 8 * blk + 4 * t
                xr, xi = wX + 4 * blk, wX + 8 + 4 * blk
                k(f"v_mfma_f32_16x16x32_bf16 {v(xr,4)}, {v(ar,4)}, {v(vC1+4*t,4)}, {'0' if t == 0 else v(xr,4)}")
                k(f"v_mfma_f32_16x16x32_bf16 {v(xi,4)}, {v(ai,4)}, {v(vC1+4*t,4)}, {'0' if t == 0 else v(xi,4)}")
                k(f"v_mfma_f32_16x16x32_bf16 {v(xr,4)}, {v(ai,4)}, {v(cr+4*t,4)}, {v(xr,4)}")
                k(f"v_mfma_f32_16x16x32_bf16 {v(xi,4)}, {v(ar,4)}, {v(ci+4*t,4)}, {v(xi,4)}")

    def pack():
        for p in range(4):
            k(f"v_cvt_pk_bf16_f32 {v(vP+p)}, {v(vY+2*p)}, {v(vY+2*p+1)}")
            k(f"v_cvt_pk_bf16_f32 {v(vP+4+p)}, {v(vY+8+2*p)}, {v(vY+8+2*p+1)}")

    k.stamp(1) if FINE == 2 else None
    dft_big(vS1, vN1)
    k.stamp(1) if FINE == 2 else None
    cmul8(k, vY, wX, vTc, vTs, -1)
    pack()
    for blk in range(2):
        xr, xi = wX + 4 * blk, wX + 8 + 4 * blk
        k(f"v_mfma_f32_16x16x32_bf16 {v(xr,4)}, {v(vC2+4*blk,4)}, {v(vP,4)}, 0")
        k(f"v_mfma_f32_16x16x32_bf16 {v(xi,4)}, {v(vC2+4*blk,4)}, {v(vP+4,4)}, 0")
        k(f"v_mfma_f32_16x16x32_bf16 {v(xr,4)}, {v(vS2+4*blk,4)}, {v(vP+4,4)}, {v(xr,4)}")
        k(f"v_mfma_f32_16x16x32_bf16 {v(xi,4)}, {v(vN2+4*blk,4)}, {v(vP,4)}, {v(xi,4)}")
    k.stamp(1) if FINE == 2 else None
    vm.wait(wt_ld)
    for e in range(8):
        k(f"v_lshlrev_b32 {v(wT+e)}, 16, {v(vWt+e)}")
        k(f"v_and_b32 {v(wT+8+e)}, 0xffff0000, {v(vWt+e)}")
    sload(NS[3] // 2)
    k.stamp(1) if FINE == 2 else None
    cmul8(k, vY, wX, wT, wT + 8, +1)
    pack()
    for blk in range(2):
        xr, xi = wX + 4 * blk, wX + 8 + 4 * blk
        k(f"v_mfma_f32_16x16x32_bf16 {v(xr,4)}, {v(vP,4)}, {v(vC2+4*blk,4)}, 0")
        k(f"v_mfma_f32_16x16x32_bf16 {v(xi,4)}, {v(vP+4,4)}, {v(vC2+4*blk,4)}, 0")
        k(f"v_mfma_f32_16x16x32_bf16 {v(xr,4)}, {v(vP+4,4)}, {v(vN2+4*blk,4)}, {v(xr,4)}")
        k(f"v_mfma_f32_16x16x32_bf16 {v(xi,4)}, {v(vP,4)}, {v(vS2+4*blk,4)}, {v(xi,4)}")
    sload(NS[3] - NS[3] // 2)
    k.stamp(1) if FINE == 2 else None
    cmul8(k, vY, wX, vUc, vUs, +1)
    pack()
    for plane in range(2):
        for blk in range(2):
            k(f"ds_write_b64 v208, {v(vP+4*plane+2*blk,2)} offset:{8192+plane*4096+blk*2048}")
    k("s_waitcnt lgkmcnt(0)")
    k("s_barrier")
    for t in range(2):
        for blk in range(2):
            for plane in range(2):
                k(f"ds_read_b128 {v(vD+16*plane+8*blk+4*t,4)}, {v(vL16)} offset:{8192+plane*4096+blk*2048+t*1024}")
    k.stamp(1) if FINE == 2 else None
    k(f"s_cmp_ge_u32 s{sKK}, 112")
    k("s_cselect_b32 s54, s54, 0")
    dft_big(vN1, vS1)
    for p in range(4):
        k(f"v_cvt_pk_bf16_f32 {v(vP+p)}, {v(wX+2*p)}, {v(wX+2*p+1)}")
    vm.op(f"buffer_store_dwordx4 {v(vP,4)}, {v(vL16)}, s[8:11], s58 offen sc1")
    for p in range(4):
        k(f"v_cvt_pk_bf16_f32 {v(vP+4+p)}, {v(wX+8+2*p)}, {v(wX+8+2*p+1)}")
    for p in range(4):
        k(f"v_xor_b32 {v(vP+4+p)}, s54, {v(vP+4+p)}")
    vm.op(f"buffer_store_dwordx4 {v(vP+4,4)}, {v(vL16)}, s[8:11], s59 offen sc1")
    k.stamp()

    vXO, vM, vTB, vXA, vGm = 10, 12, 14, 18, 32
    cload = f"buffer_load_dwordx2 v[28:29], off, s[8:11], s{sFL} offset:768 sc1"
    k(f"v_and_b32 v6, 1, {v(vG)}")
    k(f"s_and_b32 s29, s{sW}, 1")
    k("s_lshl_b32 s29, s29, 2")
    k("v_lshl_or_b32 v6, v6, 1, s29")
    k("v_and_b32 v7, 7, v1")
    k("v_xor_b32 v6, v6, v7")
    k("v_lshrrev_b32 v8, 3, v1")
    k("v_lshlrev_b32 v9, 12, v8")
    k("v_lshl_add_u32 v6, v6, 4, v9")
    k(f"s_lshl_b32 s28, s{sW}, 15")
    k(f"s_lshl_b32 s27, s{sRT}, 7")
    k("s_add_u32 s51, s28, s27")
    k("s_sub_u32 s52, s27, s28")
    k(f"s_add_u32 s52, s52, {438*4096}")
    k(f"s_bitcmp1_b32 s{sCT}, 0")
    k("s_cselect_b32 s53, s51, s52")
    k("s_cselect_b32 s51, s52, s51")
    k("s_cselect_b32 s54, 0x6000, 0")
    k("s_cselect_b32 s55, 28672, 0")
    k("s_mov_b32 s52, 0x20000")
    k("s_cselect_b32 s52, 0xfffe0000, s52")
    k("v_xor_b32 v6, s54, v6")
    k("v_lshrrev_b32 v9, 5, v1")
    k("v_and_b32 v8, 3, v8")
    k("v_lshl_add_u32 v8, v9, 4, v8")
    k("v_mul_u32_u24 v8, 0x380, v8")
    k(f"v_xor_b32 v7, v7, {v(vG)}")
    k("v_xor_b32 v7, s29, v7")
    k(f"v_lshl_add_u32 {v(vXO)}, v7, 4, v8")
    k(f"s_lshr_b32 s26, s{sRT}, 3")
    k("s_lshl_b32 s26, s26, 9")
    k(f"s_lshl_b32 s28, s{sHALF}, 8")
    k("s_add_u32 s26, s26, s28")
    k(f"s_and_b32 s28, s{sRB}, 3")
    k(f"s_lshl2_add_u32 s{sSB}, s28, s26")
    k(f"s_lshl_b32 s26, s{sW}, 5")
    k(f"s_add_u32 s26, s26, s{sSB}")
    k("s_mul_i32 s26, s26, 896")
    k(f"s_lshl_b32 s28, s{sCT}, 7")
    k(f"s_add_u32 s{sXO}, s26, s28")
    k(f"s_add_u32 s{sXO+1}, s{sXO}, {128*896}")
    k("v_bfe_u32 v7, v1, 3, 2")
    k("v_bfe_u32 v8, v1, 2, 1")
    k("v_lshlrev_b32 v8, 4, v8")
    k("v_lshl_add_u32 v7, v7, 5, v8")
    k("v_and_b32 v8, 3, v1")
    k("v_add_lshl_u32 v11, v7, v8, 2")
    k(f"s_lshl2_add_u32 s56, s{sSB}, {M1}")
    k("v_lshlrev_b32 v213, 10, v1")
    k(f"s_lshl2_add_u32 s57, s2, {FL + F_FB}")
    k("s_and_b32 s58, s2, 7")
    k("s_lshl_b32 s58, s58, 10")
    k(f"s_add_u32 s58, s58, {FL + F_FB}")
    k(f"v_min_u32 v214, 880, {v(vL16)}")
    vm.all()
    k("s_barrier")
    wave0(f"buffer_store_dword {v(vOne)}, v213, s[8:11], s57 offen sc1", "0xff")
    k.stamp()
    nr2 = len(sid) // 2
    sread(nr1, nr2)
    k(f"s_add_u32 m0, s35, {XT}")
    vm.op(f"buffer_load_dwordx4 {v(vXO)}, s[12:15], s{sXO} offen lds")
    k(f"s_add_u32 m0, s35, {XT+4096}")
    vm.op(f"buffer_load_dwordx4 {v(vXO)}, s[12:15], s{sXO+1} offen lds")
    k("s_waitcnt lgkmcnt(0)")
    k("s_barrier")

    def p3_consts():
        vB, vST, vE, vT = 14, 15, 15, 20
        k(f"s_lshl_b32 s26, s{sCT}, 6")
        k(f"s_lshl_b32 s27, s{sW}, 4")
        k("s_add_u32 s26, s26, s27")
        k(f"v_add_u32 v27, s26, {v(vC)}")
        k("v_cvt_f32_u32 v27, v27")
        for p in range(1, 4):
            k(f"v_mul_f32 {v(vE+p)}, {f2u(p/448.0)}, v27")
        k(f"v_mul_f32 {v(vST)}, {f2u(16.0/448)}, v27")
        k(f"v_fract_f32 {v(vST)}, {v(vST)}")
        k(f"v_lshl_add_u32 v19, {v(vG)}, 2, 1")
        k("v_cvt_f32_u32 v19, v19")
        k(f"v_mul_f32 {v(vB)}, v19, {v(vE+1)}")
        k(f"v_fract_f32 {v(vB)}, {v(vB)}")
        for t in range(7):
            k(f"v_cos_f32 {v(vT+4)}, {v(vB)}")
            k(f"v_sin_f32 {v(vT)}, {v(vB)}")
            for p in range(1, 4):
                k(f"v_add_f32 {v(vT+p)}, {v(vB)}, {v(vE+p)}")
            if t < 6:
                k(f"v_add_f32 {v(vB)}, {v(vB)}, {v(vST)}")
                k(f"v_fract_f32 {v(vB)}, {v(vB)}")
            for p in range(1, 4):
                k(f"v_cos_f32 {v(vT+4+p)}, {v(vT+p)}")
                k(f"v_sin_f32 {v(vT+p)}, {v(vT+p)}")
            for p in range(4):
                k(f"v_cvt_pk_bf16_f32 {v(vGm+4*t+p)}, {v(vT+4+p)}, -{v(vT+p)}")
        k("v_bfe_u32 v7, v1, 2, 2")
        k(f"v_lshlrev_b32 v8, 10, {v(vG)}")
        k("v_lshl_add_u32 v8, v7, 7, v8")
        k("v_and_b32 v9, 3, v1")
        k("v_lshl_add_u32 v8, v9, 3, v8")
        k("v_lshrrev_b32 v7, 1, v7")
        k(f"v_and_b32 v9, 1, {v(vG)}")
        k("v_lshl_add_u32 v7, v9, 1, v7")
        k(f"v_lshl_add_u32 {v(vTB)}, v7, 5, v8")
        for nb in range(1, 4):
            k(f"v_xor_b32 {v(vTB+nb)}, {32*nb}, {v(vTB)}")
        k("v_lshrrev_b32 v7, 5, v1")
        k(f"s_lshl_b32 s26, s{sW}, 1")
        k("v_or_b32 v7, s26, v7")
        k("v_bfe_u32 v8, v1, 1, 3")
        k("v_xor_b32 v7, v7, v8")
        k("v_and_b32 v8, 31, v1")
        k("v_lshlrev_b32 v8, 7, v8")
        k("v_lshl_add_u32 v7, v7, 4, v8")
        k(f"v_add_u32 {v(vXA)}, {XT}, v7")

    lines = capture(p3_consts)
    per = -(-len(lines) // (NS[4] + 1))
    for i in range(NS[4]):
        sload()
        slot()
    slot()
    k("s_add_u32 m0, s35, s55")
    last_real = vm.n - 1
    if TW:
        k.srd(12, 48, WGB)
        ld = touch_down(-1, 12)
        NT_ = k.lab("nt")
        k(f"s_cmp_eq_u32 s{sW}, 0")
        k(f"s_cbranch_scc1 {NT_}")
        k(ld)
        k.label(NT_)
    k.stamp()
    t4 = lambda r: f"v_and_b32 v{r}, v{r}, v{r+1}\nv_and_b32 v{r+2}, v{r+2}, v{r+3}\nv_and_b32 v{r}, v{r}, v{r+2}\nv_cmp_eq_u32 vcc, 0, v{r}"
    l4 = lambda r: f"buffer_load_dwordx4 v[{r}:{r+3}], v214, s[8:11], s58 offen sc1"
    if PIPE:
        spin0(l4, [216, 220, 224], t4, TW)
    else:
        spin(l4(216), t4(216))
    k.stamp()
    census = vm.op(cload)
    for hf in range(2):
        for t in range(7):
            if t == 6:
                k(f"s_cmp_eq_u32 s{sW}, 3")
                k(f"s_cselect_b32 s28, {224*4096 >> 6}, 0")
                k("s_cmp_lg_u32 s54, 0" if hf == 0 else "s_cmp_eq_u32 s54, 0")
                k("s_cselect_b32 s28, s28, 0")
                k("v_add_u32 v9, 16, v1")
                k("v_and_b32 v9, 64, v9")
                k("v_mad_u32_u24 v9, v9, s28, v6")
            bt_ld = vm.op(f"buffer_load_dwordx4 v{9 if t == 6 else 6}, s[8:11], s{51 if hf == 0 else 53} offen{LD} lds")
            if t < 6:
                k("s_add_u32 m0, m0, 4096")
                k("s_add_u32 s51, s51, s52" if hf == 0 else "s_sub_u32 s53, s53, s52")
        if hf == 0:
            bt_half = bt_ld
            k("s_mov_b32 s57, s55")
            k("s_sub_u32 s55, 28672, s55")
            k("s_add_u32 m0, s35, s55")
            k("v_xor_b32 v6, 0x6000, v6")
    vm.op(f"buffer_load_dword {v(vM)}, v11, s[8:11], s56 offen{LD}")
    p3_loads = vm.op(f"buffer_load_dword {v(vM+1)}, v11, s[8:11], s56 offen offset:512{LD}")
    sload(NS[5])
    k.srd(sA, 48, WGB)
    if SPLIT3:
        for nb in range(4):
            k(f"v_add_u32 {v(60+nb)}, s55, {v(vTB+nb)}")
            k(f"v_add_u32 {v(vTB+nb)}, s57, {v(vTB+nb)}")
        for p in range(4):
            k(f"v_mov_b32 {v(64+p)}, {v(vGm+24+p)}")
        k("s_cmp_lg_u32 s57, 0")
        k("s_cselect_b32 s58, 0xffff0000, 0")
        k("s_cselect_b32 s59, 0x80000000, 0")
        k("s_mov_b32 exec_lo, 0")
        k("s_mov_b32 exec_hi, s58")
        k(f"v_mov_b32 {v(vGm+27)}, 0x3f80")
        k("s_xor_b32 exec_hi, s58, 0xffff0000")
        k("v_mov_b32 v67, 0x3f80")
        k("s_mov_b64 exec, -1")
    CL, FAST, SLOW = k.lab("cl"), k.lab("fast"), k.lab("slow")
    k(f"s_mov_b32 s50, {SPIN_MAX}")
    vm.wait(census)
    k.label(CL)
    k("v_readfirstlane_b32 s52, v28")
    k("v_readfirstlane_b32 s53, v29")
    k(f"s_cmp_ge_u32 s{sXC}, 8")
    k("s_cselect_b32 s54, s53, s52")
    k(f"s_lshl_b32 s55, s{sXC}, 2")
    k("s_lshr_b32 s54, s54, s55")
    k("s_and_b32 s54, s54, 15")
    k(f"s_cmp_eq_u32 s54, {14 if not os.environ.get('SLOW') else 15}")
    k(f"s_cbranch_scc1 {FAST}")
    for r in (52, 53):
        k(f"s_lshr_b32 s54, s{r}, 4")
        k("s_and_b32 s54, s54, 0x0f0f0f0f")
        k(f"s_and_b32 s{r}, s{r}, 0x0f0f0f0f")
        k(f"s_add_u32 s{r}, s{r}, s54")
    k("s_add_u32 s52, s52, s53")
    k("s_mul_i32 s52, s52, 0x01010101")
    k("s_lshr_b32 s52, s52, 24")
    k("s_cmp_ge_u32 s52, 14")
    k(f"s_cbranch_scc1 {SLOW}")
    k("s_sub_u32 s50, s50, 1")
    k("s_cmp_eq_u32 s50, 0")
    k(f"s_cbranch_scc1 {SLOW}")
    k(cload)
    k("s_waitcnt vmcnt(0)")
    k(f"s_branch {CL}")
    state = (vm.n, vm.done, getattr(k, "_nst", 0), getattr(k, "_seq", 0))

    def rest(mode):
        vm.n, vm.done, k._nst, k._seq = state
        lg = Cnt(k, "lgkmcnt", 15)

        def arrive(off):
            vm.op(f"buffer_store_dword {v(vOne)}, off, s[8:11], s{sFI} offset:{off}{mode}")

        def pload(off):
            return f"buffer_load_dword v31, {v(vLP)}, s[8:11], s{sFL} offen offset:{off} sc1"

        def poll(off, mark=None):
            spin(pload(off), "v_cmp_eq_u32 vcc, 0, v31", mark)

        def put(q, cnt=1):
            for _ in range(cnt):
                if q:
                    e = q.pop(0)
                    e() if callable(e) else k("\n".join(e))

        vm.wait(bt_half if SPLIT3 else p3_loads)
        k("s_barrier")
        k.stamp()
        vR, vA = 88, 120
        seq = [(t, nb) for t in range(14) for nb in range(4)]

        def rd3(n):
            t, nb = seq[n]
            if SPLIT3 and n == 28:
                vm.wait(p3_loads)
                k("s_barrier")
            for u in range(2):
                if SPLIT3:
                    k(f"ds_read_b64_tr_b16 {v(vR+4*(n%8)+2*u,2)}, {v(vTB+nb if t < 7 else 60+nb)} offset:{(t%7)*4096+u*512}")
                else:
                    k(f"ds_read_b64_tr_b16 {v(vR+4*(n%8)+2*u,2)}, {v(vTB+nb)} offset:{t*4096+u*512}")

        DEPTH = 6
        for n in range(DEPTH):
            rd3(n)
        if TD:
            vm.op(touch_down(3, sA))
        for n in range(56):
            t, nb = seq[n]
            k(f"s_waitcnt lgkmcnt({2*min(DEPTH-1, 55-n)})")
            acc = vA + 16 * (t // 7) + 4 * nb
            gm = 64 if SPLIT3 and t == 13 else vGm + 4 * (t % 7)
            k(f"v_mfma_f32_16x16x32_bf16 {v(acc,4)}, {v(gm,4)}, {v(vR+4*(n%8),4)}, {'0' if t % 7 == 0 else v(acc,4)}")
            if n == 32 and not SPLIT3:
                k("s_mov_b32 exec_lo, 0")
                k("s_mov_b32 exec_hi, 0xffff0000")
                k(f"v_mov_b32 {v(vGm+27)}, 0x3f80")
                k("s_mov_b64 exec, -1")
            if n + DEPTH < 56:
                rd3(n + DEPTH)
        k.stamp(1) if FINE == 2 else None
        vX, vH, vHc, vU = 20, 32, 40, 48
        k(f"ds_read_b128 {v(vX,4)}, {v(vXA)}")
        k(f"ds_read_b128 {v(vX+4,4)}, {v(vXA)} offset:4096")
        k(f"s_mul_i32 s26, s{sRT}, 56")
        k(f"s_lshl2_add_u32 s27, s{sCT}, s{sW}")
        k("s_add_u32 s26, s26, s27")
        k("s_lshl_b32 s26, s26, 10")
        k(f"s_add_u32 s26, s26, {HC}")
        k(f"s_add_u32 s27, s26, {28*1024}")
        for r in range(0, 16, 2):
            k(f"v_pk_add_f32 {v(vA+r,2)}, {v(vA+r,2)}, {v(vA+16+r,2)} neg_hi:[0,1]")
        if SPLIT3:
            for r in range(1, 16, 2):
                k(f"v_xor_b32 {v(vA+r)}, s59, {v(vA+r)}")
        for p in range(2):
            for r in range(4):
                k(f"v_permlane16_swap_b32 {v(vA+8*p+r)}, {v(vA+8*p+4+r)}")
        k("s_waitcnt lgkmcnt(0)")
        for p in range(2):
            for q in range(4):
                k(f"v_lshlrev_b32 {v(vU+2*q)}, 16, {v(vX+4*p+q)}")
                k(f"v_and_b32 {v(vU+2*q+1)}, 0xffff0000, {v(vX+4*p+q)}")
            for e in range(0, 8, 2):
                k(f"v_pk_add_f32 {v(vA+8*p+e,2)}, {v(vA+8*p+e,2)}, {v(vU+e,2)}")
            for e in range(0, 8, 2):
                k(f"v_pk_add_f32 {v(vA+16+8*p+e,2)}, {v(vA+8*p+e,2)}, {v(vM,2)} op_sel:[0,{p}] op_sel_hi:[1,{p}] neg_lo:[0,1] neg_hi:[0,1]")
            for q in range(4):
                k(f"v_cvt_pk_bf16_f32 {v(vHc+4*p+q)}, {v(vA+16+8*p+2*q)}, {v(vA+17+8*p+2*q)}")
            hc_st = vm.op(f"buffer_store_dwordx4 {v(vHc+4*p,4)}, {v(vL16)}, s[8:11], s{26+p} offen{mode}")
        k.stamp(1) if FINE == 2 else None
        vm.wait(sid[55])
        k("s_barrier")
        k.stamp(1) if FINE == 2 else None
        sread(nr2, 28)
        k.stamp()
        vm.wait(hc_st)
        k("s_waitcnt lgkmcnt(0)")
        k.stamp(1) if FINE == 2 else None
        arrive(0)
        for p in range(2):
            for q in range(4):
                k(f"v_cvt_pk_bf16_f32 {v(vH+4*p+q)}, {v(vA+8*p+2*q)}, {v(vA+8*p+2*q+1)}")
            k(f"ds_write_b128 {v(vXA)}, {v(vH+4*p,4)} offset:{4096*p}")
        for p in range(2):
            k(f"v_mul_f32 {v(vM+p)}, {v(vA+16+8*p)}, {v(vA+16+8*p)}")
        for e in range(1, 8):
            for p in range(2):
                k(f"v_fmac_f32 {v(vM+p)}, {v(vA+16+8*p+e)}, {v(vA+16+8*p+e)}")
        k(f"s_lshl_b32 s26, s{sW}, 8")
        k(f"s_add_u32 s26, s26, {R2}")
        k(f"v_add_u32 v7, s26, {v(vL4)}")
        k(f"v_permlane32_swap_b32 {v(vM)}, {v(vM+1)}")
        k(f"v_add_f32 {v(vM)}, {v(vM)}, {v(vM+1)}")
        k(f"ds_write_b32 v7, {v(vM)}")
        sDL, sDG, sAB, sST1, sRG = 51, 53, 55, 57, 35
        vB1, vPA, vP1, vDG, vDT = 6, 11, 25, 8, 9
        k(f"s_mul_i32 s{sAB+1}, s{sRB}, 114688")
        k(f"s_add_u32 s{sAB+1}, s{sAB+1}, {HC}")
        k(f"s_mul_i32 s{sDL}, s{sW}, 28672")
        k(f"s_and_b32 s28, s{sW}, 1")
        k("s_mul_i32 s28, s28, 57344")
        k(f"s_lshr_b32 s26, s{sW}, 1")
        k(f"s_lshl_b32 s{sDL+1}, s26, 10")
        k(f"s_add_u32 s{sDL+1}, s{sDL+1}, s28")
        k(f"s_add_u32 s{sDG}, s{sAB+1}, s{sDL}")
        k(f"s_add_u32 s{sDG+1}, s{sAB+1}, s{sDL+1}")
        k(f"s_add_u32 s{sDG}, s{sDG}, s{sROT}")
        k(f"s_add_u32 s{sDG+1}, s{sDG+1}, s{sROT}")
        k(f"v_add_u32 {v(vB1)}, 57344, {v(vL16)}")
        k(f"s_mul_i32 s{sSS}, s{sRT}, 1792")
        k(f"s_add_u32 s{sSS}, s{sSS}, {SSP}")
        k(f"v_add_u32 v7, {R2}, {v(vL4)}")
        k(f"s_mul_i32 s{sHS}, s{sRB}, {4*112}")
        k(f"s_lshl1_add_u32 s{sHS}, s{sFB}, s{sHS}")
        k(f"s_lshl_b32 s{sHS}, s{sHS}, 10")
        k(f"s_add_u32 s{sHS}, s{sHS}, {HP}")
        k(f"v_lshlrev_b32 {v(vPA)}, 12, {v(vG)}")
        k(f"v_lshl_add_u32 {v(vPA)}, {v(vC)}, 4, {v(vPA)}")
        k(f"s_lshl_b32 s{sAB}, s{sRB}, 8")
        k(f"s_mul_i32 s{sHP}, s{sRT}, 224")
        k(f"s_mul_i32 s28, s{sW}, 28")
        k(f"s_add_u32 s{sHP}, s{sHP}, s28")
        k(f"s_lshl_b32 s{sHP}, s{sHP}, 10")
        k(f"s_add_u32 s{sHP}, s{sHP}, {HP}")
        k(f"s_mul_i32 s{sWD}, s{sW}, {448*896}")
        k(f"s_lshl_b32 s28, s{sCT}, 7")
        k(f"s_add_u32 s{sWD}, s{sWD}, s28")
        k(f"s_add_u32 s46, s{sCT}, s{sRT}")
        k(f"s_lshl_b32 s{sRG}, s{sW}, 13")
        k(f"s_add_u32 s{sRG}, s{sRG}, {RNG}")
        k(f"v_and_b32 v12, 1, {v(vG)}")
        k("v_and_b32 v13, 7, v1")
        k("v_lshlrev_b32 v14, 2, v12")
        k("v_xor_b32 v13, v13, v14")
        k("v_lshrrev_b32 v14, 3, v1")
        k("v_mul_u32_u24 v14, 0x380, v14")
        k(f"v_lshl_add_u32 {v(vDG)}, v13, 4, v14")
        k("v_bfe_u32 v13, v1, 2, 2")
        k("v_lshrrev_b32 v14, 5, v1")
        k("v_lshl_add_u32 v14, v14, 2, v13")
        k("v_lshrrev_b32 v13, 1, v13")
        k("v_lshlrev_b32 v13, 6, v13")
        k("v_lshl_add_u32 v13, v14, 7, v13")
        k("v_lshl_add_u32 v13, v12, 5, v13")
        k("v_and_b32 v14, 3, v1")
        k("v_lshl_add_u32 v13, v14, 3, v13")
        k(f"v_add_u32 {v(vDT)}, s{sRG}, v13")
        k(f"v_xor_b32 v26, 64, {v(vDT)}")
        k(f"v_add_u32 v56, s{sDL}, v13")
        k("v_xor_b32 v57, 64, v56")
        poll(0)
        k.stamp()
        uses = [(kp, b) for kp in range(KS) for b in range(4)]
        uses += [(kp, b) for kp in range(KS, 28) for b in (0, 2)]
        uB = len(uses)
        uses += [(kp, b) for kp in range(KS, 28) for b in (1, 3)]
        last_use = {kp: max(u for u, x in enumerate(uses) if x[0] == kp) for kp in range(28)}
        npair = (28 - KS) // 2
        Dm = []

        def dma():
            i = len(Dm)
            if i < KS:
                sel, off = 0, i * 1024
            else:
                sel, off = 1, ((i - KS) // npair) * 28672 + (KS + 2 * ((i - KS) % npair)) * 1024
            k(f"s_add_u32 m0, s{sDL+sel}, {off}")
            if ROTW and off % 28672 >= 4096:
                k(f"s_cmp_ge_u32 s{sROT}, {28672 - off % 28672}")
                k(f"s_cselect_b32 s28, {off - 28672 & 0xffffffff}, {off}".replace(f", {off}", ", s26") if False else f"s_cselect_b32 s28, 28672, 0")
                k(f"s_sub_u32 s28, s{sDG+sel}, s28")
                k(f"s_add_u32 s28, s28, {off}")
            else:
                k(f"s_add_u32 s28, s{sDG+sel}, {off}")
            Dm.append(vm.op(f"buffer_load_dwordx4 {v(vL16)}, s[8:11], s28 offen{LD} lds"))

        wd_regs = [(0, lambda o, n, i=i: a(224 + 8 * i + o, n)) for i in range(4)]
        wd_regs += [(0, lambda o, n, i=i: v(64 + 8 * i + o, n)) for i in range(8)]
        wd_regs += [(last_use[i] + 1, lambda o, n, i=i: a(8 * i + o, n)) for i in range(16)]
        n2 = min(KS, 8) // 2 * 2 if RING2 else 0
        free2 = 4 * KS + 2
        assert 4 * KS <= 56
        wdd, wdt = [], []
        shadow = [0]

        def quarter(dst, g, size, base):
            k(f"s_add_u32 s{dst}, s{46 if ROTD == 2 else sCT}, {g}")
            k(f"s_and_b32 s{dst}, s{dst}, 3")
            k(f"s_mul_i32 s{dst}, s{dst}, {size}")
            k(f"s_add_u32 s{dst}, s{dst}, s{base}")

        slots = [None] * (8 + n2)
        slot_of = []

        def wd_dma(now):
            n = len(wdd)
            if n == 56:
                return False
            free = [i for i, j in enumerate(slots) if (i < 8 or now >= free2) and
                    (j is None or (len(wdt) > 2 * j + 1 and wdt[2 * j + 1] < lg.done))]
            if not free:
                return False
            slots[free[0]] = n
            slot_of.append(free[0])
            k(f"s_add_u32 m0, s{sRG if free[0] < 8 else sDL}, {(free[0] % 8) * 1024}")
            if ROTD and n % 14 == 0:
                quarter(44, n // 14, 112 * 896, sWD)
            elif n:
                k(f"s_add_u32 s{44 if ROTD else sWD}, s{44 if ROTD else sWD}, {8*896}")
            wdd.append((vm.op(f"buffer_load_dwordx4 {v(vDG)}, s[{sA}:{sA+3}], s{44 if ROTD else sWD} offen lds"), max(now + WLAT, shadow[0])))
            return True

        def wd_tr(now, force=False):
            n = len(wdt)
            kp, u_, db = n // 4, (n >> 1) & 1, n & 1
            if n == 112 or len(wdd) <= 2 * kp + u_ or (not force and (wd_regs[kp][0] > now or wdd[2 * kp + u_][1] > now)):
                return False
            vm.wait(wdd[2 * kp + u_][0])
            sl = slot_of[2 * kp + u_]
            wdt.append(lg.op(f"ds_read_b64_tr_b16 {wd_regs[kp][1](4*db+2*u_, 2)}, v{(26 if db else vDT) if sl < 8 else 56 + db} offset:{(sl % 8) * 1024}"))
            return True

        aQ = 128
        hl = []

        def hload():
            n = len(hl)
            p, kp = n // 28, n % 28
            if p == 1:
                if kp == 0:
                    k(f"s_cmp_eq_u32 s{sHALF}, 0")
                    k("s_movk_i32 s58, 1024")
                    k(f"s_cselect_b32 s{sST1}, 0x4000, s58")
                    k(f"s_cselect_b32 s59, s{sAB}, s{sAB+1}")
                    k("s_cselect_b64 vcc, -1, 0")
                    k(f"s_mul_i32 s58, s{sW}, 28")
                    k(f"s_mul_i32 s58, s58, s{sST1}")
                    k("s_add_u32 s59, s59, s58")
                    k(f"v_cndmask_b32 {v(vP1)}, {v(vL16)}, {v(vPA)}, vcc")
                    k(f"s_mul_i32 s58, s{sST1}, 7")
                if ROTD and kp % 7 == 0:
                    quarter(45, kp // 7, "s58", 59)
                elif kp:
                    k(f"s_add_u32 s{45 if ROTD else 59}, s{45 if ROTD else 59}, s{sST1}")
                hl.append(vm.op(f"buffer_load_dwordx4 {a(aQ+4*(n%24),4)}, {v(vP1)}, s[8:11], s{45 if ROTD else 59} offen{LD}"))
                return
            if ROTD:
                if kp % 7 == 0:
                    quarter(45, kp // 7, 7168, sHP)
                if kp % 7 == 4:
                    k("s_add_u32 s45, s45, 4096")
                hl.append(vm.op(f"buffer_load_dwordx4 {a(aQ+4*(n%24),4)}, {v(vL16)}, s[8:11], s45 offen offset:{(kp%7%4)*1024}{LD}"))
                return
            hl.append(vm.op(f"buffer_load_dwordx4 {a(aQ+4*(n%24),4)}, {v(vL16)}, s[8:11], s{sHP} offen offset:{(kp%4)*1024}{LD}"))
            if kp % 4 == 3:
                k(f"s_add_u32 s{sHP}, s{sHP}, 4096")

        vF, vAcc, LOOK = 32, 128, 4
        accreg = {0: vAcc, 2: vAcc + 32, 1: vAcc + 64, 3: vAcc + 96}
        fr = {}

        def rd4(u):
            kp, b = uses[u]
            fr[u] = lg.op(f"ds_read_b128 {v(vF+4*(u%6),4)}, {v(vL16 if b < 2 else vB1)} offset:{(b&1)*28672+kp*1024}")

        last_st = [None]
        clock = [0]

        def hp_store(b, u):
            vo, off, pol = vL16, u * 1024, " sc1" if MB else mode
            if b == 1:
                vo, off = vPA, 0
                k(f"s_lshl_b32 s38, s{sFB}, 15\ns_add_u32 s38, s38, s{sAB}" if u == 0 else "s_add_u32 s38, s38, 16384")
            elif b == 3:
                if u == 0:
                    k(f"s_lshl_b32 s38, s{sFB}, 11\ns_add_u32 s38, s38, s{sAB+1}")
            else:
                pol = " sc1" if MA else mode
                if u == 0:
                    k(f"s_add_u32 s38, s{sHS}, {b*112*1024}")
            last_st[0] = vm.op(f"buffer_store_dwordx4 {v(accreg[b]+4*u,4)}, {v(vo)}, s[8:11], s38 offen offset:{off}{pol}")
            shadow[0] = clock[0] + (20 if pol else 11)

        def epilogue(ps):
            items = [(b, r) for b in (ps, ps + 2) for r in range(8)]
            out = []
            for i in range(len(items) + 1):
                grp = []
                if i < len(items):
                    b, r = items[i]
                    g_, u_ = accreg[b], accreg[b] + 16
                    grp += [f"v_mul_f32 {v(u_+2*r)}, {v(g_+2*r)}, {v(u_+2*r)}",
                            f"v_mul_f32 {v(u_+2*r+1)}, {v(g_+2*r+1)}, {v(u_+2*r+1)}"]
                if i > 0:
                    b, r = items[i - 1]
                    grp.append(f"v_cvt_pk_bf16_f32 {v(accreg[b]+r)}, {v(accreg[b]+16+2*r)}, {v(accreg[b]+17+2*r)}")
                out.append(grp)
                if i > 0 and items[i - 1][1] % 4 == 3:
                    out.append(lambda b=items[i - 1][0], u=items[i - 1][1] // 4: hp_store(b, u))
            return out

        chunks = eval(os.environ.get("CHUNKS", "{0: 2, 3: 6, 7: 15, 16: 27}"))
        for _ in range(NDMA0):
            dma()
        k("s_waitcnt lgkmcnt(0)")
        vm.wait(Dm[chunks[0]])
        k("s_barrier")
        k.stamp()
        for u in range(LOOK):
            rd4(u)
        epi = epilogue(0)
        checked = False
        for u in range(112):
            kp, b = uses[u]
            clock[0] = u
            if (u + LOOK) % 4 == 0 and (u + LOOK) // 4 in chunks:
                vm.wait(Dm[chunks[(u + LOOK) // 4]])
                k("s_barrier")
            if n2 and u == free2:
                k("s_barrier")
            if u == uB + DRAIN_A:
                assert not epi
                vm.wait(last_st[0])
                arrive(256)
            if u == uB + POLL_A:
                markA = vm.op(pload(256))
            if u == uB + CHECK_A:
                poll(256, markA)
                checked = True
            if u == 1:
                lg.op("ds_read2st64_b32 v[12:13], v7 offset1:1")
                ssr = lg.op("ds_read2st64_b32 v[14:15], v7 offset0:2 offset1:3")
                k(f"s_lshl_b32 s26, s{sCT}, 8")
                k(f"s_add_u32 s26, s26, s{sSS}")
            if u == 5:
                lg.wait(ssr)
                k("v_add_f32 v12, v12, v13")
                k("v_add_f32 v14, v14, v15")
                k("v_add_f32 v12, v12, v14")
                vm.op(f"buffer_store_dword v12, {v(vL4)}, s[8:11], s26 offen{mode}")
            if u % 2 == 0:
                lg.wait(fr[u + 1])
            busy = u >= uB + 1 and bool(epi)
            for m in range(2):
                acc = accreg[b] + 16 * m
                k(f"v_mfma_f32_32x32x16_bf16 {v(acc,16)}, {a(8*kp+4*m,4)}, {v(vF+4*(u%6),4)}, {'0' if kp == 0 else v(acc,16)}")
                if m == 0:
                    if u + LOOK < 112:
                        rd4(u + LOOK)
                    wd_tr(u)

                    def memop():
                        if len(Dm) < 16 and u % DRATE != DRATE - 1:
                            dma()
                        elif checked and len(hl) < RING and last_use[16 + len(hl) // 2] < u:
                            hload()
                        elif not (u % 3 != 2 and wd_dma(u)):
                            dma() if len(Dm) < 28 else wd_dma(u)

                    if busy:
                        put(epi)
                    n0 = vm.n
                    held = capture(memop)
                    k("\n".join(held[:-1]))
                    vm.n, n1 = n0, vm.n
                else:
                    k("\n".join(held[-1:]))
                    vm.n = n1
                    if busy:
                        put(epi)
                    else:
                        wd_tr(u)
                if os.environ.get("TL") and m == 1 and not mode:
                    print(u, len(Dm), len(wdd), len(wdt), file=sys.stderr)
            if u in P4ST:
                k.stamp(1)
            if u == uB - 1 or u == 111:
                k.stamp()
        print("after P4: ring loads", len(wdd), "transposed reads", len(wdt), "h loads", len(hl), file=sys.stderr)
        vRW, vRR, vR2, vHR, vSP = 12, 20, 22, 24, 32
        vAc5, vT5 = 128, 192
        fill = epilogue(1)
        clock[0] = -999
        if not checked:
            assert EPI_B0 <= 14
            put(fill, EPI_B0)
            poll(256, markA)
        while len(fill) > EPIB:
            if len(hl) < 8:
                hload()
            put(fill, 2)
        rest_epi = fill
        fill = [["v_and_b32 v6, 31, v1", "v_lshrrev_b32 v7, 5, v1", "v_and_b32 v27, 7, v1", "v_xor_b32 v7, v7, v27"],
                [f"s_lshl_b32 s26, s{sW}, 13", "v_lshlrev_b32 v7, 4, v7", "v_lshl_add_u32 v7, v6, 8, v7", f"v_add_u32 {v(vRW)}, s26, v7"],
                [f"v_xor_b32 {v(vRW+i)}, {32*i}, {v(vRW)}" for i in range(1, 5)],
                [f"v_xor_b32 {v(vRW+i)}, {32*i}, {v(vRW)}" for i in range(5, 8)],
                ["v_lshrrev_b32 v6, 3, v1", f"s_and_b32 s26, s{sW}, 1", "s_lshl_b32 s26, s26, 2", f"v_xor_b32 v7, v27, {v(vG)}",
                 "v_xor_b32 v7, s26, v7"],
                ["v_lshlrev_b32 v7, 1, v7", "v_xor_b32 v7, v7, v6", f"s_lshl_b32 s26, s{sW}, 11", "v_lshlrev_b32 v7, 4, v7"],
                ["v_lshl_add_u32 v7, v6, 8, v7", f"v_add_u32 {v(vRR)}, s26, v7", f"v_xor_b32 {v(vRR+1)}, 16, {v(vRR)}"],
                [f"s_lshl_b32 s26, s{sW}, 10", f"s_add_u32 s26, s26, {XT}", f"v_add_u32 {v(vHR)}, s26, {v(vL16)}",
                 f"s_lshl_b32 s26, s{sW}, 5", "v_lshl_add_u32 v28, v6, 2, s26"]]
        ssl = []

        def ssload(i):
            for j in range(2 * i, min(2 * i + 2, 7)):
                ssl.append(vm.op(f"buffer_load_dword {v(vSP+j)}, {v(vL4)}, s[8:11], s{sSS} offen offset:{256*j}{LD}"))

        fill = rest_epi + fill + [lambda i=i: ssload(i) for i in range(4)]
        r2calc = [[f"v_add_f32 {v(vSP)}, {v(vSP)}, {v(vSP+1)}", f"v_add_f32 {v(vSP+2)}, {v(vSP+2)}, {v(vSP+3)}",
                   f"v_add_f32 {v(vSP+4)}, {v(vSP+4)}, {v(vSP+5)}", f"v_add_f32 {v(vSP)}, {v(vSP)}, {v(vSP+6)}"],
                  [f"v_add_f32 {v(vSP+2)}, {v(vSP+2)}, {v(vSP+4)}", f"v_mov_b32 {v(vSP+1)}, {f2u(EPS)}",
                   f"v_add_f32 {v(vSP)}, {v(vSP)}, {v(vSP+2)}", f"v_fmac_f32 {v(vSP+1)}, {f2u(1.0/448)}, {v(vSP)}"],
                  [f"v_rcp_f32 {v(vSP)}, {v(vSP+1)}", "v_add_u32 v29, 128, v28"],
                  [f"ds_bpermute_b32 {v(vR2)}, v28, {v(vSP)}", f"ds_bpermute_b32 {v(vR2+1)}, v29, {v(vSP)}"]]

        def red_write(p):
            q_ = [[f"ds_write_b128 {v(vRW+i)}, {v(vAc5+32*p+4*i,4)} offset:{p*32768}"] for i in range(8)]
            return q_ + [[f"ds_read_b128 {v(vT5+32,4)}, {v(vHR)} offset:{p*4096}"]]

        def red_read(p):
            q_ = [["s_waitcnt lgkmcnt(0)", "s_barrier"] +
                  [f"ds_read_b128 {v(vT5+4*z,4)}, {v(vRR+z)} offset:{p*32768}" for z in range(2)]]
            for j in range(1, 4):
                q_.append([f"ds_read_b128 {v(vT5+8*j+4*z,4)}, {v(vRR+z)} offset:{p*32768+j*8192}" for z in range(2)])
            for h2 in range(2):
                q_.append([t_ for q in (2 * h2, 2 * h2 + 1) for t_ in
                           (f"v_lshlrev_b32 {v(vT5+36+2*q)}, 16, {v(vT5+32+q)}",
                            f"v_and_b32 {v(vT5+37+2*q)}, 0xffff0000, {v(vT5+32+q)}")])
            for j, (d_, s_) in enumerate(((0, 8), (16, 24), (0, 16))):
                for h2 in range(2):
                    q_.append(([f"s_waitcnt lgkmcnt({4 if j == 0 else 0})"] if h2 == 0 and j < 2 else []) +
                              ([f"v_add_f32 {v(vT5+d_+r)}, {v(vT5+d_+r)}, {v(vT5+s_+r)}" for r in range(4 * h2, 4 * h2 + 4)] if p == 0 else
                               [f"v_pk_add_f32 {v(vT5+d_+r,2)}, {v(vT5+d_+r,2)}, {v(vT5+s_+r,2)}" for r in range(4 * h2, 4 * h2 + 4, 2)]))
            for h2 in range(2):
                q_.append([f"v_fmac_f32 {v(vT5+36+r)}, {v(vT5+r)}, {v(vR2+p)}" for r in range(4 * h2, 4 * h2 + 4)] if p == 0 else
                          [f"v_pk_fma_f32 {v(vT5+36+r,2)}, {v(vT5+r,2)}, {v(vR2,2)}, {v(vT5+36+r,2)} op_sel:[0,1,0]" for r in range(4 * h2, 4 * h2 + 4, 2)])
            q_.append([f"v_cvt_pk_bf16_f32 {v(vT5+8+q)}, {v(vT5+36+2*q)}, {v(vT5+37+2*q)}" for q in range(4)])
            q_.append(lambda: vm.op(f"buffer_store_dwordx4 {v(vT5+8,4)}, {v(vXO)}, s[16:19], s{sXO+p} offen{SCO}"))
            return q_

        if P5ST:
            k.stamp(1)
        def mf5(n, dl):
            acc = vAc5 + 32 * (n // 28) + 16 * dl
            k(f"v_mfma_f32_32x32x16_bf16 {v(acc,16)}, {wd_regs[n % 28][1](4*dl, 4)}, {a(aQ+4*(n%24),4)}, {'0' if n % 28 == 0 else v(acc,16)}")

        for n in range(56 - TAILR):
            p, kp = n // 28, n % 28
            now = 112 + n
            if n == DRAIN_B:
                assert len(wdt) == 112 or not n2
                lg.wait(wdt[-1])
                vm.wait(last_st[0])
                arrive(512)
            if n == POLL_B:
                markB = vm.op(pload(512))
            if n == CHECK_B:
                k.stamp()
                poll(512, markB)
            if n == 22:
                assert len(wdt) == 112
                vm.wait(ssl[6])
                fill += r2calc
            if n == LATE and F_LATE in WBL:
                k(f"s_add_u32 s26, s{sFI}, {F_LATE}")
                vm.op(f"buffer_store_dword {v(vOne)}, off, s[8:11], s26{mode}")
            if n == 28:
                assert not fill
                fill = red_write(0)
                while fill:
                    if len(hl) < 28 + RING1:
                        hload()
                    put(fill, 2)
            if n == RED0:
                fill = red_read(0)
            if p == 0:
                while len(wdt) < 4 * kp + 4:
                    assert wd_tr(now, True)
                lg.wait(wdt[4 * kp + 3])
            vm.wait(hl[n])
            for dl in range(2):
                acc = vAc5 + 32 * p + 16 * dl
                k(f"v_mfma_f32_32x32x16_bf16 {v(acc,16)}, {wd_regs[kp][1](4*dl, 4)}, {a(aQ+4*(n%24),4)}, {'0' if kp == 0 else v(acc,16)}")
                if len(wdt) < 112:
                    if len(wdt) >= 8:
                        lg.wait(wdt[-8])
                    wd_tr(now)
                    if dl == 1:
                        wd_dma(now)
                if dl == 0:
                    if len(hl) < (28 if n < CHECK_B else 56) and len(hl) < n + 24:
                        hload()
                    else:
                        put(fill)
                else:
                    put(fill, 2 if n < (EPIB + 1) // 2 + 2 * (EPIB > 15) else 1)
            if n in P5ST:
                k.stamp(1)
        put(fill, 99)
        fill = red_write(1)
        fill.insert(0, fill.pop())
        for n in range(56 - TAILR, 56):
            vm.wait(hl[n])
            mf5(n, 0)
        put(fill)
        for i, n in enumerate(range(56 - TAILR, 56)):
            mf5(n, 1)
            if i >= 1:
                put(fill, 2 if i == TAILR - 1 else 1)
        k.stamp()
        put(fill, 99)
        put(red_read(1), 99)
        if k.prof:
            k("s_waitcnt vmcnt(0)")
        if DBGT:
            k.stamp(-1)
            k("s_waitcnt lgkmcnt(0)")
            k("s_mov_b64 exec, 1")
            k("v_mov_b32 v1, 0")
            for i in range(1, k._nst):
                k(f"s_sub_u32 s26, s{64+2*i}, s{62+2*i}")
                k("v_mov_b32 v0, s26")
                k(f"global_atomic_add v1, v0, s[{sDBG}:{sDBG+1}] offset:{4*(i-1)} sc1")
        else:
            k.stamp_flush(6, PROF, sW)
        k("s_endpgm")

    k.label(FAST)
    rest("")

    k.label(SPARE)
    vm.n = vm.done = 0
    k._nst = min(1, getattr(k, "_nst", 0))
    sE = 21
    k(f"s_sub_u32 s{sE}, s2, 224")
    k(f"v_lshlrev_b32 {v(vL16)}, 4, v1")
    k("v_lshlrev_b32 v6, 7, v1")
    k("s_waitcnt lgkmcnt(0)")
    k.srd(8, 6, WS_BYTES)
    NZ = k.lab("nz")
    k(f"s_cmp_lt_u32 s{sE}, 24")
    k(f"s_cbranch_scc1 {NZ}")
    for j in range(4):
        k(f"v_mov_b32 v{108+j}, 0")
    k(f"s_sub_u32 s34, s{sE}, 24")
    k(f"s_lshl2_add_u32 s33, s34, s{sW}")
    k("s_lshl_b32 s33, s33, 11")
    k(f"s_add_u32 s33, s33, {FL}")
    k(f"buffer_store_dwordx4 v[108:111], {v(vL16)}, s[8:11], s33 offen sc1")
    k(f"buffer_store_dwordx4 v[108:111], {v(vL16)}, s[8:11], s33 offen offset:1024 sc1")
    k("v_mov_b32 v2, 1")
    k("s_lshl_b32 s34, s34, 2")
    k("v_mov_b32 v5, s34")
    k("s_waitcnt vmcnt(0)")
    k("s_barrier")
    wave0(f"global_store_dword v5, v2, s[{sDBG}:{sDBG+1}]{ZOFF} sc1", 1)
    k.label(NZ)
    k.stamp(-1)
    k(f"s_lshr_b32 s22, s{sE}, 3")
    k(f"s_lshl2_add_u32 s22, s22, s{sW}")
    k("s_lshl_b32 s23, s22, 13")
    k.srd(12, 52, WGB)
    k.srd(16, 54, WGB)
    k.srd(24, 56, WGB)
    k.srd(28, 58, XB)
    n = [0]

    def touch(srd, soff, vo=6):
        k(f"buffer_load_dword v{8 + n[0] % 48}, v{vo}, s[{srd}:{srd+3}], s{soff} offen ; alt")
        n[0] += 1

    for job in SP_LIST:
        if job == "G":
            for off in range(SP_D0 * 3584, SP_D1 * 3584, 16 * 8192):
                k(f"s_add_u32 s40, s23, {off}")
                touch(12, 40)
                touch(16, 40)
        if job == "X":
            nt = 2 * len(range(SP_D0 * 3584, WGB, 16 * 8192))
            k("s_and_b32 s42, s2, 7")
            k(f"s_mov_b32 s46, {WGB}")
            k("s_mov_b32 s47, 0x20000")
            for i in range(-(-nt // WIN) * WIN):
                k(f"s_add_u32 s40, s42, {i}")
                k(f"s_and_b32 s40, s40, {WIN - 1}")
                k(f"s_add_u32 s40, s40, {i // WIN * WIN}")
                k("s_bitcmp1_b32 s40, 0")
                k("s_cselect_b32 s44, s16, s12")
                k("s_cselect_b32 s45, s17, s13")
                k("s_lshr_b32 s40, s40, 1")
                k("s_lshl_b32 s40, s40, 17")
                k("s_add_u32 s40, s40, s23")
                k(f"s_add_u32 s40, s40, {SP_D0*3584}")
                touch(44, 40)
        if job == "H":
            k("v_lshrrev_b32 v7, 4, v1")
            k("v_mul_u32_u24 v7, 0xe00, v7")
            k("v_and_b32 v5, 15, v1")
            k("v_min_u32 v5, 13, v5")
            k("v_lshl_add_u32 v7, v5, 7, v7")
            k("s_and_b32 s41, s2, 1")
            k("s_mul_i32 s41, s41, 1792")
            k(f"s_mul_i32 s40, s22, {4*3584}")
            k("s_add_u32 s41, s41, s40")
            for d0 in range(SP_D0, 448, 64):
                k(f"s_add_u32 s40, s41, {d0*3584}")
                touch(12, 40, 7)
                touch(16, 40, 7)
        if job == "d":
            k("s_and_b32 s40, s2, 7")
            k(f"s_mul_i32 s40, s40, {3*8*8192 if ROTS else 0}")
            k("s_add_u32 s40, s40, s23")
            for off in range(0, WGB, 16 * 8192):
                touch(24, 40)
                k(f"s_add_u32 s40, s40, {16*8192}")
                k(f"s_cmp_ge_u32 s40, {13*16*8192}")
                k(f"s_cselect_b32 s41, {13*16*8192}, 0")
                k("s_sub_u32 s40, s40, s41")
        if job == "R":
            k("s_and_b32 s42, s2, 7")
            k(f"s_min_u32 s42, s42, {6 if ROTW else 0}")
            k("s_lshl_b32 s42, s42, 2")
            k("s_min_u32 s43, s22, 13")
            k("s_cmp_ge_u32 s43, 7")
            k("s_cselect_b32 s44, s16, s12")
            k("s_cselect_b32 s45, s17, s13")
            k("s_cselect_b32 s41, 7, 0")
            k("s_sub_u32 s43, s43, s41")
            k("s_lshl_b32 s43, s43, 13")
            k(f"s_mov_b32 s46, {WGB}")
            k("s_mov_b32 s47, 0x20000")
            for kp in range(SP_K, 28):
                k(f"s_add_u32 s40, s42, {kp}")
                k("s_cmp_ge_u32 s40, 28")
                k("s_cselect_b32 s41, 28, 0")
                k("s_sub_u32 s40, s40, s41")
                k("s_mul_i32 s40, s40, 57344")
                k("s_add_u32 s40, s40, s43")
                touch(44, 40)
        if job == "e":
            for off in range(0, 192 * 896, 16 * 8192):
                for q in range(4):
                    k(f"s_add_u32 s40, s23, {off}")
                    k(f"s_min_u32 s40, s40, {192*896 - 8192}")
                    k(f"s_add_u32 s40, s40, {q*448*896}")
                    touch(24, 40)
        if job == "h":
            k("s_and_b32 s41, s2, 7")
            k(f"s_mul_i32 s41, s41, {8*112*1024}")
            k(f"s_add_u32 s41, s41, {HP}")
            k("s_min_u32 s42, s22, 13")
            k("s_lshl_b32 s42, s42, 13")
            k("s_add_u32 s41, s41, s42")
            for blk in range(4):
                touch(8, 41)
                k(f"s_add_u32 s41, s41, {2*112*1024}")
        if job in "aw":
            k(f"s_lshl2_add_u32 s40, s{sE}, s{sW}")
            k("s_lshl_b32 s40, s40, 13")
            k(f"s_add_u32 s40, s40, {AT if job == 'a' else WT}")
            touch(8, 40)
            k("s_add_u32 s40, s40, 0x100000")
            k(f"s_min_u32 s40, s40, {(AT if job == 'a' else WT) + 223*8192}")
            touch(8, 40)
        if job in "AB":
            k("s_and_b32 s41, s2, 7")
            if job == "A":
                k("v_lshrrev_b32 v7, 2, v1")
                k("v_lshlrev_b32 v7, 12, v7")
                k("v_and_b32 v5, 3, v1")
                k("v_lshl_add_u32 v7, v5, 7, v7")
                k("s_lshl_b32 s41, s41, 9")
            else:
                k("v_lshrrev_b32 v7, 1, v1")
                k("v_lshlrev_b32 v7, 11, v7")
                k("v_and_b32 v5, 1, v1")
                k("v_lshl_add_u32 v7, v5, 7, v7")
                k("s_lshl_b32 s41, s41, 8")
                k(f"s_add_u32 s41, s41, {WT}")
            for i in range(2):
                k(f"s_add_u32 s40, s22, {16*i}")
                k("s_min_u32 s40, s40, 27")
                k("s_lshl_b32 s40, s40, 16")
                k("s_add_u32 s40, s40, s41")
                touch(8, 40, 7)
        if job == "o":
            k(f"s_lshl2_add_u32 s40, s{sE}, s{sW}")
            k("s_lshl_b32 s40, s40, 13")
            touch(28, 40)
            k("s_add_u32 s40, s40, 0x100000")
            touch(28, 40)
    if k.prof:
        k("s_waitcnt vmcnt(0)")
        k.stamp_flush(6, PROF, sW, 2)
    if WBL:
        k("s_cmp_lg_u32 s22, 0")
        k(f"s_cbranch_scc1 {END}")
        k("v_lshlrev_b32 v3, 2, v1")
        k("v_min_u32 v7, 28, v3")
        vm.n = vm.done = 0
        spin(f"global_load_dword v112, v7, s[{sDBG}:{sDBG+1}]{ZOFF} sc1", "v_cmp_eq_u32 vcc, 0, v112")
        k("v_min_u32 v3, 220, v3")
        k("s_and_b32 s22, s2, 7")
        k("s_lshl_b32 s22, s22, 11")
        k(f"s_add_u32 s22, s22, {FL}")
        k(f"s_mov_b32 s23, {SPIN_MAX}")
        for off in WBL:
            lp = k.lab("wl")
            if off == F_LATE:
                k(f"s_add_u32 s22, s22, {F_LATE}")
                off = 0
            k.label(lp)
            k(f"buffer_load_dword v4, v3, s[8:11], s22 offen offset:{off} sc1")
            k(f"buffer_load_dword v5, v3, s[8:11], s22 offen offset:{off+1024} sc1")
            k("s_sub_u32 s23, s23, 1")
            k("s_waitcnt vmcnt(0)")
            k("s_cmp_eq_u32 s23, 0")
            k(f"s_cbranch_scc1 {END}")
            k("v_and_b32 v4, v4, v5")
            k("v_cmp_eq_u32 vcc, 0, v4")
            k("s_nop 0")
            k(f"s_cbranch_vccnz {lp}")
            k("buffer_wbl2 sc1")
            k("s_waitcnt vmcnt(0)")
    k.label(END)
    k("s_endpgm")
    for o in outline:
        k(o)
    del outline[:]
    k.label(SLOW)
    rest(" sc1")
    for o in outline:
        k(o)
    return k


def build(k, as_list=False):
    body, desc = k.emit()
    print(k.stats, file=sys.stderr)
    head = ["; Fused preLN + GFNet spectral filter + preLN bilinear GLU in one launch (generated by gen/one.py)",
            "; kernarg: 0 A_x, 8 A_w_r, 16 A_w_i, 24 B_x (unused), 32 w_gate, 40 w_up, 48 w_down, 56 out, 64 debug, 72 ws",
            f"; @launch {'kernel=' + k.name + ' ' if as_list else ''}grid=(256,1,1) block=(256,1,1) lds={LDS}",
            '.amdgcn_target "amdgcn-amd-amdhsa--gfx950"', ".text"]
    return "\n".join(head + [body, '.section .rodata,"a"', ".p2align 6", desc]) + "\n"


if __name__ == "__main__":
    if "--prof" in sys.argv:
        Kern.prof = True
        sys.argv.remove("--prof")
    path = sys.argv[1] if len(sys.argv) > 1 else "sequential_preLN__spectral_gfnet__glu_gated_bilinear__prompt.s"
    open(path, "w").write(build(gen(), as_list=len(sys.argv) > 1))
```

```python
import os
import struct
import sys
from asmlib import Kern, v, a

NAME = "sequential_preLN__spectral_gfnet__glu_gated_bilinear__prompt_kernel"
S, D, F = 2048, 448, 1792
AT = BT = 0x000000
WT = HC = 0x200000
HP = 0x400000
M1 = 0xB00000
SSP = 0xB02000
FL = 0xB10000
WS_BYTES = 0xB20000
F_LATE, F_FB, F_P1, F_SP = 16384, 32768, 40960, 45056
PROF = 0x1800000
XB, WRB, WGB = S * D * 2, S * 225 * 2, D * F * 2
EPS = 1e-5
STG, XT, R2, RNG = 57344, 114688, 122880, 123904
LDS = RNG + 32768
SPIN_MAX = 1 << 18

E = lambda n, d: int(os.environ.get(n, d))
KS = E("KS", 4)
DRAIN_A, POLL_A, CHECK_A = E("DRAIN_A", 30), E("POLL_A", 38), E("CHECK_A", 42)
DRAIN_B, POLL_B, CHECK_B = E("DRAIN_B", 8), E("POLL_B", 13), E("CHECK_B", 17)
EPI_B0, RING, RING1, RED0, LATE = E("EPI_B0", 10), E("RING", 12), E("RING1", 8), E("RED0", 38), E("LATE", 44)
MA, NDMA0, WLAT = E("MA", 1), E("NDMA0", 7), E("WLAT", 10)
NP = [int(x) for x in os.environ.get("NP", "0,6,10").split(",")]
NS = [sum(NP)] + [int(x) for x in os.environ.get("NS", "6,6,6,14,8").split(",")]
WBL = eval(os.environ.get("WBL", "(F_LATE,)"))
SP_LIST = os.environ.get("SP_LIST", "cGd")
SP_D0, SP_K = E("SP_D0", 64), E("SP_K", 18)
TALL, TD, ROTW, ROTS = E("TALL", 0), E("TD", 0), E("ROTW", 0), E("ROTS", 1)
ROTD = E("ROTD", 1)
SCO = os.environ.get("SCO", " sc1")
TPM, TPS, PIPE = E("TPM", 0), E("TPS", 0), E("PIPE", 9)
DRATE = E("DRATE", 2)
TW, T1 = E("TW", 0), E("T1", 0)
SPLIT3, WFLAG = E("SPLIT3", 1), E("WFLAG", 1)
MAPB = E("MAPB", 0)
RING2 = E("RING2", 1)
ZFIRST = E("ZFIRST", 1)
SPS = os.environ.get("SPS", " sc1")
FINE = E("FINE", 0)
LD = os.environ.get("LD", " sc1")
WIN = E("WIN", 8)
SP_D1 = E("SP_D1", 350)
EPIB = E("EPIB", 0)
TAILR = E("TAILR", 0)
MB = E("MB", 0)
DBGT = E("DBGT", 0)
ZOFF = " offset:64" if DBGT else ""
SFIRST = E("SFIRST", 0)
NREP = E("NREP", 8)
BLK = E("BLK", 0)
P4ST = eval(os.environ.get("P4ST", "()"))
P5ST = eval(os.environ.get("P5ST", "()"))
assert sum(NS) == 56 and NS[0] <= 22 and sum(NS[1:4]) <= 22 and sum(NS[4:]) <= 22


def f2u(x):
    return "0x%08x" % struct.unpack("<I", struct.pack("<f", x))[0]


class Cnt:
    def __init__(self, k, name, lim):
        self.k, self.name, self.lim, self.n, self.done = k, name, lim, 0, 0

    def op(self, text):
        self.k(text)
        self.n += 1
        return self.n - 1

    def wait(self, idx):
        if idx < self.done:
            return
        c = min(self.n - idx - 1, self.lim)
        self.k(f"s_waitcnt {self.name}({c})")
        self.done = self.n - c

    def all(self):
        self.wait(self.n - 1)


def cmul8(k, y, x, c, sn, sign):
    neg = " neg_lo:[1,0,0] neg_hi:[1,0,0]"
    for e in range(0, 8, 2):
        k(f"v_pk_mul_f32 {v(y+e,2)}, {v(x+e,2)}, {v(c+e,2)}")
        k(f"v_pk_mul_f32 {v(y+8+e,2)}, {v(x+8+e,2)}, {v(c+e,2)}")
    for e in range(0, 8, 2):
        k(f"v_pk_fma_f32 {v(y+e,2)}, {v(x+8+e,2)}, {v(sn+e,2)}, {v(y+e,2)}" + (neg if sign > 0 else ""))
        k(f"v_pk_fma_f32 {v(y+8+e,2)}, {v(x+e,2)}, {v(sn+e,2)}, {v(y+8+e,2)}" + ("" if sign > 0 else neg))


def gen():
    k = Kern(NAME, 0, 0)
    vm = Cnt(k, "vmcnt", 63)
    END, SPARE = k.lab("end"), k.lab("spare")
    sW, sRB, sCT, sHALF, sRT, sFB = 20, 21, 22, 23, 24, 25
    sSB, sXO, sWG, sFL, sWD, sHS, sHP, sFI = 29, 30, 32, 33, 34, 36, 37, 39
    sA, sB = 40, 44
    sXC, sSS, sDBG, sROT, sWE = 60, 61, 62, 3, 38
    vL16, vG, vC, vL4, vOne, vLP = 3, 4, 5, 30, 2, 0
    vWG, vWT = 250, 251
    outline = []

    def touch_down(first, srd):
        k(f"s_and_b32 s26, s{sRT}, 3")
        k("s_mul_i32 s26, s26, 7")
        k(f"s_add_u32 s26, s26, s{sW}")
        k(f"s_mul_i32 s26, s26, {64*896}")
        k(f"s_lshl_b32 s27, s{sCT}, 7")
        k("s_add_u32 s26, s26, s27")
        k(f"s_add_u32 s26, s26, {first*64*896 & 0xffffffff}")
        k("v_mul_u32_u24 v244, 0x380, v1")
        return f"buffer_load_dword v{245 + (first > 0)}, v244, s[{srd}:{srd+3}], s26 offen"

    def capture(fn):
        saved, k.lines = k.lines, []
        fn()
        out, k.lines = k.lines, saved
        return out

    def spin(load, test, mark=None):
        loop, done = k.lab("poll"), k.lab("done")
        if mark is None:
            mark = vm.op(load)
        vm.wait(mark)
        k(test)
        k(f"s_mov_b32 s50, {SPIN_MAX}")
        k(f"s_cbranch_vccnz {loop}")
        k.label(done)
        outline.append(f"{loop}:\n{load}\ns_sub_u32 s50, s50, 1\ns_waitcnt vmcnt(0)\ns_cmp_eq_u32 s50, 0\n"
                       f"s_cbranch_scc1 {done}\n{test}\ns_nop 0\ns_cbranch_vccnz {loop}\ns_branch {done}")

    def spin0(load, regs, test, extra=0):
        loop, done, skip = k.lab("pp"), k.lab("pd"), k.lab("ps")
        n = len(regs)
        k(f"s_cmp_lg_u32 s{sW}, 0")
        k(f"s_cbranch_scc1 {skip}")
        k(f"s_mov_b32 s50, {SPIN_MAX}")
        for r in regs[:-1]:
            k(load(r) + " ; alt")
            if PIPE < 9:
                k(f"s_sleep {PIPE}")
        k.label(loop)
        for i in range(n):
            k(load(regs[(i - 1) % n]) + " ; alt")
            k(f"s_waitcnt vmcnt({n - 1})")
            k(test(regs[i]))
            k("s_nop 0")
            k(f"s_cbranch_vccz {done}")
        k("s_sub_u32 s50, s50, 1")
        k("s_cmp_lg_u32 s50, 0")
        k(f"s_cbranch_scc1 {loop}")
        k.label(done)
        k.label(skip)
        if extra:
            k(f"s_waitcnt vmcnt({extra})")
            vm.done = vm.n
        else:
            vm.all()
        k("s_barrier")

    def wave0(lines, mask):
        skip = k.lab("skip")
        k(f"s_cmp_lg_u32 s{sW}, 0")
        k(f"s_cbranch_scc1 {skip}")
        k(f"s_mov_b64 exec, {mask}")
        k(lines)
        k("s_mov_b64 exec, -1")
        k.label(skip)

    k("s_load_dwordx2 s[4:5], s[0:1], 0")
    k("s_load_dwordx4 s[44:47], s[0:1], 8")
    k("s_load_dwordx4 s[52:55], s[0:1], 32")
    k("s_load_dwordx4 s[56:59], s[0:1], 48")
    k(f"s_load_dwordx2 s[{sDBG}:{sDBG+1}], s[0:1], 64")
    k("s_load_dwordx2 s[6:7], s[0:1], 72")
    if "c" in SP_LIST:
        here, noc = k.lab("pc"), k.lab("noc")
        k("s_and_b32 s3, s2, 0xffffffe0")
        k(f"s_cmp_lg_u32 s3, {0 if SFIRST else 224}")
        k(f"s_cbranch_scc1 {noc}")
        k("s_getpc_b64 s[8:9]")
        k.label(here)
        k("s_bfe_u32 s3, s2, 0x20003")
        k("v_lshrrev_b32 v1, 2, v0")
        k("s_lshl_b32 s3, s3, 13")
        k("v_lshl_add_u32 v1, v1, 7, s3")
        k("v_mov_b32 v3, s9")
        k("v_add_co_u32 v2, vcc, s8, v1")
        k("v_addc_co_u32 v3, vcc, 0, v3, vcc")
        k("global_load_dword v113, v[2:3], off ; alt")
        k.label(noc)
    k("s_cmp_ge_u32 s2, 256")
    k(f"s_cbranch_scc1 {END}")
    if SFIRST:
        k("s_add_u32 s2, s2, 224")
        k("s_and_b32 s2, s2, 255")
    k.stamp()
    k("v_lshrrev_b32 v2, 6, v0")
    k("v_and_b32 v1, 63, v0")
    k(f"v_readfirstlane_b32 s{sW}, v2")
    k("s_cmp_ge_u32 s2, 224")
    k(f"s_cbranch_scc1 {SPARE}")
    k("s_lshr_b32 s26, s2, 3")
    k("s_mul_i32 s27, s26, 37")
    k("s_lshr_b32 s27, s27, 8")
    k("s_and_b32 s28, s2, 7")
    k(f"s_lshl2_add_u32 s{sRT}, s28, s27")
    k("s_mul_i32 s28, s27, 7")
    k(f"s_sub_u32 s{sCT}, s26, s28")

    k("v_lshrrev_b32 v4, 5, v1")
    k("v_bfe_u32 v5, v1, 3, 2")
    k("v_lshl_add_u32 v4, v4, 4, v5")
    k("v_mul_u32_u24 v4, 0x7000, v4")
    k("v_lshrrev_b32 v5, 4, v1")
    k("v_and_b32 v6, 7, v1")
    k("v_xor_b32 v6, v6, v5")
    k("v_lshl_add_u32 v2, v6, 4, v4")
    k("v_xor_b32 v3, 64, v2")
    k(f"v_add_u32 v3, {32*32*896}, v3")
    k(f"s_lshl_b32 s26, s{sW}, 7")
    k(f"s_add_u32 s26, s26, s{sRT}")
    k("s_mul_i32 s26, s26, 896")
    k(f"s_lshl_b32 s27, s{sW}, 11")
    vB, vST, vE, vSG, vT, vF, vKK, vOnes, vCS = 8, 9, 9, 17, 19, 28, 27, 152, 156

    def p1_consts():
        k("v_and_b32 v8, 15, v1")
        k(f"s_and_b32 s28, s{sW}, 1")
        k("s_lshl_b32 s28, s28, 4")
        k(f"s_lshl_b32 s29, s{sCT}, 5")
        k("s_add_u32 s28, s28, s29")
        k(f"v_add_u32 {v(vKK)}, s28, v8")
        k("v_lshrrev_b32 v9, 1, v8")
        k("v_xor_b32 v9, v9, v5")
        k("v_lshlrev_b32 v9, 4, v9")
        k("v_lshl_add_u32 v4, v8, 7, v9")
        k(f"v_add_u32 v19, 1, {v(vKK)}")
        k("v_cvt_f32_u32 v20, v19")
        k("v_and_b32 v19, 1, v19")
        k("v_lshlrev_b32 v19, 31, v19")
        k(f"v_or_b32 {v(vSG)}, 1.0, v19")
        for e in range(1, 8):
            k(f"v_mul_f32 {v(vE+e)}, {f2u(e/448.0)}, v20")
        k(f"v_mul_f32 {v(vST)}, {f2u(32.0/448)}, v20")
        k(f"v_fract_f32 {v(vST)}, {v(vST)}")
        k("v_lshlrev_b32 v21, 3, v5")
        k("v_cvt_f32_u32 v21, v21")
        k(f"s_lshr_b32 s30, s{sW}, 1")
        k(f"s_mul_i32 s31, s30, {f2u(0.25)}")
        k(f"v_mov_b32 {v(vB)}, s31")
        k(f"v_fmac_f32 {v(vB)}, v21, {v(vE+1)}")
        k(f"v_fract_f32 {v(vB)}, {v(vB)}")
        if MAPB:
            k(f"s_and_b32 s{sHALF}, s2, 1")
            k(f"s_bfe_u32 s{sRB}, s2, 0x20001")
            k(f"s_and_b32 s35, s{sRT}, 3")
            k(f"s_lshl2_add_u32 s{sRB}, s{sRB}, s35")
        else:
            k(f"s_and_b32 s{sHALF}, s{sRT}, 1")
            k(f"s_lshr_b32 s{sRB}, s{sRT}, 1")
        k(f"s_mul_i32 s{sFB}, s{sHALF}, 7")
        k(f"s_add_u32 s{sFB}, s{sFB}, s{sCT}")
        k(f"s_lshl_b32 s{sWG}, s{sFB}, 8")
        k(f"s_mul_i32 s35, s{sW}, {4*3584}")
        k(f"s_add_u32 s{sWG}, s{sWG}, s35")
        k(f"s_lshl2_add_u32 s{sFB}, s{sFB}, s{sW}")
        k(f"s_add_u32 s{sWE}, s{sWG}, {28*57344}")
        k(f"s_and_b32 s{sROT}, s2, 7")
        k(f"s_min_u32 s{sROT}, s{sROT}, {6 if ROTW else 0}")
        k(f"s_mul_i32 s35, s{sROT}, {4*57344}")
        k(f"s_add_u32 s{sWG}, s{sWG}, s35")
        k(f"s_lshl_b32 s{sROT}, s{sROT}, 12")
        k("v_bfe_u32 v21, v1, 2, 2")
        k("v_xor_b32 v22, v21, v5")
        k("v_and_b32 v23, 3, v1")
        k("v_lshlrev_b32 v22, 6, v22")
        k("v_lshl_add_u32 v22, v23, 4, v22")
        k(f"v_mul_u32_u24 {v(vWG)}, 0xe00, v5")
        k(f"v_add_u32 {v(vWG)}, {v(vWG)}, v22")
        k(f"v_xor_b32 v22, s{sW}, v21")
        k("v_lshlrev_b32 v22, 6, v22")
        k("v_lshl_add_u32 v22, v21, 8, v22")
        k("v_lshl_add_u32 v22, v23, 3, v22")
        k("v_and_b32 v23, 1, v5")
        k("v_lshl_add_u32 v22, v23, 5, v22")
        k("v_lshrrev_b32 v23, 5, v1")
        k("v_lshl_add_u32 v22, v23, 11, v22")
        k(f"v_add_u32 {v(vWT)}, {STG}, v22")
        k(f"v_add_u32 {v(vWT+1)}, {RNG}, v22")
        k(f"s_lshl_b32 s35, s{sW}, 10")
        k("v_xor_b32 v5, 64, v4")
        k("v_add_u32 v6, s27, v4")
        k("v_add_u32 v7, s27, v5")
        for p in range(4):
            k(f"v_mov_b32 {v(vOnes+p)}, 0x3f803f80")
        for t in range(7):
            k(f"v_cos_f32 {v(vT)}, {v(vB)}")
            for e in range(1, 8):
                k(f"v_add_f32 {v(vT+e)}, {v(vB)}, {v(vE+e)}")
            for e in range(1, 8):
                k(f"v_cos_f32 {v(vT+e)}, {v(vT+e)}")
            if t < 6:
                k(f"v_add_f32 {v(vB)}, {v(vB)}, {v(vST)}")
                k(f"v_fract_f32 {v(vB)}, {v(vB)}")
            for p in range(4):
                k(f"v_cvt_pk_bf16_f32 {v(vF+4*t+p)}, {v(vT+2*p)}, {v(vT+2*p+1)}")
            if t > 0:
                k(f"v_mfma_f32_16x16x32_bf16 {v(vCS,4)}, {v(vOnes,4)}, {v(vF+4*t-4,4)}, {'0' if t == 1 else v(vCS,4)}")

    lines = capture(p1_consts)
    per = -(-len(lines) // 14)

    def slot():
        for _ in range(min(per, len(lines))):
            k(lines.pop(0))

    k("s_waitcnt lgkmcnt(0)")
    k.stamp(1) if FINE == 1 else None
    k.srd(12, 4, XB)
    xs = []
    for i in range(7):
        if i == 0:
            k(f"s_mov_b32 s48, s{sCT}")
        else:
            k("s_add_u32 s48, s48, 1")
            k("s_cmp_eq_u32 s48, 7")
            k("s_cselect_b32 s48, 0, s48")
        k("s_lshl_b32 s49, s48, 7")
        k("s_add_u32 s49, s49, s26")
        k("s_lshl_b32 s51, s48, 13")
        k("s_add_u32 m0, s51, s27")
        vm.op("buffer_load_dwordx4 v2, s[12:15], s49 offen lds")
        slot()
        k("s_add_u32 m0, m0, 1024")
        xs.append(vm.op("buffer_load_dwordx4 v3, s[12:15], s49 offen lds"))
        slot()
    assert not lines
    k.stamp(1) if FINE == 1 else None
    k("s_mov_b32 s8, s46")
    k("s_and_b32 s9, s47, 0xffff")
    k(f"s_mov_b32 s10, {WRB}")
    k("s_mov_b32 s11, 0x20000")
    k("s_and_b32 s45, s45, 0xffff")
    k(f"s_mov_b32 s46, {WRB}")
    k("s_mov_b32 s47, 0x20000")
    k(f"s_and_b32 s50, s{sRT}, 28")
    k(f"s_add_u32 s50, s50, s{sW}")
    k(f"s_and_b32 s51, s{sRT}, 3")
    k("s_lshl2_add_u32 s50, s50, s51")
    k("s_mul_i32 s50, s50, 7200")
    k(f"s_lshl_b32 s51, s{sCT}, 6")
    k("s_add_u32 s50, s50, s51")
    k("s_add_u32 s50, s50, 2")
    k("v_lshrrev_b32 v230, 2, v1")
    k("v_and_b32 v231, 3, v1")
    k("v_mul_u32_u24 v232, 0x1c2, v230")
    k("v_lshl_add_u32 v232, v231, 4, v232")
    vm.op("buffer_load_dwordx4 v[160:163], v232, s[44:47], s50 offen")
    wf_ld = vm.op("buffer_load_dwordx4 v[164:167], v232, s[8:11], s50 offen")
    k("v_lshlrev_b32 v230, 4, v230")
    k("v_lshl_add_u32 v230, v231, 11, v230")
    k(f"s_lshl2_add_u32 s50, s{sW}, {XT}")
    k("v_add_u32 v230, s50, v230")
    k.srd(8, 6, WS_BYTES)
    k.srd(sA, 52, WGB)
    k.srd(sB, 54, WGB)
    k.srd(16, 58, XB)
    k("s_mov_b32 s48, s56")
    k("s_mov_b32 s49, s57")
    k(f"v_mfma_f32_16x16x32_bf16 {v(vCS,4)}, {v(vOnes,4)}, {v(vF+24,4)}, {v(vCS,4)}")

    def stg(kp):
        return kp if kp < 11 else kp - 11 if kp < 22 else kp - 22

    sid = []

    def sload(cnt=1):
        for _ in range(cnt):
            n = len(sid)
            kp, m = n // 2, n % 2
            sl = stg(kp)
            if E("WSKIP", 0) == 2 or (E("WSKIP", 0) and m):
                sid.append(vm.n - 1)
                continue
            k(f"s_add_u32 m0, s35, {(STG + sl*8192 if sl < 7 else RNG + (sl-7)*8192) + m*4096}")
            if n and not m:
                k(f"s_add_u32 s{sWG}, s{sWG}, {16*3584}")
                if ROTW and kp % 4 == 0:
                    k(f"s_cmp_eq_u32 s{sWG}, s{sWE}")
                    k(f"s_cselect_b32 s37, {28*57344}, 0")
                    k(f"s_sub_u32 s{sWG}, s{sWG}, s37")
            sid.append(vm.op(f"buffer_load_dwordx4 {v(vWG)}, s[{(sA, sB)[m]}:{(sA, sB)[m]+3}], s{sWG} offen lds"))

    def sread(k0, k1):
        for kp in range(k0, k1):
            sl = stg(kp)
            for m in range(2):
                for u in range(2):
                    k(f"ds_read_b64_tr_b16 {a(8*kp+4*m+2*u,2)}, {v(vWT + (sl >= 7))} offset:{(sl%7 if sl < 7 else sl-7)*8192 + m*4096 + u*1024}")

    k.stamp()
    vR, vSm, vGr = 56, 20, 120

    def stat(t):
        b = vR + 4 * (t % 4)
        k(f"v_mfma_f32_16x16x32_bf16 {v(vSm,4)}, {v(b,4)}, {v(vOnes,4)}, {'0' if t == 0 else v(vSm,4)}")
        k(f"v_mfma_f32_16x16x32_bf16 {v(vGr,4)}, {v(b,4)}, {v(b,4)}, {'0' if t == 0 else v(vGr,4)}")

    if TALL:
        k(f"s_lshl2_add_u32 s51, s2, s{sW}")
        k("s_mul_i32 s50, s51, 335")
        k("s_lshr_b32 s50, s50, 16")
        k("s_mul_i32 s29, s50, 196")
        k("s_sub_u32 s51, s51, s29")
        k("s_lshl_b32 s51, s51, 13")
        k("s_cmp_eq_u32 s50, 1")
        k("s_cselect_b32 s52, s54, s52")
        k("s_cselect_b32 s53, s55, s53")
        k("s_cmp_eq_u32 s50, 2")
        k("s_cselect_b32 s52, s56, s52")
        k("s_cselect_b32 s53, s57, s53")
        k("s_and_b32 s53, s53, 0xffff")
        k("s_cmp_le_u32 s50, 2")
        k(f"s_cselect_b32 s54, {WGB}, 0")
        k("s_mov_b32 s55, 0x20000")
        k("v_lshlrev_b32 v240, 7, v1")
        vm.op("buffer_load_dword v241, v240, s[52:55], s51 offen")
    if TPM:
        k("v_and_b32 v242, 15, v1")
        k("v_lshlrev_b32 v242, 13, v242")
        k("s_lshl_b32 s51, s28, 13")
        k("s_lshl_b32 s50, s30, 12")
        k("s_add_u32 s51, s51, s50")
        k(f"s_lshl_b32 s50, s{sRT}, 7")
        k("s_add_u32 s51, s51, s50")
        vm.op("buffer_load_dword v243, v242, s[8:11], s51 offen sc1")
    sload(NP[0])
    k(f"s_lshl_b32 s51, s{sCT}, 13")
    for c in range(7):
        k("v_add_u32 v26, s51, v6")
        k("v_add_u32 v18, s51, v7")
        if c < 6:
            k("s_add_u32 s51, s51, 8192")
            k("s_cmp_eq_u32 s51, 57344")
            k("s_cselect_b32 s51, 0, s51")
        vm.wait(xs[c])
        for par in range(2):
            k(f"ds_read_b128 {v(vR+4*((2*c+par)%4),4)}, v{18 if par else 26}")
        if c > 0:
            k("s_waitcnt lgkmcnt(2)")
            stat(2 * c - 2)
            stat(2 * c - 1)
    k("s_waitcnt lgkmcnt(0)")
    k.stamp(1) if FINE == 1 else None
    stat(12)
    stat(13)
    k("s_barrier")
    k.stamp()
    vA, vSt, vM, vQ = 88, 124, 24, 25
    seq = [(t, b) for t in range(14) for b in range(4)]

    l1 = Cnt(k, "lgkmcnt", 15)
    r1 = {}

    def rd1(n):
        t, b = seq[n]
        r1[n] = l1.op(f"ds_read_b128 {v(vR+4*(n%8),4)}, v{4+(t&1)} offset:{(t>>1)*8192 + b*2048}")

    fin = ["v_and_b32 v26, 3, v1",
           "v_cmp_eq_u32 s[52:53], 1, v26", "v_cmp_eq_u32 s[54:55], 2, v26", "v_cmp_eq_u32 s[56:57], 3, v26",
           "v_bfe_u32 v26, v1, 2, 2", "v_lshrrev_b32 v19, 4, v1", "v_cmp_eq_u32 s[58:59], v26, v19",
           f"v_cndmask_b32 {v(vM)}, {v(vSm)}, {v(vSm+1)}, s[52:53]", f"v_cndmask_b32 {v(vQ)}, {v(vGr)}, {v(vGr+1)}, s[52:53]",
           f"v_cndmask_b32 {v(vM)}, {v(vM)}, {v(vSm+2)}, s[54:55]", f"v_cndmask_b32 {v(vQ)}, {v(vQ)}, {v(vGr+2)}, s[54:55]",
           f"v_cndmask_b32 {v(vM)}, {v(vM)}, {v(vSm+3)}, s[56:57]", f"v_cndmask_b32 {v(vQ)}, {v(vQ)}, {v(vGr+3)}, s[56:57]",
           f"v_mul_f32 {v(vM)}, {f2u(1.0/448)}, {v(vM)}",
           f"v_mul_f32 {v(vQ)}, {f2u(1.0/448)}, {v(vQ)}",
           "v_and_b32 v26, 15, v1",
           f"v_fma_f32 {v(vQ)}, -{v(vM)}, {v(vM)}, {v(vQ)}",
           f"s_lshl_b32 s33, s{sW}, 6\ns_add_u32 s33, s33, {R2}",
           f"v_max_f32 {v(vQ)}, 0, {v(vQ)}",
           "v_lshl_add_u32 v19, v26, 2, s33",
           f"v_add_f32 {v(vQ)}, {f2u(EPS)}, {v(vQ)}",
           f"v_fmac_f32 {v(vCS)}, {v(vCS)}, {v(vSG)}",
           f"v_rsq_f32 {v(vQ)}, {v(vQ)}",
           "v_lshrrev_b32 v21, 2, v26",
           "v_and_b32 v26, 3, v26",
           f"v_mul_f32 v20, {v(vM)}, {v(vQ)}",
           "v_lshl_add_u32 v26, v21, 4, v26",
           "v_lshlrev_b32 v26, 7, v26",
           f"s_lshl_b32 s33, s{sW}, 7",
           f"s_add_u32 s33, s33, s{sRT}",
           f"s_lshl2_add_u32 s33, s33, {M1}",
           f"s_cmp_eq_u32 s{sCT}, 0\ns_cselect_b32 s33, s33, 0x40000000"]
    fin2 = [["s_mov_b32 s50, 0x05040100", "s_mov_b32 s51, 0x07060302"]]
    for e in range(0, 8, 2):
        fin2.append([f"v_perm_b32 v{168+e+i}, v{164+(e>>1)}, v{160+(e>>1)}, s{50+i}" for i in range(2)])
    for e in range(0, 8, 2):
        fin2.append([f"ds_write2st64_b32 v230, v{168+e}, v{169+e} offset0:{e} offset1:{e+1}"])
    fin2 += [[f"s_add_u32 s50, s27, {XT}", "v_lshl_add_u32 v231, v1, 4, s50"],
             ["v_lshrrev_b32 v230, 4, v1", "v_and_b32 v232, 15, v1", f"s_lshl2_add_u32 s50, s{sCT}, s{sW}"],
             ["v_lshlrev_b32 v232, 4, v232", "s_lshl_b32 s50, s50, 16", f"s_and_b32 s51, s{sRT}, 3"],
             ["v_lshl_add_u32 v230, v230, 13, v232", "s_lshl_b32 s51, s51, 11", "s_add_u32 s50, s50, s51"],
             [f"s_lshr_b32 s51, s{sRT}, 2", "s_lshl_b32 s51, s51, 8", "s_add_u32 s50, s50, s51"],
             [f"s_add_u32 s50, s50, {WT}", "s_add_u32 s51, s50, 32768"]]
    DEPTH = 7
    for n in range(DEPTH):
        rd1(n)
    if T1:
        k(f"s_bitcmp1_b32 s{sW}, 0")
        k(f"s_cselect_b32 s52, s{sB}, s{sA}")
        k(f"s_cselect_b32 s53, s{sB+1}, s{sA+1}")
        k(f"s_mov_b32 s54, {WGB}")
        k("s_mov_b32 s55, 0x20000")
        k(f"s_and_b32 s50, s{sRB}, 1")
        k(f"s_lshr_b32 s51, s{sW}, 1")
        k("s_lshl1_add_u32 s50, s50, s51")
        k(f"s_mul_i32 s50, s50, {2*57344}")
        k(f"s_lshr_b32 s51, s{sFB}, 2")
        k("s_lshl_b32 s51, s51, 8")
        k("s_add_u32 s50, s50, s51")
        k(f"s_add_u32 s50, s50, {T1*57344}")
        k("v_lshrrev_b32 v240, 1, v1")
        k("v_mul_u32_u24 v240, 0xe00, v240")
        k("v_and_b32 v241, 1, v1")
        k("v_lshl_add_u32 v240, v241, 7, v240")
        vm.op("buffer_load_dword v241, v240, s[52:55], s50 offen")
    for n in range(56):
        t, b = seq[n]
        l1.wait(r1[n])
        acc = vA + 16 * (t // 7) + 4 * b
        k(f"v_mfma_f32_16x16x32_bf16 {v(acc,4)}, {v(vR+4*(n%8),4)}, {v(vF+4*(t%7),4)}, {'0' if t % 7 == 0 else v(acc,4)}")
        if n + DEPTH < 56:
            rd1(n + DEPTH)
        if n >= 4 and fin:
            k(fin.pop(0))
        if n == 40:
            assert not fin
            k("s_mov_b64 exec, s[58:59]")
            l1.op(f"ds_write_b32 v19, {v(vQ)}")
            l1.op("ds_write_b32 v19, v20 offset:256")
            vm.op(f"buffer_store_dword {v(vM)}, v26, s[8:11], s33 offen sc1")
            k("s_mov_b64 exec, -1")
        if n == 41:
            vm.wait(wf_ld)
        if n >= 41:
            for t_ in fin2.pop(0):
                l1.op(t_) if t_.startswith("ds_") else k(t_)
        if n % 8 == 3 and len(sid) < NP[0] + NP[1]:
            sload()
    k.stamp(1) if FINE == 1 else None
    assert not fin2
    l1.all()
    k("s_barrier")
    k.stamp(1) if FINE == 1 else None
    k("ds_read_b128 v[160:163], v231")
    k("ds_read_b128 v[164:167], v231 offset:1024")
    k("v_lshrrev_b32 v24, 4, v1")
    k("v_lshlrev_b32 v24, 4, v24")
    k(f"v_add_u32 v25, {R2}, v24")
    for b in range(4):
        k(f"ds_read_b128 {v(vSt+4*b,4)}, v25 offset:{64*b}")
        k(f"ds_read_b128 {v(vSt+16+4*b,4)}, v25 offset:{256 + 64*b}")
    for n in range(0, 16, 2):
        k(f"v_pk_fma_f32 {v(vA+n,2)}, {v(vA+16+n,2)}, {v(vSG-1,2)}, {v(vA+n,2)} op_sel:[0,1,0]")
    k("s_waitcnt lgkmcnt(8)")
    vm.op("buffer_store_dwordx4 v[160:163], v230, s[8:11], s50 offen sc1")
    vm.op("buffer_store_dwordx4 v[164:167], v230, s[8:11], s51 offen sc1")
    k.stamp(1) if FINE == 1 else None
    k("v_and_b32 v8, 15, v1")
    k("v_and_b32 v9, 7, v1")
    k("v_lshrrev_b32 v10, 3, v24")
    k("v_xor_b32 v10, v10, v9")
    k("v_lshlrev_b32 v10, 4, v10")
    k("v_lshl_add_u32 v10, v8, 7, v10")
    k("v_add_u32 v10, s27, v10")
    k("v_xor_b32 v11, 16, v10")
    k(f"v_lshlrev_b32 {v(vL16)}, 4, v1")
    k(f"v_add_u32 v12, s27, {v(vL16)}")
    k("v_lshrrev_b32 v13, 3, v1")
    k("v_xor_b32 v9, v9, v13")
    k("v_lshlrev_b32 v9, 4, v9")
    k("v_lshl_add_u32 v13, v13, 13, v9")
    k("s_lshl_b32 s28, s28, 13")
    k("s_lshl_b32 s30, s30, 12")
    k(f"s_lshl_b32 s33, s{sRT}, 7")
    k("s_add_u32 s33, s33, s30")
    k("s_add_u32 s33, s33, s28")
    k("s_add_u32 s34, s33, 0x10000")
    for h2 in range(2):
        k(f"s_waitcnt lgkmcnt({4-4*h2})")
        for n in range(8 * h2, 8 * h2 + 8, 2):
            k(f"v_pk_mul_f32 {v(vA+n,2)}, {v(vA+n,2)}, {v(vSt+n,2)}")
        for n in range(8 * h2, 8 * h2 + 8, 2):
            k(f"v_pk_fma_f32 {v(vA+n,2)}, {v(vSt+16+n,2)}, {v(vCS,2)}, {v(vA+n,2)} op_sel_hi:[1,0,1] neg_lo:[1,0,0] neg_hi:[1,0,0]")
        for n in range(4 * h2, 4 * h2 + 4):
            k(f"v_cvt_pk_bf16_f32 {v(vR+n)}, {v(vA+2*n)}, {v(vA+2*n+1)}")
    k.stamp(1) if FINE == 1 else None
    k(f"ds_write_b128 v10, {v(vR,4)}")
    k(f"ds_write_b128 v11, {v(vR+4,4)}")
    k("s_waitcnt lgkmcnt(0)")
    k(f"ds_read_b128 {v(vR+8,4)}, v12")
    k(f"ds_read_b128 {v(vR+12,4)}, v12 offset:1024")
    k(f"v_lshlrev_b32 {v(vL4)}, 2, v1")
    k(f"v_min_u32 v14, 28, {v(vL4)}")
    k("s_waitcnt lgkmcnt(1)")
    vm.op(f"buffer_store_dwordx4 {v(vR+8,4)}, v13, s[8:11], s33 offen sc1")
    k("s_waitcnt lgkmcnt(0)")
    at_st = vm.op(f"buffer_store_dwordx4 {v(vR+12,4)}, v13, s[8:11], s34 offen sc1")
    zload = f"global_load_dword v31, v14, s[{sDBG}:{sDBG+1}]{ZOFF} sc1"
    zmark = vm.op(zload)
    k.stamp()

    sKK, vWt = 2, 200
    vC1, vS1, vN1, vC2, vS2, vN2 = 32, 40, 48, 56, 64, 72
    vTc, vTs, vUc, vUs, vD, wX, vY, vP, wT = 80, 88, 96, 104, 112, 144, 160, 176, 184
    m2 = [0, 1, 2, 3, 16, 17, 18, 19]
    k(f"v_lshrrev_b32 {v(vG)}, 4, v1")
    k(f"v_and_b32 {v(vC)}, 15, v1")
    k(f"v_mov_b32 {v(vOne)}, 1")
    k(f"v_min_u32 {v(vLP)}, 220, {v(vL4)}")
    k("v_and_b32 v7, 7, v1")
    k(f"v_xor_b32 v7, v7, {v(vG)}")
    k("v_lshrrev_b32 v8, 3, v1")
    k("v_lshlrev_b32 v8, 7, v8")
    k("v_lshl_add_u32 v211, v7, 4, v8")
    k("v_xor_b32 v212, 64, v211")
    k(f"s_lshl_b32 s{sFL}, s{sRB}, 10")
    k(f"s_add_u32 s{sFL}, s{sFL}, {FL}")
    k(f"s_lshl2_add_u32 s{sFI}, s{sFB}, s{sFL}")
    k(f"s_getreg_b32 s{sXC}, hwreg(HW_REG_XCC_ID, 0, 4)")
    k(f"s_lshr_b32 s26, s{sKK}, 5")
    k(f"s_lshl_b32 s26, s26, {9 if WFLAG else 7}")
    k(f"s_add_u32 s51, s26, {FL + F_P1}")
    k("v_lshlrev_b32 v214, 3, v1")
    k(f"v_and_b32 v213, 124, {v(vL4)}")
    k(f"s_lshl_b32 s26, s{sCT}, 5")
    k(f"s_add_u32 s26, s26, s{sRT}")
    if WFLAG:
        k(f"s_lshl2_add_u32 s26, s26, s{sW}")
    k(f"s_lshl2_add_u32 s52, s26, {FL + F_P1}")
    k(f"s_lshl1_add_u32 s{sRT}, s{sRB}, s{sHALF}")

    def packed_table(dc, ds_, step, base, mult):
        for e in range(8):
            k(f"v_mov_b32 {v(wT+e)}, {v(base)}" if mult[e] == 0 else
              f"v_fmamk_f32 {v(wT+e)}, {v(step)}, {f2u(float(mult[e]))}, {v(base)}")
        for e in range(8):
            k(f"v_cos_f32 {v(wT+8+e)}, {v(wT+e)}")
        for e in range(8):
            k(f"v_sin_f32 {v(wT+e)}, {v(wT+e)}")
        for p in range(4):
            k(f"v_cvt_pk_bf16_f32 {v(dc+p)}, {v(wT+8+2*p)}, {v(wT+8+2*p+1)}")
        for p in range(4):
            k(f"v_cvt_pk_bf16_f32 {v(ds_+p)}, {v(wT+2*p)}, {v(wT+2*p+1)}")

    k(f"s_lshl_b32 s53, s{sW}, 4")
    k(f"v_add_u32 v210, s53, {v(vC)}")
    k("v_cvt_f32_u32 v208, v210")
    k(f"v_cvt_f32_u32 v209, {v(vG)}")
    k(f"v_mul_f32 {v(vY)}, {f2u(1.0/64)}, v208")
    k(f"v_mul_f32 {v(vY+1)}, {f2u(8.0)}, v209")
    k(f"v_mul_f32 {v(vY+1)}, {v(vY+1)}, {v(vY)}")
    packed_table(vC1, vS1, vY, vY + 1, list(range(8)))
    k("s_mov_b32 s54, 0x80008000")
    k("v_and_b32 v210, 1, v1")
    k("v_mul_u32_u24 v210, 0x8000, v210")
    k("v_lshl_or_b32 v210, v210, 16, v210")
    for p in range(4):
        k(f"v_xor_b32 {v(vC1+4+p)}, v210, {v(vC1+p)}")
        k(f"v_xor_b32 {v(vS1+4+p)}, v210, {v(vS1+p)}")
    for p in range(8):
        k(f"v_xor_b32 {v(vN1+p)}, s54, {v(vS1+p)}")
    k.stamp(1) if FINE == 1 else None
    spin(zload, "v_cmp_eq_u32 vcc, 0, v31", zmark)
    if WFLAG:
        vm.op(f"buffer_store_dword {v(vOne)}, off, s[8:11], s52 sc1")
        vm.wait(sid[-1])
        k("s_barrier")
    else:
        vm.all()
        k("s_barrier")
        wave0(f"buffer_store_dword {v(vOne)}, off, s[8:11], s52 sc1", 1)
    k.stamp()
    nr1 = len(sid) // 2
    assert len(sid) == NP[0] + NP[1] and len(sid) % 2 == 0
    sload(NP[2])
    sread(0, nr1)
    k(f"v_lshrrev_b32 v210, 1, {v(vC)}")
    k(f"v_xor_b32 v210, v210, {v(vG)}")
    k("v_lshlrev_b32 v210, 4, v210")
    k(f"v_lshl_add_u32 {v(vP)}, {v(vC)}, 7, v210")
    k(f"v_xor_b32 {v(vP+1)}, 64, {v(vP)}")
    k(f"v_cvt_f32_u32 v210, {v(vC)}")
    k(f"v_mul_f32 {v(vY)}, {f2u(1.0/32)}, v210")
    k(f"v_mul_f32 {v(vY+1)}, 4.0, v209")
    k(f"v_mul_f32 {v(vY+1)}, {v(vY+1)}, {v(vY)}")
    packed_table(vC2, vS2, vY, vY + 1, m2)
    k("s_brev_b32 s55, 1")
    for p in range(4):
        k(f"v_xor_b32 {v(vC2+4+p)}, s55, {v(vC2+p)}")
        k(f"v_xor_b32 {v(vS2+4+p)}, s55, {v(vS2+p)}")
    for p in range(8):
        k(f"v_xor_b32 {v(vN2+p)}, s54, {v(vS2+p)}")
    k(f"v_mul_f32 {v(vY)}, {f2u(1.0/2048)}, v208")
    k(f"v_mul_f32 {v(vY+1)}, 4.0, v209")
    k(f"v_mul_f32 {v(vY+1)}, {v(vY+1)}, {v(vY)}")
    for e in range(8):
        k(f"v_mov_b32 {v(vTs+e)}, {v(vY+1)}" if m2[e] == 0 else
          f"v_fmamk_f32 {v(vTs+e)}, {v(vY)}, {f2u(float(m2[e]))}, {v(vY+1)}")
    for e in range(8):
        k(f"v_cos_f32 {v(vTc+e)}, {v(vTs+e)}")
    for e in range(8):
        k(f"v_sin_f32 {v(vTs+e)}, {v(vTs+e)}")
    k(f"v_mul_f32 {v(wT)}, {f2u(1.0/2048)}, v210")
    k(f"v_add_f32 {v(wT+1)}, {f2u(16.0/2048)}, {v(wT)}")
    k(f"v_lshl_add_u32 v208, {v(vG)}, 2, s53")
    k("v_cvt_f32_u32 v208, v208")
    for r in range(4):
        for blk in range(2):
            k(f"v_mul_f32 {v(vUs+4*blk+r)}, v208, {v(wT+blk)}")
        if r < 3:
            k("v_add_f32 v208, 1.0, v208")
    for e in range(8):
        k(f"v_cos_f32 {v(vUc+e)}, {v(vUs+e)}")
    for e in range(8):
        k(f"v_sin_f32 {v(vUs+e)}, {v(vUs+e)}")
    sc = 2.0 / (S * D)
    k(f"s_cmp_eq_u32 s{sKK}, 223")
    k(f"s_mov_b32 s55, {f2u(sc)}")
    k(f"s_cselect_b32 s55, {f2u(sc/2)}, s55")
    for e in range(8):
        k(f"v_mul_f32 {v(vUc+e)}, s55, {v(vUc+e)}")
        k(f"v_mul_f32 {v(vUs+e)}, s55, {v(vUs+e)}")
    k(f"v_lshrrev_b32 v208, 1, {v(vG)}")
    k(f"v_lshl_add_u32 v208, v208, 4, {v(vC)}")
    k("v_lshlrev_b32 v208, 4, v208")
    k(f"v_and_b32 v209, 1, {v(vG)}")
    k("v_lshl_add_u32 v208, v209, 3, v208")
    k(f"s_lshl_b32 s26, s{sW}, 9")
    k("v_add_u32 v208, s26, v208")
    k(f"s_lshl_b32 s26, s{sKK}, 13")
    k("s_add_u32 s56, s26, s27")
    k(f"s_add_u32 s57, s56, {WT}")
    k("s_add_u32 s58, s26, s35")
    k("s_add_u32 s59, s58, 4096")
    k("s_mov_b32 m0, s27")
    k("s_waitcnt lgkmcnt(0)")
    k("s_barrier")
    k.stamp()
    if WFLAG:
        spin0(lambda r: f"buffer_load_dwordx2 v[{r}:{r+1}], v214, s[8:11], s51 offen sc1", [216, 218, 220],
              lambda r: f"v_and_b32 v{r}, v{r}, v{r+1}\nv_cmp_eq_u32 vcc, 0, v{r}")
    elif PIPE:
        spin0(lambda r: f"buffer_load_dword v{r}, v213, s[8:11], s51 offen sc1", [216, 217, 218], lambda r: f"v_cmp_eq_u32 vcc, 0, v{r}")
    else:
        spin("buffer_load_dword v31, v213, s[8:11], s51 offen sc1", "v_cmp_eq_u32 vcc, 0, v31")
    k.stamp()
    vm.op(f"buffer_load_dwordx4 v211, s[8:11], s56 offen{LD} lds")
    at_ld = vm.op(f"buffer_load_dwordx4 v212, s[8:11], s56 offen offset:1024{LD} lds")
    vm.op(f"buffer_load_dwordx4 {v(vWt,4)}, {v(vL16)}, s[8:11], s57 offen{LD}")
    wt_ld = vm.op(f"buffer_load_dwordx4 {v(vWt+4,4)}, {v(vL16)}, s[8:11], s57 offen offset:1024{LD}")
    k(f"s_lshl_b32 s26, s{sXC}, 2")
    k("s_lshl_b32 s26, 1, s26")
    k(f"s_lshr_b32 s28, s{sXC}, 3")
    k(f"s_lshl2_add_u32 s28, s28, s{sFL}")
    wave0("v_mov_b32 v215, s26\nbuffer_atomic_add v215, off, s[8:11], s28 offset:768 sc1", 1)
    if not PIPE:
        k("s_barrier")
    assert NS[1] <= 2 * nr1 + 22 - NS[0]
    sread(nr1, NS[0] // 2)
    nr1 = NS[0] // 2
    sload(NS[1])
    vm.wait(at_ld)
    k("s_waitcnt lgkmcnt(0)")
    k("s_barrier")
    k.stamp()
    for t in range(2):
        for blk in range(2):
            for plane in range(2):
                k(f"ds_read_b128 {v(vD+16*plane+8*blk+4*t,4)}, {v(vP+t)} offset:{plane*4096+blk*2048}")
    sload(NS[2])

    def dft_big(cr, ci):
        for t in range(2):
            for blk in range(2):
                k(f"s_waitcnt lgkmcnt({6 - 4*t - 2*blk})")
                ar, ai = vD + 8 * blk + 4 * t, vD + 16 + 8 * blk + 4 * t
                xr, xi = wX + 4 * blk, wX + 8 + 4 * blk
                k(f"v_mfma_f32_16x16x32_bf16 {v(xr,4)}, {v(ar,4)}, {v(vC1+4*t,4)}, {'0' if t == 0 else v(xr,4)}")
                k(f"v_mfma_f32_16x16x32_bf16 {v(xi,4)}, {v(ai,4)}, {v(vC1+4*t,4)}, {'0' if t == 0 else v(xi,4)}")
                k(f"v_mfma_f32_16x16x32_bf16 {v(xr,4)}, {v(ai,4)}, {v(cr+4*t,4)}, {v(xr,4)}")
                k(f"v_mfma_f32_16x16x32_bf16 {v(xi,4)}, {v(ar,4)}, {v(ci+4*t,4)}, {v(xi,4)}")

    def pack():
        for p in range(4):
            k(f"v_cvt_pk_bf16_f32 {v(vP+p)}, {v(vY+2*p)}, {v(vY+2*p+1)}")
            k(f"v_cvt_pk_bf16_f32 {v(vP+4+p)}, {v(vY+8+2*p)}, {v(vY+8+2*p+1)}")

    k.stamp(1) if FINE == 2 else None
    dft_big(vS1, vN1)
    k.stamp(1) if FINE == 2 else None
    cmul8(k, vY, wX, vTc, vTs, -1)
    pack()
    for blk in range(2):
        xr, xi = wX + 4 * blk, wX + 8 + 4 * blk
        k(f"v_mfma_f32_16x16x32_bf16 {v(xr,4)}, {v(vC2+4*blk,4)}, {v(vP,4)}, 0")
        k(f"v_mfma_f32_16x16x32_bf16 {v(xi,4)}, {v(vC2+4*blk,4)}, {v(vP+4,4)}, 0")
        k(f"v_mfma_f32_16x16x32_bf16 {v(xr,4)}, {v(vS2+4*blk,4)}, {v(vP+4,4)}, {v(xr,4)}")
        k(f"v_mfma_f32_16x16x32_bf16 {v(xi,4)}, {v(vN2+4*blk,4)}, {v(vP,4)}, {v(xi,4)}")
    k.stamp(1) if FINE == 2 else None
    vm.wait(wt_ld)
    for e in range(8):
        k(f"v_lshlrev_b32 {v(wT+e)}, 16, {v(vWt+e)}")
        k(f"v_and_b32 {v(wT+8+e)}, 0xffff0000, {v(vWt+e)}")
    sload(NS[3] // 2)
    k.stamp(1) if FINE == 2 else None
    cmul8(k, vY, wX, wT, wT + 8, +1)
    pack()
    for blk in range(2):
        xr, xi = wX + 4 * blk, wX + 8 + 4 * blk
        k(f"v_mfma_f32_16x16x32_bf16 {v(xr,4)}, {v(vP,4)}, {v(vC2+4*blk,4)}, 0")
        k(f"v_mfma_f32_16x16x32_bf16 {v(xi,4)}, {v(vP+4,4)}, {v(vC2+4*blk,4)}, 0")
        k(f"v_mfma_f32_16x16x32_bf16 {v(xr,4)}, {v(vP+4,4)}, {v(vN2+4*blk,4)}, {v(xr,4)}")
        k(f"v_mfma_f32_16x16x32_bf16 {v(xi,4)}, {v(vP,4)}, {v(vS2+4*blk,4)}, {v(xi,4)}")
    sload(NS[3] - NS[3] // 2)
    k.stamp(1) if FINE == 2 else None
    cmul8(k, vY, wX, vUc, vUs, +1)
    pack()
    for plane in range(2):
        for blk in range(2):
            k(f"ds_write_b64 v208, {v(vP+4*plane+2*blk,2)} offset:{8192+plane*4096+blk*2048}")
    k("s_waitcnt lgkmcnt(0)")
    k("s_barrier")
    for t in range(2):
        for blk in range(2):
            for plane in range(2):
                k(f"ds_read_b128 {v(vD+16*plane+8*blk+4*t,4)}, {v(vL16)} offset:{8192+plane*4096+blk*2048+t*1024}")
    k.stamp(1) if FINE == 2 else None
    k(f"s_cmp_ge_u32 s{sKK}, 112")
    k("s_cselect_b32 s54, s54, 0")
    dft_big(vN1, vS1)
    for p in range(4):
        k(f"v_cvt_pk_bf16_f32 {v(vP+p)}, {v(wX+2*p)}, {v(wX+2*p+1)}")
    vm.op(f"buffer_store_dwordx4 {v(vP,4)}, {v(vL16)}, s[8:11], s58 offen sc1")
    for p in range(4):
        k(f"v_cvt_pk_bf16_f32 {v(vP+4+p)}, {v(wX+8+2*p)}, {v(wX+8+2*p+1)}")
    for p in range(4):
        k(f"v_xor_b32 {v(vP+4+p)}, s54, {v(vP+4+p)}")
    vm.op(f"buffer_store_dwordx4 {v(vP+4,4)}, {v(vL16)}, s[8:11], s59 offen sc1")
    k.stamp()

    vXO, vM, vTB, vXA, vGm = 10, 12, 14, 18, 32
    cload = f"buffer_load_dwordx2 v[28:29], off, s[8:11], s{sFL} offset:768 sc1"
    k(f"v_and_b32 v6, 1, {v(vG)}")
    k(f"s_and_b32 s29, s{sW}, 1")
    k("s_lshl_b32 s29, s29, 2")
    k("v_lshl_or_b32 v6, v6, 1, s29")
    k("v_and_b32 v7, 7, v1")
    k("v_xor_b32 v6, v6, v7")
    k("v_lshrrev_b32 v8, 3, v1")
    k("v_lshlrev_b32 v9, 12, v8")
    k("v_lshl_add_u32 v6, v6, 4, v9")
    k(f"s_lshl_b32 s28, s{sW}, 15")
    k(f"s_lshl_b32 s27, s{sRT}, 7")
    k("s_add_u32 s51, s28, s27")
    k("s_sub_u32 s52, s27, s28")
    k(f"s_add_u32 s52, s52, {438*4096}")
    k(f"s_bitcmp1_b32 s{sCT}, 0")
    k("s_cselect_b32 s53, s51, s52")
    k("s_cselect_b32 s51, s52, s51")
    k("s_cselect_b32 s54, 0x6000, 0")
    k("s_cselect_b32 s55, 28672, 0")
    k("s_mov_b32 s52, 0x20000")
    k("s_cselect_b32 s52, 0xfffe0000, s52")
    k("v_xor_b32 v6, s54, v6")
    k("v_lshrrev_b32 v9, 5, v1")
    k("v_and_b32 v8, 3, v8")
    k("v_lshl_add_u32 v8, v9, 4, v8")
    k("v_mul_u32_u24 v8, 0x380, v8")
    k(f"v_xor_b32 v7, v7, {v(vG)}")
    k("v_xor_b32 v7, s29, v7")
    k(f"v_lshl_add_u32 {v(vXO)}, v7, 4, v8")
    k(f"s_lshr_b32 s26, s{sRT}, 3")
    k("s_lshl_b32 s26, s26, 9")
    k(f"s_lshl_b32 s28, s{sHALF}, 8")
    k("s_add_u32 s26, s26, s28")
    k(f"s_and_b32 s28, s{sRB}, 3")
    k(f"s_lshl2_add_u32 s{sSB}, s28, s26")
    k(f"s_lshl_b32 s26, s{sW}, 5")
    k(f"s_add_u32 s26, s26, s{sSB}")
    k("s_mul_i32 s26, s26, 896")
    k(f"s_lshl_b32 s28, s{sCT}, 7")
    k(f"s_add_u32 s{sXO}, s26, s28")
    k(f"s_add_u32 s{sXO+1}, s{sXO}, {128*896}")
    k("v_bfe_u32 v7, v1, 3, 2")
    k("v_bfe_u32 v8, v1, 2, 1")
    k("v_lshlrev_b32 v8, 4, v8")
    k("v_lshl_add_u32 v7, v7, 5, v8")
    k("v_and_b32 v8, 3, v1")
    k("v_add_lshl_u32 v11, v7, v8, 2")
    k(f"s_lshl2_add_u32 s56, s{sSB}, {M1}")
    k("v_lshlrev_b32 v213, 10, v1")
    k(f"s_lshl2_add_u32 s57, s2, {FL + F_FB}")
    k(f"s_and_b32 s58, s2, {NREP - 1}")
    k("s_lshl_b32 s58, s58, 10")
    k(f"s_add_u32 s58, s58, {FL + F_FB}")
    k(f"v_min_u32 v214, 880, {v(vL16)}")
    vm.all()
    k("s_barrier")
    wave0(f"buffer_store_dword {v(vOne)}, v213, s[8:11], s57 offen sc1", hex((1 << NREP) - 1))
    k.stamp()
    nr2 = len(sid) // 2
    sread(nr1, nr2)
    k(f"s_add_u32 m0, s35, {XT}")
    vm.op(f"buffer_load_dwordx4 {v(vXO)}, s[12:15], s{sXO} offen lds")
    k(f"s_add_u32 m0, s35, {XT+4096}")
    vm.op(f"buffer_load_dwordx4 {v(vXO)}, s[12:15], s{sXO+1} offen lds")
    k("s_waitcnt lgkmcnt(0)")
    k("s_barrier")

    def p3_consts():
        vB, vST, vE, vT = 14, 15, 15, 20
        k(f"s_lshl_b32 s26, s{sCT}, 6")
        k(f"s_lshl_b32 s27, s{sW}, 4")
        k("s_add_u32 s26, s26, s27")
        k(f"v_add_u32 v27, s26, {v(vC)}")
        k("v_cvt_f32_u32 v27, v27")
        for p in range(1, 4):
            k(f"v_mul_f32 {v(vE+p)}, {f2u(p/448.0)}, v27")
        k(f"v_mul_f32 {v(vST)}, {f2u(16.0/448)}, v27")
        k(f"v_fract_f32 {v(vST)}, {v(vST)}")
        k(f"v_lshl_add_u32 v19, {v(vG)}, 2, 1")
        k("v_cvt_f32_u32 v19, v19")
        k(f"v_mul_f32 {v(vB)}, v19, {v(vE+1)}")
        k(f"v_fract_f32 {v(vB)}, {v(vB)}")
        for t in range(7):
            k(f"v_cos_f32 {v(vT+4)}, {v(vB)}")
            k(f"v_sin_f32 {v(vT)}, {v(vB)}")
            for p in range(1, 4):
                k(f"v_add_f32 {v(vT+p)}, {v(vB)}, {v(vE+p)}")
            if t < 6:
                k(f"v_add_f32 {v(vB)}, {v(vB)}, {v(vST)}")
                k(f"v_fract_f32 {v(vB)}, {v(vB)}")
            for p in range(1, 4):
                k(f"v_cos_f32 {v(vT+4+p)}, {v(vT+p)}")
                k(f"v_sin_f32 {v(vT+p)}, {v(vT+p)}")
            for p in range(4):
                k(f"v_cvt_pk_bf16_f32 {v(vGm+4*t+p)}, {v(vT+4+p)}, -{v(vT+p)}")
        k("v_bfe_u32 v7, v1, 2, 2")
        k(f"v_lshlrev_b32 v8, 10, {v(vG)}")
        k("v_lshl_add_u32 v8, v7, 7, v8")
        k("v_and_b32 v9, 3, v1")
        k("v_lshl_add_u32 v8, v9, 3, v8")
        k("v_lshrrev_b32 v7, 1, v7")
        k(f"v_and_b32 v9, 1, {v(vG)}")
        k("v_lshl_add_u32 v7, v9, 1, v7")
        k(f"v_lshl_add_u32 {v(vTB)}, v7, 5, v8")
        for nb in range(1, 4):
            k(f"v_xor_b32 {v(vTB+nb)}, {32*nb}, {v(vTB)}")
        k("v_lshrrev_b32 v7, 5, v1")
        k(f"s_lshl_b32 s26, s{sW}, 1")
        k("v_or_b32 v7, s26, v7")
        k("v_bfe_u32 v8, v1, 1, 3")
        k("v_xor_b32 v7, v7, v8")
        k("v_and_b32 v8, 31, v1")
        k("v_lshlrev_b32 v8, 7, v8")
        k("v_lshl_add_u32 v7, v7, 4, v8")
        k(f"v_add_u32 {v(vXA)}, {XT}, v7")

    lines = capture(p3_consts)
    per = -(-len(lines) // (NS[4] + 1))
    for i in range(NS[4]):
        sload()
        slot()
    slot()
    k("s_add_u32 m0, s35, s55")
    last_real = vm.n - 1
    if TW:
        k.srd(12, 48, WGB)
        ld = touch_down(-1, 12)
        NT_ = k.lab("nt")
        k(f"s_cmp_eq_u32 s{sW}, 0")
        k(f"s_cbranch_scc1 {NT_}")
        k(ld)
        k.label(NT_)
    k.stamp()
    t4 = lambda r: f"v_and_b32 v{r}, v{r}, v{r+1}\nv_and_b32 v{r+2}, v{r+2}, v{r+3}\nv_and_b32 v{r}, v{r}, v{r+2}\nv_cmp_eq_u32 vcc, 0, v{r}"
    l4 = lambda r: f"buffer_load_dwordx4 v[{r}:{r+3}], v214, s[8:11], s58 offen sc1"
    if PIPE:
        spin0(l4, [216, 220, 224], t4, TW)
    else:
        spin(l4(216), t4(216))
    k.stamp()
    census = vm.op(cload)
    for hf in range(2):
        for t in range(7):
            if t == 6:
                k(f"s_cmp_eq_u32 s{sW}, 3")
                k(f"s_cselect_b32 s28, {224*4096 >> 6}, 0")
                k("s_cmp_lg_u32 s54, 0" if hf == 0 else "s_cmp_eq_u32 s54, 0")
                k("s_cselect_b32 s28, s28, 0")
                k("v_add_u32 v9, 16, v1")
                k("v_and_b32 v9, 64, v9")
                k("v_mad_u32_u24 v9, v9, s28, v6")
            bt_ld = vm.op(f"buffer_load_dwordx4 v{9 if t == 6 else 6}, s[8:11], s{51 if hf == 0 else 53} offen{LD} lds")
            if t < 6:
                k("s_add_u32 m0, m0, 4096")
                k("s_add_u32 s51, s51, s52" if hf == 0 else "s_sub_u32 s53, s53, s52")
        if hf == 0:
            bt_half = bt_ld
            k("s_mov_b32 s57, s55")
            k("s_sub_u32 s55, 28672, s55")
            k("s_add_u32 m0, s35, s55")
            k("v_xor_b32 v6, 0x6000, v6")
    vm.op(f"buffer_load_dword {v(vM)}, v11, s[8:11], s56 offen{LD}")
    p3_loads = vm.op(f"buffer_load_dword {v(vM+1)}, v11, s[8:11], s56 offen offset:512{LD}")
    sload(NS[5])
    k.srd(sA, 48, WGB)
    if SPLIT3:
        for nb in range(4):
            k(f"v_add_u32 {v(60+nb)}, s55, {v(vTB+nb)}")
            k(f"v_add_u32 {v(vTB+nb)}, s57, {v(vTB+nb)}")
        for p in range(4):
            k(f"v_mov_b32 {v(64+p)}, {v(vGm+24+p)}")
        k("s_cmp_lg_u32 s57, 0")
        k("s_cselect_b32 s58, 0xffff0000, 0")
        k("s_cselect_b32 s59, 0x80000000, 0")
        k("s_mov_b32 exec_lo, 0")
        k("s_mov_b32 exec_hi, s58")
        k(f"v_mov_b32 {v(vGm+27)}, 0x3f80")
        k("s_xor_b32 exec_hi, s58, 0xffff0000")
        k("v_mov_b32 v67, 0x3f80")
        k("s_mov_b64 exec, -1")
    CL, FAST, SLOW = k.lab("cl"), k.lab("fast"), k.lab("slow")
    k(f"s_mov_b32 s50, {SPIN_MAX}")
    vm.wait(census)
    k.label(CL)
    k("v_readfirstlane_b32 s52, v28")
    k("v_readfirstlane_b32 s53, v29")
    k(f"s_cmp_ge_u32 s{sXC}, 8")
    k("s_cselect_b32 s54, s53, s52")
    k(f"s_lshl_b32 s55, s{sXC}, 2")
    k("s_lshr_b32 s54, s54, s55")
    k("s_and_b32 s54, s54, 15")
    k(f"s_cmp_eq_u32 s54, {14 if not os.environ.get('SLOW') else 15}")
    k(f"s_cbranch_scc1 {FAST}")
    for r in (52, 53):
        k(f"s_lshr_b32 s54, s{r}, 4")
        k("s_and_b32 s54, s54, 0x0f0f0f0f")
        k(f"s_and_b32 s{r}, s{r}, 0x0f0f0f0f")
        k(f"s_add_u32 s{r}, s{r}, s54")
    k("s_add_u32 s52, s52, s53")
    k("s_mul_i32 s52, s52, 0x01010101")
    k("s_lshr_b32 s52, s52, 24")
    k("s_cmp_ge_u32 s52, 14")
    k(f"s_cbranch_scc1 {SLOW}")
    k("s_sub_u32 s50, s50, 1")
    k("s_cmp_eq_u32 s50, 0")
    k(f"s_cbranch_scc1 {SLOW}")
    k(cload)
    k("s_waitcnt vmcnt(0)")
    k(f"s_branch {CL}")
    state = (vm.n, vm.done, getattr(k, "_nst", 0), getattr(k, "_seq", 0))

    def rest(mode):
        vm.n, vm.done, k._nst, k._seq = state
        lg = Cnt(k, "lgkmcnt", 15)

        def arrive(off):
            vm.op(f"buffer_store_dword {v(vOne)}, off, s[8:11], s{sFI} offset:{off}{mode}")

        def pload(off):
            return f"buffer_load_dword v31, {v(vLP)}, s[8:11], s{sFL} offen offset:{off} sc1"

        def poll(off, mark=None):
            spin(pload(off), "v_cmp_eq_u32 vcc, 0, v31", mark)

        def put(q, cnt=1):
            for _ in range(cnt):
                if q:
                    e = q.pop(0)
                    e() if callable(e) else k("\n".join(e))

        vm.wait(bt_half if SPLIT3 else p3_loads)
        k("s_barrier")
        k.stamp()
        vR, vA = 88, 120
        seq = [(t, nb) for t in range(14) for nb in range(4)]

        def rd3(n):
            t, nb = seq[n]
            if SPLIT3 and n == 28:
                vm.wait(p3_loads)
                k("s_barrier")
            for u in range(2):
                if SPLIT3:
                    k(f"ds_read_b64_tr_b16 {v(vR+4*(n%8)+2*u,2)}, {v(vTB+nb if t < 7 else 60+nb)} offset:{(t%7)*4096+u*512}")
                else:
                    k(f"ds_read_b64_tr_b16 {v(vR+4*(n%8)+2*u,2)}, {v(vTB+nb)} offset:{t*4096+u*512}")

        DEPTH = 6
        for n in range(DEPTH):
            rd3(n)
        if TD:
            vm.op(touch_down(3, sA))
        for n in range(56):
            t, nb = seq[n]
            k(f"s_waitcnt lgkmcnt({2*min(DEPTH-1, 55-n)})")
            acc = vA + 16 * (t // 7) + 4 * nb
            gm = 64 if SPLIT3 and t == 13 else vGm + 4 * (t % 7)
            k(f"v_mfma_f32_16x16x32_bf16 {v(acc,4)}, {v(gm,4)}, {v(vR+4*(n%8),4)}, {'0' if t % 7 == 0 else v(acc,4)}")
            if n == 32 and not SPLIT3:
                k("s_mov_b32 exec_lo, 0")
                k("s_mov_b32 exec_hi, 0xffff0000")
                k(f"v_mov_b32 {v(vGm+27)}, 0x3f80")
                k("s_mov_b64 exec, -1")
            if n + DEPTH < 56:
                rd3(n + DEPTH)
        k.stamp(1) if FINE == 2 else None
        vX, vH, vHc, vU = 20, 32, 40, 48
        k(f"ds_read_b128 {v(vX,4)}, {v(vXA)}")
        k(f"ds_read_b128 {v(vX+4,4)}, {v(vXA)} offset:4096")
        k(f"s_mul_i32 s26, s{sRT}, 56")
        k(f"s_lshl2_add_u32 s27, s{sCT}, s{sW}")
        k("s_add_u32 s26, s26, s27")
        k("s_lshl_b32 s26, s26, 10")
        k(f"s_add_u32 s26, s26, {HC}")
        k(f"s_add_u32 s27, s26, {28*1024}")
        for r in range(0, 16, 2):
            k(f"v_pk_add_f32 {v(vA+r,2)}, {v(vA+r,2)}, {v(vA+16+r,2)} neg_hi:[0,1]")
        if SPLIT3:
            for r in range(1, 16, 2):
                k(f"v_xor_b32 {v(vA+r)}, s59, {v(vA+r)}")
        for p in range(2):
            for r in range(4):
                k(f"v_permlane16_swap_b32 {v(vA+8*p+r)}, {v(vA+8*p+4+r)}")
        k("s_waitcnt lgkmcnt(0)")
        for p in range(2):
            for q in range(4):
                k(f"v_lshlrev_b32 {v(vU+2*q)}, 16, {v(vX+4*p+q)}")
                k(f"v_and_b32 {v(vU+2*q+1)}, 0xffff0000, {v(vX+4*p+q)}")
            for e in range(0, 8, 2):
                k(f"v_pk_add_f32 {v(vA+8*p+e,2)}, {v(vA+8*p+e,2)}, {v(vU+e,2)}")
            for e in range(0, 8, 2):
                k(f"v_pk_add_f32 {v(vA+16+8*p+e,2)}, {v(vA+8*p+e,2)}, {v(vM,2)} op_sel:[0,{p}] op_sel_hi:[1,{p}] neg_lo:[0,1] neg_hi:[0,1]")
            for q in range(4):
                k(f"v_cvt_pk_bf16_f32 {v(vHc+4*p+q)}, {v(vA+16+8*p+2*q)}, {v(vA+17+8*p+2*q)}")
            hc_st = vm.op(f"buffer_store_dwordx4 {v(vHc+4*p,4)}, {v(vL16)}, s[8:11], s{26+p} offen{mode}")
        k.stamp(1) if FINE == 2 else None
        vm.wait(sid[55])
        k("s_barrier")
        k.stamp(1) if FINE == 2 else None
        sread(nr2, 28)
        k.stamp()
        vm.wait(hc_st)
        k("s_waitcnt lgkmcnt(0)")
        k.stamp(1) if FINE == 2 else None
        arrive(0)
        for p in range(2):
            for q in range(4):
                k(f"v_cvt_pk_bf16_f32 {v(vH+4*p+q)}, {v(vA+8*p+2*q)}, {v(vA+8*p+2*q+1)}")
            k(f"ds_write_b128 {v(vXA)}, {v(vH+4*p,4)} offset:{4096*p}")
        for p in range(2):
            k(f"v_mul_f32 {v(vM+p)}, {v(vA+16+8*p)}, {v(vA+16+8*p)}")
        for e in range(1, 8):
            for p in range(2):
                k(f"v_fmac_f32 {v(vM+p)}, {v(vA+16+8*p+e)}, {v(vA+16+8*p+e)}")
        k(f"s_lshl_b32 s26, s{sW}, 8")
        k(f"s_add_u32 s26, s26, {R2}")
        k(f"v_add_u32 v7, s26, {v(vL4)}")
        k(f"v_permlane32_swap_b32 {v(vM)}, {v(vM+1)}")
        k(f"v_add_f32 {v(vM)}, {v(vM)}, {v(vM+1)}")
        k(f"ds_write_b32 v7, {v(vM)}")
        sDL, sDG, sAB, sST1, sRG = 51, 53, 55, 57, 35
        vB1, vPA, vP1, vDG, vDT = 6, 11, 25, 8, 9
        k(f"s_mul_i32 s{sAB+1}, s{sRB}, 114688")
        k(f"s_add_u32 s{sAB+1}, s{sAB+1}, {HC}")
        k(f"s_mul_i32 s{sDL}, s{sW}, 28672")
        k(f"s_and_b32 s28, s{sW}, 1")
        k("s_mul_i32 s28, s28, 57344")
        k(f"s_lshr_b32 s26, s{sW}, 1")
        k(f"s_lshl_b32 s{sDL+1}, s26, 10")
        k(f"s_add_u32 s{sDL+1}, s{sDL+1}, s28")
        k(f"s_add_u32 s{sDG}, s{sAB+1}, s{sDL}")
        k(f"s_add_u32 s{sDG+1}, s{sAB+1}, s{sDL+1}")
        k(f"s_add_u32 s{sDG}, s{sDG}, s{sROT}")
        k(f"s_add_u32 s{sDG+1}, s{sDG+1}, s{sROT}")
        k(f"v_add_u32 {v(vB1)}, 57344, {v(vL16)}")
        k(f"s_mul_i32 s{sSS}, s{sRT}, 1792")
        k(f"s_add_u32 s{sSS}, s{sSS}, {SSP}")
        k(f"v_add_u32 v7, {R2}, {v(vL4)}")
        k(f"s_mul_i32 s{sHS}, s{sRB}, {4*112}")
        k(f"s_lshl1_add_u32 s{sHS}, s{sFB}, s{sHS}")
        k(f"s_lshl_b32 s{sHS}, s{sHS}, 10")
        k(f"s_add_u32 s{sHS}, s{sHS}, {HP}")
        k(f"v_lshlrev_b32 {v(vPA)}, 12, {v(vG)}")
        k(f"v_lshl_add_u32 {v(vPA)}, {v(vC)}, 4, {v(vPA)}")
        k(f"s_lshl_b32 s{sAB}, s{sRB}, 8")
        k(f"s_mul_i32 s{sHP}, s{sRT}, 224")
        k(f"s_mul_i32 s28, s{sW}, 28")
        k(f"s_add_u32 s{sHP}, s{sHP}, s28")
        k(f"s_lshl_b32 s{sHP}, s{sHP}, 10")
        k(f"s_add_u32 s{sHP}, s{sHP}, {HP}")
        k(f"s_mul_i32 s{sWD}, s{sW}, {448*896}")
        k(f"s_lshl_b32 s28, s{sCT}, 7")
        k(f"s_add_u32 s{sWD}, s{sWD}, s28")
        k(f"s_add_u32 s46, s{sCT}, s{sRT}")
        k(f"s_lshl_b32 s{sRG}, s{sW}, 13")
        k(f"s_add_u32 s{sRG}, s{sRG}, {RNG}")
        k(f"v_and_b32 v12, 1, {v(vG)}")
        k("v_and_b32 v13, 7, v1")
        k("v_lshlrev_b32 v14, 2, v12")
        k("v_xor_b32 v13, v13, v14")
        k("v_lshrrev_b32 v14, 3, v1")
        k("v_mul_u32_u24 v14, 0x380, v14")
        k(f"v_lshl_add_u32 {v(vDG)}, v13, 4, v14")
        k("v_bfe_u32 v13, v1, 2, 2")
        k("v_lshrrev_b32 v14, 5, v1")
        k("v_lshl_add_u32 v14, v14, 2, v13")
        k("v_lshrrev_b32 v13, 1, v13")
        k("v_lshlrev_b32 v13, 6, v13")
        k("v_lshl_add_u32 v13, v14, 7, v13")
        k("v_lshl_add_u32 v13, v12, 5, v13")
        k("v_and_b32 v14, 3, v1")
        k("v_lshl_add_u32 v13, v14, 3, v13")
        k(f"v_add_u32 {v(vDT)}, s{sRG}, v13")
        k(f"v_xor_b32 v26, 64, {v(vDT)}")
        k(f"v_add_u32 v56, s{sDL}, v13")
        k("v_xor_b32 v57, 64, v56")
        poll(0)
        k.stamp()
        uses = [(kp, b) for kp in range(KS) for b in range(4)]
        uses += [(kp, b) for kp in range(KS, 28) for b in (0, 2)]
        uB = len(uses)
        uses += [(kp, b) for kp in range(KS, 28) for b in (1, 3)]
        last_use = {kp: max(u for u, x in enumerate(uses) if x[0] == kp) for kp in range(28)}
        npair = (28 - KS) // 2
        Dm = []

        def dma():
            i = len(Dm)
            if i < KS:
                sel, off = 0, i * 1024
            else:
                sel, off = 1, ((i - KS) // npair) * 28672 + (KS + 2 * ((i - KS) % npair)) * 1024
            k(f"s_add_u32 m0, s{sDL+sel}, {off}")
            if ROTW and off % 28672 >= 4096:
                k(f"s_cmp_ge_u32 s{sROT}, {28672 - off % 28672}")
                k(f"s_cselect_b32 s28, {off - 28672 & 0xffffffff}, {off}".replace(f", {off}", ", s26") if False else f"s_cselect_b32 s28, 28672, 0")
                k(f"s_sub_u32 s28, s{sDG+sel}, s28")
                k(f"s_add_u32 s28, s28, {off}")
            else:
                k(f"s_add_u32 s28, s{sDG+sel}, {off}")
            Dm.append(vm.op(f"buffer_load_dwordx4 {v(vL16)}, s[8:11], s28 offen{LD} lds"))

        wd_regs = [(0, lambda o, n, i=i: a(224 + 8 * i + o, n)) for i in range(4)]
        wd_regs += [(0, lambda o, n, i=i: v(64 + 8 * i + o, n)) for i in range(8)]
        wd_regs += [(last_use[i] + 1, lambda o, n, i=i: a(8 * i + o, n)) for i in range(16)]
        n2 = min(KS, 8) // 2 * 2 if RING2 else 0
        free2 = 4 * KS + 2
        assert 4 * KS <= 56
        wdd, wdt = [], []
        shadow = [0]

        def quarter(dst, g, size, base):
            k(f"s_add_u32 s{dst}, s{46 if ROTD == 2 else sCT}, {g}")
            k(f"s_and_b32 s{dst}, s{dst}, 3")
            k(f"s_mul_i32 s{dst}, s{dst}, {size}")
            k(f"s_add_u32 s{dst}, s{dst}, s{base}")

        slots = [None] * (8 + n2)
        slot_of = []

        def wd_dma(now):
            n = len(wdd)
            if n == 56:
                return False
            free = [i for i, j in enumerate(slots) if (i < 8 or now >= free2) and
                    (j is None or (len(wdt) > 2 * j + 1 and wdt[2 * j + 1] < lg.done))]
            if not free:
                return False
            slots[free[0]] = n
            slot_of.append(free[0])
            k(f"s_add_u32 m0, s{sRG if free[0] < 8 else sDL}, {(free[0] % 8) * 1024}")
            if ROTD and n % 14 == 0:
                quarter(44, n // 14, 112 * 896, sWD)
            elif n:
                k(f"s_add_u32 s{44 if ROTD else sWD}, s{44 if ROTD else sWD}, {8*896}")
            wdd.append((vm.op(f"buffer_load_dwordx4 {v(vDG)}, s[{sA}:{sA+3}], s{44 if ROTD else sWD} offen lds"), max(now + WLAT, shadow[0])))
            return True

        def wd_tr(now, force=False):
            n = len(wdt)
            kp, u_, db = n // 4, (n >> 1) & 1, n & 1
            if n == 112 or len(wdd) <= 2 * kp + u_ or (not force and (wd_regs[kp][0] > now or wdd[2 * kp + u_][1] > now)):
                return False
            vm.wait(wdd[2 * kp + u_][0])
            sl = slot_of[2 * kp + u_]
            wdt.append(lg.op(f"ds_read_b64_tr_b16 {wd_regs[kp][1](4*db+2*u_, 2)}, v{(26 if db else vDT) if sl < 8 else 56 + db} offset:{(sl % 8) * 1024}"))
            return True

        aQ = 128
        hl = []

        def hload():
            n = len(hl)
            p, kp = n // 28, n % 28
            if p == 1:
                if kp == 0:
                    k(f"s_cmp_eq_u32 s{sHALF}, 0")
                    k("s_movk_i32 s58, 1024")
                    k(f"s_cselect_b32 s{sST1}, 0x4000, s58")
                    k(f"s_cselect_b32 s59, s{sAB}, s{sAB+1}")
                    k("s_cselect_b64 vcc, -1, 0")
                    k(f"s_mul_i32 s58, s{sW}, 28")
                    k(f"s_mul_i32 s58, s58, s{sST1}")
                    k("s_add_u32 s59, s59, s58")
                    k(f"v_cndmask_b32 {v(vP1)}, {v(vL16)}, {v(vPA)}, vcc")
                    k(f"s_mul_i32 s58, s{sST1}, 7")
                if ROTD and kp % 7 == 0:
                    quarter(45, kp // 7, "s58", 59)
                elif kp:
                    k(f"s_add_u32 s{45 if ROTD else 59}, s{45 if ROTD else 59}, s{sST1}")
                hl.append(vm.op(f"buffer_load_dwordx4 {a(aQ+4*(n%24),4)}, {v(vP1)}, s[8:11], s{45 if ROTD else 59} offen{LD}"))
                return
            if ROTD:
                if kp % 7 == 0:
                    quarter(45, kp // 7, 7168, sHP)
                if kp % 7 == 4:
                    k("s_add_u32 s45, s45, 4096")
                hl.append(vm.op(f"buffer_load_dwordx4 {a(aQ+4*(n%24),4)}, {v(vL16)}, s[8:11], s45 offen offset:{(kp%7%4)*1024}{LD}"))
                return
            hl.append(vm.op(f"buffer_load_dwordx4 {a(aQ+4*(n%24),4)}, {v(vL16)}, s[8:11], s{sHP} offen offset:{(kp%4)*1024}{LD}"))
            if kp % 4 == 3:
                k(f"s_add_u32 s{sHP}, s{sHP}, 4096")

        vF, vAcc, LOOK = 32, 128, 4
        accreg = {0: vAcc, 2: vAcc + 32, 1: vAcc + 64, 3: vAcc + 96}
        fr = {}

        def rd4(u):
            kp, b = uses[u]
            fr[u] = lg.op(f"ds_read_b128 {v(vF+4*(u%6),4)}, {v(vL16 if b < 2 else vB1)} offset:{(b&1)*28672+kp*1024}")

        last_st = [None]
        clock = [0]

        def hp_store(b, u):
            vo, off, pol = vL16, u * 1024, " sc1" if MB else mode
            if b == 1:
                vo, off = vPA, 0
                k(f"s_lshl_b32 s38, s{sFB}, 15\ns_add_u32 s38, s38, s{sAB}" if u == 0 else "s_add_u32 s38, s38, 16384")
            elif b == 3:
                if u == 0:
                    k(f"s_lshl_b32 s38, s{sFB}, 11\ns_add_u32 s38, s38, s{sAB+1}")
            else:
                pol = " sc1" if MA else mode
                if u == 0:
                    k(f"s_add_u32 s38, s{sHS}, {b*112*1024}")
            last_st[0] = vm.op(f"buffer_store_dwordx4 {v(accreg[b]+4*u,4)}, {v(vo)}, s[8:11], s38 offen offset:{off}{pol}")
            shadow[0] = clock[0] + (20 if pol else 11)

        def epilogue(ps):
            items = [(b, r) for b in (ps, ps + 2) for r in range(8)]
            out = []
            for i in range(len(items) + 1):
                grp = []
                if i < len(items):
                    b, r = items[i]
                    g_, u_ = accreg[b], accreg[b] + 16
                    grp += [f"v_mul_f32 {v(u_+2*r)}, {v(g_+2*r)}, {v(u_+2*r)}",
                            f"v_mul_f32 {v(u_+2*r+1)}, {v(g_+2*r+1)}, {v(u_+2*r+1)}"]
                if i > 0:
                    b, r = items[i - 1]
                    grp.append(f"v_cvt_pk_bf16_f32 {v(accreg[b]+r)}, {v(accreg[b]+16+2*r)}, {v(accreg[b]+17+2*r)}")
                out.append(grp)
                if i > 0 and items[i - 1][1] % 4 == 3:
                    out.append(lambda b=items[i - 1][0], u=items[i - 1][1] // 4: hp_store(b, u))
            return out

        chunks = eval(os.environ.get("CHUNKS", "{0: 2, 3: 6, 7: 15, 16: 27}"))
        for _ in range(NDMA0):
            dma()
        k("s_waitcnt lgkmcnt(0)")
        vm.wait(Dm[chunks[0]])
        k("s_barrier")
        k.stamp()
        for u in range(LOOK):
            rd4(u)
        epi = epilogue(0)
        checked = False
        for u in range(112):
            kp, b = uses[u]
            clock[0] = u
            if (u + LOOK) % 4 == 0 and (u + LOOK) // 4 in chunks:
                vm.wait(Dm[chunks[(u + LOOK) // 4]])
                k("s_barrier")
            if n2 and u == free2:
                k("s_barrier")
            if u == uB + DRAIN_A:
                assert not epi
                vm.wait(last_st[0])
                arrive(256)
            if u == uB + POLL_A:
                markA = vm.op(pload(256))
            if u == uB + CHECK_A:
                poll(256, markA)
                checked = True
            if u == 1:
                lg.op("ds_read2st64_b32 v[12:13], v7 offset1:1")
                ssr = lg.op("ds_read2st64_b32 v[14:15], v7 offset0:2 offset1:3")
                k(f"s_lshl_b32 s26, s{sCT}, 8")
                k(f"s_add_u32 s26, s26, s{sSS}")
            if u == 5:
                lg.wait(ssr)
                k("v_add_f32 v12, v12, v13")
                k("v_add_f32 v14, v14, v15")
                k("v_add_f32 v12, v12, v14")
                vm.op(f"buffer_store_dword v12, {v(vL4)}, s[8:11], s26 offen{mode}")
            if u % 2 == 0:
                lg.wait(fr[u + 1])
            busy = u >= uB + 1 and bool(epi)
            for m in range(2):
                acc = accreg[b] + 16 * m
                k(f"v_mfma_f32_32x32x16_bf16 {v(acc,16)}, {a(8*kp+4*m,4)}, {v(vF+4*(u%6),4)}, {'0' if kp == 0 else v(acc,16)}")
                if m == 0:
                    if u + LOOK < 112:
                        rd4(u + LOOK)
                    wd_tr(u)

                    def memop():
                        if len(Dm) < 16 and u % DRATE != DRATE - 1:
                            dma()
                        elif checked and len(hl) < RING and last_use[16 + len(hl) // 2] < u:
                            hload()
                        elif not (u % 3 != 2 and wd_dma(u)):
                            dma() if len(Dm) < 28 else wd_dma(u)

                    if busy:
                        put(epi)
                    n0 = vm.n
                    held = capture(memop)
                    k("\n".join(held[:-1]))
                    vm.n, n1 = n0, vm.n
                else:
                    k("\n".join(held[-1:]))
                    vm.n = n1
                    if busy:
                        put(epi)
                    else:
                        wd_tr(u)
                if os.environ.get("TL") and m == 1 and not mode:
                    print(u, len(Dm), len(wdd), len(wdt), file=sys.stderr)
            if u in P4ST:
                k.stamp(1)
            if u == uB - 1 or u == 111:
                k.stamp()
        print("after P4: ring loads", len(wdd), "transposed reads", len(wdt), "h loads", len(hl), file=sys.stderr)
        vRW, vRR, vR2, vHR, vSP = 12, 20, 22, 24, 32
        vAc5, vT5 = 128, 192
        fill = epilogue(1)
        clock[0] = -999
        if not checked:
            assert EPI_B0 <= 14
            put(fill, EPI_B0)
            poll(256, markA)
        while len(fill) > EPIB:
            if len(hl) < 8:
                hload()
            put(fill, 2)
        rest_epi = fill
        fill = [["v_and_b32 v6, 31, v1", "v_lshrrev_b32 v7, 5, v1", "v_and_b32 v27, 7, v1", "v_xor_b32 v7, v7, v27"],
                [f"s_lshl_b32 s26, s{sW}, 13", "v_lshlrev_b32 v7, 4, v7", "v_lshl_add_u32 v7, v6, 8, v7", f"v_add_u32 {v(vRW)}, s26, v7"],
                [f"v_xor_b32 {v(vRW+i)}, {32*i}, {v(vRW)}" for i in range(1, 5)],
                [f"v_xor_b32 {v(vRW+i)}, {32*i}, {v(vRW)}" for i in range(5, 8)],
                ["v_lshrrev_b32 v6, 3, v1", f"s_and_b32 s26, s{sW}, 1", "s_lshl_b32 s26, s26, 2", f"v_xor_b32 v7, v27, {v(vG)}",
                 "v_xor_b32 v7, s26, v7"],
                ["v_lshlrev_b32 v7, 1, v7", "v_xor_b32 v7, v7, v6", f"s_lshl_b32 s26, s{sW}, 11", "v_lshlrev_b32 v7, 4, v7"],
                ["v_lshl_add_u32 v7, v6, 8, v7", f"v_add_u32 {v(vRR)}, s26, v7", f"v_xor_b32 {v(vRR+1)}, 16, {v(vRR)}"],
                [f"s_lshl_b32 s26, s{sW}, 10", f"s_add_u32 s26, s26, {XT}", f"v_add_u32 {v(vHR)}, s26, {v(vL16)}",
                 f"s_lshl_b32 s26, s{sW}, 5", "v_lshl_add_u32 v28, v6, 2, s26"]]
        ssl = []

        def ssload(i):
            for j in range(2 * i, min(2 * i + 2, 7)):
                ssl.append(vm.op(f"buffer_load_dword {v(vSP+j)}, {v(vL4)}, s[8:11], s{sSS} offen offset:{256*j}{LD}"))

        fill = rest_epi + fill + [lambda i=i: ssload(i) for i in range(4)]
        r2calc = [[f"v_add_f32 {v(vSP)}, {v(vSP)}, {v(vSP+1)}", f"v_add_f32 {v(vSP+2)}, {v(vSP+2)}, {v(vSP+3)}",
                   f"v_add_f32 {v(vSP+4)}, {v(vSP+4)}, {v(vSP+5)}", f"v_add_f32 {v(vSP)}, {v(vSP)}, {v(vSP+6)}"],
                  [f"v_add_f32 {v(vSP+2)}, {v(vSP+2)}, {v(vSP+4)}", f"v_mov_b32 {v(vSP+1)}, {f2u(EPS)}",
                   f"v_add_f32 {v(vSP)}, {v(vSP)}, {v(vSP+2)}", f"v_fmac_f32 {v(vSP+1)}, {f2u(1.0/448)}, {v(vSP)}"],
                  [f"v_rcp_f32 {v(vSP)}, {v(vSP+1)}", "v_add_u32 v29, 128, v28"],
                  [f"ds_bpermute_b32 {v(vR2)}, v28, {v(vSP)}", f"ds_bpermute_b32 {v(vR2+1)}, v29, {v(vSP)}"]]

        def red_write(p):
            q_ = [[f"ds_write_b128 {v(vRW+i)}, {v(vAc5+32*p+4*i,4)} offset:{p*32768}"] for i in range(8)]
            return q_ + [[f"ds_read_b128 {v(vT5+32,4)}, {v(vHR)} offset:{p*4096}"]]

        def red_read(p):
            q_ = [["s_waitcnt lgkmcnt(0)", "s_barrier"] +
                  [f"ds_read_b128 {v(vT5+4*z,4)}, {v(vRR+z)} offset:{p*32768}" for z in range(2)]]
            for j in range(1, 4):
                q_.append([f"ds_read_b128 {v(vT5+8*j+4*z,4)}, {v(vRR+z)} offset:{p*32768+j*8192}" for z in range(2)])
            for h2 in range(2):
                q_.append([t_ for q in (2 * h2, 2 * h2 + 1) for t_ in
                           (f"v_lshlrev_b32 {v(vT5+36+2*q)}, 16, {v(vT5+32+q)}",
                            f"v_and_b32 {v(vT5+37+2*q)}, 0xffff0000, {v(vT5+32+q)}")])
            for j, (d_, s_) in enumerate(((0, 8), (16, 24), (0, 16))):
                for h2 in range(2):
                    q_.append(([f"s_waitcnt lgkmcnt({4 if j == 0 else 0})"] if h2 == 0 and j < 2 else []) +
                              ([f"v_add_f32 {v(vT5+d_+r)}, {v(vT5+d_+r)}, {v(vT5+s_+r)}" for r in range(4 * h2, 4 * h2 + 4)] if p == 0 else
                               [f"v_pk_add_f32 {v(vT5+d_+r,2)}, {v(vT5+d_+r,2)}, {v(vT5+s_+r,2)}" for r in range(4 * h2, 4 * h2 + 4, 2)]))
            for h2 in range(2):
                q_.append([f"v_fmac_f32 {v(vT5+36+r)}, {v(vT5+r)}, {v(vR2+p)}" for r in range(4 * h2, 4 * h2 + 4)] if p == 0 else
                          [f"v_pk_fma_f32 {v(vT5+36+r,2)}, {v(vT5+r,2)}, {v(vR2,2)}, {v(vT5+36+r,2)} op_sel:[0,1,0]" for r in range(4 * h2, 4 * h2 + 4, 2)])
            q_.append([f"v_cvt_pk_bf16_f32 {v(vT5+8+q)}, {v(vT5+36+2*q)}, {v(vT5+37+2*q)}" for q in range(4)])
            q_.append(lambda: vm.op(f"buffer_store_dwordx4 {v(vT5+8,4)}, {v(vXO)}, s[16:19], s{sXO+p} offen{SCO}"))
            return q_

        if P5ST:
            k.stamp(1)
        def mf5(n, dl):
            acc = vAc5 + 32 * (n // 28) + 16 * dl
            k(f"v_mfma_f32_32x32x16_bf16 {v(acc,16)}, {wd_regs[n % 28][1](4*dl, 4)}, {a(aQ+4*(n%24),4)}, {'0' if n % 28 == 0 else v(acc,16)}")

        for n in range(56 - TAILR):
            p, kp = n // 28, n % 28
            now = 112 + n
            if n == DRAIN_B:
                assert len(wdt) == 112 or not n2
                lg.wait(wdt[-1])
                vm.wait(last_st[0])
                arrive(512)
            if n == POLL_B:
                markB = vm.op(pload(512))
            if n == CHECK_B:
                k.stamp()
                poll(512, markB)
            if n == 22:
                assert len(wdt) == 112
                vm.wait(ssl[6])
                fill += r2calc
            if n == LATE and F_LATE in WBL:
                k(f"s_add_u32 s26, s{sFI}, {F_LATE}")
                vm.op(f"buffer_store_dword {v(vOne)}, off, s[8:11], s26{mode}")
            if n == 29 and not BLK:
                assert not fill
                fill = red_write(0)
            if n == 28 and BLK:
                assert not fill
                fill = red_write(0)
                while fill:
                    if len(hl) < 28 + RING1:
                        hload()
                    put(fill, 2)
            if n == RED0:
                assert not fill
                fill = red_read(0)
            if p == 0:
                while len(wdt) < 4 * kp + 4:
                    assert wd_tr(now, True)
                lg.wait(wdt[4 * kp + 3])
            vm.wait(hl[n])
            for dl in range(2):
                acc = vAc5 + 32 * p + 16 * dl
                k(f"v_mfma_f32_32x32x16_bf16 {v(acc,16)}, {wd_regs[kp][1](4*dl, 4)}, {a(aQ+4*(n%24),4)}, {'0' if kp == 0 else v(acc,16)}")
                if len(wdt) < 112:
                    if len(wdt) >= 8:
                        lg.wait(wdt[-8])
                    wd_tr(now)
                    if dl == 1:
                        wd_dma(now)
                if dl == 0:
                    if len(hl) < (28 if n < CHECK_B else 56) and len(hl) < n + 24:
                        hload()
                    else:
                        put(fill)
                else:
                    put(fill, 2 if n < (EPIB + 1) // 2 + 2 * (EPIB > 15) else 1)
            if n in P5ST:
                k.stamp(1)
        put(fill, 99)
        fill = red_write(1)
        fill.insert(0, fill.pop())
        for n in range(56 - TAILR, 56):
            vm.wait(hl[n])
            mf5(n, 0)
        put(fill)
        for i, n in enumerate(range(56 - TAILR, 56)):
            mf5(n, 1)
            if i >= 1:
                put(fill, 2 if i == TAILR - 1 else 1)
        k.stamp()
        put(fill, 99)
        put(red_read(1), 99)
        if k.prof:
            k("s_waitcnt vmcnt(0)")
        if DBGT:
            k.stamp(-1)
            k("s_waitcnt lgkmcnt(0)")
            k("s_mov_b64 exec, 1")
            k("v_mov_b32 v1, 0")
            for i in range(1, k._nst):
                k(f"s_sub_u32 s26, s{64+2*i}, s{62+2*i}")
                k("v_mov_b32 v0, s26")
                k(f"global_atomic_add v1, v0, s[{sDBG}:{sDBG+1}] offset:{4*(i-1)} sc1")
        else:
            k.stamp_flush(6, PROF, sW)
        k("s_endpgm")

    k.label(FAST)
    rest("")

    k.label(SPARE)
    vm.n = vm.done = 0
    k._nst = min(1, getattr(k, "_nst", 0))
    sE = 21
    k(f"s_sub_u32 s{sE}, s2, 224")
    k(f"v_lshlrev_b32 {v(vL16)}, 4, v1")
    k("v_lshlrev_b32 v6, 7, v1")
    k("s_waitcnt lgkmcnt(0)")
    k.srd(8, 6, WS_BYTES)
    NZ = k.lab("nz")
    k(f"s_cmp_lt_u32 s{sE}, 24")
    k(f"s_cbranch_scc1 {NZ}")
    for j in range(4):
        k(f"v_mov_b32 v{108+j}, 0")
    k(f"s_sub_u32 s34, s{sE}, 24")
    k(f"s_lshl2_add_u32 s33, s34, s{sW}")
    k("s_lshl_b32 s33, s33, 11")
    k(f"s_add_u32 s33, s33, {FL}")
    k(f"buffer_store_dwordx4 v[108:111], {v(vL16)}, s[8:11], s33 offen sc1")
    k(f"buffer_store_dwordx4 v[108:111], {v(vL16)}, s[8:11], s33 offen offset:1024 sc1")
    k("v_mov_b32 v2, 1")
    k("s_lshl_b32 s34, s34, 2")
    k("v_mov_b32 v5, s34")
    k("s_waitcnt vmcnt(0)")
    k("s_barrier")
    wave0(f"global_store_dword v5, v2, s[{sDBG}:{sDBG+1}]{ZOFF} sc1", 1)
    k.label(NZ)
    k.stamp(-1)
    k(f"s_lshr_b32 s22, s{sE}, 3")
    k(f"s_lshl2_add_u32 s22, s22, s{sW}")
    k("s_lshl_b32 s23, s22, 13")
    k.srd(12, 52, WGB)
    k.srd(16, 54, WGB)
    k.srd(24, 56, WGB)
    k.srd(28, 58, XB)
    n = [0]

    def touch(srd, soff, vo=6):
        k(f"buffer_load_dword v{8 + n[0] % 48}, v{vo}, s[{srd}:{srd+3}], s{soff} offen ; alt")
        n[0] += 1

    for job in SP_LIST:
        if job == "G":
            for off in range(SP_D0 * 3584, SP_D1 * 3584, 16 * 8192):
                k(f"s_add_u32 s40, s23, {off}")
                touch(12, 40)
                touch(16, 40)
        if job == "X":
            nt = 2 * len(range(SP_D0 * 3584, WGB, 16 * 8192))
            k("s_and_b32 s42, s2, 7")
            k(f"s_mov_b32 s46, {WGB}")
            k("s_mov_b32 s47, 0x20000")
            for i in range(-(-nt // WIN) * WIN):
                k(f"s_add_u32 s40, s42, {i}")
                k(f"s_and_b32 s40, s40, {WIN - 1}")
                k(f"s_add_u32 s40, s40, {i // WIN * WIN}")
                k("s_bitcmp1_b32 s40, 0")
                k("s_cselect_b32 s44, s16, s12")
                k("s_cselect_b32 s45, s17, s13")
                k("s_lshr_b32 s40, s40, 1")
                k("s_lshl_b32 s40, s40, 17")
                k("s_add_u32 s40, s40, s23")
                k(f"s_add_u32 s40, s40, {SP_D0*3584}")
                touch(44, 40)
        if job == "H":
            k("v_lshrrev_b32 v7, 4, v1")
            k("v_mul_u32_u24 v7, 0xe00, v7")
            k("v_and_b32 v5, 15, v1")
            k("v_min_u32 v5, 13, v5")
            k("v_lshl_add_u32 v7, v5, 7, v7")
            k("s_and_b32 s41, s2, 1")
            k("s_mul_i32 s41, s41, 1792")
            k(f"s_mul_i32 s40, s22, {4*3584}")
            k("s_add_u32 s41, s41, s40")
            for d0 in range(SP_D0, 448, 64):
                k(f"s_add_u32 s40, s41, {d0*3584}")
                touch(12, 40, 7)
                touch(16, 40, 7)
        if job == "d":
            k("s_and_b32 s40, s2, 7")
            k(f"s_mul_i32 s40, s40, {3*8*8192 if ROTS else 0}")
            k("s_add_u32 s40, s40, s23")
            for off in range(0, WGB, 16 * 8192):
                touch(24, 40)
                k(f"s_add_u32 s40, s40, {16*8192}")
                k(f"s_cmp_ge_u32 s40, {13*16*8192}")
                k(f"s_cselect_b32 s41, {13*16*8192}, 0")
                k("s_sub_u32 s40, s40, s41")
        if job == "R":
            k("s_and_b32 s42, s2, 7")
            k(f"s_min_u32 s42, s42, {6 if ROTW else 0}")
            k("s_lshl_b32 s42, s42, 2")
            k("s_min_u32 s43, s22, 13")
            k("s_cmp_ge_u32 s43, 7")
            k("s_cselect_b32 s44, s16, s12")
            k("s_cselect_b32 s45, s17, s13")
            k("s_cselect_b32 s41, 7, 0")
            k("s_sub_u32 s43, s43, s41")
            k("s_lshl_b32 s43, s43, 13")
            k(f"s_mov_b32 s46, {WGB}")
            k("s_mov_b32 s47, 0x20000")
            for kp in range(SP_K, 28):
                k(f"s_add_u32 s40, s42, {kp}")
                k("s_cmp_ge_u32 s40, 28")
                k("s_cselect_b32 s41, 28, 0")
                k("s_sub_u32 s40, s40, s41")
                k("s_mul_i32 s40, s40, 57344")
                k("s_add_u32 s40, s40, s43")
                touch(44, 40)
        if job == "e":
            for off in range(0, 192 * 896, 16 * 8192):
                for q in range(4):
                    k(f"s_add_u32 s40, s23, {off}")
                    k(f"s_min_u32 s40, s40, {192*896 - 8192}")
                    k(f"s_add_u32 s40, s40, {q*448*896}")
                    touch(24, 40)
        if job == "h":
            k("s_and_b32 s41, s2, 7")
            k(f"s_mul_i32 s41, s41, {8*112*1024}")
            k(f"s_add_u32 s41, s41, {HP}")
            k("s_min_u32 s42, s22, 13")
            k("s_lshl_b32 s42, s42, 13")
            k("s_add_u32 s41, s41, s42")
            for blk in range(4):
                touch(8, 41)
                k(f"s_add_u32 s41, s41, {2*112*1024}")
        if job in "aw":
            k(f"s_lshl2_add_u32 s40, s{sE}, s{sW}")
            k("s_lshl_b32 s40, s40, 13")
            k(f"s_add_u32 s40, s40, {AT if job == 'a' else WT}")
            touch(8, 40)
            k("s_add_u32 s40, s40, 0x100000")
            k(f"s_min_u32 s40, s40, {(AT if job == 'a' else WT) + 223*8192}")
            touch(8, 40)
        if job in "AB":
            k("s_and_b32 s41, s2, 7")
            if job == "A":
                k("v_lshrrev_b32 v7, 2, v1")
                k("v_lshlrev_b32 v7, 12, v7")
                k("v_and_b32 v5, 3, v1")
                k("v_lshl_add_u32 v7, v5, 7, v7")
                k("s_lshl_b32 s41, s41, 9")
            else:
                k("v_lshrrev_b32 v7, 1, v1")
                k("v_lshlrev_b32 v7, 11, v7")
                k("v_and_b32 v5, 1, v1")
                k("v_lshl_add_u32 v7, v5, 7, v7")
                k("s_lshl_b32 s41, s41, 8")
                k(f"s_add_u32 s41, s41, {WT}")
            for i in range(2):
                k(f"s_add_u32 s40, s22, {16*i}")
                k("s_min_u32 s40, s40, 27")
                k("s_lshl_b32 s40, s40, 16")
                k("s_add_u32 s40, s40, s41")
                touch(8, 40, 7)
        if job == "o":
            k(f"s_lshl2_add_u32 s40, s{sE}, s{sW}")
            k("s_lshl_b32 s40, s40, 13")
            touch(28, 40)
            k("s_add_u32 s40, s40, 0x100000")
            touch(28, 40)
    if k.prof:
        k("s_waitcnt vmcnt(0)")
        k.stamp_flush(6, PROF, sW, 2)
    if WBL:
        k("s_cmp_lg_u32 s22, 0")
        k(f"s_cbranch_scc1 {END}")
        k("v_lshlrev_b32 v3, 2, v1")
        k("v_min_u32 v7, 28, v3")
        vm.n = vm.done = 0
        spin(f"global_load_dword v112, v7, s[{sDBG}:{sDBG+1}]{ZOFF} sc1", "v_cmp_eq_u32 vcc, 0, v112")
        k("v_min_u32 v3, 220, v3")
        k("s_and_b32 s22, s2, 7")
        k("s_lshl_b32 s22, s22, 11")
        k(f"s_add_u32 s22, s22, {FL}")
        k(f"s_mov_b32 s23, {SPIN_MAX}")
        for off in WBL:
            lp = k.lab("wl")
            if off == F_LATE:
                k(f"s_add_u32 s22, s22, {F_LATE}")
                off = 0
            k.label(lp)
            k(f"buffer_load_dword v4, v3, s[8:11], s22 offen offset:{off} sc1")
            k(f"buffer_load_dword v5, v3, s[8:11], s22 offen offset:{off+1024} sc1")
            k("s_sub_u32 s23, s23, 1")
            k("s_waitcnt vmcnt(0)")
            k("s_cmp_eq_u32 s23, 0")
            k(f"s_cbranch_scc1 {END}")
            k("v_and_b32 v4, v4, v5")
            k("v_cmp_eq_u32 vcc, 0, v4")
            k("s_nop 0")
            k(f"s_cbranch_vccnz {lp}")
            k("buffer_wbl2 sc1")
            k("s_waitcnt vmcnt(0)")
    k.label(END)
    k("s_endpgm")
    for o in outline:
        k(o)
    del outline[:]
    k.label(SLOW)
    rest(" sc1")
    for o in outline:
        k(o)
    return k


def build(k, as_list=False):
    body, desc = k.emit()
    print(k.stats, file=sys.stderr)
    head = ["; Fused preLN + GFNet spectral filter + preLN bilinear GLU in one launch (written with the generator gen/one.py)",
            "; kernarg: 0 A_x, 8 A_w_r, 16 A_w_i, 24 B_x (unused), 32 w_gate, 40 w_up, 48 w_down, 56 out, 64 debug, 72 ws",
            "; 224 workgroups run five phases, with hand-offs through d_ws (stores drained, then one word per producer):",
            ";   P1 row statistics + real DFT along D as a GEMM (bins 1..224; bin 0 of a normalised row is zero) + filter transposition",
            ";   P2 one spectral column each: 2048-point FFT as 64 x 32 on the matrix pipe, filter, inverse FFT",
            ";   P3 inverse DFT along D + residual, P4 gate/up GEMM and product, P5 down GEMM, 1/(var+eps), residual",
            "; The row-block hand-offs use plain stores only after a run-time census shows the whole group on one XCD,",
            "; otherwise a second copy of the code uses write-through stores.  32 more workgroups zero the hand-off words",
            "; (announced in d_debug) and read weights and code ahead into their XCD's L2.",
            f"; @launch {'kernel=' + k.name + ' ' if as_list else ''}grid=(256,1,1) block=(256,1,1) lds={LDS}",
            '.amdgcn_target "amdgcn-amd-amdhsa--gfx950"', ".text"]
    return "\n".join(head + [body, '.section .rodata,"a"', ".p2align 6", desc]) + "\n"


if __name__ == "__main__":
    if "--prof" in sys.argv:
        Kern.prof = True
        sys.argv.remove("--prof")
    path = sys.argv[1] if len(sys.argv) > 1 else "sequential_preLN__spectral_gfnet__glu_gated_bilinear__prompt.s"
    open(path, "w").write(build(gen(), as_list=len(sys.argv) > 1))
```

```python
import os
import struct
import sys
from asmlib import Kern, v, a

NAME = "sequential_preLN__spectral_gfnet__glu_gated_bilinear__prompt_kernel"
S, D, F = 2048, 448, 1792
AT = BT = 0x000000
WT = HC = 0x200000
HP = 0x400000
M1 = 0xB00000
SSP = 0xB02000
FL = 0xB10000
WS_BYTES = 0xB20000
F_LATE, F_FB, F_P1, F_SP = 16384, 32768, 40960, 45056
PROF = 0x1800000
XB, WRB, WGB = S * D * 2, S * 225 * 2, D * F * 2
EPS = 1e-5
STG, XT, R2, RNG = 57344, 114688, 122880, 123904
LDS = RNG + 32768
SPIN_MAX = 1 << 18

E = lambda n, d: int(os.environ.get(n, d))
KS = E("KS", 4)
DRAIN_A, POLL_A, CHECK_A = E("DRAIN_A", 30), E("POLL_A", 38), E("CHECK_A", 42)
DRAIN_B, POLL_B, CHECK_B = E("DRAIN_B", 8), E("POLL_B", 13), E("CHECK_B", 17)
EPI_B0, RING, RING1, RED0, LATE = E("EPI_B0", 10), E("RING", 12), E("RING1", 8), E("RED0", 38), E("LATE", 44)
MA, NDMA0, WLAT = E("MA", 1), E("NDMA0", 7), E("WLAT", 10)
NP = [int(x) for x in os.environ.get("NP", "0,6,10").split(",")]
NS = [sum(NP)] + [int(x) for x in os.environ.get("NS", "6,6,8,12,8").split(",")]
WBL = eval(os.environ.get("WBL", "(F_LATE,)"))
SP_LIST = os.environ.get("SP_LIST", "cGd")
SP_D0, SP_K = E("SP_D0", 64), E("SP_K", 18)
TALL, TD, ROTW, ROTS = E("TALL", 0), E("TD", 0), E("ROTW", 0), E("ROTS", 1)
ROTD = E("ROTD", 1)
SCO = os.environ.get("SCO", " sc1")
TPM, TPS, PIPE = E("TPM", 0), E("TPS", 0), E("PIPE", 9)
DRATE = E("DRATE", 2)
TW, T1 = E("TW", 0), E("T1", 0)
SPLIT3, WFLAG = E("SPLIT3", 1), E("WFLAG", 1)
MAPB = E("MAPB", 0)
RING2 = E("RING2", 1)
ZFIRST = E("ZFIRST", 1)
SPS = os.environ.get("SPS", " sc1")
FINE = E("FINE", 0)
LD = os.environ.get("LD", " sc1")
WIN = E("WIN", 8)
SP_D1 = E("SP_D1", 350)
EPIB = E("EPIB", 0)
TAILR = E("TAILR", 0)
MB = E("MB", 0)
DBGT = E("DBGT", 0)
ZOFF = " offset:64" if DBGT else ""
SFIRST = E("SFIRST", 0)
NREP = E("NREP", 8)
BLK = E("BLK", 0)
WFE = E("WFE", 0)
P4ST = eval(os.environ.get("P4ST", "()"))
P5ST = eval(os.environ.get("P5ST", "()"))
NA = [int(x) for x in os.environ.get("NA", "0,0").split(",")]
assert sum(NS) == 56 and NS[0] <= 22 and sum(NS[1:4]) <= 22 and sum(NS[4:]) <= 22


def f2u(x):
    return "0x%08x" % struct.unpack("<I", struct.pack("<f", x))[0]


class Cnt:
    def __init__(self, k, name, lim):
        self.k, self.name, self.lim, self.n, self.done = k, name, lim, 0, 0

    def op(self, text):
        self.k(text)
        self.n += 1
        return self.n - 1

    def wait(self, idx):
        if idx < self.done:
            return
        c = min(self.n - idx - 1, self.lim)
        self.k(f"s_waitcnt {self.name}({c})")
        self.done = self.n - c

    def all(self):
        self.wait(self.n - 1)


def cmul8(k, y, x, c, sn, sign):
    neg = " neg_lo:[1,0,0] neg_hi:[1,0,0]"
    for e in range(0, 8, 2):
        k(f"v_pk_mul_f32 {v(y+e,2)}, {v(x+e,2)}, {v(c+e,2)}")
        k(f"v_pk_mul_f32 {v(y+8+e,2)}, {v(x+8+e,2)}, {v(c+e,2)}")
    for e in range(0, 8, 2):
        k(f"v_pk_fma_f32 {v(y+e,2)}, {v(x+8+e,2)}, {v(sn+e,2)}, {v(y+e,2)}" + (neg if sign > 0 else ""))
        k(f"v_pk_fma_f32 {v(y+8+e,2)}, {v(x+e,2)}, {v(sn+e,2)}, {v(y+8+e,2)}" + ("" if sign > 0 else neg))


def gen():
    k = Kern(NAME, 0, 0)
    vm = Cnt(k, "vmcnt", 63)
    END, SPARE = k.lab("end"), k.lab("spare")
    sW, sRB, sCT, sHALF, sRT, sFB = 20, 21, 22, 23, 24, 25
    sSB, sXO, sWG, sFL, sWD, sHS, sHP, sFI = 29, 30, 32, 33, 34, 36, 37, 39
    sA, sB = 40, 44
    sXC, sSS, sDBG, sROT, sWE = 60, 61, 62, 3, 38
    vL16, vG, vC, vL4, vOne, vLP = 3, 4, 5, 30, 2, 0
    vWG, vWT = 250, 251
    outline = []

    def touch_down(first, srd):
        k(f"s_and_b32 s26, s{sRT}, 3")
        k("s_mul_i32 s26, s26, 7")
        k(f"s_add_u32 s26, s26, s{sW}")
        k(f"s_mul_i32 s26, s26, {64*896}")
        k(f"s_lshl_b32 s27, s{sCT}, 7")
        k("s_add_u32 s26, s26, s27")
        k(f"s_add_u32 s26, s26, {first*64*896 & 0xffffffff}")
        k("v_mul_u32_u24 v244, 0x380, v1")
        return f"buffer_load_dword v{245 + (first > 0)}, v244, s[{srd}:{srd+3}], s26 offen"

    def capture(fn):
        saved, k.lines = k.lines, []
        fn()
        out, k.lines = k.lines, saved
        return out

    def spin(load, test, mark=None):
        loop, done = k.lab("poll"), k.lab("done")
        if mark is None:
            mark = vm.op(load)
        vm.wait(mark)
        k(test)
        k(f"s_mov_b32 s50, {SPIN_MAX}")
        k(f"s_cbranch_vccnz {loop}")
        k.label(done)
        outline.append(f"{loop}:\n{load}\ns_sub_u32 s50, s50, 1\ns_waitcnt vmcnt(0)\ns_cmp_eq_u32 s50, 0\n"
                       f"s_cbranch_scc1 {done}\n{test}\ns_nop 0\ns_cbranch_vccnz {loop}\ns_branch {done}")

    def spin0(load, regs, test, extra=0):
        loop, done, skip = k.lab("pp"), k.lab("pd"), k.lab("ps")
        n = len(regs)
        k(f"s_cmp_lg_u32 s{sW}, 0")
        k(f"s_cbranch_scc1 {skip}")
        k(f"s_mov_b32 s50, {SPIN_MAX}")
        for r in regs[:-1]:
            k(load(r) + " ; alt")
            if PIPE < 9:
                k(f"s_sleep {PIPE}")
        k.label(loop)
        for i in range(n):
            k(load(regs[(i - 1) % n]) + " ; alt")
            k(f"s_waitcnt vmcnt({n - 1})")
            k(test(regs[i]))
            k("s_nop 0")
            k(f"s_cbranch_vccz {done}")
        k("s_sub_u32 s50, s50, 1")
        k("s_cmp_lg_u32 s50, 0")
        k(f"s_cbranch_scc1 {loop}")
        k.label(done)
        k.label(skip)
        if extra:
            k(f"s_waitcnt vmcnt({extra})")
            vm.done = vm.n
        else:
            vm.all()
        k("s_barrier")

    def wave0(lines, mask):
        skip = k.lab("skip")
        k(f"s_cmp_lg_u32 s{sW}, 0")
        k(f"s_cbranch_scc1 {skip}")
        k(f"s_mov_b64 exec, {mask}")
        k(lines)
        k("s_mov_b64 exec, -1")
        k.label(skip)

    k("s_load_dwordx2 s[4:5], s[0:1], 0")
    k("s_load_dwordx4 s[44:47], s[0:1], 8")
    k("s_load_dwordx4 s[52:55], s[0:1], 32")
    k("s_load_dwordx4 s[56:59], s[0:1], 48")
    k(f"s_load_dwordx2 s[{sDBG}:{sDBG+1}], s[0:1], 64")
    k("s_load_dwordx2 s[6:7], s[0:1], 72")
    if "c" in SP_LIST:
        here, noc = k.lab("pc"), k.lab("noc")
        k("s_and_b32 s3, s2, 0xffffffe0")
        k(f"s_cmp_lg_u32 s3, {0 if SFIRST else 224}")
        k(f"s_cbranch_scc1 {noc}")
        k("s_getpc_b64 s[8:9]")
        k.label(here)
        k("s_bfe_u32 s3, s2, 0x20003")
        k("v_lshrrev_b32 v1, 2, v0")
        k("s_lshl_b32 s3, s3, 13")
        k("v_lshl_add_u32 v1, v1, 7, s3")
        k("v_mov_b32 v3, s9")
        k("v_add_co_u32 v2, vcc, s8, v1")
        k("v_addc_co_u32 v3, vcc, 0, v3, vcc")
        k("global_load_dword v113, v[2:3], off ; alt")
        k.label(noc)
    k("s_cmp_ge_u32 s2, 256")
    k(f"s_cbranch_scc1 {END}")
    if SFIRST:
        k("s_add_u32 s2, s2, 224")
        k("s_and_b32 s2, s2, 255")
    k.stamp()
    k("v_lshrrev_b32 v2, 6, v0")
    k("v_and_b32 v1, 63, v0")
    k(f"v_readfirstlane_b32 s{sW}, v2")
    k("s_cmp_ge_u32 s2, 224")
    k(f"s_cbranch_scc1 {SPARE}")
    k("s_lshr_b32 s26, s2, 3")
    k("s_mul_i32 s27, s26, 37")
    k("s_lshr_b32 s27, s27, 8")
    k("s_and_b32 s28, s2, 7")
    k(f"s_lshl2_add_u32 s{sRT}, s28, s27")
    k("s_mul_i32 s28, s27, 7")
    k(f"s_sub_u32 s{sCT}, s26, s28")

    k("v_lshrrev_b32 v4, 5, v1")
    k("v_bfe_u32 v5, v1, 3, 2")
    k("v_lshl_add_u32 v4, v4, 4, v5")
    k("v_mul_u32_u24 v4, 0x7000, v4")
    k("v_lshrrev_b32 v5, 4, v1")
    k("v_and_b32 v6, 7, v1")
    k("v_xor_b32 v6, v6, v5")
    k("v_lshl_add_u32 v2, v6, 4, v4")
    k("v_xor_b32 v3, 64, v2")
    k(f"v_add_u32 v3, {32*32*896}, v3")
    k(f"s_lshl_b32 s26, s{sW}, 7")
    k(f"s_add_u32 s26, s26, s{sRT}")
    k("s_mul_i32 s26, s26, 896")
    k(f"s_lshl_b32 s27, s{sW}, 11")
    vB, vST, vE, vSG, vT, vF, vKK, vOnes, vCS = 8, 9, 9, 17, 19, 28, 27, 152, 156

    def p1_consts():
        k("v_and_b32 v8, 15, v1")
        k(f"s_and_b32 s28, s{sW}, 1")
        k("s_lshl_b32 s28, s28, 4")
        k(f"s_lshl_b32 s29, s{sCT}, 5")
        k("s_add_u32 s28, s28, s29")
        k(f"v_add_u32 {v(vKK)}, s28, v8")
        k("v_lshrrev_b32 v9, 1, v8")
        k("v_xor_b32 v9, v9, v5")
        k("v_lshlrev_b32 v9, 4, v9")
        k("v_lshl_add_u32 v4, v8, 7, v9")
        k(f"v_add_u32 v19, 1, {v(vKK)}")
        k("v_cvt_f32_u32 v20, v19")
        k("v_and_b32 v19, 1, v19")
        k("v_lshlrev_b32 v19, 31, v19")
        k(f"v_or_b32 {v(vSG)}, 1.0, v19")
        for e in range(1, 8):
            k(f"v_mul_f32 {v(vE+e)}, {f2u(e/448.0)}, v20")
        k(f"v_mul_f32 {v(vST)}, {f2u(32.0/448)}, v20")
        k(f"v_fract_f32 {v(vST)}, {v(vST)}")
        k("v_lshlrev_b32 v21, 3, v5")
        k("v_cvt_f32_u32 v21, v21")
        k(f"s_lshr_b32 s30, s{sW}, 1")
        k(f"s_mul_i32 s31, s30, {f2u(0.25)}")
        k(f"v_mov_b32 {v(vB)}, s31")
        k(f"v_fmac_f32 {v(vB)}, v21, {v(vE+1)}")
        k(f"v_fract_f32 {v(vB)}, {v(vB)}")
        if MAPB:
            k(f"s_and_b32 s{sHALF}, s2, 1")
            k(f"s_bfe_u32 s{sRB}, s2, 0x20001")
            k(f"s_and_b32 s35, s{sRT}, 3")
            k(f"s_lshl2_add_u32 s{sRB}, s{sRB}, s35")
        else:
            k(f"s_and_b32 s{sHALF}, s{sRT}, 1")
            k(f"s_lshr_b32 s{sRB}, s{sRT}, 1")
        k(f"s_mul_i32 s{sFB}, s{sHALF}, 7")
        k(f"s_add_u32 s{sFB}, s{sFB}, s{sCT}")
        k(f"s_lshl_b32 s{sWG}, s{sFB}, 8")
        k(f"s_mul_i32 s35, s{sW}, {4*3584}")
        k(f"s_add_u32 s{sWG}, s{sWG}, s35")
        k(f"s_lshl2_add_u32 s{sFB}, s{sFB}, s{sW}")
        k(f"s_add_u32 s{sWE}, s{sWG}, {28*57344}")
        k(f"s_and_b32 s{sROT}, s2, 7")
        k(f"s_min_u32 s{sROT}, s{sROT}, {6 if ROTW else 0}")
        k(f"s_mul_i32 s35, s{sROT}, {4*57344}")
        k(f"s_add_u32 s{sWG}, s{sWG}, s35")
        k(f"s_lshl_b32 s{sROT}, s{sROT}, 12")
        k("v_bfe_u32 v21, v1, 2, 2")
        k("v_xor_b32 v22, v21, v5")
        k("v_and_b32 v23, 3, v1")
        k("v_lshlrev_b32 v22, 6, v22")
        k("v_lshl_add_u32 v22, v23, 4, v22")
        k(f"v_mul_u32_u24 {v(vWG)}, 0xe00, v5")
        k(f"v_add_u32 {v(vWG)}, {v(vWG)}, v22")
        k(f"v_xor_b32 v22, s{sW}, v21")
        k("v_lshlrev_b32 v22, 6, v22")
        k("v_lshl_add_u32 v22, v21, 8, v22")
        k("v_lshl_add_u32 v22, v23, 3, v22")
        k("v_and_b32 v23, 1, v5")
        k("v_lshl_add_u32 v22, v23, 5, v22")
        k("v_lshrrev_b32 v23, 5, v1")
        k("v_lshl_add_u32 v22, v23, 11, v22")
        k(f"v_add_u32 {v(vWT)}, {STG}, v22")
        k(f"v_add_u32 {v(vWT+1)}, {RNG}, v22")
        k(f"s_lshl_b32 s35, s{sW}, 10")
        k("v_xor_b32 v5, 64, v4")
        k("v_add_u32 v6, s27, v4")
        k("v_add_u32 v7, s27, v5")
        for p in range(4):
            k(f"v_mov_b32 {v(vOnes+p)}, 0x3f803f80")
        for t in range(7):
            k(f"v_cos_f32 {v(vT)}, {v(vB)}")
            for e in range(1, 8):
                k(f"v_add_f32 {v(vT+e)}, {v(vB)}, {v(vE+e)}")
            for e in range(1, 8):
                k(f"v_cos_f32 {v(vT+e)}, {v(vT+e)}")
            if t < 6:
                k(f"v_add_f32 {v(vB)}, {v(vB)}, {v(vST)}")
                k(f"v_fract_f32 {v(vB)}, {v(vB)}")
            for p in range(4):
                k(f"v_cvt_pk_bf16_f32 {v(vF+4*t+p)}, {v(vT+2*p)}, {v(vT+2*p+1)}")
            if t > 0:
                k(f"v_mfma_f32_16x16x32_bf16 {v(vCS,4)}, {v(vOnes,4)}, {v(vF+4*t-4,4)}, {'0' if t == 1 else v(vCS,4)}")

    lines = capture(p1_consts)
    per = -(-len(lines) // 14)

    def slot():
        for _ in range(min(per, len(lines))):
            k(lines.pop(0))

    def wf_issue():
        k("s_mov_b32 s8, s46")
        k("s_and_b32 s9, s47, 0xffff")
        k(f"s_mov_b32 s10, {WRB}")
        k("s_mov_b32 s11, 0x20000")
        k("s_and_b32 s45, s45, 0xffff")
        k(f"s_mov_b32 s46, {WRB}")
        k("s_mov_b32 s47, 0x20000")
        k(f"s_and_b32 s50, s{sRT}, 28")
        k(f"s_add_u32 s50, s50, s{sW}")
        k(f"s_and_b32 s36, s{sRT}, 3")
        k("s_lshl2_add_u32 s50, s50, s36")
        k("s_mul_i32 s50, s50, 7200")
        k(f"s_lshl_b32 s36, s{sCT}, 6")
        k("s_add_u32 s50, s50, s36")
        k("s_add_u32 s50, s50, 2")
        k("v_lshrrev_b32 v230, 2, v1")
        k("v_and_b32 v231, 3, v1")
        k("v_mul_u32_u24 v232, 0x1c2, v230")
        k("v_lshl_add_u32 v232, v231, 4, v232")
        vm.op("buffer_load_dwordx4 v[160:163], v232, s[44:47], s50 offen")
        wf_ld = vm.op("buffer_load_dwordx4 v[164:167], v232, s[8:11], s50 offen")
        k("v_lshlrev_b32 v230, 4, v230")
        k("v_lshl_add_u32 v230, v231, 11, v230")
        k(f"s_lshl2_add_u32 s50, s{sW}, {XT}")
        k("v_add_u32 v230, s50, v230")
        return wf_ld

    k("s_waitcnt lgkmcnt(0)")
    k.stamp(1) if FINE == 1 else None
    k.srd(12, 4, XB)
    xs = []
    for i in range(7):
        if i == 0:
            k(f"s_mov_b32 s48, s{sCT}")
        else:
            k("s_add_u32 s48, s48, 1")
            k("s_cmp_eq_u32 s48, 7")
            k("s_cselect_b32 s48, 0, s48")
        k("s_lshl_b32 s49, s48, 7")
        k("s_add_u32 s49, s49, s26")
        k("s_lshl_b32 s51, s48, 13")
        k("s_add_u32 m0, s51, s27")
        vm.op("buffer_load_dwordx4 v2, s[12:15], s49 offen lds")
        slot()
        k("s_add_u32 m0, m0, 1024")
        xs.append(vm.op("buffer_load_dwordx4 v3, s[12:15], s49 offen lds"))
        if WFE and i == WFE - 1:
            wf_ld = wf_issue()
        slot()
    assert not lines
    k.stamp(1) if FINE == 1 else None
    if not WFE:
        wf_ld = wf_issue()
    k.srd(8, 6, WS_BYTES)
    k.srd(sA, 52, WGB)
    k.srd(sB, 54, WGB)
    k.srd(16, 58, XB)
    k("s_mov_b32 s48, s56")
    k("s_mov_b32 s49, s57")
    k(f"v_mfma_f32_16x16x32_bf16 {v(vCS,4)}, {v(vOnes,4)}, {v(vF+24,4)}, {v(vCS,4)}")

    def stg(kp):
        return kp if kp < 11 else kp - 11 if kp < 22 else kp - 22

    sid = []

    def sload(cnt=1):
        for _ in range(cnt):
            n = len(sid)
            kp, m = n // 2, n % 2
            sl = stg(kp)
            if E("WSKIP", 0) == 2 or (E("WSKIP", 0) and m):
                sid.append(vm.n - 1)
                continue
            k(f"s_add_u32 m0, s35, {(STG + sl*8192 if sl < 7 else RNG + (sl-7)*8192) + m*4096}")
            if n and not m:
                k(f"s_add_u32 s{sWG}, s{sWG}, {16*3584}")
                if ROTW and kp % 4 == 0:
                    k(f"s_cmp_eq_u32 s{sWG}, s{sWE}")
                    k(f"s_cselect_b32 s37, {28*57344}, 0")
                    k(f"s_sub_u32 s{sWG}, s{sWG}, s37")
            sid.append(vm.op(f"buffer_load_dwordx4 {v(vWG)}, s[{(sA, sB)[m]}:{(sA, sB)[m]+3}], s{sWG} offen lds"))

    def sread(k0, k1):
        for kp in range(k0, k1):
            sl = stg(kp)
            for m in range(2):
                for u in range(2):
                    k(f"ds_read_b64_tr_b16 {a(8*kp+4*m+2*u,2)}, {v(vWT + (sl >= 7))} offset:{(sl%7 if sl < 7 else sl-7)*8192 + m*4096 + u*1024}")

    k.stamp()
    vR, vSm, vGr = 56, 20, 120

    def stat(t):
        b = vR + 4 * (t % 4)
        k(f"v_mfma_f32_16x16x32_bf16 {v(vSm,4)}, {v(b,4)}, {v(vOnes,4)}, {'0' if t == 0 else v(vSm,4)}")
        k(f"v_mfma_f32_16x16x32_bf16 {v(vGr,4)}, {v(b,4)}, {v(b,4)}, {'0' if t == 0 else v(vGr,4)}")

    if TALL:
        k(f"s_lshl2_add_u32 s51, s2, s{sW}")
        k("s_mul_i32 s50, s51, 335")
        k("s_lshr_b32 s50, s50, 16")
        k("s_mul_i32 s29, s50, 196")
        k("s_sub_u32 s51, s51, s29")
        k("s_lshl_b32 s51, s51, 13")
        k("s_cmp_eq_u32 s50, 1")
        k("s_cselect_b32 s52, s54, s52")
        k("s_cselect_b32 s53, s55, s53")
        k("s_cmp_eq_u32 s50, 2")
        k("s_cselect_b32 s52, s56, s52")
        k("s_cselect_b32 s53, s57, s53")
        k("s_and_b32 s53, s53, 0xffff")
        k("s_cmp_le_u32 s50, 2")
        k(f"s_cselect_b32 s54, {WGB}, 0")
        k("s_mov_b32 s55, 0x20000")
        k("v_lshlrev_b32 v240, 7, v1")
        vm.op("buffer_load_dword v241, v240, s[52:55], s51 offen")
    if TPM:
        k("v_and_b32 v242, 15, v1")
        k("v_lshlrev_b32 v242, 13, v242")
        k("s_lshl_b32 s51, s28, 13")
        k("s_lshl_b32 s50, s30, 12")
        k("s_add_u32 s51, s51, s50")
        k(f"s_lshl_b32 s50, s{sRT}, 7")
        k("s_add_u32 s51, s51, s50")
        vm.op("buffer_load_dword v243, v242, s[8:11], s51 offen sc1")
    sload(NP[0])
    k(f"s_lshl_b32 s51, s{sCT}, 13")
    for c in range(7):
        k("v_add_u32 v26, s51, v6")
        k("v_add_u32 v18, s51, v7")
        if c < 6:
            k("s_add_u32 s51, s51, 8192")
            k("s_cmp_eq_u32 s51, 57344")
            k("s_cselect_b32 s51, 0, s51")
        vm.wait(xs[c])
        for par in range(2):
            k(f"ds_read_b128 {v(vR+4*((2*c+par)%4),4)}, v{18 if par else 26}")
        if c > 0:
            k("s_waitcnt lgkmcnt(2)")
            stat(2 * c - 2)
            stat(2 * c - 1)
    fin2 = [["s_mov_b32 s50, 0x05040100", "s_mov_b32 s51, 0x07060302"]]
    for e in range(0, 8, 2):
        fin2.append([f"v_perm_b32 v{168+e+i}, v{164+(e>>1)}, v{160+(e>>1)}, s{50+i}" for i in range(2)])
    for e in range(0, 8, 2):
        fin2.append([f"ds_write2st64_b32 v230, v{168+e}, v{169+e} offset0:{e} offset1:{e+1}"])
    fin2 += [[f"s_add_u32 s50, s27, {XT}", "v_lshl_add_u32 v231, v1, 4, s50"],
             ["v_lshrrev_b32 v230, 4, v1", "v_and_b32 v232, 15, v1", f"s_lshl2_add_u32 s50, s{sCT}, s{sW}"],
             ["v_lshlrev_b32 v232, 4, v232", "s_lshl_b32 s50, s50, 16", f"s_and_b32 s51, s{sRT}, 3"],
             ["v_lshl_add_u32 v230, v230, 13, v232", "s_lshl_b32 s51, s51, 11", "s_add_u32 s50, s50, s51"],
             [f"s_lshr_b32 s51, s{sRT}, 2", "s_lshl_b32 s51, s51, 8", "s_add_u32 s50, s50, s51"],
             [f"s_add_u32 s50, s50, {WT}", "s_add_u32 s51, s50, 32768"]]
    if WFE:
        vm.wait(wf_ld)
        for grp in fin2:
            k("\n".join(grp))
        fin2 = []
    k("s_waitcnt lgkmcnt(0)")
    k.stamp(1) if FINE == 1 else None
    stat(12)
    stat(13)
    k("s_barrier")
    if WFE:
        k("ds_read_b128 v[160:163], v231")
        k("ds_read_b128 v[164:167], v231 offset:1024")
    k.stamp()
    vA, vSt, vM, vQ = 88, 124, 24, 25
    seq = [(t, b) for t in range(14) for b in range(4)]

    l1 = Cnt(k, "lgkmcnt", 15)
    r1 = {}

    def rd1(n):
        t, b = seq[n]
        r1[n] = l1.op(f"ds_read_b128 {v(vR+4*(n%8),4)}, v{4+(t&1)} offset:{(t>>1)*8192 + b*2048}")

    fin = ["v_and_b32 v26, 3, v1",
           "v_cmp_eq_u32 s[52:53], 1, v26", "v_cmp_eq_u32 s[54:55], 2, v26", "v_cmp_eq_u32 s[56:57], 3, v26",
           "v_bfe_u32 v26, v1, 2, 2", "v_lshrrev_b32 v19, 4, v1", "v_cmp_eq_u32 s[58:59], v26, v19",
           f"v_cndmask_b32 {v(vM)}, {v(vSm)}, {v(vSm+1)}, s[52:53]", f"v_cndmask_b32 {v(vQ)}, {v(vGr)}, {v(vGr+1)}, s[52:53]",
           f"v_cndmask_b32 {v(vM)}, {v(vM)}, {v(vSm+2)}, s[54:55]", f"v_cndmask_b32 {v(vQ)}, {v(vQ)}, {v(vGr+2)}, s[54:55]",
           f"v_cndmask_b32 {v(vM)}, {v(vM)}, {v(vSm+3)}, s[56:57]", f"v_cndmask_b32 {v(vQ)}, {v(vQ)}, {v(vGr+3)}, s[56:57]",
           f"v_mul_f32 {v(vM)}, {f2u(1.0/448)}, {v(vM)}",
           f"v_mul_f32 {v(vQ)}, {f2u(1.0/448)}, {v(vQ)}",
           "v_and_b32 v26, 15, v1",
           f"v_fma_f32 {v(vQ)}, -{v(vM)}, {v(vM)}, {v(vQ)}",
           f"s_lshl_b32 s33, s{sW}, 6\ns_add_u32 s33, s33, {R2}",
           f"v_max_f32 {v(vQ)}, 0, {v(vQ)}",
           "v_lshl_add_u32 v19, v26, 2, s33",
           f"v_add_f32 {v(vQ)}, {f2u(EPS)}, {v(vQ)}",
           f"v_fmac_f32 {v(vCS)}, {v(vCS)}, {v(vSG)}",
           f"v_rsq_f32 {v(vQ)}, {v(vQ)}",
           "v_lshrrev_b32 v21, 2, v26",
           "v_and_b32 v26, 3, v26",
           f"v_mul_f32 v20, {v(vM)}, {v(vQ)}",
           "v_lshl_add_u32 v26, v21, 4, v26",
           "v_lshlrev_b32 v26, 7, v26",
           f"s_lshl_b32 s33, s{sW}, 7",
           f"s_add_u32 s33, s33, s{sRT}",
           f"s_lshl2_add_u32 s33, s33, {M1}",
           f"s_cmp_eq_u32 s{sCT}, 0\ns_cselect_b32 s33, s33, 0x40000000"]
    DEPTH = 7
    for n in range(DEPTH):
        rd1(n)
    if WFE:
        k("s_waitcnt lgkmcnt(7)")
        vm.op("buffer_store_dwordx4 v[160:163], v230, s[8:11], s50 offen sc1")
        vm.op("buffer_store_dwordx4 v[164:167], v230, s[8:11], s51 offen sc1")
    if T1:
        k(f"s_bitcmp1_b32 s{sW}, 0")
        k(f"s_cselect_b32 s52, s{sB}, s{sA}")
        k(f"s_cselect_b32 s53, s{sB+1}, s{sA+1}")
        k(f"s_mov_b32 s54, {WGB}")
        k("s_mov_b32 s55, 0x20000")
        k(f"s_and_b32 s50, s{sRB}, 1")
        k(f"s_lshr_b32 s51, s{sW}, 1")
        k("s_lshl1_add_u32 s50, s50, s51")
        k(f"s_mul_i32 s50, s50, {2*57344}")
        k(f"s_lshr_b32 s51, s{sFB}, 2")
        k("s_lshl_b32 s51, s51, 8")
        k("s_add_u32 s50, s50, s51")
        k(f"s_add_u32 s50, s50, {T1*57344}")
        k("v_lshrrev_b32 v240, 1, v1")
        k("v_mul_u32_u24 v240, 0xe00, v240")
        k("v_and_b32 v241, 1, v1")
        k("v_lshl_add_u32 v240, v241, 7, v240")
        vm.op("buffer_load_dword v241, v240, s[52:55], s50 offen")
    for n in range(56):
        t, b = seq[n]
        l1.wait(r1[n])
        acc = vA + 16 * (t // 7) + 4 * b
        k(f"v_mfma_f32_16x16x32_bf16 {v(acc,4)}, {v(vR+4*(n%8),4)}, {v(vF+4*(t%7),4)}, {'0' if t % 7 == 0 else v(acc,4)}")
        if n + DEPTH < 56:
            rd1(n + DEPTH)
        if n >= 4 and fin:
            k(fin.pop(0))
        if n == 40:
            assert not fin
            k("s_mov_b64 exec, s[58:59]")
            l1.op(f"ds_write_b32 v19, {v(vQ)}")
            l1.op("ds_write_b32 v19, v20 offset:256")
            vm.op(f"buffer_store_dword {v(vM)}, v26, s[8:11], s33 offen sc1")
            k("s_mov_b64 exec, -1")
        if n == 41:
            vm.wait(wf_ld)
        if n >= 41 and fin2:
            for t_ in fin2.pop(0):
                l1.op(t_) if t_.startswith("ds_") else k(t_)
        if n % 8 == 3 and len(sid) < NP[0] + NP[1]:
            sload()
    k.stamp(1) if FINE == 1 else None
    assert not fin2
    l1.all()
    k("s_barrier")
    k.stamp(1) if FINE == 1 else None
    if not WFE:
        k("ds_read_b128 v[160:163], v231")
        k("ds_read_b128 v[164:167], v231 offset:1024")
    k("v_lshrrev_b32 v24, 4, v1")
    k("v_lshlrev_b32 v24, 4, v24")
    k(f"v_add_u32 v25, {R2}, v24")
    for b in range(4):
        k(f"ds_read_b128 {v(vSt+4*b,4)}, v25 offset:{64*b}")
        k(f"ds_read_b128 {v(vSt+16+4*b,4)}, v25 offset:{256 + 64*b}")
    for n in range(0, 16, 2):
        k(f"v_pk_fma_f32 {v(vA+n,2)}, {v(vA+16+n,2)}, {v(vSG-1,2)}, {v(vA+n,2)} op_sel:[0,1,0]")
    if not WFE:
        k("s_waitcnt lgkmcnt(8)")
        vm.op("buffer_store_dwordx4 v[160:163], v230, s[8:11], s50 offen sc1")
        vm.op("buffer_store_dwordx4 v[164:167], v230, s[8:11], s51 offen sc1")
    k.stamp(1) if FINE == 1 else None
    k("v_and_b32 v8, 15, v1")
    k("v_and_b32 v9, 7, v1")
    k("v_lshrrev_b32 v10, 3, v24")
    k("v_xor_b32 v10, v10, v9")
    k("v_lshlrev_b32 v10, 4, v10")
    k("v_lshl_add_u32 v10, v8, 7, v10")
    k("v_add_u32 v10, s27, v10")
    k("v_xor_b32 v11, 16, v10")
    k(f"v_lshlrev_b32 {v(vL16)}, 4, v1")
    k(f"v_add_u32 v12, s27, {v(vL16)}")
    k("v_lshrrev_b32 v13, 3, v1")
    k("v_xor_b32 v9, v9, v13")
    k("v_lshlrev_b32 v9, 4, v9")
    k("v_lshl_add_u32 v13, v13, 13, v9")
    k("s_lshl_b32 s28, s28, 13")
    k("s_lshl_b32 s30, s30, 12")
    k(f"s_lshl_b32 s33, s{sRT}, 7")
    k("s_add_u32 s33, s33, s30")
    k("s_add_u32 s33, s33, s28")
    k("s_add_u32 s34, s33, 0x10000")
    for h2 in range(2):
        k(f"s_waitcnt lgkmcnt({4-4*h2})")
        for n in range(8 * h2, 8 * h2 + 8, 2):
            k(f"v_pk_mul_f32 {v(vA+n,2)}, {v(vA+n,2)}, {v(vSt+n,2)}")
        for n in range(8 * h2, 8 * h2 + 8, 2):
            k(f"v_pk_fma_f32 {v(vA+n,2)}, {v(vSt+16+n,2)}, {v(vCS,2)}, {v(vA+n,2)} op_sel_hi:[1,0,1] neg_lo:[1,0,0] neg_hi:[1,0,0]")
        for n in range(4 * h2, 4 * h2 + 4):
            k(f"v_cvt_pk_bf16_f32 {v(vR+n)}, {v(vA+2*n)}, {v(vA+2*n+1)}")
    k.stamp(1) if FINE == 1 else None
    k(f"ds_write_b128 v10, {v(vR,4)}")
    k(f"ds_write_b128 v11, {v(vR+4,4)}")
    k("s_waitcnt lgkmcnt(0)")
    k(f"ds_read_b128 {v(vR+8,4)}, v12")
    k(f"ds_read_b128 {v(vR+12,4)}, v12 offset:1024")
    k(f"v_lshlrev_b32 {v(vL4)}, 2, v1")
    k(f"v_min_u32 v14, 28, {v(vL4)}")
    k("s_waitcnt lgkmcnt(1)")
    vm.op(f"buffer_store_dwordx4 {v(vR+8,4)}, v13, s[8:11], s33 offen sc1")
    k("s_waitcnt lgkmcnt(0)")
    at_st = vm.op(f"buffer_store_dwordx4 {v(vR+12,4)}, v13, s[8:11], s34 offen sc1")
    zload = f"global_load_dword v31, v14, s[{sDBG}:{sDBG+1}]{ZOFF} sc1"
    zmark = vm.op(zload)
    nr1 = len(sid) // 2
    assert len(sid) == NP[0] + NP[1] and len(sid) % 2 == 0
    r1_last = sid[-1]
    na0 = NA[0]
    k.stamp()

    sKK, vWt = 2, 200
    vC1, vS1, vN1, vC2, vS2, vN2 = 32, 40, 48, 56, 64, 72
    vTc, vTs, vUc, vUs, vD, wX, vY, vP, wT = 80, 88, 96, 104, 112, 144, 160, 176, 184
    m2 = [0, 1, 2, 3, 16, 17, 18, 19]
    k(f"v_lshrrev_b32 {v(vG)}, 4, v1")
    k(f"v_and_b32 {v(vC)}, 15, v1")
    k(f"v_mov_b32 {v(vOne)}, 1")
    k(f"v_min_u32 {v(vLP)}, 220, {v(vL4)}")
    k("v_and_b32 v7, 7, v1")
    k(f"v_xor_b32 v7, v7, {v(vG)}")
    k("v_lshrrev_b32 v8, 3, v1")
    k("v_lshlrev_b32 v8, 7, v8")
    k("v_lshl_add_u32 v211, v7, 4, v8")
    k("v_xor_b32 v212, 64, v211")
    k(f"s_lshl_b32 s{sFL}, s{sRB}, 10")
    k(f"s_add_u32 s{sFL}, s{sFL}, {FL}")
    k(f"s_lshl2_add_u32 s{sFI}, s{sFB}, s{sFL}")
    k(f"s_getreg_b32 s{sXC}, hwreg(HW_REG_XCC_ID, 0, 4)")
    k(f"s_lshr_b32 s26, s{sKK}, 5")
    k(f"s_lshl_b32 s26, s26, {9 if WFLAG else 7}")
    k(f"s_add_u32 s51, s26, {FL + F_P1}")
    k("v_lshlrev_b32 v214, 3, v1")
    k(f"v_and_b32 v213, 124, {v(vL4)}")
    k(f"s_lshl_b32 s26, s{sCT}, 5")
    k(f"s_add_u32 s26, s26, s{sRT}")
    if WFLAG:
        k(f"s_lshl2_add_u32 s26, s26, s{sW}")
    k(f"s_lshl2_add_u32 s52, s26, {FL + F_P1}")
    k(f"s_lshl1_add_u32 s{sRT}, s{sRB}, s{sHALF}")

    def packed_table(dc, ds_, step, base, mult):
        for e in range(8):
            k(f"v_mov_b32 {v(wT+e)}, {v(base)}" if mult[e] == 0 else
              f"v_fmamk_f32 {v(wT+e)}, {v(step)}, {f2u(float(mult[e]))}, {v(base)}")
        for e in range(8):
            k(f"v_cos_f32 {v(wT+8+e)}, {v(wT+e)}")
        for e in range(8):
            k(f"v_sin_f32 {v(wT+e)}, {v(wT+e)}")
        for p in range(4):
            k(f"v_cvt_pk_bf16_f32 {v(dc+p)}, {v(wT+8+2*p)}, {v(wT+8+2*p+1)}")
        for p in range(4):
            k(f"v_cvt_pk_bf16_f32 {v(ds_+p)}, {v(wT+2*p)}, {v(wT+2*p+1)}")

    k(f"s_lshl_b32 s53, s{sW}, 4")
    k(f"v_add_u32 v210, s53, {v(vC)}")
    k("v_cvt_f32_u32 v208, v210")
    k(f"v_cvt_f32_u32 v209, {v(vG)}")
    k(f"v_mul_f32 {v(vY)}, {f2u(1.0/64)}, v208")
    k(f"v_mul_f32 {v(vY+1)}, {f2u(8.0)}, v209")
    k(f"v_mul_f32 {v(vY+1)}, {v(vY+1)}, {v(vY)}")
    packed_table(vC1, vS1, vY, vY + 1, list(range(8)))
    k("s_mov_b32 s54, 0x80008000")
    k("v_and_b32 v210, 1, v1")
    k("v_mul_u32_u24 v210, 0x8000, v210")
    k("v_lshl_or_b32 v210, v210, 16, v210")
    for p in range(4):
        k(f"v_xor_b32 {v(vC1+4+p)}, v210, {v(vC1+p)}")
        k(f"v_xor_b32 {v(vS1+4+p)}, v210, {v(vS1+p)}")
    for p in range(8):
        k(f"v_xor_b32 {v(vN1+p)}, s54, {v(vS1+p)}")
    k.stamp(1) if FINE == 1 else None
    sload(na0)
    spin(zload, "v_cmp_eq_u32 vcc, 0, v31", zmark)
    if WFLAG:
        vm.op(f"buffer_store_dword {v(vOne)}, off, s[8:11], s52 sc1")
        vm.wait(r1_last)
        k("s_barrier")
    else:
        vm.all()
        k("s_barrier")
        wave0(f"buffer_store_dword {v(vOne)}, off, s[8:11], s52 sc1", 1)
    k.stamp()
    sload(NP[2] - na0)
    k.stamp(1) if FINE == 3 else None
    sread(0, nr1)
    k.stamp(1) if FINE == 3 else None
    k(f"v_lshrrev_b32 v210, 1, {v(vC)}")
    k(f"v_xor_b32 v210, v210, {v(vG)}")
    k("v_lshlrev_b32 v210, 4, v210")
    k(f"v_lshl_add_u32 {v(vP)}, {v(vC)}, 7, v210")
    k(f"v_xor_b32 {v(vP+1)}, 64, {v(vP)}")
    k(f"v_cvt_f32_u32 v210, {v(vC)}")
    k(f"v_mul_f32 {v(vY)}, {f2u(1.0/32)}, v210")
    k(f"v_mul_f32 {v(vY+1)}, 4.0, v209")
    k(f"v_mul_f32 {v(vY+1)}, {v(vY+1)}, {v(vY)}")
    packed_table(vC2, vS2, vY, vY + 1, m2)
    k("s_brev_b32 s55, 1")
    for p in range(4):
        k(f"v_xor_b32 {v(vC2+4+p)}, s55, {v(vC2+p)}")
        k(f"v_xor_b32 {v(vS2+4+p)}, s55, {v(vS2+p)}")
    for p in range(8):
        k(f"v_xor_b32 {v(vN2+p)}, s54, {v(vS2+p)}")
    k(f"v_mul_f32 {v(vY)}, {f2u(1.0/2048)}, v208")
    k(f"v_mul_f32 {v(vY+1)}, 4.0, v209")
    k(f"v_mul_f32 {v(vY+1)}, {v(vY+1)}, {v(vY)}")
    for e in range(8):
        k(f"v_mov_b32 {v(vTs+e)}, {v(vY+1)}" if m2[e] == 0 else
          f"v_fmamk_f32 {v(vTs+e)}, {v(vY)}, {f2u(float(m2[e]))}, {v(vY+1)}")
    for e in range(8):
        k(f"v_cos_f32 {v(vTc+e)}, {v(vTs+e)}")
    for e in range(8):
        k(f"v_sin_f32 {v(vTs+e)}, {v(vTs+e)}")
    k(f"v_mul_f32 {v(wT)}, {f2u(1.0/2048)}, v210")
    k(f"v_add_f32 {v(wT+1)}, {f2u(16.0/2048)}, {v(wT)}")
    k(f"v_lshl_add_u32 v208, {v(vG)}, 2, s53")
    k("v_cvt_f32_u32 v208, v208")
    for r in range(4):
        for blk in range(2):
            k(f"v_mul_f32 {v(vUs+4*blk+r)}, v208, {v(wT+blk)}")
        if r < 3:
            k("v_add_f32 v208, 1.0, v208")
    for e in range(8):
        k(f"v_cos_f32 {v(vUc+e)}, {v(vUs+e)}")
    for e in range(8):
        k(f"v_sin_f32 {v(vUs+e)}, {v(vUs+e)}")
    sc = 2.0 / (S * D)
    k(f"s_cmp_eq_u32 s{sKK}, 223")
    k(f"s_mov_b32 s55, {f2u(sc)}")
    k(f"s_cselect_b32 s55, {f2u(sc/2)}, s55")
    for e in range(8):
        k(f"v_mul_f32 {v(vUc+e)}, s55, {v(vUc+e)}")
        k(f"v_mul_f32 {v(vUs+e)}, s55, {v(vUs+e)}")
    k(f"v_lshrrev_b32 v208, 1, {v(vG)}")
    k(f"v_lshl_add_u32 v208, v208, 4, {v(vC)}")
    k("v_lshlrev_b32 v208, 4, v208")
    k(f"v_and_b32 v209, 1, {v(vG)}")
    k("v_lshl_add_u32 v208, v209, 3, v208")
    k(f"s_lshl_b32 s26, s{sW}, 9")
    k("v_add_u32 v208, s26, v208")
    k(f"s_lshl_b32 s26, s{sKK}, 13")
    k("s_add_u32 s56, s26, s27")
    k(f"s_add_u32 s57, s56, {WT}")
    k("s_add_u32 s58, s26, s35")
    k("s_add_u32 s59, s58, 4096")
    k("s_mov_b32 m0, s27")
    k("s_waitcnt lgkmcnt(0)")
    k("s_barrier")
    k.stamp()
    if WFLAG:
        spin0(lambda r: f"buffer_load_dwordx2 v[{r}:{r+1}], v214, s[8:11], s51 offen sc1", [216, 218, 220],
              lambda r: f"v_and_b32 v{r}, v{r}, v{r+1}\nv_cmp_eq_u32 vcc, 0, v{r}")
    elif PIPE:
        spin0(lambda r: f"buffer_load_dword v{r}, v213, s[8:11], s51 offen sc1", [216, 217, 218], lambda r: f"v_cmp_eq_u32 vcc, 0, v{r}")
    else:
        spin("buffer_load_dword v31, v213, s[8:11], s51 offen sc1", "v_cmp_eq_u32 vcc, 0, v31")
    k.stamp()
    vm.op(f"buffer_load_dwordx4 v211, s[8:11], s56 offen{LD} lds")
    at_ld = vm.op(f"buffer_load_dwordx4 v212, s[8:11], s56 offen offset:1024{LD} lds")
    vm.op(f"buffer_load_dwordx4 {v(vWt,4)}, {v(vL16)}, s[8:11], s57 offen{LD}")
    wt_ld = vm.op(f"buffer_load_dwordx4 {v(vWt+4,4)}, {v(vL16)}, s[8:11], s57 offen offset:1024{LD}")
    k.stamp(1) if FINE == 3 else None
    k(f"s_lshl_b32 s26, s{sXC}, 2")
    k("s_lshl_b32 s26, 1, s26")
    k(f"s_lshr_b32 s28, s{sXC}, 3")
    k(f"s_lshl2_add_u32 s28, s28, s{sFL}")
    wave0("v_mov_b32 v215, s26\nbuffer_atomic_add v215, off, s[8:11], s28 offset:768 sc1", 1)
    if not PIPE:
        k("s_barrier")
    assert NS[1] <= 2 * nr1 + 22 - NS[0]
    k.stamp(1) if FINE == 3 else None
    sread(nr1, NS[0] // 2)
    nr1 = NS[0] // 2
    k.stamp(1) if FINE == 3 else None
    sload(NS[1])
    k.stamp(1) if FINE == 3 else None
    vm.wait(at_ld)
    k("s_waitcnt lgkmcnt(0)")
    k("s_barrier")
    k.stamp()
    for t in range(2):
        for blk in range(2):
            for plane in range(2):
                k(f"ds_read_b128 {v(vD+16*plane+8*blk+4*t,4)}, {v(vP+t)} offset:{plane*4096+blk*2048}")
    sload(NS[2])

    def dft_big(cr, ci):
        for t in range(2):
            for blk in range(2):
                k(f"s_waitcnt lgkmcnt({6 - 4*t - 2*blk})")
                ar, ai = vD + 8 * blk + 4 * t, vD + 16 + 8 * blk + 4 * t
                xr, xi = wX + 4 * blk, wX + 8 + 4 * blk
                k(f"v_mfma_f32_16x16x32_bf16 {v(xr,4)}, {v(ar,4)}, {v(vC1+4*t,4)}, {'0' if t == 0 else v(xr,4)}")
                k(f"v_mfma_f32_16x16x32_bf16 {v(xi,4)}, {v(ai,4)}, {v(vC1+4*t,4)}, {'0' if t == 0 else v(xi,4)}")
                k(f"v_mfma_f32_16x16x32_bf16 {v(xr,4)}, {v(ai,4)}, {v(cr+4*t,4)}, {v(xr,4)}")
                k(f"v_mfma_f32_16x16x32_bf16 {v(xi,4)}, {v(ar,4)}, {v(ci+4*t,4)}, {v(xi,4)}")

    def pack():
        for p in range(4):
            k(f"v_cvt_pk_bf16_f32 {v(vP+p)}, {v(vY+2*p)}, {v(vY+2*p+1)}")
            k(f"v_cvt_pk_bf16_f32 {v(vP+4+p)}, {v(vY+8+2*p)}, {v(vY+8+2*p+1)}")

    k.stamp(1) if FINE == 2 else None
    dft_big(vS1, vN1)
    k.stamp(1) if FINE == 2 else None
    cmul8(k, vY, wX, vTc, vTs, -1)
    pack()
    for blk in range(2):
        xr, xi = wX + 4 * blk, wX + 8 + 4 * blk
        k(f"v_mfma_f32_16x16x32_bf16 {v(xr,4)}, {v(vC2+4*blk,4)}, {v(vP,4)}, 0")
        k(f"v_mfma_f32_16x16x32_bf16 {v(xi,4)}, {v(vC2+4*blk,4)}, {v(vP+4,4)}, 0")
        k(f"v_mfma_f32_16x16x32_bf16 {v(xr,4)}, {v(vS2+4*blk,4)}, {v(vP+4,4)}, {v(xr,4)}")
        k(f"v_mfma_f32_16x16x32_bf16 {v(xi,4)}, {v(vN2+4*blk,4)}, {v(vP,4)}, {v(xi,4)}")
    k.stamp(1) if FINE == 2 else None
    vm.wait(wt_ld)
    for e in range(8):
        k(f"v_lshlrev_b32 {v(wT+e)}, 16, {v(vWt+e)}")
        k(f"v_and_b32 {v(wT+8+e)}, 0xffff0000, {v(vWt+e)}")
    sload(NS[3] // 2)
    k.stamp(1) if FINE == 2 else None
    cmul8(k, vY, wX, wT, wT + 8, +1)
    pack()
    for blk in range(2):
        xr, xi = wX + 4 * blk, wX + 8 + 4 * blk
        k(f"v_mfma_f32_16x16x32_bf16 {v(xr,4)}, {v(vP,4)}, {v(vC2+4*blk,4)}, 0")
        k(f"v_mfma_f32_16x16x32_bf16 {v(xi,4)}, {v(vP+4,4)}, {v(vC2+4*blk,4)}, 0")
        k(f"v_mfma_f32_16x16x32_bf16 {v(xr,4)}, {v(vP+4,4)}, {v(vN2+4*blk,4)}, {v(xr,4)}")
        k(f"v_mfma_f32_16x16x32_bf16 {v(xi,4)}, {v(vP,4)}, {v(vS2+4*blk,4)}, {v(xi,4)}")
    sload(NS[3] - NS[3] // 2)
    k.stamp(1) if FINE == 2 else None
    cmul8(k, vY, wX, vUc, vUs, +1)
    pack()
    for plane in range(2):
        for blk in range(2):
            k(f"ds_write_b64 v208, {v(vP+4*plane+2*blk,2)} offset:{8192+plane*4096+blk*2048}")
    k("s_waitcnt lgkmcnt(0)")
    k("s_barrier")
    for t in range(2):
        for blk in range(2):
            for plane in range(2):
                k(f"ds_read_b128 {v(vD+16*plane+8*blk+4*t,4)}, {v(vL16)} offset:{8192+plane*4096+blk*2048+t*1024}")
    k.stamp(1) if FINE == 2 else None
    k(f"s_cmp_ge_u32 s{sKK}, 112")
    k("s_cselect_b32 s54, s54, 0")
    dft_big(vN1, vS1)
    for p in range(4):
        k(f"v_cvt_pk_bf16_f32 {v(vP+p)}, {v(wX+2*p)}, {v(wX+2*p+1)}")
    vm.op(f"buffer_store_dwordx4 {v(vP,4)}, {v(vL16)}, s[8:11], s58 offen sc1")
    for p in range(4):
        k(f"v_cvt_pk_bf16_f32 {v(vP+4+p)}, {v(wX+8+2*p)}, {v(wX+8+2*p+1)}")
    for p in range(4):
        k(f"v_xor_b32 {v(vP+4+p)}, s54, {v(vP+4+p)}")
    bt_st = vm.op(f"buffer_store_dwordx4 {v(vP+4,4)}, {v(vL16)}, s[8:11], s59 offen sc1")
    nr2 = len(sid) // 2
    assert 2 * (nr2 - nr1) + NA[1] <= 22
    sload(NA[1])
    k.stamp()

    vXO, vM, vTB, vXA, vGm = 10, 12, 14, 18, 32
    cload = f"buffer_load_dwordx2 v[28:29], off, s[8:11], s{sFL} offset:768 sc1"
    k(f"v_and_b32 v6, 1, {v(vG)}")
    k(f"s_and_b32 s29, s{sW}, 1")
    k("s_lshl_b32 s29, s29, 2")
    k("v_lshl_or_b32 v6, v6, 1, s29")
    k("v_and_b32 v7, 7, v1")
    k("v_xor_b32 v6, v6, v7")
    k("v_lshrrev_b32 v8, 3, v1")
    k("v_lshlrev_b32 v9, 12, v8")
    k("v_lshl_add_u32 v6, v6, 4, v9")
    k(f"s_lshl_b32 s28, s{sW}, 15")
    k(f"s_lshl_b32 s27, s{sRT}, 7")
    k("s_add_u32 s51, s28, s27")
    k("s_sub_u32 s52, s27, s28")
    k(f"s_add_u32 s52, s52, {438*4096}")
    k(f"s_bitcmp1_b32 s{sCT}, 0")
    k("s_cselect_b32 s53, s51, s52")
    k("s_cselect_b32 s51, s52, s51")
    k("s_cselect_b32 s54, 0x6000, 0")
    k("s_cselect_b32 s55, 28672, 0")
    k("s_mov_b32 s52, 0x20000")
    k("s_cselect_b32 s52, 0xfffe0000, s52")
    k("v_xor_b32 v6, s54, v6")
    k("v_lshrrev_b32 v9, 5, v1")
    k("v_and_b32 v8, 3, v8")
    k("v_lshl_add_u32 v8, v9, 4, v8")
    k("v_mul_u32_u24 v8, 0x380, v8")
    k(f"v_xor_b32 v7, v7, {v(vG)}")
    k("v_xor_b32 v7, s29, v7")
    k(f"v_lshl_add_u32 {v(vXO)}, v7, 4, v8")
    k(f"s_lshr_b32 s26, s{sRT}, 3")
    k("s_lshl_b32 s26, s26, 9")
    k(f"s_lshl_b32 s28, s{sHALF}, 8")
    k("s_add_u32 s26, s26, s28")
    k(f"s_and_b32 s28, s{sRB}, 3")
    k(f"s_lshl2_add_u32 s{sSB}, s28, s26")
    k(f"s_lshl_b32 s26, s{sW}, 5")
    k(f"s_add_u32 s26, s26, s{sSB}")
    k("s_mul_i32 s26, s26, 896")
    k(f"s_lshl_b32 s28, s{sCT}, 7")
    k(f"s_add_u32 s{sXO}, s26, s28")
    k(f"s_add_u32 s{sXO+1}, s{sXO}, {128*896}")
    k("v_bfe_u32 v7, v1, 3, 2")
    k("v_bfe_u32 v8, v1, 2, 1")
    k("v_lshlrev_b32 v8, 4, v8")
    k("v_lshl_add_u32 v7, v7, 5, v8")
    k("v_and_b32 v8, 3, v1")
    k("v_add_lshl_u32 v11, v7, v8, 2")
    k(f"s_lshl2_add_u32 s56, s{sSB}, {M1}")
    k("v_lshlrev_b32 v213, 10, v1")
    k(f"s_lshl2_add_u32 s57, s2, {FL + F_FB}")
    k(f"s_and_b32 s58, s2, {NREP - 1}")
    k("s_lshl_b32 s58, s58, 10")
    k(f"s_add_u32 s58, s58, {FL + F_FB}")
    k(f"v_min_u32 v214, 880, {v(vL16)}")
    k.stamp(1) if FINE == 4 else None
    vm.wait(bt_st)
    k("s_barrier")
    wave0(f"buffer_store_dword {v(vOne)}, v213, s[8:11], s57 offen sc1", hex((1 << NREP) - 1))
    k.stamp()
    sread(nr1, nr2)
    k.stamp(1) if FINE == 4 else None
    k(f"s_add_u32 m0, s35, {XT}")
    vm.op(f"buffer_load_dwordx4 {v(vXO)}, s[12:15], s{sXO} offen lds")
    k(f"s_add_u32 m0, s35, {XT+4096}")
    vm.op(f"buffer_load_dwordx4 {v(vXO)}, s[12:15], s{sXO+1} offen lds")
    k("s_waitcnt lgkmcnt(0)")
    k("s_barrier")

    def p3_consts():
        vB, vST, vE, vT = 14, 15, 15, 20
        k(f"s_lshl_b32 s26, s{sCT}, 6")
        k(f"s_lshl_b32 s27, s{sW}, 4")
        k("s_add_u32 s26, s26, s27")
        k(f"v_add_u32 v27, s26, {v(vC)}")
        k("v_cvt_f32_u32 v27, v27")
        for p in range(1, 4):
            k(f"v_mul_f32 {v(vE+p)}, {f2u(p/448.0)}, v27")
        k(f"v_mul_f32 {v(vST)}, {f2u(16.0/448)}, v27")
        k(f"v_fract_f32 {v(vST)}, {v(vST)}")
        k(f"v_lshl_add_u32 v19, {v(vG)}, 2, 1")
        k("v_cvt_f32_u32 v19, v19")
        k(f"v_mul_f32 {v(vB)}, v19, {v(vE+1)}")
        k(f"v_fract_f32 {v(vB)}, {v(vB)}")
        for t in range(7):
            k(f"v_cos_f32 {v(vT+4)}, {v(vB)}")
            k(f"v_sin_f32 {v(vT)}, {v(vB)}")
            for p in range(1, 4):
                k(f"v_add_f32 {v(vT+p)}, {v(vB)}, {v(vE+p)}")
            if t < 6:
                k(f"v_add_f32 {v(vB)}, {v(vB)}, {v(vST)}")
                k(f"v_fract_f32 {v(vB)}, {v(vB)}")
            for p in range(1, 4):
                k(f"v_cos_f32 {v(vT+4+p)}, {v(vT+p)}")
                k(f"v_sin_f32 {v(vT+p)}, {v(vT+p)}")
            for p in range(4):
                k(f"v_cvt_pk_bf16_f32 {v(vGm+4*t+p)}, {v(vT+4+p)}, -{v(vT+p)}")
        k("v_bfe_u32 v7, v1, 2, 2")
        k(f"v_lshlrev_b32 v8, 10, {v(vG)}")
        k("v_lshl_add_u32 v8, v7, 7, v8")
        k("v_and_b32 v9, 3, v1")
        k("v_lshl_add_u32 v8, v9, 3, v8")
        k("v_lshrrev_b32 v7, 1, v7")
        k(f"v_and_b32 v9, 1, {v(vG)}")
        k("v_lshl_add_u32 v7, v9, 1, v7")
        k(f"v_lshl_add_u32 {v(vTB)}, v7, 5, v8")
        for nb in range(1, 4):
            k(f"v_xor_b32 {v(vTB+nb)}, {32*nb}, {v(vTB)}")
        k("v_lshrrev_b32 v7, 5, v1")
        k(f"s_lshl_b32 s26, s{sW}, 1")
        k("v_or_b32 v7, s26, v7")
        k("v_bfe_u32 v8, v1, 1, 3")
        k("v_xor_b32 v7, v7, v8")
        k("v_and_b32 v8, 31, v1")
        k("v_lshlrev_b32 v8, 7, v8")
        k("v_lshl_add_u32 v7, v7, 4, v8")
        k(f"v_add_u32 {v(vXA)}, {XT}, v7")

    k.stamp(1) if FINE == 4 else None
    lines = capture(p3_consts)
    per = -(-len(lines) // (NS[4] - NA[1] + 1))
    for i in range(NS[4] - NA[1]):
        sload()
        slot()
    slot()
    k("s_add_u32 m0, s35, s55")
    last_real = vm.n - 1
    if TW:
        k.srd(12, 48, WGB)
        ld = touch_down(-1, 12)
        NT_ = k.lab("nt")
        k(f"s_cmp_eq_u32 s{sW}, 0")
        k(f"s_cbranch_scc1 {NT_}")
        k(ld)
        k.label(NT_)
    k.stamp()
    t4 = lambda r: f"v_and_b32 v{r}, v{r}, v{r+1}\nv_and_b32 v{r+2}, v{r+2}, v{r+3}\nv_and_b32 v{r}, v{r}, v{r+2}\nv_cmp_eq_u32 vcc, 0, v{r}"
    l4 = lambda r: f"buffer_load_dwordx4 v[{r}:{r+3}], v214, s[8:11], s58 offen sc1"
    if PIPE:
        spin0(l4, [216, 220, 224], t4, TW)
    else:
        spin(l4(216), t4(216))
    k.stamp()
    census = vm.op(cload)
    for hf in range(2):
        for t in range(7):
            if t == 6:
                k(f"s_cmp_eq_u32 s{sW}, 3")
                k(f"s_cselect_b32 s28, {224*4096 >> 6}, 0")
                k("s_cmp_lg_u32 s54, 0" if hf == 0 else "s_cmp_eq_u32 s54, 0")
                k("s_cselect_b32 s28, s28, 0")
                k("v_add_u32 v9, 16, v1")
                k("v_and_b32 v9, 64, v9")
                k("v_mad_u32_u24 v9, v9, s28, v6")
            bt_ld = vm.op(f"buffer_load_dwordx4 v{9 if t == 6 else 6}, s[8:11], s{51 if hf == 0 else 53} offen{LD} lds")
            if t < 6:
                k("s_add_u32 m0, m0, 4096")
                k("s_add_u32 s51, s51, s52" if hf == 0 else "s_sub_u32 s53, s53, s52")
        if hf == 0:
            bt_half = bt_ld
            k("s_mov_b32 s57, s55")
            k("s_sub_u32 s55, 28672, s55")
            k("s_add_u32 m0, s35, s55")
            k("v_xor_b32 v6, 0x6000, v6")
    k.stamp(1) if FINE == 4 else None
    vm.op(f"buffer_load_dword {v(vM)}, v11, s[8:11], s56 offen{LD}")
    p3_loads = vm.op(f"buffer_load_dword {v(vM+1)}, v11, s[8:11], s56 offen offset:512{LD}")
    sload(NS[5])
    k.stamp(1) if FINE == 4 else None
    k.srd(sA, 48, WGB)
    if SPLIT3:
        for nb in range(4):
            k(f"v_add_u32 {v(60+nb)}, s55, {v(vTB+nb)}")
            k(f"v_add_u32 {v(vTB+nb)}, s57, {v(vTB+nb)}")
        for p in range(4):
            k(f"v_mov_b32 {v(64+p)}, {v(vGm+24+p)}")
        k("s_cmp_lg_u32 s57, 0")
        k("s_cselect_b32 s58, 0xffff0000, 0")
        k("s_cselect_b32 s59, 0x80000000, 0")
        k("s_mov_b32 exec_lo, 0")
        k("s_mov_b32 exec_hi, s58")
        k(f"v_mov_b32 {v(vGm+27)}, 0x3f80")
        k("s_xor_b32 exec_hi, s58, 0xffff0000")
        k("v_mov_b32 v67, 0x3f80")
        k("s_mov_b64 exec, -1")
    CL, FAST, SLOW = k.lab("cl"), k.lab("fast"), k.lab("slow")
    k(f"s_mov_b32 s50, {SPIN_MAX}")
    vm.wait(census)
    k.label(CL)
    k("v_readfirstlane_b32 s52, v28")
    k("v_readfirstlane_b32 s53, v29")
    k(f"s_cmp_ge_u32 s{sXC}, 8")
    k("s_cselect_b32 s54, s53, s52")
    k(f"s_lshl_b32 s55, s{sXC}, 2")
    k("s_lshr_b32 s54, s54, s55")
    k("s_and_b32 s54, s54, 15")
    k(f"s_cmp_eq_u32 s54, {14 if not os.environ.get('SLOW') else 15}")
    k(f"s_cbranch_scc1 {FAST}")
    for r in (52, 53):
        k(f"s_lshr_b32 s54, s{r}, 4")
        k("s_and_b32 s54, s54, 0x0f0f0f0f")
        k(f"s_and_b32 s{r}, s{r}, 0x0f0f0f0f")
        k(f"s_add_u32 s{r}, s{r}, s54")
    k("s_add_u32 s52, s52, s53")
    k("s_mul_i32 s52, s52, 0x01010101")
    k("s_lshr_b32 s52, s52, 24")
    k("s_cmp_ge_u32 s52, 14")
    k(f"s_cbranch_scc1 {SLOW}")
    k("s_sub_u32 s50, s50, 1")
    k("s_cmp_eq_u32 s50, 0")
    k(f"s_cbranch_scc1 {SLOW}")
    k(cload)
    k("s_waitcnt vmcnt(0)")
    k(f"s_branch {CL}")
    state = (vm.n, vm.done, getattr(k, "_nst", 0), getattr(k, "_seq", 0))

    def rest(mode):
        vm.n, vm.done, k._nst, k._seq = state
        lg = Cnt(k, "lgkmcnt", 15)

        def arrive(off):
            vm.op(f"buffer_store_dword {v(vOne)}, off, s[8:11], s{sFI} offset:{off}{mode}")

        def pload(off):
            return f"buffer_load_dword v31, {v(vLP)}, s[8:11], s{sFL} offen offset:{off} sc1"

        def poll(off, mark=None):
            spin(pload(off), "v_cmp_eq_u32 vcc, 0, v31", mark)

        def put(q, cnt=1):
            for _ in range(cnt):
                if q:
                    e = q.pop(0)
                    e() if callable(e) else k("\n".join(e))

        k.stamp(1) if FINE == 4 else None
        vm.wait(bt_half if SPLIT3 else p3_loads)
        k("s_barrier")
        k.stamp()
        vR, vA = 88, 120
        seq = [(t, nb) for t in range(14) for nb in range(4)]

        def rd3(n):
            t, nb = seq[n]
            if SPLIT3 and n == 28:
                vm.wait(p3_loads)
                k("s_barrier")
            for u in range(2):
                if SPLIT3:
                    k(f"ds_read_b64_tr_b16 {v(vR+4*(n%8)+2*u,2)}, {v(vTB+nb if t < 7 else 60+nb)} offset:{(t%7)*4096+u*512}")
                else:
                    k(f"ds_read_b64_tr_b16 {v(vR+4*(n%8)+2*u,2)}, {v(vTB+nb)} offset:{t*4096+u*512}")

        DEPTH = 6
        for n in range(DEPTH):
            rd3(n)
        if TD:
            vm.op(touch_down(3, sA))
        for n in range(56):
            t, nb = seq[n]
            k(f"s_waitcnt lgkmcnt({2*min(DEPTH-1, 55-n)})")
            acc = vA + 16 * (t // 7) + 4 * nb
            gm = 64 if SPLIT3 and t == 13 else vGm + 4 * (t % 7)
            k(f"v_mfma_f32_16x16x32_bf16 {v(acc,4)}, {v(gm,4)}, {v(vR+4*(n%8),4)}, {'0' if t % 7 == 0 else v(acc,4)}")
            if n == 32 and not SPLIT3:
                k("s_mov_b32 exec_lo, 0")
                k("s_mov_b32 exec_hi, 0xffff0000")
                k(f"v_mov_b32 {v(vGm+27)}, 0x3f80")
                k("s_mov_b64 exec, -1")
            if n + DEPTH < 56:
                rd3(n + DEPTH)
        k.stamp(1) if FINE == 2 else None
        vX, vH, vHc, vU = 20, 32, 40, 48
        k(f"ds_read_b128 {v(vX,4)}, {v(vXA)}")
        k(f"ds_read_b128 {v(vX+4,4)}, {v(vXA)} offset:4096")
        k(f"s_mul_i32 s26, s{sRT}, 56")
        k(f"s_lshl2_add_u32 s27, s{sCT}, s{sW}")
        k("s_add_u32 s26, s26, s27")
        k("s_lshl_b32 s26, s26, 10")
        k(f"s_add_u32 s26, s26, {HC}")
        k(f"s_add_u32 s27, s26, {28*1024}")
        for r in range(0, 16, 2):
            k(f"v_pk_add_f32 {v(vA+r,2)}, {v(vA+r,2)}, {v(vA+16+r,2)} neg_hi:[0,1]")
        if SPLIT3:
            for r in range(1, 16, 2):
                k(f"v_xor_b32 {v(vA+r)}, s59, {v(vA+r)}")
        for p in range(2):
            for r in range(4):
                k(f"v_permlane16_swap_b32 {v(vA+8*p+r)}, {v(vA+8*p+4+r)}")
        k("s_waitcnt lgkmcnt(0)")
        for p in range(2):
            for q in range(4):
                k(f"v_lshlrev_b32 {v(vU+2*q)}, 16, {v(vX+4*p+q)}")
                k(f"v_and_b32 {v(vU+2*q+1)}, 0xffff0000, {v(vX+4*p+q)}")
            for e in range(0, 8, 2):
                k(f"v_pk_add_f32 {v(vA+8*p+e,2)}, {v(vA+8*p+e,2)}, {v(vU+e,2)}")
            for e in range(0, 8, 2):
                k(f"v_pk_add_f32 {v(vA+16+8*p+e,2)}, {v(vA+8*p+e,2)}, {v(vM,2)} op_sel:[0,{p}] op_sel_hi:[1,{p}] neg_lo:[0,1] neg_hi:[0,1]")
            for q in range(4):
                k(f"v_cvt_pk_bf16_f32 {v(vHc+4*p+q)}, {v(vA+16+8*p+2*q)}, {v(vA+17+8*p+2*q)}")
            hc_st = vm.op(f"buffer_store_dwordx4 {v(vHc+4*p,4)}, {v(vL16)}, s[8:11], s{26+p} offen{mode}")
        k.stamp(1) if FINE == 2 else None
        vm.wait(sid[55])
        k("s_barrier")
        k.stamp(1) if FINE == 2 else None
        sread(nr2, 28)
        k.stamp()
        vm.wait(hc_st)
        k("s_waitcnt lgkmcnt(0)")
        k.stamp(1) if FINE == 2 else None
        arrive(0)
        for p in range(2):
            for q in range(4):
                k(f"v_cvt_pk_bf16_f32 {v(vH+4*p+q)}, {v(vA+8*p+2*q)}, {v(vA+8*p+2*q+1)}")
            k(f"ds_write_b128 {v(vXA)}, {v(vH+4*p,4)} offset:{4096*p}")
        for p in range(2):
            k(f"v_mul_f32 {v(vM+p)}, {v(vA+16+8*p)}, {v(vA+16+8*p)}")
        for e in range(1, 8):
            for p in range(2):
                k(f"v_fmac_f32 {v(vM+p)}, {v(vA+16+8*p+e)}, {v(vA+16+8*p+e)}")
        k(f"s_lshl_b32 s26, s{sW}, 8")
        k(f"s_add_u32 s26, s26, {R2}")
        k(f"v_add_u32 v7, s26, {v(vL4)}")
        k(f"v_permlane32_swap_b32 {v(vM)}, {v(vM+1)}")
        k(f"v_add_f32 {v(vM)}, {v(vM)}, {v(vM+1)}")
        k(f"ds_write_b32 v7, {v(vM)}")
        sDL, sDG, sAB, sST1, sRG = 51, 53, 55, 57, 35
        vB1, vPA, vP1, vDG, vDT = 6, 11, 25, 8, 9
        k(f"s_mul_i32 s{sAB+1}, s{sRB}, 114688")
        k(f"s_add_u32 s{sAB+1}, s{sAB+1}, {HC}")
        k(f"s_mul_i32 s{sDL}, s{sW}, 28672")
        k(f"s_and_b32 s28, s{sW}, 1")
        k("s_mul_i32 s28, s28, 57344")
        k(f"s_lshr_b32 s26, s{sW}, 1")
        k(f"s_lshl_b32 s{sDL+1}, s26, 10")
        k(f"s_add_u32 s{sDL+1}, s{sDL+1}, s28")
        k(f"s_add_u32 s{sDG}, s{sAB+1}, s{sDL}")
        k(f"s_add_u32 s{sDG+1}, s{sAB+1}, s{sDL+1}")
        k(f"s_add_u32 s{sDG}, s{sDG}, s{sROT}")
        k(f"s_add_u32 s{sDG+1}, s{sDG+1}, s{sROT}")
        k(f"v_add_u32 {v(vB1)}, 57344, {v(vL16)}")
        k(f"s_mul_i32 s{sSS}, s{sRT}, 1792")
        k(f"s_add_u32 s{sSS}, s{sSS}, {SSP}")
        k(f"v_add_u32 v7, {R2}, {v(vL4)}")
        k(f"s_mul_i32 s{sHS}, s{sRB}, {4*112}")
        k(f"s_lshl1_add_u32 s{sHS}, s{sFB}, s{sHS}")
        k(f"s_lshl_b32 s{sHS}, s{sHS}, 10")
        k(f"s_add_u32 s{sHS}, s{sHS}, {HP}")
        k(f"v_lshlrev_b32 {v(vPA)}, 12, {v(vG)}")
        k(f"v_lshl_add_u32 {v(vPA)}, {v(vC)}, 4, {v(vPA)}")
        k(f"s_lshl_b32 s{sAB}, s{sRB}, 8")
        k(f"s_mul_i32 s{sHP}, s{sRT}, 224")
        k(f"s_mul_i32 s28, s{sW}, 28")
        k(f"s_add_u32 s{sHP}, s{sHP}, s28")
        k(f"s_lshl_b32 s{sHP}, s{sHP}, 10")
        k(f"s_add_u32 s{sHP}, s{sHP}, {HP}")
        k(f"s_mul_i32 s{sWD}, s{sW}, {448*896}")
        k(f"s_lshl_b32 s28, s{sCT}, 7")
        k(f"s_add_u32 s{sWD}, s{sWD}, s28")
        k(f"s_add_u32 s46, s{sCT}, s{sRT}")
        k(f"s_lshl_b32 s{sRG}, s{sW}, 13")
        k(f"s_add_u32 s{sRG}, s{sRG}, {RNG}")
        k(f"v_and_b32 v12, 1, {v(vG)}")
        k("v_and_b32 v13, 7, v1")
        k("v_lshlrev_b32 v14, 2, v12")
        k("v_xor_b32 v13, v13, v14")
        k("v_lshrrev_b32 v14, 3, v1")
        k("v_mul_u32_u24 v14, 0x380, v14")
        k(f"v_lshl_add_u32 {v(vDG)}, v13, 4, v14")
        k("v_bfe_u32 v13, v1, 2, 2")
        k("v_lshrrev_b32 v14, 5, v1")
        k("v_lshl_add_u32 v14, v14, 2, v13")
        k("v_lshrrev_b32 v13, 1, v13")
        k("v_lshlrev_b32 v13, 6, v13")
        k("v_lshl_add_u32 v13, v14, 7, v13")
        k("v_lshl_add_u32 v13, v12, 5, v13")
        k("v_and_b32 v14, 3, v1")
        k("v_lshl_add_u32 v13, v14, 3, v13")
        k(f"v_add_u32 {v(vDT)}, s{sRG}, v13")
        k(f"v_xor_b32 v26, 64, {v(vDT)}")
        k(f"v_add_u32 v56, s{sDL}, v13")
        k("v_xor_b32 v57, 64, v56")
        poll(0)
        k.stamp()
        uses = [(kp, b) for kp in range(KS) for b in range(4)]
        uses += [(kp, b) for kp in range(KS, 28) for b in (0, 2)]
        uB = len(uses)
        uses += [(kp, b) for kp in range(KS, 28) for b in (1, 3)]
        last_use = {kp: max(u for u, x in enumerate(uses) if x[0] == kp) for kp in range(28)}
        npair = (28 - KS) // 2
        Dm = []

        def dma():
            i = len(Dm)
            if i < KS:
                sel, off = 0, i * 1024
            else:
                sel, off = 1, ((i - KS) // npair) * 28672 + (KS + 2 * ((i - KS) % npair)) * 1024
            k(f"s_add_u32 m0, s{sDL+sel}, {off}")
            if ROTW and off % 28672 >= 4096:
                k(f"s_cmp_ge_u32 s{sROT}, {28672 - off % 28672}")
                k(f"s_cselect_b32 s28, {off - 28672 & 0xffffffff}, {off}".replace(f", {off}", ", s26") if False else f"s_cselect_b32 s28, 28672, 0")
                k(f"s_sub_u32 s28, s{sDG+sel}, s28")
                k(f"s_add_u32 s28, s28, {off}")
            else:
                k(f"s_add_u32 s28, s{sDG+sel}, {off}")
            Dm.append(vm.op(f"buffer_load_dwordx4 {v(vL16)}, s[8:11], s28 offen{LD} lds"))

        wd_regs = [(0, lambda o, n, i=i: a(224 + 8 * i + o, n)) for i in range(4)]
        wd_regs += [(0, lambda o, n, i=i: v(64 + 8 * i + o, n)) for i in range(8)]
        wd_regs += [(last_use[i] + 1, lambda o, n, i=i: a(8 * i + o, n)) for i in range(16)]
        n2 = min(KS, 8) // 2 * 2 if RING2 else 0
        free2 = 4 * KS + 2
        assert 4 * KS <= 56
        wdd, wdt = [], []
        shadow = [0]

        def quarter(dst, g, size, base):
            k(f"s_add_u32 s{dst}, s{46 if ROTD == 2 else sCT}, {g}")
            k(f"s_and_b32 s{dst}, s{dst}, 3")
            k(f"s_mul_i32 s{dst}, s{dst}, {size}")
            k(f"s_add_u32 s{dst}, s{dst}, s{base}")

        slots = [None] * (8 + n2)
        slot_of = []

        def wd_dma(now):
            n = len(wdd)
            if n == 56:
                return False
            free = [i for i, j in enumerate(slots) if (i < 8 or now >= free2) and
                    (j is None or (len(wdt) > 2 * j + 1 and wdt[2 * j + 1] < lg.done))]
            if not free:
                return False
            slots[free[0]] = n
            slot_of.append(free[0])
            k(f"s_add_u32 m0, s{sRG if free[0] < 8 else sDL}, {(free[0] % 8) * 1024}")
            if ROTD and n % 14 == 0:
                quarter(44, n // 14, 112 * 896, sWD)
            elif n:
                k(f"s_add_u32 s{44 if ROTD else sWD}, s{44 if ROTD else sWD}, {8*896}")
            wdd.append((vm.op(f"buffer_load_dwordx4 {v(vDG)}, s[{sA}:{sA+3}], s{44 if ROTD else sWD} offen lds"), max(now + WLAT, shadow[0])))
            return True

        def wd_tr(now, force=False):
            n = len(wdt)
            kp, u_, db = n // 4, (n >> 1) & 1, n & 1
            if n == 112 or len(wdd) <= 2 * kp + u_ or (not force and (wd_regs[kp][0] > now or wdd[2 * kp + u_][1] > now)):
                return False
            vm.wait(wdd[2 * kp + u_][0])
            sl = slot_of[2 * kp + u_]
            wdt.append(lg.op(f"ds_read_b64_tr_b16 {wd_regs[kp][1](4*db+2*u_, 2)}, v{(26 if db else vDT) if sl < 8 else 56 + db} offset:{(sl % 8) * 1024}"))
            return True

        aQ = 128
        hl = []

        def hload():
            n = len(hl)
            p, kp = n // 28, n % 28
            if p == 1:
                if kp == 0:
                    k(f"s_cmp_eq_u32 s{sHALF}, 0")
                    k("s_movk_i32 s58, 1024")
                    k(f"s_cselect_b32 s{sST1}, 0x4000, s58")
                    k(f"s_cselect_b32 s59, s{sAB}, s{sAB+1}")
                    k("s_cselect_b64 vcc, -1, 0")
                    k(f"s_mul_i32 s58, s{sW}, 28")
                    k(f"s_mul_i32 s58, s58, s{sST1}")
                    k("s_add_u32 s59, s59, s58")
                    k(f"v_cndmask_b32 {v(vP1)}, {v(vL16)}, {v(vPA)}, vcc")
                    k(f"s_mul_i32 s58, s{sST1}, 7")
                if ROTD and kp % 7 == 0:
                    quarter(45, kp // 7, "s58", 59)
                elif kp:
                    k(f"s_add_u32 s{45 if ROTD else 59}, s{45 if ROTD else 59}, s{sST1}")
                hl.append(vm.op(f"buffer_load_dwordx4 {a(aQ+4*(n%24),4)}, {v(vP1)}, s[8:11], s{45 if ROTD else 59} offen{LD}"))
                return
            if ROTD:
                if kp % 7 == 0:
                    quarter(45, kp // 7, 7168, sHP)
                if kp % 7 == 4:
                    k("s_add_u32 s45, s45, 4096")
                hl.append(vm.op(f"buffer_load_dwordx4 {a(aQ+4*(n%24),4)}, {v(vL16)}, s[8:11], s45 offen offset:{(kp%7%4)*1024}{LD}"))
                return
            hl.append(vm.op(f"buffer_load_dwordx4 {a(aQ+4*(n%24),4)}, {v(vL16)}, s[8:11], s{sHP} offen offset:{(kp%4)*1024}{LD}"))
            if kp % 4 == 3:
                k(f"s_add_u32 s{sHP}, s{sHP}, 4096")

        vF, vAcc, LOOK = 32, 128, 4
        accreg = {0: vAcc, 2: vAcc + 32, 1: vAcc + 64, 3: vAcc + 96}
        fr = {}

        def rd4(u):
            kp, b = uses[u]
            fr[u] = lg.op(f"ds_read_b128 {v(vF+4*(u%6),4)}, {v(vL16 if b < 2 else vB1)} offset:{(b&1)*28672+kp*1024}")

        last_st = [None]
        clock = [0]

        def hp_store(b, u):
            vo, off, pol = vL16, u * 1024, " sc1" if MB else mode
            if b == 1:
                vo, off = vPA, 0
                k(f"s_lshl_b32 s38, s{sFB}, 15\ns_add_u32 s38, s38, s{sAB}" if u == 0 else "s_add_u32 s38, s38, 16384")
            elif b == 3:
                if u == 0:
                    k(f"s_lshl_b32 s38, s{sFB}, 11\ns_add_u32 s38, s38, s{sAB+1}")
            else:
                pol = " sc1" if MA else mode
                if u == 0:
                    k(f"s_add_u32 s38, s{sHS}, {b*112*1024}")
            last_st[0] = vm.op(f"buffer_store_dwordx4 {v(accreg[b]+4*u,4)}, {v(vo)}, s[8:11], s38 offen offset:{off}{pol}")
            shadow[0] = clock[0] + (20 if pol else 11)

        def epilogue(ps):
            items = [(b, r) for b in (ps, ps + 2) for r in range(8)]
            out = []
            for i in range(len(items) + 1):
                grp = []
                if i < len(items):
                    b, r = items[i]
                    g_, u_ = accreg[b], accreg[b] + 16
                    grp += [f"v_mul_f32 {v(u_+2*r)}, {v(g_+2*r)}, {v(u_+2*r)}",
                            f"v_mul_f32 {v(u_+2*r+1)}, {v(g_+2*r+1)}, {v(u_+2*r+1)}"]
                if i > 0:
                    b, r = items[i - 1]
                    grp.append(f"v_cvt_pk_bf16_f32 {v(accreg[b]+r)}, {v(accreg[b]+16+2*r)}, {v(accreg[b]+17+2*r)}")
                out.append(grp)
                if i > 0 and items[i - 1][1] % 4 == 3:
                    out.append(lambda b=items[i - 1][0], u=items[i - 1][1] // 4: hp_store(b, u))
            return out

        chunks = eval(os.environ.get("CHUNKS", "{0: 2, 3: 6, 7: 15, 16: 27}"))
        for _ in range(NDMA0):
            dma()
        k("s_waitcnt lgkmcnt(0)")
        vm.wait(Dm[chunks[0]])
        k("s_barrier")
        k.stamp()
        for u in range(LOOK):
            rd4(u)
        epi = epilogue(0)
        checked = False
        for u in range(112):
            kp, b = uses[u]
            clock[0] = u
            if (u + LOOK) % 4 == 0 and (u + LOOK) // 4 in chunks:
                vm.wait(Dm[chunks[(u + LOOK) // 4]])
                k("s_barrier")
            if n2 and u == free2:
                k("s_barrier")
            if u == uB + DRAIN_A:
                assert not epi
                vm.wait(last_st[0])
                arrive(256)
            if u == uB + POLL_A:
                markA = vm.op(pload(256))
            if u == uB + CHECK_A:
                poll(256, markA)
                checked = True
            if u == 1:
                lg.op("ds_read2st64_b32 v[12:13], v7 offset1:1")
                ssr = lg.op("ds_read2st64_b32 v[14:15], v7 offset0:2 offset1:3")
                k(f"s_lshl_b32 s26, s{sCT}, 8")
                k(f"s_add_u32 s26, s26, s{sSS}")
            if u == 5:
                lg.wait(ssr)
                k("v_add_f32 v12, v12, v13")
                k("v_add_f32 v14, v14, v15")
                k("v_add_f32 v12, v12, v14")
                vm.op(f"buffer_store_dword v12, {v(vL4)}, s[8:11], s26 offen{mode}")
            if u % 2 == 0:
                lg.wait(fr[u + 1])
            busy = u >= uB + 1 and bool(epi)
            for m in range(2):
                acc = accreg[b] + 16 * m
                k(f"v_mfma_f32_32x32x16_bf16 {v(acc,16)}, {a(8*kp+4*m,4)}, {v(vF+4*(u%6),4)}, {'0' if kp == 0 else v(acc,16)}")
                if m == 0:
                    if u + LOOK < 112:
                        rd4(u + LOOK)
                    wd_tr(u)

                    def memop():
                        if len(Dm) < 16 and u % DRATE != DRATE - 1:
                            dma()
                        elif checked and len(hl) < RING and last_use[16 + len(hl) // 2] < u:
                            hload()
                        elif not (u % 3 != 2 and wd_dma(u)):
                            dma() if len(Dm) < 28 else wd_dma(u)

                    if busy:
                        put(epi)
                    n0 = vm.n
                    held = capture(memop)
                    k("\n".join(held[:-1]))
                    vm.n, n1 = n0, vm.n
                else:
                    k("\n".join(held[-1:]))
                    vm.n = n1
                    if busy:
                        put(epi)
                    else:
                        wd_tr(u)
                if os.environ.get("TL") and m == 1 and not mode:
                    print(u, len(Dm), len(wdd), len(wdt), file=sys.stderr)
            if u in P4ST:
                k.stamp(1)
            if u == uB - 1 or u == 111:
                k.stamp()
        print("after P4: ring loads", len(wdd), "transposed reads", len(wdt), "h loads", len(hl), file=sys.stderr)
        vRW, vRR, vR2, vHR, vSP = 12, 20, 22, 24, 32
        vAc5, vT5 = 128, 192
        fill = epilogue(1)
        clock[0] = -999
        if not checked:
            assert EPI_B0 <= 14
            put(fill, EPI_B0)
            poll(256, markA)
        while len(fill) > EPIB:
            if len(hl) < 8:
                hload()
            put(fill, 2)
        rest_epi = fill
        fill = [["v_and_b32 v6, 31, v1", "v_lshrrev_b32 v7, 5, v1", "v_and_b32 v27, 7, v1", "v_xor_b32 v7, v7, v27"],
                [f"s_lshl_b32 s26, s{sW}, 13", "v_lshlrev_b32 v7, 4, v7", "v_lshl_add_u32 v7, v6, 8, v7", f"v_add_u32 {v(vRW)}, s26, v7"],
                [f"v_xor_b32 {v(vRW+i)}, {32*i}, {v(vRW)}" for i in range(1, 5)],
                [f"v_xor_b32 {v(vRW+i)}, {32*i}, {v(vRW)}" for i in range(5, 8)],
                ["v_lshrrev_b32 v6, 3, v1", f"s_and_b32 s26, s{sW}, 1", "s_lshl_b32 s26, s26, 2", f"v_xor_b32 v7, v27, {v(vG)}",
                 "v_xor_b32 v7, s26, v7"],
                ["v_lshlrev_b32 v7, 1, v7", "v_xor_b32 v7, v7, v6", f"s_lshl_b32 s26, s{sW}, 11", "v_lshlrev_b32 v7, 4, v7"],
                ["v_lshl_add_u32 v7, v6, 8, v7", f"v_add_u32 {v(vRR)}, s26, v7", f"v_xor_b32 {v(vRR+1)}, 16, {v(vRR)}"],
                [f"s_lshl_b32 s26, s{sW}, 10", f"s_add_u32 s26, s26, {XT}", f"v_add_u32 {v(vHR)}, s26, {v(vL16)}",
                 f"s_lshl_b32 s26, s{sW}, 5", "v_lshl_add_u32 v28, v6, 2, s26"]]
        ssl = []

        def ssload(i):
            for j in range(2 * i, min(2 * i + 2, 7)):
                ssl.append(vm.op(f"buffer_load_dword {v(vSP+j)}, {v(vL4)}, s[8:11], s{sSS} offen offset:{256*j}{LD}"))

        fill = rest_epi + fill + [lambda i=i: ssload(i) for i in range(4)]
        r2calc = [[f"v_add_f32 {v(vSP)}, {v(vSP)}, {v(vSP+1)}", f"v_add_f32 {v(vSP+2)}, {v(vSP+2)}, {v(vSP+3)}",
                   f"v_add_f32 {v(vSP+4)}, {v(vSP+4)}, {v(vSP+5)}", f"v_add_f32 {v(vSP)}, {v(vSP)}, {v(vSP+6)}"],
                  [f"v_add_f32 {v(vSP+2)}, {v(vSP+2)}, {v(vSP+4)}", f"v_mov_b32 {v(vSP+1)}, {f2u(EPS)}",
                   f"v_add_f32 {v(vSP)}, {v(vSP)}, {v(vSP+2)}", f"v_fmac_f32 {v(vSP+1)}, {f2u(1.0/448)}, {v(vSP)}"],
                  [f"v_rcp_f32 {v(vSP)}, {v(vSP+1)}", "v_add_u32 v29, 128, v28"],
                  [f"ds_bpermute_b32 {v(vR2)}, v28, {v(vSP)}", f"ds_bpermute_b32 {v(vR2+1)}, v29, {v(vSP)}"]]

        def red_write(p):
            q_ = [[f"ds_write_b128 {v(vRW+i)}, {v(vAc5+32*p+4*i,4)} offset:{p*32768}"] for i in range(8)]
            return q_ + [[f"ds_read_b128 {v(vT5+32,4)}, {v(vHR)} offset:{p*4096}"]]

        def red_read(p):
            q_ = [["s_waitcnt lgkmcnt(0)", "s_barrier"] +
                  [f"ds_read_b128 {v(vT5+4*z,4)}, {v(vRR+z)} offset:{p*32768}" for z in range(2)]]
            for j in range(1, 4):
                q_.append([f"ds_read_b128 {v(vT5+8*j+4*z,4)}, {v(vRR+z)} offset:{p*32768+j*8192}" for z in range(2)])
            for h2 in range(2):
                q_.append([t_ for q in (2 * h2, 2 * h2 + 1) for t_ in
                           (f"v_lshlrev_b32 {v(vT5+36+2*q)}, 16, {v(vT5+32+q)}",
                            f"v_and_b32 {v(vT5+37+2*q)}, 0xffff0000, {v(vT5+32+q)}")])
            for j, (d_, s_) in enumerate(((0, 8), (16, 24), (0, 16))):
                for h2 in range(2):
                    q_.append(([f"s_waitcnt lgkmcnt({4 if j == 0 else 0})"] if h2 == 0 and j < 2 else []) +
                              ([f"v_add_f32 {v(vT5+d_+r)}, {v(vT5+d_+r)}, {v(vT5+s_+r)}" for r in range(4 * h2, 4 * h2 + 4)] if p == 0 else
                               [f"v_pk_add_f32 {v(vT5+d_+r,2)}, {v(vT5+d_+r,2)}, {v(vT5+s_+r,2)}" for r in range(4 * h2, 4 * h2 + 4, 2)]))
            for h2 in range(2):
                q_.append([f"v_fmac_f32 {v(vT5+36+r)}, {v(vT5+r)}, {v(vR2+p)}" for r in range(4 * h2, 4 * h2 + 4)] if p == 0 else
                          [f"v_pk_fma_f32 {v(vT5+36+r,2)}, {v(vT5+r,2)}, {v(vR2,2)}, {v(vT5+36+r,2)} op_sel:[0,1,0]" for r in range(4 * h2, 4 * h2 + 4, 2)])
            q_.append([f"v_cvt_pk_bf16_f32 {v(vT5+8+q)}, {v(vT5+36+2*q)}, {v(vT5+37+2*q)}" for q in range(4)])
            q_.append(lambda: vm.op(f"buffer_store_dwordx4 {v(vT5+8,4)}, {v(vXO)}, s[16:19], s{sXO+p} offen{SCO}"))
            return q_

        if P5ST:
            k.stamp(1)
        def mf5(n, dl):
            acc = vAc5 + 32 * (n // 28) + 16 * dl
            k(f"v_mfma_f32_32x32x16_bf16 {v(acc,16)}, {wd_regs[n % 28][1](4*dl, 4)}, {a(aQ+4*(n%24),4)}, {'0' if n % 28 == 0 else v(acc,16)}")

        for n in range(56 - TAILR):
            p, kp = n // 28, n % 28
            now = 112 + n
            if n == DRAIN_B:
                assert len(wdt) == 112 or not n2
                lg.wait(wdt[-1])
                vm.wait(last_st[0])
                arrive(512)
            if n == POLL_B:
                markB = vm.op(pload(512))
            if n == CHECK_B:
                k.stamp()
                poll(512, markB)
            if n == 22:
                assert len(wdt) == 112
                vm.wait(ssl[6])
                fill += r2calc
            if n == LATE and F_LATE in WBL:
                k(f"s_add_u32 s26, s{sFI}, {F_LATE}")
                vm.op(f"buffer_store_dword {v(vOne)}, off, s[8:11], s26{mode}")
            if n == 29 and not BLK:
                assert not fill
                fill = red_write(0)
            if n == 28 and BLK:
                assert not fill
                fill = red_write(0)
                while fill:
                    if len(hl) < 28 + RING1:
                        hload()
                    put(fill, 2)
            if n == RED0:
                assert not fill
                fill = red_read(0)
            if p == 0:
                while len(wdt) < 4 * kp + 4:
                    assert wd_tr(now, True)
                lg.wait(wdt[4 * kp + 3])
            vm.wait(hl[n])
            for dl in range(2):
                acc = vAc5 + 32 * p + 16 * dl
                k(f"v_mfma_f32_32x32x16_bf16 {v(acc,16)}, {wd_regs[kp][1](4*dl, 4)}, {a(aQ+4*(n%24),4)}, {'0' if kp == 0 else v(acc,16)}")
                if len(wdt) < 112:
                    if len(wdt) >= 8:
                        lg.wait(wdt[-8])
                    wd_tr(now)
                    if dl == 1:
                        wd_dma(now)
                if dl == 0:
                    if len(hl) < (28 if n < CHECK_B else 56) and len(hl) < n + 24:
                        hload()
                    else:
                        put(fill)
                else:
                    put(fill, 2 if n < (EPIB + 1) // 2 + 2 * (EPIB > 15) else 1)
            if n in P5ST:
                k.stamp(1)
        put(fill, 99)
        fill = red_write(1)
        fill.insert(0, fill.pop())
        for n in range(56 - TAILR, 56):
            vm.wait(hl[n])
            mf5(n, 0)
        put(fill)
        for i, n in enumerate(range(56 - TAILR, 56)):
            mf5(n, 1)
            if i >= 1:
                put(fill, 2 if i == TAILR - 1 else 1)
        k.stamp()
        put(fill, 99)
        put(red_read(1), 99)
        if k.prof:
            k("s_waitcnt vmcnt(0)")
        if DBGT:
            k.stamp(-1)
            k("s_waitcnt lgkmcnt(0)")
            k("s_mov_b64 exec, 1")
            k("v_mov_b32 v1, 0")
            for i in range(1, k._nst):
                k(f"s_sub_u32 s26, s{64+2*i}, s{62+2*i}")
                k("v_mov_b32 v0, s26")
                k(f"global_atomic_add v1, v0, s[{sDBG}:{sDBG+1}] offset:{4*(i-1)} sc1")
        else:
            k.stamp_flush(6, PROF, sW)
        k("s_endpgm")

    k.label(FAST)
    rest("")

    k.label(SPARE)
    vm.n = vm.done = 0
    k._nst = min(1, getattr(k, "_nst", 0))
    sE = 21
    k(f"s_sub_u32 s{sE}, s2, 224")
    k(f"v_lshlrev_b32 {v(vL16)}, 4, v1")
    k("v_lshlrev_b32 v6, 7, v1")
    k("s_waitcnt lgkmcnt(0)")
    k.srd(8, 6, WS_BYTES)
    NZ = k.lab("nz")
    k(f"s_cmp_lt_u32 s{sE}, 24")
    k(f"s_cbranch_scc1 {NZ}")
    for j in range(4):
        k(f"v_mov_b32 v{108+j}, 0")
    k(f"s_sub_u32 s34, s{sE}, 24")
    k(f"s_lshl2_add_u32 s33, s34, s{sW}")
    k("s_lshl_b32 s33, s33, 11")
    k(f"s_add_u32 s33, s33, {FL}")
    k(f"buffer_store_dwordx4 v[108:111], {v(vL16)}, s[8:11], s33 offen sc1")
    k(f"buffer_store_dwordx4 v[108:111], {v(vL16)}, s[8:11], s33 offen offset:1024 sc1")
    k("v_mov_b32 v2, 1")
    k("s_lshl_b32 s34, s34, 2")
    k("v_mov_b32 v5, s34")
    k("s_waitcnt vmcnt(0)")
    k("s_barrier")
    wave0(f"global_store_dword v5, v2, s[{sDBG}:{sDBG+1}]{ZOFF} sc1", 1)
    k.label(NZ)
    k.stamp(-1)
    k(f"s_lshr_b32 s22, s{sE}, 3")
    k(f"s_lshl2_add_u32 s22, s22, s{sW}")
    k("s_lshl_b32 s23, s22, 13")
    k.srd(12, 52, WGB)
    k.srd(16, 54, WGB)
    k.srd(24, 56, WGB)
    k.srd(28, 58, XB)
    n = [0]

    def touch(srd, soff, vo=6):
        k(f"buffer_load_dword v{8 + n[0] % 48}, v{vo}, s[{srd}:{srd+3}], s{soff} offen ; alt")
        n[0] += 1

    for job in SP_LIST:
        if job == "G":
            for off in range(SP_D0 * 3584, SP_D1 * 3584, 16 * 8192):
                k(f"s_add_u32 s40, s23, {off}")
                touch(12, 40)
                touch(16, 40)
        if job == "X":
            nt = 2 * len(range(SP_D0 * 3584, WGB, 16 * 8192))
            k("s_and_b32 s42, s2, 7")
            k(f"s_mov_b32 s46, {WGB}")
            k("s_mov_b32 s47, 0x20000")
            for i in range(-(-nt // WIN) * WIN):
                k(f"s_add_u32 s40, s42, {i}")
                k(f"s_and_b32 s40, s40, {WIN - 1}")
                k(f"s_add_u32 s40, s40, {i // WIN * WIN}")
                k("s_bitcmp1_b32 s40, 0")
                k("s_cselect_b32 s44, s16, s12")
                k("s_cselect_b32 s45, s17, s13")
                k("s_lshr_b32 s40, s40, 1")
                k("s_lshl_b32 s40, s40, 17")
                k("s_add_u32 s40, s40, s23")
                k(f"s_add_u32 s40, s40, {SP_D0*3584}")
                touch(44, 40)
        if job == "H":
            k("v_lshrrev_b32 v7, 4, v1")
            k("v_mul_u32_u24 v7, 0xe00, v7")
            k("v_and_b32 v5, 15, v1")
            k("v_min_u32 v5, 13, v5")
            k("v_lshl_add_u32 v7, v5, 7, v7")
            k("s_and_b32 s41, s2, 1")
            k("s_mul_i32 s41, s41, 1792")
            k(f"s_mul_i32 s40, s22, {4*3584}")
            k("s_add_u32 s41, s41, s40")
            for d0 in range(SP_D0, 448, 64):
                k(f"s_add_u32 s40, s41, {d0*3584}")
                touch(12, 40, 7)
                touch(16, 40, 7)
        if job == "d":
            k("s_and_b32 s40, s2, 7")
            k(f"s_mul_i32 s40, s40, {3*8*8192 if ROTS else 0}")
            k("s_add_u32 s40, s40, s23")
            for off in range(0, WGB, 16 * 8192):
                touch(24, 40)
                k(f"s_add_u32 s40, s40, {16*8192}")
                k(f"s_cmp_ge_u32 s40, {13*16*8192}")
                k(f"s_cselect_b32 s41, {13*16*8192}, 0")
                k("s_sub_u32 s40, s40, s41")
        if job == "R":
            k("s_and_b32 s42, s2, 7")
            k(f"s_min_u32 s42, s42, {6 if ROTW else 0}")
            k("s_lshl_b32 s42, s42, 2")
            k("s_min_u32 s43, s22, 13")
            k("s_cmp_ge_u32 s43, 7")
            k("s_cselect_b32 s44, s16, s12")
            k("s_cselect_b32 s45, s17, s13")
            k("s_cselect_b32 s41, 7, 0")
            k("s_sub_u32 s43, s43, s41")
            k("s_lshl_b32 s43, s43, 13")
            k(f"s_mov_b32 s46, {WGB}")
            k("s_mov_b32 s47, 0x20000")
            for kp in range(SP_K, 28):
                k(f"s_add_u32 s40, s42, {kp}")
                k("s_cmp_ge_u32 s40, 28")
                k("s_cselect_b32 s41, 28, 0")
                k("s_sub_u32 s40, s40, s41")
                k("s_mul_i32 s40, s40, 57344")
                k("s_add_u32 s40, s40, s43")
                touch(44, 40)
        if job == "e":
            for off in range(0, 192 * 896, 16 * 8192):
                for q in range(4):
                    k(f"s_add_u32 s40, s23, {off}")
                    k(f"s_min_u32 s40, s40, {192*896 - 8192}")
                    k(f"s_add_u32 s40, s40, {q*448*896}")
                    touch(24, 40)
        if job == "h":
            k("s_and_b32 s41, s2, 7")
            k(f"s_mul_i32 s41, s41, {8*112*1024}")
            k(f"s_add_u32 s41, s41, {HP}")
            k("s_min_u32 s42, s22, 13")
            k("s_lshl_b32 s42, s42, 13")
            k("s_add_u32 s41, s41, s42")
            for blk in range(4):
                touch(8, 41)
                k(f"s_add_u32 s41, s41, {2*112*1024}")
        if job in "aw":
            k(f"s_lshl2_add_u32 s40, s{sE}, s{sW}")
            k("s_lshl_b32 s40, s40, 13")
            k(f"s_add_u32 s40, s40, {AT if job == 'a' else WT}")
            touch(8, 40)
            k("s_add_u32 s40, s40, 0x100000")
            k(f"s_min_u32 s40, s40, {(AT if job == 'a' else WT) + 223*8192}")
            touch(8, 40)
        if job in "AB":
            k("s_and_b32 s41, s2, 7")
            if job == "A":
                k("v_lshrrev_b32 v7, 2, v1")
                k("v_lshlrev_b32 v7, 12, v7")
                k("v_and_b32 v5, 3, v1")
                k("v_lshl_add_u32 v7, v5, 7, v7")
                k("s_lshl_b32 s41, s41, 9")
            else:
                k("v_lshrrev_b32 v7, 1, v1")
                k("v_lshlrev_b32 v7, 11, v7")
                k("v_and_b32 v5, 1, v1")
                k("v_lshl_add_u32 v7, v5, 7, v7")
                k("s_lshl_b32 s41, s41, 8")
                k(f"s_add_u32 s41, s41, {WT}")
            for i in range(2):
                k(f"s_add_u32 s40, s22, {16*i}")
                k("s_min_u32 s40, s40, 27")
                k("s_lshl_b32 s40, s40, 16")
                k("s_add_u32 s40, s40, s41")
                touch(8, 40, 7)
        if job == "o":
            k(f"s_lshl2_add_u32 s40, s{sE}, s{sW}")
            k("s_lshl_b32 s40, s40, 13")
            touch(28, 40)
            k("s_add_u32 s40, s40, 0x100000")
            touch(28, 40)
    if k.prof:
        k("s_waitcnt vmcnt(0)")
        k.stamp_flush(6, PROF, sW, 2)
    if WBL:
        k("s_cmp_lg_u32 s22, 0")
        k(f"s_cbranch_scc1 {END}")
        k("v_lshlrev_b32 v3, 2, v1")
        k("v_min_u32 v7, 28, v3")
        vm.n = vm.done = 0
        spin(f"global_load_dword v112, v7, s[{sDBG}:{sDBG+1}]{ZOFF} sc1", "v_cmp_eq_u32 vcc, 0, v112")
        k("v_min_u32 v3, 220, v3")
        k("s_and_b32 s22, s2, 7")
        k("s_lshl_b32 s22, s22, 11")
        k(f"s_add_u32 s22, s22, {FL}")
        k("s_movk_i32 s23, 1024")
        for off in WBL:
            lp = k.lab("wl")
            if off == F_LATE:
                k(f"s_add_u32 s22, s22, {F_LATE}")
                off = 0
            k.label(lp)
            k(f"buffer_load_dword v4, v3, s[8:11], s22 offen offset:{off} sc1")
            k(f"buffer_load_dword v5, v3, s[8:11], s22 offen offset:{off+1024} sc1")
            k("s_sub_u32 s23, s23, 1")
            k("s_waitcnt vmcnt(0)")
            k("s_cmp_eq_u32 s23, 0")
            k(f"s_cbranch_scc1 {END}")
            k("v_and_b32 v4, v4, v5")
            k("v_cmp_eq_u32 vcc, 0, v4")
            k("s_nop 0")
            k(f"s_cbranch_vccnz {lp}")
            k("buffer_wbl2 sc1")
            k("s_waitcnt vmcnt(0)")
    k.label(END)
    k("s_endpgm")
    for o in outline:
        k(o)
    del outline[:]
    k.label(SLOW)
    rest(" sc1")
    for o in outline:
        k(o)
    return k


def build(k, as_list=False):
    body, desc = k.emit()
    print(k.stats, file=sys.stderr)
    head = ["; Fused preLN + GFNet spectral filter + preLN bilinear GLU in one launch (written with the generator gen/one.py)",
            "; kernarg: 0 A_x, 8 A_w_r, 16 A_w_i, 24 B_x (unused), 32 w_gate, 40 w_up, 48 w_down, 56 out, 64 debug, 72 ws",
            "; 224 workgroups run five phases, with hand-offs through d_ws (stores drained, then one word per producer):",
            ";   P1 row statistics + real DFT along D as a GEMM (bins 1..224; bin 0 of a normalised row is zero) + filter transposition",
            ";   P2 one spectral column each: 2048-point FFT as 64 x 32 on the matrix pipe, filter, inverse FFT",
            ";   P3 inverse DFT along D + residual, P4 gate/up GEMM and product, P5 down GEMM, 1/(var+eps), residual",
            "; The row-block hand-offs use plain stores only after a run-time census shows the whole group on one XCD,",
            "; otherwise a second copy of the code uses write-through stores.  32 more workgroups zero the hand-off words",
            "; (announced in d_debug) and read weights and code ahead into their XCD's L2.",
            f"; @launch {'kernel=' + k.name + ' ' if as_list else ''}grid=(256,1,1) block=(256,1,1) lds={LDS}",
            '.amdgcn_target "amdgcn-amd-amdhsa--gfx950"', ".text"]
    return "\n".join(head + [body, '.section .rodata,"a"', ".p2align 6", desc]) + "\n"


if __name__ == "__main__":
    if "--prof" in sys.argv:
        Kern.prof = True
        sys.argv.remove("--prof")
    path = sys.argv[1] if len(sys.argv) > 1 else "sequential_preLN__spectral_gfnet__glu_gated_bilinear__prompt.s"
    open(path, "w").write(build(gen(), as_list=len(sys.argv) > 1))
```

```python
import os
import struct
import sys
from asmlib import Kern, v, a

NAME = "sequential_preLN__spectral_gfnet__glu_gated_bilinear__prompt_kernel"
S, D, F = 2048, 448, 1792
AT = BT = 0x000000
WT = HC = 0x200000
HP = 0x400000
M1 = 0xB00000
SSP = 0xB02000
FL = 0xB10000
WS_BYTES = 0xB20000
F_LATE, F_FB, F_P1, F_SP = 16384, 32768, 40960, 45056
PROF = 0x1800000
XB, WRB, WGB = S * D * 2, S * 225 * 2, D * F * 2
EPS = 1e-5
STG, XT, R2, RNG = 57344, 114688, 122880, 123904
LDS = RNG + 32768
SPIN_MAX = 1 << 18

E = lambda n, d: int(os.environ.get(n, d))
KS = E("KS", 4)
DRAIN_A, POLL_A, CHECK_A = E("DRAIN_A", 30), E("POLL_A", 38), E("CHECK_A", 42)
DRAIN_B, POLL_B, CHECK_B = E("DRAIN_B", 8), E("POLL_B", 13), E("CHECK_B", 17)
EPI_B0, RING, RING1, RED0, LATE = E("EPI_B0", 10), E("RING", 12), E("RING1", 8), E("RED0", 38), E("LATE", 44)
MA, NDMA0, WLAT = E("MA", 1), E("NDMA0", 7), E("WLAT", 10)
NP = [int(x) for x in os.environ.get("NP", "0,6,10").split(",")]
NS = [sum(NP)] + [int(x) for x in os.environ.get("NS", "6,6,8,12,8").split(",")]
WBL = eval(os.environ.get("WBL", "(F_LATE,)"))
SP_LIST = os.environ.get("SP_LIST", "cGd")
SP_D0, SP_K = E("SP_D0", 64), E("SP_K", 18)
TALL, TD, ROTW, ROTS = E("TALL", 0), E("TD", 0), E("ROTW", 0), E("ROTS", 1)
ROTD = E("ROTD", 1)
SCO = os.environ.get("SCO", " sc1")
TPM, TPS, PIPE = E("TPM", 0), E("TPS", 0), E("PIPE", 9)
DRATE = E("DRATE", 2)
TW, T1 = E("TW", 0), E("T1", 0)
SPLIT3, WFLAG = E("SPLIT3", 1), E("WFLAG", 1)
MAPB = E("MAPB", 0)
RING2 = E("RING2", 1)
ZFIRST = E("ZFIRST", 1)
SPS = os.environ.get("SPS", " sc1")
FINE = E("FINE", 0)
LD = os.environ.get("LD", " sc1")
WIN = E("WIN", 8)
SP_D1 = E("SP_D1", 350)
EPIB = E("EPIB", 0)
TAILR = E("TAILR", 0)
MB = E("MB", 0)
DBGT = E("DBGT", 0)
ZOFF = " offset:64" if DBGT else ""
SFIRST = E("SFIRST", 0)
NREP = E("NREP", 8)
BLK = E("BLK", 0)
WFE = E("WFE", 0)
UNP = E("UNP", 1)
P4ST = eval(os.environ.get("P4ST", "()"))
P5ST = eval(os.environ.get("P5ST", "()"))
NA = [int(x) for x in os.environ.get("NA", "0,0").split(",")]
assert sum(NS) == 56 and NS[0] <= 22 and sum(NS[1:4]) <= 22 and sum(NS[4:]) <= 22


def f2u(x):
    return "0x%08x" % struct.unpack("<I", struct.pack("<f", x))[0]


class Cnt:
    def __init__(self, k, name, lim):
        self.k, self.name, self.lim, self.n, self.done = k, name, lim, 0, 0

    def op(self, text):
        self.k(text)
        self.n += 1
        return self.n - 1

    def wait(self, idx):
        if idx < self.done:
            return
        c = min(self.n - idx - 1, self.lim)
        self.k(f"s_waitcnt {self.name}({c})")
        self.done = self.n - c

    def all(self):
        self.wait(self.n - 1)


def cmul8(k, y, x, c, sn, sign):
    neg = " neg_lo:[1,0,0] neg_hi:[1,0,0]"
    for e in range(0, 8, 2):
        k(f"v_pk_mul_f32 {v(y+e,2)}, {v(x+e,2)}, {v(c+e,2)}")
        k(f"v_pk_mul_f32 {v(y+8+e,2)}, {v(x+8+e,2)}, {v(c+e,2)}")
    for e in range(0, 8, 2):
        k(f"v_pk_fma_f32 {v(y+e,2)}, {v(x+8+e,2)}, {v(sn+e,2)}, {v(y+e,2)}" + (neg if sign > 0 else ""))
        k(f"v_pk_fma_f32 {v(y+8+e,2)}, {v(x+e,2)}, {v(sn+e,2)}, {v(y+8+e,2)}" + ("" if sign > 0 else neg))


def gen():
    k = Kern(NAME, 0, 0)
    vm = Cnt(k, "vmcnt", 63)
    END, SPARE = k.lab("end"), k.lab("spare")
    sW, sRB, sCT, sHALF, sRT, sFB = 20, 21, 22, 23, 24, 25
    sSB, sXO, sWG, sFL, sWD, sHS, sHP, sFI = 29, 30, 32, 33, 34, 36, 37, 39
    sA, sB = 40, 44
    sXC, sSS, sDBG, sROT, sWE = 60, 61, 62, 3, 38
    vL16, vG, vC, vL4, vOne, vLP = 3, 4, 5, 30, 2, 0
    vWG, vWT = 250, 251
    outline = []

    def touch_down(first, srd):
        k(f"s_and_b32 s26, s{sRT}, 3")
        k("s_mul_i32 s26, s26, 7")
        k(f"s_add_u32 s26, s26, s{sW}")
        k(f"s_mul_i32 s26, s26, {64*896}")
        k(f"s_lshl_b32 s27, s{sCT}, 7")
        k("s_add_u32 s26, s26, s27")
        k(f"s_add_u32 s26, s26, {first*64*896 & 0xffffffff}")
        k("v_mul_u32_u24 v244, 0x380, v1")
        return f"buffer_load_dword v{245 + (first > 0)}, v244, s[{srd}:{srd+3}], s26 offen"

    def capture(fn):
        saved, k.lines = k.lines, []
        fn()
        out, k.lines = k.lines, saved
        return out

    def spin(load, test, mark=None):
        loop, done = k.lab("poll"), k.lab("done")
        if mark is None:
            mark = vm.op(load)
        vm.wait(mark)
        k(test)
        k(f"s_mov_b32 s50, {SPIN_MAX}")
        k(f"s_cbranch_vccnz {loop}")
        k.label(done)
        outline.append(f"{loop}:\n{load}\ns_sub_u32 s50, s50, 1\ns_waitcnt vmcnt(0)\ns_cmp_eq_u32 s50, 0\n"
                       f"s_cbranch_scc1 {done}\n{test}\ns_nop 0\ns_cbranch_vccnz {loop}\ns_branch {done}")

    def spin0(load, regs, test, extra=0):
        loop, done, skip = k.lab("pp"), k.lab("pd"), k.lab("ps")
        n = len(regs)
        k(f"s_cmp_lg_u32 s{sW}, 0")
        k(f"s_cbranch_scc1 {skip}")
        k(f"s_mov_b32 s50, {SPIN_MAX}")
        for r in regs[:-1]:
            k(load(r) + " ; alt")
            if PIPE < 9:
                k(f"s_sleep {PIPE}")
        k.label(loop)
        for i in range(n):
            k(load(regs[(i - 1) % n]) + " ; alt")
            k(f"s_waitcnt vmcnt({n - 1})")
            k(test(regs[i]))
            k("s_nop 0")
            k(f"s_cbranch_vccz {done}")
        k("s_sub_u32 s50, s50, 1")
        k("s_cmp_lg_u32 s50, 0")
        k(f"s_cbranch_scc1 {loop}")
        k.label(done)
        k.label(skip)
        if extra:
            k(f"s_waitcnt vmcnt({extra})")
            vm.done = vm.n
        else:
            vm.all()
        k("s_barrier")

    def wave0(lines, mask):
        skip = k.lab("skip")
        k(f"s_cmp_lg_u32 s{sW}, 0")
        k(f"s_cbranch_scc1 {skip}")
        k(f"s_mov_b64 exec, {mask}")
        k(lines)
        k("s_mov_b64 exec, -1")
        k.label(skip)

    k("s_load_dwordx2 s[4:5], s[0:1], 0")
    k("s_load_dwordx4 s[44:47], s[0:1], 8")
    k("s_load_dwordx4 s[52:55], s[0:1], 32")
    k("s_load_dwordx4 s[56:59], s[0:1], 48")
    k(f"s_load_dwordx2 s[{sDBG}:{sDBG+1}], s[0:1], 64")
    k("s_load_dwordx2 s[6:7], s[0:1], 72")
    if "c" in SP_LIST:
        here, noc = k.lab("pc"), k.lab("noc")
        k("s_and_b32 s3, s2, 0xffffffe0")
        k(f"s_cmp_lg_u32 s3, {0 if SFIRST else 224}")
        k(f"s_cbranch_scc1 {noc}")
        k("s_getpc_b64 s[8:9]")
        k.label(here)
        k("s_bfe_u32 s3, s2, 0x20003")
        k("v_lshrrev_b32 v1, 2, v0")
        k("s_lshl_b32 s3, s3, 13")
        k("v_lshl_add_u32 v1, v1, 7, s3")
        k("v_mov_b32 v3, s9")
        k("v_add_co_u32 v2, vcc, s8, v1")
        k("v_addc_co_u32 v3, vcc, 0, v3, vcc")
        k("global_load_dword v113, v[2:3], off ; alt")
        k.label(noc)
    k("s_cmp_ge_u32 s2, 256")
    k(f"s_cbranch_scc1 {END}")
    if SFIRST:
        k("s_add_u32 s2, s2, 224")
        k("s_and_b32 s2, s2, 255")
    k.stamp()
    k("v_lshrrev_b32 v2, 6, v0")
    k("v_and_b32 v1, 63, v0")
    k(f"v_readfirstlane_b32 s{sW}, v2")
    k("s_cmp_ge_u32 s2, 224")
    k(f"s_cbranch_scc1 {SPARE}")
    k("s_lshr_b32 s26, s2, 3")
    k("s_mul_i32 s27, s26, 37")
    k("s_lshr_b32 s27, s27, 8")
    k("s_and_b32 s28, s2, 7")
    k(f"s_lshl2_add_u32 s{sRT}, s28, s27")
    k("s_mul_i32 s28, s27, 7")
    k(f"s_sub_u32 s{sCT}, s26, s28")

    k("v_lshrrev_b32 v4, 5, v1")
    k("v_bfe_u32 v5, v1, 3, 2")
    k("v_lshl_add_u32 v4, v4, 4, v5")
    k("v_mul_u32_u24 v4, 0x7000, v4")
    k("v_lshrrev_b32 v5, 4, v1")
    k("v_and_b32 v6, 7, v1")
    k("v_xor_b32 v6, v6, v5")
    k("v_lshl_add_u32 v2, v6, 4, v4")
    k("v_xor_b32 v3, 64, v2")
    k(f"v_add_u32 v3, {32*32*896}, v3")
    k(f"s_lshl_b32 s26, s{sW}, 7")
    k(f"s_add_u32 s26, s26, s{sRT}")
    k("s_mul_i32 s26, s26, 896")
    k(f"s_lshl_b32 s27, s{sW}, 11")
    vB, vST, vE, vSG, vT, vF, vKK, vOnes, vCS = 8, 9, 9, 17, 19, 28, 27, 152, 156

    def p1_consts():
        k("v_and_b32 v8, 15, v1")
        k(f"s_and_b32 s28, s{sW}, 1")
        k("s_lshl_b32 s28, s28, 4")
        k(f"s_lshl_b32 s29, s{sCT}, 5")
        k("s_add_u32 s28, s28, s29")
        k(f"v_add_u32 {v(vKK)}, s28, v8")
        k("v_lshrrev_b32 v9, 1, v8")
        k("v_xor_b32 v9, v9, v5")
        k("v_lshlrev_b32 v9, 4, v9")
        k("v_lshl_add_u32 v4, v8, 7, v9")
        k(f"v_add_u32 v19, 1, {v(vKK)}")
        k("v_cvt_f32_u32 v20, v19")
        k("v_and_b32 v19, 1, v19")
        k("v_lshlrev_b32 v19, 31, v19")
        k(f"v_or_b32 {v(vSG)}, 1.0, v19")
        for e in range(1, 8):
            k(f"v_mul_f32 {v(vE+e)}, {f2u(e/448.0)}, v20")
        k(f"v_mul_f32 {v(vST)}, {f2u(32.0/448)}, v20")
        k(f"v_fract_f32 {v(vST)}, {v(vST)}")
        k("v_lshlrev_b32 v21, 3, v5")
        k("v_cvt_f32_u32 v21, v21")
        k(f"s_lshr_b32 s30, s{sW}, 1")
        k(f"s_mul_i32 s31, s30, {f2u(0.25)}")
        k(f"v_mov_b32 {v(vB)}, s31")
        k(f"v_fmac_f32 {v(vB)}, v21, {v(vE+1)}")
        k(f"v_fract_f32 {v(vB)}, {v(vB)}")
        if MAPB:
            k(f"s_and_b32 s{sHALF}, s2, 1")
            k(f"s_bfe_u32 s{sRB}, s2, 0x20001")
            k(f"s_and_b32 s35, s{sRT}, 3")
            k(f"s_lshl2_add_u32 s{sRB}, s{sRB}, s35")
        else:
            k(f"s_and_b32 s{sHALF}, s{sRT}, 1")
            k(f"s_lshr_b32 s{sRB}, s{sRT}, 1")
        k(f"s_mul_i32 s{sFB}, s{sHALF}, 7")
        k(f"s_add_u32 s{sFB}, s{sFB}, s{sCT}")
        k(f"s_lshl_b32 s{sWG}, s{sFB}, 8")
        k(f"s_mul_i32 s35, s{sW}, {4*3584}")
        k(f"s_add_u32 s{sWG}, s{sWG}, s35")
        k(f"s_lshl2_add_u32 s{sFB}, s{sFB}, s{sW}")
        k(f"s_add_u32 s{sWE}, s{sWG}, {28*57344}")
        k(f"s_and_b32 s{sROT}, s2, 7")
        k(f"s_min_u32 s{sROT}, s{sROT}, {6 if ROTW else 0}")
        k(f"s_mul_i32 s35, s{sROT}, {4*57344}")
        k(f"s_add_u32 s{sWG}, s{sWG}, s35")
        k(f"s_lshl_b32 s{sROT}, s{sROT}, 12")
        k("v_bfe_u32 v21, v1, 2, 2")
        k("v_xor_b32 v22, v21, v5")
        k("v_and_b32 v23, 3, v1")
        k("v_lshlrev_b32 v22, 6, v22")
        k("v_lshl_add_u32 v22, v23, 4, v22")
        k(f"v_mul_u32_u24 {v(vWG)}, 0xe00, v5")
        k(f"v_add_u32 {v(vWG)}, {v(vWG)}, v22")
        k(f"v_xor_b32 v22, s{sW}, v21")
        k("v_lshlrev_b32 v22, 6, v22")
        k("v_lshl_add_u32 v22, v21, 8, v22")
        k("v_lshl_add_u32 v22, v23, 3, v22")
        k("v_and_b32 v23, 1, v5")
        k("v_lshl_add_u32 v22, v23, 5, v22")
        k("v_lshrrev_b32 v23, 5, v1")
        k("v_lshl_add_u32 v22, v23, 11, v22")
        k(f"v_add_u32 {v(vWT)}, {STG}, v22")
        k(f"v_add_u32 {v(vWT+1)}, {RNG}, v22")
        k(f"s_lshl_b32 s35, s{sW}, 10")
        k("v_xor_b32 v5, 64, v4")
        k("v_add_u32 v6, s27, v4")
        k("v_add_u32 v7, s27, v5")
        for p in range(4):
            k(f"v_mov_b32 {v(vOnes+p)}, 0x3f803f80")
        for t in range(7):
            k(f"v_cos_f32 {v(vT)}, {v(vB)}")
            for e in range(1, 8):
                k(f"v_add_f32 {v(vT+e)}, {v(vB)}, {v(vE+e)}")
            for e in range(1, 8):
                k(f"v_cos_f32 {v(vT+e)}, {v(vT+e)}")
            if t < 6:
                k(f"v_add_f32 {v(vB)}, {v(vB)}, {v(vST)}")
                k(f"v_fract_f32 {v(vB)}, {v(vB)}")
            for p in range(4):
                k(f"v_cvt_pk_bf16_f32 {v(vF+4*t+p)}, {v(vT+2*p)}, {v(vT+2*p+1)}")
            if t > 0:
                k(f"v_mfma_f32_16x16x32_bf16 {v(vCS,4)}, {v(vOnes,4)}, {v(vF+4*t-4,4)}, {'0' if t == 1 else v(vCS,4)}")

    lines = capture(p1_consts)
    per = -(-len(lines) // 14)

    def slot():
        for _ in range(min(per, len(lines))):
            k(lines.pop(0))

    def wf_issue():
        k("s_mov_b32 s8, s46")
        k("s_and_b32 s9, s47, 0xffff")
        k(f"s_mov_b32 s10, {WRB}")
        k("s_mov_b32 s11, 0x20000")
        k("s_and_b32 s45, s45, 0xffff")
        k(f"s_mov_b32 s46, {WRB}")
        k("s_mov_b32 s47, 0x20000")
        k(f"s_and_b32 s50, s{sRT}, 28")
        k(f"s_add_u32 s50, s50, s{sW}")
        k(f"s_and_b32 s36, s{sRT}, 3")
        k("s_lshl2_add_u32 s50, s50, s36")
        k("s_mul_i32 s50, s50, 7200")
        k(f"s_lshl_b32 s36, s{sCT}, 6")
        k("s_add_u32 s50, s50, s36")
        k("s_add_u32 s50, s50, 2")
        k("v_lshrrev_b32 v230, 2, v1")
        k("v_and_b32 v231, 3, v1")
        k("v_mul_u32_u24 v232, 0x1c2, v230")
        k("v_lshl_add_u32 v232, v231, 4, v232")
        vm.op("buffer_load_dwordx4 v[160:163], v232, s[44:47], s50 offen")
        wf_ld = vm.op("buffer_load_dwordx4 v[164:167], v232, s[8:11], s50 offen")
        k("v_lshlrev_b32 v230, 4, v230")
        k("v_lshl_add_u32 v230, v231, 11, v230")
        k(f"s_lshl2_add_u32 s50, s{sW}, {XT}")
        k("v_add_u32 v230, s50, v230")
        return wf_ld

    k("s_waitcnt lgkmcnt(0)")
    k.stamp(1) if FINE == 1 else None
    k.srd(12, 4, XB)
    xs = []
    for i in range(7):
        if i == 0:
            k(f"s_mov_b32 s48, s{sCT}")
        else:
            k("s_add_u32 s48, s48, 1")
            k("s_cmp_eq_u32 s48, 7")
            k("s_cselect_b32 s48, 0, s48")
        k("s_lshl_b32 s49, s48, 7")
        k("s_add_u32 s49, s49, s26")
        k("s_lshl_b32 s51, s48, 13")
        k("s_add_u32 m0, s51, s27")
        vm.op("buffer_load_dwordx4 v2, s[12:15], s49 offen lds")
        slot()
        k("s_add_u32 m0, m0, 1024")
        xs.append(vm.op("buffer_load_dwordx4 v3, s[12:15], s49 offen lds"))
        if WFE and i == WFE - 1:
            wf_ld = wf_issue()
        slot()
    assert not lines
    k.stamp(1) if FINE == 1 else None
    if not WFE:
        wf_ld = wf_issue()
    k.srd(8, 6, WS_BYTES)
    k.srd(sA, 52, WGB)
    k.srd(sB, 54, WGB)
    k.srd(16, 58, XB)
    k("s_mov_b32 s48, s56")
    k("s_mov_b32 s49, s57")
    k(f"v_mfma_f32_16x16x32_bf16 {v(vCS,4)}, {v(vOnes,4)}, {v(vF+24,4)}, {v(vCS,4)}")

    def stg(kp):
        return kp if kp < 11 else kp - 11 if kp < 22 else kp - 22

    sid = []

    def sload(cnt=1):
        for _ in range(cnt):
            n = len(sid)
            kp, m = n // 2, n % 2
            sl = stg(kp)
            if E("WSKIP", 0) == 2 or (E("WSKIP", 0) and m):
                sid.append(vm.n - 1)
                continue
            k(f"s_add_u32 m0, s35, {(STG + sl*8192 if sl < 7 else RNG + (sl-7)*8192) + m*4096}")
            if n and not m:
                k(f"s_add_u32 s{sWG}, s{sWG}, {16*3584}")
                if ROTW and kp % 4 == 0:
                    k(f"s_cmp_eq_u32 s{sWG}, s{sWE}")
                    k(f"s_cselect_b32 s37, {28*57344}, 0")
                    k(f"s_sub_u32 s{sWG}, s{sWG}, s37")
            sid.append(vm.op(f"buffer_load_dwordx4 {v(vWG)}, s[{(sA, sB)[m]}:{(sA, sB)[m]+3}], s{sWG} offen lds"))

    def sread(k0, k1):
        for kp in range(k0, k1):
            sl = stg(kp)
            for m in range(2):
                for u in range(2):
                    k(f"ds_read_b64_tr_b16 {a(8*kp+4*m+2*u,2)}, {v(vWT + (sl >= 7))} offset:{(sl%7 if sl < 7 else sl-7)*8192 + m*4096 + u*1024}")

    k.stamp()
    vR, vSm, vGr = 56, 20, 120

    def stat(t):
        b = vR + 4 * (t % 4)
        k(f"v_mfma_f32_16x16x32_bf16 {v(vSm,4)}, {v(b,4)}, {v(vOnes,4)}, {'0' if t == 0 else v(vSm,4)}")
        k(f"v_mfma_f32_16x16x32_bf16 {v(vGr,4)}, {v(b,4)}, {v(b,4)}, {'0' if t == 0 else v(vGr,4)}")

    if TALL:
        k(f"s_lshl2_add_u32 s51, s2, s{sW}")
        k("s_mul_i32 s50, s51, 335")
        k("s_lshr_b32 s50, s50, 16")
        k("s_mul_i32 s29, s50, 196")
        k("s_sub_u32 s51, s51, s29")
        k("s_lshl_b32 s51, s51, 13")
        k("s_cmp_eq_u32 s50, 1")
        k("s_cselect_b32 s52, s54, s52")
        k("s_cselect_b32 s53, s55, s53")
        k("s_cmp_eq_u32 s50, 2")
        k("s_cselect_b32 s52, s56, s52")
        k("s_cselect_b32 s53, s57, s53")
        k("s_and_b32 s53, s53, 0xffff")
        k("s_cmp_le_u32 s50, 2")
        k(f"s_cselect_b32 s54, {WGB}, 0")
        k("s_mov_b32 s55, 0x20000")
        k("v_lshlrev_b32 v240, 7, v1")
        vm.op("buffer_load_dword v241, v240, s[52:55], s51 offen")
    if TPM:
        k("v_and_b32 v242, 15, v1")
        k("v_lshlrev_b32 v242, 13, v242")
        k("s_lshl_b32 s51, s28, 13")
        k("s_lshl_b32 s50, s30, 12")
        k("s_add_u32 s51, s51, s50")
        k(f"s_lshl_b32 s50, s{sRT}, 7")
        k("s_add_u32 s51, s51, s50")
        vm.op("buffer_load_dword v243, v242, s[8:11], s51 offen sc1")
    sload(NP[0])
    k(f"s_lshl_b32 s51, s{sCT}, 13")
    for c in range(7):
        k("v_add_u32 v26, s51, v6")
        k("v_add_u32 v18, s51, v7")
        if c < 6:
            k("s_add_u32 s51, s51, 8192")
            k("s_cmp_eq_u32 s51, 57344")
            k("s_cselect_b32 s51, 0, s51")
        vm.wait(xs[c])
        for par in range(2):
            k(f"ds_read_b128 {v(vR+4*((2*c+par)%4),4)}, v{18 if par else 26}")
        if c > 0:
            k("s_waitcnt lgkmcnt(2)")
            stat(2 * c - 2)
            stat(2 * c - 1)
    fin2 = [["s_mov_b32 s50, 0x05040100", "s_mov_b32 s51, 0x07060302"]]
    for e in range(0, 8, 2):
        fin2.append([f"v_perm_b32 v{168+e+i}, v{164+(e>>1)}, v{160+(e>>1)}, s{50+i}" for i in range(2)])
    for e in range(0, 8, 2):
        fin2.append([f"ds_write2st64_b32 v230, v{168+e}, v{169+e} offset0:{e} offset1:{e+1}"])
    fin2 += [[f"s_add_u32 s50, s27, {XT}", "v_lshl_add_u32 v231, v1, 4, s50"],
             ["v_lshrrev_b32 v230, 4, v1", "v_and_b32 v232, 15, v1", f"s_lshl2_add_u32 s50, s{sCT}, s{sW}"],
             ["v_lshlrev_b32 v232, 4, v232", "s_lshl_b32 s50, s50, 16", f"s_and_b32 s51, s{sRT}, 3"],
             ["v_lshl_add_u32 v230, v230, 13, v232", "s_lshl_b32 s51, s51, 11", "s_add_u32 s50, s50, s51"],
             [f"s_lshr_b32 s51, s{sRT}, 2", "s_lshl_b32 s51, s51, 8", "s_add_u32 s50, s50, s51"],
             [f"s_add_u32 s50, s50, {WT}", "s_add_u32 s51, s50, 32768"]]
    if WFE:
        vm.wait(wf_ld)
        for grp in fin2:
            k("\n".join(grp))
        fin2 = []
    k("s_waitcnt lgkmcnt(0)")
    k.stamp(1) if FINE == 1 else None
    stat(12)
    stat(13)
    k("s_barrier")
    if WFE:
        k("ds_read_b128 v[160:163], v231")
        k("ds_read_b128 v[164:167], v231 offset:1024")
    k.stamp()
    vA, vSt, vM, vQ = 88, 124, 24, 25
    seq = [(t, b) for t in range(14) for b in range(4)]

    l1 = Cnt(k, "lgkmcnt", 15)
    r1 = {}

    def rd1(n):
        t, b = seq[n]
        r1[n] = l1.op(f"ds_read_b128 {v(vR+4*(n%8),4)}, v{4+(t&1)} offset:{(t>>1)*8192 + b*2048}")

    fin = ["v_and_b32 v26, 3, v1",
           "v_cmp_eq_u32 s[52:53], 1, v26", "v_cmp_eq_u32 s[54:55], 2, v26", "v_cmp_eq_u32 s[56:57], 3, v26",
           "v_bfe_u32 v26, v1, 2, 2", "v_lshrrev_b32 v19, 4, v1", "v_cmp_eq_u32 s[58:59], v26, v19",
           f"v_cndmask_b32 {v(vM)}, {v(vSm)}, {v(vSm+1)}, s[52:53]", f"v_cndmask_b32 {v(vQ)}, {v(vGr)}, {v(vGr+1)}, s[52:53]",
           f"v_cndmask_b32 {v(vM)}, {v(vM)}, {v(vSm+2)}, s[54:55]", f"v_cndmask_b32 {v(vQ)}, {v(vQ)}, {v(vGr+2)}, s[54:55]",
           f"v_cndmask_b32 {v(vM)}, {v(vM)}, {v(vSm+3)}, s[56:57]", f"v_cndmask_b32 {v(vQ)}, {v(vQ)}, {v(vGr+3)}, s[56:57]",
           f"v_mul_f32 {v(vM)}, {f2u(1.0/448)}, {v(vM)}",
           f"v_mul_f32 {v(vQ)}, {f2u(1.0/448)}, {v(vQ)}",
           "v_and_b32 v26, 15, v1",
           f"v_fma_f32 {v(vQ)}, -{v(vM)}, {v(vM)}, {v(vQ)}",
           f"s_lshl_b32 s33, s{sW}, 6\ns_add_u32 s33, s33, {R2}",
           f"v_max_f32 {v(vQ)}, 0, {v(vQ)}",
           "v_lshl_add_u32 v19, v26, 2, s33",
           f"v_add_f32 {v(vQ)}, {f2u(EPS)}, {v(vQ)}",
           f"v_fmac_f32 {v(vCS)}, {v(vCS)}, {v(vSG)}",
           f"v_rsq_f32 {v(vQ)}, {v(vQ)}",
           "v_lshrrev_b32 v21, 2, v26",
           "v_and_b32 v26, 3, v26",
           f"v_mul_f32 v20, {v(vM)}, {v(vQ)}",
           "v_lshl_add_u32 v26, v21, 4, v26",
           "v_lshlrev_b32 v26, 7, v26",
           f"s_lshl_b32 s33, s{sW}, 7",
           f"s_add_u32 s33, s33, s{sRT}",
           f"s_lshl2_add_u32 s33, s33, {M1}",
           f"s_cmp_eq_u32 s{sCT}, 0\ns_cselect_b32 s33, s33, 0x40000000"]
    DEPTH = 7
    for n in range(DEPTH):
        rd1(n)
    if WFE:
        k("s_waitcnt lgkmcnt(7)")
        vm.op("buffer_store_dwordx4 v[160:163], v230, s[8:11], s50 offen sc1")
        vm.op("buffer_store_dwordx4 v[164:167], v230, s[8:11], s51 offen sc1")
    if T1:
        k(f"s_bitcmp1_b32 s{sW}, 0")
        k(f"s_cselect_b32 s52, s{sB}, s{sA}")
        k(f"s_cselect_b32 s53, s{sB+1}, s{sA+1}")
        k(f"s_mov_b32 s54, {WGB}")
        k("s_mov_b32 s55, 0x20000")
        k(f"s_and_b32 s50, s{sRB}, 1")
        k(f"s_lshr_b32 s51, s{sW}, 1")
        k("s_lshl1_add_u32 s50, s50, s51")
        k(f"s_mul_i32 s50, s50, {2*57344}")
        k(f"s_lshr_b32 s51, s{sFB}, 2")
        k("s_lshl_b32 s51, s51, 8")
        k("s_add_u32 s50, s50, s51")
        k(f"s_add_u32 s50, s50, {T1*57344}")
        k("v_lshrrev_b32 v240, 1, v1")
        k("v_mul_u32_u24 v240, 0xe00, v240")
        k("v_and_b32 v241, 1, v1")
        k("v_lshl_add_u32 v240, v241, 7, v240")
        vm.op("buffer_load_dword v241, v240, s[52:55], s50 offen")
    for n in range(56):
        t, b = seq[n]
        l1.wait(r1[n])
        acc = vA + 16 * (t // 7) + 4 * b
        k(f"v_mfma_f32_16x16x32_bf16 {v(acc,4)}, {v(vR+4*(n%8),4)}, {v(vF+4*(t%7),4)}, {'0' if t % 7 == 0 else v(acc,4)}")
        if n + DEPTH < 56:
            rd1(n + DEPTH)
        if n >= 4 and fin:
            k(fin.pop(0))
        if n == 40:
            assert not fin
            k("s_mov_b64 exec, s[58:59]")
            l1.op(f"ds_write_b32 v19, {v(vQ)}")
            l1.op("ds_write_b32 v19, v20 offset:256")
            vm.op(f"buffer_store_dword {v(vM)}, v26, s[8:11], s33 offen sc1")
            k("s_mov_b64 exec, -1")
        if n == 41:
            vm.wait(wf_ld)
        if n >= 41 and fin2:
            for t_ in fin2.pop(0):
                l1.op(t_) if t_.startswith("ds_") else k(t_)
        if n % 8 == 3 and len(sid) < NP[0] + NP[1]:
            sload()
    k.stamp(1) if FINE == 1 else None
    assert not fin2
    l1.all()
    k("s_barrier")
    k.stamp(1) if FINE == 1 else None
    if not WFE:
        k("ds_read_b128 v[160:163], v231")
        k("ds_read_b128 v[164:167], v231 offset:1024")
    k("v_lshrrev_b32 v24, 4, v1")
    k("v_lshlrev_b32 v24, 4, v24")
    k(f"v_add_u32 v25, {R2}, v24")
    for b in range(4):
        k(f"ds_read_b128 {v(vSt+4*b,4)}, v25 offset:{64*b}")
        k(f"ds_read_b128 {v(vSt+16+4*b,4)}, v25 offset:{256 + 64*b}")
    for n in range(0, 16, 2):
        k(f"v_pk_fma_f32 {v(vA+n,2)}, {v(vA+16+n,2)}, {v(vSG-1,2)}, {v(vA+n,2)} op_sel:[0,1,0]")
    if not WFE:
        k("s_waitcnt lgkmcnt(8)")
        vm.op("buffer_store_dwordx4 v[160:163], v230, s[8:11], s50 offen sc1")
        vm.op("buffer_store_dwordx4 v[164:167], v230, s[8:11], s51 offen sc1")
    k.stamp(1) if FINE == 1 else None
    k("v_and_b32 v8, 15, v1")
    k("v_and_b32 v9, 7, v1")
    k("v_lshrrev_b32 v10, 3, v24")
    k("v_xor_b32 v10, v10, v9")
    k("v_lshlrev_b32 v10, 4, v10")
    k("v_lshl_add_u32 v10, v8, 7, v10")
    k("v_add_u32 v10, s27, v10")
    k("v_xor_b32 v11, 16, v10")
    k(f"v_lshlrev_b32 {v(vL16)}, 4, v1")
    k(f"v_add_u32 v12, s27, {v(vL16)}")
    k("v_lshrrev_b32 v13, 3, v1")
    k("v_xor_b32 v9, v9, v13")
    k("v_lshlrev_b32 v9, 4, v9")
    k("v_lshl_add_u32 v13, v13, 13, v9")
    k("s_lshl_b32 s28, s28, 13")
    k("s_lshl_b32 s30, s30, 12")
    k(f"s_lshl_b32 s33, s{sRT}, 7")
    k("s_add_u32 s33, s33, s30")
    k("s_add_u32 s33, s33, s28")
    k("s_add_u32 s34, s33, 0x10000")
    for h2 in range(2):
        k(f"s_waitcnt lgkmcnt({4-4*h2})")
        for n in range(8 * h2, 8 * h2 + 8, 2):
            k(f"v_pk_mul_f32 {v(vA+n,2)}, {v(vA+n,2)}, {v(vSt+n,2)}")
        for n in range(8 * h2, 8 * h2 + 8, 2):
            k(f"v_pk_fma_f32 {v(vA+n,2)}, {v(vSt+16+n,2)}, {v(vCS,2)}, {v(vA+n,2)} op_sel_hi:[1,0,1] neg_lo:[1,0,0] neg_hi:[1,0,0]")
        for n in range(4 * h2, 4 * h2 + 4):
            k(f"v_cvt_pk_bf16_f32 {v(vR+n)}, {v(vA+2*n)}, {v(vA+2*n+1)}")
    k.stamp(1) if FINE == 1 else None
    k(f"ds_write_b128 v10, {v(vR,4)}")
    k(f"ds_write_b128 v11, {v(vR+4,4)}")
    k("s_waitcnt lgkmcnt(0)")
    k(f"ds_read_b128 {v(vR+8,4)}, v12")
    k(f"ds_read_b128 {v(vR+12,4)}, v12 offset:1024")
    k(f"v_lshlrev_b32 {v(vL4)}, 2, v1")
    k(f"v_min_u32 v14, 28, {v(vL4)}")
    k("s_waitcnt lgkmcnt(1)")
    vm.op(f"buffer_store_dwordx4 {v(vR+8,4)}, v13, s[8:11], s33 offen sc1")
    k("s_waitcnt lgkmcnt(0)")
    at_st = vm.op(f"buffer_store_dwordx4 {v(vR+12,4)}, v13, s[8:11], s34 offen sc1")
    zload = f"global_load_dword v31, v14, s[{sDBG}:{sDBG+1}]{ZOFF} sc1"
    zmark = vm.op(zload)
    nr1 = len(sid) // 2
    assert len(sid) == NP[0] + NP[1] and len(sid) % 2 == 0
    r1_last = sid[-1]
    na0 = NA[0]
    k.stamp()

    sKK, vWt = 2, 200
    vC1, vS1, vN1, vC2, vS2, vN2 = 32, 40, 48, 56, 64, 72
    vTc, vTs, vUc, vUs, vD, wX, vY, vP, wT = 80, 88, 96, 104, 112, 144, 160, 176, 184
    m2 = [0, 1, 2, 3, 16, 17, 18, 19]
    k(f"v_lshrrev_b32 {v(vG)}, 4, v1")
    k(f"v_and_b32 {v(vC)}, 15, v1")
    k(f"v_mov_b32 {v(vOne)}, 1")
    k(f"v_min_u32 {v(vLP)}, 220, {v(vL4)}")
    k("v_and_b32 v7, 7, v1")
    k(f"v_xor_b32 v7, v7, {v(vG)}")
    k("v_lshrrev_b32 v8, 3, v1")
    k("v_lshlrev_b32 v8, 7, v8")
    k("v_lshl_add_u32 v211, v7, 4, v8")
    k("v_xor_b32 v212, 64, v211")
    k(f"s_lshl_b32 s{sFL}, s{sRB}, 10")
    k(f"s_add_u32 s{sFL}, s{sFL}, {FL}")
    k(f"s_lshl2_add_u32 s{sFI}, s{sFB}, s{sFL}")
    k(f"s_getreg_b32 s{sXC}, hwreg(HW_REG_XCC_ID, 0, 4)")
    k(f"s_lshr_b32 s26, s{sKK}, 5")
    k(f"s_lshl_b32 s26, s26, {9 if WFLAG else 7}")
    k(f"s_add_u32 s51, s26, {FL + F_P1}")
    k("v_lshlrev_b32 v214, 3, v1")
    k(f"v_and_b32 v213, 124, {v(vL4)}")
    k(f"s_lshl_b32 s26, s{sCT}, 5")
    k(f"s_add_u32 s26, s26, s{sRT}")
    if WFLAG:
        k(f"s_lshl2_add_u32 s26, s26, s{sW}")
    k(f"s_lshl2_add_u32 s52, s26, {FL + F_P1}")
    k(f"s_lshl1_add_u32 s{sRT}, s{sRB}, s{sHALF}")

    def packed_table(dc, ds_, step, base, mult):
        for e in range(8):
            k(f"v_mov_b32 {v(wT+e)}, {v(base)}" if mult[e] == 0 else
              f"v_fmamk_f32 {v(wT+e)}, {v(step)}, {f2u(float(mult[e]))}, {v(base)}")
        for e in range(8):
            k(f"v_cos_f32 {v(wT+8+e)}, {v(wT+e)}")
        for e in range(8):
            k(f"v_sin_f32 {v(wT+e)}, {v(wT+e)}")
        for p in range(4):
            k(f"v_cvt_pk_bf16_f32 {v(dc+p)}, {v(wT+8+2*p)}, {v(wT+8+2*p+1)}")
        for p in range(4):
            k(f"v_cvt_pk_bf16_f32 {v(ds_+p)}, {v(wT+2*p)}, {v(wT+2*p+1)}")

    k(f"s_lshl_b32 s53, s{sW}, 4")
    k(f"v_add_u32 v210, s53, {v(vC)}")
    k("v_cvt_f32_u32 v208, v210")
    k(f"v_cvt_f32_u32 v209, {v(vG)}")
    k(f"v_mul_f32 {v(vY)}, {f2u(1.0/64)}, v208")
    k(f"v_mul_f32 {v(vY+1)}, {f2u(8.0)}, v209")
    k(f"v_mul_f32 {v(vY+1)}, {v(vY+1)}, {v(vY)}")
    packed_table(vC1, vS1, vY, vY + 1, list(range(8)))
    k("s_mov_b32 s54, 0x80008000")
    k("v_and_b32 v210, 1, v1")
    k("v_mul_u32_u24 v210, 0x8000, v210")
    k("v_lshl_or_b32 v210, v210, 16, v210")
    for p in range(4):
        k(f"v_xor_b32 {v(vC1+4+p)}, v210, {v(vC1+p)}")
        k(f"v_xor_b32 {v(vS1+4+p)}, v210, {v(vS1+p)}")
    for p in range(8):
        k(f"v_xor_b32 {v(vN1+p)}, s54, {v(vS1+p)}")
    k.stamp(1) if FINE == 1 else None
    sload(na0)
    spin(zload, "v_cmp_eq_u32 vcc, 0, v31", zmark)
    if WFLAG:
        vm.op(f"buffer_store_dword {v(vOne)}, off, s[8:11], s52 sc1")
        vm.wait(r1_last)
        k("s_barrier")
    else:
        vm.all()
        k("s_barrier")
        wave0(f"buffer_store_dword {v(vOne)}, off, s[8:11], s52 sc1", 1)
    k.stamp()
    sload(NP[2] - na0)
    k.stamp(1) if FINE == 3 else None
    sread(0, nr1)
    k.stamp(1) if FINE == 3 else None
    k(f"v_lshrrev_b32 v210, 1, {v(vC)}")
    k(f"v_xor_b32 v210, v210, {v(vG)}")
    k("v_lshlrev_b32 v210, 4, v210")
    k(f"v_lshl_add_u32 {v(vP)}, {v(vC)}, 7, v210")
    k(f"v_xor_b32 {v(vP+1)}, 64, {v(vP)}")
    k(f"v_cvt_f32_u32 v210, {v(vC)}")
    k(f"v_mul_f32 {v(vY)}, {f2u(1.0/32)}, v210")
    k(f"v_mul_f32 {v(vY+1)}, 4.0, v209")
    k(f"v_mul_f32 {v(vY+1)}, {v(vY+1)}, {v(vY)}")
    packed_table(vC2, vS2, vY, vY + 1, m2)
    k("s_brev_b32 s55, 1")
    for p in range(4):
        k(f"v_xor_b32 {v(vC2+4+p)}, s55, {v(vC2+p)}")
        k(f"v_xor_b32 {v(vS2+4+p)}, s55, {v(vS2+p)}")
    for p in range(8):
        k(f"v_xor_b32 {v(vN2+p)}, s54, {v(vS2+p)}")
    k(f"v_mul_f32 {v(vY)}, {f2u(1.0/2048)}, v208")
    k(f"v_mul_f32 {v(vY+1)}, 4.0, v209")
    k(f"v_mul_f32 {v(vY+1)}, {v(vY+1)}, {v(vY)}")
    for e in range(8):
        k(f"v_mov_b32 {v(vTs+e)}, {v(vY+1)}" if m2[e] == 0 else
          f"v_fmamk_f32 {v(vTs+e)}, {v(vY)}, {f2u(float(m2[e]))}, {v(vY+1)}")
    for e in range(8):
        k(f"v_cos_f32 {v(vTc+e)}, {v(vTs+e)}")
    for e in range(8):
        k(f"v_sin_f32 {v(vTs+e)}, {v(vTs+e)}")
    k(f"v_mul_f32 {v(wT)}, {f2u(1.0/2048)}, v210")
    k(f"v_add_f32 {v(wT+1)}, {f2u(16.0/2048)}, {v(wT)}")
    k(f"v_lshl_add_u32 v208, {v(vG)}, 2, s53")
    k("v_cvt_f32_u32 v208, v208")
    for r in range(4):
        for blk in range(2):
            k(f"v_mul_f32 {v(vUs+4*blk+r)}, v208, {v(wT+blk)}")
        if r < 3:
            k("v_add_f32 v208, 1.0, v208")
    for e in range(8):
        k(f"v_cos_f32 {v(vUc+e)}, {v(vUs+e)}")
    for e in range(8):
        k(f"v_sin_f32 {v(vUs+e)}, {v(vUs+e)}")
    sc = 2.0 / (S * D)
    k(f"s_cmp_eq_u32 s{sKK}, 223")
    k(f"s_mov_b32 s55, {f2u(sc)}")
    k(f"s_cselect_b32 s55, {f2u(sc/2)}, s55")
    for e in range(8):
        k(f"v_mul_f32 {v(vUc+e)}, s55, {v(vUc+e)}")
        k(f"v_mul_f32 {v(vUs+e)}, s55, {v(vUs+e)}")
    k(f"v_lshrrev_b32 v208, 1, {v(vG)}")
    k(f"v_lshl_add_u32 v208, v208, 4, {v(vC)}")
    k("v_lshlrev_b32 v208, 4, v208")
    k(f"v_and_b32 v209, 1, {v(vG)}")
    k("v_lshl_add_u32 v208, v209, 3, v208")
    k(f"s_lshl_b32 s26, s{sW}, 9")
    k("v_add_u32 v208, s26, v208")
    k(f"s_lshl_b32 s26, s{sKK}, 13")
    k("s_add_u32 s56, s26, s27")
    k(f"s_add_u32 s57, s56, {WT}")
    k("s_add_u32 s58, s26, s35")
    k("s_add_u32 s59, s58, 4096")
    k("s_mov_b32 m0, s27")
    k("s_waitcnt lgkmcnt(0)")
    k("s_barrier")
    k.stamp()
    if WFLAG:
        spin0(lambda r: f"buffer_load_dwordx2 v[{r}:{r+1}], v214, s[8:11], s51 offen sc1", [216, 218, 220],
              lambda r: f"v_and_b32 v{r}, v{r}, v{r+1}\nv_cmp_eq_u32 vcc, 0, v{r}")
    elif PIPE:
        spin0(lambda r: f"buffer_load_dword v{r}, v213, s[8:11], s51 offen sc1", [216, 217, 218], lambda r: f"v_cmp_eq_u32 vcc, 0, v{r}")
    else:
        spin("buffer_load_dword v31, v213, s[8:11], s51 offen sc1", "v_cmp_eq_u32 vcc, 0, v31")
    k.stamp()
    vm.op(f"buffer_load_dwordx4 v211, s[8:11], s56 offen{LD} lds")
    at_ld = vm.op(f"buffer_load_dwordx4 v212, s[8:11], s56 offen offset:1024{LD} lds")
    vm.op(f"buffer_load_dwordx4 {v(vWt,4)}, {v(vL16)}, s[8:11], s57 offen{LD}")
    wt_ld = vm.op(f"buffer_load_dwordx4 {v(vWt+4,4)}, {v(vL16)}, s[8:11], s57 offen offset:1024{LD}")
    k.stamp(1) if FINE == 3 else None
    k(f"s_lshl_b32 s26, s{sXC}, 2")
    k("s_lshl_b32 s26, 1, s26")
    k(f"s_lshr_b32 s28, s{sXC}, 3")
    k(f"s_lshl2_add_u32 s28, s28, s{sFL}")
    wave0("v_mov_b32 v215, s26\nbuffer_atomic_add v215, off, s[8:11], s28 offset:768 sc1", 1)
    if not PIPE:
        k("s_barrier")
    assert NS[1] <= 2 * nr1 + 22 - NS[0]
    k.stamp(1) if FINE == 3 else None
    sread(nr1, NS[0] // 2)
    nr1 = NS[0] // 2
    k.stamp(1) if FINE == 3 else None
    sload(NS[1])
    k.stamp(1) if FINE == 3 else None
    vm.wait(at_ld)
    k("s_waitcnt lgkmcnt(0)")
    k("s_barrier")
    k.stamp()
    for t in range(2):
        for blk in range(2):
            for plane in range(2):
                k(f"ds_read_b128 {v(vD+16*plane+8*blk+4*t,4)}, {v(vP+t)} offset:{plane*4096+blk*2048}")
    sload(NS[2])

    def dft_big(cr, ci):
        for t in range(2):
            for blk in range(2):
                k(f"s_waitcnt lgkmcnt({6 - 4*t - 2*blk})")
                ar, ai = vD + 8 * blk + 4 * t, vD + 16 + 8 * blk + 4 * t
                xr, xi = wX + 4 * blk, wX + 8 + 4 * blk
                k(f"v_mfma_f32_16x16x32_bf16 {v(xr,4)}, {v(ar,4)}, {v(vC1+4*t,4)}, {'0' if t == 0 else v(xr,4)}")
                k(f"v_mfma_f32_16x16x32_bf16 {v(xi,4)}, {v(ai,4)}, {v(vC1+4*t,4)}, {'0' if t == 0 else v(xi,4)}")
                k(f"v_mfma_f32_16x16x32_bf16 {v(xr,4)}, {v(ai,4)}, {v(cr+4*t,4)}, {v(xr,4)}")
                k(f"v_mfma_f32_16x16x32_bf16 {v(xi,4)}, {v(ar,4)}, {v(ci+4*t,4)}, {v(xi,4)}")

    def pack():
        for p in range(4):
            k(f"v_cvt_pk_bf16_f32 {v(vP+p)}, {v(vY+2*p)}, {v(vY+2*p+1)}")
            k(f"v_cvt_pk_bf16_f32 {v(vP+4+p)}, {v(vY+8+2*p)}, {v(vY+8+2*p+1)}")

    k.stamp(1) if FINE == 2 else None
    dft_big(vS1, vN1)
    if UNP:
        k.stamp(1) if FINE == 2 else None
        vm.wait(wt_ld)
        for e in range(8):
            k(f"v_lshlrev_b32 {v(wT+e)}, 16, {v(vWt+e)}")
            k(f"v_and_b32 {v(wT+8+e)}, 0xffff0000, {v(vWt+e)}")
    k.stamp(1) if FINE == 2 else None
    cmul8(k, vY, wX, vTc, vTs, -1)
    pack()
    for blk in range(2):
        xr, xi = wX + 4 * blk, wX + 8 + 4 * blk
        k(f"v_mfma_f32_16x16x32_bf16 {v(xr,4)}, {v(vC2+4*blk,4)}, {v(vP,4)}, 0")
        k(f"v_mfma_f32_16x16x32_bf16 {v(xi,4)}, {v(vC2+4*blk,4)}, {v(vP+4,4)}, 0")
        k(f"v_mfma_f32_16x16x32_bf16 {v(xr,4)}, {v(vS2+4*blk,4)}, {v(vP+4,4)}, {v(xr,4)}")
        k(f"v_mfma_f32_16x16x32_bf16 {v(xi,4)}, {v(vN2+4*blk,4)}, {v(vP,4)}, {v(xi,4)}")
    if not UNP:
        k.stamp(1) if FINE == 2 else None
        vm.wait(wt_ld)
        for e in range(8):
            k(f"v_lshlrev_b32 {v(wT+e)}, 16, {v(vWt+e)}")
            k(f"v_and_b32 {v(wT+8+e)}, 0xffff0000, {v(vWt+e)}")
    sload(NS[3] // 2)
    k.stamp(1) if FINE == 2 else None
    cmul8(k, vY, wX, wT, wT + 8, +1)
    pack()
    for blk in range(2):
        xr, xi = wX + 4 * blk, wX + 8 + 4 * blk
        k(f"v_mfma_f32_16x16x32_bf16 {v(xr,4)}, {v(vP,4)}, {v(vC2+4*blk,4)}, 0")
        k(f"v_mfma_f32_16x16x32_bf16 {v(xi,4)}, {v(vP+4,4)}, {v(vC2+4*blk,4)}, 0")
        k(f"v_mfma_f32_16x16x32_bf16 {v(xr,4)}, {v(vP+4,4)}, {v(vN2+4*blk,4)}, {v(xr,4)}")
        k(f"v_mfma_f32_16x16x32_bf16 {v(xi,4)}, {v(vP,4)}, {v(vS2+4*blk,4)}, {v(xi,4)}")
    sload(NS[3] - NS[3] // 2)
    k.stamp(1) if FINE == 2 else None
    cmul8(k, vY, wX, vUc, vUs, +1)
    pack()
    for plane in range(2):
        for blk in range(2):
            k(f"ds_write_b64 v208, {v(vP+4*plane+2*blk,2)} offset:{8192+plane*4096+blk*2048}")
    k("s_waitcnt lgkmcnt(0)")
    k("s_barrier")
    for t in range(2):
        for blk in range(2):
            for plane in range(2):
                k(f"ds_read_b128 {v(vD+16*plane+8*blk+4*t,4)}, {v(vL16)} offset:{8192+plane*4096+blk*2048+t*1024}")
    k.stamp(1) if FINE == 2 else None
    k(f"s_cmp_ge_u32 s{sKK}, 112")
    k("s_cselect_b32 s54, s54, 0")
    dft_big(vN1, vS1)
    for p in range(4):
        k(f"v_cvt_pk_bf16_f32 {v(vP+p)}, {v(wX+2*p)}, {v(wX+2*p+1)}")
    vm.op(f"buffer_store_dwordx4 {v(vP,4)}, {v(vL16)}, s[8:11], s58 offen sc1")
    for p in range(4):
        k(f"v_cvt_pk_bf16_f32 {v(vP+4+p)}, {v(wX+8+2*p)}, {v(wX+8+2*p+1)}")
    for p in range(4):
        k(f"v_xor_b32 {v(vP+4+p)}, s54, {v(vP+4+p)}")
    bt_st = vm.op(f"buffer_store_dwordx4 {v(vP+4,4)}, {v(vL16)}, s[8:11], s59 offen sc1")
    nr2 = len(sid) // 2
    assert 2 * (nr2 - nr1) + NA[1] <= 22
    sload(NA[1])
    k.stamp()

    vXO, vM, vTB, vXA, vGm = 10, 12, 14, 18, 32
    cload = f"buffer_load_dwordx2 v[28:29], off, s[8:11], s{sFL} offset:768 sc1"
    k(f"v_and_b32 v6, 1, {v(vG)}")
    k(f"s_and_b32 s29, s{sW}, 1")
    k("s_lshl_b32 s29, s29, 2")
    k("v_lshl_or_b32 v6, v6, 1, s29")
    k("v_and_b32 v7, 7, v1")
    k("v_xor_b32 v6, v6, v7")
    k("v_lshrrev_b32 v8, 3, v1")
    k("v_lshlrev_b32 v9, 12, v8")
    k("v_lshl_add_u32 v6, v6, 4, v9")
    k(f"s_lshl_b32 s28, s{sW}, 15")
    k(f"s_lshl_b32 s27, s{sRT}, 7")
    k("s_add_u32 s51, s28, s27")
    k("s_sub_u32 s52, s27, s28")
    k(f"s_add_u32 s52, s52, {438*4096}")
    k(f"s_bitcmp1_b32 s{sCT}, 0")
    k("s_cselect_b32 s53, s51, s52")
    k("s_cselect_b32 s51, s52, s51")
    k("s_cselect_b32 s54, 0x6000, 0")
    k("s_cselect_b32 s55, 28672, 0")
    k("s_mov_b32 s52, 0x20000")
    k("s_cselect_b32 s52, 0xfffe0000, s52")
    k("v_xor_b32 v6, s54, v6")
    k("v_lshrrev_b32 v9, 5, v1")
    k("v_and_b32 v8, 3, v8")
    k("v_lshl_add_u32 v8, v9, 4, v8")
    k("v_mul_u32_u24 v8, 0x380, v8")
    k(f"v_xor_b32 v7, v7, {v(vG)}")
    k("v_xor_b32 v7, s29, v7")
    k(f"v_lshl_add_u32 {v(vXO)}, v7, 4, v8")
    k(f"s_lshr_b32 s26, s{sRT}, 3")
    k("s_lshl_b32 s26, s26, 9")
    k(f"s_lshl_b32 s28, s{sHALF}, 8")
    k("s_add_u32 s26, s26, s28")
    k(f"s_and_b32 s28, s{sRB}, 3")
    k(f"s_lshl2_add_u32 s{sSB}, s28, s26")
    k(f"s_lshl_b32 s26, s{sW}, 5")
    k(f"s_add_u32 s26, s26, s{sSB}")
    k("s_mul_i32 s26, s26, 896")
    k(f"s_lshl_b32 s28, s{sCT}, 7")
    k(f"s_add_u32 s{sXO}, s26, s28")
    k(f"s_add_u32 s{sXO+1}, s{sXO}, {128*896}")
    k("v_bfe_u32 v7, v1, 3, 2")
    k("v_bfe_u32 v8, v1, 2, 1")
    k("v_lshlrev_b32 v8, 4, v8")
    k("v_lshl_add_u32 v7, v7, 5, v8")
    k("v_and_b32 v8, 3, v1")
    k("v_add_lshl_u32 v11, v7, v8, 2")
    k(f"s_lshl2_add_u32 s56, s{sSB}, {M1}")
    k("v_lshlrev_b32 v213, 10, v1")
    k(f"s_lshl2_add_u32 s57, s2, {FL + F_FB}")
    k(f"s_and_b32 s58, s2, {NREP - 1}")
    k("s_lshl_b32 s58, s58, 10")
    k(f"s_add_u32 s58, s58, {FL + F_FB}")
    k(f"v_min_u32 v214, 880, {v(vL16)}")
    k.stamp(1) if FINE == 4 else None
    vm.wait(bt_st)
    k("s_barrier")
    wave0(f"buffer_store_dword {v(vOne)}, v213, s[8:11], s57 offen sc1", hex((1 << NREP) - 1))
    k.stamp()
    sread(nr1, nr2)
    k.stamp(1) if FINE == 4 else None
    k(f"s_add_u32 m0, s35, {XT}")
    vm.op(f"buffer_load_dwordx4 {v(vXO)}, s[12:15], s{sXO} offen lds")
    k(f"s_add_u32 m0, s35, {XT+4096}")
    vm.op(f"buffer_load_dwordx4 {v(vXO)}, s[12:15], s{sXO+1} offen lds")
    k("s_waitcnt lgkmcnt(0)")
    k("s_barrier")

    def p3_consts():
        vB, vST, vE, vT = 14, 15, 15, 20
        k(f"s_lshl_b32 s26, s{sCT}, 6")
        k(f"s_lshl_b32 s27, s{sW}, 4")
        k("s_add_u32 s26, s26, s27")
        k(f"v_add_u32 v27, s26, {v(vC)}")
        k("v_cvt_f32_u32 v27, v27")
        for p in range(1, 4):
            k(f"v_mul_f32 {v(vE+p)}, {f2u(p/448.0)}, v27")
        k(f"v_mul_f32 {v(vST)}, {f2u(16.0/448)}, v27")
        k(f"v_fract_f32 {v(vST)}, {v(vST)}")
        k(f"v_lshl_add_u32 v19, {v(vG)}, 2, 1")
        k("v_cvt_f32_u32 v19, v19")
        k(f"v_mul_f32 {v(vB)}, v19, {v(vE+1)}")
        k(f"v_fract_f32 {v(vB)}, {v(vB)}")
        for t in range(7):
            k(f"v_cos_f32 {v(vT+4)}, {v(vB)}")
            k(f"v_sin_f32 {v(vT)}, {v(vB)}")
            for p in range(1, 4):
                k(f"v_add_f32 {v(vT+p)}, {v(vB)}, {v(vE+p)}")
            if t < 6:
                k(f"v_add_f32 {v(vB)}, {v(vB)}, {v(vST)}")
                k(f"v_fract_f32 {v(vB)}, {v(vB)}")
            for p in range(1, 4):
                k(f"v_cos_f32 {v(vT+4+p)}, {v(vT+p)}")
                k(f"v_sin_f32 {v(vT+p)}, {v(vT+p)}")
            for p in range(4):
                k(f"v_cvt_pk_bf16_f32 {v(vGm+4*t+p)}, {v(vT+4+p)}, -{v(vT+p)}")
        k("v_bfe_u32 v7, v1, 2, 2")
        k(f"v_lshlrev_b32 v8, 10, {v(vG)}")
        k("v_lshl_add_u32 v8, v7, 7, v8")
        k("v_and_b32 v9, 3, v1")
        k("v_lshl_add_u32 v8, v9, 3, v8")
        k("v_lshrrev_b32 v7, 1, v7")
        k(f"v_and_b32 v9, 1, {v(vG)}")
        k("v_lshl_add_u32 v7, v9, 1, v7")
        k(f"v_lshl_add_u32 {v(vTB)}, v7, 5, v8")
        for nb in range(1, 4):
            k(f"v_xor_b32 {v(vTB+nb)}, {32*nb}, {v(vTB)}")
        k("v_lshrrev_b32 v7, 5, v1")
        k(f"s_lshl_b32 s26, s{sW}, 1")
        k("v_or_b32 v7, s26, v7")
        k("v_bfe_u32 v8, v1, 1, 3")
        k("v_xor_b32 v7, v7, v8")
        k("v_and_b32 v8, 31, v1")
        k("v_lshlrev_b32 v8, 7, v8")
        k("v_lshl_add_u32 v7, v7, 4, v8")
        k(f"v_add_u32 {v(vXA)}, {XT}, v7")

    k.stamp(1) if FINE == 4 else None
    lines = capture(p3_consts)
    per = -(-len(lines) // (NS[4] - NA[1] + 1))
    for i in range(NS[4] - NA[1]):
        sload()
        slot()
    slot()
    k("s_add_u32 m0, s35, s55")
    last_real = vm.n - 1
    if TW:
        k.srd(12, 48, WGB)
        ld = touch_down(-1, 12)
        NT_ = k.lab("nt")
        k(f"s_cmp_eq_u32 s{sW}, 0")
        k(f"s_cbranch_scc1 {NT_}")
        k(ld)
        k.label(NT_)
    k.stamp()
    t4 = lambda r: f"v_and_b32 v{r}, v{r}, v{r+1}\nv_and_b32 v{r+2}, v{r+2}, v{r+3}\nv_and_b32 v{r}, v{r}, v{r+2}\nv_cmp_eq_u32 vcc, 0, v{r}"
    l4 = lambda r: f"buffer_load_dwordx4 v[{r}:{r+3}], v214, s[8:11], s58 offen sc1"
    if PIPE:
        spin0(l4, [216, 220, 224], t4, TW)
    else:
        spin(l4(216), t4(216))
    k.stamp()
    census = vm.op(cload)
    for hf in range(2):
        for t in range(7):
            if t == 6:
                k(f"s_cmp_eq_u32 s{sW}, 3")
                k(f"s_cselect_b32 s28, {224*4096 >> 6}, 0")
                k("s_cmp_lg_u32 s54, 0" if hf == 0 else "s_cmp_eq_u32 s54, 0")
                k("s_cselect_b32 s28, s28, 0")
                k("v_add_u32 v9, 16, v1")
                k("v_and_b32 v9, 64, v9")
                k("v_mad_u32_u24 v9, v9, s28, v6")
            bt_ld = vm.op(f"buffer_load_dwordx4 v{9 if t == 6 else 6}, s[8:11], s{51 if hf == 0 else 53} offen{LD} lds")
            if t < 6:
                k("s_add_u32 m0, m0, 4096")
                k("s_add_u32 s51, s51, s52" if hf == 0 else "s_sub_u32 s53, s53, s52")
        if hf == 0:
            bt_half = bt_ld
            k("s_mov_b32 s57, s55")
            k("s_sub_u32 s55, 28672, s55")
            k("s_add_u32 m0, s35, s55")
            k("v_xor_b32 v6, 0x6000, v6")
    k.stamp(1) if FINE == 4 else None
    vm.op(f"buffer_load_dword {v(vM)}, v11, s[8:11], s56 offen{LD}")
    p3_loads = vm.op(f"buffer_load_dword {v(vM+1)}, v11, s[8:11], s56 offen offset:512{LD}")
    sload(NS[5])
    k.stamp(1) if FINE == 4 else None
    k.srd(sA, 48, WGB)
    if SPLIT3:
        for nb in range(4):
            k(f"v_add_u32 {v(60+nb)}, s55, {v(vTB+nb)}")
            k(f"v_add_u32 {v(vTB+nb)}, s57, {v(vTB+nb)}")
        for p in range(4):
            k(f"v_mov_b32 {v(64+p)}, {v(vGm+24+p)}")
        k("s_cmp_lg_u32 s57, 0")
        k("s_cselect_b32 s58, 0xffff0000, 0")
        k("s_cselect_b32 s59, 0x80000000, 0")
        k("s_mov_b32 exec_lo, 0")
        k("s_mov_b32 exec_hi, s58")
        k(f"v_mov_b32 {v(vGm+27)}, 0x3f80")
        k("s_xor_b32 exec_hi, s58, 0xffff0000")
        k("v_mov_b32 v67, 0x3f80")
        k("s_mov_b64 exec, -1")
    CL, FAST, SLOW = k.lab("cl"), k.lab("fast"), k.lab("slow")
    k(f"s_mov_b32 s50, {SPIN_MAX}")
    vm.wait(census)
    k.label(CL)
    k("v_readfirstlane_b32 s52, v28")
    k("v_readfirstlane_b32 s53, v29")
    k(f"s_cmp_ge_u32 s{sXC}, 8")
    k("s_cselect_b32 s54, s53, s52")
    k(f"s_lshl_b32 s55, s{sXC}, 2")
    k("s_lshr_b32 s54, s54, s55")
    k("s_and_b32 s54, s54, 15")
    k(f"s_cmp_eq_u32 s54, {14 if not os.environ.get('SLOW') else 15}")
    k(f"s_cbranch_scc1 {FAST}")
    for r in (52, 53):
        k(f"s_lshr_b32 s54, s{r}, 4")
        k("s_and_b32 s54, s54, 0x0f0f0f0f")
        k(f"s_and_b32 s{r}, s{r}, 0x0f0f0f0f")
        k(f"s_add_u32 s{r}, s{r}, s54")
    k("s_add_u32 s52, s52, s53")
    k("s_mul_i32 s52, s52, 0x01010101")
    k("s_lshr_b32 s52, s52, 24")
    k("s_cmp_ge_u32 s52, 14")
    k(f"s_cbranch_scc1 {SLOW}")
    k("s_sub_u32 s50, s50, 1")
    k("s_cmp_eq_u32 s50, 0")
    k(f"s_cbranch_scc1 {SLOW}")
    k(cload)
    k("s_waitcnt vmcnt(0)")
    k(f"s_branch {CL}")
    state = (vm.n, vm.done, getattr(k, "_nst", 0), getattr(k, "_seq", 0))

    def rest(mode):
        vm.n, vm.done, k._nst, k._seq = state
        lg = Cnt(k, "lgkmcnt", 15)

        def arrive(off):
            vm.op(f"buffer_store_dword {v(vOne)}, off, s[8:11], s{sFI} offset:{off}{mode}")

        def pload(off):
            return f"buffer_load_dword v31, {v(vLP)}, s[8:11], s{sFL} offen offset:{off} sc1"

        def poll(off, mark=None):
            spin(pload(off), "v_cmp_eq_u32 vcc, 0, v31", mark)

        def put(q, cnt=1):
            for _ in range(cnt):
                if q:
                    e = q.pop(0)
                    e() if callable(e) else k("\n".join(e))

        k.stamp(1) if FINE == 4 else None
        vm.wait(bt_half if SPLIT3 else p3_loads)
        k("s_barrier")
        k.stamp()
        vR, vA = 88, 120
        seq = [(t, nb) for t in range(14) for nb in range(4)]

        def rd3(n):
            t, nb = seq[n]
            if SPLIT3 and n == 28:
                vm.wait(p3_loads)
                k("s_barrier")
            for u in range(2):
                if SPLIT3:
                    k(f"ds_read_b64_tr_b16 {v(vR+4*(n%8)+2*u,2)}, {v(vTB+nb if t < 7 else 60+nb)} offset:{(t%7)*4096+u*512}")
                else:
                    k(f"ds_read_b64_tr_b16 {v(vR+4*(n%8)+2*u,2)}, {v(vTB+nb)} offset:{t*4096+u*512}")

        DEPTH = 6
        for n in range(DEPTH):
            rd3(n)
        if TD:
            vm.op(touch_down(3, sA))
        for n in range(56):
            t, nb = seq[n]
            k(f"s_waitcnt lgkmcnt({2*min(DEPTH-1, 55-n)})")
            acc = vA + 16 * (t // 7) + 4 * nb
            gm = 64 if SPLIT3 and t == 13 else vGm + 4 * (t % 7)
            k(f"v_mfma_f32_16x16x32_bf16 {v(acc,4)}, {v(gm,4)}, {v(vR+4*(n%8),4)}, {'0' if t % 7 == 0 else v(acc,4)}")
            if n == 32 and not SPLIT3:
                k("s_mov_b32 exec_lo, 0")
                k("s_mov_b32 exec_hi, 0xffff0000")
                k(f"v_mov_b32 {v(vGm+27)}, 0x3f80")
                k("s_mov_b64 exec, -1")
            if n + DEPTH < 56:
                rd3(n + DEPTH)
        k.stamp(1) if FINE == 2 else None
        vX, vH, vHc, vU = 20, 32, 40, 48
        k(f"ds_read_b128 {v(vX,4)}, {v(vXA)}")
        k(f"ds_read_b128 {v(vX+4,4)}, {v(vXA)} offset:4096")
        k(f"s_mul_i32 s26, s{sRT}, 56")
        k(f"s_lshl2_add_u32 s27, s{sCT}, s{sW}")
        k("s_add_u32 s26, s26, s27")
        k("s_lshl_b32 s26, s26, 10")
        k(f"s_add_u32 s26, s26, {HC}")
        k(f"s_add_u32 s27, s26, {28*1024}")
        for r in range(0, 16, 2):
            k(f"v_pk_add_f32 {v(vA+r,2)}, {v(vA+r,2)}, {v(vA+16+r,2)} neg_hi:[0,1]")
        if SPLIT3:
            for r in range(1, 16, 2):
                k(f"v_xor_b32 {v(vA+r)}, s59, {v(vA+r)}")
        for p in range(2):
            for r in range(4):
                k(f"v_permlane16_swap_b32 {v(vA+8*p+r)}, {v(vA+8*p+4+r)}")
        k("s_waitcnt lgkmcnt(0)")
        for p in range(2):
            for q in range(4):
                k(f"v_lshlrev_b32 {v(vU+2*q)}, 16, {v(vX+4*p+q)}")
                k(f"v_and_b32 {v(vU+2*q+1)}, 0xffff0000, {v(vX+4*p+q)}")
            for e in range(0, 8, 2):
                k(f"v_pk_add_f32 {v(vA+8*p+e,2)}, {v(vA+8*p+e,2)}, {v(vU+e,2)}")
            for e in range(0, 8, 2):
                k(f"v_pk_add_f32 {v(vA+16+8*p+e,2)}, {v(vA+8*p+e,2)}, {v(vM,2)} op_sel:[0,{p}] op_sel_hi:[1,{p}] neg_lo:[0,1] neg_hi:[0,1]")
            for q in range(4):
                k(f"v_cvt_pk_bf16_f32 {v(vHc+4*p+q)}, {v(vA+16+8*p+2*q)}, {v(vA+17+8*p+2*q)}")
            hc_st = vm.op(f"buffer_store_dwordx4 {v(vHc+4*p,4)}, {v(vL16)}, s[8:11], s{26+p} offen{mode}")
        k.stamp(1) if FINE == 2 else None
        vm.wait(sid[55])
        k("s_barrier")
        k.stamp(1) if FINE == 2 else None
        sread(nr2, 28)
        k.stamp()
        vm.wait(hc_st)
        k("s_waitcnt lgkmcnt(0)")
        k.stamp(1) if FINE == 2 else None
        arrive(0)
        for p in range(2):
            for q in range(4):
                k(f"v_cvt_pk_bf16_f32 {v(vH+4*p+q)}, {v(vA+8*p+2*q)}, {v(vA+8*p+2*q+1)}")
            k(f"ds_write_b128 {v(vXA)}, {v(vH+4*p,4)} offset:{4096*p}")
        for p in range(2):
            k(f"v_mul_f32 {v(vM+p)}, {v(vA+16+8*p)}, {v(vA+16+8*p)}")
        for e in range(1, 8):
            for p in range(2):
                k(f"v_fmac_f32 {v(vM+p)}, {v(vA+16+8*p+e)}, {v(vA+16+8*p+e)}")
        k(f"s_lshl_b32 s26, s{sW}, 8")
        k(f"s_add_u32 s26, s26, {R2}")
        k(f"v_add_u32 v7, s26, {v(vL4)}")
        k(f"v_permlane32_swap_b32 {v(vM)}, {v(vM+1)}")
        k(f"v_add_f32 {v(vM)}, {v(vM)}, {v(vM+1)}")
        k(f"ds_write_b32 v7, {v(vM)}")
        sDL, sDG, sAB, sST1, sRG = 51, 53, 55, 57, 35
        vB1, vPA, vP1, vDG, vDT = 6, 11, 25, 8, 9
        k(f"s_mul_i32 s{sAB+1}, s{sRB}, 114688")
        k(f"s_add_u32 s{sAB+1}, s{sAB+1}, {HC}")
        k(f"s_mul_i32 s{sDL}, s{sW}, 28672")
        k(f"s_and_b32 s28, s{sW}, 1")
        k("s_mul_i32 s28, s28, 57344")
        k(f"s_lshr_b32 s26, s{sW}, 1")
        k(f"s_lshl_b32 s{sDL+1}, s26, 10")
        k(f"s_add_u32 s{sDL+1}, s{sDL+1}, s28")
        k(f"s_add_u32 s{sDG}, s{sAB+1}, s{sDL}")
        k(f"s_add_u32 s{sDG+1}, s{sAB+1}, s{sDL+1}")
        k(f"s_add_u32 s{sDG}, s{sDG}, s{sROT}")
        k(f"s_add_u32 s{sDG+1}, s{sDG+1}, s{sROT}")
        k(f"v_add_u32 {v(vB1)}, 57344, {v(vL16)}")
        k(f"s_mul_i32 s{sSS}, s{sRT}, 1792")
        k(f"s_add_u32 s{sSS}, s{sSS}, {SSP}")
        k(f"v_add_u32 v7, {R2}, {v(vL4)}")
        k(f"s_mul_i32 s{sHS}, s{sRB}, {4*112}")
        k(f"s_lshl1_add_u32 s{sHS}, s{sFB}, s{sHS}")
        k(f"s_lshl_b32 s{sHS}, s{sHS}, 10")
        k(f"s_add_u32 s{sHS}, s{sHS}, {HP}")
        k(f"v_lshlrev_b32 {v(vPA)}, 12, {v(vG)}")
        k(f"v_lshl_add_u32 {v(vPA)}, {v(vC)}, 4, {v(vPA)}")
        k(f"s_lshl_b32 s{sAB}, s{sRB}, 8")
        k(f"s_mul_i32 s{sHP}, s{sRT}, 224")
        k(f"s_mul_i32 s28, s{sW}, 28")
        k(f"s_add_u32 s{sHP}, s{sHP}, s28")
        k(f"s_lshl_b32 s{sHP}, s{sHP}, 10")
        k(f"s_add_u32 s{sHP}, s{sHP}, {HP}")
        k(f"s_mul_i32 s{sWD}, s{sW}, {448*896}")
        k(f"s_lshl_b32 s28, s{sCT}, 7")
        k(f"s_add_u32 s{sWD}, s{sWD}, s28")
        k(f"s_add_u32 s46, s{sCT}, s{sRT}")
        k(f"s_lshl_b32 s{sRG}, s{sW}, 13")
        k(f"s_add_u32 s{sRG}, s{sRG}, {RNG}")
        k(f"v_and_b32 v12, 1, {v(vG)}")
        k("v_and_b32 v13, 7, v1")
        k("v_lshlrev_b32 v14, 2, v12")
        k("v_xor_b32 v13, v13, v14")
        k("v_lshrrev_b32 v14, 3, v1")
        k("v_mul_u32_u24 v14, 0x380, v14")
        k(f"v_lshl_add_u32 {v(vDG)}, v13, 4, v14")
        k("v_bfe_u32 v13, v1, 2, 2")
        k("v_lshrrev_b32 v14, 5, v1")
        k("v_lshl_add_u32 v14, v14, 2, v13")
        k("v_lshrrev_b32 v13, 1, v13")
        k("v_lshlrev_b32 v13, 6, v13")
        k("v_lshl_add_u32 v13, v14, 7, v13")
        k("v_lshl_add_u32 v13, v12, 5, v13")
        k("v_and_b32 v14, 3, v1")
        k("v_lshl_add_u32 v13, v14, 3, v13")
        k(f"v_add_u32 {v(vDT)}, s{sRG}, v13")
        k(f"v_xor_b32 v26, 64, {v(vDT)}")
        k(f"v_add_u32 v56, s{sDL}, v13")
        k("v_xor_b32 v57, 64, v56")
        poll(0)
        k.stamp()
        uses = [(kp, b) for kp in range(KS) for b in range(4)]
        uses += [(kp, b) for kp in range(KS, 28) for b in (0, 2)]
        uB = len(uses)
        uses += [(kp, b) for kp in range(KS, 28) for b in (1, 3)]
        last_use = {kp: max(u for u, x in enumerate(uses) if x[0] == kp) for kp in range(28)}
        npair = (28 - KS) // 2
        Dm = []

        def dma():
            i = len(Dm)
            if i < KS:
                sel, off = 0, i * 1024
            else:
                sel, off = 1, ((i - KS) // npair) * 28672 + (KS + 2 * ((i - KS) % npair)) * 1024
            k(f"s_add_u32 m0, s{sDL+sel}, {off}")
            if ROTW and off % 28672 >= 4096:
                k(f"s_cmp_ge_u32 s{sROT}, {28672 - off % 28672}")
                k(f"s_cselect_b32 s28, {off - 28672 & 0xffffffff}, {off}".replace(f", {off}", ", s26") if False else f"s_cselect_b32 s28, 28672, 0")
                k(f"s_sub_u32 s28, s{sDG+sel}, s28")
                k(f"s_add_u32 s28, s28, {off}")
            else:
                k(f"s_add_u32 s28, s{sDG+sel}, {off}")
            Dm.append(vm.op(f"buffer_load_dwordx4 {v(vL16)}, s[8:11], s28 offen{LD} lds"))

        wd_regs = [(0, lambda o, n, i=i: a(224 + 8 * i + o, n)) for i in range(4)]
        wd_regs += [(0, lambda o, n, i=i: v(64 + 8 * i + o, n)) for i in range(8)]
        wd_regs += [(last_use[i] + 1, lambda o, n, i=i: a(8 * i + o, n)) for i in range(16)]
        n2 = min(KS, 8) // 2 * 2 if RING2 else 0
        free2 = 4 * KS + 2
        assert 4 * KS <= 56
        wdd, wdt = [], []
        shadow = [0]

        def quarter(dst, g, size, base):
            k(f"s_add_u32 s{dst}, s{46 if ROTD == 2 else sCT}, {g}")
            k(f"s_and_b32 s{dst}, s{dst}, 3")
            k(f"s_mul_i32 s{dst}, s{dst}, {size}")
            k(f"s_add_u32 s{dst}, s{dst}, s{base}")

        slots = [None] * (8 + n2)
        slot_of = []

        def wd_dma(now):
            n = len(wdd)
            if n == 56:
                return False
            free = [i for i, j in enumerate(slots) if (i < 8 or now >= free2) and
                    (j is None or (len(wdt) > 2 * j + 1 and wdt[2 * j + 1] < lg.done))]
            if not free:
                return False
            slots[free[0]] = n
            slot_of.append(free[0])
            k(f"s_add_u32 m0, s{sRG if free[0] < 8 else sDL}, {(free[0] % 8) * 1024}")
            if ROTD and n % 14 == 0:
                quarter(44, n // 14, 112 * 896, sWD)
            elif n:
                k(f"s_add_u32 s{44 if ROTD else sWD}, s{44 if ROTD else sWD}, {8*896}")
            wdd.append((vm.op(f"buffer_load_dwordx4 {v(vDG)}, s[{sA}:{sA+3}], s{44 if ROTD else sWD} offen lds"), max(now + WLAT, shadow[0])))
            return True

        def wd_tr(now, force=False):
            n = len(wdt)
            kp, u_, db = n // 4, (n >> 1) & 1, n & 1
            if n == 112 or len(wdd) <= 2 * kp + u_ or (not force and (wd_regs[kp][0] > now or wdd[2 * kp + u_][1] > now)):
                return False
            vm.wait(wdd[2 * kp + u_][0])
            sl = slot_of[2 * kp + u_]
            wdt.append(lg.op(f"ds_read_b64_tr_b16 {wd_regs[kp][1](4*db+2*u_, 2)}, v{(26 if db else vDT) if sl < 8 else 56 + db} offset:{(sl % 8) * 1024}"))
            return True

        aQ = 128
        hl = []

        def hload():
            n = len(hl)
            p, kp = n // 28, n % 28
            if p == 1:
                if kp == 0:
                    k(f"s_cmp_eq_u32 s{sHALF}, 0")
                    k("s_movk_i32 s58, 1024")
                    k(f"s_cselect_b32 s{sST1}, 0x4000, s58")
                    k(f"s_cselect_b32 s59, s{sAB}, s{sAB+1}")
                    k("s_cselect_b64 vcc, -1, 0")
                    k(f"s_mul_i32 s58, s{sW}, 28")
                    k(f"s_mul_i32 s58, s58, s{sST1}")
                    k("s_add_u32 s59, s59, s58")
                    k(f"v_cndmask_b32 {v(vP1)}, {v(vL16)}, {v(vPA)}, vcc")
                    k(f"s_mul_i32 s58, s{sST1}, 7")
                if ROTD and kp % 7 == 0:
                    quarter(45, kp // 7, "s58", 59)
                elif kp:
                    k(f"s_add_u32 s{45 if ROTD else 59}, s{45 if ROTD else 59}, s{sST1}")
                hl.append(vm.op(f"buffer_load_dwordx4 {a(aQ+4*(n%24),4)}, {v(vP1)}, s[8:11], s{45 if ROTD else 59} offen{LD}"))
                return
            if ROTD:
                if kp % 7 == 0:
                    quarter(45, kp // 7, 7168, sHP)
                if kp % 7 == 4:
                    k("s_add_u32 s45, s45, 4096")
                hl.append(vm.op(f"buffer_load_dwordx4 {a(aQ+4*(n%24),4)}, {v(vL16)}, s[8:11], s45 offen offset:{(kp%7%4)*1024}{LD}"))
                return
            hl.append(vm.op(f"buffer_load_dwordx4 {a(aQ+4*(n%24),4)}, {v(vL16)}, s[8:11], s{sHP} offen offset:{(kp%4)*1024}{LD}"))
            if kp % 4 == 3:
                k(f"s_add_u32 s{sHP}, s{sHP}, 4096")

        vF, vAcc, LOOK = 32, 128, 4
        accreg = {0: vAcc, 2: vAcc + 32, 1: vAcc + 64, 3: vAcc + 96}
        fr = {}

        def rd4(u):
            kp, b = uses[u]
            fr[u] = lg.op(f"ds_read_b128 {v(vF+4*(u%6),4)}, {v(vL16 if b < 2 else vB1)} offset:{(b&1)*28672+kp*1024}")

        last_st = [None]
        clock = [0]

        def hp_store(b, u):
            vo, off, pol = vL16, u * 1024, " sc1" if MB else mode
            if b == 1:
                vo, off = vPA, 0
                k(f"s_lshl_b32 s38, s{sFB}, 15\ns_add_u32 s38, s38, s{sAB}" if u == 0 else "s_add_u32 s38, s38, 16384")
            elif b == 3:
                if u == 0:
                    k(f"s_lshl_b32 s38, s{sFB}, 11\ns_add_u32 s38, s38, s{sAB+1}")
            else:
                pol = " sc1" if MA else mode
                if u == 0:
                    k(f"s_add_u32 s38, s{sHS}, {b*112*1024}")
            last_st[0] = vm.op(f"buffer_store_dwordx4 {v(accreg[b]+4*u,4)}, {v(vo)}, s[8:11], s38 offen offset:{off}{pol}")
            shadow[0] = clock[0] + (20 if pol else 11)

        def epilogue(ps):
            items = [(b, r) for b in (ps, ps + 2) for r in range(8)]
            out = []
            for i in range(len(items) + 1):
                grp = []
                if i < len(items):
                    b, r = items[i]
                    g_, u_ = accreg[b], accreg[b] + 16
                    grp += [f"v_mul_f32 {v(u_+2*r)}, {v(g_+2*r)}, {v(u_+2*r)}",
                            f"v_mul_f32 {v(u_+2*r+1)}, {v(g_+2*r+1)}, {v(u_+2*r+1)}"]
                if i > 0:
                    b, r = items[i - 1]
                    grp.append(f"v_cvt_pk_bf16_f32 {v(accreg[b]+r)}, {v(accreg[b]+16+2*r)}, {v(accreg[b]+17+2*r)}")
                out.append(grp)
                if i > 0 and items[i - 1][1] % 4 == 3:
                    out.append(lambda b=items[i - 1][0], u=items[i - 1][1] // 4: hp_store(b, u))
            return out

        chunks = eval(os.environ.get("CHUNKS", "{0: 2, 3: 6, 7: 15, 16: 27}"))
        for _ in range(NDMA0):
            dma()
        k("s_waitcnt lgkmcnt(0)")
        vm.wait(Dm[chunks[0]])
        k("s_barrier")
        k.stamp()
        for u in range(LOOK):
            rd4(u)
        epi = epilogue(0)
        checked = False
        for u in range(112):
            kp, b = uses[u]
            clock[0] = u
            if (u + LOOK) % 4 == 0 and (u + LOOK) // 4 in chunks:
                vm.wait(Dm[chunks[(u + LOOK) // 4]])
                k("s_barrier")
            if n2 and u == free2:
                k("s_barrier")
            if u == uB + DRAIN_A:
                assert not epi
                vm.wait(last_st[0])
                arrive(256)
            if u == uB + POLL_A:
                markA = vm.op(pload(256))
            if u == uB + CHECK_A:
                poll(256, markA)
                checked = True
            if u == 1:
                lg.op("ds_read2st64_b32 v[12:13], v7 offset1:1")
                ssr = lg.op("ds_read2st64_b32 v[14:15], v7 offset0:2 offset1:3")
                k(f"s_lshl_b32 s26, s{sCT}, 8")
                k(f"s_add_u32 s26, s26, s{sSS}")
            if u == 5:
                lg.wait(ssr)
                k("v_add_f32 v12, v12, v13")
                k("v_add_f32 v14, v14, v15")
                k("v_add_f32 v12, v12, v14")
                vm.op(f"buffer_store_dword v12, {v(vL4)}, s[8:11], s26 offen{mode}")
            if u % 2 == 0:
                lg.wait(fr[u + 1])
            busy = u >= uB + 1 and bool(epi)
            for m in range(2):
                acc = accreg[b] + 16 * m
                k(f"v_mfma_f32_32x32x16_bf16 {v(acc,16)}, {a(8*kp+4*m,4)}, {v(vF+4*(u%6),4)}, {'0' if kp == 0 else v(acc,16)}")
                if m == 0:
                    if u + LOOK < 112:
                        rd4(u + LOOK)
                    wd_tr(u)

                    def memop():
                        if len(Dm) < 16 and u % DRATE != DRATE - 1:
                            dma()
                        elif checked and len(hl) < RING and last_use[16 + len(hl) // 2] < u:
                            hload()
                        elif not (u % 3 != 2 and wd_dma(u)):
                            dma() if len(Dm) < 28 else wd_dma(u)

                    if busy:
                        put(epi)
                    n0 = vm.n
                    held = capture(memop)
                    k("\n".join(held[:-1]))
                    vm.n, n1 = n0, vm.n
                else:
                    k("\n".join(held[-1:]))
                    vm.n = n1
                    if busy:
                        put(epi)
                    else:
                        wd_tr(u)
                if os.environ.get("TL") and m == 1 and not mode:
                    print(u, len(Dm), len(wdd), len(wdt), file=sys.stderr)
            if u in P4ST:
                k.stamp(1)
            if u == uB - 1 or u == 111:
                k.stamp()
        print("after P4: ring loads", len(wdd), "transposed reads", len(wdt), "h loads", len(hl), file=sys.stderr)
        vRW, vRR, vR2, vHR, vSP = 12, 20, 22, 24, 32
        vAc5, vT5 = 128, 192
        fill = epilogue(1)
        clock[0] = -999
        if not checked:
            assert EPI_B0 <= 14
            put(fill, EPI_B0)
            poll(256, markA)
        while len(fill) > EPIB:
            if len(hl) < 8:
                hload()
            put(fill, 2)
        rest_epi = fill
        fill = [["v_and_b32 v6, 31, v1", "v_lshrrev_b32 v7, 5, v1", "v_and_b32 v27, 7, v1", "v_xor_b32 v7, v7, v27"],
                [f"s_lshl_b32 s26, s{sW}, 13", "v_lshlrev_b32 v7, 4, v7", "v_lshl_add_u32 v7, v6, 8, v7", f"v_add_u32 {v(vRW)}, s26, v7"],
                [f"v_xor_b32 {v(vRW+i)}, {32*i}, {v(vRW)}" for i in range(1, 5)],
                [f"v_xor_b32 {v(vRW+i)}, {32*i}, {v(vRW)}" for i in range(5, 8)],
                ["v_lshrrev_b32 v6, 3, v1", f"s_and_b32 s26, s{sW}, 1", "s_lshl_b32 s26, s26, 2", f"v_xor_b32 v7, v27, {v(vG)}",
                 "v_xor_b32 v7, s26, v7"],
                ["v_lshlrev_b32 v7, 1, v7", "v_xor_b32 v7, v7, v6", f"s_lshl_b32 s26, s{sW}, 11", "v_lshlrev_b32 v7, 4, v7"],
                ["v_lshl_add_u32 v7, v6, 8, v7", f"v_add_u32 {v(vRR)}, s26, v7", f"v_xor_b32 {v(vRR+1)}, 16, {v(vRR)}"],
                [f"s_lshl_b32 s26, s{sW}, 10", f"s_add_u32 s26, s26, {XT}", f"v_add_u32 {v(vHR)}, s26, {v(vL16)}",
                 f"s_lshl_b32 s26, s{sW}, 5", "v_lshl_add_u32 v28, v6, 2, s26"]]
        ssl = []

        def ssload(i):
            for j in range(2 * i, min(2 * i + 2, 7)):
                ssl.append(vm.op(f"buffer_load_dword {v(vSP+j)}, {v(vL4)}, s[8:11], s{sSS} offen offset:{256*j}{LD}"))

        fill = rest_epi + fill + [lambda i=i: ssload(i) for i in range(4)]
        r2calc = [[f"v_add_f32 {v(vSP)}, {v(vSP)}, {v(vSP+1)}", f"v_add_f32 {v(vSP+2)}, {v(vSP+2)}, {v(vSP+3)}",
                   f"v_add_f32 {v(vSP+4)}, {v(vSP+4)}, {v(vSP+5)}", f"v_add_f32 {v(vSP)}, {v(vSP)}, {v(vSP+6)}"],
                  [f"v_add_f32 {v(vSP+2)}, {v(vSP+2)}, {v(vSP+4)}", f"v_mov_b32 {v(vSP+1)}, {f2u(EPS)}",
                   f"v_add_f32 {v(vSP)}, {v(vSP)}, {v(vSP+2)}", f"v_fmac_f32 {v(vSP+1)}, {f2u(1.0/448)}, {v(vSP)}"],
                  [f"v_rcp_f32 {v(vSP)}, {v(vSP+1)}", "v_add_u32 v29, 128, v28"],
                  [f"ds_bpermute_b32 {v(vR2)}, v28, {v(vSP)}", f"ds_bpermute_b32 {v(vR2+1)}, v29, {v(vSP)}"]]

        def red_write(p):
            q_ = [[f"ds_write_b128 {v(vRW+i)}, {v(vAc5+32*p+4*i,4)} offset:{p*32768}"] for i in range(8)]
            return q_ + [[f"ds_read_b128 {v(vT5+32,4)}, {v(vHR)} offset:{p*4096}"]]

        def red_read(p):
            q_ = [["s_waitcnt lgkmcnt(0)", "s_barrier"] +
                  [f"ds_read_b128 {v(vT5+4*z,4)}, {v(vRR+z)} offset:{p*32768}" for z in range(2)]]
            for j in range(1, 4):
                q_.append([f"ds_read_b128 {v(vT5+8*j+4*z,4)}, {v(vRR+z)} offset:{p*32768+j*8192}" for z in range(2)])
            for h2 in range(2):
                q_.append([t_ for q in (2 * h2, 2 * h2 + 1) for t_ in
                           (f"v_lshlrev_b32 {v(vT5+36+2*q)}, 16, {v(vT5+32+q)}",
                            f"v_and_b32 {v(vT5+37+2*q)}, 0xffff0000, {v(vT5+32+q)}")])
            for j, (d_, s_) in enumerate(((0, 8), (16, 24), (0, 16))):
                for h2 in range(2):
                    q_.append(([f"s_waitcnt lgkmcnt({4 if j == 0 else 0})"] if h2 == 0 and j < 2 else []) +
                              ([f"v_add_f32 {v(vT5+d_+r)}, {v(vT5+d_+r)}, {v(vT5+s_+r)}" for r in range(4 * h2, 4 * h2 + 4)] if p == 0 else
                               [f"v_pk_add_f32 {v(vT5+d_+r,2)}, {v(vT5+d_+r,2)}, {v(vT5+s_+r,2)}" for r in range(4 * h2, 4 * h2 + 4, 2)]))
            for h2 in range(2):
                q_.append([f"v_fmac_f32 {v(vT5+36+r)}, {v(vT5+r)}, {v(vR2+p)}" for r in range(4 * h2, 4 * h2 + 4)] if p == 0 else
                          [f"v_pk_fma_f32 {v(vT5+36+r,2)}, {v(vT5+r,2)}, {v(vR2,2)}, {v(vT5+36+r,2)} op_sel:[0,1,0]" for r in range(4 * h2, 4 * h2 + 4, 2)])
            q_.append([f"v_cvt_pk_bf16_f32 {v(vT5+8+q)}, {v(vT5+36+2*q)}, {v(vT5+37+2*q)}" for q in range(4)])
            q_.append(lambda: vm.op(f"buffer_store_dwordx4 {v(vT5+8,4)}, {v(vXO)}, s[16:19], s{sXO+p} offen{SCO}"))
            return q_

        if P5ST:
            k.stamp(1)
        def mf5(n, dl):
            acc = vAc5 + 32 * (n // 28) + 16 * dl
            k(f"v_mfma_f32_32x32x16_bf16 {v(acc,16)}, {wd_regs[n % 28][1](4*dl, 4)}, {a(aQ+4*(n%24),4)}, {'0' if n % 28 == 0 else v(acc,16)}")

        for n in range(56 - TAILR):
            p, kp = n // 28, n % 28
            now = 112 + n
            if n == DRAIN_B:
                assert len(wdt) == 112 or not n2
                lg.wait(wdt[-1])
                vm.wait(last_st[0])
                arrive(512)
            if n == POLL_B:
                markB = vm.op(pload(512))
            if n == CHECK_B:
                k.stamp()
                poll(512, markB)
            if n == 22:
                assert len(wdt) == 112
                vm.wait(ssl[6])
                fill += r2calc
            if n == LATE and F_LATE in WBL:
                k(f"s_add_u32 s26, s{sFI}, {F_LATE}")
                vm.op(f"buffer_store_dword {v(vOne)}, off, s[8:11], s26{mode}")
            if n == 29 and not BLK:
                assert not fill
                fill = red_write(0)
            if n == 28 and BLK:
                assert not fill
                fill = red_write(0)
                while fill:
                    if len(hl) < 28 + RING1:
                        hload()
                    put(fill, 2)
            if n == RED0:
                assert not fill
                fill = red_read(0)
            if p == 0:
                while len(wdt) < 4 * kp + 4:
                    assert wd_tr(now, True)
                lg.wait(wdt[4 * kp + 3])
            vm.wait(hl[n])
            for dl in range(2):
                acc = vAc5 + 32 * p + 16 * dl
                k(f"v_mfma_f32_32x32x16_bf16 {v(acc,16)}, {wd_regs[kp][1](4*dl, 4)}, {a(aQ+4*(n%24),4)}, {'0' if kp == 0 else v(acc,16)}")
                if len(wdt) < 112:
                    if len(wdt) >= 8:
                        lg.wait(wdt[-8])
                    wd_tr(now)
                    if dl == 1:
                        wd_dma(now)
                if dl == 0:
                    if len(hl) < (28 if n < CHECK_B else 56) and len(hl) < n + 24:
                        hload()
                    else:
                        put(fill)
                else:
                    put(fill, 2 if n < (EPIB + 1) // 2 + 2 * (EPIB > 15) else 1)
            if n in P5ST:
                k.stamp(1)
        put(fill, 99)
        fill = red_write(1)
        fill.insert(0, fill.pop())
        for n in range(56 - TAILR, 56):
            vm.wait(hl[n])
            mf5(n, 0)
        put(fill)
        for i, n in enumerate(range(56 - TAILR, 56)):
            mf5(n, 1)
            if i >= 1:
                put(fill, 2 if i == TAILR - 1 else 1)
        k.stamp()
        put(fill, 99)
        put(red_read(1), 99)
        if k.prof:
            k("s_waitcnt vmcnt(0)")
        if DBGT:
            k.stamp(-1)
            k("s_waitcnt lgkmcnt(0)")
            k("s_mov_b64 exec, 1")
            k("v_mov_b32 v1, 0")
            for i in range(1, k._nst):
                k(f"s_sub_u32 s26, s{64+2*i}, s{62+2*i}")
                k("v_mov_b32 v0, s26")
                k(f"global_atomic_add v1, v0, s[{sDBG}:{sDBG+1}] offset:{4*(i-1)} sc1")
        else:
            k.stamp_flush(6, PROF, sW)
        k("s_endpgm")

    k.label(FAST)
    rest("")

    k.label(SPARE)
    vm.n = vm.done = 0
    k._nst = min(1, getattr(k, "_nst", 0))
    sE = 21
    k(f"s_sub_u32 s{sE}, s2, 224")
    k(f"v_lshlrev_b32 {v(vL16)}, 4, v1")
    k("v_lshlrev_b32 v6, 7, v1")
    k("s_waitcnt lgkmcnt(0)")
    k.srd(8, 6, WS_BYTES)
    NZ = k.lab("nz")
    k(f"s_cmp_lt_u32 s{sE}, 24")
    k(f"s_cbranch_scc1 {NZ}")
    for j in range(4):
        k(f"v_mov_b32 v{108+j}, 0")
    k(f"s_sub_u32 s34, s{sE}, 24")
    k(f"s_lshl2_add_u32 s33, s34, s{sW}")
    k("s_lshl_b32 s33, s33, 11")
    k(f"s_add_u32 s33, s33, {FL}")
    k(f"buffer_store_dwordx4 v[108:111], {v(vL16)}, s[8:11], s33 offen sc1")
    k(f"buffer_store_dwordx4 v[108:111], {v(vL16)}, s[8:11], s33 offen offset:1024 sc1")
    k("v_mov_b32 v2, 1")
    k("s_lshl_b32 s34, s34, 2")
    k("v_mov_b32 v5, s34")
    k("s_waitcnt vmcnt(0)")
    k("s_barrier")
    wave0(f"global_store_dword v5, v2, s[{sDBG}:{sDBG+1}]{ZOFF} sc1", 1)
    k.label(NZ)
    k.stamp(-1)
    k(f"s_lshr_b32 s22, s{sE}, 3")
    k(f"s_lshl2_add_u32 s22, s22, s{sW}")
    k("s_lshl_b32 s23, s22, 13")
    k.srd(12, 52, WGB)
    k.srd(16, 54, WGB)
    k.srd(24, 56, WGB)
    k.srd(28, 58, XB)
    n = [0]

    def touch(srd, soff, vo=6):
        k(f"buffer_load_dword v{8 + n[0] % 48}, v{vo}, s[{srd}:{srd+3}], s{soff} offen ; alt")
        n[0] += 1

    for job in SP_LIST:
        if job == "G":
            for off in range(SP_D0 * 3584, SP_D1 * 3584, 16 * 8192):
                k(f"s_add_u32 s40, s23, {off}")
                touch(12, 40)
                touch(16, 40)
        if job == "X":
            nt = 2 * len(range(SP_D0 * 3584, WGB, 16 * 8192))
            k("s_and_b32 s42, s2, 7")
            k(f"s_mov_b32 s46, {WGB}")
            k("s_mov_b32 s47, 0x20000")
            for i in range(-(-nt // WIN) * WIN):
                k(f"s_add_u32 s40, s42, {i}")
                k(f"s_and_b32 s40, s40, {WIN - 1}")
                k(f"s_add_u32 s40, s40, {i // WIN * WIN}")
                k("s_bitcmp1_b32 s40, 0")
                k("s_cselect_b32 s44, s16, s12")
                k("s_cselect_b32 s45, s17, s13")
                k("s_lshr_b32 s40, s40, 1")
                k("s_lshl_b32 s40, s40, 17")
                k("s_add_u32 s40, s40, s23")
                k(f"s_add_u32 s40, s40, {SP_D0*3584}")
                touch(44, 40)
        if job == "H":
            k("v_lshrrev_b32 v7, 4, v1")
            k("v_mul_u32_u24 v7, 0xe00, v7")
            k("v_and_b32 v5, 15, v1")
            k("v_min_u32 v5, 13, v5")
            k("v_lshl_add_u32 v7, v5, 7, v7")
            k("s_and_b32 s41, s2, 1")
            k("s_mul_i32 s41, s41, 1792")
            k(f"s_mul_i32 s40, s22, {4*3584}")
            k("s_add_u32 s41, s41, s40")
            for d0 in range(SP_D0, 448, 64):
                k(f"s_add_u32 s40, s41, {d0*3584}")
                touch(12, 40, 7)
                touch(16, 40, 7)
        if job == "d":
            k("s_and_b32 s40, s2, 7")
            k(f"s_mul_i32 s40, s40, {3*8*8192 if ROTS else 0}")
            k("s_add_u32 s40, s40, s23")
            for off in range(0, WGB, 16 * 8192):
                touch(24, 40)
                k(f"s_add_u32 s40, s40, {16*8192}")
                k(f"s_cmp_ge_u32 s40, {13*16*8192}")
                k(f"s_cselect_b32 s41, {13*16*8192}, 0")
                k("s_sub_u32 s40, s40, s41")
        if job == "R":
            k("s_and_b32 s42, s2, 7")
            k(f"s_min_u32 s42, s42, {6 if ROTW else 0}")
            k("s_lshl_b32 s42, s42, 2")
            k("s_min_u32 s43, s22, 13")
            k("s_cmp_ge_u32 s43, 7")
            k("s_cselect_b32 s44, s16, s12")
            k("s_cselect_b32 s45, s17, s13")
            k("s_cselect_b32 s41, 7, 0")
            k("s_sub_u32 s43, s43, s41")
            k("s_lshl_b32 s43, s43, 13")
            k(f"s_mov_b32 s46, {WGB}")
            k("s_mov_b32 s47, 0x20000")
            for kp in range(SP_K, 28):
                k(f"s_add_u32 s40, s42, {kp}")
                k("s_cmp_ge_u32 s40, 28")
                k("s_cselect_b32 s41, 28, 0")
                k("s_sub_u32 s40, s40, s41")
                k("s_mul_i32 s40, s40, 57344")
                k("s_add_u32 s40, s40, s43")
                touch(44, 40)
        if job == "e":
            for off in range(0, 192 * 896, 16 * 8192):
                for q in range(4):
                    k(f"s_add_u32 s40, s23, {off}")
                    k(f"s_min_u32 s40, s40, {192*896 - 8192}")
                    k(f"s_add_u32 s40, s40, {q*448*896}")
                    touch(24, 40)
        if job == "h":
            k("s_and_b32 s41, s2, 7")
            k(f"s_mul_i32 s41, s41, {8*112*1024}")
            k(f"s_add_u32 s41, s41, {HP}")
            k("s_min_u32 s42, s22, 13")
            k("s_lshl_b32 s42, s42, 13")
            k("s_add_u32 s41, s41, s42")
            for blk in range(4):
                touch(8, 41)
                k(f"s_add_u32 s41, s41, {2*112*1024}")
        if job in "aw":
            k(f"s_lshl2_add_u32 s40, s{sE}, s{sW}")
            k("s_lshl_b32 s40, s40, 13")
            k(f"s_add_u32 s40, s40, {AT if job == 'a' else WT}")
            touch(8, 40)
            k("s_add_u32 s40, s40, 0x100000")
            k(f"s_min_u32 s40, s40, {(AT if job == 'a' else WT) + 223*8192}")
            touch(8, 40)
        if job in "AB":
            k("s_and_b32 s41, s2, 7")
            if job == "A":
                k("v_lshrrev_b32 v7, 2, v1")
                k("v_lshlrev_b32 v7, 12, v7")
                k("v_and_b32 v5, 3, v1")
                k("v_lshl_add_u32 v7, v5, 7, v7")
                k("s_lshl_b32 s41, s41, 9")
            else:
                k("v_lshrrev_b32 v7, 1, v1")
                k("v_lshlrev_b32 v7, 11, v7")
                k("v_and_b32 v5, 1, v1")
                k("v_lshl_add_u32 v7, v5, 7, v7")
                k("s_lshl_b32 s41, s41, 8")
                k(f"s_add_u32 s41, s41, {WT}")
            for i in range(2):
                k(f"s_add_u32 s40, s22, {16*i}")
                k("s_min_u32 s40, s40, 27")
                k("s_lshl_b32 s40, s40, 16")
                k("s_add_u32 s40, s40, s41")
                touch(8, 40, 7)
        if job == "o":
            k(f"s_lshl2_add_u32 s40, s{sE}, s{sW}")
            k("s_lshl_b32 s40, s40, 13")
            touch(28, 40)
            k("s_add_u32 s40, s40, 0x100000")
            touch(28, 40)
    if k.prof:
        k("s_waitcnt vmcnt(0)")
        k.stamp_flush(6, PROF, sW, 2)
    if WBL:
        k("s_cmp_lg_u32 s22, 0")
        k(f"s_cbranch_scc1 {END}")
        k("v_lshlrev_b32 v3, 2, v1")
        k("v_min_u32 v7, 28, v3")
        vm.n = vm.done = 0
        spin(f"global_load_dword v112, v7, s[{sDBG}:{sDBG+1}]{ZOFF} sc1", "v_cmp_eq_u32 vcc, 0, v112")
        k("v_min_u32 v3, 220, v3")
        k("s_and_b32 s22, s2, 7")
        k("s_lshl_b32 s22, s22, 11")
        k(f"s_add_u32 s22, s22, {FL}")
        k("s_movk_i32 s23, 1024")
        for off in WBL:
            lp = k.lab("wl")
            if off == F_LATE:
                k(f"s_add_u32 s22, s22, {F_LATE}")
                off = 0
            k.label(lp)
            k(f"buffer_load_dword v4, v3, s[8:11], s22 offen offset:{off} sc1")
            k(f"buffer_load_dword v5, v3, s[8:11], s22 offen offset:{off+1024} sc1")
            k("s_sub_u32 s23, s23, 1")
            k("s_waitcnt vmcnt(0)")
            k("s_cmp_eq_u32 s23, 0")
            k(f"s_cbranch_scc1 {END}")
            k("v_and_b32 v4, v4, v5")
            k("v_cmp_eq_u32 vcc, 0, v4")
            k("s_nop 0")
            k(f"s_cbranch_vccnz {lp}")
            k("buffer_wbl2 sc1")
            k("s_waitcnt vmcnt(0)")
    k.label(END)
    k("s_endpgm")
    for o in outline:
        k(o)
    del outline[:]
    k.label(SLOW)
    rest(" sc1")
    for o in outline:
        k(o)
    return k


def build(k, as_list=False):
    body, desc = k.emit()
    print(k.stats, file=sys.stderr)
    head = ["; Fused preLN + GFNet spectral filter + preLN bilinear GLU in one launch (written with the generator gen/one.py)",
            "; kernarg: 0 A_x, 8 A_w_r, 16 A_w_i, 24 B_x (unused), 32 w_gate, 40 w_up, 48 w_down, 56 out, 64 debug, 72 ws",
            "; 224 workgroups run five phases, with hand-offs through d_ws (stores drained, then one word per producer):",
            ";   P1 row statistics + real DFT along D as a GEMM (bins 1..224; bin 0 of a normalised row is zero) + filter transposition",
            ";   P2 one spectral column each: 2048-point FFT as 64 x 32 on the matrix pipe, filter, inverse FFT",
            ";   P3 inverse DFT along D + residual, P4 gate/up GEMM and product, P5 down GEMM, 1/(var+eps), residual",
            "; The row-block hand-offs use plain stores only after a run-time census shows the whole group on one XCD,",
            "; otherwise a second copy of the code uses write-through stores.  32 more workgroups zero the hand-off words",
            "; (announced in d_debug) and read weights and code ahead into their XCD's L2.",
            f"; @launch {'kernel=' + k.name + ' ' if as_list else ''}grid=(256,1,1) block=(256,1,1) lds={LDS}",
            '.amdgcn_target "amdgcn-amd-amdhsa--gfx950"', ".text"]
    return "\n".join(head + [body, '.section .rodata,"a"', ".p2align 6", desc]) + "\n"


if __name__ == "__main__":
    if "--prof" in sys.argv:
        Kern.prof = True
        sys.argv.remove("--prof")
    path = sys.argv[1] if len(sys.argv) > 1 else "sequential_preLN__spectral_gfnet__glu_gated_bilinear__prompt.s"
    open(path, "w").write(build(gen(), as_list=len(sys.argv) > 1))
```
